```python
import torch

def _softmax(x, axis=-1):
    return torch.softmax(x, dim=axis)
def _gelu(x):
    return torch.nn.functional.gelu(x, approximate="tanh")
def _silu(x):
    return torch.nn.functional.silu(x)
def _sigmoid(x):
    return torch.sigmoid(x)
def _layernorm(x, axis=-1, eps=1e-5):
    m = x.mean(dim=axis, keepdim=True)
    v = x.var(dim=axis, keepdim=True, unbiased=False)
    return (x - m) / torch.sqrt(v + eps)
def _scatter_add(tgt, idx, src, axis=0):
    return tgt.clone().index_add_(axis, idx, src)
def _segment_sum(src, seg, n):
    out = torch.zeros((n,) + src.shape[1:], dtype=src.dtype)
    return out.index_add_(0, seg, src)
def _pad(x, pw):
    flat = tuple(v for pair in reversed(pw) for v in pair)
    return torch.nn.functional.pad(x, flat)

kernel_name = 'sequential_preLN__compressed_kv_cla__glu_gated_geglu__decode'

def setup_inputs():

    _w = (lambda a: (lambda t: t.to(torch.bfloat16) if t.is_floating_point() else t)(torch.as_tensor(a)))
    def _A_setup():
        B, H, Sq, Sk, D, M = 4, 32, 1, 8192, 128, 512
        Dc = 4 * D
        return {
            "x": _w((lambda *s: torch.randn(*s, dtype=torch.bfloat16) * 0.05)(B, Sq, M)),
            "c_kv": _w((lambda *s: torch.randn(*s, dtype=torch.bfloat16) * 0.8)(B, Sk, Dc)),
            "w_q": _w((lambda *s: torch.randn(*s, dtype=torch.bfloat16) * 1.6)(M, H, D) * (M ** -0.5)),
            "w_uk": _w((lambda *s: torch.randn(*s, dtype=torch.bfloat16) * 1.6)(Dc, H, D) * (Dc ** -0.5)),
            "w_uv": _w((lambda *s: torch.randn(*s, dtype=torch.bfloat16) * 0.8)(Dc, H, D) * (Dc ** -0.5)),
            "w_o": _w((lambda *s: torch.randn(*s, dtype=torch.bfloat16) * 0.8)(H, D, M) * ((H * D) ** -0.5)),
        }
    _A_in = _A_setup()

    def _B_setup():
        B, S, Dm, Df = 4, 1, 512, 1376
        return {
            "x": _w((lambda *s: torch.randn(*s, dtype=torch.bfloat16) * 0.05)(B, S, Dm)),
            "w_gate": _w((lambda *s: torch.randn(*s, dtype=torch.bfloat16) * 0.4)(Dm, Df) * (Dm ** -0.5)),
            "w_up": _w((lambda *s: torch.randn(*s, dtype=torch.bfloat16) * 0.4)(Dm, Df) * (Dm ** -0.5)),
            "w_down": _w((lambda *s: torch.randn(*s, dtype=torch.bfloat16) * 0.4)(Df, Dm) * (Df ** -0.5)),
        }
    _B_in = _B_setup()

    return {
        "A_x": _A_in["x"],
        "A_c_kv": _A_in["c_kv"],
        "A_w_q": _A_in["w_q"],
        "A_w_uk": _A_in["w_uk"],
        "A_w_uv": _A_in["w_uv"],
        "A_w_o": _A_in["w_o"],
        "B_x": _B_in["x"],
        "B_w_gate": _B_in["w_gate"],
        "B_w_up": _B_in["w_up"],
        "B_w_down": _B_in["w_down"],
    }

def reference(A_x, A_c_kv, A_w_q, A_w_uk, A_w_uv, A_w_o, B_x, B_w_gate, B_w_up, B_w_down):
    def _A_ref(x, c_kv, w_q, w_uk, w_uv, w_o):
        B, Sq, M = x.shape[0], x.shape[1], x.shape[2]
        Sk = c_kv.shape[1]
        H, D = w_q.shape[1], w_q.shape[2]
        q = torch.einsum("bqm,mhd->bhqd", x, w_q)
        k = torch.einsum("bkc,chd->bhkd", c_kv, w_uk)
        v = torch.einsum("bkc,chd->bhkd", c_kv, w_uv)
        scores = torch.einsum("bhqd,bhkd->bhqk", q, k) * (D ** -0.5)
        off = Sk - Sq
        qi = torch.arange(Sq)[:, None]
        kj = torch.arange(Sk)[None, :]
        cmask = kj <= (qi + off)
        scores = torch.where(cmask[None, None], scores, -1e9)
        p = _softmax(scores, axis=-1)
        ctx = torch.einsum("bhqk,bhkd->bhqd", p, v)
        return torch.einsum("bhqd,hdm->bqm", ctx, w_o)

    def _B_ref(x, w_gate, w_up, w_down):
        g = torch.einsum("bsd,df->bsf", x, w_gate)
        u = torch.einsum("bsd,df->bsf", x, w_up)
        h = _gelu(g) * u
        return torch.einsum("bsf,fd->bsd", h, w_down)

    x = A_x
    h = x + _A_ref(_layernorm(x, axis=-1), A_c_kv, A_w_q, A_w_uk, A_w_uv, A_w_o)
    h2 = h + _B_ref(_layernorm(h, axis=-1), B_w_gate, B_w_up, B_w_down)
    return h2
```

```python
import re

_REG = re.compile(r'^(-|\|)?(?:abs\()?([vsa])(?:(\d+)|\[(\d+):(\d+)\])\)?\|?$')
TRANS = ('v_exp_f32', 'v_log_f32', 'v_rcp_f32', 'v_rsq_f32', 'v_sqrt_f32', 'v_sin_f32', 'v_cos_f32',
         'v_rcp_iflag_f32')


def regs_of(tok):
    tok = tok.strip()
    if tok in ('vcc',):
        return [('s', 106), ('s', 107)]
    if tok == 'vcc_lo':
        return [('s', 106)]
    if tok == 'vcc_hi':
        return [('s', 107)]
    if tok == 'exec':
        return [('s', 126), ('s', 127)]
    if tok == 'exec_lo':
        return [('s', 126)]
    if tok == 'exec_hi':
        return [('s', 127)]
    if tok == 'm0':
        return [('s', 124)]
    m = _REG.match(tok)
    if not m:
        return []
    f = m.group(2)
    if m.group(3) is not None:
        lo = hi = int(m.group(3))
    else:
        lo, hi = int(m.group(4)), int(m.group(5))
    return [(f, i) for i in range(lo, hi + 1)]


def split_ops(rest):
    ops, depth, cur = [], 0, ''
    mods = []
    for ch in rest + ',':
        if ch in '[(':
            depth += 1
        elif ch in '])':
            depth -= 1
        if ch == ',' and depth == 0:
            parts = cur.split()
            if parts:
                ops.append(parts[0])
                mods += parts[1:]
            cur = ''
        else:
            cur += ch
    return ops, mods


class Ins:
    def __init__(self, text):
        self.text = text
        code = text.split(';')[0].strip()
        self.noflush = ';noflush' in text
        sp = code.split(None, 1)
        self.mn = sp[0]
        rest = sp[1] if len(sp) > 1 else ''
        self.ops, self.mods = split_ops(rest)
        mn = self.mn
        o = [regs_of(x) for x in self.ops]
        self.kind = 'other'
        self.w = []
        self.r = []
        self.srcc = []
        self.srcab = []
        self.passes = 0
        self.dpp = any(m.startswith(('row_', 'quad_perm', 'wave_')) for m in self.mods) or mn.endswith('_dpp')
        self.sdwa = mn.endswith('_sdwa') or any(m.startswith('op_sel') for m in self.mods)
        self.trans = mn.replace('_e32', '').replace('_e64', '') in TRANS
        self.wide_store = False
        self.lanesel = []
        flat = lambda l: [x for y in l for x in y]
        if mn.startswith('v_mfma'):
            self.kind = 'mfma'
            self.passes = 8 if '32x32x16' in mn else 4 if ('16x16x32' in mn or '16x16x16' in mn) else None
            assert self.passes, mn
            self.w = o[0]
            self.srcab = o[1] + o[2]
            self.srcc = o[3]
            self.r = self.srcab + self.srcc
        elif mn.startswith('v_'):
            self.kind = 'valu'
            if mn.startswith('v_dot'):
                self.kind = 'dl'
            if mn.startswith('v_permlane') and 'swap' in mn:
                self.w = o[0] + o[1]
                self.r = o[0] + o[1]
                self.perml = True
            elif mn.startswith('v_cmpx'):
                self.w = o[0] + regs_of('exec')
                self.r = flat(o[1:])
            elif mn.startswith(('v_add_co', 'v_sub_co', 'v_subrev_co', 'v_addc_co', 'v_subb_co', 'v_mad_u64_u32')):
                self.w = o[0] + o[1]
                self.r = flat(o[2:])
            else:
                self.w = o[0]
                self.r = flat(o[1:])
                if mn.startswith(('v_fmac', 'v_dot2c', 'v_pk_fmac', 'v_writelane')) or self.dpp or self.sdwa:
                    self.r = self.r + o[0]
                if mn.startswith(('v_readlane', 'v_writelane')):
                    self.lanesel = o[2]
        elif mn.startswith('ds_'):
            self.kind = 'ds'
            if mn.startswith(('ds_read', 'ds_bpermute', 'ds_permute', 'ds_swizzle')) or '_rtn' in mn:
                self.w = o[0]
                self.r = flat(o[1:])
            else:
                self.r = flat(o)
        elif mn.startswith(('buffer_', 'global_')):
            self.kind = 'vmem'
            lds = 'lds' in self.mods or '_lds_' in mn
            if lds:
                self.r = flat(o) + [('s', 124)]
                self.ldsdma = True
            elif '_load' in mn:
                self.w = o[0]
                self.r = flat(o[1:])
            elif 'atomic' in mn and 'sc0' in self.mods:
                if mn.startswith('global'):
                    self.w = o[0]
                    self.r = flat(o[1:])
                else:
                    self.w = o[0]
                    self.r = flat(o)
            else:
                self.r = flat(o)
                if mn.endswith(('x3', 'x4')) and 'store' in mn:
                    self.wide_store = True
                    self.sdata = o[0] if mn.startswith('buffer') else o[1]
        elif mn.startswith('s_'):
            self.kind = 'salu'
            if mn.startswith(('s_cmp', 's_branch', 's_cbranch', 's_waitcnt', 's_nop', 's_barrier', 's_endpgm',
                              's_sleep', 's_setprio', 's_bitcmp')):
                self.r = flat(o)
            elif 'saveexec' in mn:
                self.w = o[0] + regs_of('exec')
                self.r = flat(o[1:])
            else:
                self.w = o[0] if o else []
                self.r = flat(o[1:])
        self.branch = mn.startswith(('s_branch', 's_cbranch', 's_setpc', 's_swappc'))

    def states(self):
        if self.mn == 's_nop':
            return int(self.ops[0], 0) + 1
        return 1


class Asm:
    def __init__(self):
        self.items = []
        self._uid = 0

    def __call__(self, text):
        for line in text.split('\n'):
            s = line.strip()
            if not s:
                continue
            if s.startswith((';', '.', '//')) or re.match(r'^[\w.$]+:', s):
                self.items.append(('t', s))
            else:
                self.items.append(('i', Ins(s)))

    def label(self, name):
        self.items.append(('t', name + ':'))

    def uid(self, p='L'):
        self._uid += 1
        return f'{p}_{self._uid}'

    def finalize(self):
        out = []
        hist = []
        pos = 0
        MAXD = 24

        def need(ins):
            req = pos
            R = set(ins.r)
            W = set(ins.w)
            isv = ins.kind in ('valu', 'dl')
            for p, at in hist:
                d = 0
                PW = set(p.w)
                pv = p.kind in ('valu', 'dl')
                if pv:
                    vw = {x for x in PW if x[0] in 'va'}
                    sw = {x for x in PW if x[0] == 's'}
                    if ins.kind == 'mfma' and vw & R and p.kind == 'valu':
                        d = max(d, 2)
                    if ins.kind == 'mfma' and (('s', 126) in sw):
                        d = max(d, 4)
                    if ins.kind == 'vmem' and sw & R:
                        d = max(d, 5)
                    if isv and sw & R:
                        d = max(d, 2)
                    if isv and sw & set(ins.lanesel):
                        d = max(d, 4)
                    if isv and ins.dpp and vw & R:
                        d = max(d, 2)
                    if isv and ins.dpp and ('s', 126) in sw:
                        d = max(d, 5)
                    if ins.mn.startswith(('v_readlane', 'v_readfirstlane')) and vw & R:
                        d = max(d, 1)
                    if ins.mn.startswith(('v_readlane', 'v_readfirstlane', 'v_writelane', 'v_permlane')) and (
                            's', 126) in sw:
                        d = max(d, 4)
                    if p.trans and (isv or ins.kind == 'mfma') and not ins.trans and vw & R:
                        d = max(d, 1)
                    if p.trans and ins.kind in ('vmem', 'ds') and vw & R:
                        d = max(d, 1)
                    if ins.mn.startswith('v_permlane') and vw & R:
                        d = max(d, 2)
                    if p.sdwa and isv and vw & (R | W):
                        d = max(d, 1)
                    if p.kind == 'dl' and vw & (R | W):
                        same = ins.mn == p.mn
                        if same:
                            ab = set(regs_of(ins.ops[1]) + regs_of(ins.ops[2]))
                            if vw & ab:
                                d = max(d, 3)
                        else:
                            d = max(d, 3)
                    if ins.kind == 'salu' and sw & R:
                        d = max(d, 1)
                    if ins.mn.startswith('s_cbranch_vcc') and ('s', 106) in sw:
                        d = max(d, 1)
                if p.kind == 'mfma':
                    n = p.passes
                    if ins.kind == 'mfma':
                        if PW & set(ins.srcab):
                            d = max(d, n + 4)
                        if PW & set(ins.srcc):
                            if set(ins.srcc) == PW and ins.passes == n:
                                pass
                            else:
                                d = max(d, n + 2)
                        elif PW & W:
                            d = max(d, n + 2)
                    elif ins.kind in ('valu', 'dl', 'ds', 'vmem'):
                        if PW & (R | W):
                            d = max(d, n + 4)
                        if set(p.srcc) & W:
                            d = max(d, n - 1)
                if p.kind == 'salu' and ('s', 124) in PW and getattr(ins, 'ldsdma', False):
                    d = max(d, 1)
                if p.wide_store and set(p.sdata) & W:
                    d = max(d, 2 if isv or ins.kind == 'mfma' else 1)
                if d:
                    req = max(req, at + 1 + d)
            return req

        def flush_need():
            req = pos
            for p, at in hist:
                d = 0
                if p.kind == 'mfma':
                    d = p.passes + 4
                elif p.kind in ('valu', 'dl'):
                    if any(x[0] == 's' for x in p.w):
                        d = 5
                    else:
                        d = 3 if p.kind == 'dl' else 2
                elif p.kind == 'salu' and ('s', 124) in p.w:
                    d = 1
                elif p.wide_store:
                    d = 2
                req = max(req, at + d)
            return req

        def pad(n):
            nonlocal pos
            while n > 0:
                k = min(n, 16)
                out.append(f'    s_nop {k - 1}')
                pos += k
                n -= k

        for k, it in self.items:
            if k == 't':
                out.append(it if it.endswith(':') or it.startswith('.') else '    ' + it)
                continue
            req = need(it)
            if it.branch and not it.noflush:
                req = max(req, flush_need())
            pad(req - pos)
            out.append('    ' + it.text)
            hist.append((it, pos + it.states() - 1))
            pos += it.states()
            hist[:] = [(p, at) for p, at in hist if pos - at <= MAXD]
            if it.mn == 's_endpgm':
                hist.clear()
        return '\n'.join(out) + '\n'
```

```python
import math, struct
def f32bits(x):
    return '0x%08x' % struct.unpack('<I', struct.pack('<f', x))[0]
WS_QA = 0
QA_BYTES = 4 * 32768
WS_ST = 0x20000
WS_CP = 0x30000
WS_HP = 0x70000
WS_ACT = 0x80000
WS_FLAG = 0xA0000
WS_EPOCH = 0xA1000
WS_STAMP = 0xB0000
WS_OP = 0x100000
WS_END = 0x900000
QSCALE = (128 ** -0.5) * math.log2(math.e)
QSCALE_BITS = f32bits(QSCALE)
GELU_BITS = f32bits(-2.0 * math.sqrt(2.0 / math.pi) * math.log2(math.e))
```

```python
import sys
sys.path.insert(0, 'dev')
from asmdsl import Asm
from layout import *

NAME = 'sequential_preLN__compressed_kv_cla__glu_gated_geglu__decode'
HEADER = open('cdna_kernels/' + NAME + '.s.ref').read().split('; Override launch')[0]

K_X, K_CKV, K_WQ, K_WUK, K_WUV, K_WO, K_BX, K_WG, K_WU, K_WD, K_OUT, K_DBG, K_WS = [8 * i for i in range(13)]
SEL_LO, SEL_HI = 0x05040100, 0x07060302


def vr(a, n):
    return f'v[{a}:{a + n - 1}]' if n > 1 else f'v{a}'


def srd(a, base, karg, nbytes, add=0):
    a(f's_load_dwordx2 s[{base}:{base + 1}], s[0:1], {karg}')


def srd_fin(a, base, nbytes, add=0):
    if add:
        a(f's_add_u32 s{base}, s{base}, {add}')
        a(f's_addc_u32 s{base + 1}, s{base + 1}, 0')
    a(f's_mov_b32 s{base + 2}, {nbytes}')
    a(f's_mov_b32 s{base + 3}, 0x00020000')


def S(base):
    return f's[{base}:{base + 3}]'


def begin(a, name, nwg):
    a(f'.globl {name}\n.p2align 8\n.type {name},@function')
    a.label(name)
    a(f's_cmp_ge_u32 s2, {nwg}')
    a(f's_cbranch_scc1 {name}_end')


def end(a, name):
    a.label(name + '_end')
    a('s_endpgm')


def xlane_sum_16_32(a, v, t):
    a(f'v_mov_b32 v{t}, v{v}')
    a(f'v_permlane16_swap_b32 v{v}, v{t}')
    a(f'v_add_f32 v{v}, v{v}, v{t}')
    a(f'v_mov_b32 v{t}, v{v}')
    a(f'v_permlane32_swap_b32 v{v}, v{t}')
    a(f'v_add_f32 v{v}, v{v}, v{t}')


def dpp(a, op, d, s0, s1, ctrl):
    a(f'{op}_dpp v{d}, v{s0}, v{s1} {ctrl} row_mask:0xf bank_mask:0xf')


def wave_reduce(a, op, v, t):
    dpp(a, op, v, v, v, 'quad_perm:[1,0,3,2]')
    dpp(a, op, v, v, v, 'quad_perm:[2,3,0,1]')
    dpp(a, op, v, v, v, 'row_ror:4')
    dpp(a, op, v, v, v, 'row_ror:8')
    a(f'v_mov_b32 v{t}, v{v}')
    a(f'v_permlane16_swap_b32 v{v}, v{t}')
    a(f'{op} v{v}, v{v}, v{t}')
    a(f'v_mov_b32 v{t}, v{v}')
    a(f'v_permlane32_swap_b32 v{v}, v{t}')
    a(f'{op} v{v}, v{v}, v{t}')


def ids(a):
    a('v_and_b32 v1, 63, v0')
    a('v_lshrrev_b32 v2, 6, v0')
    a('v_readfirstlane_b32 s3, v2')


def kernel_a(a, name):
    begin(a, name, 256)
    srd(a, 8, K_X, 0)
    srd(a, 12, K_WQ, 0)
    srd(a, 16, K_WUK, 0)
    srd(a, 20, K_WS, 0)
    ids(a)
    a('s_and_b32 s4, s2, 7')
    a('s_lshl_b32 s4, s4, 2')
    a('s_lshr_b32 s5, s2, 3')
    a('s_and_b32 s5, s5, 3')
    a('s_add_u32 s4, s4, s5')
    a('s_lshr_b32 s5, s2, 5')
    a('s_and_b32 s6, s3, 1')
    a('s_lshr_b32 s7, s3, 1')
    a('v_and_b32 v2, 15, v1')
    a('v_lshrrev_b32 v3, 4, v1')
    a('v_and_b32 v4, 3, v1')
    a('v_lshrrev_b32 v5, 2, v2')
    a('v_lshlrev_b32 v5, 1, v5')
    a('v_and_b32 v6, 1, v2')
    a('v_add_u32 v5, v5, v6')
    a('v_and_b32 v6, 2, v2')
    a('v_lshl_add_u32 v5, v6, 2, v5')
    a('v_lshlrev_b32 v5, 3, v5')
    a('v_lshl_add_u32 v5, v3, 16, v5')
    a('v_lshrrev_b32 v6, 2, v1')
    a('v_lshlrev_b32 v6, 6, v6')
    a('v_lshl_add_u32 v6, v4, 10, v6')
    a('v_lshlrev_b32 v7, 4, v3')
    a('v_lshl_add_u32 v7, v4, 10, v7')
    a('v_lshrrev_b32 v8, 2, v2')
    a('v_lshlrev_b32 v8, 3, v8')
    a('v_and_b32 v9, 3, v2')
    a('v_add_u32 v8, v8, v9')
    a('v_lshlrev_b32 v8, 13, v8')
    a('v_lshl_add_u32 v8, v3, 4, v8')
    a('s_waitcnt lgkmcnt(0)')
    srd_fin(a, 8, 4096)
    srd_fin(a, 12, 4 << 20)
    srd_fin(a, 16, 4 << 20)
    srd_fin(a, 20, QA_BYTES, WS_QA)
    XS, XO, L, UK, ACC, T, QF, A2 = 12, 28, 44, 108, 140, 156, 172, 180
    for i in range(4):
        a(f'buffer_load_dwordx4 {vr(XS + 4 * i, 4)}, v6, {S(8)}, 0 offen offset:{16 * i}')
    a('s_lshl_b32 s24, s7, 8')
    for t in range(4):
        a(f'buffer_load_dwordx4 {vr(XO + 4 * t, 4)}, v7, {S(8)}, s24 offen offset:{64 * t}')
    a('s_lshl_b32 s25, s7, 20')
    a('s_lshl_b32 s26, s4, 8')
    a('s_add_u32 s25, s25, s26')
    a('s_lshl_b32 s27, s6, 7')
    a('s_add_u32 s25, s25, s27')
    for t in range(4):
        for i in range(8):
            a(f'buffer_load_dwordx2 {vr(L + 16 * t + 2 * i, 2)}, v5, {S(12)}, s25 offen')
            a(f's_add_u32 s25, s25, {8192 if i < 7 else 8192 * 25}')
    a('s_lshl_b32 s25, s5, 19')
    a('s_add_u32 s25, s25, s26')
    a('s_add_u32 s25, s25, s27')
    for cb in range(4):
        cp, sub = cb // 2, cb % 2
        a(f's_add_u32 s28, s25, {(32 * cp + 4 * sub) * 8192}')
        for ph in range(2):
            a(f'buffer_load_dwordx4 {vr(UK + 8 * cb + 4 * ph, 4)}, v8, {S(16)}, s28 offen offset:{64 * ph}')
    a('s_mov_b32 s30, 0xffff0000')
    a(f's_waitcnt vmcnt({4 + 32 + 8})')
    U = 188
    for i in range(16):
        a(f'v_lshlrev_b32 v{U + 2 * i}, 16, v{XS + i}')
        a(f'v_and_b32 v{U + 2 * i + 1}, s30, v{XS + i}')
    a(f'v_add_f32 v10, v{U}, v{U + 1}')
    for i in range(2, 32):
        a(f'v_add_f32 v10, v10, v{U + i}')
    dpp(a, 'v_add_f32', 10, 10, 10, 'row_ror:4')
    dpp(a, 'v_add_f32', 10, 10, 10, 'row_ror:8')
    xlane_sum_16_32(a, 10, 11)
    a('v_mul_f32 v10, 0x3b000000, v10')
    a('v_mov_b32 v9, 0')
    for i in range(32):
        a(f'v_sub_f32 v{U + i}, v{U + i}, v10')
        a(f'v_fmac_f32 v9, v{U + i}, v{U + i}')
    dpp(a, 'v_add_f32', 9, 9, 9, 'row_ror:4')
    dpp(a, 'v_add_f32', 9, 9, 9, 'row_ror:8')
    xlane_sum_16_32(a, 9, 11)
    a('v_mov_b32 v11, 0x3727c5ac')
    a('v_fmac_f32 v11, 0x3b000000, v9')
    a('v_rsq_f32 v9, v11')
    a(f's_waitcnt vmcnt({32 + 8})')
    for i in range(16):
        a(f'v_lshlrev_b32 v{U}, 16, v{XO + i}')
        a(f'v_and_b32 v{U + 1}, s30, v{XO + i}')
        a(f'v_sub_f32 v{U}, v{U}, v10')
        a(f'v_sub_f32 v{U + 1}, v{U + 1}, v10')
        a(f'v_mul_f32 v{U}, v{U}, v9')
        a(f'v_mul_f32 v{U + 1}, v{U + 1}, v9')
        a(f'v_cvt_pk_bf16_f32 v{XO + i}, v{U}, v{U + 1}')
    a(f's_mov_b32 s31, {SEL_LO}')
    a(f's_mov_b32 s32, {SEL_HI}')
    for t in range(4):
        a(f's_waitcnt vmcnt({8 * (3 - t) + 8})')
        for u in range(2):
            tb = T + 8 * u
            for p in range(4):
                lo, hi = L + 16 * t + 2 * (2 * p) + u, L + 16 * t + 2 * (2 * p + 1) + u
                a(f'v_perm_b32 v{tb + p}, v{hi}, v{lo}, s31')
                a(f'v_perm_b32 v{tb + 4 + p}, v{hi}, v{lo}, s32')
            for e in range(2):
                ac = ACC + 4 * (2 * u + e)
                c = '0' if t == 0 else vr(ac, 4)
                a(f'v_mfma_f32_16x16x32_bf16 {vr(ac, 4)}, {vr(tb + 4 * e, 4)}, {vr(XO + 4 * t, 4)}, {c}')
    for ph in range(2):
        for jj in range(2):
            j = 2 * ph + jj
            a(f'v_cvt_pk_bf16_f32 v{QF + 4 * ph + 2 * jj}, v{ACC + j}, v{ACC + 4 + j}')
            a(f'v_cvt_pk_bf16_f32 v{QF + 4 * ph + 2 * jj + 1}, v{ACC + 8 + j}, v{ACC + 12 + j}')
    a('s_waitcnt vmcnt(0)')
    A2 = 188
    for cb in range(4):
        for ph in range(2):
            c = '0' if ph == 0 else vr(A2 + 4 * cb, 4)
            a(f'v_mfma_f32_16x16x32_bf16 {vr(A2 + 4 * cb, 4)}, {vr(UK + 8 * cb + 4 * ph, 4)}, {vr(QF + 4 * ph, 4)}, {c}')
    a('v_lshlrev_b32 v10, 6, v3')
    a('v_lshl_add_u32 v10, v4, 4, v10')
    a('s_lshl_b32 s33, s3, 10')
    a('v_add_u32 v10, s33, v10')
    a('v_cmp_gt_u32 vcc, 4, v2')
    a('s_and_saveexec_b64 s[34:35], vcc')
    for cb in range(4):
        a(f'ds_write_b128 v10, {vr(A2 + 4 * cb, 4)} offset:{256 * cb}')
    a('s_mov_b64 exec, s[34:35]')
    a('s_waitcnt lgkmcnt(0)')
    a('s_barrier')
    a('s_cmp_lg_u32 s3, 0')
    a(f's_cbranch_scc1 {name}_end')
    a('v_cmp_gt_u32 vcc, 32, v1')
    a('s_and_saveexec_b64 s[34:35], vcc')
    a('v_lshlrev_b32 v10, 4, v2')
    a('v_lshl_add_u32 v10, v3, 9, v10')
    for w in range(8):
        a(f'ds_read_b128 {vr(12 + 8 * w, 4)}, v10 offset:{1024 * w}')
        a(f'ds_read_b128 {vr(16 + 8 * w, 4)}, v10 offset:{1024 * w + 256}')
    a('s_waitcnt lgkmcnt(0)')
    for w in range(1, 8):
        for i in range(8):
            a(f'v_add_f32 v{12 + i}, v{12 + i}, v{12 + 8 * w + i}')
    a(f's_mov_b32 s36, {QSCALE_BITS}')
    for i in range(8):
        a(f'v_mul_f32 v{12 + i}, s36, v{12 + i}')
    for i in range(4):
        a(f'v_cvt_pk_bf16_f32 v{20 + i}, v{12 + 2 * i}, v{13 + 2 * i}')
    a('v_lshrrev_b32 v10, 2, v1')
    a('v_lshlrev_b32 v10, 9, v10')
    a('v_lshl_add_u32 v10, v4, 15, v10')
    a('s_lshl_b32 s37, s5, 12')
    a('s_lshl_b32 s38, s4, 4')
    a('s_add_u32 s37, s37, s38')
    a(f'buffer_store_dwordx4 v[20:23], v10, {S(20)}, s37 offen')
    end(a, name)


ROW = 1040
LDS_P = 128 * ROW
LDS_M = LDS_P + 8192
LDS_L = LDS_M + 512
LDS_B_TOTAL = LDS_L + 512


def kernel_b(a, name):
    begin(a, name, 256)
    srd(a, 8, K_CKV, 0)
    srd(a, 12, K_WS, 0)
    ids(a)
    a('s_and_b32 s4, s2, 7')
    a('s_lshr_b32 s4, s4, 1')
    a('s_lshr_b32 s5, s2, 3')
    a('s_lshl_b32 s5, s5, 1')
    a('s_and_b32 s6, s2, 1')
    a('s_add_u32 s5, s5, s6')
    a('s_lshl_b32 s6, s4, 6')
    a('s_add_u32 s6, s6, s5')
    a('v_lshlrev_b32 v2, 4, v1')
    a('s_waitcnt lgkmcnt(0)')
    srd_fin(a, 8, 32 << 20)
    srd_fin(a, 12, WS_END)
    QA, SA, AF, OA, PF = 16, 144, 160, 176, 16
    a('s_lshl_b32 s20, s4, 15')
    a(f's_add_u32 s20, s20, {WS_QA}')
    for st in range(32):
        a(f'buffer_load_dwordx4 {vr(QA + 4 * st, 4)}, v2, {S(12)}, s20 offen offset:{(st % 4) * 1024}')
        if st % 4 == 3:
            a('s_add_u32 s20, s20, 4096')
    a('s_waitcnt vmcnt(16)')
    a('s_lshl_b32 s21, s6, 17')
    a('s_lshl_b32 s22, s3, 15')
    a('s_add_u32 s21, s21, s22')
    a(f's_mul_i32 s23, s3, {32 * ROW}')
    a('s_mov_b32 m0, s23')
    for i in range(32):
        a(f'buffer_load_dwordx4 v2, {S(8)}, s21 offen lds')
        a('s_add_u32 s21, s21, 1024')
        a(f's_add_u32 m0, m0, {ROW}')
    a('v_and_b32 v3, 3, v1')
    a('v_lshlrev_b32 v3, 2, v3')
    a('v_bfe_u32 v4, v1, 2, 2')
    a('v_add_u32 v3, v3, v4')
    a('v_and_b32 v4, 16, v1')
    a('v_add_u32 v3, v3, v4')
    a(f'v_mul_u32_u24 v3, {ROW}, v3')
    a('v_lshrrev_b32 v4, 5, v1')
    a('v_lshl_add_u32 v3, v4, 4, v3')
    a('v_add_u32 v3, s23, v3')
    a('v_bfe_u32 v5, v1, 2, 2')
    a('v_lshl_add_u32 v5, v5, 2, v4')
    a(f'v_mul_u32_u24 v5, {ROW}, v5')
    a('v_bfe_u32 v6, v1, 4, 1')
    a('v_lshl_add_u32 v5, v6, 5, v5')
    a('v_and_b32 v6, 3, v1')
    a('v_lshl_add_u32 v5, v6, 3, v5')
    a('s_lshl_b32 s24, s3, 8')
    a('v_add_u32 v5, s24, v5')
    a(f'v_add_u32 v6, {64 * ROW}, v5')
    a('s_waitcnt vmcnt(0)')
    DEPTH = 4
    for st in range(DEPTH):
        a(f'ds_read_b128 {vr(AF + 4 * st, 4)}, v3 offset:{32 * st}')
    for st in range(32):
        a(f's_waitcnt lgkmcnt({min(DEPTH - 1, 31 - st)})')
        c = '0' if st == 0 else vr(SA, 16)
        a(f'v_mfma_f32_32x32x16_bf16 {vr(SA, 16)}, {vr(AF + 4 * (st % DEPTH), 4)}, {vr(QA + 4 * st, 4)}, {c}')
        if st + DEPTH < 32:
            a(f'ds_read_b128 {vr(AF + 4 * (st % DEPTH), 4)}, v3 offset:{32 * (st + DEPTH)}')
    a(f'v_max3_f32 v7, v{SA}, v{SA + 1}, v{SA + 2}')
    for i in range(3, 15, 2):
        a(f'v_max3_f32 v7, v7, v{SA + i}, v{SA + i + 1}')
    a(f'v_max_f32 v7, v7, v{SA + 15}')
    a('v_mov_b32 v8, v7')
    a('v_permlane32_swap_b32 v7, v8')
    a('v_max_f32 v7, v7, v8')
    a('v_and_b32 v9, 31, v1')
    a('v_lshlrev_b32 v9, 2, v9')
    a('s_lshl_b32 s25, s3, 7')
    a('v_add_u32 v10, s25, v9')
    a(f'v_add_u32 v10, {LDS_M}, v10')
    a(f'v_add_u32 v9, {LDS_M}, v9')
    a('ds_write_b32 v10, v7')
    a('s_waitcnt lgkmcnt(0)')
    a('s_barrier')
    a('ds_read2_b32 v[12:13], v9 offset0:0 offset1:32')
    a('ds_read2_b32 v[14:15], v9 offset0:64 offset1:96')
    a('s_waitcnt lgkmcnt(0)')
    a('v_max3_f32 v7, v12, v13, v14')
    a('v_max_f32 v7, v7, v15')
    for i in range(16):
        a(f'v_sub_f32 v{SA + i}, v{SA + i}, v7')
        a(f'v_exp_f32 v{SA + i}, v{SA + i}')
    a(f'v_add_f32 v8, v{SA}, v{SA + 1}')
    for i in range(2, 16):
        a(f'v_add_f32 v8, v8, v{SA + i}')
    for i in range(8):
        a(f'v_cvt_pk_bf16_f32 v{AF + i}, v{SA + 2 * i}, v{SA + 2 * i + 1}')
    a('s_lshl_b32 s25, s3, 11')
    a(f's_add_u32 s25, s25, {LDS_P}')
    a('v_add_u32 v11, s25, v2')
    a(f'ds_write_b128 v11, {vr(AF, 4)}')
    a(f'ds_write_b128 v11, {vr(AF + 4, 4)} offset:1024')
    a('v_mov_b32 v12, v8')
    a('v_permlane32_swap_b32 v8, v12')
    a('v_add_f32 v8, v8, v12')
    a('ds_write_b32 v10, v8 offset:512')
    a('s_waitcnt lgkmcnt(0)')
    a('s_barrier')
    a(f'v_add_u32 v11, {LDS_P}, v2')
    for ks in range(8):
        a(f'ds_read_b128 {vr(PF + 4 * ks, 4)}, v11 offset:{1024 * ks}')
    lbl = a.uid('nostat')
    a('s_cmp_lg_u32 s3, 0')
    a(f's_cbranch_scc1 {lbl}')
    a('ds_read2_b32 v[12:13], v9 offset0:128 offset1:160')
    a('ds_read2_b32 v[14:15], v9 offset0:192 offset1:224')
    a('s_waitcnt lgkmcnt(0)')
    a('v_add_f32 v12, v12, v13')
    a('v_add_f32 v14, v14, v15')
    a('v_add_f32 v13, v12, v14')
    a('v_mov_b32 v12, v7')
    a('v_lshlrev_b32 v14, 11, v1')
    a('s_lshl_b32 s26, s6, 3')
    a(f's_add_u32 s26, s26, {WS_ST}')
    a('v_cmp_gt_u32 vcc, 32, v1')
    a('s_and_saveexec_b64 s[34:35], vcc')
    a(f'buffer_store_dwordx2 v[12:13], v14, {S(12)}, s26 offen')
    a('s_mov_b64 exec, s[34:35]')
    a.label(lbl)
    BF = 48
    NB = 8
    seq = [(ks, blk) for ks in range(8) for blk in range(4)]

    def rd(n):
        ks, blk = seq[n]
        base = 'v5' if ks < 4 else 'v6'
        off = (ks % 4) * 16 * ROW + blk * 64
        bf = BF + 4 * (n % NB)
        a(f'ds_read_b64_tr_b16 {vr(bf, 2)}, {base} offset:{off}')
        a(f'ds_read_b64_tr_b16 {vr(bf + 2, 2)}, {base} offset:{off + 2 * ROW}')
    PD = 4
    a('s_waitcnt lgkmcnt(0)')
    for n in range(PD):
        rd(n)
    for n in range(32):
        ks, blk = seq[n]
        a(f's_waitcnt lgkmcnt({2 * min(PD - 1, 31 - n)})')
        c = '0' if ks == 0 else vr(OA + 16 * blk, 16)
        a(f'v_mfma_f32_32x32x16_bf16 {vr(OA + 16 * blk, 16)}, {vr(PF + 4 * ks, 4)}, {vr(BF + 4 * (n % NB), 4)}, {c}')
        if n + PD < 32:
            rd(n + PD)
    a('v_lshrrev_b32 v12, 5, v1')
    a('v_lshlrev_b32 v12, 2, v12')
    a('v_bfe_u32 v13, v1, 4, 1')
    a('v_add_u32 v12, v12, v13')
    a('v_lshlrev_b32 v12, 10, v12')
    a('v_and_b32 v13, 15, v1')
    a('v_lshl_add_u32 v12, v13, 4, v12')
    a('s_lshl_b32 s27, s6, 15')
    a(f's_add_u32 s27, s27, {WS_OP}')
    a('s_add_u32 s27, s27, s24')
    for ap in range(8):
        t = 80 + 4 * ap
        j = 2 * ap
        a(f'v_cvt_pk_bf16_f32 v{t}, v{OA + j}, v{OA + 16 + j}')
        a(f'v_cvt_pk_bf16_f32 v{t + 1}, v{OA + 32 + j}, v{OA + 48 + j}')
        a(f'v_cvt_pk_bf16_f32 v{t + 2}, v{OA + j + 1}, v{OA + 16 + j + 1}')
        a(f'v_cvt_pk_bf16_f32 v{t + 3}, v{OA + 32 + j + 1}, v{OA + 48 + j + 1}')
        a(f'v_permlane16_swap_b32 v{t}, v{t + 2}')
        a(f'v_permlane16_swap_b32 v{t + 1}, v{t + 3}')
        hoff = (8 * (ap // 2) + 2 * (ap % 2)) * 1024
        a(f's_add_u32 s28, s27, {hoff}')
        a(f'buffer_store_dwordx4 {vr(t, 4)}, v12, {S(12)}, s28 offen')
    end(a, name)


def kernel_c(a, name):
    begin(a, name, 256)
    srd(a, 8, K_WUV, 0)
    srd(a, 12, K_WS, 0)
    ids(a)
    a('s_and_b32 s4, s2, 31')
    a('s_lshr_b32 s5, s2, 5')
    a('s_and_b32 s6, s3, 3')
    a('s_lshr_b32 s7, s3, 2')
    a('v_lshrrev_b32 v2, 3, v1')
    a('v_and_b32 v3, 7, v1')
    a('v_lshlrev_b32 v4, 15, v2')
    a('v_lshl_add_u32 v4, v3, 4, v4')
    a('v_lshlrev_b32 v5, 3, v1')
    a('v_and_b32 v6, 15, v1')
    a('v_lshrrev_b32 v7, 4, v1')
    a('v_lshlrev_b32 v8, 13, v7')
    a('v_lshl_add_u32 v8, v6, 2, v8')
    a('s_waitcnt lgkmcnt(0)')
    srd_fin(a, 8, 4 << 20)
    srd_fin(a, 12, WS_END)
    D, W, ACC, OPR = 16, 32, 48, 56
    a('s_lshl_b32 s20, s4, 11')
    a('s_lshl_b32 s21, s6, 9')
    a('s_add_u32 s20, s20, s21')
    a(f's_add_u32 s20, s20, {WS_ST}')
    a(f'buffer_load_dwordx2 v[10:11], v5, {S(12)}, s20 offen')
    a('s_lshl_b32 s20, s6, 21')
    a('s_lshl_b32 s21, s7, 20')
    a('s_add_u32 s20, s20, s21')
    a('s_lshl_b32 s21, s4, 10')
    a('s_add_u32 s20, s20, s21')
    a('s_lshl_b32 s21, s5, 7')
    a('s_add_u32 s20, s20, s21')
    a(f's_add_u32 s20, s20, {WS_OP}')
    for i in range(4):
        a(f'buffer_load_dwordx4 {vr(D + 4 * i, 4)}, v4, {S(12)}, s20 offen')
        a('s_add_u32 s20, s20, 0x40000')
    a('s_lshr_b32 s20, s5, 1')
    a('s_lshl_b32 s20, s20, 20')
    a('s_and_b32 s21, s5, 1')
    a('s_lshl_b32 s21, s21, 16')
    a('s_add_u32 s20, s20, s21')
    a('s_lshl_b32 s21, s4, 8')
    a('s_add_u32 s20, s20, s21')
    a('s_lshl_b32 s21, s6, 6')
    a('s_add_u32 s20, s20, s21')
    for t in range(2):
        for i in range(8):
            a(f's_add_u32 s22, s20, {(4 * t + 32 * (i % 4) + 16 * (i // 4)) * 8192}')
            a(f'buffer_load_dword v{W + 8 * t + i}, v8, {S(8)}, s22 offen')
    a('s_waitcnt vmcnt(20)')
    a('v_mov_b32 v12, v10')
    wave_reduce(a, 'v_max_f32', 12, 13)
    a('v_sub_f32 v10, v10, v12')
    a('v_exp_f32 v10, v10')
    a('v_mul_f32 v12, v10, v11')
    wave_reduce(a, 'v_add_f32', 12, 13)
    a('v_rcp_f32 v12, v12')
    a('v_mul_f32 v10, v10, v12')
    a('v_cvt_pk_bf16_f32 v10, v10, 0')
    a('s_lshl_b32 s21, s7, 7')
    a('v_lshl_add_u32 v12, v2, 2, s21')
    for i in range(4):
        a(f'ds_bpermute_b32 v{64 + i}, v12, v10 offset:{32 * i}')
    a('s_waitcnt lgkmcnt(0)')
    for i in range(4):
        a(f'v_lshlrev_b32 v{68 + i}, 16, v{64 + i}')
    for i in range(4):
        a(f's_waitcnt vmcnt({16 + 3 - i})')
        for u in range(4):
            for e in range(2):
                c = '0' if i == 0 else f'v{ACC + 2 * u + e}'
                a(f'v_dot2_f32_bf16 v{ACC + 2 * u + e}, v{D + 4 * i + u}, v{64 + 4 * e + i}, {c}')
    for k in range(4):
        a(f'v_permlane16_swap_b32 v{ACC + 2 * k}, v{ACC + 2 * k + 1}')
        a(f'v_add_f32 v{ACC + 2 * k}, v{ACC + 2 * k}, v{ACC + 2 * k + 1}')
    for k in range(2):
        a(f'v_permlane32_swap_b32 v{ACC + 4 * k}, v{ACC + 4 * k + 2}')
        a(f'v_add_f32 v{ACC + 4 * k}, v{ACC + 4 * k}, v{ACC + 4 * k + 2}')
    for k in range(2):
        dpp(a, 'v_add_f32', ACC + 4 * k, ACC + 4 * k, ACC + 4 * k, 'row_ror:8')
    a('v_lshlrev_b32 v12, 5, v3')
    a('v_lshl_add_u32 v12, v7, 2, v12')
    a('s_lshl_b32 s21, s3, 8')
    a('v_add_u32 v12, s21, v12')
    a(f'ds_write2_b32 v12, v{ACC}, v{ACC + 4} offset0:0 offset1:4')
    a('s_waitcnt lgkmcnt(0)')
    a('s_barrier')
    a('s_cmp_ge_u32 s3, 4')
    a(f's_cbranch_scc1 {name}_end')
    a('v_and_b32 v13, 3, v1')
    a('v_lshlrev_b32 v12, 8, v13')
    a('v_lshl_add_u32 v12, v7, 5, v12')
    X = 72
    for sh in range(2):
        for t in range(2):
            for hf in range(2):
                a(f'ds_read_b128 {vr(X + 16 * sh + 8 * t + 4 * hf, 4)}, v12 offset:{1024 * sh + 128 * t + 16 * hf}')
    a(f's_mov_b32 s31, {SEL_LO}')
    a(f's_mov_b32 s32, {SEL_HI}')
    a('s_waitcnt vmcnt(0)')
    OP = 104
    for t in range(2):
        for p in range(4):
            a(f'v_perm_b32 v{OP + 8 * t + p}, v{W + 8 * t + 2 * p + 1}, v{W + 8 * t + 2 * p}, s31')
            a(f'v_perm_b32 v{OP + 8 * t + 4 + p}, v{W + 8 * t + 2 * p + 1}, v{W + 8 * t + 2 * p}, s32')
    a('s_waitcnt lgkmcnt(0)')
    for i in range(16):
        a(f'v_add_f32 v{X + i}, v{X + i}, v{X + 16 + i}')
    for i in range(8):
        a(f'v_cvt_pk_bf16_f32 v{OPR + i}, v{X + 2 * i}, v{X + 2 * i + 1}')
    for t in range(2):
        for e in range(2):
            c = '0' if t == 0 else vr(ACC + 4 * e, 4)
            a(f'v_mfma_f32_16x16x32_bf16 {vr(ACC + 4 * e, 4)}, {vr(OP + 8 * t + 4 * e, 4)}, {vr(OPR + 4 * t, 4)}, {c}')
    for j in range(4):
        a(f'v_cvt_pk_bf16_f32 v{16 + j}, v{ACC + j}, v{ACC + 4 + j}')
    a('v_lshlrev_b32 v12, 8, v7')
    a('v_lshl_add_u32 v12, v13, 4, v12')
    a('s_lshl_b32 s20, s4, 13')
    a('s_lshl_b32 s21, s3, 11')
    a('s_add_u32 s20, s20, s21')
    a('s_lshr_b32 s21, s5, 2')
    a('s_lshl_b32 s21, s21, 10')
    a('s_add_u32 s20, s20, s21')
    a('s_and_b32 s21, s5, 3')
    a('s_lshl_b32 s21, s21, 6')
    a('s_add_u32 s20, s20, s21')
    a(f's_add_u32 s20, s20, {WS_CP}')
    a('v_cmp_gt_u32 vcc, 4, v6')
    a('s_and_saveexec_b64 s[34:35], vcc')
    a(f'buffer_store_dwordx4 v[16:19], v12, {S(12)}, s20 offen')
    end(a, name)


def kernel_d(a, name):
    begin(a, name, 128)
    srd(a, 8, K_WO, 0)
    srd(a, 12, K_WS, 0)
    ids(a)
    a('s_and_b32 s4, s2, 7')
    a('s_lshr_b32 s5, s2, 3')
    a('v_lshlrev_b32 v2, 4, v1')
    a('v_and_b32 v6, 15, v1')
    a('v_lshrrev_b32 v7, 4, v1')
    a('v_lshlrev_b32 v8, 13, v7')
    a('v_lshl_add_u32 v8, v6, 2, v8')
    a('s_waitcnt lgkmcnt(0)')
    srd_fin(a, 8, 4 << 20)
    srd_fin(a, 12, WS_END)
    X, W, OP, ACC = 16, 32, 48, 64
    a('s_lshl_b32 s20, s4, 15')
    a('s_lshl_b32 s21, s3, 12')
    a('s_add_u32 s20, s20, s21')
    a(f's_add_u32 s20, s20, {WS_CP}')
    for i in range(4):
        a(f'buffer_load_dwordx4 {vr(X + 4 * i, 4)}, v2, {S(12)}, s20 offen offset:{1024 * i}')
    a('s_lshl_b32 s20, s4, 19')
    a('s_lshl_b32 s21, s3, 16')
    a('s_add_u32 s20, s20, s21')
    a('s_lshl_b32 s21, s5, 6')
    a('s_add_u32 s20, s20, s21')
    for t in range(2):
        for i in range(8):
            if i % 4 == 0:
                a(f's_add_u32 s22, s20, {(32 * t + i) * 1024}')
            a(f'buffer_load_dword v{W + 8 * t + i}, v8, {S(8)}, s22 offen offset:{(i % 4) * 1024}')
    a(f's_mov_b32 s31, {SEL_LO}')
    a(f's_mov_b32 s32, {SEL_HI}')
    a('s_waitcnt vmcnt(0)')
    for t in range(2):
        for p in range(4):
            a(f'v_perm_b32 v{OP + 8 * t + p}, v{W + 8 * t + 2 * p + 1}, v{W + 8 * t + 2 * p}, s31')
            a(f'v_perm_b32 v{OP + 8 * t + 4 + p}, v{W + 8 * t + 2 * p + 1}, v{W + 8 * t + 2 * p}, s32')
    for t in range(2):
        for cg in range(2):
            for e in range(2):
                c = '0' if (t == 0 and cg == 0) else vr(ACC + 4 * e, 4)
                a(f'v_mfma_f32_16x16x32_bf16 {vr(ACC + 4 * e, 4)}, {vr(OP + 8 * t + 4 * e, 4)}, {vr(X + 8 * t + 4 * cg, 4)}, {c}')
    for i in range(8):
        dpp(a, 'v_add_f32', ACC + i, ACC + i, ACC + i, 'row_ror:4')
    for i in range(8):
        dpp(a, 'v_add_f32', ACC + i, ACC + i, ACC + i, 'row_ror:8')
    a('v_and_b32 v13, 3, v1')
    a('v_lshlrev_b32 v12, 7, v13')
    a('v_lshl_add_u32 v12, v7, 5, v12')
    a('s_lshl_b32 s21, s3, 9')
    a('v_add_u32 v12, s21, v12')
    a('v_cmp_gt_u32 vcc, 4, v6')
    a('s_and_saveexec_b64 s[34:35], vcc')
    a(f'ds_write_b128 v12, {vr(ACC, 4)}')
    a(f'ds_write_b128 v12, {vr(ACC + 4, 4)} offset:16')
    a('s_mov_b64 exec, s[34:35]')
    a('s_waitcnt lgkmcnt(0)')
    a('s_barrier')
    a('s_cmp_ge_u32 s3, 2')
    a(f's_cbranch_scc1 {name}_end')
    a('v_lshlrev_b32 v12, 2, v0')
    for w in range(0, 8, 2):
        a(f'ds_read2st64_b32 v[{16 + w}:{17 + w}], v12 offset0:{2 * w} offset1:{2 * w + 2}')
    a('v_lshrrev_b32 v2, 5, v0')
    a('v_bfe_u32 v3, v0, 3, 2')
    a('v_bfe_u32 v4, v0, 2, 1')
    a('v_and_b32 v5, 3, v0')
    a('v_lshlrev_b32 v2, 11, v2')
    a('v_lshl_add_u32 v2, v3, 5, v2')
    a('v_lshl_add_u32 v2, v5, 3, v2')
    a('v_lshl_add_u32 v2, v4, 2, v2')
    a('s_lshl_b32 s20, s4, 13')
    a('s_lshl_b32 s21, s5, 7')
    a('s_add_u32 s20, s20, s21')
    a(f's_add_u32 s20, s20, {WS_HP}')
    a('s_waitcnt lgkmcnt(0)')
    for w in range(1, 8):
        a(f'v_add_f32 v16, v16, v{16 + w}')
    a(f'buffer_store_dword v16, v2, {S(12)}, s20 offen')
    end(a, name)


def kernel_e(a, name):
    begin(a, name, 43)
    srd(a, 8, K_WG, 0)
    srd(a, 12, K_WS, 0)
    srd(a, 16, K_WU, 0)
    srd(a, 24, K_X, 0)
    ids(a)
    a('v_and_b32 v6, 15, v1')
    a('v_lshrrev_b32 v7, 4, v1')
    a('v_and_b32 v13, 3, v1')
    a('v_bfe_u32 v14, v1, 2, 2')
    a(f'v_mul_u32_u24 v8, {8 * 2752}, v7')
    a('v_lshl_add_u32 v8, v6, 2, v8')
    a('v_lshlrev_b32 v2, 13, v14')
    a('v_lshl_add_u32 v2, v13, 11, v2')
    a('v_lshl_add_u32 v2, v7, 5, v2')
    a('v_lshlrev_b32 v3, 10, v13')
    a('v_lshl_add_u32 v3, v7, 4, v3')
    a('s_waitcnt lgkmcnt(0)')
    srd_fin(a, 8, 512 * 2752)
    srd_fin(a, 12, WS_END)
    srd_fin(a, 16, 512 * 2752)
    srd_fin(a, 24, 4096)
    H, XR, W, OP, ACC, G = 16, 48, 56, 88, 120, 136
    a('s_lshl_b32 s20, s3, 8')
    a(f's_add_u32 s20, s20, {WS_HP}')
    for rr in range(2):
        for t in range(2):
            for hf in range(2):
                a(f'buffer_load_dwordx4 {vr(H + 16 * rr + 8 * t + 4 * hf, 4)}, v2, {S(12)}, s20 offen offset:{128 * t + 16 * hf}')
        a('s_add_u32 s20, s20, 32768')
    a('s_lshl_b32 s20, s3, 7')
    for t in range(2):
        a(f'buffer_load_dwordx4 {vr(XR + 4 * t, 4)}, v3, {S(24)}, s20 offen offset:{64 * t}')
    a(f's_mul_i32 s20, s3, {64 * 2752}')
    a('s_lshl_b32 s21, s2, 6')
    a('s_add_u32 s20, s20, s21')
    for mat in range(2):
        for t in range(2):
            for i in range(8):
                a(f's_add_u32 s22, s20, {(32 * t + i) * 2752}')
                a(f'buffer_load_dword v{W + 16 * mat + 8 * t + i}, v8, {S(8 + 8 * mat)}, s22 offen')
    a(f's_mov_b32 s31, {SEL_LO}')
    a(f's_mov_b32 s32, {SEL_HI}')
    a('s_mov_b32 s30, 0xffff0000')
    a('s_waitcnt vmcnt(32)')
    for i in range(16):
        a(f'v_add_f32 v{H + i}, v{H + i}, v{H + 16 + i}')
    for i in range(16):
        dpp(a, 'v_add_f32', H + i, H + i, H + i, 'row_ror:4')
    for i in range(16):
        dpp(a, 'v_add_f32', H + i, H + i, H + i, 'row_ror:8')
    for i in range(8):
        a(f'v_lshlrev_b32 v4, 16, v{XR + i}')
        a(f'v_and_b32 v5, s30, v{XR + i}')
        a(f'v_add_f32 v{H + 2 * i}, v{H + 2 * i}, v4')
        a(f'v_add_f32 v{H + 2 * i + 1}, v{H + 2 * i + 1}, v5')
        a(f'v_cvt_pk_bf16_f32 v{XR + i}, v{H + 2 * i}, v{H + 2 * i + 1}')
    a('v_mov_b32 v4, 0x3f803f80')
    a('v_cmp_eq_u32 vcc, 1, v14')
    for i in range(8):
        a(f'v_cndmask_b32 v{XR + i}, v{XR + i}, v4, vcc')
    for t in range(2):
        c = '0' if t == 0 else vr(G, 4)
        a(f'v_mfma_f32_16x16x32_bf16 {vr(G, 4)}, {vr(XR + 4 * t, 4)}, {vr(XR + 4 * t, 4)}, {c}')
    a('s_waitcnt vmcnt(0)')
    for s in range(4):
        for p in range(4):
            a(f'v_perm_b32 v{OP + 8 * s + p}, v{W + 8 * s + 2 * p + 1}, v{W + 8 * s + 2 * p}, s31')
            a(f'v_perm_b32 v{OP + 8 * s + 4 + p}, v{W + 8 * s + 2 * p + 1}, v{W + 8 * s + 2 * p}, s32')
    for mat in range(2):
        for t in range(2):
            for e in range(2):
                ac = ACC + 8 * mat + 4 * e
                c = '0' if t == 0 else vr(ac, 4)
                a(f'v_mfma_f32_16x16x32_bf16 {vr(ac, 4)}, {vr(OP + 16 * mat + 8 * t + 4 * e, 4)}, {vr(XR + 4 * t, 4)}, {c}')
    a('v_lshlrev_b32 v12, 8, v6')
    a('v_lshl_add_u32 v12, v7, 6, v12')
    a('s_mul_i32 s21, s3, 2560')
    a('v_add_u32 v12, s21, v12')
    a('v_lshlrev_b32 v11, 7, v7')
    a('v_lshl_add_u32 v11, v6, 4, v11')
    a('v_add_u32 v11, s21, v11')
    a('v_cmp_gt_u32 vcc, 8, v6')
    a('s_and_saveexec_b64 s[34:35], vcc')
    for k in range(4):
        a(f'ds_write_b128 v12, {vr(ACC + 4 * k, 4)} offset:{16 * k}')
    a(f'ds_write_b128 v11, {vr(G, 4)} offset:2048')
    a('s_mov_b64 exec, s[34:35]')
    a('s_waitcnt lgkmcnt(0)')
    a('s_barrier')
    a('s_cmp_ge_u32 s3, 2')
    a(f's_cbranch_scc1 {name}_end')
    a('v_lshrrev_b32 v2, 5, v0')
    a('v_bfe_u32 v3, v0, 3, 2')
    a('v_and_b32 v4, 7, v0')
    a('v_lshlrev_b32 v9, 6, v3')
    a('v_lshl_add_u32 v9, v4, 2, v9')
    a('v_lshl_add_u32 v10, v2, 8, v9')
    a('v_add_u32 v9, 1024, v9')
    a('v_mul_u32_u24 v11, 20, v2')
    a('v_add_u32 v11, 2048, v11')
    a('v_lshlrev_b32 v12, 4, v2')
    a('v_add_u32 v12, 2176, v12')
    for w in range(8):
        o = 2560 * w
        b0 = 16 + 6 * w
        a(f'ds_read_b32 v{b0}, v10 offset:{o}')
        a(f'ds_read_b32 v{b0 + 1}, v10 offset:{o + 32}')
        a(f'ds_read_b32 v{b0 + 2}, v9 offset:{o}')
        a(f'ds_read_b32 v{b0 + 3}, v9 offset:{o + 32}')
        a(f'ds_read_b32 v{b0 + 4}, v11 offset:{o}')
        a(f'ds_read_b32 v{b0 + 5}, v12 offset:{o}')
        if w % 2 == 1:
            a('s_waitcnt lgkmcnt(0)')
    for w in range(1, 8):
        for k in range(6):
            a(f'v_add_f32 v{16 + k}, v{16 + k}, v{16 + 6 * w + k}')
    a('v_mul_f32 v21, 0x3b000000, v21')
    a('v_mul_f32 v20, 0x3b000000, v20')
    a('v_fma_f32 v20, -v21, v21, v20')
    a('v_max_f32 v20, 0, v20')
    a('v_add_f32 v20, 0x3727c5ac, v20')
    a('v_rsq_f32 v20, v20')
    a('v_fma_f32 v16, -v21, v18, v16')
    a('v_fma_f32 v17, -v21, v19, v17')
    a('v_mul_f32 v16, v16, v20')
    a('v_mul_f32 v17, v17, v20')
    a('v_mul_f32 v18, v16, v16')
    a('v_mov_b32 v19, 1.0')
    a('v_fmac_f32 v19, 0x3d372713, v18')
    a('v_mul_f32 v19, v19, v16')
    a(f'v_mul_f32 v19, {GELU_BITS}, v19')
    a('v_exp_f32 v19, v19')
    a('v_add_f32 v19, 1.0, v19')
    a('v_rcp_f32 v19, v19')
    a('v_mul_f32 v16, v16, v19')
    a('v_mul_f32 v16, v16, v17')
    a('v_cvt_pk_bf16_f32 v16, v16, v16')
    a('v_lshlrev_b32 v5, 6, v3')
    a('v_lshl_add_u32 v5, v2, 4, v5')
    a('v_and_b32 v6, 3, v0')
    a('v_lshl_add_u32 v5, v6, 2, v5')
    a('v_bfe_u32 v6, v0, 2, 1')
    a('v_lshl_add_u32 v5, v6, 1, v5')
    a('s_lshl_b32 s20, s2, 8')
    a(f's_add_u32 s20, s20, {WS_ACT}')
    a(f'buffer_store_short v16, v5, {S(12)}, s20 offen')
    end(a, name)


def kernel_f(a, name):
    begin(a, name, 16)
    srd(a, 8, K_WD, 0)
    srd(a, 12, K_WS, 0)
    srd(a, 16, K_WS, 0)
    srd(a, 24, K_X, 0)
    srd(a, 28, K_OUT, 0)
    ids(a)
    a('v_and_b32 v6, 15, v1')
    a('v_lshrrev_b32 v7, 4, v1')
    a('v_and_b32 v13, 3, v1')
    a('v_lshlrev_b32 v8, 13, v7')
    a('v_lshl_add_u32 v8, v6, 2, v8')
    a('v_lshlrev_b32 v2, 6, v7')
    a('v_lshl_add_u32 v2, v13, 4, v2')
    a('v_lshrrev_b32 v3, 5, v0')
    a('v_bfe_u32 v4, v0, 3, 2')
    a('v_lshlrev_b32 v4, 3, v4')
    a('v_and_b32 v5, 3, v0')
    a('v_lshl_add_u32 v4, v5, 1, v4')
    a('v_bfe_u32 v5, v0, 2, 1')
    a('v_add_u32 v4, v4, v5')
    a('v_lshl_add_u32 v4, v3, 9, v4')
    a('v_lshlrev_b32 v3, 2, v4')
    a('v_lshlrev_b32 v4, 1, v4')
    a('s_waitcnt lgkmcnt(0)')
    srd_fin(a, 8, 1376 * 1024)
    srd_fin(a, 12, WS_END)
    srd_fin(a, 16, 43 * 256, WS_ACT)
    srd_fin(a, 24, 4096)
    srd_fin(a, 28, 4096)
    X, W, OP, ACC, HR = 16, 40, 88, 136, 144
    a('s_lshl_b32 s20, s3, 8')
    for n in range(6):
        a(f'buffer_load_dwordx4 {vr(X + 4 * n, 4)}, v2, {S(16)}, s20 offen')
        a('s_add_u32 s20, s20, 2048')
    a('s_lshl_b32 s20, s3, 15')
    a('s_lshl_b32 s21, s2, 6')
    a('s_add_u32 s20, s20, s21')
    for n in range(6):
        for i in range(8):
            if i % 4 == 0:
                a(f's_add_u32 s22, s20, {(256 * n + i) * 1024}')
            a(f'buffer_load_dword v{W + 8 * n + i}, v8, {S(8)}, s22 offen offset:{(i % 4) * 1024}')
    a('s_lshl_b32 s20, s2, 7')
    a(f's_add_u32 s20, s20, {WS_HP}')
    for r in range(8):
        a(f'buffer_load_dword v{HR + r}, v3, {S(12)}, s20 offen')
        a('s_add_u32 s20, s20, 8192')
    a(f'buffer_load_ushort v{HR + 8}, v4, {S(24)}, s21 offen')
    a(f's_mov_b32 s36, {SEL_LO}')
    a(f's_mov_b32 s37, {SEL_HI}')
    a('s_waitcnt vmcnt(9)')
    for n in range(6):
        for p in range(4):
            a(f'v_perm_b32 v{OP + 8 * n + p}, v{W + 8 * n + 2 * p + 1}, v{W + 8 * n + 2 * p}, s36')
            a(f'v_perm_b32 v{OP + 8 * n + 4 + p}, v{W + 8 * n + 2 * p + 1}, v{W + 8 * n + 2 * p}, s37')
    for n in range(6):
        for e in range(2):
            c = '0' if n == 0 else vr(ACC + 4 * e, 4)
            a(f'v_mfma_f32_16x16x32_bf16 {vr(ACC + 4 * e, 4)}, {vr(OP + 8 * n + 4 * e, 4)}, {vr(X + 4 * n, 4)}, {c}')
    a('v_lshlrev_b32 v12, 7, v13')
    a('v_lshl_add_u32 v12, v7, 5, v12')
    a('s_lshl_b32 s22, s3, 9')
    a('v_add_u32 v12, s22, v12')
    a('v_cmp_gt_u32 vcc, 4, v6')
    a('s_and_saveexec_b64 s[34:35], vcc')
    a(f'ds_write_b128 v12, {vr(ACC, 4)}')
    a(f'ds_write_b128 v12, {vr(ACC + 4, 4)} offset:16')
    a('s_mov_b64 exec, s[34:35]')
    a('s_waitcnt lgkmcnt(0)')
    a('s_barrier')
    a('s_cmp_ge_u32 s3, 2')
    a(f's_cbranch_scc1 {name}_end')
    a('v_lshlrev_b32 v12, 2, v0')
    for w in range(0, 8, 2):
        a(f'ds_read2st64_b32 v[{16 + w}:{17 + w}], v12 offset0:{2 * w} offset1:{2 * w + 2}')
    a('s_waitcnt vmcnt(0)')
    for r in range(1, 8):
        a(f'v_add_f32 v{HR}, v{HR}, v{HR + r}')
    a(f'v_lshlrev_b32 v{HR + 8}, 16, v{HR + 8}')
    a(f'v_add_f32 v{HR}, v{HR}, v{HR + 8}')
    a(f'v_cvt_pk_bf16_f32 v{HR}, v{HR}, v{HR}')
    a(f'v_and_b32 v{HR}, 0xffff0000, v{HR}')
    a('s_waitcnt lgkmcnt(0)')
    for w in range(1, 8):
        a(f'v_add_f32 v16, v16, v{16 + w}')
    a(f'v_add_f32 v16, v16, v{HR}')
    a('v_cvt_pk_bf16_f32 v16, v16, v16')
    a(f'buffer_store_short v16, v4, {S(28)}, s21 offen')
    end(a, name)


def descriptor(name, vgpr):
    return f""".p2align 6
.amdhsa_kernel {name}
  .amdhsa_next_free_vgpr {vgpr}
  .amdhsa_next_free_sgpr 64
  .amdhsa_accum_offset {vgpr}
  .amdhsa_group_segment_fixed_size 0
  .amdhsa_kernarg_size 104
  .amdhsa_user_sgpr_count 2
  .amdhsa_user_sgpr_kernarg_segment_ptr 1
  .amdhsa_system_sgpr_workgroup_id_x 1
.end_amdhsa_kernel
"""


def main(out):
    ks = [('pa_kernel', kernel_a, 256, 512, 8192, 224),
          ('pb_kernel', kernel_b, 256, 256, LDS_B_TOTAL, 240),
          ('pc_kernel', kernel_c, 256, 512, 2048, 124),
          ('pd_kernel', kernel_d, 128, 512, 4096, 76),
          ('pe_kernel', kernel_e, 43, 512, 20480, 144),
          ('pf_kernel', kernel_f, 16, 512, 4096, 156)]
    txt = HEADER
    for n, _, g, blk, lds, _ in ks:
        txt += f'; @launch kernel={n} grid=({g},1,1) block=({blk},1,1) lds={lds}\n'
    txt += '.amdgcn_target "amdgcn-amd-amdhsa--gfx950"\n.text\n'
    a = Asm()
    for n, fn, *_ in ks:
        fn(a, n)
    txt += a.finalize()
    txt += '.section .rodata,"a"\n'
    for n, *_, v in ks:
        txt += descriptor(n, v)
    open(out, 'w').write(txt)


if __name__ == '__main__':
    main(sys.argv[1])
```

```python
import sys
sys.path.insert(0, 'dev')
from asmdsl import Asm
from layout import *

NAME = 'sequential_preLN__compressed_kv_cla__glu_gated_geglu__decode'
HEADER = open('cdna_kernels/' + NAME + '.s.ref').read().split('; Override launch')[0]
SEL_LO, SEL_HI = 0x05040100, 0x07060302

ROW = 1040
LDS_P = 128 * ROW
LDS_M = LDS_P + 8192
LDS_L = LDS_M + 512
LDS_T = LDS_L + 512
LDS_TOTAL = LDS_T + 10240

R_X, R_WS, R_CKV, R_WQ, R_WUK, R_WUV, R_WO, R_WG, R_WU, R_WD, R_OUT, R_ACT = [8 + 4 * i for i in range(12)]
S_TAG, S_LO, S_HI, S_MASK, S_CNT = 56, 57, 58, 59, 60
SPIN = 20000


class Opt:
    stamps = False
    w1 = 6
    window = 12
    nt_ckv = False
    nt_w = False
    sleep = 1


def vr(a, n):
    return f'v[{a}:{a + n - 1}]' if n > 1 else f'v{a}'


def S(base):
    return f's[{base}:{base + 3}]'


def dpp(a, op, d, s0, s1, ctrl):
    a(f'{op}_dpp v{d}, v{s0}, v{s1} {ctrl} row_mask:0xf bank_mask:0xf')


def xlane_16_32(a, op, v, t):
    a(f'v_mov_b32 v{t}, v{v}')
    a(f'v_permlane16_swap_b32 v{v}, v{t}')
    a(f'{op} v{v}, v{v}, v{t}')
    a(f'v_mov_b32 v{t}, v{v}')
    a(f'v_permlane32_swap_b32 v{v}, v{t}')
    a(f'{op} v{v}, v{v}, v{t}')


def wave_reduce(a, op, v, t):
    dpp(a, op, v, v, v, 'quad_perm:[1,0,3,2]')
    dpp(a, op, v, v, v, 'quad_perm:[2,3,0,1]')
    dpp(a, op, v, v, v, 'row_ror:4')
    dpp(a, op, v, v, v, 'row_ror:8')
    xlane_16_32(a, op, v, t)


def gen(o):
    a = Asm()

    def ex(mask):
        if mask == -1:
            a('s_mov_b64 exec, -1')
        elif mask <= 64:
            a(f's_mov_b64 exec, {mask}')
        else:
            a(f's_mov_b32 exec_lo, 0x{mask & 0xffffffff:x}')
            a(f's_mov_b32 exec_hi, 0x{mask >> 32:x}')
    name = NAME + '_kernel'
    nst = [0]

    def stamp(idx):
        if o.stamps:
            a(f's_memrealtime s[{64 + 2 * idx}:{65 + 2 * idx}]')

    def dump_stamps(n, grp):
        if not o.stamps:
            return
        a('s_waitcnt lgkmcnt(0)')
        a('s_mov_b64 exec, -1')
        a('v_mov_b32 v3, 0')
        for i in range(n):
            a(f'v_writelane_b32 v3, s{64 + 2 * i}, {i}')
        a('s_getreg_b32 s61, hwreg(HW_REG_XCC_ID)')
        a('v_writelane_b32 v3, s61, 15')
        a('v_lshlrev_b32 v4, 2, v1')
        a('s_lshl_b32 s61, s2, 7')
        a(f's_add_u32 s61, s61, {WS_STAMP + 64 * grp}')
        ex(0xffff)
        a(f'buffer_store_dword v3, v4, {S(R_WS)}, s61 offen')

    def poll(loads, regs, tmp, cmp_tag=False):
        L, Dn = a.uid('poll'), a.uid('pdone')
        a(f's_mov_b32 s{S_CNT}, {SPIN}')
        a.label(L)
        loads()
        a('s_waitcnt vmcnt(0)')
        if cmp_tag:
            for r in regs:
                a(f'v_xor_b32 v{r}, s{S_TAG}, v{r}')
            a(f'v_or3_b32 v{tmp}, v{regs[0]}, v{regs[1]}, v{regs[2]}')
            a(f'v_or_b32 v{tmp}, v{tmp}, v{regs[3]}')
            a(f'v_cmp_ne_u32 vcc, 0, v{tmp}')
        else:
            rs = list(regs)
            if len(rs) == 2:
                a(f'v_max_u32 v{tmp}, v{rs[0]}, v{rs[1]}')
            else:
                a(f'v_max3_u32 v{tmp}, v{rs[0]}, v{rs[1]}, v{rs[2]}')
                rs = rs[3:]
                while len(rs) >= 2:
                    a(f'v_max3_u32 v{tmp}, v{tmp}, v{rs[0]}, v{rs[1]}')
                    rs = rs[2:]
                if rs:
                    a(f'v_max_u32 v{tmp}, v{tmp}, v{rs[0]}')
            a(f'v_cmp_eq_u32 vcc, -1, v{tmp}')
        a(f's_cbranch_vccz {Dn}')
        if o.sleep:
            a(f's_sleep {o.sleep}')
        a(f's_sub_u32 s{S_CNT}, s{S_CNT}, 1')
        a(f's_cbranch_scc0 {L}')
        a.label(Dn)

    NTC = ' nt' if o.nt_ckv else ''
    NTW = ' nt' if o.nt_w else ''

    a(f'.globl {name}\n.p2align 8\n.type {name},@function')
    a.label(name)
    a('s_cmp_ge_u32 s2, 256')
    a('s_cbranch_scc1 L_end')
    a('s_load_dwordx16 s[64:79], s[0:1], 0')
    a('s_load_dwordx8 s[80:87], s[0:1], 64')
    a(f's_load_dwordx2 s[{R_WS}:{R_WS + 1}], s[0:1], 96')
    a('v_and_b32 v1, 63, v0')
    a('v_lshrrev_b32 v2, 6, v0')
    a('v_readfirstlane_b32 s3, v2')
    a('s_and_b32 s4, s2, 7')
    a('s_lshl_b32 s4, s4, 2')
    a('s_bfe_u32 s5, s2, 0x20003')
    a('s_add_u32 s4, s4, s5')
    a('s_lshr_b32 s5, s2, 5')
    a('s_and_b32 s6, s3, 1')
    a('s_lshr_b32 s7, s3, 1')
    a('v_and_b32 v11, 15, v1')
    a('v_lshrrev_b32 v3, 4, v1')
    a('v_and_b32 v4, 3, v1')
    a('v_lshrrev_b32 v5, 2, v11')
    a('v_lshlrev_b32 v5, 1, v5')
    a('v_and_b32 v6, 1, v11')
    a('v_add_u32 v5, v5, v6')
    a('v_and_b32 v6, 2, v11')
    a('v_lshl_add_u32 v5, v6, 2, v5')
    a('v_lshlrev_b32 v5, 3, v5')
    a('v_lshl_add_u32 v5, v3, 16, v5')
    a('v_lshrrev_b32 v6, 2, v1')
    a('v_lshlrev_b32 v6, 6, v6')
    a('v_lshl_add_u32 v6, v4, 10, v6')
    a('v_lshlrev_b32 v7, 4, v3')
    a('v_lshl_add_u32 v7, v4, 10, v7')
    a('v_lshrrev_b32 v8, 2, v11')
    a('v_lshlrev_b32 v8, 3, v8')
    a('v_add_u32 v8, v8, v4')
    a('v_lshlrev_b32 v8, 13, v8')
    a('v_lshl_add_u32 v8, v3, 4, v8')
    a('v_lshlrev_b32 v2, 4, v1')
    for i in range(4):
        a(f'v_mov_b32 v{220 + i}, -1')
    for r, n in ((R_X, 4096), (R_WS, WS_END), (R_CKV, 32 << 20), (R_WQ, 4 << 20), (R_WUK, 4 << 20),
                 (R_WUV, 4 << 20), (R_WO, 4 << 20), (R_WG, 512 * 2752), (R_WU, 512 * 2752), (R_WD, 1376 * 1024),
                 (R_OUT, 4096), (R_ACT, 43 * 256)):
        a(f's_mov_b32 s{r + 2}, {n}')
        a(f's_mov_b32 s{r + 3}, 0x00020000')
    a(f's_mov_b32 s{S_LO}, {SEL_LO}')
    a(f's_mov_b32 s{S_HI}, {SEL_HI}')
    a(f's_mov_b32 s{S_MASK}, 0xffff0000')
    a('s_waitcnt lgkmcnt(0)')
    for r, p in ((R_X, 64), (R_WQ, 68), (R_WUK, 70), (R_CKV, 66)):
        a(f's_mov_b64 s[{r}:{r + 1}], s[{p}:{p + 1}]')
    XS, XO, L, UK, ACC, T, QF, U = 12, 28, 44, 108, 140, 156, 172, 188
    for i in range(4):
        a(f'buffer_load_dwordx4 {vr(XS + 4 * i, 4)}, v6, {S(R_X)}, 0 offen offset:{16 * i}')
    a('s_lshl_b32 s90, s7, 8')
    for t in range(4):
        a(f'buffer_load_dwordx4 {vr(XO + 4 * t, 4)}, v7, {S(R_X)}, s90 offen offset:{64 * t}')
    a('s_lshl_b32 s90, s7, 20')
    a('s_lshl_b32 s91, s4, 8')
    a('s_lshl_b32 s92, s6, 7')
    a('s_add_u32 s91, s91, s92')
    a('s_add_u32 s90, s90, s91')
    for t in range(4):
        for i in range(8):
            a(f'buffer_load_dwordx2 {vr(L + 16 * t + 2 * i, 2)}, v5, {S(R_WQ)}, s90 offen')
            a(f's_add_u32 s90, s90, {8192 if i < 7 else 8192 * 25}')
    a('s_lshl_b32 s90, s5, 19')
    a('s_add_u32 s90, s90, s91')
    for cb in range(4):
        cp, sub = cb // 2, cb % 2
        a(f's_add_u32 s92, s90, {(32 * cp + 4 * sub) * 8192}')
        for ph in range(2):
            a(f'buffer_load_dwordx4 {vr(UK + 8 * cb + 4 * ph, 4)}, v8, {S(R_WUK)}, s92 offen offset:{64 * ph}')
    a(f's_load_dword s{S_TAG}, s[{R_WS}:{R_WS + 1}], {WS_EPOCH}')
    a('s_bfe_u32 s94, s2, 0x20001')
    a('s_lshr_b32 s93, s2, 3')
    a('s_lshl_b32 s93, s93, 1')
    a('s_and_b32 s95, s2, 1')
    a('s_add_u32 s93, s93, s95')
    a('s_lshl_b32 s95, s94, 6')
    a('s_add_u32 s93, s93, s95')
    a('s_lshl_b32 s95, s2, 15')
    a('s_lshl_b32 s97, s3, 12')
    a('s_add_u32 s95, s95, s97')
    a(f's_add_u32 s95, s95, {WS_OP}')
    for i in range(4):
        a(f'buffer_store_dwordx4 v[220:223], v2, {S(R_WS)}, s95 offen offset:{1024 * i} sc1')
    a('s_lshl_b32 s95, s2, 11')
    a('s_lshl_b32 s97, s3, 8')
    a('s_add_u32 s95, s95, s97')
    a(f's_add_u32 s95, s95, {WS_ST}')
    ex(0xffff)
    a(f'buffer_store_dwordx4 v[220:223], v2, {S(R_WS)}, s95 offen sc1')
    a('s_mov_b64 exec, -1')
    W1 = o.w1
    a('s_lshl_b32 s96, s93, 17')
    a(f's_mul_i32 s95, s3, {W1 * 1024}')
    a('s_add_u32 s97, s96, s95')
    a(f's_mul_i32 s95, s3, {W1 * ROW}')
    a('s_mov_b32 m0, s95')
    for i in range(W1):
        a(f'buffer_load_dwordx4 v2, {S(R_CKV)}, s97 offen lds{NTC}'.replace(' lds nt', ' nt lds'))
        if i < W1 - 1:
            a('s_add_u32 s97, s97, 1024')
            a(f's_add_u32 m0, m0, {ROW}')
    EX = W1 + 5
    for r, p in ((R_WUV, 72), (R_WO, 74), (R_WG, 78), (R_WU, 80), (R_WD, 82), (R_OUT, 84)):
        a(f's_mov_b64 s[{r}:{r + 1}], s[{p}:{p + 1}]')
    a(f's_add_u32 s{R_ACT}, s{R_WS}, {WS_ACT}')
    a(f's_addc_u32 s{R_ACT + 1}, s{R_WS + 1}, 0')
    stamp(0)
    a(f's_waitcnt vmcnt({4 + 32 + 8 + EX})')
    for i in range(16):
        a(f'v_lshlrev_b32 v{U + 2 * i}, 16, v{XS + i}')
        a(f'v_and_b32 v{U + 2 * i + 1}, s{S_MASK}, v{XS + i}')
    a(f'v_add_f32 v10, v{U}, v{U + 1}')
    for i in range(2, 32):
        a(f'v_add_f32 v10, v10, v{U + i}')
    dpp(a, 'v_add_f32', 10, 10, 10, 'row_ror:4')
    dpp(a, 'v_add_f32', 10, 10, 10, 'row_ror:8')
    xlane_16_32(a, 'v_add_f32', 10, 12)
    a('v_mul_f32 v10, 0x3b000000, v10')
    a('v_mov_b32 v9, 0')
    for i in range(32):
        a(f'v_sub_f32 v{U + i}, v{U + i}, v10')
        a(f'v_fmac_f32 v9, v{U + i}, v{U + i}')
    dpp(a, 'v_add_f32', 9, 9, 9, 'row_ror:4')
    dpp(a, 'v_add_f32', 9, 9, 9, 'row_ror:8')
    xlane_16_32(a, 'v_add_f32', 9, 12)
    a('v_mov_b32 v12, 0x3727c5ac')
    a('v_fmac_f32 v12, 0x3b000000, v9')
    a('v_rsq_f32 v9, v12')
    a(f's_waitcnt vmcnt({32 + 8 + EX})')
    for i in range(16):
        a(f'v_lshlrev_b32 v{U}, 16, v{XO + i}')
        a(f'v_and_b32 v{U + 1}, s{S_MASK}, v{XO + i}')
        a(f'v_sub_f32 v{U}, v{U}, v10')
        a(f'v_sub_f32 v{U + 1}, v{U + 1}, v10')
        a(f'v_mul_f32 v{U}, v{U}, v9')
        a(f'v_mul_f32 v{U + 1}, v{U + 1}, v9')
        a(f'v_cvt_pk_bf16_f32 v{XO + i}, v{U}, v{U + 1}')
    stamp(1)
    for t in range(4):
        a(f's_waitcnt vmcnt({8 * (3 - t) + 8 + EX})')
        for u in range(2):
            tb = T + 8 * u
            for p in range(4):
                lo, hi = L + 16 * t + 2 * (2 * p) + u, L + 16 * t + 2 * (2 * p + 1) + u
                a(f'v_perm_b32 v{tb + p}, v{hi}, v{lo}, s{S_LO}')
                a(f'v_perm_b32 v{tb + 4 + p}, v{hi}, v{lo}, s{S_HI}')
            for e in range(2):
                ac = ACC + 4 * (2 * u + e)
                c = '0' if t == 0 else vr(ac, 4)
                a(f'v_mfma_f32_16x16x32_bf16 {vr(ac, 4)}, {vr(tb + 4 * e, 4)}, {vr(XO + 4 * t, 4)}, {c}')
    for ph in range(2):
        for jj in range(2):
            j = 2 * ph + jj
            a(f'v_cvt_pk_bf16_f32 v{QF + 4 * ph + 2 * jj}, v{ACC + j}, v{ACC + 4 + j}')
            a(f'v_cvt_pk_bf16_f32 v{QF + 4 * ph + 2 * jj + 1}, v{ACC + 8 + j}, v{ACC + 12 + j}')
    a(f's_waitcnt vmcnt({EX})')
    A2 = 188
    for cb in range(4):
        for ph in range(2):
            c = '0' if ph == 0 else vr(A2 + 4 * cb, 4)
            a(f'v_mfma_f32_16x16x32_bf16 {vr(A2 + 4 * cb, 4)}, {vr(UK + 8 * cb + 4 * ph, 4)}, {vr(QF + 4 * ph, 4)}, {c}')
    a('v_lshlrev_b32 v10, 6, v3')
    a('v_lshl_add_u32 v10, v4, 4, v10')
    a('s_lshl_b32 s90, s3, 10')
    a(f's_add_u32 s90, s90, {LDS_P}')
    a('v_add_u32 v10, s90, v10')
    ex(0x000f000f000f000f)
    for cb in range(4):
        a(f'ds_write_b128 v10, {vr(A2 + 4 * cb, 4)} offset:{256 * cb}')
    a('s_mov_b64 exec, -1')
    stamp(2)
    a(f's_waitcnt vmcnt({W1}) lgkmcnt(0)')
    a(f's_add_u32 s{S_TAG}, s{S_TAG}, 0x9e3779b9')
    a('s_barrier')
    stamp(3)
    a('s_cmp_ge_u32 s3, 4')
    a('s_cbranch_scc1 L_tail')

    a('s_cmp_lg_u32 s3, 0')
    a('s_cbranch_scc1 L_bpoll')
    ex(0xffffffff)
    a('v_lshlrev_b32 v10, 4, v11')
    a('v_lshl_add_u32 v10, v3, 9, v10')
    a(f'v_add_u32 v10, {LDS_P}, v10')
    for w in range(8):
        a(f'ds_read_b128 {vr(12 + 8 * w, 4)}, v10 offset:{1024 * w}')
        a(f'ds_read_b128 {vr(16 + 8 * w, 4)}, v10 offset:{1024 * w + 256}')
    a('v_lshrrev_b32 v10, 2, v1')
    a('v_lshlrev_b32 v10, 9, v10')
    a('v_lshl_add_u32 v10, v4, 15, v10')
    a('s_lshl_b32 s90, s5, 12')
    a('s_lshl_b32 s91, s4, 4')
    a('s_add_u32 s90, s90, s91')
    if WS_QA:
        a(f's_add_u32 s90, s90, {WS_QA}')
    a(f's_mov_b32 s91, {QSCALE_BITS}')
    a('s_waitcnt lgkmcnt(0)')
    for w in range(1, 8):
        for i in range(8):
            a(f'v_add_f32 v{12 + i}, v{12 + i}, v{12 + 8 * w + i}')
    for i in range(8):
        a(f'v_mul_f32 v{12 + i}, s91, v{12 + i}')
    for i in range(4):
        a(f'v_cvt_pk_bf16_f32 v{20 + i}, v{12 + 2 * i}, v{13 + 2 * i}')
    a(f'buffer_store_dwordx4 v[20:23], v10, {S(R_WS)}, s90 offen sc1')
    a('s_lshl_b32 s90, s2, 2')
    a(f's_add_u32 s90, s90, {WS_FLAG}')
    a(f'v_mov_b32 v12, s{S_TAG}')
    a('s_mov_b64 exec, 1')
    a('s_waitcnt vmcnt(0)')
    a(f'buffer_store_dword v12, off, {S(R_WS)}, s90 sc1')
    a('s_mov_b64 exec, -1')
    stamp(4)
    a.label('L_bpoll')
    a(f's_mul_i32 s90, s3, {32 * ROW}')
    a('v_lshlrev_b32 v3, 2, v4')
    a('v_bfe_u32 v5, v1, 2, 2')
    a('v_add_u32 v3, v3, v5')
    a('v_and_b32 v6, 16, v1')
    a('v_add_u32 v3, v3, v6')
    a(f'v_mul_u32_u24 v3, {ROW}, v3')
    a('v_lshrrev_b32 v6, 5, v1')
    a('v_lshl_add_u32 v3, v6, 4, v3')
    a('v_add_u32 v3, s90, v3')
    a('v_lshl_add_u32 v5, v5, 2, v6')
    a(f'v_mul_u32_u24 v5, {ROW}, v5')
    a('v_bfe_u32 v6, v1, 4, 1')
    a('v_lshl_add_u32 v5, v6, 5, v5')
    a('v_lshl_add_u32 v5, v4, 3, v5')
    a('s_lshl_b32 s92, s3, 8')
    a('v_add_u32 v5, s92, v5')
    a(f'v_add_u32 v6, {64 * ROW}, v5')
    a(f's_mov_b32 s90, {WS_FLAG}')
    poll(lambda: a(f'buffer_load_dwordx4 v[12:15], v2, {S(R_WS)}, s90 offen sc1'), [12, 13, 14, 15], 10, True)
    stamp(5)
    QA, SA, AF, OA, PF, BF = 16, 144, 160, 80, 16, 48
    a('s_lshl_b32 s90, s94, 15')
    if WS_QA:
        a(f's_add_u32 s90, s90, {WS_QA}')
    for st in range(32):
        a(f'buffer_load_dwordx4 {vr(QA + 4 * st, 4)}, v2, {S(R_WS)}, s90 offen offset:{(st % 4) * 1024} sc1')
        if st % 4 == 3 and st < 31:
            a('s_add_u32 s90, s90, 4096')
    a('v_and_b32 v9, 31, v1')
    a('v_lshlrev_b32 v9, 2, v9')
    a('s_lshl_b32 s90, s3, 7')
    a('v_add_u32 v10, s90, v9')
    a(f'v_add_u32 v10, {LDS_M}, v10')
    a(f'v_add_u32 v9, {LDS_M}, v9')
    if o.stamps:
        a('s_waitcnt vmcnt(0)')
    stamp(6)
    a('s_barrier')
    stamp(7)
    DEPTH = 4
    for st in range(DEPTH):
        a(f'ds_read_b128 {vr(AF + 4 * st, 4)}, v3 offset:{32 * st}')
    for st in range(32):
        if st % 4 == 0:
            a(f's_waitcnt vmcnt({28 - st}) lgkmcnt({min(DEPTH - 1, 31 - st)})')
        else:
            a(f's_waitcnt lgkmcnt({min(DEPTH - 1, 31 - st)})')
        c = '0' if st == 0 else vr(SA, 16)
        a(f'v_mfma_f32_32x32x16_bf16 {vr(SA, 16)}, {vr(AF + 4 * (st % DEPTH), 4)}, {vr(QA + 4 * st, 4)}, {c}')
        if st + DEPTH < 32:
            a(f'ds_read_b128 {vr(AF + 4 * (st % DEPTH), 4)}, v3 offset:{32 * (st + DEPTH)}')
    a(f'v_max3_f32 v7, v{SA}, v{SA + 1}, v{SA + 2}')
    for i in range(3, 15, 2):
        a(f'v_max3_f32 v7, v7, v{SA + i}, v{SA + i + 1}')
    a(f'v_max_f32 v7, v7, v{SA + 15}')
    a('v_mov_b32 v8, v7')
    a('v_permlane32_swap_b32 v7, v8')
    a('v_max_f32 v7, v7, v8')
    a('ds_write_b32 v10, v7')
    a('s_waitcnt lgkmcnt(0)')
    a('s_barrier')
    a('ds_read2_b32 v[12:13], v9 offset0:0 offset1:32')
    a('ds_read2_b32 v[14:15], v9 offset0:64 offset1:96')
    a('s_lshl_b32 s90, s3, 11')
    a(f's_add_u32 s90, s90, {LDS_P}')
    a('v_add_u32 v11, s90, v2')
    a('s_waitcnt lgkmcnt(0)')
    a('v_max3_f32 v7, v12, v13, v14')
    a('v_max_f32 v7, v7, v15')
    for i in range(16):
        a(f'v_sub_f32 v{SA + i}, v{SA + i}, v7')
    for i in range(16):
        a(f'v_exp_f32 v{SA + i}, v{SA + i}')
    for i in range(8):
        a(f'v_cvt_pk_bf16_f32 v{AF + i}, v{SA + 2 * i}, v{SA + 2 * i + 1}')
    a(f'ds_write_b128 v11, {vr(AF, 4)}')
    a(f'ds_write_b128 v11, {vr(AF + 4, 4)} offset:1024')
    a(f'v_add_f32 v8, v{SA}, v{SA + 1}')
    for i in range(2, 16):
        a(f'v_add_f32 v8, v8, v{SA + i}')
    a('v_mov_b32 v12, v8')
    a('v_permlane32_swap_b32 v8, v12')
    a('v_add_f32 v8, v8, v12')
    a('ds_write_b32 v10, v8 offset:512')
    a(f'v_add_u32 v11, {LDS_P}, v2')
    a('s_waitcnt lgkmcnt(0)')
    a('s_barrier')
    stamp(8)
    for ks in range(8):
        a(f'ds_read_b128 {vr(PF + 4 * ks, 4)}, v11 offset:{1024 * ks}')
    NB = 8
    seq = [(ks, blk) for ks in range(8) for blk in range(4)]

    def rd(n):
        ks, blk = seq[n]
        base = 'v5' if ks < 4 else 'v6'
        off = (ks % 4) * 16 * ROW + blk * 64
        bf = BF + 4 * (n % NB)
        a(f'ds_read_b64_tr_b16 {vr(bf, 2)}, {base} offset:{off}')
        a(f'ds_read_b64_tr_b16 {vr(bf + 2, 2)}, {base} offset:{off + 2 * ROW}')
    PD = 4
    for n in range(PD - 1):
        rd(n)
    a('v_lshrrev_b32 v12, 5, v1')
    a('v_lshlrev_b32 v12, 2, v12')
    a('v_bfe_u32 v13, v1, 4, 1')
    a('v_add_u32 v12, v12, v13')
    a('v_lshlrev_b32 v12, 10, v12')
    a('v_and_b32 v13, 15, v1')
    a('v_lshl_add_u32 v12, v13, 4, v12')
    a('s_lshl_b32 s90, s93, 15')
    a(f's_add_u32 s90, s90, {WS_OP}')
    a('s_add_u32 s90, s90, s92')
    for n in range(32):
        ks, blk = seq[n]
        if n + PD - 1 < 32:
            a(f's_waitcnt lgkmcnt({2 * (PD - 2)})')
            rd(n + PD - 1)
        else:
            a(f's_waitcnt lgkmcnt({2 * (31 - n)})')
        c = '0' if ks == 0 else vr(OA + 16 * blk, 16)
        a(f'v_mfma_f32_32x32x16_bf16 {vr(OA + 16 * blk, 16)}, {vr(PF + 4 * ks, 4)}, {vr(BF + 4 * (n % NB), 4)}, {c}')
    stamp(9)
    for ap in range(8):
        t = 144 + 4 * ap
        j = 2 * ap
        a(f'v_cvt_pk_bf16_f32 v{t}, v{OA + j}, v{OA + 16 + j}')
        a(f'v_cvt_pk_bf16_f32 v{t + 1}, v{OA + 32 + j}, v{OA + 48 + j}')
        a(f'v_cvt_pk_bf16_f32 v{t + 2}, v{OA + j + 1}, v{OA + 16 + j + 1}')
        a(f'v_cvt_pk_bf16_f32 v{t + 3}, v{OA + 32 + j + 1}, v{OA + 48 + j + 1}')
        hoff = (8 * (ap // 2) + 2 * (ap % 2)) * 1024
        a(f's_add_u32 s91, s90, {hoff}')
        a(f'v_permlane16_swap_b32 v{t}, v{t + 2}')
        a(f'v_permlane16_swap_b32 v{t + 1}, v{t + 3}')
        a(f'buffer_store_dwordx4 {vr(t, 4)}, v12, {S(R_WS)}, s91 offen sc1')
    if o.stamps:
        stamp(10)
        a('s_waitcnt vmcnt(0)')
        stamp(11)
        a('s_cmp_lg_u32 s3, 0')
        a('s_cbranch_scc1 L_end')
        dump_stamps(12, 0)
    a('s_endpgm')

    a.label('L_tail')
    a('s_sub_u32 s3, s3, 4')
    REM = (128 - 8 * W1) // 4
    a(f's_mul_i32 s95, s3, {REM * 1024}')
    a('s_add_u32 s97, s96, s95')
    a(f's_add_u32 s97, s97, {8 * W1 * 1024}')
    a(f's_mul_i32 s95, s3, {REM * ROW}')
    a(f's_add_u32 m0, s95, {8 * W1 * ROW}')
    for i in range(REM):
        if i + W1 >= o.window:
            a(f's_waitcnt vmcnt({o.window - 1})')
        a(f'buffer_load_dwordx4 v2, {S(R_CKV)}, s97 offen lds{NTC}'.replace(' lds nt', ' nt lds'))
        if i < REM - 1:
            a('s_add_u32 s97, s97, 1024')
            a(f's_add_u32 m0, m0, {ROW}')
    stamp(4)
    a('s_and_b32 s4, s2, 31')
    a('s_lshr_b32 s5, s2, 5')
    a('v_lshlrev_b32 v8, 13, v3')
    a('v_lshl_add_u32 v8, v11, 2, v8')
    WC, OPC, RAW, OP = 16, 32, 56, 48
    a('s_lshr_b32 s90, s5, 1')
    a('s_lshl_b32 s90, s90, 20')
    a('s_and_b32 s91, s5, 1')
    a('s_lshl_b32 s91, s91, 16')
    a('s_add_u32 s90, s90, s91')
    a('s_lshl_b32 s91, s4, 8')
    a('s_add_u32 s90, s90, s91')
    a('s_lshl_b32 s91, s3, 6')
    a('s_add_u32 s90, s90, s91')
    for t in range(2):
        for i in range(8):
            a(f's_add_u32 s92, s90, {(4 * t + 32 * (i % 4) + 16 * (i // 4)) * 8192}')
            a(f'buffer_load_dword v{WC + 8 * t + i}, v8, {S(R_WUV)}, s92 offen{NTW}')
    a('s_waitcnt vmcnt(16)')
    stamp(5)
    a('s_barrier')
    a('s_mov_b32 s6, 0')
    a('s_mov_b32 s99, 0')
    a('s_mov_b32 s7, 0')
    a('v_mov_b32 v15, 0')
    a('s_cmp_lt_u32 s2, 128')
    a('s_cbranch_scc1 L_wD')
    a('s_cmp_lt_u32 s2, 176')
    a('s_cbranch_scc1 L_wE')
    a('s_cmp_lt_u32 s2, 192')
    a('s_cbranch_scc1 L_wdone')
    a('s_cmp_lt_u32 s2, 208')
    a('s_cbranch_scc0 L_wdone')
    a('s_mov_b32 s6, 3')
    a('s_and_b32 s7, s2, 7')
    a('s_lshl_b32 s7, s7, 1')
    a('s_bfe_u32 s90, s2, 0x10003')
    a('s_add_u32 s7, s7, s90')
    a('s_lshl_b32 s90, s3, 15')
    a('s_lshl_b32 s91, s7, 6')
    a('s_add_u32 s90, s90, s91')
    a('s_mov_b32 s99, s90')

    def f_w(n0, n1):
        for n in range(n0, n1):
            for i in range(8):
                if i % 4 == 0:
                    a(f's_add_u32 s92, s99, {(128 * n + i) * 1024}')
                a(f'buffer_load_dword v{RAW + 8 * n + i}, v8, {S(R_WD)}, s92 offen offset:{(i % 4) * 1024}{NTW}')
    f_w(0, 5)
    a('s_branch L_wdone')
    a.label('L_wE')
    a('s_and_b32 s7, s2, 7')
    a('s_mul_i32 s7, s7, 6')
    a('s_bfe_u32 s90, s2, 0x30003')
    a('s_add_u32 s7, s7, s90')
    a('s_cmp_ge_u32 s7, 43')
    a('s_cbranch_scc1 L_wdone')
    a('s_mov_b32 s6, 2')
    a(f'v_mul_u32_u24 v15, {8 * 2752}, v3')
    a('v_lshl_add_u32 v15, v11, 2, v15')
    a(f's_mul_i32 s90, s3, {128 * 2752}')
    a('s_lshl_b32 s91, s7, 6')
    a('s_add_u32 s90, s90, s91')
    a('s_mov_b32 s99, s90')

    def e_w(n0, n1):
        for n in range(n0, n1):
            mat, t = n // 4, n % 4
            for i in range(8):
                a(f's_add_u32 s92, s99, {(32 * t + i) * 2752}')
                a(f'buffer_load_dword v{RAW + 32 * mat + 8 * t + i}, v15, {S(R_WG if mat == 0 else R_WU)}, s92 offen{NTW}')
    e_w(0, 5)
    a('s_branch L_wdone')
    a.label('L_wD')
    a('s_mov_b32 s6, 1')
    a('s_and_b32 s7, s2, 7')
    a('s_lshl_b32 s90, s7, 19')
    a('s_lshl_b32 s91, s3, 17')
    a('s_add_u32 s90, s90, s91')
    a('s_lshr_b32 s91, s2, 3')
    a('s_lshl_b32 s91, s91, 6')
    a('s_add_u32 s90, s90, s91')
    for t in range(4):
        for i in range(8):
            if i % 4 == 0:
                a(f's_add_u32 s92, s90, {(32 * t + i) * 1024}')
            a(f'buffer_load_dword v{RAW + 8 * t + i}, v8, {S(R_WO)}, s92 offen offset:{(i % 4) * 1024}{NTW}')
    a.label('L_wdone')
    a('s_barrier')
    a('s_barrier')
    lbl = a.uid('nostat')
    a('s_cmp_lg_u32 s3, 0')
    a(f's_cbranch_scc1 {lbl}')
    a('v_lshlrev_b32 v9, 2, v1')
    a(f'v_add_u32 v9, {LDS_M}, v9')
    ex(0xffffffff)
    a('ds_read2_b32 v[144:145], v9 offset0:0 offset1:32')
    a('ds_read2_b32 v[146:147], v9 offset0:64 offset1:96')
    a('ds_read2_b32 v[148:149], v9 offset0:128 offset1:160')
    a('ds_read2_b32 v[150:151], v9 offset0:192 offset1:224')
    a('v_lshlrev_b32 v14, 11, v1')
    a('s_lshl_b32 s90, s93, 3')
    a(f's_add_u32 s90, s90, {WS_ST}')
    a('s_waitcnt lgkmcnt(0)')
    a('v_max3_f32 v12, v144, v145, v146')
    a('v_max_f32 v12, v12, v147')
    a('v_add_f32 v148, v148, v149')
    a('v_add_f32 v150, v150, v151')
    a('v_add_f32 v13, v148, v150')
    a(f'buffer_store_dwordx2 v[12:13], v14, {S(R_WS)}, s90 offen sc1')
    a('s_mov_b64 exec, -1')
    a.label(lbl)
    a('s_cmp_lt_u32 s6, 2')
    a('s_cbranch_scc1 L_w2done')
    a('s_cmp_eq_u32 s6, 2')
    a('s_cbranch_scc1 L_w2E')
    a('s_waitcnt vmcnt(14)')
    f_w(5, 11)
    a('s_branch L_w2done')
    a.label('L_w2E')
    a('s_waitcnt vmcnt(38)')
    e_w(5, 8)
    a.label('L_w2done')
    stamp(6)
    a('s_waitcnt vmcnt(0)')
    stamp(7)
    for t in range(2):
        for p in range(4):
            a(f'v_perm_b32 v{OPC + 8 * t + p}, v{WC + 8 * t + 2 * p + 1}, v{WC + 8 * t + 2 * p}, s{S_LO}')
            a(f'v_perm_b32 v{OPC + 8 * t + 4 + p}, v{WC + 8 * t + 2 * p + 1}, v{WC + 8 * t + 2 * p}, s{S_HI}')
    for n in range(11):
        for p in range(4):
            a(f'v_perm_b32 v{OP + 8 * n + p}, v{RAW + 8 * n + 2 * p + 1}, v{RAW + 8 * n + 2 * p}, s{S_LO}')
        for p in range(4):
            a(f'v_perm_b32 v{OP + 8 * n + 4 + p}, v{RAW + 8 * n + 2 * p + 1}, v{RAW + 8 * n + 2 * p}, s{S_HI}')
    D, WL, ACC = 144, 176, 192
    a('v_lshrrev_b32 v5, 3, v1')
    a('v_and_b32 v6, 7, v1')
    a('v_lshlrev_b32 v7, 15, v5')
    a('v_lshl_add_u32 v7, v6, 4, v7')
    a('v_lshlrev_b32 v9, 3, v1')
    a('s_lshl_b32 s90, s4, 11')
    a('s_lshl_b32 s91, s3, 9')
    a('s_add_u32 s90, s90, s91')
    a(f's_add_u32 s90, s90, {WS_ST}')
    poll(lambda: a(f'buffer_load_dwordx2 v[12:13], v9, {S(R_WS)}, s90 offen sc1'), [12, 13], 10)
    stamp(8)
    a('s_lshl_b32 s90, s3, 21')
    a('s_lshl_b32 s91, s4, 10')
    a('s_add_u32 s90, s90, s91')
    a('s_lshl_b32 s91, s5, 7')
    a('s_add_u32 s90, s90, s91')
    a(f's_add_u32 s90, s90, {WS_OP}')
    a('v_mov_b32 v14, v12')
    wave_reduce(a, 'v_max_f32', 14, 15)
    a('v_sub_f32 v12, v12, v14')
    a('v_exp_f32 v12, v12')
    a('v_mul_f32 v14, v12, v13')
    wave_reduce(a, 'v_add_f32', 14, 15)
    a('v_rcp_f32 v14, v14')
    a('v_mul_f32 v12, v12, v14')
    a('v_cvt_pk_bf16_f32 v12, v12, 0')
    a('v_lshlrev_b32 v14, 2, v5')
    for i in range(8):
        a(f'ds_bpermute_b32 v{WL + i}, v14, v12 offset:{32 * i}')
    a('s_waitcnt lgkmcnt(0)')
    for i in range(8):
        a(f'v_lshlrev_b32 v{WL + 8 + i}, 16, v{WL + i}')
    a('v_lshlrev_b32 v12, 4, v6')
    a('v_lshl_add_u32 v12, v3, 1, v12')
    a('s_lshl_b32 s91, s3, 7')
    a(f's_add_u32 s91, s91, {LDS_T}')
    a('v_add_u32 v12, s91, v12')
    a('v_lshlrev_b32 v13, 7, v4')
    a('v_lshl_add_u32 v13, v3, 4, v13')
    a(f'v_add_u32 v13, {LDS_T}, v13')
    a('v_lshlrev_b32 v14, 8, v3')
    a('v_lshl_add_u32 v14, v4, 4, v14')
    a('s_lshl_b32 s98, s4, 13')
    a('s_lshl_b32 s91, s3, 11')
    a('s_add_u32 s98, s98, s91')
    a('s_lshr_b32 s91, s5, 2')
    a('s_lshl_b32 s91, s91, 10')
    a('s_add_u32 s98, s98, s91')
    a('s_and_b32 s91, s5, 3')
    a('s_lshl_b32 s91, s91, 6')
    a('s_add_u32 s98, s98, s91')
    a(f's_add_u32 s98, s98, {WS_CP}')

    def c_loads():
        a('s_mov_b32 s92, s90')
        for i in range(8):
            a(f'buffer_load_dwordx4 {vr(D + 4 * i, 4)}, v7, {S(R_WS)}, s92 offen sc1')
            if i < 7:
                a('s_add_u32 s92, s92, 0x40000')
    poll(c_loads, list(range(D, D + 32)), 10)
    stamp(9)
    for i in range(8):
        for u in range(4):
            for e in range(2):
                c = '0' if i == 0 else f'v{ACC + 2 * u + e}'
                a(f'v_dot2_f32_bf16 v{ACC + 2 * u + e}, v{D + 4 * i + u}, v{WL + 8 * e + i}, {c}')
    for k in range(4):
        a(f'v_permlane16_swap_b32 v{ACC + 2 * k}, v{ACC + 2 * k + 1}')
    for k in range(4):
        a(f'v_add_f32 v{ACC + 2 * k}, v{ACC + 2 * k}, v{ACC + 2 * k + 1}')
    for k in range(2):
        a(f'v_permlane32_swap_b32 v{ACC + 4 * k}, v{ACC + 4 * k + 2}')
    for k in range(2):
        a(f'v_add_f32 v{ACC + 4 * k}, v{ACC + 4 * k}, v{ACC + 4 * k + 2}')
    for k in range(2):
        dpp(a, 'v_add_f32', ACC + 4 * k, ACC + 4 * k, ACC + 4 * k, 'row_ror:8')
    a(f'v_cvt_pk_bf16_f32 v{ACC}, v{ACC}, v{ACC + 4}')
    a(f'ds_write_b16 v12, v{ACC}')
    a(f'ds_write_b16_d16_hi v12, v{ACC} offset:8')
    a('s_waitcnt lgkmcnt(0)')
    a('s_barrier')
    a(f'ds_read_b128 {vr(D, 4)}, v13')
    a(f'ds_read_b128 {vr(D + 4, 4)}, v13 offset:64')
    a('s_waitcnt lgkmcnt(0)')
    for t in range(2):
        for e in range(2):
            c = '0' if t == 0 else vr(ACC + 4 * e, 4)
            a(f'v_mfma_f32_16x16x32_bf16 {vr(ACC + 4 * e, 4)}, {vr(OPC + 8 * t + 4 * e, 4)}, {vr(D + 4 * t, 4)}, {c}')
    for j in range(4):
        a(f'v_cvt_pk_bf16_f32 v{16 + j}, v{ACC + j}, v{ACC + 4 + j}')
    ex(0x000f000f000f000f)
    a(f'buffer_store_dwordx4 v[16:19], v14, {S(R_WS)}, s98 offen sc1')
    a('s_mov_b64 exec, -1')
    stamp(10)
    a('s_cmp_eq_u32 s6, 1')
    a('s_cbranch_scc1 L_D')
    a('s_cmp_eq_u32 s6, 2')
    a('s_cbranch_scc1 L_E')
    a('s_cmp_eq_u32 s6, 3')
    a('s_cbranch_scc1 L_F')
    a('s_branch L_tend')

    LT2 = LDS_T + 1024

    def reduce4_write(acc_regs8):
        ex(0x000f000f000f000f)
        a(f'ds_write_b128 v12, {vr(acc_regs8, 4)}')
        a(f'ds_write_b128 v12, {vr(acc_regs8 + 4, 4)} offset:16')
        a('s_mov_b64 exec, -1')
        a('s_waitcnt lgkmcnt(0)')
        a('s_barrier')

    def reduce4_addr():
        a('v_lshlrev_b32 v12, 7, v4')
        a('v_lshl_add_u32 v12, v3, 5, v12')
        a('s_lshl_b32 s91, s3, 9')
        a(f's_add_u32 s91, s91, {LT2}')
        a('v_add_u32 v12, s91, v12')
        a(f'v_add_u32 v13, {LT2}, v2')

    a.label('L_D')
    X, T8 = 144, 200
    a('s_lshl_b32 s90, s7, 15')
    a('s_lshl_b32 s91, s3, 13')
    a('s_add_u32 s90, s90, s91')
    a(f's_add_u32 s90, s90, {WS_CP}')
    a('s_add_u32 s92, s90, 4096')
    reduce4_addr()
    a('v_lshlrev_b32 v14, 11, v5')
    a('v_lshl_add_u32 v14, v6, 4, v14')
    a('s_lshl_b32 s98, s7, 13')
    a('s_lshr_b32 s91, s2, 3')
    a('s_lshl_b32 s91, s91, 7')
    a('s_add_u32 s98, s98, s91')
    a(f's_add_u32 s98, s98, {WS_HP}')

    def d_loads():
        for i in range(8):
            a(f'buffer_load_dwordx4 {vr(X + 4 * i, 4)}, v2, {S(R_WS)}, s{90 if i < 4 else 92} offen offset:{1024 * (i % 4)} sc1')
    poll(d_loads, list(range(X, X + 32)), 10)
    stamp(11)
    for t in range(4):
        for cg in range(2):
            for e in range(2):
                c = '0' if (t == 0 and cg == 0) else vr(ACC + 4 * e, 4)
                a(f'v_mfma_f32_16x16x32_bf16 {vr(ACC + 4 * e, 4)}, {vr(OP + 8 * t + 4 * e, 4)}, {vr(X + 8 * t + 4 * cg, 4)}, {c}')
    for i in range(8):
        dpp(a, 'v_add_f32', ACC + i, ACC + i, ACC + i, 'row_ror:4')
    for e in range(2):
        for j in range(4):
            dpp(a, 'v_add_f32', T8 + 2 * j + e, ACC + 4 * e + j, ACC + 4 * e + j, 'row_ror:8')
    reduce4_write(T8)
    a('s_cmp_lg_u32 s3, 0')
    a('s_cbranch_scc1 L_end')
    ex(0xffffffff)
    for w in range(4):
        a(f'ds_read_b128 {vr(X + 4 * w, 4)}, v13 offset:{512 * w}')
    a('s_waitcnt lgkmcnt(0)')
    for i in range(4):
        a(f'v_add_f32 v{X + i}, v{X + i}, v{X + 4 + i}')
        a(f'v_add_f32 v{X + 8 + i}, v{X + 8 + i}, v{X + 12 + i}')
        a(f'v_add_f32 v{X + i}, v{X + i}, v{X + 8 + i}')
    a(f'buffer_store_dwordx4 {vr(X, 4)}, v14, {S(R_WS)}, s98 offen sc1')
    a('s_branch L_tend')

    a.label('L_E')
    H, XR, EA, G = 144, 208, 224, 240
    a('v_bfe_u32 v14, v1, 2, 2')
    a('v_lshlrev_b32 v7, 13, v14')
    a('v_lshl_add_u32 v7, v4, 11, v7')
    a('v_lshl_add_u32 v7, v3, 5, v7')
    a('v_lshlrev_b32 v9, 10, v4')
    a('v_lshl_add_u32 v9, v3, 4, v9')
    a('s_lshl_b32 s90, s3, 8')
    for t in range(4):
        a(f'buffer_load_dwordx4 {vr(XR + 4 * t, 4)}, v9, {S(R_X)}, s90 offen offset:{64 * t}')
    a('s_lshl_b32 s90, s3, 9')
    a(f's_add_u32 s90, s90, {WS_HP}')
    a('s_add_u32 s92, s90, 32768')
    a('v_lshlrev_b32 v12, 8, v11')
    a('v_lshl_add_u32 v12, v3, 6, v12')
    a('s_mul_i32 s91, s3, 2304')
    a(f's_add_u32 s91, s91, {LT2}')
    a('v_add_u32 v12, s91, v12')
    a('v_lshlrev_b32 v13, 7, v3')
    a('v_lshl_add_u32 v13, v11, 4, v13')
    a('v_add_u32 v13, s91, v13')

    def e_loads():
        for rr in range(2):
            for t in range(4):
                for hf in range(2):
                    a(f'buffer_load_dwordx4 {vr(H + 32 * rr + 8 * t + 4 * hf, 4)}, v7, {S(R_WS)}, s{90 + 2 * rr} offen offset:{128 * t + 16 * hf} sc1')
    poll(e_loads, list(range(H, H + 64)), 10)
    stamp(11)
    for i in range(32):
        a(f'v_add_f32 v{H + i}, v{H + i}, v{H + 32 + i}')
    for i in range(32):
        dpp(a, 'v_add_f32', H + i, H + i, H + i, 'row_ror:4')
    for i in range(32):
        dpp(a, 'v_add_f32', H + i, H + i, H + i, 'row_ror:8')
    for i in range(16):
        a(f'v_lshlrev_b32 v{H + 32}, 16, v{XR + i}')
        a(f'v_and_b32 v{H + 33}, s{S_MASK}, v{XR + i}')
        a(f'v_add_f32 v{H + 2 * i}, v{H + 2 * i}, v{H + 32}')
        a(f'v_add_f32 v{H + 2 * i + 1}, v{H + 2 * i + 1}, v{H + 33}')
        a(f'v_cvt_pk_bf16_f32 v{XR + i}, v{H + 2 * i}, v{H + 2 * i + 1}')
    ex(0x00f000f000f000f0)
    for i in range(16):
        a(f'v_mov_b32 v{XR + i}, 0x3f803f80')
    a('s_mov_b64 exec, -1')
    for t in range(4):
        c = '0' if t == 0 else vr(G, 4)
        a(f'v_mfma_f32_16x16x32_bf16 {vr(G, 4)}, {vr(XR + 4 * t, 4)}, {vr(XR + 4 * t, 4)}, {c}')
        for mat in range(2):
            for e in range(2):
                ac = EA + 8 * mat + 4 * e
                c = '0' if t == 0 else vr(ac, 4)
                a(f'v_mfma_f32_16x16x32_bf16 {vr(ac, 4)}, {vr(OP + 32 * mat + 8 * t + 4 * e, 4)}, {vr(XR + 4 * t, 4)}, {c}')
    ex(0x00ff00ff00ff00ff)
    for k in range(4):
        a(f'ds_write_b128 v12, {vr(EA + 4 * k, 4)} offset:{16 * k}')
    ex(0x00ff00ff)
    a(f'ds_write_b128 v13, {vr(G, 4)} offset:2048')
    a('s_mov_b64 exec, -1')
    a('s_lshl_b32 s91, s3, 6')
    a('v_add_u32 v0, s91, v1')
    a('v_lshrrev_b32 v2, 5, v0')
    a('v_bfe_u32 v3, v0, 3, 2')
    a('v_and_b32 v4, 7, v0')
    a('v_lshlrev_b32 v9, 6, v3')
    a('v_lshl_add_u32 v9, v4, 2, v9')
    a(f'v_add_u32 v9, {LT2}, v9')
    a('v_lshl_add_u32 v10, v2, 8, v9')
    a('v_add_u32 v9, 1024, v9')
    a('v_mul_u32_u24 v11, 20, v2')
    a(f'v_add_u32 v11, {LT2 + 2048}, v11')
    a('v_lshlrev_b32 v12, 4, v2')
    a(f'v_add_u32 v12, {LT2 + 2176}, v12')
    a('s_waitcnt lgkmcnt(0)')
    a('s_barrier')
    a('s_cmp_ge_u32 s3, 2')
    a('s_cbranch_scc1 L_end')
    for w in range(4):
        off = 2304 * w
        b0 = 16 + 6 * w
        a(f'ds_read_b32 v{b0}, v10 offset:{off}')
        a(f'ds_read_b32 v{b0 + 1}, v10 offset:{off + 32}')
        a(f'ds_read_b32 v{b0 + 2}, v9 offset:{off}')
        a(f'ds_read_b32 v{b0 + 3}, v9 offset:{off + 32}')
        a(f'ds_read_b32 v{b0 + 4}, v11 offset:{off}')
        a(f'ds_read_b32 v{b0 + 5}, v12 offset:{off}')
    a('v_lshlrev_b32 v5, 6, v3')
    a('v_lshl_add_u32 v5, v2, 4, v5')
    a('s_lshl_b32 s90, s7, 8')
    a('s_waitcnt lgkmcnt(0)')
    for w in range(1, 4):
        for k in range(6):
            a(f'v_add_f32 v{16 + k}, v{16 + k}, v{16 + 6 * w + k}')
    a('v_mul_f32 v21, 0x3b000000, v21')
    a('v_mul_f32 v20, 0x3b000000, v20')
    a('v_fma_f32 v20, -v21, v21, v20')
    a('v_max_f32 v20, 0, v20')
    a('v_add_f32 v20, 0x3727c5ac, v20')
    a('v_rsq_f32 v20, v20')
    a('v_fma_f32 v16, -v21, v18, v16')
    a('v_fma_f32 v17, -v21, v19, v17')
    a('v_mul_f32 v16, v16, v20')
    a('v_mul_f32 v17, v17, v20')
    a('v_mul_f32 v18, v16, v16')
    a('v_mov_b32 v19, 1.0')
    a('v_fmac_f32 v19, 0x3d372713, v18')
    a('v_mul_f32 v19, v19, v16')
    a(f'v_mul_f32 v19, {GELU_BITS}, v19')
    a('v_exp_f32 v19, v19')
    a('v_add_f32 v19, 1.0, v19')
    a('v_rcp_f32 v19, v19')
    a('v_mul_f32 v16, v16, v19')
    a('v_mul_f32 v16, v16, v17')
    a('v_mov_b32_dpp v17, v16 row_shl:4 row_mask:0xf bank_mask:0xf')
    a('v_cvt_pk_bf16_f32 v16, v16, v17')
    a('v_mov_b32_dpp v17, v16 quad_perm:[1,1,1,1] row_mask:0xf bank_mask:0xf')
    a('v_mov_b32_dpp v18, v16 quad_perm:[2,2,2,2] row_mask:0xf bank_mask:0xf')
    a('v_mov_b32_dpp v19, v16 quad_perm:[3,3,3,3] row_mask:0xf bank_mask:0xf')
    ex(0x0101010101010101)
    a(f'buffer_store_dwordx4 v[16:19], v5, {S(R_ACT)}, s90 offen sc1')
    a('s_cmp_lg_u32 s3, 0')
    a('s_cbranch_scc1 L_end')
    a('s_branch L_tend')

    a.label('L_F')
    HR = 208
    reduce4_addr()
    a('v_lshlrev_b32 v14, 11, v5')
    a('v_lshl_add_u32 v14, v6, 4, v14')
    a('v_and_b32 v14, 0x1fff, v14')
    a('v_lshrrev_b32 v15, 1, v14')
    a('s_lshl_b32 s98, s7, 6')
    a(f'buffer_load_dwordx2 v[240:241], v15, {S(R_X)}, s98 offen')
    a('s_lshl_b32 s90, s7, 7')
    a(f's_add_u32 s90, s90, {WS_HP}')

    def h_loads():
        a('s_mov_b32 s92, s90')
        for r in range(8):
            a(f'buffer_load_dwordx4 {vr(HR + 4 * r, 4)}, v14, {S(R_WS)}, s92 offen sc1')
            if r < 7:
                a('s_add_u32 s92, s92, 8192')
    poll(h_loads, list(range(HR, HR + 32)), 10)
    for r in range(1, 8):
        for i in range(4):
            a(f'v_add_f32 v{HR + i}, v{HR + i}, v{HR + 4 * r + i}')
    for i in range(2):
        a(f'v_lshlrev_b32 v242, 16, v{240 + i}')
        a(f'v_and_b32 v243, s{S_MASK}, v{240 + i}')
        a(f'v_add_f32 v{HR + 2 * i}, v{HR + 2 * i}, v242')
        a(f'v_add_f32 v{HR + 2 * i + 1}, v{HR + 2 * i + 1}, v243')
        a(f'v_cvt_pk_bf16_f32 v242, v{HR + 2 * i}, v{HR + 2 * i + 1}')
        a(f'v_lshlrev_b32 v{HR + 2 * i}, 16, v242')
        a(f'v_and_b32 v{HR + 2 * i + 1}, s{S_MASK}, v242')
    a('v_lshlrev_b32 v7, 6, v3')
    a('v_lshl_add_u32 v7, v4, 4, v7')
    a('s_lshl_b32 s90, s3, 8')
    a('s_add_u32 s91, s90, 4096')
    a('s_add_u32 s92, s90, 8192')

    def f_loads():
        for n in range(11):
            a(f'buffer_load_dwordx4 {vr(X + 4 * n, 4)}, v7, {S(R_ACT)}, s{90 + n // 4} offen offset:{1024 * (n % 4)} sc1')
    poll(f_loads, list(range(X, X + 44)), 10)
    stamp(11)
    for n in range(11):
        for e in range(2):
            c = '0' if n == 0 else vr(ACC + 4 * e, 4)
            a(f'v_mfma_f32_16x16x32_bf16 {vr(ACC + 4 * e, 4)}, {vr(OP + 8 * n + 4 * e, 4)}, {vr(X + 4 * n, 4)}, {c}')
    for e in range(2):
        for j in range(4):
            a(f'v_mov_b32 v{T8 + 2 * j + e}, v{ACC + 4 * e + j}')
    reduce4_write(T8)
    a('s_cmp_lg_u32 s3, 0')
    a('s_cbranch_scc1 L_end')
    ex(0xffffffff)
    for w in range(4):
        a(f'ds_read_b128 {vr(X + 4 * w, 4)}, v13 offset:{512 * w}')
    a('s_waitcnt lgkmcnt(0)')
    for i in range(4):
        a(f'v_add_f32 v{X + i}, v{X + i}, v{X + 4 + i}')
        a(f'v_add_f32 v{X + 8 + i}, v{X + 8 + i}, v{X + 12 + i}')
        a(f'v_add_f32 v{X + i}, v{X + i}, v{X + 8 + i}')
        a(f'v_add_f32 v{X + i}, v{X + i}, v{HR + i}')
    a(f'v_cvt_pk_bf16_f32 v{X}, v{X}, v{X + 1}')
    a(f'v_cvt_pk_bf16_f32 v{X + 1}, v{X + 2}, v{X + 3}')
    a(f'buffer_store_dwordx2 {vr(X, 2)}, v15, {S(R_OUT)}, s98 offen')
    a('s_cmp_lg_u32 s7, 0')
    a('s_cbranch_scc1 L_tend')
    a('s_mov_b64 exec, 1')
    a(f'v_mov_b32 v12, s{S_TAG}')
    a(f's_mov_b32 s90, {WS_EPOCH}')
    a(f'buffer_store_dword v12, off, {S(R_WS)}, s90')
    a.label('L_tend')
    if o.stamps:
        stamp(12)
        a('s_waitcnt vmcnt(0)')
        stamp(13)
        a('s_cmp_lg_u32 s3, 0')
        a('s_cbranch_scc1 L_end')
        dump_stamps(14, 1)
    a.label('L_end')
    a('s_endpgm')

    txt = HEADER
    txt += f'; @launch grid=(256,1,1) block=(512,1,1) lds={LDS_TOTAL}\n'
    txt += '.amdgcn_target "amdgcn-amd-amdhsa--gfx950"\n.text\n'
    txt += a.finalize()
    txt += f""".section .rodata,"a"
.p2align 6
.amdhsa_kernel {name}
  .amdhsa_next_free_vgpr 256
  .amdhsa_next_free_sgpr 102
  .amdhsa_accum_offset 256
  .amdhsa_group_segment_fixed_size 0
  .amdhsa_kernarg_size 104
  .amdhsa_user_sgpr_count 2
  .amdhsa_user_sgpr_kernarg_segment_ptr 1
  .amdhsa_system_sgpr_workgroup_id_x 1
.end_amdhsa_kernel
"""
    return txt


if __name__ == '__main__':
    o = Opt()
    for kv in sys.argv[2:]:
        k, v = kv.split('=')
        setattr(o, k, int(v))
    open(sys.argv[1], 'w').write(gen(o))
```

```python
import math, struct
def f32bits(x):
    return '0x%08x' % struct.unpack('<I', struct.pack('<f', x))[0]
WS_QP = 0x00000
WS_QPT = 0x20000
WS_QA = 0x28000
WS_QAH = 0x48000
WS_ST = 0x50000
WS_OPT = 0x60000
WS_CLEAN = 0x70000
WS_CP = 0x70000
WS_HP = 0x90000
WS_ACT = 0x98000
WS_CLEAN_END = 0xA0000
WS_EPOCH = 0xA1000
WS_STAMP = 0xB0000
WS_OP = 0x100000
WS_END = 0x500000
QSCALE = (128 ** -0.5) * math.log2(math.e)
QSCALE_BITS = f32bits(QSCALE)
GELU_BITS = f32bits(-2.0 * math.sqrt(2.0 / math.pi) * math.log2(math.e))
```

```python
import sys
sys.path.insert(0, 'dev')
from asmdsl import Asm
from layout2 import *

NAME = 'sequential_preLN__compressed_kv_cla__glu_gated_geglu__decode'
HEADER = open('cdna_kernels/' + NAME + '.s.ref').read().split('; Override launch')[0]
SEL_LO, SEL_HI = 0x05040100, 0x07060302
LDS_TOTAL = 163840
SCR = 131072
L_MAX, L_ALPHA, L_MFIN, L_FLAG, L_P = SCR, SCR + 512, SCR + 640, SCR + 768, SCR + 2048

R_X, R_WS, R_CKV, R_WQ, R_WUK, R_WUV, R_WO, R_WG, R_WU, R_WD, R_OUT, R_ACT = [8 + 4 * i for i in range(12)]
S_TAG, S_LO, S_HI, S_MASK, S_CNT, S_EXP = 56, 57, 58, 59, 60, 62
SPIN = 20000
XOR3 = 'bitop3:0x96'


class Opt:
    stamps = 0
    window = 8
    sleep = 1
    sleep_long = 4
    thr = 60


def vr(a, n):
    return f'v[{a}:{a + n - 1}]' if n > 1 else f'v{a}'


def S(base):
    return f's[{base}:{base + 3}]'


def gen(o):
    a = Asm()
    name = NAME + '_kernel'

    def ex(mask):
        if mask == -1:
            a('s_mov_b64 exec, -1')
        elif mask <= 64:
            a(f's_mov_b64 exec, {mask}')
        else:
            a(f's_mov_b32 exec_lo, 0x{mask & 0xffffffff:x}')
            a(f's_mov_b32 exec_hi, 0x{mask >> 32:x}')

    def dpp(op, d, s0, s1, ctrl, bank=0xf):
        a(f'{op}_dpp v{d}, v{s0}, v{s1} {ctrl} row_mask:0xf bank_mask:0x{bank:x}')

    def swap_step(op, v, t, which):
        a(f'v_mov_b32 v{t}, v{v}')
        a(f'v_permlane{which}_swap_b32 v{v}, v{t}')
        a(f'{op} v{v}, v{v}, v{t}')

    def stamp(idx):
        if o.stamps:
            a(f's_memrealtime s[{64 + 2 * idx}:{65 + 2 * idx}]')

    def dump_stamps(n, grp):
        a('s_waitcnt lgkmcnt(0)')
        a('s_mov_b64 exec, -1')
        a('v_mov_b32 v3, 0')
        a('v_writelane_b32 v3, s100, 0')
        for i in range(1, n):
            a(f'v_writelane_b32 v3, s{64 + 2 * i}, {i}')
        a('v_mbcnt_lo_u32_b32 v4, -1, 0')
        a('v_lshlrev_b32 v4, 2, v4')
        a('s_lshl_b32 s61, s2, 7')
        a(f's_add_u32 s61, s61, {WS_STAMP + 64 * grp}')
        ex(0xffff)
        a(f'buffer_store_dword v3, v4, {S(R_WS)}, s61 offen')

    def xor_chain(tmp, regs, last=None):
        ops = [f'v{r}' for r in regs] + ([last] if last else [])
        a(f'v_bitop3_b32 v{tmp}, {ops[0]}, {ops[1]}, {ops[2]} {XOR3}')
        ops = ops[3:]
        while len(ops) >= 2:
            a(f'v_bitop3_b32 v{tmp}, v{tmp}, {ops[0]}, {ops[1]} {XOR3}')
            ops = ops[2:]
        if ops:
            a(f'v_xor_b32 v{tmp}, {ops[0]}, v{tmp}')

    def chk_sentinel(regs, tmp):
        rs = list(regs)
        a(f'v_max3_u32 v{tmp}, v{rs[0]}, v{rs[1]}, v{rs[2]}')
        rs = rs[3:]
        while len(rs) >= 2:
            a(f'v_max3_u32 v{tmp}, v{tmp}, v{rs[0]}, v{rs[1]}')
            rs = rs[2:]
        if rs:
            a(f'v_max_u32 v{tmp}, v{tmp}, v{rs[0]}')
        a(f'v_cmp_eq_u32 vcc, -1, v{tmp}')

    def poll(loads, check, sleep=None):
        L, Dn = a.uid('poll'), a.uid('pdone')
        a(f's_mov_b32 s{S_CNT}, {SPIN}')
        a.label(L)
        loads()
        a('s_waitcnt vmcnt(0)')
        check()
        a(f's_cbranch_vccz {Dn}')
        sl = o.sleep if sleep is None else sleep
        if sl:
            a(f's_sleep {sl}')
        a(f's_sub_u32 s{S_CNT}, s{S_CNT}, 1')
        a(f's_cbranch_scc0 {L}')
        a.label(Dn)

    def perm8(dst, src):
        for p in range(4):
            a(f'v_perm_b32 v{dst + p}, v{src + 2 * p + 1}, v{src + 2 * p}, s{S_LO}')
        for p in range(4):
            a(f'v_perm_b32 v{dst + 4 + p}, v{src + 2 * p + 1}, v{src + 2 * p}, s{S_HI}')

    def mfma16(d, x, y, first):
        c = '0' if first else vr(d, 4)
        a(f'v_mfma_f32_16x16x32_bf16 {vr(d, 4)}, {vr(x, 4)}, {vr(y, 4)}, {c}')

    M4 = 0x000f000f000f000f

    def vF(d):
        a(f'v_bfe_u32 v{d}, v1, 2, 2')
        a(f'v_lshlrev_b32 v{d}, 8, v{d}')
        a(f'v_lshl_add_u32 v{d}, v3, 6, v{d}')
        a(f'v_lshl_add_u32 v{d}, v4, 4, v{d}')

    def vG(d):
        a(f'v_lshlrev_b32 v{d}, 6, v3')
        a(f'v_lshl_add_u32 v{d}, v4, 4, v{d}')

    a(f'.globl {name}\n.p2align 8\n.type {name},@function')
    a.label(name)
    if o.stamps:
        a('s_memrealtime s[100:101]')
    a('s_cmp_ge_u32 s2, 256')
    a('s_cbranch_scc1 L_end')
    a('s_load_dwordx16 s[64:79], s[0:1], 0')
    a('s_load_dwordx8 s[80:87], s[0:1], 64')
    a(f's_load_dwordx2 s[{R_WS}:{R_WS + 1}], s[0:1], 96')
    a('v_and_b32 v1, 63, v0')
    a('v_lshrrev_b32 v2, 6, v0')
    a('v_readfirstlane_b32 s3, v2')
    a('v_lshlrev_b32 v2, 4, v1')
    a('v_lshrrev_b32 v3, 4, v1')
    a('v_and_b32 v4, 3, v1')
    a('v_and_b32 v11, 15, v1')
    for r, n in ((R_X, 4096), (R_WS, WS_END), (R_CKV, 32 << 20), (R_WQ, 4 << 20), (R_WUK, 4 << 20),
                 (R_WUV, 4 << 20), (R_WO, 4 << 20), (R_WG, 512 * 2752), (R_WU, 512 * 2752), (R_WD, 1376 * 1024),
                 (R_OUT, 4096), (R_ACT, 43 * 256)):
        a(f's_mov_b32 s{r + 2}, {n}')
        a(f's_mov_b32 s{r + 3}, 0x00020000')
    a(f's_mov_b32 s{S_LO}, {SEL_LO}')
    a(f's_mov_b32 s{S_HI}, {SEL_HI}')
    a(f's_mov_b32 s{S_MASK}, 0xffff0000')
    a('s_waitcnt lgkmcnt(0)')
    a(f's_load_dword s{S_TAG}, s[{R_WS}:{R_WS + 1}], {WS_EPOCH}')
    for r, p in ((R_X, 64), (R_CKV, 66), (R_WQ, 68), (R_WUK, 70), (R_WUV, 72), (R_WO, 74), (R_WG, 78), (R_WU, 80),
                 (R_WD, 82), (R_OUT, 84)):
        a(f's_mov_b64 s[{r}:{r + 1}], s[{p}:{p + 1}]')
    a(f's_add_u32 s{R_ACT}, s{R_WS}, {WS_ACT}')
    a(f's_addc_u32 s{R_ACT + 1}, s{R_WS + 1}, 0')
    a('s_cmp_ge_u32 s2, 128')
    a('s_cbranch_scc1 L_att')

    def get_tag():
        a('s_waitcnt lgkmcnt(0)')
        a(f's_add_u32 s{S_TAG}, s{S_TAG}, 0x9e3779b9')

    a('s_and_b32 s4, s2, 7')
    a('s_lshl_b32 s4, s4, 2')
    a('s_bfe_u32 s5, s2, 0x20003')
    a('s_add_u32 s4, s4, s5')
    a('s_lshr_b32 s5, s2, 5')
    a('s_lshl_b32 s6, s4, 8')
    a('s_cmp_ge_u32 s3, 4')
    a('s_cbranch_scc1 L_a2')
    a('s_cmp_ge_u32 s3, 2')
    a('s_cbranch_scc1 L_a_idle')
    XS, XO, L, ACC, T, QF = 12, 28, 44, 108, 124, 140
    a('v_bfe_u32 v5, v1, 2, 2')
    a('v_lshlrev_b32 v6, 6, v5')
    a('v_lshl_add_u32 v6, v4, 10, v6')
    a('v_lshl_add_u32 v6, v3, 4, v6')
    a('s_lshl_b32 s90, s5, 8')
    for i in range(4):
        a(f'buffer_load_dwordx4 {vr(XS + 4 * i, 4)}, v6, {S(R_X)}, 0 offen offset:{256 * i}')
    a(f'buffer_load_dwordx4 {vr(XO, 4)}, v6, {S(R_X)}, s90 offen')
    a('v_lshlrev_b32 v5, 1, v5')
    a('v_and_b32 v7, 1, v1')
    a('v_add_u32 v5, v5, v7')
    a('v_and_b32 v7, 2, v1')
    a('v_lshl_add_u32 v5, v7, 2, v5')
    a('v_lshlrev_b32 v5, 3, v5')
    a('v_lshl_add_u32 v5, v3, 16, v5')
    a('s_lshl_b32 s90, s5, 20')
    a('s_add_u32 s90, s90, s6')
    a('s_lshl_b32 s91, s3, 7')
    a('s_add_u32 s90, s90, s91')
    for t in range(4):
        for i in range(8):
            a(f'buffer_load_dwordx2 {vr(L + 16 * t + 2 * i, 2)}, v5, {S(R_WQ)}, s90 offen nt')
            if not (t == 3 and i == 7):
                a(f's_add_u32 s90, s90, {8192 if i < 7 else 8192 * 25}')
    stamp(1)
    a('s_mov_b32 s90, 0x3f803f80')
    a('s_waitcnt vmcnt(33)')
    for i in range(16):
        a(f'v_dot2_f32_bf16 v9, v{XS + i}, s90, {"0" if i == 0 else "v9"}')
        a(f'v_dot2_f32_bf16 v10, v{XS + i}, v{XS + i}, {"0" if i == 0 else "v10"}')
    for c in ('row_ror:4', 'row_ror:8'):
        dpp('v_add_f32', 9, 9, 9, c)
        dpp('v_add_f32', 10, 10, 10, c)
    for wh in (16, 32):
        a('v_mov_b32 v12, v9')
        a('v_mov_b32 v13, v10')
        a(f'v_permlane{wh}_swap_b32 v9, v12')
        a(f'v_permlane{wh}_swap_b32 v10, v13')
        a('v_add_f32 v9, v9, v12')
        a('v_add_f32 v10, v10, v13')
    a('v_mul_f32 v9, 0x3b000000, v9')
    a('v_mul_f32 v10, 0x3b000000, v10')
    a('v_fma_f32 v10, -v9, v9, v10')
    a('v_max_f32 v10, 0, v10')
    a('v_add_f32 v10, 0x3727c5ac, v10')
    a('v_rsq_f32 v10, v10')
    a(f'v_mul_f32 v10, {QSCALE_BITS}, v10')
    a('v_mul_f32 v9, v9, v10')
    a('s_waitcnt vmcnt(32)')
    for i in range(4):
        a(f'v_lshlrev_b32 v12, 16, v{XO + i}')
        a(f'v_and_b32 v13, s{S_MASK}, v{XO + i}')
        a('v_fma_f32 v12, v12, v10, -v9')
        a('v_fma_f32 v13, v13, v10, -v9')
        a(f'v_cvt_pk_bf16_f32 v{XO + i}, v12, v13')
    for t in range(1, 4):
        for i in range(4):
            a(f'v_mov_b32_dpp v{XO + 4 * t + i}, v{XO + i} row_shl:{4 * t} row_mask:0xf bank_mask:0xf bound_ctrl:0')
    vG(6)
    a('v_lshrrev_b32 v7, 2, v6')
    a('s_lshl_b32 s90, s4, 12')
    a('s_lshl_b32 s91, s3, 11')
    a('s_add_u32 s90, s90, s91')
    a('s_lshl_b32 s91, s5, 8')
    a('s_add_u32 s90, s90, s91')
    if WS_QP:
        a(f's_add_u32 s90, s90, {WS_QP}')
    a('s_lshl_b32 s91, s4, 10')
    a('s_lshl_b32 s92, s5, 7')
    a('s_add_u32 s91, s91, s92')
    a('s_lshl_b32 s92, s3, 9')
    a('s_add_u32 s91, s91, s92')
    a(f's_add_u32 s91, s91, {WS_QPT}')
    get_tag()
    a('s_lshl_b32 s92, s3, 1')
    a('s_add_u32 s92, s92, 3')
    a(f's_mul_i32 s92, s92, s{S_TAG}')
    stamp(2)
    for t in range(4):
        a(f's_waitcnt vmcnt({8 * (3 - t)})')
        for u in range(2):
            tb = T + 8 * u
            for p in range(4):
                lo, hi = L + 16 * t + 2 * (2 * p) + u, L + 16 * t + 2 * (2 * p + 1) + u
                a(f'v_perm_b32 v{tb + p}, v{hi}, v{lo}, s{S_LO}')
                a(f'v_perm_b32 v{tb + 4 + p}, v{hi}, v{lo}, s{S_HI}')
            for e in range(2):
                mfma16(ACC + 4 * (2 * u + e), tb + 4 * e, XO + 4 * t, t == 0)
    for ph in range(2):
        for jj in range(2):
            j = 2 * ph + jj
            a(f'v_cvt_pk_bf16_f32 v{QF + 4 * ph + 2 * jj}, v{ACC + j}, v{ACC + 4 + j}')
            a(f'v_cvt_pk_bf16_f32 v{QF + 4 * ph + 2 * jj + 1}, v{ACC + 8 + j}, v{ACC + 12 + j}')
    ex(M4)
    a(f'buffer_store_dwordx4 {vr(QF, 4)}, v6, {S(R_WS)}, s90 offen sc1')
    a(f'buffer_store_dwordx4 {vr(QF + 4, 4)}, v6, {S(R_WS)}, s90 offen offset:1024 sc1')
    xor_chain(12, range(QF, QF + 8), 's92')
    a(f'buffer_store_dword v12, v7, {S(R_WS)}, s91 offen sc1')
    ex(-1)
    stamp(3)
    a('s_branch L_a_done')

    a.label('L_a_idle')
    get_tag()
    a('s_branch L_a_done')

    a.label('L_a2')
    UK, Q, QT, AC2, FR = 12, 44, 60, 64, 72
    a('s_sub_u32 s7, s3, 4')
    a('v_lshrrev_b32 v8, 2, v11')
    a('v_lshlrev_b32 v8, 3, v8')
    a('v_add_u32 v8, v8, v4')
    a('v_lshlrev_b32 v8, 13, v8')
    a('v_lshl_add_u32 v8, v3, 4, v8')
    a('s_lshl_b32 s90, s5, 20')
    a('s_lshl_b32 s91, s7, 18')
    a('s_add_u32 s90, s90, s91')
    a('s_add_u32 s90, s90, s6')
    a('s_add_u32 s91, s90, 32768')
    for sub in range(2):
        for k in range(4):
            a(f'buffer_load_dwordx4 {vr(UK + 16 * sub + 4 * k, 4)}, v8, {S(R_WUK)}, s{90 + sub} offen offset:{64 * k} nt')
    for i in range(4):
        a(f'v_mov_b32 v{FR + i}, -1')
    a('s_lshl_b32 s90, s2, 2')
    a('s_add_u32 s90, s90, s7')
    a('s_mul_i32 s90, s90, 384')
    a(f's_add_u32 s90, s90, {WS_CLEAN}')
    ex(0xffffff)
    a(f'buffer_store_dwordx4 {vr(FR, 4)}, v2, {S(R_WS)}, s90 offen sc1')
    ex(-1)
    stamp(1)
    vF(9)
    vG(5)
    a('v_lshrrev_b32 v5, 2, v5')
    a('v_bfe_u32 v6, v1, 2, 2')
    a('v_lshl_add_u32 v5, v6, 7, v5')
    a('v_lshlrev_b32 v6, 15, v4')
    a('v_lshl_add_u32 v6, v3, 4, v6')
    a('v_lshlrev_b32 v7, 5, v4')
    a('s_lshl_b32 s90, s4, 12')
    if WS_QP:
        a(f's_add_u32 s90, s90, {WS_QP}')
    a('s_lshl_b32 s91, s4, 10')
    a('s_lshl_b32 s92, s5, 8')
    a('s_add_u32 s92, s92, s91')
    a('s_lshr_b32 s93, s92, 1')
    a('s_lshl_b32 s96, s7, 6')
    a('s_add_u32 s92, s92, s96')
    a(f's_add_u32 s92, s92, {WS_QA}')
    a('s_lshl_b32 s96, s7, 3')
    a('s_add_u32 s93, s93, s96')
    a(f's_add_u32 s93, s93, {WS_QAH}')
    a(f's_add_u32 s91, s91, {WS_QPT}')
    get_tag()
    a(f's_mul_i32 s94, s{S_TAG}, 3')
    a(f's_mul_i32 s95, s{S_TAG}, 5')
    a(f's_xor_b32 s{S_EXP}, s94, s95')
    a('s_waitcnt vmcnt(0)')

    def a2_loads():
        for k in range(4):
            a(f'buffer_load_dwordx4 {vr(Q + 4 * k, 4)}, v9, {S(R_WS)}, s90 offen offset:{1024 * k} sc1')
        for dh in range(2):
            a(f'buffer_load_dword v{QT + dh}, v5, {S(R_WS)}, s91 offen offset:{512 * dh} sc1')

    def a2_check():
        xor_chain(10, range(Q, Q + 18), f's{S_EXP}')
        a('v_cmp_ne_u32 vcc, 0, v10')
    poll(a2_loads, a2_check)
    stamp(2)
    for k in range(4):
        for sub in range(2):
            mfma16(AC2 + 4 * sub, UK + 16 * sub + 4 * k, Q + 4 * k, k == 0)
    for c in ('row_ror:4', 'row_ror:8'):
        for i in range(8):
            dpp('v_add_f32', AC2 + i, AC2 + i, AC2 + i, c)
    for i in range(4):
        a(f'v_cvt_pk_bf16_f32 v{FR + i}, v{AC2 + 2 * i}, v{AC2 + 2 * i + 1}')
    ex(M4)
    a(f'buffer_store_dwordx4 {vr(FR, 4)}, v6, {S(R_WS)}, s92 offen sc1')
    ex(-1)
    xor_chain(76, range(FR, FR + 4))
    swap_step('v_xor_b32', 76, 77, 16)
    swap_step('v_xor_b32', 76, 77, 32)
    a(f'v_xor_b32 v77, s{S_TAG}, v76')
    ex(15)
    a(f'buffer_store_dwordx2 v[76:77], v7, {S(R_WS)}, s93 offen sc1')
    ex(-1)
    stamp(3)

    a.label('L_a_done')
    a('s_barrier')
    RAW, OPC = 72, 64
    OPD = OPC + 32
    a('s_and_b32 s7, s2, 7')
    a('s_lshr_b32 s63, s2, 3')
    a('s_cmp_ge_u32 s3, 4')
    a('s_cbranch_scc1 L_c')
    a('v_lshlrev_b32 v8, 13, v3')
    a('v_lshl_add_u32 v8, v11, 2, v8')
    a('s_lshl_b32 s90, s5, 20')
    a('s_add_u32 s90, s90, s6')
    a('s_lshl_b32 s91, s3, 6')
    a('s_add_u32 s90, s90, s91')
    for t in range(4):
        for i in range(8):
            a(f's_add_u32 s92, s90, {(4 * t + 32 * (i % 4) + 16 * (i // 4)) * 8192}')
            a(f'buffer_load_dword v{RAW + 8 * t + i}, v8, {S(R_WUV)}, s92 offen nt')
    a('s_lshl_b32 s90, s7, 19')
    a('s_lshl_b32 s91, s3, 17')
    a('s_add_u32 s90, s90, s91')
    a('s_lshl_b32 s91, s63, 6')
    a('s_add_u32 s90, s90, s91')
    a('s_waitcnt vmcnt(24)')
    for t in range(4):
        for i in range(8):
            if i % 4 == 0:
                a(f's_add_u32 s92, s90, {(32 * t + i) * 1024}')
            a(f'buffer_load_dword v{RAW + 32 + 8 * t + i}, v8, {S(R_WO)}, s92 offen offset:{(i % 4) * 1024} nt')
    a('s_waitcnt vmcnt(0)')
    for n in range(8):
        perm8(OPC + 8 * n, RAW + 8 * n)
    stamp(4)
    a.label('L_c')
    D, WL, AC = 16, 32, 40
    a('s_and_b32 s94, s3, 3')
    a('s_lshr_b32 s95, s3, 2')
    a('v_and_b32 v5, 31, v1')
    a('v_lshlrev_b32 v5, 9, v5')
    a('s_lshl_b32 s90, s94, 14')
    a('s_lshl_b32 s91, s5, 7')
    a('s_add_u32 s92, s90, s91')
    a('s_lshl_b32 s91, s4, 2')
    a('s_add_u32 s92, s92, s91')
    a(f's_add_u32 s92, s92, {WS_OPT}')
    a('s_lshl_b32 s91, s4, 4')
    a('s_add_u32 s90, s90, s91')
    a(f's_add_u32 s90, s90, {WS_ST}')
    a('s_lshl_b32 s96, s4, 2')
    a('s_add_u32 s96, s96, s5')
    a('s_lshl_b32 s96, s96, 2')
    a('s_add_u32 s96, s96, s94')
    a('s_lshl_b32 s91, s96, 13')
    a('s_lshl_b32 s93, s95, 12')
    a('s_add_u32 s91, s91, s93')
    a(f's_add_u32 s91, s91, {WS_OP}')
    a('s_lshl_b32 s97, s95, 4')
    a('v_add3_u32 v6, v11, v3, s97')
    a('v_lshl_add_u32 v7, v6, 1, 1')
    a(f'v_mul_lo_u32 v7, v7, s{S_TAG}')
    a('v_lshlrev_b32 v6, 9, v6')
    a('v_cmp_ne_u32 vcc, 0, v4')
    a('v_mov_b32 v9, 0x7fffff00')
    a('v_cndmask_b32 v6, v6, v9, vcc')
    a('v_cndmask_b32 v7, v7, 0, vcc')
    a('v_lshlrev_b32 v48, 4, v11')
    a('v_lshl_add_u32 v48, v3, 1, v48')
    a('s_lshl_b32 s93, s3, 8')
    a('v_add_u32 v48, s93, v48')
    a('v_and_b32 v49, 7, v1')
    a('v_lshlrev_b32 v49, 8, v49')
    a('v_lshl_add_u32 v49, v3, 4, v49')
    vG(50)
    a('s_lshl_b32 s98, s4, 12')
    a('s_lshl_b32 s93, s3, 10')
    a('s_add_u32 s98, s98, s93')
    a('s_lshl_b32 s93, s5, 8')
    a('s_add_u32 s98, s98, s93')
    a(f's_add_u32 s98, s98, {WS_CP}')
    a('v_add_u32 v51, s97, v3')
    a('v_lshlrev_b32 v51, 2, v51')

    def st_check():
        xor_chain(10, [12, 13, 14], f's{S_TAG}')
        a('v_cmp_ne_u32 vcc, 0, v10')
    poll(lambda: a(f'buffer_load_dwordx4 v[12:15], v5, {S(R_WS)}, s90 offen sc1'), st_check, o.sleep_long)
    stamp(5)

    def c_loads(first=False):
        a(f'buffer_load_dword v9, v6, {S(R_WS)}, s92 offen sc1')
        for i in range(4):
            if not first:
                lb = a.uid('cskip')
                a(f's_bitcmp1_b32 s97, {4 * i}')
                a(f's_cbranch_scc0 {lb}')
            a(f'buffer_load_dwordx4 {vr(D + 4 * i, 4)}, v2, {S(R_WS)}, s91 offen offset:{1024 * i} sc1')
            if not first:
                a.label(lb)
    c_loads(True)
    a('v_mov_b32 v14, v12')
    for op, v in (('v_max_f32', 14), ('v_add_f32', 14)):
        for c in ('quad_perm:[1,0,3,2]', 'quad_perm:[2,3,0,1]', 'row_ror:4', 'row_ror:8'):
            dpp(op, v, v, v, c)
        swap_step(op, v, 15, 16)
        if op == 'v_max_f32':
            a('v_sub_f32 v12, v12, v14')
            a('v_exp_f32 v12, v12')
            a('v_mul_f32 v14, v12, v13')
    a('v_rcp_f32 v14, v14')
    a('v_mul_f32 v12, v12, v14')
    a('v_cvt_pk_bf16_f32 v12, v12, 0')
    for i in range(4):
        a(f'ds_bpermute_b32 v{WL + i}, v51, v12 offset:{16 * i}')
    a('s_waitcnt lgkmcnt(0)')
    for i in range(4):
        a(f'v_lshlrev_b32 v{WL + 4 + i}, 16, v{WL + i}')

    a(f's_mov_b32 s{S_CNT}, {SPIN}')
    a('s_branch L_cchk')
    a.label('L_cpoll')
    c_loads()
    a.label('L_cchk')
    a('s_waitcnt vmcnt(0)')
    for i in range(4):
        xor_chain(52 + i, range(D + 4 * i, D + 4 * i + 4))
    for k in range(2):
        dpp('v_xor_b32', 52 + k, 52 + k, 52 + k, 'row_ror:8', 0x3)
    for k in range(2):
        dpp('v_xor_b32', 52 + k, 54 + k, 54 + k, 'row_ror:8', 0xc)
    a('v_xor_b32 v9, v9, v7')
    dpp('v_xor_b32', 52, 52, 52, 'row_half_mirror', 0x5)
    dpp('v_xor_b32', 52, 53, 53, 'row_half_mirror', 0xa)
    a('v_xor_b32 v52, v52, v9')
    dpp('v_xor_b32', 52, 52, 52, 'quad_perm:[1,0,3,2]')
    dpp('v_xor_b32', 52, 52, 52, 'quad_perm:[2,3,0,1]')
    a('v_cmp_ne_u32 vcc, 0, v52')
    a('s_cbranch_vccz L_cdone')
    a('s_or_b32 s97, vcc_lo, vcc_hi')
    a('s_lshr_b32 s93, s97, 16')
    a('s_or_b32 s97, s97, s93')
    a(f's_sub_u32 s{S_CNT}, s{S_CNT}, 1')
    a('s_cbranch_scc0 L_cpoll')
    a.label('L_cdone')
    stamp(6)
    for i in range(4):
        for u in range(4):
            for e in range(2):
                c = '0' if i == 0 else f'v{AC + 2 * u + e}'
                a(f'v_dot2_f32_bf16 v{AC + 2 * u + e}, v{D + 4 * i + u}, v{WL + 4 * e + i}, {c}')
    for k in range(4):
        a(f'v_permlane16_swap_b32 v{AC + 2 * k}, v{AC + 2 * k + 1}')
    for k in range(4):
        a(f'v_add_f32 v{AC + 2 * k}, v{AC + 2 * k}, v{AC + 2 * k + 1}')
    for k in range(2):
        a(f'v_permlane32_swap_b32 v{AC + 4 * k}, v{AC + 4 * k + 2}')
    for k in range(2):
        a(f'v_add_f32 v{AC + 4 * k}, v{AC + 4 * k}, v{AC + 4 * k + 2}')
    a(f'v_cvt_pk_bf16_f32 v{AC}, v{AC}, v{AC + 4}')
    a(f'ds_write_b16 v48, v{AC}')
    a(f'ds_write_b16_d16_hi v48, v{AC} offset:8')
    a('s_waitcnt lgkmcnt(0)')
    a('s_barrier')
    a('s_cmp_ge_u32 s3, 4')
    a('s_cbranch_scc1 L_aux_hi_end')
    for t in range(4):
        a(f'ds_read_b128 {vr(D + 4 * t, 4)}, v49 offset:{64 * t}')
    for t in range(4):
        a(f's_waitcnt lgkmcnt({3 - t})')
        for e in range(2):
            mfma16(AC + 4 * e, OPC + 8 * t + 4 * e, D + 4 * t, t == 0)
    for i in range(8):
        dpp('v_add_f32', AC + i, AC + i, AC + i, 'row_ror:4')
    for j in range(4):
        a(f'v_cvt_pk_bf16_f32 v{12 + j}, v{AC + j}, v{AC + 4 + j}')
    ex(M4)
    a(f'buffer_store_dwordx4 v[12:15], v50, {S(R_WS)}, s98 offen sc1')
    ex(-1)
    stamp(7)

    def red4_addr(base):
        a('v_lshlrev_b32 v48, 7, v4')
        a('v_lshl_add_u32 v48, v3, 5, v48')
        a('s_lshl_b32 s93, s3, 9')
        a(f's_add_u32 s93, s93, {base}')
        a('v_add_u32 v48, s93, v48')
        a(f'v_add_u32 v49, {base}, v2')

    def red4_write(t8):
        ex(M4)
        a(f'ds_write_b128 v48, {vr(t8, 4)}')
        a(f'ds_write_b128 v48, {vr(t8 + 4, 4)} offset:16')
        ex(-1)
        a('s_waitcnt lgkmcnt(0)')
        a('s_barrier')

    def red4_read(x):
        ex(0xffffffff)
        for w in range(4):
            a(f'ds_read_b128 {vr(x + 4 * w, 4)}, v49 offset:{512 * w}')
        a('s_waitcnt lgkmcnt(2)')
        for i in range(4):
            a(f'v_add_f32 v{x + i}, v{x + i}, v{x + 4 + i}')
        a('s_waitcnt lgkmcnt(0)')
        for i in range(4):
            a(f'v_add_f32 v{x + 8 + i}, v{x + 8 + i}, v{x + 12 + i}')
        for i in range(4):
            a(f'v_add_f32 v{x + i}, v{x + i}, v{x + 8 + i}')

    def frag_addr(dst):
        a(f'v_bfe_u32 v{dst}, v1, 1, 2')
        a(f'v_lshlrev_b32 v{dst}, 6, v{dst}')
        a('v_bfe_u32 v9, v1, 3, 2')
        a(f'v_lshl_add_u32 v{dst}, v9, 4, v{dst}')
        a('v_and_b32 v9, 1, v1')
        a(f'v_lshl_add_u32 v{dst}, v9, 3, v{dst}')

    T8 = 52
    a('s_lshl_b32 s90, s7, 14')
    a('s_lshl_b32 s91, s3, 12')
    a('s_add_u32 s90, s90, s91')
    a(f's_add_u32 s90, s90, {WS_CP}')
    red4_addr(4096)
    frag_addr(50)
    vF(51)
    a('s_lshl_b32 s98, s7, 12')
    a('s_lshl_b32 s91, s63, 8')
    a('s_add_u32 s98, s98, s91')
    a(f's_add_u32 s98, s98, {WS_HP}')

    def d_loads():
        for i in range(4):
            a(f'buffer_load_dwordx4 {vr(D + 4 * i, 4)}, v51, {S(R_WS)}, s90 offen offset:{1024 * i} sc1')
    poll(d_loads, lambda: chk_sentinel(range(D, D + 16), 10))
    stamp(8)
    for t in range(4):
        for e in range(2):
            mfma16(AC + 4 * e, OPD + 8 * t + 4 * e, D + 4 * t, t == 0)
    for i in range(8):
        dpp('v_add_f32', AC + i, AC + i, AC + i, 'row_ror:4')
    for e in range(2):
        for j in range(4):
            dpp('v_add_f32', T8 + 2 * j + e, AC + 4 * e + j, AC + 4 * e + j, 'row_ror:8')
    red4_write(T8)
    a('s_cmp_lg_u32 s3, 0')
    a('s_cbranch_scc1 L_end')
    red4_read(D)
    a(f'v_cvt_pk_bf16_f32 v{D}, v{D}, v{D + 1}')
    a(f'v_cvt_pk_bf16_f32 v{D + 1}, v{D + 2}, v{D + 3}')
    a(f'buffer_store_dwordx2 {vr(D, 2)}, v50, {S(R_WS)}, s98 offen sc1')
    if o.stamps:
        stamp(9)
        dump_stamps(10, 0)
    a('s_endpgm')
    a.label('L_aux_hi_end')
    if o.stamps:
        a('s_cmp_lg_u32 s3, 4')
        a('s_cbranch_scc1 L_end')
        dump_stamps(7, 1)
    a('s_endpgm')

    a.label('L_att')
    a('s_bfe_u32 s4, s2, 0x20001')
    a('s_bfe_u32 s5, s2, 0x40003')
    a('s_lshl_b32 s5, s5, 1')
    a('s_and_b32 s6, s2, 1')
    a('s_add_u32 s5, s5, s6')
    a('s_cmp_lt_u32 s3, 4')
    a('s_cbranch_scc1 L_comp')
    a('s_sub_u32 s3, s3, 4')
    VX = 12
    for j in range(16):
        a(f'v_xor_b32 v{VX + j}, {16 * j}, v2')
    a('s_lshl_b32 s90, s4, 23')
    a('s_lshl_b32 s91, s5, 18')
    a('s_add_u32 s90, s90, s91')
    a('s_lshl_b32 s91, s3, 14')
    a('s_add_u32 s90, s90, s91')

    def dma_tile(T, window, already):
        a(f's_add_u32 m0, s91, {(T % 2) * 65536}')
        for j in range(16):
            if window and already + j >= window:
                a(f's_waitcnt vmcnt({window - 1})')
            a(f'buffer_load_dwordx4 v{VX + j}, {S(R_CKV)}, s90 offen offset:{(j % 4) * 1024} nt lds')
            if j % 4 == 3:
                a(f's_add_u32 s90, s90, {4096 if j < 15 else 4096 + 49152}')
                if j < 15:
                    a('s_add_u32 m0, m0, 4096')
    dma_tile(0, o.window, 0)
    dma_tile(1, o.window, 16)
    stamp(1)
    get_tag()
    HP_, HL, HA_, HFL = 32, 28, 29, 30
    a(f'v_add_u32 v5, {L_P}, v2')
    a('v_and_b32 v6, 31, v1')
    a('v_lshlrev_b32 v6, 2, v6')
    a(f'v_add_u32 v6, {L_ALPHA}, v6')
    a(f'v_mov_b32 v7, {L_FLAG}')
    a(f'v_mov_b32 v{HL}, 0')
    a('s_mov_b32 s96, 0x3f803f80')

    def h_lsum():
        lb = a.uid('nol')
        a('s_cmp_lg_u32 s3, 0')
        a(f's_cbranch_scc1 {lb}')
        for ks in range(4):
            a(f'ds_read_b128 {vr(HP_ + 4 * ks, 4)}, v5 offset:{1024 * ks}')
        for ks in range(4):
            a(f's_waitcnt lgkmcnt({3 - ks})')
            for i in range(4):
                a(f'v_dot2_f32_bf16 v{HL}, v{HP_ + 4 * ks + i}, s96, v{HL}')
        a.label(lb)

    def h_soft():
        lb = a.uid('hfast')
        a('s_barrier')
        a(f'ds_read_b32 v{HFL}, v7')
        a('s_waitcnt lgkmcnt(0)')
        a(f'v_readfirstlane_b32 s92, v{HFL}')
        a('s_cmp_eq_u32 s92, 0')
        a(f's_cbranch_scc1 {lb}')
        a('s_barrier')
        a('s_barrier')
        a(f'ds_read_b32 v{HA_}, v6')
        a('s_waitcnt lgkmcnt(0)')
        a(f'v_mul_f32 v{HL}, v{HL}, v{HA_}')
        a.label(lb)
        h_lsum()
    if not o.window or o.window > 16:
        a('s_waitcnt vmcnt(16)')
    a('s_barrier')
    stamp(2)
    a('s_barrier')
    a('s_barrier')
    a('s_barrier')
    h_lsum()
    a('s_waitcnt vmcnt(0)')
    a('s_barrier')
    a('s_barrier')
    stamp(3)
    dma_tile(2, 0, 0)
    h_soft()
    a('s_barrier')
    stamp(4)
    dma_tile(3, 0, 0)
    a('s_waitcnt vmcnt(16)')
    stamp(5)
    a('s_barrier')
    h_soft()
    a('s_barrier')
    a('s_mov_b32 s6, 0')
    a('s_mov_b32 s7, 0')
    a('s_mov_b32 s99, 0')
    a('v_lshlrev_b32 v8, 13, v3')
    a('v_lshl_add_u32 v8, v11, 2, v8')
    a('s_cmp_lt_u32 s2, 176')
    a('s_cbranch_scc1 L_selE')
    a('s_cmp_lt_u32 s2, 192')
    a('s_cbranch_scc1 L_seldone')
    a('s_cmp_lt_u32 s2, 208')
    a('s_cbranch_scc0 L_seldone')
    a('s_mov_b32 s6, 2')
    a('s_and_b32 s7, s2, 7')
    a('s_lshl_b32 s7, s7, 1')
    a('s_bfe_u32 s90, s2, 0x10003')
    a('s_add_u32 s7, s7, s90')
    a('s_lshl_b32 s99, s3, 15')
    a('s_lshl_b32 s91, s7, 6')
    a('s_add_u32 s99, s99, s91')
    a('s_branch L_seldone')
    a.label('L_selE')
    a('s_and_b32 s7, s2, 7')
    a('s_mul_i32 s7, s7, 6')
    a('s_bfe_u32 s90, s2, 0x30003')
    a('s_add_u32 s7, s7, s90')
    a('s_cmp_ge_u32 s7, 43')
    a('s_cbranch_scc1 L_seldone')
    a('s_mov_b32 s6, 1')
    a(f'v_mul_u32_u24 v8, {8 * 2752}, v3')
    a('v_lshl_add_u32 v8, v11, 2, v8')
    a(f's_mul_i32 s99, s3, {128 * 2752}')
    a('s_lshl_b32 s91, s7, 6')
    a('s_add_u32 s99, s99, s91')
    a.label('L_seldone')
    a('s_waitcnt vmcnt(0)')
    stamp(6)
    a('s_barrier')
    a('s_lshl_b32 s90, s4, 14')
    a('s_lshl_b32 s91, s5, 9')
    a('s_add_u32 s90, s90, s91')
    a(f's_add_u32 s90, s90, {WS_ST}')
    a('v_mov_b32 v19, 0')
    h_soft()
    stamp(7)
    a('s_cmp_lg_u32 s3, 0')
    a('s_cbranch_scc1 L_nostat')
    a(f'ds_read_b32 v16, v6 offset:{L_MFIN - L_ALPHA}')
    a(f'v_mov_b32 v17, v{HL}')
    a(f'v_permlane32_swap_b32 v{HL}, v17')
    a(f'v_add_f32 v17, v17, v{HL}')
    a('s_waitcnt lgkmcnt(0)')
    a(f'v_bitop3_b32 v18, v16, v17, s{S_TAG} {XOR3}')
    ex(0xffffffff)
    a(f'buffer_store_dwordx4 v[16:19], v2, {S(R_WS)}, s90 offen sc1')
    ex(-1)
    a.label('L_nostat')
    a('s_cmp_eq_u32 s6, 1')
    a('s_cbranch_scc1 L_E')
    a('s_cmp_eq_u32 s6, 2')
    a('s_cbranch_scc1 L_F')
    a('s_branch L_hend')

    RAW2, OP = 72, 64
    a.label('L_E')
    H, XR, HA, X4, EA = 16, 12, 140, 148, 164
    a('v_bfe_u32 v5, v1, 2, 2')
    a('v_lshlrev_b32 v6, 6, v5')
    a('v_lshl_add_u32 v6, v4, 10, v6')
    a('v_lshl_add_u32 v6, v3, 4, v6')
    a('s_lshl_b32 s90, s3, 8')
    a(f'buffer_load_dwordx4 {vr(XR, 4)}, v6, {S(R_X)}, s90 offen')
    for n in range(8):
        mat, t = n // 4, n % 4
        if n == 7:
            a('s_waitcnt vmcnt(40)')
        for i in range(8):
            a(f's_add_u32 s92, s99, {(32 * t + i) * 2752}')
            a(f'buffer_load_dword v{RAW2 + 8 * n + i}, v8, {S(R_WG if mat == 0 else R_WU)}, s92 offen nt')
    a('v_lshlrev_b32 v48, 8, v4')
    a('v_lshl_add_u32 v48, v3, 6, v48')
    a('s_lshl_b32 s91, s3, 10')
    a('v_add_u32 v48, s91, v48')
    a('v_lshlrev_b32 v49, 3, v4')
    a('v_lshl_add_u32 v49, v3, 2, v49')
    a('s_lshl_b32 s91, s3, 5')
    a('s_add_u32 s91, s91, 4096')
    a('v_add_u32 v49, s91, v49')
    a('s_and_b32 s91, s3, 1')
    a('s_lshl_b32 s91, s91, 6')
    a('v_add_u32 v50, s91, v1')
    a('v_lshrrev_b32 v51, 3, v50')
    a('v_and_b32 v52, 7, v50')
    a('v_lshlrev_b32 v52, 2, v52')
    a('v_lshl_add_u32 v52, v51, 6, v52')
    a('v_lshrrev_b32 v53, 5, v50')
    a('v_lshlrev_b32 v54, 4, v51')
    a('v_lshlrev_b32 v53, 3, v53')
    a('v_add_u32 v53, 4096, v53')
    vF(55)
    a('s_lshl_b32 s98, s7, 8')
    a('s_lshl_b32 s90, s3, 10')
    a(f's_add_u32 s90, s90, {WS_HP}')
    a('s_mov_b32 s94, 0x3f80')
    a('s_mov_b32 s95, 0x3f800000')
    a('s_mov_b32 s96, 0x3f803f80')
    for i in range(4):
        a(f'v_mov_b32 v{X4 + i}, s96')
    a('s_waitcnt vmcnt(0)')
    for n in range(8):
        perm8(OP + 8 * n, RAW2 + 8 * n)
    for t in range(4):
        for k in range(4):
            mfma16(EA + 4 * k, OP + 32 * (k // 2) + 8 * t + 4 * (k % 2), X4, t == 0)

    def e_lds_write():
        ex(M4)
        for k in range(4):
            a(f'ds_write_b128 v48, {vr(EA + 4 * k, 4)} offset:{16 * k}')
    e_lds_write()
    ex(-1)
    a('s_waitcnt lgkmcnt(0)')
    a('s_barrier')
    for w in range(4):
        a(f'ds_read2_b32 v[{H + 2 * w}:{H + 2 * w + 1}], v52 offset0:0 offset1:8' if w == 0 else
          f'ds_read_b32 v{H + 2 * w}, v52 offset:{1024 * w}\nds_read_b32 v{H + 2 * w + 1}, v52 offset:{1024 * w + 32}')
    a('s_waitcnt lgkmcnt(0)')
    a(f'v_add_f32 v56, v{H}, v{H + 2}')
    a(f'v_add_f32 v57, v{H + 1}, v{H + 3}')
    for w in range(2, 4):
        a(f'v_add_f32 v56, v56, v{H + 2 * w}')
        a(f'v_add_f32 v57, v57, v{H + 2 * w + 1}')
    a('s_barrier')
    for i in range(4):
        a(f'v_lshlrev_b32 v{132 + 2 * i}, 16, v{XR + i}')
        a(f'v_and_b32 v{133 + 2 * i}, s{S_MASK}, v{XR + i}')
    stamp(8)

    def e_loads():
        a('s_mov_b32 s92, s90')
        for r in range(8):
            a(f'buffer_load_dwordx4 {vr(H + 4 * r, 4)}, v55, {S(R_WS)}, s92 offen sc1')
            if r < 7:
                a('s_add_u32 s92, s92, 4096')
    poll(e_loads, lambda: chk_sentinel(range(H, H + 32), 10))
    stamp(9)
    for r in range(8):
        for u in range(4):
            for e in range(2):
                c = f'v{132 + 2 * u + e}' if r == 0 else f'v{HA + 2 * u + e}'
                a(f'v_dot2_f32_bf16 v{HA + 2 * u + e}, v{H + 4 * r + u}, s{94 + e}, {c}')
    for i in range(4):
        a(f'v_cvt_pk_bf16_f32 v{X4 + i}, v{HA + 2 * i}, v{HA + 2 * i + 1}')
    for t in range(4):
        if t < 3:
            for i in range(4):
                a(f'v_mov_b32_dpp v{X4 + 4 * (t + 1) + i}, v{X4 + i} row_shl:{4 * (t + 1)} row_mask:0xf bank_mask:0xf bound_ctrl:0')
        for k in range(4):
            mfma16(EA + 4 * k, OP + 32 * (k // 2) + 8 * t + 4 * (k % 2), X4 + 4 * t, t == 0)
        if t == 0:
            for i in range(4):
                a(f'v_dot2_f32_bf16 v9, v{X4 + i}, s96, {"0" if i == 0 else "v9"}')
                a(f'v_dot2_f32_bf16 v10, v{X4 + i}, v{X4 + i}, {"0" if i == 0 else "v10"}')
        if t == 1:
            for c in ('row_ror:4', 'row_ror:8'):
                dpp('v_add_f32', 9, 9, 9, c)
                dpp('v_add_f32', 10, 10, 10, c)
        if t == 2:
            a('v_permlane16_swap_b32 v9, v10')
            a('v_add_f32 v9, v9, v10')
            swap_step('v_add_f32', 9, 10, 32)
    ex(0x000f000f)
    a('ds_write_b32 v49, v9')
    e_lds_write()
    ex(-1)
    a('s_waitcnt lgkmcnt(0)')
    a('s_barrier')
    a('s_cmp_ge_u32 s3, 2')
    a('s_cbranch_scc1 L_end')
    for w in range(4):
        a(f'ds_read_b64 v[{H + 8 + 2 * w}:{H + 9 + 2 * w}], v53 offset:{32 * w}')
    for w in range(4):
        a(f'ds_read_b32 v{H + 2 * w}, v52 offset:{1024 * w}')
        a(f'ds_read_b32 v{H + 2 * w + 1}, v52 offset:{1024 * w + 32}')
    a('s_waitcnt lgkmcnt(8)')
    for w in range(1, 4):
        a(f'v_add_f32 v{H + 8}, v{H + 8}, v{H + 8 + 2 * w}')
        a(f'v_add_f32 v{H + 9}, v{H + 9}, v{H + 9 + 2 * w}')
    MU, VA = H + 8, H + 9
    a(f'v_mul_f32 v{MU}, 0x3b000000, v{MU}')
    a(f'v_mul_f32 v{VA}, 0x3b000000, v{VA}')
    a(f'v_fma_f32 v{VA}, -v{MU}, v{MU}, v{VA}')
    a(f'v_max_f32 v{VA}, 0, v{VA}')
    a(f'v_add_f32 v{VA}, 0x3727c5ac, v{VA}')
    a(f'v_rsq_f32 v{VA}, v{VA}')
    a('s_waitcnt lgkmcnt(0)')
    for w in range(1, 4):
        a(f'v_add_f32 v{H}, v{H}, v{H + 2 * w}')
        a(f'v_add_f32 v{H + 1}, v{H + 1}, v{H + 2 * w + 1}')
    a(f'v_fma_f32 v16, -v{MU}, v56, v16')
    a(f'v_fma_f32 v17, -v{MU}, v57, v17')
    a(f'v_mul_f32 v16, v16, v{VA}')
    a(f'v_mul_f32 v17, v17, v{VA}')
    a('v_mul_f32 v18, v16, v16')
    a('v_mov_b32 v19, 1.0')
    a('v_fmac_f32 v19, 0x3d372713, v18')
    a('v_mul_f32 v19, v19, v16')
    a(f'v_mul_f32 v19, {GELU_BITS}, v19')
    a('v_exp_f32 v19, v19')
    a('v_mul_f32 v16, v16, v17')
    a('v_add_f32 v19, 1.0, v19')
    a('v_rcp_f32 v19, v19')
    a('v_mul_f32 v16, v16, v19')
    a('v_mov_b32_dpp v17, v16 row_shl:4 row_mask:0xf bank_mask:0xf')
    a('v_cvt_pk_bf16_f32 v16, v16, v17')
    a('v_mov_b32_dpp v17, v16 quad_perm:[1,1,1,1] row_mask:0xf bank_mask:0xf')
    a('v_mov_b32_dpp v18, v16 quad_perm:[2,2,2,2] row_mask:0xf bank_mask:0xf')
    a('v_mov_b32_dpp v19, v16 quad_perm:[3,3,3,3] row_mask:0xf bank_mask:0xf')
    ex(0x0101010101010101)
    a(f'buffer_store_dwordx4 v[16:19], v54, {S(R_ACT)}, s98 offen sc1')
    a('s_branch L_hend')

    a.label('L_F')
    X, HR, FA = 160, 16, 40
    for n in range(11):
        if n == 7:
            a('s_waitcnt vmcnt(24)')
        for i in range(8):
            if i % 4 == 0:
                a(f's_add_u32 s92, s99, {(128 * n + i) * 1024}')
            a(f'buffer_load_dword v{RAW2 + 8 * n + i}, v8, {S(R_WD)}, s92 offen offset:{(i % 4) * 1024} nt')
    red4_addr(0)
    frag_addr(50)
    a('v_bfe_u32 v51, v1, 3, 2')
    a('v_lshlrev_b32 v51, 10, v51')
    a('v_and_b32 v9, 7, v1')
    a('v_lshl_add_u32 v51, v9, 3, v51')
    a('s_lshl_b32 s98, s7, 6')
    a(f'buffer_load_dwordx2 v[12:13], v51, {S(R_X)}, s98 offen')
    a('s_lshl_b32 s90, s7, 8')
    a(f's_add_u32 s90, s90, {WS_HP}')
    a('s_mov_b32 s94, 0x3f80')
    a('s_mov_b32 s95, 0x3f800000')
    a('s_waitcnt vmcnt(0)')
    for n in range(11):
        perm8(OP + 8 * n, RAW2 + 8 * n)
    stamp(8)

    def h_loads():
        a('s_mov_b32 s92, s90')
        for r in range(8):
            a(f'buffer_load_dwordx2 {vr(HR + 2 * r, 2)}, v50, {S(R_WS)}, s92 offen sc1')
            if r < 7:
                a('s_add_u32 s92, s92, 4096')
    poll(h_loads, lambda: chk_sentinel(range(HR, HR + 16), 10), o.sleep_long)
    for u in range(2):
        for e in range(2):
            a(f'v_dot2_f32_bf16 v{32 + 2 * u + e}, v{12 + u}, s{94 + e}, 0')
    for r in range(8):
        for u in range(2):
            for e in range(2):
                a(f'v_dot2_f32_bf16 v{32 + 2 * u + e}, v{HR + 2 * r + u}, s{94 + e}, v{32 + 2 * u + e}')
    for u in range(2):
        a(f'v_cvt_pk_bf16_f32 v12, v{32 + 2 * u}, v{33 + 2 * u}')
        a(f'v_lshlrev_b32 v{32 + 2 * u}, 16, v12')
        a(f'v_and_b32 v{33 + 2 * u}, s{S_MASK}, v12')
    a('v_lshlrev_b32 v7, 6, v4')
    a('v_lshl_add_u32 v7, v3, 4, v7')
    a('s_lshl_b32 s90, s3, 8')
    a('s_add_u32 s91, s90, 4096')
    a('s_add_u32 s92, s90, 8192')

    def f_loads():
        for n in range(11):
            a(f'buffer_load_dwordx4 {vr(X + 4 * n, 4)}, v7, {S(R_ACT)}, s{90 + n // 4} offen offset:{1024 * (n % 4)} sc1')
    poll(f_loads, lambda: chk_sentinel(range(X, X + 44), 10))
    stamp(9)
    for n in range(11):
        for e in range(2):
            mfma16(FA + 4 * e, OP + 8 * n + 4 * e, X + 4 * n, n == 0)
    for e in range(2):
        for j in range(4):
            a(f'v_mov_b32 v{T8 + 2 * j + e}, v{FA + 4 * e + j}')
    red4_write(T8)
    a('s_cmp_lg_u32 s3, 0')
    a('s_cbranch_scc1 L_end')
    red4_read(16)
    for i in range(4):
        a(f'v_add_f32 v{16 + i}, v{16 + i}, v{32 + i}')
    a('v_cvt_pk_bf16_f32 v16, v16, v17')
    a('v_cvt_pk_bf16_f32 v17, v18, v19')
    a(f'buffer_store_dwordx2 v[16:17], v51, {S(R_OUT)}, s98 offen')
    a('s_cmp_lg_u32 s7, 0')
    a('s_cbranch_scc1 L_hend')
    ex(1)
    a(f'v_mov_b32 v12, s{S_TAG}')
    a(f's_mov_b32 s90, {WS_EPOCH}')
    a(f'buffer_store_dword v12, off, {S(R_WS)}, s90')
    a.label('L_hend')
    if o.stamps:
        stamp(10)
        a('s_cmp_lg_u32 s3, 0')
        a('s_cbranch_scc1 L_end')
        dump_stamps(11, 1)
    a('s_endpgm')

    a.label('L_comp')
    O_, QA = 64, 128
    vA, vT, vMW, vMR, vPW, vPR, vAR = 0, 5, 6, 7, 8, 9, 10
    TA = (1, 2, 3, 4)
    NM, FL, vFL = 12, 14, 15
    PF, AL, BF = 16, 32, 48
    AF, AT, SS = 32, 48, 52
    a('s_lshl_b32 s90, s4, 15')
    a('s_lshl_b32 s91, s3, 13')
    a('s_add_u32 s90, s90, s91')
    a(f's_add_u32 s90, s90, {WS_QA}')
    a('s_add_u32 s92, s90, 4096')
    a('s_lshl_b32 s93, s3, 12')
    a('s_lshl_b32 s94, s4, 5')
    a('s_add_u32 s93, s93, s94')
    a(f's_add_u32 s93, s93, {WS_QAH}')
    a('v_lshrrev_b32 v16, 1, v1')
    a('v_lshlrev_b32 v16, 7, v16')
    a('v_and_b32 v17, 1, v1')
    a('v_lshl_add_u32 v16, v17, 4, v16')
    a('s_and_b32 s94, s3, 1')
    a('s_lshl_b32 s94, s94, 7')
    a('v_xor_b32 v17, s94, v2')
    a(f's_add_u32 s91, s91, {SCR}')
    a('v_add_u32 v17, s91, v17')
    a('v_mul_u32_u24 v18, 1040, v11')
    a('v_lshl_add_u32 v18, v3, 8, v18')
    a(f'v_add_u32 v18, {SCR}, v18')
    a('v_bfe_u32 v20, v1, 2, 2')
    a('v_lshl_add_u32 v21, v4, 2, v20')
    a(f'v_mul_u32_u24 v{vA}, 1040, v21')
    a(f'v_lshl_add_u32 v{vA}, v3, 8, v{vA}')
    a('s_lshl_b32 s95, s3, 14')
    a(f'v_add_u32 v{vA}, s95, v{vA}')
    a('v_lshrrev_b32 v22, 5, v1')
    a('v_lshlrev_b32 v21, 2, v20')
    a('v_lshl_add_u32 v21, v22, 1, v21')
    a('v_and_b32 v23, 1, v3')
    a('v_lshlrev_b32 v23, 1, v23')
    a('v_bfe_u32 v24, v1, 1, 1')
    a('v_add_u32 v23, v23, v24')
    a('v_xor_b32 v23, v23, v21')
    a(f'v_lshlrev_b32 v{vT}, 10, v21')
    a(f'v_lshl_add_u32 v{vT}, v23, 4, v{vT}')
    a('v_and_b32 v24, 1, v1')
    a(f'v_lshl_add_u32 v{vT}, v24, 3, v{vT}')
    a('s_lshl_b32 s95, s3, 8')
    a(f'v_add_u32 v{vT}, s95, v{vT}')
    a('v_and_b32 v24, 31, v1')
    a('s_lshl_b32 s95, s3, 2')
    a(f's_add_u32 s95, s95, {L_MAX}')
    a(f'v_lshl_add_u32 v{vMW}, v24, 4, s95')
    a(f'v_lshlrev_b32 v{vMR}, 4, v11')
    a(f'v_add_u32 v{vMR}, {L_MAX}, v{vMR}')
    a(f'v_lshlrev_b32 v{vPW}, 9, v22')
    a(f'v_lshl_add_u32 v{vPW}, v11, 4, v{vPW}')
    a('v_and_b32 v24, 1, v3')
    a(f'v_lshl_add_u32 v{vPW}, v24, 3, v{vPW}')
    a('s_lshl_b32 s95, s3, 10')
    a(f's_add_u32 s95, s95, {L_P}')
    a(f'v_add_u32 v{vPW}, s95, v{vPW}')
    a(f'v_add_u32 v{vPR}, {L_P}, v2')
    a(f'v_lshlrev_b32 v{vAR}, 4, v22')
    a(f'v_add_u32 v{vAR}, {L_ALPHA}, v{vAR}')
    a('v_lshlrev_b32 v11, 2, v11')
    a(f'v_add_u32 v11, {L_ALPHA}, v11')
    for i in range(64):
        a(f'v_mov_b32 v{O_ + i}, 0')
    a(f'v_mov_b32 v{NM}, 0')
    a(f'v_mov_b32 v{NM + 1}, 0')
    a(f'v_mov_b32 v{FL}, 0xff800000')
    a(f'v_mov_b32 v{vFL}, {L_FLAG}')
    a(f's_mov_b32 s98, {f32bits(float(o.thr))}')
    get_tag()
    stamp(1)
    HR_ = 24

    def h_check():
        a(f'v_bitop3_b32 v19, v{HR_}, v{HR_ + 1}, s{S_TAG} {XOR3}')
        a(f'v_bitop3_b32 v20, v{HR_ + 2}, v{HR_ + 3}, s{S_TAG} {XOR3}')
        a('v_or_b32 v19, v19, v20')
        a('v_cmp_ne_u32 vcc, 0, v19')
    poll(lambda: a(f'buffer_load_dwordx4 {vr(HR_, 4)}, v16, {S(R_WS)}, s93 offen sc1'), h_check, o.sleep_long)
    stamp(8)

    def q_loads():
        for i in range(8):
            a(f'buffer_load_dwordx4 {vr(QA + 4 * i, 4)}, v2, {S(R_WS)}, s{90 if i < 4 else 92} offen offset:{1024 * (i % 4)} sc1')

    def q_check():
        for i in range(8):
            a(f'v_xor_b32 v{28 + i % 2}, {16 * i}, v17')
            a(f'ds_write_b128 v{28 + i % 2}, {vr(QA + 4 * i, 4)} offset:{1024 * i}')
        xor_chain(19, list(range(QA, QA + 32)) + [HR_, HR_ + 2])
        for c in ('quad_perm:[1,0,3,2]', 'quad_perm:[2,3,0,1]', 'row_ror:4', 'row_ror:8'):
            dpp('v_xor_b32', 19, 19, 19, c)
        swap_step('v_xor_b32', 19, 20, 16)
        swap_step('v_xor_b32', 19, 20, 32)
        a('v_cmp_ne_u32 vcc, 0, v19')
    poll(q_loads, q_check)
    stamp(2)
    a('s_mov_b32 s97, 0')
    a('s_waitcnt lgkmcnt(0)')
    a('s_barrier')
    stamp(3)

    def a_read(st):
        a(f'v_xor_b32 v{AT + st % 4}, {16 * st}, v{vA}')
        a(f'ds_read_b128 {vr(AF + 4 * (st % 4), 4)}, v{AT + st % 4}')

    def q_read(st):
        a(f'v_xor_b32 v{28 + st % 4}, {16 * st}, v18')
        for hh in range(2):
            a(f'ds_read_b128 {vr(QA + 64 * hh + 4 * st, 4)}, v{28 + st % 4} offset:{16384 * hh}')

    def s_mfma(st, zero):
        for hh in range(2):
            mfma16(SS + 4 * hh, AF + 4 * (st % 4), QA + 64 * hh + 4 * st, zero and st == 0)
    for st in range(3):
        q_read(st)
        a_read(st)
    for st in range(16):
        if st + 3 < 16:
            q_read(st + 3)
            a_read(st + 3)
        a(f's_waitcnt lgkmcnt({3 * min(3, 15 - st)})')
        s_mfma(st, True)
    a(f'v_xor_b32 v{vA}, 0x10000, v{vA}')
    a('s_barrier')
    a.label('L_exact')
    for hh in range(2):
        a(f'v_max3_f32 v{60 + hh}, v{SS + 4 * hh}, v{SS + 4 * hh + 1}, v{SS + 4 * hh + 2}')
        a(f'v_max_f32 v{60 + hh}, v{60 + hh}, v{SS + 4 * hh + 3}')
    a('v_permlane16_swap_b32 v60, v61')
    a('v_max_f32 v60, v60, v61')
    swap_step('v_max_f32', 60, 61, 32)
    a(f'ds_write_b32 v{vMW}, v60')
    a('s_waitcnt lgkmcnt(0)')
    a('s_barrier')
    a(f'ds_read_b128 v[16:19], v{vMR}')
    a(f'ds_read_b128 v[20:23], v{vMR} offset:256')
    a('v_mov_b32 v28, 0')
    a(f'ds_write_b32 v{vFL}, v28')
    for hh in range(2):
        a(f's_waitcnt lgkmcnt({2 - hh})')
        a(f'v_max3_f32 v{60 + hh}, v{16 + 4 * hh}, v{17 + 4 * hh}, v{FL}')
        a(f'v_max3_f32 v{60 + hh}, v{18 + 4 * hh}, v{19 + 4 * hh}, v{60 + hh}')
        for j in range(4):
            a(f'v_sub_f32 v{SS + 4 * hh + j}, v{SS + 4 * hh + j}, v{60 + hh}')
        for j in range(4):
            a(f'v_exp_f32 v{SS + 4 * hh + j}, v{SS + 4 * hh + j}')
        a(f'v_max_f32 v{62 + hh}, 0, v{60 + hh}')
        a(f'v_cvt_pk_bf16_f32 v{24 + 2 * hh}, v{SS + 4 * hh}, v{SS + 4 * hh + 1}')
        a(f'v_cvt_pk_bf16_f32 v{25 + 2 * hh}, v{SS + 4 * hh + 2}, v{SS + 4 * hh + 3}')
        a(f'v_exp_f32 v{62 + hh}, -v{62 + hh}')
        a(f'ds_write_b64 v{vPW}, v[{24 + 2 * hh}:{25 + 2 * hh}] offset:{256 * hh}')
        a(f'v_sub_f32 v{NM + hh}, v{NM + hh}, v{60 + hh}')
        a(f'v_sub_f32 v{60 + hh}, 0, v{NM + hh}')
    a('ds_write2_b32 v11, v62, v63 offset0:0 offset1:16')
    a('ds_write2_b32 v11, v60, v61 offset0:32 offset1:48')
    a(f'v_mov_b32 v{FL}, 0')
    a(f'v_mov_b32 v{TA[0]}, v{vT}')
    a(f'v_xor_b32 v{TA[1]}, 16, v{vT}')
    a('s_waitcnt lgkmcnt(0)')
    a('s_barrier')
    a('v_mov_b32 v32, 0')
    a('s_cmp_eq_u32 s97, 0')
    a('s_cbranch_scc1 L_pvload')
    for jq in range(4):
        a(f'ds_read_b128 {vr(AL + 4 * jq, 4)}, v{vAR} offset:{32 * jq}')
    a('s_waitcnt lgkmcnt(0)')
    for blk in range(4):
        for j in range(16):
            a(f'v_mul_f32 v{O_ + 16 * blk + j}, v{O_ + 16 * blk + j}, v{AL + j}')
    a('v_mov_b32 v32, 0')
    a('s_branch L_pvload')
    a.label('L_flag')
    a('v_mov_b32 v28, 1')
    a(f'ds_write_b32 v{vFL}, v28')
    a('s_branch L_flagged')
    a.label('L_tile')
    for st in range(3):
        a_read(st)
    for hh in range(2):
        for j in range(4):
            a(f'v_mov_b32 v{SS + 4 * hh + j}, v{NM + hh}')
    for st in range(16):
        if st + 3 < 16:
            a_read(st + 3)
        a(f's_waitcnt lgkmcnt({min(3, 15 - st)})')
        s_mfma(st, False)
    a(f'v_xor_b32 v{vA}, 0x10000, v{vA}')
    a(f'v_mov_b32 v{TA[0]}, v{vT}')
    a(f'v_xor_b32 v{TA[1]}, 16, v{vT}')
    for hh in range(2):
        for j in range(4):
            a(f'v_exp_f32 v{16 + 4 * hh + j}, v{SS + 4 * hh + j}')
        a(f'v_cvt_pk_bf16_f32 v{24 + 2 * hh}, v{16 + 4 * hh}, v{17 + 4 * hh}')
        a(f'v_cvt_pk_bf16_f32 v{25 + 2 * hh}, v{18 + 4 * hh}, v{19 + 4 * hh}')
        a(f'ds_write_b64 v{vPW}, v[{24 + 2 * hh}:{25 + 2 * hh}] offset:{256 * hh}')
    a(f'v_max3_f32 v60, v{SS}, v{SS + 1}, v{SS + 2}')
    a(f'v_max3_f32 v61, v{SS + 3}, v{SS + 4}, v{SS + 5}')
    a(f'v_max3_f32 v60, v{SS + 6}, v{SS + 7}, v60')
    a('v_max_f32 v60, v60, v61')
    a('v_cmp_lt_f32 vcc, s98, v60')
    a('s_cbranch_vccnz L_flag')
    a.label('L_flagged')
    a('s_waitcnt lgkmcnt(0)')
    a('s_barrier')
    a(f'ds_read_b32 v32, v{vFL}')
    a.label('L_pvload')
    for ks in range(4):
        a(f'ds_read_b128 {vr(PF + 4 * ks, 4)}, v{vPR} offset:{1024 * ks}')
    seq = [(blk, ks) for blk in range(4) for ks in range(4)]
    BF2 = (36, 40, 44, 48)

    def rd(n):
        blk, ks = seq[n]
        if ks == 0 and blk > 0:
            a(f'v_xor_b32 v{TA[2 * (blk % 2)]}, {64 * blk}, v{vT}')
            a(f'v_xor_b32 v{TA[2 * (blk % 2) + 1]}, {64 * blk + 16}, v{vT}')
        bf = BF2[n % 4]
        a(f'ds_read_b64_tr_b16 {vr(bf, 2)}, v{TA[2 * (blk % 2)]} offset:{16384 * ks}')
        a(f'ds_read_b64_tr_b16 {vr(bf + 2, 2)}, v{TA[2 * (blk % 2) + 1]} offset:{16384 * ks + 1024}')
    for n in range(3):
        rd(n)
    a('s_waitcnt lgkmcnt(10)')
    a('v_readfirstlane_b32 s94, v32')
    a('s_cmp_eq_u32 s94, 1')
    a('s_cbranch_scc1 L_redo')
    for n in range(16):
        blk, ks = seq[n]
        if n + 3 < 16:
            a('s_waitcnt lgkmcnt(4)')
        else:
            a(f's_waitcnt lgkmcnt({2 * (15 - n)})')
        a(f'v_mfma_f32_32x32x16_bf16 {vr(O_ + 16 * blk, 16)}, {vr(PF + 4 * ks, 4)}, {vr(BF2[n % 4], 4)}, {vr(O_ + 16 * blk, 16)}')
        if n + 3 < 16:
            rd(n + 3)
    a(f'v_xor_b32 v{vT}, 0x10000, v{vT}')
    a('s_cmp_eq_u32 s97, 3')
    a('s_cbranch_scc1 L_fin ;noflush')
    a('s_add_u32 s97, s97, 1')
    a('s_barrier')
    a('s_barrier')
    a('s_branch L_tile ;noflush')
    a.label('L_redo')
    a('s_waitcnt lgkmcnt(0)')
    a('s_branch L_exact')
    a.label('L_fin')
    stamp(4)
    a('v_mbcnt_lo_u32_b32 v1, -1, 0')
    a('v_mbcnt_hi_u32_b32 v1, -1, v1')
    a('v_lshrrev_b32 v2, 5, v1')
    a('v_lshlrev_b32 v2, 2, v2')
    a('v_bfe_u32 v3, v1, 4, 1')
    a('v_add_u32 v2, v2, v3')
    a('v_and_b32 v3, 15, v1')
    a('v_lshlrev_b32 v4, 17, v2')
    a('v_lshl_add_u32 v4, v3, 4, v4')
    a('s_lshl_b32 s90, s3, 2')
    a('s_add_u32 s90, s90, s4')
    a('s_lshl_b32 s91, s90, 13')
    a('s_lshl_b32 s92, s5, 8')
    a('s_add_u32 s91, s91, s92')
    a(f's_add_u32 s91, s91, {WS_OP}')
    PK, XX = 128, 16
    for ap in range(8):
        t = PK + 4 * ap
        j = 2 * ap
        a(f'v_cvt_pk_bf16_f32 v{t}, v{O_ + j}, v{O_ + 16 + j}')
        a(f'v_cvt_pk_bf16_f32 v{t + 1}, v{O_ + 32 + j}, v{O_ + 48 + j}')
        a(f'v_cvt_pk_bf16_f32 v{t + 2}, v{O_ + j + 1}, v{O_ + 16 + j + 1}')
        a(f'v_cvt_pk_bf16_f32 v{t + 3}, v{O_ + 32 + j + 1}, v{O_ + 48 + j + 1}')
        a(f's_add_u32 s92, s91, {(8 * (ap // 2) + 2 * (ap % 2)) * 131072}')
        a(f'v_permlane16_swap_b32 v{t}, v{t + 2}')
        a(f'v_permlane16_swap_b32 v{t + 1}, v{t + 3}')
        a(f'buffer_store_dwordx4 {vr(t, 4)}, v4, {S(R_WS)}, s92 offen sc1')
    stamp(5)
    for ap in range(8):
        xor_chain(XX + ap, range(PK + 4 * ap, PK + 4 * ap + 4))
    for k in range(4):
        dpp('v_xor_b32', XX + 2 * k, XX + 2 * k, XX + 2 * k, 'row_ror:8', 0x3)
    for k in range(4):
        dpp('v_xor_b32', XX + 2 * k, XX + 2 * k + 1, XX + 2 * k + 1, 'row_ror:8', 0xc)
    for m in range(2):
        dpp('v_xor_b32', XX + 4 * m, XX + 4 * m, XX + 4 * m, 'row_half_mirror', 0x5)
    for m in range(2):
        dpp('v_xor_b32', XX + 4 * m, XX + 4 * m + 2, XX + 4 * m + 2, 'row_half_mirror', 0xa)
    a('v_and_b32 v5, 1, v1')
    a('v_lshlrev_b32 v5, 4, v5')
    a('v_bfe_u32 v6, v1, 2, 1')
    a('v_lshl_add_u32 v5, v6, 3, v5')
    for m in range(2):
        dpp('v_xor_b32', XX + 4 * m, XX + 4 * m, XX + 4 * m, 'quad_perm:[1,0,3,2]')
    a('v_bfe_u32 v6, v1, 3, 1')
    a('v_lshl_add_u32 v5, v6, 1, v5')
    a('v_add_u32 v5, v5, v2')
    a('v_lshlrev_b32 v5, 2, v5')
    for m in range(2):
        dpp('v_xor_b32', XX + 4 * m, XX + 4 * m, XX + 4 * m, 'quad_perm:[2,3,0,1]')
    a('s_lshl_b32 s91, s4, 14')
    a('s_lshl_b32 s92, s5, 9')
    a('s_add_u32 s91, s91, s92')
    a('s_lshl_b32 s92, s3, 7')
    a('s_add_u32 s91, s91, s92')
    a(f's_add_u32 s91, s91, {WS_OPT}')
    a('s_lshl_b32 s92, s5, 1')
    a('s_add_u32 s92, s92, 1')
    a(f's_mul_i32 s92, s92, s{S_TAG}')
    ex(0x2222222222222222)
    a(f'v_mov_b32 v{XX}, v{XX + 4}')
    ex(0x3333333333333333)
    a(f'v_xor_b32 v{XX}, s92, v{XX}')
    a(f'buffer_store_dword v{XX}, v5, {S(R_WS)}, s91 offen sc1')
    if o.stamps:
        stamp(6)
        a('s_waitcnt vmcnt(0)')
        stamp(7)
        a('s_cmp_lg_u32 s3, 0')
        a('s_cbranch_scc1 L_end')
        dump_stamps(9, 0)
    a.label('L_end')
    a('s_endpgm')

    txt = HEADER
    txt += f'; @launch grid=(256,1,1) block=(512,1,1) lds={LDS_TOTAL}\n'
    txt += '.amdgcn_target "amdgcn-amd-amdhsa--gfx950"\n.text\n'
    txt += a.finalize()
    txt += f""".section .rodata,"a"
.p2align 6
.amdhsa_kernel {name}
  .amdhsa_next_free_vgpr 256
  .amdhsa_next_free_sgpr 102
  .amdhsa_accum_offset 256
  .amdhsa_group_segment_fixed_size 0
  .amdhsa_kernarg_size 104
  .amdhsa_user_sgpr_count 2
  .amdhsa_user_sgpr_kernarg_segment_ptr 1
  .amdhsa_system_sgpr_workgroup_id_x 1
.end_amdhsa_kernel
"""
    return txt


if __name__ == '__main__':
    o = Opt()
    for kv in sys.argv[2:]:
        k, v = kv.split('=')
        setattr(o, k, int(v))
    open(sys.argv[1], 'w').write(gen(o))
```

```python
import sys
sys.path.insert(0, 'dev')
from asmdsl import Asm
from layout2 import *

NAME = 'sequential_preLN__compressed_kv_cla__glu_gated_geglu__decode'
HEADER = open('cdna_kernels/' + NAME + '.s.ref').read().split('; Override launch')[0]
SEL_LO, SEL_HI = 0x05040100, 0x07060302
LDS_TOTAL = 163840
SCR = 131072
L_MAX, L_ALPHA, L_MFIN, L_FLAG, L_P = SCR, SCR + 512, SCR + 640, SCR + 768, SCR + 2048

R_X, R_WS, R_CKV, R_WQ, R_WUK, R_WUV, R_WO, R_WG, R_WU, R_WD, R_OUT, R_ACT = [8 + 4 * i for i in range(12)]
S_TAG, S_LO, S_HI, S_MASK, S_CNT, S_EXP = 56, 57, 58, 59, 60, 62
SPIN = 20000
XOR3 = 'bitop3:0x96'


class Opt:
    stamps = 0
    window = 8
    sleep = 1
    sleep_long = 4
    thr = 60
    dbgwg = 192


def vr(a, n):
    return f'v[{a}:{a + n - 1}]' if n > 1 else f'v{a}'


def S(base):
    return f's[{base}:{base + 3}]'


def gen(o):
    a = Asm()
    name = NAME + '_kernel'

    def ex(mask):
        if mask == -1:
            a('s_mov_b64 exec, -1')
        elif mask <= 64:
            a(f's_mov_b64 exec, {mask}')
        else:
            a(f's_mov_b32 exec_lo, 0x{mask & 0xffffffff:x}')
            a(f's_mov_b32 exec_hi, 0x{mask >> 32:x}')

    def dpp(op, d, s0, s1, ctrl, bank=0xf):
        a(f'{op}_dpp v{d}, v{s0}, v{s1} {ctrl} row_mask:0xf bank_mask:0x{bank:x}')

    def swap_step(op, v, t, which):
        a(f'v_mov_b32 v{t}, v{v}')
        a(f'v_permlane{which}_swap_b32 v{v}, v{t}')
        a(f'{op} v{v}, v{v}, v{t}')

    def stamp(idx):
        if o.stamps:
            a(f's_memrealtime s[{64 + 2 * idx}:{65 + 2 * idx}]')

    def dump_stamps(n, grp):
        a('s_waitcnt lgkmcnt(0)')
        a('s_mov_b64 exec, -1')
        a('v_mov_b32 v3, 0')
        a('v_writelane_b32 v3, s100, 0')
        for i in range(1, n):
            a(f'v_writelane_b32 v3, s{64 + 2 * i}, {i}')
        a('v_mbcnt_lo_u32_b32 v4, -1, 0')
        a('v_lshlrev_b32 v4, 2, v4')
        a('s_lshl_b32 s61, s2, 7')
        a(f's_add_u32 s61, s61, {WS_STAMP + 64 * grp}')
        ex(0xffff)
        a(f'buffer_store_dword v3, v4, {S(R_WS)}, s61 offen')
        if o.stamps == 2:
            lb = a.uid('nodbg')
            a('v_subrev_u32 v3, s100, v3')
            if n == 11:
                a(f's_cmp_lg_u32 s2, {o.dbgwg}')
                a(f's_cbranch_scc1 {lb}')
                ex(0x7fe)
                a('global_store_dword v4, v3, s[86:87] offset:-4')
            elif n == 10:
                a('s_cmp_lg_u32 s2, 0')
                a(f's_cbranch_scc1 {lb}')
                ex(0x3e8)
                a('v_mbcnt_lo_u32_b32 v4, exec_lo, 0')
                a('v_lshlrev_b32 v4, 2, v4')
                a('global_store_dword v4, v3, s[86:87] offset:40')
            a.label(lb)

    def xor_chain(tmp, regs, last=None):
        ops = [f'v{r}' for r in regs] + ([last] if last else [])
        a(f'v_bitop3_b32 v{tmp}, {ops[0]}, {ops[1]}, {ops[2]} {XOR3}')
        ops = ops[3:]
        while len(ops) >= 2:
            a(f'v_bitop3_b32 v{tmp}, v{tmp}, {ops[0]}, {ops[1]} {XOR3}')
            ops = ops[2:]
        if ops:
            a(f'v_xor_b32 v{tmp}, {ops[0]}, v{tmp}')

    def chk_sentinel(regs, tmp):
        rs = list(regs)
        a(f'v_max3_u32 v{tmp}, v{rs[0]}, v{rs[1]}, v{rs[2]}')
        rs = rs[3:]
        while len(rs) >= 2:
            a(f'v_max3_u32 v{tmp}, v{tmp}, v{rs[0]}, v{rs[1]}')
            rs = rs[2:]
        if rs:
            a(f'v_max_u32 v{tmp}, v{tmp}, v{rs[0]}')
        a(f'v_cmp_eq_u32 vcc, -1, v{tmp}')

    def poll(loads, check, sleep=None):
        L, Dn = a.uid('poll'), a.uid('pdone')
        a(f's_mov_b32 s{S_CNT}, {SPIN}')
        a.label(L)
        loads()
        a('s_waitcnt vmcnt(0)')
        check()
        a(f's_cbranch_vccz {Dn}')
        sl = o.sleep if sleep is None else sleep
        if sl:
            a(f's_sleep {sl}')
        a(f's_sub_u32 s{S_CNT}, s{S_CNT}, 1')
        a(f's_cbranch_scc0 {L}')
        a.label(Dn)

    def perm8(dst, src):
        for p in range(4):
            a(f'v_perm_b32 v{dst + p}, v{src + 2 * p + 1}, v{src + 2 * p}, s{S_LO}')
        for p in range(4):
            a(f'v_perm_b32 v{dst + 4 + p}, v{src + 2 * p + 1}, v{src + 2 * p}, s{S_HI}')

    def mfma16(d, x, y, first):
        c = '0' if first else vr(d, 4)
        a(f'v_mfma_f32_16x16x32_bf16 {vr(d, 4)}, {vr(x, 4)}, {vr(y, 4)}, {c}')

    M4 = 0x000f000f000f000f

    def vF(d):
        a(f'v_bfe_u32 v{d}, v1, 2, 2')
        a(f'v_lshlrev_b32 v{d}, 8, v{d}')
        a(f'v_lshl_add_u32 v{d}, v3, 6, v{d}')
        a(f'v_lshl_add_u32 v{d}, v4, 4, v{d}')

    def vG(d):
        a(f'v_lshlrev_b32 v{d}, 6, v3')
        a(f'v_lshl_add_u32 v{d}, v4, 4, v{d}')

    a(f'.globl {name}\n.p2align 8\n.type {name},@function')
    a.label(name)
    if o.stamps:
        a('s_memrealtime s[100:101]')
    a('s_cmp_ge_u32 s2, 256')
    a('s_cbranch_scc1 L_end')
    a('s_load_dwordx16 s[64:79], s[0:1], 0')
    a('s_load_dwordx8 s[80:87], s[0:1], 64')
    a(f's_load_dwordx2 s[{R_WS}:{R_WS + 1}], s[0:1], 96')
    a('v_and_b32 v1, 63, v0')
    a('v_lshrrev_b32 v2, 6, v0')
    a('v_readfirstlane_b32 s3, v2')
    a('v_lshlrev_b32 v2, 4, v1')
    a('v_lshrrev_b32 v3, 4, v1')
    a('v_and_b32 v4, 3, v1')
    a('v_and_b32 v11, 15, v1')
    for r, n in ((R_X, 4096), (R_WS, WS_END), (R_CKV, 32 << 20), (R_WQ, 4 << 20), (R_WUK, 4 << 20),
                 (R_WUV, 4 << 20), (R_WO, 4 << 20), (R_WG, 512 * 2752), (R_WU, 512 * 2752), (R_WD, 1376 * 1024),
                 (R_OUT, 4096), (R_ACT, 43 * 256)):
        a(f's_mov_b32 s{r + 2}, {n}')
        a(f's_mov_b32 s{r + 3}, 0x00020000')
    a(f's_mov_b32 s{S_LO}, {SEL_LO}')
    a(f's_mov_b32 s{S_HI}, {SEL_HI}')
    a(f's_mov_b32 s{S_MASK}, 0xffff0000')
    a('s_waitcnt lgkmcnt(0)')
    a(f's_load_dword s{S_TAG}, s[{R_WS}:{R_WS + 1}], {WS_EPOCH}')
    for r, p in ((R_X, 64), (R_CKV, 66), (R_WQ, 68), (R_WUK, 70), (R_WUV, 72), (R_WO, 74), (R_WG, 78), (R_WU, 80),
                 (R_WD, 82), (R_OUT, 84)):
        a(f's_mov_b64 s[{r}:{r + 1}], s[{p}:{p + 1}]')
    a(f's_add_u32 s{R_ACT}, s{R_WS}, {WS_ACT}')
    a(f's_addc_u32 s{R_ACT + 1}, s{R_WS + 1}, 0')
    a('s_cmp_ge_u32 s2, 128')
    a('s_cbranch_scc1 L_att')

    def get_tag():
        a('s_waitcnt lgkmcnt(0)')
        a(f's_add_u32 s{S_TAG}, s{S_TAG}, 0x9e3779b9')

    a('s_and_b32 s4, s2, 7')
    a('s_lshl_b32 s4, s4, 2')
    a('s_bfe_u32 s5, s2, 0x20003')
    a('s_add_u32 s4, s4, s5')
    a('s_lshr_b32 s5, s2, 5')
    a('s_lshl_b32 s6, s4, 8')
    a('s_cmp_ge_u32 s3, 4')
    a('s_cbranch_scc1 L_a2')
    a('s_cmp_ge_u32 s3, 2')
    a('s_cbranch_scc1 L_a_idle')
    XS, XO, L, ACC, T, QF = 12, 28, 44, 108, 124, 140
    a('v_bfe_u32 v5, v1, 2, 2')
    a('v_lshlrev_b32 v6, 6, v5')
    a('v_lshl_add_u32 v6, v4, 10, v6')
    a('v_lshl_add_u32 v6, v3, 4, v6')
    a('s_lshl_b32 s90, s5, 8')
    for i in range(4):
        a(f'buffer_load_dwordx4 {vr(XS + 4 * i, 4)}, v6, {S(R_X)}, 0 offen offset:{256 * i}')
    a(f'buffer_load_dwordx4 {vr(XO, 4)}, v6, {S(R_X)}, s90 offen')
    a('v_lshlrev_b32 v5, 1, v5')
    a('v_and_b32 v7, 1, v1')
    a('v_add_u32 v5, v5, v7')
    a('v_and_b32 v7, 2, v1')
    a('v_lshl_add_u32 v5, v7, 2, v5')
    a('v_lshlrev_b32 v5, 3, v5')
    a('v_lshl_add_u32 v5, v3, 16, v5')
    a('s_lshl_b32 s90, s5, 20')
    a('s_add_u32 s90, s90, s6')
    a('s_lshl_b32 s91, s3, 7')
    a('s_add_u32 s90, s90, s91')
    for t in range(4):
        for i in range(8):
            a(f'buffer_load_dwordx2 {vr(L + 16 * t + 2 * i, 2)}, v5, {S(R_WQ)}, s90 offen nt')
            if not (t == 3 and i == 7):
                a(f's_add_u32 s90, s90, {8192 if i < 7 else 8192 * 25}')
    stamp(1)
    a('s_mov_b32 s90, 0x3f803f80')
    a('s_waitcnt vmcnt(33)')
    for i in range(16):
        a(f'v_dot2_f32_bf16 v9, v{XS + i}, s90, {"0" if i == 0 else "v9"}')
        a(f'v_dot2_f32_bf16 v10, v{XS + i}, v{XS + i}, {"0" if i == 0 else "v10"}')
    for c in ('row_ror:4', 'row_ror:8'):
        dpp('v_add_f32', 9, 9, 9, c)
        dpp('v_add_f32', 10, 10, 10, c)
    for wh in (16, 32):
        a('v_mov_b32 v12, v9')
        a('v_mov_b32 v13, v10')
        a(f'v_permlane{wh}_swap_b32 v9, v12')
        a(f'v_permlane{wh}_swap_b32 v10, v13')
        a('v_add_f32 v9, v9, v12')
        a('v_add_f32 v10, v10, v13')
    a('v_mul_f32 v9, 0x3b000000, v9')
    a('v_mul_f32 v10, 0x3b000000, v10')
    a('v_fma_f32 v10, -v9, v9, v10')
    a('v_max_f32 v10, 0, v10')
    a('v_add_f32 v10, 0x3727c5ac, v10')
    a('v_rsq_f32 v10, v10')
    a(f'v_mul_f32 v10, {QSCALE_BITS}, v10')
    a('v_mul_f32 v9, v9, v10')
    a('s_waitcnt vmcnt(32)')
    for i in range(4):
        a(f'v_lshlrev_b32 v12, 16, v{XO + i}')
        a(f'v_and_b32 v13, s{S_MASK}, v{XO + i}')
        a('v_fma_f32 v12, v12, v10, -v9')
        a('v_fma_f32 v13, v13, v10, -v9')
        a(f'v_cvt_pk_bf16_f32 v{XO + i}, v12, v13')
    for t in range(1, 4):
        for i in range(4):
            a(f'v_mov_b32_dpp v{XO + 4 * t + i}, v{XO + i} row_shl:{4 * t} row_mask:0xf bank_mask:0xf bound_ctrl:0')
    vG(6)
    a('v_lshrrev_b32 v7, 2, v6')
    a('s_lshl_b32 s90, s4, 12')
    a('s_lshl_b32 s91, s3, 11')
    a('s_add_u32 s90, s90, s91')
    a('s_lshl_b32 s91, s5, 8')
    a('s_add_u32 s90, s90, s91')
    if WS_QP:
        a(f's_add_u32 s90, s90, {WS_QP}')
    a('s_lshl_b32 s91, s4, 10')
    a('s_lshl_b32 s92, s5, 7')
    a('s_add_u32 s91, s91, s92')
    a('s_lshl_b32 s92, s3, 9')
    a('s_add_u32 s91, s91, s92')
    a(f's_add_u32 s91, s91, {WS_QPT}')
    get_tag()
    a('s_lshl_b32 s92, s3, 1')
    a('s_add_u32 s92, s92, 3')
    a(f's_mul_i32 s92, s92, s{S_TAG}')
    stamp(2)
    for t in range(4):
        a(f's_waitcnt vmcnt({8 * (3 - t)})')
        for u in range(2):
            tb = T + 8 * u
            for p in range(4):
                lo, hi = L + 16 * t + 2 * (2 * p) + u, L + 16 * t + 2 * (2 * p + 1) + u
                a(f'v_perm_b32 v{tb + p}, v{hi}, v{lo}, s{S_LO}')
                a(f'v_perm_b32 v{tb + 4 + p}, v{hi}, v{lo}, s{S_HI}')
            for e in range(2):
                mfma16(ACC + 4 * (2 * u + e), tb + 4 * e, XO + 4 * t, t == 0)
    for ph in range(2):
        for jj in range(2):
            j = 2 * ph + jj
            a(f'v_cvt_pk_bf16_f32 v{QF + 4 * ph + 2 * jj}, v{ACC + j}, v{ACC + 4 + j}')
            a(f'v_cvt_pk_bf16_f32 v{QF + 4 * ph + 2 * jj + 1}, v{ACC + 8 + j}, v{ACC + 12 + j}')
    ex(M4)
    a(f'buffer_store_dwordx4 {vr(QF, 4)}, v6, {S(R_WS)}, s90 offen sc1')
    a(f'buffer_store_dwordx4 {vr(QF + 4, 4)}, v6, {S(R_WS)}, s90 offen offset:1024 sc1')
    xor_chain(12, range(QF, QF + 8), 's92')
    a(f'buffer_store_dword v12, v7, {S(R_WS)}, s91 offen sc1')
    ex(-1)
    stamp(3)
    a('s_branch L_a_done')

    a.label('L_a_idle')
    get_tag()
    a('s_branch L_a_done')

    a.label('L_a2')
    UK, Q, QT, AC2, FR = 12, 44, 60, 64, 72
    a('s_sub_u32 s7, s3, 4')
    a('v_lshrrev_b32 v8, 2, v11')
    a('v_lshlrev_b32 v8, 3, v8')
    a('v_add_u32 v8, v8, v4')
    a('v_lshlrev_b32 v8, 13, v8')
    a('v_lshl_add_u32 v8, v3, 4, v8')
    a('s_lshl_b32 s90, s5, 20')
    a('s_lshl_b32 s91, s7, 18')
    a('s_add_u32 s90, s90, s91')
    a('s_add_u32 s90, s90, s6')
    a('s_add_u32 s91, s90, 32768')
    for sub in range(2):
        for k in range(4):
            a(f'buffer_load_dwordx4 {vr(UK + 16 * sub + 4 * k, 4)}, v8, {S(R_WUK)}, s{90 + sub} offen offset:{64 * k} nt')
    for i in range(4):
        a(f'v_mov_b32 v{FR + i}, -1')
    a('s_lshl_b32 s90, s2, 2')
    a('s_add_u32 s90, s90, s7')
    a('s_mul_i32 s90, s90, 384')
    a(f's_add_u32 s90, s90, {WS_CLEAN}')
    ex(0xffffff)
    a(f'buffer_store_dwordx4 {vr(FR, 4)}, v2, {S(R_WS)}, s90 offen sc1')
    ex(-1)
    stamp(1)
    vF(9)
    vG(5)
    a('v_lshrrev_b32 v5, 2, v5')
    a('v_bfe_u32 v6, v1, 2, 2')
    a('v_lshl_add_u32 v5, v6, 7, v5')
    a('v_lshlrev_b32 v6, 15, v4')
    a('v_lshl_add_u32 v6, v3, 4, v6')
    a('v_lshlrev_b32 v7, 5, v4')
    a('s_lshl_b32 s90, s4, 12')
    if WS_QP:
        a(f's_add_u32 s90, s90, {WS_QP}')
    a('s_lshl_b32 s91, s4, 10')
    a('s_lshl_b32 s92, s5, 8')
    a('s_add_u32 s92, s92, s91')
    a('s_lshr_b32 s93, s92, 1')
    a('s_lshl_b32 s96, s7, 6')
    a('s_add_u32 s92, s92, s96')
    a(f's_add_u32 s92, s92, {WS_QA}')
    a('s_lshl_b32 s96, s7, 3')
    a('s_add_u32 s93, s93, s96')
    a(f's_add_u32 s93, s93, {WS_QAH}')
    a(f's_add_u32 s91, s91, {WS_QPT}')
    get_tag()
    a(f's_mul_i32 s94, s{S_TAG}, 3')
    a(f's_mul_i32 s95, s{S_TAG}, 5')
    a(f's_xor_b32 s{S_EXP}, s94, s95')
    a('s_waitcnt vmcnt(0)')

    def a2_loads():
        for k in range(4):
            a(f'buffer_load_dwordx4 {vr(Q + 4 * k, 4)}, v9, {S(R_WS)}, s90 offen offset:{1024 * k} sc1')
        for dh in range(2):
            a(f'buffer_load_dword v{QT + dh}, v5, {S(R_WS)}, s91 offen offset:{512 * dh} sc1')

    def a2_check():
        xor_chain(10, range(Q, Q + 18), f's{S_EXP}')
        a('v_cmp_ne_u32 vcc, 0, v10')
    poll(a2_loads, a2_check)
    stamp(2)
    for k in range(4):
        for sub in range(2):
            mfma16(AC2 + 4 * sub, UK + 16 * sub + 4 * k, Q + 4 * k, k == 0)
    for c in ('row_ror:4', 'row_ror:8'):
        for i in range(8):
            dpp('v_add_f32', AC2 + i, AC2 + i, AC2 + i, c)
    for i in range(4):
        a(f'v_cvt_pk_bf16_f32 v{FR + i}, v{AC2 + 2 * i}, v{AC2 + 2 * i + 1}')
    ex(M4)
    a(f'buffer_store_dwordx4 {vr(FR, 4)}, v6, {S(R_WS)}, s92 offen sc1')
    ex(-1)
    xor_chain(76, range(FR, FR + 4))
    swap_step('v_xor_b32', 76, 77, 16)
    swap_step('v_xor_b32', 76, 77, 32)
    a(f'v_xor_b32 v77, s{S_TAG}, v76')
    ex(15)
    a(f'buffer_store_dwordx2 v[76:77], v7, {S(R_WS)}, s93 offen sc1')
    ex(-1)
    stamp(3)

    a.label('L_a_done')
    a('s_barrier')
    RAW, OPC = 72, 64
    OPD = OPC + 32
    a('s_and_b32 s7, s2, 7')
    a('s_lshr_b32 s63, s2, 3')
    a('s_cmp_ge_u32 s3, 4')
    a('s_cbranch_scc1 L_c')
    a('v_lshlrev_b32 v8, 13, v3')
    a('v_lshl_add_u32 v8, v11, 2, v8')
    a('s_lshl_b32 s90, s5, 20')
    a('s_add_u32 s90, s90, s6')
    a('s_lshl_b32 s91, s3, 6')
    a('s_add_u32 s90, s90, s91')
    for t in range(4):
        for i in range(8):
            a(f's_add_u32 s92, s90, {(4 * t + 32 * (i % 4) + 16 * (i // 4)) * 8192}')
            a(f'buffer_load_dword v{RAW + 8 * t + i}, v8, {S(R_WUV)}, s92 offen nt')
    a('s_lshl_b32 s90, s7, 19')
    a('s_lshl_b32 s91, s3, 17')
    a('s_add_u32 s90, s90, s91')
    a('s_lshl_b32 s91, s63, 6')
    a('s_add_u32 s90, s90, s91')
    a('s_waitcnt vmcnt(24)')
    for t in range(4):
        for i in range(8):
            if i % 4 == 0:
                a(f's_add_u32 s92, s90, {(32 * t + i) * 1024}')
            a(f'buffer_load_dword v{RAW + 32 + 8 * t + i}, v8, {S(R_WO)}, s92 offen offset:{(i % 4) * 1024} nt')
    a('s_waitcnt vmcnt(0)')
    for n in range(8):
        perm8(OPC + 8 * n, RAW + 8 * n)
    stamp(4)
    a.label('L_c')
    D, WL, AC = 16, 32, 40
    a('s_and_b32 s94, s3, 3')
    a('s_lshr_b32 s95, s3, 2')
    a('v_and_b32 v5, 31, v1')
    a('v_lshlrev_b32 v5, 9, v5')
    a('s_lshl_b32 s90, s94, 14')
    a('s_lshl_b32 s91, s5, 7')
    a('s_add_u32 s92, s90, s91')
    a('s_lshl_b32 s91, s4, 2')
    a('s_add_u32 s92, s92, s91')
    a(f's_add_u32 s92, s92, {WS_OPT}')
    a('s_lshl_b32 s91, s4, 4')
    a('s_add_u32 s90, s90, s91')
    a(f's_add_u32 s90, s90, {WS_ST}')
    a('s_lshl_b32 s96, s4, 2')
    a('s_add_u32 s96, s96, s5')
    a('s_lshl_b32 s96, s96, 2')
    a('s_add_u32 s96, s96, s94')
    a('s_lshl_b32 s91, s96, 13')
    a('s_lshl_b32 s93, s95, 12')
    a('s_add_u32 s91, s91, s93')
    a(f's_add_u32 s91, s91, {WS_OP}')
    a('s_lshl_b32 s97, s95, 4')
    a('v_add3_u32 v6, v11, v3, s97')
    a('v_lshl_add_u32 v7, v6, 1, 1')
    a(f'v_mul_lo_u32 v7, v7, s{S_TAG}')
    a('v_lshlrev_b32 v6, 9, v6')
    a('v_cmp_ne_u32 vcc, 0, v4')
    a('v_mov_b32 v9, 0x7fffff00')
    a('v_cndmask_b32 v6, v6, v9, vcc')
    a('v_cndmask_b32 v7, v7, 0, vcc')
    a('v_lshlrev_b32 v48, 4, v11')
    a('v_lshl_add_u32 v48, v3, 1, v48')
    a('s_lshl_b32 s93, s3, 8')
    a('v_add_u32 v48, s93, v48')
    a('v_and_b32 v49, 7, v1')
    a('v_lshlrev_b32 v49, 8, v49')
    a('v_lshl_add_u32 v49, v3, 4, v49')
    vG(50)
    a('s_lshl_b32 s98, s4, 12')
    a('s_lshl_b32 s93, s3, 10')
    a('s_add_u32 s98, s98, s93')
    a('s_lshl_b32 s93, s5, 8')
    a('s_add_u32 s98, s98, s93')
    a(f's_add_u32 s98, s98, {WS_CP}')
    a('v_add_u32 v51, s97, v3')
    a('v_lshlrev_b32 v51, 2, v51')

    def st_check():
        xor_chain(10, [12, 13, 14], f's{S_TAG}')
        a('v_cmp_ne_u32 vcc, 0, v10')
    poll(lambda: a(f'buffer_load_dwordx4 v[12:15], v5, {S(R_WS)}, s90 offen sc1'), st_check, o.sleep_long)
    stamp(5)

    def c_loads(first=False):
        a(f'buffer_load_dword v9, v6, {S(R_WS)}, s92 offen sc1')
        for i in range(4):
            if not first:
                lb = a.uid('cskip')
                a(f's_bitcmp1_b32 s97, {4 * i}')
                a(f's_cbranch_scc0 {lb}')
            a(f'buffer_load_dwordx4 {vr(D + 4 * i, 4)}, v2, {S(R_WS)}, s91 offen offset:{1024 * i} sc1')
            if not first:
                a.label(lb)
    c_loads(True)
    a('v_mov_b32 v14, v12')
    for op, v in (('v_max_f32', 14), ('v_add_f32', 14)):
        for c in ('quad_perm:[1,0,3,2]', 'quad_perm:[2,3,0,1]', 'row_ror:4', 'row_ror:8'):
            dpp(op, v, v, v, c)
        swap_step(op, v, 15, 16)
        if op == 'v_max_f32':
            a('v_sub_f32 v12, v12, v14')
            a('v_exp_f32 v12, v12')
            a('v_mul_f32 v14, v12, v13')
    a('v_rcp_f32 v14, v14')
    a('v_mul_f32 v12, v12, v14')
    a('v_cvt_pk_bf16_f32 v12, v12, 0')
    for i in range(4):
        a(f'ds_bpermute_b32 v{WL + i}, v51, v12 offset:{16 * i}')
    a('s_waitcnt lgkmcnt(0)')
    for i in range(4):
        a(f'v_lshlrev_b32 v{WL + 4 + i}, 16, v{WL + i}')

    a(f's_mov_b32 s{S_CNT}, {SPIN}')
    a('s_branch L_cchk')
    a.label('L_cpoll')
    c_loads()
    a.label('L_cchk')
    a('s_waitcnt vmcnt(0)')
    for i in range(4):
        xor_chain(52 + i, range(D + 4 * i, D + 4 * i + 4))
    for k in range(2):
        dpp('v_xor_b32', 52 + k, 52 + k, 52 + k, 'row_ror:8', 0x3)
    for k in range(2):
        dpp('v_xor_b32', 52 + k, 54 + k, 54 + k, 'row_ror:8', 0xc)
    a('v_xor_b32 v9, v9, v7')
    dpp('v_xor_b32', 52, 52, 52, 'row_half_mirror', 0x5)
    dpp('v_xor_b32', 52, 53, 53, 'row_half_mirror', 0xa)
    a('v_xor_b32 v52, v52, v9')
    dpp('v_xor_b32', 52, 52, 52, 'quad_perm:[1,0,3,2]')
    dpp('v_xor_b32', 52, 52, 52, 'quad_perm:[2,3,0,1]')
    a('v_cmp_ne_u32 vcc, 0, v52')
    a('s_cbranch_vccz L_cdone')
    a('s_or_b32 s97, vcc_lo, vcc_hi')
    a('s_lshr_b32 s93, s97, 16')
    a('s_or_b32 s97, s97, s93')
    a(f's_sub_u32 s{S_CNT}, s{S_CNT}, 1')
    a('s_cbranch_scc0 L_cpoll')
    a.label('L_cdone')
    stamp(6)
    for i in range(4):
        for u in range(4):
            for e in range(2):
                c = '0' if i == 0 else f'v{AC + 2 * u + e}'
                a(f'v_dot2_f32_bf16 v{AC + 2 * u + e}, v{D + 4 * i + u}, v{WL + 4 * e + i}, {c}')
    for k in range(4):
        a(f'v_permlane16_swap_b32 v{AC + 2 * k}, v{AC + 2 * k + 1}')
    for k in range(4):
        a(f'v_add_f32 v{AC + 2 * k}, v{AC + 2 * k}, v{AC + 2 * k + 1}')
    for k in range(2):
        a(f'v_permlane32_swap_b32 v{AC + 4 * k}, v{AC + 4 * k + 2}')
    for k in range(2):
        a(f'v_add_f32 v{AC + 4 * k}, v{AC + 4 * k}, v{AC + 4 * k + 2}')
    a(f'v_cvt_pk_bf16_f32 v{AC}, v{AC}, v{AC + 4}')
    a(f'ds_write_b16 v48, v{AC}')
    a(f'ds_write_b16_d16_hi v48, v{AC} offset:8')
    a('s_waitcnt lgkmcnt(0)')
    a('s_barrier')
    a('s_cmp_ge_u32 s3, 4')
    a('s_cbranch_scc1 L_aux_hi_end')
    for t in range(4):
        a(f'ds_read_b128 {vr(D + 4 * t, 4)}, v49 offset:{64 * t}')
    for t in range(4):
        a(f's_waitcnt lgkmcnt({3 - t})')
        for e in range(2):
            mfma16(AC + 4 * e, OPC + 8 * t + 4 * e, D + 4 * t, t == 0)
    for i in range(8):
        dpp('v_add_f32', AC + i, AC + i, AC + i, 'row_ror:4')
    for j in range(4):
        a(f'v_cvt_pk_bf16_f32 v{12 + j}, v{AC + j}, v{AC + 4 + j}')
    ex(M4)
    a(f'buffer_store_dwordx4 v[12:15], v50, {S(R_WS)}, s98 offen sc1')
    ex(-1)
    stamp(7)

    def red4_addr(base):
        a('v_lshlrev_b32 v48, 7, v4')
        a('v_lshl_add_u32 v48, v3, 5, v48')
        a('s_lshl_b32 s93, s3, 9')
        a(f's_add_u32 s93, s93, {base}')
        a('v_add_u32 v48, s93, v48')
        a(f'v_add_u32 v49, {base}, v2')

    def red4_write(t8):
        ex(M4)
        a(f'ds_write_b128 v48, {vr(t8, 4)}')
        a(f'ds_write_b128 v48, {vr(t8 + 4, 4)} offset:16')
        ex(-1)
        a('s_waitcnt lgkmcnt(0)')
        a('s_barrier')

    def red4_read(x):
        ex(0xffffffff)
        for w in range(4):
            a(f'ds_read_b128 {vr(x + 4 * w, 4)}, v49 offset:{512 * w}')
        a('s_waitcnt lgkmcnt(2)')
        for i in range(4):
            a(f'v_add_f32 v{x + i}, v{x + i}, v{x + 4 + i}')
        a('s_waitcnt lgkmcnt(0)')
        for i in range(4):
            a(f'v_add_f32 v{x + 8 + i}, v{x + 8 + i}, v{x + 12 + i}')
        for i in range(4):
            a(f'v_add_f32 v{x + i}, v{x + i}, v{x + 8 + i}')

    def frag_addr(dst):
        a(f'v_bfe_u32 v{dst}, v1, 1, 2')
        a(f'v_lshlrev_b32 v{dst}, 6, v{dst}')
        a('v_bfe_u32 v9, v1, 3, 2')
        a(f'v_lshl_add_u32 v{dst}, v9, 4, v{dst}')
        a('v_and_b32 v9, 1, v1')
        a(f'v_lshl_add_u32 v{dst}, v9, 3, v{dst}')

    T8 = 52
    a('s_lshl_b32 s90, s7, 14')
    a('s_lshl_b32 s91, s3, 12')
    a('s_add_u32 s90, s90, s91')
    a(f's_add_u32 s90, s90, {WS_CP}')
    red4_addr(4096)
    frag_addr(50)
    vF(51)
    a('s_lshl_b32 s98, s7, 12')
    a('s_lshl_b32 s91, s63, 8')
    a('s_add_u32 s98, s98, s91')
    a(f's_add_u32 s98, s98, {WS_HP}')

    def d_loads():
        for i in range(4):
            a(f'buffer_load_dwordx4 {vr(D + 4 * i, 4)}, v51, {S(R_WS)}, s90 offen offset:{1024 * i} sc1')
    poll(d_loads, lambda: chk_sentinel(range(D, D + 16), 10))
    stamp(8)
    for t in range(4):
        for e in range(2):
            mfma16(AC + 4 * e, OPD + 8 * t + 4 * e, D + 4 * t, t == 0)
    for i in range(8):
        dpp('v_add_f32', AC + i, AC + i, AC + i, 'row_ror:4')
    for e in range(2):
        for j in range(4):
            dpp('v_add_f32', T8 + 2 * j + e, AC + 4 * e + j, AC + 4 * e + j, 'row_ror:8')
    red4_write(T8)
    a('s_cmp_lg_u32 s3, 0')
    a('s_cbranch_scc1 L_end')
    red4_read(D)
    a(f'v_cvt_pk_bf16_f32 v{D}, v{D}, v{D + 1}')
    a(f'v_cvt_pk_bf16_f32 v{D + 1}, v{D + 2}, v{D + 3}')
    a(f'buffer_store_dwordx2 {vr(D, 2)}, v50, {S(R_WS)}, s98 offen sc1')
    if o.stamps:
        stamp(9)
        dump_stamps(10, 0)
    a('s_endpgm')
    a.label('L_aux_hi_end')
    if o.stamps:
        a('s_cmp_lg_u32 s3, 4')
        a('s_cbranch_scc1 L_end')
        dump_stamps(7, 1)
    a('s_endpgm')

    a.label('L_att')
    a('s_bfe_u32 s4, s2, 0x20001')
    a('s_bfe_u32 s5, s2, 0x40003')
    a('s_lshl_b32 s5, s5, 1')
    a('s_and_b32 s6, s2, 1')
    a('s_add_u32 s5, s5, s6')
    a('s_cmp_lt_u32 s3, 4')
    a('s_cbranch_scc1 L_comp')
    a('s_sub_u32 s3, s3, 4')
    VX = 12
    for j in range(16):
        a(f'v_xor_b32 v{VX + j}, {16 * j}, v2')
    a('s_lshl_b32 s90, s4, 23')
    a('s_lshl_b32 s91, s5, 18')
    a('s_add_u32 s90, s90, s91')
    a('s_lshl_b32 s91, s3, 14')
    a('s_add_u32 s90, s90, s91')

    def dma_tile(T, window, already):
        a(f's_add_u32 m0, s91, {(T % 2) * 65536}')
        for j in range(16):
            if window and already + j >= window:
                a(f's_waitcnt vmcnt({window - 1})')
            a(f'buffer_load_dwordx4 v{VX + j}, {S(R_CKV)}, s90 offen offset:{(j % 4) * 1024} nt lds')
            if j % 4 == 3:
                a(f's_add_u32 s90, s90, {4096 if j < 15 else 4096 + 49152}')
                if j < 15:
                    a('s_add_u32 m0, m0, 4096')
    dma_tile(0, o.window, 0)
    dma_tile(1, o.window, 16)
    stamp(1)
    get_tag()
    HP_, HL, HA_, HFL = 32, 28, 29, 30
    a(f'v_add_u32 v5, {L_P}, v2')
    a('v_and_b32 v6, 31, v1')
    a('v_lshlrev_b32 v6, 2, v6')
    a(f'v_add_u32 v6, {L_ALPHA}, v6')
    a(f'v_mov_b32 v7, {L_FLAG}')
    a(f'v_mov_b32 v{HL}, 0')
    a('s_mov_b32 s96, 0x3f803f80')

    def h_lsum():
        lb = a.uid('nol')
        a('s_cmp_lg_u32 s3, 0')
        a(f's_cbranch_scc1 {lb}')
        for ks in range(4):
            a(f'ds_read_b128 {vr(HP_ + 4 * ks, 4)}, v5 offset:{1024 * ks}')
        for ks in range(4):
            a(f's_waitcnt lgkmcnt({3 - ks})')
            for i in range(4):
                a(f'v_dot2_f32_bf16 v{HL}, v{HP_ + 4 * ks + i}, s96, v{HL}')
        a.label(lb)

    def h_soft():
        lb = a.uid('hfast')
        a('s_barrier')
        a(f'ds_read_b32 v{HFL}, v7')
        a('s_waitcnt lgkmcnt(0)')
        a(f'v_readfirstlane_b32 s92, v{HFL}')
        a('s_cmp_eq_u32 s92, 0')
        a(f's_cbranch_scc1 {lb}')
        a('s_barrier')
        a('s_barrier')
        a(f'ds_read_b32 v{HA_}, v6')
        a('s_waitcnt lgkmcnt(0)')
        a(f'v_mul_f32 v{HL}, v{HL}, v{HA_}')
        a.label(lb)
        h_lsum()
    if not o.window or o.window > 16:
        a('s_waitcnt vmcnt(16)')
    a('s_barrier')
    stamp(2)
    a('s_barrier')
    a('s_barrier')
    a('s_barrier')
    h_lsum()
    a('s_waitcnt vmcnt(0)')
    a('s_barrier')
    a('s_barrier')
    stamp(3)
    dma_tile(2, 0, 0)
    h_soft()
    a('s_barrier')
    stamp(4)
    dma_tile(3, 0, 0)
    a('s_waitcnt vmcnt(16)')
    stamp(5)
    a('s_barrier')
    h_soft()
    a('s_barrier')
    a('s_mov_b32 s6, 0')
    a('s_mov_b32 s7, 0')
    a('s_mov_b32 s99, 0')
    a('v_lshlrev_b32 v8, 13, v3')
    a('v_lshl_add_u32 v8, v11, 2, v8')
    a('s_cmp_lt_u32 s2, 176')
    a('s_cbranch_scc1 L_selE')
    a('s_cmp_lt_u32 s2, 192')
    a('s_cbranch_scc1 L_seldone')
    a('s_cmp_lt_u32 s2, 208')
    a('s_cbranch_scc0 L_seldone')
    a('s_mov_b32 s6, 2')
    a('s_and_b32 s7, s2, 7')
    a('s_lshl_b32 s7, s7, 1')
    a('s_bfe_u32 s90, s2, 0x10003')
    a('s_add_u32 s7, s7, s90')
    a('s_lshl_b32 s99, s3, 15')
    a('s_lshl_b32 s91, s7, 6')
    a('s_add_u32 s99, s99, s91')
    a('s_branch L_seldone')
    a.label('L_selE')
    a('s_and_b32 s7, s2, 7')
    a('s_mul_i32 s7, s7, 6')
    a('s_bfe_u32 s90, s2, 0x30003')
    a('s_add_u32 s7, s7, s90')
    a('s_cmp_ge_u32 s7, 43')
    a('s_cbranch_scc1 L_seldone')
    a('s_mov_b32 s6, 1')
    a(f'v_mul_u32_u24 v8, {8 * 2752}, v3')
    a('v_lshl_add_u32 v8, v11, 2, v8')
    a(f's_mul_i32 s99, s3, {128 * 2752}')
    a('s_lshl_b32 s91, s7, 6')
    a('s_add_u32 s99, s99, s91')
    a.label('L_seldone')
    a('s_waitcnt vmcnt(0)')
    stamp(6)
    a('s_barrier')
    a('s_lshl_b32 s90, s4, 14')
    a('s_lshl_b32 s91, s5, 9')
    a('s_add_u32 s90, s90, s91')
    a(f's_add_u32 s90, s90, {WS_ST}')
    a('v_mov_b32 v19, 0')
    h_soft()
    stamp(7)
    a('s_cmp_lg_u32 s3, 0')
    a('s_cbranch_scc1 L_nostat')
    a(f'ds_read_b32 v16, v6 offset:{L_MFIN - L_ALPHA}')
    a(f'v_mov_b32 v17, v{HL}')
    a(f'v_permlane32_swap_b32 v{HL}, v17')
    a(f'v_add_f32 v17, v17, v{HL}')
    a('s_waitcnt lgkmcnt(0)')
    a(f'v_bitop3_b32 v18, v16, v17, s{S_TAG} {XOR3}')
    ex(0xffffffff)
    a(f'buffer_store_dwordx4 v[16:19], v2, {S(R_WS)}, s90 offen sc1')
    ex(-1)
    a.label('L_nostat')
    a('s_cmp_eq_u32 s6, 1')
    a('s_cbranch_scc1 L_E')
    a('s_cmp_eq_u32 s6, 2')
    a('s_cbranch_scc1 L_F')
    a('s_branch L_hend')

    RAW2, OP = 72, 64
    a.label('L_E')
    H, XR, HA, X4, EA = 16, 12, 140, 148, 164
    a('v_bfe_u32 v5, v1, 2, 2')
    a('v_lshlrev_b32 v6, 6, v5')
    a('v_lshl_add_u32 v6, v4, 10, v6')
    a('v_lshl_add_u32 v6, v3, 4, v6')
    a('s_lshl_b32 s90, s3, 8')
    a(f'buffer_load_dwordx4 {vr(XR, 4)}, v6, {S(R_X)}, s90 offen')
    for n in range(8):
        mat, t = n // 4, n % 4
        if n == 7:
            a('s_waitcnt vmcnt(40)')
        for i in range(8):
            a(f's_add_u32 s92, s99, {(32 * t + i) * 2752}')
            a(f'buffer_load_dword v{RAW2 + 8 * n + i}, v8, {S(R_WG if mat == 0 else R_WU)}, s92 offen nt')
    a('v_lshlrev_b32 v48, 8, v4')
    a('v_lshl_add_u32 v48, v3, 6, v48')
    a('s_lshl_b32 s91, s3, 10')
    a('v_add_u32 v48, s91, v48')
    a('v_lshlrev_b32 v49, 3, v4')
    a('v_lshl_add_u32 v49, v3, 2, v49')
    a('s_lshl_b32 s91, s3, 5')
    a('s_add_u32 s91, s91, 4096')
    a('v_add_u32 v49, s91, v49')
    a('s_and_b32 s91, s3, 1')
    a('s_lshl_b32 s91, s91, 6')
    a('v_add_u32 v50, s91, v1')
    a('v_lshrrev_b32 v51, 3, v50')
    a('v_and_b32 v52, 7, v50')
    a('v_lshlrev_b32 v52, 2, v52')
    a('v_lshl_add_u32 v52, v51, 6, v52')
    a('v_lshrrev_b32 v53, 5, v50')
    a('v_lshlrev_b32 v54, 4, v51')
    a('v_lshlrev_b32 v53, 3, v53')
    a('v_add_u32 v53, 4096, v53')
    vF(55)
    a('s_lshl_b32 s98, s7, 8')
    a('s_lshl_b32 s90, s3, 10')
    a(f's_add_u32 s90, s90, {WS_HP}')
    a('s_mov_b32 s94, 0x3f80')
    a('s_mov_b32 s95, 0x3f800000')
    a('s_mov_b32 s96, 0x3f803f80')
    for i in range(4):
        a(f'v_mov_b32 v{X4 + i}, s96')
    a('s_waitcnt vmcnt(0)')
    for n in range(8):
        perm8(OP + 8 * n, RAW2 + 8 * n)
    for t in range(4):
        for k in range(4):
            mfma16(EA + 4 * k, OP + 32 * (k // 2) + 8 * t + 4 * (k % 2), X4, t == 0)

    def e_lds_write():
        ex(M4)
        for k in range(4):
            a(f'ds_write_b128 v48, {vr(EA + 4 * k, 4)} offset:{16 * k}')
    e_lds_write()
    ex(-1)
    a('s_waitcnt lgkmcnt(0)')
    a('s_barrier')
    for w in range(4):
        a(f'ds_read2_b32 v[{H + 2 * w}:{H + 2 * w + 1}], v52 offset0:0 offset1:8' if w == 0 else
          f'ds_read_b32 v{H + 2 * w}, v52 offset:{1024 * w}\nds_read_b32 v{H + 2 * w + 1}, v52 offset:{1024 * w + 32}')
    a('s_waitcnt lgkmcnt(0)')
    a(f'v_add_f32 v56, v{H}, v{H + 2}')
    a(f'v_add_f32 v57, v{H + 1}, v{H + 3}')
    for w in range(2, 4):
        a(f'v_add_f32 v56, v56, v{H + 2 * w}')
        a(f'v_add_f32 v57, v57, v{H + 2 * w + 1}')
    a('s_barrier')
    for i in range(4):
        a(f'v_lshlrev_b32 v{132 + 2 * i}, 16, v{XR + i}')
        a(f'v_and_b32 v{133 + 2 * i}, s{S_MASK}, v{XR + i}')
    stamp(8)

    def e_loads():
        a('s_mov_b32 s92, s90')
        for r in range(8):
            a(f'buffer_load_dwordx4 {vr(H + 4 * r, 4)}, v55, {S(R_WS)}, s92 offen sc1')
            if r < 7:
                a('s_add_u32 s92, s92, 4096')
    poll(e_loads, lambda: chk_sentinel(range(H, H + 32), 10))
    stamp(9)
    for r in range(8):
        for u in range(4):
            for e in range(2):
                c = f'v{132 + 2 * u + e}' if r == 0 else f'v{HA + 2 * u + e}'
                a(f'v_dot2_f32_bf16 v{HA + 2 * u + e}, v{H + 4 * r + u}, s{94 + e}, {c}')
    for i in range(4):
        a(f'v_cvt_pk_bf16_f32 v{X4 + i}, v{HA + 2 * i}, v{HA + 2 * i + 1}')
    for t in range(4):
        if t < 3:
            for i in range(4):
                a(f'v_mov_b32_dpp v{X4 + 4 * (t + 1) + i}, v{X4 + i} row_shl:{4 * (t + 1)} row_mask:0xf bank_mask:0xf bound_ctrl:0')
        for k in range(4):
            mfma16(EA + 4 * k, OP + 32 * (k // 2) + 8 * t + 4 * (k % 2), X4 + 4 * t, t == 0)
        if t == 0:
            for i in range(4):
                a(f'v_dot2_f32_bf16 v9, v{X4 + i}, s96, {"0" if i == 0 else "v9"}')
                a(f'v_dot2_f32_bf16 v10, v{X4 + i}, v{X4 + i}, {"0" if i == 0 else "v10"}')
        if t == 1:
            for c in ('row_ror:4', 'row_ror:8'):
                dpp('v_add_f32', 9, 9, 9, c)
                dpp('v_add_f32', 10, 10, 10, c)
        if t == 2:
            a('v_permlane16_swap_b32 v9, v10')
            a('v_add_f32 v9, v9, v10')
            swap_step('v_add_f32', 9, 10, 32)
    ex(0x000f000f)
    a('ds_write_b32 v49, v9')
    e_lds_write()
    ex(-1)
    a('s_waitcnt lgkmcnt(0)')
    a('s_barrier')
    a('s_cmp_ge_u32 s3, 2')
    a('s_cbranch_scc1 L_end')
    for w in range(4):
        a(f'ds_read_b64 v[{H + 8 + 2 * w}:{H + 9 + 2 * w}], v53 offset:{32 * w}')
    for w in range(4):
        a(f'ds_read_b32 v{H + 2 * w}, v52 offset:{1024 * w}')
        a(f'ds_read_b32 v{H + 2 * w + 1}, v52 offset:{1024 * w + 32}')
    a('s_waitcnt lgkmcnt(8)')
    for w in range(1, 4):
        a(f'v_add_f32 v{H + 8}, v{H + 8}, v{H + 8 + 2 * w}')
        a(f'v_add_f32 v{H + 9}, v{H + 9}, v{H + 9 + 2 * w}')
    MU, VA = H + 8, H + 9
    a(f'v_mul_f32 v{MU}, 0x3b000000, v{MU}')
    a(f'v_mul_f32 v{VA}, 0x3b000000, v{VA}')
    a(f'v_fma_f32 v{VA}, -v{MU}, v{MU}, v{VA}')
    a(f'v_max_f32 v{VA}, 0, v{VA}')
    a(f'v_add_f32 v{VA}, 0x3727c5ac, v{VA}')
    a(f'v_rsq_f32 v{VA}, v{VA}')
    a('s_waitcnt lgkmcnt(0)')
    for w in range(1, 4):
        a(f'v_add_f32 v{H}, v{H}, v{H + 2 * w}')
        a(f'v_add_f32 v{H + 1}, v{H + 1}, v{H + 2 * w + 1}')
    a(f'v_fma_f32 v16, -v{MU}, v56, v16')
    a(f'v_fma_f32 v17, -v{MU}, v57, v17')
    a(f'v_mul_f32 v16, v16, v{VA}')
    a(f'v_mul_f32 v17, v17, v{VA}')
    a('v_mul_f32 v18, v16, v16')
    a('v_mov_b32 v19, 1.0')
    a('v_fmac_f32 v19, 0x3d372713, v18')
    a('v_mul_f32 v19, v19, v16')
    a(f'v_mul_f32 v19, {GELU_BITS}, v19')
    a('v_exp_f32 v19, v19')
    a('v_mul_f32 v16, v16, v17')
    a('v_add_f32 v19, 1.0, v19')
    a('v_rcp_f32 v19, v19')
    a('v_mul_f32 v16, v16, v19')
    a('v_mov_b32_dpp v17, v16 row_shl:4 row_mask:0xf bank_mask:0xf')
    a('v_cvt_pk_bf16_f32 v16, v16, v17')
    a('v_mov_b32_dpp v17, v16 quad_perm:[1,1,1,1] row_mask:0xf bank_mask:0xf')
    a('v_mov_b32_dpp v18, v16 quad_perm:[2,2,2,2] row_mask:0xf bank_mask:0xf')
    a('v_mov_b32_dpp v19, v16 quad_perm:[3,3,3,3] row_mask:0xf bank_mask:0xf')
    ex(0x0101010101010101)
    a(f'buffer_store_dwordx4 v[16:19], v54, {S(R_ACT)}, s98 offen sc1')
    a('s_branch L_hend')

    a.label('L_F')
    X, HR, FA = 160, 16, 40
    for n in range(11):
        if n == 7:
            a('s_waitcnt vmcnt(24)')
        for i in range(8):
            if i % 4 == 0:
                a(f's_add_u32 s92, s99, {(128 * n + i) * 1024}')
            a(f'buffer_load_dword v{RAW2 + 8 * n + i}, v8, {S(R_WD)}, s92 offen offset:{(i % 4) * 1024} nt')
    red4_addr(0)
    frag_addr(50)
    a('v_bfe_u32 v51, v1, 3, 2')
    a('v_lshlrev_b32 v51, 10, v51')
    a('v_and_b32 v9, 7, v1')
    a('v_lshl_add_u32 v51, v9, 3, v51')
    a('s_lshl_b32 s98, s7, 6')
    a(f'buffer_load_dwordx2 v[12:13], v51, {S(R_X)}, s98 offen')
    a('s_lshl_b32 s90, s7, 8')
    a(f's_add_u32 s90, s90, {WS_HP}')
    a('s_mov_b32 s94, 0x3f80')
    a('s_mov_b32 s95, 0x3f800000')
    a('s_waitcnt vmcnt(0)')
    for n in range(11):
        perm8(OP + 8 * n, RAW2 + 8 * n)
    stamp(8)

    def h_loads():
        a('s_mov_b32 s92, s90')
        for r in range(8):
            a(f'buffer_load_dwordx2 {vr(HR + 2 * r, 2)}, v50, {S(R_WS)}, s92 offen sc1')
            if r < 7:
                a('s_add_u32 s92, s92, 4096')
    poll(h_loads, lambda: chk_sentinel(range(HR, HR + 16), 10), o.sleep_long)
    for u in range(2):
        for e in range(2):
            a(f'v_dot2_f32_bf16 v{32 + 2 * u + e}, v{12 + u}, s{94 + e}, 0')
    for r in range(8):
        for u in range(2):
            for e in range(2):
                a(f'v_dot2_f32_bf16 v{32 + 2 * u + e}, v{HR + 2 * r + u}, s{94 + e}, v{32 + 2 * u + e}')
    for u in range(2):
        a(f'v_cvt_pk_bf16_f32 v12, v{32 + 2 * u}, v{33 + 2 * u}')
        a(f'v_lshlrev_b32 v{32 + 2 * u}, 16, v12')
        a(f'v_and_b32 v{33 + 2 * u}, s{S_MASK}, v12')
    a('v_lshlrev_b32 v7, 6, v4')
    a('v_lshl_add_u32 v7, v3, 4, v7')
    a('s_lshl_b32 s90, s3, 8')
    a('s_add_u32 s91, s90, 4096')
    a('s_add_u32 s92, s90, 8192')

    def f_loads():
        for n in range(11):
            a(f'buffer_load_dwordx4 {vr(X + 4 * n, 4)}, v7, {S(R_ACT)}, s{90 + n // 4} offen offset:{1024 * (n % 4)} sc1')
    poll(f_loads, lambda: chk_sentinel(range(X, X + 44), 10))
    stamp(9)
    for n in range(11):
        for e in range(2):
            mfma16(FA + 4 * e, OP + 8 * n + 4 * e, X + 4 * n, n == 0)
    for e in range(2):
        for j in range(4):
            a(f'v_mov_b32 v{T8 + 2 * j + e}, v{FA + 4 * e + j}')
    red4_write(T8)
    a('s_cmp_lg_u32 s3, 0')
    a('s_cbranch_scc1 L_end')
    red4_read(16)
    for i in range(4):
        a(f'v_add_f32 v{16 + i}, v{16 + i}, v{32 + i}')
    a('v_cvt_pk_bf16_f32 v16, v16, v17')
    a('v_cvt_pk_bf16_f32 v17, v18, v19')
    a(f'buffer_store_dwordx2 v[16:17], v51, {S(R_OUT)}, s98 offen')
    a('s_cmp_lg_u32 s7, 0')
    a('s_cbranch_scc1 L_hend')
    ex(1)
    a(f'v_mov_b32 v12, s{S_TAG}')
    a(f's_mov_b32 s90, {WS_EPOCH}')
    a(f'buffer_store_dword v12, off, {S(R_WS)}, s90')
    a.label('L_hend')
    if o.stamps:
        stamp(10)
        a('s_cmp_lg_u32 s3, 0')
        a('s_cbranch_scc1 L_end')
        dump_stamps(11, 1)
    a('s_endpgm')

    a.label('L_comp')
    O_, QA = 64, 128
    vA, vT, vMW, vMR, vPW, vPR, vAR = 0, 5, 6, 7, 8, 9, 10
    TA = (1, 2, 3, 4)
    NM, FL, vFL = 12, 14, 15
    PF, AL, BF = 16, 32, 48
    AF, AT, SS = 32, 48, 52
    a('s_lshl_b32 s90, s4, 15')
    a('s_lshl_b32 s91, s3, 13')
    a('s_add_u32 s90, s90, s91')
    a(f's_add_u32 s90, s90, {WS_QA}')
    a('s_add_u32 s92, s90, 4096')
    a('s_lshl_b32 s93, s3, 12')
    a('s_lshl_b32 s94, s4, 5')
    a('s_add_u32 s93, s93, s94')
    a(f's_add_u32 s93, s93, {WS_QAH}')
    a('v_lshrrev_b32 v16, 1, v1')
    a('v_lshlrev_b32 v16, 7, v16')
    a('v_and_b32 v17, 1, v1')
    a('v_lshl_add_u32 v16, v17, 4, v16')
    a('s_and_b32 s94, s3, 1')
    a('s_lshl_b32 s94, s94, 7')
    a('v_xor_b32 v17, s94, v2')
    a(f's_add_u32 s91, s91, {SCR}')
    a('v_add_u32 v17, s91, v17')
    a('v_mul_u32_u24 v18, 1040, v11')
    a('v_lshl_add_u32 v18, v3, 8, v18')
    a(f'v_add_u32 v18, {SCR}, v18')
    a('v_bfe_u32 v20, v1, 2, 2')
    a('v_lshl_add_u32 v21, v4, 2, v20')
    a(f'v_mul_u32_u24 v{vA}, 1040, v21')
    a(f'v_lshl_add_u32 v{vA}, v3, 8, v{vA}')
    a('s_lshl_b32 s95, s3, 14')
    a(f'v_add_u32 v{vA}, s95, v{vA}')
    a('v_lshrrev_b32 v22, 5, v1')
    a('v_lshlrev_b32 v21, 2, v20')
    a('v_lshl_add_u32 v21, v22, 1, v21')
    a('v_and_b32 v23, 1, v3')
    a('v_lshlrev_b32 v23, 1, v23')
    a('v_bfe_u32 v24, v1, 1, 1')
    a('v_add_u32 v23, v23, v24')
    a('v_xor_b32 v23, v23, v21')
    a(f'v_lshlrev_b32 v{vT}, 10, v21')
    a(f'v_lshl_add_u32 v{vT}, v23, 4, v{vT}')
    a('v_and_b32 v24, 1, v1')
    a(f'v_lshl_add_u32 v{vT}, v24, 3, v{vT}')
    a('s_lshl_b32 s95, s3, 8')
    a(f'v_add_u32 v{vT}, s95, v{vT}')
    a('v_and_b32 v24, 31, v1')
    a('s_lshl_b32 s95, s3, 2')
    a(f's_add_u32 s95, s95, {L_MAX}')
    a(f'v_lshl_add_u32 v{vMW}, v24, 4, s95')
    a(f'v_lshlrev_b32 v{vMR}, 4, v11')
    a(f'v_add_u32 v{vMR}, {L_MAX}, v{vMR}')
    a(f'v_lshlrev_b32 v{vPW}, 9, v22')
    a(f'v_lshl_add_u32 v{vPW}, v11, 4, v{vPW}')
    a('v_and_b32 v24, 1, v3')
    a(f'v_lshl_add_u32 v{vPW}, v24, 3, v{vPW}')
    a('s_lshl_b32 s95, s3, 10')
    a(f's_add_u32 s95, s95, {L_P}')
    a(f'v_add_u32 v{vPW}, s95, v{vPW}')
    a(f'v_add_u32 v{vPR}, {L_P}, v2')
    a(f'v_lshlrev_b32 v{vAR}, 4, v22')
    a(f'v_add_u32 v{vAR}, {L_ALPHA}, v{vAR}')
    a('v_lshlrev_b32 v11, 2, v11')
    a(f'v_add_u32 v11, {L_ALPHA}, v11')
    for i in range(64):
        a(f'v_mov_b32 v{O_ + i}, 0')
    a(f'v_mov_b32 v{NM}, 0')
    a(f'v_mov_b32 v{NM + 1}, 0')
    a(f'v_mov_b32 v{FL}, 0xff800000')
    a(f'v_mov_b32 v{vFL}, {L_FLAG}')
    a(f's_mov_b32 s98, {f32bits(float(o.thr))}')
    get_tag()
    stamp(1)
    HR_ = 24

    def h_check():
        a(f'v_bitop3_b32 v19, v{HR_}, v{HR_ + 1}, s{S_TAG} {XOR3}')
        a(f'v_bitop3_b32 v20, v{HR_ + 2}, v{HR_ + 3}, s{S_TAG} {XOR3}')
        a('v_or_b32 v19, v19, v20')
        a('v_cmp_ne_u32 vcc, 0, v19')
    poll(lambda: a(f'buffer_load_dwordx4 {vr(HR_, 4)}, v16, {S(R_WS)}, s93 offen sc1'), h_check, o.sleep_long)
    stamp(8)

    def q_loads():
        for i in range(8):
            a(f'buffer_load_dwordx4 {vr(QA + 4 * i, 4)}, v2, {S(R_WS)}, s{90 if i < 4 else 92} offen offset:{1024 * (i % 4)} sc1')

    def q_check():
        for i in range(8):
            a(f'v_xor_b32 v{28 + i % 2}, {16 * i}, v17')
            a(f'ds_write_b128 v{28 + i % 2}, {vr(QA + 4 * i, 4)} offset:{1024 * i}')
        xor_chain(19, list(range(QA, QA + 32)) + [HR_, HR_ + 2])
        for c in ('quad_perm:[1,0,3,2]', 'quad_perm:[2,3,0,1]', 'row_ror:4', 'row_ror:8'):
            dpp('v_xor_b32', 19, 19, 19, c)
        swap_step('v_xor_b32', 19, 20, 16)
        swap_step('v_xor_b32', 19, 20, 32)
        a('v_cmp_ne_u32 vcc, 0, v19')
    poll(q_loads, q_check)
    stamp(2)
    a('s_mov_b32 s97, 0')
    a('s_waitcnt lgkmcnt(0)')
    a('s_barrier')
    stamp(3)

    def a_read(st):
        a(f'v_xor_b32 v{AT + st % 4}, {16 * st}, v{vA}')
        a(f'ds_read_b128 {vr(AF + 4 * (st % 4), 4)}, v{AT + st % 4}')

    def q_read(st):
        a(f'v_xor_b32 v{28 + st % 4}, {16 * st}, v18')
        for hh in range(2):
            a(f'ds_read_b128 {vr(QA + 64 * hh + 4 * st, 4)}, v{28 + st % 4} offset:{16384 * hh}')

    def s_mfma(st, zero):
        for hh in range(2):
            mfma16(SS + 4 * hh, AF + 4 * (st % 4), QA + 64 * hh + 4 * st, zero and st == 0)
    for st in range(3):
        q_read(st)
        a_read(st)
    for st in range(16):
        if st + 3 < 16:
            q_read(st + 3)
            a_read(st + 3)
        a(f's_waitcnt lgkmcnt({3 * min(3, 15 - st)})')
        s_mfma(st, True)
    a(f'v_xor_b32 v{vA}, 0x10000, v{vA}')
    a('s_barrier')
    a.label('L_exact')
    for hh in range(2):
        a(f'v_max3_f32 v{60 + hh}, v{SS + 4 * hh}, v{SS + 4 * hh + 1}, v{SS + 4 * hh + 2}')
        a(f'v_max_f32 v{60 + hh}, v{60 + hh}, v{SS + 4 * hh + 3}')
    a('v_permlane16_swap_b32 v60, v61')
    a('v_max_f32 v60, v60, v61')
    swap_step('v_max_f32', 60, 61, 32)
    a(f'ds_write_b32 v{vMW}, v60')
    a('s_waitcnt lgkmcnt(0)')
    a('s_barrier')
    a(f'ds_read_b128 v[16:19], v{vMR}')
    a(f'ds_read_b128 v[20:23], v{vMR} offset:256')
    a('v_mov_b32 v28, 0')
    a(f'ds_write_b32 v{vFL}, v28')
    for hh in range(2):
        a(f's_waitcnt lgkmcnt({2 - hh})')
        a(f'v_max3_f32 v{60 + hh}, v{16 + 4 * hh}, v{17 + 4 * hh}, v{FL}')
        a(f'v_max3_f32 v{60 + hh}, v{18 + 4 * hh}, v{19 + 4 * hh}, v{60 + hh}')
        for j in range(4):
            a(f'v_sub_f32 v{SS + 4 * hh + j}, v{SS + 4 * hh + j}, v{60 + hh}')
        for j in range(4):
            a(f'v_exp_f32 v{SS + 4 * hh + j}, v{SS + 4 * hh + j}')
        a(f'v_max_f32 v{62 + hh}, 0, v{60 + hh}')
        a(f'v_cvt_pk_bf16_f32 v{24 + 2 * hh}, v{SS + 4 * hh}, v{SS + 4 * hh + 1}')
        a(f'v_cvt_pk_bf16_f32 v{25 + 2 * hh}, v{SS + 4 * hh + 2}, v{SS + 4 * hh + 3}')
        a(f'v_exp_f32 v{62 + hh}, -v{62 + hh}')
        a(f'ds_write_b64 v{vPW}, v[{24 + 2 * hh}:{25 + 2 * hh}] offset:{256 * hh}')
        a(f'v_sub_f32 v{NM + hh}, v{NM + hh}, v{60 + hh}')
        a(f'v_sub_f32 v{60 + hh}, 0, v{NM + hh}')
    a('ds_write2_b32 v11, v62, v63 offset0:0 offset1:16')
    a('ds_write2_b32 v11, v60, v61 offset0:32 offset1:48')
    a(f'v_mov_b32 v{FL}, 0')
    a(f'v_mov_b32 v{TA[0]}, v{vT}')
    a(f'v_xor_b32 v{TA[1]}, 16, v{vT}')
    a('s_waitcnt lgkmcnt(0)')
    a('s_barrier')
    a('v_mov_b32 v32, 0')
    a('s_cmp_eq_u32 s97, 0')
    a('s_cbranch_scc1 L_pvload')
    for jq in range(4):
        a(f'ds_read_b128 {vr(AL + 4 * jq, 4)}, v{vAR} offset:{32 * jq}')
    a('s_waitcnt lgkmcnt(0)')
    for blk in range(4):
        for j in range(16):
            a(f'v_mul_f32 v{O_ + 16 * blk + j}, v{O_ + 16 * blk + j}, v{AL + j}')
    a('v_mov_b32 v32, 0')
    a('s_branch L_pvload')
    a.label('L_flag')
    a('v_mov_b32 v28, 1')
    a(f'ds_write_b32 v{vFL}, v28')
    a('s_branch L_flagged')
    a.label('L_tile')
    for st in range(3):
        a_read(st)
    for hh in range(2):
        for j in range(4):
            a(f'v_mov_b32 v{SS + 4 * hh + j}, v{NM + hh}')
    for st in range(16):
        if st + 3 < 16:
            a_read(st + 3)
        a(f's_waitcnt lgkmcnt({min(3, 15 - st)})')
        s_mfma(st, False)
    a(f'v_xor_b32 v{vA}, 0x10000, v{vA}')
    a(f'v_mov_b32 v{TA[0]}, v{vT}')
    a(f'v_xor_b32 v{TA[1]}, 16, v{vT}')
    for hh in range(2):
        for j in range(4):
            a(f'v_exp_f32 v{16 + 4 * hh + j}, v{SS + 4 * hh + j}')
        a(f'v_cvt_pk_bf16_f32 v{24 + 2 * hh}, v{16 + 4 * hh}, v{17 + 4 * hh}')
        a(f'v_cvt_pk_bf16_f32 v{25 + 2 * hh}, v{18 + 4 * hh}, v{19 + 4 * hh}')
        a(f'ds_write_b64 v{vPW}, v[{24 + 2 * hh}:{25 + 2 * hh}] offset:{256 * hh}')
    a(f'v_max3_f32 v60, v{SS}, v{SS + 1}, v{SS + 2}')
    a(f'v_max3_f32 v61, v{SS + 3}, v{SS + 4}, v{SS + 5}')
    a(f'v_max3_f32 v60, v{SS + 6}, v{SS + 7}, v60')
    a('v_max_f32 v60, v60, v61')
    a('v_cmp_lt_f32 vcc, s98, v60')
    a('s_cbranch_vccnz L_flag')
    a.label('L_flagged')
    a('s_waitcnt lgkmcnt(0)')
    a('s_barrier')
    a(f'ds_read_b32 v32, v{vFL}')
    a.label('L_pvload')
    for ks in range(4):
        a(f'ds_read_b128 {vr(PF + 4 * ks, 4)}, v{vPR} offset:{1024 * ks}')
    seq = [(blk, ks) for blk in range(4) for ks in range(4)]
    BF2 = (36, 40, 44, 48)

    def rd(n):
        blk, ks = seq[n]
        if ks == 0 and blk > 0:
            a(f'v_xor_b32 v{TA[2 * (blk % 2)]}, {64 * blk}, v{vT}')
            a(f'v_xor_b32 v{TA[2 * (blk % 2) + 1]}, {64 * blk + 16}, v{vT}')
        bf = BF2[n % 4]
        a(f'ds_read_b64_tr_b16 {vr(bf, 2)}, v{TA[2 * (blk % 2)]} offset:{16384 * ks}')
        a(f'ds_read_b64_tr_b16 {vr(bf + 2, 2)}, v{TA[2 * (blk % 2) + 1]} offset:{16384 * ks + 1024}')
    for n in range(3):
        rd(n)
    a('s_waitcnt lgkmcnt(10)')
    a('v_readfirstlane_b32 s94, v32')
    a('s_cmp_eq_u32 s94, 1')
    a('s_cbranch_scc1 L_redo')
    for n in range(16):
        blk, ks = seq[n]
        if n + 3 < 16:
            a('s_waitcnt lgkmcnt(4)')
        else:
            a(f's_waitcnt lgkmcnt({2 * (15 - n)})')
        a(f'v_mfma_f32_32x32x16_bf16 {vr(O_ + 16 * blk, 16)}, {vr(PF + 4 * ks, 4)}, {vr(BF2[n % 4], 4)}, {vr(O_ + 16 * blk, 16)}')
        if n + 3 < 16:
            rd(n + 3)
    a(f'v_xor_b32 v{vT}, 0x10000, v{vT}')
    a('s_cmp_eq_u32 s97, 3')
    a('s_cbranch_scc1 L_fin ;noflush')
    a('s_add_u32 s97, s97, 1')
    a('s_barrier')
    a('s_barrier')
    a('s_branch L_tile ;noflush')
    a.label('L_redo')
    a('s_waitcnt lgkmcnt(0)')
    a('s_branch L_exact')
    a.label('L_fin')
    stamp(4)
    a('v_mbcnt_lo_u32_b32 v1, -1, 0')
    a('v_mbcnt_hi_u32_b32 v1, -1, v1')
    a('v_lshrrev_b32 v2, 5, v1')
    a('v_lshlrev_b32 v2, 2, v2')
    a('v_bfe_u32 v3, v1, 4, 1')
    a('v_add_u32 v2, v2, v3')
    a('v_and_b32 v3, 15, v1')
    a('v_lshlrev_b32 v4, 17, v2')
    a('v_lshl_add_u32 v4, v3, 4, v4')
    a('s_lshl_b32 s90, s3, 2')
    a('s_add_u32 s90, s90, s4')
    a('s_lshl_b32 s91, s90, 13')
    a('s_lshl_b32 s92, s5, 8')
    a('s_add_u32 s91, s91, s92')
    a(f's_add_u32 s91, s91, {WS_OP}')
    PK, XX = 128, 16
    for ap in range(8):
        t = PK + 4 * ap
        j = 2 * ap
        a(f'v_cvt_pk_bf16_f32 v{t}, v{O_ + j}, v{O_ + 16 + j}')
        a(f'v_cvt_pk_bf16_f32 v{t + 1}, v{O_ + 32 + j}, v{O_ + 48 + j}')
        a(f'v_cvt_pk_bf16_f32 v{t + 2}, v{O_ + j + 1}, v{O_ + 16 + j + 1}')
        a(f'v_cvt_pk_bf16_f32 v{t + 3}, v{O_ + 32 + j + 1}, v{O_ + 48 + j + 1}')
        a(f's_add_u32 s92, s91, {(8 * (ap // 2) + 2 * (ap % 2)) * 131072}')
        a(f'v_permlane16_swap_b32 v{t}, v{t + 2}')
        a(f'v_permlane16_swap_b32 v{t + 1}, v{t + 3}')
        a(f'buffer_store_dwordx4 {vr(t, 4)}, v4, {S(R_WS)}, s92 offen sc1')
    stamp(5)
    for ap in range(8):
        xor_chain(XX + ap, range(PK + 4 * ap, PK + 4 * ap + 4))
    for k in range(4):
        dpp('v_xor_b32', XX + 2 * k, XX + 2 * k, XX + 2 * k, 'row_ror:8', 0x3)
    for k in range(4):
        dpp('v_xor_b32', XX + 2 * k, XX + 2 * k + 1, XX + 2 * k + 1, 'row_ror:8', 0xc)
    for m in range(2):
        dpp('v_xor_b32', XX + 4 * m, XX + 4 * m, XX + 4 * m, 'row_half_mirror', 0x5)
    for m in range(2):
        dpp('v_xor_b32', XX + 4 * m, XX + 4 * m + 2, XX + 4 * m + 2, 'row_half_mirror', 0xa)
    a('v_and_b32 v5, 1, v1')
    a('v_lshlrev_b32 v5, 4, v5')
    a('v_bfe_u32 v6, v1, 2, 1')
    a('v_lshl_add_u32 v5, v6, 3, v5')
    for m in range(2):
        dpp('v_xor_b32', XX + 4 * m, XX + 4 * m, XX + 4 * m, 'quad_perm:[1,0,3,2]')
    a('v_bfe_u32 v6, v1, 3, 1')
    a('v_lshl_add_u32 v5, v6, 1, v5')
    a('v_add_u32 v5, v5, v2')
    a('v_lshlrev_b32 v5, 2, v5')
    for m in range(2):
        dpp('v_xor_b32', XX + 4 * m, XX + 4 * m, XX + 4 * m, 'quad_perm:[2,3,0,1]')
    a('s_lshl_b32 s91, s4, 14')
    a('s_lshl_b32 s92, s5, 9')
    a('s_add_u32 s91, s91, s92')
    a('s_lshl_b32 s92, s3, 7')
    a('s_add_u32 s91, s91, s92')
    a(f's_add_u32 s91, s91, {WS_OPT}')
    a('s_lshl_b32 s92, s5, 1')
    a('s_add_u32 s92, s92, 1')
    a(f's_mul_i32 s92, s92, s{S_TAG}')
    ex(0x2222222222222222)
    a(f'v_mov_b32 v{XX}, v{XX + 4}')
    ex(0x3333333333333333)
    a(f'v_xor_b32 v{XX}, s92, v{XX}')
    a(f'buffer_store_dword v{XX}, v5, {S(R_WS)}, s91 offen sc1')
    if o.stamps:
        stamp(6)
        a('s_waitcnt vmcnt(0)')
        stamp(7)
        a('s_cmp_lg_u32 s3, 0')
        a('s_cbranch_scc1 L_end')
        dump_stamps(9, 0)
    a.label('L_end')
    a('s_endpgm')

    txt = HEADER
    txt += f'; @launch grid=(256,1,1) block=(512,1,1) lds={LDS_TOTAL}\n'
    txt += '.amdgcn_target "amdgcn-amd-amdhsa--gfx950"\n.text\n'
    txt += a.finalize()
    txt += f""".section .rodata,"a"
.p2align 6
.amdhsa_kernel {name}
  .amdhsa_next_free_vgpr 256
  .amdhsa_next_free_sgpr 102
  .amdhsa_accum_offset 256
  .amdhsa_group_segment_fixed_size 0
  .amdhsa_kernarg_size 104
  .amdhsa_user_sgpr_count 2
  .amdhsa_user_sgpr_kernarg_segment_ptr 1
  .amdhsa_system_sgpr_workgroup_id_x 1
.end_amdhsa_kernel
"""
    return txt


if __name__ == '__main__':
    o = Opt()
    for kv in sys.argv[2:]:
        k, v = kv.split('=')
        setattr(o, k, int(v))
    open(sys.argv[1], 'w').write(gen(o))
```

```python
import math, struct
def f32bits(x):
    return '0x%08x' % struct.unpack('<I', struct.pack('<f', x))[0]
WS_QA = 0x00000
WS_QAH = 0x20000
WS_ST = 0x30000
WS_OPT = 0x40000
WS_CLEAN = 0x50000
WS_CP = 0x50000
WS_HP = 0x70000
WS_ACT = 0x78000
WS_EPOCH = 0x81000
WS_STAMP = 0x90000
WS_QP = 0xC0000
WS_OP = 0x100000
WS_REC = 0x500000
WS_END = 0x540000
QSCALE = (128 ** -0.5) * math.log2(math.e)
QSCALE_BITS = f32bits(QSCALE)
GELU_BITS = f32bits(-2.0 * math.sqrt(2.0 / math.pi) * math.log2(math.e))
```

```python
import sys
sys.path.insert(0, 'dev')
from asmdsl import Asm
from layout5 import *

NAME = 'sequential_preLN__compressed_kv_cla__glu_gated_geglu__decode'
HEADER = open('cdna_kernels/' + NAME + '.s.ref').read().split('; Override launch')[0]
LDS_TOTAL = 163840
SB = 130048
L_P = 131072
FB = 162816
F_LAND, F_QST, F_MSEQ, F_PSEQ, F_DONE, F_LSEQ = 0, 16, 32, 48, 64, 80
L_ALPHA, L_MFIN, L_MAX = FB + 128, FB + 256, FB + 512
A_WQ, A_WUK, A_WUV, A_WO, A_X, A_C, A_D = 0, 32768, 65536, 98304, 131072, 132096, 135168

R_X, R_WS, R_CKV, R_WQ, R_WUK, R_WUV, R_WO, R_WG, R_WU, R_WD, R_OUT, R_ACT = [8 + 4 * i for i in range(12)]
SIZES = {R_X: 4096, R_WS: WS_END, R_CKV: 32 << 20, R_WQ: 4 << 20, R_WUK: 4 << 20, R_WUV: 4 << 20, R_WO: 4 << 20,
         R_WG: 512 * 2752, R_WU: 512 * 2752, R_WD: 1376 * 1024, R_OUT: 4096, R_ACT: 43 * 256}
PTR = {R_X: 64, R_CKV: 66, R_WQ: 68, R_WUK: 70, R_WUV: 72, R_WO: 74, R_WG: 78, R_WU: 80, R_WD: 82, R_OUT: 84}
S_TAG, S_ONES, S_LO1, S_HI1, S_CNT, S_MASK = 56, 57, 58, 59, 60, 62
SPIN = 20000
XOR3 = 'bitop3:0x96'


class Opt:
    stamps = 0
    w0 = 3
    n0 = 8
    window = 8
    w3 = 16
    wwin = 3
    sleep = 1
    sleep_long = 6
    stsleep = 3
    thr = 60
    dbgwg = 192
    hold = 0
    dsleep = 1
    ddelay = 0
    now = 0
    w1 = 8
    n1 = 0


def vr(a, n):
    return f'v[{a}:{a + n - 1}]' if n > 1 else f'v{a}'


def S(base):
    return f's[{base}:{base + 3}]'


def gen(o):
    a = Asm()
    name = NAME + '_kernel'
    o.st3 = o.stamps == 3

    def ex(mask):
        if mask == -1:
            a('s_mov_b64 exec, -1')
        elif mask <= 64:
            a(f's_mov_b64 exec, {mask}')
        else:
            a(f's_mov_b32 exec_lo, 0x{mask & 0xffffffff:x}')
            a(f's_mov_b32 exec_hi, 0x{mask >> 32:x}')

    def dpp(op, d, s0, s1, ctrl, bank=0xf):
        a(f'{op}_dpp v{d}, v{s0}, v{s1} {ctrl} row_mask:0xf bank_mask:0x{bank:x}')

    def swap_step(op, v, t, which):
        a(f'v_mov_b32 v{t}, v{v}')
        a(f'v_permlane{which}_swap_b32 v{v}, v{t}')
        a(f'{op} v{v}, v{v}, v{t}')

    def stamp(idx):
        if o.stamps:
            a(f's_memrealtime s[{64 + 2 * idx}:{65 + 2 * idx}]')

    def dump_stamps(n, grp, dbg=None):
        a('s_waitcnt lgkmcnt(0)')
        a('s_mov_b64 exec, -1')
        a('v_mov_b32 v3, 0')
        a('v_writelane_b32 v3, s100, 0')
        for i in range(1, n):
            a(f'v_writelane_b32 v3, s{64 + 2 * i}, {i}')
        a('v_mbcnt_lo_u32_b32 v4, -1, 0')
        a('v_lshlrev_b32 v4, 2, v4')
        a('s_lshl_b32 s61, s2, 7')
        a(f's_add_u32 s61, s61, {WS_STAMP + 64 * grp}')
        ex(0xffff)
        a(f'buffer_store_dword v3, v4, {S(R_WS)}, s61 offen')
        if o.stamps == 2 and dbg:
            lb = a.uid('nodbg')
            a('v_subrev_u32 v3, s100, v3')
            if dbg == 'h':
                a(f's_cmp_lg_u32 s2, {o.dbgwg}')
                a(f's_cbranch_scc1 {lb}')
                ex(0x7fe)
                a('global_store_dword v4, v3, s[86:87] offset:-4')
            else:
                a('s_cmp_lg_u32 s2, 0')
                a(f's_cbranch_scc1 {lb}')
                ex(0x3e8)
                a('v_mbcnt_lo_u32_b32 v4, exec_lo, 0')
                a('v_lshlrev_b32 v4, 2, v4')
                a('global_store_dword v4, v3, s[86:87] offset:40')
            a.label(lb)

    def xor_chain(tmp, regs, last=None):
        ops = [f'v{r}' for r in regs] + ([last] if last else [])
        a(f'v_bitop3_b32 v{tmp}, {ops[0]}, {ops[1]}, {ops[2]} {XOR3}')
        ops = ops[3:]
        while len(ops) >= 2:
            a(f'v_bitop3_b32 v{tmp}, v{tmp}, {ops[0]}, {ops[1]} {XOR3}')
            ops = ops[2:]
        if ops:
            a(f'v_xor_b32 v{tmp}, {ops[0]}, v{tmp}')

    def chk_sentinel(regs, tmp):
        rs = list(regs)
        a(f'v_max3_u32 v{tmp}, v{rs[0]}, v{rs[1]}, v{rs[2]}')
        rs = rs[3:]
        while len(rs) >= 2:
            a(f'v_max3_u32 v{tmp}, v{tmp}, v{rs[0]}, v{rs[1]}')
            rs = rs[2:]
        if rs:
            a(f'v_max_u32 v{tmp}, v{tmp}, v{rs[0]}')
        a(f'v_cmp_eq_u32 vcc, -1, v{tmp}')

    def poll(loads, check, sleep=None, wait='s_waitcnt vmcnt(0)'):
        L, Dn = a.uid('poll'), a.uid('pdone')
        a(f's_mov_b32 s{S_CNT}, {SPIN}')
        a.label(L)
        loads()
        a(wait)
        check()
        a(f's_cbranch_vccz {Dn}')
        sl = o.sleep if sleep is None else sleep
        if sl:
            a(f's_sleep {sl}')
        a(f's_sub_u32 s{S_CNT}, s{S_CNT}, 1')
        a(f's_cbranch_scc0 {L}')
        a.label(Dn)

    def lds_wait(addr, off, want, tmp, sleep=1):
        L, Dn = a.uid('lw'), a.uid('lwd')
        a(f's_mov_b32 s{S_CNT}, {SPIN * 40}')
        a.label(L)
        a(f'ds_read_b32 v{tmp}, v{addr} offset:{off}')
        a('s_waitcnt lgkmcnt(0)')
        a(f'v_cmp_gt_u32 vcc, {want}, v{tmp}')
        a(f's_cbranch_vccz {Dn}')
        if sleep:
            a(f's_sleep {sleep}')
        a(f's_sub_u32 s{S_CNT}, s{S_CNT}, 1')
        a(f's_cbranch_scc0 {L}')
        a.label(Dn)

    def mfma16(d, x, y, first):
        c = '0' if first else vr(d, 4)
        a(f'v_mfma_f32_16x16x32_bf16 {vr(d, 4)}, {vr(x, 4)}, {vr(y, 4)}, {c}')

    def srd(rs):
        for r in rs:
            a(f's_mov_b32 s{r + 2}, {SIZES[r]}')
            a(f's_mov_b32 s{r + 3}, 0x00020000')

    def srd_ptr(rs):
        for r in rs:
            if r == R_ACT:
                a(f's_add_u32 s{R_ACT}, s{R_WS}, {WS_ACT}')
                a(f's_addc_u32 s{R_ACT + 1}, s{R_WS + 1}, 0')
            else:
                a(f's_mov_b64 s[{r}:{r + 1}], s[{PTR[r]}:{PTR[r] + 1}]')

    def consts():
        a(f's_mov_b32 s{S_ONES}, 0x3f803f80')
        a(f's_mov_b32 s{S_LO1}, 0x3f80')
        a(f's_mov_b32 s{S_HI1}, 0x3f800000')
        a(f's_mov_b32 s{S_MASK}, 0xffff0000')

    def get_tag():
        a('s_waitcnt lgkmcnt(0)')
        a(f's_add_u32 s{S_TAG}, s{S_TAG}, 0x9e3779b9')

    def vF(d):
        a(f'v_bfe_u32 v{d}, v1, 2, 2')
        a(f'v_lshlrev_b32 v{d}, 8, v{d}')
        a(f'v_lshl_add_u32 v{d}, v3, 6, v{d}')
        a(f'v_lshl_add_u32 v{d}, v4, 4, v{d}')

    def tr64_addr(d, t):
        a(f'v_bfe_u32 v{t}, v1, 2, 2')
        a(f'v_lshl_add_u32 v{t}, v3, 3, v{t}')
        a(f'v_lshlrev_b32 v{d}, 6, v{t}')
        a(f'v_lshl_add_u32 v{d}, v4, 3, v{d}')

    def tr_op(dst, addr, off, tau):
        a(f'ds_read_b64_tr_b16 {vr(dst, 2)}, v{addr} offset:{off}')
        a(f'ds_read_b64_tr_b16 {vr(dst + 2, 2)}, v{addr} offset:{off + tau}')

    def red4_read(x, addr):
        ex(0xffffffff)
        for w in range(4):
            a(f'ds_read_b128 {vr(x + 4 * w, 4)}, v{addr} offset:{512 * w}')
        a('s_waitcnt lgkmcnt(2)')
        for i in range(4):
            a(f'v_add_f32 v{x + i}, v{x + i}, v{x + 4 + i}')
        a('s_waitcnt lgkmcnt(0)')
        for i in range(4):
            a(f'v_add_f32 v{x + 8 + i}, v{x + 8 + i}, v{x + 12 + i}')
        for i in range(4):
            a(f'v_add_f32 v{x + i}, v{x + i}, v{x + 8 + i}')

    def frag_addr(dst, t):
        a(f'v_bfe_u32 v{dst}, v1, 1, 2')
        a(f'v_lshlrev_b32 v{dst}, 6, v{dst}')
        a(f'v_bfe_u32 v{t}, v1, 3, 2')
        a(f'v_lshl_add_u32 v{dst}, v{t}, 4, v{dst}')
        a(f'v_and_b32 v{t}, 1, v1')
        a(f'v_lshl_add_u32 v{dst}, v{t}, 3, v{dst}')

    M4 = 0x000f000f000f000f

    a(f'.globl {name}\n.p2align 8\n.type {name},@function')
    a.label(name)
    if o.stamps:
        a('s_memrealtime s[100:101]')
    a('s_cmp_ge_u32 s2, 256')
    a('s_cbranch_scc1 L_end')
    a('s_load_dwordx16 s[64:79], s[0:1], 0')
    a('s_load_dwordx8 s[80:87], s[0:1], 64')
    a(f's_load_dwordx2 s[{R_WS}:{R_WS + 1}], s[0:1], 96')
    a('v_and_b32 v1, 63, v0')
    a('v_lshrrev_b32 v2, 6, v0')
    a('v_readfirstlane_b32 s3, v2')
    a('v_lshlrev_b32 v2, 4, v1')
    a('v_lshrrev_b32 v3, 4, v1')
    a('v_and_b32 v4, 3, v1')
    a('v_and_b32 v11, 15, v1')
    srd([R_WS, R_X])
    a('s_cmp_ge_u32 s2, 128')
    a('s_cbranch_scc1 L_att')

    srd([R_WQ, R_WUK])
    a('s_and_b32 s4, s2, 7')
    a('s_lshl_b32 s4, s4, 2')
    a('s_bfe_u32 s5, s2, 0x20003')
    a('s_add_u32 s4, s4, s5')
    a('s_lshr_b32 s5, s2, 5')
    a('s_lshl_b32 s6, s4, 8')
    a('v_lshlrev_b32 v5, 1, v3')
    a('v_xor_b32 v5, v5, v11')
    a('v_lshlrev_b32 v5, 4, v5')
    a('v_lshl_add_u32 v6, v3, 13, v5')
    a('v_xor_b32 v7, 0x80, v6')
    a('s_and_b32 s90, s3, 1')
    a('s_lshl_b32 s90, s90, 3')
    a(f'v_bitop3_b32 v8, v3, v11, s90 {XOR3}')
    a('v_lshlrev_b32 v8, 4, v8')
    a('v_lshl_add_u32 v8, v3, 13, v8')
    a('v_xor_b32 v9, 64, v8')
    a('s_lshl_b32 s90, s5, 20')
    a('s_lshl_b32 s91, s3, 17')
    a('s_add_u32 s90, s90, s91')
    a('s_add_u32 s90, s90, s6')
    a('s_lshl_b32 s91, s3, 12')
    a('s_mov_b32 m0, s91')
    a('v_bfe_u32 v10, v1, 2, 2')
    a('v_lshlrev_b32 v10, 6, v10')
    a('v_lshl_add_u32 v10, v4, 10, v10')
    a('v_lshl_add_u32 v10, v3, 4, v10')
    a('s_lshl_b32 s93, s5, 8')
    XS, XO = 12, 28
    a('s_waitcnt lgkmcnt(0)')
    srd_ptr([R_X, R_WQ, R_WUK])
    a('s_cmp_lg_u32 s3, 0')
    a('s_cbranch_scc1 L_nox')
    for i in range(4):
        a(f'buffer_load_dwordx4 {vr(XS + 4 * i, 4)}, v10, {S(R_X)}, 0 offen offset:{256 * i}')
    a(f'buffer_load_dwordx4 {vr(XO, 4)}, v10, {S(R_X)}, s93 offen')
    a.label('L_nox')
    for i in range(4):
        a(f's_add_u32 s92, s90, {i * 32768}')
        a(f'buffer_load_dwordx4 v{6 + i // 2}, {S(R_WQ)}, s92 offen nt lds')
        a(f's_add_u32 m0, m0, {1024 if i < 3 else A_WUK - 3072}')
    a('s_barrier')
    for i in range(4):
        a(f's_add_u32 s92, s90, {i * 32768}')
        a(f'buffer_load_dwordx4 v{8 + i // 2}, {S(R_WUK)}, s92 offen nt lds')
        if i < 3:
            a('s_add_u32 m0, m0, 1024')
    a(f's_load_dword s{S_TAG}, s[{R_WS}:{R_WS + 1}], {WS_EPOCH}')
    srd([R_WUV, R_WO])
    srd_ptr([R_WUV, R_WO])
    consts()
    stamp(1)
    a('s_cmp_lg_u32 s3, 0')
    a('s_cbranch_scc1 L_noln')
    a('s_waitcnt vmcnt(9)')
    for i in range(16):
        a(f'v_dot2_f32_bf16 v34, v{XS + i}, s{S_ONES}, {"0" if i == 0 else "v34"}')
        a(f'v_dot2_f32_bf16 v35, v{XS + i}, v{XS + i}, {"0" if i == 0 else "v35"}')
    for c in ('row_ror:4', 'row_ror:8'):
        dpp('v_add_f32', 34, 34, 34, c)
        dpp('v_add_f32', 35, 35, 35, c)
    for wh in (16, 32):
        a('v_mov_b32 v12, v34')
        a('v_mov_b32 v13, v35')
        a(f'v_permlane{wh}_swap_b32 v34, v12')
        a(f'v_permlane{wh}_swap_b32 v35, v13')
        a('v_add_f32 v34, v34, v12')
        a('v_add_f32 v35, v35, v13')
    a('v_mul_f32 v34, 0x3b000000, v34')
    a('v_mul_f32 v35, 0x3b000000, v35')
    a('v_fma_f32 v35, -v34, v34, v35')
    a('v_max_f32 v35, 0, v35')
    a('v_add_f32 v35, 0x3727c5ac, v35')
    a('v_rsq_f32 v35, v35')
    a(f'v_mul_f32 v35, {QSCALE_BITS}, v35')
    a('v_mul_f32 v34, v34, v35')
    a('s_waitcnt vmcnt(8)')
    for i in range(4):
        a(f'v_lshlrev_b32 v12, 16, v{XO + i}')
        a(f'v_and_b32 v13, s{S_MASK}, v{XO + i}')
        a('v_fma_f32 v12, v12, v35, -v34')
        a('v_fma_f32 v13, v13, v35, -v34')
        a(f'v_cvt_pk_bf16_f32 v{XO + i}, v12, v13')
    a(f'v_add_u32 v12, {A_X}, v2')
    a(f'ds_write_b128 v12, {vr(XO, 4)}')
    a.label('L_noln')
    a('s_getpc_b64 s[94:95]')
    a.label('L_pc')
    a(f's_sub_u32 s94, s94, L_pc-{name}')
    a('s_subb_u32 s95, s95, 0')
    a('s_andn2_b32 s92, s2, 7')
    a('s_add_u32 s92, s92, s3')
    a('s_lshl_b32 s92, s92, 8')
    a('v_lshl_add_u32 v32, v1, 2, s92')
    a(f'v_min_u32 v32, L_end-{name}, v32')
    a('global_load_dword v33, v32, s[94:95]')
    for i in range(4):
        a(f'v_mov_b32 v{36 + i}, -1')
    a('s_lshl_b32 s92, s2, 3')
    a('s_add_u32 s92, s92, s3')
    a('s_mul_i32 s92, s92, 192')
    a(f's_add_u32 s92, s92, {WS_CLEAN}')
    ex(0xfff)
    a(f'buffer_store_dwordx4 v[36:39], v2, {S(R_WS)}, s92 offen sc1')
    ex(-1)
    a('v_bfe_u32 v40, v1, 2, 3')
    a('v_lshlrev_b32 v40, 1, v40')
    a('v_bfe_u32 v41, v1, 1, 1')
    a('s_lshl_b32 s92, s3, 1')
    a(f'v_bitop3_b32 v40, v40, v41, s92 {XOR3}')
    a('v_lshlrev_b32 v40, 4, v40')
    a('v_bfe_u32 v41, v1, 2, 2')
    a('v_lshl_add_u32 v41, v3, 3, v41')
    a('v_lshl_add_u32 v40, v41, 8, v40')
    a('v_and_b32 v41, 1, v1')
    a('v_lshl_add_u32 v40, v41, 3, v40')
    a('v_lshlrev_b32 v41, 8, v3')
    a('v_lshl_add_u32 v41, v4, 4, v41')
    a(f'v_add_u32 v41, {A_X}, v41')
    a('v_lshlrev_b32 v42, 6, v3')
    a('v_lshl_add_u32 v42, v4, 4, v42')
    a('s_lshl_b32 s96, s4, 13')
    if WS_QP:
        a(f's_add_u32 s96, s96, {WS_QP}')
    a('s_lshl_b32 s92, s5, 11')
    a('s_add_u32 s97, s96, s92')
    a('s_lshl_b32 s92, s3, 8')
    a('s_add_u32 s97, s97, s92')
    get_tag()
    stamp(2)
    a('s_waitcnt vmcnt(6)')
    a('s_barrier')
    W1, XF, AC = 12, 44, 60
    for t in range(4):
        tr_op(W1 + 4 * t, 40, A_WQ + 8192 * t, 1024)
        a(f'ds_read_b128 {vr(XF + 4 * t, 4)}, v41 offset:{64 * t}')
    for t in range(4):
        a(f's_waitcnt lgkmcnt({3 * (3 - t)})')
        mfma16(AC, W1 + 4 * t, XF + 4 * t, t == 0)
    a(f'v_cvt_pk_bf16_f32 v64, v{AC}, v{AC + 1}')
    a(f'v_cvt_pk_bf16_f32 v65, v{AC + 2}, v{AC + 3}')
    a(f'v_bitop3_b32 v66, v64, v65, s{S_TAG} {XOR3}')
    ex(M4)
    a(f'buffer_store_dwordx4 v[64:67], v42, {S(R_WS)}, s97 offen sc1')
    ex(-1)
    stamp(3)
    a('s_waitcnt vmcnt(0)')
    a('s_barrier')
    a('s_cmp_ge_u32 s3, 4')
    a('s_cbranch_scc1 L_a_done')
    UK, Q, AC2, FR = 68, 100, 132, 140
    a('v_lshrrev_b32 v12, 2, v11')
    a('v_lshl_add_u32 v12, v12, 3, v4')
    a('v_lshlrev_b32 v12, 8, v12')
    a('v_xor_b32 v13, v3, v11')
    a('v_lshl_add_u32 v12, v13, 4, v12')
    a('s_lshl_b32 s92, s3, 13')
    a(f's_add_u32 s92, s92, {A_WUK}')
    a('v_add_u32 v12, s92, v12')
    a('v_bfe_u32 v14, v1, 2, 2')
    a('v_lshlrev_b32 v14, 11, v14')
    a('v_lshl_add_u32 v14, v3, 7, v14')
    a('v_lshl_add_u32 v14, v4, 4, v14')

    def a2_loads():
        for n in range(8):
            a(f'buffer_load_dwordx4 {vr(Q + 4 * n, 4)}, v14, {S(R_WS)}, s96 offen offset:{512 * (n // 2) + 64 * (n % 2)} sc1')
    a2_loads()
    for t in range(4):
        a(f'v_xor_b32 v13, {64 * t}, v12')
        for sub in range(2):
            a(f'ds_read_b128 {vr(UK + 16 * sub + 4 * t, 4)}, v13 offset:{1024 * sub}')
    a('v_lshlrev_b32 v15, 8, v4')
    a('v_lshl_add_u32 v15, v3, 4, v15')
    a('s_lshl_b32 s91, s3, 6')
    a(f's_add_u32 s91, s91, {A_C}')
    a('v_add_u32 v15, s91, v15')
    a(f'v_add_u32 v16, {A_C}, v2')
    a('v_lshlrev_b32 v20, 15, v3')
    a('v_lshl_add_u32 v20, v11, 4, v20')
    a('v_lshlrev_b32 v21, 3, v3')
    a('s_lshl_b32 s91, s4, 10')
    a('s_lshl_b32 s92, s5, 8')
    a('s_add_u32 s92, s92, s91')
    a('s_lshr_b32 s93, s92, 1')
    if WS_QA:
        a(f's_add_u32 s92, s92, {WS_QA}')
    a(f's_add_u32 s93, s93, {WS_QAH}')
    a(f's_mov_b32 s{S_CNT}, {SPIN}')
    a('s_branch L_a2chk')
    a.label('L_a2poll')
    a2_loads()
    a.label('L_a2chk')
    for n in range(8):
        a(f's_waitcnt vmcnt({7 - n})')
        a(f'v_bitop3_b32 v{Q + 4 * n + 2}, v{Q + 4 * n}, v{Q + 4 * n + 1}, v{Q + 4 * n + 2} {XOR3}')
    a(f'v_max3_u32 v17, v{Q + 2}, v{Q + 6}, v{Q + 10}')
    a(f'v_min3_u32 v18, v{Q + 2}, v{Q + 6}, v{Q + 10}')
    a(f'v_max3_u32 v17, v17, v{Q + 14}, v{Q + 18}')
    a(f'v_min3_u32 v18, v18, v{Q + 14}, v{Q + 18}')
    a(f'v_max3_u32 v17, v17, v{Q + 22}, v{Q + 26}')
    a(f'v_min3_u32 v18, v18, v{Q + 22}, v{Q + 26}')
    a(f'v_max3_u32 v17, v17, v{Q + 30}, s{S_TAG}')
    a(f'v_min3_u32 v18, v18, v{Q + 30}, s{S_TAG}')
    a('v_cmp_ne_u32 vcc, v17, v18')
    a('s_cbranch_vccz L_a2go')
    a(f's_sub_u32 s{S_CNT}, s{S_CNT}, 1')
    a('s_cbranch_scc0 L_a2poll')
    a.label('L_a2go')
    if o.st3:
        a('s_memrealtime s[72:73]')
    stamp(4)
    a('s_waitcnt lgkmcnt(0)')
    for n in range(8):
        for sub in range(2):
            d = AC2 + 4 * sub
            c = '0' if n == 0 else vr(d, 4)
            a(f'v_mfma_f32_16x16x16_bf16 {vr(d, 4)}, {vr(UK + 16 * sub + 2 * n, 2)}, {vr(Q + 4 * n, 2)}, {c}')
    for c in ('row_ror:4', 'row_ror:8'):
        for i in range(8):
            dpp('v_add_f32', AC2 + i, AC2 + i, AC2 + i, c)
    for i in range(4):
        a(f'v_cvt_pk_bf16_f32 v{FR + i}, v{AC2 + 2 * i}, v{AC2 + 2 * i + 1}')
    ex(M4)
    a(f'ds_write_b128 v15, {vr(FR, 4)}')
    ex(-1)
    a('s_waitcnt lgkmcnt(0)')
    a.label('L_a_done')
    a('s_barrier')
    a('s_cmp_lg_u32 s3, 0')
    a('s_cbranch_scc1 L_a_pub')
    a(f'ds_read_b128 {vr(FR, 4)}, v16')
    a('s_waitcnt lgkmcnt(0)')
    a(f'buffer_store_dwordx4 {vr(FR, 4)}, v20, {S(R_WS)}, s92 offen sc1')
    xor_chain(18, range(FR, FR + 4))
    for c in ('quad_perm:[1,0,3,2]', 'quad_perm:[2,3,0,1]', 'row_ror:4', 'row_ror:8'):
        dpp('v_xor_b32', 18, 18, 18, c)
    a(f'v_xor_b32 v19, s{S_TAG}, v18')
    ex(0x0001000100010001)
    a(f'buffer_store_dwordx2 v[18:19], v21, {S(R_WS)}, s93 offen sc1')
    ex(-1)
    stamp(5)
    a.label('L_a_pub')
    a('s_and_b32 s7, s2, 7')
    a('s_lshr_b32 s63, s2, 3')
    a('v_lshl_add_u32 v6, v3, 18, v5')
    a('v_xor_b32 v7, 0x80, v6')
    a('s_lshl_b32 s90, s5, 20')
    a('s_lshl_b32 s91, s3, 14')
    a('s_add_u32 s90, s90, s91')
    a('s_add_u32 s90, s90, s6')
    a('s_lshl_b32 s91, s3, 12')
    a(f's_add_u32 m0, s91, {A_WUV}')
    a('v_lshrrev_b32 v8, 2, v1')
    a('v_lshlrev_b32 v8, 10, v8')
    a('v_lshl_add_u32 v8, v4, 4, v8')
    a('s_lshl_b32 s93, s7, 19')
    a('s_lshl_b32 s91, s3, 16')
    a('s_add_u32 s93, s93, s91')
    a('s_lshl_b32 s91, s63, 6')
    a('s_add_u32 s93, s93, s91')
    WW = max(1, o.wwin // 2)
    if o.now:
        a('s_branch L_now')
    for i in range(4):
        a(f's_add_u32 s92, s90, {(16 * (i % 2) + i // 2) * 8192}')
        if i >= WW:
            a(f's_waitcnt vmcnt({WW - 1})')
        a(f'buffer_load_dwordx4 v{6 + i // 2}, {S(R_WUV)}, s92 offen nt lds')
        a(f's_add_u32 m0, m0, {1024 if i < 3 else A_WO - A_WUV - 3072}')
    for i in range(4):
        a(f's_add_u32 s92, s93, {i * 16384}')
        a(f's_waitcnt vmcnt({WW - 1})')
        a(f'buffer_load_dwordx4 v8, {S(R_WO)}, s92 offen nt lds')
        if i < 3:
            a('s_add_u32 m0, m0, 1024')
    a.label('L_now')
    D, WL, CA, OPC, OPD = 16, 32, 40, 64, 96
    a('s_and_b32 s94, s3, 3')
    a('s_lshr_b32 s95, s3, 2')
    a('v_bfe_u32 v56, v1, 2, 3')
    a('v_lshlrev_b32 v56, 1, v56')
    a('s_lshl_b32 s92, s94, 2')
    a(f'v_bitop3_b32 v56, v56, v4, s92 {XOR3}')
    a('v_lshlrev_b32 v56, 4, v56')
    a('v_bfe_u32 v58, v1, 2, 2')
    a('v_lshl_add_u32 v58, v3, 3, v58')
    a('v_lshl_add_u32 v56, v58, 8, v56')
    a(f'v_add_u32 v56, {A_WUV}, v56')
    tr64_addr(57, 58)
    a('s_lshl_b32 s91, s94, 13')
    a(f's_add_u32 s91, s91, {A_WO}')
    a('v_add_u32 v57, s91, v57')
    a('v_and_b32 v5, 31, v1')
    a('v_lshlrev_b32 v5, 11, v5')
    a('s_lshl_b32 s90, s94, 16')
    a('s_lshl_b32 s91, s5, 9')
    a('s_add_u32 s90, s90, s91')
    a('s_lshl_b32 s91, s4, 4')
    a('s_add_u32 s90, s90, s91')
    a(f's_add_u32 s90, s90, {WS_REC}')
    a('s_lshl_b32 s96, s4, 2')
    a('s_add_u32 s96, s96, s5')
    a('s_lshl_b32 s96, s96, 2')
    a('s_add_u32 s96, s96, s94')
    a('s_lshl_b32 s91, s96, 13')
    a('s_lshl_b32 s93, s95, 12')
    a('s_add_u32 s91, s91, s93')
    a(f's_add_u32 s91, s91, {WS_OP}')
    a('s_lshl_b32 s92, s95, 4')
    a('v_lshlrev_b32 v48, 4, v11')
    a('v_lshl_add_u32 v48, v3, 1, v48')
    a('s_lshl_b32 s93, s3, 8')
    a(f's_add_u32 s93, s93, {A_C}')
    a('v_add_u32 v48, s93, v48')
    a('v_and_b32 v49, 7, v1')
    a('v_lshlrev_b32 v49, 8, v49')
    a('v_lshl_add_u32 v49, v3, 4, v49')
    a(f'v_add_u32 v49, {A_C}, v49')
    a('v_lshlrev_b32 v50, 6, v3')
    a('v_lshl_add_u32 v50, v4, 4, v50')
    a('s_lshl_b32 s98, s4, 12')
    a('s_lshl_b32 s93, s94, 10')
    a('s_add_u32 s98, s98, s93')
    a('s_lshl_b32 s93, s5, 8')
    a('s_add_u32 s98, s98, s93')
    a(f's_add_u32 s98, s98, {WS_CP}')
    a('v_add_u32 v51, s92, v3')
    a('v_lshlrev_b32 v51, 2, v51')
    a('v_cmp_eq_u32 s[88:89], s95, v3')
    vF(128)
    a('v_lshlrev_b32 v129, 7, v4')
    a('v_lshl_add_u32 v129, v3, 4, v129')
    a('s_lshl_b32 s93, s94, 9')
    a(f's_add_u32 s93, s93, {A_D}')
    a('v_add_u32 v129, s93, v129')
    a('v_bfe_u32 v130, v1, 1, 2')
    a('v_lshlrev_b32 v130, 7, v130')
    a('v_bfe_u32 v9, v1, 3, 2')
    a('v_lshl_add_u32 v130, v9, 5, v130')
    a('v_and_b32 v9, 1, v1')
    a('v_lshl_add_u32 v130, v9, 4, v130')
    a(f'v_add_u32 v130, {A_D}, v130')
    a('v_lshlrev_b32 v131, 3, v1')
    a('s_lshl_b32 s6, s7, 14')
    a('s_lshl_b32 s93, s94, 12')
    a('s_add_u32 s6, s6, s93')
    a(f's_add_u32 s6, s6, {WS_CP}')
    a('s_lshl_b32 s99, s7, 12')
    a('s_lshl_b32 s93, s63, 8')
    a('s_add_u32 s99, s99, s93')
    a(f's_add_u32 s99, s99, {WS_HP}')
    a('s_waitcnt vmcnt(0)')
    a('s_barrier')
    for t in range(4):
        for k in range(2):
            tr_op(OPC + 8 * t + 4 * k, 56, 8192 * t + 8 * k, 1024)
            tr_op(OPD + 8 * t + 4 * k, 57, 2048 * t + 32 * k, 256)
        a('s_waitcnt lgkmcnt(0)')
    stamp(6)
    a(f's_mov_b32 s{S_CNT}, {SPIN}')
    a.label('L_call')
    a('s_mov_b32 s97, 0')
    a.label('L_cpoll')
    a(f'buffer_load_dwordx4 v[12:15], v5, {S(R_WS)}, s90 offen sc1')
    a(f's_sub_u32 s{S_CNT}, s{S_CNT}, 1')
    a('s_cbranch_scc1 L_cdone')
    a('s_waitcnt vmcnt(0)')
    xor_chain(10, [12, 13, 14, 15], f's{S_TAG}')
    a('v_cmp_ne_u32 vcc, 0, v10')
    a('s_lshr_b32 s93, vcc_lo, s92')
    for i in range(4):
        lb = a.uid('cskip')
        a(f's_and_b32 s96, s93, 0x{0xf << (4 * i):x}')
        a(f's_cbranch_scc1 {lb} ;noflush')
        a(f's_bitcmp1_b32 s97, {i}')
        a(f's_cbranch_scc1 {lb} ;noflush')
        a(f'buffer_load_dwordx4 {vr(D + 4 * i, 4)}, v2, {S(R_WS)}, s91 offen offset:{1024 * i} sc1')
        a(f's_bitset1_b32 s97, {i}')
        a.label(lb)
    a('s_cbranch_vccz L_crec')
    a(f's_sleep {o.stsleep}')
    a('s_branch L_cpoll')
    a.label('L_crec')
    stamp(7)
    a('v_cndmask_b32 v9, 0, v14, s[88:89]')
    a('v_mov_b32 v14, v12')
    for op, v in (('v_max_f32', 14), ('v_add_f32', 14)):
        for c in ('quad_perm:[1,0,3,2]', 'quad_perm:[2,3,0,1]', 'row_ror:4', 'row_ror:8'):
            dpp(op, v, v, v, c)
        swap_step(op, v, 15, 16)
        if op == 'v_max_f32':
            a('v_sub_f32 v12, v12, v14')
            a('v_exp_f32 v12, v12')
            a('v_mul_f32 v14, v12, v13')
    a('v_rcp_f32 v14, v14')
    a('v_mul_f32 v12, v12, v14')
    a('v_cvt_pk_bf16_f32 v12, v12, 0')
    for i in range(4):
        a(f'ds_bpermute_b32 v{WL + i}, v51, v12 offset:{16 * i}')
    a('s_waitcnt lgkmcnt(0)')
    for i in range(4):
        a(f'v_lshlrev_b32 v{WL + 4 + i}, 16, v{WL + i}')
    a('s_waitcnt vmcnt(0)')
    stamp(8)
    xor_chain(9, [9] + list(range(D, D + 16)))
    steps = ['quad_perm:[1,0,3,2]', 'quad_perm:[2,3,0,1]', 'row_ror:4', 'row_ror:8', 16, 32]
    for i in range(4):
        for u in range(4):
            for e in range(2):
                c = '0' if i == 0 else f'v{CA + 2 * u + e}'
                a(f'v_dot2_f32_bf16 v{CA + 2 * u + e}, v{D + 4 * i + u}, v{WL + 4 * e + i}, {c}')
            if u % 2 == 1 and steps:
                st = steps.pop(0)
                if isinstance(st, str):
                    dpp('v_xor_b32', 9, 9, 9, st)
                    if st == 'row_ror:8':
                        a('v_mov_b32 v10, v9')
                else:
                    a(f'v_permlane{st}_swap_b32 v9, v10')
                    a('v_xor_b32 v9, v9, v10')
                    a('v_mov_b32 v10, v9')
    a('v_cmp_ne_u32 vcc, 0, v9')
    for k in range(4):
        a(f'v_permlane16_swap_b32 v{CA + 2 * k}, v{CA + 2 * k + 1}')
    a('s_cbranch_vccnz L_call')
    a.label('L_cdone')
    for k in range(4):
        a(f'v_add_f32 v{CA + 2 * k}, v{CA + 2 * k}, v{CA + 2 * k + 1}')
    for k in range(2):
        a(f'v_permlane32_swap_b32 v{CA + 4 * k}, v{CA + 4 * k + 2}')
    for k in range(2):
        a(f'v_add_f32 v{CA + 4 * k}, v{CA + 4 * k}, v{CA + 4 * k + 2}')
    a(f'v_cvt_pk_bf16_f32 v{CA}, v{CA}, v{CA + 4}')
    a(f'ds_write_b16 v48, v{CA}')
    a(f'ds_write_b16_d16_hi v48, v{CA} offset:8')
    a('s_waitcnt lgkmcnt(0)')
    a('s_barrier')
    a('s_cmp_ge_u32 s3, 4')
    a('s_cbranch_scc1 L_end')
    for t in range(4):
        a(f'ds_read_b128 {vr(D + 4 * t, 4)}, v49 offset:{64 * t}')
    for t in range(4):
        a(f's_waitcnt lgkmcnt({3 - t})')
        for k in range(2):
            mfma16(CA + 4 * k, OPC + 8 * t + 4 * k, D + 4 * t, t == 0)
    for i in range(8):
        dpp('v_add_f32', CA + i, CA + i, CA + i, 'row_ror:4')
    for i in range(4):
        a(f'v_cvt_pk_bf16_f32 v{12 + i}, v{CA + 2 * i}, v{CA + 2 * i + 1}')
    ex(M4)
    a(f'buffer_store_dwordx4 v[12:15], v50, {S(R_WS)}, s98 offen sc1')
    ex(-1)
    stamp(9)
    a('s_waitcnt vmcnt(0)')
    if o.ddelay:
        a(f's_sleep {o.ddelay}')

    def d_loads():
        for i in range(4):
            a(f'buffer_load_dwordx4 {vr(D + 4 * i, 4)}, v128, {S(R_WS)}, s6 offen offset:{1024 * i} sc1')
    poll(d_loads, lambda: chk_sentinel(range(D, D + 16), 10), o.dsleep)
    stamp(10)
    for t in range(4):
        for k in range(2):
            mfma16(CA + 4 * k, OPD + 8 * t + 4 * k, D + 4 * t, t == 0)
    for c in ('row_ror:4', 'row_ror:8'):
        for i in range(8):
            dpp('v_add_f32', CA + i, CA + i, CA + i, c)
    ex(M4)
    a(f'ds_write_b128 v129, {vr(CA, 4)}')
    a(f'ds_write_b128 v129, {vr(CA + 4, 4)} offset:64')
    ex(-1)
    a('s_waitcnt lgkmcnt(0)')
    a('s_barrier')
    a('s_cmp_lg_u32 s3, 0')
    a('s_cbranch_scc1 L_end')
    red4_read(D, 130)
    a(f'v_cvt_pk_bf16_f32 v{D}, v{D}, v{D + 1}')
    a(f'v_cvt_pk_bf16_f32 v{D + 1}, v{D + 2}, v{D + 3}')
    a(f'buffer_store_dwordx2 {vr(D, 2)}, v131, {S(R_WS)}, s99 offen sc1')
    if o.st3:
        o.stamps = 1
    if o.stamps:
        a('s_memrealtime s[88:89]')
        dump_stamps(13, 0, 'a')
    a('s_endpgm')

    a.label('L_att')
    srd([R_CKV])
    a('s_bfe_u32 s4, s2, 0x20001')
    a('s_bfe_u32 s5, s2, 0x40003')
    a('s_lshl_b32 s5, s5, 1')
    a('s_and_b32 s6, s2, 1')
    a('s_add_u32 s5, s5, s6')
    a('s_lshl_b32 s90, s4, 23')
    a('s_lshl_b32 s91, s5, 18')
    a('s_add_u32 s90, s90, s91')
    a('s_and_b32 s7, s3, 3')
    a('s_lshl_b32 s91, s7, 14')
    a('s_add_u32 s90, s90, s91')
    a('s_lshl_b32 s92, s7, 2')
    a(f's_add_u32 s92, s92, {FB}')
    a('v_mov_b32 v7, s92')
    a(f'v_lshlrev_b32 v10, 2, v4')
    a(f'v_add_u32 v10, {FB}, v10')
    a('s_cmp_lt_u32 s3, 4')
    a('s_cbranch_scc1 L_comp')
    a('s_mov_b32 s3, s7')
    VX, TR = 12, 64
    for j in range(16):
        a(f'v_xor_b32 v{VX + j}, {16 * j}, v2')
    a('s_mov_b32 m0, s91')
    a('s_waitcnt lgkmcnt(0)')
    srd_ptr([R_CKV])
    rows = [(T, j) for T in range(4) for j in range(16) if not (T == 1 and j == 15)]
    landed = 0
    pub = {0: 16, 1: 31}
    for n, (T, j) in enumerate(rows):
        w = o.w0 if n < o.n0 else o.w1 if n < o.n1 else (o.window if T < 3 else o.w3)
        if o.hold and n == o.hold:
            lds_wait(10, F_QST, 1, 5, 2)
        if n - landed >= w:
            a(f's_waitcnt vmcnt({w - 1})')
            landed = n - (w - 1)
        for tt in list(pub):
            if landed >= pub[tt]:
                a(f'v_mov_b32 v5, {tt + 1}')
                a(f'ds_write_b32 v7, v5 offset:{F_LAND}')
                del pub[tt]
        if T < 2:
            a(f'buffer_load_dwordx4 v{VX + j}, {S(R_CKV)}, s90 offen offset:{(j % 4) * 1024} nt lds')
        else:
            a(f'buffer_load_dwordx4 {vr(TR + 64 * (T - 2) + 4 * j, 4)}, v{VX + j}, {S(R_CKV)}, s90 offen offset:{(j % 4) * 1024} nt')
        last = j == 15 or (T == 1 and j == 14)
        if j % 4 == 3 or last:
            a(f's_add_u32 s90, s90, {4096 + 49152 if last else 4096}')
            if T < 2:
                a(f's_add_u32 m0, m0, {4096 + 49152 if last else 4096}')
        if n == o.w0 - 1:
            a(f's_load_dword s{S_TAG}, s[{R_WS}:{R_WS + 1}], {WS_EPOCH}')
            srd([R_WG, R_WU, R_WD, R_OUT, R_ACT])
            srd_ptr([R_X, R_WG, R_WU, R_WD, R_OUT, R_ACT])
            consts()
            a('s_barrier')
        if n == 30:
            stamp(1)
    assert not pub
    stamp(2)
    get_tag()
    a('v_add_u32 v9, s91, v2')
    for T in (2, 3):
        lds_wait(10, F_DONE, T - 1, 5)
        stamp(T + 1)
        for j in range(16):
            a(f's_waitcnt vmcnt({16 * (3 - T) + 15 - j})')
            a(f'ds_write_b128 v9, {vr(TR + 64 * (T - 2) + 4 * j, 4)} offset:{1024 * j}')
        a(f'v_mov_b32 v5, {T + 1}')
        a(f'ds_write_b32 v7, v5 offset:{F_LAND}')
        a('v_add_u32 v9, 0x10000, v9')
        stamp(T + 3)
    a('v_lshrrev_b32 v8, 2, v1')
    a('s_and_b32 s7, s2, 7')
    a('s_cmp_lt_u32 s2, 176')
    a('s_cbranch_scc1 L_E')
    a('s_cmp_lt_u32 s2, 192')
    a('s_cbranch_scc1 L_hend')
    a('s_cmp_lt_u32 s2, 208')
    a('s_cbranch_scc1 L_F')
    a('s_branch L_hend')

    OP = 64
    a.label('L_E')
    a('s_mul_i32 s7, s7, 6')
    a('s_bfe_u32 s90, s2, 0x30003')
    a('s_add_u32 s7, s7, s90')
    a('s_cmp_ge_u32 s7, 43')
    a('s_cbranch_scc1 L_hend')
    H, XR, HA, X4, EA = 16, 12, 140, 148, 164
    E_R = 65536
    a('v_mul_u32_u24 v8, 2752, v8')
    a('v_lshl_add_u32 v8, v4, 4, v8')
    a(f's_mul_i32 s99, s3, {128 * 2752}')
    a('s_lshl_b32 s91, s7, 6')
    a('s_add_u32 s99, s99, s91')
    a('s_lshl_b32 s93, s3, 14')
    a('s_mov_b32 m0, s93')
    a('v_bfe_u32 v5, v1, 2, 2')
    a('v_lshlrev_b32 v6, 6, v5')
    a('v_lshl_add_u32 v6, v4, 10, v6')
    a('v_lshl_add_u32 v6, v3, 4, v6')
    a('s_lshl_b32 s90, s3, 8')
    a('s_barrier')
    a(f'buffer_load_dwordx4 {vr(XR, 4)}, v6, {S(R_X)}, s90 offen')
    for mat in range(2):
        for i in range(8):
            a(f's_add_u32 s92, s99, {16 * i * 2752}')
            a(f'buffer_load_dwordx4 v8, {S(R_WG if mat == 0 else R_WU)}, s92 offen nt lds')
            a('s_add_u32 m0, m0, 1024')
    tr64_addr(58, 59)
    a('v_add_u32 v58, s93, v58')
    a('v_lshlrev_b32 v48, 8, v4')
    a('v_lshl_add_u32 v48, v3, 4, v48')
    a('s_lshl_b32 s91, s3, 10')
    a(f's_add_u32 s91, s91, {E_R}')
    a('v_add_u32 v48, s91, v48')
    a('v_lshlrev_b32 v49, 3, v4')
    a('v_lshl_add_u32 v49, v3, 2, v49')
    a('s_lshl_b32 s91, s3, 5')
    a(f's_add_u32 s91, s91, {E_R + 4096}')
    a('v_add_u32 v49, s91, v49')
    a('s_and_b32 s91, s3, 1')
    a('s_lshl_b32 s91, s91, 6')
    a('v_add_u32 v50, s91, v1')
    a('v_lshrrev_b32 v51, 5, v50')
    a('v_and_b32 v52, 31, v50')
    a('v_lshlrev_b32 v52, 2, v52')
    a('v_lshl_add_u32 v52, v51, 8, v52')
    a(f'v_add_u32 v52, {E_R}, v52')
    a('v_lshlrev_b32 v53, 3, v51')
    a(f'v_add_u32 v53, {E_R + 4096}, v53')
    a('v_lshlrev_b32 v54, 1, v50')
    vF(55)
    a('s_lshl_b32 s98, s7, 8')
    a('s_lshl_b32 s90, s3, 10')
    a(f's_add_u32 s90, s90, {WS_HP}')
    for i in range(4):
        a(f'v_mov_b32 v{X4 + i}, s{S_ONES}')
    a('s_waitcnt vmcnt(0)')
    for t in range(4):
        for k in range(4):
            tr_op(OP + 16 * t + 4 * k, 58, 8192 * (k // 2) + 2048 * t + 32 * (k % 2), 256)
        a('s_waitcnt lgkmcnt(0)')
    for t in range(4):
        for k in range(4):
            mfma16(EA + 4 * k, OP + 16 * t + 4 * k, X4, t == 0)

    def e_lds_write():
        ex(M4)
        for k in range(4):
            a(f'ds_write_b128 v48, {vr(EA + 4 * k, 4)} offset:{64 * k}')
        ex(-1)
        a('s_waitcnt lgkmcnt(0)')
        a('s_barrier')

    def e_lds_read():
        for w in range(4):
            a(f'ds_read_b32 v{H + 2 * w}, v52 offset:{1024 * w}')
            a(f'ds_read_b32 v{H + 2 * w + 1}, v52 offset:{1024 * w + 128}')
    e_lds_write()
    e_lds_read()
    a('s_waitcnt lgkmcnt(0)')
    a(f'v_add_f32 v56, v{H}, v{H + 2}')
    a(f'v_add_f32 v57, v{H + 1}, v{H + 3}')
    for w in range(2, 4):
        a(f'v_add_f32 v56, v56, v{H + 2 * w}')
        a(f'v_add_f32 v57, v57, v{H + 2 * w + 1}')
    a('s_barrier')
    for i in range(4):
        a(f'v_lshlrev_b32 v{132 + 2 * i}, 16, v{XR + i}')
        a(f'v_and_b32 v{133 + 2 * i}, s{S_MASK}, v{XR + i}')
    stamp(8)

    def e_loads():
        a('s_mov_b32 s92, s90')
        for r in range(8):
            a(f'buffer_load_dwordx4 {vr(H + 4 * r, 4)}, v55, {S(R_WS)}, s92 offen sc1')
            if r < 7:
                a('s_add_u32 s92, s92, 4096')
    poll(e_loads, lambda: chk_sentinel(range(H, H + 32), 10), 0)
    stamp(9)
    for r in range(8):
        for u in range(4):
            for e in range(2):
                c = f'v{132 + 2 * u + e}' if r == 0 else f'v{HA + 2 * u + e}'
                a(f'v_dot2_f32_bf16 v{HA + 2 * u + e}, v{H + 4 * r + u}, s{S_LO1 + e}, {c}')
    for i in range(4):
        a(f'v_cvt_pk_bf16_f32 v{X4 + i}, v{HA + 2 * i}, v{HA + 2 * i + 1}')
    for t in range(4):
        if t < 3:
            for i in range(4):
                a(f'v_mov_b32_dpp v{X4 + 4 * (t + 1) + i}, v{X4 + i} row_shl:{4 * (t + 1)} row_mask:0xf bank_mask:0xf bound_ctrl:0')
        for k in range(4):
            mfma16(EA + 4 * k, OP + 16 * t + 4 * k, X4 + 4 * t, t == 0)
        if t == 0:
            for i in range(4):
                a(f'v_dot2_f32_bf16 v9, v{X4 + i}, s{S_ONES}, {"0" if i == 0 else "v9"}')
                a(f'v_dot2_f32_bf16 v10, v{X4 + i}, v{X4 + i}, {"0" if i == 0 else "v10"}')
        if t == 1:
            for c in ('row_ror:4', 'row_ror:8'):
                dpp('v_add_f32', 9, 9, 9, c)
                dpp('v_add_f32', 10, 10, 10, c)
        if t == 2:
            a('v_permlane16_swap_b32 v9, v10')
            a('v_add_f32 v9, v9, v10')
            swap_step('v_add_f32', 9, 10, 32)
    ex(0x000f000f)
    a('ds_write_b32 v49, v9')
    e_lds_write()
    a('s_cmp_ge_u32 s3, 2')
    a('s_cbranch_scc1 L_end')
    for w in range(4):
        a(f'ds_read_b64 v[{H + 8 + 2 * w}:{H + 9 + 2 * w}], v53 offset:{32 * w}')
    e_lds_read()
    a('s_waitcnt lgkmcnt(8)')
    for w in range(1, 4):
        a(f'v_add_f32 v{H + 8}, v{H + 8}, v{H + 8 + 2 * w}')
        a(f'v_add_f32 v{H + 9}, v{H + 9}, v{H + 9 + 2 * w}')
    MU, VA = H + 8, H + 9
    a(f'v_mul_f32 v{MU}, 0x3b000000, v{MU}')
    a(f'v_mul_f32 v{VA}, 0x3b000000, v{VA}')
    a(f'v_fma_f32 v{VA}, -v{MU}, v{MU}, v{VA}')
    a(f'v_max_f32 v{VA}, 0, v{VA}')
    a(f'v_add_f32 v{VA}, 0x3727c5ac, v{VA}')
    a(f'v_rsq_f32 v{VA}, v{VA}')
    a('s_waitcnt lgkmcnt(0)')
    for w in range(1, 4):
        a(f'v_add_f32 v{H}, v{H}, v{H + 2 * w}')
        a(f'v_add_f32 v{H + 1}, v{H + 1}, v{H + 2 * w + 1}')
    a(f'v_fma_f32 v16, -v{MU}, v56, v16')
    a(f'v_fma_f32 v17, -v{MU}, v57, v17')
    a(f'v_mul_f32 v16, v16, v{VA}')
    a(f'v_mul_f32 v17, v17, v{VA}')
    a('v_mul_f32 v18, v16, v16')
    a('v_mov_b32 v19, 1.0')
    a('v_fmac_f32 v19, 0x3d372713, v18')
    a('v_mul_f32 v19, v19, v16')
    a(f'v_mul_f32 v19, {GELU_BITS}, v19')
    a('v_exp_f32 v19, v19')
    a('v_mul_f32 v16, v16, v17')
    a('v_add_f32 v19, 1.0, v19')
    a('v_rcp_f32 v19, v19')
    a('v_mul_f32 v16, v16, v19')
    a('v_mov_b32_dpp v17, v16 quad_perm:[1,1,3,3] row_mask:0xf bank_mask:0xf')
    a('v_cvt_pk_bf16_f32 v16, v16, v17')
    ex(0x5555555555555555)
    a(f'buffer_store_dword v16, v54, {S(R_ACT)}, s98 offen sc1')
    a('s_branch L_hend')

    a.label('L_F')
    X, HR, FA = 160, 16, 40
    F_R = 98304
    a('s_lshl_b32 s7, s7, 1')
    a('s_bfe_u32 s90, s2, 0x10003')
    a('s_add_u32 s7, s7, s90')
    a('v_lshlrev_b32 v8, 10, v8')
    a('v_lshl_add_u32 v8, v4, 4, v8')
    a('s_lshl_b32 s99, s3, 15')
    a('s_lshl_b32 s98, s7, 6')
    a('s_add_u32 s99, s99, s98')
    a(f's_mul_i32 s93, s3, {22 * 1024}')
    a('s_mov_b32 m0, s93')
    a('v_bfe_u32 v51, v1, 3, 2')
    a('v_lshlrev_b32 v51, 10, v51')
    a('v_and_b32 v9, 7, v1')
    a('v_lshl_add_u32 v51, v9, 3, v51')
    a('s_barrier')
    a(f'buffer_load_dwordx2 v[12:13], v51, {S(R_X)}, s98 offen')
    for n in range(11):
        for i in range(2):
            a(f's_add_u32 s92, s99, {(128 * n + 16 * i) * 1024}')
            a(f'buffer_load_dwordx4 v8, {S(R_WD)}, s92 offen nt lds')
            a('s_add_u32 m0, m0, 1024')
    tr64_addr(58, 59)
    a('v_add_u32 v58, s93, v58')
    a('v_lshlrev_b32 v48, 7, v4')
    a('v_lshl_add_u32 v48, v3, 4, v48')
    a('s_lshl_b32 s91, s3, 9')
    a(f's_add_u32 s91, s91, {F_R}')
    a('v_add_u32 v48, s91, v48')
    a(f'v_add_u32 v49, {F_R}, v2')
    frag_addr(50, 9)
    a('s_lshl_b32 s90, s7, 8')
    a(f's_add_u32 s90, s90, {WS_HP}')
    a('s_waitcnt vmcnt(0)')
    for n in range(11):
        for cb in range(2):
            tr_op(OP + 8 * n + 4 * cb, 58, 2048 * n + 32 * cb, 256)
        if n % 2 == 1:
            a('s_waitcnt lgkmcnt(0)')
    stamp(8)

    def h_loads():
        a('s_mov_b32 s92, s90')
        for r in range(8):
            a(f'buffer_load_dwordx2 {vr(HR + 2 * r, 2)}, v50, {S(R_WS)}, s92 offen sc1')
            if r < 7:
                a('s_add_u32 s92, s92, 4096')
    poll(h_loads, lambda: chk_sentinel(range(HR, HR + 16), 10), o.sleep_long)
    for u in range(2):
        for e in range(2):
            a(f'v_dot2_f32_bf16 v{32 + 2 * u + e}, v{12 + u}, s{S_LO1 + e}, 0')
    for r in range(8):
        for u in range(2):
            for e in range(2):
                a(f'v_dot2_f32_bf16 v{32 + 2 * u + e}, v{HR + 2 * r + u}, s{S_LO1 + e}, v{32 + 2 * u + e}')
    for u in range(2):
        a(f'v_cvt_pk_bf16_f32 v12, v{32 + 2 * u}, v{33 + 2 * u}')
        a(f'v_lshlrev_b32 v{32 + 2 * u}, 16, v12')
        a(f'v_and_b32 v{33 + 2 * u}, s{S_MASK}, v12')
    a('v_lshlrev_b32 v7, 6, v4')
    a('v_lshl_add_u32 v7, v3, 4, v7')
    a('s_lshl_b32 s90, s3, 8')
    a('s_add_u32 s91, s90, 4096')
    a('s_add_u32 s92, s90, 8192')
    a('s_waitcnt lgkmcnt(0)')

    def f_loads():
        for n in range(11):
            a(f'buffer_load_dwordx4 {vr(X + 4 * n, 4)}, v7, {S(R_ACT)}, s{90 + n // 4} offen offset:{1024 * (n % 4)} sc1')
    poll(f_loads, lambda: chk_sentinel(range(X, X + 44), 10), 0)
    stamp(9)
    for n in range(11):
        for cb in range(2):
            mfma16(FA + 4 * cb, OP + 8 * n + 4 * cb, X + 4 * n, n == 0)
    ex(M4)
    a(f'ds_write_b128 v48, {vr(FA, 4)}')
    a(f'ds_write_b128 v48, {vr(FA + 4, 4)} offset:64')
    ex(-1)
    a('s_waitcnt lgkmcnt(0)')
    a('s_barrier')
    a('s_cmp_lg_u32 s3, 0')
    a('s_cbranch_scc1 L_end')
    red4_read(16, 49)
    for i in range(4):
        a(f'v_add_f32 v{16 + i}, v{16 + i}, v{32 + i}')
    a('v_cvt_pk_bf16_f32 v16, v16, v17')
    a('v_cvt_pk_bf16_f32 v17, v18, v19')
    a(f'buffer_store_dwordx2 v[16:17], v51, {S(R_OUT)}, s98 offen')
    a('s_cmp_lg_u32 s7, 0')
    a('s_cbranch_scc1 L_hend')
    ex(1)
    a(f'v_mov_b32 v12, s{S_TAG}')
    a(f's_mov_b32 s90, {WS_EPOCH}')
    a(f'buffer_store_dword v12, off, {S(R_WS)}, s90')
    a.label('L_hend')
    if o.stamps:
        stamp(10)
        a('s_cmp_lg_u32 s3, 0')
        a('s_cbranch_scc1 L_end')
        dump_stamps(11, 1, 'h')
    a('s_endpgm')

    a.label('L_comp')
    O_, QA = 64, 128
    vA, vT, vMW, vFW, vPW, vPR, vFR, vAW = 0, 5, 6, 7, 8, 9, 10, 11
    TA = (1, 2, 3, 4)
    NM, LL = 12, 14
    PF, AL = 16, 32
    AF, AT, SS, PK4 = 32, 48, 52, 60
    a(f'v_lshlrev_b32 v16, 2, v1')
    a(f'v_add_u32 v16, {FB}, v16')
    a('v_mov_b32 v17, 0')
    a('ds_write_b32 v16, v17')
    a('s_waitcnt lgkmcnt(0)')
    a('s_barrier')
    a(f's_load_dword s{S_TAG}, s[{R_WS}:{R_WS + 1}], {WS_EPOCH}')
    srd_ptr([R_CKV])
    consts()
    a(f's_add_u32 s63, s90, {65536 + 15 * 1024}')
    a(f's_add_u32 s6, s91, {65536 + 15 * 1024}')
    a('s_lshl_b32 s90, s4, 15')
    a('s_lshl_b32 s91, s3, 13')
    a('s_add_u32 s90, s90, s91')
    a(f's_add_u32 s90, s90, {WS_QA}')
    a('s_add_u32 s92, s90, 4096')
    a('s_lshl_b32 s93, s3, 12')
    a('s_lshl_b32 s94, s4, 3')
    a('s_add_u32 s93, s93, s94')
    a(f's_add_u32 s93, s93, {WS_QAH}')
    a('v_lshrrev_b32 v16, 1, v1')
    a('v_lshlrev_b32 v16, 7, v16')
    a('s_and_b32 s94, s3, 1')
    a('s_lshl_b32 s94, s94, 7')
    a('v_xor_b32 v17, s94, v2')
    a(f's_add_u32 s91, s91, {SB}')
    a('v_add_u32 v17, s91, v17')
    a('v_mul_u32_u24 v18, 1040, v11')
    a('v_lshl_add_u32 v18, v3, 8, v18')
    a(f'v_add_u32 v18, {SB}, v18')
    a('v_bfe_u32 v20, v1, 2, 2')
    a('v_lshl_add_u32 v21, v4, 2, v20')
    a(f'v_mul_u32_u24 v{vA}, 1040, v21')
    a(f'v_lshl_add_u32 v{vA}, v3, 8, v{vA}')
    a('s_lshl_b32 s95, s3, 14')
    a(f'v_add_u32 v{vA}, s95, v{vA}')
    a('v_lshrrev_b32 v22, 5, v1')
    a('v_lshlrev_b32 v21, 2, v20')
    a('v_lshl_add_u32 v21, v22, 1, v21')
    a('v_and_b32 v23, 1, v3')
    a('v_lshlrev_b32 v23, 1, v23')
    a('v_bfe_u32 v24, v1, 1, 1')
    a('v_add_u32 v23, v23, v24')
    a('v_xor_b32 v23, v23, v21')
    a(f'v_lshlrev_b32 v{vT}, 10, v21')
    a(f'v_lshl_add_u32 v{vT}, v23, 4, v{vT}')
    a('v_and_b32 v24, 1, v1')
    a(f'v_lshl_add_u32 v{vT}, v24, 3, v{vT}')
    a('s_lshl_b32 s95, s3, 8')
    a(f'v_add_u32 v{vT}, s95, v{vT}')
    a('v_and_b32 v24, 31, v1')
    a('s_lshl_b32 s95, s3, 2')
    a(f's_add_u32 s95, s95, {L_MAX}')
    a(f'v_lshl_add_u32 v{vMW}, v24, 4, s95')
    a(f'v_lshlrev_b32 v{vPW}, 9, v22')
    a(f'v_lshl_add_u32 v{vPW}, v11, 4, v{vPW}')
    a('v_and_b32 v24, 1, v3')
    a(f'v_lshl_add_u32 v{vPW}, v24, 3, v{vPW}')
    a('s_lshl_b32 s95, s3, 10')
    a(f's_add_u32 s95, s95, {L_P}')
    a(f'v_add_u32 v{vPW}, s95, v{vPW}')
    a(f'v_add_u32 v{vPR}, {L_P}, v2')
    a(f'v_lshlrev_b32 v{vAW}, 2, v11')
    a(f'v_add_u32 v{vAW}, {L_ALPHA}, v{vAW}')
    a('v_xor_b32 v21, 0xf0, v2')
    for i in range(64):
        a(f'v_mov_b32 v{O_ + i}, 0')
    for i in range(4):
        a(f'v_mov_b32 v{NM + i}, 0')
    a('s_mov_b32 s99, 0xff800000')
    a(f's_mov_b32 s98, {f32bits(float(o.thr))}')
    a('s_mov_b32 s97, 0')
    a('s_mov_b32 s96, 0')
    get_tag()
    stamp(1)
    HR_ = 24

    def h_load():
        a(f'buffer_load_dwordx2 {vr(HR_, 2)}, v16, {S(R_WS)}, s93 offen sc1')

    def h_check():
        a(f'v_bitop3_b32 v19, v{HR_}, v{HR_ + 1}, s{S_TAG} {XOR3}')
        a('v_cmp_ne_u32 vcc, 0, v19')
    ex(0x0000000100000001)
    poll(h_load, h_check, o.sleep_long)
    ex(-1)
    stamp(9)

    a(f's_mov_b32 s{S_CNT}, {SPIN}')
    a.label('L_qall')
    a('s_mov_b32 s95, 0')
    a.label('L_qpoll')
    h_load()
    a(f's_sub_u32 s{S_CNT}, s{S_CNT}, 1')
    a('s_cbranch_scc1 L_qdone')
    a('s_waitcnt vmcnt(0)')
    h_check()
    for i in range(8):
        lb = a.uid('qskip')
        a(f's_and_b32 s94, vcc_{"lo" if i < 4 else "hi"}, 0x{0xff << (8 * (i % 4)):x}')
        a(f's_cbranch_scc1 {lb} ;noflush')
        a(f's_bitcmp1_b32 s95, {i}')
        a(f's_cbranch_scc1 {lb} ;noflush')
        a(f'buffer_load_dwordx4 {vr(QA + 4 * i, 4)}, v2, {S(R_WS)}, s{90 if i < 4 else 92} offen offset:{1024 * (i % 4)} sc1')
        a(f's_bitset1_b32 s95, {i}')
        a.label(lb)
    a('s_cbranch_vccnz L_qpoll')
    stamp(8)
    a('s_waitcnt vmcnt(0)')
    for i in range(8):
        a(f'v_xor_b32 v{28 + i % 2}, {16 * i}, v17')
        a(f'ds_write_b128 v{28 + i % 2}, {vr(QA + 4 * i, 4)} offset:{1024 * i}')
    xor_chain(19, list(range(QA, QA + 32)))
    for c in ('quad_perm:[1,0,3,2]', 'quad_perm:[2,3,0,1]', 'row_ror:4', 'row_ror:8'):
        dpp('v_xor_b32', 19, 19, 19, c)
        if c == 'quad_perm:[1,0,3,2]':
            a(f'v_xor_b32 v19, v19, v{HR_}')
    swap_step('v_xor_b32', 19, 20, 16)
    swap_step('v_xor_b32', 19, 20, 32)
    a('v_cmp_ne_u32 vcc, 0, v19')
    a('s_cbranch_vccnz L_qall')
    a.label('L_qdone')
    a('v_mov_b32 v19, 1')
    a(f'ds_write_b32 v{vFW}, v19 offset:{F_QST}')
    a(f'buffer_load_dwordx4 v[24:27], v21, {S(R_CKV)}, s63 offen nt')
    a('v_add_u32 v22, s6, v2')
    stamp(2)
    lds_wait(vFW, F_LAND, 1, 19)
    lds_wait(vFR, F_QST, 1, 19, 0)
    stamp(3)

    def a_read(st):
        a(f'v_xor_b32 v{AT + st % 4}, {16 * st}, v{vA}')
        a(f'ds_read_b128 {vr(AF + 4 * (st % 4), 4)}, v{AT + st % 4}')

    def q_read(st):
        a(f'v_xor_b32 v{28 + st % 4}, {16 * st}, v18')
        for hh in range(2):
            a(f'ds_read_b128 {vr(QA + 64 * hh + 4 * st, 4)}, v{28 + st % 4} offset:{16384 * hh}')

    def s_mfma(st, zero):
        for hh in range(2):
            mfma16(SS + 4 * hh, AF + 4 * (st % 4), QA + 64 * hh + 4 * st, zero and st == 0)
    for st in range(3):
        q_read(st)
        a_read(st)
    for st in range(16):
        if st + 3 < 16:
            q_read(st + 3)
            a_read(st + 3)
        a(f's_waitcnt lgkmcnt({3 * min(3, 15 - st)})')
        s_mfma(st, True)
    a(f'v_xor_b32 v{vA}, 0x10000, v{vA}')
    a('v_mov_b32 v40, v22')
    a.label('L_exact')
    a('s_add_u32 s96, s96, 1')
    a('v_mov_b32 v34, s96')
    a(f'v_subrev_u32 v35, {L_ALPHA}, v{vAW}')
    a('v_lshlrev_b32 v35, 2, v35')
    a(f'v_add_u32 v35, {L_MAX}, v35')
    for hh in range(2):
        a(f'v_max3_f32 v{28 + hh}, v{SS + 4 * hh}, v{SS + 4 * hh + 1}, v{SS + 4 * hh + 2}')
        a(f'v_max_f32 v{28 + hh}, v{28 + hh}, v{SS + 4 * hh + 3}')
    a('v_permlane16_swap_b32 v28, v29')
    a('v_max_f32 v28, v28, v29')
    swap_step('v_max_f32', 28, 29, 32)
    a(f'ds_write_b32 v{vMW}, v28')
    a(f'ds_write_b32 v{vFW}, v34 offset:{F_MSEQ}')
    a(f's_mov_b32 s{S_CNT}, {SPIN * 40}')
    a.label('L_mpoll')
    a(f'ds_read_b32 v33, v{vFR} offset:{F_MSEQ}')
    a('ds_read_b128 v[16:19], v35')
    a('ds_read_b128 v[20:23], v35 offset:256')
    a('s_waitcnt lgkmcnt(0)')
    a('v_cmp_gt_u32 vcc, s96, v33')
    a('s_cbranch_vccz L_mgo')
    a(f's_sub_u32 s{S_CNT}, s{S_CNT}, 1')
    a('s_cbranch_scc0 L_mpoll')
    a.label('L_mgo')
    for hh in range(2):
        a(f'v_max3_f32 v{28 + hh}, v{16 + 4 * hh}, v{17 + 4 * hh}, s99')
        a(f'v_max3_f32 v{28 + hh}, v{18 + 4 * hh}, v{19 + 4 * hh}, v{28 + hh}')
        for j in range(4):
            a(f'v_sub_f32 v{SS + 4 * hh + j}, v{SS + 4 * hh + j}, v{28 + hh}')
        for j in range(4):
            a(f'v_exp_f32 v{SS + 4 * hh + j}, v{SS + 4 * hh + j}')
        a(f'v_max_f32 v{30 + hh}, 0, v{28 + hh}')
        a(f'v_cvt_pk_bf16_f32 v{PK4 + 2 * hh}, v{SS + 4 * hh}, v{SS + 4 * hh + 1}')
        a(f'v_cvt_pk_bf16_f32 v{PK4 + 1 + 2 * hh}, v{SS + 4 * hh + 2}, v{SS + 4 * hh + 3}')
        a(f'v_exp_f32 v{30 + hh}, -v{30 + hh}')
        a(f'ds_write_b64 v{vPW}, {vr(PK4 + 2 * hh, 2)} offset:{256 * hh}')
        a(f'v_sub_f32 v{NM + hh}, v{NM + hh}, v{28 + hh}')
        a(f'v_sub_f32 v{28 + hh}, 0, v{NM + hh}')
        a(f'v_mul_f32 v{LL + hh}, v{LL + hh}, v{30 + hh}')
    a(f'ds_write2_b32 v{vAW}, v30, v31 offset0:0 offset1:16')
    a(f'ds_write2_b32 v{vAW}, v28, v29 offset0:32 offset1:48')
    a('s_add_u32 s95, s97, 5')
    a('v_mov_b32 v34, s95')
    a(f'ds_write_b32 v{vFW}, v34 offset:{F_PSEQ}')
    a('s_mov_b32 s99, 0')
    a(f'v_mov_b32 v{TA[0]}, v{vT}')
    a(f'v_xor_b32 v{TA[1]}, 16, v{vT}')
    a('s_cmp_lg_u32 s97, 0')
    a('s_cbranch_scc1 L_resc')
    a('s_waitcnt vmcnt(0)')
    a('ds_write_b128 v40, v[24:27]')
    a('s_branch L_pv0')
    a.label('L_resc')
    a('v_mbcnt_lo_u32_b32 v33, -1, 0')
    a('v_mbcnt_hi_u32_b32 v33, -1, v33')
    a('v_lshrrev_b32 v33, 5, v33')
    a('v_lshlrev_b32 v33, 4, v33')
    a(f'v_add_u32 v33, {L_ALPHA}, v33')
    for jq in range(4):
        a(f'ds_read_b128 {vr(16 + 4 * jq, 4)}, v33 offset:{32 * jq}')
    a('s_waitcnt lgkmcnt(0)')
    for blk in range(4):
        for j in range(16):
            a(f'v_mul_f32 v{O_ + 16 * blk + j}, v{O_ + 16 * blk + j}, v{16 + j}')
    a('s_branch L_pv0')
    a.label('L_tile')
    a(f's_mov_b32 s{S_CNT}, {SPIN * 40}')
    a('s_lshr_b32 s94, s97, 2')
    for hh in range(2):
        for j in range(4):
            a(f'v_mov_b32 v{SS + 4 * hh + j}, v{NM + hh}')
    a.label('L_tpoll')
    a(f'ds_read_b32 v16, v{vFW} offset:{F_LAND}')
    for st in range(3):
        a_read(st)
    a('s_waitcnt lgkmcnt(3)')
    a('v_cmp_ge_u32 vcc, s94, v16')
    a('s_cbranch_vccz L_tgo')
    a('s_sleep 1')
    a(f's_sub_u32 s{S_CNT}, s{S_CNT}, 1')
    a('s_cbranch_scc0 L_tpoll')
    a.label('L_tgo')
    for st in range(16):
        if st + 3 < 16:
            a_read(st + 3)
        a(f's_waitcnt lgkmcnt({min(3, 15 - st)})')
        s_mfma(st, False)
    a(f'v_xor_b32 v{vA}, 0x10000, v{vA}')
    a(f'v_mov_b32 v{TA[0]}, v{vT}')
    a(f'v_xor_b32 v{TA[1]}, 16, v{vT}')
    a('s_add_u32 s95, s97, 4')
    a('s_add_u32 s94, s97, 2')
    for hh in range(2):
        for j in range(4):
            a(f'v_exp_f32 v{16 + 4 * hh + j}, v{SS + 4 * hh + j}')
        a(f'v_cvt_pk_bf16_f32 v{PK4 + 2 * hh}, v{16 + 4 * hh}, v{17 + 4 * hh}')
        a(f'v_cvt_pk_bf16_f32 v{PK4 + 1 + 2 * hh}, v{18 + 4 * hh}, v{19 + 4 * hh}')
        a(f'ds_write_b64 v{vPW}, {vr(PK4 + 2 * hh, 2)} offset:{256 * hh}')
        if hh == 0:
            a(f'v_max3_f32 v24, v{SS}, v{SS + 1}, v{SS + 2}')
            a(f'v_max3_f32 v25, v{SS + 3}, v{SS + 4}, v{SS + 5}')
            a(f'v_max3_f32 v24, v{SS + 6}, v{SS + 7}, v24')
            a('v_max_f32 v24, v24, v25')
            a('v_cmp_lt_f32 vcc, s98, v24')
    a('s_cmp_eq_u64 vcc, 0')
    a('s_cselect_b32 s91, s95, s94')
    a('v_mov_b32 v34, s91')
    a(f'ds_write_b32 v{vFW}, v34 offset:{F_PSEQ}')
    a.label('L_pv0')
    a(f's_mov_b32 s{S_CNT}, {SPIN * 40}')
    seq = [(blk, ks) for blk in range(4) for ks in range(4)]
    BF2 = (36, 40, 44, 48)

    def rd(n):
        blk, ks = seq[n]
        if ks == 0 and blk > 0:
            a(f'v_xor_b32 v{TA[2 * (blk % 2)]}, {64 * blk}, v{vT}')
            a(f'v_xor_b32 v{TA[2 * (blk % 2) + 1]}, {64 * blk + 16}, v{vT}')
        bf = BF2[n % 4]
        a(f'ds_read_b64_tr_b16 {vr(bf, 2)}, v{TA[2 * (blk % 2)]} offset:{16384 * ks}')
        a(f'ds_read_b64_tr_b16 {vr(bf + 2, 2)}, v{TA[2 * (blk % 2) + 1]} offset:{16384 * ks + 1024}')
    a.label('L_ppoll')
    a(f'ds_read_b32 v32, v{vFR} offset:{F_PSEQ}')
    for ks in range(4):
        a(f'ds_read_b128 {vr(PF + 4 * ks, 4)}, v{vPR} offset:{1024 * ks}')
    for n in range(3):
        rd(n)
    a('s_waitcnt lgkmcnt(10)')
    a('v_cmp_gt_u32 vcc, s95, v32')
    a('s_cbranch_vccnz L_pslow')
    a.label('L_pgo')
    a('s_lshr_b32 s94, s97, 2')
    a('s_add_u32 s94, s94, 1')
    extra = {}
    for n in range(16):
        blk, ks = seq[n]
        young = 2 * min(2, 15 - n) + sum(v for k, v in extra.items() if k >= n - 3)
        a(f's_waitcnt lgkmcnt({young})')
        if n == 15:
            a(f'ds_write_b32 v{vFW}, v33 offset:{F_DONE}')
        a(f'v_mfma_f32_32x32x16_bf16 {vr(O_ + 16 * blk, 16)}, {vr(PF + 4 * ks, 4)}, {vr(BF2[n % 4], 4)}, {vr(O_ + 16 * blk, 16)}')
        if n + 3 < 16:
            rd(n + 3)
        if n == 0:
            a('v_mov_b32 v33, s94')
            for hh in range(2):
                a(f'v_dot2_f32_bf16 v{LL + hh}, v{PK4 + 2 * hh}, s{S_ONES}, v{LL + hh}')
        if n == 1:
            for hh in range(2):
                a(f'v_dot2_f32_bf16 v{LL + hh}, v{PK4 + 2 * hh + 1}, s{S_ONES}, v{LL + hh}')
        if n == 2:
            a(f'v_mov_b32 v34, v{LL}')
            a(f'v_mov_b32 v35, v{LL + 1}')
        if n == 3:
            a('v_permlane16_swap_b32 v34, v35')
            a('v_add_f32 v34, v34, v35')
            a('v_mov_b32 v35, v34')
        if n == 4:
            a('v_permlane32_swap_b32 v34, v35')
            a('v_add_f32 v34, v34, v35')
            a(f'ds_write_b32 v{vMW}, v34')
            a(f'ds_write_b32 v{vFW}, v33 offset:{F_LSEQ}')
            extra[n] = 2
    a(f'v_xor_b32 v{vT}, 0x10000, v{vT}')
    a(f'v_xor_b32 v{vPW}, 0x1000, v{vPW}')
    a(f'v_xor_b32 v{vPR}, 0x1000, v{vPR}')
    a('s_add_u32 s97, s97, 4')
    a('s_cmp_lt_u32 s97, 16')
    a('s_cbranch_scc1 L_tile ;noflush')
    stamp(4)
    a('v_mbcnt_lo_u32_b32 v1, -1, 0')
    a('v_mbcnt_hi_u32_b32 v1, -1, v1')
    a('v_lshrrev_b32 v2, 5, v1')
    a('v_lshlrev_b32 v2, 2, v2')
    a('v_bfe_u32 v3, v1, 4, 1')
    a('v_add_u32 v2, v2, v3')
    a('v_and_b32 v3, 15, v1')
    a('v_lshlrev_b32 v4, 17, v2')
    a('v_lshl_add_u32 v4, v3, 4, v4')
    a('s_lshl_b32 s90, s3, 2')
    a('s_add_u32 s90, s90, s4')
    a('s_lshl_b32 s91, s90, 13')
    a('s_lshl_b32 s92, s5, 8')
    a('s_add_u32 s91, s91, s92')
    a(f's_add_u32 s91, s91, {WS_OP}')
    PK, XX = 128, 16
    a('v_and_b32 v5, 1, v1')
    a('v_lshlrev_b32 v5, 4, v5')
    a('v_bfe_u32 v6, v1, 2, 1')
    a('v_lshl_add_u32 v5, v6, 3, v5')
    a('v_bfe_u32 v6, v1, 3, 1')
    a('v_lshl_add_u32 v5, v6, 1, v5')
    a('v_add_u32 v5, v5, v2')
    a(f'v_lshlrev_b32 v6, 2, v5')
    a(f'v_add_u32 v6, {L_MFIN}, v6')
    a('v_lshlrev_b32 v5, 4, v5')
    a(f'v_add_u32 v8, {L_MAX}, v5')

    def l_reads():
        a(f'ds_read_b32 v37, v{vFR} offset:{F_LSEQ}')
        a('ds_read_b128 v[32:35], v8')
        a('ds_read_b32 v40, v6')
    l_reads()
    a('s_lshl_b32 s93, s4, 16')
    a('s_lshl_b32 s92, s5, 11')
    a('s_add_u32 s93, s93, s92')
    a('s_lshl_b32 s92, s3, 9')
    a('s_add_u32 s93, s93, s92')
    a(f's_add_u32 s93, s93, {WS_REC}')
    for ap in range(8):
        t = PK + 4 * ap
        j = 2 * ap
        a(f'v_cvt_pk_bf16_f32 v{t}, v{O_ + j}, v{O_ + 16 + j}')
        a(f'v_cvt_pk_bf16_f32 v{t + 1}, v{O_ + 32 + j}, v{O_ + 48 + j}')
        a(f'v_cvt_pk_bf16_f32 v{t + 2}, v{O_ + j + 1}, v{O_ + 16 + j + 1}')
        a(f'v_cvt_pk_bf16_f32 v{t + 3}, v{O_ + 32 + j + 1}, v{O_ + 48 + j + 1}')
        a(f's_add_u32 s92, s91, {(8 * (ap // 2) + 2 * (ap % 2)) * 131072}')
        a(f'v_permlane16_swap_b32 v{t}, v{t + 2}')
        a(f'v_permlane16_swap_b32 v{t + 1}, v{t + 3}')
        a(f'buffer_store_dwordx4 {vr(t, 4)}, v4, {S(R_WS)}, s92 offen sc1')
    stamp(5)
    for ap in range(8):
        xor_chain(XX + ap, range(PK + 4 * ap, PK + 4 * ap + 4))
    for k in range(4):
        dpp('v_xor_b32', XX + 2 * k, XX + 2 * k, XX + 2 * k, 'row_ror:8', 0x3)
    for k in range(4):
        dpp('v_xor_b32', XX + 2 * k, XX + 2 * k + 1, XX + 2 * k + 1, 'row_ror:8', 0xc)
    for m in range(2):
        dpp('v_xor_b32', XX + 4 * m, XX + 4 * m, XX + 4 * m, 'row_half_mirror', 0x5)
    for m in range(2):
        dpp('v_xor_b32', XX + 4 * m, XX + 4 * m + 2, XX + 4 * m + 2, 'row_half_mirror', 0xa)
    for m in range(2):
        dpp('v_xor_b32', XX + 4 * m, XX + 4 * m, XX + 4 * m, 'quad_perm:[1,0,3,2]')
    a('s_waitcnt lgkmcnt(0)')
    a('v_cmp_gt_u32 vcc, 4, v37')
    a('v_add_f32 v32, v32, v33')
    a('v_add_f32 v34, v34, v35')
    for m in range(2):
        dpp('v_xor_b32', XX + 4 * m, XX + 4 * m, XX + 4 * m, 'quad_perm:[2,3,0,1]')
    a('s_cbranch_vccnz L_lslow')
    a.label('L_lok')
    a('v_add_f32 v41, v32, v34')
    a(f'v_mov_b32 v42, v{XX}')
    ex(0x2222222222222222)
    a(f'v_mov_b32 v42, v{XX + 4}')
    ex(0x3333333333333333)
    xor_chain(43, [40, 41, 42], f's{S_TAG}')
    a(f'buffer_store_dwordx4 v[40:43], v5, {S(R_WS)}, s93 offen sc1')
    if o.stamps:
        stamp(6)
        a('s_waitcnt vmcnt(0)')
        stamp(7)
        a('s_cmp_lg_u32 s3, 0')
        a('s_cbranch_scc1 L_end')
        dump_stamps(10, 0)
    a('s_endpgm')
    a.label('L_lslow')
    l_reads()
    a('s_waitcnt lgkmcnt(0)')
    a('v_cmp_gt_u32 vcc, 4, v37')
    a('v_add_f32 v32, v32, v33')
    a('v_add_f32 v34, v34, v35')
    a('s_cbranch_vccz L_lok')
    a(f's_sub_u32 s{S_CNT}, s{S_CNT}, 1')
    a('s_cbranch_scc0 L_lslow')
    a('s_branch L_lok')
    a.label('L_pslow')
    a('s_waitcnt lgkmcnt(0)')
    a('s_add_u32 s94, s97, 2')
    a('v_cmp_eq_u32 vcc, s94, v32')
    a('s_and_b32 s94, s95, 1')
    a('s_cbranch_scc1 L_pretry')
    a('s_cbranch_vccnz L_exact')
    a.label('L_pretry')
    a(f's_sub_u32 s{S_CNT}, s{S_CNT}, 1')
    a('s_cbranch_scc0 L_ppoll')
    a('s_branch L_pgo')
    a.label('L_end')
    a('s_endpgm')

    txt = HEADER
    txt += f'; @launch grid=(256,1,1) block=(512,1,1) lds={LDS_TOTAL}\n'
    txt += '.amdgcn_target "amdgcn-amd-amdhsa--gfx950"\n.text\n'
    txt += a.finalize()
    txt += f""".section .rodata,"a"
.p2align 6
.amdhsa_kernel {name}
  .amdhsa_next_free_vgpr 256
  .amdhsa_next_free_sgpr 102
  .amdhsa_accum_offset 256
  .amdhsa_group_segment_fixed_size 0
  .amdhsa_kernarg_size 104
  .amdhsa_user_sgpr_count 2
  .amdhsa_user_sgpr_kernarg_segment_ptr 1
  .amdhsa_system_sgpr_workgroup_id_x 1
.end_amdhsa_kernel
"""
    return txt


if __name__ == '__main__':
    o = Opt()
    for kv in sys.argv[2:]:
        k, v = kv.split('=')
        setattr(o, k, int(v))
    open(sys.argv[1], 'w').write(gen(o))
```

```python
import math, struct
def f32bits(x):
    return '0x%08x' % struct.unpack('<I', struct.pack('<f', x))[0]
WS_QA = 0x00000
WS_QAH = 0x20000
WS_FL = 0x2C000
WS_HU = 0x24000
WS_GO = 0x28000
WS_ST = 0x30000
WS_OPT = 0x40000
WS_CLEAN = 0x50000
WS_CP = 0x50000
WS_HP = 0x70000
WS_ACT = 0x78000
WS_EPOCH = 0x81000
WS_STAMP = 0x90000
WS_QP = 0xC0000
WS_OP = 0x100000
WS_REC = 0x500000
WS_QPL = 0x540000
WS_CPL = 0x580000
WS_END = 0x5A0000
QSCALE = (128 ** -0.5) * math.log2(math.e)
QSCALE_BITS = f32bits(QSCALE)
GELU_BITS = f32bits(-2.0 * math.sqrt(2.0 / math.pi) * math.log2(math.e))
```

```python
import sys
sys.path.insert(0, 'dev')
from asmdsl import Asm
from layout5 import *

NAME = 'sequential_preLN__compressed_kv_cla__glu_gated_geglu__decode'
HEADER = open('cdna_kernels/' + NAME + '.s.ref').read().split('; Override launch')[0]
LDS_TOTAL = 163840
SB = 130048
L_P = 131072
FB = 162816
F_LAND, F_QST, F_MSEQ, F_PSEQ, F_DONE, F_LSEQ, F_HUS = 0, 16, 32, 48, 64, 80, 96
L_ALPHA, L_MFIN, L_MAX = FB + 128, FB + 256, FB + 512
A_WQ, A_WUK, A_WUV, A_WO, A_X, A_C, A_D = 0, 32768, 90112, 122880, 155648, 156672, 158720

R_X, R_WS, R_CKV, R_WQ, R_WUK, R_WUV, R_WO, R_WG, R_WU, R_WD, R_OUT, R_ACT = [8 + 4 * i for i in range(12)]
SIZES = {R_X: 4096, R_WS: WS_END, R_CKV: 32 << 20, R_WQ: 4 << 20, R_WUK: 4 << 20, R_WUV: 4 << 20, R_WO: 4 << 20,
         R_WG: 512 * 2752, R_WU: 512 * 2752, R_WD: 1376 * 1024, R_OUT: 4096, R_ACT: 43 * 256}
PTR = {R_X: 64, R_CKV: 66, R_WQ: 68, R_WUK: 70, R_WUV: 72, R_WO: 74, R_WG: 78, R_WU: 80, R_WD: 82, R_OUT: 84}
S_TAG, S_ONES, S_LO1, S_HI1, S_CNT, S_MASK = 56, 57, 58, 59, 60, 62
SPIN = 20000
XOR3 = 'bitop3:0x96'


class Opt:
    stamps = 0
    w0 = 3
    n0 = 8
    window = 8
    w3 = 16
    wwin = 8
    sleep = 1
    sleep_long = 6
    stsleep = 3
    thr = 60
    dbgwg = 192
    hold = 0
    dsleep = 1
    ddelay = 0
    gon = 56
    fine = 0
    hupos = 1
    edelay = 0
    efwin = 3
    sw = 1
    efgo = 0
    qdelay = 0
    hprio = 1
    nsamp = 1
    wgo = 0
    esleep = 0
    fdelay = 8
    now = 0
    w1 = 8
    n1 = 0


def vr(a, n):
    return f'v[{a}:{a + n - 1}]' if n > 1 else f'v{a}'


def S(base):
    return f's[{base}:{base + 3}]'


def gen(o):
    a = Asm()
    name = NAME + '_kernel'
    o.st3 = o.stamps == 3

    def ex(mask):
        if mask == -1:
            a('s_mov_b64 exec, -1')
        elif mask <= 64:
            a(f's_mov_b64 exec, {mask}')
        else:
            a(f's_mov_b32 exec_lo, 0x{mask & 0xffffffff:x}')
            a(f's_mov_b32 exec_hi, 0x{mask >> 32:x}')

    def dpp(op, d, s0, s1, ctrl, bank=0xf):
        a(f'{op}_dpp v{d}, v{s0}, v{s1} {ctrl} row_mask:0xf bank_mask:0x{bank:x}')

    def swap_step(op, v, t, which):
        a(f'v_mov_b32 v{t}, v{v}')
        a(f'v_permlane{which}_swap_b32 v{v}, v{t}')
        a(f'{op} v{v}, v{v}, v{t}')

    def fine2(r):
        if o.fine == 2:
            lb = a.uid('f2')
            a('s_cmp_lg_u32 s97, 0')
            a(f's_cbranch_scc1 {lb} ;noflush')
            a(f's_memtime s[{r}:{r + 1}]')
            a.label(lb)

    def f3(r):
        if o.fine == 3:
            a(f's_memtime s[{r}:{r + 1}]')

    def stamp(idx):
        if o.stamps:
            a(f's_memrealtime s[{64 + 2 * idx}:{65 + 2 * idx}]')

    def dump_stamps(n, grp, dbg=None):
        a('s_waitcnt lgkmcnt(0)')
        a('s_mov_b64 exec, -1')
        a('v_mov_b32 v3, 0')
        a('v_writelane_b32 v3, s100, 0')
        for i in range(1, n):
            a(f'v_writelane_b32 v3, s{64 + 2 * i}, {i}')
        a('v_mbcnt_lo_u32_b32 v4, -1, 0')
        a('v_lshlrev_b32 v4, 2, v4')
        a('s_lshl_b32 s90, s2, 7')
        a(f's_add_u32 s90, s90, {WS_STAMP + 64 * grp}')
        ex(0xffff)
        a(f'buffer_store_dword v3, v4, {S(R_WS)}, s90 offen')
        if o.stamps == 2 and dbg:
            lb = a.uid('nodbg')
            a('v_subrev_u32 v3, s100, v3')
            if dbg == 'h':
                a(f's_cmp_lg_u32 s2, {o.dbgwg}')
                a(f's_cbranch_scc1 {lb}')
                ex(0x7fe)
                a('global_store_dword v4, v3, s[86:87] offset:-4')
            else:
                a('s_cmp_lg_u32 s2, 0')
                a(f's_cbranch_scc1 {lb}')
                ex(0x3e8)
                a('v_mbcnt_lo_u32_b32 v4, exec_lo, 0')
                a('v_lshlrev_b32 v4, 2, v4')
                a('global_store_dword v4, v3, s[86:87] offset:40')
            a.label(lb)

    def xor_chain(tmp, regs, last=None):
        ops = [f'v{r}' for r in regs] + ([last] if last else [])
        a(f'v_bitop3_b32 v{tmp}, {ops[0]}, {ops[1]}, {ops[2]} {XOR3}')
        ops = ops[3:]
        while len(ops) >= 2:
            a(f'v_bitop3_b32 v{tmp}, v{tmp}, {ops[0]}, {ops[1]} {XOR3}')
            ops = ops[2:]
        if ops:
            a(f'v_xor_b32 v{tmp}, {ops[0]}, v{tmp}')

    def chk_sentinel(regs, tmp):
        rs = list(regs)
        a(f'v_max3_u32 v{tmp}, v{rs[0]}, v{rs[1]}, v{rs[2]}')
        rs = rs[3:]
        while len(rs) >= 2:
            a(f'v_max3_u32 v{tmp}, v{tmp}, v{rs[0]}, v{rs[1]}')
            rs = rs[2:]
        if rs:
            a(f'v_max_u32 v{tmp}, v{tmp}, v{rs[0]}')
        a(f'v_cmp_eq_u32 vcc, -1, v{tmp}')

    def poll(loads, check, sleep=None, wait='s_waitcnt vmcnt(0)'):
        L, Dn = a.uid('poll'), a.uid('pdone')
        a(f's_mov_b32 s{S_CNT}, {SPIN}')
        a.label(L)
        loads()
        a(wait)
        check()
        a(f's_cbranch_vccz {Dn}')
        sl = o.sleep if sleep is None else sleep
        if sl:
            a(f's_sleep {sl}')
        a(f's_sub_u32 s{S_CNT}, s{S_CNT}, 1')
        a(f's_cbranch_scc0 {L}')
        a.label(Dn)

    def lds_wait(addr, off, want, tmp, sleep=1):
        L, Dn = a.uid('lw'), a.uid('lwd')
        a(f's_mov_b32 s{S_CNT}, {SPIN * 40}')
        a.label(L)
        a(f'ds_read_b32 v{tmp}, v{addr} offset:{off}')
        a('s_waitcnt lgkmcnt(0)')
        a(f'v_cmp_gt_u32 vcc, {want}, v{tmp}')
        a(f's_cbranch_vccz {Dn}')
        if sleep:
            a(f's_sleep {sleep}')
        a(f's_sub_u32 s{S_CNT}, s{S_CNT}, 1')
        a(f's_cbranch_scc0 {L}')
        a.label(Dn)

    def mfma16(d, x, y, first):
        c = '0' if first else vr(d, 4)
        a(f'v_mfma_f32_16x16x32_bf16 {vr(d, 4)}, {vr(x, 4)}, {vr(y, 4)}, {c}')

    def srd(rs):
        for r in rs:
            a(f's_mov_b32 s{r + 2}, {SIZES[r]}')
            a(f's_mov_b32 s{r + 3}, 0x00020000')

    def srd_ptr(rs):
        for r in rs:
            if r == R_ACT:
                a(f's_add_u32 s{R_ACT}, s{R_WS}, {WS_ACT}')
                a(f's_addc_u32 s{R_ACT + 1}, s{R_WS + 1}, 0')
            else:
                a(f's_mov_b64 s[{r}:{r + 1}], s[{PTR[r]}:{PTR[r] + 1}]')

    def consts():
        a(f's_mov_b32 s{S_ONES}, 0x3f803f80')
        a(f's_mov_b32 s{S_LO1}, 0x3f80')
        a(f's_mov_b32 s{S_HI1}, 0x3f800000')
        a(f's_mov_b32 s{S_MASK}, 0xffff0000')

    def get_tag():
        a('s_waitcnt lgkmcnt(0)')
        a(f's_add_u32 s{S_TAG}, s{S_TAG}, 0x9e3779b9')

    def vF(d):
        a(f'v_bfe_u32 v{d}, v1, 2, 2')
        a(f'v_lshlrev_b32 v{d}, 8, v{d}')
        a(f'v_lshl_add_u32 v{d}, v3, 6, v{d}')
        a(f'v_lshl_add_u32 v{d}, v4, 4, v{d}')

    def tr64_addr(d, t):
        a(f'v_bfe_u32 v{t}, v1, 2, 2')
        a(f'v_lshl_add_u32 v{t}, v3, 3, v{t}')
        a(f'v_lshlrev_b32 v{d}, 6, v{t}')
        a(f'v_lshl_add_u32 v{d}, v4, 3, v{d}')

    def tr_op(dst, addr, off, tau):
        a(f'ds_read_b64_tr_b16 {vr(dst, 2)}, v{addr} offset:{off}')
        a(f'ds_read_b64_tr_b16 {vr(dst + 2, 2)}, v{addr} offset:{off + tau}')

    def red4_read(x, addr):
        ex(0xffffffff)
        for w in range(4):
            a(f'ds_read_b128 {vr(x + 4 * w, 4)}, v{addr} offset:{512 * w}')
        a('s_waitcnt lgkmcnt(2)')
        for i in range(4):
            a(f'v_add_f32 v{x + i}, v{x + i}, v{x + 4 + i}')
        a('s_waitcnt lgkmcnt(0)')
        for i in range(4):
            a(f'v_add_f32 v{x + 8 + i}, v{x + 8 + i}, v{x + 12 + i}')
        for i in range(4):
            a(f'v_add_f32 v{x + i}, v{x + i}, v{x + 8 + i}')

    def frag_addr(dst, t):
        a(f'v_bfe_u32 v{dst}, v1, 1, 2')
        a(f'v_lshlrev_b32 v{dst}, 6, v{dst}')
        a(f'v_bfe_u32 v{t}, v1, 3, 2')
        a(f'v_lshl_add_u32 v{dst}, v{t}, 4, v{dst}')
        a(f'v_and_b32 v{t}, 1, v1')
        a(f'v_lshl_add_u32 v{dst}, v{t}, 3, v{dst}')

    M4 = 0x000f000f000f000f

    def arrive(wave, ret, t0, off, sel='s3'):
        lb = a.uid('arr')
        a(f's_cmp_lg_u32 {sel}, {wave}')
        a(f's_cbranch_scc1 {lb} ;noflush')
        a(f'v_mov_b32 v{t0}, {off}')
        a(f'v_mov_b32 v{ret}, 1')
        ex(1)
        a(f'global_atomic_add v{ret}, v{t0}, v{ret}, s[86:87] sc0 sc1')
        ex(-1)
        a.label(lb)

    def release(wave, ret, t0, last, flag, wait=None):
        lb = a.uid('rel')
        a(f's_cmp_lg_u32 s3, {wave}')
        a(f's_cbranch_scc1 {lb} ;noflush')
        if wait:
            a(wait)
        a(f'v_readfirstlane_b32 s1, v{ret}')
        a(f's_cmp_lg_u32 s1, {last}')
        a(f's_cbranch_scc1 {lb} ;noflush')
        a('s_mov_b64 exec, -1')
        a(f'v_mbcnt_lo_u32_b32 v{t0}, -1, 0')
        a(f'v_lshlrev_b32 v{t0}, 2, v{t0}')
        a(f'v_mov_b32 v{ret}, s{S_TAG}')
        if isinstance(flag, int):
            a(f's_mov_b32 s1, {flag}')
            flag = 's1'
        ex(0xffffffff)
        a(f'buffer_store_dword v{ret}, v{t0}, {S(R_WS)}, {flag} offen sc1')
        ex(-1)
        a.label(lb)

    def flag_wait(flag, t0, sleep):
        if isinstance(flag, int):
            a(f's_mov_b32 s1, {flag}')
            flag = 's1'
        ex(1)
        poll(lambda: a(f'buffer_load_dword v{t0}, off, {S(R_WS)}, {flag} sc1'),
             lambda: a(f'v_cmp_ne_u32 vcc, s{S_TAG}, v{t0}'), sleep)
        ex(-1)

    a(f'.globl {name}\n.p2align 8\n.type {name},@function')
    a.label(name)
    if o.stamps:
        a('s_memrealtime s[100:101]')
    a('s_cmp_ge_u32 s2, 256')
    a('s_cbranch_scc1 L_end')
    a('s_load_dwordx16 s[64:79], s[0:1], 0')
    a('s_load_dwordx8 s[80:87], s[0:1], 64')
    a(f's_load_dwordx2 s[{R_WS}:{R_WS + 1}], s[0:1], 96')
    a('v_and_b32 v1, 63, v0')
    a('v_lshrrev_b32 v2, 6, v0')
    a('v_readfirstlane_b32 s3, v2')
    a('v_lshlrev_b32 v2, 4, v1')
    a('v_lshrrev_b32 v3, 4, v1')
    a('v_and_b32 v4, 3, v1')
    a('v_and_b32 v11, 15, v1')
    srd([R_WS, R_X])
    a('s_cmp_ge_u32 s2, 128')
    a('s_cbranch_scc1 L_att')

    srd([R_WQ, R_WUK])
    a('s_and_b32 s4, s2, 7')
    a('s_lshl_b32 s4, s4, 2')
    a('s_bfe_u32 s5, s2, 0x20003')
    a('s_add_u32 s4, s4, s5')
    a('s_lshr_b32 s5, s2, 5')
    a('s_lshl_b32 s6, s4, 8')
    a('v_lshlrev_b32 v5, 1, v3')
    a('v_xor_b32 v5, v5, v11')
    a('v_lshlrev_b32 v5, 4, v5')
    a('v_lshl_add_u32 v6, v3, 13, v5')
    a('v_xor_b32 v7, 0x80, v6')
    a('v_xor_b32 v8, v3, v11')
    a('v_lshlrev_b32 v8, 4, v8')
    a('v_lshl_add_u32 v8, v3, 13, v8')
    a('s_lshl_b32 s90, s5, 20')
    a('s_lshl_b32 s91, s3, 17')
    a('s_add_u32 s90, s90, s91')
    a('s_add_u32 s90, s90, s6')
    a('s_lshl_b32 s91, s3, 12')
    a('s_mov_b32 m0, s91')
    a('v_bfe_u32 v10, v1, 2, 2')
    a('v_lshlrev_b32 v10, 6, v10')
    a('v_lshl_add_u32 v10, v4, 10, v10')
    a('v_lshl_add_u32 v10, v3, 4, v10')
    a('s_lshl_b32 s93, s5, 8')
    XS, XO = 12, 28
    a('s_waitcnt lgkmcnt(0)')
    srd_ptr([R_X, R_WQ, R_WUK])
    a('s_cmp_lg_u32 s3, 0')
    a('s_cbranch_scc1 L_nox')
    for i in range(4):
        a(f'buffer_load_dwordx4 {vr(XS + 4 * i, 4)}, v10, {S(R_X)}, 0 offen offset:{256 * i}')
    a(f'buffer_load_dwordx4 {vr(XO, 4)}, v10, {S(R_X)}, s93 offen')
    a.label('L_nox')
    for i in range(4):
        a(f's_add_u32 s92, s90, {i * 32768}')
        a(f'buffer_load_dwordx4 v{6 + i // 2}, {S(R_WQ)}, s92 offen nt lds')
        if i < 3:
            a('s_add_u32 m0, m0, 1024')
    a('s_barrier')
    a('s_cmp_lt_u32 s3, 4')
    a('s_cbranch_scc1 L_nouk')
    a('s_lshl_b32 s91, s3, 17')
    a('s_add_u32 s90, s90, s91')
    a(f's_sub_u32 s90, s90, {8 << 17}')
    a('s_lshl_b32 s91, s3, 13')
    a(f's_add_u32 m0, s91, {A_WUK - 32768}')
    for i in range(8):
        if i % 2 == 0:
            a(f'v_xor_b32 v9, {64 * (i // 2)}, v8')
        a(f's_add_u32 s92, s90, {i * 32768}')
        a(f'buffer_load_dwordx4 v9, {S(R_WUK)}, s92 offen nt lds')
        if i < 7:
            a('s_add_u32 m0, m0, 1024')
    a.label('L_nouk')
    a(f's_load_dword s{S_TAG}, s[{R_WS}:{R_WS + 1}], {WS_EPOCH}')
    srd_ptr([R_WUV, R_WO, R_WG, R_WU, R_WD, R_OUT, R_ACT])
    consts()
    stamp(1)
    a('s_cmp_lg_u32 s3, 0')
    a('s_cbranch_scc1 L_noln')
    a('s_waitcnt vmcnt(5)')
    for i in range(16):
        a(f'v_dot2_f32_bf16 v34, v{XS + i}, s{S_ONES}, {"0" if i == 0 else "v34"}')
        a(f'v_dot2_f32_bf16 v35, v{XS + i}, v{XS + i}, {"0" if i == 0 else "v35"}')
    for c in ('row_ror:4', 'row_ror:8'):
        dpp('v_add_f32', 34, 34, 34, c)
        dpp('v_add_f32', 35, 35, 35, c)
    for wh in (16, 32):
        a('v_mov_b32 v12, v34')
        a('v_mov_b32 v13, v35')
        a(f'v_permlane{wh}_swap_b32 v34, v12')
        a(f'v_permlane{wh}_swap_b32 v35, v13')
        a('v_add_f32 v34, v34, v12')
        a('v_add_f32 v35, v35, v13')
    a('v_mul_f32 v34, 0x3b000000, v34')
    a('v_mul_f32 v35, 0x3b000000, v35')
    a('v_fma_f32 v35, -v34, v34, v35')
    a('v_max_f32 v35, 0, v35')
    a('v_add_f32 v35, 0x3727c5ac, v35')
    a('v_rsq_f32 v35, v35')
    a(f'v_mul_f32 v35, {QSCALE_BITS}, v35')
    a('v_mul_f32 v34, v34, v35')
    a('s_waitcnt vmcnt(4)')
    for i in range(4):
        a(f'v_lshlrev_b32 v12, 16, v{XO + i}')
        a(f'v_and_b32 v13, s{S_MASK}, v{XO + i}')
        a('v_fma_f32 v12, v12, v35, -v34')
        a('v_fma_f32 v13, v13, v35, -v34')
        a(f'v_cvt_pk_bf16_f32 v{XO + i}, v12, v13')
    a(f'v_add_u32 v12, {A_X}, v2')
    a(f'ds_write_b128 v12, {vr(XO, 4)}')
    a.label('L_noln')
    srd([R_WUV, R_WO, R_WG, R_WU, R_WD, R_OUT, R_ACT])
    a('s_getpc_b64 s[94:95]')
    a.label('L_pc')
    a(f's_sub_u32 s94, s94, L_pc-{name}')
    a('s_subb_u32 s95, s95, 0')
    a('s_andn2_b32 s92, s2, 7')
    a('s_add_u32 s92, s92, s3')
    a('s_lshl_b32 s92, s92, 8')
    a('v_lshl_add_u32 v32, v1, 2, s92')
    a(f'v_min_u32 v32, L_end-{name}, v32')
    a('global_load_dword v33, v32, s[94:95]')
    for i in range(4):
        a(f'v_mov_b32 v{36 + i}, -1')
    a('s_lshl_b32 s92, s2, 3')
    a('s_add_u32 s92, s92, s3')
    a('s_mul_i32 s92, s92, 192')
    a(f's_add_u32 s92, s92, {WS_CLEAN}')
    ex(0xfff)
    a(f'buffer_store_dwordx4 v[36:39], v2, {S(R_WS)}, s92 offen sc1')
    ex(-1)
    a('v_bfe_u32 v40, v1, 2, 3')
    a('v_lshlrev_b32 v40, 1, v40')
    a('v_bfe_u32 v41, v1, 1, 1')
    a('s_lshl_b32 s92, s3, 1')
    a(f'v_bitop3_b32 v40, v40, v41, s92 {XOR3}')
    a('v_lshlrev_b32 v40, 4, v40')
    a('v_bfe_u32 v41, v1, 2, 2')
    a('v_lshl_add_u32 v41, v3, 3, v41')
    a('v_lshl_add_u32 v40, v41, 8, v40')
    a('v_and_b32 v41, 1, v1')
    a('v_lshl_add_u32 v40, v41, 3, v40')
    a('v_lshlrev_b32 v41, 8, v3')
    a('v_lshl_add_u32 v41, v4, 4, v41')
    a(f'v_add_u32 v41, {A_X}, v41')
    a('v_lshlrev_b32 v42, 6, v3')
    a('v_lshl_add_u32 v42, v4, 4, v42')
    a('s_lshl_b32 s96, s4, 13')
    if WS_QP:
        a(f's_add_u32 s96, s96, {WS_QP}')
    a('s_lshl_b32 s92, s5, 11')
    a('s_add_u32 s97, s96, s92')
    a('s_lshl_b32 s92, s3, 8')
    a('s_add_u32 s97, s97, s92')
    get_tag()
    stamp(2)
    a('v_bfe_u32 v43, v1, 2, 2')
    a('v_lshlrev_b32 v43, 11, v43')
    a('v_lshl_add_u32 v43, v3, 7, v43')
    a('v_lshl_add_u32 v43, v4, 4, v43')
    a('s_cmp_lt_u32 s3, 4')
    a('s_cbranch_scc1 L_wq_lo')
    a('s_waitcnt vmcnt(10)')
    a('s_branch L_wq_hi')
    a.label('L_wq_lo')
    a('s_waitcnt vmcnt(2)')
    a.label('L_wq_hi')
    a('s_barrier')
    W1, XF, AC = 12, 44, 60
    for t in range(4):
        tr_op(W1 + 4 * t, 40, A_WQ + 8192 * t, 1024)
        a(f'ds_read_b128 {vr(XF + 4 * t, 4)}, v41 offset:{64 * t}')
    for t in range(4):
        a(f's_waitcnt lgkmcnt({3 * (3 - t)})')
        mfma16(AC, W1 + 4 * t, XF + 4 * t, t == 0)
    a(f'v_cvt_pk_bf16_f32 v64, v{AC}, v{AC + 1}')
    a(f'v_cvt_pk_bf16_f32 v65, v{AC + 2}, v{AC + 3}')
    a(f'v_bitop3_b32 v66, v64, v65, s{S_TAG} {XOR3}')
    ex(M4)
    a(f'buffer_store_dwordx4 v[64:67], v42, {S(R_WS)}, s97 offen sc1')
    ex(-1)
    stamp(3)
    UK, Q, AC2, FR = 68, 100, 132, 140

    def a2_loads():
        for n in range(8):
            a(f'buffer_load_dwordx4 {vr(Q + 4 * n, 4)}, v43, {S(R_WS)}, s96 offen offset:{512 * (n // 2) + 64 * (n % 2)} sc1')
    a('s_cmp_lt_u32 s3, 4')
    a('s_cbranch_scc1 L_a2')
    a('s_waitcnt vmcnt(0)')
    a('s_barrier')
    a('s_branch L_a_done')
    a.label('L_a2')
    a('s_waitcnt vmcnt(0)')
    if o.qdelay:
        a(f's_sleep {o.qdelay}')
    a2_loads()
    a('v_lshrrev_b32 v12, 2, v11')
    a('v_lshl_add_u32 v12, v12, 3, v4')
    a('v_lshlrev_b32 v12, 8, v12')
    a('v_xor_b32 v13, v3, v11')
    a('v_lshl_add_u32 v12, v13, 4, v12')
    a('s_lshl_b32 s92, s3, 13')
    a(f's_add_u32 s92, s92, {A_WUK}')
    a('v_add_u32 v12, s92, v12')
    a('s_barrier')
    for t in range(4):
        a(f'v_xor_b32 v13, {64 * t}, v12')
        for sub in range(2):
            a(f'ds_read_b128 {vr(UK + 16 * sub + 4 * t, 4)}, v13 offset:{1024 * sub}')
    a('v_lshlrev_b32 v15, 8, v4')
    a('v_lshl_add_u32 v15, v3, 4, v15')
    a('s_lshl_b32 s91, s3, 6')
    a(f's_add_u32 s91, s91, {A_C}')
    a('v_add_u32 v15, s91, v15')
    a(f'v_add_u32 v16, {A_C}, v2')
    a('v_lshlrev_b32 v20, 15, v3')
    a('v_lshl_add_u32 v20, v11, 4, v20')
    a('v_lshlrev_b32 v21, 3, v3')
    a('s_lshl_b32 s91, s4, 10')
    a('s_lshl_b32 s92, s5, 8')
    a('s_add_u32 s92, s92, s91')
    a('s_lshr_b32 s93, s92, 1')
    if WS_QA:
        a(f's_add_u32 s92, s92, {WS_QA}')
    a(f's_add_u32 s93, s93, {WS_QAH}')
    a(f's_cmp_lt_u32 s5, {o.nsamp}')
    a('s_cselect_b32 s98, s3, 99')
    a('v_lshlrev_b32 v24, 7, v1')
    a(f'v_mov_b32 v25, s{S_TAG}')
    a(f's_mov_b32 s{S_CNT}, {SPIN}')
    a('s_branch L_a2chk')
    a.label('L_a2poll')
    a2_loads()
    a.label('L_a2chk')
    for n in range(8):
        a(f's_waitcnt vmcnt({7 - n})')
        a(f'v_bitop3_b32 v{Q + 4 * n + 2}, v{Q + 4 * n}, v{Q + 4 * n + 1}, v{Q + 4 * n + 2} {XOR3}')
    a(f'v_max3_u32 v17, v{Q + 2}, v{Q + 6}, v{Q + 10}')
    a(f'v_min3_u32 v18, v{Q + 2}, v{Q + 6}, v{Q + 10}')
    a(f'v_max3_u32 v17, v17, v{Q + 14}, v{Q + 18}')
    a(f'v_min3_u32 v18, v18, v{Q + 14}, v{Q + 18}')
    a(f'v_max3_u32 v17, v17, v{Q + 22}, v{Q + 26}')
    a(f'v_min3_u32 v18, v18, v{Q + 22}, v{Q + 26}')
    a(f'v_max3_u32 v17, v17, v{Q + 30}, s{S_TAG}')
    a(f'v_min3_u32 v18, v18, v{Q + 30}, s{S_TAG}')
    a('v_cmp_ne_u32 vcc, v17, v18')
    a('s_cbranch_vccz L_a2go')
    a(f's_sub_u32 s{S_CNT}, s{S_CNT}, 1')
    a('s_cbranch_scc0 L_a2poll')
    a.label('L_a2go')
    if o.st3:
        a('s_memrealtime s[72:73]')
    stamp(4)
    arrive(3, 22, 23, 0, 's98')
    a('s_waitcnt lgkmcnt(0)')
    for n in range(8):
        for sub in range(2):
            d = AC2 + 4 * sub
            c = '0' if n == 0 else vr(d, 4)
            a(f'v_mfma_f32_16x16x16_bf16 {vr(d, 4)}, {vr(UK + 16 * sub + 2 * n, 2)}, {vr(Q + 4 * n, 2)}, {c}')
    for c in ('row_ror:4', 'row_ror:8'):
        for i in range(8):
            dpp('v_add_f32', AC2 + i, AC2 + i, AC2 + i, c)
    for i in range(4):
        a(f'v_cvt_pk_bf16_f32 v{FR + i}, v{AC2 + 2 * i}, v{AC2 + 2 * i + 1}')
    ex(M4)
    a(f'ds_write_b128 v15, {vr(FR, 4)}')
    ex(-1)
    a('s_cmp_lg_u32 s98, 3')
    a('s_cbranch_scc1 L_norel')
    a('s_waitcnt vmcnt(0)')
    a('v_readfirstlane_b32 s1, v22')
    a(f's_cmp_lg_u32 s1, {32 * o.nsamp - 1}')
    a('s_cbranch_scc1 L_norel')
    a(f's_mov_b32 s1, {WS_HU}')
    a(f'buffer_store_dword v25, v24, {S(R_WS)}, s1 offen sc1')
    a(f's_mov_b32 s1, {WS_HU + 8192}')
    a(f'buffer_store_dword v25, v24, {S(R_WS)}, s1 offen sc1')
    a.label('L_norel')
    a('s_waitcnt lgkmcnt(0)')
    a.label('L_a_done')
    a('s_barrier')
    a('s_cmp_lg_u32 s3, 0')
    a('s_cbranch_scc1 L_a_pub')
    a(f'ds_read_b128 {vr(FR, 4)}, v16')
    a('s_waitcnt lgkmcnt(0)')
    a(f'buffer_store_dwordx4 {vr(FR, 4)}, v20, {S(R_WS)}, s92 offen sc1')
    xor_chain(18, range(FR, FR + 4))
    for c in ('quad_perm:[1,0,3,2]', 'quad_perm:[2,3,0,1]', 'row_ror:4', 'row_ror:8'):
        dpp('v_xor_b32', 18, 18, 18, c)
    a(f'v_xor_b32 v19, s{S_TAG}, v18')
    ex(0x0001000100010001)
    a(f'buffer_store_dwordx2 v[18:19], v21, {S(R_WS)}, s93 offen sc1')
    ex(-1)
    stamp(5)
    a.label('L_a_pub')
    a('s_and_b32 s7, s2, 7')
    a('s_lshr_b32 s63, s2, 3')
    a('v_lshl_add_u32 v6, v3, 18, v5')
    a('v_xor_b32 v7, 0x80, v6')
    a('s_lshl_b32 s0, s5, 20')
    a('s_add_u32 s0, s0, s6')
    a('s_mov_b32 s61, 0')
    D, WL, CA, OPC, OPD = 16, 32, 40, 64, 96
    a('s_and_b32 s94, s3, 3')
    a('s_lshr_b32 s95, s3, 2')
    a('v_bfe_u32 v56, v1, 2, 3')
    a('v_lshlrev_b32 v56, 1, v56')
    a('s_lshl_b32 s92, s94, 2')
    a(f'v_bitop3_b32 v56, v56, v4, s92 {XOR3}')
    a('v_lshlrev_b32 v56, 4, v56')
    a('v_bfe_u32 v58, v1, 2, 2')
    a('v_lshl_add_u32 v58, v3, 3, v58')
    a('v_lshl_add_u32 v56, v58, 8, v56')
    a(f'v_add_u32 v56, {A_WUV}, v56')
    tr64_addr(57, 58)
    a('s_lshl_b32 s91, s94, 13')
    a(f's_add_u32 s91, s91, {A_WO}')
    a('v_add_u32 v57, s91, v57')
    a('v_and_b32 v5, 31, v1')
    a('v_lshlrev_b32 v5, 11, v5')
    a('s_lshl_b32 s90, s94, 16')
    a('s_lshl_b32 s91, s5, 9')
    a('s_add_u32 s90, s90, s91')
    a('s_lshl_b32 s91, s4, 4')
    a('s_add_u32 s90, s90, s91')
    a(f's_add_u32 s90, s90, {WS_REC}')
    a('s_lshl_b32 s96, s4, 2')
    a('s_add_u32 s96, s96, s5')
    a('s_lshl_b32 s96, s96, 2')
    a('s_add_u32 s96, s96, s94')
    a('s_lshl_b32 s91, s96, 13')
    a('s_lshl_b32 s93, s95, 12')
    a('s_add_u32 s91, s91, s93')
    a(f's_add_u32 s91, s91, {WS_OP}')
    a('s_lshl_b32 s92, s95, 4')
    a('v_lshlrev_b32 v48, 4, v11')
    a('v_lshl_add_u32 v48, v3, 1, v48')
    a('s_lshl_b32 s93, s3, 8')
    a(f's_add_u32 s93, s93, {A_C}')
    a('v_add_u32 v48, s93, v48')
    a('v_and_b32 v49, 7, v1')
    a('v_lshlrev_b32 v49, 8, v49')
    a('v_lshl_add_u32 v49, v3, 4, v49')
    a(f'v_add_u32 v49, {A_C}, v49')
    a('v_lshlrev_b32 v50, 6, v3')
    a('v_lshl_add_u32 v50, v4, 4, v50')
    a('s_lshl_b32 s98, s4, 12')
    a('s_lshl_b32 s93, s94, 10')
    a('s_add_u32 s98, s98, s93')
    a('s_lshl_b32 s93, s5, 8')
    a('s_add_u32 s98, s98, s93')
    a(f's_add_u32 s98, s98, {WS_CP}')
    a('v_add_u32 v51, s92, v3')
    a('v_lshlrev_b32 v51, 2, v51')
    a('v_cmp_eq_u32 s[88:89], s95, v3')
    vF(128)
    a('v_lshlrev_b32 v129, 7, v4')
    a('v_lshl_add_u32 v129, v3, 4, v129')
    a('s_lshl_b32 s93, s94, 9')
    a(f's_add_u32 s93, s93, {A_D}')
    a('v_add_u32 v129, s93, v129')
    a('v_bfe_u32 v130, v1, 1, 2')
    a('v_lshlrev_b32 v130, 7, v130')
    a('v_bfe_u32 v9, v1, 3, 2')
    a('v_lshl_add_u32 v130, v9, 5, v130')
    a('v_and_b32 v9, 1, v1')
    a('v_lshl_add_u32 v130, v9, 4, v130')
    a(f'v_add_u32 v130, {A_D}, v130')
    a('v_lshlrev_b32 v131, 3, v1')
    a('s_lshl_b32 s6, s7, 14')
    a('s_lshl_b32 s93, s94, 12')
    a('s_add_u32 s6, s6, s93')
    a(f's_add_u32 s6, s6, {WS_CP}')
    a('s_lshl_b32 s99, s7, 12')
    a('s_lshl_b32 s93, s63, 8')
    a('s_add_u32 s99, s99, s93')
    a(f's_add_u32 s99, s99, {WS_HP}')
    a('v_lshrrev_b32 v8, 2, v1')
    a('s_cmp_lt_u32 s3, 4')
    a('s_cbranch_scc1 L_wlo')
    a('s_mov_b32 s61, 0')
    tr64_addr(58, 59)

    def go_wait(extra=0):
        a('s_lshl_b32 s96, s2, 7')
        a(f's_add_u32 s96, s96, {WS_GO}')
        ex(1)
        poll(lambda: a(f'buffer_load_dword v9, off, {S(R_WS)}, s96 sc1'), lambda: a(f'v_cmp_ne_u32 vcc, s{S_TAG}, v9'), 8)
        ex(-1)
    a('s_cmp_lt_u32 s2, 48')
    a('s_cbranch_scc1 L_E1')
    a('s_and_b32 s93, s2, 0x70')
    a('s_cmp_eq_u32 s93, 64')
    a('s_cbranch_scc1 L_F1')
    a.label('L_wnone')
    a('s_barrier')
    a('s_branch L_cstart')
    OP = 64
    H, XR, HA, X4, EA = 16, 128, 140, 148, 164
    EW, ES, ER, ESR, EST, EG, ECS = 180, 181, 182, 183, 184, 185, 186
    a.label('L_E1')
    a('s_mul_i32 s93, s7, 6')
    a('s_add_u32 s63, s63, s93')
    a('s_cmp_ge_u32 s63, 43')
    a('s_cbranch_scc1 L_wnone')
    a('s_mov_b32 s61, 1')
    if o.efgo == 1:
        go_wait()
    a('v_mul_u32_u24 v8, 2752, v8')
    a('v_lshl_add_u32 v8, v4, 4, v8')
    a(f's_mul_i32 s99, s94, {128 * 2752}')
    a('s_lshl_b32 s93, s63, 6')
    a('s_add_u32 s99, s99, s93')
    a('s_lshl_b32 s6, s94, 14')
    a('s_mov_b32 m0, s6')
    a('v_bfe_u32 v9, v1, 2, 2')
    a('v_lshlrev_b32 v9, 6, v9')
    a('v_lshl_add_u32 v9, v4, 10, v9')
    a('v_lshl_add_u32 v9, v3, 4, v9')
    a('s_lshl_b32 s93, s94, 8')
    a(f'buffer_load_dwordx4 {vr(XR, 4)}, v9, {S(R_X)}, s93 offen')
    for mat in range(2):
        for i in range(8):
            a(f's_add_u32 s93, s99, {16 * i * 2752}')
            a(f's_waitcnt vmcnt({o.efwin - 1})')
            a(f'buffer_load_dwordx4 v8, {S(R_WG if mat == 0 else R_WU)}, s93 offen nt lds')
            a('s_add_u32 m0, m0, 1024')
    a('v_add_u32 v58, s6, v58')
    a(f'v_lshlrev_b32 v{EW}, 8, v4')
    a(f'v_lshl_add_u32 v{EW}, v3, 4, v{EW}')
    a(f'v_add_u32 v{EW}, s6, v{EW}')
    a(f'v_lshlrev_b32 v{ES}, 3, v4')
    a(f'v_lshl_add_u32 v{ES}, v3, 2, v{ES}')
    a(f'v_add_u32 v{ES}, s6, v{ES}')
    a('s_and_b32 s93, s3, 1')
    a('s_lshl_b32 s93, s93, 6')
    a(f'v_add_u32 v{EST}, s93, v1')
    a(f'v_lshrrev_b32 v{ESR}, 5, v{EST}')
    a(f'v_and_b32 v{ER}, 31, v{EST}')
    a(f'v_lshlrev_b32 v{ER}, 2, v{ER}')
    a(f'v_lshl_add_u32 v{ER}, v{ESR}, 8, v{ER}')
    a(f'v_lshlrev_b32 v{ESR}, 3, v{ESR}')
    a(f'v_lshlrev_b32 v{EST}, 1, v{EST}')
    vF(EG)
    for i in range(4):
        a(f'v_mov_b32 v{X4 + i}, s{S_ONES}')
    a('s_waitcnt vmcnt(0)')
    for t in range(4):
        for k in range(4):
            tr_op(OP + 16 * t + 4 * k, 58, 8192 * (k // 2) + 2048 * t + 32 * (k % 2), 256)
        a(f's_waitcnt lgkmcnt({4 if t < 3 else 0})')
    for t in range(4):
        for k in range(4):
            mfma16(EA + 4 * k, OP + 16 * t + 4 * k, X4, t == 0)
    for i in range(4):
        a(f'v_lshlrev_b32 v{132 + 2 * i}, 16, v{XR + i}')
        a(f'v_and_b32 v{133 + 2 * i}, s{S_MASK}, v{XR + i}')

    def e_lds_write():
        ex(M4)
        for k in range(4):
            a(f'ds_write_b128 v{EW}, {vr(EA + 4 * k, 4)} offset:{64 * k}')
        ex(-1)
    e_lds_write()
    a('s_branch L_wnone')
    X, HR, FA = 160, 16, 40
    FW, FRD, FH, FO, FG, FX = 204, 205, 206, 207, 208, 210
    a.label('L_F1')
    a('s_mov_b32 s61, 2')
    if o.efgo == 1:
        go_wait()
    a('s_and_b32 s63, s63, 1')
    a('s_lshl_b32 s93, s7, 1')
    a('s_add_u32 s63, s63, s93')
    a('v_lshlrev_b32 v8, 10, v8')
    a('v_lshl_add_u32 v8, v4, 4, v8')
    a('s_lshl_b32 s99, s94, 15')
    a('s_lshl_b32 s98, s63, 6')
    a('s_add_u32 s99, s99, s98')
    a(f's_mul_i32 s6, s94, {22 * 1024}')
    a('s_mov_b32 m0, s6')
    a(f'v_bfe_u32 v{FO}, v1, 3, 2')
    a(f'v_lshlrev_b32 v{FO}, 10, v{FO}')
    a('v_and_b32 v9, 7, v1')
    a(f'v_lshl_add_u32 v{FO}, v9, 3, v{FO}')
    a(f'buffer_load_dwordx2 {vr(FX, 2)}, v{FO}, {S(R_X)}, s98 offen')
    for n in range(11):
        for i in range(2):
            a(f's_add_u32 s93, s99, {(128 * n + 16 * i) * 1024}')
            a(f's_waitcnt vmcnt({o.efwin})')
            a(f'buffer_load_dwordx4 v8, {S(R_WD)}, s93 offen nt lds')
            a('s_add_u32 m0, m0, 1024')
    a('v_add_u32 v58, s6, v58')
    a(f'v_lshlrev_b32 v{FW}, 7, v4')
    a(f'v_lshl_add_u32 v{FW}, v3, 4, v{FW}')
    a('s_lshl_b32 s93, s94, 9')
    a(f'v_add_u32 v{FW}, s93, v{FW}')
    frag_addr(FH, 9)
    a(f'v_lshlrev_b32 v{FG}, 6, v4')
    a(f'v_lshl_add_u32 v{FG}, v3, 4, v{FG}')
    a('s_waitcnt vmcnt(0)')
    for n in range(11):
        for cb in range(2):
            tr_op(OP + 8 * n + 4 * cb, 58, 2048 * n + 32 * cb, 256)
        if n % 2 == 1:
            a('s_waitcnt lgkmcnt(4)')
    a('s_branch L_wnone')
    a.label('L_wlo')
    a('s_lshl_b32 s93, s3, 15')
    a('s_add_u32 s0, s0, s93')
    a('s_lshl_b32 s93, s3, 13')
    a(f's_add_u32 m0, s93, {A_WUV}')
    a('v_lshlrev_b32 v8, 10, v8')
    a('v_lshl_add_u32 v8, v4, 4, v8')
    a('s_lshl_b32 s97, s7, 19')
    a('s_lshl_b32 s93, s3, 17')
    a('s_add_u32 s97, s97, s93')
    a('s_lshl_b32 s93, s63, 6')
    a('s_add_u32 s97, s97, s93')
    if o.wgo:
        go_wait()
    for i in range(8):
        a(f's_add_u32 s93, s0, {(16 * (i % 2) + i // 2) * 8192}')
        if i >= o.wwin:
            a(f's_waitcnt vmcnt({o.wwin - 1})')
        a(f'buffer_load_dwordx4 v{6 + (i // 2) % 2}, {S(R_WUV)}, s93 offen nt lds')
        a(f's_add_u32 m0, m0, {1024 if i < 7 else A_WO - A_WUV - 7168}')
    for i in range(8):
        a(f's_add_u32 s93, s97, {i * 16384}')
        if 8 + i >= o.wwin:
            a(f's_waitcnt vmcnt({o.wwin - 1})')
        a(f'buffer_load_dwordx4 v8, {S(R_WO)}, s93 offen nt lds')
        if i < 7:
            a('s_add_u32 m0, m0, 1024')
    a('s_waitcnt vmcnt(0)')
    a('s_barrier')
    for t in range(4):
        for k in range(2):
            tr_op(OPC + 8 * t + 4 * k, 56, 8192 * t + 8 * k, 1024)
            tr_op(OPD + 8 * t + 4 * k, 57, 2048 * t + 32 * k, 256)
        a('s_waitcnt lgkmcnt(4)')
    a.label('L_cstart')
    stamp(6)
    a('s_lshl_b32 s96, s94, 7')
    a(f's_add_u32 s96, s96, {WS_FL + 128}')
    flag_wait('s96', 9, o.stsleep)
    stamp(7)
    a(f's_mov_b32 s{S_CNT}, {SPIN}')
    a.label('L_call')
    a(f'buffer_load_dwordx4 v[12:15], v5, {S(R_WS)}, s90 offen sc1')
    for i in range(4):
        a(f'buffer_load_dwordx4 {vr(D + 4 * i, 4)}, v2, {S(R_WS)}, s91 offen offset:{1024 * i} sc1')
    a(f's_sub_u32 s{S_CNT}, s{S_CNT}, 1')
    a('s_cbranch_scc1 L_cdone')
    a('s_waitcnt vmcnt(4)')
    xor_chain(10, [12, 13, 14, 15], f's{S_TAG}')
    a('v_cmp_ne_u32 vcc, 0, v10')
    a('s_cbranch_vccz L_crec')
    a('s_waitcnt vmcnt(0)')
    a('s_branch L_call')
    a.label('L_crec')
    a('v_cndmask_b32 v9, 0, v14, s[88:89]')
    a('v_mov_b32 v14, v12')
    for op, v in (('v_max_f32', 14), ('v_add_f32', 14)):
        for c in ('quad_perm:[1,0,3,2]', 'quad_perm:[2,3,0,1]', 'row_ror:4', 'row_ror:8'):
            dpp(op, v, v, v, c)
        swap_step(op, v, 15, 16)
        if op == 'v_max_f32':
            a('v_sub_f32 v12, v12, v14')
            a('v_exp_f32 v12, v12')
            a('v_mul_f32 v14, v12, v13')
    a('v_rcp_f32 v14, v14')
    a('v_mul_f32 v12, v12, v14')
    a('v_cvt_pk_bf16_f32 v12, v12, 0')
    for i in range(4):
        a(f'ds_bpermute_b32 v{WL + i}, v51, v12 offset:{16 * i}')
    a('s_waitcnt lgkmcnt(0)')
    for i in range(4):
        a(f'v_lshlrev_b32 v{WL + 4 + i}, 16, v{WL + i}')
    a('s_waitcnt vmcnt(0)')
    stamp(8)
    f3(66)
    xor_chain(9, [9] + list(range(D, D + 16)))
    steps = ['quad_perm:[1,0,3,2]', 'quad_perm:[2,3,0,1]', 'row_ror:4', 'row_ror:8', 16, 32]
    for i in range(4):
        for u in range(4):
            for e in range(2):
                c = '0' if i == 0 else f'v{CA + 2 * u + e}'
                a(f'v_dot2_f32_bf16 v{CA + 2 * u + e}, v{D + 4 * i + u}, v{WL + 4 * e + i}, {c}')
            if u % 2 == 1 and steps:
                st = steps.pop(0)
                if isinstance(st, str):
                    dpp('v_xor_b32', 9, 9, 9, st)
                    if st == 'row_ror:8':
                        a('v_mov_b32 v10, v9')
                else:
                    a(f'v_permlane{st}_swap_b32 v9, v10')
                    a('v_xor_b32 v9, v9, v10')
                    a('v_mov_b32 v10, v9')
    a('v_cmp_ne_u32 vcc, 0, v9')
    for k in range(4):
        a(f'v_permlane16_swap_b32 v{CA + 2 * k}, v{CA + 2 * k + 1}')
    a('s_cbranch_vccnz L_call')
    a.label('L_cdone')
    for k in range(4):
        a(f'v_add_f32 v{CA + 2 * k}, v{CA + 2 * k}, v{CA + 2 * k + 1}')
    for k in range(2):
        a(f'v_permlane32_swap_b32 v{CA + 4 * k}, v{CA + 4 * k + 2}')
    for k in range(2):
        a(f'v_add_f32 v{CA + 4 * k}, v{CA + 4 * k}, v{CA + 4 * k + 2}')
    a(f'v_cvt_pk_bf16_f32 v{CA}, v{CA}, v{CA + 4}')
    a(f'ds_write_b16 v48, v{CA}')
    a(f'ds_write_b16_d16_hi v48, v{CA} offset:8')
    f3(68)
    a('s_waitcnt lgkmcnt(0)')
    a('s_barrier')
    f3(70)
    a('s_cmp_ge_u32 s3, 4')
    a('s_cbranch_scc1 L_hi')
    for t in range(4):
        a(f'ds_read_b128 {vr(D + 4 * t, 4)}, v49 offset:{64 * t}')
    for t in range(4):
        a(f's_waitcnt lgkmcnt({3 - t})')
        for k in range(2):
            mfma16(CA + 4 * k, OPC + 8 * t + 4 * k, D + 4 * t, t == 0)
    for i in range(8):
        dpp('v_add_f32', CA + i, CA + i, CA + i, 'row_ror:4')
    for i in range(4):
        a(f'v_cvt_pk_bf16_f32 v{12 + i}, v{CA + 2 * i}, v{CA + 2 * i + 1}')
    ex(M4)
    a(f'buffer_store_dwordx4 v[12:15], v50, {S(R_WS)}, s98 offen sc1')
    ex(-1)
    stamp(9)
    f3(72)
    a('s_waitcnt vmcnt(0)')
    f3(74)
    if o.ddelay:
        a(f's_sleep {o.ddelay}')

    def d_loads():
        for i in range(4):
            a(f'buffer_load_dwordx4 {vr(D + 4 * i, 4)}, v128, {S(R_WS)}, s6 offen offset:{1024 * i} sc1')
    poll(d_loads, lambda: chk_sentinel(range(D, D + 16), 10), o.dsleep)
    stamp(10)
    f3(76)
    for t in range(4):
        for k in range(2):
            mfma16(CA + 4 * k, OPD + 8 * t + 4 * k, D + 4 * t, t == 0)
    for c in ('row_ror:4', 'row_ror:8'):
        for i in range(8):
            dpp('v_add_f32', CA + i, CA + i, CA + i, c)
    ex(M4)
    a(f'ds_write_b128 v129, {vr(CA, 4)}')
    a(f'ds_write_b128 v129, {vr(CA + 4, 4)} offset:64')
    ex(-1)
    a('s_waitcnt lgkmcnt(0)')
    a('s_barrier')
    a('s_cmp_lg_u32 s3, 0')
    a('s_cbranch_scc1 L_end')
    red4_read(D, 130)
    a(f'v_cvt_pk_bf16_f32 v{D}, v{D}, v{D + 1}')
    a(f'v_cvt_pk_bf16_f32 v{D + 1}, v{D + 2}, v{D + 3}')
    a(f'buffer_store_dwordx2 {vr(D, 2)}, v131, {S(R_WS)}, s99 offen sc1')
    f3(78)
    if o.stamps:
        a('s_memrealtime s[88:89]')
    a('s_waitcnt vmcnt(0)')
    if o.stamps:
        a('s_barrier')
    if o.st3:
        o.stamps = 1
    if o.stamps:
        dump_stamps(13, 0, 'a')
    a('s_endpgm')

    a.label('L_hi')
    a('s_cmp_eq_u32 s61, 0')
    a('s_cbranch_scc1 L_end')
    a('s_cmp_eq_u32 s61, 2')
    a('s_cbranch_scc1 L_F2')

    def e_lds_read():
        for w in range(4):
            a(f'ds_read_b32 v{H + 2 * w}, v{ER} offset:{16384 * w}')
            a(f'ds_read_b32 v{H + 2 * w + 1}, v{ER} offset:{16384 * w + 128}')
    e_lds_read()
    a('s_lshl_b32 s98, s63, 8')
    a('s_lshl_b32 s90, s94, 10')
    a(f's_add_u32 s90, s90, {WS_HP}')
    a('s_waitcnt lgkmcnt(0)')
    a(f'v_add_f32 v{ECS}, v{H}, v{H + 2}')
    a(f'v_add_f32 v{ECS + 1}, v{H + 1}, v{H + 3}')
    for w in range(2, 4):
        a(f'v_add_f32 v{ECS}, v{ECS}, v{H + 2 * w}')
        a(f'v_add_f32 v{ECS + 1}, v{ECS + 1}, v{H + 2 * w + 1}')
    a('s_barrier')
    a('s_barrier')
    if o.edelay:
        a(f's_sleep {o.edelay}')

    def e_loads():
        a('s_mov_b32 s92, s90')
        for r in range(8):
            a(f'buffer_load_dwordx4 {vr(H + 4 * r, 4)}, v{EG}, {S(R_WS)}, s92 offen sc1')
            if r < 7:
                a('s_add_u32 s92, s92, 4096')
    f3(66)
    poll(e_loads, lambda: chk_sentinel(range(H, H + 32), 10), 0)
    stamp(9)
    f3(68)
    for r in range(8):
        for u in range(4):
            for e in range(2):
                c = f'v{132 + 2 * u + e}' if r == 0 else f'v{HA + 2 * u + e}'
                a(f'v_dot2_f32_bf16 v{HA + 2 * u + e}, v{H + 4 * r + u}, s{S_LO1 + e}, {c}')
    f3(70)
    for i in range(4):
        a(f'v_cvt_pk_bf16_f32 v{X4 + i}, v{HA + 2 * i}, v{HA + 2 * i + 1}')
    for t in range(4):
        if t < 3:
            for i in range(4):
                a(f'v_mov_b32_dpp v{X4 + 4 * (t + 1) + i}, v{X4 + i} row_shl:{4 * (t + 1)} row_mask:0xf bank_mask:0xf bound_ctrl:0')
        for k in range(4):
            mfma16(EA + 4 * k, OP + 16 * t + 4 * k, X4 + 4 * t, t == 0)
        if t == 0:
            for i in range(4):
                a(f'v_dot2_f32_bf16 v9, v{X4 + i}, s{S_ONES}, {"0" if i == 0 else "v9"}')
                a(f'v_dot2_f32_bf16 v10, v{X4 + i}, v{X4 + i}, {"0" if i == 0 else "v10"}')
        if t == 1:
            for c in ('row_ror:4', 'row_ror:8'):
                dpp('v_add_f32', 9, 9, 9, c)
                dpp('v_add_f32', 10, 10, 10, c)
        if t == 2:
            a('v_permlane16_swap_b32 v9, v10')
            a('v_add_f32 v9, v9, v10')
            swap_step('v_add_f32', 9, 10, 32)
    ex(0x000f000f)
    f3(72)
    a(f'ds_write_b32 v{ES}, v9 offset:1024')
    e_lds_write()
    a('s_waitcnt lgkmcnt(0)')
    a('s_barrier')
    f3(74)
    a('s_cmp_ge_u32 s3, 6')
    a('s_cbranch_scc1 L_end')
    for w in range(4):
        a(f'ds_read_b64 v[{H + 8 + 2 * w}:{H + 9 + 2 * w}], v{ESR} offset:{16384 * w + 1024}')
    e_lds_read()
    a('s_waitcnt lgkmcnt(8)')
    for w in range(1, 4):
        a(f'v_add_f32 v{H + 8}, v{H + 8}, v{H + 8 + 2 * w}')
        a(f'v_add_f32 v{H + 9}, v{H + 9}, v{H + 9 + 2 * w}')
    MU, VA = H + 8, H + 9
    a(f'v_mul_f32 v{MU}, 0x3b000000, v{MU}')
    a(f'v_mul_f32 v{VA}, 0x3b000000, v{VA}')
    a(f'v_fma_f32 v{VA}, -v{MU}, v{MU}, v{VA}')
    a(f'v_max_f32 v{VA}, 0, v{VA}')
    a(f'v_add_f32 v{VA}, 0x3727c5ac, v{VA}')
    a(f'v_rsq_f32 v{VA}, v{VA}')
    a('s_waitcnt lgkmcnt(0)')
    for w in range(1, 4):
        a(f'v_add_f32 v{H}, v{H}, v{H + 2 * w}')
        a(f'v_add_f32 v{H + 1}, v{H + 1}, v{H + 2 * w + 1}')
    a(f'v_fma_f32 v16, -v{MU}, v{ECS}, v16')
    a(f'v_fma_f32 v17, -v{MU}, v{ECS + 1}, v17')
    a(f'v_mul_f32 v16, v16, v{VA}')
    a(f'v_mul_f32 v17, v17, v{VA}')
    a('v_mul_f32 v18, v16, v16')
    a('v_mov_b32 v19, 1.0')
    a('v_fmac_f32 v19, 0x3d372713, v18')
    a('v_mul_f32 v19, v19, v16')
    a(f'v_mul_f32 v19, {GELU_BITS}, v19')
    a('v_exp_f32 v19, v19')
    a('v_mul_f32 v16, v16, v17')
    a('v_add_f32 v19, 1.0, v19')
    a('v_rcp_f32 v19, v19')
    a('v_mul_f32 v16, v16, v19')
    a('v_mov_b32_dpp v17, v16 quad_perm:[1,1,3,3] row_mask:0xf bank_mask:0xf')
    a('v_cvt_pk_bf16_f32 v16, v16, v17')
    ex(0x5555555555555555)
    a(f'buffer_store_dword v16, v{EST}, {S(R_ACT)}, s98 offen sc1')
    f3(76)
    a('s_branch L_efend')

    a.label('L_F2')
    a('s_lshl_b32 s98, s63, 6')
    a('s_lshl_b32 s90, s63, 8')
    a(f's_add_u32 s90, s90, {WS_HP}')
    a('s_barrier')
    a('s_barrier')
    a('s_sleep 4')

    def h_loads():
        a('s_mov_b32 s92, s90')
        for r in range(8):
            a(f'buffer_load_dwordx2 {vr(HR + 2 * r, 2)}, v{FH}, {S(R_WS)}, s92 offen sc1')
            if r < 7:
                a('s_add_u32 s92, s92, 4096')
    poll(h_loads, lambda: chk_sentinel(range(HR, HR + 16), 10), 3)
    for u in range(2):
        for e in range(2):
            a(f'v_dot2_f32_bf16 v{32 + 2 * u + e}, v{FX + u}, s{S_LO1 + e}, 0')
    for r in range(8):
        for u in range(2):
            for e in range(2):
                a(f'v_dot2_f32_bf16 v{32 + 2 * u + e}, v{HR + 2 * r + u}, s{S_LO1 + e}, v{32 + 2 * u + e}')
    for u in range(2):
        a(f'v_cvt_pk_bf16_f32 v12, v{32 + 2 * u}, v{33 + 2 * u}')
        a(f'v_lshlrev_b32 v{32 + 2 * u}, 16, v12')
        a(f'v_and_b32 v{33 + 2 * u}, s{S_MASK}, v12')
    a('s_lshl_b32 s90, s94, 8')
    a('s_add_u32 s91, s90, 4096')
    a('s_add_u32 s92, s90, 8192')

    def f_loads():
        for n in range(11):
            a(f'buffer_load_dwordx4 {vr(X + 4 * n, 4)}, v{FG}, {S(R_ACT)}, s{90 + n // 4} offen offset:{1024 * (n % 4)} sc1')
    a(f's_sleep {o.fdelay}')
    poll(f_loads, lambda: chk_sentinel(range(X, X + 44), 10), 0)
    stamp(9)
    for n in range(11):
        for cb in range(2):
            mfma16(FA + 4 * cb, OP + 8 * n + 4 * cb, X + 4 * n, n == 0)
    ex(M4)
    a(f'ds_write_b128 v{FW}, {vr(FA, 4)}')
    a(f'ds_write_b128 v{FW}, {vr(FA + 4, 4)} offset:64')
    ex(-1)
    a('s_waitcnt lgkmcnt(0)')
    a('s_barrier')
    a('s_cmp_lg_u32 s3, 4')
    a('s_cbranch_scc1 L_end')
    red4_read(16, 2)
    for i in range(4):
        a(f'v_add_f32 v{16 + i}, v{16 + i}, v{32 + i}')
    a('v_cvt_pk_bf16_f32 v16, v16, v17')
    a('v_cvt_pk_bf16_f32 v17, v18, v19')
    a(f'buffer_store_dwordx2 v[16:17], v{FO}, {S(R_OUT)}, s98 offen')
    a('s_cmp_lg_u32 s63, 0')
    a('s_cbranch_scc1 L_efend')
    ex(1)
    a(f'v_mov_b32 v12, s{S_TAG}')
    a(f's_mov_b32 s90, {WS_EPOCH}')
    a(f'buffer_store_dword v12, off, {S(R_WS)}, s90')
    a.label('L_efend')
    if o.stamps:
        stamp(10)
        a('s_cmp_lg_u32 s3, 4')
        a('s_cbranch_scc1 L_end')
        dump_stamps(11, 1)
    a('s_endpgm')

    a.label('L_att')
    srd([R_CKV])
    a('s_bfe_u32 s4, s2, 0x20001')
    a('s_bfe_u32 s5, s2, 0x40003')
    a('s_lshl_b32 s5, s5, 1')
    a('s_and_b32 s6, s2, 1')
    a('s_add_u32 s5, s5, s6')
    a('s_lshl_b32 s90, s4, 23')
    a('s_lshl_b32 s91, s5, 18')
    a('s_add_u32 s90, s90, s91')
    a('s_and_b32 s7, s3, 3')
    a('s_lshl_b32 s91, s7, 14')
    a('s_add_u32 s90, s90, s91')
    a('s_lshl_b32 s91, s7, 15')
    a('s_lshl_b32 s92, s7, 2')
    a(f's_add_u32 s92, s92, {FB}')
    a('v_mov_b32 v7, s92')
    a(f'v_lshlrev_b32 v10, 2, v4')
    a(f'v_add_u32 v10, {FB}, v10')
    a('s_cmp_lt_u32 s3, 4')
    a('s_cbranch_scc1 L_comp')
    a('s_mov_b32 s3, s7')
    VX, TR = 12, 64
    for j in range(8):
        a(f'v_xor_b32 v{VX + j}, {32 * j}, v2')
    a('s_mov_b32 m0, s91')
    a('s_mov_b32 s93, 0')
    a('s_waitcnt lgkmcnt(0)')
    srd_ptr([R_CKV])
    rows = [(T, j) for T in range(4) for j in range(16) if not (T == 1 and j == 15)]
    landed = 0
    pub = {0: 16, 1: 31}
    for n, (T, j) in enumerate(rows):
        w = o.w0 if n < o.n0 else o.window
        if o.hold and n == o.hold:
            a('s_waitcnt vmcnt(0)')
            landed = n
            for tt in list(pub):
                if landed >= pub[tt]:
                    a(f'v_mov_b32 v5, {tt + 1}')
                    a(f'ds_write_b32 v7, v5 offset:{F_LAND}')
                    del pub[tt]
            lds_wait(10, F_HUS if o.sw == 1 else F_QST, 1, 5, 2)
        if o.hold and n < o.hold and n >= o.n0:
            w = o.w1
        if n >= o.n0 and not o.hold:
            lb = a.uid('fast')
            a('s_cmp_lg_u32 s93, 0')
            a(f's_cbranch_scc1 {lb}')
            if n % 2 == 0:
                a(f'ds_read_b32 v6, v10 offset:{F_HUS if o.sw == 1 else F_QST}')
            a(f's_waitcnt vmcnt({o.w1 - 1})')
            if n % 2 == 0:
                a('s_waitcnt lgkmcnt(0)')
                a('v_cmp_eq_u32 vcc, 0, v6')
                a('s_cmp_eq_u64 vcc, 0')
                a('s_cselect_b32 s93, 1, 0')
            a.label(lb)
        if n - landed >= w:
            a(f's_waitcnt vmcnt({w - 1})')
            landed = n - (w - 1)
        if n in (16 + o.w1, 31 + o.w1) and landed < n - o.w1:
            a(f's_waitcnt vmcnt({o.w1})')
            landed = n - o.w1
        if n == o.gon and not o.wgo:
            get_tag()
        if n == o.gon and o.wgo:
            lb = a.uid('nogo')
            get_tag()
            a('s_cmp_lg_u32 s3, 0')
            a(f's_cbranch_scc1 {lb}')
            a('s_sub_u32 s92, s2, 128')
            a('s_lshl_b32 s92, s92, 7')
            a(f's_add_u32 s92, s92, {WS_GO}')
            a(f'v_mov_b32 v6, s{S_TAG}')
            a('v_lshlrev_b32 v8, 2, v1')
            ex(0xffffffff)
            a(f'buffer_store_dword v6, v8, {S(R_WS)}, s92 offen sc1')
            ex(-1)
            a.label(lb)
        for tt in list(pub):
            if landed >= pub[tt]:
                a(f'v_mov_b32 v5, {tt + 1}')
                a(f'ds_write_b32 v7, v5 offset:{F_LAND}')
                del pub[tt]
        if T < 2:
            a(f'buffer_load_dwordx4 v{VX + j // 2}, {S(R_CKV)}, s90 offen offset:{(j % 4) * 1024} nt lds')
        else:
            a(f'buffer_load_dwordx4 {vr(TR + 64 * (T - 2) + 4 * j, 4)}, v{VX + j // 2}, {S(R_CKV)}, s90 offen offset:{(j % 4) * 1024} nt')
        last = j == 15 or (T == 1 and j == 14)
        if j % 4 == 3 or last:
            a(f's_add_u32 s90, s90, {4096 + 49152 if last else 4096}')
            if T < 2:
                a('s_add_u32 m0, m0, 4096')
        if n == o.w0 - 1:
            a(f's_load_dword s{S_TAG}, s[{R_WS}:{R_WS + 1}], {WS_EPOCH}')
            a('s_barrier')
        if n == 30:
            stamp(1)
    assert not pub
    stamp(2)
    a('v_add_u32 v9, s91, v2')
    if o.hprio:
        a(f's_setprio {o.hprio}')
    for T in (2, 3):
        a(f's_add_u32 s94, s3, {4 * (T - 2) + 1}')
        lds_wait(10, F_DONE, 's94', 5)
        stamp(T + 1)
        for j in range(16):
            a(f's_waitcnt vmcnt({16 * (3 - T) + 15 - j})')
            a(f'ds_write_b128 v9, {vr(TR + 64 * (T - 2) + 4 * j, 4)} offset:{1024 * j + 16384 * (T - 2)}')
        a(f'v_mov_b32 v5, {T + 1}')
        a(f'ds_write_b32 v7, v5 offset:{F_LAND}')
        stamp(T + 3)
    a.label('L_hend')
    if o.stamps:
        stamp(10)
        a('s_cmp_lg_u32 s3, 0')
        a('s_cbranch_scc1 L_end')
        dump_stamps(11, 1, 'h')
    a('s_endpgm')

    a.label('L_comp')
    O_, QA = 64, 128
    vA, vT, vMW, vFW, vPW, vPR, vFR, vAW = 0, 5, 6, 7, 8, 9, 10, 11
    NM, LL = 12, 14
    SA, SB_, PKA, PKB, WK = 16, 24, 32, 36, 40
    a(f'v_lshlrev_b32 v16, 2, v1')
    a(f'v_add_u32 v16, {FB}, v16')
    a('v_mov_b32 v17, 0')
    a('ds_write_b32 v16, v17')
    a('s_waitcnt lgkmcnt(0)')
    a('s_barrier')
    a(f's_load_dword s{S_TAG}, s[{R_WS}:{R_WS + 1}], {WS_EPOCH}')
    srd_ptr([R_CKV])
    consts()
    a(f's_add_u32 s63, s90, {65536 + 15 * 1024}')
    a(f's_add_u32 s6, s91, {16384 + 15 * 1024}')
    a('s_lshl_b32 s90, s4, 15')
    a('s_lshl_b32 s91, s3, 13')
    a('s_add_u32 s90, s90, s91')
    a(f's_add_u32 s90, s90, {WS_QA}')
    a('s_add_u32 s92, s90, 4096')
    a('s_lshl_b32 s93, s3, 12')
    a('s_lshl_b32 s94, s4, 3')
    a('s_add_u32 s93, s93, s94')
    a(f's_add_u32 s93, s93, {WS_QAH}')
    a('v_lshrrev_b32 v16, 1, v1')
    a('v_lshlrev_b32 v16, 7, v16')
    a('s_and_b32 s94, s3, 1')
    a('s_lshl_b32 s94, s94, 7')
    a('v_xor_b32 v17, s94, v2')
    a(f's_add_u32 s91, s91, {SB}')
    a('v_add_u32 v17, s91, v17')
    a('v_lshrrev_b32 v22, 5, v1')
    a('v_and_b32 v23, 1, v3')
    a('v_lshlrev_b32 v23, 4, v23')
    a('v_lshl_add_u32 v23, v22, 9, v23')
    a('v_bfe_u32 v18, v1, 3, 1')
    a('v_lshl_add_u32 v18, v18, 2, v4')
    a('v_lshl_add_u32 v18, v18, 5, v23')
    a('v_lshl_add_u32 v18, v11, 10, v18')
    a(f'v_add_u32 v18, {SB}, v18')
    a('v_bfe_u32 v20, v1, 2, 2')
    a('v_lshl_add_u32 v21, v4, 2, v20')
    a(f'v_lshl_add_u32 v{vA}, v21, 10, v23')
    a('v_and_b32 v21, 14, v21')
    a(f'v_lshl_add_u32 v{vA}, v21, 4, v{vA}')
    a('s_lshl_b32 s95, s3, 15')
    a(f'v_add_u32 v{vA}, s95, v{vA}')
    a('v_lshrrev_b32 v22, 5, v1')
    a('v_lshlrev_b32 v21, 2, v20')
    a('v_lshl_add_u32 v21, v22, 1, v21')
    a('v_and_b32 v23, 1, v3')
    a('v_lshlrev_b32 v23, 1, v23')
    a('v_bfe_u32 v24, v1, 1, 1')
    a('v_add_u32 v23, v23, v24')
    a('v_xor_b32 v23, v23, v21')
    a(f'v_lshlrev_b32 v{vT}, 10, v21')
    a(f'v_lshl_add_u32 v{vT}, v23, 4, v{vT}')
    a('v_and_b32 v24, 1, v1')
    a(f'v_lshl_add_u32 v{vT}, v24, 3, v{vT}')
    a('s_lshl_b32 s95, s3, 8')
    a(f'v_add_u32 v{vT}, s95, v{vT}')
    a('v_and_b32 v24, 31, v1')
    a('s_lshl_b32 s95, s3, 2')
    a(f's_add_u32 s95, s95, {L_MAX}')
    a(f'v_lshl_add_u32 v{vMW}, v24, 4, s95')
    a(f'v_lshlrev_b32 v{vPW}, 9, v22')
    a(f'v_lshl_add_u32 v{vPW}, v11, 4, v{vPW}')
    a('v_and_b32 v24, 1, v3')
    a(f'v_lshl_add_u32 v{vPW}, v24, 3, v{vPW}')
    a('s_lshl_b32 s95, s3, 10')
    a(f's_add_u32 s95, s95, {L_P}')
    a(f'v_add_u32 v{vPW}, s95, v{vPW}')
    a(f'v_add_u32 v{vPR}, {L_P}, v2')
    a(f'v_lshlrev_b32 v{vAW}, 2, v11')
    a(f'v_add_u32 v{vAW}, {L_ALPHA}, v{vAW}')
    a('v_xor_b32 v21, 0xe0, v2')
    for i in range(64):
        a(f'v_mov_b32 v{O_ + i}, 0')
    for i in range(4):
        a(f'v_mov_b32 v{NM + i}, 0')
    a(f's_mov_b32 s98, {f32bits(float(o.thr))}')
    a('s_mov_b32 s97, 0')
    a('s_mov_b32 s96, 1')
    a('v_mov_b32 v29, v18')
    a('v_add_u32 v28, s6, v2')
    a(f'buffer_load_dwordx4 v[24:27], v21, {S(R_CKV)}, s63 offen nt')
    get_tag()
    stamp(1)
    HR_ = 30

    def q_row(i):
        a(f'buffer_load_dwordx4 {vr(QA + 4 * i, 4)}, v2, {S(R_WS)}, s{90 if i < 4 else 92} offen offset:{1024 * (i % 4)} sc1')
    a('s_sub_u32 s94, s2, 128')
    a('s_lshl_b32 s94, s94, 7')
    a(f's_add_u32 s94, s94, {WS_HU}')
    a(f's_add_u32 s0, s{R_WS}, s94')
    a(f's_addc_u32 s1, s{R_WS + 1}, 0')
    a(f's_mov_b32 s{S_CNT}, {SPIN}')
    a.label('L_hu')
    a('s_load_dword s94, s[0:1], 0 glc')
    a('s_waitcnt lgkmcnt(0)')
    a(f's_cmp_eq_u32 s94, s{S_TAG}')
    a('s_cbranch_scc1 L_hugo')
    a(f's_sub_u32 s{S_CNT}, s{S_CNT}, 1')
    a('s_cbranch_scc0 L_hu')
    a.label('L_hugo')
    for i in range(8):
        q_row(i)
    a('v_mov_b32 v19, 1')
    a(f'ds_write_b32 v{vFW}, v19 offset:{F_HUS}')
    stamp(9)
    stamp(8)
    a(f's_mov_b32 s{S_CNT}, {SPIN}')
    a.label('L_qver')
    a(f'buffer_load_dwordx2 {vr(HR_, 2)}, v16, {S(R_WS)}, s93 offen sc1')
    a('s_waitcnt vmcnt(1)')
    for i in range(8):
        a(f'v_xor_b32 v{22 + i % 2}, {32 * (i % 4)}, v17')
        a(f'ds_write_b128 v{22 + i % 2}, {vr(QA + 4 * i, 4)} offset:{1024 * i}')
    xor_chain(19, list(range(QA, QA + 32)))
    a('s_waitcnt vmcnt(0)')
    for c in ('quad_perm:[1,0,3,2]', 'quad_perm:[2,3,0,1]', 'row_ror:4', 'row_ror:8'):
        dpp('v_xor_b32', 19, 19, 19, c)
        if c == 'quad_perm:[1,0,3,2]':
            a(f'v_xor_b32 v19, v19, v{HR_}')
            a(f'v_bitop3_b32 v{HR_}, v{HR_}, v{HR_ + 1}, s{S_TAG} {XOR3}')
    swap_step('v_xor_b32', 19, 20, 16)
    swap_step('v_xor_b32', 19, 20, 32)
    a(f'v_or_b32 v19, v19, v{HR_}')
    a('v_cmp_ne_u32 vcc, 0, v19')
    a('s_cbranch_vccnz L_qbad')
    a.label('L_qdone')
    a('v_mov_b32 v19, 1')
    a(f'ds_write_b32 v{vFW}, v19 offset:{F_QST}')
    stamp(2)
    a(f'v_mov_b32 v1, v{vA}')
    a(f'v_xor_b32 v2, 32, v{vA}')
    a('v_mov_b32 v3, v29')
    a('v_xor_b32 v4, 32, v29')
    lds_wait(vFW, F_LAND, 1, 19)
    lds_wait(vFR, F_QST, 1, 19, 0)
    stamp(3)
    fine2(66)
    NA = 5

    def a_addr(s8):
        a(f'v_xor_b32 v{1 + s8 % 2}, {32 * s8}, v{vA}')

    def a_read(m, buf):
        s8, hi = m // 2, m % 2
        a(f'ds_read_b128 {vr(WK + 4 * (m % NA), 4)}, v{1 + s8 % 2} offset:{256 * hi + 16384 * buf}')
        if hi == 1 and s8 + 2 < 8:
            a_addr(s8 + 2)

    def q_addr(s8):
        a(f'v_xor_b32 v{3 + s8 % 2}, {32 * s8}, v29')

    def q_read(m):
        s8, hi = m // 2, m % 2
        for hh in range(2):
            a(f'ds_read_b128 {vr(QA + 64 * hh + 4 * m, 4)}, v{3 + s8 % 2} offset:{16384 * hh + 256 * hi}')
        if hi == 1 and s8 + 2 < 8:
            q_addr(s8 + 2)

    def s_mfma(acc, st, zero):
        for hh in range(2):
            mfma16(acc + 4 * hh, WK + 4 * (st % NA), QA + 64 * hh + 4 * st, zero and st == 0)
    for st in range(4):
        q_read(st)
        a_read(st, 0)
    for st in range(16):
        a(f's_waitcnt lgkmcnt({3 * min(3, 15 - st)})')
        s_mfma(SA, st, True)
        if st + 4 < 16:
            q_read(st + 4)
            a_read(st + 4, 0)

    def max_addr(d):
        a(f'v_subrev_u32 v{d}, {L_ALPHA}, v{vAW}')
        a(f'v_lshlrev_b32 v{d}, 2, v{d}')
        a(f'v_add_u32 v{d}, {L_MAX}, v{d}')

    def max_xchg(lbl):
        a('v_permlane16_swap_b32 v60, v61')
        a('v_max_f32 v60, v60, v61')
        swap_step('v_max_f32', 60, 61, 32)
        a(f'ds_write_b32 v{vMW}, v60')
        a(f'ds_write_b32 v{vFW}, v3 offset:{F_MSEQ}')
        a(f's_mov_b32 s{S_CNT}, {SPIN * 40}')
        a.label(lbl)
        a(f'ds_read_b32 v3, v{vFR} offset:{F_MSEQ}')
        a(f'ds_read_b128 {vr(WK, 4)}, v4')
        a(f'ds_read_b128 {vr(WK + 4, 4)}, v4 offset:256')
        a('s_waitcnt lgkmcnt(0)')
        a('v_cmp_gt_u32 vcc, s96, v3')
        a(f's_cbranch_vccz {lbl}go')
        a(f's_sub_u32 s{S_CNT}, s{S_CNT}, 1')
        a(f's_cbranch_scc0 {lbl}')
        a.label(lbl + 'go')
        for hh in range(2):
            a(f'v_max3_f32 v{60 + hh}, v{WK + 4 * hh}, v{WK + 4 * hh + 1}, v{WK + 4 * hh + 2}')
            a(f'v_max_f32 v{60 + hh}, v{60 + hh}, v{WK + 4 * hh + 3}')
    fine2(68)
    a('v_mov_b32 v3, s96')
    max_addr(4)
    for hh in range(2):
        a(f'v_max3_f32 v{60 + hh}, v{SA + 4 * hh}, v{SA + 4 * hh + 1}, v{SA + 4 * hh + 2}')
        a(f'v_max_f32 v{60 + hh}, v{60 + hh}, v{SA + 4 * hh + 3}')
    max_xchg('L_m0')
    a('ds_write_b128 v28, v[24:27]')
    a(f'ds_write2_b32 v{vAW}, v60, v61 offset0:32 offset1:48')
    for hh in range(2):
        a(f'v_sub_f32 v{NM + hh}, 0, v{60 + hh}')
        for j in range(4):
            a(f'v_sub_f32 v{SA + 4 * hh + j}, v{SA + 4 * hh + j}, v{60 + hh}')
    a('s_branch L_B')

    def land_poll(lbl, buf, acc, add):
        a(f's_mov_b32 s{S_CNT}, {SPIN * 40}')
        a('s_lshr_b32 s94, s97, 1')
        if add:
            a(f's_add_u32 s94, s94, {add}')
        a.label(lbl)
        a_addr(0)
        a_addr(1)
        a(f'ds_read_b32 v3, v{vFW} offset:{F_LAND}')
        for st in range(4):
            a_read(st, buf)
        for hh in range(2):
            for j in range(4):
                a(f'v_mov_b32 v{acc + 4 * hh + j}, v{NM + hh}')
        a('s_waitcnt lgkmcnt(4)')
        a('v_cmp_ge_u32 vcc, s94, v3')
        a(f's_cbranch_vccz {lbl}go')
        a('s_sleep 1')
        a(f's_sub_u32 s{S_CNT}, s{S_CNT}, 1')
        a(f's_cbranch_scc0 {lbl}')
        a.label(lbl + 'go')

    def soft(acc, pk, poff):
        g = []
        for hh in range(2):
            for j in range(4):
                g.append(f'v_exp_f32 v{60 + j}, v{acc + 4 * hh + j}')
            g.append(f'v_cvt_pk_bf16_f32 v{pk + 2 * hh}, v60, v61')
            g.append(f'v_cvt_pk_bf16_f32 v{pk + 2 * hh + 1}, v62, v63')
            g.append(f'ds_write_b64 v{vPW}, {vr(pk + 2 * hh, 2)} offset:{poff + 256 * hh}')
        return g

    def s_tile(acc, buf, shadow):
        sh = list(shadow)
        extra = {}
        for st in range(16):
            young = min(3, 15 - st) + sum(v for k, v in extra.items() if k >= st - 4)
            a(f's_waitcnt lgkmcnt({young})')
            s_mfma(acc, st, False)
            if st + 4 < 16:
                a_read(st + 4, buf)
            for _ in range(2 if st >= 1 else 0):
                if sh:
                    ins = sh.pop(0)
                    a(ins)
                    if ins.startswith('ds_'):
                        extra[st] = extra.get(st, 0) + 1
        assert not sh

    a.label('L_A')
    land_poll('L_lA', 0, SA, 0)
    if o.fine == 1:
        a('s_memtime s[66:67]')
    s_tile(SA, 0, [])
    a('s_nop 3')
    a.label('L_B')
    land_poll('L_lB', 1, SB_, 1)
    fine2(80)
    mx = [f'v_max3_f32 v4, v{SA}, v{SA + 1}, v{SA + 2}', f'v_max3_f32 v4, v{SA + 3}, v{SA + 4}, v4',
          f'v_max3_f32 v4, v{SA + 5}, v{SA + 6}, v4', f'v_max_f32 v4, v{SA + 7}, v4']
    s_tile(SB_, 1, soft(SA, PKA, 0) + mx)
    if o.fine == 1:
        a('s_memtime s[82:83]')
    fine2(82)
    a('s_add_u32 s95, s97, 4')
    a('s_add_u32 s94, s97, 2')
    a(f's_mov_b32 s{S_CNT}, {SPIN * 40}')
    g = soft(SB_, PKB, 4096)
    for k, ins in enumerate(g):
        a(ins)
        if k == 3:
            a(f'v_max3_f32 v4, v{SB_}, v{SB_ + 1}, v4')
            a(f'v_max3_f32 v4, v{SB_ + 2}, v{SB_ + 3}, v4')
        if k == 10:
            a(f'v_max3_f32 v4, v{SB_ + 4}, v{SB_ + 5}, v4')
            a(f'v_max3_f32 v4, v{SB_ + 6}, v{SB_ + 7}, v4')
            a('v_cmp_lt_f32 vcc, s98, v4')
    a('s_cmp_eq_u64 vcc, 0')
    a('s_cselect_b32 s91, s95, s94')
    a(f'v_mov_b32 v{WK + 4}, s91')
    a(f'ds_write_b32 v{vFW}, v{WK + 4} offset:{F_PSEQ}')
    if o.fine == 1:
        a('s_memtime s[80:81]')
    seq = [(k8, blk) for k8 in range(8) for blk in range(4)]
    BFS = (48, 52, 56, 60, 16, 20, 24)
    NB = len(BFS)
    DIST = 6

    def rd(n):
        k8, blk = seq[n]
        bf = BFS[n % NB]
        for tau in range(2):
            a(f'ds_read_b64_tr_b16 {vr(bf + 2 * tau, 2)}, v{1 + blk} offset:{32768 * (k8 % 2) + 16384 * (k8 // 4) + 1024 * tau}')
        if k8 % 2 == 1 and k8 < 7:
            a(f'v_xor_b32 v{1 + blk}, 0x10000, v{1 + blk}')

    def p_rd(k8):
        a(f'ds_read_b128 {vr(WK + 4 * (k8 % 2), 4)}, v{vPR} offset:{1024 * k8}')
    a.label('L_pinit')
    for blk in range(4):
        a(f'v_xor_b32 v{1 + blk}, {64 * blk}, v{vT}')
    a.label('L_ppoll')
    a(f'ds_read_b32 v{WK + 4}, v{vFR} offset:{F_PSEQ}')
    p_rd(0)
    for n in range(4):
        rd(n)
    a('s_waitcnt lgkmcnt(9)')
    a(f'v_cmp_gt_u32 vcc, s95, v{WK + 4}')
    a('s_cbranch_vccnz L_pslow')
    a.label('L_pgo')
    fine2(84)
    if o.fine == 1:
        a('s_memtime s[68:69]')
    ops = ['P0'] + [x for n in range(4) for x in (f'R{n}', f'R{n}')]

    def issue_rd(n):
        rd(n)
        ops.extend([f'R{n}', f'R{n}'])
    issue_rd(4)
    issue_rd(5)
    a('s_lshl_b32 s94, s97, 1')
    a('v_mov_b32 v28, s94')
    a('s_lshr_b32 s94, s97, 2')
    a('s_add_u32 s94, s94, 1')
    for n in range(32):
        k8, blk = seq[n]
        need = max(i for i, x in enumerate(ops) if x in (f'R{n}', f'P{k8}'))
        a(f's_waitcnt lgkmcnt({min(15, len(ops) - 1 - need)})')
        if blk == 3:
            a(f'ds_write_b32 v{vFW}, v28 offset:{F_DONE}')
            ops.append('W')
        a(f'v_mfma_f32_32x32x16_bf16 {vr(O_ + 16 * blk, 16)}, {vr(WK + 4 * (k8 % 2), 4)}, {vr(BFS[n % NB], 4)}, {vr(O_ + 16 * blk, 16)}')
        if blk == 1:
            a('v_add_u32 v28, 1, v28')
        if blk == 0 and k8 < 7:
            p_rd(k8 + 1)
            ops.append(f'P{k8 + 1}')
        if n + DIST < 32:
            issue_rd(n + DIST)
        if n in (1, 2, 5, 6):
            pk = {1: PKA, 2: PKA + 1, 5: PKB, 6: PKB + 1}[n]
            for hh in range(2):
                a(f'v_dot2_f32_bf16 v{LL + hh}, v{pk + 2 * hh}, s{S_ONES}, v{LL + hh}')
        if n == 26:
            a(f'v_mov_b32 v{PKA}, v{LL}')
            a(f'v_mov_b32 v{PKA + 1}, v{LL + 1}')
            a('v_mov_b32 v29, s94')
        if n == 27:
            a(f'v_permlane16_swap_b32 v{PKA}, v{PKA + 1}')
            a(f'v_add_f32 v{PKA}, v{PKA}, v{PKA + 1}')
            a(f'v_mov_b32 v{PKA + 1}, v{PKA}')
        if n == 28:
            a(f'v_permlane32_swap_b32 v{PKA}, v{PKA + 1}')
            a(f'v_add_f32 v{PKA}, v{PKA}, v{PKA + 1}')
            a(f'ds_write_b32 v{vMW}, v{PKA}')
            a(f'ds_write_b32 v{vFW}, v29 offset:{F_LSEQ}')
            ops.extend(['W', 'W'])
    fine2(86)
    a('s_add_u32 s97, s97, 4')
    a('s_cmp_lt_u32 s97, 8')
    a('s_cbranch_scc1 L_A ;noflush')
    stamp(4)
    if o.fine == 2:
        a('s_memtime s[88:89]')
    if o.fine == 1:
        a('s_memtime s[70:71]')
    a('v_mbcnt_lo_u32_b32 v1, -1, 0')
    a('v_mbcnt_hi_u32_b32 v1, -1, v1')
    a('v_lshrrev_b32 v2, 5, v1')
    a('v_lshlrev_b32 v2, 2, v2')
    a('v_bfe_u32 v3, v1, 4, 1')
    a('v_add_u32 v2, v2, v3')
    a('v_and_b32 v3, 15, v1')
    a('v_lshlrev_b32 v4, 17, v2')
    a('v_lshl_add_u32 v4, v3, 4, v4')
    a('s_lshl_b32 s90, s3, 2')
    a('s_add_u32 s90, s90, s4')
    a('s_lshl_b32 s91, s90, 13')
    a('s_lshl_b32 s92, s5, 8')
    a('s_add_u32 s91, s91, s92')
    a(f's_add_u32 s91, s91, {WS_OP}')
    PK, XX = 128, 16
    a('s_lshl_b32 s94, s4, 2')
    a('s_add_u32 s94, s94, 16')
    arrive(0, 44, 45, 's94')
    a('v_and_b32 v5, 1, v1')
    a('v_lshlrev_b32 v5, 4, v5')
    a('v_bfe_u32 v6, v1, 2, 1')
    a('v_lshl_add_u32 v5, v6, 3, v5')
    a('v_bfe_u32 v6, v1, 3, 1')
    a('v_lshl_add_u32 v5, v6, 1, v5')
    a('v_add_u32 v5, v5, v2')
    a(f'v_lshlrev_b32 v6, 2, v5')
    a(f'v_add_u32 v6, {L_MFIN}, v6')
    a('v_lshlrev_b32 v5, 4, v5')
    a(f'v_add_u32 v8, {L_MAX}, v5')

    def l_reads():
        a(f'ds_read_b32 v37, v{vFR} offset:{F_LSEQ}')
        a('ds_read_b128 v[32:35], v8')
        a('ds_read_b32 v40, v6')
    l_reads()
    a('s_lshl_b32 s93, s4, 16')
    a('s_lshl_b32 s92, s5, 11')
    a('s_add_u32 s93, s93, s92')
    a('s_lshl_b32 s92, s3, 9')
    a('s_add_u32 s93, s93, s92')
    a(f's_add_u32 s93, s93, {WS_REC}')
    for ap in range(8):
        t = PK + 4 * ap
        j = 2 * ap
        a(f'v_cvt_pk_bf16_f32 v{t}, v{O_ + j}, v{O_ + 16 + j}')
        a(f'v_cvt_pk_bf16_f32 v{t + 1}, v{O_ + 32 + j}, v{O_ + 48 + j}')
        a(f'v_cvt_pk_bf16_f32 v{t + 2}, v{O_ + j + 1}, v{O_ + 16 + j + 1}')
        a(f'v_cvt_pk_bf16_f32 v{t + 3}, v{O_ + 32 + j + 1}, v{O_ + 48 + j + 1}')
        a(f's_add_u32 s92, s91, {(8 * (ap // 2) + 2 * (ap % 2)) * 131072}')
        a(f'v_permlane16_swap_b32 v{t}, v{t + 2}')
        a(f'v_permlane16_swap_b32 v{t + 1}, v{t + 3}')
        a(f'buffer_store_dwordx4 {vr(t, 4)}, v4, {S(R_WS)}, s92 offen sc1')
    stamp(5)
    for ap in range(8):
        xor_chain(XX + ap, range(PK + 4 * ap, PK + 4 * ap + 4))
    for k in range(4):
        dpp('v_xor_b32', XX + 2 * k, XX + 2 * k, XX + 2 * k, 'row_ror:8', 0x3)
    for k in range(4):
        dpp('v_xor_b32', XX + 2 * k, XX + 2 * k + 1, XX + 2 * k + 1, 'row_ror:8', 0xc)
    for m in range(2):
        dpp('v_xor_b32', XX + 4 * m, XX + 4 * m, XX + 4 * m, 'row_half_mirror', 0x5)
    for m in range(2):
        dpp('v_xor_b32', XX + 4 * m, XX + 4 * m + 2, XX + 4 * m + 2, 'row_half_mirror', 0xa)
    for m in range(2):
        dpp('v_xor_b32', XX + 4 * m, XX + 4 * m, XX + 4 * m, 'quad_perm:[1,0,3,2]')
    a('s_waitcnt lgkmcnt(0)')
    a('v_cmp_gt_u32 vcc, 2, v37')
    a('v_add_f32 v32, v32, v33')
    a('v_add_f32 v34, v34, v35')
    for m in range(2):
        dpp('v_xor_b32', XX + 4 * m, XX + 4 * m, XX + 4 * m, 'quad_perm:[2,3,0,1]')
    a('s_cbranch_vccnz L_lslow')
    a.label('L_lok')
    a('v_add_f32 v41, v32, v34')
    a(f'v_mov_b32 v42, v{XX}')
    ex(0x2222222222222222)
    a(f'v_mov_b32 v42, v{XX + 4}')
    ex(0x3333333333333333)
    xor_chain(43, [40, 41, 42], f's{S_TAG}')
    a(f'buffer_store_dwordx4 v[40:43], v5, {S(R_WS)}, s93 offen sc1')
    a('s_lshl_b32 s94, s4, 7')
    a(f's_add_u32 s94, s94, {WS_FL + 128}')
    release(0, 44, 45, 31, 's94', 's_waitcnt vmcnt(9)')
    if o.stamps:
        stamp(6)
        a('s_waitcnt vmcnt(0)')
        stamp(7)
        a('s_cmp_lg_u32 s3, 0')
        a('s_cbranch_scc1 L_end')
        dump_stamps(13, 0)
    a('s_endpgm')
    a.label('L_lslow')
    l_reads()
    a('s_waitcnt lgkmcnt(0)')
    a('v_cmp_gt_u32 vcc, 2, v37')
    a('v_add_f32 v32, v32, v33')
    a('v_add_f32 v34, v34, v35')
    a('s_cbranch_vccz L_lok')
    a(f's_sub_u32 s{S_CNT}, s{S_CNT}, 1')
    a('s_cbranch_scc0 L_lslow')
    a('s_branch L_lok')
    a.label('L_pslow')
    a('s_waitcnt lgkmcnt(0)')
    a('s_add_u32 s94, s97, 2')
    a(f'v_cmp_eq_u32 vcc, s94, v{WK + 4}')
    a('s_and_b32 s94, s95, 1')
    a('s_cbranch_scc1 L_pretry')
    a('s_cbranch_vccnz L_exact')
    a.label('L_pretry')
    a(f's_sub_u32 s{S_CNT}, s{S_CNT}, 1')
    a('s_cbranch_scc0 L_ppoll')
    a('s_branch L_pgo')
    a.label('L_exact')
    a('s_add_u32 s96, s96, 1')
    a('v_mov_b32 v3, s96')
    max_addr(4)
    for hh in range(2):
        a(f'v_max3_f32 v{60 + hh}, v{SA + 4 * hh}, v{SA + 4 * hh + 1}, v{SA + 4 * hh + 2}')
        a(f'v_max3_f32 v{60 + hh}, v{60 + hh}, v{SA + 4 * hh + 3}, v{SB_ + 4 * hh}')
        a(f'v_max3_f32 v{60 + hh}, v{60 + hh}, v{SB_ + 4 * hh + 1}, v{SB_ + 4 * hh + 2}')
        a(f'v_max3_f32 v{60 + hh}, v{60 + hh}, v{SB_ + 4 * hh + 3}, 0')
    max_xchg('L_m1')
    for hh in range(2):
        for acc in (SA, SB_):
            for j in range(4):
                a(f'v_sub_f32 v{acc + 4 * hh + j}, v{acc + 4 * hh + j}, v{60 + hh}')
        a(f'v_exp_f32 v{WK + hh}, -v{60 + hh}')
        a(f'v_sub_f32 v{NM + hh}, v{NM + hh}, v{60 + hh}')
        a(f'v_sub_f32 v{WK + 2 + hh}, 0, v{NM + hh}')
        a(f'v_mul_f32 v{LL + hh}, v{LL + hh}, v{WK + hh}')
    a(f'ds_write2_b32 v{vAW}, v{WK}, v{WK + 1} offset0:0 offset1:16')
    a(f'ds_write2_b32 v{vAW}, v{WK + 2}, v{WK + 3} offset0:32 offset1:48')
    for ins in soft(SA, PKA, 0) + soft(SB_, PKB, 4096):
        a(ins)
    a('s_add_u32 s95, s97, 5')
    a('v_mov_b32 v3, s95')
    a(f'ds_write_b32 v{vFW}, v3 offset:{F_PSEQ}')
    a('v_mbcnt_lo_u32_b32 v4, -1, 0')
    a('v_mbcnt_hi_u32_b32 v4, -1, v4')
    a('v_lshrrev_b32 v4, 5, v4')
    a('v_lshlrev_b32 v4, 4, v4')
    a(f'v_add_u32 v4, {L_ALPHA}, v4')
    for jq in range(4):
        a(f'ds_read_b128 {vr(WK + 4 * jq, 4)}, v4 offset:{32 * jq}')
    a('s_waitcnt lgkmcnt(0)')
    for blk in range(4):
        for j in range(16):
            a(f'v_mul_f32 v{O_ + 16 * blk + j}, v{O_ + 16 * blk + j}, v{WK + j}')
    a(f's_mov_b32 s{S_CNT}, {SPIN * 40}')
    a('s_branch L_pinit')
    a.label('L_qbad')
    for i in range(8):
        q_row(i)
    a(f's_sub_u32 s{S_CNT}, s{S_CNT}, 1')
    a('s_cbranch_scc0 L_qver')
    a('s_branch L_qdone')
    a.label('L_end')
    a('s_endpgm')

    txt = HEADER
    txt += f'; @launch grid=(256,1,1) block=(512,1,1) lds={LDS_TOTAL}\n'
    txt += '.amdgcn_target "amdgcn-amd-amdhsa--gfx950"\n.text\n'
    txt += a.finalize()
    txt += f""".section .rodata,"a"
.p2align 6
.amdhsa_kernel {name}
  .amdhsa_next_free_vgpr 256
  .amdhsa_next_free_sgpr 102
  .amdhsa_accum_offset 256
  .amdhsa_group_segment_fixed_size 0
  .amdhsa_kernarg_size 104
  .amdhsa_user_sgpr_count 2
  .amdhsa_user_sgpr_kernarg_segment_ptr 1
  .amdhsa_system_sgpr_workgroup_id_x 1
.end_amdhsa_kernel
"""
    return txt


if __name__ == '__main__':
    o = Opt()
    for kv in sys.argv[2:]:
        k, v = kv.split('=')
        setattr(o, k, int(v))
    open(sys.argv[1], 'w').write(gen(o))
```

```python
import sys
sys.path.insert(0, 'dev')
from asmdsl import Asm
from layout5 import *

NAME = 'sequential_preLN__compressed_kv_cla__glu_gated_geglu__decode'
HEADER = open('cdna_kernels/' + NAME + '.s.ref').read().split('; Override launch')[0]
LDS_TOTAL = 163840
SB = 130048
L_P = 131072
FB = 162816
F_LAND, F_QST, F_MSEQ, F_PSEQ, F_DONE, F_LSEQ, F_HUS = 0, 16, 32, 48, 64, 80, 96
L_ALPHA, L_MFIN, L_MAX = FB + 128, FB + 256, FB + 512
A_WQ, A_WUK, A_WUV, A_WO, A_X, A_C, A_D = 0, 32768, 90112, 122880, 155648, 156672, 158720

R_X, R_WS, R_CKV, R_WQ, R_WUK, R_WUV, R_WO, R_WG, R_WU, R_WD, R_OUT, R_ACT = [8 + 4 * i for i in range(12)]
SIZES = {R_X: 4096, R_WS: WS_END, R_CKV: 32 << 20, R_WQ: 4 << 20, R_WUK: 4 << 20, R_WUV: 4 << 20, R_WO: 4 << 20,
         R_WG: 512 * 2752, R_WU: 512 * 2752, R_WD: 1376 * 1024, R_OUT: 4096, R_ACT: 43 * 256}
PTR = {R_X: 64, R_CKV: 66, R_WQ: 68, R_WUK: 70, R_WUV: 72, R_WO: 74, R_WG: 78, R_WU: 80, R_WD: 82, R_OUT: 84}
S_TAG, S_ONES, S_LO1, S_HI1, S_CNT, S_MASK = 56, 57, 58, 59, 60, 62
SPIN = 20000
XOR3 = 'bitop3:0x96'


class Opt:
    stamps = 0
    w0 = 3
    n0 = 8
    window = 8
    w3 = 16
    wwin = 8
    sleep = 1
    sleep_long = 6
    stsleep = 3
    thr = 60
    dbgwg = 192
    hold = 0
    dsleep = 1
    ddelay = 0
    gon = 56
    fine = 0
    hupos = 1
    edelay = 0
    efwin = 3
    sw = 1
    efgo = 0
    qdelay = 0
    hprio = 1
    nsamp = 2
    r64 = 'nt'
    wgo = 0
    esleep = 0
    fdelay = 8
    now = 0
    w1 = 8
    n1 = 0


def vr(a, n):
    return f'v[{a}:{a + n - 1}]' if n > 1 else f'v{a}'


def S(base):
    return f's[{base}:{base + 3}]'


def gen(o):
    a = Asm()
    name = NAME + '_kernel'
    o.st3 = o.stamps == 3

    def ex(mask):
        if mask == -1:
            a('s_mov_b64 exec, -1')
        elif mask <= 64:
            a(f's_mov_b64 exec, {mask}')
        else:
            a(f's_mov_b32 exec_lo, 0x{mask & 0xffffffff:x}')
            a(f's_mov_b32 exec_hi, 0x{mask >> 32:x}')

    def dpp(op, d, s0, s1, ctrl, bank=0xf):
        a(f'{op}_dpp v{d}, v{s0}, v{s1} {ctrl} row_mask:0xf bank_mask:0x{bank:x}')

    def swap_step(op, v, t, which):
        a(f'v_mov_b32 v{t}, v{v}')
        a(f'v_permlane{which}_swap_b32 v{v}, v{t}')
        a(f'{op} v{v}, v{v}, v{t}')

    def fine2(r):
        if o.fine == 2:
            lb = a.uid('f2')
            a('s_cmp_lg_u32 s97, 0')
            a(f's_cbranch_scc1 {lb} ;noflush')
            a(f's_memtime s[{r}:{r + 1}]')
            a.label(lb)

    def f3(r):
        if o.fine == 3:
            a(f's_memtime s[{r}:{r + 1}]')

    def stamp(idx):
        if o.stamps:
            a(f's_memrealtime s[{64 + 2 * idx}:{65 + 2 * idx}]')

    def dump_stamps(n, grp, dbg=None):
        a('s_waitcnt lgkmcnt(0)')
        a('s_mov_b64 exec, -1')
        a('v_mov_b32 v3, 0')
        a('v_writelane_b32 v3, s100, 0')
        for i in range(1, n):
            a(f'v_writelane_b32 v3, s{64 + 2 * i}, {i}')
        a('v_mbcnt_lo_u32_b32 v4, -1, 0')
        a('v_lshlrev_b32 v4, 2, v4')
        a('s_lshl_b32 s90, s2, 7')
        a(f's_add_u32 s90, s90, {WS_STAMP + 64 * grp}')
        ex(0xffff)
        a(f'buffer_store_dword v3, v4, {S(R_WS)}, s90 offen')
        if o.stamps == 2 and dbg:
            lb = a.uid('nodbg')
            a('v_subrev_u32 v3, s100, v3')
            if dbg == 'h':
                a(f's_cmp_lg_u32 s2, {o.dbgwg}')
                a(f's_cbranch_scc1 {lb}')
                ex(0x7fe)
                a('global_store_dword v4, v3, s[86:87] offset:-4')
            else:
                a('s_cmp_lg_u32 s2, 0')
                a(f's_cbranch_scc1 {lb}')
                ex(0x3e8)
                a('v_mbcnt_lo_u32_b32 v4, exec_lo, 0')
                a('v_lshlrev_b32 v4, 2, v4')
                a('global_store_dword v4, v3, s[86:87] offset:40')
            a.label(lb)

    def xor_chain(tmp, regs, last=None):
        ops = [f'v{r}' for r in regs] + ([last] if last else [])
        a(f'v_bitop3_b32 v{tmp}, {ops[0]}, {ops[1]}, {ops[2]} {XOR3}')
        ops = ops[3:]
        while len(ops) >= 2:
            a(f'v_bitop3_b32 v{tmp}, v{tmp}, {ops[0]}, {ops[1]} {XOR3}')
            ops = ops[2:]
        if ops:
            a(f'v_xor_b32 v{tmp}, {ops[0]}, v{tmp}')

    def chk_sentinel(regs, tmp):
        rs = list(regs)
        a(f'v_max3_u32 v{tmp}, v{rs[0]}, v{rs[1]}, v{rs[2]}')
        rs = rs[3:]
        while len(rs) >= 2:
            a(f'v_max3_u32 v{tmp}, v{tmp}, v{rs[0]}, v{rs[1]}')
            rs = rs[2:]
        if rs:
            a(f'v_max_u32 v{tmp}, v{tmp}, v{rs[0]}')
        a(f'v_cmp_eq_u32 vcc, -1, v{tmp}')

    def poll(loads, check, sleep=None, wait='s_waitcnt vmcnt(0)'):
        L, Dn = a.uid('poll'), a.uid('pdone')
        a(f's_mov_b32 s{S_CNT}, {SPIN}')
        a.label(L)
        loads()
        a(wait)
        check()
        a(f's_cbranch_vccz {Dn}')
        sl = o.sleep if sleep is None else sleep
        if sl:
            a(f's_sleep {sl}')
        a(f's_sub_u32 s{S_CNT}, s{S_CNT}, 1')
        a(f's_cbranch_scc0 {L}')
        a.label(Dn)

    def lds_wait(addr, off, want, tmp, sleep=1):
        L, Dn = a.uid('lw'), a.uid('lwd')
        a(f's_mov_b32 s{S_CNT}, {SPIN * 40}')
        a.label(L)
        a(f'ds_read_b32 v{tmp}, v{addr} offset:{off}')
        a('s_waitcnt lgkmcnt(0)')
        a(f'v_cmp_gt_u32 vcc, {want}, v{tmp}')
        a(f's_cbranch_vccz {Dn}')
        if sleep:
            a(f's_sleep {sleep}')
        a(f's_sub_u32 s{S_CNT}, s{S_CNT}, 1')
        a(f's_cbranch_scc0 {L}')
        a.label(Dn)

    def mfma16(d, x, y, first):
        c = '0' if first else vr(d, 4)
        a(f'v_mfma_f32_16x16x32_bf16 {vr(d, 4)}, {vr(x, 4)}, {vr(y, 4)}, {c}')

    def srd(rs):
        for r in rs:
            a(f's_mov_b32 s{r + 2}, {SIZES[r]}')
            a(f's_mov_b32 s{r + 3}, 0x00020000')

    def srd_ptr(rs):
        for r in rs:
            if r == R_ACT:
                a(f's_add_u32 s{R_ACT}, s{R_WS}, {WS_ACT}')
                a(f's_addc_u32 s{R_ACT + 1}, s{R_WS + 1}, 0')
            else:
                a(f's_mov_b64 s[{r}:{r + 1}], s[{PTR[r]}:{PTR[r] + 1}]')

    def consts():
        a(f's_mov_b32 s{S_ONES}, 0x3f803f80')
        a(f's_mov_b32 s{S_LO1}, 0x3f80')
        a(f's_mov_b32 s{S_HI1}, 0x3f800000')
        a(f's_mov_b32 s{S_MASK}, 0xffff0000')

    def get_tag():
        a('s_waitcnt lgkmcnt(0)')
        a(f's_add_u32 s{S_TAG}, s{S_TAG}, 0x9e3779b9')

    def vF(d):
        a(f'v_bfe_u32 v{d}, v1, 2, 2')
        a(f'v_lshlrev_b32 v{d}, 8, v{d}')
        a(f'v_lshl_add_u32 v{d}, v3, 6, v{d}')
        a(f'v_lshl_add_u32 v{d}, v4, 4, v{d}')

    def tr64_addr(d, t):
        a(f'v_bfe_u32 v{t}, v1, 2, 2')
        a(f'v_lshl_add_u32 v{t}, v3, 3, v{t}')
        a(f'v_lshlrev_b32 v{d}, 6, v{t}')
        a(f'v_lshl_add_u32 v{d}, v4, 3, v{d}')

    def tr_op(dst, addr, off, tau):
        a(f'ds_read_b64_tr_b16 {vr(dst, 2)}, v{addr} offset:{off}')
        a(f'ds_read_b64_tr_b16 {vr(dst + 2, 2)}, v{addr} offset:{off + tau}')

    def red4_read(x, addr):
        ex(0xffffffff)
        for w in range(4):
            a(f'ds_read_b128 {vr(x + 4 * w, 4)}, v{addr} offset:{512 * w}')
        a('s_waitcnt lgkmcnt(2)')
        for i in range(4):
            a(f'v_add_f32 v{x + i}, v{x + i}, v{x + 4 + i}')
        a('s_waitcnt lgkmcnt(0)')
        for i in range(4):
            a(f'v_add_f32 v{x + 8 + i}, v{x + 8 + i}, v{x + 12 + i}')
        for i in range(4):
            a(f'v_add_f32 v{x + i}, v{x + i}, v{x + 8 + i}')

    def frag_addr(dst, t):
        a(f'v_bfe_u32 v{dst}, v1, 1, 2')
        a(f'v_lshlrev_b32 v{dst}, 6, v{dst}')
        a(f'v_bfe_u32 v{t}, v1, 3, 2')
        a(f'v_lshl_add_u32 v{dst}, v{t}, 4, v{dst}')
        a(f'v_and_b32 v{t}, 1, v1')
        a(f'v_lshl_add_u32 v{dst}, v{t}, 3, v{dst}')

    M4 = 0x000f000f000f000f

    def arrive(wave, ret, t0, off, sel='s3'):
        lb = a.uid('arr')
        a(f's_cmp_lg_u32 {sel}, {wave}')
        a(f's_cbranch_scc1 {lb} ;noflush')
        a(f'v_mov_b32 v{t0}, {off}')
        a(f'v_mov_b32 v{ret}, 1')
        ex(1)
        a(f'global_atomic_add v{ret}, v{t0}, v{ret}, s[86:87] sc0 sc1')
        ex(-1)
        a.label(lb)

    def release(wave, ret, t0, last, flag, wait=None):
        lb = a.uid('rel')
        a(f's_cmp_lg_u32 s3, {wave}')
        a(f's_cbranch_scc1 {lb} ;noflush')
        if wait:
            a(wait)
        a(f'v_readfirstlane_b32 s1, v{ret}')
        a(f's_and_b32 s1, s1, {last}')
        a(f's_cmp_lg_u32 s1, {last}')
        a(f's_cbranch_scc1 {lb} ;noflush')
        a('s_mov_b64 exec, -1')
        a(f'v_mbcnt_lo_u32_b32 v{t0}, -1, 0')
        a(f'v_lshlrev_b32 v{t0}, 2, v{t0}')
        a(f'v_mov_b32 v{ret}, s{S_TAG}')
        if isinstance(flag, int):
            a(f's_mov_b32 s1, {flag}')
            flag = 's1'
        ex(0xffffffff)
        a(f'buffer_store_dword v{ret}, v{t0}, {S(R_WS)}, {flag} offen sc1')
        ex(-1)
        a.label(lb)

    def flag_wait(flag, t0, sleep):
        if isinstance(flag, int):
            a(f's_mov_b32 s1, {flag}')
            flag = 's1'
        ex(1)
        poll(lambda: a(f'buffer_load_dword v{t0}, off, {S(R_WS)}, {flag} sc1'),
             lambda: a(f'v_cmp_ne_u32 vcc, s{S_TAG}, v{t0}'), sleep)
        ex(-1)

    a(f'.globl {name}\n.p2align 8\n.type {name},@function')
    a.label(name)
    if o.stamps:
        a('s_memrealtime s[100:101]')
    a('s_cmp_ge_u32 s2, 256')
    a('s_cbranch_scc1 L_end')
    a('s_load_dwordx16 s[64:79], s[0:1], 0')
    a('s_load_dwordx8 s[80:87], s[0:1], 64')
    a(f's_load_dwordx2 s[{R_WS}:{R_WS + 1}], s[0:1], 96')
    a('v_and_b32 v1, 63, v0')
    a('v_lshrrev_b32 v2, 6, v0')
    a('v_readfirstlane_b32 s3, v2')
    a('v_lshlrev_b32 v2, 4, v1')
    a('v_lshrrev_b32 v3, 4, v1')
    a('v_and_b32 v4, 3, v1')
    a('v_and_b32 v11, 15, v1')
    srd([R_WS, R_X])
    a('s_cmp_ge_u32 s2, 128')
    a('s_cbranch_scc1 L_att')

    srd([R_WQ, R_WUK])
    a('s_and_b32 s4, s2, 7')
    a('s_lshl_b32 s4, s4, 2')
    a('s_bfe_u32 s5, s2, 0x20003')
    a('s_add_u32 s4, s4, s5')
    a('s_lshr_b32 s5, s2, 5')
    a('s_lshl_b32 s6, s4, 8')
    a('v_lshlrev_b32 v5, 1, v3')
    a('v_xor_b32 v5, v5, v11')
    a('v_lshlrev_b32 v5, 4, v5')
    a('v_lshl_add_u32 v6, v3, 13, v5')
    a('v_xor_b32 v7, 0x80, v6')
    a('v_xor_b32 v8, v3, v11')
    a('v_lshlrev_b32 v8, 4, v8')
    a('v_lshl_add_u32 v8, v3, 13, v8')
    a('s_lshl_b32 s90, s5, 20')
    a('s_lshl_b32 s91, s3, 17')
    a('s_add_u32 s90, s90, s91')
    a('s_add_u32 s90, s90, s6')
    a('s_lshl_b32 s91, s3, 12')
    a('s_mov_b32 m0, s91')
    a('v_bfe_u32 v10, v1, 2, 2')
    a('v_lshlrev_b32 v10, 6, v10')
    a('v_lshl_add_u32 v10, v4, 10, v10')
    a('v_lshl_add_u32 v10, v3, 4, v10')
    a('s_lshl_b32 s93, s5, 8')
    XS, XO = 12, 28
    a('s_waitcnt lgkmcnt(0)')
    srd_ptr([R_X, R_WQ, R_WUK])
    a('s_cmp_lg_u32 s3, 0')
    a('s_cbranch_scc1 L_nox')
    for i in range(4):
        a(f'buffer_load_dwordx4 {vr(XS + 4 * i, 4)}, v10, {S(R_X)}, 0 offen offset:{256 * i}')
    a(f'buffer_load_dwordx4 {vr(XO, 4)}, v10, {S(R_X)}, s93 offen')
    a.label('L_nox')
    for i in range(4):
        a(f's_add_u32 s92, s90, {i * 32768}')
        a(f'buffer_load_dwordx4 v{6 + i // 2}, {S(R_WQ)}, s92 offen nt lds')
        if i < 3:
            a('s_add_u32 m0, m0, 1024')
    a('s_barrier')
    a('s_cmp_lt_u32 s3, 4')
    a('s_cbranch_scc1 L_nouk')
    a('s_lshl_b32 s91, s3, 17')
    a('s_add_u32 s90, s90, s91')
    a(f's_sub_u32 s90, s90, {8 << 17}')
    a('s_lshl_b32 s91, s3, 13')
    a(f's_add_u32 m0, s91, {A_WUK - 32768}')
    for i in range(8):
        if i % 2 == 0:
            a(f'v_xor_b32 v9, {64 * (i // 2)}, v8')
        a(f's_add_u32 s92, s90, {i * 32768}')
        a(f'buffer_load_dwordx4 v9, {S(R_WUK)}, s92 offen nt lds')
        if i < 7:
            a('s_add_u32 m0, m0, 1024')
    a.label('L_nouk')
    a(f's_load_dword s{S_TAG}, s[{R_WS}:{R_WS + 1}], {WS_EPOCH}')
    srd_ptr([R_WUV, R_WO, R_WG, R_WU, R_WD, R_OUT, R_ACT])
    consts()
    stamp(1)
    a('s_cmp_lg_u32 s3, 0')
    a('s_cbranch_scc1 L_noln')
    a('s_waitcnt vmcnt(5)')
    for i in range(16):
        a(f'v_dot2_f32_bf16 v34, v{XS + i}, s{S_ONES}, {"0" if i == 0 else "v34"}')
        a(f'v_dot2_f32_bf16 v35, v{XS + i}, v{XS + i}, {"0" if i == 0 else "v35"}')
    for c in ('row_ror:4', 'row_ror:8'):
        dpp('v_add_f32', 34, 34, 34, c)
        dpp('v_add_f32', 35, 35, 35, c)
    for wh in (16, 32):
        a('v_mov_b32 v12, v34')
        a('v_mov_b32 v13, v35')
        a(f'v_permlane{wh}_swap_b32 v34, v12')
        a(f'v_permlane{wh}_swap_b32 v35, v13')
        a('v_add_f32 v34, v34, v12')
        a('v_add_f32 v35, v35, v13')
    a('v_mul_f32 v34, 0x3b000000, v34')
    a('v_mul_f32 v35, 0x3b000000, v35')
    a('v_fma_f32 v35, -v34, v34, v35')
    a('v_max_f32 v35, 0, v35')
    a('v_add_f32 v35, 0x3727c5ac, v35')
    a('v_rsq_f32 v35, v35')
    a(f'v_mul_f32 v35, {QSCALE_BITS}, v35')
    a('v_mul_f32 v34, v34, v35')
    a('s_waitcnt vmcnt(4)')
    for i in range(4):
        a(f'v_lshlrev_b32 v12, 16, v{XO + i}')
        a(f'v_and_b32 v13, s{S_MASK}, v{XO + i}')
        a('v_fma_f32 v12, v12, v35, -v34')
        a('v_fma_f32 v13, v13, v35, -v34')
        a(f'v_cvt_pk_bf16_f32 v{XO + i}, v12, v13')
    a(f'v_add_u32 v12, {A_X}, v2')
    a(f'ds_write_b128 v12, {vr(XO, 4)}')
    a.label('L_noln')
    srd([R_WUV, R_WO, R_WG, R_WU, R_WD, R_OUT, R_ACT])
    a('s_getpc_b64 s[94:95]')
    a.label('L_pc')
    a(f's_sub_u32 s94, s94, L_pc-{name}')
    a('s_subb_u32 s95, s95, 0')
    a('s_andn2_b32 s92, s2, 7')
    a('s_add_u32 s92, s92, s3')
    a('s_lshl_b32 s92, s92, 8')
    a('v_lshl_add_u32 v32, v1, 2, s92')
    a(f'v_min_u32 v32, L_end-{name}, v32')
    a('global_load_dword v33, v32, s[94:95]')
    for i in range(4):
        a(f'v_mov_b32 v{36 + i}, -1')
    a('s_lshl_b32 s92, s2, 3')
    a('s_add_u32 s92, s92, s3')
    a('s_mul_i32 s92, s92, 192')
    a(f's_add_u32 s92, s92, {WS_CLEAN}')
    ex(0xfff)
    a(f'buffer_store_dwordx4 v[36:39], v2, {S(R_WS)}, s92 offen sc1')
    ex(-1)
    a('v_bfe_u32 v40, v1, 2, 3')
    a('v_lshlrev_b32 v40, 1, v40')
    a('v_bfe_u32 v41, v1, 1, 1')
    a('s_lshl_b32 s92, s3, 1')
    a(f'v_bitop3_b32 v40, v40, v41, s92 {XOR3}')
    a('v_lshlrev_b32 v40, 4, v40')
    a('v_bfe_u32 v41, v1, 2, 2')
    a('v_lshl_add_u32 v41, v3, 3, v41')
    a('v_lshl_add_u32 v40, v41, 8, v40')
    a('v_and_b32 v41, 1, v1')
    a('v_lshl_add_u32 v40, v41, 3, v40')
    a('v_lshlrev_b32 v41, 8, v3')
    a('v_lshl_add_u32 v41, v4, 4, v41')
    a(f'v_add_u32 v41, {A_X}, v41')
    a('v_lshlrev_b32 v42, 6, v3')
    a('v_lshl_add_u32 v42, v4, 4, v42')
    a('s_lshl_b32 s96, s4, 13')
    if WS_QP:
        a(f's_add_u32 s96, s96, {WS_QP}')
    a('s_lshl_b32 s92, s5, 11')
    a('s_add_u32 s97, s96, s92')
    a('s_lshl_b32 s92, s3, 8')
    a('s_add_u32 s97, s97, s92')
    get_tag()
    stamp(2)
    a('v_bfe_u32 v43, v1, 2, 2')
    a('v_lshlrev_b32 v43, 11, v43')
    a('v_lshl_add_u32 v43, v3, 7, v43')
    a('v_lshl_add_u32 v43, v4, 4, v43')
    a('s_cmp_lt_u32 s3, 4')
    a('s_cbranch_scc1 L_wq_lo')
    a('s_waitcnt vmcnt(10)')
    a('s_branch L_wq_hi')
    a.label('L_wq_lo')
    a('s_waitcnt vmcnt(2)')
    a.label('L_wq_hi')
    a('s_barrier')
    W1, XF, AC = 12, 44, 60
    for t in range(4):
        tr_op(W1 + 4 * t, 40, A_WQ + 8192 * t, 1024)
        a(f'ds_read_b128 {vr(XF + 4 * t, 4)}, v41 offset:{64 * t}')
    for t in range(4):
        a(f's_waitcnt lgkmcnt({3 * (3 - t)})')
        mfma16(AC, W1 + 4 * t, XF + 4 * t, t == 0)
    a(f'v_cvt_pk_bf16_f32 v64, v{AC}, v{AC + 1}')
    a(f'v_cvt_pk_bf16_f32 v65, v{AC + 2}, v{AC + 3}')
    a(f'v_bitop3_b32 v66, v64, v65, s{S_TAG} {XOR3}')
    ex(M4)
    a(f'buffer_store_dwordx4 v[64:67], v42, {S(R_WS)}, s97 offen sc1')
    ex(-1)
    stamp(3)
    UK, Q, AC2, FR = 68, 100, 132, 140

    def a2_loads():
        for n in range(8):
            a(f'buffer_load_dwordx4 {vr(Q + 4 * n, 4)}, v43, {S(R_WS)}, s96 offen offset:{512 * (n // 2) + 64 * (n % 2)} sc1')
    a('s_cmp_lt_u32 s3, 4')
    a('s_cbranch_scc1 L_a2')
    a('s_waitcnt vmcnt(0)')
    a('s_barrier')
    a('s_branch L_a_done')
    a.label('L_a2')
    a('s_waitcnt vmcnt(0)')
    if o.qdelay:
        a(f's_sleep {o.qdelay}')
    a2_loads()
    a('v_lshrrev_b32 v12, 2, v11')
    a('v_lshl_add_u32 v12, v12, 3, v4')
    a('v_lshlrev_b32 v12, 8, v12')
    a('v_xor_b32 v13, v3, v11')
    a('v_lshl_add_u32 v12, v13, 4, v12')
    a('s_lshl_b32 s92, s3, 13')
    a(f's_add_u32 s92, s92, {A_WUK}')
    a('v_add_u32 v12, s92, v12')
    a('s_barrier')
    for t in range(4):
        a(f'v_xor_b32 v13, {64 * t}, v12')
        for sub in range(2):
            a(f'ds_read_b128 {vr(UK + 16 * sub + 4 * t, 4)}, v13 offset:{1024 * sub}')
    a('v_lshlrev_b32 v15, 8, v4')
    a('v_lshl_add_u32 v15, v3, 4, v15')
    a('s_lshl_b32 s91, s3, 6')
    a(f's_add_u32 s91, s91, {A_C}')
    a('v_add_u32 v15, s91, v15')
    a(f'v_add_u32 v16, {A_C}, v2')
    a('v_lshlrev_b32 v20, 15, v3')
    a('v_lshl_add_u32 v20, v11, 4, v20')
    a('v_lshlrev_b32 v21, 3, v3')
    a('s_lshl_b32 s91, s4, 10')
    a('s_lshl_b32 s92, s5, 8')
    a('s_add_u32 s92, s92, s91')
    a('s_lshr_b32 s93, s92, 1')
    if WS_QA:
        a(f's_add_u32 s92, s92, {WS_QA}')
    a(f's_add_u32 s93, s93, {WS_QAH}')
    a(f's_cmp_lt_u32 s5, {o.nsamp}')
    a('s_cselect_b32 s98, s3, 99')
    a('v_lshlrev_b32 v24, 7, v1')
    a(f'v_mov_b32 v25, s{S_TAG}')
    a(f's_mov_b32 s{S_CNT}, {SPIN}')
    a('s_branch L_a2chk')
    a.label('L_a2poll')
    a2_loads()
    a.label('L_a2chk')
    for n in range(8):
        a(f's_waitcnt vmcnt({7 - n})')
        a(f'v_bitop3_b32 v{Q + 4 * n + 2}, v{Q + 4 * n}, v{Q + 4 * n + 1}, v{Q + 4 * n + 2} {XOR3}')
    a(f'v_max3_u32 v17, v{Q + 2}, v{Q + 6}, v{Q + 10}')
    a(f'v_min3_u32 v18, v{Q + 2}, v{Q + 6}, v{Q + 10}')
    a(f'v_max3_u32 v17, v17, v{Q + 14}, v{Q + 18}')
    a(f'v_min3_u32 v18, v18, v{Q + 14}, v{Q + 18}')
    a(f'v_max3_u32 v17, v17, v{Q + 22}, v{Q + 26}')
    a(f'v_min3_u32 v18, v18, v{Q + 22}, v{Q + 26}')
    a(f'v_max3_u32 v17, v17, v{Q + 30}, s{S_TAG}')
    a(f'v_min3_u32 v18, v18, v{Q + 30}, s{S_TAG}')
    a('v_cmp_ne_u32 vcc, v17, v18')
    a('s_cbranch_vccz L_a2go')
    a(f's_sub_u32 s{S_CNT}, s{S_CNT}, 1')
    a('s_cbranch_scc0 L_a2poll')
    a.label('L_a2go')
    if o.st3:
        a('s_memrealtime s[72:73]')
    stamp(4)
    arrive(3, 22, 23, 0, 's98')
    a('s_waitcnt lgkmcnt(0)')
    for n in range(8):
        for sub in range(2):
            d = AC2 + 4 * sub
            c = '0' if n == 0 else vr(d, 4)
            a(f'v_mfma_f32_16x16x16_bf16 {vr(d, 4)}, {vr(UK + 16 * sub + 2 * n, 2)}, {vr(Q + 4 * n, 2)}, {c}')
    for c in ('row_ror:4', 'row_ror:8'):
        for i in range(8):
            dpp('v_add_f32', AC2 + i, AC2 + i, AC2 + i, c)
    for i in range(4):
        a(f'v_cvt_pk_bf16_f32 v{FR + i}, v{AC2 + 2 * i}, v{AC2 + 2 * i + 1}')
    ex(M4)
    a(f'ds_write_b128 v15, {vr(FR, 4)}')
    ex(-1)
    a('s_cmp_lg_u32 s98, 3')
    a('s_cbranch_scc1 L_norel')
    a('s_waitcnt vmcnt(0)')
    a('v_readfirstlane_b32 s1, v22')
    a(f's_and_b32 s1, s1, {32 * o.nsamp - 1}')
    a(f's_cmp_lg_u32 s1, {32 * o.nsamp - 1}')
    a('s_cbranch_scc1 L_norel')
    a(f's_mov_b32 s1, {WS_HU}')
    a(f'buffer_store_dword v25, v24, {S(R_WS)}, s1 offen sc1')
    a(f's_mov_b32 s1, {WS_HU + 8192}')
    a(f'buffer_store_dword v25, v24, {S(R_WS)}, s1 offen sc1')
    a.label('L_norel')
    a('s_waitcnt lgkmcnt(0)')
    a.label('L_a_done')
    a('s_barrier')
    a('s_cmp_lg_u32 s3, 0')
    a('s_cbranch_scc1 L_a_pub')
    a(f'ds_read_b128 {vr(FR, 4)}, v16')
    a('s_waitcnt lgkmcnt(0)')
    a(f'buffer_store_dwordx4 {vr(FR, 4)}, v20, {S(R_WS)}, s92 offen sc1')
    xor_chain(18, range(FR, FR + 4))
    for c in ('quad_perm:[1,0,3,2]', 'quad_perm:[2,3,0,1]', 'row_ror:4', 'row_ror:8'):
        dpp('v_xor_b32', 18, 18, 18, c)
    a(f'v_xor_b32 v19, s{S_TAG}, v18')
    ex(0x0001000100010001)
    a(f'buffer_store_dwordx2 v[18:19], v21, {S(R_WS)}, s93 offen sc1')
    ex(-1)
    stamp(5)
    a.label('L_a_pub')
    a('s_and_b32 s7, s2, 7')
    a('s_lshr_b32 s63, s2, 3')
    a('v_lshl_add_u32 v6, v3, 18, v5')
    a('v_xor_b32 v7, 0x80, v6')
    a('s_lshl_b32 s0, s5, 20')
    a('s_add_u32 s0, s0, s6')
    a('s_mov_b32 s61, 0')
    D, WL, CA, OPC, OPD = 16, 32, 40, 64, 96
    a('s_and_b32 s94, s3, 3')
    a('s_lshr_b32 s95, s3, 2')
    a('v_bfe_u32 v56, v1, 2, 3')
    a('v_lshlrev_b32 v56, 1, v56')
    a('s_lshl_b32 s92, s94, 2')
    a(f'v_bitop3_b32 v56, v56, v4, s92 {XOR3}')
    a('v_lshlrev_b32 v56, 4, v56')
    a('v_bfe_u32 v58, v1, 2, 2')
    a('v_lshl_add_u32 v58, v3, 3, v58')
    a('v_lshl_add_u32 v56, v58, 8, v56')
    a(f'v_add_u32 v56, {A_WUV}, v56')
    tr64_addr(57, 58)
    a('s_lshl_b32 s91, s94, 13')
    a(f's_add_u32 s91, s91, {A_WO}')
    a('v_add_u32 v57, s91, v57')
    a('v_and_b32 v5, 31, v1')
    a('v_lshlrev_b32 v5, 11, v5')
    a('s_lshl_b32 s90, s94, 16')
    a('s_lshl_b32 s91, s5, 9')
    a('s_add_u32 s90, s90, s91')
    a('s_lshl_b32 s91, s4, 4')
    a('s_add_u32 s90, s90, s91')
    a(f's_add_u32 s90, s90, {WS_REC}')
    a('s_lshl_b32 s96, s4, 2')
    a('s_add_u32 s96, s96, s5')
    a('s_lshl_b32 s96, s96, 2')
    a('s_add_u32 s96, s96, s94')
    a('s_lshl_b32 s91, s96, 13')
    a('s_lshl_b32 s93, s95, 12')
    a('s_add_u32 s91, s91, s93')
    a(f's_add_u32 s91, s91, {WS_OP}')
    a('s_lshl_b32 s92, s95, 4')
    a('v_lshlrev_b32 v48, 4, v11')
    a('v_lshl_add_u32 v48, v3, 1, v48')
    a('s_lshl_b32 s93, s3, 8')
    a(f's_add_u32 s93, s93, {A_C}')
    a('v_add_u32 v48, s93, v48')
    a('v_and_b32 v49, 7, v1')
    a('v_lshlrev_b32 v49, 8, v49')
    a('v_lshl_add_u32 v49, v3, 4, v49')
    a(f'v_add_u32 v49, {A_C}, v49')
    a('v_lshlrev_b32 v50, 6, v3')
    a('v_lshl_add_u32 v50, v4, 4, v50')
    a('s_lshl_b32 s98, s4, 12')
    a('s_lshl_b32 s93, s94, 10')
    a('s_add_u32 s98, s98, s93')
    a('s_lshl_b32 s93, s5, 8')
    a('s_add_u32 s98, s98, s93')
    a(f's_add_u32 s98, s98, {WS_CP}')
    a('v_add_u32 v51, s92, v3')
    a('v_lshlrev_b32 v51, 2, v51')
    a('v_cmp_eq_u32 s[88:89], s95, v3')
    vF(128)
    a('v_lshlrev_b32 v129, 7, v4')
    a('v_lshl_add_u32 v129, v3, 4, v129')
    a('s_lshl_b32 s93, s94, 9')
    a(f's_add_u32 s93, s93, {A_D}')
    a('v_add_u32 v129, s93, v129')
    a('v_bfe_u32 v130, v1, 1, 2')
    a('v_lshlrev_b32 v130, 7, v130')
    a('v_bfe_u32 v9, v1, 3, 2')
    a('v_lshl_add_u32 v130, v9, 5, v130')
    a('v_and_b32 v9, 1, v1')
    a('v_lshl_add_u32 v130, v9, 4, v130')
    a(f'v_add_u32 v130, {A_D}, v130')
    a('v_lshlrev_b32 v131, 3, v1')
    a('s_lshl_b32 s6, s7, 14')
    a('s_lshl_b32 s93, s94, 12')
    a('s_add_u32 s6, s6, s93')
    a(f's_add_u32 s6, s6, {WS_CP}')
    a('s_lshl_b32 s99, s7, 12')
    a('s_lshl_b32 s93, s63, 8')
    a('s_add_u32 s99, s99, s93')
    a(f's_add_u32 s99, s99, {WS_HP}')
    a('v_lshrrev_b32 v8, 2, v1')
    a('s_cmp_lt_u32 s3, 4')
    a('s_cbranch_scc1 L_wlo')
    a('s_mov_b32 s61, 0')
    tr64_addr(58, 59)

    def go_wait(extra=0):
        a('s_lshl_b32 s96, s2, 7')
        a(f's_add_u32 s96, s96, {WS_GO}')
        ex(1)
        poll(lambda: a(f'buffer_load_dword v9, off, {S(R_WS)}, s96 sc1'), lambda: a(f'v_cmp_ne_u32 vcc, s{S_TAG}, v9'), 8)
        ex(-1)
    a('s_cmp_lt_u32 s2, 48')
    a('s_cbranch_scc1 L_E1')
    a('s_and_b32 s93, s2, 0x70')
    a('s_cmp_eq_u32 s93, 64')
    a('s_cbranch_scc1 L_F1')
    a.label('L_wnone')
    a('s_barrier')
    a('s_branch L_cstart')
    OP = 64
    H, XR, HA, X4, EA = 16, 128, 140, 148, 164
    EW, ES, ER, ESR, EST, EG, ECS = 180, 181, 182, 183, 184, 185, 186
    a.label('L_E1')
    a('s_mul_i32 s93, s7, 6')
    a('s_add_u32 s63, s63, s93')
    a('s_cmp_ge_u32 s63, 43')
    a('s_cbranch_scc1 L_wnone')
    a('s_mov_b32 s61, 1')
    if o.efgo == 1:
        go_wait()
    a('v_mul_u32_u24 v8, 2752, v8')
    a('v_lshl_add_u32 v8, v4, 4, v8')
    a(f's_mul_i32 s99, s94, {128 * 2752}')
    a('s_lshl_b32 s93, s63, 6')
    a('s_add_u32 s99, s99, s93')
    a('s_lshl_b32 s6, s94, 14')
    a('s_mov_b32 m0, s6')
    a('v_bfe_u32 v9, v1, 2, 2')
    a('v_lshlrev_b32 v9, 6, v9')
    a('v_lshl_add_u32 v9, v4, 10, v9')
    a('v_lshl_add_u32 v9, v3, 4, v9')
    a('s_lshl_b32 s93, s94, 8')
    a(f'buffer_load_dwordx4 {vr(XR, 4)}, v9, {S(R_X)}, s93 offen')
    for mat in range(2):
        for i in range(8):
            a(f's_add_u32 s93, s99, {16 * i * 2752}')
            a(f's_waitcnt vmcnt({o.efwin - 1})')
            a(f'buffer_load_dwordx4 v8, {S(R_WG if mat == 0 else R_WU)}, s93 offen {o.r64} lds')
            a('s_add_u32 m0, m0, 1024')
    a('v_add_u32 v58, s6, v58')
    a(f'v_lshlrev_b32 v{EW}, 8, v4')
    a(f'v_lshl_add_u32 v{EW}, v3, 4, v{EW}')
    a(f'v_add_u32 v{EW}, s6, v{EW}')
    a(f'v_lshlrev_b32 v{ES}, 3, v4')
    a(f'v_lshl_add_u32 v{ES}, v3, 2, v{ES}')
    a(f'v_add_u32 v{ES}, s6, v{ES}')
    a('s_and_b32 s93, s3, 1')
    a('s_lshl_b32 s93, s93, 6')
    a(f'v_add_u32 v{EST}, s93, v1')
    a(f'v_lshrrev_b32 v{ESR}, 5, v{EST}')
    a(f'v_and_b32 v{ER}, 31, v{EST}')
    a(f'v_lshlrev_b32 v{ER}, 2, v{ER}')
    a(f'v_lshl_add_u32 v{ER}, v{ESR}, 8, v{ER}')
    a(f'v_lshlrev_b32 v{ESR}, 3, v{ESR}')
    a(f'v_lshlrev_b32 v{EST}, 1, v{EST}')
    vF(EG)
    for i in range(4):
        a(f'v_mov_b32 v{X4 + i}, s{S_ONES}')
    a('s_waitcnt vmcnt(0)')
    for t in range(4):
        for k in range(4):
            tr_op(OP + 16 * t + 4 * k, 58, 8192 * (k // 2) + 2048 * t + 32 * (k % 2), 256)
        a(f's_waitcnt lgkmcnt({4 if t < 3 else 0})')
    for t in range(4):
        for k in range(4):
            mfma16(EA + 4 * k, OP + 16 * t + 4 * k, X4, t == 0)
    for i in range(4):
        a(f'v_lshlrev_b32 v{132 + 2 * i}, 16, v{XR + i}')
        a(f'v_and_b32 v{133 + 2 * i}, s{S_MASK}, v{XR + i}')

    def e_lds_write():
        ex(M4)
        for k in range(4):
            a(f'ds_write_b128 v{EW}, {vr(EA + 4 * k, 4)} offset:{64 * k}')
        ex(-1)
    e_lds_write()
    a('s_branch L_wnone')
    X, HR, FA = 160, 16, 40
    FW, FRD, FH, FO, FG, FX = 204, 205, 206, 207, 208, 210
    a.label('L_F1')
    a('s_mov_b32 s61, 2')
    if o.efgo == 1:
        go_wait()
    a('s_and_b32 s63, s63, 1')
    a('s_lshl_b32 s93, s7, 1')
    a('s_add_u32 s63, s63, s93')
    a('v_lshlrev_b32 v8, 10, v8')
    a('v_lshl_add_u32 v8, v4, 4, v8')
    a('s_lshl_b32 s99, s94, 15')
    a('s_lshl_b32 s98, s63, 6')
    a('s_add_u32 s99, s99, s98')
    a(f's_mul_i32 s6, s94, {22 * 1024}')
    a('s_mov_b32 m0, s6')
    a(f'v_bfe_u32 v{FO}, v1, 3, 2')
    a(f'v_lshlrev_b32 v{FO}, 10, v{FO}')
    a('v_and_b32 v9, 7, v1')
    a(f'v_lshl_add_u32 v{FO}, v9, 3, v{FO}')
    a(f'buffer_load_dwordx2 {vr(FX, 2)}, v{FO}, {S(R_X)}, s98 offen')
    for n in range(11):
        for i in range(2):
            a(f's_add_u32 s93, s99, {(128 * n + 16 * i) * 1024}')
            a(f's_waitcnt vmcnt({o.efwin})')
            a(f'buffer_load_dwordx4 v8, {S(R_WD)}, s93 offen {o.r64} lds')
            a('s_add_u32 m0, m0, 1024')
    a('v_add_u32 v58, s6, v58')
    a(f'v_lshlrev_b32 v{FW}, 7, v4')
    a(f'v_lshl_add_u32 v{FW}, v3, 4, v{FW}')
    a('s_lshl_b32 s93, s94, 9')
    a(f'v_add_u32 v{FW}, s93, v{FW}')
    frag_addr(FH, 9)
    a(f'v_lshlrev_b32 v{FG}, 6, v4')
    a(f'v_lshl_add_u32 v{FG}, v3, 4, v{FG}')
    a('s_waitcnt vmcnt(0)')
    for n in range(11):
        for cb in range(2):
            tr_op(OP + 8 * n + 4 * cb, 58, 2048 * n + 32 * cb, 256)
        if n % 2 == 1:
            a('s_waitcnt lgkmcnt(4)')
    a('s_branch L_wnone')
    a.label('L_wlo')
    a('s_lshl_b32 s93, s3, 15')
    a('s_add_u32 s0, s0, s93')
    a('s_lshl_b32 s93, s3, 13')
    a(f's_add_u32 m0, s93, {A_WUV}')
    a('v_lshlrev_b32 v8, 10, v8')
    a('v_lshl_add_u32 v8, v4, 4, v8')
    a('s_lshl_b32 s97, s7, 19')
    a('s_lshl_b32 s93, s3, 17')
    a('s_add_u32 s97, s97, s93')
    a('s_lshl_b32 s93, s63, 6')
    a('s_add_u32 s97, s97, s93')
    if o.wgo:
        go_wait()
    for i in range(8):
        a(f's_add_u32 s93, s0, {(16 * (i % 2) + i // 2) * 8192}')
        if i >= o.wwin:
            a(f's_waitcnt vmcnt({o.wwin - 1})')
        a(f'buffer_load_dwordx4 v{6 + (i // 2) % 2}, {S(R_WUV)}, s93 offen nt lds')
        a(f's_add_u32 m0, m0, {1024 if i < 7 else A_WO - A_WUV - 7168}')
    for i in range(8):
        a(f's_add_u32 s93, s97, {i * 16384}')
        if 8 + i >= o.wwin:
            a(f's_waitcnt vmcnt({o.wwin - 1})')
        a(f'buffer_load_dwordx4 v8, {S(R_WO)}, s93 offen {o.r64} lds')
        if i < 7:
            a('s_add_u32 m0, m0, 1024')
    a('s_waitcnt vmcnt(0)')
    a('s_barrier')
    for t in range(4):
        for k in range(2):
            tr_op(OPC + 8 * t + 4 * k, 56, 8192 * t + 8 * k, 1024)
            tr_op(OPD + 8 * t + 4 * k, 57, 2048 * t + 32 * k, 256)
        a('s_waitcnt lgkmcnt(4)')
    a.label('L_cstart')
    stamp(6)
    a('s_lshl_b32 s96, s94, 7')
    a(f's_add_u32 s96, s96, {WS_FL + 128}')
    flag_wait('s96', 9, o.stsleep)
    stamp(7)
    a(f's_mov_b32 s{S_CNT}, {SPIN}')
    a.label('L_call')
    a(f'buffer_load_dwordx4 v[12:15], v5, {S(R_WS)}, s90 offen sc1')
    for i in range(4):
        a(f'buffer_load_dwordx4 {vr(D + 4 * i, 4)}, v2, {S(R_WS)}, s91 offen offset:{1024 * i} sc1')
    a(f's_sub_u32 s{S_CNT}, s{S_CNT}, 1')
    a('s_cbranch_scc1 L_cdone')
    a('s_waitcnt vmcnt(4)')
    xor_chain(10, [12, 13, 14, 15], f's{S_TAG}')
    a('v_cmp_ne_u32 vcc, 0, v10')
    a('s_cbranch_vccz L_crec')
    a('s_waitcnt vmcnt(0)')
    a('s_branch L_call')
    a.label('L_crec')
    a('v_cndmask_b32 v9, 0, v14, s[88:89]')
    a('v_mov_b32 v14, v12')
    for op, v in (('v_max_f32', 14), ('v_add_f32', 14)):
        for c in ('quad_perm:[1,0,3,2]', 'quad_perm:[2,3,0,1]', 'row_ror:4', 'row_ror:8'):
            dpp(op, v, v, v, c)
        swap_step(op, v, 15, 16)
        if op == 'v_max_f32':
            a('v_sub_f32 v12, v12, v14')
            a('v_exp_f32 v12, v12')
            a('v_mul_f32 v14, v12, v13')
    a('v_rcp_f32 v14, v14')
    a('v_mul_f32 v12, v12, v14')
    a('v_cvt_pk_bf16_f32 v12, v12, 0')
    for i in range(4):
        a(f'ds_bpermute_b32 v{WL + i}, v51, v12 offset:{16 * i}')
    a('s_waitcnt lgkmcnt(0)')
    for i in range(4):
        a(f'v_lshlrev_b32 v{WL + 4 + i}, 16, v{WL + i}')
    a('s_waitcnt vmcnt(0)')
    stamp(8)
    f3(66)
    xor_chain(9, [9] + list(range(D, D + 16)))
    steps = ['quad_perm:[1,0,3,2]', 'quad_perm:[2,3,0,1]', 'row_ror:4', 'row_ror:8', 16, 32]
    for i in range(4):
        for u in range(4):
            for e in range(2):
                c = '0' if i == 0 else f'v{CA + 2 * u + e}'
                a(f'v_dot2_f32_bf16 v{CA + 2 * u + e}, v{D + 4 * i + u}, v{WL + 4 * e + i}, {c}')
            if u % 2 == 1 and steps:
                st = steps.pop(0)
                if isinstance(st, str):
                    dpp('v_xor_b32', 9, 9, 9, st)
                    if st == 'row_ror:8':
                        a('v_mov_b32 v10, v9')
                else:
                    a(f'v_permlane{st}_swap_b32 v9, v10')
                    a('v_xor_b32 v9, v9, v10')
                    a('v_mov_b32 v10, v9')
    a('v_cmp_ne_u32 vcc, 0, v9')
    for k in range(4):
        a(f'v_permlane16_swap_b32 v{CA + 2 * k}, v{CA + 2 * k + 1}')
    a('s_cbranch_vccnz L_call')
    a.label('L_cdone')
    for k in range(4):
        a(f'v_add_f32 v{CA + 2 * k}, v{CA + 2 * k}, v{CA + 2 * k + 1}')
    for k in range(2):
        a(f'v_permlane32_swap_b32 v{CA + 4 * k}, v{CA + 4 * k + 2}')
    for k in range(2):
        a(f'v_add_f32 v{CA + 4 * k}, v{CA + 4 * k}, v{CA + 4 * k + 2}')
    a(f'v_cvt_pk_bf16_f32 v{CA}, v{CA}, v{CA + 4}')
    a(f'ds_write_b16 v48, v{CA}')
    a(f'ds_write_b16_d16_hi v48, v{CA} offset:8')
    f3(68)
    a('s_waitcnt lgkmcnt(0)')
    a('s_barrier')
    f3(70)
    a('s_cmp_ge_u32 s3, 4')
    a('s_cbranch_scc1 L_hi')
    for t in range(4):
        a(f'ds_read_b128 {vr(D + 4 * t, 4)}, v49 offset:{64 * t}')
    for t in range(4):
        a(f's_waitcnt lgkmcnt({3 - t})')
        for k in range(2):
            mfma16(CA + 4 * k, OPC + 8 * t + 4 * k, D + 4 * t, t == 0)
    for i in range(8):
        dpp('v_add_f32', CA + i, CA + i, CA + i, 'row_ror:4')
    for i in range(4):
        a(f'v_cvt_pk_bf16_f32 v{12 + i}, v{CA + 2 * i}, v{CA + 2 * i + 1}')
    ex(M4)
    a(f'buffer_store_dwordx4 v[12:15], v50, {S(R_WS)}, s98 offen sc1')
    ex(-1)
    stamp(9)
    f3(72)
    a('s_waitcnt vmcnt(0)')
    f3(74)
    if o.ddelay:
        a(f's_sleep {o.ddelay}')

    def d_loads():
        for i in range(4):
            a(f'buffer_load_dwordx4 {vr(D + 4 * i, 4)}, v128, {S(R_WS)}, s6 offen offset:{1024 * i} sc1')
    poll(d_loads, lambda: chk_sentinel(range(D, D + 16), 10), o.dsleep)
    stamp(10)
    f3(76)
    for t in range(4):
        for k in range(2):
            mfma16(CA + 4 * k, OPD + 8 * t + 4 * k, D + 4 * t, t == 0)
    for c in ('row_ror:4', 'row_ror:8'):
        for i in range(8):
            dpp('v_add_f32', CA + i, CA + i, CA + i, c)
    ex(M4)
    a(f'ds_write_b128 v129, {vr(CA, 4)}')
    a(f'ds_write_b128 v129, {vr(CA + 4, 4)} offset:64')
    ex(-1)
    a('s_waitcnt lgkmcnt(0)')
    a('s_barrier')
    a('s_cmp_lg_u32 s3, 0')
    a('s_cbranch_scc1 L_end')
    red4_read(D, 130)
    a(f'v_cvt_pk_bf16_f32 v{D}, v{D}, v{D + 1}')
    a(f'v_cvt_pk_bf16_f32 v{D + 1}, v{D + 2}, v{D + 3}')
    a(f'buffer_store_dwordx2 {vr(D, 2)}, v131, {S(R_WS)}, s99 offen sc1')
    f3(78)
    if o.stamps:
        a('s_memrealtime s[88:89]')
    a('s_waitcnt vmcnt(0)')
    if o.stamps:
        a('s_barrier')
    if o.st3:
        o.stamps = 1
    if o.stamps:
        dump_stamps(13, 0, 'a')
    a('s_endpgm')

    a.label('L_hi')
    a('s_cmp_eq_u32 s61, 0')
    a('s_cbranch_scc1 L_end')
    a('s_cmp_eq_u32 s61, 2')
    a('s_cbranch_scc1 L_F2')

    def e_lds_read():
        for w in range(4):
            a(f'ds_read_b32 v{H + 2 * w}, v{ER} offset:{16384 * w}')
            a(f'ds_read_b32 v{H + 2 * w + 1}, v{ER} offset:{16384 * w + 128}')
    e_lds_read()
    a('s_lshl_b32 s98, s63, 8')
    a('s_lshl_b32 s90, s94, 10')
    a(f's_add_u32 s90, s90, {WS_HP}')
    a('s_waitcnt lgkmcnt(0)')
    a(f'v_add_f32 v{ECS}, v{H}, v{H + 2}')
    a(f'v_add_f32 v{ECS + 1}, v{H + 1}, v{H + 3}')
    for w in range(2, 4):
        a(f'v_add_f32 v{ECS}, v{ECS}, v{H + 2 * w}')
        a(f'v_add_f32 v{ECS + 1}, v{ECS + 1}, v{H + 2 * w + 1}')
    a('s_barrier')
    a('s_barrier')
    if o.edelay:
        a(f's_sleep {o.edelay}')

    def e_loads():
        a('s_mov_b32 s92, s90')
        for r in range(8):
            a(f'buffer_load_dwordx4 {vr(H + 4 * r, 4)}, v{EG}, {S(R_WS)}, s92 offen sc1')
            if r < 7:
                a('s_add_u32 s92, s92, 4096')
    f3(66)
    poll(e_loads, lambda: chk_sentinel(range(H, H + 32), 10), 0)
    stamp(9)
    f3(68)
    for r in range(8):
        for u in range(4):
            for e in range(2):
                c = f'v{132 + 2 * u + e}' if r == 0 else f'v{HA + 2 * u + e}'
                a(f'v_dot2_f32_bf16 v{HA + 2 * u + e}, v{H + 4 * r + u}, s{S_LO1 + e}, {c}')
    f3(70)
    for i in range(4):
        a(f'v_cvt_pk_bf16_f32 v{X4 + i}, v{HA + 2 * i}, v{HA + 2 * i + 1}')
    for t in range(4):
        if t < 3:
            for i in range(4):
                a(f'v_mov_b32_dpp v{X4 + 4 * (t + 1) + i}, v{X4 + i} row_shl:{4 * (t + 1)} row_mask:0xf bank_mask:0xf bound_ctrl:0')
        for k in range(4):
            mfma16(EA + 4 * k, OP + 16 * t + 4 * k, X4 + 4 * t, t == 0)
        if t == 0:
            for i in range(4):
                a(f'v_dot2_f32_bf16 v9, v{X4 + i}, s{S_ONES}, {"0" if i == 0 else "v9"}')
                a(f'v_dot2_f32_bf16 v10, v{X4 + i}, v{X4 + i}, {"0" if i == 0 else "v10"}')
        if t == 1:
            for c in ('row_ror:4', 'row_ror:8'):
                dpp('v_add_f32', 9, 9, 9, c)
                dpp('v_add_f32', 10, 10, 10, c)
        if t == 2:
            a('v_permlane16_swap_b32 v9, v10')
            a('v_add_f32 v9, v9, v10')
            swap_step('v_add_f32', 9, 10, 32)
    ex(0x000f000f)
    f3(72)
    a(f'ds_write_b32 v{ES}, v9 offset:1024')
    e_lds_write()
    a('s_waitcnt lgkmcnt(0)')
    a('s_barrier')
    f3(74)
    a('s_cmp_ge_u32 s3, 6')
    a('s_cbranch_scc1 L_end')
    for w in range(4):
        a(f'ds_read_b64 v[{H + 8 + 2 * w}:{H + 9 + 2 * w}], v{ESR} offset:{16384 * w + 1024}')
    e_lds_read()
    a('s_waitcnt lgkmcnt(8)')
    for w in range(1, 4):
        a(f'v_add_f32 v{H + 8}, v{H + 8}, v{H + 8 + 2 * w}')
        a(f'v_add_f32 v{H + 9}, v{H + 9}, v{H + 9 + 2 * w}')
    MU, VA = H + 8, H + 9
    a(f'v_mul_f32 v{MU}, 0x3b000000, v{MU}')
    a(f'v_mul_f32 v{VA}, 0x3b000000, v{VA}')
    a(f'v_fma_f32 v{VA}, -v{MU}, v{MU}, v{VA}')
    a(f'v_max_f32 v{VA}, 0, v{VA}')
    a(f'v_add_f32 v{VA}, 0x3727c5ac, v{VA}')
    a(f'v_rsq_f32 v{VA}, v{VA}')
    a('s_waitcnt lgkmcnt(0)')
    for w in range(1, 4):
        a(f'v_add_f32 v{H}, v{H}, v{H + 2 * w}')
        a(f'v_add_f32 v{H + 1}, v{H + 1}, v{H + 2 * w + 1}')
    a(f'v_fma_f32 v16, -v{MU}, v{ECS}, v16')
    a(f'v_fma_f32 v17, -v{MU}, v{ECS + 1}, v17')
    a(f'v_mul_f32 v16, v16, v{VA}')
    a(f'v_mul_f32 v17, v17, v{VA}')
    a('v_mul_f32 v18, v16, v16')
    a('v_mov_b32 v19, 1.0')
    a('v_fmac_f32 v19, 0x3d372713, v18')
    a('v_mul_f32 v19, v19, v16')
    a(f'v_mul_f32 v19, {GELU_BITS}, v19')
    a('v_exp_f32 v19, v19')
    a('v_mul_f32 v16, v16, v17')
    a('v_add_f32 v19, 1.0, v19')
    a('v_rcp_f32 v19, v19')
    a('v_mul_f32 v16, v16, v19')
    a('v_mov_b32_dpp v17, v16 quad_perm:[1,1,3,3] row_mask:0xf bank_mask:0xf')
    a('v_cvt_pk_bf16_f32 v16, v16, v17')
    ex(0x5555555555555555)
    a(f'buffer_store_dword v16, v{EST}, {S(R_ACT)}, s98 offen sc1')
    f3(76)
    a('s_branch L_efend')

    a.label('L_F2')
    a('s_lshl_b32 s98, s63, 6')
    a('s_lshl_b32 s90, s63, 8')
    a(f's_add_u32 s90, s90, {WS_HP}')
    a('s_barrier')
    a('s_barrier')
    a('s_sleep 4')

    def h_loads():
        a('s_mov_b32 s92, s90')
        for r in range(8):
            a(f'buffer_load_dwordx2 {vr(HR + 2 * r, 2)}, v{FH}, {S(R_WS)}, s92 offen sc1')
            if r < 7:
                a('s_add_u32 s92, s92, 4096')
    poll(h_loads, lambda: chk_sentinel(range(HR, HR + 16), 10), 3)
    for u in range(2):
        for e in range(2):
            a(f'v_dot2_f32_bf16 v{32 + 2 * u + e}, v{FX + u}, s{S_LO1 + e}, 0')
    for r in range(8):
        for u in range(2):
            for e in range(2):
                a(f'v_dot2_f32_bf16 v{32 + 2 * u + e}, v{HR + 2 * r + u}, s{S_LO1 + e}, v{32 + 2 * u + e}')
    for u in range(2):
        a(f'v_cvt_pk_bf16_f32 v12, v{32 + 2 * u}, v{33 + 2 * u}')
        a(f'v_lshlrev_b32 v{32 + 2 * u}, 16, v12')
        a(f'v_and_b32 v{33 + 2 * u}, s{S_MASK}, v12')
    a('s_lshl_b32 s90, s94, 8')
    a('s_add_u32 s91, s90, 4096')
    a('s_add_u32 s92, s90, 8192')

    def f_loads():
        for n in range(11):
            a(f'buffer_load_dwordx4 {vr(X + 4 * n, 4)}, v{FG}, {S(R_ACT)}, s{90 + n // 4} offen offset:{1024 * (n % 4)} sc1')
    a(f's_sleep {o.fdelay}')
    poll(f_loads, lambda: chk_sentinel(range(X, X + 44), 10), 0)
    stamp(9)
    for n in range(11):
        for cb in range(2):
            mfma16(FA + 4 * cb, OP + 8 * n + 4 * cb, X + 4 * n, n == 0)
    ex(M4)
    a(f'ds_write_b128 v{FW}, {vr(FA, 4)}')
    a(f'ds_write_b128 v{FW}, {vr(FA + 4, 4)} offset:64')
    ex(-1)
    a('s_waitcnt lgkmcnt(0)')
    a('s_barrier')
    a('s_cmp_lg_u32 s3, 4')
    a('s_cbranch_scc1 L_end')
    red4_read(16, 2)
    for i in range(4):
        a(f'v_add_f32 v{16 + i}, v{16 + i}, v{32 + i}')
    a('v_cvt_pk_bf16_f32 v16, v16, v17')
    a('v_cvt_pk_bf16_f32 v17, v18, v19')
    a(f'buffer_store_dwordx2 v[16:17], v{FO}, {S(R_OUT)}, s98 offen')
    a('s_cmp_lg_u32 s63, 0')
    a('s_cbranch_scc1 L_efend')
    ex(1)
    a(f'v_mov_b32 v12, s{S_TAG}')
    a(f's_mov_b32 s90, {WS_EPOCH}')
    a(f'buffer_store_dword v12, off, {S(R_WS)}, s90')
    a.label('L_efend')
    if o.stamps:
        stamp(10)
        a('s_cmp_lg_u32 s3, 4')
        a('s_cbranch_scc1 L_end')
        dump_stamps(11, 1)
    a('s_endpgm')

    a.label('L_att')
    srd([R_CKV])
    a('s_bfe_u32 s4, s2, 0x20001')
    a('s_bfe_u32 s5, s2, 0x40003')
    a('s_lshl_b32 s5, s5, 1')
    a('s_and_b32 s6, s2, 1')
    a('s_add_u32 s5, s5, s6')
    a('s_lshl_b32 s90, s4, 23')
    a('s_lshl_b32 s91, s5, 18')
    a('s_add_u32 s90, s90, s91')
    a('s_and_b32 s7, s3, 3')
    a('s_lshl_b32 s91, s7, 14')
    a('s_add_u32 s90, s90, s91')
    a('s_lshl_b32 s91, s7, 15')
    a('s_lshl_b32 s92, s7, 2')
    a(f's_add_u32 s92, s92, {FB}')
    a('v_mov_b32 v7, s92')
    a(f'v_lshlrev_b32 v10, 2, v4')
    a(f'v_add_u32 v10, {FB}, v10')
    a('s_cmp_lt_u32 s3, 4')
    a('s_cbranch_scc1 L_comp')
    a('s_mov_b32 s3, s7')
    VX, TR = 12, 64
    for j in range(8):
        a(f'v_xor_b32 v{VX + j}, {32 * j}, v2')
    a('s_mov_b32 m0, s91')
    a('s_mov_b32 s93, 0')
    a('s_waitcnt lgkmcnt(0)')
    srd_ptr([R_CKV])
    rows = [(T, j) for T in range(4) for j in range(16) if not (T == 1 and j == 15)]
    landed = 0
    pub = {0: 16, 1: 31}
    for n, (T, j) in enumerate(rows):
        w = o.w0 if n < o.n0 else o.window
        if o.hold and n == o.hold:
            a('s_waitcnt vmcnt(0)')
            landed = n
            for tt in list(pub):
                if landed >= pub[tt]:
                    a(f'v_mov_b32 v5, {tt + 1}')
                    a(f'ds_write_b32 v7, v5 offset:{F_LAND}')
                    del pub[tt]
            lds_wait(10, F_HUS if o.sw == 1 else F_QST, 1, 5, 2)
        if o.hold and n < o.hold and n >= o.n0:
            w = o.w1
        if n >= o.n0 and not o.hold:
            lb = a.uid('fast')
            a('s_cmp_lg_u32 s93, 0')
            a(f's_cbranch_scc1 {lb}')
            if n % 2 == 0:
                a(f'ds_read_b32 v6, v10 offset:{F_HUS if o.sw == 1 else F_QST}')
            a(f's_waitcnt vmcnt({o.w1 - 1})')
            if n % 2 == 0:
                a('s_waitcnt lgkmcnt(0)')
                a('v_cmp_eq_u32 vcc, 0, v6')
                a('s_cmp_eq_u64 vcc, 0')
                a('s_cselect_b32 s93, 1, 0')
            a.label(lb)
        if n - landed >= w:
            a(f's_waitcnt vmcnt({w - 1})')
            landed = n - (w - 1)
        if n in (16 + o.w1, 31 + o.w1) and landed < n - o.w1:
            a(f's_waitcnt vmcnt({o.w1})')
            landed = n - o.w1
        if n == o.gon and not o.wgo:
            get_tag()
        if n == o.gon and o.wgo:
            lb = a.uid('nogo')
            get_tag()
            a('s_cmp_lg_u32 s3, 0')
            a(f's_cbranch_scc1 {lb}')
            a('s_sub_u32 s92, s2, 128')
            a('s_lshl_b32 s92, s92, 7')
            a(f's_add_u32 s92, s92, {WS_GO}')
            a(f'v_mov_b32 v6, s{S_TAG}')
            a('v_lshlrev_b32 v8, 2, v1')
            ex(0xffffffff)
            a(f'buffer_store_dword v6, v8, {S(R_WS)}, s92 offen sc1')
            ex(-1)
            a.label(lb)
        for tt in list(pub):
            if landed >= pub[tt]:
                a(f'v_mov_b32 v5, {tt + 1}')
                a(f'ds_write_b32 v7, v5 offset:{F_LAND}')
                del pub[tt]
        if T < 2:
            a(f'buffer_load_dwordx4 v{VX + j // 2}, {S(R_CKV)}, s90 offen offset:{(j % 4) * 1024} nt lds')
        else:
            a(f'buffer_load_dwordx4 {vr(TR + 64 * (T - 2) + 4 * j, 4)}, v{VX + j // 2}, {S(R_CKV)}, s90 offen offset:{(j % 4) * 1024} nt')
        last = j == 15 or (T == 1 and j == 14)
        if j % 4 == 3 or last:
            a(f's_add_u32 s90, s90, {4096 + 49152 if last else 4096}')
            if T < 2:
                a('s_add_u32 m0, m0, 4096')
        if n == o.w0 - 1:
            a(f's_load_dword s{S_TAG}, s[{R_WS}:{R_WS + 1}], {WS_EPOCH}')
            a('s_barrier')
        if n == 30:
            stamp(1)
    assert not pub
    stamp(2)
    a('v_add_u32 v9, s91, v2')
    if o.hprio:
        a(f's_setprio {o.hprio}')
    for T in (2, 3):
        a(f's_add_u32 s94, s3, {4 * (T - 2) + 1}')
        lds_wait(10, F_DONE, 's94', 5)
        stamp(T + 1)
        for j in range(16):
            a(f's_waitcnt vmcnt({16 * (3 - T) + 15 - j})')
            a(f'ds_write_b128 v9, {vr(TR + 64 * (T - 2) + 4 * j, 4)} offset:{1024 * j + 16384 * (T - 2)}')
        a(f'v_mov_b32 v5, {T + 1}')
        a(f'ds_write_b32 v7, v5 offset:{F_LAND}')
        stamp(T + 3)
    a.label('L_hend')
    if o.stamps:
        stamp(10)
        a('s_cmp_lg_u32 s3, 0')
        a('s_cbranch_scc1 L_end')
        dump_stamps(11, 1, 'h')
    a('s_endpgm')

    a.label('L_comp')
    O_, QA = 64, 128
    vA, vT, vMW, vFW, vPW, vPR, vFR, vAW = 0, 5, 6, 7, 8, 9, 10, 11
    NM, LL = 12, 14
    SA, SB_, PKA, PKB, WK = 16, 24, 32, 36, 40
    a(f'v_lshlrev_b32 v16, 2, v1')
    a(f'v_add_u32 v16, {FB}, v16')
    a('v_mov_b32 v17, 0')
    a('ds_write_b32 v16, v17')
    a('s_waitcnt lgkmcnt(0)')
    a('s_barrier')
    a(f's_load_dword s{S_TAG}, s[{R_WS}:{R_WS + 1}], {WS_EPOCH}')
    srd_ptr([R_CKV])
    consts()
    a(f's_add_u32 s63, s90, {65536 + 15 * 1024}')
    a(f's_add_u32 s6, s91, {16384 + 15 * 1024}')
    a('s_lshl_b32 s90, s4, 15')
    a('s_lshl_b32 s91, s3, 13')
    a('s_add_u32 s90, s90, s91')
    a(f's_add_u32 s90, s90, {WS_QA}')
    a('s_add_u32 s92, s90, 4096')
    a('s_lshl_b32 s93, s3, 12')
    a('s_lshl_b32 s94, s4, 3')
    a('s_add_u32 s93, s93, s94')
    a(f's_add_u32 s93, s93, {WS_QAH}')
    a('v_lshrrev_b32 v16, 1, v1')
    a('v_lshlrev_b32 v16, 7, v16')
    a('s_and_b32 s94, s3, 1')
    a('s_lshl_b32 s94, s94, 7')
    a('v_xor_b32 v17, s94, v2')
    a(f's_add_u32 s91, s91, {SB}')
    a('v_add_u32 v17, s91, v17')
    a('v_lshrrev_b32 v22, 5, v1')
    a('v_and_b32 v23, 1, v3')
    a('v_lshlrev_b32 v23, 4, v23')
    a('v_lshl_add_u32 v23, v22, 9, v23')
    a('v_bfe_u32 v18, v1, 3, 1')
    a('v_lshl_add_u32 v18, v18, 2, v4')
    a('v_lshl_add_u32 v18, v18, 5, v23')
    a('v_lshl_add_u32 v18, v11, 10, v18')
    a(f'v_add_u32 v18, {SB}, v18')
    a('v_bfe_u32 v20, v1, 2, 2')
    a('v_lshl_add_u32 v21, v4, 2, v20')
    a(f'v_lshl_add_u32 v{vA}, v21, 10, v23')
    a('v_and_b32 v21, 14, v21')
    a(f'v_lshl_add_u32 v{vA}, v21, 4, v{vA}')
    a('s_lshl_b32 s95, s3, 15')
    a(f'v_add_u32 v{vA}, s95, v{vA}')
    a('v_lshrrev_b32 v22, 5, v1')
    a('v_lshlrev_b32 v21, 2, v20')
    a('v_lshl_add_u32 v21, v22, 1, v21')
    a('v_and_b32 v23, 1, v3')
    a('v_lshlrev_b32 v23, 1, v23')
    a('v_bfe_u32 v24, v1, 1, 1')
    a('v_add_u32 v23, v23, v24')
    a('v_xor_b32 v23, v23, v21')
    a(f'v_lshlrev_b32 v{vT}, 10, v21')
    a(f'v_lshl_add_u32 v{vT}, v23, 4, v{vT}')
    a('v_and_b32 v24, 1, v1')
    a(f'v_lshl_add_u32 v{vT}, v24, 3, v{vT}')
    a('s_lshl_b32 s95, s3, 8')
    a(f'v_add_u32 v{vT}, s95, v{vT}')
    a('v_and_b32 v24, 31, v1')
    a('s_lshl_b32 s95, s3, 2')
    a(f's_add_u32 s95, s95, {L_MAX}')
    a(f'v_lshl_add_u32 v{vMW}, v24, 4, s95')
    a(f'v_lshlrev_b32 v{vPW}, 9, v22')
    a(f'v_lshl_add_u32 v{vPW}, v11, 4, v{vPW}')
    a('v_and_b32 v24, 1, v3')
    a(f'v_lshl_add_u32 v{vPW}, v24, 3, v{vPW}')
    a('s_lshl_b32 s95, s3, 10')
    a(f's_add_u32 s95, s95, {L_P}')
    a(f'v_add_u32 v{vPW}, s95, v{vPW}')
    a(f'v_add_u32 v{vPR}, {L_P}, v2')
    a(f'v_lshlrev_b32 v{vAW}, 2, v11')
    a(f'v_add_u32 v{vAW}, {L_ALPHA}, v{vAW}')
    a('v_xor_b32 v21, 0xe0, v2')
    for i in range(64):
        a(f'v_mov_b32 v{O_ + i}, 0')
    for i in range(4):
        a(f'v_mov_b32 v{NM + i}, 0')
    a(f's_mov_b32 s98, {f32bits(float(o.thr))}')
    a('s_mov_b32 s97, 0')
    a('s_mov_b32 s96, 1')
    a('v_mov_b32 v29, v18')
    a('v_add_u32 v28, s6, v2')
    a(f'buffer_load_dwordx4 v[24:27], v21, {S(R_CKV)}, s63 offen nt')
    get_tag()
    stamp(1)
    HR_ = 30

    def q_row(i):
        a(f'buffer_load_dwordx4 {vr(QA + 4 * i, 4)}, v2, {S(R_WS)}, s{90 if i < 4 else 92} offen offset:{1024 * (i % 4)} sc1')
    a('s_sub_u32 s94, s2, 128')
    a('s_lshl_b32 s94, s94, 7')
    a(f's_add_u32 s94, s94, {WS_HU}')
    a(f's_add_u32 s0, s{R_WS}, s94')
    a(f's_addc_u32 s1, s{R_WS + 1}, 0')
    a(f's_mov_b32 s{S_CNT}, {SPIN}')
    a.label('L_hu')
    a('s_load_dword s94, s[0:1], 0 glc')
    a('s_waitcnt lgkmcnt(0)')
    a(f's_cmp_eq_u32 s94, s{S_TAG}')
    a('s_cbranch_scc1 L_hugo')
    a(f's_sub_u32 s{S_CNT}, s{S_CNT}, 1')
    a('s_cbranch_scc0 L_hu')
    a.label('L_hugo')
    for i in range(8):
        q_row(i)
    a('v_mov_b32 v19, 1')
    a(f'ds_write_b32 v{vFW}, v19 offset:{F_HUS}')
    stamp(9)
    stamp(8)
    a(f's_mov_b32 s{S_CNT}, {SPIN}')
    a.label('L_qver')
    a(f'buffer_load_dwordx2 {vr(HR_, 2)}, v16, {S(R_WS)}, s93 offen sc1')
    a('s_waitcnt vmcnt(1)')
    for i in range(8):
        a(f'v_xor_b32 v{22 + i % 2}, {32 * (i % 4)}, v17')
        a(f'ds_write_b128 v{22 + i % 2}, {vr(QA + 4 * i, 4)} offset:{1024 * i}')
    xor_chain(19, list(range(QA, QA + 32)))
    a('s_waitcnt vmcnt(0)')
    for c in ('quad_perm:[1,0,3,2]', 'quad_perm:[2,3,0,1]', 'row_ror:4', 'row_ror:8'):
        dpp('v_xor_b32', 19, 19, 19, c)
        if c == 'quad_perm:[1,0,3,2]':
            a(f'v_xor_b32 v19, v19, v{HR_}')
            a(f'v_bitop3_b32 v{HR_}, v{HR_}, v{HR_ + 1}, s{S_TAG} {XOR3}')
    swap_step('v_xor_b32', 19, 20, 16)
    swap_step('v_xor_b32', 19, 20, 32)
    a(f'v_or_b32 v19, v19, v{HR_}')
    a('v_cmp_ne_u32 vcc, 0, v19')
    a('s_cbranch_vccnz L_qbad')
    a.label('L_qdone')
    a('v_mov_b32 v19, 1')
    a(f'ds_write_b32 v{vFW}, v19 offset:{F_QST}')
    stamp(2)
    a(f'v_mov_b32 v1, v{vA}')
    a(f'v_xor_b32 v2, 32, v{vA}')
    a('v_mov_b32 v3, v29')
    a('v_xor_b32 v4, 32, v29')
    lds_wait(vFW, F_LAND, 1, 19)
    lds_wait(vFR, F_QST, 1, 19, 0)
    stamp(3)
    fine2(66)
    NA = 5

    def a_addr(s8):
        a(f'v_xor_b32 v{1 + s8 % 2}, {32 * s8}, v{vA}')

    def a_read(m, buf):
        s8, hi = m // 2, m % 2
        a(f'ds_read_b128 {vr(WK + 4 * (m % NA), 4)}, v{1 + s8 % 2} offset:{256 * hi + 16384 * buf}')
        if hi == 1 and s8 + 2 < 8:
            a_addr(s8 + 2)

    def q_addr(s8):
        a(f'v_xor_b32 v{3 + s8 % 2}, {32 * s8}, v29')

    def q_read(m):
        s8, hi = m // 2, m % 2
        for hh in range(2):
            a(f'ds_read_b128 {vr(QA + 64 * hh + 4 * m, 4)}, v{3 + s8 % 2} offset:{16384 * hh + 256 * hi}')
        if hi == 1 and s8 + 2 < 8:
            q_addr(s8 + 2)

    def s_mfma(acc, st, zero):
        for hh in range(2):
            mfma16(acc + 4 * hh, WK + 4 * (st % NA), QA + 64 * hh + 4 * st, zero and st == 0)
    for st in range(4):
        q_read(st)
        a_read(st, 0)
    for st in range(16):
        a(f's_waitcnt lgkmcnt({3 * min(3, 15 - st)})')
        s_mfma(SA, st, True)
        if st + 4 < 16:
            q_read(st + 4)
            a_read(st + 4, 0)

    def max_addr(d):
        a(f'v_subrev_u32 v{d}, {L_ALPHA}, v{vAW}')
        a(f'v_lshlrev_b32 v{d}, 2, v{d}')
        a(f'v_add_u32 v{d}, {L_MAX}, v{d}')

    def max_xchg(lbl):
        a('v_permlane16_swap_b32 v60, v61')
        a('v_max_f32 v60, v60, v61')
        swap_step('v_max_f32', 60, 61, 32)
        a(f'ds_write_b32 v{vMW}, v60')
        a(f'ds_write_b32 v{vFW}, v3 offset:{F_MSEQ}')
        a(f's_mov_b32 s{S_CNT}, {SPIN * 40}')
        a.label(lbl)
        a(f'ds_read_b32 v3, v{vFR} offset:{F_MSEQ}')
        a(f'ds_read_b128 {vr(WK, 4)}, v4')
        a(f'ds_read_b128 {vr(WK + 4, 4)}, v4 offset:256')
        a('s_waitcnt lgkmcnt(0)')
        a('v_cmp_gt_u32 vcc, s96, v3')
        a(f's_cbranch_vccz {lbl}go')
        a(f's_sub_u32 s{S_CNT}, s{S_CNT}, 1')
        a(f's_cbranch_scc0 {lbl}')
        a.label(lbl + 'go')
        for hh in range(2):
            a(f'v_max3_f32 v{60 + hh}, v{WK + 4 * hh}, v{WK + 4 * hh + 1}, v{WK + 4 * hh + 2}')
            a(f'v_max_f32 v{60 + hh}, v{60 + hh}, v{WK + 4 * hh + 3}')
    fine2(68)
    a('v_mov_b32 v3, s96')
    max_addr(4)
    for hh in range(2):
        a(f'v_max3_f32 v{60 + hh}, v{SA + 4 * hh}, v{SA + 4 * hh + 1}, v{SA + 4 * hh + 2}')
        a(f'v_max_f32 v{60 + hh}, v{60 + hh}, v{SA + 4 * hh + 3}')
    max_xchg('L_m0')
    a('ds_write_b128 v28, v[24:27]')
    a(f'ds_write2_b32 v{vAW}, v60, v61 offset0:32 offset1:48')
    for hh in range(2):
        a(f'v_sub_f32 v{NM + hh}, 0, v{60 + hh}')
        for j in range(4):
            a(f'v_sub_f32 v{SA + 4 * hh + j}, v{SA + 4 * hh + j}, v{60 + hh}')
    a('s_branch L_B')

    def land_poll(lbl, buf, acc, add):
        a(f's_mov_b32 s{S_CNT}, {SPIN * 40}')
        a('s_lshr_b32 s94, s97, 1')
        if add:
            a(f's_add_u32 s94, s94, {add}')
        a.label(lbl)
        a_addr(0)
        a_addr(1)
        a(f'ds_read_b32 v3, v{vFW} offset:{F_LAND}')
        for st in range(4):
            a_read(st, buf)
        for hh in range(2):
            for j in range(4):
                a(f'v_mov_b32 v{acc + 4 * hh + j}, v{NM + hh}')
        a('s_waitcnt lgkmcnt(4)')
        a('v_cmp_ge_u32 vcc, s94, v3')
        a(f's_cbranch_vccz {lbl}go')
        a('s_sleep 1')
        a(f's_sub_u32 s{S_CNT}, s{S_CNT}, 1')
        a(f's_cbranch_scc0 {lbl}')
        a.label(lbl + 'go')

    def soft(acc, pk, poff):
        g = []
        for hh in range(2):
            for j in range(4):
                g.append(f'v_exp_f32 v{60 + j}, v{acc + 4 * hh + j}')
            g.append(f'v_cvt_pk_bf16_f32 v{pk + 2 * hh}, v60, v61')
            g.append(f'v_cvt_pk_bf16_f32 v{pk + 2 * hh + 1}, v62, v63')
            g.append(f'ds_write_b64 v{vPW}, {vr(pk + 2 * hh, 2)} offset:{poff + 256 * hh}')
        return g

    def s_tile(acc, buf, shadow):
        sh = list(shadow)
        extra = {}
        for st in range(16):
            young = min(3, 15 - st) + sum(v for k, v in extra.items() if k >= st - 4)
            a(f's_waitcnt lgkmcnt({young})')
            s_mfma(acc, st, False)
            if st + 4 < 16:
                a_read(st + 4, buf)
            for _ in range(2 if st >= 1 else 0):
                if sh:
                    ins = sh.pop(0)
                    a(ins)
                    if ins.startswith('ds_'):
                        extra[st] = extra.get(st, 0) + 1
        assert not sh

    a.label('L_A')
    land_poll('L_lA', 0, SA, 0)
    if o.fine == 1:
        a('s_memtime s[66:67]')
    s_tile(SA, 0, [])
    a('s_nop 3')
    a.label('L_B')
    land_poll('L_lB', 1, SB_, 1)
    fine2(80)
    mx = [f'v_max3_f32 v4, v{SA}, v{SA + 1}, v{SA + 2}', f'v_max3_f32 v4, v{SA + 3}, v{SA + 4}, v4',
          f'v_max3_f32 v4, v{SA + 5}, v{SA + 6}, v4', f'v_max_f32 v4, v{SA + 7}, v4']
    s_tile(SB_, 1, soft(SA, PKA, 0) + mx)
    if o.fine == 1:
        a('s_memtime s[82:83]')
    fine2(82)
    a('s_add_u32 s95, s97, 4')
    a('s_add_u32 s94, s97, 2')
    a(f's_mov_b32 s{S_CNT}, {SPIN * 40}')
    g = soft(SB_, PKB, 4096)
    for k, ins in enumerate(g):
        a(ins)
        if k == 3:
            a(f'v_max3_f32 v4, v{SB_}, v{SB_ + 1}, v4')
            a(f'v_max3_f32 v4, v{SB_ + 2}, v{SB_ + 3}, v4')
        if k == 10:
            a(f'v_max3_f32 v4, v{SB_ + 4}, v{SB_ + 5}, v4')
            a(f'v_max3_f32 v4, v{SB_ + 6}, v{SB_ + 7}, v4')
            a('v_cmp_lt_f32 vcc, s98, v4')
    a('s_cmp_eq_u64 vcc, 0')
    a('s_cselect_b32 s91, s95, s94')
    a(f'v_mov_b32 v{WK + 4}, s91')
    a(f'ds_write_b32 v{vFW}, v{WK + 4} offset:{F_PSEQ}')
    if o.fine == 1:
        a('s_memtime s[80:81]')
    seq = [(k8, blk) for k8 in range(8) for blk in range(4)]
    BFS = (48, 52, 56, 60, 16, 20, 24)
    NB = len(BFS)
    DIST = 6

    def rd(n):
        k8, blk = seq[n]
        bf = BFS[n % NB]
        for tau in range(2):
            a(f'ds_read_b64_tr_b16 {vr(bf + 2 * tau, 2)}, v{1 + blk} offset:{32768 * (k8 % 2) + 16384 * (k8 // 4) + 1024 * tau}')
        if k8 % 2 == 1 and k8 < 7:
            a(f'v_xor_b32 v{1 + blk}, 0x10000, v{1 + blk}')

    def p_rd(k8):
        a(f'ds_read_b128 {vr(WK + 4 * (k8 % 2), 4)}, v{vPR} offset:{1024 * k8}')
    a.label('L_pinit')
    for blk in range(4):
        a(f'v_xor_b32 v{1 + blk}, {64 * blk}, v{vT}')
    a.label('L_ppoll')
    a(f'ds_read_b32 v{WK + 4}, v{vFR} offset:{F_PSEQ}')
    p_rd(0)
    for n in range(4):
        rd(n)
    a('s_waitcnt lgkmcnt(9)')
    a(f'v_cmp_gt_u32 vcc, s95, v{WK + 4}')
    a('s_cbranch_vccnz L_pslow')
    a.label('L_pgo')
    fine2(84)
    if o.fine == 1:
        a('s_memtime s[68:69]')
    ops = ['P0'] + [x for n in range(4) for x in (f'R{n}', f'R{n}')]

    def issue_rd(n):
        rd(n)
        ops.extend([f'R{n}', f'R{n}'])
    issue_rd(4)
    issue_rd(5)
    a('s_lshl_b32 s94, s97, 1')
    a('v_mov_b32 v28, s94')
    a('s_lshr_b32 s94, s97, 2')
    a('s_add_u32 s94, s94, 1')
    for n in range(32):
        k8, blk = seq[n]
        need = max(i for i, x in enumerate(ops) if x in (f'R{n}', f'P{k8}'))
        a(f's_waitcnt lgkmcnt({min(15, len(ops) - 1 - need)})')
        if blk == 3:
            a(f'ds_write_b32 v{vFW}, v28 offset:{F_DONE}')
            ops.append('W')
        a(f'v_mfma_f32_32x32x16_bf16 {vr(O_ + 16 * blk, 16)}, {vr(WK + 4 * (k8 % 2), 4)}, {vr(BFS[n % NB], 4)}, {vr(O_ + 16 * blk, 16)}')
        if blk == 1:
            a('v_add_u32 v28, 1, v28')
        if blk == 0 and k8 < 7:
            p_rd(k8 + 1)
            ops.append(f'P{k8 + 1}')
        if n + DIST < 32:
            issue_rd(n + DIST)
        if n in (1, 2, 5, 6):
            pk = {1: PKA, 2: PKA + 1, 5: PKB, 6: PKB + 1}[n]
            for hh in range(2):
                a(f'v_dot2_f32_bf16 v{LL + hh}, v{pk + 2 * hh}, s{S_ONES}, v{LL + hh}')
        if n == 26:
            a(f'v_mov_b32 v{PKA}, v{LL}')
            a(f'v_mov_b32 v{PKA + 1}, v{LL + 1}')
            a('v_mov_b32 v29, s94')
        if n == 27:
            a(f'v_permlane16_swap_b32 v{PKA}, v{PKA + 1}')
            a(f'v_add_f32 v{PKA}, v{PKA}, v{PKA + 1}')
            a(f'v_mov_b32 v{PKA + 1}, v{PKA}')
        if n == 28:
            a(f'v_permlane32_swap_b32 v{PKA}, v{PKA + 1}')
            a(f'v_add_f32 v{PKA}, v{PKA}, v{PKA + 1}')
            a(f'ds_write_b32 v{vMW}, v{PKA}')
            a(f'ds_write_b32 v{vFW}, v29 offset:{F_LSEQ}')
            ops.extend(['W', 'W'])
    fine2(86)
    a('s_add_u32 s97, s97, 4')
    a('s_cmp_lt_u32 s97, 8')
    a('s_cbranch_scc1 L_A ;noflush')
    stamp(4)
    if o.fine == 2:
        a('s_memtime s[88:89]')
    if o.fine == 1:
        a('s_memtime s[70:71]')
    a('v_mbcnt_lo_u32_b32 v1, -1, 0')
    a('v_mbcnt_hi_u32_b32 v1, -1, v1')
    a('v_lshrrev_b32 v2, 5, v1')
    a('v_lshlrev_b32 v2, 2, v2')
    a('v_bfe_u32 v3, v1, 4, 1')
    a('v_add_u32 v2, v2, v3')
    a('v_and_b32 v3, 15, v1')
    a('v_lshlrev_b32 v4, 17, v2')
    a('v_lshl_add_u32 v4, v3, 4, v4')
    a('s_lshl_b32 s90, s3, 2')
    a('s_add_u32 s90, s90, s4')
    a('s_lshl_b32 s91, s90, 13')
    a('s_lshl_b32 s92, s5, 8')
    a('s_add_u32 s91, s91, s92')
    a(f's_add_u32 s91, s91, {WS_OP}')
    PK, XX = 128, 16
    a('s_lshl_b32 s94, s4, 2')
    a('s_add_u32 s94, s94, 16')
    arrive(0, 44, 45, 's94')
    a('v_and_b32 v5, 1, v1')
    a('v_lshlrev_b32 v5, 4, v5')
    a('v_bfe_u32 v6, v1, 2, 1')
    a('v_lshl_add_u32 v5, v6, 3, v5')
    a('v_bfe_u32 v6, v1, 3, 1')
    a('v_lshl_add_u32 v5, v6, 1, v5')
    a('v_add_u32 v5, v5, v2')
    a(f'v_lshlrev_b32 v6, 2, v5')
    a(f'v_add_u32 v6, {L_MFIN}, v6')
    a('v_lshlrev_b32 v5, 4, v5')
    a(f'v_add_u32 v8, {L_MAX}, v5')

    def l_reads():
        a(f'ds_read_b32 v37, v{vFR} offset:{F_LSEQ}')
        a('ds_read_b128 v[32:35], v8')
        a('ds_read_b32 v40, v6')
    l_reads()
    a('s_lshl_b32 s93, s4, 16')
    a('s_lshl_b32 s92, s5, 11')
    a('s_add_u32 s93, s93, s92')
    a('s_lshl_b32 s92, s3, 9')
    a('s_add_u32 s93, s93, s92')
    a(f's_add_u32 s93, s93, {WS_REC}')
    for ap in range(8):
        t = PK + 4 * ap
        j = 2 * ap
        a(f'v_cvt_pk_bf16_f32 v{t}, v{O_ + j}, v{O_ + 16 + j}')
        a(f'v_cvt_pk_bf16_f32 v{t + 1}, v{O_ + 32 + j}, v{O_ + 48 + j}')
        a(f'v_cvt_pk_bf16_f32 v{t + 2}, v{O_ + j + 1}, v{O_ + 16 + j + 1}')
        a(f'v_cvt_pk_bf16_f32 v{t + 3}, v{O_ + 32 + j + 1}, v{O_ + 48 + j + 1}')
        a(f's_add_u32 s92, s91, {(8 * (ap // 2) + 2 * (ap % 2)) * 131072}')
        a(f'v_permlane16_swap_b32 v{t}, v{t + 2}')
        a(f'v_permlane16_swap_b32 v{t + 1}, v{t + 3}')
        a(f'buffer_store_dwordx4 {vr(t, 4)}, v4, {S(R_WS)}, s92 offen sc1')
    stamp(5)
    for ap in range(8):
        xor_chain(XX + ap, range(PK + 4 * ap, PK + 4 * ap + 4))
    for k in range(4):
        dpp('v_xor_b32', XX + 2 * k, XX + 2 * k, XX + 2 * k, 'row_ror:8', 0x3)
    for k in range(4):
        dpp('v_xor_b32', XX + 2 * k, XX + 2 * k + 1, XX + 2 * k + 1, 'row_ror:8', 0xc)
    for m in range(2):
        dpp('v_xor_b32', XX + 4 * m, XX + 4 * m, XX + 4 * m, 'row_half_mirror', 0x5)
    for m in range(2):
        dpp('v_xor_b32', XX + 4 * m, XX + 4 * m + 2, XX + 4 * m + 2, 'row_half_mirror', 0xa)
    for m in range(2):
        dpp('v_xor_b32', XX + 4 * m, XX + 4 * m, XX + 4 * m, 'quad_perm:[1,0,3,2]')
    a('s_waitcnt lgkmcnt(0)')
    a('v_cmp_gt_u32 vcc, 2, v37')
    a('v_add_f32 v32, v32, v33')
    a('v_add_f32 v34, v34, v35')
    for m in range(2):
        dpp('v_xor_b32', XX + 4 * m, XX + 4 * m, XX + 4 * m, 'quad_perm:[2,3,0,1]')
    a('s_cbranch_vccnz L_lslow')
    a.label('L_lok')
    a('v_add_f32 v41, v32, v34')
    a(f'v_mov_b32 v42, v{XX}')
    ex(0x2222222222222222)
    a(f'v_mov_b32 v42, v{XX + 4}')
    ex(0x3333333333333333)
    xor_chain(43, [40, 41, 42], f's{S_TAG}')
    a(f'buffer_store_dwordx4 v[40:43], v5, {S(R_WS)}, s93 offen sc1')
    a('s_lshl_b32 s94, s4, 7')
    a(f's_add_u32 s94, s94, {WS_FL + 128}')
    release(0, 44, 45, 31, 's94', 's_waitcnt vmcnt(9)')
    if o.stamps:
        stamp(6)
        a('s_waitcnt vmcnt(0)')
        stamp(7)
        a('s_cmp_lg_u32 s3, 0')
        a('s_cbranch_scc1 L_end')
        dump_stamps(13, 0)
    a('s_endpgm')
    a.label('L_lslow')
    l_reads()
    a('s_waitcnt lgkmcnt(0)')
    a('v_cmp_gt_u32 vcc, 2, v37')
    a('v_add_f32 v32, v32, v33')
    a('v_add_f32 v34, v34, v35')
    a('s_cbranch_vccz L_lok')
    a(f's_sub_u32 s{S_CNT}, s{S_CNT}, 1')
    a('s_cbranch_scc0 L_lslow')
    a('s_branch L_lok')
    a.label('L_pslow')
    a('s_waitcnt lgkmcnt(0)')
    a('s_add_u32 s94, s97, 2')
    a(f'v_cmp_eq_u32 vcc, s94, v{WK + 4}')
    a('s_and_b32 s94, s95, 1')
    a('s_cbranch_scc1 L_pretry')
    a('s_cbranch_vccnz L_exact')
    a.label('L_pretry')
    a(f's_sub_u32 s{S_CNT}, s{S_CNT}, 1')
    a('s_cbranch_scc0 L_ppoll')
    a('s_branch L_pgo')
    a.label('L_exact')
    a('s_add_u32 s96, s96, 1')
    a('v_mov_b32 v3, s96')
    max_addr(4)
    for hh in range(2):
        a(f'v_max3_f32 v{60 + hh}, v{SA + 4 * hh}, v{SA + 4 * hh + 1}, v{SA + 4 * hh + 2}')
        a(f'v_max3_f32 v{60 + hh}, v{60 + hh}, v{SA + 4 * hh + 3}, v{SB_ + 4 * hh}')
        a(f'v_max3_f32 v{60 + hh}, v{60 + hh}, v{SB_ + 4 * hh + 1}, v{SB_ + 4 * hh + 2}')
        a(f'v_max3_f32 v{60 + hh}, v{60 + hh}, v{SB_ + 4 * hh + 3}, 0')
    max_xchg('L_m1')
    for hh in range(2):
        for acc in (SA, SB_):
            for j in range(4):
                a(f'v_sub_f32 v{acc + 4 * hh + j}, v{acc + 4 * hh + j}, v{60 + hh}')
        a(f'v_exp_f32 v{WK + hh}, -v{60 + hh}')
        a(f'v_sub_f32 v{NM + hh}, v{NM + hh}, v{60 + hh}')
        a(f'v_sub_f32 v{WK + 2 + hh}, 0, v{NM + hh}')
        a(f'v_mul_f32 v{LL + hh}, v{LL + hh}, v{WK + hh}')
    a(f'ds_write2_b32 v{vAW}, v{WK}, v{WK + 1} offset0:0 offset1:16')
    a(f'ds_write2_b32 v{vAW}, v{WK + 2}, v{WK + 3} offset0:32 offset1:48')
    for ins in soft(SA, PKA, 0) + soft(SB_, PKB, 4096):
        a(ins)
    a('s_add_u32 s95, s97, 5')
    a('v_mov_b32 v3, s95')
    a(f'ds_write_b32 v{vFW}, v3 offset:{F_PSEQ}')
    a('v_mbcnt_lo_u32_b32 v4, -1, 0')
    a('v_mbcnt_hi_u32_b32 v4, -1, v4')
    a('v_lshrrev_b32 v4, 5, v4')
    a('v_lshlrev_b32 v4, 4, v4')
    a(f'v_add_u32 v4, {L_ALPHA}, v4')
    for jq in range(4):
        a(f'ds_read_b128 {vr(WK + 4 * jq, 4)}, v4 offset:{32 * jq}')
    a('s_waitcnt lgkmcnt(0)')
    for blk in range(4):
        for j in range(16):
            a(f'v_mul_f32 v{O_ + 16 * blk + j}, v{O_ + 16 * blk + j}, v{WK + j}')
    a(f's_mov_b32 s{S_CNT}, {SPIN * 40}')
    a('s_branch L_pinit')
    a.label('L_qbad')
    for i in range(8):
        q_row(i)
    a(f's_sub_u32 s{S_CNT}, s{S_CNT}, 1')
    a('s_cbranch_scc0 L_qver')
    a('s_branch L_qdone')
    a.label('L_end')
    a('s_endpgm')

    txt = HEADER
    txt += f'; @launch grid=(256,1,1) block=(512,1,1) lds={LDS_TOTAL}\n'
    txt += '.amdgcn_target "amdgcn-amd-amdhsa--gfx950"\n.text\n'
    txt += a.finalize()
    txt += f""".section .rodata,"a"
.p2align 6
.amdhsa_kernel {name}
  .amdhsa_next_free_vgpr 256
  .amdhsa_next_free_sgpr 102
  .amdhsa_accum_offset 256
  .amdhsa_group_segment_fixed_size 0
  .amdhsa_kernarg_size 104
  .amdhsa_user_sgpr_count 2
  .amdhsa_user_sgpr_kernarg_segment_ptr 1
  .amdhsa_system_sgpr_workgroup_id_x 1
.end_amdhsa_kernel
"""
    return txt


if __name__ == '__main__':
    o = Opt()
    for kv in sys.argv[2:]:
        k, v = kv.split('=')
        setattr(o, k, v.replace('+', ' ') if k == 'r64' else int(v))
    open(sys.argv[1], 'w').write(gen(o))
```

```python
import sys
sys.path.insert(0, 'dev')
from asmdsl import Asm
from layout5 import *

NAME = 'sequential_preLN__compressed_kv_cla__glu_gated_geglu__decode'
HEADER = open('cdna_kernels/' + NAME + '.s.ref').read().split('; Override launch')[0]
LDS_TOTAL = 163840
SB = 130048
L_P = 131072
FB = 162816
F_LAND, F_QST, F_MSEQ, F_DONE, F_LSEQ, F_HUS, F_PS = 0, 16, 32, 48, 64, 80, 96
L_MAX = FB + 512
L_ALPHA = L_P + 16384
L_MFIN = L_ALPHA + 512
A_WQ, A_WUK, A_WUV, A_WO, A_X, A_C, A_D = 0, 32768, 90112, 122880, 155648, 156672, 159744

R_X, R_WS, R_CKV, R_WQ, R_WUK, R_WUV, R_WO, R_WG, R_WU, R_WD, R_OUT, R_ACT = [8 + 4 * i for i in range(12)]
SIZES = {R_X: 4096, R_WS: WS_END, R_CKV: 32 << 20, R_WQ: 4 << 20, R_WUK: 4 << 20, R_WUV: 4 << 20, R_WO: 4 << 20,
         R_WG: 512 * 2752, R_WU: 512 * 2752, R_WD: 1376 * 1024, R_OUT: 4096, R_ACT: 43 * 256}
PTR = {R_X: 64, R_CKV: 66, R_WQ: 68, R_WUK: 70, R_WUV: 72, R_WO: 74, R_WG: 78, R_WU: 80, R_WD: 82, R_OUT: 84}
S_TAG, S_ONES, S_LO1, S_HI1, S_CNT, S_MASK = 56, 57, 58, 59, 60, 62
SPIN = 20000
XOR3 = 'bitop3:0x96'


class Opt:
    stamps = 0
    w0 = 3
    n0 = 8
    window = 8
    w3 = 16
    wwin = 8
    sleep = 1
    sleep_long = 6
    stsleep = 3
    thr = 60
    dbgwg = 192
    hold = 0
    dsleep = 1
    ddelay = 0
    gon = 56
    fine = 0
    hupos = 1
    edelay = 0
    efwin = 3
    sw = 1
    efgo = 0
    qdelay = 0
    hprio = 1
    nsamp = 2
    rdelay = 0
    lw = 8
    diag = 0
    pvprio = 0
    sprio = 0
    r64 = 'nt'
    wgo = 0
    esleep = 0
    fdelay = 8
    now = 0
    w1 = 8
    n1 = 0


def vr(a, n):
    return f'v[{a}:{a + n - 1}]' if n > 1 else f'v{a}'


def S(base):
    return f's[{base}:{base + 3}]'


def gen(o):
    a = Asm()
    name = NAME + '_kernel'
    o.st3 = o.stamps == 3

    def ex(mask):
        if mask == -1:
            a('s_mov_b64 exec, -1')
        elif mask <= 64:
            a(f's_mov_b64 exec, {mask}')
        else:
            a(f's_mov_b32 exec_lo, 0x{mask & 0xffffffff:x}')
            a(f's_mov_b32 exec_hi, 0x{mask >> 32:x}')

    def dpp(op, d, s0, s1, ctrl, bank=0xf):
        a(f'{op}_dpp v{d}, v{s0}, v{s1} {ctrl} row_mask:0xf bank_mask:0x{bank:x}')

    def swap_step(op, v, t, which):
        a(f'v_mov_b32 v{t}, v{v}')
        a(f'v_permlane{which}_swap_b32 v{v}, v{t}')
        a(f'{op} v{v}, v{v}, v{t}')

    def fine2(r):
        if o.fine == 2:
            lb = a.uid('f2')
            a('s_cmp_lg_u32 s97, 0')
            a(f's_cbranch_scc1 {lb} ;noflush')
            a(f's_memtime s[{r}:{r + 1}]')
            a.label(lb)

    def f3(r):
        if o.fine == 3:
            a(f's_memtime s[{r}:{r + 1}]')

    def stamp(idx):
        if o.stamps:
            a(f's_memrealtime s[{64 + 2 * idx}:{65 + 2 * idx}]')

    def dump_stamps(n, grp, dbg=None):
        a('s_waitcnt lgkmcnt(0)')
        a('s_mov_b64 exec, -1')
        a('v_mov_b32 v3, 0')
        a('v_writelane_b32 v3, s100, 0')
        for i in range(1, n):
            a(f'v_writelane_b32 v3, s{64 + 2 * i}, {i}')
        a('v_mbcnt_lo_u32_b32 v4, -1, 0')
        a('v_lshlrev_b32 v4, 2, v4')
        a('s_lshl_b32 s90, s2, 7')
        a(f's_add_u32 s90, s90, {WS_STAMP + 64 * grp}')
        ex(0xffff)
        a(f'buffer_store_dword v3, v4, {S(R_WS)}, s90 offen')
        if o.stamps == 2 and dbg:
            lb = a.uid('nodbg')
            a('v_subrev_u32 v3, s100, v3')
            if dbg == 'h':
                a(f's_cmp_lg_u32 s2, {o.dbgwg}')
                a(f's_cbranch_scc1 {lb}')
                ex(0x7fe)
                a('global_store_dword v4, v3, s[86:87] offset:-4')
            else:
                a('s_cmp_lg_u32 s2, 0')
                a(f's_cbranch_scc1 {lb}')
                ex(0x3e8)
                a('v_mbcnt_lo_u32_b32 v4, exec_lo, 0')
                a('v_lshlrev_b32 v4, 2, v4')
                a('global_store_dword v4, v3, s[86:87] offset:40')
            a.label(lb)

    def xor_chain(tmp, regs, last=None):
        ops = [f'v{r}' for r in regs] + ([last] if last else [])
        a(f'v_bitop3_b32 v{tmp}, {ops[0]}, {ops[1]}, {ops[2]} {XOR3}')
        ops = ops[3:]
        while len(ops) >= 2:
            a(f'v_bitop3_b32 v{tmp}, v{tmp}, {ops[0]}, {ops[1]} {XOR3}')
            ops = ops[2:]
        if ops:
            a(f'v_xor_b32 v{tmp}, {ops[0]}, v{tmp}')

    def chk_sentinel(regs, tmp):
        rs = list(regs)
        a(f'v_max3_u32 v{tmp}, v{rs[0]}, v{rs[1]}, v{rs[2]}')
        rs = rs[3:]
        while len(rs) >= 2:
            a(f'v_max3_u32 v{tmp}, v{tmp}, v{rs[0]}, v{rs[1]}')
            rs = rs[2:]
        if rs:
            a(f'v_max_u32 v{tmp}, v{tmp}, v{rs[0]}')
        a(f'v_cmp_eq_u32 vcc, -1, v{tmp}')

    def poll(loads, check, sleep=None, wait='s_waitcnt vmcnt(0)'):
        L, Dn = a.uid('poll'), a.uid('pdone')
        a(f's_mov_b32 s{S_CNT}, {SPIN}')
        a.label(L)
        loads()
        a(wait)
        check()
        a(f's_cbranch_vccz {Dn}')
        sl = o.sleep if sleep is None else sleep
        if sl:
            a(f's_sleep {sl}')
        a(f's_sub_u32 s{S_CNT}, s{S_CNT}, 1')
        a(f's_cbranch_scc0 {L}')
        a.label(Dn)

    def lds_wait(addr, off, want, tmp, sleep=1):
        L, Dn = a.uid('lw'), a.uid('lwd')
        a(f's_mov_b32 s{S_CNT}, {SPIN * 40}')
        a.label(L)
        a(f'ds_read_b32 v{tmp}, v{addr} offset:{off}')
        a('s_waitcnt lgkmcnt(0)')
        a(f'v_cmp_gt_u32 vcc, {want}, v{tmp}')
        a(f's_cbranch_vccz {Dn}')
        if sleep:
            a(f's_sleep {sleep}')
        a(f's_sub_u32 s{S_CNT}, s{S_CNT}, 1')
        a(f's_cbranch_scc0 {L}')
        a.label(Dn)

    def mfma16(d, x, y, first):
        c = '0' if first else vr(d, 4)
        a(f'v_mfma_f32_16x16x32_bf16 {vr(d, 4)}, {vr(x, 4)}, {vr(y, 4)}, {c}')

    def srd(rs):
        for r in rs:
            a(f's_mov_b32 s{r + 2}, {SIZES[r]}')
            a(f's_mov_b32 s{r + 3}, 0x00020000')

    def srd_ptr(rs):
        for r in rs:
            if r == R_ACT:
                a(f's_add_u32 s{R_ACT}, s{R_WS}, {WS_ACT}')
                a(f's_addc_u32 s{R_ACT + 1}, s{R_WS + 1}, 0')
            else:
                a(f's_mov_b64 s[{r}:{r + 1}], s[{PTR[r]}:{PTR[r] + 1}]')

    def consts():
        a(f's_mov_b32 s{S_ONES}, 0x3f803f80')
        a(f's_mov_b32 s{S_LO1}, 0x3f80')
        a(f's_mov_b32 s{S_HI1}, 0x3f800000')
        a(f's_mov_b32 s{S_MASK}, 0xffff0000')

    def get_tag():
        a('s_waitcnt lgkmcnt(0)')
        a(f's_add_u32 s{S_TAG}, s{S_TAG}, 0x9e3779b9')

    def vF(d):
        a(f'v_bfe_u32 v{d}, v1, 2, 2')
        a(f'v_lshlrev_b32 v{d}, 8, v{d}')
        a(f'v_lshl_add_u32 v{d}, v3, 6, v{d}')
        a(f'v_lshl_add_u32 v{d}, v4, 4, v{d}')

    def tr64_addr(d, t):
        a(f'v_bfe_u32 v{t}, v1, 2, 2')
        a(f'v_lshl_add_u32 v{t}, v3, 3, v{t}')
        a(f'v_lshlrev_b32 v{d}, 6, v{t}')
        a(f'v_lshl_add_u32 v{d}, v4, 3, v{d}')

    def tr_op(dst, addr, off, tau):
        a(f'ds_read_b64_tr_b16 {vr(dst, 2)}, v{addr} offset:{off}')
        a(f'ds_read_b64_tr_b16 {vr(dst + 2, 2)}, v{addr} offset:{off + tau}')

    def red4_read(x, addr):
        ex(0xffffffff)
        for w in range(4):
            a(f'ds_read_b128 {vr(x + 4 * w, 4)}, v{addr} offset:{512 * w}')
        a('s_waitcnt lgkmcnt(2)')
        for i in range(4):
            a(f'v_add_f32 v{x + i}, v{x + i}, v{x + 4 + i}')
        a('s_waitcnt lgkmcnt(0)')
        for i in range(4):
            a(f'v_add_f32 v{x + 8 + i}, v{x + 8 + i}, v{x + 12 + i}')
        for i in range(4):
            a(f'v_add_f32 v{x + i}, v{x + i}, v{x + 8 + i}')

    def frag_addr(dst, t):
        a(f'v_bfe_u32 v{dst}, v1, 1, 2')
        a(f'v_lshlrev_b32 v{dst}, 6, v{dst}')
        a(f'v_bfe_u32 v{t}, v1, 3, 2')
        a(f'v_lshl_add_u32 v{dst}, v{t}, 4, v{dst}')
        a(f'v_and_b32 v{t}, 1, v1')
        a(f'v_lshl_add_u32 v{dst}, v{t}, 3, v{dst}')

    M4 = 0x000f000f000f000f

    def arrive(wave, ret, t0, off, sel='s3'):
        lb = a.uid('arr')
        a(f's_cmp_lg_u32 {sel}, {wave}')
        a(f's_cbranch_scc1 {lb} ;noflush')
        a(f'v_mov_b32 v{t0}, {off}')
        a(f'v_mov_b32 v{ret}, 1')
        ex(1)
        a(f'global_atomic_add v{ret}, v{t0}, v{ret}, s[86:87] sc0 sc1')
        ex(-1)
        a.label(lb)

    def release(wave, ret, t0, last, flag, wait=None):
        lb = a.uid('rel')
        a(f's_cmp_lg_u32 s3, {wave}')
        a(f's_cbranch_scc1 {lb} ;noflush')
        if wait:
            a(wait)
        a(f'v_readfirstlane_b32 s1, v{ret}')
        a(f's_and_b32 s1, s1, {last}')
        a(f's_cmp_lg_u32 s1, {last}')
        a(f's_cbranch_scc1 {lb} ;noflush')
        a('s_mov_b64 exec, -1')
        a(f'v_mbcnt_lo_u32_b32 v{t0}, -1, 0')
        a(f'v_lshlrev_b32 v{t0}, 2, v{t0}')
        a(f'v_mov_b32 v{ret}, s{S_TAG}')
        if isinstance(flag, int):
            a(f's_mov_b32 s1, {flag}')
            flag = 's1'
        ex(0xffffffff)
        a(f'buffer_store_dword v{ret}, v{t0}, {S(R_WS)}, {flag} offen sc1')
        ex(-1)
        a.label(lb)

    def flag_wait(flag, t0, sleep):
        if isinstance(flag, int):
            a(f's_mov_b32 s1, {flag}')
            flag = 's1'
        ex(1)
        poll(lambda: a(f'buffer_load_dword v{t0}, off, {S(R_WS)}, {flag} sc1'),
             lambda: a(f'v_cmp_ne_u32 vcc, s{S_TAG}, v{t0}'), sleep)
        ex(-1)

    a(f'.globl {name}\n.p2align 8\n.type {name},@function')
    a.label(name)
    if o.stamps or o.diag:
        a('s_memrealtime s[100:101]')
    a('s_cmp_ge_u32 s2, 256')
    a('s_cbranch_scc1 L_end')
    a('s_load_dwordx16 s[64:79], s[0:1], 0')
    a('s_load_dwordx8 s[80:87], s[0:1], 64')
    a(f's_load_dwordx2 s[{R_WS}:{R_WS + 1}], s[0:1], 96')
    a('v_and_b32 v1, 63, v0')
    a('v_lshrrev_b32 v2, 6, v0')
    a('v_readfirstlane_b32 s3, v2')
    a('v_lshlrev_b32 v2, 4, v1')
    a('v_lshrrev_b32 v3, 4, v1')
    a('v_and_b32 v4, 3, v1')
    a('v_and_b32 v11, 15, v1')
    srd([R_WS, R_X])
    a('s_cmp_ge_u32 s2, 128')
    a('s_cbranch_scc1 L_att')

    srd([R_WQ, R_WUK])
    a('s_and_b32 s4, s2, 7')
    a('s_lshl_b32 s4, s4, 2')
    a('s_bfe_u32 s5, s2, 0x20003')
    a('s_add_u32 s4, s4, s5')
    a('s_lshr_b32 s5, s2, 5')
    a('s_lshl_b32 s6, s4, 8')
    a('v_lshlrev_b32 v5, 1, v3')
    a('v_xor_b32 v5, v5, v11')
    a('v_lshlrev_b32 v5, 4, v5')
    a('v_lshl_add_u32 v6, v3, 13, v5')
    a('v_xor_b32 v7, 0x80, v6')
    a('v_xor_b32 v8, v3, v11')
    a('v_lshlrev_b32 v8, 4, v8')
    a('v_lshl_add_u32 v8, v3, 13, v8')
    a('s_lshl_b32 s90, s5, 20')
    a('s_lshl_b32 s91, s3, 17')
    a('s_add_u32 s90, s90, s91')
    a('s_add_u32 s90, s90, s6')
    a('s_lshl_b32 s91, s3, 12')
    a('s_mov_b32 m0, s91')
    a('v_bfe_u32 v10, v1, 2, 2')
    a('v_lshlrev_b32 v10, 6, v10')
    a('v_lshl_add_u32 v10, v4, 10, v10')
    a('v_lshl_add_u32 v10, v3, 4, v10')
    a('s_lshl_b32 s93, s5, 8')
    XS, XO = 12, 28
    a('s_waitcnt lgkmcnt(0)')
    srd_ptr([R_X, R_WQ, R_WUK])
    a('s_cmp_lg_u32 s3, 0')
    a('s_cbranch_scc1 L_nox')
    for i in range(4):
        a(f'buffer_load_dwordx4 {vr(XS + 4 * i, 4)}, v10, {S(R_X)}, 0 offen offset:{256 * i}')
    a(f'buffer_load_dwordx4 {vr(XO, 4)}, v10, {S(R_X)}, s93 offen')
    a.label('L_nox')
    for i in range(4):
        a(f's_add_u32 s92, s90, {i * 32768}')
        a(f'buffer_load_dwordx4 v{6 + i // 2}, {S(R_WQ)}, s92 offen nt lds')
        if i < 3:
            a('s_add_u32 m0, m0, 1024')
    a('s_barrier')
    a('s_cmp_lt_u32 s3, 4')
    a('s_cbranch_scc1 L_nouk')
    a('s_lshl_b32 s91, s3, 17')
    a('s_add_u32 s90, s90, s91')
    a(f's_sub_u32 s90, s90, {8 << 17}')
    a('s_lshl_b32 s91, s3, 13')
    a(f's_add_u32 m0, s91, {A_WUK - 32768}')
    for i in range(8):
        if i % 2 == 0:
            a(f'v_xor_b32 v9, {64 * (i // 2)}, v8')
        a(f's_add_u32 s92, s90, {i * 32768}')
        a(f'buffer_load_dwordx4 v9, {S(R_WUK)}, s92 offen nt lds')
        if i < 7:
            a('s_add_u32 m0, m0, 1024')
    a.label('L_nouk')
    a(f's_load_dword s{S_TAG}, s[{R_WS}:{R_WS + 1}], {WS_EPOCH}')
    srd_ptr([R_WUV, R_WO, R_WG, R_WU, R_WD, R_OUT, R_ACT])
    consts()
    stamp(1)
    a('s_cmp_lg_u32 s3, 0')
    a('s_cbranch_scc1 L_noln')
    a('s_waitcnt vmcnt(5)')
    for i in range(16):
        a(f'v_dot2_f32_bf16 v34, v{XS + i}, s{S_ONES}, {"0" if i == 0 else "v34"}')
        a(f'v_dot2_f32_bf16 v35, v{XS + i}, v{XS + i}, {"0" if i == 0 else "v35"}')
    for c in ('row_ror:4', 'row_ror:8'):
        dpp('v_add_f32', 34, 34, 34, c)
        dpp('v_add_f32', 35, 35, 35, c)
    for wh in (16, 32):
        a('v_mov_b32 v12, v34')
        a('v_mov_b32 v13, v35')
        a(f'v_permlane{wh}_swap_b32 v34, v12')
        a(f'v_permlane{wh}_swap_b32 v35, v13')
        a('v_add_f32 v34, v34, v12')
        a('v_add_f32 v35, v35, v13')
    a('v_mul_f32 v34, 0x3b000000, v34')
    a('v_mul_f32 v35, 0x3b000000, v35')
    a('v_fma_f32 v35, -v34, v34, v35')
    a('v_max_f32 v35, 0, v35')
    a('v_add_f32 v35, 0x3727c5ac, v35')
    a('v_rsq_f32 v35, v35')
    a(f'v_mul_f32 v35, {QSCALE_BITS}, v35')
    a('v_mul_f32 v34, v34, v35')
    a('s_waitcnt vmcnt(4)')
    for i in range(4):
        a(f'v_lshlrev_b32 v12, 16, v{XO + i}')
        a(f'v_and_b32 v13, s{S_MASK}, v{XO + i}')
        a('v_fma_f32 v12, v12, v35, -v34')
        a('v_fma_f32 v13, v13, v35, -v34')
        a(f'v_cvt_pk_bf16_f32 v{XO + i}, v12, v13')
    a(f'v_add_u32 v12, {A_X}, v2')
    a(f'ds_write_b128 v12, {vr(XO, 4)}')
    a.label('L_noln')
    srd([R_WUV, R_WO, R_WG, R_WU, R_WD, R_OUT, R_ACT])
    a('s_getpc_b64 s[94:95]')
    a.label('L_pc')
    a(f's_sub_u32 s94, s94, L_pc-{name}')
    a('s_subb_u32 s95, s95, 0')
    a('s_andn2_b32 s92, s2, 7')
    a('s_add_u32 s92, s92, s3')
    a('s_lshl_b32 s92, s92, 8')
    a('v_lshl_add_u32 v32, v1, 2, s92')
    a(f'v_min_u32 v32, L_end-{name}, v32')
    a('global_load_dword v33, v32, s[94:95]')
    for i in range(4):
        a(f'v_mov_b32 v{36 + i}, -1')
    a('s_lshl_b32 s92, s2, 3')
    a('s_add_u32 s92, s92, s3')
    a('s_mul_i32 s92, s92, 192')
    a(f's_add_u32 s92, s92, {WS_CLEAN}')
    ex(0xfff)
    a(f'buffer_store_dwordx4 v[36:39], v2, {S(R_WS)}, s92 offen sc1')
    ex(-1)
    a('v_bfe_u32 v40, v1, 2, 3')
    a('v_lshlrev_b32 v40, 1, v40')
    a('v_bfe_u32 v41, v1, 1, 1')
    a('s_lshl_b32 s92, s3, 1')
    a(f'v_bitop3_b32 v40, v40, v41, s92 {XOR3}')
    a('v_lshlrev_b32 v40, 4, v40')
    a('v_bfe_u32 v41, v1, 2, 2')
    a('v_lshl_add_u32 v41, v3, 3, v41')
    a('v_lshl_add_u32 v40, v41, 8, v40')
    a('v_and_b32 v41, 1, v1')
    a('v_lshl_add_u32 v40, v41, 3, v40')
    a('v_lshlrev_b32 v41, 8, v3')
    a('v_lshl_add_u32 v41, v4, 4, v41')
    a(f'v_add_u32 v41, {A_X}, v41')
    a('v_lshlrev_b32 v42, 6, v3')
    a('v_lshl_add_u32 v42, v4, 4, v42')
    a('s_lshl_b32 s96, s4, 13')
    if WS_QP:
        a(f's_add_u32 s96, s96, {WS_QP}')
    a('s_lshl_b32 s92, s5, 11')
    a('s_add_u32 s97, s96, s92')
    a('s_lshl_b32 s92, s3, 8')
    a('s_add_u32 s97, s97, s92')
    get_tag()
    stamp(2)
    a('v_bfe_u32 v43, v1, 2, 2')
    a('v_lshlrev_b32 v43, 11, v43')
    a('v_lshl_add_u32 v43, v3, 7, v43')
    a('v_lshl_add_u32 v43, v4, 4, v43')
    a('s_cmp_lt_u32 s3, 4')
    a('s_cbranch_scc1 L_wq_lo')
    a('s_waitcnt vmcnt(10)')
    a('s_branch L_wq_hi')
    a.label('L_wq_lo')
    a('s_waitcnt vmcnt(2)')
    a.label('L_wq_hi')
    a('s_barrier')
    W1, XF, AC = 12, 44, 60
    for t in range(4):
        tr_op(W1 + 4 * t, 40, A_WQ + 8192 * t, 1024)
        a(f'ds_read_b128 {vr(XF + 4 * t, 4)}, v41 offset:{64 * t}')
    for t in range(4):
        a(f's_waitcnt lgkmcnt({3 * (3 - t)})')
        mfma16(AC, W1 + 4 * t, XF + 4 * t, t == 0)
    a(f'v_cvt_pk_bf16_f32 v64, v{AC}, v{AC + 1}')
    a(f'v_cvt_pk_bf16_f32 v65, v{AC + 2}, v{AC + 3}')
    a(f'v_bitop3_b32 v66, v64, v65, s{S_TAG} {XOR3}')
    ex(M4)
    a(f'buffer_store_dwordx4 v[64:67], v42, {S(R_WS)}, s97 offen sc1')
    ex(-1)
    stamp(3)
    UK, Q, AC2, FR = 68, 100, 132, 140

    def a2_loads():
        for n in range(8):
            a(f'buffer_load_dwordx4 {vr(Q + 4 * n, 4)}, v43, {S(R_WS)}, s96 offen offset:{512 * (n // 2) + 64 * (n % 2)} sc1')
    a('s_cmp_lt_u32 s3, 4')
    a('s_cbranch_scc1 L_a2')
    a('s_waitcnt vmcnt(0)')
    a('s_barrier')
    a('s_branch L_a_done')
    a.label('L_a2')
    a('s_waitcnt vmcnt(0)')
    if o.qdelay:
        a(f's_sleep {o.qdelay}')
    a2_loads()
    a('v_lshrrev_b32 v12, 2, v11')
    a('v_lshl_add_u32 v12, v12, 3, v4')
    a('v_lshlrev_b32 v12, 8, v12')
    a('v_xor_b32 v13, v3, v11')
    a('v_lshl_add_u32 v12, v13, 4, v12')
    a('s_lshl_b32 s92, s3, 13')
    a(f's_add_u32 s92, s92, {A_WUK}')
    a('v_add_u32 v12, s92, v12')
    a('s_barrier')
    for t in range(4):
        a(f'v_xor_b32 v13, {64 * t}, v12')
        for sub in range(2):
            a(f'ds_read_b128 {vr(UK + 16 * sub + 4 * t, 4)}, v13 offset:{1024 * sub}')
    a('v_lshlrev_b32 v15, 8, v4')
    a('v_lshl_add_u32 v15, v3, 4, v15')
    a('s_lshl_b32 s91, s3, 6')
    a(f's_add_u32 s91, s91, {A_C}')
    a('v_add_u32 v15, s91, v15')
    a(f'v_add_u32 v16, {A_C}, v2')
    a('v_lshlrev_b32 v20, 15, v3')
    a('v_lshl_add_u32 v20, v11, 4, v20')
    a('v_lshlrev_b32 v21, 3, v3')
    a('s_lshl_b32 s91, s4, 10')
    a('s_lshl_b32 s92, s5, 8')
    a('s_add_u32 s92, s92, s91')
    a('s_lshr_b32 s93, s92, 1')
    if WS_QA:
        a(f's_add_u32 s92, s92, {WS_QA}')
    a(f's_add_u32 s93, s93, {WS_QAH}')
    a(f's_cmp_lt_u32 s5, {o.nsamp}')
    a('s_cselect_b32 s98, s3, 99')
    a('v_lshlrev_b32 v24, 7, v1')
    a(f'v_mov_b32 v25, s{S_TAG}')
    a(f's_mov_b32 s{S_CNT}, {SPIN}')
    a('s_branch L_a2chk')
    a.label('L_a2poll')
    a2_loads()
    a.label('L_a2chk')
    for n in range(8):
        a(f's_waitcnt vmcnt({7 - n})')
        a(f'v_bitop3_b32 v{Q + 4 * n + 2}, v{Q + 4 * n}, v{Q + 4 * n + 1}, v{Q + 4 * n + 2} {XOR3}')
    a(f'v_max3_u32 v17, v{Q + 2}, v{Q + 6}, v{Q + 10}')
    a(f'v_min3_u32 v18, v{Q + 2}, v{Q + 6}, v{Q + 10}')
    a(f'v_max3_u32 v17, v17, v{Q + 14}, v{Q + 18}')
    a(f'v_min3_u32 v18, v18, v{Q + 14}, v{Q + 18}')
    a(f'v_max3_u32 v17, v17, v{Q + 22}, v{Q + 26}')
    a(f'v_min3_u32 v18, v18, v{Q + 22}, v{Q + 26}')
    a(f'v_max3_u32 v17, v17, v{Q + 30}, s{S_TAG}')
    a(f'v_min3_u32 v18, v18, v{Q + 30}, s{S_TAG}')
    a('v_cmp_ne_u32 vcc, v17, v18')
    a('s_cbranch_vccz L_a2go')
    a(f's_sub_u32 s{S_CNT}, s{S_CNT}, 1')
    a('s_cbranch_scc0 L_a2poll')
    a.label('L_a2go')
    if o.st3:
        a('s_memrealtime s[72:73]')
    stamp(4)
    arrive(3, 22, 23, 0, 's98')
    a('s_waitcnt lgkmcnt(0)')
    for n in range(8):
        for sub in range(2):
            d = AC2 + 4 * sub
            c = '0' if n == 0 else vr(d, 4)
            a(f'v_mfma_f32_16x16x16_bf16 {vr(d, 4)}, {vr(UK + 16 * sub + 2 * n, 2)}, {vr(Q + 4 * n, 2)}, {c}')
    for c in ('row_ror:4', 'row_ror:8'):
        for i in range(8):
            dpp('v_add_f32', AC2 + i, AC2 + i, AC2 + i, c)
    for i in range(4):
        a(f'v_cvt_pk_bf16_f32 v{FR + i}, v{AC2 + 2 * i}, v{AC2 + 2 * i + 1}')
    ex(M4)
    a(f'ds_write_b128 v15, {vr(FR, 4)}')
    ex(-1)
    a('s_cmp_lg_u32 s98, 3')
    a('s_cbranch_scc1 L_norel')
    a('s_waitcnt vmcnt(0)')
    a('v_readfirstlane_b32 s1, v22')
    a(f's_and_b32 s1, s1, {32 * o.nsamp - 1}')
    a(f's_cmp_lg_u32 s1, {32 * o.nsamp - 1}')
    a('s_cbranch_scc1 L_norel')
    a(f's_mov_b32 s1, {WS_HU}')
    a(f'buffer_store_dword v25, v24, {S(R_WS)}, s1 offen sc1')
    a(f's_mov_b32 s1, {WS_HU + 8192}')
    a(f'buffer_store_dword v25, v24, {S(R_WS)}, s1 offen sc1')
    a.label('L_norel')
    a('s_waitcnt lgkmcnt(0)')
    a.label('L_a_done')
    a('s_barrier')
    a('s_cmp_lg_u32 s3, 0')
    a('s_cbranch_scc1 L_a_pub')
    a(f'ds_read_b128 {vr(FR, 4)}, v16')
    a('s_waitcnt lgkmcnt(0)')
    a(f'buffer_store_dwordx4 {vr(FR, 4)}, v20, {S(R_WS)}, s92 offen sc1')
    xor_chain(18, range(FR, FR + 4))
    for c in ('quad_perm:[1,0,3,2]', 'quad_perm:[2,3,0,1]', 'row_ror:4', 'row_ror:8'):
        dpp('v_xor_b32', 18, 18, 18, c)
    a(f'v_xor_b32 v19, s{S_TAG}, v18')
    ex(0x0001000100010001)
    a(f'buffer_store_dwordx2 v[18:19], v21, {S(R_WS)}, s93 offen sc1')
    ex(-1)
    stamp(5)
    a.label('L_a_pub')
    a('s_and_b32 s7, s2, 7')
    a('s_lshr_b32 s63, s2, 3')
    a('v_lshl_add_u32 v6, v3, 18, v5')
    a('v_xor_b32 v7, 0x80, v6')
    a('s_lshl_b32 s0, s5, 20')
    a('s_add_u32 s0, s0, s6')
    a('s_mov_b32 s61, 0')
    D, WL, CA, OPC, OPD = 16, 32, 40, 64, 96
    a('s_and_b32 s94, s3, 3')
    a('s_lshr_b32 s95, s3, 2')
    a('v_bfe_u32 v56, v1, 2, 3')
    a('v_lshlrev_b32 v56, 1, v56')
    a('s_lshl_b32 s92, s94, 2')
    a(f'v_bitop3_b32 v56, v56, v4, s92 {XOR3}')
    a('v_lshlrev_b32 v56, 4, v56')
    a('v_bfe_u32 v58, v1, 2, 2')
    a('v_lshl_add_u32 v58, v3, 3, v58')
    a('v_lshl_add_u32 v56, v58, 8, v56')
    a(f'v_add_u32 v56, {A_WUV}, v56')
    tr64_addr(57, 58)
    a('s_lshl_b32 s91, s94, 13')
    a(f's_add_u32 s91, s91, {A_WO}')
    a('v_add_u32 v57, s91, v57')
    a('v_and_b32 v5, 31, v1')
    a('v_lshlrev_b32 v5, 11, v5')
    a('s_lshl_b32 s90, s94, 16')
    a('s_lshl_b32 s91, s5, 9')
    a('s_add_u32 s90, s90, s91')
    a('s_lshl_b32 s91, s4, 4')
    a('s_add_u32 s90, s90, s91')
    a(f's_add_u32 s90, s90, {WS_REC}')
    a('s_lshl_b32 s96, s4, 2')
    a('s_add_u32 s96, s96, s5')
    a('s_lshl_b32 s96, s96, 2')
    a('s_add_u32 s96, s96, s94')
    a('s_lshl_b32 s91, s96, 13')
    a('s_lshl_b32 s93, s95, 12')
    a('s_add_u32 s91, s91, s93')
    a(f's_add_u32 s91, s91, {WS_OP}')
    a('s_lshl_b32 s92, s95, 4')
    a('v_lshlrev_b32 v48, 4, v11')
    a('v_lshl_add_u32 v48, v3, 1, v48')
    a('s_mul_i32 s93, s3, 272')
    a(f's_add_u32 s93, s93, {A_C}')
    a('v_add_u32 v48, s93, v48')
    a('v_and_b32 v49, 7, v1')
    a('v_mul_u32_u24 v49, 272, v49')
    a('v_lshl_add_u32 v49, v3, 4, v49')
    a(f'v_add_u32 v49, {A_C}, v49')
    a('v_lshlrev_b32 v50, 6, v3')
    a('v_lshl_add_u32 v50, v4, 4, v50')
    a('s_lshl_b32 s98, s4, 12')
    a('s_lshl_b32 s93, s94, 10')
    a('s_add_u32 s98, s98, s93')
    a('s_lshl_b32 s93, s5, 8')
    a('s_add_u32 s98, s98, s93')
    a(f's_add_u32 s98, s98, {WS_CP}')
    a('v_add_u32 v51, s92, v3')
    a('v_lshlrev_b32 v51, 2, v51')
    a('v_cmp_eq_u32 s[88:89], s95, v3')
    vF(128)
    a('v_lshlrev_b32 v129, 7, v4')
    a('v_lshl_add_u32 v129, v3, 4, v129')
    a('s_lshl_b32 s93, s94, 9')
    a(f's_add_u32 s93, s93, {A_D}')
    a('v_add_u32 v129, s93, v129')
    a('v_bfe_u32 v130, v1, 1, 2')
    a('v_lshlrev_b32 v130, 7, v130')
    a('v_bfe_u32 v9, v1, 3, 2')
    a('v_lshl_add_u32 v130, v9, 5, v130')
    a('v_and_b32 v9, 1, v1')
    a('v_lshl_add_u32 v130, v9, 4, v130')
    a(f'v_add_u32 v130, {A_D}, v130')
    a('v_lshlrev_b32 v131, 3, v1')
    a('s_lshl_b32 s6, s7, 14')
    a('s_lshl_b32 s93, s94, 12')
    a('s_add_u32 s6, s6, s93')
    a(f's_add_u32 s6, s6, {WS_CP}')
    a('s_lshl_b32 s99, s7, 12')
    a('s_lshl_b32 s93, s63, 8')
    a('s_add_u32 s99, s99, s93')
    a(f's_add_u32 s99, s99, {WS_HP}')
    a('v_lshrrev_b32 v8, 2, v1')
    a('s_cmp_lt_u32 s3, 4')
    a('s_cbranch_scc1 L_wlo')
    a('s_mov_b32 s61, 0')
    tr64_addr(58, 59)

    def go_wait(extra=0):
        a('s_lshl_b32 s96, s2, 7')
        a(f's_add_u32 s96, s96, {WS_GO}')
        ex(1)
        poll(lambda: a(f'buffer_load_dword v9, off, {S(R_WS)}, s96 sc1'), lambda: a(f'v_cmp_ne_u32 vcc, s{S_TAG}, v9'), 8)
        ex(-1)
    a('s_cmp_lt_u32 s2, 48')
    a('s_cbranch_scc1 L_E1')
    a('s_and_b32 s93, s2, 0x70')
    a('s_cmp_eq_u32 s93, 64')
    a('s_cbranch_scc1 L_F1')
    a.label('L_wnone')
    a('s_barrier')
    a('s_branch L_cstart')
    OP = 64
    H, XR, HA, X4, EA = 16, 128, 140, 148, 164
    EW, ES, ER, ESR, EST, EG, ECS = 180, 181, 182, 183, 184, 185, 186
    a.label('L_E1')
    a('s_mul_i32 s93, s7, 6')
    a('s_add_u32 s63, s63, s93')
    a('s_cmp_ge_u32 s63, 43')
    a('s_cbranch_scc1 L_wnone')
    a('s_mov_b32 s61, 1')
    if o.efgo == 1:
        go_wait()
    a('v_mul_u32_u24 v8, 2752, v8')
    a('v_lshl_add_u32 v8, v4, 4, v8')
    a(f's_mul_i32 s99, s94, {128 * 2752}')
    a('s_lshl_b32 s93, s63, 6')
    a('s_add_u32 s99, s99, s93')
    a('s_lshl_b32 s6, s94, 14')
    a('s_mov_b32 m0, s6')
    a('v_bfe_u32 v9, v1, 2, 2')
    a('v_lshlrev_b32 v9, 6, v9')
    a('v_lshl_add_u32 v9, v4, 10, v9')
    a('v_lshl_add_u32 v9, v3, 4, v9')
    a('s_lshl_b32 s93, s94, 8')
    a(f'buffer_load_dwordx4 {vr(XR, 4)}, v9, {S(R_X)}, s93 offen')
    for mat in range(2):
        for i in range(8):
            a(f's_add_u32 s93, s99, {16 * i * 2752}')
            a(f's_waitcnt vmcnt({o.efwin - 1})')
            a(f'buffer_load_dwordx4 v8, {S(R_WG if mat == 0 else R_WU)}, s93 offen {o.r64} lds')
            a('s_add_u32 m0, m0, 1024')
    a('v_add_u32 v58, s6, v58')
    a(f'v_lshlrev_b32 v{EW}, 8, v4')
    a(f'v_lshl_add_u32 v{EW}, v3, 4, v{EW}')
    a(f'v_add_u32 v{EW}, s6, v{EW}')
    a(f'v_lshlrev_b32 v{ES}, 3, v4')
    a(f'v_lshl_add_u32 v{ES}, v3, 2, v{ES}')
    a(f'v_add_u32 v{ES}, s6, v{ES}')
    a('s_and_b32 s93, s3, 1')
    a('s_lshl_b32 s93, s93, 6')
    a(f'v_add_u32 v{EST}, s93, v1')
    a(f'v_lshrrev_b32 v{ESR}, 5, v{EST}')
    a(f'v_and_b32 v{ER}, 31, v{EST}')
    a(f'v_lshlrev_b32 v{ER}, 2, v{ER}')
    a(f'v_lshl_add_u32 v{ER}, v{ESR}, 8, v{ER}')
    a(f'v_lshlrev_b32 v{ESR}, 3, v{ESR}')
    a(f'v_lshlrev_b32 v{EST}, 1, v{EST}')
    vF(EG)
    for i in range(4):
        a(f'v_mov_b32 v{X4 + i}, s{S_ONES}')
    a('s_waitcnt vmcnt(0)')
    for t in range(4):
        for k in range(4):
            tr_op(OP + 16 * t + 4 * k, 58, 8192 * (k // 2) + 2048 * t + 32 * (k % 2), 256)
        a(f's_waitcnt lgkmcnt({4 if t < 3 else 0})')
    for t in range(4):
        for k in range(4):
            mfma16(EA + 4 * k, OP + 16 * t + 4 * k, X4, t == 0)
    for i in range(4):
        a(f'v_lshlrev_b32 v{132 + 2 * i}, 16, v{XR + i}')
        a(f'v_and_b32 v{133 + 2 * i}, s{S_MASK}, v{XR + i}')

    def e_lds_write():
        ex(M4)
        for k in range(4):
            a(f'ds_write_b128 v{EW}, {vr(EA + 4 * k, 4)} offset:{64 * k}')
        ex(-1)
    e_lds_write()
    a('s_branch L_wnone')
    X, HR, FA = 160, 16, 40
    FW, FRD, FH, FO, FG, FX = 204, 205, 206, 207, 208, 210
    a.label('L_F1')
    a('s_mov_b32 s61, 2')
    if o.efgo == 1:
        go_wait()
    a('s_and_b32 s63, s63, 1')
    a('s_lshl_b32 s93, s7, 1')
    a('s_add_u32 s63, s63, s93')
    a('v_lshlrev_b32 v8, 10, v8')
    a('v_lshl_add_u32 v8, v4, 4, v8')
    a('s_lshl_b32 s99, s94, 15')
    a('s_lshl_b32 s98, s63, 6')
    a('s_add_u32 s99, s99, s98')
    a(f's_mul_i32 s6, s94, {22 * 1024}')
    a('s_mov_b32 m0, s6')
    a(f'v_bfe_u32 v{FO}, v1, 3, 2')
    a(f'v_lshlrev_b32 v{FO}, 10, v{FO}')
    a('v_and_b32 v9, 7, v1')
    a(f'v_lshl_add_u32 v{FO}, v9, 3, v{FO}')
    a(f'buffer_load_dwordx2 {vr(FX, 2)}, v{FO}, {S(R_X)}, s98 offen')
    for n in range(11):
        for i in range(2):
            a(f's_add_u32 s93, s99, {(128 * n + 16 * i) * 1024}')
            a(f's_waitcnt vmcnt({o.efwin})')
            a(f'buffer_load_dwordx4 v8, {S(R_WD)}, s93 offen {o.r64} lds')
            a('s_add_u32 m0, m0, 1024')
    a('v_add_u32 v58, s6, v58')
    a(f'v_lshlrev_b32 v{FW}, 7, v4')
    a(f'v_lshl_add_u32 v{FW}, v3, 4, v{FW}')
    a('s_lshl_b32 s93, s94, 9')
    a(f'v_add_u32 v{FW}, s93, v{FW}')
    frag_addr(FH, 9)
    a(f'v_lshlrev_b32 v{FG}, 6, v4')
    a(f'v_lshl_add_u32 v{FG}, v3, 4, v{FG}')
    a('s_waitcnt vmcnt(0)')
    for n in range(11):
        for cb in range(2):
            tr_op(OP + 8 * n + 4 * cb, 58, 2048 * n + 32 * cb, 256)
        if n % 2 == 1:
            a('s_waitcnt lgkmcnt(4)')
    a('s_branch L_wnone')
    a.label('L_wlo')
    a('s_lshl_b32 s93, s3, 15')
    a('s_add_u32 s0, s0, s93')
    a('s_lshl_b32 s93, s3, 13')
    a(f's_add_u32 m0, s93, {A_WUV}')
    a('v_lshlrev_b32 v8, 10, v8')
    a('v_lshl_add_u32 v8, v4, 4, v8')
    a('s_lshl_b32 s97, s7, 19')
    a('s_lshl_b32 s93, s3, 17')
    a('s_add_u32 s97, s97, s93')
    a('s_lshl_b32 s93, s63, 6')
    a('s_add_u32 s97, s97, s93')
    if o.wgo:
        go_wait()
    for i in range(8):
        a(f's_add_u32 s93, s0, {(16 * (i % 2) + i // 2) * 8192}')
        if i >= o.wwin:
            a(f's_waitcnt vmcnt({o.wwin - 1})')
        a(f'buffer_load_dwordx4 v{6 + (i // 2) % 2}, {S(R_WUV)}, s93 offen nt lds')
        a(f's_add_u32 m0, m0, {1024 if i < 7 else A_WO - A_WUV - 7168}')
    for i in range(8):
        a(f's_add_u32 s93, s97, {i * 16384}')
        if 8 + i >= o.wwin:
            a(f's_waitcnt vmcnt({o.wwin - 1})')
        a(f'buffer_load_dwordx4 v8, {S(R_WO)}, s93 offen {o.r64} lds')
        if i < 7:
            a('s_add_u32 m0, m0, 1024')
    a('s_waitcnt vmcnt(0)')
    a('s_barrier')
    for t in range(4):
        for k in range(2):
            tr_op(OPC + 8 * t + 4 * k, 56, 8192 * t + 8 * k, 1024)
            tr_op(OPD + 8 * t + 4 * k, 57, 2048 * t + 32 * k, 256)
        a('s_waitcnt lgkmcnt(4)')
    a.label('L_cstart')
    stamp(6)
    a('s_lshl_b32 s96, s94, 7')
    a(f's_add_u32 s96, s96, {WS_FL + 128}')
    flag_wait('s96', 9, o.stsleep)
    stamp(7)
    a(f's_mov_b32 s{S_CNT}, {SPIN}')
    a.label('L_call')
    a(f'buffer_load_dwordx4 v[12:15], v5, {S(R_WS)}, s90 offen sc1')
    for i in range(4):
        a(f'buffer_load_dwordx4 {vr(D + 4 * i, 4)}, v2, {S(R_WS)}, s91 offen offset:{1024 * i} sc1')
    a(f's_sub_u32 s{S_CNT}, s{S_CNT}, 1')
    a('s_cbranch_scc1 L_cdone')
    a('s_waitcnt vmcnt(4)')
    xor_chain(10, [12, 13, 14, 15], f's{S_TAG}')
    a('v_cmp_ne_u32 vcc, 0, v10')
    a('s_cbranch_vccz L_crec')
    a('s_waitcnt vmcnt(0)')
    a('s_branch L_call')
    a.label('L_crec')
    a('v_cndmask_b32 v9, 0, v14, s[88:89]')
    a('v_mov_b32 v14, v12')
    for op, v in (('v_max_f32', 14), ('v_add_f32', 14)):
        for c in ('quad_perm:[1,0,3,2]', 'quad_perm:[2,3,0,1]', 'row_ror:4', 'row_ror:8'):
            dpp(op, v, v, v, c)
        swap_step(op, v, 15, 16)
        if op == 'v_max_f32':
            a('v_sub_f32 v12, v12, v14')
            a('v_exp_f32 v12, v12')
            a('v_mul_f32 v14, v12, v13')
    a('v_rcp_f32 v14, v14')
    a('v_mul_f32 v12, v12, v14')
    a('v_cvt_pk_bf16_f32 v12, v12, 0')
    for i in range(4):
        a(f'ds_bpermute_b32 v{WL + i}, v51, v12 offset:{16 * i}')
    a('s_waitcnt lgkmcnt(0)')
    for i in range(4):
        a(f'v_lshlrev_b32 v{WL + 4 + i}, 16, v{WL + i}')
    a('s_waitcnt vmcnt(0)')
    stamp(8)
    f3(66)
    xor_chain(9, [9] + list(range(D, D + 16)))
    steps = ['quad_perm:[1,0,3,2]', 'quad_perm:[2,3,0,1]', 'row_ror:4', 'row_ror:8', 16, 32]
    for i in range(4):
        for u in range(4):
            for e in range(2):
                c = '0' if i == 0 else f'v{CA + 2 * u + e}'
                a(f'v_dot2_f32_bf16 v{CA + 2 * u + e}, v{D + 4 * i + u}, v{WL + 4 * e + i}, {c}')
            if u % 2 == 1 and steps:
                st = steps.pop(0)
                if isinstance(st, str):
                    dpp('v_xor_b32', 9, 9, 9, st)
                    if st == 'row_ror:8':
                        a('v_mov_b32 v10, v9')
                else:
                    a(f'v_permlane{st}_swap_b32 v9, v10')
                    a('v_xor_b32 v9, v9, v10')
                    a('v_mov_b32 v10, v9')
    a('v_cmp_ne_u32 vcc, 0, v9')
    for k in range(4):
        a(f'v_permlane16_swap_b32 v{CA + 2 * k}, v{CA + 2 * k + 1}')
    a('s_cbranch_vccnz L_call')
    a.label('L_cdone')
    for k in range(4):
        a(f'v_add_f32 v{CA + 2 * k}, v{CA + 2 * k}, v{CA + 2 * k + 1}')
    for k in range(2):
        a(f'v_permlane32_swap_b32 v{CA + 4 * k}, v{CA + 4 * k + 2}')
    for k in range(2):
        a(f'v_add_f32 v{CA + 4 * k}, v{CA + 4 * k}, v{CA + 4 * k + 2}')
    a(f'v_cvt_pk_bf16_f32 v{CA}, v{CA}, v{CA + 4}')
    a(f'ds_write_b16 v48, v{CA}')
    a(f'ds_write_b16_d16_hi v48, v{CA} offset:8')
    f3(68)
    a('s_waitcnt lgkmcnt(0)')
    a('s_barrier')
    f3(70)
    a('s_cmp_ge_u32 s3, 4')
    a('s_cbranch_scc1 L_hi')
    for t in range(4):
        a(f'ds_read_b128 {vr(D + 4 * t, 4)}, v49 offset:{64 * t}')
    for t in range(4):
        a(f's_waitcnt lgkmcnt({3 - t})')
        for k in range(2):
            mfma16(CA + 4 * k, OPC + 8 * t + 4 * k, D + 4 * t, t == 0)
    for i in range(8):
        dpp('v_add_f32', CA + i, CA + i, CA + i, 'row_ror:4')
    for i in range(4):
        a(f'v_cvt_pk_bf16_f32 v{12 + i}, v{CA + 2 * i}, v{CA + 2 * i + 1}')
    ex(M4)
    a(f'buffer_store_dwordx4 v[12:15], v50, {S(R_WS)}, s98 offen sc1')
    ex(-1)
    stamp(9)
    f3(72)
    a('s_waitcnt vmcnt(0)')
    f3(74)
    if o.ddelay:
        a(f's_sleep {o.ddelay}')

    def d_loads():
        for i in range(4):
            a(f'buffer_load_dwordx4 {vr(D + 4 * i, 4)}, v128, {S(R_WS)}, s6 offen offset:{1024 * i} sc1')
    poll(d_loads, lambda: chk_sentinel(range(D, D + 16), 10), o.dsleep)
    stamp(10)
    f3(76)
    for t in range(4):
        for k in range(2):
            mfma16(CA + 4 * k, OPD + 8 * t + 4 * k, D + 4 * t, t == 0)
    for c in ('row_ror:4', 'row_ror:8'):
        for i in range(8):
            dpp('v_add_f32', CA + i, CA + i, CA + i, c)
    ex(M4)
    a(f'ds_write_b128 v129, {vr(CA, 4)}')
    a(f'ds_write_b128 v129, {vr(CA + 4, 4)} offset:64')
    ex(-1)
    a('s_waitcnt lgkmcnt(0)')
    a('s_barrier')
    a('s_cmp_lg_u32 s3, 0')
    a('s_cbranch_scc1 L_end')
    red4_read(D, 130)
    a(f'v_cvt_pk_bf16_f32 v{D}, v{D}, v{D + 1}')
    a(f'v_cvt_pk_bf16_f32 v{D + 1}, v{D + 2}, v{D + 3}')
    a(f'buffer_store_dwordx2 {vr(D, 2)}, v131, {S(R_WS)}, s99 offen sc1')
    f3(78)
    if o.stamps:
        a('s_memrealtime s[88:89]')
    a('s_waitcnt vmcnt(0)')
    if o.stamps:
        a('s_barrier')
    if o.st3:
        o.stamps = 1
    if o.stamps:
        dump_stamps(13, 0, 'a')
    a('s_endpgm')

    a.label('L_hi')
    a('s_cmp_eq_u32 s61, 0')
    a('s_cbranch_scc1 L_end')
    a('s_cmp_eq_u32 s61, 2')
    a('s_cbranch_scc1 L_F2')

    def e_lds_read():
        for w in range(4):
            a(f'ds_read_b32 v{H + 2 * w}, v{ER} offset:{16384 * w}')
            a(f'ds_read_b32 v{H + 2 * w + 1}, v{ER} offset:{16384 * w + 128}')
    e_lds_read()
    a('s_lshl_b32 s98, s63, 8')
    a('s_lshl_b32 s90, s94, 10')
    a(f's_add_u32 s90, s90, {WS_HP}')
    a('s_waitcnt lgkmcnt(0)')
    a(f'v_add_f32 v{ECS}, v{H}, v{H + 2}')
    a(f'v_add_f32 v{ECS + 1}, v{H + 1}, v{H + 3}')
    for w in range(2, 4):
        a(f'v_add_f32 v{ECS}, v{ECS}, v{H + 2 * w}')
        a(f'v_add_f32 v{ECS + 1}, v{ECS + 1}, v{H + 2 * w + 1}')
    a('s_barrier')
    a('s_barrier')
    if o.edelay:
        a(f's_sleep {o.edelay}')

    def e_loads():
        a('s_mov_b32 s92, s90')
        for r in range(8):
            a(f'buffer_load_dwordx4 {vr(H + 4 * r, 4)}, v{EG}, {S(R_WS)}, s92 offen sc1')
            if r < 7:
                a('s_add_u32 s92, s92, 4096')
    f3(66)
    poll(e_loads, lambda: chk_sentinel(range(H, H + 32), 10), 0)
    stamp(9)
    f3(68)
    for r in range(8):
        for u in range(4):
            for e in range(2):
                c = f'v{132 + 2 * u + e}' if r == 0 else f'v{HA + 2 * u + e}'
                a(f'v_dot2_f32_bf16 v{HA + 2 * u + e}, v{H + 4 * r + u}, s{S_LO1 + e}, {c}')
    f3(70)
    for i in range(4):
        a(f'v_cvt_pk_bf16_f32 v{X4 + i}, v{HA + 2 * i}, v{HA + 2 * i + 1}')
    for t in range(4):
        if t < 3:
            for i in range(4):
                a(f'v_mov_b32_dpp v{X4 + 4 * (t + 1) + i}, v{X4 + i} row_shl:{4 * (t + 1)} row_mask:0xf bank_mask:0xf bound_ctrl:0')
        for k in range(4):
            mfma16(EA + 4 * k, OP + 16 * t + 4 * k, X4 + 4 * t, t == 0)
        if t == 0:
            for i in range(4):
                a(f'v_dot2_f32_bf16 v9, v{X4 + i}, s{S_ONES}, {"0" if i == 0 else "v9"}')
                a(f'v_dot2_f32_bf16 v10, v{X4 + i}, v{X4 + i}, {"0" if i == 0 else "v10"}')
        if t == 1:
            for c in ('row_ror:4', 'row_ror:8'):
                dpp('v_add_f32', 9, 9, 9, c)
                dpp('v_add_f32', 10, 10, 10, c)
        if t == 2:
            a('v_permlane16_swap_b32 v9, v10')
            a('v_add_f32 v9, v9, v10')
            swap_step('v_add_f32', 9, 10, 32)
    ex(0x000f000f)
    f3(72)
    a(f'ds_write_b32 v{ES}, v9 offset:1024')
    e_lds_write()
    a('s_waitcnt lgkmcnt(0)')
    a('s_barrier')
    f3(74)
    a('s_cmp_ge_u32 s3, 6')
    a('s_cbranch_scc1 L_end')
    for w in range(4):
        a(f'ds_read_b64 v[{H + 8 + 2 * w}:{H + 9 + 2 * w}], v{ESR} offset:{16384 * w + 1024}')
    e_lds_read()
    a('s_waitcnt lgkmcnt(8)')
    for w in range(1, 4):
        a(f'v_add_f32 v{H + 8}, v{H + 8}, v{H + 8 + 2 * w}')
        a(f'v_add_f32 v{H + 9}, v{H + 9}, v{H + 9 + 2 * w}')
    MU, VA = H + 8, H + 9
    a(f'v_mul_f32 v{MU}, 0x3b000000, v{MU}')
    a(f'v_mul_f32 v{VA}, 0x3b000000, v{VA}')
    a(f'v_fma_f32 v{VA}, -v{MU}, v{MU}, v{VA}')
    a(f'v_max_f32 v{VA}, 0, v{VA}')
    a(f'v_add_f32 v{VA}, 0x3727c5ac, v{VA}')
    a(f'v_rsq_f32 v{VA}, v{VA}')
    a('s_waitcnt lgkmcnt(0)')
    for w in range(1, 4):
        a(f'v_add_f32 v{H}, v{H}, v{H + 2 * w}')
        a(f'v_add_f32 v{H + 1}, v{H + 1}, v{H + 2 * w + 1}')
    a(f'v_fma_f32 v16, -v{MU}, v{ECS}, v16')
    a(f'v_fma_f32 v17, -v{MU}, v{ECS + 1}, v17')
    a(f'v_mul_f32 v16, v16, v{VA}')
    a(f'v_mul_f32 v17, v17, v{VA}')
    a('v_mul_f32 v18, v16, v16')
    a('v_mov_b32 v19, 1.0')
    a('v_fmac_f32 v19, 0x3d372713, v18')
    a('v_mul_f32 v19, v19, v16')
    a(f'v_mul_f32 v19, {GELU_BITS}, v19')
    a('v_exp_f32 v19, v19')
    a('v_mul_f32 v16, v16, v17')
    a('v_add_f32 v19, 1.0, v19')
    a('v_rcp_f32 v19, v19')
    a('v_mul_f32 v16, v16, v19')
    a('v_mov_b32_dpp v17, v16 quad_perm:[1,1,3,3] row_mask:0xf bank_mask:0xf')
    a('v_cvt_pk_bf16_f32 v16, v16, v17')
    ex(0x5555555555555555)
    a(f'buffer_store_dword v16, v{EST}, {S(R_ACT)}, s98 offen sc1')
    f3(76)
    a('s_branch L_efend')

    a.label('L_F2')
    a('s_lshl_b32 s98, s63, 6')
    a('s_lshl_b32 s90, s63, 8')
    a(f's_add_u32 s90, s90, {WS_HP}')
    a('s_barrier')
    a('s_barrier')
    a('s_sleep 4')

    def h_loads():
        a('s_mov_b32 s92, s90')
        for r in range(8):
            a(f'buffer_load_dwordx2 {vr(HR + 2 * r, 2)}, v{FH}, {S(R_WS)}, s92 offen sc1')
            if r < 7:
                a('s_add_u32 s92, s92, 4096')
    poll(h_loads, lambda: chk_sentinel(range(HR, HR + 16), 10), 3)
    for u in range(2):
        for e in range(2):
            a(f'v_dot2_f32_bf16 v{32 + 2 * u + e}, v{FX + u}, s{S_LO1 + e}, 0')
    for r in range(8):
        for u in range(2):
            for e in range(2):
                a(f'v_dot2_f32_bf16 v{32 + 2 * u + e}, v{HR + 2 * r + u}, s{S_LO1 + e}, v{32 + 2 * u + e}')
    for u in range(2):
        a(f'v_cvt_pk_bf16_f32 v12, v{32 + 2 * u}, v{33 + 2 * u}')
        a(f'v_lshlrev_b32 v{32 + 2 * u}, 16, v12')
        a(f'v_and_b32 v{33 + 2 * u}, s{S_MASK}, v12')
    a('s_lshl_b32 s90, s94, 8')
    a('s_add_u32 s91, s90, 4096')
    a('s_add_u32 s92, s90, 8192')

    def f_loads():
        for n in range(11):
            a(f'buffer_load_dwordx4 {vr(X + 4 * n, 4)}, v{FG}, {S(R_ACT)}, s{90 + n // 4} offen offset:{1024 * (n % 4)} sc1')
    a(f's_sleep {o.fdelay}')
    poll(f_loads, lambda: chk_sentinel(range(X, X + 44), 10), 0)
    stamp(9)
    for n in range(11):
        for cb in range(2):
            mfma16(FA + 4 * cb, OP + 8 * n + 4 * cb, X + 4 * n, n == 0)
    ex(M4)
    a(f'ds_write_b128 v{FW}, {vr(FA, 4)}')
    a(f'ds_write_b128 v{FW}, {vr(FA + 4, 4)} offset:64')
    ex(-1)
    a('s_waitcnt lgkmcnt(0)')
    a('s_barrier')
    a('s_cmp_lg_u32 s3, 4')
    a('s_cbranch_scc1 L_end')
    red4_read(16, 2)
    for i in range(4):
        a(f'v_add_f32 v{16 + i}, v{16 + i}, v{32 + i}')
    a('v_cvt_pk_bf16_f32 v16, v16, v17')
    a('v_cvt_pk_bf16_f32 v17, v18, v19')
    a(f'buffer_store_dwordx2 v[16:17], v{FO}, {S(R_OUT)}, s98 offen')
    a('s_cmp_lg_u32 s63, 0')
    a('s_cbranch_scc1 L_efend')
    ex(1)
    a(f'v_mov_b32 v12, s{S_TAG}')
    a(f's_mov_b32 s90, {WS_EPOCH}')
    a(f'buffer_store_dword v12, off, {S(R_WS)}, s90')
    a.label('L_efend')
    if o.diag:
        a.label('L_diag')
        a('s_memrealtime s[90:91]')
        a('s_waitcnt lgkmcnt(0)')
        a('s_sub_u32 s90, s90, s100')
        a(f's_cmp_lt_u32 s90, {o.diag}')
        a('s_cbranch_scc1 L_diag')
    if o.stamps:
        stamp(10)
        a('s_cmp_lg_u32 s3, 4')
        a('s_cbranch_scc1 L_end')
        dump_stamps(11, 1)
    a('s_endpgm')

    a.label('L_att')
    srd([R_CKV])
    a('s_bfe_u32 s4, s2, 0x20001')
    a('s_bfe_u32 s5, s2, 0x40003')
    a('s_lshl_b32 s5, s5, 1')
    a('s_and_b32 s6, s2, 1')
    a('s_add_u32 s5, s5, s6')
    a('s_lshl_b32 s90, s4, 23')
    a('s_lshl_b32 s91, s5, 18')
    a('s_add_u32 s90, s90, s91')
    a('s_and_b32 s7, s3, 3')
    a('s_lshl_b32 s91, s7, 14')
    a('s_add_u32 s90, s90, s91')
    a('s_lshl_b32 s91, s7, 15')
    a('s_lshl_b32 s92, s7, 2')
    a(f's_add_u32 s92, s92, {FB}')
    a('v_mov_b32 v7, s92')
    a(f'v_lshlrev_b32 v10, 2, v4')
    a(f'v_add_u32 v10, {FB}, v10')
    a('s_cmp_lt_u32 s3, 4')
    a('s_cbranch_scc1 L_comp')
    a('s_mov_b32 s3, s7')
    VX, TR, O_ = 12, 128, 64
    for j in range(8):
        a(f'v_xor_b32 v{VX + j}, {32 * j}, v2')
    a('s_mov_b32 m0, s91')
    a('s_mov_b32 s93, 0')
    a('s_waitcnt lgkmcnt(0)')
    srd_ptr([R_CKV])
    TAL, vPR, vST, vRC, vRM, vRL, vAR = 20, 28, 29, 30, 31, 32, 33

    def pv_setup():
        a('v_bfe_u32 v40, v1, 2, 2')
        a('v_lshrrev_b32 v42, 5, v1')
        a('v_lshlrev_b32 v41, 2, v40')
        a('v_lshl_add_u32 v41, v42, 1, v41')
        a('v_and_b32 v43, 1, v3')
        a('v_lshlrev_b32 v44, 1, v43')
        a('v_bfe_u32 v45, v1, 1, 1')
        a('v_add_u32 v44, v44, v45')
        a('v_xor_b32 v44, v44, v41')
        a('v_lshlrev_b32 v41, 10, v41')
        a('v_lshl_add_u32 v41, v44, 4, v41')
        a('v_and_b32 v45, 1, v1')
        a('v_lshl_add_u32 v41, v45, 3, v41')
        a('s_lshl_b32 s95, s3, 8')
        a('v_add_u32 v41, s95, v41')
        for i in range(8):
            a(f'v_xor_b32 v{TAL + i}, {64 * (i % 4) + 65536 * (i // 4)}, v41')
        a(f'v_add_u32 v{vPR}, {L_P}, v2')
        a(f'v_lshlrev_b32 v{vAR}, 4, v42')
        a(f'v_add_u32 v{vAR}, {L_ALPHA}, v{vAR}')
        a('v_lshl_add_u32 v42, v42, 2, v43')
        a(f'v_lshlrev_b32 v{vST}, 17, v42')
        a(f'v_lshl_add_u32 v{vST}, v11, 4, v{vST}')
        a('v_lshl_add_u32 v42, v45, 4, v42')
        a('v_bfe_u32 v44, v1, 2, 1')
        a('v_lshl_add_u32 v42, v44, 3, v42')
        a('v_bfe_u32 v44, v1, 3, 1')
        a('v_lshl_add_u32 v42, v44, 1, v42')
        a(f'v_lshlrev_b32 v{vRM}, 2, v42')
        a(f'v_add_u32 v{vRM}, {L_MFIN}, v{vRM}')
        a(f'v_lshlrev_b32 v{vRC}, 4, v42')
        a(f'v_add_u32 v{vRL}, {L_MAX}, v{vRC}')
        a('s_lshl_b32 s96, s3, 2')
        a('s_add_u32 s96, s96, s4')
        a('s_lshl_b32 s96, s96, 13')
        a('s_lshl_b32 s95, s5, 8')
        a('s_add_u32 s96, s96, s95')
        a(f's_add_u32 s96, s96, {WS_OP}')
        a('s_lshl_b32 s97, s4, 16')
        a('s_lshl_b32 s95, s5, 11')
        a('s_add_u32 s97, s97, s95')
        a('s_lshl_b32 s95, s3, 9')
        a('s_add_u32 s97, s97, s95')
        a(f's_add_u32 s97, s97, {WS_REC}')
        a('v_add_u32 v9, s91, v2')
    rows = [(T, j) for T in range(4) for j in range(16) if not (T == 1 and j == 15)]
    landed = 0
    pub = {0: 16, 1: 31}

    def publish():
        for tt in list(pub):
            if landed >= pub[tt]:
                a(f'v_mov_b32 v5, {tt + 1}')
                a(f'ds_write_b32 v7, v5 offset:{F_LAND}')
                del pub[tt]

    def dma_row(j):
        a(f'buffer_load_dwordx4 v{VX + j // 2}, {S(R_CKV)}, s90 offen offset:{(j % 4) * 1024} nt lds')
    for n, (T, j) in enumerate(rows):
        w = o.w0 if n < o.n0 else o.window
        if n >= o.n0:
            lb = a.uid('fast')
            a('s_cmp_lg_u32 s93, 0')
            a(f's_cbranch_scc1 {lb}')
            if n % 2 == 0:
                a(f'ds_read_b32 v6, v10 offset:{F_HUS if o.sw == 1 else F_QST}')
            a(f's_waitcnt vmcnt({o.w1 - 1})')
            if n % 2 == 0:
                a('s_waitcnt lgkmcnt(0)')
                a('v_cmp_eq_u32 vcc, 0, v6')
                a('s_cmp_eq_u64 vcc, 0')
                a('s_cselect_b32 s93, 1, 0')
            a.label(lb)
        if n - landed >= w:
            a(f's_waitcnt vmcnt({w - 1})')
            landed = n - (w - 1)
        if n in (16 + o.w1, 31 + o.lw) and landed < n - (o.w1 if n < 31 else o.lw):
            k = o.w1 if n < 31 else o.lw
            a(f's_waitcnt vmcnt({k})')
            landed = n - k
        publish()
        if n == o.gon:
            lb = a.uid('nogo')
            get_tag()
            a('s_cmp_lg_u32 s3, 0')
            a(f's_cbranch_scc1 {lb}')
            a('s_sub_u32 s92, s2, 128')
            a('s_lshl_b32 s92, s92, 7')
            a(f's_add_u32 s92, s92, {WS_GO}')
            a(f'v_mov_b32 v6, s{S_TAG}')
            a('v_lshlrev_b32 v8, 2, v1')
            ex(0xffffffff)
            a(f'buffer_store_dword v6, v8, {S(R_WS)}, s92 offen sc1')
            ex(-1)
            a.label(lb)
        if T < 2:
            dma_row(j)
        else:
            a(f'buffer_load_dwordx4 {vr(TR + 64 * (T - 2) + 4 * j, 4)}, v{VX + j // 2}, {S(R_CKV)}, s90 offen offset:{(j % 4) * 1024} nt')
        last = j == 15 or (T == 1 and j == 14)
        if j % 4 == 3 or last:
            a(f's_add_u32 s90, s90, {4096 + 49152 if last else 4096}')
            if T < 2:
                a('s_add_u32 m0, m0, 4096')
        if n == o.w0 - 1:
            a(f's_load_dword s{S_TAG}, s[{R_WS}:{R_WS + 1}], {WS_EPOCH}')
            a('s_barrier')
            pv_setup()
        if n == 30:
            stamp(1)
    assert not pub
    stamp(2)
    if o.pvprio:
        a(f's_setprio {o.pvprio}')
    PF = 36
    BFS = (44, 48, 52, 56, 60, 12, 16)
    NB = len(BFS)
    DIST = 6
    FLG = 34

    def pv(t):
        seq = [(ks, blk) for ks in range(4) for blk in range(4)]

        def rd(n):
            ks, blk = seq[n]
            for tau in range(2):
                a(f'ds_read_b64_tr_b16 {vr(BFS[n % NB] + 2 * tau, 2)}, v{TAL + blk + 4 * (ks // 2)} offset:{32768 * (ks % 2) + 16384 * (t % 2) + 1024 * tau}')

        def p_rd(ks):
            a(f'ds_read_b128 {vr(PF + 4 * (ks % 2), 4)}, v{vPR} offset:{4096 * t + 1024 * ks}')
        a(f's_mov_b32 s{S_CNT}, {SPIN * 40}')
        a('s_mov_b32 s95, 2')
        a.label(f'L_pp{t}')
        a(f'ds_read_b32 v{FLG}, v10 offset:{F_PS + 16 * t}')
        a('s_waitcnt lgkmcnt(0)')
        a(f'v_cmp_ne_u32 vcc, s95, v{FLG}')
        a(f's_cbranch_vccnz L_ps{t}')
        a.label(f'L_pg{t}')
        p_rd(0)
        ops = ['P0']

        def issue_rd(n):
            rd(n)
            ops.extend([f'R{n}', f'R{n}'])
        for n in range(DIST):
            issue_rd(n)
            if n == 1:
                p_rd(1)
                ops.append('P1')
        for n in range(16):
            ks, blk = seq[n]
            need = max(i for i, x in enumerate(ops) if x in (f'R{n}', f'P{ks}'))
            a(f's_waitcnt lgkmcnt({min(15, len(ops) - 1 - need)})')
            c = '0' if (t == 0 and ks == 0) else vr(O_ + 16 * blk, 16)
            a(f'v_mfma_f32_32x32x16_bf16 {vr(O_ + 16 * blk, 16)}, {vr(PF + 4 * (ks % 2), 4)}, {vr(BFS[n % NB], 4)}, {c}')
            if n in (3, 7):
                p_rd(2 + n // 4)
                ops.append(f'P{2 + n // 4}')
            if n + DIST < 16:
                issue_rd(n + DIST)

    def refill(T):
        a(f'v_mov_b32 v5, {T - 1}')
        a(f'ds_write_b32 v7, v5 offset:{F_DONE}')
        lds_wait(10, F_DONE, T - 1, 5, 0)
        for j in range(16):
            if j % 2 == 0:
                a(f's_waitcnt vmcnt({16 * (3 - T) + 14 - j})')
            a(f'ds_write_b128 v9, {vr(TR + 64 * (T - 2) + 4 * j, 4)} offset:{1024 * j + 16384 * (T - 2)}')
        a(f'v_mov_b32 v5, {T + 1}')
        a(f'ds_write_b32 v7, v5 offset:{F_LAND}')
    pv(0)
    stamp(3)
    refill(2)
    stamp(5)
    pv(1)
    stamp(4)
    refill(3)
    stamp(6)
    pv(2)
    pv(3)
    stamp(7)
    PK, XX = 128, 160

    def l_reads():
        a(f'ds_read_b32 v{FLG}, v10 offset:{F_LSEQ}')
        a(f'ds_read_b128 v[172:175], v{vRL}')
        a(f'ds_read_b32 v168, v{vRM}')
    l_reads()
    for ap in range(8):
        t = PK + 4 * ap
        j = 2 * ap
        a(f'v_cvt_pk_bf16_f32 v{t}, v{O_ + j}, v{O_ + 16 + j}')
        a(f'v_cvt_pk_bf16_f32 v{t + 2}, v{O_ + j + 1}, v{O_ + 16 + j + 1}')
        a(f'v_cvt_pk_bf16_f32 v{t + 1}, v{O_ + 32 + j}, v{O_ + 48 + j}')
        a(f'v_cvt_pk_bf16_f32 v{t + 3}, v{O_ + 32 + j + 1}, v{O_ + 48 + j + 1}')
        a(f'v_permlane16_swap_b32 v{t}, v{t + 2}')
        a(f's_add_u32 s92, s96, {(8 * (ap // 2) + 2 * (ap % 2)) * 131072}')
        a(f'v_permlane16_swap_b32 v{t + 1}, v{t + 3}')
        a(f'buffer_store_dwordx4 {vr(t, 4)}, v{vST}, {S(R_WS)}, s92 offen sc1')
        xor_chain(XX + ap, range(t, t + 4))
        if ap % 2 == 1:
            k = ap // 2
            dpp('v_xor_b32', XX + 2 * k, XX + 2 * k, XX + 2 * k, 'row_ror:8', 0x3)
            dpp('v_xor_b32', XX + 2 * k, XX + 2 * k + 1, XX + 2 * k + 1, 'row_ror:8', 0xc)
        if ap % 4 == 3:
            m = ap // 4
            dpp('v_xor_b32', XX + 4 * m, XX + 4 * m, XX + 4 * m, 'row_half_mirror', 0x5)
            dpp('v_xor_b32', XX + 4 * m, XX + 4 * m + 2, XX + 4 * m + 2, 'row_half_mirror', 0xa)
            dpp('v_xor_b32', XX + 4 * m, XX + 4 * m, XX + 4 * m, 'quad_perm:[1,0,3,2]')
            dpp('v_xor_b32', 170 if m == 0 else XX + 4, XX + 4 * m, XX + 4 * m, 'quad_perm:[2,3,0,1]')
        if ap == 4:
            a('s_waitcnt lgkmcnt(0)')
            a(f'v_cmp_ne_u32 vcc, 1, v{FLG}')
            a('s_cbranch_vccnz L_lslow')
            a.label('L_lok')
            a('v_add_f32 v172, v172, v173')
            a('v_add_f32 v174, v174, v175')
            a('v_add_f32 v169, v172, v174')
            a(f'v_bitop3_b32 v171, v168, v169, s{S_TAG} {XOR3}')
    ex(0x2222222222222222)
    a(f'v_mov_b32 v170, v{XX + 4}')
    ex(0x3333333333333333)
    a('v_xor_b32 v171, v171, v170')
    a(f'buffer_store_dwordx4 v[168:171], v{vRC}, {S(R_WS)}, s97 offen sc1')
    if o.stamps:
        stamp(8)
        a('s_waitcnt vmcnt(0)')
        stamp(9)
        a('s_cmp_lg_u32 s3, 0')
        a('s_cbranch_scc1 L_end')
        dump_stamps(11, 1)
    a('s_endpgm')
    a.label('L_lslow')
    l_reads()
    a('s_waitcnt lgkmcnt(0)')
    a(f'v_cmp_ne_u32 vcc, 1, v{FLG}')
    a('s_cbranch_vccz L_lok')
    a(f's_sub_u32 s{S_CNT}, s{S_CNT}, 1')
    a('s_cbranch_scc0 L_lslow')
    a('s_branch L_lok')
    for t in range(4):
        a.label(f'L_ps{t}')
        a(f'v_cmp_ne_u32 vcc, 3, v{FLG}')
        a(f's_cbranch_vccz L_pr{t}')
        a('s_sleep 1')
        a(f's_sub_u32 s{S_CNT}, s{S_CNT}, 1')
        a(f's_cbranch_scc0 L_pp{t}')
        a(f's_branch L_pg{t}')
        a.label(f'L_pr{t}')
        if t > 0:
            for jq in range(4):
                a(f'ds_read_b128 {vr(44 + 4 * jq, 4)}, v{vAR} offset:{128 * t + 32 * jq}')
            a('s_waitcnt lgkmcnt(0)')
            a('s_nop 7')
            for blk in range(4):
                for j in range(16):
                    a(f'v_mul_f32 v{O_ + 16 * blk + j}, v{O_ + 16 * blk + j}, v{44 + j}')
        a(f's_branch L_pg{t}')

    a.label('L_comp')
    QA = 128
    vMW, vFW, vPW, vFR, vAW, vMR = 6, 7, 8, 10, 11, 9
    NM, LL = 12, 14
    SS, PKS, EX4, AA, AQ, WK = 32, 40, 44, 48, 56, 64
    NA = 8
    a('v_lshlrev_b32 v16, 2, v1')
    a(f'v_add_u32 v16, {FB}, v16')
    a('v_mov_b32 v17, 0')
    a('ds_write_b32 v16, v17')
    a('s_waitcnt lgkmcnt(0)')
    a('s_barrier')
    a(f's_load_dword s{S_TAG}, s[{R_WS}:{R_WS + 1}], {WS_EPOCH}')
    srd_ptr([R_CKV])
    consts()
    a(f's_add_u32 s63, s90, {65536 + 15 * 1024}')
    a('v_xor_b32 v21, 0xe0, v2')
    a(f'buffer_load_dwordx4 v[24:27], v21, {S(R_CKV)}, s63 offen nt')
    a('v_mov_b32 v20, 128')
    a('global_load_dword v100, v20, s[86:87] sc1')
    a(f's_add_u32 s6, s91, {16384 + 15 * 1024}')
    a('v_add_u32 v28, s6, v2')
    a('s_lshl_b32 s90, s4, 15')
    a('s_lshl_b32 s95, s3, 13')
    a('s_add_u32 s90, s90, s95')
    if WS_QA:
        a(f's_add_u32 s90, s90, {WS_QA}')
    a('s_add_u32 s92, s90, 4096')
    a('s_lshl_b32 s93, s3, 12')
    a('s_lshl_b32 s94, s4, 3')
    a('s_add_u32 s93, s93, s94')
    a(f's_add_u32 s93, s93, {WS_QAH}')
    a('v_lshrrev_b32 v16, 1, v1')
    a('v_lshlrev_b32 v16, 7, v16')
    a('s_and_b32 s94, s3, 1')
    a('s_lshl_b32 s94, s94, 7')
    a('v_xor_b32 v17, s94, v2')
    a(f's_add_u32 s95, s95, {SB}')
    a('v_add_u32 v17, s95, v17')
    for i in range(4):
        a(f'v_xor_b32 v{96 + i}, {32 * i}, v17')
    a('v_lshrrev_b32 v22, 5, v1')
    a('v_and_b32 v29, 1, v3')
    a('v_lshlrev_b32 v23, 4, v29')
    a('v_lshl_add_u32 v23, v22, 9, v23')
    a('v_bfe_u32 v18, v1, 3, 1')
    a('v_lshl_add_u32 v18, v18, 2, v4')
    a('v_lshl_add_u32 v18, v18, 5, v23')
    a('v_lshl_add_u32 v18, v11, 10, v18')
    a(f'v_add_u32 v18, {SB}, v18')
    a('v_bfe_u32 v20, v1, 2, 2')
    a('v_lshl_add_u32 v21, v4, 2, v20')
    a('v_lshl_add_u32 v19, v21, 10, v23')
    a('v_and_b32 v21, 14, v21')
    a('v_lshl_add_u32 v19, v21, 4, v19')
    a('v_add_u32 v19, s91, v19')
    for i in range(8):
        a(f'v_xor_b32 v{AA + i}, {32 * i}, v19')
        a(f'v_xor_b32 v{AQ + i}, {32 * i}, v18')
    a('v_and_b32 v20, 31, v1')
    a('s_lshl_b32 s95, s3, 2')
    a(f's_add_u32 s95, s95, {L_MAX}')
    a(f'v_lshl_add_u32 v{vMW}, v20, 4, s95')
    a(f'v_lshlrev_b32 v{vPW}, 9, v22')
    a(f'v_lshl_add_u32 v{vPW}, v11, 4, v{vPW}')
    a(f'v_lshl_add_u32 v{vPW}, v29, 3, v{vPW}')
    a('s_lshl_b32 s95, s3, 10')
    a(f's_add_u32 s95, s95, {L_P}')
    a(f'v_add_u32 v{vPW}, s95, v{vPW}')
    a(f'v_lshlrev_b32 v{vMR}, 4, v11')
    a(f'v_add_u32 v{vMR}, {L_MAX}, v{vMR}')
    a(f'v_lshlrev_b32 v{vAW}, 2, v11')
    a(f'v_add_u32 v{vAW}, {L_ALPHA}, v{vAW}')
    a(f'v_mov_b32 v{LL}, 0')
    a(f'v_mov_b32 v{LL + 1}, 0')
    a('v_mov_b32 v0, 1')
    a('v_mov_b32 v5, 2')
    a(f's_mov_b32 s98, {f32bits(float(o.thr))}')
    a('s_mov_b32 s96, 1')
    a('s_sub_u32 s94, s2, 128')
    a('s_lshl_b32 s94, s94, 7')
    a(f's_add_u32 s94, s94, {WS_HU}')
    a(f's_add_u32 s0, s{R_WS}, s94')
    a(f's_addc_u32 s1, s{R_WS + 1}, 0')
    get_tag()
    stamp(1)
    if o.sprio:
        a(f's_setprio {o.sprio}')
    HR_ = 30

    def q_row(i):
        a(f'buffer_load_dwordx4 {vr(QA + 4 * i, 4)}, v2, {S(R_WS)}, s{90 if i < 4 else 92} offen offset:{1024 * (i % 4)} sc1')
    a(f's_mov_b32 s{S_CNT}, {SPIN}')
    a.label('L_hu')
    a('s_load_dword s94, s[0:1], 0 glc')
    a('s_waitcnt lgkmcnt(0)')
    a(f's_cmp_eq_u32 s94, s{S_TAG}')
    a('s_cbranch_scc1 L_hugo')
    a(f's_sub_u32 s{S_CNT}, s{S_CNT}, 1')
    a('s_cbranch_scc0 L_hu')
    a.label('L_hugo')
    a(f's_mov_b32 s{S_CNT}, {SPIN}')
    a.label('L_qload')
    a(f'buffer_load_dwordx2 {vr(HR_, 2)}, v16, {S(R_WS)}, s93 offen sc1')
    for i in range(8):
        q_row(i)
    a(f'ds_write_b32 v{vFW}, v0 offset:{F_HUS}')
    stamp(8)
    a('s_waitcnt vmcnt(8)')
    a(f'v_bitop3_b32 v21, v{HR_}, v{HR_ + 1}, s{S_TAG} {XOR3}')
    for i in range(8):
        a(f's_waitcnt vmcnt({7 - i})')
        a(f'ds_write_b128 v{96 + i % 4}, {vr(QA + 4 * i, 4)} offset:{1024 * i}')
        xor_chain(19, ([19] if i else []) + list(range(QA + 4 * i, QA + 4 * i + 4)))
    for c in ('quad_perm:[1,0,3,2]', 'quad_perm:[2,3,0,1]', 'row_ror:4', 'row_ror:8'):
        dpp('v_xor_b32', 19, 19, 19, c)
        if c == 'quad_perm:[1,0,3,2]':
            a(f'v_xor_b32 v19, v19, v{HR_}')
    swap_step('v_xor_b32', 19, 20, 16)
    swap_step('v_xor_b32', 19, 20, 32)
    a('v_or_b32 v19, v19, v21')
    a('v_cmp_ne_u32 vcc, 0, v19')
    a('s_cbranch_vccz L_qdone')
    a(f's_sub_u32 s{S_CNT}, s{S_CNT}, 1')
    a('s_cbranch_scc0 L_qload')
    a.label('L_qdone')
    a(f'ds_write_b32 v{vFW}, v0 offset:{F_QST}')
    stamp(2)
    lds_wait(vFW, F_LAND, 1, 19)
    lds_wait(vFR, F_QST, 1, 19, 0)
    stamp(3)

    def a_read(m, buf):
        a(f'ds_read_b128 {vr(WK + 4 * (m % NA), 4)}, v{AA + m // 2} offset:{256 * (m % 2) + 16384 * buf}')

    def q_read(m):
        for hh in range(2):
            a(f'ds_read_b128 {vr(QA + 64 * hh + 4 * m, 4)}, v{AQ + m // 2} offset:{16384 * hh + 256 * (m % 2)}')

    def s_mfma(st, zero):
        for hh in range(2):
            mfma16(SS + 4 * hh, WK + 4 * (st % NA), QA + 64 * hh + 4 * st, zero and st == 0)
    for st in range(4):
        q_read(st)
        a_read(st, 0)
    for st in range(16):
        a(f's_waitcnt lgkmcnt({3 * min(3, 15 - st)})')
        s_mfma(st, True)
        if st + 4 < 16:
            q_read(st + 4)
            a_read(st + 4, 0)

    def max_xchg(lbl, floor):
        a('v_mov_b32 v18, s96')
        for hh in range(2):
            a(f'v_max3_f32 v{16 + hh}, v{SS + 4 * hh}, v{SS + 4 * hh + 1}, v{SS + 4 * hh + 2}')
            if floor:
                a(f'v_max3_f32 v{16 + hh}, v{16 + hh}, v{SS + 4 * hh + 3}, 0')
            else:
                a(f'v_max_f32 v{16 + hh}, v{16 + hh}, v{SS + 4 * hh + 3}')
        a('v_permlane16_swap_b32 v16, v17')
        a('v_max_f32 v16, v16, v17')
        swap_step('v_max_f32', 16, 17, 32)
        a(f'ds_write_b32 v{vMW}, v16')
        a(f'ds_write_b32 v{vFW}, v18 offset:{F_MSEQ}')
        a(f's_mov_b32 s{S_CNT}, {SPIN * 40}')
        a.label(lbl)
        a(f'ds_read_b32 v18, v{vFR} offset:{F_MSEQ}')
        a(f'ds_read_b128 {vr(WK, 4)}, v{vMR}')
        a(f'ds_read_b128 {vr(WK + 4, 4)}, v{vMR} offset:256')
        a('s_waitcnt lgkmcnt(0)')
        a('v_cmp_gt_u32 vcc, s96, v18')
        a(f's_cbranch_vccz {lbl}go')
        a(f's_sub_u32 s{S_CNT}, s{S_CNT}, 1')
        a(f's_cbranch_scc0 {lbl}')
        a.label(lbl + 'go')
        for hh in range(2):
            a(f'v_max3_f32 v{16 + hh}, v{WK + 4 * hh}, v{WK + 4 * hh + 1}, v{WK + 4 * hh + 2}')
            a(f'v_max_f32 v{16 + hh}, v{16 + hh}, v{WK + 4 * hh + 3}')
            for j in range(4):
                a(f'v_sub_f32 v{SS + 4 * hh + j}, v{SS + 4 * hh + j}, v{16 + hh}')

    def soft(t):
        g = []
        for hh in range(2):
            for j in range(4):
                g.append(f'v_exp_f32 v{EX4 + j}, v{SS + 4 * hh + j}')
            g.append(f'v_cvt_pk_bf16_f32 v{PKS + 2 * hh}, v{EX4}, v{EX4 + 1}')
            g.append(f'v_cvt_pk_bf16_f32 v{PKS + 2 * hh + 1}, v{EX4 + 2}, v{EX4 + 3}')
            g.append(f'ds_write_b64 v{vPW}, {vr(PKS + 2 * hh, 2)} offset:{4096 * t + 256 * hh}')
        return g

    def l_commit():
        for k in range(2):
            for hh in range(2):
                a(f'v_dot2_f32_bf16 v{LL + hh}, v{PKS + 2 * hh + k}, s{S_ONES}, v{LL + hh}')
    max_xchg('L_m0', False)
    for ins in soft(0):
        a(ins)
    a(f'ds_write_b32 v{vFW}, v5 offset:{F_PS}')
    a('ds_write_b128 v28, v[24:27]')
    a(f'ds_write2_b32 v{vAW}, v16, v17 offset0:128 offset1:144')
    for hh in range(2):
        a(f'v_sub_f32 v{NM + hh}, 0, v{16 + hh}')
    l_commit()
    stamp(4)
    PD = 6
    for t in range(1, 4):
        lbl = f'L_l{t}'
        a(f's_mov_b32 s{S_CNT}, {SPIN * 40}')
        for hh in range(2):
            for j in range(4):
                a(f'v_mov_b32 v{SS + 4 * hh + j}, v{NM + hh}')
        a.label(lbl)
        a(f'ds_read_b32 v18, v{vFW} offset:{F_LAND}')
        a('s_waitcnt lgkmcnt(0)')
        a(f'v_cmp_ge_u32 vcc, {t}, v18')
        a(f's_cbranch_vccz {lbl}go')
        a('s_sleep 1')
        a(f's_sub_u32 s{S_CNT}, s{S_CNT}, 1')
        a(f's_cbranch_scc0 {lbl}')
        a.label(lbl + 'go')
        for st in range(PD):
            a_read(st, t % 2)
        for st in range(16):
            a(f's_waitcnt lgkmcnt({min(PD - 1, 15 - st)})')
            s_mfma(st, False)
            if st + PD < 16:
                a_read(st + PD, t % 2)
        for k, ins in enumerate(soft(t)):
            a(ins)
            if k == 3:
                a(f'v_max3_f32 v19, v{SS}, v{SS + 1}, v{SS + 2}')
                a(f'v_max3_f32 v19, v{SS + 3}, v{SS + 4}, v19')
            if k == 10:
                a(f'v_max3_f32 v19, v{SS + 5}, v{SS + 6}, v19')
                a(f'v_max_f32 v19, v{SS + 7}, v19')
                a('v_cmp_lt_f32 vcc, s98, v19')
        a('s_cmp_eq_u64 vcc, 0')
        a('s_cselect_b32 s91, 2, 1')
        a('v_mov_b32 v18, s91')
        a(f'ds_write_b32 v{vFW}, v18 offset:{F_PS + 16 * t}')
        stamp(4 + t)
        a(f's_mov_b32 s{S_CNT}, {SPIN * 40}')
        a.label(f'L_c{t}')
        a(f'ds_read_b32 v18, v{vFR} offset:{F_PS + 16 * t}')
        a('s_waitcnt lgkmcnt(0)')
        a('v_cmp_ne_u32 vcc, 2, v18')
        a(f's_cbranch_vccnz L_cs{t}')
        a.label(f'L_cg{t}')
        l_commit()
    a('s_lshl_b32 s94, s4, 2')
    a('s_add_u32 s94, s94, 16')
    a(f'v_permlane16_swap_b32 v{LL}, v{LL + 1}')
    a(f'v_add_f32 v{LL}, v{LL}, v{LL + 1}')
    swap_step('v_add_f32', LL, LL + 1, 32)
    a(f'ds_write_b32 v{vMW}, v{LL}')
    a(f'ds_write_b32 v{vFW}, v0 offset:{F_LSEQ}')
    if o.rdelay:
        a(f's_sleep {o.rdelay}')
    arrive(0, 20, 21, 's94')
    a('s_lshl_b32 s94, s4, 7')
    a(f's_add_u32 s94, s94, {WS_FL + 128}')
    release(0, 20, 21, 31, 's94', 's_waitcnt vmcnt(0)')
    if o.stamps:
        stamp(9)
        a('s_cmp_lg_u32 s3, 0')
        a('s_cbranch_scc1 L_end')
        dump_stamps(10, 0)
    a('s_endpgm')
    for t in range(1, 4):
        a.label(f'L_cs{t}')
        a('v_cmp_eq_u32 vcc, 0, v18')
        a(f's_cbranch_vccz L_ex{t}')
        a(f's_sub_u32 s{S_CNT}, s{S_CNT}, 1')
        a(f's_cbranch_scc0 L_c{t}')
        a(f's_branch L_cg{t}')
        a.label(f'L_ex{t}')
        a('s_add_u32 s96, s96, 1')
        max_xchg(f'L_mx{t}', True)
        for hh in range(2):
            a(f'v_exp_f32 v{20 + hh}, -v{16 + hh}')
            a(f'v_sub_f32 v{NM + hh}, v{NM + hh}, v{16 + hh}')
            a(f'v_sub_f32 v{22 + hh}, 0, v{NM + hh}')
            a(f'v_mul_f32 v{LL + hh}, v{LL + hh}, v{20 + hh}')
        a(f'ds_write2_b32 v{vAW}, v20, v21 offset0:{32 * t} offset1:{32 * t + 16}')
        a(f'ds_write2_b32 v{vAW}, v22, v23 offset0:128 offset1:144')
        for ins in soft(t):
            a(ins)
        a('v_mov_b32 v18, 3')
        a(f'ds_write_b32 v{vFW}, v18 offset:{F_PS + 16 * t}')
        lds_wait(vFR, F_PS + 16 * t, 3, 18, 0)
        a(f's_branch L_cg{t}')
    a.label('L_end')
    a('s_endpgm')

    txt = HEADER
    txt += f'; @launch grid=(256,1,1) block=(512,1,1) lds={LDS_TOTAL}\n'
    txt += '.amdgcn_target "amdgcn-amd-amdhsa--gfx950"\n.text\n'
    txt += a.finalize()
    txt += f""".section .rodata,"a"
.p2align 6
.amdhsa_kernel {name}
  .amdhsa_next_free_vgpr 256
  .amdhsa_next_free_sgpr 102
  .amdhsa_accum_offset 256
  .amdhsa_group_segment_fixed_size 0
  .amdhsa_kernarg_size 104
  .amdhsa_user_sgpr_count 2
  .amdhsa_user_sgpr_kernarg_segment_ptr 1
  .amdhsa_system_sgpr_workgroup_id_x 1
.end_amdhsa_kernel
"""
    return txt


if __name__ == '__main__':
    o = Opt()
    for kv in sys.argv[2:]:
        k, v = kv.split('=')
        setattr(o, k, v.replace('+', ' ') if k == 'r64' else int(v))
    open(sys.argv[1], 'w').write(gen(o))
```

```python
import sys
sys.path.insert(0, 'dev')
from asmdsl import Asm
from layout5 import *

NAME = 'sequential_preLN__compressed_kv_cla__glu_gated_geglu__decode'
HEADER = open('cdna_kernels/' + NAME + '.s.ref').read().split('; Override launch')[0]
LDS_TOTAL = 163840
SB = 130048
L_P = 131072
FB = 162816
F_LAND, F_QST, F_MSEQ, F_DONE, F_LSEQ, F_HUS, F_PS = 0, 16, 32, 48, 64, 80, 96
L_MAX = FB + 512
L_ALPHA = L_P + 16384
L_MFIN = L_ALPHA + 512
A_WQ, A_WUK, A_WUV, A_WO, A_X, A_C, A_D = 0, 32768, 90112, 122880, 155648, 156672, 159744

R_X, R_WS, R_CKV, R_WQ, R_WUK, R_WUV, R_WO, R_WG, R_WU, R_WD, R_OUT, R_ACT = [8 + 4 * i for i in range(12)]
SIZES = {R_X: 4096, R_WS: WS_END, R_CKV: 32 << 20, R_WQ: 4 << 20, R_WUK: 4 << 20, R_WUV: 4 << 20, R_WO: 4 << 20,
         R_WG: 512 * 2752, R_WU: 512 * 2752, R_WD: 1376 * 1024, R_OUT: 4096, R_ACT: 43 * 256}
PTR = {R_X: 64, R_CKV: 66, R_WQ: 68, R_WUK: 70, R_WUV: 72, R_WO: 74, R_WG: 78, R_WU: 80, R_WD: 82, R_OUT: 84}
S_TAG, S_ONES, S_LO1, S_HI1, S_CNT, S_MASK = 56, 57, 58, 59, 60, 62
SPIN = 20000
XOR3 = 'bitop3:0x96'


class Opt:
    stamps = 0
    w0 = 3
    n0 = 8
    window = 8
    w3 = 16
    wwin = 8
    sleep = 1
    sleep_long = 6
    stsleep = 3
    thr = 60
    dbgwg = 192
    hold = 0
    dsleep = 1
    ddelay = 0
    gon = 56
    fine = 0
    hupos = 1
    edelay = 0
    efwin = 3
    sw = 1
    efgo = 0
    qdelay = 0
    hprio = 1
    nsamp = 2
    rdelay = 0
    lw = 8
    diag = 0
    rpos = 0
    owin = 1
    pvprio = 0
    sprio = 0
    r64 = 'nt'
    wgo = 0
    esleep = 0
    fdelay = 8
    now = 0
    w1 = 8
    n1 = 0


def vr(a, n):
    return f'v[{a}:{a + n - 1}]' if n > 1 else f'v{a}'


def S(base):
    return f's[{base}:{base + 3}]'


def gen(o):
    a = Asm()
    name = NAME + '_kernel'
    o.st3 = o.stamps == 3

    def ex(mask):
        if mask == -1:
            a('s_mov_b64 exec, -1')
        elif mask <= 64:
            a(f's_mov_b64 exec, {mask}')
        else:
            a(f's_mov_b32 exec_lo, 0x{mask & 0xffffffff:x}')
            a(f's_mov_b32 exec_hi, 0x{mask >> 32:x}')

    def dpp(op, d, s0, s1, ctrl, bank=0xf):
        a(f'{op}_dpp v{d}, v{s0}, v{s1} {ctrl} row_mask:0xf bank_mask:0x{bank:x}')

    def swap_step(op, v, t, which):
        a(f'v_mov_b32 v{t}, v{v}')
        a(f'v_permlane{which}_swap_b32 v{v}, v{t}')
        a(f'{op} v{v}, v{v}, v{t}')

    def fine2(r):
        if o.fine == 2:
            lb = a.uid('f2')
            a('s_cmp_lg_u32 s97, 0')
            a(f's_cbranch_scc1 {lb} ;noflush')
            a(f's_memtime s[{r}:{r + 1}]')
            a.label(lb)

    def f3(r):
        if o.fine == 3:
            a(f's_memtime s[{r}:{r + 1}]')

    def stamp(idx):
        if o.stamps:
            a(f's_memrealtime s[{64 + 2 * idx}:{65 + 2 * idx}]')

    def dump_stamps(n, grp, dbg=None):
        a('s_waitcnt lgkmcnt(0)')
        a('s_mov_b64 exec, -1')
        a('v_mov_b32 v3, 0')
        a('v_writelane_b32 v3, s100, 0')
        for i in range(1, n):
            a(f'v_writelane_b32 v3, s{64 + 2 * i}, {i}')
        a('v_mbcnt_lo_u32_b32 v4, -1, 0')
        a('v_lshlrev_b32 v4, 2, v4')
        a('s_lshl_b32 s90, s2, 7')
        a(f's_add_u32 s90, s90, {WS_STAMP + 64 * grp}')
        ex(0xffff)
        a(f'buffer_store_dword v3, v4, {S(R_WS)}, s90 offen')
        if o.stamps == 2 and dbg:
            lb = a.uid('nodbg')
            a('v_subrev_u32 v3, s100, v3')
            if dbg == 'h':
                a(f's_cmp_lg_u32 s2, {o.dbgwg}')
                a(f's_cbranch_scc1 {lb}')
                ex(0x7fe)
                a('global_store_dword v4, v3, s[86:87] offset:-4')
            else:
                a('s_cmp_lg_u32 s2, 0')
                a(f's_cbranch_scc1 {lb}')
                ex(0x3e8)
                a('v_mbcnt_lo_u32_b32 v4, exec_lo, 0')
                a('v_lshlrev_b32 v4, 2, v4')
                a('global_store_dword v4, v3, s[86:87] offset:40')
            a.label(lb)

    def xor_chain(tmp, regs, last=None):
        ops = [f'v{r}' for r in regs] + ([last] if last else [])
        a(f'v_bitop3_b32 v{tmp}, {ops[0]}, {ops[1]}, {ops[2]} {XOR3}')
        ops = ops[3:]
        while len(ops) >= 2:
            a(f'v_bitop3_b32 v{tmp}, v{tmp}, {ops[0]}, {ops[1]} {XOR3}')
            ops = ops[2:]
        if ops:
            a(f'v_xor_b32 v{tmp}, {ops[0]}, v{tmp}')

    def chk_sentinel(regs, tmp):
        rs = list(regs)
        a(f'v_max3_u32 v{tmp}, v{rs[0]}, v{rs[1]}, v{rs[2]}')
        rs = rs[3:]
        while len(rs) >= 2:
            a(f'v_max3_u32 v{tmp}, v{tmp}, v{rs[0]}, v{rs[1]}')
            rs = rs[2:]
        if rs:
            a(f'v_max_u32 v{tmp}, v{tmp}, v{rs[0]}')
        a(f'v_cmp_eq_u32 vcc, -1, v{tmp}')

    def poll(loads, check, sleep=None, wait='s_waitcnt vmcnt(0)'):
        L, Dn = a.uid('poll'), a.uid('pdone')
        a(f's_mov_b32 s{S_CNT}, {SPIN}')
        a.label(L)
        loads()
        a(wait)
        check()
        a(f's_cbranch_vccz {Dn}')
        sl = o.sleep if sleep is None else sleep
        if sl:
            a(f's_sleep {sl}')
        a(f's_sub_u32 s{S_CNT}, s{S_CNT}, 1')
        a(f's_cbranch_scc0 {L}')
        a.label(Dn)

    def lds_wait(addr, off, want, tmp, sleep=1):
        L, Dn = a.uid('lw'), a.uid('lwd')
        a(f's_mov_b32 s{S_CNT}, {SPIN * 40}')
        a.label(L)
        a(f'ds_read_b32 v{tmp}, v{addr} offset:{off}')
        a('s_waitcnt lgkmcnt(0)')
        a(f'v_cmp_gt_u32 vcc, {want}, v{tmp}')
        a(f's_cbranch_vccz {Dn}')
        if sleep:
            a(f's_sleep {sleep}')
        a(f's_sub_u32 s{S_CNT}, s{S_CNT}, 1')
        a(f's_cbranch_scc0 {L}')
        a.label(Dn)

    def mfma16(d, x, y, first):
        c = '0' if first else vr(d, 4)
        a(f'v_mfma_f32_16x16x32_bf16 {vr(d, 4)}, {vr(x, 4)}, {vr(y, 4)}, {c}')

    def srd(rs):
        for r in rs:
            a(f's_mov_b32 s{r + 2}, {SIZES[r]}')
            a(f's_mov_b32 s{r + 3}, 0x00020000')

    def srd_ptr(rs):
        for r in rs:
            if r == R_ACT:
                a(f's_add_u32 s{R_ACT}, s{R_WS}, {WS_ACT}')
                a(f's_addc_u32 s{R_ACT + 1}, s{R_WS + 1}, 0')
            else:
                a(f's_mov_b64 s[{r}:{r + 1}], s[{PTR[r]}:{PTR[r] + 1}]')

    def consts():
        a(f's_mov_b32 s{S_ONES}, 0x3f803f80')
        a(f's_mov_b32 s{S_LO1}, 0x3f80')
        a(f's_mov_b32 s{S_HI1}, 0x3f800000')
        a(f's_mov_b32 s{S_MASK}, 0xffff0000')

    def get_tag():
        a('s_waitcnt lgkmcnt(0)')
        a(f's_add_u32 s{S_TAG}, s{S_TAG}, 0x9e3779b9')

    def vF(d):
        a(f'v_bfe_u32 v{d}, v1, 2, 2')
        a(f'v_lshlrev_b32 v{d}, 8, v{d}')
        a(f'v_lshl_add_u32 v{d}, v3, 6, v{d}')
        a(f'v_lshl_add_u32 v{d}, v4, 4, v{d}')

    def tr64_addr(d, t):
        a(f'v_bfe_u32 v{t}, v1, 2, 2')
        a(f'v_lshl_add_u32 v{t}, v3, 3, v{t}')
        a(f'v_lshlrev_b32 v{d}, 6, v{t}')
        a(f'v_lshl_add_u32 v{d}, v4, 3, v{d}')

    def tr_op(dst, addr, off, tau):
        a(f'ds_read_b64_tr_b16 {vr(dst, 2)}, v{addr} offset:{off}')
        a(f'ds_read_b64_tr_b16 {vr(dst + 2, 2)}, v{addr} offset:{off + tau}')

    def red4_read(x, addr):
        ex(0xffffffff)
        for w in range(4):
            a(f'ds_read_b128 {vr(x + 4 * w, 4)}, v{addr} offset:{512 * w}')
        a('s_waitcnt lgkmcnt(2)')
        for i in range(4):
            a(f'v_add_f32 v{x + i}, v{x + i}, v{x + 4 + i}')
        a('s_waitcnt lgkmcnt(0)')
        for i in range(4):
            a(f'v_add_f32 v{x + 8 + i}, v{x + 8 + i}, v{x + 12 + i}')
        for i in range(4):
            a(f'v_add_f32 v{x + i}, v{x + i}, v{x + 8 + i}')

    def frag_addr(dst, t):
        a(f'v_bfe_u32 v{dst}, v1, 1, 2')
        a(f'v_lshlrev_b32 v{dst}, 6, v{dst}')
        a(f'v_bfe_u32 v{t}, v1, 3, 2')
        a(f'v_lshl_add_u32 v{dst}, v{t}, 4, v{dst}')
        a(f'v_and_b32 v{t}, 1, v1')
        a(f'v_lshl_add_u32 v{dst}, v{t}, 3, v{dst}')

    M4 = 0x000f000f000f000f

    def arrive(wave, ret, t0, off, sel='s3'):
        lb = a.uid('arr')
        a(f's_cmp_lg_u32 {sel}, {wave}')
        a(f's_cbranch_scc1 {lb} ;noflush')
        a(f'v_mov_b32 v{t0}, {off}')
        a(f'v_mov_b32 v{ret}, 1')
        ex(1)
        a(f'global_atomic_add v{ret}, v{t0}, v{ret}, s[86:87] sc0 sc1')
        ex(-1)
        a.label(lb)

    def release(wave, ret, t0, last, flag, wait=None):
        lb = a.uid('rel')
        a(f's_cmp_lg_u32 s3, {wave}')
        a(f's_cbranch_scc1 {lb} ;noflush')
        if wait:
            a(wait)
        a(f'v_readfirstlane_b32 s1, v{ret}')
        a(f's_and_b32 s1, s1, {last}')
        a(f's_cmp_lg_u32 s1, {last}')
        a(f's_cbranch_scc1 {lb} ;noflush')
        a('s_mov_b64 exec, -1')
        a(f'v_mbcnt_lo_u32_b32 v{t0}, -1, 0')
        a(f'v_lshlrev_b32 v{t0}, 2, v{t0}')
        a(f'v_mov_b32 v{ret}, s{S_TAG}')
        if isinstance(flag, int):
            a(f's_mov_b32 s1, {flag}')
            flag = 's1'
        ex(0xffffffff)
        a(f'buffer_store_dword v{ret}, v{t0}, {S(R_WS)}, {flag} offen sc1')
        ex(-1)
        a.label(lb)

    def flag_wait(flag, t0, sleep):
        if isinstance(flag, int):
            a(f's_mov_b32 s1, {flag}')
            flag = 's1'
        ex(1)
        poll(lambda: a(f'buffer_load_dword v{t0}, off, {S(R_WS)}, {flag} sc1'),
             lambda: a(f'v_cmp_ne_u32 vcc, s{S_TAG}, v{t0}'), sleep)
        ex(-1)

    a(f'.globl {name}\n.p2align 8\n.type {name},@function')
    a.label(name)
    if o.stamps or o.diag:
        a('s_memrealtime s[100:101]')
    a('s_cmp_ge_u32 s2, 256')
    a('s_cbranch_scc1 L_end')
    a('s_load_dwordx16 s[64:79], s[0:1], 0')
    a('s_load_dwordx8 s[80:87], s[0:1], 64')
    a(f's_load_dwordx2 s[{R_WS}:{R_WS + 1}], s[0:1], 96')
    a('v_and_b32 v1, 63, v0')
    a('v_lshrrev_b32 v2, 6, v0')
    a('v_readfirstlane_b32 s3, v2')
    a('v_lshlrev_b32 v2, 4, v1')
    a('v_lshrrev_b32 v3, 4, v1')
    a('v_and_b32 v4, 3, v1')
    a('v_and_b32 v11, 15, v1')
    srd([R_WS, R_X])
    a('s_cmp_ge_u32 s2, 128')
    a('s_cbranch_scc1 L_att')

    srd([R_WQ, R_WUK])
    a('s_and_b32 s4, s2, 7')
    a('s_lshl_b32 s4, s4, 2')
    a('s_bfe_u32 s5, s2, 0x20003')
    a('s_add_u32 s4, s4, s5')
    a('s_lshr_b32 s5, s2, 5')
    a('s_lshl_b32 s6, s4, 8')
    a('v_lshlrev_b32 v5, 1, v3')
    a('v_xor_b32 v5, v5, v11')
    a('v_lshlrev_b32 v5, 4, v5')
    a('v_lshl_add_u32 v6, v3, 13, v5')
    a('v_xor_b32 v7, 0x80, v6')
    a('v_xor_b32 v8, v3, v11')
    a('v_lshlrev_b32 v8, 4, v8')
    a('v_lshl_add_u32 v8, v3, 13, v8')
    a('s_lshl_b32 s90, s5, 20')
    a('s_lshl_b32 s91, s3, 17')
    a('s_add_u32 s90, s90, s91')
    a('s_add_u32 s90, s90, s6')
    a('s_lshl_b32 s91, s3, 12')
    a('s_mov_b32 m0, s91')
    a('v_bfe_u32 v10, v1, 2, 2')
    a('v_lshlrev_b32 v10, 6, v10')
    a('v_lshl_add_u32 v10, v4, 10, v10')
    a('v_lshl_add_u32 v10, v3, 4, v10')
    a('s_lshl_b32 s93, s5, 8')
    XS, XO = 12, 28
    a('s_waitcnt lgkmcnt(0)')
    srd_ptr([R_X, R_WQ, R_WUK])
    a('s_cmp_lg_u32 s3, 0')
    a('s_cbranch_scc1 L_nox')
    for i in range(4):
        a(f'buffer_load_dwordx4 {vr(XS + 4 * i, 4)}, v10, {S(R_X)}, 0 offen offset:{256 * i}')
    a(f'buffer_load_dwordx4 {vr(XO, 4)}, v10, {S(R_X)}, s93 offen')
    a.label('L_nox')
    for i in range(4):
        a(f's_add_u32 s92, s90, {i * 32768}')
        a(f'buffer_load_dwordx4 v{6 + i // 2}, {S(R_WQ)}, s92 offen nt lds')
        if i < 3:
            a('s_add_u32 m0, m0, 1024')
    a('s_barrier')
    a('s_cmp_lt_u32 s3, 4')
    a('s_cbranch_scc1 L_nouk')
    a('s_lshl_b32 s91, s3, 17')
    a('s_add_u32 s90, s90, s91')
    a(f's_sub_u32 s90, s90, {8 << 17}')
    a('s_lshl_b32 s91, s3, 13')
    a(f's_add_u32 m0, s91, {A_WUK - 32768}')
    for i in range(8):
        if i % 2 == 0:
            a(f'v_xor_b32 v9, {64 * (i // 2)}, v8')
        a(f's_add_u32 s92, s90, {i * 32768}')
        a(f'buffer_load_dwordx4 v9, {S(R_WUK)}, s92 offen nt lds')
        if i < 7:
            a('s_add_u32 m0, m0, 1024')
    a.label('L_nouk')
    a(f's_load_dword s{S_TAG}, s[{R_WS}:{R_WS + 1}], {WS_EPOCH}')
    srd_ptr([R_WUV, R_WO, R_WG, R_WU, R_ACT])
    consts()
    stamp(1)
    a('s_cmp_lg_u32 s3, 0')
    a('s_cbranch_scc1 L_noln')
    a('s_waitcnt vmcnt(5)')
    for i in range(16):
        a(f'v_dot2_f32_bf16 v34, v{XS + i}, s{S_ONES}, {"0" if i == 0 else "v34"}')
        a(f'v_dot2_f32_bf16 v35, v{XS + i}, v{XS + i}, {"0" if i == 0 else "v35"}')
    for c in ('row_ror:4', 'row_ror:8'):
        dpp('v_add_f32', 34, 34, 34, c)
        dpp('v_add_f32', 35, 35, 35, c)
    for wh in (16, 32):
        a('v_mov_b32 v12, v34')
        a('v_mov_b32 v13, v35')
        a(f'v_permlane{wh}_swap_b32 v34, v12')
        a(f'v_permlane{wh}_swap_b32 v35, v13')
        a('v_add_f32 v34, v34, v12')
        a('v_add_f32 v35, v35, v13')
    a('v_mul_f32 v34, 0x3b000000, v34')
    a('v_mul_f32 v35, 0x3b000000, v35')
    a('v_fma_f32 v35, -v34, v34, v35')
    a('v_max_f32 v35, 0, v35')
    a('v_add_f32 v35, 0x3727c5ac, v35')
    a('v_rsq_f32 v35, v35')
    a(f'v_mul_f32 v35, {QSCALE_BITS}, v35')
    a('v_mul_f32 v34, v34, v35')
    a('s_waitcnt vmcnt(4)')
    for i in range(4):
        a(f'v_lshlrev_b32 v12, 16, v{XO + i}')
        a(f'v_and_b32 v13, s{S_MASK}, v{XO + i}')
        a('v_fma_f32 v12, v12, v35, -v34')
        a('v_fma_f32 v13, v13, v35, -v34')
        a(f'v_cvt_pk_bf16_f32 v{XO + i}, v12, v13')
    a(f'v_add_u32 v12, {A_X}, v2')
    a(f'ds_write_b128 v12, {vr(XO, 4)}')
    a.label('L_noln')
    srd([R_WUV, R_WO, R_WG, R_WU, R_ACT])
    a('s_getpc_b64 s[94:95]')
    a.label('L_pc')
    a(f's_sub_u32 s94, s94, L_pc-{name}')
    a('s_subb_u32 s95, s95, 0')
    a('s_andn2_b32 s92, s2, 7')
    a('s_add_u32 s92, s92, s3')
    a('s_lshl_b32 s92, s92, 8')
    a('v_lshl_add_u32 v32, v1, 2, s92')
    a(f'v_min_u32 v32, L_end-{name}, v32')
    a('global_load_dword v33, v32, s[94:95]')
    for i in range(4):
        a(f'v_mov_b32 v{36 + i}, -1')
    a('s_lshl_b32 s92, s2, 3')
    a('s_add_u32 s92, s92, s3')
    a('s_mul_i32 s92, s92, 192')
    a(f's_add_u32 s92, s92, {WS_CLEAN}')
    ex(0xfff)
    a(f'buffer_store_dwordx4 v[36:39], v2, {S(R_WS)}, s92 offen sc1')
    ex(-1)
    a('v_bfe_u32 v40, v1, 2, 3')
    a('v_lshlrev_b32 v40, 1, v40')
    a('v_bfe_u32 v41, v1, 1, 1')
    a('s_lshl_b32 s92, s3, 1')
    a(f'v_bitop3_b32 v40, v40, v41, s92 {XOR3}')
    a('v_lshlrev_b32 v40, 4, v40')
    a('v_bfe_u32 v41, v1, 2, 2')
    a('v_lshl_add_u32 v41, v3, 3, v41')
    a('v_lshl_add_u32 v40, v41, 8, v40')
    a('v_and_b32 v41, 1, v1')
    a('v_lshl_add_u32 v40, v41, 3, v40')
    a('v_lshlrev_b32 v41, 8, v3')
    a('v_lshl_add_u32 v41, v4, 4, v41')
    a(f'v_add_u32 v41, {A_X}, v41')
    a('v_lshlrev_b32 v42, 6, v3')
    a('v_lshl_add_u32 v42, v4, 4, v42')
    a('s_lshl_b32 s96, s4, 13')
    if WS_QP:
        a(f's_add_u32 s96, s96, {WS_QP}')
    a('s_lshl_b32 s92, s5, 11')
    a('s_add_u32 s97, s96, s92')
    a('s_lshl_b32 s92, s3, 8')
    a('s_add_u32 s97, s97, s92')
    get_tag()
    stamp(2)
    a('v_bfe_u32 v43, v1, 2, 2')
    a('v_lshlrev_b32 v43, 11, v43')
    a('v_lshl_add_u32 v43, v3, 7, v43')
    a('v_lshl_add_u32 v43, v4, 4, v43')
    a('s_cmp_lt_u32 s3, 4')
    a('s_cbranch_scc1 L_wq_lo')
    a('s_waitcnt vmcnt(10)')
    a('s_branch L_wq_hi')
    a.label('L_wq_lo')
    a('s_waitcnt vmcnt(2)')
    a.label('L_wq_hi')
    a('s_barrier')
    W1, XF, AC = 12, 44, 60
    for t in range(4):
        tr_op(W1 + 4 * t, 40, A_WQ + 8192 * t, 1024)
        a(f'ds_read_b128 {vr(XF + 4 * t, 4)}, v41 offset:{64 * t}')
    for t in range(4):
        a(f's_waitcnt lgkmcnt({3 * (3 - t)})')
        mfma16(AC, W1 + 4 * t, XF + 4 * t, t == 0)
    a(f'v_cvt_pk_bf16_f32 v64, v{AC}, v{AC + 1}')
    a(f'v_cvt_pk_bf16_f32 v65, v{AC + 2}, v{AC + 3}')
    a(f'v_bitop3_b32 v66, v64, v65, s{S_TAG} {XOR3}')
    ex(M4)
    a(f'buffer_store_dwordx4 v[64:67], v42, {S(R_WS)}, s97 offen sc1')
    ex(-1)
    stamp(3)
    UK, Q, AC2, FR = 68, 100, 132, 140

    def a2_loads():
        for n in range(8):
            a(f'buffer_load_dwordx4 {vr(Q + 4 * n, 4)}, v43, {S(R_WS)}, s96 offen offset:{512 * (n // 2) + 64 * (n % 2)} sc1')
    a('s_cmp_lt_u32 s3, 4')
    a('s_cbranch_scc1 L_a2')
    a('s_waitcnt vmcnt(0)')
    a('s_barrier')
    a('s_branch L_a_done')
    a.label('L_a2')
    a('s_waitcnt vmcnt(0)')
    if o.qdelay:
        a(f's_sleep {o.qdelay}')
    a2_loads()
    a('v_lshrrev_b32 v12, 2, v11')
    a('v_lshl_add_u32 v12, v12, 3, v4')
    a('v_lshlrev_b32 v12, 8, v12')
    a('v_xor_b32 v13, v3, v11')
    a('v_lshl_add_u32 v12, v13, 4, v12')
    a('s_lshl_b32 s92, s3, 13')
    a(f's_add_u32 s92, s92, {A_WUK}')
    a('v_add_u32 v12, s92, v12')
    a('s_barrier')
    for t in range(4):
        a(f'v_xor_b32 v13, {64 * t}, v12')
        for sub in range(2):
            a(f'ds_read_b128 {vr(UK + 16 * sub + 4 * t, 4)}, v13 offset:{1024 * sub}')
    a('v_lshlrev_b32 v15, 8, v4')
    a('v_lshl_add_u32 v15, v3, 4, v15')
    a('s_lshl_b32 s91, s3, 6')
    a(f's_add_u32 s91, s91, {A_C}')
    a('v_add_u32 v15, s91, v15')
    a(f'v_add_u32 v16, {A_C}, v2')
    a('v_lshlrev_b32 v20, 15, v3')
    a('v_lshl_add_u32 v20, v11, 4, v20')
    a('v_lshlrev_b32 v21, 3, v3')
    a('s_lshl_b32 s91, s4, 10')
    a('s_lshl_b32 s92, s5, 8')
    a('s_add_u32 s92, s92, s91')
    a('s_lshr_b32 s93, s92, 1')
    if WS_QA:
        a(f's_add_u32 s92, s92, {WS_QA}')
    a(f's_add_u32 s93, s93, {WS_QAH}')
    a(f's_cmp_lt_u32 s5, {o.nsamp}')
    a('s_cselect_b32 s98, s3, 99')
    a('v_lshlrev_b32 v24, 7, v1')
    a(f'v_mov_b32 v25, s{S_TAG}')
    a(f's_mov_b32 s{S_CNT}, {SPIN}')
    a('s_branch L_a2chk')
    a.label('L_a2poll')
    a2_loads()
    a.label('L_a2chk')
    for n in range(8):
        a(f's_waitcnt vmcnt({7 - n})')
        a(f'v_bitop3_b32 v{Q + 4 * n + 2}, v{Q + 4 * n}, v{Q + 4 * n + 1}, v{Q + 4 * n + 2} {XOR3}')
    a(f'v_max3_u32 v17, v{Q + 2}, v{Q + 6}, v{Q + 10}')
    a(f'v_min3_u32 v18, v{Q + 2}, v{Q + 6}, v{Q + 10}')
    a(f'v_max3_u32 v17, v17, v{Q + 14}, v{Q + 18}')
    a(f'v_min3_u32 v18, v18, v{Q + 14}, v{Q + 18}')
    a(f'v_max3_u32 v17, v17, v{Q + 22}, v{Q + 26}')
    a(f'v_min3_u32 v18, v18, v{Q + 22}, v{Q + 26}')
    a(f'v_max3_u32 v17, v17, v{Q + 30}, s{S_TAG}')
    a(f'v_min3_u32 v18, v18, v{Q + 30}, s{S_TAG}')
    a('v_cmp_ne_u32 vcc, v17, v18')
    a('s_cbranch_vccz L_a2go')
    a(f's_sub_u32 s{S_CNT}, s{S_CNT}, 1')
    a('s_cbranch_scc0 L_a2poll')
    a.label('L_a2go')
    if o.st3:
        a('s_memrealtime s[72:73]')
    stamp(4)
    arrive(3, 22, 23, 0, 's98')
    a('s_waitcnt lgkmcnt(0)')
    for n in range(8):
        for sub in range(2):
            d = AC2 + 4 * sub
            c = '0' if n == 0 else vr(d, 4)
            a(f'v_mfma_f32_16x16x16_bf16 {vr(d, 4)}, {vr(UK + 16 * sub + 2 * n, 2)}, {vr(Q + 4 * n, 2)}, {c}')
    for c in ('row_ror:4', 'row_ror:8'):
        for i in range(8):
            dpp('v_add_f32', AC2 + i, AC2 + i, AC2 + i, c)
    for i in range(4):
        a(f'v_cvt_pk_bf16_f32 v{FR + i}, v{AC2 + 2 * i}, v{AC2 + 2 * i + 1}')
    ex(M4)
    a(f'ds_write_b128 v15, {vr(FR, 4)}')
    ex(-1)
    a('s_cmp_lg_u32 s98, 3')
    a('s_cbranch_scc1 L_norel')
    a('s_waitcnt vmcnt(0)')
    a('v_readfirstlane_b32 s1, v22')
    a(f's_and_b32 s1, s1, {32 * o.nsamp - 1}')
    a(f's_cmp_lg_u32 s1, {32 * o.nsamp - 1}')
    a('s_cbranch_scc1 L_norel')
    a(f's_mov_b32 s1, {WS_HU}')
    a(f'buffer_store_dword v25, v24, {S(R_WS)}, s1 offen sc1')
    a(f's_mov_b32 s1, {WS_HU + 8192}')
    a(f'buffer_store_dword v25, v24, {S(R_WS)}, s1 offen sc1')
    a.label('L_norel')
    a('s_waitcnt lgkmcnt(0)')
    a.label('L_a_done')
    a('s_barrier')
    a('s_cmp_lg_u32 s3, 0')
    a('s_cbranch_scc1 L_a_pub')
    a(f'ds_read_b128 {vr(FR, 4)}, v16')
    a('s_waitcnt lgkmcnt(0)')
    a(f'buffer_store_dwordx4 {vr(FR, 4)}, v20, {S(R_WS)}, s92 offen sc1')
    xor_chain(18, range(FR, FR + 4))
    for c in ('quad_perm:[1,0,3,2]', 'quad_perm:[2,3,0,1]', 'row_ror:4', 'row_ror:8'):
        dpp('v_xor_b32', 18, 18, 18, c)
    a(f'v_xor_b32 v19, s{S_TAG}, v18')
    ex(0x0001000100010001)
    a(f'buffer_store_dwordx2 v[18:19], v21, {S(R_WS)}, s93 offen sc1')
    ex(-1)
    stamp(5)
    a.label('L_a_pub')
    a('s_and_b32 s7, s2, 7')
    a('s_lshr_b32 s63, s2, 3')
    a('v_lshl_add_u32 v6, v3, 18, v5')
    a('v_xor_b32 v7, 0x80, v6')
    a('s_lshl_b32 s0, s5, 20')
    a('s_add_u32 s0, s0, s6')
    a('s_mov_b32 s61, 0')
    D, WL, CA, OPC, OPD = 16, 32, 40, 64, 96
    a('s_and_b32 s94, s3, 3')
    a('s_lshr_b32 s95, s3, 2')
    a('v_bfe_u32 v56, v1, 2, 3')
    a('v_lshlrev_b32 v56, 1, v56')
    a('s_lshl_b32 s92, s94, 2')
    a(f'v_bitop3_b32 v56, v56, v4, s92 {XOR3}')
    a('v_lshlrev_b32 v56, 4, v56')
    a('v_bfe_u32 v58, v1, 2, 2')
    a('v_lshl_add_u32 v58, v3, 3, v58')
    a('v_lshl_add_u32 v56, v58, 8, v56')
    a(f'v_add_u32 v56, {A_WUV}, v56')
    tr64_addr(57, 58)
    a('s_lshl_b32 s91, s94, 13')
    a(f's_add_u32 s91, s91, {A_WO}')
    a('v_add_u32 v57, s91, v57')
    a('v_and_b32 v5, 31, v1')
    a('v_lshlrev_b32 v5, 11, v5')
    a('s_lshl_b32 s90, s94, 16')
    a('s_lshl_b32 s91, s5, 9')
    a('s_add_u32 s90, s90, s91')
    a('s_lshl_b32 s91, s4, 4')
    a('s_add_u32 s90, s90, s91')
    a(f's_add_u32 s90, s90, {WS_REC}')
    a('s_lshl_b32 s96, s4, 2')
    a('s_add_u32 s96, s96, s5')
    a('s_lshl_b32 s96, s96, 2')
    a('s_add_u32 s96, s96, s94')
    a('s_lshl_b32 s91, s96, 13')
    a('s_lshl_b32 s93, s95, 12')
    a('s_add_u32 s91, s91, s93')
    a(f's_add_u32 s91, s91, {WS_OP}')
    a('s_lshl_b32 s92, s95, 4')
    a('v_lshlrev_b32 v48, 4, v11')
    a('v_lshl_add_u32 v48, v3, 1, v48')
    a('s_mul_i32 s93, s3, 272')
    a(f's_add_u32 s93, s93, {A_C}')
    a('v_add_u32 v48, s93, v48')
    a('v_and_b32 v49, 7, v1')
    a('v_mul_u32_u24 v49, 272, v49')
    a('v_lshl_add_u32 v49, v3, 4, v49')
    a(f'v_add_u32 v49, {A_C}, v49')
    a('v_lshlrev_b32 v50, 6, v3')
    a('v_lshl_add_u32 v50, v4, 4, v50')
    a('s_lshl_b32 s98, s4, 12')
    a('s_lshl_b32 s93, s94, 10')
    a('s_add_u32 s98, s98, s93')
    a('s_lshl_b32 s93, s5, 8')
    a('s_add_u32 s98, s98, s93')
    a(f's_add_u32 s98, s98, {WS_CP}')
    a('v_add_u32 v51, s92, v3')
    a('v_lshlrev_b32 v51, 2, v51')
    a('v_cmp_eq_u32 s[88:89], s95, v3')
    vF(128)
    a('v_lshlrev_b32 v129, 7, v4')
    a('v_lshl_add_u32 v129, v3, 4, v129')
    a('s_lshl_b32 s93, s94, 9')
    a(f's_add_u32 s93, s93, {A_D}')
    a('v_add_u32 v129, s93, v129')
    a('v_bfe_u32 v130, v1, 1, 2')
    a('v_lshlrev_b32 v130, 7, v130')
    a('v_bfe_u32 v9, v1, 3, 2')
    a('v_lshl_add_u32 v130, v9, 5, v130')
    a('v_and_b32 v9, 1, v1')
    a('v_lshl_add_u32 v130, v9, 4, v130')
    a(f'v_add_u32 v130, {A_D}, v130')
    a('v_lshlrev_b32 v131, 3, v1')
    a('s_lshl_b32 s6, s7, 14')
    a('s_lshl_b32 s93, s94, 12')
    a('s_add_u32 s6, s6, s93')
    a(f's_add_u32 s6, s6, {WS_CP}')
    a('s_lshl_b32 s99, s7, 12')
    a('s_lshl_b32 s93, s63, 8')
    a('s_add_u32 s99, s99, s93')
    a(f's_add_u32 s99, s99, {WS_HP}')
    a('v_lshrrev_b32 v8, 2, v1')
    a('s_cmp_lt_u32 s3, 4')
    a('s_cbranch_scc1 L_wlo')
    a('s_mov_b32 s61, 0')
    tr64_addr(58, 59)

    def go_wait(extra=0):
        a('s_lshl_b32 s96, s2, 7')
        a(f's_add_u32 s96, s96, {WS_GO}')
        ex(1)
        poll(lambda: a(f'buffer_load_dword v9, off, {S(R_WS)}, s96 sc1'), lambda: a(f'v_cmp_ne_u32 vcc, s{S_TAG}, v9'), 3)
        ex(-1)
    a('s_cmp_lt_u32 s2, 48')
    a('s_cbranch_scc1 L_E1')
    a.label('L_wnone')
    a('s_barrier')
    a('s_branch L_cstart')
    OP = 64
    H, XR, HA, X4, EA = 16, 128, 140, 148, 164
    EW, ES, ER, ESR, EST, EG, ECS = 180, 181, 182, 183, 184, 185, 186
    a.label('L_E1')
    a('s_mul_i32 s93, s7, 6')
    a('s_add_u32 s63, s63, s93')
    a('s_cmp_ge_u32 s63, 43')
    a('s_cbranch_scc1 L_wnone')
    a('s_mov_b32 s61, 1')
    if o.efgo == 1:
        go_wait()
    a('v_mul_u32_u24 v8, 2752, v8')
    a('v_lshl_add_u32 v8, v4, 4, v8')
    a(f's_mul_i32 s99, s94, {128 * 2752}')
    a('s_lshl_b32 s93, s63, 6')
    a('s_add_u32 s99, s99, s93')
    a('s_lshl_b32 s6, s94, 14')
    a('s_mov_b32 m0, s6')
    a('v_bfe_u32 v9, v1, 2, 2')
    a('v_lshlrev_b32 v9, 6, v9')
    a('v_lshl_add_u32 v9, v4, 10, v9')
    a('v_lshl_add_u32 v9, v3, 4, v9')
    a('s_lshl_b32 s93, s94, 8')
    a(f'buffer_load_dwordx4 {vr(XR, 4)}, v9, {S(R_X)}, s93 offen')
    for mat in range(2):
        for i in range(8):
            a(f's_add_u32 s93, s99, {16 * i * 2752}')
            a(f's_waitcnt vmcnt({o.efwin - 1})')
            a(f'buffer_load_dwordx4 v8, {S(R_WG if mat == 0 else R_WU)}, s93 offen {o.r64} lds')
            a('s_add_u32 m0, m0, 1024')
    a('v_add_u32 v58, s6, v58')
    a(f'v_lshlrev_b32 v{EW}, 8, v4')
    a(f'v_lshl_add_u32 v{EW}, v3, 4, v{EW}')
    a(f'v_add_u32 v{EW}, s6, v{EW}')
    a(f'v_lshlrev_b32 v{ES}, 3, v4')
    a(f'v_lshl_add_u32 v{ES}, v3, 2, v{ES}')
    a(f'v_add_u32 v{ES}, s6, v{ES}')
    a('s_and_b32 s93, s3, 1')
    a('s_lshl_b32 s93, s93, 6')
    a(f'v_add_u32 v{EST}, s93, v1')
    a(f'v_lshrrev_b32 v{ESR}, 5, v{EST}')
    a(f'v_and_b32 v{ER}, 31, v{EST}')
    a(f'v_lshlrev_b32 v{ER}, 2, v{ER}')
    a(f'v_lshl_add_u32 v{ER}, v{ESR}, 8, v{ER}')
    a(f'v_lshlrev_b32 v{ESR}, 3, v{ESR}')
    a(f'v_lshlrev_b32 v{EST}, 1, v{EST}')
    vF(EG)
    for i in range(4):
        a(f'v_mov_b32 v{X4 + i}, s{S_ONES}')
    a('s_waitcnt vmcnt(0)')
    for t in range(4):
        for k in range(4):
            tr_op(OP + 16 * t + 4 * k, 58, 8192 * (k // 2) + 2048 * t + 32 * (k % 2), 256)
        a(f's_waitcnt lgkmcnt({4 if t < 3 else 0})')
    for t in range(4):
        for k in range(4):
            mfma16(EA + 4 * k, OP + 16 * t + 4 * k, X4, t == 0)
    for i in range(4):
        a(f'v_lshlrev_b32 v{132 + 2 * i}, 16, v{XR + i}')
        a(f'v_and_b32 v{133 + 2 * i}, s{S_MASK}, v{XR + i}')

    def e_lds_write():
        ex(M4)
        for k in range(4):
            a(f'ds_write_b128 v{EW}, {vr(EA + 4 * k, 4)} offset:{64 * k}')
        ex(-1)
    e_lds_write()
    a('s_branch L_wnone')
    a.label('L_wlo')
    a('s_lshl_b32 s93, s3, 15')
    a('s_add_u32 s0, s0, s93')
    a('s_lshl_b32 s93, s3, 13')
    a(f's_add_u32 m0, s93, {A_WUV}')
    a('v_lshlrev_b32 v8, 10, v8')
    a('v_lshl_add_u32 v8, v4, 4, v8')
    a('s_lshl_b32 s97, s7, 19')
    a('s_lshl_b32 s93, s3, 17')
    a('s_add_u32 s97, s97, s93')
    a('s_lshl_b32 s93, s63, 6')
    a('s_add_u32 s97, s97, s93')
    a(f's_add_u32 m0, m0, {A_WO - A_WUV}')
    for i in range(8):
        a(f's_add_u32 s93, s97, {i * 16384}')
        if i >= o.owin:
            a(f's_waitcnt vmcnt({o.owin - 1})')
        a(f'buffer_load_dwordx4 v8, {S(R_WO)}, s93 offen {o.r64} lds')
        if i < 7:
            a('s_add_u32 m0, m0, 1024')
    a(f's_sub_u32 m0, m0, {A_WO - A_WUV + 7168}')
    if o.wgo:
        go_wait()
        for t in range(4):
            for k in range(2):
                tr_op(OPD + 8 * t + 4 * k, 57, 2048 * t + 32 * k, 256)
            if t == 1:
                a('s_waitcnt lgkmcnt(2)')
    for i in range(8):
        a(f's_add_u32 s93, s0, {(16 * (i % 2) + i // 2) * 8192}')
        if not o.wgo:
            a(f's_waitcnt vmcnt({o.wwin - 1})')
        a(f'buffer_load_dwordx4 v{6 + (i // 2) % 2}, {S(R_WUV)}, s93 offen nt lds')
        if i < 7:
            a('s_add_u32 m0, m0, 1024')
    a('s_waitcnt vmcnt(0)')
    a('s_barrier')
    for t in range(4):
        for k in range(2):
            tr_op(OPC + 8 * t + 4 * k, 56, 8192 * t + 8 * k, 1024)
            if not o.wgo:
                tr_op(OPD + 8 * t + 4 * k, 57, 2048 * t + 32 * k, 256)
        a('s_waitcnt lgkmcnt(4)')
    a.label('L_cstart')
    stamp(6)
    a('s_lshl_b32 s96, s94, 7')
    a(f's_add_u32 s96, s96, {WS_FL + 128}')
    flag_wait('s96', 9, o.stsleep)
    stamp(7)
    a(f's_mov_b32 s{S_CNT}, {SPIN}')
    a.label('L_call')
    a(f'buffer_load_dwordx4 v[12:15], v5, {S(R_WS)}, s90 offen sc1')
    for i in range(4):
        a(f'buffer_load_dwordx4 {vr(D + 4 * i, 4)}, v2, {S(R_WS)}, s91 offen offset:{1024 * i} sc1')
    a(f's_sub_u32 s{S_CNT}, s{S_CNT}, 1')
    a('s_cbranch_scc1 L_cdone')
    a('s_waitcnt vmcnt(4)')
    xor_chain(10, [12, 13, 14, 15], f's{S_TAG}')
    a('v_cmp_ne_u32 vcc, 0, v10')
    a('s_cbranch_vccz L_crec')
    a('s_waitcnt vmcnt(0)')
    a('s_branch L_call')
    a.label('L_crec')
    a('v_cndmask_b32 v9, 0, v14, s[88:89]')
    a('v_mov_b32 v14, v12')
    for op, v in (('v_max_f32', 14), ('v_add_f32', 14)):
        for c in ('quad_perm:[1,0,3,2]', 'quad_perm:[2,3,0,1]', 'row_ror:4', 'row_ror:8'):
            dpp(op, v, v, v, c)
        swap_step(op, v, 15, 16)
        if op == 'v_max_f32':
            a('v_sub_f32 v12, v12, v14')
            a('v_exp_f32 v12, v12')
            a('v_mul_f32 v14, v12, v13')
    a('v_rcp_f32 v14, v14')
    a('v_mul_f32 v12, v12, v14')
    a('v_cvt_pk_bf16_f32 v12, v12, 0')
    for i in range(4):
        a(f'ds_bpermute_b32 v{WL + i}, v51, v12 offset:{16 * i}')
    a('s_waitcnt lgkmcnt(0)')
    for i in range(4):
        a(f'v_lshlrev_b32 v{WL + 4 + i}, 16, v{WL + i}')
    a('s_waitcnt vmcnt(0)')
    stamp(8)
    f3(66)
    xor_chain(9, [9] + list(range(D, D + 16)))
    steps = ['quad_perm:[1,0,3,2]', 'quad_perm:[2,3,0,1]', 'row_ror:4', 'row_ror:8', 16, 32]
    for i in range(4):
        for u in range(4):
            for e in range(2):
                c = '0' if i == 0 else f'v{CA + 2 * u + e}'
                a(f'v_dot2_f32_bf16 v{CA + 2 * u + e}, v{D + 4 * i + u}, v{WL + 4 * e + i}, {c}')
            if u % 2 == 1 and steps:
                st = steps.pop(0)
                if isinstance(st, str):
                    dpp('v_xor_b32', 9, 9, 9, st)
                    if st == 'row_ror:8':
                        a('v_mov_b32 v10, v9')
                else:
                    a(f'v_permlane{st}_swap_b32 v9, v10')
                    a('v_xor_b32 v9, v9, v10')
                    a('v_mov_b32 v10, v9')
    a('v_cmp_ne_u32 vcc, 0, v9')
    for k in range(4):
        a(f'v_permlane16_swap_b32 v{CA + 2 * k}, v{CA + 2 * k + 1}')
    a('s_cbranch_vccnz L_call')
    a.label('L_cdone')
    for k in range(4):
        a(f'v_add_f32 v{CA + 2 * k}, v{CA + 2 * k}, v{CA + 2 * k + 1}')
    for k in range(2):
        a(f'v_permlane32_swap_b32 v{CA + 4 * k}, v{CA + 4 * k + 2}')
    for k in range(2):
        a(f'v_add_f32 v{CA + 4 * k}, v{CA + 4 * k}, v{CA + 4 * k + 2}')
    a(f'v_cvt_pk_bf16_f32 v{CA}, v{CA}, v{CA + 4}')
    a(f'ds_write_b16 v48, v{CA}')
    a(f'ds_write_b16_d16_hi v48, v{CA} offset:8')
    f3(68)
    a('s_waitcnt lgkmcnt(0)')
    a('s_barrier')
    f3(70)
    a('s_cmp_ge_u32 s3, 4')
    a('s_cbranch_scc1 L_hi')
    for t in range(4):
        a(f'ds_read_b128 {vr(D + 4 * t, 4)}, v49 offset:{64 * t}')
    for t in range(4):
        a(f's_waitcnt lgkmcnt({3 - t})')
        for k in range(2):
            mfma16(CA + 4 * k, OPC + 8 * t + 4 * k, D + 4 * t, t == 0)
    for i in range(8):
        dpp('v_add_f32', CA + i, CA + i, CA + i, 'row_ror:4')
    for i in range(4):
        a(f'v_cvt_pk_bf16_f32 v{12 + i}, v{CA + 2 * i}, v{CA + 2 * i + 1}')
    ex(M4)
    a(f'buffer_store_dwordx4 v[12:15], v50, {S(R_WS)}, s98 offen sc1')
    ex(-1)
    stamp(9)
    f3(72)
    a('s_waitcnt vmcnt(0)')
    f3(74)
    if o.ddelay:
        a(f's_sleep {o.ddelay}')

    def d_loads():
        for i in range(4):
            a(f'buffer_load_dwordx4 {vr(D + 4 * i, 4)}, v128, {S(R_WS)}, s6 offen offset:{1024 * i} sc1')
    poll(d_loads, lambda: chk_sentinel(range(D, D + 16), 10), o.dsleep)
    stamp(10)
    f3(76)
    for t in range(4):
        for k in range(2):
            mfma16(CA + 4 * k, OPD + 8 * t + 4 * k, D + 4 * t, t == 0)
    for c in ('row_ror:4', 'row_ror:8'):
        for i in range(8):
            dpp('v_add_f32', CA + i, CA + i, CA + i, c)
    ex(M4)
    a(f'ds_write_b128 v129, {vr(CA, 4)}')
    a(f'ds_write_b128 v129, {vr(CA + 4, 4)} offset:64')
    ex(-1)
    a('s_waitcnt lgkmcnt(0)')
    a('s_barrier')
    a('s_cmp_lg_u32 s3, 0')
    a('s_cbranch_scc1 L_end')
    red4_read(D, 130)
    a(f'v_cvt_pk_bf16_f32 v{D}, v{D}, v{D + 1}')
    a(f'v_cvt_pk_bf16_f32 v{D + 1}, v{D + 2}, v{D + 3}')
    a(f'buffer_store_dwordx2 {vr(D, 2)}, v131, {S(R_WS)}, s99 offen sc1')
    f3(78)
    if o.stamps:
        a('s_memrealtime s[88:89]')
    a('s_waitcnt vmcnt(0)')
    if o.stamps:
        a('s_barrier')
    if o.st3:
        o.stamps = 1
    if o.stamps:
        dump_stamps(13, 0, 'a')
    a('s_endpgm')

    a.label('L_hi')
    a('s_cmp_eq_u32 s61, 0')
    a('s_cbranch_scc1 L_end')

    def e_lds_read():
        for w in range(4):
            a(f'ds_read_b32 v{H + 2 * w}, v{ER} offset:{16384 * w}')
            a(f'ds_read_b32 v{H + 2 * w + 1}, v{ER} offset:{16384 * w + 128}')
    e_lds_read()
    a('s_lshl_b32 s98, s63, 8')
    a('s_lshl_b32 s90, s94, 10')
    a(f's_add_u32 s90, s90, {WS_HP}')
    a('s_waitcnt lgkmcnt(0)')
    a(f'v_add_f32 v{ECS}, v{H}, v{H + 2}')
    a(f'v_add_f32 v{ECS + 1}, v{H + 1}, v{H + 3}')
    for w in range(2, 4):
        a(f'v_add_f32 v{ECS}, v{ECS}, v{H + 2 * w}')
        a(f'v_add_f32 v{ECS + 1}, v{ECS + 1}, v{H + 2 * w + 1}')
    a('s_barrier')
    a('s_barrier')
    if o.edelay:
        a(f's_sleep {o.edelay}')

    def e_loads():
        a('s_mov_b32 s92, s90')
        for r in range(8):
            a(f'buffer_load_dwordx4 {vr(H + 4 * r, 4)}, v{EG}, {S(R_WS)}, s92 offen sc1')
            if r < 7:
                a('s_add_u32 s92, s92, 4096')
    f3(66)
    poll(e_loads, lambda: chk_sentinel(range(H, H + 32), 10), 0)
    stamp(9)
    f3(68)
    a('s_add_u32 s93, s63, s3')
    a('s_cmp_lg_u32 s63, 0')
    a('s_cbranch_scc1 L_nohf ;noflush')
    a('s_cmp_lg_u32 s3, 7')
    a('s_cbranch_scc1 L_nohf ;noflush')
    a(f's_mov_b32 s1, {WS_FL + 768}')
    a(f'v_mov_b32 v188, s{S_TAG}')
    a('v_lshlrev_b32 v189, 2, v1')
    ex(0xffffffff)
    a(f'buffer_store_dword v188, v189, {S(R_WS)}, s1 offen sc1')
    ex(-1)
    a.label('L_nohf')
    for r in range(8):
        for u in range(4):
            for e in range(2):
                c = f'v{132 + 2 * u + e}' if r == 0 else f'v{HA + 2 * u + e}'
                a(f'v_dot2_f32_bf16 v{HA + 2 * u + e}, v{H + 4 * r + u}, s{S_LO1 + e}, {c}')
    f3(70)
    for i in range(4):
        a(f'v_cvt_pk_bf16_f32 v{X4 + i}, v{HA + 2 * i}, v{HA + 2 * i + 1}')
    for t in range(4):
        if t < 3:
            for i in range(4):
                a(f'v_mov_b32_dpp v{X4 + 4 * (t + 1) + i}, v{X4 + i} row_shl:{4 * (t + 1)} row_mask:0xf bank_mask:0xf bound_ctrl:0')
        for k in range(4):
            mfma16(EA + 4 * k, OP + 16 * t + 4 * k, X4 + 4 * t, t == 0)
        if t == 0:
            for i in range(4):
                a(f'v_dot2_f32_bf16 v9, v{X4 + i}, s{S_ONES}, {"0" if i == 0 else "v9"}')
                a(f'v_dot2_f32_bf16 v10, v{X4 + i}, v{X4 + i}, {"0" if i == 0 else "v10"}')
        if t == 1:
            for c in ('row_ror:4', 'row_ror:8'):
                dpp('v_add_f32', 9, 9, 9, c)
                dpp('v_add_f32', 10, 10, 10, c)
        if t == 2:
            a('v_permlane16_swap_b32 v9, v10')
            a('v_add_f32 v9, v9, v10')
            swap_step('v_add_f32', 9, 10, 32)
    ex(0x000f000f)
    f3(72)
    a(f'ds_write_b32 v{ES}, v9 offset:1024')
    e_lds_write()
    a('s_waitcnt lgkmcnt(0)')
    a('s_barrier')
    f3(74)
    a('s_cmp_ge_u32 s3, 6')
    a('s_cbranch_scc1 L_end')
    for w in range(4):
        a(f'ds_read_b64 v[{H + 8 + 2 * w}:{H + 9 + 2 * w}], v{ESR} offset:{16384 * w + 1024}')
    e_lds_read()
    a('s_waitcnt lgkmcnt(8)')
    for w in range(1, 4):
        a(f'v_add_f32 v{H + 8}, v{H + 8}, v{H + 8 + 2 * w}')
        a(f'v_add_f32 v{H + 9}, v{H + 9}, v{H + 9 + 2 * w}')
    MU, VA = H + 8, H + 9
    a(f'v_mul_f32 v{MU}, 0x3b000000, v{MU}')
    a(f'v_mul_f32 v{VA}, 0x3b000000, v{VA}')
    a(f'v_fma_f32 v{VA}, -v{MU}, v{MU}, v{VA}')
    a(f'v_max_f32 v{VA}, 0, v{VA}')
    a(f'v_add_f32 v{VA}, 0x3727c5ac, v{VA}')
    a(f'v_rsq_f32 v{VA}, v{VA}')
    a('s_waitcnt lgkmcnt(0)')
    for w in range(1, 4):
        a(f'v_add_f32 v{H}, v{H}, v{H + 2 * w}')
        a(f'v_add_f32 v{H + 1}, v{H + 1}, v{H + 2 * w + 1}')
    a(f'v_fma_f32 v16, -v{MU}, v{ECS}, v16')
    a(f'v_fma_f32 v17, -v{MU}, v{ECS + 1}, v17')
    a(f'v_mul_f32 v16, v16, v{VA}')
    a(f'v_mul_f32 v17, v17, v{VA}')
    a('v_mul_f32 v18, v16, v16')
    a('v_mov_b32 v19, 1.0')
    a('v_fmac_f32 v19, 0x3d372713, v18')
    a('v_mul_f32 v19, v19, v16')
    a(f'v_mul_f32 v19, {GELU_BITS}, v19')
    a('v_exp_f32 v19, v19')
    a('v_mul_f32 v16, v16, v17')
    a('v_add_f32 v19, 1.0, v19')
    a('v_rcp_f32 v19, v19')
    a('v_mul_f32 v16, v16, v19')
    a('v_mov_b32_dpp v17, v16 quad_perm:[1,1,3,3] row_mask:0xf bank_mask:0xf')
    a('v_cvt_pk_bf16_f32 v16, v16, v17')
    ex(0x5555555555555555)
    a(f'buffer_store_dword v16, v{EST}, {S(R_ACT)}, s98 offen sc1')
    f3(76)
    a.label('L_efend')
    if o.diag:
        a.label('L_diag')
        a('s_memrealtime s[90:91]')
        a('s_waitcnt lgkmcnt(0)')
        a('s_sub_u32 s90, s90, s100')
        a(f's_cmp_lt_u32 s90, {o.diag}')
        a('s_cbranch_scc1 L_diag')
    if o.stamps:
        stamp(10)
        a('s_cmp_lg_u32 s3, 4')
        a('s_cbranch_scc1 L_end')
        dump_stamps(11, 1)
    a('s_endpgm')

    a.label('L_att')
    srd([R_CKV])
    a('s_bfe_u32 s4, s2, 0x20001')
    a('s_bfe_u32 s5, s2, 0x40003')
    a('s_lshl_b32 s5, s5, 1')
    a('s_and_b32 s6, s2, 1')
    a('s_add_u32 s5, s5, s6')
    a('s_lshl_b32 s90, s4, 23')
    a('s_lshl_b32 s91, s5, 18')
    a('s_add_u32 s90, s90, s91')
    a('s_and_b32 s7, s3, 3')
    a('s_lshl_b32 s91, s7, 14')
    a('s_add_u32 s90, s90, s91')
    a('s_lshl_b32 s91, s7, 15')
    a('s_lshl_b32 s92, s7, 2')
    a(f's_add_u32 s92, s92, {FB}')
    a('v_mov_b32 v7, s92')
    a(f'v_lshlrev_b32 v10, 2, v4')
    a(f'v_add_u32 v10, {FB}, v10')
    a('s_cmp_lt_u32 s3, 4')
    a('s_cbranch_scc1 L_comp')
    a('s_mov_b32 s3, s7')
    VX, TR, O_ = 12, 128, 64
    for j in range(8):
        a(f'v_xor_b32 v{VX + j}, {32 * j}, v2')
    a('s_mov_b32 m0, s91')
    a('s_mov_b32 s93, 0')
    a('s_waitcnt lgkmcnt(0)')
    srd_ptr([R_CKV])
    BUF = (0, 1, 1, 0)
    TAL, vPR, vST, vRC, vRM, vRL, vAR = 20, 28, 29, 30, 31, 32, 33

    def pv_setup():
        a('v_bfe_u32 v40, v1, 2, 2')
        a('v_lshrrev_b32 v42, 5, v1')
        a('v_lshlrev_b32 v41, 2, v40')
        a('v_lshl_add_u32 v41, v42, 1, v41')
        a('v_and_b32 v43, 1, v3')
        a('v_lshlrev_b32 v44, 1, v43')
        a('v_bfe_u32 v45, v1, 1, 1')
        a('v_add_u32 v44, v44, v45')
        a('v_xor_b32 v44, v44, v41')
        a('v_lshlrev_b32 v41, 10, v41')
        a('v_lshl_add_u32 v41, v44, 4, v41')
        a('v_and_b32 v45, 1, v1')
        a('v_lshl_add_u32 v41, v45, 3, v41')
        a('s_lshl_b32 s95, s3, 8')
        a('v_add_u32 v41, s95, v41')
        for i in range(8):
            a(f'v_xor_b32 v{TAL + i}, {64 * (i % 4) + 65536 * (i // 4)}, v41')
        a(f'v_add_u32 v{vPR}, {L_P}, v2')
        a(f'v_lshlrev_b32 v{vAR}, 4, v42')
        a(f'v_add_u32 v{vAR}, {L_ALPHA}, v{vAR}')
        a('v_lshl_add_u32 v42, v42, 2, v43')
        a(f'v_lshlrev_b32 v{vST}, 17, v42')
        a(f'v_lshl_add_u32 v{vST}, v11, 4, v{vST}')
        a('v_lshl_add_u32 v42, v45, 4, v42')
        a('v_bfe_u32 v44, v1, 2, 1')
        a('v_lshl_add_u32 v42, v44, 3, v42')
        a('v_bfe_u32 v44, v1, 3, 1')
        a('v_lshl_add_u32 v42, v44, 1, v42')
        a(f'v_lshlrev_b32 v{vRM}, 2, v42')
        a(f'v_add_u32 v{vRM}, {L_MFIN}, v{vRM}')
        a(f'v_lshlrev_b32 v{vRC}, 4, v42')
        a(f'v_add_u32 v{vRL}, {L_MAX}, v{vRC}')
        a('s_lshl_b32 s96, s3, 2')
        a('s_add_u32 s96, s96, s4')
        a('s_lshl_b32 s96, s96, 13')
        a('s_lshl_b32 s95, s5, 8')
        a('s_add_u32 s96, s96, s95')
        a(f's_add_u32 s96, s96, {WS_OP}')
        a('s_lshl_b32 s97, s4, 16')
        a('s_lshl_b32 s95, s5, 11')
        a('s_add_u32 s97, s97, s95')
        a('s_lshl_b32 s95, s3, 9')
        a('s_add_u32 s97, s97, s95')
        a(f's_add_u32 s97, s97, {WS_REC}')
        a('v_add_u32 v9, s91, v2')
    rows = [(T, j) for T in range(3) for j in range(16) if not (T == 1 and j == 15)]
    landed = 0
    pub = {0: 16, 1: 31}

    def publish():
        for tt in list(pub):
            if landed >= pub[tt]:
                a(f'v_mov_b32 v5, {tt + 1}')
                a(f'ds_write_b32 v7, v5 offset:{F_LAND}')
                del pub[tt]

    def dma_row(j):
        a(f'buffer_load_dwordx4 v{VX + j // 2}, {S(R_CKV)}, s90 offen offset:{(j % 4) * 1024} nt lds')
    for n, (T, j) in enumerate(rows):
        w = o.w0 if n < o.n0 else o.window
        if n >= o.n0:
            lb = a.uid('fast')
            a('s_cmp_lg_u32 s93, 0')
            a(f's_cbranch_scc1 {lb}')
            if n % 2 == 0:
                a(f'ds_read_b32 v6, v10 offset:{F_HUS if o.sw == 1 else F_QST}')
            a(f's_waitcnt vmcnt({o.w1 - 1})')
            if n % 2 == 0:
                a('s_waitcnt lgkmcnt(0)')
                a('v_cmp_eq_u32 vcc, 0, v6')
                a('s_cmp_eq_u64 vcc, 0')
                a('s_cselect_b32 s93, 1, 0')
            a.label(lb)
        if n - landed >= w:
            a(f's_waitcnt vmcnt({w - 1})')
            landed = n - (w - 1)
        if n in (16 + o.w1, 31 + o.lw) and landed < n - (o.w1 if n < 31 else o.lw):
            k = o.w1 if n < 31 else o.lw
            a(f's_waitcnt vmcnt({k})')
            landed = n - k
        publish()
        if n == 20:
            get_tag()
            a('v_mov_b32 v35, 0')
        if n == o.gon and o.wgo:
            lb = a.uid('nogo')
            a('s_cmp_lg_u32 s3, 0')
            a(f's_cbranch_scc1 {lb}')
            a('s_sub_u32 s92, s2, 128')
            a('s_lshl_b32 s92, s92, 7')
            a(f's_add_u32 s92, s92, {WS_GO}')
            a(f'v_mov_b32 v6, s{S_TAG}')
            a('v_lshlrev_b32 v8, 2, v1')
            ex(0xffffffff)
            a(f'buffer_store_dword v6, v8, {S(R_WS)}, s92 offen sc1')
            ex(-1)
            a.label(lb)
        if T < 2:
            dma_row(j)
        else:
            a(f'buffer_load_dwordx4 {vr(TR + 64 * (T - 2) + 4 * j, 4)}, v{VX + j // 2}, {S(R_CKV)}, s90 offen offset:{(j % 4) * 1024} nt')
        last = j == 15 or (T == 1 and j == 14)
        if j % 4 == 3 or last:
            a(f's_add_u32 s90, s90, {4096 + 49152 if last else 4096}')
            if T < 2:
                a('s_add_u32 m0, m0, 4096')
        if n == o.w0 - 1:
            a(f's_load_dword s{S_TAG}, s[{R_WS}:{R_WS + 1}], {WS_EPOCH}')
            a('s_barrier')
            pv_setup()
        if n == 30:
            stamp(1)
    assert not pub
    stamp(2)
    if o.pvprio:
        a(f's_setprio {o.pvprio}')
    PF = 36
    BFS = (44, 48, 52, 56, 60, 12, 16)
    NB = len(BFS)
    DIST = 6
    FLG = 34

    def pv(t):
        seq = [(ks, blk) for ks in range(4) for blk in range(4)]

        def rd(n):
            ks, blk = seq[n]
            for tau in range(2):
                a(f'ds_read_b64_tr_b16 {vr(BFS[n % NB] + 2 * tau, 2)}, v{TAL + blk + 4 * (ks // 2)} offset:{32768 * (ks % 2) + 16384 * BUF[t] + 1024 * tau}')

        def p_rd(ks):
            a(f'ds_read_b128 {vr(PF + 4 * (ks % 2), 4)}, v{vPR} offset:{4096 * t + 1024 * ks}')
        a(f's_mov_b32 s{S_CNT}, {SPIN * 40}')
        a('s_mov_b32 s95, 2')
        a.label(f'L_pp{t}')
        a(f'ds_read_b32 v{FLG}, v10 offset:{F_PS + 16 * t}')
        a('s_waitcnt lgkmcnt(0)')
        a(f'v_cmp_ne_u32 vcc, s95, v{FLG}')
        a(f's_cbranch_vccnz L_ps{t}')
        a.label(f'L_pg{t}')
        p_rd(0)
        ops = ['P0']

        def issue_rd(n):
            rd(n)
            ops.extend([f'R{n}', f'R{n}'])
        for n in range(DIST):
            issue_rd(n)
            if n == 1:
                p_rd(1)
                ops.append('P1')
        for n in range(16):
            ks, blk = seq[n]
            need = max(i for i, x in enumerate(ops) if x in (f'R{n}', f'P{ks}'))
            a(f's_waitcnt lgkmcnt({min(15, len(ops) - 1 - need)})')
            if t == 0 and blk == 3:
                a(f'ds_write_b32 v7, v35 offset:{F_DONE}')
                ops.append('W')
            c = '0' if (t == 0 and ks == 0) else vr(O_ + 16 * blk, 16)
            a(f'v_mfma_f32_32x32x16_bf16 {vr(O_ + 16 * blk, 16)}, {vr(PF + 4 * (ks % 2), 4)}, {vr(BFS[n % NB], 4)}, {c}')
            if t == 0 and blk == 1:
                a('v_add_u32 v35, 1, v35')
            if n in (3, 7):
                p_rd(2 + n // 4)
                ops.append(f'P{2 + n // 4}')
            if n + DIST < 16:
                issue_rd(n + DIST)

    pv(0)
    stamp(3)
    pv(1)
    stamp(4)
    a('v_mov_b32 v5, 5')
    a(f'ds_write_b32 v7, v5 offset:{F_DONE}')
    lds_wait(10, F_DONE, 5, 5, 0)
    for j in range(16):
        if j % 2 == 0:
            a(f's_waitcnt vmcnt({14 - j})')
        a(f'ds_write_b128 v9, {vr(TR + 4 * j, 4)} offset:{1024 * j + 16384}')
    a('v_mov_b32 v5, 3')
    a(f'ds_write_b32 v7, v5 offset:{F_LAND}')
    stamp(5)
    pv(2)
    stamp(6)
    pv(3)
    stamp(7)
    PK, XX = 128, 160

    def l_reads():
        a(f'ds_read_b32 v{FLG}, v10 offset:{F_LSEQ}')
        a(f'ds_read_b128 v[172:175], v{vRL}')
        a(f'ds_read_b32 v168, v{vRM}')
    l_reads()
    for ap in range(8):
        t = PK + 4 * ap
        j = 2 * ap
        a(f'v_cvt_pk_bf16_f32 v{t}, v{O_ + j}, v{O_ + 16 + j}')
        a(f'v_cvt_pk_bf16_f32 v{t + 2}, v{O_ + j + 1}, v{O_ + 16 + j + 1}')
        a(f'v_cvt_pk_bf16_f32 v{t + 1}, v{O_ + 32 + j}, v{O_ + 48 + j}')
        a(f'v_cvt_pk_bf16_f32 v{t + 3}, v{O_ + 32 + j + 1}, v{O_ + 48 + j + 1}')
        a(f'v_permlane16_swap_b32 v{t}, v{t + 2}')
        a(f's_add_u32 s92, s96, {(8 * (ap // 2) + 2 * (ap % 2)) * 131072}')
        a(f'v_permlane16_swap_b32 v{t + 1}, v{t + 3}')
        a(f'buffer_store_dwordx4 {vr(t, 4)}, v{vST}, {S(R_WS)}, s92 offen sc1')
        xor_chain(XX + ap, range(t, t + 4))
        if ap % 2 == 1:
            k = ap // 2
            dpp('v_xor_b32', XX + 2 * k, XX + 2 * k, XX + 2 * k, 'row_ror:8', 0x3)
            dpp('v_xor_b32', XX + 2 * k, XX + 2 * k + 1, XX + 2 * k + 1, 'row_ror:8', 0xc)
        if ap % 4 == 3:
            m = ap // 4
            dpp('v_xor_b32', XX + 4 * m, XX + 4 * m, XX + 4 * m, 'row_half_mirror', 0x5)
            dpp('v_xor_b32', XX + 4 * m, XX + 4 * m + 2, XX + 4 * m + 2, 'row_half_mirror', 0xa)
            dpp('v_xor_b32', XX + 4 * m, XX + 4 * m, XX + 4 * m, 'quad_perm:[1,0,3,2]')
            dpp('v_xor_b32', 170 if m == 0 else XX + 4, XX + 4 * m, XX + 4 * m, 'quad_perm:[2,3,0,1]')
        if ap == 4:
            a('s_waitcnt lgkmcnt(0)')
            a(f'v_cmp_ne_u32 vcc, 1, v{FLG}')
            a('s_cbranch_vccnz L_lslow')
            a.label('L_lok')
            a('v_add_f32 v172, v172, v173')
            a('v_add_f32 v174, v174, v175')
            a('v_add_f32 v169, v172, v174')
            a(f'v_bitop3_b32 v171, v168, v169, s{S_TAG} {XOR3}')
    ex(0x2222222222222222)
    a(f'v_mov_b32 v170, v{XX + 4}')
    ex(0x3333333333333333)
    a('v_xor_b32 v171, v171, v170')
    a(f'buffer_store_dwordx4 v[168:171], v{vRC}, {S(R_WS)}, s97 offen sc1')
    stamp(8)
    a('s_waitcnt vmcnt(0)')
    if o.stamps:
        stamp(9)
        a('s_cmp_lg_u32 s3, 0')
        a('s_cbranch_scc1 L_end')
        dump_stamps(11, 1)
    a('s_endpgm')
    a.label('L_lslow')
    l_reads()
    a('s_waitcnt lgkmcnt(0)')
    a(f'v_cmp_ne_u32 vcc, 1, v{FLG}')
    a('s_cbranch_vccz L_lok')
    a(f's_sub_u32 s{S_CNT}, s{S_CNT}, 1')
    a('s_cbranch_scc0 L_lslow')
    a('s_branch L_lok')
    for t in range(4):
        a.label(f'L_ps{t}')
        a(f'v_cmp_ne_u32 vcc, 3, v{FLG}')
        a(f's_cbranch_vccz L_pr{t}')
        a('s_sleep 1')
        a(f's_sub_u32 s{S_CNT}, s{S_CNT}, 1')
        a(f's_cbranch_scc0 L_pp{t}')
        a(f's_branch L_pg{t}')
        a.label(f'L_pr{t}')
        if t > 0:
            for jq in range(4):
                a(f'ds_read_b128 {vr(44 + 4 * jq, 4)}, v{vAR} offset:{128 * t + 32 * jq}')
            a('s_waitcnt lgkmcnt(0)')
            a('s_nop 7')
            for blk in range(4):
                for j in range(16):
                    a(f'v_mul_f32 v{O_ + 16 * blk + j}, v{O_ + 16 * blk + j}, v{44 + j}')
        a(f's_branch L_pg{t}')

    a.label('L_comp')
    QA = 128
    vMW, vFW, vPW, vFR, vAW, vMR = 6, 7, 8, 10, 11, 9
    NM, LL = 12, 14
    SS, PKS, EX4, AA, AQ, WK = 32, 40, 44, 48, 56, 64
    NA = 8
    a('v_lshlrev_b32 v16, 2, v1')
    a(f'v_add_u32 v16, {FB}, v16')
    a('v_mov_b32 v17, 0')
    a('ds_write_b32 v16, v17')
    a('s_waitcnt lgkmcnt(0)')
    a('s_barrier')
    a(f's_load_dword s{S_TAG}, s[{R_WS}:{R_WS + 1}], {WS_EPOCH}')
    srd_ptr([R_CKV, R_X, R_WD, R_OUT, R_ACT])
    srd([R_WD, R_OUT, R_ACT])
    consts()
    a(f's_add_u32 s63, s90, {65536 + 15 * 1024}')
    a(f's_add_u32 s99, s90, {3 * 65536}')
    a('s_mov_b32 m0, s91')
    for j in range(8):
        a(f'v_xor_b32 v{104 + j}, {32 * j}, v2')
    a('v_xor_b32 v21, 0xe0, v2')
    a(f'buffer_load_dwordx4 v[24:27], v21, {S(R_CKV)}, s63 offen nt')
    a('v_mov_b32 v20, 128')
    a('global_load_dword v100, v20, s[86:87] sc1')
    a(f's_add_u32 s6, s91, {16384 + 15 * 1024}')
    a('v_add_u32 v28, s6, v2')
    a('s_lshl_b32 s90, s4, 15')
    a('s_lshl_b32 s95, s3, 13')
    a('s_add_u32 s90, s90, s95')
    if WS_QA:
        a(f's_add_u32 s90, s90, {WS_QA}')
    a('s_add_u32 s92, s90, 4096')
    a('s_lshl_b32 s93, s3, 12')
    a('s_lshl_b32 s94, s4, 3')
    a('s_add_u32 s93, s93, s94')
    a(f's_add_u32 s93, s93, {WS_QAH}')
    a('v_lshrrev_b32 v16, 1, v1')
    a('v_lshlrev_b32 v16, 7, v16')
    a('s_and_b32 s94, s3, 1')
    a('s_lshl_b32 s94, s94, 7')
    a('v_xor_b32 v17, s94, v2')
    a(f's_add_u32 s95, s95, {SB}')
    a('v_add_u32 v17, s95, v17')
    for i in range(4):
        a(f'v_xor_b32 v{96 + i}, {32 * i}, v17')
    a('v_lshrrev_b32 v22, 5, v1')
    a('v_and_b32 v29, 1, v3')
    a('v_lshlrev_b32 v23, 4, v29')
    a('v_lshl_add_u32 v23, v22, 9, v23')
    a('v_bfe_u32 v18, v1, 3, 1')
    a('v_lshl_add_u32 v18, v18, 2, v4')
    a('v_lshl_add_u32 v18, v18, 5, v23')
    a('v_lshl_add_u32 v18, v11, 10, v18')
    a(f'v_add_u32 v18, {SB}, v18')
    a('v_bfe_u32 v20, v1, 2, 2')
    a('v_lshl_add_u32 v21, v4, 2, v20')
    a('v_lshl_add_u32 v19, v21, 10, v23')
    a('v_and_b32 v21, 14, v21')
    a('v_lshl_add_u32 v19, v21, 4, v19')
    a('v_add_u32 v19, s91, v19')
    for i in range(8):
        a(f'v_xor_b32 v{AA + i}, {32 * i}, v19')
        a(f'v_xor_b32 v{AQ + i}, {32 * i}, v18')
    a('v_and_b32 v20, 31, v1')
    a('s_lshl_b32 s95, s3, 2')
    a(f's_add_u32 s95, s95, {L_MAX}')
    a(f'v_lshl_add_u32 v{vMW}, v20, 4, s95')
    a(f'v_lshlrev_b32 v{vPW}, 9, v22')
    a(f'v_lshl_add_u32 v{vPW}, v11, 4, v{vPW}')
    a(f'v_lshl_add_u32 v{vPW}, v29, 3, v{vPW}')
    a('s_lshl_b32 s95, s3, 10')
    a(f's_add_u32 s95, s95, {L_P}')
    a(f'v_add_u32 v{vPW}, s95, v{vPW}')
    a(f'v_lshlrev_b32 v{vMR}, 4, v11')
    a(f'v_add_u32 v{vMR}, {L_MAX}, v{vMR}')
    a(f'v_lshlrev_b32 v{vAW}, 2, v11')
    a(f'v_add_u32 v{vAW}, {L_ALPHA}, v{vAW}')
    a(f'v_mov_b32 v{LL}, 0')
    a(f'v_mov_b32 v{LL + 1}, 0')
    a('v_mov_b32 v0, 1')
    a('v_mov_b32 v5, 2')
    a(f's_mov_b32 s98, {f32bits(float(o.thr))}')
    a('s_mov_b32 s96, 1')
    a('s_sub_u32 s94, s2, 128')
    a('s_lshl_b32 s94, s94, 7')
    a(f's_add_u32 s94, s94, {WS_HU}')
    a(f's_add_u32 s0, s{R_WS}, s94')
    a(f's_addc_u32 s1, s{R_WS + 1}, 0')
    get_tag()
    if o.sprio:
        a(f's_setprio {o.sprio}')
    HR_ = 30

    def q_row(i):
        a(f'buffer_load_dwordx4 {vr(QA + 4 * i, 4)}, v2, {S(R_WS)}, s{90 if i < 4 else 92} offen offset:{1024 * (i % 4)} sc1')
    a(f's_mov_b32 s{S_CNT}, {SPIN}')
    a.label('L_hu')
    a('s_load_dword s94, s[0:1], 0 glc')
    a('s_waitcnt lgkmcnt(0)')
    a(f's_cmp_eq_u32 s94, s{S_TAG}')
    a('s_cbranch_scc1 L_hugo')
    a(f's_sub_u32 s{S_CNT}, s{S_CNT}, 1')
    a('s_cbranch_scc0 L_hu')
    a.label('L_hugo')
    a(f's_mov_b32 s{S_CNT}, {SPIN}')
    a.label('L_qload')
    a(f'buffer_load_dwordx2 {vr(HR_, 2)}, v16, {S(R_WS)}, s93 offen sc1')
    for i in range(8):
        q_row(i)
    a(f'ds_write_b32 v{vFW}, v0 offset:{F_HUS}')
    stamp(8)
    a('s_waitcnt vmcnt(8)')
    a(f'v_bitop3_b32 v21, v{HR_}, v{HR_ + 1}, s{S_TAG} {XOR3}')
    for i in range(8):
        a(f's_waitcnt vmcnt({7 - i})')
        a(f'ds_write_b128 v{96 + i % 4}, {vr(QA + 4 * i, 4)} offset:{1024 * i}')
        xor_chain(19, ([19] if i else []) + list(range(QA + 4 * i, QA + 4 * i + 4)))
    for c in ('quad_perm:[1,0,3,2]', 'quad_perm:[2,3,0,1]', 'row_ror:4', 'row_ror:8'):
        dpp('v_xor_b32', 19, 19, 19, c)
        if c == 'quad_perm:[1,0,3,2]':
            a(f'v_xor_b32 v19, v19, v{HR_}')
    swap_step('v_xor_b32', 19, 20, 16)
    swap_step('v_xor_b32', 19, 20, 32)
    a('v_or_b32 v19, v19, v21')
    a('v_cmp_ne_u32 vcc, 0, v19')
    a('s_cbranch_vccz L_qdone')
    a(f's_sub_u32 s{S_CNT}, s{S_CNT}, 1')
    a('s_cbranch_scc0 L_qload')
    a.label('L_qdone')
    a(f'ds_write_b32 v{vFW}, v0 offset:{F_QST}')
    lds_wait(vFW, F_LAND, 1, 19)
    lds_wait(vFR, F_QST, 1, 19, 0)
    stamp(3)

    def a_read(m, buf):
        a(f'ds_read_b128 {vr(WK + 4 * (m % NA), 4)}, v{AA + m // 2} offset:{256 * (m % 2) + 16384 * buf}')

    def q_read(m):
        for hh in range(2):
            a(f'ds_read_b128 {vr(QA + 64 * hh + 4 * m, 4)}, v{AQ + m // 2} offset:{16384 * hh + 256 * (m % 2)}')

    def s_mfma(st, zero):
        for hh in range(2):
            mfma16(SS + 4 * hh, WK + 4 * (st % NA), QA + 64 * hh + 4 * st, zero and st == 0)
    for st in range(4):
        q_read(st)
        a_read(st, 0)
    for st in range(16):
        a(f's_waitcnt lgkmcnt({3 * min(3, 15 - st)})')
        s_mfma(st, True)
        if st + 4 < 16:
            q_read(st + 4)
            a_read(st + 4, 0)

    def max_xchg(lbl, floor):
        a('v_mov_b32 v18, s96')
        for hh in range(2):
            a(f'v_max3_f32 v{16 + hh}, v{SS + 4 * hh}, v{SS + 4 * hh + 1}, v{SS + 4 * hh + 2}')
            if floor:
                a(f'v_max3_f32 v{16 + hh}, v{16 + hh}, v{SS + 4 * hh + 3}, 0')
            else:
                a(f'v_max_f32 v{16 + hh}, v{16 + hh}, v{SS + 4 * hh + 3}')
        a('v_permlane16_swap_b32 v16, v17')
        a('v_max_f32 v16, v16, v17')
        swap_step('v_max_f32', 16, 17, 32)
        a(f'ds_write_b32 v{vMW}, v16')
        a(f'ds_write_b32 v{vFW}, v18 offset:{F_MSEQ}')
        a(f's_mov_b32 s{S_CNT}, {SPIN * 40}')
        a.label(lbl)
        a(f'ds_read_b32 v18, v{vFR} offset:{F_MSEQ}')
        a(f'ds_read_b128 {vr(WK, 4)}, v{vMR}')
        a(f'ds_read_b128 {vr(WK + 4, 4)}, v{vMR} offset:256')
        a('s_waitcnt lgkmcnt(0)')
        a('v_cmp_gt_u32 vcc, s96, v18')
        a(f's_cbranch_vccz {lbl}go')
        a(f's_sub_u32 s{S_CNT}, s{S_CNT}, 1')
        a(f's_cbranch_scc0 {lbl}')
        a.label(lbl + 'go')
        for hh in range(2):
            a(f'v_max3_f32 v{16 + hh}, v{WK + 4 * hh}, v{WK + 4 * hh + 1}, v{WK + 4 * hh + 2}')
            a(f'v_max_f32 v{16 + hh}, v{16 + hh}, v{WK + 4 * hh + 3}')
            for j in range(4):
                a(f'v_sub_f32 v{SS + 4 * hh + j}, v{SS + 4 * hh + j}, v{16 + hh}')

    def soft(t):
        g = []
        for hh in range(2):
            for j in range(4):
                g.append(f'v_exp_f32 v{EX4 + j}, v{SS + 4 * hh + j}')
            g.append(f'v_cvt_pk_bf16_f32 v{PKS + 2 * hh}, v{EX4}, v{EX4 + 1}')
            g.append(f'v_cvt_pk_bf16_f32 v{PKS + 2 * hh + 1}, v{EX4 + 2}, v{EX4 + 3}')
            g.append(f'ds_write_b64 v{vPW}, {vr(PKS + 2 * hh, 2)} offset:{4096 * t + 256 * hh}')
        return g

    def l_commit():
        for k in range(2):
            for hh in range(2):
                a(f'v_dot2_f32_bf16 v{LL + hh}, v{PKS + 2 * hh + k}, s{S_ONES}, v{LL + hh}')
    max_xchg('L_m0', False)
    for ins in soft(0):
        a(ins)
    a(f'ds_write_b32 v{vFW}, v5 offset:{F_PS}')
    a('ds_write_b128 v28, v[24:27]')
    a(f'ds_write2_b32 v{vAW}, v16, v17 offset0:128 offset1:144')
    for hh in range(2):
        a(f'v_sub_f32 v{NM + hh}, 0, v{16 + hh}')
    l_commit()
    stamp(4)
    PD = 6
    for t in range(1, 4):
        lbl = f'L_l{t}'
        a(f's_mov_b32 s{S_CNT}, {SPIN * 40}')
        for hh in range(2):
            for j in range(4):
                a(f'v_mov_b32 v{SS + 4 * hh + j}, v{NM + hh}')
        if t == 2:
            a('s_add_u32 s94, s3, 1')
            lds_wait(vFR, F_DONE, 's94', 18)
            for j in range(16):
                a(f'buffer_load_dwordx4 v{104 + j // 2}, {S(R_CKV)}, s99 offen offset:{(j % 4) * 1024} nt lds')
                if j % 4 == 3 and j < 15:
                    a('s_add_u32 s99, s99, 4096')
                    a('s_add_u32 m0, m0, 4096')
            stamp(1)
            a(f's_mov_b32 s{S_CNT}, {SPIN * 40}')
        if t < 3:
            a.label(lbl)
            a(f'ds_read_b32 v18, v{vFW} offset:{F_LAND}')
            a('s_waitcnt lgkmcnt(0)')
            a(f'v_cmp_ge_u32 vcc, {t}, v18')
            a(f's_cbranch_vccz {lbl}go')
            a('s_sleep 1')
            a(f's_sub_u32 s{S_CNT}, s{S_CNT}, 1')
            a(f's_cbranch_scc0 {lbl}')
            a.label(lbl + 'go')
        else:
            a('s_waitcnt vmcnt(0)')
            stamp(2)
        for st in range(PD):
            a_read(st, BUF[t])
        if t == 3 and o.rpos == 0:
            a('s_lshl_b32 s94, s4, 2')
            a('s_add_u32 s94, s94, 16')
            arrive(0, 30, 31, 's94')
        for st in range(16):
            a(f's_waitcnt lgkmcnt({min(PD - 1, 15 - st)})')
            s_mfma(st, False)
            if st + PD < 16:
                a_read(st + PD, BUF[t])
        for k, ins in enumerate(soft(t)):
            a(ins)
            if k == 3:
                a(f'v_max3_f32 v19, v{SS}, v{SS + 1}, v{SS + 2}')
                a(f'v_max3_f32 v19, v{SS + 3}, v{SS + 4}, v19')
            if k == 10:
                a(f'v_max3_f32 v19, v{SS + 5}, v{SS + 6}, v19')
                a(f'v_max_f32 v19, v{SS + 7}, v19')
                a('v_cmp_lt_f32 vcc, s98, v19')
        a('s_cmp_eq_u64 vcc, 0')
        a('s_cselect_b32 s91, 2, 1')
        a('v_mov_b32 v18, s91')
        a(f'ds_write_b32 v{vFW}, v18 offset:{F_PS + 16 * t}')
        stamp(4 + t)
        if t == 3 and o.rpos == 1:
            a('s_lshl_b32 s94, s4, 2')
            a('s_add_u32 s94, s94, 16')
            arrive(0, 30, 31, 's94')
        a(f's_mov_b32 s{S_CNT}, {SPIN * 40}')
        a.label(f'L_c{t}')
        a(f'ds_read_b32 v18, v{vFR} offset:{F_PS + 16 * t}')
        a('s_waitcnt lgkmcnt(0)')
        a('v_cmp_ne_u32 vcc, 2, v18')
        a(f's_cbranch_vccnz L_cs{t}')
        a.label(f'L_cg{t}')
        l_commit()
    a('s_lshl_b32 s94, s4, 2')
    a('s_add_u32 s94, s94, 16')
    a(f'v_permlane16_swap_b32 v{LL}, v{LL + 1}')
    a(f'v_add_f32 v{LL}, v{LL}, v{LL + 1}')
    swap_step('v_add_f32', LL, LL + 1, 32)
    a(f'ds_write_b32 v{vMW}, v{LL}')
    a(f'ds_write_b32 v{vFW}, v0 offset:{F_LSEQ}')
    if o.rdelay:
        a(f's_sleep {o.rdelay}')
    if o.rpos == 2:
        arrive(0, 30, 31, 's94')
    a('s_lshl_b32 s94, s4, 7')
    a(f's_add_u32 s94, s94, {WS_FL + 128}')
    release(0, 30, 31, 31, 's94', 's_waitcnt vmcnt(0)')
    stamp(9)
    a('s_and_b32 s93, s2, 0x70')
    a('s_cmp_lg_u32 s93, 64')
    a('s_cbranch_scc1 L_send')
    OP, X, HR, FA = 64, 160, 16, 40
    FW, FH, FO, FG, FX = 204, 206, 207, 208, 210
    a('s_and_b32 s63, s2, 7')
    a('s_lshl_b32 s63, s63, 1')
    a('s_bfe_u32 s93, s2, 0x10003')
    a('s_add_u32 s63, s63, s93')
    a('v_lshrrev_b32 v8, 2, v1')
    a('v_lshlrev_b32 v8, 10, v8')
    a('v_lshl_add_u32 v8, v4, 4, v8')
    a('s_lshl_b32 s99, s3, 15')
    a('s_lshl_b32 s98, s63, 6')
    a('s_add_u32 s99, s99, s98')
    a(f's_mul_i32 s6, s3, {22 * 1024}')
    a('s_mov_b32 m0, s6')
    a(f'v_bfe_u32 v{FO}, v1, 3, 2')
    a(f'v_lshlrev_b32 v{FO}, 10, v{FO}')
    a('v_and_b32 v9, 7, v1')
    a(f'v_lshl_add_u32 v{FO}, v9, 3, v{FO}')
    a('s_barrier')
    a(f'buffer_load_dwordx2 {vr(FX, 2)}, v{FO}, {S(R_X)}, s98 offen')
    for n in range(11):
        for i in range(2):
            a(f's_add_u32 s93, s99, {(128 * n + 16 * i) * 1024}')
            a(f'buffer_load_dwordx4 v8, {S(R_WD)}, s93 offen {o.r64} lds')
            a('s_add_u32 m0, m0, 1024')
    tr64_addr(58, 59)
    a('v_add_u32 v58, s6, v58')
    a(f'v_lshlrev_b32 v{FW}, 7, v4')
    a(f'v_lshl_add_u32 v{FW}, v3, 4, v{FW}')
    a('s_lshl_b32 s93, s3, 9')
    a('s_add_u32 s93, s93, 98304')
    a(f'v_add_u32 v{FW}, s93, v{FW}')
    a('v_add_u32 v205, 98304, v2')
    frag_addr(FH, 9)
    a(f'v_lshlrev_b32 v{FG}, 6, v4')
    a(f'v_lshl_add_u32 v{FG}, v3, 4, v{FG}')
    for n in range(11):
        a(f's_waitcnt vmcnt({20 - 2 * n})')
        for cb in range(2):
            tr_op(OP + 8 * n + 4 * cb, 58, 2048 * n + 32 * cb, 256)
        if n % 2 == 1:
            a('s_waitcnt lgkmcnt(4)')
    for u in range(2):
        for e in range(2):
            a(f'v_dot2_f32_bf16 v{32 + 2 * u + e}, v{FX + u}, s{S_LO1 + e}, 0')
    a('s_lshl_b32 s94, s63, 8')
    a(f's_add_u32 s94, s94, {WS_HP}')
    a('s_lshl_b32 s90, s3, 8')
    a('s_add_u32 s91, s90, 4096')
    a('s_add_u32 s95, s90, 8192')
    stamp(10)
    flag_wait(WS_FL + 768, 9, 1)

    def h_loads():
        a('s_mov_b32 s92, s94')
        for r in range(8):
            a(f'buffer_load_dwordx2 {vr(HR + 2 * r, 2)}, v{FH}, {S(R_WS)}, s92 offen sc1')
            if r < 7:
                a('s_add_u32 s92, s92, 4096')
    poll(h_loads, lambda: chk_sentinel(range(HR, HR + 16), 10), 3)
    if o.fdelay:
        a(f's_sleep {o.fdelay}')

    def f_loads():
        for n in range(11):
            a(f'buffer_load_dwordx4 {vr(X + 4 * n, 4)}, v{FG}, {S(R_ACT)}, s{(90, 91, 95)[n // 4]} offen offset:{1024 * (n % 4)} sc1')
    f_loads()
    for r in range(8):
        for u in range(2):
            for e in range(2):
                a(f'v_dot2_f32_bf16 v{32 + 2 * u + e}, v{HR + 2 * r + u}, s{S_LO1 + e}, v{32 + 2 * u + e}')
    for u in range(2):
        a(f'v_cvt_pk_bf16_f32 v12, v{32 + 2 * u}, v{33 + 2 * u}')
        a(f'v_lshlrev_b32 v{32 + 2 * u}, 16, v12')
        a(f'v_and_b32 v{33 + 2 * u}, s{S_MASK}, v12')
    a(f's_mov_b32 s{S_CNT}, {SPIN}')
    a('s_waitcnt lgkmcnt(0)')
    a('s_branch L_fgo')
    a.label('L_fre')
    f_loads()
    a.label('L_fgo')
    for n in range(11):
        a(f's_waitcnt vmcnt({10 - n})')
        for cb in range(2):
            mfma16(FA + 4 * cb, OP + 8 * n + 4 * cb, X + 4 * n, n == 0)
        if n == 0:
            a(f'v_max3_u32 v10, v{X}, v{X + 1}, v{X + 2}')
            a(f'v_max_u32 v10, v10, v{X + 3}')
        else:
            a(f'v_max3_u32 v10, v10, v{X + 4 * n}, v{X + 4 * n + 1}')
            a(f'v_max3_u32 v10, v10, v{X + 4 * n + 2}, v{X + 4 * n + 3}')
    a('v_cmp_eq_u32 vcc, -1, v10')
    a('s_cbranch_vccz L_fok ;noflush')
    a(f's_sub_u32 s{S_CNT}, s{S_CNT}, 1')
    a('s_cbranch_scc0 L_fre')
    a.label('L_fok')
    if o.stamps:
        a('s_memrealtime s[88:89]')
    ex(M4)
    a('s_nop 3')
    a(f'ds_write_b128 v{FW}, {vr(FA, 4)}')
    a(f'ds_write_b128 v{FW}, {vr(FA + 4, 4)} offset:64')
    ex(-1)
    a('s_waitcnt lgkmcnt(0)')
    a('s_barrier')
    a('s_cmp_lg_u32 s3, 0')
    a('s_cbranch_scc1 L_end')
    red4_read(16, 205)
    for i in range(4):
        a(f'v_add_f32 v{16 + i}, v{16 + i}, v{32 + i}')
    a('v_cvt_pk_bf16_f32 v16, v16, v17')
    a('v_cvt_pk_bf16_f32 v17, v18, v19')
    a(f'buffer_store_dwordx2 v[16:17], v{FO}, {S(R_OUT)}, s98 offen')
    a('s_cmp_lg_u32 s63, 0')
    a('s_cbranch_scc1 L_send')
    ex(1)
    a(f'v_mov_b32 v12, s{S_TAG}')
    a(f's_mov_b32 s90, {WS_EPOCH}')
    a(f'buffer_store_dword v12, off, {S(R_WS)}, s90')
    a.label('L_send')
    if o.stamps:
        a('s_memrealtime s[90:91]')
        a('s_cmp_lg_u32 s3, 0')
        a('s_cbranch_scc1 L_end')
        dump_stamps(14, 0)
    a('s_endpgm')
    for t in range(1, 4):
        a.label(f'L_cs{t}')
        a('v_cmp_eq_u32 vcc, 0, v18')
        a(f's_cbranch_vccz L_ex{t}')
        a(f's_sub_u32 s{S_CNT}, s{S_CNT}, 1')
        a(f's_cbranch_scc0 L_c{t}')
        a(f's_branch L_cg{t}')
        a.label(f'L_ex{t}')
        a('s_add_u32 s96, s96, 1')
        max_xchg(f'L_mx{t}', True)
        for hh in range(2):
            a(f'v_exp_f32 v{20 + hh}, -v{16 + hh}')
            a(f'v_sub_f32 v{NM + hh}, v{NM + hh}, v{16 + hh}')
            a(f'v_sub_f32 v{22 + hh}, 0, v{NM + hh}')
            a(f'v_mul_f32 v{LL + hh}, v{LL + hh}, v{20 + hh}')
        a(f'ds_write2_b32 v{vAW}, v20, v21 offset0:{32 * t} offset1:{32 * t + 16}')
        a(f'ds_write2_b32 v{vAW}, v22, v23 offset0:128 offset1:144')
        for ins in soft(t):
            a(ins)
        a('v_mov_b32 v18, 3')
        a(f'ds_write_b32 v{vFW}, v18 offset:{F_PS + 16 * t}')
        lds_wait(vFR, F_PS + 16 * t, 3, 18, 0)
        a(f's_branch L_cg{t}')
    a.label('L_end')
    a('s_endpgm')

    txt = HEADER
    txt += f'; @launch grid=(256,1,1) block=(512,1,1) lds={LDS_TOTAL}\n'
    txt += '.amdgcn_target "amdgcn-amd-amdhsa--gfx950"\n.text\n'
    txt += a.finalize()
    txt += f""".section .rodata,"a"
.p2align 6
.amdhsa_kernel {name}
  .amdhsa_next_free_vgpr 256
  .amdhsa_next_free_sgpr 102
  .amdhsa_accum_offset 256
  .amdhsa_group_segment_fixed_size 0
  .amdhsa_kernarg_size 104
  .amdhsa_user_sgpr_count 2
  .amdhsa_user_sgpr_kernarg_segment_ptr 1
  .amdhsa_system_sgpr_workgroup_id_x 1
.end_amdhsa_kernel
"""
    return txt


if __name__ == '__main__':
    o = Opt()
    for kv in sys.argv[2:]:
        k, v = kv.split('=')
        setattr(o, k, v.replace('+', ' ') if k == 'r64' else int(v))
    open(sys.argv[1], 'w').write(gen(o))
```

```python
import math, struct
def f32bits(x):
    return '0x%08x' % struct.unpack('<I', struct.pack('<f', x))[0]
WS_QA = 0x00000
WS_QAH = 0x20000
WS_HU = 0x24000
WS_GO = 0x28000
WS_FL = 0x2C000
WS_EPOCH = 0x2F000
WS_STAMP = 0x30000
WS_M0 = 0x38000
WS_XT = 0x3C000
WS_CLEAN = 0x40000
WS_CP = 0x40000
WS_HP = 0x60000
WS_FP = 0x68000
WS_OF = 0xA0000
WS_ACT = 0
WS_QP = 0xC0000
WS_OP = 0x100000
WS_REC = 0x500000
WS_QPL = 0x540000
WS_END = 0x580000
QSCALE = (128 ** -0.5) * math.log2(math.e)
QSCALE_BITS = f32bits(QSCALE)
GELU_BITS = f32bits(-2.0 * math.sqrt(2.0 / math.pi) * math.log2(math.e))
GELU_K = -2.0 * math.sqrt(2.0 / math.pi) * math.log2(math.e)
```

```python
import sys
sys.path.insert(0, 'dev')
from asmdsl import Asm
from layout17 import *

NAME = 'sequential_preLN__compressed_kv_cla__glu_gated_geglu__decode'
HEADER = open('cdna_kernels/' + NAME + '.s.ref').read().split('; Override launch')[0]
LDS_TOTAL = 163840
SB = 130048
L_P = 131072
FB = 162816
F_LAND, F_QST, F_MSEQ, F_DONE, F_LSEQ, F_HUS, F_PS = 0, 16, 32, 48, 64, 80, 96
L_MAX = FB + 512
L_ALPHA = L_P + 16384
L_MFIN = L_ALPHA + 512
A_WQ, A_WUK, A_WUV, A_WO, A_X, A_C, A_D = 0, 32768, 98304, 98304, 131072, 132096, 135168
A_WD, A_ACT, A_H = 65536, 138240, 139264

R_X, R_WS, R_CKV, R_WQ, R_WUK, R_WUV, R_WO, R_WG, R_WU, R_WD, R_OUT, R_ACT = [8 + 4 * i for i in range(12)]
SIZES = {R_X: 4096, R_WS: WS_END, R_CKV: 32 << 20, R_WQ: 4 << 20, R_WUK: 4 << 20, R_WUV: 4 << 20, R_WO: 4 << 20,
         R_WG: 512 * 2752, R_WU: 512 * 2752, R_WD: 1376 * 1024, R_OUT: 4096, R_ACT: 43 * 256}
PTR = {R_X: 64, R_CKV: 66, R_WQ: 68, R_WUK: 70, R_WUV: 72, R_WO: 74, R_WG: 78, R_WU: 80, R_WD: 82, R_OUT: 84}
S_TAG, S_ONES, S_LO1, S_HI1, S_CNT, S_MASK = 56, 57, 58, 59, 60, 62
SPIN = 20000
XOR3 = 'bitop3:0x96'


class Opt:
    stamps = 0
    w0 = 3
    n0 = 8
    window = 8
    w3 = 16
    wwin = 8
    sleep = 1
    sleep_long = 6
    stsleep = 3
    thr = 60
    dbgwg = 192
    hold = 0
    dsleep = 1
    ddelay = 0
    gon = 56
    fine = 0
    hupos = 1
    edelay = 0
    efwin = 3
    sw = 1
    efgo = 0
    qdelay = 0
    hprio = 1
    nsamp = 2
    rdelay = 0
    lw = 8
    diag = 0
    rpos = 0
    owin = 1
    ef0 = 2
    efn = 5
    pvprio = 0
    sprio = 0
    r64 = 'nt'
    wgo = 0
    esleep = 0
    fdelay = 8
    now = 0
    w1 = 8
    n1 = 0


def vr(a, n):
    return f'v[{a}:{a + n - 1}]' if n > 1 else f'v{a}'


def S(base):
    return f's[{base}:{base + 3}]'


def gen(o):
    a = Asm()
    name = NAME + '_kernel'
    o.st3 = o.stamps == 3

    def ex(mask):
        if mask == -1:
            a('s_mov_b64 exec, -1')
        elif mask <= 64:
            a(f's_mov_b64 exec, {mask}')
        else:
            a(f's_mov_b32 exec_lo, 0x{mask & 0xffffffff:x}')
            a(f's_mov_b32 exec_hi, 0x{mask >> 32:x}')

    def dpp(op, d, s0, s1, ctrl, bank=0xf):
        a(f'{op}_dpp v{d}, v{s0}, v{s1} {ctrl} row_mask:0xf bank_mask:0x{bank:x}')

    def swap_step(op, v, t, which):
        a(f'v_mov_b32 v{t}, v{v}')
        a(f'v_permlane{which}_swap_b32 v{v}, v{t}')
        a(f'{op} v{v}, v{v}, v{t}')

    def fine2(r):
        if o.fine == 2:
            lb = a.uid('f2')
            a('s_cmp_lg_u32 s97, 0')
            a(f's_cbranch_scc1 {lb} ;noflush')
            a(f's_memtime s[{r}:{r + 1}]')
            a.label(lb)

    def f3(r):
        if o.fine == 3:
            a(f's_memtime s[{r}:{r + 1}]')

    def stamp(idx):
        if o.stamps:
            a(f's_memrealtime s[{64 + 2 * idx}:{65 + 2 * idx}]')

    def dump_stamps(n, grp, dbg=None):
        a('s_waitcnt lgkmcnt(0)')
        a('s_mov_b64 exec, -1')
        a('v_mov_b32 v3, 0')
        a('v_writelane_b32 v3, s100, 0')
        for i in range(1, n):
            a(f'v_writelane_b32 v3, s{64 + 2 * i}, {i}')
        a('v_mbcnt_lo_u32_b32 v4, -1, 0')
        a('v_lshlrev_b32 v4, 2, v4')
        a('s_lshl_b32 s90, s2, 7')
        a(f's_add_u32 s90, s90, {WS_STAMP + 64 * grp}')
        ex(0xffff)
        a(f'buffer_store_dword v3, v4, {S(R_WS)}, s90 offen')
        if o.stamps == 2 and dbg:
            lb = a.uid('nodbg')
            a('v_subrev_u32 v3, s100, v3')
            if dbg == 'h':
                a(f's_cmp_lg_u32 s2, {o.dbgwg}')
                a(f's_cbranch_scc1 {lb}')
                ex(0x7fe)
                a('global_store_dword v4, v3, s[86:87] offset:-4')
            else:
                a('s_cmp_lg_u32 s2, 0')
                a(f's_cbranch_scc1 {lb}')
                ex(0x3e8)
                a('v_mbcnt_lo_u32_b32 v4, exec_lo, 0')
                a('v_lshlrev_b32 v4, 2, v4')
                a('global_store_dword v4, v3, s[86:87] offset:40')
            a.label(lb)

    def xor_chain(tmp, regs, last=None):
        ops = [f'v{r}' for r in regs] + ([last] if last else [])
        a(f'v_bitop3_b32 v{tmp}, {ops[0]}, {ops[1]}, {ops[2]} {XOR3}')
        ops = ops[3:]
        while len(ops) >= 2:
            a(f'v_bitop3_b32 v{tmp}, v{tmp}, {ops[0]}, {ops[1]} {XOR3}')
            ops = ops[2:]
        if ops:
            a(f'v_xor_b32 v{tmp}, {ops[0]}, v{tmp}')

    def chk_sentinel(regs, tmp):
        rs = list(regs)
        a(f'v_max3_u32 v{tmp}, v{rs[0]}, v{rs[1]}, v{rs[2]}')
        rs = rs[3:]
        while len(rs) >= 2:
            a(f'v_max3_u32 v{tmp}, v{tmp}, v{rs[0]}, v{rs[1]}')
            rs = rs[2:]
        if rs:
            a(f'v_max_u32 v{tmp}, v{tmp}, v{rs[0]}')
        a(f'v_cmp_eq_u32 vcc, -1, v{tmp}')

    def poll(loads, check, sleep=None, wait='s_waitcnt vmcnt(0)'):
        L, Dn = a.uid('poll'), a.uid('pdone')
        a(f's_mov_b32 s{S_CNT}, {SPIN}')
        a.label(L)
        loads()
        a(wait)
        check()
        a(f's_cbranch_vccz {Dn}')
        sl = o.sleep if sleep is None else sleep
        if sl:
            a(f's_sleep {sl}')
        a(f's_sub_u32 s{S_CNT}, s{S_CNT}, 1')
        a(f's_cbranch_scc0 {L}')
        a.label(Dn)

    def lds_wait(addr, off, want, tmp, sleep=1):
        L, Dn = a.uid('lw'), a.uid('lwd')
        a(f's_mov_b32 s{S_CNT}, {SPIN * 40}')
        a.label(L)
        a(f'ds_read_b32 v{tmp}, v{addr} offset:{off}')
        a('s_waitcnt lgkmcnt(0)')
        a(f'v_cmp_gt_u32 vcc, {want}, v{tmp}')
        a(f's_cbranch_vccz {Dn}')
        if sleep:
            a(f's_sleep {sleep}')
        a(f's_sub_u32 s{S_CNT}, s{S_CNT}, 1')
        a(f's_cbranch_scc0 {L}')
        a.label(Dn)

    def mfma16(d, x, y, first):
        c = '0' if first else vr(d, 4)
        a(f'v_mfma_f32_16x16x32_bf16 {vr(d, 4)}, {vr(x, 4)}, {vr(y, 4)}, {c}')

    def srd(rs):
        for r in rs:
            a(f's_mov_b32 s{r + 2}, {SIZES[r]}')
            a(f's_mov_b32 s{r + 3}, 0x00020000')

    def srd_ptr(rs):
        for r in rs:
            if r == R_ACT:
                a(f's_add_u32 s{R_ACT}, s{R_WS}, {WS_ACT}')
                a(f's_addc_u32 s{R_ACT + 1}, s{R_WS + 1}, 0')
            else:
                a(f's_mov_b64 s[{r}:{r + 1}], s[{PTR[r]}:{PTR[r] + 1}]')

    def consts():
        a(f's_mov_b32 s{S_ONES}, 0x3f803f80')
        a(f's_mov_b32 s{S_LO1}, 0x3f80')
        a(f's_mov_b32 s{S_HI1}, 0x3f800000')
        a(f's_mov_b32 s{S_MASK}, 0xffff0000')

    def get_tag():
        a('s_waitcnt lgkmcnt(0)')
        a(f's_add_u32 s{S_TAG}, s{S_TAG}, 0x9e3779b9')

    def vF(d):
        a(f'v_bfe_u32 v{d}, v1, 2, 2')
        a(f'v_lshlrev_b32 v{d}, 8, v{d}')
        a(f'v_lshl_add_u32 v{d}, v3, 6, v{d}')
        a(f'v_lshl_add_u32 v{d}, v4, 4, v{d}')

    def tr64_addr(d, t):
        a(f'v_bfe_u32 v{t}, v1, 2, 2')
        a(f'v_lshl_add_u32 v{t}, v3, 3, v{t}')
        a(f'v_lshlrev_b32 v{d}, 6, v{t}')
        a(f'v_lshl_add_u32 v{d}, v4, 3, v{d}')

    def tr_op(dst, addr, off, tau):
        a(f'ds_read_b64_tr_b16 {vr(dst, 2)}, v{addr} offset:{off}')
        a(f'ds_read_b64_tr_b16 {vr(dst + 2, 2)}, v{addr} offset:{off + tau}')

    def red4_read(x, addr):
        ex(0xffffffff)
        for w in range(4):
            a(f'ds_read_b128 {vr(x + 4 * w, 4)}, v{addr} offset:{512 * w}')
        a('s_waitcnt lgkmcnt(2)')
        for i in range(4):
            a(f'v_add_f32 v{x + i}, v{x + i}, v{x + 4 + i}')
        a('s_waitcnt lgkmcnt(0)')
        for i in range(4):
            a(f'v_add_f32 v{x + 8 + i}, v{x + 8 + i}, v{x + 12 + i}')
        for i in range(4):
            a(f'v_add_f32 v{x + i}, v{x + i}, v{x + 8 + i}')

    def frag_addr(dst, t):
        a(f'v_bfe_u32 v{dst}, v1, 1, 2')
        a(f'v_lshlrev_b32 v{dst}, 6, v{dst}')
        a(f'v_bfe_u32 v{t}, v1, 3, 2')
        a(f'v_lshl_add_u32 v{dst}, v{t}, 4, v{dst}')
        a(f'v_and_b32 v{t}, 1, v1')
        a(f'v_lshl_add_u32 v{dst}, v{t}, 3, v{dst}')

    M4 = 0x000f000f000f000f

    def arrive(wave, ret, t0, off, sel='s3'):
        lb = a.uid('arr')
        a(f's_cmp_lg_u32 {sel}, {wave}')
        a(f's_cbranch_scc1 {lb} ;noflush')
        a(f'v_mov_b32 v{t0}, {off}')
        a(f'v_mov_b32 v{ret}, 1')
        ex(1)
        a(f'global_atomic_add v{ret}, v{t0}, v{ret}, s[86:87] sc0 sc1')
        ex(-1)
        a.label(lb)

    def release(wave, ret, t0, last, flag, wait=None):
        lb = a.uid('rel')
        a(f's_cmp_lg_u32 s3, {wave}')
        a(f's_cbranch_scc1 {lb} ;noflush')
        if wait:
            a(wait)
        a(f'v_readfirstlane_b32 s1, v{ret}')
        a(f's_and_b32 s1, s1, {last}')
        a(f's_cmp_lg_u32 s1, {last}')
        a(f's_cbranch_scc1 {lb} ;noflush')
        a('s_mov_b64 exec, -1')
        a(f'v_mbcnt_lo_u32_b32 v{t0}, -1, 0')
        a(f'v_lshlrev_b32 v{t0}, 2, v{t0}')
        a(f'v_mov_b32 v{ret}, s{S_TAG}')
        if isinstance(flag, int):
            a(f's_mov_b32 s1, {flag}')
            flag = 's1'
        ex(0xffffffff)
        a(f'buffer_store_dword v{ret}, v{t0}, {S(R_WS)}, {flag} offen sc1')
        ex(-1)
        a.label(lb)

    def flag_wait(flag, t0, sleep):
        if isinstance(flag, int):
            a(f's_mov_b32 s1, {flag}')
            flag = 's1'
        ex(1)
        poll(lambda: a(f'buffer_load_dword v{t0}, off, {S(R_WS)}, {flag} sc1'),
             lambda: a(f'v_cmp_ne_u32 vcc, s{S_TAG}, v{t0}'), sleep)
        ex(-1)

    a(f'.globl {name}\n.p2align 8\n.type {name},@function')
    a.label(name)
    if o.stamps or o.diag:
        a('s_memrealtime s[100:101]')
    a('s_cmp_ge_u32 s2, 256')
    a('s_cbranch_scc1 L_end')
    a('s_load_dwordx16 s[64:79], s[0:1], 0')
    a('s_load_dwordx8 s[80:87], s[0:1], 64')
    a(f's_load_dwordx2 s[{R_WS}:{R_WS + 1}], s[0:1], 96')
    a('v_and_b32 v1, 63, v0')
    a('v_lshrrev_b32 v2, 6, v0')
    a('v_readfirstlane_b32 s3, v2')
    a('v_lshlrev_b32 v2, 4, v1')
    a('v_lshrrev_b32 v3, 4, v1')
    a('v_and_b32 v4, 3, v1')
    a('v_and_b32 v11, 15, v1')
    srd([R_WS, R_X])
    a('s_cmp_ge_u32 s2, 128')
    a('s_cbranch_scc1 L_att')

    srd([R_WQ, R_WUK])
    a('s_and_b32 s4, s2, 7')
    a('s_lshl_b32 s4, s4, 2')
    a('s_bfe_u32 s5, s2, 0x20003')
    a('s_add_u32 s4, s4, s5')
    a('s_lshr_b32 s5, s2, 5')
    a('s_lshl_b32 s6, s4, 8')
    a('v_lshlrev_b32 v5, 1, v3')
    a('v_xor_b32 v5, v5, v11')
    a('v_lshlrev_b32 v5, 4, v5')
    a('v_lshl_add_u32 v6, v3, 13, v5')
    a('v_xor_b32 v7, 0x80, v6')
    a('v_xor_b32 v8, v3, v11')
    a('v_lshlrev_b32 v8, 4, v8')
    a('v_lshl_add_u32 v8, v3, 13, v8')
    a('s_lshl_b32 s90, s5, 20')
    a('s_lshl_b32 s91, s3, 17')
    a('s_add_u32 s90, s90, s91')
    a('s_add_u32 s90, s90, s6')
    a('s_lshl_b32 s91, s3, 12')
    a('s_mov_b32 m0, s91')
    a('v_bfe_u32 v10, v1, 2, 2')
    a('v_lshlrev_b32 v10, 6, v10')
    a('v_lshl_add_u32 v10, v4, 10, v10')
    a('v_lshl_add_u32 v10, v3, 4, v10')
    a('s_lshl_b32 s93, s5, 8')
    XS, XO = 12, 28
    a('s_waitcnt lgkmcnt(0)')
    srd_ptr([R_X, R_WQ, R_WUK])
    a('s_cmp_lg_u32 s3, 0')
    a('s_cbranch_scc1 L_nox')
    for i in range(4):
        a(f'buffer_load_dwordx4 {vr(XS + 4 * i, 4)}, v10, {S(R_X)}, 0 offen offset:{256 * i}')
    a(f'buffer_load_dwordx4 {vr(XO, 4)}, v10, {S(R_X)}, s93 offen')
    a.label('L_nox')
    for i in range(4):
        a(f's_add_u32 s92, s90, {i * 32768}')
        a(f'buffer_load_dwordx4 v{6 + i // 2}, {S(R_WQ)}, s92 offen nt lds')
        if i < 3:
            a('s_add_u32 m0, m0, 1024')
    a('s_barrier')
    a('s_cmp_lt_u32 s3, 4')
    a('s_cbranch_scc1 L_nouk')
    a('s_lshl_b32 s91, s3, 17')
    a('s_add_u32 s90, s90, s91')
    a(f's_sub_u32 s90, s90, {8 << 17}')
    a('s_lshl_b32 s91, s3, 13')
    a(f's_add_u32 m0, s91, {A_WUK - 32768}')
    for i in range(8):
        if i % 2 == 0:
            a(f'v_xor_b32 v9, {64 * (i // 2)}, v8')
        a(f's_add_u32 s92, s90, {i * 32768}')
        a(f'buffer_load_dwordx4 v9, {S(R_WUK)}, s92 offen nt lds')
        if i < 7:
            a('s_add_u32 m0, m0, 1024')
    a.label('L_nouk')
    a(f's_load_dword s{S_TAG}, s[{R_WS}:{R_WS + 1}], {WS_EPOCH}')
    srd_ptr([R_WUV, R_WO, R_WG, R_WU, R_WD, R_OUT])
    consts()
    stamp(1)
    a('s_cmp_lg_u32 s3, 0')
    a('s_cbranch_scc1 L_noln')
    a('s_waitcnt vmcnt(5)')
    for i in range(16):
        a(f'v_dot2_f32_bf16 v34, v{XS + i}, s{S_ONES}, {"0" if i == 0 else "v34"}')
        a(f'v_dot2_f32_bf16 v35, v{XS + i}, v{XS + i}, {"0" if i == 0 else "v35"}')
    for c in ('row_ror:4', 'row_ror:8'):
        dpp('v_add_f32', 34, 34, 34, c)
        dpp('v_add_f32', 35, 35, 35, c)
    for wh in (16, 32):
        a('v_mov_b32 v12, v34')
        a('v_mov_b32 v13, v35')
        a(f'v_permlane{wh}_swap_b32 v34, v12')
        a(f'v_permlane{wh}_swap_b32 v35, v13')
        a('v_add_f32 v34, v34, v12')
        a('v_add_f32 v35, v35, v13')
    a('v_mul_f32 v34, 0x3b000000, v34')
    a('v_mul_f32 v35, 0x3b000000, v35')
    a('v_fma_f32 v35, -v34, v34, v35')
    a('v_max_f32 v35, 0, v35')
    a('v_add_f32 v35, 0x3727c5ac, v35')
    a('v_rsq_f32 v35, v35')
    a(f'v_mul_f32 v35, {QSCALE_BITS}, v35')
    a('v_mul_f32 v34, v34, v35')
    a('s_waitcnt vmcnt(4)')
    for i in range(4):
        a(f'v_lshlrev_b32 v12, 16, v{XO + i}')
        a(f'v_and_b32 v13, s{S_MASK}, v{XO + i}')
        a('v_fma_f32 v12, v12, v35, -v34')
        a('v_fma_f32 v13, v13, v35, -v34')
        a(f'v_cvt_pk_bf16_f32 v{XO + i}, v12, v13')
    a(f'v_add_u32 v12, {A_X}, v2')
    a(f'ds_write_b128 v12, {vr(XO, 4)}')
    a.label('L_noln')
    srd([R_WUV, R_WO, R_WG, R_WU, R_WD, R_OUT])
    a('s_getpc_b64 s[94:95]')
    a.label('L_pc')
    a(f's_sub_u32 s94, s94, L_pc-{name}')
    a('s_subb_u32 s95, s95, 0')
    a('s_andn2_b32 s92, s2, 7')
    a('s_add_u32 s92, s92, s3')
    a('s_lshl_b32 s92, s92, 8')
    a('v_lshl_add_u32 v32, v1, 2, s92')
    a(f'v_min_u32 v32, L_end-{name}, v32')
    a('global_load_dword v33, v32, s[94:95]')
    for i in range(4):
        a(f'v_mov_b32 v{36 + i}, -1')
    a('s_lshl_b32 s92, s2, 3')
    a('s_add_u32 s92, s92, s3')
    a('s_mul_i32 s92, s92, 352')
    a(f's_add_u32 s92, s92, {WS_CLEAN}')
    ex(0x3fffff)
    a(f'buffer_store_dwordx4 v[36:39], v2, {S(R_WS)}, s92 offen sc1')
    ex(-1)
    a('v_bfe_u32 v40, v1, 2, 3')
    a('v_lshlrev_b32 v40, 1, v40')
    a('v_bfe_u32 v41, v1, 1, 1')
    a('s_lshl_b32 s92, s3, 1')
    a(f'v_bitop3_b32 v40, v40, v41, s92 {XOR3}')
    a('v_lshlrev_b32 v40, 4, v40')
    a('v_bfe_u32 v41, v1, 2, 2')
    a('v_lshl_add_u32 v41, v3, 3, v41')
    a('v_lshl_add_u32 v40, v41, 8, v40')
    a('v_and_b32 v41, 1, v1')
    a('v_lshl_add_u32 v40, v41, 3, v40')
    a('v_lshlrev_b32 v41, 8, v3')
    a('v_lshl_add_u32 v41, v4, 4, v41')
    a(f'v_add_u32 v41, {A_X}, v41')
    a('v_lshlrev_b32 v42, 6, v3')
    a('v_lshl_add_u32 v42, v4, 4, v42')
    a('s_lshl_b32 s96, s4, 13')
    if WS_QP:
        a(f's_add_u32 s96, s96, {WS_QP}')
    a('s_lshl_b32 s92, s5, 11')
    a('s_add_u32 s97, s96, s92')
    a('s_lshl_b32 s92, s3, 8')
    a('s_add_u32 s97, s97, s92')
    get_tag()
    stamp(2)
    a('v_bfe_u32 v43, v1, 2, 2')
    a('v_lshlrev_b32 v43, 11, v43')
    a('v_lshl_add_u32 v43, v3, 7, v43')
    a('v_lshl_add_u32 v43, v4, 4, v43')
    a('s_cmp_lt_u32 s3, 4')
    a('s_cbranch_scc1 L_wq_lo')
    a('s_waitcnt vmcnt(10)')
    a('s_branch L_wq_hi')
    a.label('L_wq_lo')
    a('s_waitcnt vmcnt(2)')
    a.label('L_wq_hi')
    a('s_barrier')
    W1, XF, AC = 12, 44, 60
    for t in range(4):
        tr_op(W1 + 4 * t, 40, A_WQ + 8192 * t, 1024)
        a(f'ds_read_b128 {vr(XF + 4 * t, 4)}, v41 offset:{64 * t}')
    for t in range(4):
        a(f's_waitcnt lgkmcnt({3 * (3 - t)})')
        mfma16(AC, W1 + 4 * t, XF + 4 * t, t == 0)
    a(f'v_cvt_pk_bf16_f32 v64, v{AC}, v{AC + 1}')
    a(f'v_cvt_pk_bf16_f32 v65, v{AC + 2}, v{AC + 3}')
    a(f'v_bitop3_b32 v66, v64, v65, s{S_TAG} {XOR3}')
    ex(M4)
    a(f'buffer_store_dwordx4 v[64:67], v42, {S(R_WS)}, s97 offen sc1')
    ex(-1)
    stamp(3)
    UK, Q, AC2, FR = 68, 100, 132, 140

    def a2_loads():
        for n in range(8):
            a(f'buffer_load_dwordx4 {vr(Q + 4 * n, 4)}, v43, {S(R_WS)}, s96 offen offset:{512 * (n // 2) + 64 * (n % 2)} sc1')
    a('s_cmp_lt_u32 s3, 4')
    a('s_cbranch_scc1 L_a2')
    a('s_waitcnt vmcnt(0)')
    a('s_barrier')
    a('s_branch L_a_done')
    a.label('L_a2')
    a('s_waitcnt vmcnt(0)')
    if o.qdelay:
        a(f's_sleep {o.qdelay}')
    a2_loads()
    a('v_lshrrev_b32 v12, 2, v11')
    a('v_lshl_add_u32 v12, v12, 3, v4')
    a('v_lshlrev_b32 v12, 8, v12')
    a('v_xor_b32 v13, v3, v11')
    a('v_lshl_add_u32 v12, v13, 4, v12')
    a('s_lshl_b32 s92, s3, 13')
    a(f's_add_u32 s92, s92, {A_WUK}')
    a('v_add_u32 v12, s92, v12')
    a('s_barrier')
    for t in range(4):
        a(f'v_xor_b32 v13, {64 * t}, v12')
        for sub in range(2):
            a(f'ds_read_b128 {vr(UK + 16 * sub + 4 * t, 4)}, v13 offset:{1024 * sub}')
    a('v_lshlrev_b32 v15, 8, v4')
    a('v_lshl_add_u32 v15, v3, 4, v15')
    a('s_lshl_b32 s91, s3, 6')
    a(f's_add_u32 s91, s91, {A_C}')
    a('v_add_u32 v15, s91, v15')
    a(f'v_add_u32 v16, {A_C}, v2')
    a('v_lshlrev_b32 v20, 15, v3')
    a('v_lshl_add_u32 v20, v11, 4, v20')
    a('v_lshlrev_b32 v21, 3, v3')
    a('s_lshl_b32 s91, s4, 10')
    a('s_lshl_b32 s92, s5, 8')
    a('s_add_u32 s92, s92, s91')
    a('s_lshr_b32 s93, s92, 1')
    if WS_QA:
        a(f's_add_u32 s92, s92, {WS_QA}')
    a(f's_add_u32 s93, s93, {WS_QAH}')
    a(f's_cmp_lt_u32 s5, {o.nsamp}')
    a('s_cselect_b32 s98, s3, 99')
    a('v_lshlrev_b32 v24, 7, v1')
    a(f'v_mov_b32 v25, s{S_TAG}')
    a(f's_mov_b32 s{S_CNT}, {SPIN}')
    a('s_branch L_a2chk')
    a.label('L_a2poll')
    a2_loads()
    a.label('L_a2chk')
    for n in range(8):
        a(f's_waitcnt vmcnt({7 - n})')
        a(f'v_bitop3_b32 v{Q + 4 * n + 2}, v{Q + 4 * n}, v{Q + 4 * n + 1}, v{Q + 4 * n + 2} {XOR3}')
    a(f'v_max3_u32 v17, v{Q + 2}, v{Q + 6}, v{Q + 10}')
    a(f'v_min3_u32 v18, v{Q + 2}, v{Q + 6}, v{Q + 10}')
    a(f'v_max3_u32 v17, v17, v{Q + 14}, v{Q + 18}')
    a(f'v_min3_u32 v18, v18, v{Q + 14}, v{Q + 18}')
    a(f'v_max3_u32 v17, v17, v{Q + 22}, v{Q + 26}')
    a(f'v_min3_u32 v18, v18, v{Q + 22}, v{Q + 26}')
    a(f'v_max3_u32 v17, v17, v{Q + 30}, s{S_TAG}')
    a(f'v_min3_u32 v18, v18, v{Q + 30}, s{S_TAG}')
    a('v_cmp_ne_u32 vcc, v17, v18')
    a('s_cbranch_vccz L_a2go')
    a(f's_sub_u32 s{S_CNT}, s{S_CNT}, 1')
    a('s_cbranch_scc0 L_a2poll')
    a.label('L_a2go')
    if o.st3:
        a('s_memrealtime s[72:73]')
    stamp(4)
    arrive(3, 22, 23, 0, 's98')
    a('s_waitcnt lgkmcnt(0)')
    for n in range(8):
        for sub in range(2):
            d = AC2 + 4 * sub
            c = '0' if n == 0 else vr(d, 4)
            a(f'v_mfma_f32_16x16x16_bf16 {vr(d, 4)}, {vr(UK + 16 * sub + 2 * n, 2)}, {vr(Q + 4 * n, 2)}, {c}')
    for c in ('row_ror:4', 'row_ror:8'):
        for i in range(8):
            dpp('v_add_f32', AC2 + i, AC2 + i, AC2 + i, c)
    for i in range(4):
        a(f'v_cvt_pk_bf16_f32 v{FR + i}, v{AC2 + 2 * i}, v{AC2 + 2 * i + 1}')
    ex(M4)
    a(f'ds_write_b128 v15, {vr(FR, 4)}')
    ex(-1)
    a('s_cmp_lg_u32 s98, 3')
    a('s_cbranch_scc1 L_norel')
    a('s_waitcnt vmcnt(0)')
    a('v_readfirstlane_b32 s1, v22')
    a(f's_and_b32 s1, s1, {32 * o.nsamp - 1}')
    a(f's_cmp_lg_u32 s1, {32 * o.nsamp - 1}')
    a('s_cbranch_scc1 L_norel')
    a(f's_mov_b32 s1, {WS_HU}')
    a(f'buffer_store_dword v25, v24, {S(R_WS)}, s1 offen sc1')
    a(f's_mov_b32 s1, {WS_HU + 8192}')
    a(f'buffer_store_dword v25, v24, {S(R_WS)}, s1 offen sc1')
    a.label('L_norel')
    a('s_waitcnt lgkmcnt(0)')
    a.label('L_a_done')
    a('s_barrier')
    a('s_cmp_lg_u32 s3, 0')
    a('s_cbranch_scc1 L_a_pub')
    a(f'ds_read_b128 {vr(FR, 4)}, v16')
    a('s_waitcnt lgkmcnt(0)')
    a(f'buffer_store_dwordx4 {vr(FR, 4)}, v20, {S(R_WS)}, s92 offen sc1')
    xor_chain(18, range(FR, FR + 4))
    for c in ('quad_perm:[1,0,3,2]', 'quad_perm:[2,3,0,1]', 'row_ror:4', 'row_ror:8'):
        dpp('v_xor_b32', 18, 18, 18, c)
    a(f'v_xor_b32 v19, s{S_TAG}, v18')
    ex(0x0001000100010001)
    a(f'buffer_store_dwordx2 v[18:19], v21, {S(R_WS)}, s93 offen sc1')
    ex(-1)
    stamp(5)
    a.label('L_a_pub')
    a('s_and_b32 s7, s2, 7')
    a('s_lshr_b32 s63, s2, 3')
    a('v_lshl_add_u32 v6, v3, 18, v5')
    a('v_xor_b32 v7, 0x80, v6')
    a('s_lshl_b32 s0, s5, 20')
    a('s_add_u32 s0, s0, s6')
    a('s_mov_b32 s61, 0')
    D, WL, CA, OPC, OPD = 16, 32, 40, 64, 96
    a('s_and_b32 s94, s3, 3')
    a('s_lshr_b32 s95, s3, 2')
    a('v_bfe_u32 v56, v1, 2, 3')
    a('v_lshlrev_b32 v56, 1, v56')
    a('s_lshl_b32 s92, s94, 2')
    a(f'v_bitop3_b32 v56, v56, v4, s92 {XOR3}')
    a('v_lshlrev_b32 v56, 4, v56')
    a('v_bfe_u32 v58, v1, 2, 2')
    a('v_lshl_add_u32 v58, v3, 3, v58')
    a('v_lshl_add_u32 v56, v58, 8, v56')
    a(f'v_add_u32 v56, {A_WUV}, v56')
    tr64_addr(57, 58)
    a('s_lshl_b32 s91, s94, 13')
    a(f's_add_u32 s91, s91, {A_WO}')
    a('v_add_u32 v57, s91, v57')
    a('v_and_b32 v5, 31, v1')
    a('v_lshlrev_b32 v5, 11, v5')
    a('s_lshl_b32 s90, s94, 16')
    a('s_lshl_b32 s91, s5, 9')
    a('s_add_u32 s90, s90, s91')
    a('s_lshl_b32 s91, s4, 4')
    a('s_add_u32 s90, s90, s91')
    a(f's_add_u32 s90, s90, {WS_REC}')
    a('s_lshl_b32 s96, s4, 2')
    a('s_add_u32 s96, s96, s5')
    a('s_lshl_b32 s96, s96, 2')
    a('s_add_u32 s96, s96, s94')
    a('s_lshl_b32 s91, s96, 13')
    a('s_lshl_b32 s93, s95, 12')
    a('s_add_u32 s91, s91, s93')
    a(f's_add_u32 s91, s91, {WS_OP}')
    a('s_lshl_b32 s92, s95, 4')
    a('v_lshlrev_b32 v48, 4, v11')
    a('v_lshl_add_u32 v48, v3, 1, v48')
    a('s_mul_i32 s93, s3, 272')
    a(f's_add_u32 s93, s93, {A_C}')
    a('v_add_u32 v48, s93, v48')
    a('v_and_b32 v49, 7, v1')
    a('v_mul_u32_u24 v49, 272, v49')
    a('v_lshl_add_u32 v49, v3, 4, v49')
    a(f'v_add_u32 v49, {A_C}, v49')
    a('v_lshlrev_b32 v50, 6, v3')
    a('v_lshl_add_u32 v50, v4, 4, v50')
    a('s_lshl_b32 s98, s4, 12')
    a('s_lshl_b32 s93, s94, 10')
    a('s_add_u32 s98, s98, s93')
    a('s_lshl_b32 s93, s5, 8')
    a('s_add_u32 s98, s98, s93')
    a(f's_add_u32 s98, s98, {WS_CP}')
    a('v_add_u32 v51, s92, v3')
    a('v_lshlrev_b32 v51, 2, v51')
    a('v_cmp_eq_u32 s[88:89], s95, v3')
    vF(128)
    a('v_lshlrev_b32 v129, 7, v4')
    a('v_lshl_add_u32 v129, v3, 4, v129')
    a('s_lshl_b32 s93, s94, 9')
    a(f's_add_u32 s93, s93, {A_D}')
    a('v_add_u32 v129, s93, v129')
    a('v_bfe_u32 v130, v1, 1, 2')
    a('v_lshlrev_b32 v130, 7, v130')
    a('v_bfe_u32 v9, v1, 3, 2')
    a('v_lshl_add_u32 v130, v9, 5, v130')
    a('v_and_b32 v9, 1, v1')
    a('v_lshl_add_u32 v130, v9, 4, v130')
    a(f'v_add_u32 v130, {A_D}, v130')
    a('v_lshlrev_b32 v131, 3, v1')
    a('s_lshl_b32 s6, s7, 14')
    a('s_lshl_b32 s93, s94, 12')
    a('s_add_u32 s6, s6, s93')
    a(f's_add_u32 s6, s6, {WS_CP}')
    a('s_lshl_b32 s99, s7, 12')
    a('s_lshl_b32 s93, s63, 8')
    a('s_add_u32 s99, s99, s93')
    a(f's_add_u32 s99, s99, {WS_HP}')
    a('v_lshrrev_b32 v8, 2, v1')
    a('s_cmp_lt_u32 s3, 4')
    a('s_cbranch_scc1 L_wlo')
    a('s_mov_b32 s61, 0')
    tr64_addr(58, 59)

    def go_wait(extra=0):
        a('s_lshl_b32 s96, s2, 7')
        a(f's_add_u32 s96, s96, {WS_GO}')
        ex(1)
        poll(lambda: a(f'buffer_load_dword v9, off, {S(R_WS)}, s96 sc1'), lambda: a(f'v_cmp_ne_u32 vcc, s{S_TAG}, v9'), 3)
        ex(-1)
    a('s_cmp_lt_u32 s2, 48')
    a('s_cbranch_scc1 L_E1')
    a.label('L_wnone')
    a('s_barrier')
    a('s_branch L_cstart')
    OP = 64
    H, XR, HA, X4, EA = 16, 128, 140, 148, 164
    EW, ES, ER, ESR, EST, EG, ECS = 180, 181, 182, 183, 184, 185, 186
    a.label('L_E1')
    a('s_mul_i32 s93, s7, 6')
    a('s_add_u32 s63, s63, s93')
    a('s_cmp_ge_u32 s63, 43')
    a('s_cbranch_scc1 L_wnone')
    a('s_mov_b32 s61, 1')
    if o.efgo == 1:
        go_wait()
    a('v_mul_u32_u24 v8, 2752, v8')
    a('v_lshl_add_u32 v8, v4, 4, v8')
    a(f's_mul_i32 s99, s94, {128 * 2752}')
    a('s_lshl_b32 s93, s63, 6')
    a('s_add_u32 s99, s99, s93')
    a('s_lshl_b32 s6, s94, 14')
    a('s_mov_b32 m0, s6')
    a('v_bfe_u32 v9, v1, 2, 2')
    a('v_lshlrev_b32 v9, 6, v9')
    a('v_lshl_add_u32 v9, v4, 10, v9')
    a('v_lshl_add_u32 v9, v3, 4, v9')
    a('s_lshl_b32 s93, s94, 8')
    a(f'buffer_load_dwordx4 {vr(XR, 4)}, v9, {S(R_X)}, s93 offen')
    for mat in range(2):
        for i in range(8):
            a(f's_add_u32 s93, s99, {16 * i * 2752}')
            a(f's_waitcnt vmcnt({(o.ef0 if 8 * mat + i < o.efn else o.efwin) - 1})')
            a(f'buffer_load_dwordx4 v8, {S(R_WG if mat == 0 else R_WU)}, s93 offen {o.r64} lds')
            a('s_add_u32 m0, m0, 1024')
    OPW, FA = 192, 64
    EAR, EPS, EHW, GL, GH, GO_ = 188, 189, 190, 191, 224, 225
    a('v_and_b32 v8, 0xff, v6')
    a('v_lshl_add_u32 v8, v3, 10, v8')
    a('v_xor_b32 v9, 0x80, v8')
    a('s_lshl_b32 s99, s63, 15')
    a('s_lshl_b32 s93, s94, 8')
    a('s_add_u32 s99, s99, s93')
    a('s_lshl_b32 s98, s94, 13')
    a(f's_add_u32 s98, s98, {A_WD}')
    a('s_mov_b32 m0, s98')
    for i in range(8):
        a(f's_add_u32 s93, s99, {4096 * i}')
        a(f's_waitcnt vmcnt({o.efwin - 1})')
        a(f'buffer_load_dwordx4 v{8 + (i // 2) % 2}, {S(R_WD)}, s93 offen nt lds')
        a('s_add_u32 m0, m0, 1024')
    a('v_bfe_u32 v57, v1, 2, 3')
    a('v_lshlrev_b32 v57, 1, v57')
    a('v_xor_b32 v57, v57, v4')
    a('v_lshlrev_b32 v57, 4, v57')
    a('v_lshl_add_u32 v57, v59, 8, v57')
    a('v_add_u32 v57, s98, v57')
    a(f'v_lshlrev_b32 v{EAR}, 6, v4')
    a(f'v_lshl_add_u32 v{EAR}, v3, 4, v{EAR}')
    a(f'v_add_u32 v{EAR}, {A_ACT}, v{EAR}')
    a('v_bfe_u32 v9, v1, 1, 1')
    a(f'v_mul_u32_u24 v{EPS}, 6144, v9')
    a('v_and_b32 v9, 1, v1')
    a(f'v_lshl_add_u32 v{EPS}, v9, 6, v{EPS}')
    a(f'v_lshl_add_u32 v{EPS}, v3, 4, v{EPS}')
    a('s_lshl_b32 s93, s94, 10')
    a(f's_add_u32 s93, s93, {A_H}')
    a(f'v_add_u32 v{EHW}, s93, v2')
    a('v_cmp_lt_u32 vcc, 23, v1')
    a('v_mov_b32 v9, 0x7fffff00')
    a(f'v_cndmask_b32 v{GL}, v2, v9, vcc')
    a('s_and_b32 s93, s63, 1')
    a('s_lshl_b32 s93, s93, 1')
    a('v_bfe_u32 v9, v1, 2, 1')
    a('v_add_u32 v9, s93, v9')
    a(f'v_lshlrev_b32 v{GH}, 8, v4')
    a(f'v_lshl_add_u32 v{GH}, v9, 4, v{GH}')
    a('s_lshr_b32 s93, s63, 3')
    a('s_lshl_b32 s93, s93, 10')
    a('s_bfe_u32 s96, s63, 0x20001')
    a('s_lshl_b32 s96, s96, 6')
    a('s_add_u32 s93, s93, s96')
    a(f's_add_u32 s93, s93, {A_H}')
    a(f'v_add_u32 v{GH}, s93, v{GH}')
    a(f'v_lshlrev_b32 v{GO_}, 10, v9')
    a(f'v_lshl_add_u32 v{GO_}, v4, 4, v{GO_}')
    a(f'v_lshl_add_u32 v{GO_}, v3, 1, v{GO_}')
    a('v_add_u32 v58, s6, v58')
    a(f'v_lshlrev_b32 v{EW}, 8, v4')
    a(f'v_lshl_add_u32 v{EW}, v3, 4, v{EW}')
    a(f'v_add_u32 v{EW}, s6, v{EW}')
    a(f'v_lshlrev_b32 v{ES}, 3, v4')
    a(f'v_lshl_add_u32 v{ES}, v3, 2, v{ES}')
    a(f'v_add_u32 v{ES}, s6, v{ES}')
    a('s_and_b32 s93, s3, 1')
    a('s_lshl_b32 s93, s93, 6')
    a(f'v_add_u32 v{EST}, s93, v1')
    a(f'v_lshrrev_b32 v{ESR}, 5, v{EST}')
    a(f'v_and_b32 v{ER}, 31, v{EST}')
    a(f'v_lshlrev_b32 v{ER}, 2, v{ER}')
    a(f'v_lshl_add_u32 v{ER}, v{ESR}, 8, v{ER}')
    a(f'v_lshlrev_b32 v{ESR}, 3, v{ESR}')
    a(f'v_lshlrev_b32 v{EST}, 1, v{EST}')
    a(f'v_add_u32 v{EST}, {A_ACT}, v{EST}')
    vF(EG)
    for i in range(4):
        a(f'v_mov_b32 v{X4 + i}, s{S_ONES}')
    a('s_waitcnt vmcnt(0)')
    for t in range(4):
        for k in range(4):
            tr_op(OP + 16 * t + 4 * k, 58, 8192 * (k // 2) + 2048 * t + 32 * (k % 2), 256)
        a(f'v_xor_b32 v9, {64 * t}, v57')
        for k in range(2):
            tr_op(OPW + 8 * t + 4 * k, 9, 8 * k, 1024)
        a(f's_waitcnt lgkmcnt({2 if t < 3 else 0})')
    for t in range(4):
        for k in range(4):
            mfma16(EA + 4 * k, OP + 16 * t + 4 * k, X4, t == 0)
    for i in range(4):
        a(f'v_lshlrev_b32 v{132 + 2 * i}, 16, v{XR + i}')
        a(f'v_and_b32 v{133 + 2 * i}, s{S_MASK}, v{XR + i}')

    def e_lds_write():
        ex(M4)
        for k in range(4):
            a(f'ds_write_b128 v{EW}, {vr(EA + 4 * k, 4)} offset:{64 * k}')
        ex(-1)
    e_lds_write()
    a('s_branch L_wnone')
    a.label('L_wlo')
    a('s_lshl_b32 s93, s3, 15')
    a('s_add_u32 s0, s0, s93')
    a('s_lshl_b32 s93, s3, 13')
    a(f's_add_u32 m0, s93, {A_WUV}')
    a('v_lshlrev_b32 v8, 10, v8')
    a('v_lshl_add_u32 v8, v4, 4, v8')
    a('s_lshl_b32 s97, s7, 19')
    a('s_lshl_b32 s93, s3, 17')
    a('s_add_u32 s97, s97, s93')
    a('s_lshl_b32 s93, s63, 6')
    a('s_add_u32 s97, s97, s93')
    assert o.wgo
    for i in range(8):
        a(f's_add_u32 s93, s97, {i * 16384}')
        if i >= o.owin:
            a(f's_waitcnt vmcnt({o.owin - 1})')
        a(f'buffer_load_dwordx4 v8, {S(R_WO)}, s93 offen {o.r64} lds')
        if i < 7:
            a('s_add_u32 m0, m0, 1024')
    a(f's_sub_u32 m0, m0, {A_WO - A_WUV + 7168}')
    if o.wgo:
        go_wait()
        for t in range(4):
            for k in range(2):
                tr_op(OPD + 8 * t + 4 * k, 57, 2048 * t + 32 * k, 256)
            if t == 1:
                a('s_waitcnt lgkmcnt(2)')
        a('s_waitcnt lgkmcnt(0)')
    for i in range(8):
        a(f's_add_u32 s93, s0, {(16 * (i % 2) + i // 2) * 8192}')
        if not o.wgo:
            a(f's_waitcnt vmcnt({o.wwin - 1})')
        a(f'buffer_load_dwordx4 v{6 + (i // 2) % 2}, {S(R_WUV)}, s93 offen nt lds')
        if i < 7:
            a('s_add_u32 m0, m0, 1024')
    a('s_waitcnt vmcnt(0)')
    a('s_barrier')
    for t in range(4):
        for k in range(2):
            tr_op(OPC + 8 * t + 4 * k, 56, 8192 * t + 8 * k, 1024)
            if not o.wgo:
                tr_op(OPD + 8 * t + 4 * k, 57, 2048 * t + 32 * k, 256)
        a('s_waitcnt lgkmcnt(4)')
    a.label('L_cstart')
    stamp(6)
    a('s_lshl_b32 s96, s94, 7')
    a(f's_add_u32 s96, s96, {WS_FL + 128}')
    flag_wait('s96', 9, o.stsleep)
    stamp(7)
    a(f's_mov_b32 s{S_CNT}, {SPIN}')
    a.label('L_call')
    a(f'buffer_load_dwordx4 v[12:15], v5, {S(R_WS)}, s90 offen sc1')
    for i in range(4):
        a(f'buffer_load_dwordx4 {vr(D + 4 * i, 4)}, v2, {S(R_WS)}, s91 offen offset:{1024 * i} sc1')
    a(f's_sub_u32 s{S_CNT}, s{S_CNT}, 1')
    a('s_cbranch_scc1 L_cdone')
    a('s_waitcnt vmcnt(4)')
    xor_chain(10, [12, 13, 14, 15], f's{S_TAG}')
    a('v_cmp_ne_u32 vcc, 0, v10')
    a('s_cbranch_vccz L_crec')
    a('s_waitcnt vmcnt(0)')
    a('s_branch L_call')
    a.label('L_crec')
    a('v_cndmask_b32 v9, 0, v14, s[88:89]')
    a('v_mov_b32 v14, v12')
    for op, v in (('v_max_f32', 14), ('v_add_f32', 14)):
        for c in ('quad_perm:[1,0,3,2]', 'quad_perm:[2,3,0,1]', 'row_ror:4', 'row_ror:8'):
            dpp(op, v, v, v, c)
        swap_step(op, v, 15, 16)
        if op == 'v_max_f32':
            a('v_sub_f32 v12, v12, v14')
            a('v_exp_f32 v12, v12')
            a('v_mul_f32 v14, v12, v13')
    a('v_rcp_f32 v14, v14')
    a('v_mul_f32 v12, v12, v14')
    a('v_cvt_pk_bf16_f32 v12, v12, 0')
    for i in range(4):
        a(f'ds_bpermute_b32 v{WL + i}, v51, v12 offset:{16 * i}')
    a('s_waitcnt lgkmcnt(0)')
    for i in range(4):
        a(f'v_lshlrev_b32 v{WL + 4 + i}, 16, v{WL + i}')
    a('s_waitcnt vmcnt(0)')
    stamp(8)
    f3(66)
    xor_chain(9, [9] + list(range(D, D + 16)))
    steps = ['quad_perm:[1,0,3,2]', 'quad_perm:[2,3,0,1]', 'row_ror:4', 'row_ror:8', 16, 32]
    for i in range(4):
        for u in range(4):
            for e in range(2):
                c = '0' if i == 0 else f'v{CA + 2 * u + e}'
                a(f'v_dot2_f32_bf16 v{CA + 2 * u + e}, v{D + 4 * i + u}, v{WL + 4 * e + i}, {c}')
            if u % 2 == 1 and steps:
                st = steps.pop(0)
                if isinstance(st, str):
                    dpp('v_xor_b32', 9, 9, 9, st)
                    if st == 'row_ror:8':
                        a('v_mov_b32 v10, v9')
                else:
                    a(f'v_permlane{st}_swap_b32 v9, v10')
                    a('v_xor_b32 v9, v9, v10')
                    a('v_mov_b32 v10, v9')
    a('v_cmp_ne_u32 vcc, 0, v9')
    for k in range(4):
        a(f'v_permlane16_swap_b32 v{CA + 2 * k}, v{CA + 2 * k + 1}')
    a('s_cbranch_vccnz L_call')
    a.label('L_cdone')
    for k in range(4):
        a(f'v_add_f32 v{CA + 2 * k}, v{CA + 2 * k}, v{CA + 2 * k + 1}')
    for k in range(2):
        a(f'v_permlane32_swap_b32 v{CA + 4 * k}, v{CA + 4 * k + 2}')
    for k in range(2):
        a(f'v_add_f32 v{CA + 4 * k}, v{CA + 4 * k}, v{CA + 4 * k + 2}')
    a(f'v_cvt_pk_bf16_f32 v{CA}, v{CA}, v{CA + 4}')
    a(f'ds_write_b16 v48, v{CA}')
    a(f'ds_write_b16_d16_hi v48, v{CA} offset:8')
    f3(68)
    a('s_waitcnt lgkmcnt(0)')
    a('s_barrier')
    f3(70)
    a('s_cmp_ge_u32 s3, 4')
    a('s_cbranch_scc1 L_hi')
    for t in range(4):
        a(f'ds_read_b128 {vr(D + 4 * t, 4)}, v49 offset:{64 * t}')
    for t in range(4):
        a(f's_waitcnt lgkmcnt({3 - t})')
        for k in range(2):
            mfma16(CA + 4 * k, OPC + 8 * t + 4 * k, D + 4 * t, t == 0)
    for i in range(8):
        dpp('v_add_f32', CA + i, CA + i, CA + i, 'row_ror:4')
    for i in range(4):
        a(f'v_cvt_pk_bf16_f32 v{12 + i}, v{CA + 2 * i}, v{CA + 2 * i + 1}')
    ex(M4)
    a(f'buffer_store_dwordx4 v[12:15], v50, {S(R_WS)}, s98 offen sc1')
    ex(-1)
    stamp(9)
    f3(72)
    a('s_waitcnt vmcnt(0)')
    f3(74)
    if o.ddelay:
        a(f's_sleep {o.ddelay}')

    def d_loads():
        for i in range(4):
            a(f'buffer_load_dwordx4 {vr(D + 4 * i, 4)}, v128, {S(R_WS)}, s6 offen offset:{1024 * i} sc1')
    poll(d_loads, lambda: chk_sentinel(range(D, D + 16), 10), o.dsleep)
    stamp(10)
    f3(76)
    for t in range(4):
        for k in range(2):
            mfma16(CA + 4 * k, OPD + 8 * t + 4 * k, D + 4 * t, t == 0)
    for c in ('row_ror:4', 'row_ror:8'):
        for i in range(8):
            dpp('v_add_f32', CA + i, CA + i, CA + i, c)
    ex(M4)
    a(f'ds_write_b128 v129, {vr(CA, 4)}')
    a(f'ds_write_b128 v129, {vr(CA + 4, 4)} offset:64')
    ex(-1)
    a('s_waitcnt lgkmcnt(0)')
    a('s_barrier')
    a('s_cmp_lg_u32 s3, 0')
    a('s_cbranch_scc1 L_end')
    red4_read(D, 130)
    a(f'v_cvt_pk_bf16_f32 v{D}, v{D}, v{D + 1}')
    a(f'v_cvt_pk_bf16_f32 v{D + 1}, v{D + 2}, v{D + 3}')
    a(f'buffer_store_dwordx2 {vr(D, 2)}, v131, {S(R_WS)}, s99 offen sc1')
    f3(78)
    if o.stamps:
        a('s_memrealtime s[88:89]')
    a('s_waitcnt vmcnt(0)')
    if o.stamps:
        a('s_barrier')
    if o.st3:
        o.stamps = 1
    if o.stamps:
        dump_stamps(13, 0, 'a')
    a('s_endpgm')

    a.label('L_hi')
    a('s_cmp_eq_u32 s61, 0')
    a('s_cbranch_scc1 L_end')

    def e_lds_read():
        for w in range(4):
            a(f'ds_read_b32 v{H + 2 * w}, v{ER} offset:{16384 * w}')
            a(f'ds_read_b32 v{H + 2 * w + 1}, v{ER} offset:{16384 * w + 128}')
    e_lds_read()
    a('s_lshl_b32 s98, s63, 7')
    a(f's_mul_i32 s93, s94, {4 * 12288}')
    a('s_add_u32 s98, s98, s93')
    a(f's_add_u32 s98, s98, {WS_FP}')
    a('s_mul_i32 s99, s63, 6144')
    a(f's_add_u32 s99, s99, {WS_FP}')
    a('s_add_u32 s97, s99, 4096')
    a('s_lshr_b32 s96, s63, 1')
    a('s_lshl_b32 s96, s96, 6')
    a('s_lshl_b32 s90, s94, 10')
    a(f's_add_u32 s90, s90, {WS_HP}')
    a('s_waitcnt lgkmcnt(0)')
    a(f'v_add_f32 v{ECS}, v{H}, v{H + 2}')
    a(f'v_add_f32 v{ECS + 1}, v{H + 1}, v{H + 3}')
    for w in range(2, 4):
        a(f'v_add_f32 v{ECS}, v{ECS}, v{H + 2 * w}')
        a(f'v_add_f32 v{ECS + 1}, v{ECS + 1}, v{H + 2 * w + 1}')
    a('s_barrier')
    a('s_barrier')
    if o.edelay:
        a(f's_sleep {o.edelay}')

    def e_loads():
        a('s_mov_b32 s92, s90')
        for r in range(8):
            a(f'buffer_load_dwordx4 {vr(H + 4 * r, 4)}, v{EG}, {S(R_WS)}, s92 offen sc1')
            if r < 7:
                a('s_add_u32 s92, s92, 4096')
    f3(66)
    poll(e_loads, lambda: chk_sentinel(range(H, H + 32), 10), 0)
    stamp(9)
    f3(68)
    for r in range(8):
        for u in range(4):
            for e in range(2):
                c = f'v{132 + 2 * u + e}' if r == 0 else f'v{HA + 2 * u + e}'
                a(f'v_dot2_f32_bf16 v{HA + 2 * u + e}, v{H + 4 * r + u}, s{S_LO1 + e}, {c}')
    f3(70)
    for i in range(4):
        a(f'v_cvt_pk_bf16_f32 v{X4 + i}, v{HA + 2 * i}, v{HA + 2 * i + 1}')
    for t in range(4):
        if t < 3:
            for i in range(4):
                a(f'v_mov_b32_dpp v{X4 + 4 * (t + 1) + i}, v{X4 + i} row_shl:{4 * (t + 1)} row_mask:0xf bank_mask:0xf bound_ctrl:0')
        for k in range(4):
            mfma16(EA + 4 * k, OP + 16 * t + 4 * k, X4 + 4 * t, t == 0)
        if t == 0:
            a(f'ds_write_b128 v{EHW}, {vr(X4, 4)}')
            for i in range(4):
                a(f'v_dot2_f32_bf16 v9, v{X4 + i}, s{S_ONES}, {"0" if i == 0 else "v9"}')
                a(f'v_dot2_f32_bf16 v10, v{X4 + i}, v{X4 + i}, {"0" if i == 0 else "v10"}')
        if t == 1:
            for c in ('row_ror:4', 'row_ror:8'):
                dpp('v_add_f32', 9, 9, 9, c)
                dpp('v_add_f32', 10, 10, 10, c)
        if t == 2:
            a('v_permlane16_swap_b32 v9, v10')
            a('v_add_f32 v9, v9, v10')
            swap_step('v_add_f32', 9, 10, 32)
    ex(0x000f000f)
    f3(72)
    a(f'ds_write_b32 v{ES}, v9 offset:1024')
    e_lds_write()
    a('s_waitcnt lgkmcnt(0)')
    a('s_barrier')
    f3(74)
    a('s_cmp_ge_u32 s3, 6')
    a('s_cbranch_scc1 L_eact')
    for w in range(4):
        a(f'ds_read_b64 v[{H + 8 + 2 * w}:{H + 9 + 2 * w}], v{ESR} offset:{16384 * w + 1024}')
    e_lds_read()
    a('s_waitcnt lgkmcnt(8)')
    for w in range(1, 4):
        a(f'v_add_f32 v{H + 8}, v{H + 8}, v{H + 8 + 2 * w}')
        a(f'v_add_f32 v{H + 9}, v{H + 9}, v{H + 9 + 2 * w}')
    MU, VA = H + 8, H + 9
    a(f'v_mul_f32 v{MU}, 0x3b000000, v{MU}')
    a(f'v_mul_f32 v{VA}, 0x3b000000, v{VA}')
    a(f'v_fma_f32 v{VA}, -v{MU}, v{MU}, v{VA}')
    a(f'v_max_f32 v{VA}, 0, v{VA}')
    a(f'v_add_f32 v{VA}, 0x3727c5ac, v{VA}')
    a(f'v_rsq_f32 v{VA}, v{VA}')
    a('s_waitcnt lgkmcnt(0)')
    for w in range(1, 4):
        a(f'v_add_f32 v{H}, v{H}, v{H + 2 * w}')
        a(f'v_add_f32 v{H + 1}, v{H + 1}, v{H + 2 * w + 1}')
    a(f'v_fma_f32 v16, -v{MU}, v{ECS}, v16')
    a(f'v_fma_f32 v17, -v{MU}, v{ECS + 1}, v17')
    a(f'v_mul_f32 v16, v16, v{VA}')
    a(f'v_mul_f32 v17, v17, v{VA}')
    a('v_mul_f32 v18, v16, v16')
    a('v_mov_b32 v19, 1.0')
    a('v_fmac_f32 v19, 0x3d372713, v18')
    a('v_mul_f32 v19, v19, v16')
    a(f'v_mul_f32 v19, {GELU_BITS}, v19')
    a('v_exp_f32 v19, v19')
    a('v_mul_f32 v16, v16, v17')
    a('v_add_f32 v19, 1.0, v19')
    a('v_rcp_f32 v19, v19')
    a('v_mul_f32 v16, v16, v19')
    a('v_mov_b32_dpp v17, v16 quad_perm:[1,1,3,3] row_mask:0xf bank_mask:0xf')
    a('v_cvt_pk_bf16_f32 v16, v16, v17')
    ex(0x5555555555555555)
    a(f'ds_write_b32 v{EST}, v16')
    ex(-1)
    a('s_waitcnt lgkmcnt(0)')
    a.label('L_eact')
    a('s_barrier')
    f3(76)
    a(f'ds_read_b128 v[16:19], v{EAR}')
    a(f'ds_read_b128 v[20:23], v{GH}')
    a('s_waitcnt lgkmcnt(1)')
    for k in range(8):
        mfma16(FA + 4 * k, OPW + 4 * k, 16, True)
    ex(M4)
    for p in range(4):
        for i in range(4):
            a(f'v_cvt_pk_bf16_f32 v{96 + 4 * p + i}, v{FA + 8 * p + 2 * i}, v{FA + 8 * p + 2 * i + 1}')
        a(f'buffer_store_dwordx4 {vr(96 + 4 * p, 4)}, v{EPS}, {S(R_WS)}, s98 offen sc1')
        if p < 3:
            a('s_add_u32 s98, s98, 12288')
    ex(-1)
    stamp(10)
    f3(78)
    a('s_cmp_lg_u32 s3, 4')
    a('s_cbranch_scc1 L_end')
    a('s_cmp_ge_u32 s63, 32')
    a('s_cbranch_scc1 L_efend')
    G, GA = 24, 48
    for i in range(8):
        a(f'v_mov_b32 v{56 + i}, 0')
    a('s_waitcnt lgkmcnt(0)')
    ex(0xff)
    for u in range(4):
        for e in range(2):
            a(f'v_dot2_f32_bf16 v{56 + 2 * u + e}, v{20 + u}, s{S_LO1 + e}, 0')
    ex(-1)
    a(f's_mov_b32 s{S_CNT}, {SPIN}')
    a('s_waitcnt vmcnt(0)')
    if o.fdelay:
        a(f's_sleep {o.fdelay}')
    a.label('L_gre')
    for i in range(6):
        a(f'buffer_load_dwordx4 {vr(G + 4 * i, 4)}, v{2 if i < 5 else GL}, {S(R_WS)}, s{99 if i < 4 else 97} offen offset:{1024 * (i % 4)} sc1')
    for i in range(6):
        a(f's_waitcnt vmcnt({5 - i})')
        for u in range(4):
            for e in range(2):
                c = 56 + 2 * u + e if i == 0 else GA + 2 * u + e
                a(f'v_dot2_f32_bf16 v{GA + 2 * u + e}, v{G + 4 * i + u}, s{S_LO1 + e}, v{c}')
        if i == 0:
            a(f'v_max3_u32 v10, v{G}, v{G + 1}, v{G + 2}')
            a(f'v_max_u32 v10, v10, v{G + 3}')
        else:
            a(f'v_max3_u32 v10, v10, v{G + 4 * i}, v{G + 4 * i + 1}')
            a(f'v_max3_u32 v10, v10, v{G + 4 * i + 2}, v{G + 4 * i + 3}')
    a('v_cmp_eq_u32 vcc, -1, v10')
    for k in range(4):
        a(f'v_permlane16_swap_b32 v{GA + 2 * k}, v{GA + 2 * k + 1}')
    a('s_cbranch_vccz L_gok')
    a(f's_sub_u32 s{S_CNT}, s{S_CNT}, 1')
    a('s_cbranch_scc0 L_gre')
    a.label('L_gok')
    stamp(7)
    for k in range(4):
        a(f'v_add_f32 v{GA + 2 * k}, v{GA + 2 * k}, v{GA + 2 * k + 1}')
    for k in range(2):
        a(f'v_permlane32_swap_b32 v{GA + 4 * k}, v{GA + 4 * k + 2}')
    for k in range(2):
        a(f'v_add_f32 v{GA + 4 * k}, v{GA + 4 * k}, v{GA + 4 * k + 2}')
    for k in range(2):
        dpp('v_add_f32', GA + 4 * k, GA + 4 * k, GA + 4 * k, 'row_ror:8')
    a(f'v_cvt_pk_bf16_f32 v{GA}, v{GA}, v{GA + 4}')
    ex(0x00ff00ff00ff00ff)
    a(f'buffer_store_short v{GA}, v{GO_}, {S(R_OUT)}, s96 offen')
    a(f'buffer_store_short_d16_hi v{GA}, v{GO_}, {S(R_OUT)}, s96 offen offset:8')
    a('s_cmp_lg_u32 s63, 0')
    a('s_cbranch_scc1 L_efend')
    ex(1)
    a(f'v_mov_b32 v12, s{S_TAG}')
    a(f's_mov_b32 s90, {WS_EPOCH}')
    a(f'buffer_store_dword v12, off, {S(R_WS)}, s90')
    a.label('L_efend')
    if o.diag:
        a.label('L_diag')
        a('s_memrealtime s[90:91]')
        a('s_waitcnt lgkmcnt(0)')
        a('s_sub_u32 s90, s90, s100')
        a(f's_cmp_lt_u32 s90, {o.diag}')
        a('s_cbranch_scc1 L_diag')
    if o.stamps:
        stamp(8)
        a('s_cmp_lg_u32 s3, 4')
        a('s_cbranch_scc1 L_end')
        dump_stamps(11, 1)
    a('s_endpgm')

    a.label('L_att')
    srd([R_CKV])
    a('s_bfe_u32 s4, s2, 0x20001')
    a('s_bfe_u32 s5, s2, 0x40003')
    a('s_lshl_b32 s5, s5, 1')
    a('s_and_b32 s6, s2, 1')
    a('s_add_u32 s5, s5, s6')
    a('s_lshl_b32 s90, s4, 23')
    a('s_lshl_b32 s91, s5, 18')
    a('s_add_u32 s90, s90, s91')
    a('s_and_b32 s7, s3, 3')
    a('s_lshl_b32 s91, s7, 14')
    a('s_add_u32 s90, s90, s91')
    a('s_lshl_b32 s91, s7, 15')
    a('s_lshl_b32 s92, s7, 2')
    a(f's_add_u32 s92, s92, {FB}')
    a('v_mov_b32 v7, s92')
    a(f'v_lshlrev_b32 v10, 2, v4')
    a(f'v_add_u32 v10, {FB}, v10')
    a('s_cmp_lt_u32 s3, 4')
    a('s_cbranch_scc1 L_comp')
    a('s_mov_b32 s3, s7')
    VX, TR, O_ = 12, 128, 64
    for j in range(8):
        a(f'v_xor_b32 v{VX + j}, {32 * j}, v2')
    a('s_mov_b32 m0, s91')
    a('s_mov_b32 s93, 0')
    a('s_waitcnt lgkmcnt(0)')
    srd_ptr([R_CKV])
    BUF = (0, 1, 1, 0)
    TAL, vPR, vST, vRC, vRM, vRL, vAR = 20, 28, 29, 30, 31, 32, 33

    def pv_setup():
        a('v_bfe_u32 v40, v1, 2, 2')
        a('v_lshrrev_b32 v42, 5, v1')
        a('v_lshlrev_b32 v41, 2, v40')
        a('v_lshl_add_u32 v41, v42, 1, v41')
        a('v_and_b32 v43, 1, v3')
        a('v_lshlrev_b32 v44, 1, v43')
        a('v_bfe_u32 v45, v1, 1, 1')
        a('v_add_u32 v44, v44, v45')
        a('v_xor_b32 v44, v44, v41')
        a('v_lshlrev_b32 v41, 10, v41')
        a('v_lshl_add_u32 v41, v44, 4, v41')
        a('v_and_b32 v45, 1, v1')
        a('v_lshl_add_u32 v41, v45, 3, v41')
        a('s_lshl_b32 s95, s3, 8')
        a('v_add_u32 v41, s95, v41')
        for i in range(8):
            a(f'v_xor_b32 v{TAL + i}, {64 * (i % 4) + 65536 * (i // 4)}, v41')
        a(f'v_add_u32 v{vPR}, {L_P}, v2')
        a(f'v_lshlrev_b32 v{vAR}, 4, v42')
        a(f'v_add_u32 v{vAR}, {L_ALPHA}, v{vAR}')
        a('v_lshl_add_u32 v42, v42, 2, v43')
        a(f'v_lshlrev_b32 v{vST}, 17, v42')
        a(f'v_lshl_add_u32 v{vST}, v11, 4, v{vST}')
        a('v_lshl_add_u32 v42, v45, 4, v42')
        a('v_bfe_u32 v44, v1, 2, 1')
        a('v_lshl_add_u32 v42, v44, 3, v42')
        a('v_bfe_u32 v44, v1, 3, 1')
        a('v_lshl_add_u32 v42, v44, 1, v42')
        a(f'v_lshlrev_b32 v{vRM}, 2, v42')
        a(f'v_add_u32 v{vRM}, {L_MFIN}, v{vRM}')
        a(f'v_lshlrev_b32 v{vRC}, 4, v42')
        a(f'v_add_u32 v{vRL}, {L_MAX}, v{vRC}')
        a('s_lshl_b32 s96, s3, 2')
        a('s_add_u32 s96, s96, s4')
        a('s_lshl_b32 s96, s96, 13')
        a('s_lshl_b32 s95, s5, 8')
        a('s_add_u32 s96, s96, s95')
        a(f's_add_u32 s96, s96, {WS_OP}')
        a('s_lshl_b32 s97, s4, 16')
        a('s_lshl_b32 s95, s5, 11')
        a('s_add_u32 s97, s97, s95')
        a('s_lshl_b32 s95, s3, 9')
        a('s_add_u32 s97, s97, s95')
        a(f's_add_u32 s97, s97, {WS_REC}')
        a('v_add_u32 v9, s91, v2')
    rows = [(T, j) for T in range(3) for j in range(16) if not (T == 1 and j == 15)]
    landed = 0
    pub = {0: 16, 1: 31}

    def publish():
        for tt in list(pub):
            if landed >= pub[tt]:
                a(f'v_mov_b32 v5, {tt + 1}')
                a(f'ds_write_b32 v7, v5 offset:{F_LAND}')
                del pub[tt]

    def dma_row(j):
        a(f'buffer_load_dwordx4 v{VX + j // 2}, {S(R_CKV)}, s90 offen offset:{(j % 4) * 1024} nt lds')
    for n, (T, j) in enumerate(rows):
        w = o.w0 if n < o.n0 else o.window
        if n >= o.n0:
            lb = a.uid('fast')
            a('s_cmp_lg_u32 s93, 0')
            a(f's_cbranch_scc1 {lb}')
            if n % 2 == 0:
                a(f'ds_read_b32 v6, v10 offset:{F_HUS if o.sw == 1 else F_QST}')
            a(f's_waitcnt vmcnt({o.w1 - 1})')
            if n % 2 == 0:
                a('s_waitcnt lgkmcnt(0)')
                a('v_cmp_eq_u32 vcc, 0, v6')
                a('s_cmp_eq_u64 vcc, 0')
                a('s_cselect_b32 s93, 1, 0')
            a.label(lb)
        if n - landed >= w:
            a(f's_waitcnt vmcnt({w - 1})')
            landed = n - (w - 1)
        if n in (16 + o.w1, 31 + o.lw) and landed < n - (o.w1 if n < 31 else o.lw):
            k = o.w1 if n < 31 else o.lw
            a(f's_waitcnt vmcnt({k})')
            landed = n - k
        publish()
        if n == 20:
            get_tag()
            a('v_mov_b32 v35, 0')
        if n == o.gon and o.wgo:
            lb = a.uid('nogo')
            a('s_cmp_lg_u32 s3, 0')
            a(f's_cbranch_scc1 {lb}')
            a('s_sub_u32 s92, s2, 128')
            a('s_lshl_b32 s92, s92, 7')
            a(f's_add_u32 s92, s92, {WS_GO}')
            a(f'v_mov_b32 v6, s{S_TAG}')
            a('v_lshlrev_b32 v8, 2, v1')
            ex(0xffffffff)
            a(f'buffer_store_dword v6, v8, {S(R_WS)}, s92 offen sc1')
            ex(-1)
            a.label(lb)
        if T < 2:
            dma_row(j)
        else:
            a(f'buffer_load_dwordx4 {vr(TR + 64 * (T - 2) + 4 * j, 4)}, v{VX + j // 2}, {S(R_CKV)}, s90 offen offset:{(j % 4) * 1024} nt')
        last = j == 15 or (T == 1 and j == 14)
        if j % 4 == 3 or last:
            a(f's_add_u32 s90, s90, {4096 + 49152 if last else 4096}')
            if T < 2:
                a('s_add_u32 m0, m0, 4096')
        if n == o.w0 - 1:
            a(f's_load_dword s{S_TAG}, s[{R_WS}:{R_WS + 1}], {WS_EPOCH}')
            a('s_barrier')
            pv_setup()
        if n == 30:
            stamp(1)
    assert not pub
    stamp(2)
    if o.pvprio:
        a(f's_setprio {o.pvprio}')
    PF = 36
    BFS = (44, 48, 52, 56, 60, 12, 16)
    NB = len(BFS)
    DIST = 6
    FLG = 34

    def pv(t):
        seq = [(ks, blk) for ks in range(4) for blk in range(4)]

        def rd(n):
            ks, blk = seq[n]
            for tau in range(2):
                a(f'ds_read_b64_tr_b16 {vr(BFS[n % NB] + 2 * tau, 2)}, v{TAL + blk + 4 * (ks // 2)} offset:{32768 * (ks % 2) + 16384 * BUF[t] + 1024 * tau}')

        def p_rd(ks):
            a(f'ds_read_b128 {vr(PF + 4 * (ks % 2), 4)}, v{vPR} offset:{4096 * t + 1024 * ks}')
        a(f's_mov_b32 s{S_CNT}, {SPIN * 40}')
        a('s_mov_b32 s95, 2')
        a.label(f'L_pp{t}')
        a(f'ds_read_b32 v{FLG}, v10 offset:{F_PS + 16 * t}')
        a('s_waitcnt lgkmcnt(0)')
        a(f'v_cmp_ne_u32 vcc, s95, v{FLG}')
        a(f's_cbranch_vccnz L_ps{t}')
        a.label(f'L_pg{t}')
        p_rd(0)
        ops = ['P0']

        def issue_rd(n):
            rd(n)
            ops.extend([f'R{n}', f'R{n}'])
        for n in range(DIST):
            issue_rd(n)
            if n == 1:
                p_rd(1)
                ops.append('P1')
        for n in range(16):
            ks, blk = seq[n]
            need = max(i for i, x in enumerate(ops) if x in (f'R{n}', f'P{ks}'))
            a(f's_waitcnt lgkmcnt({min(15, len(ops) - 1 - need)})')
            if t == 0 and blk == 3:
                a(f'ds_write_b32 v7, v35 offset:{F_DONE}')
                ops.append('W')
            c = '0' if (t == 0 and ks == 0) else vr(O_ + 16 * blk, 16)
            a(f'v_mfma_f32_32x32x16_bf16 {vr(O_ + 16 * blk, 16)}, {vr(PF + 4 * (ks % 2), 4)}, {vr(BFS[n % NB], 4)}, {c}')
            if t == 0 and blk == 1:
                a('v_add_u32 v35, 1, v35')
            if n in (3, 7):
                p_rd(2 + n // 4)
                ops.append(f'P{2 + n // 4}')
            if n + DIST < 16:
                issue_rd(n + DIST)

    pv(0)
    stamp(3)
    pv(1)
    stamp(4)
    a('v_mov_b32 v5, 5')
    a(f'ds_write_b32 v7, v5 offset:{F_DONE}')
    lds_wait(10, F_DONE, 5, 5, 0)
    for j in range(16):
        if j % 2 == 0:
            a(f's_waitcnt vmcnt({14 - j})')
        a(f'ds_write_b128 v9, {vr(TR + 4 * j, 4)} offset:{1024 * j + 16384}')
    a('v_mov_b32 v5, 3')
    a(f'ds_write_b32 v7, v5 offset:{F_LAND}')
    stamp(5)
    pv(2)
    stamp(6)
    pv(3)
    stamp(7)
    PK, XX = 128, 160

    def l_reads():
        a(f'ds_read_b32 v{FLG}, v10 offset:{F_LSEQ}')
        a(f'ds_read_b128 v[172:175], v{vRL}')
        a(f'ds_read_b32 v168, v{vRM}')
    l_reads()
    for ap in range(8):
        t = PK + 4 * ap
        j = 2 * ap
        a(f'v_cvt_pk_bf16_f32 v{t}, v{O_ + j}, v{O_ + 16 + j}')
        a(f'v_cvt_pk_bf16_f32 v{t + 2}, v{O_ + j + 1}, v{O_ + 16 + j + 1}')
        a(f'v_cvt_pk_bf16_f32 v{t + 1}, v{O_ + 32 + j}, v{O_ + 48 + j}')
        a(f'v_cvt_pk_bf16_f32 v{t + 3}, v{O_ + 32 + j + 1}, v{O_ + 48 + j + 1}')
        a(f'v_permlane16_swap_b32 v{t}, v{t + 2}')
        a(f's_add_u32 s92, s96, {(8 * (ap // 2) + 2 * (ap % 2)) * 131072}')
        a(f'v_permlane16_swap_b32 v{t + 1}, v{t + 3}')
        a(f'buffer_store_dwordx4 {vr(t, 4)}, v{vST}, {S(R_WS)}, s92 offen sc1')
        xor_chain(XX + ap, range(t, t + 4))
        if ap % 2 == 1:
            k = ap // 2
            dpp('v_xor_b32', XX + 2 * k, XX + 2 * k, XX + 2 * k, 'row_ror:8', 0x3)
            dpp('v_xor_b32', XX + 2 * k, XX + 2 * k + 1, XX + 2 * k + 1, 'row_ror:8', 0xc)
        if ap % 4 == 3:
            m = ap // 4
            dpp('v_xor_b32', XX + 4 * m, XX + 4 * m, XX + 4 * m, 'row_half_mirror', 0x5)
            dpp('v_xor_b32', XX + 4 * m, XX + 4 * m + 2, XX + 4 * m + 2, 'row_half_mirror', 0xa)
            dpp('v_xor_b32', XX + 4 * m, XX + 4 * m, XX + 4 * m, 'quad_perm:[1,0,3,2]')
            dpp('v_xor_b32', 170 if m == 0 else XX + 4, XX + 4 * m, XX + 4 * m, 'quad_perm:[2,3,0,1]')
        if ap == 4:
            a('s_waitcnt lgkmcnt(0)')
            a(f'v_cmp_ne_u32 vcc, 1, v{FLG}')
            a('s_cbranch_vccnz L_lslow')
            a.label('L_lok')
            a('v_add_f32 v172, v172, v173')
            a('v_add_f32 v174, v174, v175')
            a('v_add_f32 v169, v172, v174')
            a(f'v_bitop3_b32 v171, v168, v169, s{S_TAG} {XOR3}')
    ex(0x2222222222222222)
    a(f'v_mov_b32 v170, v{XX + 4}')
    ex(0x3333333333333333)
    a('v_xor_b32 v171, v171, v170')
    a(f'buffer_store_dwordx4 v[168:171], v{vRC}, {S(R_WS)}, s97 offen sc1')
    if o.stamps:
        stamp(8)
        a('s_waitcnt vmcnt(0)')
        stamp(9)
        a('s_cmp_lg_u32 s3, 0')
        a('s_cbranch_scc1 L_end')
        dump_stamps(11, 1)
    a('s_endpgm')
    a.label('L_lslow')
    l_reads()
    a('s_waitcnt lgkmcnt(0)')
    a(f'v_cmp_ne_u32 vcc, 1, v{FLG}')
    a('s_cbranch_vccz L_lok')
    a(f's_sub_u32 s{S_CNT}, s{S_CNT}, 1')
    a('s_cbranch_scc0 L_lslow')
    a('s_branch L_lok')
    for t in range(4):
        a.label(f'L_ps{t}')
        a(f'v_cmp_ne_u32 vcc, 3, v{FLG}')
        a(f's_cbranch_vccz L_pr{t}')
        a('s_sleep 1')
        a(f's_sub_u32 s{S_CNT}, s{S_CNT}, 1')
        a(f's_cbranch_scc0 L_pp{t}')
        a(f's_branch L_pg{t}')
        a.label(f'L_pr{t}')
        if t > 0:
            for jq in range(4):
                a(f'ds_read_b128 {vr(44 + 4 * jq, 4)}, v{vAR} offset:{128 * t + 32 * jq}')
            a('s_waitcnt lgkmcnt(0)')
            a('s_nop 7')
            for blk in range(4):
                for j in range(16):
                    a(f'v_mul_f32 v{O_ + 16 * blk + j}, v{O_ + 16 * blk + j}, v{44 + j}')
        a(f's_branch L_pg{t}')

    a.label('L_comp')
    QA = 128
    vMW, vFW, vPW, vFR, vAW, vMR = 6, 7, 8, 10, 11, 9
    NM, LL = 12, 14
    SS, PKS, EX4, AA, AQ, WK = 32, 40, 44, 48, 56, 64
    NA = 8
    a('v_lshlrev_b32 v16, 2, v1')
    a(f'v_add_u32 v16, {FB}, v16')
    a('v_mov_b32 v17, 0')
    a('ds_write_b32 v16, v17')
    a('s_waitcnt lgkmcnt(0)')
    a('s_barrier')
    a(f's_load_dword s{S_TAG}, s[{R_WS}:{R_WS + 1}], {WS_EPOCH}')
    srd_ptr([R_CKV])
    consts()
    a(f's_add_u32 s63, s90, {65536 + 15 * 1024}')
    a(f's_add_u32 s99, s90, {3 * 65536}')
    a('s_mov_b32 m0, s91')
    for j in range(8):
        a(f'v_xor_b32 v{104 + j}, {32 * j}, v2')
    a('v_xor_b32 v21, 0xe0, v2')
    a(f'buffer_load_dwordx4 v[24:27], v21, {S(R_CKV)}, s63 offen nt')
    a('v_mov_b32 v20, 128')
    a('global_load_dword v100, v20, s[86:87] sc1')
    a(f's_add_u32 s6, s91, {16384 + 15 * 1024}')
    a('v_add_u32 v28, s6, v2')
    a('s_lshl_b32 s90, s4, 15')
    a('s_lshl_b32 s95, s3, 13')
    a('s_add_u32 s90, s90, s95')
    if WS_QA:
        a(f's_add_u32 s90, s90, {WS_QA}')
    a('s_add_u32 s92, s90, 4096')
    a('s_lshl_b32 s93, s3, 12')
    a('s_lshl_b32 s94, s4, 3')
    a('s_add_u32 s93, s93, s94')
    a(f's_add_u32 s93, s93, {WS_QAH}')
    a('v_lshrrev_b32 v16, 1, v1')
    a('v_lshlrev_b32 v16, 7, v16')
    a('s_and_b32 s94, s3, 1')
    a('s_lshl_b32 s94, s94, 7')
    a('v_xor_b32 v17, s94, v2')
    a(f's_add_u32 s95, s95, {SB}')
    a('v_add_u32 v17, s95, v17')
    for i in range(4):
        a(f'v_xor_b32 v{96 + i}, {32 * i}, v17')
    a('v_lshrrev_b32 v22, 5, v1')
    a('v_and_b32 v29, 1, v3')
    a('v_lshlrev_b32 v23, 4, v29')
    a('v_lshl_add_u32 v23, v22, 9, v23')
    a('v_bfe_u32 v18, v1, 3, 1')
    a('v_lshl_add_u32 v18, v18, 2, v4')
    a('v_lshl_add_u32 v18, v18, 5, v23')
    a('v_lshl_add_u32 v18, v11, 10, v18')
    a(f'v_add_u32 v18, {SB}, v18')
    a('v_bfe_u32 v20, v1, 2, 2')
    a('v_lshl_add_u32 v21, v4, 2, v20')
    a('v_lshl_add_u32 v19, v21, 10, v23')
    a('v_and_b32 v21, 14, v21')
    a('v_lshl_add_u32 v19, v21, 4, v19')
    a('v_add_u32 v19, s91, v19')
    for i in range(8):
        a(f'v_xor_b32 v{AA + i}, {32 * i}, v19')
        a(f'v_xor_b32 v{AQ + i}, {32 * i}, v18')
    a('v_and_b32 v20, 31, v1')
    a('s_lshl_b32 s95, s3, 2')
    a(f's_add_u32 s95, s95, {L_MAX}')
    a(f'v_lshl_add_u32 v{vMW}, v20, 4, s95')
    a(f'v_lshlrev_b32 v{vPW}, 9, v22')
    a(f'v_lshl_add_u32 v{vPW}, v11, 4, v{vPW}')
    a(f'v_lshl_add_u32 v{vPW}, v29, 3, v{vPW}')
    a('s_lshl_b32 s95, s3, 10')
    a(f's_add_u32 s95, s95, {L_P}')
    a(f'v_add_u32 v{vPW}, s95, v{vPW}')
    a(f'v_lshlrev_b32 v{vMR}, 4, v11')
    a(f'v_add_u32 v{vMR}, {L_MAX}, v{vMR}')
    a(f'v_lshlrev_b32 v{vAW}, 2, v11')
    a(f'v_add_u32 v{vAW}, {L_ALPHA}, v{vAW}')
    a(f'v_mov_b32 v{LL}, 0')
    a(f'v_mov_b32 v{LL + 1}, 0')
    a('v_mov_b32 v0, 1')
    a('v_mov_b32 v5, 2')
    a(f's_mov_b32 s98, {f32bits(float(o.thr))}')
    a('s_mov_b32 s96, 1')
    a('s_sub_u32 s94, s2, 128')
    a('s_lshl_b32 s94, s94, 7')
    a(f's_add_u32 s94, s94, {WS_HU}')
    a(f's_add_u32 s0, s{R_WS}, s94')
    a(f's_addc_u32 s1, s{R_WS + 1}, 0')
    get_tag()
    if o.sprio:
        a(f's_setprio {o.sprio}')
    HR_ = 30

    def q_row(i):
        a(f'buffer_load_dwordx4 {vr(QA + 4 * i, 4)}, v2, {S(R_WS)}, s{90 if i < 4 else 92} offen offset:{1024 * (i % 4)} sc1')
    a(f's_mov_b32 s{S_CNT}, {SPIN}')
    a.label('L_hu')
    a('s_load_dword s94, s[0:1], 0 glc')
    a('s_waitcnt lgkmcnt(0)')
    a(f's_cmp_eq_u32 s94, s{S_TAG}')
    a('s_cbranch_scc1 L_hugo')
    a(f's_sub_u32 s{S_CNT}, s{S_CNT}, 1')
    a('s_cbranch_scc0 L_hu')
    a.label('L_hugo')
    a(f's_mov_b32 s{S_CNT}, {SPIN}')
    a.label('L_qload')
    a(f'buffer_load_dwordx2 {vr(HR_, 2)}, v16, {S(R_WS)}, s93 offen sc1')
    for i in range(8):
        q_row(i)
    a(f'ds_write_b32 v{vFW}, v0 offset:{F_HUS}')
    stamp(8)
    a('s_waitcnt vmcnt(8)')
    a(f'v_bitop3_b32 v21, v{HR_}, v{HR_ + 1}, s{S_TAG} {XOR3}')
    for i in range(8):
        a(f's_waitcnt vmcnt({7 - i})')
        a(f'ds_write_b128 v{96 + i % 4}, {vr(QA + 4 * i, 4)} offset:{1024 * i}')
        xor_chain(19, ([19] if i else []) + list(range(QA + 4 * i, QA + 4 * i + 4)))
    for c in ('quad_perm:[1,0,3,2]', 'quad_perm:[2,3,0,1]', 'row_ror:4', 'row_ror:8'):
        dpp('v_xor_b32', 19, 19, 19, c)
        if c == 'quad_perm:[1,0,3,2]':
            a(f'v_xor_b32 v19, v19, v{HR_}')
    swap_step('v_xor_b32', 19, 20, 16)
    swap_step('v_xor_b32', 19, 20, 32)
    a('v_or_b32 v19, v19, v21')
    a('v_cmp_ne_u32 vcc, 0, v19')
    a('s_cbranch_vccz L_qdone')
    a(f's_sub_u32 s{S_CNT}, s{S_CNT}, 1')
    a('s_cbranch_scc0 L_qload')
    a.label('L_qdone')
    a(f'ds_write_b32 v{vFW}, v0 offset:{F_QST}')
    lds_wait(vFW, F_LAND, 1, 19)
    lds_wait(vFR, F_QST, 1, 19, 0)
    stamp(3)

    def a_read(m, buf):
        a(f'ds_read_b128 {vr(WK + 4 * (m % NA), 4)}, v{AA + m // 2} offset:{256 * (m % 2) + 16384 * buf}')

    def q_read(m):
        for hh in range(2):
            a(f'ds_read_b128 {vr(QA + 64 * hh + 4 * m, 4)}, v{AQ + m // 2} offset:{16384 * hh + 256 * (m % 2)}')

    def s_mfma(st, zero):
        for hh in range(2):
            mfma16(SS + 4 * hh, WK + 4 * (st % NA), QA + 64 * hh + 4 * st, zero and st == 0)
    for st in range(4):
        q_read(st)
        a_read(st, 0)
    for st in range(16):
        a(f's_waitcnt lgkmcnt({3 * min(3, 15 - st)})')
        s_mfma(st, True)
        if st + 4 < 16:
            q_read(st + 4)
            a_read(st + 4, 0)

    def max_xchg(lbl, floor):
        a('v_mov_b32 v18, s96')
        for hh in range(2):
            a(f'v_max3_f32 v{16 + hh}, v{SS + 4 * hh}, v{SS + 4 * hh + 1}, v{SS + 4 * hh + 2}')
            if floor:
                a(f'v_max3_f32 v{16 + hh}, v{16 + hh}, v{SS + 4 * hh + 3}, 0')
            else:
                a(f'v_max_f32 v{16 + hh}, v{16 + hh}, v{SS + 4 * hh + 3}')
        a('v_permlane16_swap_b32 v16, v17')
        a('v_max_f32 v16, v16, v17')
        swap_step('v_max_f32', 16, 17, 32)
        a(f'ds_write_b32 v{vMW}, v16')
        a(f'ds_write_b32 v{vFW}, v18 offset:{F_MSEQ}')
        a(f's_mov_b32 s{S_CNT}, {SPIN * 40}')
        a.label(lbl)
        a(f'ds_read_b32 v18, v{vFR} offset:{F_MSEQ}')
        a(f'ds_read_b128 {vr(WK, 4)}, v{vMR}')
        a(f'ds_read_b128 {vr(WK + 4, 4)}, v{vMR} offset:256')
        a('s_waitcnt lgkmcnt(0)')
        a('v_cmp_gt_u32 vcc, s96, v18')
        a(f's_cbranch_vccz {lbl}go')
        a(f's_sub_u32 s{S_CNT}, s{S_CNT}, 1')
        a(f's_cbranch_scc0 {lbl}')
        a.label(lbl + 'go')
        for hh in range(2):
            a(f'v_max3_f32 v{16 + hh}, v{WK + 4 * hh}, v{WK + 4 * hh + 1}, v{WK + 4 * hh + 2}')
            a(f'v_max_f32 v{16 + hh}, v{16 + hh}, v{WK + 4 * hh + 3}')
            for j in range(4):
                a(f'v_sub_f32 v{SS + 4 * hh + j}, v{SS + 4 * hh + j}, v{16 + hh}')

    def soft(t):
        g = []
        for hh in range(2):
            for j in range(4):
                g.append(f'v_exp_f32 v{EX4 + j}, v{SS + 4 * hh + j}')
            g.append(f'v_cvt_pk_bf16_f32 v{PKS + 2 * hh}, v{EX4}, v{EX4 + 1}')
            g.append(f'v_cvt_pk_bf16_f32 v{PKS + 2 * hh + 1}, v{EX4 + 2}, v{EX4 + 3}')
            g.append(f'ds_write_b64 v{vPW}, {vr(PKS + 2 * hh, 2)} offset:{4096 * t + 256 * hh}')
        return g

    def l_commit():
        for k in range(2):
            for hh in range(2):
                a(f'v_dot2_f32_bf16 v{LL + hh}, v{PKS + 2 * hh + k}, s{S_ONES}, v{LL + hh}')
    max_xchg('L_m0', False)
    for ins in soft(0):
        a(ins)
    a(f'ds_write_b32 v{vFW}, v5 offset:{F_PS}')
    a('ds_write_b128 v28, v[24:27]')
    a(f'ds_write2_b32 v{vAW}, v16, v17 offset0:128 offset1:144')
    for hh in range(2):
        a(f'v_sub_f32 v{NM + hh}, 0, v{16 + hh}')
    l_commit()
    stamp(4)
    PD = 6
    for t in range(1, 4):
        lbl = f'L_l{t}'
        a(f's_mov_b32 s{S_CNT}, {SPIN * 40}')
        for hh in range(2):
            for j in range(4):
                a(f'v_mov_b32 v{SS + 4 * hh + j}, v{NM + hh}')
        if t == 2:
            a('s_add_u32 s94, s3, 1')
            lds_wait(vFR, F_DONE, 's94', 18)
            for j in range(16):
                a(f'buffer_load_dwordx4 v{104 + j // 2}, {S(R_CKV)}, s99 offen offset:{(j % 4) * 1024} nt lds')
                if j % 4 == 3 and j < 15:
                    a('s_add_u32 s99, s99, 4096')
                    a('s_add_u32 m0, m0, 4096')
            stamp(1)
            a(f's_mov_b32 s{S_CNT}, {SPIN * 40}')
        if t < 3:
            a.label(lbl)
            a(f'ds_read_b32 v18, v{vFW} offset:{F_LAND}')
            a('s_waitcnt lgkmcnt(0)')
            a(f'v_cmp_ge_u32 vcc, {t}, v18')
            a(f's_cbranch_vccz {lbl}go')
            a('s_sleep 1')
            a(f's_sub_u32 s{S_CNT}, s{S_CNT}, 1')
            a(f's_cbranch_scc0 {lbl}')
            a.label(lbl + 'go')
        else:
            a('s_waitcnt vmcnt(0)')
            stamp(2)
        for st in range(PD):
            a_read(st, BUF[t])
        if t == 3 and o.rpos == 0:
            a('s_lshl_b32 s94, s4, 2')
            a('s_add_u32 s94, s94, 16')
            arrive(0, 30, 31, 's94')
        for st in range(16):
            a(f's_waitcnt lgkmcnt({min(PD - 1, 15 - st)})')
            s_mfma(st, False)
            if st + PD < 16:
                a_read(st + PD, BUF[t])
        for k, ins in enumerate(soft(t)):
            a(ins)
            if k == 3:
                a(f'v_max3_f32 v19, v{SS}, v{SS + 1}, v{SS + 2}')
                a(f'v_max3_f32 v19, v{SS + 3}, v{SS + 4}, v19')
            if k == 10:
                a(f'v_max3_f32 v19, v{SS + 5}, v{SS + 6}, v19')
                a(f'v_max_f32 v19, v{SS + 7}, v19')
                a('v_cmp_lt_f32 vcc, s98, v19')
        a('s_cmp_eq_u64 vcc, 0')
        a('s_cselect_b32 s91, 2, 1')
        a('v_mov_b32 v18, s91')
        a(f'ds_write_b32 v{vFW}, v18 offset:{F_PS + 16 * t}')
        stamp(4 + t)
        if t == 3 and o.rpos == 1:
            a('s_lshl_b32 s94, s4, 2')
            a('s_add_u32 s94, s94, 16')
            arrive(0, 30, 31, 's94')
        a(f's_mov_b32 s{S_CNT}, {SPIN * 40}')
        a.label(f'L_c{t}')
        a(f'ds_read_b32 v18, v{vFR} offset:{F_PS + 16 * t}')
        a('s_waitcnt lgkmcnt(0)')
        a('v_cmp_ne_u32 vcc, 2, v18')
        a(f's_cbranch_vccnz L_cs{t}')
        a.label(f'L_cg{t}')
        l_commit()
    a('s_lshl_b32 s94, s4, 2')
    a('s_add_u32 s94, s94, 16')
    a(f'v_permlane16_swap_b32 v{LL}, v{LL + 1}')
    a(f'v_add_f32 v{LL}, v{LL}, v{LL + 1}')
    swap_step('v_add_f32', LL, LL + 1, 32)
    a(f'ds_write_b32 v{vMW}, v{LL}')
    a(f'ds_write_b32 v{vFW}, v0 offset:{F_LSEQ}')
    if o.rdelay:
        a(f's_sleep {o.rdelay}')
    if o.rpos == 2:
        arrive(0, 30, 31, 's94')
    a('s_lshl_b32 s94, s4, 7')
    a(f's_add_u32 s94, s94, {WS_FL + 128}')
    release(0, 30, 31, 31, 's94', 's_waitcnt vmcnt(0)')
    stamp(9)
    a.label('L_send')
    if o.stamps:
        a('s_memrealtime s[90:91]')
        a('s_cmp_lg_u32 s3, 0')
        a('s_cbranch_scc1 L_end')
        dump_stamps(14, 0)
    a('s_endpgm')
    for t in range(1, 4):
        a.label(f'L_cs{t}')
        a('v_cmp_eq_u32 vcc, 0, v18')
        a(f's_cbranch_vccz L_ex{t}')
        a(f's_sub_u32 s{S_CNT}, s{S_CNT}, 1')
        a(f's_cbranch_scc0 L_c{t}')
        a(f's_branch L_cg{t}')
        a.label(f'L_ex{t}')
        a('s_add_u32 s96, s96, 1')
        max_xchg(f'L_mx{t}', True)
        for hh in range(2):
            a(f'v_exp_f32 v{20 + hh}, -v{16 + hh}')
            a(f'v_sub_f32 v{NM + hh}, v{NM + hh}, v{16 + hh}')
            a(f'v_sub_f32 v{22 + hh}, 0, v{NM + hh}')
            a(f'v_mul_f32 v{LL + hh}, v{LL + hh}, v{20 + hh}')
        a(f'ds_write2_b32 v{vAW}, v20, v21 offset0:{32 * t} offset1:{32 * t + 16}')
        a(f'ds_write2_b32 v{vAW}, v22, v23 offset0:128 offset1:144')
        for ins in soft(t):
            a(ins)
        a('v_mov_b32 v18, 3')
        a(f'ds_write_b32 v{vFW}, v18 offset:{F_PS + 16 * t}')
        lds_wait(vFR, F_PS + 16 * t, 3, 18, 0)
        a(f's_branch L_cg{t}')
    a.label('L_end')
    a('s_endpgm')

    txt = HEADER
    txt += f'; @launch grid=(256,1,1) block=(512,1,1) lds={LDS_TOTAL}\n'
    txt += '.amdgcn_target "amdgcn-amd-amdhsa--gfx950"\n.text\n'
    txt += a.finalize()
    txt += f""".section .rodata,"a"
.p2align 6
.amdhsa_kernel {name}
  .amdhsa_next_free_vgpr 256
  .amdhsa_next_free_sgpr 102
  .amdhsa_accum_offset 256
  .amdhsa_group_segment_fixed_size 0
  .amdhsa_kernarg_size 104
  .amdhsa_user_sgpr_count 2
  .amdhsa_user_sgpr_kernarg_segment_ptr 1
  .amdhsa_system_sgpr_workgroup_id_x 1
.end_amdhsa_kernel
"""
    return txt


if __name__ == '__main__':
    o = Opt()
    for kv in sys.argv[2:]:
        k, v = kv.split('=')
        setattr(o, k, v.replace('+', ' ') if k == 'r64' else int(v))
    open(sys.argv[1], 'w').write(gen(o))
```

```python
import sys
sys.path.insert(0, 'dev')
from asmdsl import Asm
from layout17 import *

NAME = 'sequential_preLN__compressed_kv_cla__glu_gated_geglu__decode'
HEADER = open('cdna_kernels/' + NAME + '.s.ref').read().split('; Override launch')[0]
LDS_TOTAL = 163840
SB = 130048
L_P = 131072
FB = 162816
F_LAND, F_QST, F_MSEQ, F_DONE, F_LSEQ, F_HUS, F_PS = 0, 16, 32, 48, 64, 80, 96
L_MAX = FB + 512
L_ALPHA = L_P + 16384
L_MFIN = L_ALPHA + 512
A_WQ, A_WUK, A_WUV, A_WO, A_X, A_C, A_D = 0, 32768, 98304, 98304, 131072, 132096, 135168
A_WD, A_ACT, A_H = 65536, 138240, 139264

R_X, R_WS, R_CKV, R_WQ, R_WUK, R_WUV, R_WO, R_WG, R_WU, R_WD, R_OUT, R_ACT = [8 + 4 * i for i in range(12)]
SIZES = {R_X: 4096, R_WS: WS_END, R_CKV: 32 << 20, R_WQ: 4 << 20, R_WUK: 4 << 20, R_WUV: 4 << 20, R_WO: 4 << 20,
         R_WG: 512 * 2752, R_WU: 512 * 2752, R_WD: 1376 * 1024, R_OUT: 4096, R_ACT: 43 * 256}
PTR = {R_X: 64, R_CKV: 66, R_WQ: 68, R_WUK: 70, R_WUV: 72, R_WO: 74, R_WG: 78, R_WU: 80, R_WD: 82, R_OUT: 84}
S_TAG, S_ONES, S_LO1, S_HI1, S_CNT, S_MASK = 56, 57, 58, 59, 60, 62
S_XCC, S_LOC = 52, 53
SPIN = 20000
XOR3 = 'bitop3:0x96'


class Opt:
    stamps = 0
    w0 = 3
    n0 = 8
    window = 8
    w3 = 16
    wwin = 8
    sleep = 1
    sleep_long = 6
    stsleep = 3
    thr = 60
    dbgwg = 192
    hold = 0
    dsleep = 1
    ddelay = 0
    gon = 56
    fine = 0
    hupos = 1
    edelay = 0
    efwin = 3
    sw = 1
    efgo = 0
    qdelay = 0
    hprio = 1
    nsamp = 2
    rdelay = 0
    lw = 8
    diag = 0
    rpos = 0
    owin = 1
    ef0 = 2
    il = 0
    mix = 1
    loc = 1
    egate = 1
    earlym = 1
    mb1 = 20
    mb2 = 19
    efn = 5
    pvprio = 0
    sprio = 0
    r64 = 'nt'
    wgo = 0
    esleep = 0
    fdelay = 8
    now = 0
    w1 = 8
    n1 = 0


def vr(a, n):
    return f'v[{a}:{a + n - 1}]' if n > 1 else f'v{a}'


def S(base):
    return f's[{base}:{base + 3}]'


def gen(o):
    a = Asm()
    name = NAME + '_kernel'
    o.st3 = o.stamps == 3

    def ex(mask):
        if mask == -1:
            a('s_mov_b64 exec, -1')
        elif mask <= 64:
            a(f's_mov_b64 exec, {mask}')
        else:
            a(f's_mov_b32 exec_lo, 0x{mask & 0xffffffff:x}')
            a(f's_mov_b32 exec_hi, 0x{mask >> 32:x}')

    def dpp(op, d, s0, s1, ctrl, bank=0xf):
        a(f'{op}_dpp v{d}, v{s0}, v{s1} {ctrl} row_mask:0xf bank_mask:0x{bank:x}')

    def swap_step(op, v, t, which):
        a(f'v_mov_b32 v{t}, v{v}')
        a(f'v_permlane{which}_swap_b32 v{v}, v{t}')
        a(f'{op} v{v}, v{v}, v{t}')

    def fine2(r):
        if o.fine == 2:
            lb = a.uid('f2')
            a('s_cmp_lg_u32 s97, 0')
            a(f's_cbranch_scc1 {lb} ;noflush')
            a(f's_memtime s[{r}:{r + 1}]')
            a.label(lb)

    def f3(r):
        if o.fine == 3:
            a(f's_memtime s[{r}:{r + 1}]')

    def stamp(idx):
        if o.stamps:
            a(f's_memrealtime s[{64 + 2 * idx}:{65 + 2 * idx}]')

    def dump_stamps(n, grp, dbg=None):
        a('s_waitcnt lgkmcnt(0)')
        a('s_mov_b64 exec, -1')
        a('v_mov_b32 v3, 0')
        a('v_writelane_b32 v3, s100, 0')
        for i in range(1, n):
            a(f'v_writelane_b32 v3, s{64 + 2 * i}, {i}')
        a('v_mbcnt_lo_u32_b32 v4, -1, 0')
        a('v_lshlrev_b32 v4, 2, v4')
        a('s_lshl_b32 s90, s2, 7')
        a(f's_add_u32 s90, s90, {WS_STAMP + 64 * grp}')
        ex(0xffff)
        a(f'buffer_store_dword v3, v4, {S(R_WS)}, s90 offen')
        if o.stamps == 2 and dbg:
            lb = a.uid('nodbg')
            a('v_subrev_u32 v3, s100, v3')
            if dbg == 'h':
                a(f's_cmp_lg_u32 s2, {o.dbgwg}')
                a(f's_cbranch_scc1 {lb}')
                ex(0x7fe)
                a('global_store_dword v4, v3, s[86:87] offset:-4')
            else:
                a('s_cmp_lg_u32 s2, 0')
                a(f's_cbranch_scc1 {lb}')
                ex(0x3e8)
                a('v_mbcnt_lo_u32_b32 v4, exec_lo, 0')
                a('v_lshlrev_b32 v4, 2, v4')
                a('global_store_dword v4, v3, s[86:87] offset:40')
            a.label(lb)

    def xor_chain(tmp, regs, last=None):
        ops = [f'v{r}' for r in regs] + ([last] if last else [])
        a(f'v_bitop3_b32 v{tmp}, {ops[0]}, {ops[1]}, {ops[2]} {XOR3}')
        ops = ops[3:]
        while len(ops) >= 2:
            a(f'v_bitop3_b32 v{tmp}, v{tmp}, {ops[0]}, {ops[1]} {XOR3}')
            ops = ops[2:]
        if ops:
            a(f'v_xor_b32 v{tmp}, {ops[0]}, v{tmp}')

    def chk_sentinel(regs, tmp):
        rs = list(regs)
        a(f'v_max3_u32 v{tmp}, v{rs[0]}, v{rs[1]}, v{rs[2]}')
        rs = rs[3:]
        while len(rs) >= 2:
            a(f'v_max3_u32 v{tmp}, v{tmp}, v{rs[0]}, v{rs[1]}')
            rs = rs[2:]
        if rs:
            a(f'v_max_u32 v{tmp}, v{tmp}, v{rs[0]}')
        a(f'v_cmp_eq_u32 vcc, -1, v{tmp}')

    def poll(loads, check, sleep=None, wait='s_waitcnt vmcnt(0)'):
        L, Dn = a.uid('poll'), a.uid('pdone')
        a(f's_mov_b32 s{S_CNT}, {SPIN}')
        a.label(L)
        loads()
        a(wait)
        check()
        a(f's_cbranch_vccz {Dn}')
        sl = o.sleep if sleep is None else sleep
        if sl:
            a(f's_sleep {sl}')
        a(f's_sub_u32 s{S_CNT}, s{S_CNT}, 1')
        a(f's_cbranch_scc0 {L}')
        a.label(Dn)

    def lds_wait(addr, off, want, tmp, sleep=1):
        L, Dn = a.uid('lw'), a.uid('lwd')
        a(f's_mov_b32 s{S_CNT}, {SPIN * 40}')
        a.label(L)
        a(f'ds_read_b32 v{tmp}, v{addr} offset:{off}')
        a('s_waitcnt lgkmcnt(0)')
        a(f'v_cmp_gt_u32 vcc, {want}, v{tmp}')
        a(f's_cbranch_vccz {Dn}')
        if sleep:
            a(f's_sleep {sleep}')
        a(f's_sub_u32 s{S_CNT}, s{S_CNT}, 1')
        a(f's_cbranch_scc0 {L}')
        a.label(Dn)

    def nan_retry(tag, regs, again, go):
        a.label(tag)
        chk_sentinel(regs, 10)
        a(f's_cbranch_vccz {go}')
        a(f's_sub_u32 s{S_CNT}, s{S_CNT}, 1')
        a(f's_cbranch_scc0 {again}')
        a(f's_branch {go}')

    def mfma16(d, x, y, first):
        c = '0' if first else vr(d, 4)
        a(f'v_mfma_f32_16x16x32_bf16 {vr(d, 4)}, {vr(x, 4)}, {vr(y, 4)}, {c}')

    def srd(rs):
        for r in rs:
            a(f's_mov_b32 s{r + 2}, {SIZES[r]}')
            a(f's_mov_b32 s{r + 3}, 0x00020000')

    def srd_ptr(rs):
        for r in rs:
            if r == R_ACT:
                a(f's_add_u32 s{R_ACT}, s{R_WS}, {WS_ACT}')
                a(f's_addc_u32 s{R_ACT + 1}, s{R_WS + 1}, 0')
            else:
                a(f's_mov_b64 s[{r}:{r + 1}], s[{PTR[r]}:{PTR[r] + 1}]')

    def consts():
        a(f's_mov_b32 s{S_ONES}, 0x3f803f80')
        a(f's_mov_b32 s{S_LO1}, 0x3f80')
        a(f's_mov_b32 s{S_HI1}, 0x3f800000')
        a(f's_mov_b32 s{S_MASK}, 0xffff0000')

    def get_tag():
        a('s_waitcnt lgkmcnt(0)')
        a(f's_add_u32 s{S_TAG}, s{S_TAG}, 0x9e3779b9')

    def vF(d):
        a(f'v_bfe_u32 v{d}, v1, 2, 2')
        a(f'v_lshlrev_b32 v{d}, 8, v{d}')
        a(f'v_lshl_add_u32 v{d}, v3, 6, v{d}')
        a(f'v_lshl_add_u32 v{d}, v4, 4, v{d}')

    def tr64_addr(d, t):
        a(f'v_bfe_u32 v{t}, v1, 2, 2')
        a(f'v_lshl_add_u32 v{t}, v3, 3, v{t}')
        a(f'v_lshlrev_b32 v{d}, 6, v{t}')
        a(f'v_lshl_add_u32 v{d}, v4, 3, v{d}')

    def tr_op(dst, addr, off, tau):
        a(f'ds_read_b64_tr_b16 {vr(dst, 2)}, v{addr} offset:{off}')
        a(f'ds_read_b64_tr_b16 {vr(dst + 2, 2)}, v{addr} offset:{off + tau}')

    def red4_read(x, addr):
        ex(0xffffffff)
        for w in range(4):
            a(f'ds_read_b128 {vr(x + 4 * w, 4)}, v{addr} offset:{512 * w}')
        a('s_waitcnt lgkmcnt(2)')
        for i in range(4):
            a(f'v_add_f32 v{x + i}, v{x + i}, v{x + 4 + i}')
        a('s_waitcnt lgkmcnt(0)')
        for i in range(4):
            a(f'v_add_f32 v{x + 8 + i}, v{x + 8 + i}, v{x + 12 + i}')
        for i in range(4):
            a(f'v_add_f32 v{x + i}, v{x + i}, v{x + 8 + i}')

    def frag_addr(dst, t):
        a(f'v_bfe_u32 v{dst}, v1, 1, 2')
        a(f'v_lshlrev_b32 v{dst}, 6, v{dst}')
        a(f'v_bfe_u32 v{t}, v1, 3, 2')
        a(f'v_lshl_add_u32 v{dst}, v{t}, 4, v{dst}')
        a(f'v_and_b32 v{t}, 1, v1')
        a(f'v_lshl_add_u32 v{dst}, v{t}, 3, v{dst}')

    M4 = 0x000f000f000f000f

    def arrive(wave, ret, t0, off, sel='s3'):
        lb = a.uid('arr')
        a(f's_cmp_lg_u32 {sel}, {wave}')
        a(f's_cbranch_scc1 {lb} ;noflush')
        a(f'v_mov_b32 v{t0}, {off}')
        a(f'v_mov_b32 v{ret}, 1')
        ex(1)
        a(f'global_atomic_add v{ret}, v{t0}, v{ret}, s[86:87] sc0 sc1')
        ex(-1)
        a.label(lb)

    def release(wave, ret, t0, last, flag, wait=None):
        lb = a.uid('rel')
        a(f's_cmp_lg_u32 s3, {wave}')
        a(f's_cbranch_scc1 {lb} ;noflush')
        if wait:
            a(wait)
        a(f'v_readfirstlane_b32 s1, v{ret}')
        a(f's_and_b32 s1, s1, {last}')
        a(f's_cmp_lg_u32 s1, {last}')
        a(f's_cbranch_scc1 {lb} ;noflush')
        a('s_mov_b64 exec, -1')
        a(f'v_mbcnt_lo_u32_b32 v{t0}, -1, 0')
        a(f'v_lshlrev_b32 v{t0}, 2, v{t0}')
        a(f'v_mov_b32 v{ret}, s{S_TAG}')
        if isinstance(flag, int):
            a(f's_mov_b32 s1, {flag}')
            flag = 's1'
        ex(0xffffffff)
        a(f'buffer_store_dword v{ret}, v{t0}, {S(R_WS)}, {flag} offen sc1')
        ex(-1)
        a.label(lb)

    def flag_wait(flag, t0, sleep):
        if isinstance(flag, int):
            a(f's_mov_b32 s1, {flag}')
            flag = 's1'
        ex(1)
        poll(lambda: a(f'buffer_load_dword v{t0}, off, {S(R_WS)}, {flag} sc1'),
             lambda: a(f'v_cmp_ne_u32 vcc, s{S_TAG}, v{t0}'), sleep)
        ex(-1)

    a(f'.globl {name}\n.p2align 8\n.type {name},@function')
    a.label(name)
    if o.stamps or o.diag:
        a('s_memrealtime s[100:101]')
    a('s_cmp_ge_u32 s2, 256')
    a('s_cbranch_scc1 L_end')
    a('s_load_dwordx16 s[64:79], s[0:1], 0')
    a('s_load_dwordx8 s[80:87], s[0:1], 64')
    a(f's_load_dwordx2 s[{R_WS}:{R_WS + 1}], s[0:1], 96')
    a('v_and_b32 v1, 63, v0')
    a('v_lshrrev_b32 v2, 6, v0')
    a('v_readfirstlane_b32 s3, v2')
    a('v_lshlrev_b32 v2, 4, v1')
    a('v_lshrrev_b32 v3, 4, v1')
    a('v_and_b32 v4, 3, v1')
    a('v_and_b32 v11, 15, v1')
    srd([R_WS, R_X])
    a('s_cmp_ge_u32 s2, 128')
    a('s_cbranch_scc1 L_att')

    srd([R_WQ, R_WUK])
    a('s_and_b32 s4, s2, 7')
    a('s_lshl_b32 s4, s4, 2')
    a('s_bfe_u32 s5, s2, 0x20003')
    a('s_add_u32 s4, s4, s5')
    a('s_lshr_b32 s5, s2, 5')
    a('s_lshl_b32 s6, s4, 8')
    a('v_lshlrev_b32 v5, 1, v3')
    a('v_xor_b32 v5, v5, v11')
    a('v_lshlrev_b32 v5, 4, v5')
    a('v_lshl_add_u32 v6, v3, 13, v5')
    a('v_xor_b32 v7, 0x80, v6')
    a('v_xor_b32 v8, v3, v11')
    a('v_lshlrev_b32 v8, 4, v8')
    a('v_lshl_add_u32 v8, v3, 13, v8')
    a('s_lshl_b32 s90, s5, 20')
    a('s_lshl_b32 s91, s3, 17')
    a('s_add_u32 s90, s90, s91')
    a('s_add_u32 s90, s90, s6')
    a('s_lshl_b32 s91, s3, 12')
    a('s_mov_b32 m0, s91')
    a('v_bfe_u32 v10, v1, 2, 2')
    a('v_lshlrev_b32 v10, 6, v10')
    a('v_lshl_add_u32 v10, v4, 10, v10')
    a('v_lshl_add_u32 v10, v3, 4, v10')
    a('s_lshl_b32 s93, s5, 8')
    XS, XO = 12, 28
    a('s_waitcnt lgkmcnt(0)')
    srd_ptr([R_X, R_WQ, R_WUK])
    a('s_cmp_lg_u32 s3, 0')
    a('s_cbranch_scc1 L_nox')
    for i in range(4):
        a(f'buffer_load_dwordx4 {vr(XS + 4 * i, 4)}, v10, {S(R_X)}, 0 offen offset:{256 * i}')
    a(f'buffer_load_dwordx4 {vr(XO, 4)}, v10, {S(R_X)}, s93 offen')
    a.label('L_nox')
    for i in range(4):
        a(f's_add_u32 s92, s90, {i * 32768}')
        a(f'buffer_load_dwordx4 v{6 + i // 2}, {S(R_WQ)}, s92 offen nt lds')
        if i < 3:
            a('s_add_u32 m0, m0, 1024')
    a('s_barrier')
    a('s_cmp_lt_u32 s3, 4')
    a('s_cbranch_scc1 L_nouk')
    a('s_lshl_b32 s91, s3, 17')
    a('s_add_u32 s90, s90, s91')
    a(f's_sub_u32 s90, s90, {8 << 17}')
    a('s_lshl_b32 s91, s3, 13')
    a(f's_add_u32 m0, s91, {A_WUK - 32768}')
    for i in range(8):
        if i % 2 == 0:
            a(f'v_xor_b32 v9, {64 * (i // 2)}, v8')
        a(f's_add_u32 s92, s90, {i * 32768}')
        a(f'buffer_load_dwordx4 v9, {S(R_WUK)}, s92 offen nt lds')
        if i < 7:
            a('s_add_u32 m0, m0, 1024')
    a.label('L_nouk')
    a(f's_load_dword s{S_TAG}, s[{R_WS}:{R_WS + 1}], {WS_EPOCH}')
    srd_ptr([R_WUV, R_WO, R_WG, R_WU, R_WD, R_OUT])
    consts()
    stamp(1)
    a('s_cmp_lg_u32 s3, 0')
    a('s_cbranch_scc1 L_noln')
    a('s_waitcnt vmcnt(5)')
    for i in range(16):
        a(f'v_dot2_f32_bf16 v34, v{XS + i}, s{S_ONES}, {"0" if i == 0 else "v34"}')
        a(f'v_dot2_f32_bf16 v35, v{XS + i}, v{XS + i}, {"0" if i == 0 else "v35"}')
    for c in ('row_ror:4', 'row_ror:8'):
        dpp('v_add_f32', 34, 34, 34, c)
        dpp('v_add_f32', 35, 35, 35, c)
    for wh in (16, 32):
        a('v_mov_b32 v12, v34')
        a('v_mov_b32 v13, v35')
        a(f'v_permlane{wh}_swap_b32 v34, v12')
        a(f'v_permlane{wh}_swap_b32 v35, v13')
        a('v_add_f32 v34, v34, v12')
        a('v_add_f32 v35, v35, v13')
    a('v_mul_f32 v34, 0x3b000000, v34')
    a('v_mul_f32 v35, 0x3b000000, v35')
    a('v_fma_f32 v35, -v34, v34, v35')
    a('v_max_f32 v35, 0, v35')
    a('v_add_f32 v35, 0x3727c5ac, v35')
    a('v_rsq_f32 v35, v35')
    a(f'v_mul_f32 v35, {QSCALE_BITS}, v35')
    a('v_mul_f32 v34, v34, v35')
    a('s_waitcnt vmcnt(4)')
    for i in range(4):
        a(f'v_lshlrev_b32 v12, 16, v{XO + i}')
        a(f'v_and_b32 v13, s{S_MASK}, v{XO + i}')
        a('v_fma_f32 v12, v12, v35, -v34')
        a('v_fma_f32 v13, v13, v35, -v34')
        a(f'v_cvt_pk_bf16_f32 v{XO + i}, v12, v13')
    a(f'v_add_u32 v12, {A_X}, v2')
    a(f'ds_write_b128 v12, {vr(XO, 4)}')
    a.label('L_noln')
    srd([R_WUV, R_WO, R_WG, R_WU, R_WD, R_OUT])
    a('s_getpc_b64 s[94:95]')
    a.label('L_pc')
    a(f's_sub_u32 s94, s94, L_pc-{name}')
    a('s_subb_u32 s95, s95, 0')
    a('s_andn2_b32 s92, s2, 7')
    a('s_add_u32 s92, s92, s3')
    a('s_lshl_b32 s92, s92, 8')
    a('v_lshl_add_u32 v32, v1, 2, s92')
    a(f'v_min_u32 v32, L_end-{name}, v32')
    a('global_load_dword v33, v32, s[94:95]')
    for i in range(4):
        a(f'v_mov_b32 v{36 + i}, -1')
    a('s_lshl_b32 s92, s2, 3')
    a('s_add_u32 s92, s92, s3')
    a('s_mul_i32 s92, s92, 352')
    a(f's_add_u32 s92, s92, {WS_CLEAN}')
    ex(0x3fffff)
    a(f'buffer_store_dwordx4 v[36:39], v2, {S(R_WS)}, s92 offen sc1')
    ex(-1)
    a('v_bfe_u32 v40, v1, 2, 3')
    a('v_lshlrev_b32 v40, 1, v40')
    a('v_bfe_u32 v41, v1, 1, 1')
    a('s_lshl_b32 s92, s3, 1')
    a(f'v_bitop3_b32 v40, v40, v41, s92 {XOR3}')
    a('v_lshlrev_b32 v40, 4, v40')
    a('v_bfe_u32 v41, v1, 2, 2')
    a('v_lshl_add_u32 v41, v3, 3, v41')
    a('v_lshl_add_u32 v40, v41, 8, v40')
    a('v_and_b32 v41, 1, v1')
    a('v_lshl_add_u32 v40, v41, 3, v40')
    a('v_lshlrev_b32 v41, 8, v3')
    a('v_lshl_add_u32 v41, v4, 4, v41')
    a(f'v_add_u32 v41, {A_X}, v41')
    a('v_lshlrev_b32 v42, 6, v3')
    a('v_lshl_add_u32 v42, v4, 4, v42')
    a('s_lshl_b32 s96, s4, 13')
    if WS_QP:
        a(f's_add_u32 s96, s96, {WS_QP}')
    a('s_lshl_b32 s92, s5, 11')
    a('s_add_u32 s97, s96, s92')
    a('s_lshl_b32 s92, s3, 8')
    a('s_add_u32 s97, s97, s92')
    get_tag()
    stamp(2)
    if o.loc:
        a('s_getreg_b32 s1, hwreg(HW_REG_XCC_ID, 0, 4)')
        a(f's_xor_b32 s{S_XCC}, s1, s{S_TAG}')
    a('v_bfe_u32 v43, v1, 2, 2')
    a('v_lshlrev_b32 v43, 11, v43')
    a('v_lshl_add_u32 v43, v3, 7, v43')
    a('v_lshl_add_u32 v43, v4, 4, v43')
    a('s_cmp_lt_u32 s3, 4')
    a('s_cbranch_scc1 L_wq_lo')
    a('s_waitcnt vmcnt(10)')
    a('s_branch L_wq_hi')
    a.label('L_wq_lo')
    a('s_waitcnt vmcnt(2)')
    a.label('L_wq_hi')
    a('s_barrier')
    W1, XF, AC = 12, 44, 60
    for t in range(4):
        tr_op(W1 + 4 * t, 40, A_WQ + 8192 * t, 1024)
        a(f'ds_read_b128 {vr(XF + 4 * t, 4)}, v41 offset:{64 * t}')
    for t in range(4):
        a(f's_waitcnt lgkmcnt({3 * (3 - t)})')
        mfma16(AC, W1 + 4 * t, XF + 4 * t, t == 0)
    a(f'v_cvt_pk_bf16_f32 v64, v{AC}, v{AC + 1}')
    a(f'v_cvt_pk_bf16_f32 v65, v{AC + 2}, v{AC + 3}')
    a(f'v_bitop3_b32 v66, v64, v65, s{S_TAG} {XOR3}')
    ex(M4)
    a(f'buffer_store_dwordx4 v[64:67], v42, {S(R_WS)}, s97 offen sc1')
    ex(-1)
    stamp(3)
    UK, Q, AC2, FR = 68, 100, 132, 140

    def a2_loads():
        for n in range(8):
            a(f'buffer_load_dwordx4 {vr(Q + 4 * n, 4)}, v43, {S(R_WS)}, s96 offen offset:{512 * (n // 2) + 64 * (n % 2)} sc1')
    a('s_cmp_lt_u32 s3, 4')
    a('s_cbranch_scc1 L_a2')
    a('s_waitcnt vmcnt(0)')
    a('s_barrier')
    a('s_branch L_a_done')
    a.label('L_a2')
    a('s_waitcnt vmcnt(0)')
    if o.qdelay:
        a(f's_sleep {o.qdelay}')
    a2_loads()
    a('v_lshrrev_b32 v12, 2, v11')
    a('v_lshl_add_u32 v12, v12, 3, v4')
    a('v_lshlrev_b32 v12, 8, v12')
    a('v_xor_b32 v13, v3, v11')
    a('v_lshl_add_u32 v12, v13, 4, v12')
    a('s_lshl_b32 s92, s3, 13')
    a(f's_add_u32 s92, s92, {A_WUK}')
    a('v_add_u32 v12, s92, v12')
    a('s_barrier')
    for t in range(4):
        a(f'v_xor_b32 v13, {64 * t}, v12')
        for sub in range(2):
            a(f'ds_read_b128 {vr(UK + 16 * sub + 4 * t, 4)}, v13 offset:{1024 * sub}')
    a('v_lshlrev_b32 v15, 8, v4')
    a('v_lshl_add_u32 v15, v3, 4, v15')
    a('s_lshl_b32 s91, s3, 6')
    a(f's_add_u32 s91, s91, {A_C}')
    a('v_add_u32 v15, s91, v15')
    a(f'v_add_u32 v16, {A_C}, v2')
    a('v_lshlrev_b32 v20, 15, v3')
    a('v_lshl_add_u32 v20, v11, 4, v20')
    a('v_lshlrev_b32 v21, 3, v3')
    a('s_lshl_b32 s91, s4, 10')
    a('s_lshl_b32 s92, s5, 8')
    a('s_add_u32 s92, s92, s91')
    a('s_lshr_b32 s93, s92, 1')
    if WS_QA:
        a(f's_add_u32 s92, s92, {WS_QA}')
    a(f's_add_u32 s93, s93, {WS_QAH}')
    a(f's_cmp_lt_u32 s5, {o.nsamp}')
    a('s_cselect_b32 s98, s3, 99')
    a('v_lshlrev_b32 v24, 7, v1')
    a(f'v_mov_b32 v25, s{S_TAG}')
    a(f's_mov_b32 s{S_CNT}, {SPIN}')
    a('s_branch L_a2chk')
    a.label('L_a2poll')
    a2_loads()
    a.label('L_a2chk')
    for n in range(8):
        a(f's_waitcnt vmcnt({7 - n})')
        a(f'v_bitop3_b32 v{Q + 4 * n + 2}, v{Q + 4 * n}, v{Q + 4 * n + 1}, v{Q + 4 * n + 2} {XOR3}')
    a(f'v_max3_u32 v17, v{Q + 2}, v{Q + 6}, v{Q + 10}')
    a(f'v_min3_u32 v18, v{Q + 2}, v{Q + 6}, v{Q + 10}')
    a(f'v_max3_u32 v17, v17, v{Q + 14}, v{Q + 18}')
    a(f'v_min3_u32 v18, v18, v{Q + 14}, v{Q + 18}')
    a(f'v_max3_u32 v17, v17, v{Q + 22}, v{Q + 26}')
    a(f'v_min3_u32 v18, v18, v{Q + 22}, v{Q + 26}')
    a(f'v_max3_u32 v17, v17, v{Q + 30}, s{S_TAG}')
    a(f'v_min3_u32 v18, v18, v{Q + 30}, s{S_TAG}')
    a('v_cmp_ne_u32 vcc, v17, v18')
    a('s_cbranch_vccz L_a2go')
    a(f's_sub_u32 s{S_CNT}, s{S_CNT}, 1')
    a('s_cbranch_scc0 L_a2poll')
    a.label('L_a2go')
    if o.st3:
        a('s_memrealtime s[72:73]')
    stamp(4)
    arrive(3, 22, 23, 0, 's98')
    a('s_waitcnt lgkmcnt(0)')
    for n in range(8):
        for sub in range(2):
            d = AC2 + 4 * sub
            c = '0' if n == 0 else vr(d, 4)
            a(f'v_mfma_f32_16x16x16_bf16 {vr(d, 4)}, {vr(UK + 16 * sub + 2 * n, 2)}, {vr(Q + 4 * n, 2)}, {c}')
    for c in ('row_ror:4', 'row_ror:8'):
        for i in range(8):
            dpp('v_add_f32', AC2 + i, AC2 + i, AC2 + i, c)
    for i in range(4):
        a(f'v_cvt_pk_bf16_f32 v{FR + i}, v{AC2 + 2 * i}, v{AC2 + 2 * i + 1}')
    ex(M4)
    a(f'ds_write_b128 v15, {vr(FR, 4)}')
    ex(-1)
    a('s_cmp_lg_u32 s98, 3')
    a('s_cbranch_scc1 L_norel')
    a('s_waitcnt vmcnt(0)')
    a('v_readfirstlane_b32 s1, v22')
    a(f's_and_b32 s1, s1, {32 * o.nsamp - 1}')
    a(f's_cmp_lg_u32 s1, {32 * o.nsamp - 1}')
    a('s_cbranch_scc1 L_norel')
    a(f's_mov_b32 s1, {WS_HU}')
    a(f'buffer_store_dword v25, v24, {S(R_WS)}, s1 offen sc1')
    a(f's_mov_b32 s1, {WS_HU + 8192}')
    a(f'buffer_store_dword v25, v24, {S(R_WS)}, s1 offen sc1')
    a.label('L_norel')
    a('s_waitcnt lgkmcnt(0)')
    a.label('L_a_done')
    a('s_barrier')
    a('s_cmp_lg_u32 s3, 0')
    a('s_cbranch_scc1 L_a_pub')
    a(f'ds_read_b128 {vr(FR, 4)}, v16')
    a('s_waitcnt lgkmcnt(0)')
    a(f'buffer_store_dwordx4 {vr(FR, 4)}, v20, {S(R_WS)}, s92 offen sc1')
    xor_chain(18, range(FR, FR + 4))
    for c in ('quad_perm:[1,0,3,2]', 'quad_perm:[2,3,0,1]', 'row_ror:4', 'row_ror:8'):
        dpp('v_xor_b32', 18, 18, 18, c)
    a(f'v_xor_b32 v19, s{S_TAG}, v18')
    ex(0x0001000100010001)
    a(f'buffer_store_dwordx2 v[18:19], v21, {S(R_WS)}, s93 offen sc1')
    ex(-1)
    stamp(5)
    a.label('L_a_pub')
    if o.loc:
        a('s_cmp_lg_u32 s3, 5')
        a('s_cbranch_scc1 L_noxt')
        a('s_and_b32 s92, s2, 7')
        a('s_lshl_b32 s92, s92, 11')
        a('s_lshr_b32 s93, s2, 3')
        a('s_lshl_b32 s93, s93, 7')
        a('s_add_u32 s92, s92, s93')
        a(f's_add_u32 s92, s92, {WS_XT}')
        a(f'v_mov_b32 v9, s{S_XCC}')
        ex(1)
        a(f'buffer_store_dword v9, off, {S(R_WS)}, s92 sc1')
        ex(-1)
        a.label('L_noxt')
    a('s_and_b32 s7, s2, 7')
    a('s_lshr_b32 s63, s2, 3')
    a('v_lshl_add_u32 v6, v3, 18, v5')
    a('v_xor_b32 v7, 0x80, v6')
    a('s_lshl_b32 s0, s5, 20')
    a('s_add_u32 s0, s0, s6')
    a('s_mov_b32 s61, 0')
    D, WL, CA, OPC, OPD = 16, 32, 40, 64, 96
    a('s_and_b32 s94, s3, 3')
    a('s_lshr_b32 s95, s3, 2')
    a('v_bfe_u32 v56, v1, 2, 3')
    a('v_lshlrev_b32 v56, 1, v56')
    a('s_lshl_b32 s92, s94, 2')
    a(f'v_bitop3_b32 v56, v56, v4, s92 {XOR3}')
    a('v_lshlrev_b32 v56, 4, v56')
    a('v_bfe_u32 v58, v1, 2, 2')
    a('v_lshl_add_u32 v58, v3, 3, v58')
    a('v_lshl_add_u32 v56, v58, 8, v56')
    a(f'v_add_u32 v56, {A_WUV}, v56')
    tr64_addr(57, 58)
    a('s_lshl_b32 s91, s94, 13')
    a(f's_add_u32 s91, s91, {A_WO}')
    a('v_add_u32 v57, s91, v57')
    a('v_and_b32 v5, 31, v1')
    a('v_lshlrev_b32 v5, 11, v5')
    a('s_lshl_b32 s90, s94, 16')
    a('s_lshl_b32 s91, s5, 9')
    a('s_add_u32 s90, s90, s91')
    a('s_lshl_b32 s91, s4, 4')
    a('s_add_u32 s90, s90, s91')
    a(f's_add_u32 s90, s90, {WS_REC}')
    a('s_lshl_b32 s96, s4, 2')
    a('s_add_u32 s96, s96, s5')
    a('s_lshl_b32 s96, s96, 2')
    a('s_add_u32 s96, s96, s94')
    a('s_lshl_b32 s91, s96, 13')
    a('s_lshl_b32 s93, s95, 12')
    a('s_add_u32 s91, s91, s93')
    a(f's_add_u32 s91, s91, {WS_OP}')
    a('s_lshl_b32 s92, s95, 4')
    a('v_lshlrev_b32 v48, 4, v11')
    a('v_lshl_add_u32 v48, v3, 1, v48')
    a('s_mul_i32 s93, s3, 272')
    a(f's_add_u32 s93, s93, {A_C}')
    a('v_add_u32 v48, s93, v48')
    a('v_and_b32 v49, 7, v1')
    a('v_mul_u32_u24 v49, 272, v49')
    a('v_lshl_add_u32 v49, v3, 4, v49')
    a(f'v_add_u32 v49, {A_C}, v49')
    a('v_lshlrev_b32 v50, 6, v3')
    a('v_lshl_add_u32 v50, v4, 4, v50')
    a('s_lshl_b32 s98, s4, 12')
    a('s_lshl_b32 s93, s94, 10')
    a('s_add_u32 s98, s98, s93')
    a('s_lshl_b32 s93, s5, 8')
    a('s_add_u32 s98, s98, s93')
    a(f's_add_u32 s98, s98, {WS_CP}')
    a('v_add_u32 v51, s92, v3')
    a('v_lshlrev_b32 v51, 2, v51')
    a('v_cmp_eq_u32 s[88:89], s95, v3')
    vF(128)
    a('v_lshlrev_b32 v129, 7, v4')
    a('v_lshl_add_u32 v129, v3, 4, v129')
    a('s_lshl_b32 s93, s94, 9')
    a(f's_add_u32 s93, s93, {A_D}')
    a('v_add_u32 v129, s93, v129')
    a('v_bfe_u32 v130, v1, 1, 2')
    a('v_lshlrev_b32 v130, 7, v130')
    a('v_bfe_u32 v9, v1, 3, 2')
    a('v_lshl_add_u32 v130, v9, 5, v130')
    a('v_and_b32 v9, 1, v1')
    a('v_lshl_add_u32 v130, v9, 4, v130')
    a(f'v_add_u32 v130, {A_D}, v130')
    a('v_lshlrev_b32 v131, 3, v1')
    a('s_lshl_b32 s6, s7, 14')
    a('s_lshl_b32 s93, s94, 12')
    a('s_add_u32 s6, s6, s93')
    a(f's_add_u32 s6, s6, {WS_CP}')
    a('s_lshl_b32 s99, s7, 12')
    a('s_lshl_b32 s93, s63, 8')
    a('s_add_u32 s99, s99, s93')
    a(f's_add_u32 s99, s99, {WS_HP}')
    a('v_lshrrev_b32 v8, 2, v1')
    a('s_cmp_lt_u32 s3, 4')
    a('s_cbranch_scc1 L_wlo')
    a('s_mov_b32 s61, 0')
    tr64_addr(58, 59)

    def go_wait(extra=0):
        a('s_lshl_b32 s96, s2, 7')
        a(f's_add_u32 s96, s96, {WS_GO}')
        ex(1)
        poll(lambda: a(f'buffer_load_dword v9, off, {S(R_WS)}, s96 sc1'), lambda: a(f'v_cmp_ne_u32 vcc, s{S_TAG}, v9'), 3)
        ex(-1)
    a('s_cmp_lt_u32 s2, 48')
    a('s_cbranch_scc1 L_E1')
    a.label('L_wnone')
    a('s_barrier')
    a('s_branch L_cstart')
    OP = 64
    H, XR, HA, X4, EA = 16, 128, 140, 148, 164
    EW, ES, ER, ESR, EST, EG, ECS = 180, 181, 182, 183, 184, 185, 186
    a.label('L_E1')
    a('s_mul_i32 s93, s7, 6')
    a('s_add_u32 s63, s63, s93')
    a('s_cmp_ge_u32 s63, 43')
    a('s_cbranch_scc1 L_wnone')
    a('s_mov_b32 s61, 1')
    if o.efgo == 1:
        go_wait()
    a('v_mul_u32_u24 v8, 2752, v8')
    a('v_lshl_add_u32 v8, v4, 4, v8')
    a(f's_mul_i32 s99, s94, {128 * 2752}')
    a('s_lshl_b32 s93, s63, 6')
    a('s_add_u32 s99, s99, s93')
    a('s_lshl_b32 s6, s94, 14')
    a('s_mov_b32 m0, s6')
    a('v_bfe_u32 v9, v1, 2, 2')
    a('v_lshlrev_b32 v9, 6, v9')
    a('v_lshl_add_u32 v9, v4, 10, v9')
    a('v_lshl_add_u32 v9, v3, 4, v9')
    a('s_lshl_b32 s93, s94, 8')
    a(f'buffer_load_dwordx4 {vr(XR, 4)}, v9, {S(R_X)}, s93 offen')
    for mat in range(2):
        for i in range(8):
            a(f's_add_u32 s93, s99, {16 * i * 2752}')
            a(f's_waitcnt vmcnt({(o.ef0 if 8 * mat + i < o.efn else o.efwin) - 1})')
            a(f'buffer_load_dwordx4 v8, {S(R_WG if mat == 0 else R_WU)}, s93 offen {o.r64} lds')
            a('s_add_u32 m0, m0, 1024')
    OPW, FA = 192, 64
    EAR, EPS, EHW, GL, GH, GO_ = 188, 189, 190, 191, 224, 225
    a('v_and_b32 v8, 0xff, v6')
    a('v_lshl_add_u32 v8, v3, 10, v8')
    a('v_xor_b32 v9, 0x80, v8')
    a('s_lshl_b32 s99, s63, 15')
    a('s_lshl_b32 s93, s94, 8')
    a('s_add_u32 s99, s99, s93')
    a('s_lshl_b32 s98, s94, 13')
    a(f's_add_u32 s98, s98, {A_WD}')
    a('s_mov_b32 m0, s98')
    for i in range(8):
        a(f's_add_u32 s93, s99, {4096 * i}')
        a(f's_waitcnt vmcnt({o.efwin - 1})')
        a(f'buffer_load_dwordx4 v{8 + (i // 2) % 2}, {S(R_WD)}, s93 offen nt lds')
        a('s_add_u32 m0, m0, 1024')
    a('v_bfe_u32 v57, v1, 2, 3')
    a('v_lshlrev_b32 v57, 1, v57')
    a('v_xor_b32 v57, v57, v4')
    a('v_lshlrev_b32 v57, 4, v57')
    a('v_lshl_add_u32 v57, v59, 8, v57')
    a('v_add_u32 v57, s98, v57')
    a(f'v_lshlrev_b32 v{EAR}, 6, v4')
    a(f'v_lshl_add_u32 v{EAR}, v3, 4, v{EAR}')
    a(f'v_add_u32 v{EAR}, {A_ACT}, v{EAR}')
    a('v_bfe_u32 v9, v1, 1, 1')
    a(f'v_mul_u32_u24 v{EPS}, 6144, v9')
    a('v_and_b32 v9, 1, v1')
    a(f'v_lshl_add_u32 v{EPS}, v9, 6, v{EPS}')
    a(f'v_lshl_add_u32 v{EPS}, v3, 4, v{EPS}')
    a('s_lshl_b32 s93, s94, 10')
    a(f's_add_u32 s93, s93, {A_H}')
    a(f'v_add_u32 v{EHW}, s93, v2')
    a('v_cmp_lt_u32 vcc, 23, v1')
    a('v_mov_b32 v9, 0x7fffff00')
    a(f'v_cndmask_b32 v{GL}, v2, v9, vcc')
    a('s_and_b32 s93, s63, 1')
    a('s_lshl_b32 s93, s93, 1')
    a('v_bfe_u32 v9, v1, 2, 1')
    a('v_add_u32 v9, s93, v9')
    a(f'v_lshlrev_b32 v{GH}, 8, v4')
    a(f'v_lshl_add_u32 v{GH}, v9, 4, v{GH}')
    a('s_lshr_b32 s93, s63, 3')
    a('s_lshl_b32 s93, s93, 10')
    a('s_bfe_u32 s96, s63, 0x20001')
    a('s_lshl_b32 s96, s96, 6')
    a('s_add_u32 s93, s93, s96')
    a(f's_add_u32 s93, s93, {A_H}')
    a(f'v_add_u32 v{GH}, s93, v{GH}')
    a(f'v_lshlrev_b32 v{GO_}, 10, v9')
    a(f'v_lshl_add_u32 v{GO_}, v4, 4, v{GO_}')
    a(f'v_lshl_add_u32 v{GO_}, v3, 1, v{GO_}')
    a('v_add_u32 v58, s6, v58')
    a(f'v_lshlrev_b32 v{EW}, 8, v4')
    a(f'v_lshl_add_u32 v{EW}, v3, 4, v{EW}')
    a(f'v_add_u32 v{EW}, s6, v{EW}')
    a(f'v_lshlrev_b32 v{ES}, 3, v4')
    a(f'v_lshl_add_u32 v{ES}, v3, 2, v{ES}')
    a(f'v_add_u32 v{ES}, s6, v{ES}')
    a('s_and_b32 s93, s3, 1')
    a('s_lshl_b32 s93, s93, 6')
    a(f'v_add_u32 v{EST}, s93, v1')
    a(f'v_lshrrev_b32 v{ESR}, 5, v{EST}')
    a(f'v_and_b32 v{ER}, 31, v{EST}')
    a(f'v_lshlrev_b32 v{ER}, 2, v{ER}')
    a(f'v_lshl_add_u32 v{ER}, v{ESR}, 8, v{ER}')
    a(f'v_lshlrev_b32 v{ESR}, 3, v{ESR}')
    a(f'v_lshlrev_b32 v{EST}, 1, v{EST}')
    a(f'v_add_u32 v{EST}, {A_ACT}, v{EST}')
    vF(EG)
    for i in range(4):
        a(f'v_mov_b32 v{X4 + i}, s{S_ONES}')
    a('v_mov_b32 v226, v57')
    a('v_mov_b32 v227, v58')

    def e_lds_write():
        ex(M4)
        for k in range(4):
            a(f'ds_write_b128 v{EW}, {vr(EA + 4 * k, 4)} offset:{64 * k}')
        ex(-1)
    a('s_branch L_wnone')
    a.label('L_wlo')
    a('s_lshl_b32 s93, s3, 15')
    a('s_add_u32 s0, s0, s93')
    a('s_lshl_b32 s93, s3, 13')
    a(f's_add_u32 m0, s93, {A_WUV}')
    a('v_lshlrev_b32 v8, 10, v8')
    a('v_lshl_add_u32 v8, v4, 4, v8')
    a('s_lshl_b32 s97, s7, 19')
    a('s_lshl_b32 s93, s3, 17')
    a('s_add_u32 s97, s97, s93')
    a('s_lshl_b32 s93, s63, 6')
    a('s_add_u32 s97, s97, s93')
    assert o.wgo
    for i in range(8):
        a(f's_add_u32 s93, s97, {i * 16384}')
        if i >= o.owin:
            a(f's_waitcnt vmcnt({o.owin - 1})')
        a(f'buffer_load_dwordx4 v8, {S(R_WO)}, s93 offen {o.r64} lds')
        if i < 7:
            a('s_add_u32 m0, m0, 1024')
    a(f's_sub_u32 m0, m0, {A_WO - A_WUV + 7168}')
    if o.wgo:
        if o.egate == 0:
            a('s_waitcnt vmcnt(0)')
            a('s_cmp_lt_u32 s2, 48')
            a('s_cbranch_scc1 L_nogw')
        go_wait()
        a.label('L_nogw')
        for t in range(4):
            for k in range(2):
                tr_op(OPD + 8 * t + 4 * k, 57, 2048 * t + 32 * k, 256)
            if t == 1:
                a('s_waitcnt lgkmcnt(2)')
        a('s_waitcnt lgkmcnt(0)')
    if o.loc:
        a('s_lshl_b32 s93, s7, 11')
        a(f's_add_u32 s93, s93, {WS_XT}')
        a('v_lshlrev_b32 v9, 7, v11')
        a(f'buffer_load_dword v10, v9, {S(R_WS)}, s93 offen sc1')
        for i in range(4):
            a(f'buffer_load_dwordx4 {vr(D + 4 * i, 4)}, v128, {S(R_WS)}, s6 offen offset:{1024 * i} sc1')
    for i in range(8):
        a(f's_add_u32 s93, s0, {(16 * (i % 2) + i // 2) * 8192}')
        if not o.wgo:
            a(f's_waitcnt vmcnt({o.wwin - 1})')
        a(f'buffer_load_dwordx4 v{6 + (i // 2) % 2}, {S(R_WUV)}, s93 offen nt lds')
        if i < 7:
            a('s_add_u32 m0, m0, 1024')
    a('s_waitcnt vmcnt(0)')
    if o.loc:
        a(f'v_cmp_ne_u32 vcc, s{S_XCC}, v10')
        a('s_cmp_eq_u64 vcc, 0')
        a(f's_cselect_b32 s{S_LOC}, 1, 0')
    a('s_barrier')
    for t in range(4):
        for k in range(2):
            tr_op(OPC + 8 * t + 4 * k, 56, 8192 * t + 8 * k, 1024)
            if not o.wgo:
                tr_op(OPD + 8 * t + 4 * k, 57, 2048 * t + 32 * k, 256)
        a('s_waitcnt lgkmcnt(4)')
    a.label('L_cstart')
    stamp(6)
    RED4 = ('quad_perm:[1,0,3,2]', 'quad_perm:[2,3,0,1]', 'row_ror:4', 'row_ror:8')

    def weights():
        a('v_mov_b32 v54, v52')
        for c in RED4:
            dpp('v_max_f32', 54, 54, 54, c)
        swap_step('v_max_f32', 54, 55, 16)
        a('v_sub_f32 v53, v52, v54')
        a('v_exp_f32 v53, v53')
        a('v_cvt_pk_bf16_f32 v54, v53, 0')
        a('v_lshlrev_b32 v53, 16, v54')
        for i in range(4):
            a(f'ds_bpermute_b32 v{WL + i}, v51, v54 offset:{16 * i}')
        a('s_waitcnt lgkmcnt(0)')
        for i in range(4):
            a(f'v_lshlrev_b32 v{WL + 4 + i}, 16, v{WL + i}')
    a('v_lshrrev_b32 v9, 4, v5')
    a('s_lshl_b32 s96, s94, 12')
    a('s_lshl_b32 s93, s4, 2')
    a('s_add_u32 s96, s96, s93')
    a(f's_add_u32 s96, s96, {WS_M0}')
    a(f'buffer_load_dword v52, v9, {S(R_WS)}, s96 offen sc1')
    a('s_lshl_b32 s96, s94, 7')
    a(f's_add_u32 s96, s96, {WS_FL + 128}')
    a(f'buffer_load_dword v10, off, {S(R_WS)}, s96 sc1')
    a('s_waitcnt vmcnt(0)')
    a(f'v_xor_b32 v52, s{S_TAG}, v52')
    weights()
    flag_wait('s96', 9, o.stsleep)
    stamp(7)
    a(f's_mov_b32 s{S_CNT}, {SPIN}')
    a.label('L_call')
    a(f'buffer_load_dwordx4 v[12:15], v5, {S(R_WS)}, s90 offen sc1')
    for i in range(4):
        a(f'buffer_load_dwordx4 {vr(D + 4 * i, 4)}, v2, {S(R_WS)}, s91 offen offset:{1024 * i} sc1')
    a(f's_sub_u32 s{S_CNT}, s{S_CNT}, 1')
    a('s_cbranch_scc1 L_cdone')
    a('s_waitcnt vmcnt(4)')
    a('v_cmp_ne_u32 vcc, v12, v52')
    xor_chain(10, [12, 13, 14, 15], f's{S_TAG}')
    a('v_cndmask_b32 v9, 0, v14, s[88:89]')
    a('s_cbranch_vccnz L_cnewm')
    a.label('L_crec')
    a('v_mul_f32 v14, v53, v13')
    side = []
    for c in RED4:
        side.append(f'v_add_f32_dpp v14, v14, v14 {c} row_mask:0xf bank_mask:0xf')
    side += ['v_mov_b32 v15, v14', 'v_permlane16_swap_b32 v14, v15', 'v_add_f32 v14, v14, v15', 'v_rcp_f32 v14, v14']
    for i in range(4):
        a(f's_waitcnt vmcnt({3 - i})')
        if i == 3:
            stamp(8)
            f3(66)
        xor_chain(9, [9] + list(range(D + 4 * i, D + 4 * i + 4)))
        if i == 3:
            side = [f'v_xor_b32_dpp v9, v9, v9 {c} row_mask:0xf bank_mask:0xf' for c in RED4]
        for u in range(4):
            for e in range(2):
                c = '0' if i == 0 else f'v{CA + 2 * u + e}'
                a(f'v_dot2_f32_bf16 v{CA + 2 * u + e}, v{D + 4 * i + u}, v{WL + 4 * e + i}, {c}')
            if side:
                a(side.pop(0))
    a('v_mov_b32 v15, v9')
    for k in range(4):
        a(f'v_permlane16_swap_b32 v{CA + 2 * k}, v{CA + 2 * k + 1}')
        if k == 1:
            a('v_permlane16_swap_b32 v9, v15')
            a('v_xor_b32 v9, v9, v15')
            a('v_mov_b32 v15, v9')
    a('v_permlane32_swap_b32 v9, v15')
    a(f'v_bitop3_b32 v9, v9, v15, v10 bitop3:0xbe')
    a('v_cmp_ne_u32 vcc, 0, v9')
    a.label('L_cdone')
    for k in range(4):
        a(f'v_add_f32 v{CA + 2 * k}, v{CA + 2 * k}, v{CA + 2 * k + 1}')
    for k in range(2):
        a(f'v_permlane32_swap_b32 v{CA + 4 * k}, v{CA + 4 * k + 2}')
    for k in range(2):
        a(f'v_add_f32 v{CA + 4 * k}, v{CA + 4 * k}, v{CA + 4 * k + 2}')
    a('s_cbranch_vccnz L_cagain ;noflush')
    a.label('L_cok')
    a(f'v_mul_f32 v{CA}, v{CA}, v14')
    a(f'v_mul_f32 v{CA + 4}, v{CA + 4}, v14')
    a(f'v_cvt_pk_bf16_f32 v{CA}, v{CA}, v{CA + 4}')
    a(f'ds_write_b16 v48, v{CA}')
    a(f'ds_write_b16_d16_hi v48, v{CA} offset:8')
    f3(68)
    a('s_waitcnt lgkmcnt(0)')
    a('s_barrier')
    f3(70)
    a('s_cmp_ge_u32 s3, 4')
    a('s_cbranch_scc1 L_hi')
    for t in range(4):
        a(f'ds_read_b128 {vr(D + 4 * t, 4)}, v49 offset:{64 * t}')
    for t in range(4):
        a(f's_waitcnt lgkmcnt({3 - t})')
        for k in range(2):
            mfma16(CA + 4 * k, OPC + 8 * t + 4 * k, D + 4 * t, t == 0)
    for i in range(8):
        dpp('v_add_f32', CA + i, CA + i, CA + i, 'row_ror:4')
    for i in range(4):
        a(f'v_cvt_pk_bf16_f32 v{12 + i}, v{CA + 2 * i}, v{CA + 2 * i + 1}')
    a(f's_mov_b32 s{S_CNT}, {SPIN}')
    ex(M4)
    if o.loc:
        a(f's_cmp_eq_u32 s{S_LOC}, 0')
        a('s_cbranch_scc1 L_cfar ;noflush')
        a(f'buffer_store_dwordx4 v[12:15], v50, {S(R_WS)}, s98 offen')
        a('s_branch L_cst ;noflush')
        a.label('L_cfar')
    a(f'buffer_store_dwordx4 v[12:15], v50, {S(R_WS)}, s98 offen sc1')
    a.label('L_cst')
    ex(-1)
    stamp(9)
    f3(72)
    a('s_waitcnt vmcnt(0)')
    f3(74)
    a.label('L_dre')
    for i in range(4):
        a(f'buffer_load_dwordx4 {vr(D + 4 * i, 4)}, v128, {S(R_WS)}, s6 offen offset:{1024 * i} sc1')
    for t in range(4):
        a(f's_waitcnt vmcnt({3 - t})')
        for k in range(2):
            mfma16(CA + 4 * k, OPD + 8 * t + 4 * k, D + 4 * t, t == 0)
    a(f'v_cmp_u_f32 vcc, v{CA}, v{CA}')
    for i in range(8):
        dpp('v_add_f32', CA + i, CA + i, CA + i, 'row_ror:4')
    a('s_cbranch_vccnz L_dnan ;noflush')
    a.label('L_dok')
    stamp(10)
    f3(76)
    for i in range(8):
        dpp('v_add_f32', CA + i, CA + i, CA + i, 'row_ror:8')
    ex(M4)
    a(f'ds_write_b128 v129, {vr(CA, 4)}')
    a(f'ds_write_b128 v129, {vr(CA + 4, 4)} offset:64')
    ex(-1)
    a('s_waitcnt lgkmcnt(0)')
    a('s_barrier')
    a('s_cmp_lg_u32 s3, 0')
    a('s_cbranch_scc1 L_end')
    red4_read(D, 130)
    a(f'v_cvt_pk_bf16_f32 v{D}, v{D}, v{D + 1}')
    a(f'v_cvt_pk_bf16_f32 v{D + 1}, v{D + 2}, v{D + 3}')
    a(f'buffer_store_dwordx2 {vr(D, 2)}, v131, {S(R_WS)}, s99 offen sc1')
    f3(78)
    if o.stamps:
        a('s_memrealtime s[88:89]')
    a('s_waitcnt vmcnt(0)')
    if o.stamps:
        a('s_barrier')
    if o.st3:
        o.stamps = 1
    if o.stamps:
        dump_stamps(13, 0, 'a')
    a('s_endpgm')

    nan_retry('L_dnan', range(D, D + 16), 'L_dre', 'L_dok')
    a.label('L_cnewm')
    a('v_mov_b32 v52, v12')
    weights()
    a('s_branch L_crec')
    a.label('L_cagain')
    a(f's_cmp_lt_i32 s{S_CNT}, 0')
    a('s_cbranch_scc1 L_cok')
    a('s_branch L_call')
    a.label('L_hi')
    a('s_cmp_eq_u32 s61, 0')
    a('s_cbranch_scc1 L_end')

    def e_lds_read():
        for w in range(4):
            a(f'ds_read_b32 v{H + 2 * w}, v{ER} offset:{16384 * w}')
            a(f'ds_read_b32 v{H + 2 * w + 1}, v{ER} offset:{16384 * w + 128}')
    for t in range(4):
        for k in range(4):
            tr_op(OP + 16 * t + 4 * k, 227, 8192 * (k // 2) + 2048 * t + 32 * (k % 2), 256)
        a(f'v_xor_b32 v9, {64 * t}, v226')
        for k in range(2):
            tr_op(OPW + 8 * t + 4 * k, 9, 8 * k, 1024)
        a(f's_waitcnt lgkmcnt({2 if t < 3 else 0})')
    for t in range(4):
        for k in range(4):
            mfma16(EA + 4 * k, OP + 16 * t + 4 * k, X4, t == 0)
    for i in range(4):
        a(f'v_lshlrev_b32 v{132 + 2 * i}, 16, v{XR + i}')
        a(f'v_and_b32 v{133 + 2 * i}, s{S_MASK}, v{XR + i}')

    e_lds_write()
    a('s_lshl_b32 s98, s63, 7')
    a(f's_mul_i32 s93, s94, {4 * 12288}')
    a('s_add_u32 s98, s98, s93')
    a(f's_add_u32 s98, s98, {WS_FP}')
    a('s_mul_i32 s99, s63, 6144')
    a(f's_add_u32 s99, s99, {WS_FP}')
    a('s_add_u32 s97, s99, 4096')
    a('s_lshr_b32 s96, s63, 1')
    a('s_lshl_b32 s96, s96, 6')
    a('s_lshl_b32 s90, s94, 10')
    a(f's_add_u32 s90, s90, {WS_HP}')
    a('s_waitcnt lgkmcnt(0)')
    a(f's_mov_b32 s91, {f32bits(GELU_K * 0.044715)}')
    a(f'v_mov_b32 v228, {GELU_BITS}')
    stamp(5)
    a('s_barrier')
    e_lds_read()
    a('s_waitcnt lgkmcnt(0)')
    a(f'v_add_f32 v{ECS}, v{H}, v{H + 2}')
    a(f'v_add_f32 v{ECS + 1}, v{H + 1}, v{H + 3}')
    for w in range(2, 4):
        a(f'v_add_f32 v{ECS}, v{ECS}, v{H + 2 * w}')
        a(f'v_add_f32 v{ECS + 1}, v{ECS + 1}, v{H + 2 * w + 1}')
    a('s_barrier')
    if o.edelay:
        a(f's_sleep {o.edelay}')

    def e_loads():
        a('s_mov_b32 s92, s90')
        for r in range(8):
            a(f'buffer_load_dwordx4 {vr(H + 4 * r, 4)}, v{EG}, {S(R_WS)}, s92 offen sc1')
            if r < 7:
                a('s_add_u32 s92, s92, 4096')
    f3(66)
    a(f's_mov_b32 s{S_CNT}, {SPIN}')
    a.label('L_ere')
    e_loads()
    for r in range(8):
        a(f's_waitcnt vmcnt({7 - r})')
        if r == 7:
            stamp(9)
            f3(68)
        for u in range(4):
            for e in range(2):
                c = f'v{132 + 2 * u + e}' if r == 0 else f'v{HA + 2 * u + e}'
                a(f'v_dot2_f32_bf16 v{HA + 2 * u + e}, v{H + 4 * r + u}, s{S_LO1 + e}, {c}')
    f3(70)
    for i in range(4):
        a(f'v_cvt_pk_bf16_f32 v{X4 + i}, v{HA + 2 * i}, v{HA + 2 * i + 1}')
    for t in range(4):
        if t < 3:
            for i in range(4):
                a(f'v_mov_b32_dpp v{X4 + 4 * (t + 1) + i}, v{X4 + i} row_shl:{4 * (t + 1)} row_mask:0xf bank_mask:0xf bound_ctrl:0')
        for k in range(4):
            mfma16(EA + 4 * k, OP + 16 * t + 4 * k, X4 + 4 * t, t == 0)
        if t == 0:
            a(f'ds_write_b128 v{EHW}, {vr(X4, 4)}')
            for i in range(4):
                a(f'v_dot2_f32_bf16 v9, v{X4 + i}, s{S_ONES}, {"0" if i == 0 else "v9"}')
                a(f'v_dot2_f32_bf16 v11, v{X4 + i}, v{X4 + i}, {"0" if i == 0 else "v11"}')
        if t == 1:
            a('v_cmp_u_f32 vcc, v9, v9')
            for c in ('row_ror:4', 'row_ror:8'):
                dpp('v_add_f32', 9, 9, 9, c)
                dpp('v_add_f32', 11, 11, 11, c)
            a('s_cbranch_vccnz L_enan ;noflush')
            a.label('L_eok')
        if t == 2:
            a('v_permlane16_swap_b32 v9, v11')
            a('v_add_f32 v9, v9, v11')
            swap_step('v_add_f32', 9, 11, 32)
    ex(0x000f000f)
    f3(72)
    a(f'ds_write_b32 v{ES}, v9 offset:1024')
    e_lds_write()
    a('s_waitcnt lgkmcnt(0)')
    a('s_barrier')
    f3(74)
    a('s_cmp_ge_u32 s3, 6')
    a('s_cbranch_scc1 L_eact')
    for w in range(4):
        a(f'ds_read_b64 v[{H + 8 + 2 * w}:{H + 9 + 2 * w}], v{ESR} offset:{16384 * w + 1024}')
    e_lds_read()
    a('s_waitcnt lgkmcnt(8)')
    for w in range(1, 4):
        a(f'v_add_f32 v{H + 8}, v{H + 8}, v{H + 8 + 2 * w}')
        a(f'v_add_f32 v{H + 9}, v{H + 9}, v{H + 9 + 2 * w}')
    MU, VA = H + 8, H + 9
    a(f'v_mul_f32 v{MU}, 0x3b000000, v{MU}')
    a(f'v_mul_f32 v{VA}, 0x3b000000, v{VA}')
    a(f'v_fma_f32 v{VA}, -v{MU}, v{MU}, v{VA}')
    a(f'v_max_f32 v{VA}, 0, v{VA}')
    a(f'v_add_f32 v{VA}, 0x3727c5ac, v{VA}')
    a(f'v_rsq_f32 v{VA}, v{VA}')
    a('s_waitcnt lgkmcnt(0)')
    for w in range(1, 4):
        a(f'v_add_f32 v{H}, v{H}, v{H + 2 * w}')
        a(f'v_add_f32 v{H + 1}, v{H + 1}, v{H + 2 * w + 1}')
    a(f'v_fma_f32 v16, -v{MU}, v{ECS}, v16')
    a(f'v_fma_f32 v17, -v{MU}, v{ECS + 1}, v17')
    a(f'v_mul_f32 v16, v16, v{VA}')
    a(f'v_mul_f32 v17, v17, v{VA}')
    a('v_mul_f32 v18, v16, v16')
    a('v_fma_f32 v19, v18, s91, v228')
    a('v_mul_f32 v19, v19, v16')
    a('v_exp_f32 v19, v19')
    a('v_mul_f32 v16, v16, v17')
    a('v_add_f32 v19, 1.0, v19')
    a('v_rcp_f32 v19, v19')
    a('v_mul_f32 v16, v16, v19')
    a('v_mov_b32_dpp v17, v16 quad_perm:[1,1,3,3] row_mask:0xf bank_mask:0xf')
    a('v_cvt_pk_bf16_f32 v16, v16, v17')
    ex(0x5555555555555555)
    a(f'ds_write_b32 v{EST}, v16')
    ex(-1)
    a('s_waitcnt lgkmcnt(0)')
    a.label('L_eact')
    a('s_barrier')
    f3(76)
    a(f'ds_read_b128 v[16:19], v{EAR}')
    a(f'ds_read_b128 v[20:23], v{GH}')
    a('s_waitcnt lgkmcnt(1)')
    for k in range(8):
        mfma16(FA + 4 * k, OPW + 4 * k, 16, True)
    ex(M4)
    for p in range(4):
        for i in range(4):
            a(f'v_cvt_pk_bf16_f32 v{96 + 4 * p + i}, v{FA + 8 * p + 2 * i}, v{FA + 8 * p + 2 * i + 1}')
        a(f'buffer_store_dwordx4 {vr(96 + 4 * p, 4)}, v{EPS}, {S(R_WS)}, s98 offen sc1')
        if p < 3:
            a('s_add_u32 s98, s98, 12288')
    ex(-1)
    stamp(10)
    f3(78)
    a('s_cmp_lg_u32 s3, 4')
    a('s_cbranch_scc1 L_end')
    a('s_cmp_ge_u32 s63, 32')
    a('s_cbranch_scc1 L_efend')
    G, GA = 24, 48
    for i in range(8):
        a(f'v_mov_b32 v{56 + i}, 0')
    a('s_waitcnt lgkmcnt(0)')
    ex(0xff)
    for u in range(4):
        for e in range(2):
            a(f'v_dot2_f32_bf16 v{56 + 2 * u + e}, v{20 + u}, s{S_LO1 + e}, 0')
    ex(-1)
    a(f's_mov_b32 s{S_CNT}, {SPIN}')
    a('s_waitcnt vmcnt(0)')
    if o.fdelay:
        a(f's_sleep {o.fdelay}')
    a.label('L_gre')
    for i in range(6):
        a(f'buffer_load_dwordx4 {vr(G + 4 * i, 4)}, v{2 if i < 5 else GL}, {S(R_WS)}, s{99 if i < 4 else 97} offen offset:{1024 * (i % 4)} sc1')
    for i in range(6):
        a(f's_waitcnt vmcnt({5 - i})')
        for u in range(4):
            for e in range(2):
                c = 56 + 2 * u + e if i == 0 else GA + 2 * u + e
                a(f'v_dot2_f32_bf16 v{GA + 2 * u + e}, v{G + 4 * i + u}, s{S_LO1 + e}, v{c}')
    stamp(7)
    for k in range(4):
        a(f'v_permlane16_swap_b32 v{GA + 2 * k}, v{GA + 2 * k + 1}')
    for k in range(4):
        a(f'v_add_f32 v{GA + 2 * k}, v{GA + 2 * k}, v{GA + 2 * k + 1}')
    for k in range(2):
        a(f'v_permlane32_swap_b32 v{GA + 4 * k}, v{GA + 4 * k + 2}')
    for k in range(2):
        a(f'v_add_f32 v{GA + 4 * k}, v{GA + 4 * k}, v{GA + 4 * k + 2}')
    a(f'v_cmp_u_f32 vcc, v{GA}, v{GA + 4}')
    for k in range(2):
        dpp('v_add_f32', GA + 4 * k, GA + 4 * k, GA + 4 * k, 'row_ror:8')
    a(f'v_cvt_pk_bf16_f32 v{GA}, v{GA}, v{GA + 4}')
    a('s_cbranch_vccnz L_gnan ;noflush')
    a.label('L_gok')
    ex(0x00ff00ff00ff00ff)
    a(f'buffer_store_short v{GA}, v{GO_}, {S(R_OUT)}, s96 offen')
    a(f'buffer_store_short_d16_hi v{GA}, v{GO_}, {S(R_OUT)}, s96 offen offset:8')
    a('s_cmp_lg_u32 s63, 0')
    a('s_cbranch_scc1 L_efend')
    ex(1)
    a(f'v_mov_b32 v12, s{S_TAG}')
    a(f's_mov_b32 s90, {WS_EPOCH}')
    a(f'buffer_store_dword v12, off, {S(R_WS)}, s90')
    a.label('L_efend')
    if o.diag:
        a.label('L_diag')
        a('s_memrealtime s[90:91]')
        a('s_waitcnt lgkmcnt(0)')
        a('s_sub_u32 s90, s90, s100')
        a(f's_cmp_lt_u32 s90, {o.diag}')
        a('s_cbranch_scc1 L_diag')
    if o.stamps:
        stamp(8)
        a('s_cmp_lg_u32 s3, 4')
        a('s_cbranch_scc1 L_end')
        dump_stamps(11, 1)
    a('s_endpgm')

    nan_retry('L_enan', range(H, H + 32), 'L_ere', 'L_eok')
    nan_retry('L_gnan', range(G, G + 24), 'L_gre', 'L_gok')
    a.label('L_att')
    srd([R_CKV])
    a('s_bfe_u32 s4, s2, 0x20001')
    a('s_bfe_u32 s5, s2, 0x40003')
    a('s_lshl_b32 s5, s5, 1')
    a('s_and_b32 s6, s2, 1')
    a('s_add_u32 s5, s5, s6')
    a('s_lshl_b32 s90, s4, 23')
    TS = (2 << 20) if o.il else 65536
    MX = (1 << o.mb1, 1 << o.mb2)
    a(f's_lshl_b32 s91, s5, {16 if o.il else 18}')
    a('s_add_u32 s90, s90, s91')
    a('s_and_b32 s7, s3, 3')
    a('s_lshl_b32 s91, s7, 14')
    a('s_add_u32 s90, s90, s91')
    a('s_lshl_b32 s91, s7, 15')
    a('s_lshl_b32 s92, s7, 2')
    a(f's_add_u32 s92, s92, {FB}')
    a('v_mov_b32 v7, s92')
    a(f'v_lshlrev_b32 v10, 2, v4')
    a(f'v_add_u32 v10, {FB}, v10')
    a('s_cmp_lt_u32 s3, 4')
    a('s_cbranch_scc1 L_comp')
    a('s_mov_b32 s3, s7')
    VX, TR, O_ = 12, 128, 64
    for j in range(8):
        a(f'v_xor_b32 v{VX + j}, {32 * j}, v2')
    a('s_mov_b32 m0, s91')
    a('s_mov_b32 s93, 0')
    a('s_waitcnt lgkmcnt(0)')
    srd_ptr([R_CKV])
    BUF = (0, 1, 1, 0)
    TAL, vPR, vST, vRC, vRM, vRL, vAR = 20, 28, 29, 30, 31, 32, 33

    def pv_setup():
        a('v_bfe_u32 v40, v1, 2, 2')
        a('v_lshrrev_b32 v42, 5, v1')
        a('v_lshlrev_b32 v41, 2, v40')
        a('v_lshl_add_u32 v41, v42, 1, v41')
        a('v_and_b32 v43, 1, v3')
        a('v_lshlrev_b32 v44, 1, v43')
        a('v_bfe_u32 v45, v1, 1, 1')
        a('v_add_u32 v44, v44, v45')
        a('v_xor_b32 v44, v44, v41')
        a('v_lshlrev_b32 v41, 10, v41')
        a('v_lshl_add_u32 v41, v44, 4, v41')
        a('v_and_b32 v45, 1, v1')
        a('v_lshl_add_u32 v41, v45, 3, v41')
        a('s_lshl_b32 s95, s3, 8')
        a('v_add_u32 v41, s95, v41')
        for i in range(8):
            a(f'v_xor_b32 v{TAL + i}, {64 * (i % 4) + 65536 * (i // 4)}, v41')
        a(f'v_add_u32 v{vPR}, {L_P}, v2')
        a(f'v_lshlrev_b32 v{vAR}, 4, v42')
        a(f'v_add_u32 v{vAR}, {L_ALPHA}, v{vAR}')
        a('v_lshl_add_u32 v42, v42, 2, v43')
        a(f'v_lshlrev_b32 v{vST}, 17, v42')
        a(f'v_lshl_add_u32 v{vST}, v11, 4, v{vST}')
        a('v_lshl_add_u32 v42, v45, 4, v42')
        a('v_bfe_u32 v44, v1, 2, 1')
        a('v_lshl_add_u32 v42, v44, 3, v42')
        a('v_bfe_u32 v44, v1, 3, 1')
        a('v_lshl_add_u32 v42, v44, 1, v42')
        a(f'v_lshlrev_b32 v{vRM}, 2, v42')
        a(f'v_add_u32 v{vRM}, {L_MFIN}, v{vRM}')
        a(f'v_lshlrev_b32 v{vRC}, 4, v42')
        a(f'v_add_u32 v{vRL}, {L_MAX}, v{vRC}')
        a('s_lshl_b32 s96, s3, 2')
        a('s_add_u32 s96, s96, s4')
        a('s_lshl_b32 s96, s96, 13')
        a('s_lshl_b32 s95, s5, 8')
        a('s_add_u32 s96, s96, s95')
        a(f's_add_u32 s96, s96, {WS_OP}')
        a('s_lshl_b32 s97, s4, 16')
        a('s_lshl_b32 s95, s5, 11')
        a('s_add_u32 s97, s97, s95')
        a('s_lshl_b32 s95, s3, 9')
        a('s_add_u32 s97, s97, s95')
        a(f's_add_u32 s97, s97, {WS_REC}')
        a('v_add_u32 v9, s91, v2')
    rows = [(T, j) for T in range(3) for j in range(16) if not (T == 1 and j == 15)]
    landed = 0
    pub = {0: 16, 1: 31}

    def publish():
        for tt in list(pub):
            if landed >= pub[tt]:
                a(f'v_mov_b32 v5, {tt + 1}')
                a(f'ds_write_b32 v7, v5 offset:{F_LAND}')
                del pub[tt]

    def dma_row(j):
        a(f'buffer_load_dwordx4 v{VX + j // 2}, {S(R_CKV)}, s90 offen offset:{(j % 4) * 1024} nt lds')
    for n, (T, j) in enumerate(rows):
        w = o.w0 if n < o.n0 else o.window
        if n >= o.n0:
            lb = a.uid('fast')
            a('s_cmp_lg_u32 s93, 0')
            a(f's_cbranch_scc1 {lb}')
            if n % 2 == 0:
                a(f'ds_read_b32 v6, v10 offset:{F_HUS if o.sw == 1 else F_QST}')
            a(f's_waitcnt vmcnt({o.w1 - 1})')
            if n % 2 == 0:
                a('s_waitcnt lgkmcnt(0)')
                a('v_cmp_eq_u32 vcc, 0, v6')
                a('s_cmp_eq_u64 vcc, 0')
                a('s_cselect_b32 s93, 1, 0')
            a.label(lb)
        if n - landed >= w:
            a(f's_waitcnt vmcnt({w - 1})')
            landed = n - (w - 1)
        if n in (16 + o.w1, 31 + o.lw) and landed < n - (o.w1 if n < 31 else o.lw):
            k = o.w1 if n < 31 else o.lw
            a(f's_waitcnt vmcnt({k})')
            landed = n - k
        publish()
        if n == 20:
            get_tag()
            a('v_mov_b32 v35, 0')
        if n == o.gon and o.wgo:
            lb = a.uid('nogo')
            a('s_cmp_lg_u32 s3, 0')
            a(f's_cbranch_scc1 {lb}')
            a('s_sub_u32 s92, s2, 128')
            a('s_lshl_b32 s92, s92, 7')
            a(f's_add_u32 s92, s92, {WS_GO}')
            a(f'v_mov_b32 v6, s{S_TAG}')
            a('v_lshlrev_b32 v8, 2, v1')
            ex(0xffffffff)
            a(f'buffer_store_dword v6, v8, {S(R_WS)}, s92 offen sc1')
            ex(-1)
            a.label(lb)
        if T < 2:
            dma_row(j)
        else:
            a(f'buffer_load_dwordx4 {vr(TR + 64 * (T - 2) + 4 * j, 4)}, v{VX + j // 2}, {S(R_CKV)}, s90 offen offset:{(j % 4) * 1024} nt')
        last = j == 15 or (T == 1 and j == 14)
        if j % 4 == 3 or last:
            a(f's_add_u32 s90, s90, {TS - 12288 if last else 4096}')
            if o.mix:
                a(f's_xor_b32 s90, s90, {MX[(j // 4) % 2]}')
            if T < 2:
                a('s_add_u32 m0, m0, 4096')
        if n == o.w0 - 1:
            a(f's_load_dword s{S_TAG}, s[{R_WS}:{R_WS + 1}], {WS_EPOCH}')
            a('s_barrier')
            pv_setup()
        if n == 30:
            stamp(1)
    assert not pub
    stamp(2)
    if o.pvprio:
        a(f's_setprio {o.pvprio}')
    PF = 36
    BFS = (44, 48, 52, 56, 60, 12, 16)
    NB = len(BFS)
    DIST = 6
    FLG = 34

    def pv(t):
        seq = [(ks, blk) for ks in range(4) for blk in range(4)]

        def rd(n):
            ks, blk = seq[n]
            for tau in range(2):
                a(f'ds_read_b64_tr_b16 {vr(BFS[n % NB] + 2 * tau, 2)}, v{TAL + blk + 4 * (ks // 2)} offset:{32768 * (ks % 2) + 16384 * BUF[t] + 1024 * tau}')

        def p_rd(ks):
            a(f'ds_read_b128 {vr(PF + 4 * (ks % 2), 4)}, v{vPR} offset:{4096 * t + 1024 * ks}')
        a(f's_mov_b32 s{S_CNT}, {SPIN * 40}')
        a('s_mov_b32 s95, 2')
        a.label(f'L_pp{t}')
        a(f'ds_read_b32 v{FLG}, v10 offset:{F_PS + 16 * t}')
        a('s_waitcnt lgkmcnt(0)')
        a(f'v_cmp_ne_u32 vcc, s95, v{FLG}')
        a(f's_cbranch_vccnz L_ps{t}')
        a.label(f'L_pg{t}')
        p_rd(0)
        ops = ['P0']

        def issue_rd(n):
            rd(n)
            ops.extend([f'R{n}', f'R{n}'])
        for n in range(DIST):
            issue_rd(n)
            if n == 1:
                p_rd(1)
                ops.append('P1')
        for n in range(16):
            ks, blk = seq[n]
            need = max(i for i, x in enumerate(ops) if x in (f'R{n}', f'P{ks}'))
            a(f's_waitcnt lgkmcnt({min(15, len(ops) - 1 - need)})')
            if t == 0 and blk == 3:
                a(f'ds_write_b32 v7, v35 offset:{F_DONE}')
                ops.append('W')
            c = '0' if (t == 0 and ks == 0) else vr(O_ + 16 * blk, 16)
            a(f'v_mfma_f32_32x32x16_bf16 {vr(O_ + 16 * blk, 16)}, {vr(PF + 4 * (ks % 2), 4)}, {vr(BFS[n % NB], 4)}, {c}')
            if t == 0 and blk == 1:
                a('v_add_u32 v35, 1, v35')
            if n in (3, 7):
                p_rd(2 + n // 4)
                ops.append(f'P{2 + n // 4}')
            if n + DIST < 16:
                issue_rd(n + DIST)

    pv(0)
    stamp(3)
    pv(1)
    stamp(4)
    a('v_mov_b32 v5, 5')
    a(f'ds_write_b32 v7, v5 offset:{F_DONE}')
    lds_wait(10, F_DONE, 5, 5, 0)
    for j in range(16):
        if j % 2 == 0:
            a(f's_waitcnt vmcnt({14 - j})')
        a(f'ds_write_b128 v9, {vr(TR + 4 * j, 4)} offset:{1024 * j + 16384}')
    a('v_mov_b32 v5, 3')
    a(f'ds_write_b32 v7, v5 offset:{F_LAND}')
    stamp(5)
    pv(2)
    stamp(6)
    pv(3)
    stamp(7)
    PK, XX = 128, 160

    def l_reads():
        a(f'ds_read_b32 v{FLG}, v10 offset:{F_LSEQ}')
        a(f'ds_read_b128 v[172:175], v{vRL}')
        a(f'ds_read_b32 v168, v{vRM}')
    l_reads()
    for ap in range(8):
        t = PK + 4 * ap
        j = 2 * ap
        a(f'v_cvt_pk_bf16_f32 v{t}, v{O_ + j}, v{O_ + 16 + j}')
        a(f'v_cvt_pk_bf16_f32 v{t + 2}, v{O_ + j + 1}, v{O_ + 16 + j + 1}')
        a(f'v_cvt_pk_bf16_f32 v{t + 1}, v{O_ + 32 + j}, v{O_ + 48 + j}')
        a(f'v_cvt_pk_bf16_f32 v{t + 3}, v{O_ + 32 + j + 1}, v{O_ + 48 + j + 1}')
        a(f'v_permlane16_swap_b32 v{t}, v{t + 2}')
        a(f's_add_u32 s92, s96, {(8 * (ap // 2) + 2 * (ap % 2)) * 131072}')
        a(f'v_permlane16_swap_b32 v{t + 1}, v{t + 3}')
        a(f'buffer_store_dwordx4 {vr(t, 4)}, v{vST}, {S(R_WS)}, s92 offen sc1')
        xor_chain(XX + ap, range(t, t + 4))
        if ap % 2 == 1:
            k = ap // 2
            dpp('v_xor_b32', XX + 2 * k, XX + 2 * k, XX + 2 * k, 'row_ror:8', 0x3)
            dpp('v_xor_b32', XX + 2 * k, XX + 2 * k + 1, XX + 2 * k + 1, 'row_ror:8', 0xc)
        if ap % 4 == 3:
            m = ap // 4
            dpp('v_xor_b32', XX + 4 * m, XX + 4 * m, XX + 4 * m, 'row_half_mirror', 0x5)
            dpp('v_xor_b32', XX + 4 * m, XX + 4 * m + 2, XX + 4 * m + 2, 'row_half_mirror', 0xa)
            dpp('v_xor_b32', XX + 4 * m, XX + 4 * m, XX + 4 * m, 'quad_perm:[1,0,3,2]')
            dpp('v_xor_b32', 170 if m == 0 else XX + 4, XX + 4 * m, XX + 4 * m, 'quad_perm:[2,3,0,1]')
        if ap == 4:
            a('s_waitcnt lgkmcnt(0)')
            a(f'v_cmp_ne_u32 vcc, 1, v{FLG}')
            a('s_cbranch_vccnz L_lslow')
            a.label('L_lok')
            a('v_add_f32 v172, v172, v173')
            a('v_add_f32 v174, v174, v175')
            a('v_add_f32 v169, v172, v174')
            a(f'v_bitop3_b32 v171, v168, v169, s{S_TAG} {XOR3}')
    ex(0x2222222222222222)
    a(f'v_mov_b32 v170, v{XX + 4}')
    ex(0x3333333333333333)
    a('v_xor_b32 v171, v171, v170')
    a(f'buffer_store_dwordx4 v[168:171], v{vRC}, {S(R_WS)}, s97 offen sc1')
    if o.stamps:
        stamp(8)
        a('s_waitcnt vmcnt(0)')
        stamp(9)
        a('s_cmp_lg_u32 s3, 0')
        a('s_cbranch_scc1 L_end')
        dump_stamps(11, 1)
    a('s_endpgm')
    a.label('L_lslow')
    l_reads()
    a('s_waitcnt lgkmcnt(0)')
    a(f'v_cmp_ne_u32 vcc, 1, v{FLG}')
    a('s_cbranch_vccz L_lok')
    a(f's_sub_u32 s{S_CNT}, s{S_CNT}, 1')
    a('s_cbranch_scc0 L_lslow')
    a('s_branch L_lok')
    for t in range(4):
        a.label(f'L_ps{t}')
        a(f'v_cmp_ne_u32 vcc, 3, v{FLG}')
        a(f's_cbranch_vccz L_pr{t}')
        a('s_sleep 1')
        a(f's_sub_u32 s{S_CNT}, s{S_CNT}, 1')
        a(f's_cbranch_scc0 L_pp{t}')
        a(f's_branch L_pg{t}')
        a.label(f'L_pr{t}')
        if t > 0:
            for jq in range(4):
                a(f'ds_read_b128 {vr(44 + 4 * jq, 4)}, v{vAR} offset:{128 * t + 32 * jq}')
            a('s_waitcnt lgkmcnt(0)')
            a('s_nop 7')
            for blk in range(4):
                for j in range(16):
                    a(f'v_mul_f32 v{O_ + 16 * blk + j}, v{O_ + 16 * blk + j}, v{44 + j}')
        a(f's_branch L_pg{t}')

    a.label('L_comp')
    QA = 128
    vMW, vFW, vPW, vFR, vAW, vMR = 6, 7, 8, 10, 11, 9
    NM, LL = 12, 14
    SS, PKS, EX4, AA, AQ, WK = 32, 40, 44, 48, 56, 64
    NA = 8
    a('v_lshlrev_b32 v16, 2, v1')
    a(f'v_add_u32 v16, {FB}, v16')
    a('v_mov_b32 v17, 0')
    a('ds_write_b32 v16, v17')
    a('s_waitcnt lgkmcnt(0)')
    a('s_barrier')
    a(f's_load_dword s{S_TAG}, s[{R_WS}:{R_WS + 1}], {WS_EPOCH}')
    srd_ptr([R_CKV])
    consts()
    a(f's_add_u32 s63, s90, {TS + 15 * 1024}')
    if o.mix:
        a(f's_xor_b32 s63, s63, {MX[1]}')
    a(f's_add_u32 s99, s90, {3 * TS}')
    a('s_mov_b32 m0, s91')
    for j in range(8):
        a(f'v_xor_b32 v{104 + j}, {32 * j}, v2')
    a('v_xor_b32 v21, 0xe0, v2')
    a(f'buffer_load_dwordx4 v[24:27], v21, {S(R_CKV)}, s63 offen nt')
    a('v_mov_b32 v20, 128')
    a('global_load_dword v100, v20, s[86:87] sc1')
    a(f's_add_u32 s6, s91, {16384 + 15 * 1024}')
    a('v_add_u32 v28, s6, v2')
    a('s_lshl_b32 s90, s4, 15')
    a('s_lshl_b32 s95, s3, 13')
    a('s_add_u32 s90, s90, s95')
    if WS_QA:
        a(f's_add_u32 s90, s90, {WS_QA}')
    a('s_add_u32 s92, s90, 4096')
    a('s_lshl_b32 s93, s3, 12')
    a('s_lshl_b32 s94, s4, 3')
    a('s_add_u32 s93, s93, s94')
    a(f's_add_u32 s93, s93, {WS_QAH}')
    a('v_lshrrev_b32 v16, 1, v1')
    a('v_lshlrev_b32 v16, 7, v16')
    a('s_and_b32 s94, s3, 1')
    a('s_lshl_b32 s94, s94, 7')
    a('v_xor_b32 v17, s94, v2')
    a(f's_add_u32 s95, s95, {SB}')
    a('v_add_u32 v17, s95, v17')
    for i in range(4):
        a(f'v_xor_b32 v{96 + i}, {32 * i}, v17')
    a('v_lshrrev_b32 v22, 5, v1')
    a('v_and_b32 v29, 1, v3')
    a('v_lshlrev_b32 v23, 4, v29')
    a('v_lshl_add_u32 v23, v22, 9, v23')
    a('v_bfe_u32 v18, v1, 3, 1')
    a('v_lshl_add_u32 v18, v18, 2, v4')
    a('v_lshl_add_u32 v18, v18, 5, v23')
    a('v_lshl_add_u32 v18, v11, 10, v18')
    a(f'v_add_u32 v18, {SB}, v18')
    a('v_bfe_u32 v20, v1, 2, 2')
    a('v_lshl_add_u32 v21, v4, 2, v20')
    a('v_lshl_add_u32 v19, v21, 10, v23')
    a('v_and_b32 v21, 14, v21')
    a('v_lshl_add_u32 v19, v21, 4, v19')
    a('v_add_u32 v19, s91, v19')
    for i in range(8):
        a(f'v_xor_b32 v{AA + i}, {32 * i}, v19')
        a(f'v_xor_b32 v{AQ + i}, {32 * i}, v18')
    a('v_and_b32 v20, 31, v1')
    a('s_lshl_b32 s95, s3, 2')
    a(f's_add_u32 s95, s95, {L_MAX}')
    a(f'v_lshl_add_u32 v{vMW}, v20, 4, s95')
    a(f'v_lshlrev_b32 v{vPW}, 9, v22')
    a(f'v_lshl_add_u32 v{vPW}, v11, 4, v{vPW}')
    a(f'v_lshl_add_u32 v{vPW}, v29, 3, v{vPW}')
    a('s_lshl_b32 s95, s3, 10')
    a(f's_add_u32 s95, s95, {L_P}')
    a(f'v_add_u32 v{vPW}, s95, v{vPW}')
    a(f'v_lshlrev_b32 v{vMR}, 4, v11')
    a(f'v_add_u32 v{vMR}, {L_MAX}, v{vMR}')
    a(f'v_lshlrev_b32 v{vAW}, 2, v11')
    a(f'v_add_u32 v{vAW}, {L_ALPHA}, v{vAW}')
    a(f'v_mov_b32 v{LL}, 0')
    a(f'v_mov_b32 v{LL + 1}, 0')
    a('v_mov_b32 v0, 1')
    a('v_mov_b32 v5, 2')
    a(f's_mov_b32 s98, {f32bits(float(o.thr))}')
    a('s_mov_b32 s96, 1')
    a('s_sub_u32 s94, s2, 128')
    a('s_lshl_b32 s94, s94, 7')
    a(f's_add_u32 s94, s94, {WS_HU}')
    a(f's_add_u32 s0, s{R_WS}, s94')
    a(f's_addc_u32 s1, s{R_WS + 1}, 0')
    get_tag()
    if o.sprio:
        a(f's_setprio {o.sprio}')
    HR_ = 30

    def q_row(i):
        a(f'buffer_load_dwordx4 {vr(QA + 4 * i, 4)}, v2, {S(R_WS)}, s{90 if i < 4 else 92} offen offset:{1024 * (i % 4)} sc1')
    a(f's_mov_b32 s{S_CNT}, {SPIN}')
    a.label('L_hu')
    a('s_load_dword s94, s[0:1], 0 glc')
    a('s_waitcnt lgkmcnt(0)')
    a(f's_cmp_eq_u32 s94, s{S_TAG}')
    a('s_cbranch_scc1 L_hugo')
    a(f's_sub_u32 s{S_CNT}, s{S_CNT}, 1')
    a('s_cbranch_scc0 L_hu')
    a.label('L_hugo')
    a(f's_mov_b32 s{S_CNT}, {SPIN}')
    a.label('L_qload')
    a(f'buffer_load_dwordx2 {vr(HR_, 2)}, v16, {S(R_WS)}, s93 offen sc1')
    for i in range(8):
        q_row(i)
    a(f'ds_write_b32 v{vFW}, v0 offset:{F_HUS}')
    stamp(8)
    a('s_waitcnt vmcnt(8)')
    a(f'v_bitop3_b32 v21, v{HR_}, v{HR_ + 1}, s{S_TAG} {XOR3}')
    for i in range(8):
        a(f's_waitcnt vmcnt({7 - i})')
        a(f'ds_write_b128 v{96 + i % 4}, {vr(QA + 4 * i, 4)} offset:{1024 * i}')
        xor_chain(19, ([19] if i else []) + list(range(QA + 4 * i, QA + 4 * i + 4)))
    for c in ('quad_perm:[1,0,3,2]', 'quad_perm:[2,3,0,1]', 'row_ror:4', 'row_ror:8'):
        dpp('v_xor_b32', 19, 19, 19, c)
        if c == 'quad_perm:[1,0,3,2]':
            a(f'v_xor_b32 v19, v19, v{HR_}')
    swap_step('v_xor_b32', 19, 20, 16)
    swap_step('v_xor_b32', 19, 20, 32)
    a('v_or_b32 v19, v19, v21')
    a('v_cmp_ne_u32 vcc, 0, v19')
    a('s_cbranch_vccz L_qdone')
    a(f's_sub_u32 s{S_CNT}, s{S_CNT}, 1')
    a('s_cbranch_scc0 L_qload')
    a.label('L_qdone')
    a(f'ds_write_b32 v{vFW}, v0 offset:{F_QST}')
    lds_wait(vFW, F_LAND, 1, 19)
    lds_wait(vFR, F_QST, 1, 19, 0)
    stamp(3)

    def a_read(m, buf):
        a(f'ds_read_b128 {vr(WK + 4 * (m % NA), 4)}, v{AA + m // 2} offset:{256 * (m % 2) + 16384 * buf}')

    def q_read(m):
        for hh in range(2):
            a(f'ds_read_b128 {vr(QA + 64 * hh + 4 * m, 4)}, v{AQ + m // 2} offset:{16384 * hh + 256 * (m % 2)}')

    def s_mfma(st, zero):
        for hh in range(2):
            mfma16(SS + 4 * hh, WK + 4 * (st % NA), QA + 64 * hh + 4 * st, zero and st == 0)
    for st in range(4):
        q_read(st)
        a_read(st, 0)
    for st in range(16):
        a(f's_waitcnt lgkmcnt({3 * min(3, 15 - st)})')
        s_mfma(st, True)
        if st + 4 < 16:
            q_read(st + 4)
            a_read(st + 4, 0)

    def max_xchg(lbl, floor):
        a('v_mov_b32 v18, s96')
        for hh in range(2):
            a(f'v_max3_f32 v{16 + hh}, v{SS + 4 * hh}, v{SS + 4 * hh + 1}, v{SS + 4 * hh + 2}')
            if floor:
                a(f'v_max3_f32 v{16 + hh}, v{16 + hh}, v{SS + 4 * hh + 3}, 0')
            else:
                a(f'v_max_f32 v{16 + hh}, v{16 + hh}, v{SS + 4 * hh + 3}')
        a('v_permlane16_swap_b32 v16, v17')
        a('v_max_f32 v16, v16, v17')
        swap_step('v_max_f32', 16, 17, 32)
        a(f'ds_write_b32 v{vMW}, v16')
        a(f'ds_write_b32 v{vFW}, v18 offset:{F_MSEQ}')
        a(f's_mov_b32 s{S_CNT}, {SPIN * 40}')
        a.label(lbl)
        a(f'ds_read_b32 v18, v{vFR} offset:{F_MSEQ}')
        a(f'ds_read_b128 {vr(WK, 4)}, v{vMR}')
        a(f'ds_read_b128 {vr(WK + 4, 4)}, v{vMR} offset:256')
        a('s_waitcnt lgkmcnt(0)')
        a('v_cmp_gt_u32 vcc, s96, v18')
        a(f's_cbranch_vccz {lbl}go')
        a(f's_sub_u32 s{S_CNT}, s{S_CNT}, 1')
        a(f's_cbranch_scc0 {lbl}')
        a.label(lbl + 'go')
        for hh in range(2):
            a(f'v_max3_f32 v{16 + hh}, v{WK + 4 * hh}, v{WK + 4 * hh + 1}, v{WK + 4 * hh + 2}')
            a(f'v_max_f32 v{16 + hh}, v{16 + hh}, v{WK + 4 * hh + 3}')
            for j in range(4):
                a(f'v_sub_f32 v{SS + 4 * hh + j}, v{SS + 4 * hh + j}, v{16 + hh}')

    def soft(t):
        g = []
        for hh in range(2):
            for j in range(4):
                g.append(f'v_exp_f32 v{EX4 + j}, v{SS + 4 * hh + j}')
            g.append(f'v_cvt_pk_bf16_f32 v{PKS + 2 * hh}, v{EX4}, v{EX4 + 1}')
            g.append(f'v_cvt_pk_bf16_f32 v{PKS + 2 * hh + 1}, v{EX4 + 2}, v{EX4 + 3}')
            g.append(f'ds_write_b64 v{vPW}, {vr(PKS + 2 * hh, 2)} offset:{4096 * t + 256 * hh}')
        return g

    def l_commit():
        for k in range(2):
            for hh in range(2):
                a(f'v_dot2_f32_bf16 v{LL + hh}, v{PKS + 2 * hh + k}, s{S_ONES}, v{LL + hh}')
    max_xchg('L_m0', False)
    for ins in soft(0):
        a(ins)
    a(f'ds_write_b32 v{vFW}, v5 offset:{F_PS}')
    a('ds_write_b128 v28, v[24:27]')
    a(f'ds_write2_b32 v{vAW}, v16, v17 offset0:128 offset1:144')
    for hh in range(2):
        a(f'v_sub_f32 v{NM + hh}, 0, v{16 + hh}')
    l_commit()
    a('s_cmp_lg_u32 s3, 1')
    a('s_cbranch_scc1 L_nom0')
    a('v_permlane16_swap_b32 v16, v17')
    a('s_lshl_b32 s94, s4, 12')
    a('s_lshl_b32 s95, s5, 7')
    a('s_add_u32 s94, s94, s95')
    a(f's_add_u32 s94, s94, {WS_M0}')
    a('v_lshlrev_b32 v18, 2, v1')
    a(f'v_xor_b32 v16, s{S_TAG}, v16')
    ex(0xffffffff)
    a(f'buffer_store_dword v16, v18, {S(R_WS)}, s94 offen sc1')
    ex(-1)
    a.label('L_nom0')
    stamp(4)
    PD = 6
    for t in range(1, 4):
        lbl = f'L_l{t}'
        a(f's_mov_b32 s{S_CNT}, {SPIN * 40}')
        for hh in range(2):
            for j in range(4):
                a(f'v_mov_b32 v{SS + 4 * hh + j}, v{NM + hh}')
        if t == 2:
            a('s_add_u32 s94, s3, 1')
            lds_wait(vFR, F_DONE, 's94', 18)
            for j in range(16):
                a(f'buffer_load_dwordx4 v{104 + j // 2}, {S(R_CKV)}, s99 offen offset:{(j % 4) * 1024} nt lds')
                if j % 4 == 3 and j < 15:
                    a('s_add_u32 s99, s99, 4096')
                    if o.mix:
                        a(f's_xor_b32 s99, s99, {MX[(j // 4) % 2]}')
                    a('s_add_u32 m0, m0, 4096')
            stamp(1)
            a(f's_mov_b32 s{S_CNT}, {SPIN * 40}')
        if t < 3:
            a.label(lbl)
            a(f'ds_read_b32 v18, v{vFW} offset:{F_LAND}')
            a('s_waitcnt lgkmcnt(0)')
            a(f'v_cmp_ge_u32 vcc, {t}, v18')
            a(f's_cbranch_vccz {lbl}go')
            a('s_sleep 1')
            a(f's_sub_u32 s{S_CNT}, s{S_CNT}, 1')
            a(f's_cbranch_scc0 {lbl}')
            a.label(lbl + 'go')
        else:
            a('s_waitcnt vmcnt(0)')
            stamp(2)
        for st in range(PD):
            a_read(st, BUF[t])
        if t == 3 and o.rpos == 0:
            a('s_lshl_b32 s94, s4, 2')
            a('s_add_u32 s94, s94, 16')
            arrive(0, 30, 31, 's94')
        for st in range(16):
            a(f's_waitcnt lgkmcnt({min(PD - 1, 15 - st)})')
            s_mfma(st, False)
            if st + PD < 16:
                a_read(st + PD, BUF[t])
        for k, ins in enumerate(soft(t)):
            a(ins)
            if k == 3:
                a(f'v_max3_f32 v19, v{SS}, v{SS + 1}, v{SS + 2}')
                a(f'v_max3_f32 v19, v{SS + 3}, v{SS + 4}, v19')
            if k == 10:
                a(f'v_max3_f32 v19, v{SS + 5}, v{SS + 6}, v19')
                a(f'v_max_f32 v19, v{SS + 7}, v19')
                a('v_cmp_lt_f32 vcc, s98, v19')
        a('s_cmp_eq_u64 vcc, 0')
        a('s_cselect_b32 s91, 2, 1')
        a('v_mov_b32 v18, s91')
        a(f'ds_write_b32 v{vFW}, v18 offset:{F_PS + 16 * t}')
        stamp(4 + t)
        if t == 3 and o.rpos == 1:
            a('s_lshl_b32 s94, s4, 2')
            a('s_add_u32 s94, s94, 16')
            arrive(0, 30, 31, 's94')
        a(f's_mov_b32 s{S_CNT}, {SPIN * 40}')
        a.label(f'L_c{t}')
        a(f'ds_read_b32 v18, v{vFR} offset:{F_PS + 16 * t}')
        a('s_waitcnt lgkmcnt(0)')
        a('v_cmp_ne_u32 vcc, 2, v18')
        a(f's_cbranch_vccnz L_cs{t}')
        a.label(f'L_cg{t}')
        l_commit()
    a('s_lshl_b32 s94, s4, 2')
    a('s_add_u32 s94, s94, 16')
    a(f'v_permlane16_swap_b32 v{LL}, v{LL + 1}')
    a(f'v_add_f32 v{LL}, v{LL}, v{LL + 1}')
    swap_step('v_add_f32', LL, LL + 1, 32)
    a(f'ds_write_b32 v{vMW}, v{LL}')
    a(f'ds_write_b32 v{vFW}, v0 offset:{F_LSEQ}')
    if o.rdelay:
        a(f's_sleep {o.rdelay}')
    if o.rpos == 2:
        arrive(0, 30, 31, 's94')
    a('s_lshl_b32 s94, s4, 7')
    a(f's_add_u32 s94, s94, {WS_FL + 128}')
    release(0, 30, 31, 31, 's94', 's_waitcnt vmcnt(0)')
    stamp(9)
    a.label('L_send')
    if o.stamps:
        a('s_memrealtime s[90:91]')
        a('s_cmp_lg_u32 s3, 0')
        a('s_cbranch_scc1 L_end')
        dump_stamps(14, 0)
    a('s_endpgm')
    for t in range(1, 4):
        a.label(f'L_cs{t}')
        a('v_cmp_eq_u32 vcc, 0, v18')
        a(f's_cbranch_vccz L_ex{t}')
        a(f's_sub_u32 s{S_CNT}, s{S_CNT}, 1')
        a(f's_cbranch_scc0 L_c{t}')
        a(f's_branch L_cg{t}')
        a.label(f'L_ex{t}')
        a('s_add_u32 s96, s96, 1')
        max_xchg(f'L_mx{t}', True)
        for hh in range(2):
            a(f'v_exp_f32 v{20 + hh}, -v{16 + hh}')
            a(f'v_sub_f32 v{NM + hh}, v{NM + hh}, v{16 + hh}')
            a(f'v_sub_f32 v{22 + hh}, 0, v{NM + hh}')
            a(f'v_mul_f32 v{LL + hh}, v{LL + hh}, v{20 + hh}')
        a(f'ds_write2_b32 v{vAW}, v20, v21 offset0:{32 * t} offset1:{32 * t + 16}')
        a(f'ds_write2_b32 v{vAW}, v22, v23 offset0:128 offset1:144')
        for ins in soft(t):
            a(ins)
        a('v_mov_b32 v18, 3')
        a(f'ds_write_b32 v{vFW}, v18 offset:{F_PS + 16 * t}')
        lds_wait(vFR, F_PS + 16 * t, 3, 18, 0)
        a(f's_branch L_cg{t}')
    a.label('L_end')
    a('s_endpgm')

    txt = HEADER
    txt += f'; @launch grid=(256,1,1) block=(512,1,1) lds={LDS_TOTAL}\n'
    txt += '.amdgcn_target "amdgcn-amd-amdhsa--gfx950"\n.text\n'
    txt += a.finalize()
    txt += f""".section .rodata,"a"
.p2align 6
.amdhsa_kernel {name}
  .amdhsa_next_free_vgpr 256
  .amdhsa_next_free_sgpr 102
  .amdhsa_accum_offset 256
  .amdhsa_group_segment_fixed_size 0
  .amdhsa_kernarg_size 104
  .amdhsa_user_sgpr_count 2
  .amdhsa_user_sgpr_kernarg_segment_ptr 1
  .amdhsa_system_sgpr_workgroup_id_x 1
.end_amdhsa_kernel
"""
    return txt


if __name__ == '__main__':
    o = Opt()
    for kv in sys.argv[2:]:
        k, v = kv.split('=')
        setattr(o, k, v.replace('+', ' ') if k == 'r64' else int(v))
    open(sys.argv[1], 'w').write(gen(o))
```

```python
import sys
sys.path.insert(0, 'dev')
from asmdsl import Asm
from layout17 import *

NAME = 'sequential_preLN__compressed_kv_cla__glu_gated_geglu__decode'
HEADER = open('cdna_kernels/' + NAME + '.s.ref').read().split('; Override launch')[0]
LDS_TOTAL = 163840
SB = 130048
L_P = 131072
FB = 162816
F_LAND, F_QST, F_MSEQ, F_DONE, F_LSEQ, F_HUS, F_PS = 0, 16, 32, 48, 64, 80, 96
L_MAX = FB + 512
L_ALPHA = L_P + 16384
L_MFIN = L_ALPHA + 512
A_WQ, A_WUK, A_WUV, A_WO, A_X, A_C, A_D = 0, 32768, 98304, 98304, 131072, 132096, 135168
A_WD, A_ACT, A_H = 65536, 138240, 139264

R_X, R_WS, R_CKV, R_WQ, R_WUK, R_WUV, R_WO, R_WG, R_WU, R_WD, R_OUT, R_ACT = [8 + 4 * i for i in range(12)]
SIZES = {R_X: 4096, R_WS: WS_END, R_CKV: 32 << 20, R_WQ: 4 << 20, R_WUK: 4 << 20, R_WUV: 4 << 20, R_WO: 4 << 20,
         R_WG: 512 * 2752, R_WU: 512 * 2752, R_WD: 1376 * 1024, R_OUT: 4096, R_ACT: 43 * 256}
PTR = {R_X: 64, R_CKV: 66, R_WQ: 68, R_WUK: 70, R_WUV: 72, R_WO: 74, R_WG: 78, R_WU: 80, R_WD: 82, R_OUT: 84}
S_TAG, S_ONES, S_LO1, S_HI1, S_CNT, S_MASK = 56, 57, 58, 59, 60, 62
S_XCC, S_LOC = 52, 53
SPIN = 200000
XOR3 = 'bitop3:0x96'


class Opt:
    stamps = 0
    w0 = 1
    n0 = 2
    window = 10
    w3 = 16
    wwin = 8
    sleep = 1
    sleep_long = 6
    stsleep = 3
    thr = 60
    dbgwg = 192
    hold = 0
    dsleep = 1
    ddelay = 0
    gon = 46
    fine = 0
    hupos = 1
    edelay = 0
    efwin = 8
    sw = 1
    efgo = 0
    qdelay = 0
    hprio = 1
    nsamp = 2
    rdelay = 0
    lw = 8
    diag = 0
    rpos = 1
    owin = 4
    ef0 = 2
    il = 0
    mix = 1
    loc = 1
    egate = 0
    lprio = 2
    rwait = 8
    qloc = 0
    hc = 1
    osc = 0
    wb = 0
    tlb = 0
    arrpos = 2
    earlym = 1
    mb1 = 20
    mb2 = 19
    efn = 2
    pvprio = 0
    sprio = 0
    r64 = 'nt'
    wgo = 1
    esleep = 0
    fdelay = 0
    now = 0
    w1 = 4
    n1 = 0


def vr(a, n):
    return f'v[{a}:{a + n - 1}]' if n > 1 else f'v{a}'


def S(base):
    return f's[{base}:{base + 3}]'


def gen(o):
    a = Asm()
    name = NAME + '_kernel'
    o.st3 = o.stamps == 3

    def ex(mask):
        if mask == -1:
            a('s_mov_b64 exec, -1')
        elif mask <= 64:
            a(f's_mov_b64 exec, {mask}')
        else:
            a(f's_mov_b32 exec_lo, 0x{mask & 0xffffffff:x}')
            a(f's_mov_b32 exec_hi, 0x{mask >> 32:x}')

    def dpp(op, d, s0, s1, ctrl, bank=0xf):
        a(f'{op}_dpp v{d}, v{s0}, v{s1} {ctrl} row_mask:0xf bank_mask:0x{bank:x}')

    def swap_step(op, v, t, which):
        a(f'v_mov_b32 v{t}, v{v}')
        a(f'v_permlane{which}_swap_b32 v{v}, v{t}')
        a(f'{op} v{v}, v{v}, v{t}')

    def fine2(r):
        if o.fine == 2:
            lb = a.uid('f2')
            a('s_cmp_lg_u32 s97, 0')
            a(f's_cbranch_scc1 {lb} ;noflush')
            a(f's_memtime s[{r}:{r + 1}]')
            a.label(lb)

    def f3(r):
        if o.fine == 3:
            a(f's_memtime s[{r}:{r + 1}]')

    def stamp(idx):
        if o.stamps:
            a(f's_memrealtime s[{64 + 2 * idx}:{65 + 2 * idx}]')

    def dump_stamps(n, grp, dbg=None):
        a('s_waitcnt lgkmcnt(0)')
        a('s_mov_b64 exec, -1')
        a('v_mov_b32 v3, 0')
        a('v_writelane_b32 v3, s100, 0')
        for i in range(1, n):
            a(f'v_writelane_b32 v3, s{64 + 2 * i}, {i}')
        a('v_mbcnt_lo_u32_b32 v4, -1, 0')
        a('v_lshlrev_b32 v4, 2, v4')
        a('s_lshl_b32 s90, s2, 7')
        a(f's_add_u32 s90, s90, {WS_STAMP + 64 * grp}')
        ex(0xffff)
        a(f'buffer_store_dword v3, v4, {S(R_WS)}, s90 offen')
        if o.stamps == 2 and dbg:
            lb = a.uid('nodbg')
            a('v_subrev_u32 v3, s100, v3')
            if dbg == 'h':
                a(f's_cmp_lg_u32 s2, {o.dbgwg}')
                a(f's_cbranch_scc1 {lb}')
                ex(0x7fe)
                a('global_store_dword v4, v3, s[86:87] offset:-4')
            else:
                a('s_cmp_lg_u32 s2, 0')
                a(f's_cbranch_scc1 {lb}')
                ex(0x3e8)
                a('v_mbcnt_lo_u32_b32 v4, exec_lo, 0')
                a('v_lshlrev_b32 v4, 2, v4')
                a('global_store_dword v4, v3, s[86:87] offset:40')
            a.label(lb)

    def xor_chain(tmp, regs, last=None):
        ops = [f'v{r}' for r in regs] + ([last] if last else [])
        a(f'v_bitop3_b32 v{tmp}, {ops[0]}, {ops[1]}, {ops[2]} {XOR3}')
        ops = ops[3:]
        while len(ops) >= 2:
            a(f'v_bitop3_b32 v{tmp}, v{tmp}, {ops[0]}, {ops[1]} {XOR3}')
            ops = ops[2:]
        if ops:
            a(f'v_xor_b32 v{tmp}, {ops[0]}, v{tmp}')

    def chk_sentinel(regs, tmp):
        rs = list(regs)
        a(f'v_max3_u32 v{tmp}, v{rs[0]}, v{rs[1]}, v{rs[2]}')
        rs = rs[3:]
        while len(rs) >= 2:
            a(f'v_max3_u32 v{tmp}, v{tmp}, v{rs[0]}, v{rs[1]}')
            rs = rs[2:]
        if rs:
            a(f'v_max_u32 v{tmp}, v{tmp}, v{rs[0]}')
        a(f'v_cmp_eq_u32 vcc, -1, v{tmp}')

    def poll(loads, check, sleep=None, wait='s_waitcnt vmcnt(0)'):
        L, Dn = a.uid('poll'), a.uid('pdone')
        a(f's_mov_b32 s{S_CNT}, {SPIN}')
        a.label(L)
        loads()
        a(wait)
        check()
        a(f's_cbranch_vccz {Dn}')
        sl = o.sleep if sleep is None else sleep
        if sl:
            a(f's_sleep {sl}')
        a(f's_sub_u32 s{S_CNT}, s{S_CNT}, 1')
        a(f's_cbranch_scc0 {L}')
        a.label(Dn)

    def lds_wait(addr, off, want, tmp, sleep=1):
        L, Dn = a.uid('lw'), a.uid('lwd')
        a(f's_mov_b32 s{S_CNT}, {SPIN * 40}')
        a.label(L)
        a(f'ds_read_b32 v{tmp}, v{addr} offset:{off}')
        a('s_waitcnt lgkmcnt(0)')
        a(f'v_cmp_gt_u32 vcc, {want}, v{tmp}')
        a(f's_cbranch_vccz {Dn}')
        if sleep:
            a(f's_sleep {sleep}')
        a(f's_sub_u32 s{S_CNT}, s{S_CNT}, 1')
        a(f's_cbranch_scc0 {L}')
        a.label(Dn)

    def nan_retry(tag, regs, again, go):
        a.label(tag)
        chk_sentinel(regs, 10)
        a(f's_cbranch_vccz {go}')
        a(f's_sub_u32 s{S_CNT}, s{S_CNT}, 1')
        a(f's_cbranch_scc0 {again}')
        a(f's_branch {go}')

    def mfma16(d, x, y, first):
        c = '0' if first else vr(d, 4)
        a(f'v_mfma_f32_16x16x32_bf16 {vr(d, 4)}, {vr(x, 4)}, {vr(y, 4)}, {c}')

    def srd(rs):
        for r in rs:
            a(f's_mov_b32 s{r + 2}, {SIZES[r]}')
            a(f's_mov_b32 s{r + 3}, 0x00020000')

    def srd_ptr(rs):
        for r in rs:
            if r == R_ACT:
                a(f's_add_u32 s{R_ACT}, s{R_WS}, {WS_ACT}')
                a(f's_addc_u32 s{R_ACT + 1}, s{R_WS + 1}, 0')
            else:
                a(f's_mov_b64 s[{r}:{r + 1}], s[{PTR[r]}:{PTR[r] + 1}]')

    def consts():
        a(f's_mov_b32 s{S_ONES}, 0x3f803f80')
        a(f's_mov_b32 s{S_LO1}, 0x3f80')
        a(f's_mov_b32 s{S_HI1}, 0x3f800000')
        a(f's_mov_b32 s{S_MASK}, 0xffff0000')

    def get_tag():
        a('s_waitcnt lgkmcnt(0)')
        a(f's_add_u32 s{S_TAG}, s{S_TAG}, 0x9e3779b9')

    def vF(d):
        a(f'v_bfe_u32 v{d}, v1, 2, 2')
        a(f'v_lshlrev_b32 v{d}, 8, v{d}')
        a(f'v_lshl_add_u32 v{d}, v3, 6, v{d}')
        a(f'v_lshl_add_u32 v{d}, v4, 4, v{d}')

    def tr64_addr(d, t):
        a(f'v_bfe_u32 v{t}, v1, 2, 2')
        a(f'v_lshl_add_u32 v{t}, v3, 3, v{t}')
        a(f'v_lshlrev_b32 v{d}, 6, v{t}')
        a(f'v_lshl_add_u32 v{d}, v4, 3, v{d}')

    def tr_op(dst, addr, off, tau):
        a(f'ds_read_b64_tr_b16 {vr(dst, 2)}, v{addr} offset:{off}')
        a(f'ds_read_b64_tr_b16 {vr(dst + 2, 2)}, v{addr} offset:{off + tau}')

    def red4_read(x, addr):
        ex(0xffffffff)
        for w in range(4):
            a(f'ds_read_b128 {vr(x + 4 * w, 4)}, v{addr} offset:{512 * w}')
        a('s_waitcnt lgkmcnt(2)')
        for i in range(4):
            a(f'v_add_f32 v{x + i}, v{x + i}, v{x + 4 + i}')
        a('s_waitcnt lgkmcnt(0)')
        for i in range(4):
            a(f'v_add_f32 v{x + 8 + i}, v{x + 8 + i}, v{x + 12 + i}')
        for i in range(4):
            a(f'v_add_f32 v{x + i}, v{x + i}, v{x + 8 + i}')

    def frag_addr(dst, t):
        a(f'v_bfe_u32 v{dst}, v1, 1, 2')
        a(f'v_lshlrev_b32 v{dst}, 6, v{dst}')
        a(f'v_bfe_u32 v{t}, v1, 3, 2')
        a(f'v_lshl_add_u32 v{dst}, v{t}, 4, v{dst}')
        a(f'v_and_b32 v{t}, 1, v1')
        a(f'v_lshl_add_u32 v{dst}, v{t}, 3, v{dst}')

    M4 = 0x000f000f000f000f

    def arrive(wave, ret, t0, off, sel='s3'):
        lb = a.uid('arr')
        a(f's_cmp_lg_u32 {sel}, {wave}')
        a(f's_cbranch_scc1 {lb} ;noflush')
        a(f'v_mov_b32 v{t0}, {off}')
        a(f'v_mov_b32 v{ret}, 1')
        ex(1)
        a(f'global_atomic_add v{ret}, v{t0}, v{ret}, s[86:87] sc0 sc1')
        ex(-1)
        a.label(lb)

    def release(wave, ret, t0, last, flag, wait=None):
        lb = a.uid('rel')
        a(f's_cmp_lg_u32 s3, {wave}')
        a(f's_cbranch_scc1 {lb} ;noflush')
        if wait:
            a(wait)
        a(f'v_readfirstlane_b32 s1, v{ret}')
        a(f's_and_b32 s1, s1, {last}')
        a(f's_cmp_lg_u32 s1, {last}')
        a(f's_cbranch_scc1 {lb} ;noflush')
        a('s_mov_b64 exec, -1')
        a(f'v_mbcnt_lo_u32_b32 v{t0}, -1, 0')
        a(f'v_lshlrev_b32 v{t0}, 2, v{t0}')
        a(f'v_mov_b32 v{ret}, s{S_TAG}')
        if isinstance(flag, int):
            a(f's_mov_b32 s1, {flag}')
            flag = 's1'
        ex(0xffffffff)
        a(f'buffer_store_dword v{ret}, v{t0}, {S(R_WS)}, {flag} offen sc1')
        ex(-1)
        a.label(lb)

    def flag_wait(flag, t0, sleep):
        if isinstance(flag, int):
            a(f's_mov_b32 s1, {flag}')
            flag = 's1'
        ex(1)
        poll(lambda: a(f'buffer_load_dword v{t0}, off, {S(R_WS)}, {flag} sc1'),
             lambda: a(f'v_cmp_ne_u32 vcc, s{S_TAG}, v{t0}'), sleep)
        ex(-1)

    a(f'.globl {name}\n.p2align 8\n.type {name},@function')
    a.label(name)
    if o.stamps or o.diag:
        a('s_memrealtime s[100:101]')
    a('s_cmp_ge_u32 s2, 256')
    a('s_cbranch_scc1 L_end')
    a('s_load_dwordx16 s[64:79], s[0:1], 0')
    a('s_load_dwordx8 s[80:87], s[0:1], 64')
    a(f's_load_dwordx2 s[{R_WS}:{R_WS + 1}], s[0:1], 96')
    a('s_cmp_lt_u32 s2, 128')
    a('s_cbranch_scc1 L_nopf')
    a('s_getpc_b64 s[94:95]')
    a.label('L_pc')
    a('v_lshlrev_b32 v1, 7, v0')
    a(f'v_cmp_gt_u32 vcc, L_end-L_pc, v1')
    a('s_and_saveexec_b64 s[96:97], vcc')
    a('s_cbranch_execz L_pfdone')
    a('global_load_dword v127, v1, s[94:95]')
    a.label('L_pfdone')
    a('s_mov_b64 exec, s[96:97]')
    a.label('L_nopf')
    a('v_and_b32 v1, 63, v0')
    a('v_lshrrev_b32 v2, 6, v0')
    a('v_readfirstlane_b32 s3, v2')
    a('v_lshlrev_b32 v2, 4, v1')
    a('v_lshrrev_b32 v3, 4, v1')
    a('v_and_b32 v4, 3, v1')
    a('v_and_b32 v11, 15, v1')
    srd([R_WS, R_X])
    a('s_cmp_ge_u32 s2, 128')
    a('s_cbranch_scc1 L_att')

    srd([R_WQ, R_WUK])
    a('s_and_b32 s4, s2, 7')
    a('s_lshl_b32 s4, s4, 2')
    a('s_bfe_u32 s5, s2, 0x20003')
    a('s_add_u32 s4, s4, s5')
    a('s_lshr_b32 s5, s2, 5')
    a('s_lshl_b32 s6, s4, 8')
    a('v_lshlrev_b32 v5, 1, v3')
    a('v_xor_b32 v5, v5, v11')
    a('v_lshlrev_b32 v5, 4, v5')
    a('v_lshl_add_u32 v6, v3, 13, v5')
    a('v_xor_b32 v7, 0x80, v6')
    a('v_xor_b32 v8, v3, v11')
    a('v_lshlrev_b32 v8, 4, v8')
    a('v_lshl_add_u32 v8, v3, 13, v8')
    a('s_lshl_b32 s90, s5, 20')
    a('s_lshl_b32 s91, s3, 17')
    a('s_add_u32 s90, s90, s91')
    a('s_add_u32 s90, s90, s6')
    a('s_lshl_b32 s91, s3, 12')
    a('s_mov_b32 m0, s91')
    a('v_bfe_u32 v10, v1, 2, 2')
    a('v_lshlrev_b32 v10, 6, v10')
    a('v_lshl_add_u32 v10, v4, 10, v10')
    a('v_lshl_add_u32 v10, v3, 4, v10')
    a('s_lshl_b32 s93, s5, 8')
    XS, XO = 12, 28
    a('s_waitcnt lgkmcnt(0)')
    srd_ptr([R_X, R_WQ, R_WUK])
    a('s_cmp_lg_u32 s3, 0')
    a('s_cbranch_scc1 L_nox')
    for i in range(4):
        a(f'buffer_load_dwordx4 {vr(XS + 4 * i, 4)}, v10, {S(R_X)}, 0 offen offset:{256 * i}')
    a(f'buffer_load_dwordx4 {vr(XO, 4)}, v10, {S(R_X)}, s93 offen')
    a.label('L_nox')
    if o.qloc:
        a('s_lshl_b32 s92, s4, 13')
        a('s_lshl_b32 s93, s3, 10')
        a('s_add_u32 s92, s92, s93')
        a(f's_add_u32 s92, s92, {WS_QPL}')
        a(f'buffer_load_dwordx4 v[68:71], v2, {S(R_WS)}, s92 offen sc1')
    for i in range(4):
        a(f's_add_u32 s92, s90, {i * 32768}')
        a(f'buffer_load_dwordx4 v{6 + i // 2}, {S(R_WQ)}, s92 offen nt lds')
        if i < 3:
            a('s_add_u32 m0, m0, 1024')
    a('s_barrier')
    a('s_cmp_lt_u32 s3, 4')
    a('s_cbranch_scc1 L_nouk')
    a('s_lshl_b32 s91, s3, 17')
    a('s_add_u32 s90, s90, s91')
    a(f's_sub_u32 s90, s90, {8 << 17}')
    a('s_lshl_b32 s91, s3, 13')
    a(f's_add_u32 m0, s91, {A_WUK - 32768}')
    for i in range(8):
        if i % 2 == 0:
            a(f'v_xor_b32 v9, {64 * (i // 2)}, v8')
        a(f's_add_u32 s92, s90, {i * 32768}')
        a(f'buffer_load_dwordx4 v9, {S(R_WUK)}, s92 offen nt lds')
        if i < 7:
            a('s_add_u32 m0, m0, 1024')
    a.label('L_nouk')
    a(f's_load_dword s{S_TAG}, s[{R_WS}:{R_WS + 1}], {WS_EPOCH}')
    srd_ptr([R_WUV, R_WO, R_WG, R_WU, R_WD, R_OUT])
    consts()
    stamp(1)
    a('s_cmp_lg_u32 s3, 0')
    a('s_cbranch_scc1 L_noln')
    a(f's_waitcnt vmcnt({5 + o.qloc})')
    for i in range(16):
        a(f'v_dot2_f32_bf16 v34, v{XS + i}, s{S_ONES}, {"0" if i == 0 else "v34"}')
        a(f'v_dot2_f32_bf16 v35, v{XS + i}, v{XS + i}, {"0" if i == 0 else "v35"}')
    for c in ('row_ror:4', 'row_ror:8'):
        dpp('v_add_f32', 34, 34, 34, c)
        dpp('v_add_f32', 35, 35, 35, c)
    for wh in (16, 32):
        a('v_mov_b32 v12, v34')
        a('v_mov_b32 v13, v35')
        a(f'v_permlane{wh}_swap_b32 v34, v12')
        a(f'v_permlane{wh}_swap_b32 v35, v13')
        a('v_add_f32 v34, v34, v12')
        a('v_add_f32 v35, v35, v13')
    a('v_mul_f32 v34, 0x3b000000, v34')
    a('v_mul_f32 v35, 0x3b000000, v35')
    a('v_fma_f32 v35, -v34, v34, v35')
    a('v_max_f32 v35, 0, v35')
    a('v_add_f32 v35, 0x3727c5ac, v35')
    a('v_rsq_f32 v35, v35')
    a(f'v_mul_f32 v35, {QSCALE_BITS}, v35')
    a('v_mul_f32 v34, v34, v35')
    a(f's_waitcnt vmcnt({4 + o.qloc})')
    for i in range(4):
        a(f'v_lshlrev_b32 v12, 16, v{XO + i}')
        a(f'v_and_b32 v13, s{S_MASK}, v{XO + i}')
        a('v_fma_f32 v12, v12, v35, -v34')
        a('v_fma_f32 v13, v13, v35, -v34')
        a(f'v_cvt_pk_bf16_f32 v{XO + i}, v12, v13')
    a(f'v_add_u32 v12, {A_X}, v2')
    a(f'ds_write_b128 v12, {vr(XO, 4)}')
    a.label('L_noln')
    srd([R_WUV, R_WO, R_WG, R_WU, R_WD, R_OUT])
    for i in range(4):
        a(f'v_mov_b32 v{36 + i}, -1')
    a('s_lshl_b32 s92, s2, 3')
    a('s_add_u32 s92, s92, s3')
    a('s_mul_i32 s92, s92, 352')
    a(f's_add_u32 s92, s92, {WS_CLEAN}')
    ex(0x3fffff)
    a(f'buffer_store_dwordx4 v[36:39], v2, {S(R_WS)}, s92 offen sc1')
    ex(-1)
    a('v_bfe_u32 v40, v1, 2, 3')
    a('v_lshlrev_b32 v40, 1, v40')
    a('s_lshl_b32 s92, s3, 1')
    a('s_and_b32 s92, s92, 12')
    a(f'v_bitop3_b32 v40, v40, v4, s92 {XOR3}')
    a('v_lshlrev_b32 v40, 4, v40')
    a('v_bfe_u32 v41, v1, 2, 2')
    a('v_lshl_add_u32 v41, v3, 3, v41')
    a('v_lshl_add_u32 v40, v41, 8, v40')
    a('s_and_b32 s92, s3, 1')
    a('s_lshl_b32 s92, s92, 3')
    a('v_add_u32 v40, s92, v40')
    a('v_lshlrev_b32 v41, 8, v3')
    a('v_lshl_add_u32 v41, v4, 4, v41')
    a(f'v_add_u32 v41, {A_X}, v41')
    a('v_lshlrev_b32 v42, 6, v3')
    a('v_lshl_add_u32 v42, v4, 4, v42')
    a('s_lshl_b32 s96, s4, 13')
    if WS_QP:
        a(f's_add_u32 s96, s96, {WS_QP}')
    a('s_lshl_b32 s92, s5, 11')
    a('s_add_u32 s97, s96, s92')
    a('s_lshl_b32 s92, s3, 8')
    a('s_add_u32 s97, s97, s92')
    get_tag()
    stamp(2)
    if o.loc:
        a('s_getreg_b32 s1, hwreg(HW_REG_XCC_ID, 0, 4)')
        a(f's_xor_b32 s{S_XCC}, s1, s{S_TAG}')
    a(f's_add_u32 s98, s97, {WS_QPL - WS_QP}')
    a(f's_add_u32 s99, s96, {(WS_QPL - WS_QP) if o.qloc else 0}')
    a('v_bfe_u32 v43, v1, 2, 2')
    a('v_lshlrev_b32 v43, 11, v43')
    a('v_lshl_add_u32 v43, v3, 6, v43')
    a('v_lshl_add_u32 v43, v4, 4, v43')
    a('s_cmp_lt_u32 s3, 4')
    a('s_cbranch_scc1 L_wq_lo')
    a('s_waitcnt vmcnt(9)')
    a('s_branch L_wq_hi')
    a.label('L_wq_lo')
    a('s_waitcnt vmcnt(1)')
    a.label('L_wq_hi')
    a('s_barrier')
    W1, XF, AC = 12, 44, 60
    for t in range(4):
        tr_op(W1 + 4 * t, 40, A_WQ + 8192 * t, 1024)
        a(f'ds_read_b128 {vr(XF + 4 * t, 4)}, v41 offset:{64 * t}')
    for t in range(4):
        a(f's_waitcnt lgkmcnt({3 * (3 - t)})')
        mfma16(AC, W1 + 4 * t, XF + 4 * t, t == 0)
    a(f'v_cvt_pk_bf16_f32 v64, v{AC}, v{AC + 1}')
    a(f'v_cvt_pk_bf16_f32 v65, v{AC + 2}, v{AC + 3}')
    a(f'v_bitop3_b32 v66, v64, v65, s{S_TAG} {XOR3}')
    ex(M4)
    if o.qloc:
        a(f'buffer_store_dwordx4 v[64:67], v42, {S(R_WS)}, s98 offen')
    a(f'buffer_store_dwordx4 v[64:67], v42, {S(R_WS)}, s97 offen sc1')
    ex(-1)
    stamp(3)
    UK, Q, AC2, FR = 68, 100, 132, 140

    def a2_loads():
        for n in range(8):
            a(f'buffer_load_dwordx4 {vr(Q + 4 * n, 4)}, v43, {S(R_WS)}, s99 offen offset:{256 * n} sc1')
    a(f's_cmp_lt_u32 s5, {o.nsamp}')
    a('s_cselect_b32 s98, s3, 99')
    a('v_lshlrev_b32 v30, 7, v1')
    a(f'v_mov_b32 v31, s{S_TAG}')
    AW = 3 if o.arrpos == 2 else 7
    a('s_cmp_lt_u32 s3, 4')
    a('s_cbranch_scc1 L_a2')
    a('s_waitcnt vmcnt(0)')
    if o.arrpos == 0:
        arrive(7, 22, 23, 0, 's98')
    a('s_barrier')
    if o.arrpos == 1:
        arrive(7, 22, 23, 0, 's98')
    a('s_branch L_a_done')
    a.label('L_a2')
    a(f's_waitcnt vmcnt({o.qloc})')
    if o.qdelay:
        a(f's_sleep {o.qdelay}')
    a2_loads()
    a('v_lshrrev_b32 v12, 2, v11')
    a('v_lshl_add_u32 v12, v12, 3, v4')
    a('v_lshlrev_b32 v12, 8, v12')
    a('v_xor_b32 v13, v3, v11')
    a('v_lshl_add_u32 v12, v13, 4, v12')
    a('s_lshl_b32 s92, s3, 13')
    a(f's_add_u32 s92, s92, {A_WUK}')
    a('v_add_u32 v12, s92, v12')
    a('s_barrier')
    for t in range(4):
        a(f'v_xor_b32 v13, {64 * t}, v12')
        for sub in range(2):
            a(f'ds_read_b128 {vr(UK + 16 * sub + 4 * t, 4)}, v13 offset:{1024 * sub}')
    a('v_lshlrev_b32 v15, 8, v4')
    a('v_lshl_add_u32 v15, v3, 4, v15')
    a('s_lshl_b32 s91, s3, 6')
    a(f's_add_u32 s91, s91, {A_C}')
    a('v_add_u32 v15, s91, v15')
    a(f'v_add_u32 v16, {A_C}, v2')
    a('v_lshlrev_b32 v20, 15, v3')
    a('v_lshl_add_u32 v20, v11, 4, v20')
    a(f'v_lshlrev_b32 v21, {10 if o.hc else 3}, v3')
    a('s_lshl_b32 s91, s4, 10')
    a('s_lshl_b32 s92, s5, 8')
    a('s_add_u32 s92, s92, s91')
    a(f's_lshr_b32 s93, s92, {5 if o.hc else 1}')
    if WS_QA:
        a(f's_add_u32 s92, s92, {WS_QA}')
    a(f's_add_u32 s93, s93, {WS_QAH}')
    a(f's_mov_b32 s{S_CNT}, {SPIN}')
    a('s_branch L_a2chk')
    a.label('L_a2poll')
    if o.qloc:
        a(f's_add_u32 s99, s96, {WS_QPL - WS_QP}')
        a(f's_and_b32 s91, s{S_CNT}, 7')
        a('s_cselect_b32 s99, s99, s96')
    a2_loads()
    a.label('L_a2chk')
    for n in range(8):
        a(f's_waitcnt vmcnt({7 - n})')
        a(f'v_bitop3_b32 v{Q + 4 * n + 2}, v{Q + 4 * n}, v{Q + 4 * n + 1}, v{Q + 4 * n + 2} {XOR3}')
    a(f'v_max3_u32 v17, v{Q + 2}, v{Q + 6}, v{Q + 10}')
    a(f'v_min3_u32 v18, v{Q + 2}, v{Q + 6}, v{Q + 10}')
    a(f'v_max3_u32 v17, v17, v{Q + 14}, v{Q + 18}')
    a(f'v_min3_u32 v18, v18, v{Q + 14}, v{Q + 18}')
    a(f'v_max3_u32 v17, v17, v{Q + 22}, v{Q + 26}')
    a(f'v_min3_u32 v18, v18, v{Q + 22}, v{Q + 26}')
    a(f'v_max3_u32 v17, v17, v{Q + 30}, s{S_TAG}')
    a(f'v_min3_u32 v18, v18, v{Q + 30}, s{S_TAG}')
    a('v_cmp_ne_u32 vcc, v17, v18')
    a('s_cbranch_vccz L_a2go')
    a(f's_sub_u32 s{S_CNT}, s{S_CNT}, 1')
    a('s_cbranch_scc0 L_a2poll')
    a.label('L_a2go')
    if o.st3:
        a('s_memrealtime s[72:73]')
    stamp(4)
    if o.arrpos == 2:
        arrive(3, 22, 23, 0, 's98')
    a('s_waitcnt lgkmcnt(0)')
    for n in range(8):
        for sub in range(2):
            d = AC2 + 4 * sub
            c = '0' if n == 0 else vr(d, 4)
            a(f'v_mfma_f32_16x16x16_bf16 {vr(d, 4)}, {vr(UK + 16 * sub + 2 * n, 2)}, {vr(Q + 4 * n, 2)}, {c}')
    for c in ('row_ror:4', 'row_ror:8'):
        for i in range(8):
            dpp('v_add_f32', AC2 + i, AC2 + i, AC2 + i, c)
    for i in range(4):
        a(f'v_cvt_pk_bf16_f32 v{FR + i}, v{AC2 + 2 * i}, v{AC2 + 2 * i + 1}')
    ex(M4)
    a(f'ds_write_b128 v15, {vr(FR, 4)}')
    ex(-1)
    a('s_waitcnt lgkmcnt(0)')
    a.label('L_a_done')
    a('s_barrier')
    a('s_cmp_lg_u32 s3, 0')
    a('s_cbranch_scc1 L_a_pub')
    a(f'ds_read_b128 {vr(FR, 4)}, v16')
    a('s_waitcnt lgkmcnt(0)')
    a(f'buffer_store_dwordx4 {vr(FR, 4)}, v20, {S(R_WS)}, s92 offen sc1')
    xor_chain(18, range(FR, FR + 4))
    for c in ('quad_perm:[1,0,3,2]', 'quad_perm:[2,3,0,1]', 'row_ror:4', 'row_ror:8'):
        dpp('v_xor_b32', 18, 18, 18, c)
    a(f'v_xor_b32 v19, s{S_TAG}, v18')
    ex(0x0001000100010001)
    a(f'buffer_store_dwordx2 v[18:19], v21, {S(R_WS)}, s93 offen sc1')
    ex(-1)
    stamp(5)
    a.label('L_a_pub')
    a(f's_cmp_lg_u32 s98, {AW}')
    a('s_cbranch_scc1 L_norel')
    a('s_waitcnt vmcnt(0)')
    a('v_readfirstlane_b32 s1, v22')
    a(f's_and_b32 s1, s1, {32 * o.nsamp - 1}')
    a(f's_cmp_lg_u32 s1, {32 * o.nsamp - 1}')
    a('s_cbranch_scc1 L_norel')
    a(f's_mov_b32 s1, {WS_HU}')
    a(f'buffer_store_dword v31, v30, {S(R_WS)}, s1 offen sc1')
    a(f's_mov_b32 s1, {WS_HU + 8192}')
    a(f'buffer_store_dword v31, v30, {S(R_WS)}, s1 offen sc1')
    a.label('L_norel')
    if o.loc:
        a('s_cmp_lg_u32 s3, 5')
        a('s_cbranch_scc1 L_noxt')
        a('s_and_b32 s92, s2, 7')
        a('s_lshl_b32 s92, s92, 11')
        a('s_lshr_b32 s93, s2, 3')
        a('s_lshl_b32 s93, s93, 7')
        a('s_add_u32 s92, s92, s93')
        a(f's_add_u32 s92, s92, {WS_XT}')
        a(f'v_mov_b32 v9, s{S_XCC}')
        ex(1)
        a(f'buffer_store_dword v9, off, {S(R_WS)}, s92 sc1')
        ex(-1)
        a.label('L_noxt')
    a('s_and_b32 s7, s2, 7')
    a('s_lshr_b32 s63, s2, 3')
    a('v_lshl_add_u32 v6, v3, 18, v5')
    a('v_xor_b32 v7, 0x80, v6')
    a('s_lshl_b32 s0, s5, 20')
    a('s_add_u32 s0, s0, s6')
    a('s_mov_b32 s61, 0')
    D, WL, CA, OPC, OPD = 16, 32, 40, 64, 96
    a('s_and_b32 s94, s3, 3')
    a('s_lshr_b32 s95, s3, 2')
    a('v_bfe_u32 v56, v1, 2, 3')
    a('v_lshlrev_b32 v56, 1, v56')
    a('s_lshl_b32 s92, s94, 2')
    a(f'v_bitop3_b32 v56, v56, v4, s92 {XOR3}')
    a('v_lshlrev_b32 v56, 4, v56')
    a('v_bfe_u32 v58, v1, 2, 2')
    a('v_lshl_add_u32 v58, v3, 3, v58')
    a('v_lshl_add_u32 v56, v58, 8, v56')
    a(f'v_add_u32 v56, {A_WUV}, v56')
    tr64_addr(57, 58)
    a('s_lshl_b32 s91, s94, 13')
    a(f's_add_u32 s91, s91, {A_WO}')
    a('v_add_u32 v57, s91, v57')
    a('v_and_b32 v5, 31, v1')
    a('v_lshlrev_b32 v5, 11, v5')
    a('s_lshl_b32 s90, s94, 16')
    a('s_lshl_b32 s91, s5, 9')
    a('s_add_u32 s90, s90, s91')
    a('s_lshl_b32 s91, s4, 4')
    a('s_add_u32 s90, s90, s91')
    a(f's_add_u32 s90, s90, {WS_REC}')
    a('s_lshl_b32 s96, s4, 2')
    a('s_add_u32 s96, s96, s5')
    a('s_lshl_b32 s96, s96, 2')
    a('s_add_u32 s96, s96, s94')
    a('s_lshl_b32 s91, s96, 13')
    a('s_lshl_b32 s93, s95, 12')
    a('s_add_u32 s91, s91, s93')
    a(f's_add_u32 s91, s91, {WS_OP}')
    a('s_lshl_b32 s92, s95, 4')
    a('v_lshlrev_b32 v48, 4, v11')
    a('v_lshl_add_u32 v48, v3, 1, v48')
    a('s_mul_i32 s93, s3, 272')
    a(f's_add_u32 s93, s93, {A_C}')
    a('v_add_u32 v48, s93, v48')
    a('v_and_b32 v49, 7, v1')
    a('v_mul_u32_u24 v49, 272, v49')
    a('v_lshl_add_u32 v49, v3, 4, v49')
    a(f'v_add_u32 v49, {A_C}, v49')
    a('v_lshlrev_b32 v50, 6, v3')
    a('v_lshl_add_u32 v50, v4, 4, v50')
    a('s_lshl_b32 s98, s4, 12')
    a('s_lshl_b32 s93, s94, 10')
    a('s_add_u32 s98, s98, s93')
    a('s_lshl_b32 s93, s5, 8')
    a('s_add_u32 s98, s98, s93')
    a(f's_add_u32 s98, s98, {WS_CP}')
    a('v_add_u32 v51, s92, v3')
    a('v_lshlrev_b32 v51, 2, v51')
    a('v_cmp_eq_u32 s[88:89], s95, v3')
    vF(128)
    a('v_lshlrev_b32 v129, 7, v4')
    a('v_lshl_add_u32 v129, v3, 4, v129')
    a('s_lshl_b32 s93, s94, 9')
    a(f's_add_u32 s93, s93, {A_D}')
    a('v_add_u32 v129, s93, v129')
    a('v_bfe_u32 v130, v1, 1, 2')
    a('v_lshlrev_b32 v130, 7, v130')
    a('v_bfe_u32 v9, v1, 3, 2')
    a('v_lshl_add_u32 v130, v9, 5, v130')
    a('v_and_b32 v9, 1, v1')
    a('v_lshl_add_u32 v130, v9, 4, v130')
    a(f'v_add_u32 v130, {A_D}, v130')
    a('v_lshlrev_b32 v131, 3, v1')
    a('s_lshl_b32 s6, s7, 14')
    a('s_lshl_b32 s93, s94, 12')
    a('s_add_u32 s6, s6, s93')
    a(f's_add_u32 s6, s6, {WS_CP}')
    a('s_lshl_b32 s99, s7, 12')
    a('s_lshl_b32 s93, s63, 8')
    a('s_add_u32 s99, s99, s93')
    a(f's_add_u32 s99, s99, {WS_HP}')
    a('v_lshrrev_b32 v8, 2, v1')
    a('s_cmp_lt_u32 s3, 4')
    a('s_cbranch_scc1 L_wlo')
    a('s_mov_b32 s61, 0')
    tr64_addr(58, 59)

    def go_wait(extra=0):
        a('s_lshl_b32 s96, s2, 7')
        a(f's_add_u32 s96, s96, {WS_GO}')
        ex(1)
        poll(lambda: a(f'buffer_load_dword v9, off, {S(R_WS)}, s96 sc1'), lambda: a(f'v_cmp_ne_u32 vcc, s{S_TAG}, v9'), 3)
        ex(-1)
    a('s_cmp_lt_u32 s2, 48')
    a('s_cbranch_scc1 L_E1')
    a.label('L_wnone')
    a('s_barrier')
    a('s_branch L_cstart')
    OP = 64
    H, XR, HA, X4, EA = 16, 128, 140, 148, 164
    EW, ES, ER, ESR, EST, EG, ECS = 180, 181, 182, 183, 184, 185, 186
    a.label('L_E1')
    a('s_mul_i32 s93, s7, 6')
    a('s_add_u32 s63, s63, s93')
    a('s_cmp_ge_u32 s63, 43')
    a('s_cbranch_scc1 L_wnone')
    a('s_mov_b32 s61, 1')
    if o.efgo == 1:
        go_wait()
    a('v_mul_u32_u24 v8, 2752, v8')
    a('v_lshl_add_u32 v8, v4, 4, v8')
    a(f's_mul_i32 s99, s94, {128 * 2752}')
    a('s_lshl_b32 s93, s63, 6')
    a('s_add_u32 s99, s99, s93')
    a('s_lshl_b32 s6, s94, 14')
    a('s_mov_b32 m0, s6')
    a('v_bfe_u32 v9, v1, 2, 2')
    a('v_lshlrev_b32 v9, 6, v9')
    a('v_lshl_add_u32 v9, v4, 10, v9')
    a('v_lshl_add_u32 v9, v3, 4, v9')
    a('s_lshl_b32 s93, s94, 8')
    a(f'buffer_load_dwordx4 {vr(XR, 4)}, v9, {S(R_X)}, s93 offen')
    for mat in range(2):
        for i in range(8):
            a(f's_add_u32 s93, s99, {16 * i * 2752}')
            a(f's_waitcnt vmcnt({(o.ef0 if 8 * mat + i < o.efn else o.efwin) - 1})')
            a(f'buffer_load_dwordx4 v8, {S(R_WG if mat == 0 else R_WU)}, s93 offen {o.r64} lds')
            a('s_add_u32 m0, m0, 1024')
    OPW, FA = 192, 64
    EAR, EPS, EHW, GL, GH, GO_ = 188, 189, 190, 191, 224, 225
    a('v_and_b32 v8, 0xff, v6')
    a('v_lshl_add_u32 v8, v3, 10, v8')
    a('v_xor_b32 v9, 0x80, v8')
    a('s_lshl_b32 s99, s63, 15')
    a('s_lshl_b32 s93, s94, 8')
    a('s_add_u32 s99, s99, s93')
    a('s_lshl_b32 s98, s94, 13')
    a(f's_add_u32 s98, s98, {A_WD}')
    a('s_mov_b32 m0, s98')
    for i in range(8):
        a(f's_add_u32 s93, s99, {4096 * i}')
        a(f's_waitcnt vmcnt({o.efwin - 1})')
        a(f'buffer_load_dwordx4 v{8 + (i // 2) % 2}, {S(R_WD)}, s93 offen nt lds')
        a('s_add_u32 m0, m0, 1024')
    a('v_bfe_u32 v57, v1, 2, 3')
    a('v_lshlrev_b32 v57, 1, v57')
    a('v_xor_b32 v57, v57, v4')
    a('v_lshlrev_b32 v57, 4, v57')
    a('v_lshl_add_u32 v57, v59, 8, v57')
    a('v_add_u32 v57, s98, v57')
    a(f'v_lshlrev_b32 v{EAR}, 6, v4')
    a(f'v_lshl_add_u32 v{EAR}, v3, 4, v{EAR}')
    a(f'v_add_u32 v{EAR}, {A_ACT}, v{EAR}')
    a('v_bfe_u32 v9, v1, 1, 1')
    a(f'v_mul_u32_u24 v{EPS}, 6144, v9')
    a('v_and_b32 v9, 1, v1')
    a(f'v_lshl_add_u32 v{EPS}, v9, 6, v{EPS}')
    a(f'v_lshl_add_u32 v{EPS}, v3, 4, v{EPS}')
    a('s_lshl_b32 s93, s94, 10')
    a(f's_add_u32 s93, s93, {A_H}')
    a(f'v_add_u32 v{EHW}, s93, v2')
    a('v_cmp_lt_u32 vcc, 23, v1')
    a('v_mov_b32 v9, 0x7fffff00')
    a(f'v_cndmask_b32 v{GL}, v2, v9, vcc')
    a('s_and_b32 s93, s63, 1')
    a('s_lshl_b32 s93, s93, 1')
    a('v_bfe_u32 v9, v1, 2, 1')
    a('v_add_u32 v9, s93, v9')
    a(f'v_lshlrev_b32 v{GH}, 8, v4')
    a(f'v_lshl_add_u32 v{GH}, v9, 4, v{GH}')
    a('s_lshr_b32 s93, s63, 3')
    a('s_lshl_b32 s93, s93, 10')
    a('s_bfe_u32 s96, s63, 0x20001')
    a('s_lshl_b32 s96, s96, 6')
    a('s_add_u32 s93, s93, s96')
    a(f's_add_u32 s93, s93, {A_H}')
    a(f'v_add_u32 v{GH}, s93, v{GH}')
    a(f'v_lshlrev_b32 v{GO_}, 10, v9')
    a(f'v_lshl_add_u32 v{GO_}, v4, 4, v{GO_}')
    a(f'v_lshl_add_u32 v{GO_}, v3, 1, v{GO_}')
    a('v_add_u32 v58, s6, v58')
    a(f'v_lshlrev_b32 v{EW}, 8, v4')
    a(f'v_lshl_add_u32 v{EW}, v3, 4, v{EW}')
    a(f'v_add_u32 v{EW}, s6, v{EW}')
    a(f'v_lshlrev_b32 v{ES}, 3, v4')
    a(f'v_lshl_add_u32 v{ES}, v3, 2, v{ES}')
    a(f'v_add_u32 v{ES}, s6, v{ES}')
    a('s_and_b32 s93, s3, 1')
    a('s_lshl_b32 s93, s93, 6')
    a(f'v_add_u32 v{EST}, s93, v1')
    a(f'v_lshrrev_b32 v{ESR}, 5, v{EST}')
    a(f'v_and_b32 v{ER}, 31, v{EST}')
    a(f'v_lshlrev_b32 v{ER}, 2, v{ER}')
    a(f'v_lshl_add_u32 v{ER}, v{ESR}, 8, v{ER}')
    a(f'v_lshlrev_b32 v{ESR}, 3, v{ESR}')
    a(f'v_lshlrev_b32 v{EST}, 1, v{EST}')
    a(f'v_add_u32 v{EST}, {A_ACT}, v{EST}')
    vF(EG)
    for i in range(4):
        a(f'v_mov_b32 v{X4 + i}, s{S_ONES}')
    a('v_mov_b32 v226, v57')
    a('v_mov_b32 v227, v58')

    def e_lds_write():
        ex(M4)
        for k in range(4):
            a(f'ds_write_b128 v{EW}, {vr(EA + 4 * k, 4)} offset:{64 * k}')
        ex(-1)
    a('s_branch L_wnone')
    a.label('L_wlo')
    a('s_lshl_b32 s93, s3, 15')
    a('s_add_u32 s0, s0, s93')
    a('s_lshl_b32 s93, s3, 13')
    a(f's_add_u32 m0, s93, {A_WUV}')
    a('v_lshlrev_b32 v8, 10, v8')
    a('v_lshl_add_u32 v8, v4, 4, v8')
    a('s_lshl_b32 s97, s7, 19')
    a('s_lshl_b32 s93, s3, 17')
    a('s_add_u32 s97, s97, s93')
    a('s_lshl_b32 s93, s63, 6')
    a('s_add_u32 s97, s97, s93')
    assert o.wgo
    for i in range(8):
        a(f's_add_u32 s93, s97, {i * 16384}')
        if i >= o.owin:
            a(f's_waitcnt vmcnt({o.owin - 1})')
        a(f'buffer_load_dwordx4 v8, {S(R_WO)}, s93 offen {o.r64} lds')
        if i < 7:
            a('s_add_u32 m0, m0, 1024')
    a(f's_sub_u32 m0, m0, {A_WO - A_WUV + 7168}')
    if o.wgo:
        if o.egate == 0:
            a('s_waitcnt vmcnt(0)')
            a('s_cmp_lt_u32 s2, 48')
            a('s_cbranch_scc1 L_nogw')
        go_wait()
        a.label('L_nogw')
        for t in range(4):
            for k in range(2):
                tr_op(OPD + 8 * t + 4 * k, 57, 2048 * t + 32 * k, 256)
            if t == 1:
                a('s_waitcnt lgkmcnt(2)')
        a('s_waitcnt lgkmcnt(0)')
    if o.loc:
        a('s_lshl_b32 s93, s7, 11')
        a(f's_add_u32 s93, s93, {WS_XT}')
        a('v_lshlrev_b32 v9, 7, v11')
        a(f'buffer_load_dword v10, v9, {S(R_WS)}, s93 offen sc1')
        for i in range(4):
            a(f'buffer_load_dwordx4 {vr(D + 4 * i, 4)}, v128, {S(R_WS)}, s6 offen offset:{1024 * i} sc1')
    for i in range(8):
        a(f's_add_u32 s93, s0, {(16 * (i % 2) + i // 2) * 8192}')
        if not o.wgo:
            a(f's_waitcnt vmcnt({o.wwin - 1})')
        a(f'buffer_load_dwordx4 v{6 + (i // 2) % 2}, {S(R_WUV)}, s93 offen nt lds')
        if i < 7:
            a('s_add_u32 m0, m0, 1024')
    a('s_waitcnt vmcnt(0)')
    if o.loc:
        a(f'v_cmp_ne_u32 vcc, s{S_XCC}, v10')
        a('s_cmp_eq_u64 vcc, 0')
        a(f's_cselect_b32 s{S_LOC}, 1, 0')
    a('s_barrier')
    for t in range(4):
        for k in range(2):
            tr_op(OPC + 8 * t + 4 * k, 56, 8192 * t + 8 * k, 1024)
            if not o.wgo:
                tr_op(OPD + 8 * t + 4 * k, 57, 2048 * t + 32 * k, 256)
        a('s_waitcnt lgkmcnt(4)')
    if o.lprio:
        a(f's_setprio {o.lprio}')
    a.label('L_cstart')
    stamp(6)
    RED4 = ('quad_perm:[1,0,3,2]', 'quad_perm:[2,3,0,1]', 'row_ror:4', 'row_ror:8')

    def weights():
        a('v_mov_b32 v54, v52')
        for c in RED4:
            dpp('v_max_f32', 54, 54, 54, c)
        swap_step('v_max_f32', 54, 55, 16)
        a('v_sub_f32 v53, v52, v54')
        a('v_exp_f32 v53, v53')
        a('v_cvt_pk_bf16_f32 v54, v53, 0')
        a('v_lshlrev_b32 v53, 16, v54')
        for i in range(4):
            a(f'ds_bpermute_b32 v{WL + i}, v51, v54 offset:{16 * i}')
        a('s_waitcnt lgkmcnt(0)')
        for i in range(4):
            a(f'v_lshlrev_b32 v{WL + 4 + i}, 16, v{WL + i}')
    a('v_lshrrev_b32 v9, 4, v5')
    a('s_lshl_b32 s96, s94, 12')
    a('s_lshl_b32 s93, s4, 2')
    a('s_add_u32 s96, s96, s93')
    a(f's_add_u32 s96, s96, {WS_M0}')
    a(f'buffer_load_dword v52, v9, {S(R_WS)}, s96 offen sc1')
    a('s_waitcnt vmcnt(0)')
    a(f'v_xor_b32 v52, s{S_TAG}, v52')
    weights()
    a('s_lshl_b32 s96, s94, 14')
    a('s_lshl_b32 s93, s2, 7')
    a('s_add_u32 s96, s96, s93')
    a(f's_add_u32 s96, s96, {WS_OF}')
    a(f's_add_u32 s0, s{R_WS}, s96')
    a(f's_addc_u32 s1, s{R_WS + 1}, 0')
    a(f's_mov_b32 s{S_CNT}, {SPIN}')
    a.label('L_of')
    a('s_load_dword s96, s[0:1], 0 glc')
    a('s_waitcnt lgkmcnt(0)')
    a(f's_cmp_eq_u32 s96, s{S_TAG}')
    a('s_cbranch_scc1 L_ofgo')
    a(f's_sub_u32 s{S_CNT}, s{S_CNT}, 1')
    a('s_cbranch_scc0 L_of')
    a.label('L_ofgo')
    stamp(7)
    a(f's_mov_b32 s{S_CNT}, {SPIN}')
    a.label('L_call')
    a(f'buffer_load_dwordx4 v[12:15], v5, {S(R_WS)}, s90 offen sc1')
    for i in range(4):
        a(f'buffer_load_dwordx4 {vr(D + 4 * i, 4)}, v2, {S(R_WS)}, s91 offen offset:{1024 * i} sc1')
    a(f's_sub_u32 s{S_CNT}, s{S_CNT}, 1')
    a('s_cbranch_scc1 L_cdone')
    a('s_waitcnt vmcnt(4)')
    a('v_cmp_ne_u32 vcc, v12, v52')
    xor_chain(10, [12, 13, 14, 15], f's{S_TAG}')
    a('v_cndmask_b32 v9, 0, v14, s[88:89]')
    a('s_cbranch_vccnz L_cnewm')
    a.label('L_crec')
    a('v_mul_f32 v14, v53, v13')
    side = []
    for c in RED4:
        side.append(f'v_add_f32_dpp v14, v14, v14 {c} row_mask:0xf bank_mask:0xf')
    side += ['v_mov_b32 v15, v14', 'v_permlane16_swap_b32 v14, v15', 'v_add_f32 v14, v14, v15', 'v_rcp_f32 v14, v14']
    for i in range(4):
        a(f's_waitcnt vmcnt({3 - i})')
        if i == 3:
            stamp(8)
            f3(66)
        xor_chain(9, [9] + list(range(D + 4 * i, D + 4 * i + 4)))
        if i == 3:
            side = [f'v_xor_b32_dpp v9, v9, v9 {c} row_mask:0xf bank_mask:0xf' for c in RED4]
        for u in range(4):
            for e in range(2):
                c = '0' if i == 0 else f'v{CA + 2 * u + e}'
                a(f'v_dot2_f32_bf16 v{CA + 2 * u + e}, v{D + 4 * i + u}, v{WL + 4 * e + i}, {c}')
            if side:
                a(side.pop(0))
    a('v_mov_b32 v15, v9')
    for k in range(4):
        a(f'v_permlane16_swap_b32 v{CA + 2 * k}, v{CA + 2 * k + 1}')
        if k == 1:
            a('v_permlane16_swap_b32 v9, v15')
            a('v_xor_b32 v9, v9, v15')
            a('v_mov_b32 v15, v9')
    a('v_permlane32_swap_b32 v9, v15')
    a(f'v_bitop3_b32 v9, v9, v15, v10 bitop3:0xbe')
    a('v_cmp_ne_u32 vcc, 0, v9')
    a.label('L_cdone')
    for k in range(4):
        a(f'v_add_f32 v{CA + 2 * k}, v{CA + 2 * k}, v{CA + 2 * k + 1}')
    for k in range(2):
        a(f'v_permlane32_swap_b32 v{CA + 4 * k}, v{CA + 4 * k + 2}')
    for k in range(2):
        a(f'v_add_f32 v{CA + 4 * k}, v{CA + 4 * k}, v{CA + 4 * k + 2}')
    a('s_cbranch_vccnz L_cagain ;noflush')
    a.label('L_cok')
    a(f'v_mul_f32 v{CA}, v{CA}, v14')
    a(f'v_mul_f32 v{CA + 4}, v{CA + 4}, v14')
    a(f'v_cvt_pk_bf16_f32 v{CA}, v{CA}, v{CA + 4}')
    a(f'ds_write_b16 v48, v{CA}')
    a(f'ds_write_b16_d16_hi v48, v{CA} offset:8')
    f3(68)
    a('s_waitcnt lgkmcnt(0)')
    a('s_barrier')
    f3(70)
    a('s_cmp_ge_u32 s3, 4')
    a('s_cbranch_scc1 L_hi')
    for t in range(4):
        a(f'ds_read_b128 {vr(D + 4 * t, 4)}, v49 offset:{64 * t}')
    for t in range(4):
        a(f's_waitcnt lgkmcnt({3 - t})')
        for k in range(2):
            mfma16(CA + 4 * k, OPC + 8 * t + 4 * k, D + 4 * t, t == 0)
    for i in range(8):
        dpp('v_add_f32', CA + i, CA + i, CA + i, 'row_ror:4')
    for i in range(4):
        a(f'v_cvt_pk_bf16_f32 v{12 + i}, v{CA + 2 * i}, v{CA + 2 * i + 1}')
    a(f's_mov_b32 s{S_CNT}, {SPIN}')
    ex(M4)
    if o.loc:
        a(f's_cmp_eq_u32 s{S_LOC}, 0')
        a('s_cbranch_scc1 L_cfar ;noflush')
        a(f'buffer_store_dwordx4 v[12:15], v50, {S(R_WS)}, s98 offen')
        a('s_branch L_cst ;noflush')
        a.label('L_cfar')
    a(f'buffer_store_dwordx4 v[12:15], v50, {S(R_WS)}, s98 offen sc1')
    a.label('L_cst')
    ex(-1)
    stamp(9)
    f3(72)
    a('s_waitcnt vmcnt(0)')
    f3(74)
    a.label('L_dre')
    for i in range(4):
        a(f'buffer_load_dwordx4 {vr(D + 4 * i, 4)}, v128, {S(R_WS)}, s6 offen offset:{1024 * i} sc1')
    for t in range(4):
        a(f's_waitcnt vmcnt({3 - t})')
        for k in range(2):
            mfma16(CA + 4 * k, OPD + 8 * t + 4 * k, D + 4 * t, t == 0)
    a(f'v_cmp_u_f32 vcc, v{CA}, v{CA}')
    for i in range(8):
        dpp('v_add_f32', CA + i, CA + i, CA + i, 'row_ror:4')
    a('s_cbranch_vccnz L_dnan ;noflush')
    a.label('L_dok')
    stamp(10)
    f3(76)
    for i in range(8):
        dpp('v_add_f32', CA + i, CA + i, CA + i, 'row_ror:8')
    ex(M4)
    a(f'ds_write_b128 v129, {vr(CA, 4)}')
    a(f'ds_write_b128 v129, {vr(CA + 4, 4)} offset:64')
    ex(-1)
    a('s_waitcnt lgkmcnt(0)')
    a('s_barrier')
    if o.wb:
        ex(M4)
        a(f'buffer_store_dwordx4 v[12:15], v50, {S(R_WS)}, s98 offen sc1')
        ex(-1)
    a('s_cmp_lg_u32 s3, 0')
    a('s_cbranch_scc1 L_end')
    red4_read(D, 130)
    a(f'v_cvt_pk_bf16_f32 v{D}, v{D}, v{D + 1}')
    a(f'v_cvt_pk_bf16_f32 v{D + 1}, v{D + 2}, v{D + 3}')
    a(f'buffer_store_dwordx2 {vr(D, 2)}, v131, {S(R_WS)}, s99 offen sc1')
    f3(78)
    if o.stamps:
        a('s_memrealtime s[88:89]')
    a('s_waitcnt vmcnt(0)')
    if o.stamps:
        a('s_barrier')
    if o.st3:
        o.stamps = 1
    if o.stamps:
        dump_stamps(13, 0, 'a')
    a('s_endpgm')

    nan_retry('L_dnan', range(D, D + 16), 'L_dre', 'L_dok')
    a.label('L_cnewm')
    a('v_mov_b32 v52, v12')
    weights()
    a('s_branch L_crec')
    a.label('L_cagain')
    a(f's_cmp_lt_i32 s{S_CNT}, 0')
    a('s_cbranch_scc1 L_cok')
    a('s_branch L_call')
    a.label('L_hi')
    a('s_cmp_eq_u32 s61, 0')
    if o.stamps:
        a('s_cbranch_scc0 L_hi2')
        stamp(9)
        a('s_bfe_u32 s93, s2, 0x20003')
        a('s_cmp_lg_u32 s93, s94')
        a('s_cbranch_scc1 L_end')
        a(f's_sub_u32 s84, {SPIN}, s{S_CNT}')
        dump_stamps(11, 1)
        a('s_endpgm')
        a.label('L_hi2')
    else:
        a('s_cbranch_scc1 L_end')

    def e_lds_read():
        for w in range(4):
            a(f'ds_read_b32 v{H + 2 * w}, v{ER} offset:{16384 * w}')
            a(f'ds_read_b32 v{H + 2 * w + 1}, v{ER} offset:{16384 * w + 128}')
    for t in range(4):
        for k in range(4):
            tr_op(OP + 16 * t + 4 * k, 227, 8192 * (k // 2) + 2048 * t + 32 * (k % 2), 256)
        a(f'v_xor_b32 v9, {64 * t}, v226')
        for k in range(2):
            tr_op(OPW + 8 * t + 4 * k, 9, 8 * k, 1024)
        a(f's_waitcnt lgkmcnt({2 if t < 3 else 0})')
    for t in range(4):
        for k in range(4):
            mfma16(EA + 4 * k, OP + 16 * t + 4 * k, X4, t == 0)
    for i in range(4):
        a(f'v_lshlrev_b32 v{132 + 2 * i}, 16, v{XR + i}')
        a(f'v_and_b32 v{133 + 2 * i}, s{S_MASK}, v{XR + i}')

    e_lds_write()
    a('s_lshl_b32 s98, s63, 7')
    a(f's_mul_i32 s93, s94, {4 * 12288}')
    a('s_add_u32 s98, s98, s93')
    a(f's_add_u32 s98, s98, {WS_FP}')
    a('s_mul_i32 s99, s63, 6144')
    a(f's_add_u32 s99, s99, {WS_FP}')
    a('s_add_u32 s97, s99, 4096')
    a('s_lshr_b32 s96, s63, 1')
    a('s_lshl_b32 s96, s96, 6')
    a('s_lshl_b32 s90, s94, 10')
    a(f's_add_u32 s90, s90, {WS_HP}')
    a('s_waitcnt lgkmcnt(0)')
    a(f's_mov_b32 s91, {f32bits(GELU_K * 0.044715)}')
    a(f'v_mov_b32 v228, {GELU_BITS}')
    stamp(5)
    a('s_barrier')
    e_lds_read()
    a('s_waitcnt lgkmcnt(0)')
    a(f'v_add_f32 v{ECS}, v{H}, v{H + 2}')
    a(f'v_add_f32 v{ECS + 1}, v{H + 1}, v{H + 3}')
    for w in range(2, 4):
        a(f'v_add_f32 v{ECS}, v{ECS}, v{H + 2 * w}')
        a(f'v_add_f32 v{ECS + 1}, v{ECS + 1}, v{H + 2 * w + 1}')
    a('s_barrier')
    if o.edelay:
        a(f's_sleep {o.edelay}')

    def e_loads():
        a('s_mov_b32 s92, s90')
        for r in range(8):
            a(f'buffer_load_dwordx4 {vr(H + 4 * r, 4)}, v{EG}, {S(R_WS)}, s92 offen sc1')
            if r < 7:
                a('s_add_u32 s92, s92, 4096')
    f3(66)
    a(f's_mov_b32 s{S_CNT}, {SPIN}')
    a.label('L_ere')
    e_loads()
    for r in range(8):
        a(f's_waitcnt vmcnt({7 - r})')
        if r == 7:
            stamp(9)
            f3(68)
        for u in range(4):
            for e in range(2):
                c = f'v{132 + 2 * u + e}' if r == 0 else f'v{HA + 2 * u + e}'
                a(f'v_dot2_f32_bf16 v{HA + 2 * u + e}, v{H + 4 * r + u}, s{S_LO1 + e}, {c}')
    f3(70)
    for i in range(4):
        a(f'v_cvt_pk_bf16_f32 v{X4 + i}, v{HA + 2 * i}, v{HA + 2 * i + 1}')
    for t in range(4):
        if t < 3:
            for i in range(4):
                a(f'v_mov_b32_dpp v{X4 + 4 * (t + 1) + i}, v{X4 + i} row_shl:{4 * (t + 1)} row_mask:0xf bank_mask:0xf bound_ctrl:0')
        for k in range(4):
            mfma16(EA + 4 * k, OP + 16 * t + 4 * k, X4 + 4 * t, t == 0)
        if t == 0:
            a(f'ds_write_b128 v{EHW}, {vr(X4, 4)}')
            for i in range(4):
                a(f'v_dot2_f32_bf16 v9, v{X4 + i}, s{S_ONES}, {"0" if i == 0 else "v9"}')
                a(f'v_dot2_f32_bf16 v11, v{X4 + i}, v{X4 + i}, {"0" if i == 0 else "v11"}')
        if t == 1:
            a('v_cmp_u_f32 vcc, v9, v9')
            for c in ('row_ror:4', 'row_ror:8'):
                dpp('v_add_f32', 9, 9, 9, c)
                dpp('v_add_f32', 11, 11, 11, c)
            a('s_cbranch_vccnz L_enan ;noflush')
            a.label('L_eok')
        if t == 2:
            a('v_permlane16_swap_b32 v9, v11')
            a('v_add_f32 v9, v9, v11')
            swap_step('v_add_f32', 9, 11, 32)
    ex(0x000f000f)
    f3(72)
    a(f'ds_write_b32 v{ES}, v9 offset:1024')
    e_lds_write()
    a('s_waitcnt lgkmcnt(0)')
    a('s_barrier')
    f3(74)
    a('s_cmp_ge_u32 s3, 6')
    a('s_cbranch_scc1 L_eact')
    for w in range(4):
        a(f'ds_read_b64 v[{H + 8 + 2 * w}:{H + 9 + 2 * w}], v{ESR} offset:{16384 * w + 1024}')
    e_lds_read()
    a('s_waitcnt lgkmcnt(8)')
    for w in range(1, 4):
        a(f'v_add_f32 v{H + 8}, v{H + 8}, v{H + 8 + 2 * w}')
        a(f'v_add_f32 v{H + 9}, v{H + 9}, v{H + 9 + 2 * w}')
    MU, VA = H + 8, H + 9
    a(f'v_mul_f32 v{MU}, 0x3b000000, v{MU}')
    a(f'v_mul_f32 v{VA}, 0x3b000000, v{VA}')
    a(f'v_fma_f32 v{VA}, -v{MU}, v{MU}, v{VA}')
    a(f'v_max_f32 v{VA}, 0, v{VA}')
    a(f'v_add_f32 v{VA}, 0x3727c5ac, v{VA}')
    a(f'v_rsq_f32 v{VA}, v{VA}')
    a('s_waitcnt lgkmcnt(0)')
    for w in range(1, 4):
        a(f'v_add_f32 v{H}, v{H}, v{H + 2 * w}')
        a(f'v_add_f32 v{H + 1}, v{H + 1}, v{H + 2 * w + 1}')
    a(f'v_fma_f32 v16, -v{MU}, v{ECS}, v16')
    a(f'v_fma_f32 v17, -v{MU}, v{ECS + 1}, v17')
    a(f'v_mul_f32 v16, v16, v{VA}')
    a(f'v_mul_f32 v17, v17, v{VA}')
    a('v_mul_f32 v18, v16, v16')
    a('v_fma_f32 v19, v18, s91, v228')
    a('v_mul_f32 v19, v19, v16')
    a('v_exp_f32 v19, v19')
    a('v_mul_f32 v16, v16, v17')
    a('v_add_f32 v19, 1.0, v19')
    a('v_rcp_f32 v19, v19')
    a('v_mul_f32 v16, v16, v19')
    a('v_mov_b32_dpp v17, v16 quad_perm:[1,1,3,3] row_mask:0xf bank_mask:0xf')
    a('v_cvt_pk_bf16_f32 v16, v16, v17')
    ex(0x5555555555555555)
    a(f'ds_write_b32 v{EST}, v16')
    ex(-1)
    a('s_waitcnt lgkmcnt(0)')
    a.label('L_eact')
    a('s_barrier')
    f3(76)
    a(f'ds_read_b128 v[16:19], v{EAR}')
    a(f'ds_read_b128 v[20:23], v{GH}')
    a('s_waitcnt lgkmcnt(1)')
    for k in range(8):
        mfma16(FA + 4 * k, OPW + 4 * k, 16, True)
    ex(M4)
    for p in range(4):
        for i in range(4):
            a(f'v_cvt_pk_bf16_f32 v{96 + 4 * p + i}, v{FA + 8 * p + 2 * i}, v{FA + 8 * p + 2 * i + 1}')
        a(f'buffer_store_dwordx4 {vr(96 + 4 * p, 4)}, v{EPS}, {S(R_WS)}, s98 offen sc1')
        if p < 3:
            a('s_add_u32 s98, s98, 12288')
    ex(-1)
    stamp(10)
    f3(78)
    a('s_cmp_lg_u32 s3, 4')
    a('s_cbranch_scc1 L_end')
    a('s_cmp_ge_u32 s63, 32')
    a('s_cbranch_scc1 L_efend')
    G, GA = 24, 48
    OSC = ' sc1' if o.osc else ''
    for i in range(8):
        a(f'v_mov_b32 v{56 + i}, 0')
    a('s_waitcnt lgkmcnt(0)')
    ex(0xff)
    for u in range(4):
        for e in range(2):
            a(f'v_dot2_f32_bf16 v{56 + 2 * u + e}, v{20 + u}, s{S_LO1 + e}, 0')
    ex(-1)
    a(f's_mov_b32 s{S_CNT}, {SPIN}')
    a('s_waitcnt vmcnt(0)')
    if o.fdelay:
        a(f's_sleep {o.fdelay}')
    a.label('L_gre')
    for i in range(6):
        a(f'buffer_load_dwordx4 {vr(G + 4 * i, 4)}, v{2 if i < 5 else GL}, {S(R_WS)}, s{99 if i < 4 else 97} offen offset:{1024 * (i % 4)} sc1')
    for i in range(6):
        a(f's_waitcnt vmcnt({5 - i})')
        for u in range(4):
            for e in range(2):
                c = 56 + 2 * u + e if i == 0 else GA + 2 * u + e
                a(f'v_dot2_f32_bf16 v{GA + 2 * u + e}, v{G + 4 * i + u}, s{S_LO1 + e}, v{c}')
    stamp(7)
    for k in range(4):
        a(f'v_permlane16_swap_b32 v{GA + 2 * k}, v{GA + 2 * k + 1}')
    for k in range(4):
        a(f'v_add_f32 v{GA + 2 * k}, v{GA + 2 * k}, v{GA + 2 * k + 1}')
    for k in range(2):
        a(f'v_permlane32_swap_b32 v{GA + 4 * k}, v{GA + 4 * k + 2}')
    for k in range(2):
        a(f'v_add_f32 v{GA + 4 * k}, v{GA + 4 * k}, v{GA + 4 * k + 2}')
    a(f'v_cmp_u_f32 vcc, v{GA}, v{GA + 4}')
    for k in range(2):
        dpp('v_add_f32', GA + 4 * k, GA + 4 * k, GA + 4 * k, 'row_ror:8')
    a(f'v_cvt_pk_bf16_f32 v{GA}, v{GA}, v{GA + 4}')
    a('s_cbranch_vccnz L_gnan ;noflush')
    a.label('L_gok')
    ex(0x00ff00ff00ff00ff)
    a(f'buffer_store_short v{GA}, v{GO_}, {S(R_OUT)}, s96 offen{OSC}')
    a(f'buffer_store_short_d16_hi v{GA}, v{GO_}, {S(R_OUT)}, s96 offen offset:8{OSC}')
    a('s_cmp_lg_u32 s63, 0')
    a('s_cbranch_scc1 L_efend')
    ex(1)
    a(f'v_mov_b32 v12, s{S_TAG}')
    a(f's_mov_b32 s90, {WS_EPOCH}')
    a(f'buffer_store_dword v12, off, {S(R_WS)}, s90{OSC}')
    a.label('L_efend')
    if o.diag:
        a.label('L_diag')
        a('s_memrealtime s[90:91]')
        a('s_waitcnt lgkmcnt(0)')
        a('s_sub_u32 s90, s90, s100')
        a(f's_cmp_lt_u32 s90, {o.diag}')
        a('s_cbranch_scc1 L_diag')
    if o.stamps:
        stamp(8)
        a('s_cmp_lg_u32 s3, 4')
        a('s_cbranch_scc1 L_end')
        dump_stamps(11, 1)
    a('s_endpgm')

    nan_retry('L_enan', range(H, H + 32), 'L_ere', 'L_eok')
    nan_retry('L_gnan', range(G, G + 24), 'L_gre', 'L_gok')
    a.label('L_att')
    srd([R_CKV])
    a('s_bfe_u32 s4, s2, 0x20001')
    a('s_bfe_u32 s5, s2, 0x40003')
    a('s_lshl_b32 s5, s5, 1')
    a('s_and_b32 s6, s2, 1')
    a('s_add_u32 s5, s5, s6')
    a('s_lshl_b32 s90, s4, 23')
    TS = (2 << 20) if o.il else 65536
    MX = (1 << o.mb1, 1 << o.mb2)
    a(f's_lshl_b32 s91, s5, {16 if o.il else 18}')
    a('s_add_u32 s90, s90, s91')
    a('s_and_b32 s7, s3, 3')
    a('s_lshl_b32 s91, s7, 14')
    a('s_add_u32 s90, s90, s91')
    a('s_lshl_b32 s91, s7, 15')
    a('s_lshl_b32 s92, s7, 2')
    a(f's_add_u32 s92, s92, {FB}')
    a('v_mov_b32 v7, s92')
    a(f'v_lshlrev_b32 v10, 2, v4')
    a(f'v_add_u32 v10, {FB}, v10')
    a('s_cmp_lt_u32 s3, 4')
    a('s_cbranch_scc1 L_comp')
    a('s_mov_b32 s3, s7')
    VX, TR, O_ = 12, 128, 64
    for j in range(8):
        a(f'v_xor_b32 v{VX + j}, {32 * j}, v2')
    a('s_mov_b32 m0, s91')
    a('s_mov_b32 s93, 0')
    a('s_waitcnt lgkmcnt(0)')
    srd_ptr([R_CKV])
    BUF = (0, 1, 1, 0)
    TAL, vPR, vST, vRC, vRM, vRL, vAR = 20, 28, 29, 30, 31, 32, 33

    def pv_setup():
        a('v_bfe_u32 v40, v1, 2, 2')
        a('v_lshrrev_b32 v42, 5, v1')
        a('v_lshlrev_b32 v41, 2, v40')
        a('v_lshl_add_u32 v41, v42, 1, v41')
        a('v_and_b32 v43, 1, v3')
        a('v_lshlrev_b32 v44, 1, v43')
        a('v_bfe_u32 v45, v1, 1, 1')
        a('v_add_u32 v44, v44, v45')
        a('v_xor_b32 v44, v44, v41')
        a('v_lshlrev_b32 v41, 10, v41')
        a('v_lshl_add_u32 v41, v44, 4, v41')
        a('v_and_b32 v45, 1, v1')
        a('v_lshl_add_u32 v41, v45, 3, v41')
        a('s_lshl_b32 s95, s3, 8')
        a('v_add_u32 v41, s95, v41')
        for i in range(8):
            a(f'v_xor_b32 v{TAL + i}, {64 * (i % 4) + 65536 * (i // 4)}, v41')
        a(f'v_add_u32 v{vPR}, {L_P}, v2')
        a(f'v_lshlrev_b32 v{vAR}, 4, v42')
        a(f'v_add_u32 v{vAR}, {L_ALPHA}, v{vAR}')
        a('v_lshl_add_u32 v42, v42, 2, v43')
        a(f'v_lshlrev_b32 v{vST}, 17, v42')
        a(f'v_lshl_add_u32 v{vST}, v11, 4, v{vST}')
        a('v_lshl_add_u32 v42, v45, 4, v42')
        a('v_bfe_u32 v44, v1, 2, 1')
        a('v_lshl_add_u32 v42, v44, 3, v42')
        a('v_bfe_u32 v44, v1, 3, 1')
        a('v_lshl_add_u32 v42, v44, 1, v42')
        a(f'v_lshlrev_b32 v{vRM}, 2, v42')
        a(f'v_add_u32 v{vRM}, {L_MFIN}, v{vRM}')
        a(f'v_lshlrev_b32 v{vRC}, 4, v42')
        a(f'v_add_u32 v{vRL}, {L_MAX}, v{vRC}')
        a('s_lshl_b32 s96, s3, 2')
        a('s_add_u32 s96, s96, s4')
        a('s_lshl_b32 s96, s96, 13')
        a('s_lshl_b32 s95, s5, 8')
        a('s_add_u32 s96, s96, s95')
        a(f's_add_u32 s96, s96, {WS_OP}')
        a('s_lshl_b32 s97, s4, 16')
        a('s_lshl_b32 s95, s5, 11')
        a('s_add_u32 s97, s97, s95')
        a('s_lshl_b32 s95, s3, 9')
        a('s_add_u32 s97, s97, s95')
        a(f's_add_u32 s97, s97, {WS_REC}')
        a('v_add_u32 v9, s91, v2')
    rows = [(T, j) for T in range(3) for j in range(16) if not (T == 1 and j == 15)]
    landed = 0
    pub = {0: 16, 1: 31}

    def publish():
        for tt in list(pub):
            if landed >= pub[tt]:
                a(f'v_mov_b32 v5, {tt + 1}')
                a(f'ds_write_b32 v7, v5 offset:{F_LAND}')
                del pub[tt]

    def dma_row(j):
        a(f'buffer_load_dwordx4 v{VX + j // 2}, {S(R_CKV)}, s90 offen offset:{(j % 4) * 1024} nt lds')
    for n, (T, j) in enumerate(rows):
        w = o.w0 if n < o.n0 else o.window
        if o.hold and n == o.hold:
            lds_wait(10, F_HUS, 1, 6, 2)
        if n >= o.n0 and not (o.hold and n >= o.hold):
            lb = a.uid('fast')
            a('s_cmp_lg_u32 s93, 0')
            a(f's_cbranch_scc1 {lb}')
            if n % 2 == 0:
                a(f'ds_read_b32 v6, v10 offset:{F_HUS if o.sw == 1 else F_QST}')
            a(f's_waitcnt vmcnt({o.w1 - 1})')
            if n % 2 == 0:
                a('s_waitcnt lgkmcnt(0)')
                a('v_cmp_eq_u32 vcc, 0, v6')
                a('s_cmp_eq_u64 vcc, 0')
                a('s_cselect_b32 s93, 1, 0')
            a.label(lb)
        if n - landed >= w:
            a(f's_waitcnt vmcnt({w - 1})')
            landed = n - (w - 1)
        if n in (16 + o.w1, 31 + o.lw) and landed < n - (o.w1 if n < 31 else o.lw):
            k = o.w1 if n < 31 else o.lw
            a(f's_waitcnt vmcnt({k})')
            landed = n - k
        publish()
        if n == 20:
            get_tag()
            a('v_mov_b32 v35, 0')
        if n == o.gon and o.wgo:
            lb = a.uid('nogo')
            a('s_cmp_lg_u32 s3, 0')
            a(f's_cbranch_scc1 {lb}')
            a('s_sub_u32 s92, s2, 128')
            a('s_lshl_b32 s92, s92, 7')
            a(f's_add_u32 s92, s92, {WS_GO}')
            a(f'v_mov_b32 v6, s{S_TAG}')
            a('v_lshlrev_b32 v8, 2, v1')
            ex(0xffffffff)
            a(f'buffer_store_dword v6, v8, {S(R_WS)}, s92 offen sc1')
            ex(-1)
            a.label(lb)
        if T < 2:
            dma_row(j)
        else:
            a(f'buffer_load_dwordx4 {vr(TR + 64 * (T - 2) + 4 * j, 4)}, v{VX + j // 2}, {S(R_CKV)}, s90 offen offset:{(j % 4) * 1024} nt')
        last = j == 15 or (T == 1 and j == 14)
        if j % 4 == 3 or last:
            a(f's_add_u32 s90, s90, {TS - 12288 if last else 4096}')
            if o.mix:
                a(f's_xor_b32 s90, s90, {MX[(j // 4) % 2]}')
            if T < 2:
                a('s_add_u32 m0, m0, 4096')
        if n == o.w0 - 1:
            a(f's_load_dword s{S_TAG}, s[{R_WS}:{R_WS + 1}], {WS_EPOCH}')
            a('s_barrier')
            pv_setup()
        if n == 30:
            stamp(1)
    assert not pub
    stamp(2)
    if o.pvprio:
        a(f's_setprio {o.pvprio}')
    PF = 36
    BFS = (44, 48, 52, 56, 60, 12, 16)
    NB = len(BFS)
    DIST = 6
    FLG = 34

    def pv(t):
        seq = [(ks, blk) for ks in range(4) for blk in range(4)]

        def rd(n):
            ks, blk = seq[n]
            for tau in range(2):
                a(f'ds_read_b64_tr_b16 {vr(BFS[n % NB] + 2 * tau, 2)}, v{TAL + blk + 4 * (ks // 2)} offset:{32768 * (ks % 2) + 16384 * BUF[t] + 1024 * tau}')

        def p_rd(ks):
            a(f'ds_read_b128 {vr(PF + 4 * (ks % 2), 4)}, v{vPR} offset:{4096 * t + 1024 * ks}')
        a(f's_mov_b32 s{S_CNT}, {SPIN * 40}')
        a('s_mov_b32 s95, 2')
        a.label(f'L_pp{t}')
        a(f'ds_read_b32 v{FLG}, v10 offset:{F_PS + 16 * t}')
        a('s_waitcnt lgkmcnt(0)')
        a(f'v_cmp_ne_u32 vcc, s95, v{FLG}')
        a(f's_cbranch_vccnz L_ps{t}')
        a.label(f'L_pg{t}')
        p_rd(0)
        ops = ['P0']

        def issue_rd(n):
            rd(n)
            ops.extend([f'R{n}', f'R{n}'])
        for n in range(DIST):
            issue_rd(n)
            if n == 1:
                p_rd(1)
                ops.append('P1')
        for n in range(16):
            ks, blk = seq[n]
            need = max(i for i, x in enumerate(ops) if x in (f'R{n}', f'P{ks}'))
            a(f's_waitcnt lgkmcnt({min(15, len(ops) - 1 - need)})')
            if t == 0 and blk == 3:
                a(f'ds_write_b32 v7, v35 offset:{F_DONE}')
                ops.append('W')
            c = '0' if (t == 0 and ks == 0) else vr(O_ + 16 * blk, 16)
            a(f'v_mfma_f32_32x32x16_bf16 {vr(O_ + 16 * blk, 16)}, {vr(PF + 4 * (ks % 2), 4)}, {vr(BFS[n % NB], 4)}, {c}')
            if t == 0 and blk == 1:
                a('v_add_u32 v35, 1, v35')
            if n in (3, 7):
                p_rd(2 + n // 4)
                ops.append(f'P{2 + n // 4}')
            if n + DIST < 16:
                issue_rd(n + DIST)

    pv(0)
    stamp(3)
    pv(1)
    stamp(4)
    a('v_mov_b32 v5, 5')
    a(f'ds_write_b32 v7, v5 offset:{F_DONE}')
    lds_wait(10, F_DONE, 5, 5, 0)
    for j in range(16):
        if j % 2 == 0:
            a(f's_waitcnt vmcnt({14 - j})')
        a(f'ds_write_b128 v9, {vr(TR + 4 * j, 4)} offset:{1024 * j + 16384}')
    a('v_mov_b32 v5, 3')
    a(f'ds_write_b32 v7, v5 offset:{F_LAND}')
    stamp(5)
    pv(2)
    stamp(6)
    a('v_mov_b32 v35, 6')
    pv(3)
    stamp(7)
    PK, XX = 128, 160

    def l_reads():
        a(f'ds_read_b32 v{FLG}, v10 offset:{F_LSEQ}')
        a(f'ds_read_b128 v[172:175], v{vRL}')
        a(f'ds_read_b32 v168, v{vRM}')
    l_reads()
    for ap in range(8):
        t = PK + 4 * ap
        j = 2 * ap
        a(f'v_cvt_pk_bf16_f32 v{t}, v{O_ + j}, v{O_ + 16 + j}')
        a(f'v_cvt_pk_bf16_f32 v{t + 2}, v{O_ + j + 1}, v{O_ + 16 + j + 1}')
        a(f'v_cvt_pk_bf16_f32 v{t + 1}, v{O_ + 32 + j}, v{O_ + 48 + j}')
        a(f'v_cvt_pk_bf16_f32 v{t + 3}, v{O_ + 32 + j + 1}, v{O_ + 48 + j + 1}')
        a(f'v_permlane16_swap_b32 v{t}, v{t + 2}')
        a(f's_add_u32 s92, s96, {(8 * (ap // 2) + 2 * (ap % 2)) * 131072}')
        a(f'v_permlane16_swap_b32 v{t + 1}, v{t + 3}')
        a(f'buffer_store_dwordx4 {vr(t, 4)}, v{vST}, {S(R_WS)}, s92 offen sc1')
        if ap == o.rwait - 1:
            a(f'ds_write_b32 v7, v35 offset:{F_DONE}')
        xor_chain(XX + ap, range(t, t + 4))
        if ap % 2 == 1:
            k = ap // 2
            dpp('v_xor_b32', XX + 2 * k, XX + 2 * k, XX + 2 * k, 'row_ror:8', 0x3)
            dpp('v_xor_b32', XX + 2 * k, XX + 2 * k + 1, XX + 2 * k + 1, 'row_ror:8', 0xc)
        if ap % 4 == 3:
            m = ap // 4
            dpp('v_xor_b32', XX + 4 * m, XX + 4 * m, XX + 4 * m, 'row_half_mirror', 0x5)
            dpp('v_xor_b32', XX + 4 * m, XX + 4 * m + 2, XX + 4 * m + 2, 'row_half_mirror', 0xa)
            dpp('v_xor_b32', XX + 4 * m, XX + 4 * m, XX + 4 * m, 'quad_perm:[1,0,3,2]')
            dpp('v_xor_b32', 170 if m == 0 else XX + 4, XX + 4 * m, XX + 4 * m, 'quad_perm:[2,3,0,1]')
        if ap == 4:
            a('s_waitcnt lgkmcnt(0)')
            a(f'v_cmp_ne_u32 vcc, 1, v{FLG}')
            a('s_cbranch_vccnz L_lslow')
            a.label('L_lok')
            a('v_add_f32 v172, v172, v173')
            a('v_add_f32 v174, v174, v175')
            a('v_add_f32 v169, v172, v174')
            a(f'v_bitop3_b32 v171, v168, v169, s{S_TAG} {XOR3}')
    ex(0x2222222222222222)
    a(f'v_mov_b32 v170, v{XX + 4}')
    ex(0x3333333333333333)
    a('v_xor_b32 v171, v171, v170')
    a(f'buffer_store_dwordx4 v[168:171], v{vRC}, {S(R_WS)}, s97 offen sc1')
    if o.stamps:
        stamp(8)
        a('s_waitcnt vmcnt(0)')
        stamp(9)
        a('s_cmp_lg_u32 s3, 0')
        a('s_cbranch_scc1 L_end')
        dump_stamps(11, 1)
    a('s_endpgm')
    a.label('L_lslow')
    l_reads()
    a('s_waitcnt lgkmcnt(0)')
    a(f'v_cmp_ne_u32 vcc, 1, v{FLG}')
    a('s_cbranch_vccz L_lok')
    a(f's_sub_u32 s{S_CNT}, s{S_CNT}, 1')
    a('s_cbranch_scc0 L_lslow')
    a('s_branch L_lok')
    for t in range(4):
        a.label(f'L_ps{t}')
        a(f'v_cmp_ne_u32 vcc, 3, v{FLG}')
        a(f's_cbranch_vccz L_pr{t}')
        a('s_sleep 1')
        a(f's_sub_u32 s{S_CNT}, s{S_CNT}, 1')
        a(f's_cbranch_scc0 L_pp{t}')
        a(f's_branch L_pg{t}')
        a.label(f'L_pr{t}')
        if t > 0:
            for jq in range(4):
                a(f'ds_read_b128 {vr(44 + 4 * jq, 4)}, v{vAR} offset:{128 * t + 32 * jq}')
            a('s_waitcnt lgkmcnt(0)')
            a('s_nop 7')
            for blk in range(4):
                for j in range(16):
                    a(f'v_mul_f32 v{O_ + 16 * blk + j}, v{O_ + 16 * blk + j}, v{44 + j}')
        a(f's_branch L_pg{t}')

    a.label('L_comp')
    QA = 128
    vMW, vFW, vPW, vFR, vAW, vMR = 6, 7, 8, 10, 11, 9
    NM, LL = 12, 14
    SS, PKS, EX4, AA, AQ, WK = 32, 40, 44, 48, 56, 64
    NA = 8
    a('v_lshlrev_b32 v16, 2, v1')
    a(f'v_add_u32 v16, {FB}, v16')
    a('v_mov_b32 v17, 0')
    a('ds_write_b32 v16, v17')
    a('s_waitcnt lgkmcnt(0)')
    a('s_barrier')
    a(f's_load_dword s{S_TAG}, s[{R_WS}:{R_WS + 1}], {WS_EPOCH}')
    srd_ptr([R_CKV])
    consts()
    a(f's_add_u32 s63, s90, {TS + 15 * 1024}')
    if o.mix:
        a(f's_xor_b32 s63, s63, {MX[1]}')
    a(f's_add_u32 s99, s90, {3 * TS}')
    a('s_mov_b32 m0, s91')
    for j in range(8):
        a(f'v_xor_b32 v{104 + j}, {32 * j}, v2')
    a('v_xor_b32 v21, 0xe0, v2')
    a(f'buffer_load_dwordx4 v[24:27], v21, {S(R_CKV)}, s63 offen nt')
    a('v_mov_b32 v20, 128')
    a('global_load_dword v100, v20, s[86:87] sc1')
    if o.tlb & 1:
        a('v_lshrrev_b32 v20, 1, v4')
        a('v_xor_b32 v22, v20, v4')
        a('v_and_b32 v22, 1, v22')
        a(f'v_lshlrev_b32 v22, {o.mb1}, v22')
        a(f'v_lshl_add_u32 v22, v20, {o.mb2}, v22')
        a('v_xor_b32 v22, s90, v22')
        a('v_lshl_add_u32 v22, v4, 12, v22')
        a('v_bfe_u32 v20, v1, 2, 2')
        a('v_lshl_add_u32 v22, v20, 16, v22')
        ex(0xffff)
        a(f'buffer_load_dword v101, v22, {S(R_CKV)}, 0 offen offset:3968 nt')
        ex(-1)
    if o.tlb & 2:
        a('v_lshlrev_b32 v22, 17, v1')
        a('s_lshl_b32 s94, s3, 15')
        a(f's_add_u32 s94, s94, {WS_OP}')
        ex(0x1ffffffff)
        a(f'buffer_load_dword v102, v22, {S(R_WS)}, s94 offen nt')
        ex(-1)
    a(f's_add_u32 s6, s91, {16384 + 15 * 1024}')
    a('v_add_u32 v28, s6, v2')
    a('s_lshl_b32 s90, s4, 15')
    a('s_lshl_b32 s95, s3, 13')
    a('s_add_u32 s90, s90, s95')
    if WS_QA:
        a(f's_add_u32 s90, s90, {WS_QA}')
    a('s_add_u32 s92, s90, 4096')
    a(f's_lshl_b32 s93, s3, {8 if o.hc else 12}')
    a(f's_lshl_b32 s94, s4, {10 if o.hc else 3}')
    a('s_add_u32 s93, s93, s94')
    a(f's_add_u32 s93, s93, {WS_QAH}')
    a('v_lshrrev_b32 v16, 1, v1')
    a(f'v_lshlrev_b32 v16, {3 if o.hc else 7}, v16')
    a('s_and_b32 s94, s3, 1')
    a('s_lshl_b32 s94, s94, 7')
    a('v_xor_b32 v17, s94, v2')
    a(f's_add_u32 s95, s95, {SB}')
    a('v_add_u32 v17, s95, v17')
    for i in range(4):
        a(f'v_xor_b32 v{96 + i}, {32 * i}, v17')
    a('v_lshrrev_b32 v22, 5, v1')
    a('v_and_b32 v29, 1, v3')
    a('v_lshlrev_b32 v23, 4, v29')
    a('v_lshl_add_u32 v23, v22, 9, v23')
    a('v_bfe_u32 v18, v1, 3, 1')
    a('v_lshl_add_u32 v18, v18, 2, v4')
    a('v_lshl_add_u32 v18, v18, 5, v23')
    a('v_lshl_add_u32 v18, v11, 10, v18')
    a(f'v_add_u32 v18, {SB}, v18')
    a('v_bfe_u32 v20, v1, 2, 2')
    a('v_lshl_add_u32 v21, v4, 2, v20')
    a('v_lshl_add_u32 v19, v21, 10, v23')
    a('v_and_b32 v21, 14, v21')
    a('v_lshl_add_u32 v19, v21, 4, v19')
    a('v_add_u32 v19, s91, v19')
    for i in range(8):
        a(f'v_xor_b32 v{AA + i}, {32 * i}, v19')
        a(f'v_xor_b32 v{AQ + i}, {32 * i}, v18')
    a('v_and_b32 v20, 31, v1')
    a('s_lshl_b32 s95, s3, 2')
    a(f's_add_u32 s95, s95, {L_MAX}')
    a(f'v_lshl_add_u32 v{vMW}, v20, 4, s95')
    a(f'v_lshlrev_b32 v{vPW}, 9, v22')
    a(f'v_lshl_add_u32 v{vPW}, v11, 4, v{vPW}')
    a(f'v_lshl_add_u32 v{vPW}, v29, 3, v{vPW}')
    a('s_lshl_b32 s95, s3, 10')
    a(f's_add_u32 s95, s95, {L_P}')
    a(f'v_add_u32 v{vPW}, s95, v{vPW}')
    a(f'v_lshlrev_b32 v{vMR}, 4, v11')
    a(f'v_add_u32 v{vMR}, {L_MAX}, v{vMR}')
    a(f'v_lshlrev_b32 v{vAW}, 2, v11')
    a(f'v_add_u32 v{vAW}, {L_ALPHA}, v{vAW}')
    a(f'v_mov_b32 v{LL}, 0')
    a(f'v_mov_b32 v{LL + 1}, 0')
    a('v_mov_b32 v0, 1')
    a('v_mov_b32 v5, 2')
    a(f's_mov_b32 s98, {f32bits(float(o.thr))}')
    a('s_mov_b32 s96, 1')
    a('s_sub_u32 s94, s2, 128')
    a('s_lshl_b32 s94, s94, 7')
    a(f's_add_u32 s94, s94, {WS_HU}')
    a(f's_add_u32 s0, s{R_WS}, s94')
    a(f's_addc_u32 s1, s{R_WS + 1}, 0')
    get_tag()
    if o.sprio:
        a(f's_setprio {o.sprio}')
    HR_ = 30

    def q_row(i):
        a(f'buffer_load_dwordx4 {vr(QA + 4 * i, 4)}, v2, {S(R_WS)}, s{90 if i < 4 else 92} offen offset:{1024 * (i % 4)} sc1')
    a(f's_mov_b32 s{S_CNT}, {SPIN}')
    a.label('L_hu')
    a('s_load_dword s94, s[0:1], 0 glc')
    a('s_waitcnt lgkmcnt(0)')
    a(f's_cmp_eq_u32 s94, s{S_TAG}')
    a('s_cbranch_scc1 L_hugo')
    a(f's_sub_u32 s{S_CNT}, s{S_CNT}, 1')
    a('s_cbranch_scc0 L_hu')
    a.label('L_hugo')
    a(f's_mov_b32 s{S_CNT}, {SPIN}')
    a.label('L_qload')
    a(f'buffer_load_dwordx2 {vr(HR_, 2)}, v16, {S(R_WS)}, s93 offen sc1')
    for i in range(8):
        q_row(i)
    a(f'ds_write_b32 v{vFW}, v0 offset:{F_HUS}')
    stamp(8)
    a('s_waitcnt vmcnt(8)')
    a(f'v_bitop3_b32 v21, v{HR_}, v{HR_ + 1}, s{S_TAG} {XOR3}')
    for i in range(8):
        a(f's_waitcnt vmcnt({7 - i})')
        a(f'ds_write_b128 v{96 + i % 4}, {vr(QA + 4 * i, 4)} offset:{1024 * i}')
        xor_chain(19, ([19] if i else []) + list(range(QA + 4 * i, QA + 4 * i + 4)))
    for c in ('quad_perm:[1,0,3,2]', 'quad_perm:[2,3,0,1]', 'row_ror:4', 'row_ror:8'):
        dpp('v_xor_b32', 19, 19, 19, c)
        if c == 'quad_perm:[1,0,3,2]':
            a(f'v_xor_b32 v19, v19, v{HR_}')
    swap_step('v_xor_b32', 19, 20, 16)
    swap_step('v_xor_b32', 19, 20, 32)
    a('v_or_b32 v19, v19, v21')
    a('v_cmp_ne_u32 vcc, 0, v19')
    a('s_cbranch_vccz L_qdone')
    a(f's_sub_u32 s{S_CNT}, s{S_CNT}, 1')
    a('s_cbranch_scc0 L_qload')
    a.label('L_qdone')
    a(f'ds_write_b32 v{vFW}, v0 offset:{F_QST}')
    lds_wait(vFW, F_LAND, 1, 19)
    lds_wait(vFR, F_QST, 1, 19, 0)
    stamp(3)

    def a_read(m, buf):
        a(f'ds_read_b128 {vr(WK + 4 * (m % NA), 4)}, v{AA + m // 2} offset:{256 * (m % 2) + 16384 * buf}')

    def q_read(m):
        for hh in range(2):
            a(f'ds_read_b128 {vr(QA + 64 * hh + 4 * m, 4)}, v{AQ + m // 2} offset:{16384 * hh + 256 * (m % 2)}')

    def s_mfma(st, zero):
        for hh in range(2):
            mfma16(SS + 4 * hh, WK + 4 * (st % NA), QA + 64 * hh + 4 * st, zero and st == 0)
    for st in range(4):
        q_read(st)
        a_read(st, 0)
    for st in range(16):
        a(f's_waitcnt lgkmcnt({3 * min(3, 15 - st)})')
        s_mfma(st, True)
        if st + 4 < 16:
            q_read(st + 4)
            a_read(st + 4, 0)

    def max_xchg(lbl, floor):
        a('v_mov_b32 v18, s96')
        for hh in range(2):
            a(f'v_max3_f32 v{16 + hh}, v{SS + 4 * hh}, v{SS + 4 * hh + 1}, v{SS + 4 * hh + 2}')
            if floor:
                a(f'v_max3_f32 v{16 + hh}, v{16 + hh}, v{SS + 4 * hh + 3}, 0')
            else:
                a(f'v_max_f32 v{16 + hh}, v{16 + hh}, v{SS + 4 * hh + 3}')
        a('v_permlane16_swap_b32 v16, v17')
        a('v_max_f32 v16, v16, v17')
        swap_step('v_max_f32', 16, 17, 32)
        a(f'ds_write_b32 v{vMW}, v16')
        a(f'ds_write_b32 v{vFW}, v18 offset:{F_MSEQ}')
        a(f's_mov_b32 s{S_CNT}, {SPIN * 40}')
        a.label(lbl)
        a(f'ds_read_b32 v18, v{vFR} offset:{F_MSEQ}')
        a(f'ds_read_b128 {vr(WK, 4)}, v{vMR}')
        a(f'ds_read_b128 {vr(WK + 4, 4)}, v{vMR} offset:256')
        a('s_waitcnt lgkmcnt(0)')
        a('v_cmp_gt_u32 vcc, s96, v18')
        a(f's_cbranch_vccz {lbl}go')
        a(f's_sub_u32 s{S_CNT}, s{S_CNT}, 1')
        a(f's_cbranch_scc0 {lbl}')
        a.label(lbl + 'go')
        for hh in range(2):
            a(f'v_max3_f32 v{16 + hh}, v{WK + 4 * hh}, v{WK + 4 * hh + 1}, v{WK + 4 * hh + 2}')
            a(f'v_max_f32 v{16 + hh}, v{16 + hh}, v{WK + 4 * hh + 3}')
            for j in range(4):
                a(f'v_sub_f32 v{SS + 4 * hh + j}, v{SS + 4 * hh + j}, v{16 + hh}')

    def soft(t):
        g = []
        for hh in range(2):
            for j in range(4):
                g.append(f'v_exp_f32 v{EX4 + j}, v{SS + 4 * hh + j}')
            g.append(f'v_cvt_pk_bf16_f32 v{PKS + 2 * hh}, v{EX4}, v{EX4 + 1}')
            g.append(f'v_cvt_pk_bf16_f32 v{PKS + 2 * hh + 1}, v{EX4 + 2}, v{EX4 + 3}')
            g.append(f'ds_write_b64 v{vPW}, {vr(PKS + 2 * hh, 2)} offset:{4096 * t + 256 * hh}')
        return g

    def l_commit():
        for k in range(2):
            for hh in range(2):
                a(f'v_dot2_f32_bf16 v{LL + hh}, v{PKS + 2 * hh + k}, s{S_ONES}, v{LL + hh}')
    max_xchg('L_m0', False)
    for ins in soft(0):
        a(ins)
    a(f'ds_write_b32 v{vFW}, v5 offset:{F_PS}')
    a('ds_write_b128 v28, v[24:27]')
    a(f'ds_write2_b32 v{vAW}, v16, v17 offset0:128 offset1:144')
    for hh in range(2):
        a(f'v_sub_f32 v{NM + hh}, 0, v{16 + hh}')
    l_commit()
    a('s_cmp_lg_u32 s3, 1')
    a('s_cbranch_scc1 L_nom0')
    a('v_permlane16_swap_b32 v16, v17')
    a('s_lshl_b32 s94, s4, 12')
    a('s_lshl_b32 s95, s5, 7')
    a('s_add_u32 s94, s94, s95')
    a(f's_add_u32 s94, s94, {WS_M0}')
    a('v_lshlrev_b32 v18, 2, v1')
    a(f'v_xor_b32 v16, s{S_TAG}, v16')
    ex(0xffffffff)
    a(f'buffer_store_dword v16, v18, {S(R_WS)}, s94 offen sc1')
    ex(-1)
    a.label('L_nom0')
    stamp(4)
    PD = 6
    for t in range(1, 4):
        lbl = f'L_l{t}'
        a(f's_mov_b32 s{S_CNT}, {SPIN * 40}')
        for hh in range(2):
            for j in range(4):
                a(f'v_mov_b32 v{SS + 4 * hh + j}, v{NM + hh}')
        if t == 2:
            a('s_add_u32 s94, s3, 1')
            lds_wait(vFR, F_DONE, 's94', 18)
            for j in range(16):
                if j >= o.w3:
                    a(f's_waitcnt vmcnt({o.w3 - 1})')
                a(f'buffer_load_dwordx4 v{104 + j // 2}, {S(R_CKV)}, s99 offen offset:{(j % 4) * 1024} nt lds')
                if j % 4 == 3 and j < 15:
                    a('s_add_u32 s99, s99, 4096')
                    if o.mix:
                        a(f's_xor_b32 s99, s99, {MX[(j // 4) % 2]}')
                    a('s_add_u32 m0, m0, 4096')
            stamp(1)
            a(f's_mov_b32 s{S_CNT}, {SPIN * 40}')
        if t < 3:
            a.label(lbl)
            a(f'ds_read_b32 v18, v{vFW} offset:{F_LAND}')
            a('s_waitcnt lgkmcnt(0)')
            a(f'v_cmp_ge_u32 vcc, {t}, v18')
            a(f's_cbranch_vccz {lbl}go')
            a('s_sleep 1')
            a(f's_sub_u32 s{S_CNT}, s{S_CNT}, 1')
            a(f's_cbranch_scc0 {lbl}')
            a.label(lbl + 'go')
        else:
            a('s_waitcnt vmcnt(0)')
            stamp(2)
        for st in range(PD):
            a_read(st, BUF[t])
        if t == 3 and o.rpos == 0:
            a('s_lshl_b32 s94, s4, 2')
            a('s_add_u32 s94, s94, 16')
            arrive(0, 30, 31, 's94')
        for st in range(16):
            a(f's_waitcnt lgkmcnt({min(PD - 1, 15 - st)})')
            s_mfma(st, False)
            if st + PD < 16:
                a_read(st + PD, BUF[t])
        for k, ins in enumerate(soft(t)):
            a(ins)
            if k == 3:
                a(f'v_max3_f32 v19, v{SS}, v{SS + 1}, v{SS + 2}')
                a(f'v_max3_f32 v19, v{SS + 3}, v{SS + 4}, v19')
            if k == 10:
                a(f'v_max3_f32 v19, v{SS + 5}, v{SS + 6}, v19')
                a(f'v_max_f32 v19, v{SS + 7}, v19')
                a('v_cmp_lt_f32 vcc, s98, v19')
        a('s_cmp_eq_u64 vcc, 0')
        a('s_cselect_b32 s91, 2, 1')
        a('v_mov_b32 v18, s91')
        a(f'ds_write_b32 v{vFW}, v18 offset:{F_PS + 16 * t}')
        stamp(4 + t)
        if t == 3 and o.rpos == 1:
            a('s_lshl_b32 s94, s4, 2')
            a('s_add_u32 s94, s94, 16')
            arrive(0, 30, 31, 's94')
        a(f's_mov_b32 s{S_CNT}, {SPIN * 40}')
        a.label(f'L_c{t}')
        a(f'ds_read_b32 v18, v{vFR} offset:{F_PS + 16 * t}')
        a('s_waitcnt lgkmcnt(0)')
        a('v_cmp_ne_u32 vcc, 2, v18')
        a(f's_cbranch_vccnz L_cs{t}')
        a.label(f'L_cg{t}')
        l_commit()
    a('s_lshl_b32 s94, s4, 2')
    a('s_add_u32 s94, s94, 16')
    a(f'v_permlane16_swap_b32 v{LL}, v{LL + 1}')
    a(f'v_add_f32 v{LL}, v{LL}, v{LL + 1}')
    swap_step('v_add_f32', LL, LL + 1, 32)
    a(f'ds_write_b32 v{vMW}, v{LL}')
    a(f'ds_write_b32 v{vFW}, v0 offset:{F_LSEQ}')
    if o.rdelay:
        a(f's_sleep {o.rdelay}')
    if o.rpos == 2:
        arrive(0, 30, 31, 's94')
    a('s_cmp_lg_u32 s3, 0')
    a('s_cbranch_scc1 L_norel2')
    a('s_lshl_b32 s94, s4, 14')
    a(f's_add_u32 s94, s94, {WS_OF}')
    a('s_add_u32 s95, s94, 8192')
    a('v_lshlrev_b32 v31, 7, v1')
    a(f'v_mov_b32 v29, s{S_TAG}')
    a('s_waitcnt vmcnt(0)')
    a('v_readfirstlane_b32 s1, v30')
    a('s_and_b32 s1, s1, 31')
    a('s_cmp_lg_u32 s1, 31')
    a('s_cbranch_scc1 L_norel2')
    if o.rwait:
        lds_wait(vFR, F_DONE, 6, 18, 0)
    a(f'buffer_store_dword v29, v31, {S(R_WS)}, s94 offen sc1')
    a(f'buffer_store_dword v29, v31, {S(R_WS)}, s95 offen sc1')
    a.label('L_norel2')
    stamp(9)
    a.label('L_send')
    if o.stamps:
        a('s_memrealtime s[90:91]')
        a('s_cmp_lg_u32 s3, 0')
        a('s_cbranch_scc1 L_end')
        dump_stamps(14, 0)
    a('s_endpgm')
    for t in range(1, 4):
        a.label(f'L_cs{t}')
        a('v_cmp_eq_u32 vcc, 0, v18')
        a(f's_cbranch_vccz L_ex{t}')
        a(f's_sub_u32 s{S_CNT}, s{S_CNT}, 1')
        a(f's_cbranch_scc0 L_c{t}')
        a(f's_branch L_cg{t}')
        a.label(f'L_ex{t}')
        a('s_add_u32 s96, s96, 1')
        max_xchg(f'L_mx{t}', True)
        for hh in range(2):
            a(f'v_exp_f32 v{20 + hh}, -v{16 + hh}')
            a(f'v_sub_f32 v{NM + hh}, v{NM + hh}, v{16 + hh}')
            a(f'v_sub_f32 v{22 + hh}, 0, v{NM + hh}')
            a(f'v_mul_f32 v{LL + hh}, v{LL + hh}, v{20 + hh}')
        a(f'ds_write2_b32 v{vAW}, v20, v21 offset0:{32 * t} offset1:{32 * t + 16}')
        a(f'ds_write2_b32 v{vAW}, v22, v23 offset0:128 offset1:144')
        for ins in soft(t):
            a(ins)
        a('v_mov_b32 v18, 3')
        a(f'ds_write_b32 v{vFW}, v18 offset:{F_PS + 16 * t}')
        lds_wait(vFR, F_PS + 16 * t, 3, 18, 0)
        a(f's_branch L_cg{t}')
    a.label('L_end')
    a('s_endpgm')

    txt = HEADER
    txt += f'; @launch grid=(256,1,1) block=(512,1,1) lds={LDS_TOTAL}\n'
    txt += '.amdgcn_target "amdgcn-amd-amdhsa--gfx950"\n.text\n'
    txt += a.finalize()
    txt += f""".section .rodata,"a"
.p2align 6
.amdhsa_kernel {name}
  .amdhsa_next_free_vgpr 256
  .amdhsa_next_free_sgpr 102
  .amdhsa_accum_offset 256
  .amdhsa_group_segment_fixed_size 0
  .amdhsa_kernarg_size 104
  .amdhsa_user_sgpr_count 2
  .amdhsa_user_sgpr_kernarg_segment_ptr 1
  .amdhsa_system_sgpr_workgroup_id_x 1
.end_amdhsa_kernel
"""
    return txt


if __name__ == '__main__':
    o = Opt()
    for kv in sys.argv[2:]:
        k, v = kv.split('=')
        setattr(o, k, v.replace('+', ' ') if k == 'r64' else int(v))
    open(sys.argv[1], 'w').write(gen(o))
```

```python
import sys
sys.path.insert(0, 'dev')
from asmdsl import Asm
from layout17 import *

NAME = 'sequential_preLN__compressed_kv_cla__glu_gated_geglu__decode'
HEADER = open('cdna_kernels/' + NAME + '.s.ref').read().split('; Override launch')[0]
LDS_TOTAL = 163840
SB = 130048
L_P = 131072
FB = 162816
F_LAND, F_QST, F_MSEQ, F_DONE, F_LSEQ, F_HUS, F_PS = 0, 16, 32, 48, 64, 80, 96
L_MAX = FB + 512
L_ALPHA = L_P + 16384
L_MFIN = L_ALPHA + 512
A_WQ, A_WUK, A_WUV, A_WO, A_X, A_C, A_D = 0, 32768, 98304, 98304, 131072, 132096, 135168
A_WD, A_ACT, A_H = 65536, 138240, 139264

R_X, R_WS, R_CKV, R_WQ, R_WUK, R_WUV, R_WO, R_WG, R_WU, R_WD, R_OUT, R_ACT = [8 + 4 * i for i in range(12)]
SIZES = {R_X: 4096, R_WS: WS_END, R_CKV: 32 << 20, R_WQ: 4 << 20, R_WUK: 4 << 20, R_WUV: 4 << 20, R_WO: 4 << 20,
         R_WG: 512 * 2752, R_WU: 512 * 2752, R_WD: 1376 * 1024, R_OUT: 4096, R_ACT: 43 * 256}
PTR = {R_X: 64, R_CKV: 66, R_WQ: 68, R_WUK: 70, R_WUV: 72, R_WO: 74, R_WG: 78, R_WU: 80, R_WD: 82, R_OUT: 84}
S_TAG, S_ONES, S_LO1, S_HI1, S_CNT, S_MASK = 56, 57, 58, 59, 60, 62
S_XCC, S_LOC = 52, 53
SPIN = 200000
XOR3 = 'bitop3:0x96'


class Opt:
    stamps = 0
    w0 = 1
    n0 = 2
    window = 10
    w3 = 16
    wwin = 8
    sleep = 1
    sleep_long = 6
    stsleep = 3
    thr = 60
    dbgwg = 192
    hold = 0
    dsleep = 1
    ddelay = 0
    gon = 46
    fine = 0
    hupos = 1
    edelay = 0
    efwin = 8
    sw = 1
    efgo = 0
    qdelay = 0
    hprio = 1
    nsamp = 2
    rdelay = 0
    lw = 8
    diag = 0
    rpos = 1
    owin = 4
    ef0 = 2
    il = 0
    mix = 1
    loc = 1
    egate = 0
    lprio = 2
    rwait = 8
    qloc = 0
    hc = 1
    tlb = 0
    arrpos = 2
    earlym = 1
    mb1 = 20
    mb2 = 19
    efn = 2
    pvprio = 0
    sprio = 0
    r64 = 'nt'
    wgo = 1
    esleep = 0
    fdelay = 0
    now = 0
    w1 = 4
    n1 = 0


def vr(a, n):
    return f'v[{a}:{a + n - 1}]' if n > 1 else f'v{a}'


def S(base):
    return f's[{base}:{base + 3}]'


def gen(o):
    a = Asm()
    name = NAME + '_kernel'
    o.st3 = o.stamps == 3

    def ex(mask):
        if mask == -1:
            a('s_mov_b64 exec, -1')
        elif mask <= 64:
            a(f's_mov_b64 exec, {mask}')
        else:
            a(f's_mov_b32 exec_lo, 0x{mask & 0xffffffff:x}')
            a(f's_mov_b32 exec_hi, 0x{mask >> 32:x}')

    def dpp(op, d, s0, s1, ctrl, bank=0xf):
        a(f'{op}_dpp v{d}, v{s0}, v{s1} {ctrl} row_mask:0xf bank_mask:0x{bank:x}')

    def swap_step(op, v, t, which):
        a(f'v_mov_b32 v{t}, v{v}')
        a(f'v_permlane{which}_swap_b32 v{v}, v{t}')
        a(f'{op} v{v}, v{v}, v{t}')

    def fine2(r):
        if o.fine == 2:
            lb = a.uid('f2')
            a('s_cmp_lg_u32 s97, 0')
            a(f's_cbranch_scc1 {lb} ;noflush')
            a(f's_memtime s[{r}:{r + 1}]')
            a.label(lb)

    def f3(r):
        if o.fine == 3:
            a(f's_memtime s[{r}:{r + 1}]')

    def stamp(idx):
        if o.stamps:
            a(f's_memrealtime s[{64 + 2 * idx}:{65 + 2 * idx}]')

    def dump_stamps(n, grp, dbg=None):
        a('s_waitcnt lgkmcnt(0)')
        a('s_mov_b64 exec, -1')
        a('v_mov_b32 v3, 0')
        a('v_writelane_b32 v3, s100, 0')
        for i in range(1, n):
            a(f'v_writelane_b32 v3, s{64 + 2 * i}, {i}')
        a('v_mbcnt_lo_u32_b32 v4, -1, 0')
        a('v_lshlrev_b32 v4, 2, v4')
        a('s_lshl_b32 s90, s2, 7')
        a(f's_add_u32 s90, s90, {WS_STAMP + 64 * grp}')
        ex(0xffff)
        a(f'buffer_store_dword v3, v4, {S(R_WS)}, s90 offen')
        if o.stamps == 2 and dbg:
            lb = a.uid('nodbg')
            a('v_subrev_u32 v3, s100, v3')
            if dbg == 'h':
                a(f's_cmp_lg_u32 s2, {o.dbgwg}')
                a(f's_cbranch_scc1 {lb}')
                ex(0x7fe)
                a('global_store_dword v4, v3, s[86:87] offset:-4')
            else:
                a('s_cmp_lg_u32 s2, 0')
                a(f's_cbranch_scc1 {lb}')
                ex(0x3e8)
                a('v_mbcnt_lo_u32_b32 v4, exec_lo, 0')
                a('v_lshlrev_b32 v4, 2, v4')
                a('global_store_dword v4, v3, s[86:87] offset:40')
            a.label(lb)

    def xor_chain(tmp, regs, last=None):
        ops = [f'v{r}' for r in regs] + ([last] if last else [])
        a(f'v_bitop3_b32 v{tmp}, {ops[0]}, {ops[1]}, {ops[2]} {XOR3}')
        ops = ops[3:]
        while len(ops) >= 2:
            a(f'v_bitop3_b32 v{tmp}, v{tmp}, {ops[0]}, {ops[1]} {XOR3}')
            ops = ops[2:]
        if ops:
            a(f'v_xor_b32 v{tmp}, {ops[0]}, v{tmp}')

    def chk_sentinel(regs, tmp):
        rs = list(regs)
        a(f'v_max3_u32 v{tmp}, v{rs[0]}, v{rs[1]}, v{rs[2]}')
        rs = rs[3:]
        while len(rs) >= 2:
            a(f'v_max3_u32 v{tmp}, v{tmp}, v{rs[0]}, v{rs[1]}')
            rs = rs[2:]
        if rs:
            a(f'v_max_u32 v{tmp}, v{tmp}, v{rs[0]}')
        a(f'v_cmp_eq_u32 vcc, -1, v{tmp}')

    def poll(loads, check, sleep=None, wait='s_waitcnt vmcnt(0)'):
        L, Dn = a.uid('poll'), a.uid('pdone')
        a(f's_mov_b32 s{S_CNT}, {SPIN}')
        a.label(L)
        loads()
        a(wait)
        check()
        a(f's_cbranch_vccz {Dn}')
        sl = o.sleep if sleep is None else sleep
        if sl:
            a(f's_sleep {sl}')
        a(f's_sub_u32 s{S_CNT}, s{S_CNT}, 1')
        a(f's_cbranch_scc0 {L}')
        a.label(Dn)

    def lds_wait(addr, off, want, tmp, sleep=1):
        L, Dn = a.uid('lw'), a.uid('lwd')
        a(f's_mov_b32 s{S_CNT}, {SPIN * 40}')
        a.label(L)
        a(f'ds_read_b32 v{tmp}, v{addr} offset:{off}')
        a('s_waitcnt lgkmcnt(0)')
        a(f'v_cmp_gt_u32 vcc, {want}, v{tmp}')
        a(f's_cbranch_vccz {Dn}')
        if sleep:
            a(f's_sleep {sleep}')
        a(f's_sub_u32 s{S_CNT}, s{S_CNT}, 1')
        a(f's_cbranch_scc0 {L}')
        a.label(Dn)

    def nan_retry(tag, regs, again, go):
        a.label(tag)
        chk_sentinel(regs, 10)
        a(f's_cbranch_vccz {go}')
        a(f's_sub_u32 s{S_CNT}, s{S_CNT}, 1')
        a(f's_cbranch_scc0 {again}')
        a(f's_branch {go}')

    def mfma16(d, x, y, first):
        c = '0' if first else vr(d, 4)
        a(f'v_mfma_f32_16x16x32_bf16 {vr(d, 4)}, {vr(x, 4)}, {vr(y, 4)}, {c}')

    def srd(rs):
        for r in rs:
            a(f's_mov_b32 s{r + 2}, {SIZES[r]}')
            a(f's_mov_b32 s{r + 3}, 0x00020000')

    def srd_ptr(rs):
        for r in rs:
            if r == R_ACT:
                a(f's_add_u32 s{R_ACT}, s{R_WS}, {WS_ACT}')
                a(f's_addc_u32 s{R_ACT + 1}, s{R_WS + 1}, 0')
            else:
                a(f's_mov_b64 s[{r}:{r + 1}], s[{PTR[r]}:{PTR[r] + 1}]')

    def consts():
        a(f's_mov_b32 s{S_ONES}, 0x3f803f80')
        a(f's_mov_b32 s{S_LO1}, 0x3f80')
        a(f's_mov_b32 s{S_HI1}, 0x3f800000')
        a(f's_mov_b32 s{S_MASK}, 0xffff0000')

    def get_tag():
        a('s_waitcnt lgkmcnt(0)')
        a(f's_add_u32 s{S_TAG}, s{S_TAG}, 0x9e3779b9')

    def vF(d):
        a(f'v_bfe_u32 v{d}, v1, 2, 2')
        a(f'v_lshlrev_b32 v{d}, 8, v{d}')
        a(f'v_lshl_add_u32 v{d}, v3, 6, v{d}')
        a(f'v_lshl_add_u32 v{d}, v4, 4, v{d}')

    def tr64_addr(d, t):
        a(f'v_bfe_u32 v{t}, v1, 2, 2')
        a(f'v_lshl_add_u32 v{t}, v3, 3, v{t}')
        a(f'v_lshlrev_b32 v{d}, 6, v{t}')
        a(f'v_lshl_add_u32 v{d}, v4, 3, v{d}')

    def tr_op(dst, addr, off, tau):
        a(f'ds_read_b64_tr_b16 {vr(dst, 2)}, v{addr} offset:{off}')
        a(f'ds_read_b64_tr_b16 {vr(dst + 2, 2)}, v{addr} offset:{off + tau}')

    def red4_read(x, addr):
        ex(0xffffffff)
        for w in range(4):
            a(f'ds_read_b128 {vr(x + 4 * w, 4)}, v{addr} offset:{512 * w}')
        a('s_waitcnt lgkmcnt(2)')
        for i in range(4):
            a(f'v_add_f32 v{x + i}, v{x + i}, v{x + 4 + i}')
        a('s_waitcnt lgkmcnt(0)')
        for i in range(4):
            a(f'v_add_f32 v{x + 8 + i}, v{x + 8 + i}, v{x + 12 + i}')
        for i in range(4):
            a(f'v_add_f32 v{x + i}, v{x + i}, v{x + 8 + i}')

    def frag_addr(dst, t):
        a(f'v_bfe_u32 v{dst}, v1, 1, 2')
        a(f'v_lshlrev_b32 v{dst}, 6, v{dst}')
        a(f'v_bfe_u32 v{t}, v1, 3, 2')
        a(f'v_lshl_add_u32 v{dst}, v{t}, 4, v{dst}')
        a(f'v_and_b32 v{t}, 1, v1')
        a(f'v_lshl_add_u32 v{dst}, v{t}, 3, v{dst}')

    M4 = 0x000f000f000f000f

    def arrive(wave, ret, t0, off, sel='s3'):
        lb = a.uid('arr')
        a(f's_cmp_lg_u32 {sel}, {wave}')
        a(f's_cbranch_scc1 {lb} ;noflush')
        a(f'v_mov_b32 v{t0}, {off}')
        a(f'v_mov_b32 v{ret}, 1')
        ex(1)
        a(f'global_atomic_add v{ret}, v{t0}, v{ret}, s[86:87] sc0 sc1')
        ex(-1)
        a.label(lb)

    def release(wave, ret, t0, last, flag, wait=None):
        lb = a.uid('rel')
        a(f's_cmp_lg_u32 s3, {wave}')
        a(f's_cbranch_scc1 {lb} ;noflush')
        if wait:
            a(wait)
        a(f'v_readfirstlane_b32 s1, v{ret}')
        a(f's_and_b32 s1, s1, {last}')
        a(f's_cmp_lg_u32 s1, {last}')
        a(f's_cbranch_scc1 {lb} ;noflush')
        a('s_mov_b64 exec, -1')
        a(f'v_mbcnt_lo_u32_b32 v{t0}, -1, 0')
        a(f'v_lshlrev_b32 v{t0}, 2, v{t0}')
        a(f'v_mov_b32 v{ret}, s{S_TAG}')
        if isinstance(flag, int):
            a(f's_mov_b32 s1, {flag}')
            flag = 's1'
        ex(0xffffffff)
        a(f'buffer_store_dword v{ret}, v{t0}, {S(R_WS)}, {flag} offen sc1')
        ex(-1)
        a.label(lb)

    def flag_wait(flag, t0, sleep):
        if isinstance(flag, int):
            a(f's_mov_b32 s1, {flag}')
            flag = 's1'
        ex(1)
        poll(lambda: a(f'buffer_load_dword v{t0}, off, {S(R_WS)}, {flag} sc1'),
             lambda: a(f'v_cmp_ne_u32 vcc, s{S_TAG}, v{t0}'), sleep)
        ex(-1)

    a(f'.globl {name}\n.p2align 8\n.type {name},@function')
    a.label(name)
    if o.stamps or o.diag:
        a('s_memrealtime s[100:101]')
    a('s_cmp_ge_u32 s2, 256')
    a('s_cbranch_scc1 L_end')
    a('s_load_dwordx16 s[64:79], s[0:1], 0')
    a('s_load_dwordx8 s[80:87], s[0:1], 64')
    a(f's_load_dwordx2 s[{R_WS}:{R_WS + 1}], s[0:1], 96')
    a('s_cmp_lt_u32 s2, 128')
    a('s_cbranch_scc1 L_nopf')
    a('s_getpc_b64 s[94:95]')
    a.label('L_pc')
    a('v_lshlrev_b32 v1, 7, v0')
    a(f'v_cmp_gt_u32 vcc, L_end-L_pc, v1')
    a('s_and_saveexec_b64 s[96:97], vcc')
    a('s_cbranch_execz L_pfdone')
    a('global_load_dword v127, v1, s[94:95]')
    a.label('L_pfdone')
    a('s_mov_b64 exec, s[96:97]')
    a.label('L_nopf')
    a('v_and_b32 v1, 63, v0')
    a('v_lshrrev_b32 v2, 6, v0')
    a('v_readfirstlane_b32 s3, v2')
    a('v_lshlrev_b32 v2, 4, v1')
    a('v_lshrrev_b32 v3, 4, v1')
    a('v_and_b32 v4, 3, v1')
    a('v_and_b32 v11, 15, v1')
    srd([R_WS, R_X])
    a('s_cmp_ge_u32 s2, 128')
    a('s_cbranch_scc1 L_att')

    srd([R_WQ, R_WUK])
    a('s_and_b32 s4, s2, 7')
    a('s_lshl_b32 s4, s4, 2')
    a('s_bfe_u32 s5, s2, 0x20003')
    a('s_add_u32 s4, s4, s5')
    a('s_lshr_b32 s5, s2, 5')
    a('s_lshl_b32 s6, s4, 8')
    a('v_lshlrev_b32 v5, 1, v3')
    a('v_xor_b32 v5, v5, v11')
    a('v_lshlrev_b32 v5, 4, v5')
    a('v_lshl_add_u32 v6, v3, 13, v5')
    a('v_xor_b32 v7, 0x80, v6')
    a('v_xor_b32 v8, v3, v11')
    a('v_lshlrev_b32 v8, 4, v8')
    a('v_lshl_add_u32 v8, v3, 13, v8')
    a('s_lshl_b32 s90, s5, 20')
    a('s_lshl_b32 s91, s3, 17')
    a('s_add_u32 s90, s90, s91')
    a('s_add_u32 s90, s90, s6')
    a('s_lshl_b32 s91, s3, 12')
    a('s_mov_b32 m0, s91')
    a('v_bfe_u32 v10, v1, 2, 2')
    a('v_lshlrev_b32 v10, 6, v10')
    a('v_lshl_add_u32 v10, v4, 10, v10')
    a('v_lshl_add_u32 v10, v3, 4, v10')
    a('s_lshl_b32 s93, s5, 8')
    XS, XO = 12, 28
    a('s_waitcnt lgkmcnt(0)')
    srd_ptr([R_X, R_WQ, R_WUK])
    a('s_cmp_lg_u32 s3, 0')
    a('s_cbranch_scc1 L_nox')
    for i in range(4):
        a(f'buffer_load_dwordx4 {vr(XS + 4 * i, 4)}, v10, {S(R_X)}, 0 offen offset:{256 * i}')
    a(f'buffer_load_dwordx4 {vr(XO, 4)}, v10, {S(R_X)}, s93 offen')
    a.label('L_nox')
    if o.qloc:
        a('s_lshl_b32 s92, s4, 13')
        a('s_lshl_b32 s93, s3, 10')
        a('s_add_u32 s92, s92, s93')
        a(f's_add_u32 s92, s92, {WS_QPL}')
        a(f'buffer_load_dwordx4 v[68:71], v2, {S(R_WS)}, s92 offen sc1')
    for i in range(4):
        a(f's_add_u32 s92, s90, {i * 32768}')
        a(f'buffer_load_dwordx4 v{6 + i // 2}, {S(R_WQ)}, s92 offen nt lds')
        if i < 3:
            a('s_add_u32 m0, m0, 1024')
    a('s_barrier')
    a('s_cmp_lt_u32 s3, 4')
    a('s_cbranch_scc1 L_nouk')
    a('s_lshl_b32 s91, s3, 17')
    a('s_add_u32 s90, s90, s91')
    a(f's_sub_u32 s90, s90, {8 << 17}')
    a('s_lshl_b32 s91, s3, 13')
    a(f's_add_u32 m0, s91, {A_WUK - 32768}')
    for i in range(8):
        if i % 2 == 0:
            a(f'v_xor_b32 v9, {64 * (i // 2)}, v8')
        a(f's_add_u32 s92, s90, {i * 32768}')
        a(f'buffer_load_dwordx4 v9, {S(R_WUK)}, s92 offen nt lds')
        if i < 7:
            a('s_add_u32 m0, m0, 1024')
    a.label('L_nouk')
    a(f's_load_dword s{S_TAG}, s[{R_WS}:{R_WS + 1}], {WS_EPOCH}')
    srd_ptr([R_WUV, R_WO, R_WG, R_WU, R_WD, R_OUT])
    consts()
    stamp(1)
    a('s_cmp_lg_u32 s3, 0')
    a('s_cbranch_scc1 L_noln')
    a(f's_waitcnt vmcnt({5 + o.qloc})')
    for i in range(16):
        a(f'v_dot2_f32_bf16 v34, v{XS + i}, s{S_ONES}, {"0" if i == 0 else "v34"}')
        a(f'v_dot2_f32_bf16 v35, v{XS + i}, v{XS + i}, {"0" if i == 0 else "v35"}')
    for c in ('row_ror:4', 'row_ror:8'):
        dpp('v_add_f32', 34, 34, 34, c)
        dpp('v_add_f32', 35, 35, 35, c)
    for wh in (16, 32):
        a('v_mov_b32 v12, v34')
        a('v_mov_b32 v13, v35')
        a(f'v_permlane{wh}_swap_b32 v34, v12')
        a(f'v_permlane{wh}_swap_b32 v35, v13')
        a('v_add_f32 v34, v34, v12')
        a('v_add_f32 v35, v35, v13')
    a('v_mul_f32 v34, 0x3b000000, v34')
    a('v_mul_f32 v35, 0x3b000000, v35')
    a('v_fma_f32 v35, -v34, v34, v35')
    a('v_max_f32 v35, 0, v35')
    a('v_add_f32 v35, 0x3727c5ac, v35')
    a('v_rsq_f32 v35, v35')
    a(f'v_mul_f32 v35, {QSCALE_BITS}, v35')
    a('v_mul_f32 v34, v34, v35')
    a(f's_waitcnt vmcnt({4 + o.qloc})')
    for i in range(4):
        a(f'v_lshlrev_b32 v12, 16, v{XO + i}')
        a(f'v_and_b32 v13, s{S_MASK}, v{XO + i}')
        a('v_fma_f32 v12, v12, v35, -v34')
        a('v_fma_f32 v13, v13, v35, -v34')
        a(f'v_cvt_pk_bf16_f32 v{XO + i}, v12, v13')
    a(f'v_add_u32 v12, {A_X}, v2')
    a(f'ds_write_b128 v12, {vr(XO, 4)}')
    a.label('L_noln')
    srd([R_WUV, R_WO, R_WG, R_WU, R_WD, R_OUT])
    for i in range(4):
        a(f'v_mov_b32 v{36 + i}, -1')
    a('s_lshl_b32 s92, s2, 3')
    a('s_add_u32 s92, s92, s3')
    a('s_mul_i32 s92, s92, 352')
    a(f's_add_u32 s92, s92, {WS_CLEAN}')
    ex(0x3fffff)
    a(f'buffer_store_dwordx4 v[36:39], v2, {S(R_WS)}, s92 offen sc1')
    ex(-1)
    a('v_bfe_u32 v40, v1, 2, 3')
    a('v_lshlrev_b32 v40, 1, v40')
    a('s_lshl_b32 s92, s3, 1')
    a('s_and_b32 s92, s92, 12')
    a(f'v_bitop3_b32 v40, v40, v4, s92 {XOR3}')
    a('v_lshlrev_b32 v40, 4, v40')
    a('v_bfe_u32 v41, v1, 2, 2')
    a('v_lshl_add_u32 v41, v3, 3, v41')
    a('v_lshl_add_u32 v40, v41, 8, v40')
    a('s_and_b32 s92, s3, 1')
    a('s_lshl_b32 s92, s92, 3')
    a('v_add_u32 v40, s92, v40')
    a('v_lshlrev_b32 v41, 8, v3')
    a('v_lshl_add_u32 v41, v4, 4, v41')
    a(f'v_add_u32 v41, {A_X}, v41')
    a('v_lshlrev_b32 v42, 6, v3')
    a('v_lshl_add_u32 v42, v4, 4, v42')
    a('s_lshl_b32 s96, s4, 13')
    if WS_QP:
        a(f's_add_u32 s96, s96, {WS_QP}')
    a('s_lshl_b32 s92, s5, 11')
    a('s_add_u32 s97, s96, s92')
    a('s_lshl_b32 s92, s3, 8')
    a('s_add_u32 s97, s97, s92')
    get_tag()
    stamp(2)
    if o.loc:
        a('s_getreg_b32 s1, hwreg(HW_REG_XCC_ID, 0, 4)')
        a(f's_xor_b32 s{S_XCC}, s1, s{S_TAG}')
    a(f's_add_u32 s98, s97, {WS_QPL - WS_QP}')
    a(f's_add_u32 s99, s96, {(WS_QPL - WS_QP) if o.qloc else 0}')
    a('v_bfe_u32 v43, v1, 2, 2')
    a('v_lshlrev_b32 v43, 11, v43')
    a('v_lshl_add_u32 v43, v3, 6, v43')
    a('v_lshl_add_u32 v43, v4, 4, v43')
    a('s_cmp_lt_u32 s3, 4')
    a('s_cbranch_scc1 L_wq_lo')
    a('s_waitcnt vmcnt(9)')
    a('s_branch L_wq_hi')
    a.label('L_wq_lo')
    a('s_waitcnt vmcnt(1)')
    a.label('L_wq_hi')
    a('s_barrier')
    W1, XF, AC = 12, 44, 60
    for t in range(4):
        tr_op(W1 + 4 * t, 40, A_WQ + 8192 * t, 1024)
        a(f'ds_read_b128 {vr(XF + 4 * t, 4)}, v41 offset:{64 * t}')
    for t in range(4):
        a(f's_waitcnt lgkmcnt({3 * (3 - t)})')
        mfma16(AC, W1 + 4 * t, XF + 4 * t, t == 0)
    a(f'v_cvt_pk_bf16_f32 v64, v{AC}, v{AC + 1}')
    a(f'v_cvt_pk_bf16_f32 v65, v{AC + 2}, v{AC + 3}')
    a(f'v_bitop3_b32 v66, v64, v65, s{S_TAG} {XOR3}')
    ex(M4)
    if o.qloc:
        a(f'buffer_store_dwordx4 v[64:67], v42, {S(R_WS)}, s98 offen')
    a(f'buffer_store_dwordx4 v[64:67], v42, {S(R_WS)}, s97 offen sc1')
    ex(-1)
    stamp(3)
    UK, Q, AC2, FR = 68, 100, 132, 140

    def a2_loads():
        for n in range(8):
            a(f'buffer_load_dwordx4 {vr(Q + 4 * n, 4)}, v43, {S(R_WS)}, s99 offen offset:{256 * n} sc1')
    a(f's_cmp_lt_u32 s5, {o.nsamp}')
    a('s_cselect_b32 s98, s3, 99')
    a('v_lshlrev_b32 v30, 7, v1')
    a(f'v_mov_b32 v31, s{S_TAG}')
    AW = 3 if o.arrpos == 2 else 7
    a('s_cmp_lt_u32 s3, 4')
    a('s_cbranch_scc1 L_a2')
    a('s_waitcnt vmcnt(0)')
    if o.arrpos == 0:
        arrive(7, 22, 23, 0, 's98')
    a('s_barrier')
    if o.arrpos == 1:
        arrive(7, 22, 23, 0, 's98')
    a('s_branch L_a_done')
    a.label('L_a2')
    a(f's_waitcnt vmcnt({o.qloc})')
    if o.qdelay:
        a(f's_sleep {o.qdelay}')
    a2_loads()
    a('v_lshrrev_b32 v12, 2, v11')
    a('v_lshl_add_u32 v12, v12, 3, v4')
    a('v_lshlrev_b32 v12, 8, v12')
    a('v_xor_b32 v13, v3, v11')
    a('v_lshl_add_u32 v12, v13, 4, v12')
    a('s_lshl_b32 s92, s3, 13')
    a(f's_add_u32 s92, s92, {A_WUK}')
    a('v_add_u32 v12, s92, v12')
    a('s_barrier')
    for t in range(4):
        a(f'v_xor_b32 v13, {64 * t}, v12')
        for sub in range(2):
            a(f'ds_read_b128 {vr(UK + 16 * sub + 4 * t, 4)}, v13 offset:{1024 * sub}')
    a('v_lshlrev_b32 v15, 8, v4')
    a('v_lshl_add_u32 v15, v3, 4, v15')
    a('s_lshl_b32 s91, s3, 6')
    a(f's_add_u32 s91, s91, {A_C}')
    a('v_add_u32 v15, s91, v15')
    a(f'v_add_u32 v16, {A_C}, v2')
    a('v_lshlrev_b32 v20, 15, v3')
    a('v_lshl_add_u32 v20, v11, 4, v20')
    a(f'v_lshlrev_b32 v21, {10 if o.hc else 3}, v3')
    a('s_lshl_b32 s91, s4, 10')
    a('s_lshl_b32 s92, s5, 8')
    a('s_add_u32 s92, s92, s91')
    a(f's_lshr_b32 s93, s92, {5 if o.hc else 1}')
    if WS_QA:
        a(f's_add_u32 s92, s92, {WS_QA}')
    a(f's_add_u32 s93, s93, {WS_QAH}')
    a(f's_mov_b32 s{S_CNT}, {SPIN}')
    a('s_branch L_a2chk')
    a.label('L_a2poll')
    if o.qloc:
        a(f's_add_u32 s99, s96, {WS_QPL - WS_QP}')
        a(f's_and_b32 s91, s{S_CNT}, 7')
        a('s_cselect_b32 s99, s99, s96')
    a2_loads()
    a.label('L_a2chk')
    for n in range(8):
        a(f's_waitcnt vmcnt({7 - n})')
        a(f'v_bitop3_b32 v{Q + 4 * n + 2}, v{Q + 4 * n}, v{Q + 4 * n + 1}, v{Q + 4 * n + 2} {XOR3}')
    a(f'v_max3_u32 v17, v{Q + 2}, v{Q + 6}, v{Q + 10}')
    a(f'v_min3_u32 v18, v{Q + 2}, v{Q + 6}, v{Q + 10}')
    a(f'v_max3_u32 v17, v17, v{Q + 14}, v{Q + 18}')
    a(f'v_min3_u32 v18, v18, v{Q + 14}, v{Q + 18}')
    a(f'v_max3_u32 v17, v17, v{Q + 22}, v{Q + 26}')
    a(f'v_min3_u32 v18, v18, v{Q + 22}, v{Q + 26}')
    a(f'v_max3_u32 v17, v17, v{Q + 30}, s{S_TAG}')
    a(f'v_min3_u32 v18, v18, v{Q + 30}, s{S_TAG}')
    a('v_cmp_ne_u32 vcc, v17, v18')
    a('s_cbranch_vccz L_a2go')
    a(f's_sub_u32 s{S_CNT}, s{S_CNT}, 1')
    a('s_cbranch_scc0 L_a2poll')
    a.label('L_a2go')
    if o.st3:
        a('s_memrealtime s[72:73]')
    stamp(4)
    if o.arrpos == 2:
        arrive(3, 22, 23, 0, 's98')
    a('s_waitcnt lgkmcnt(0)')
    for n in range(8):
        for sub in range(2):
            d = AC2 + 4 * sub
            c = '0' if n == 0 else vr(d, 4)
            a(f'v_mfma_f32_16x16x16_bf16 {vr(d, 4)}, {vr(UK + 16 * sub + 2 * n, 2)}, {vr(Q + 4 * n, 2)}, {c}')
    for c in ('row_ror:4', 'row_ror:8'):
        for i in range(8):
            dpp('v_add_f32', AC2 + i, AC2 + i, AC2 + i, c)
    for i in range(4):
        a(f'v_cvt_pk_bf16_f32 v{FR + i}, v{AC2 + 2 * i}, v{AC2 + 2 * i + 1}')
    ex(M4)
    a(f'ds_write_b128 v15, {vr(FR, 4)}')
    ex(-1)
    a('s_waitcnt lgkmcnt(0)')
    a.label('L_a_done')
    a('s_barrier')
    a('s_cmp_lg_u32 s3, 0')
    a('s_cbranch_scc1 L_a_pub')
    a(f'ds_read_b128 {vr(FR, 4)}, v16')
    a('s_waitcnt lgkmcnt(0)')
    a(f'buffer_store_dwordx4 {vr(FR, 4)}, v20, {S(R_WS)}, s92 offen sc1')
    xor_chain(18, range(FR, FR + 4))
    for c in ('quad_perm:[1,0,3,2]', 'quad_perm:[2,3,0,1]', 'row_ror:4', 'row_ror:8'):
        dpp('v_xor_b32', 18, 18, 18, c)
    a(f'v_xor_b32 v19, s{S_TAG}, v18')
    ex(0x0001000100010001)
    a(f'buffer_store_dwordx2 v[18:19], v21, {S(R_WS)}, s93 offen sc1')
    ex(-1)
    stamp(5)
    a.label('L_a_pub')
    a(f's_cmp_lg_u32 s98, {AW}')
    a('s_cbranch_scc1 L_norel')
    a('s_waitcnt vmcnt(0)')
    a('v_readfirstlane_b32 s1, v22')
    a(f's_and_b32 s1, s1, {32 * o.nsamp - 1}')
    a(f's_cmp_lg_u32 s1, {32 * o.nsamp - 1}')
    a('s_cbranch_scc1 L_norel')
    a(f's_mov_b32 s1, {WS_HU}')
    a(f'buffer_store_dword v31, v30, {S(R_WS)}, s1 offen sc1')
    a(f's_mov_b32 s1, {WS_HU + 8192}')
    a(f'buffer_store_dword v31, v30, {S(R_WS)}, s1 offen sc1')
    a.label('L_norel')
    if o.loc:
        a('s_cmp_lg_u32 s3, 5')
        a('s_cbranch_scc1 L_noxt')
        a('s_and_b32 s92, s2, 7')
        a('s_lshl_b32 s92, s92, 11')
        a('s_lshr_b32 s93, s2, 3')
        a('s_lshl_b32 s93, s93, 7')
        a('s_add_u32 s92, s92, s93')
        a(f's_add_u32 s92, s92, {WS_XT}')
        a(f'v_mov_b32 v9, s{S_XCC}')
        ex(1)
        a(f'buffer_store_dword v9, off, {S(R_WS)}, s92 sc1')
        ex(-1)
        a.label('L_noxt')
    a('s_and_b32 s7, s2, 7')
    a('s_lshr_b32 s63, s2, 3')
    a('v_lshl_add_u32 v6, v3, 18, v5')
    a('v_xor_b32 v7, 0x80, v6')
    a('s_lshl_b32 s0, s5, 20')
    a('s_add_u32 s0, s0, s6')
    a('s_mov_b32 s61, 0')
    D, WL, CA, OPC, OPD = 16, 32, 40, 64, 96
    a('s_and_b32 s94, s3, 3')
    a('s_lshr_b32 s95, s3, 2')
    a('v_bfe_u32 v56, v1, 2, 3')
    a('v_lshlrev_b32 v56, 1, v56')
    a('s_lshl_b32 s92, s94, 2')
    a(f'v_bitop3_b32 v56, v56, v4, s92 {XOR3}')
    a('v_lshlrev_b32 v56, 4, v56')
    a('v_bfe_u32 v58, v1, 2, 2')
    a('v_lshl_add_u32 v58, v3, 3, v58')
    a('v_lshl_add_u32 v56, v58, 8, v56')
    a(f'v_add_u32 v56, {A_WUV}, v56')
    tr64_addr(57, 58)
    a('s_lshl_b32 s91, s94, 13')
    a(f's_add_u32 s91, s91, {A_WO}')
    a('v_add_u32 v57, s91, v57')
    a('v_and_b32 v5, 31, v1')
    a('v_lshlrev_b32 v5, 11, v5')
    a('s_lshl_b32 s90, s94, 16')
    a('s_lshl_b32 s91, s5, 9')
    a('s_add_u32 s90, s90, s91')
    a('s_lshl_b32 s91, s4, 4')
    a('s_add_u32 s90, s90, s91')
    a(f's_add_u32 s90, s90, {WS_REC}')
    a('s_lshl_b32 s96, s4, 2')
    a('s_add_u32 s96, s96, s5')
    a('s_lshl_b32 s96, s96, 2')
    a('s_add_u32 s96, s96, s94')
    a('s_lshl_b32 s91, s96, 13')
    a('s_lshl_b32 s93, s95, 12')
    a('s_add_u32 s91, s91, s93')
    a(f's_add_u32 s91, s91, {WS_OP}')
    a('s_lshl_b32 s92, s95, 4')
    a('v_lshlrev_b32 v48, 4, v11')
    a('v_lshl_add_u32 v48, v3, 1, v48')
    a('s_mul_i32 s93, s3, 272')
    a(f's_add_u32 s93, s93, {A_C}')
    a('v_add_u32 v48, s93, v48')
    a('v_and_b32 v49, 7, v1')
    a('v_mul_u32_u24 v49, 272, v49')
    a('v_lshl_add_u32 v49, v3, 4, v49')
    a(f'v_add_u32 v49, {A_C}, v49')
    a('v_lshlrev_b32 v50, 6, v3')
    a('v_lshl_add_u32 v50, v4, 4, v50')
    a('s_lshl_b32 s98, s4, 12')
    a('s_lshl_b32 s93, s94, 10')
    a('s_add_u32 s98, s98, s93')
    a('s_lshl_b32 s93, s5, 8')
    a('s_add_u32 s98, s98, s93')
    a(f's_add_u32 s98, s98, {WS_CP}')
    a('v_add_u32 v51, s92, v3')
    a('v_lshlrev_b32 v51, 2, v51')
    a('v_cmp_eq_u32 s[88:89], s95, v3')
    vF(128)
    a('v_lshlrev_b32 v129, 7, v4')
    a('v_lshl_add_u32 v129, v3, 4, v129')
    a('s_lshl_b32 s93, s94, 9')
    a(f's_add_u32 s93, s93, {A_D}')
    a('v_add_u32 v129, s93, v129')
    a('v_bfe_u32 v130, v1, 1, 2')
    a('v_lshlrev_b32 v130, 7, v130')
    a('v_bfe_u32 v9, v1, 3, 2')
    a('v_lshl_add_u32 v130, v9, 5, v130')
    a('v_and_b32 v9, 1, v1')
    a('v_lshl_add_u32 v130, v9, 4, v130')
    a(f'v_add_u32 v130, {A_D}, v130')
    a('v_lshlrev_b32 v131, 3, v1')
    a('s_lshl_b32 s6, s7, 14')
    a('s_lshl_b32 s93, s94, 12')
    a('s_add_u32 s6, s6, s93')
    a(f's_add_u32 s6, s6, {WS_CP}')
    a('s_lshl_b32 s99, s7, 12')
    a('s_lshl_b32 s93, s63, 8')
    a('s_add_u32 s99, s99, s93')
    a(f's_add_u32 s99, s99, {WS_HP}')
    a('v_lshrrev_b32 v8, 2, v1')
    a('s_cmp_lt_u32 s3, 4')
    a('s_cbranch_scc1 L_wlo')
    a('s_mov_b32 s61, 0')
    tr64_addr(58, 59)

    def go_wait(extra=0):
        a('s_lshl_b32 s96, s2, 7')
        a(f's_add_u32 s96, s96, {WS_GO}')
        ex(1)
        poll(lambda: a(f'buffer_load_dword v9, off, {S(R_WS)}, s96 sc1'), lambda: a(f'v_cmp_ne_u32 vcc, s{S_TAG}, v9'), 3)
        ex(-1)
    a('s_cmp_lt_u32 s2, 48')
    a('s_cbranch_scc1 L_E1')
    a.label('L_wnone')
    a('s_barrier')
    a('s_branch L_cstart')
    OP = 64
    H, XR, HA, X4, EA = 16, 128, 140, 148, 164
    EW, ES, ER, ESR, EST, EG, ECS = 180, 181, 182, 183, 184, 185, 186
    a.label('L_E1')
    a('s_mul_i32 s93, s7, 6')
    a('s_add_u32 s63, s63, s93')
    a('s_cmp_ge_u32 s63, 43')
    a('s_cbranch_scc1 L_wnone')
    a('s_mov_b32 s61, 1')
    if o.efgo == 1:
        go_wait()
    a('v_mul_u32_u24 v8, 2752, v8')
    a('v_lshl_add_u32 v8, v4, 4, v8')
    a(f's_mul_i32 s99, s94, {128 * 2752}')
    a('s_lshl_b32 s93, s63, 6')
    a('s_add_u32 s99, s99, s93')
    a('s_lshl_b32 s6, s94, 14')
    a('s_mov_b32 m0, s6')
    a('v_bfe_u32 v9, v1, 2, 2')
    a('v_lshlrev_b32 v9, 6, v9')
    a('v_lshl_add_u32 v9, v4, 10, v9')
    a('v_lshl_add_u32 v9, v3, 4, v9')
    a('s_lshl_b32 s93, s94, 8')
    a(f'buffer_load_dwordx4 {vr(XR, 4)}, v9, {S(R_X)}, s93 offen')
    for mat in range(2):
        for i in range(8):
            a(f's_add_u32 s93, s99, {16 * i * 2752}')
            a(f's_waitcnt vmcnt({(o.ef0 if 8 * mat + i < o.efn else o.efwin) - 1})')
            a(f'buffer_load_dwordx4 v8, {S(R_WG if mat == 0 else R_WU)}, s93 offen {o.r64} lds')
            a('s_add_u32 m0, m0, 1024')
    OPW, FA = 192, 64
    EAR, EPS, EHW, GL, GH, GO_ = 188, 189, 190, 191, 224, 225
    a('v_and_b32 v8, 0xff, v6')
    a('v_lshl_add_u32 v8, v3, 10, v8')
    a('v_xor_b32 v9, 0x80, v8')
    a('s_lshl_b32 s99, s63, 15')
    a('s_lshl_b32 s93, s94, 8')
    a('s_add_u32 s99, s99, s93')
    a('s_lshl_b32 s98, s94, 13')
    a(f's_add_u32 s98, s98, {A_WD}')
    a('s_mov_b32 m0, s98')
    for i in range(8):
        a(f's_add_u32 s93, s99, {4096 * i}')
        a(f's_waitcnt vmcnt({o.efwin - 1})')
        a(f'buffer_load_dwordx4 v{8 + (i // 2) % 2}, {S(R_WD)}, s93 offen nt lds')
        a('s_add_u32 m0, m0, 1024')
    a('v_bfe_u32 v57, v1, 2, 3')
    a('v_lshlrev_b32 v57, 1, v57')
    a('v_xor_b32 v57, v57, v4')
    a('v_lshlrev_b32 v57, 4, v57')
    a('v_lshl_add_u32 v57, v59, 8, v57')
    a('v_add_u32 v57, s98, v57')
    a(f'v_lshlrev_b32 v{EAR}, 6, v4')
    a(f'v_lshl_add_u32 v{EAR}, v3, 4, v{EAR}')
    a(f'v_add_u32 v{EAR}, {A_ACT}, v{EAR}')
    a('v_bfe_u32 v9, v1, 1, 1')
    a(f'v_mul_u32_u24 v{EPS}, 6144, v9')
    a('v_and_b32 v9, 1, v1')
    a(f'v_lshl_add_u32 v{EPS}, v9, 6, v{EPS}')
    a(f'v_lshl_add_u32 v{EPS}, v3, 4, v{EPS}')
    a('s_lshl_b32 s93, s94, 10')
    a(f's_add_u32 s93, s93, {A_H}')
    a(f'v_add_u32 v{EHW}, s93, v2')
    a('v_cmp_lt_u32 vcc, 23, v1')
    a('v_mov_b32 v9, 0x7fffff00')
    a(f'v_cndmask_b32 v{GL}, v2, v9, vcc')
    a('s_and_b32 s93, s63, 1')
    a('s_lshl_b32 s93, s93, 1')
    a('v_bfe_u32 v9, v1, 2, 1')
    a('v_add_u32 v9, s93, v9')
    a(f'v_lshlrev_b32 v{GH}, 8, v4')
    a(f'v_lshl_add_u32 v{GH}, v9, 4, v{GH}')
    a('s_lshr_b32 s93, s63, 3')
    a('s_lshl_b32 s93, s93, 10')
    a('s_bfe_u32 s96, s63, 0x20001')
    a('s_lshl_b32 s96, s96, 6')
    a('s_add_u32 s93, s93, s96')
    a(f's_add_u32 s93, s93, {A_H}')
    a(f'v_add_u32 v{GH}, s93, v{GH}')
    a(f'v_lshlrev_b32 v{GO_}, 10, v9')
    a(f'v_lshl_add_u32 v{GO_}, v4, 4, v{GO_}')
    a(f'v_lshl_add_u32 v{GO_}, v3, 1, v{GO_}')
    a('v_add_u32 v58, s6, v58')
    a(f'v_lshlrev_b32 v{EW}, 8, v4')
    a(f'v_lshl_add_u32 v{EW}, v3, 4, v{EW}')
    a(f'v_add_u32 v{EW}, s6, v{EW}')
    a(f'v_lshlrev_b32 v{ES}, 3, v4')
    a(f'v_lshl_add_u32 v{ES}, v3, 2, v{ES}')
    a(f'v_add_u32 v{ES}, s6, v{ES}')
    a('s_and_b32 s93, s3, 1')
    a('s_lshl_b32 s93, s93, 6')
    a(f'v_add_u32 v{EST}, s93, v1')
    a(f'v_lshrrev_b32 v{ESR}, 5, v{EST}')
    a(f'v_and_b32 v{ER}, 31, v{EST}')
    a(f'v_lshlrev_b32 v{ER}, 2, v{ER}')
    a(f'v_lshl_add_u32 v{ER}, v{ESR}, 8, v{ER}')
    a(f'v_lshlrev_b32 v{ESR}, 3, v{ESR}')
    a(f'v_lshlrev_b32 v{EST}, 1, v{EST}')
    a(f'v_add_u32 v{EST}, {A_ACT}, v{EST}')
    vF(EG)
    for i in range(4):
        a(f'v_mov_b32 v{X4 + i}, s{S_ONES}')
    a('v_mov_b32 v226, v57')
    a('v_mov_b32 v227, v58')

    def e_lds_write():
        ex(M4)
        for k in range(4):
            a(f'ds_write_b128 v{EW}, {vr(EA + 4 * k, 4)} offset:{64 * k}')
        ex(-1)
    a('s_branch L_wnone')
    a.label('L_wlo')
    a('s_lshl_b32 s93, s3, 15')
    a('s_add_u32 s0, s0, s93')
    a('s_lshl_b32 s93, s3, 13')
    a(f's_add_u32 m0, s93, {A_WUV}')
    a('v_lshlrev_b32 v8, 10, v8')
    a('v_lshl_add_u32 v8, v4, 4, v8')
    a('s_lshl_b32 s97, s7, 19')
    a('s_lshl_b32 s93, s3, 17')
    a('s_add_u32 s97, s97, s93')
    a('s_lshl_b32 s93, s63, 6')
    a('s_add_u32 s97, s97, s93')
    assert o.wgo
    for i in range(8):
        a(f's_add_u32 s93, s97, {i * 16384}')
        if i >= o.owin:
            a(f's_waitcnt vmcnt({o.owin - 1})')
        a(f'buffer_load_dwordx4 v8, {S(R_WO)}, s93 offen {o.r64} lds')
        if i < 7:
            a('s_add_u32 m0, m0, 1024')
    a(f's_sub_u32 m0, m0, {A_WO - A_WUV + 7168}')
    if o.wgo:
        if o.egate == 0:
            a('s_waitcnt vmcnt(0)')
            a('s_cmp_lt_u32 s2, 48')
            a('s_cbranch_scc1 L_nogw')
        go_wait()
        a.label('L_nogw')
        for t in range(4):
            for k in range(2):
                tr_op(OPD + 8 * t + 4 * k, 57, 2048 * t + 32 * k, 256)
            if t == 1:
                a('s_waitcnt lgkmcnt(2)')
        a('s_waitcnt lgkmcnt(0)')
    if o.loc:
        a('s_lshl_b32 s93, s7, 11')
        a(f's_add_u32 s93, s93, {WS_XT}')
        a('v_lshlrev_b32 v9, 7, v11')
        a(f'buffer_load_dword v10, v9, {S(R_WS)}, s93 offen sc1')
        for i in range(4):
            a(f'buffer_load_dwordx4 {vr(D + 4 * i, 4)}, v128, {S(R_WS)}, s6 offen offset:{1024 * i} sc1')
    for i in range(8):
        a(f's_add_u32 s93, s0, {(16 * (i % 2) + i // 2) * 8192}')
        if not o.wgo:
            a(f's_waitcnt vmcnt({o.wwin - 1})')
        a(f'buffer_load_dwordx4 v{6 + (i // 2) % 2}, {S(R_WUV)}, s93 offen nt lds')
        if i < 7:
            a('s_add_u32 m0, m0, 1024')
    a('s_waitcnt vmcnt(0)')
    if o.loc:
        a(f'v_cmp_ne_u32 vcc, s{S_XCC}, v10')
        a('s_cmp_eq_u64 vcc, 0')
        a(f's_cselect_b32 s{S_LOC}, 1, 0')
    a('s_barrier')
    for t in range(4):
        for k in range(2):
            tr_op(OPC + 8 * t + 4 * k, 56, 8192 * t + 8 * k, 1024)
            if not o.wgo:
                tr_op(OPD + 8 * t + 4 * k, 57, 2048 * t + 32 * k, 256)
        a('s_waitcnt lgkmcnt(4)')
    if o.lprio:
        a(f's_setprio {o.lprio}')
    a.label('L_cstart')
    stamp(6)
    RED4 = ('quad_perm:[1,0,3,2]', 'quad_perm:[2,3,0,1]', 'row_ror:4', 'row_ror:8')

    def weights():
        a('v_mov_b32 v54, v52')
        for c in RED4:
            dpp('v_max_f32', 54, 54, 54, c)
        swap_step('v_max_f32', 54, 55, 16)
        a('v_sub_f32 v53, v52, v54')
        a('v_exp_f32 v53, v53')
        a('v_cvt_pk_bf16_f32 v54, v53, 0')
        a('v_lshlrev_b32 v53, 16, v54')
        for i in range(4):
            a(f'ds_bpermute_b32 v{WL + i}, v51, v54 offset:{16 * i}')
        a('s_waitcnt lgkmcnt(0)')
        for i in range(4):
            a(f'v_lshlrev_b32 v{WL + 4 + i}, 16, v{WL + i}')
    a('v_lshrrev_b32 v9, 4, v5')
    a('s_lshl_b32 s96, s94, 12')
    a('s_lshl_b32 s93, s4, 2')
    a('s_add_u32 s96, s96, s93')
    a(f's_add_u32 s96, s96, {WS_M0}')
    a(f'buffer_load_dword v52, v9, {S(R_WS)}, s96 offen sc1')
    a('s_waitcnt vmcnt(0)')
    a(f'v_xor_b32 v52, s{S_TAG}, v52')
    weights()
    a('s_lshl_b32 s96, s94, 14')
    a('s_lshl_b32 s93, s2, 7')
    a('s_add_u32 s96, s96, s93')
    a(f's_add_u32 s96, s96, {WS_OF}')
    a(f's_add_u32 s0, s{R_WS}, s96')
    a(f's_addc_u32 s1, s{R_WS + 1}, 0')
    a(f's_mov_b32 s{S_CNT}, {SPIN}')
    a.label('L_of')
    a('s_load_dword s96, s[0:1], 0 glc')
    a('s_waitcnt lgkmcnt(0)')
    a(f's_cmp_eq_u32 s96, s{S_TAG}')
    a('s_cbranch_scc1 L_ofgo')
    a(f's_sub_u32 s{S_CNT}, s{S_CNT}, 1')
    a('s_cbranch_scc0 L_of')
    a.label('L_ofgo')
    stamp(7)
    a(f's_mov_b32 s{S_CNT}, {SPIN}')
    a.label('L_call')
    a(f'buffer_load_dwordx4 v[12:15], v5, {S(R_WS)}, s90 offen sc1')
    for i in range(4):
        a(f'buffer_load_dwordx4 {vr(D + 4 * i, 4)}, v2, {S(R_WS)}, s91 offen offset:{1024 * i} sc1')
    a(f's_sub_u32 s{S_CNT}, s{S_CNT}, 1')
    a('s_cbranch_scc1 L_cdone')
    a('s_waitcnt vmcnt(4)')
    a('v_cmp_ne_u32 vcc, v12, v52')
    xor_chain(10, [12, 13, 14, 15], f's{S_TAG}')
    a('v_cndmask_b32 v9, 0, v14, s[88:89]')
    a('s_cbranch_vccnz L_cnewm')
    a.label('L_crec')
    a('v_mul_f32 v14, v53, v13')
    side = []
    for c in RED4:
        side.append(f'v_add_f32_dpp v14, v14, v14 {c} row_mask:0xf bank_mask:0xf')
    side += ['v_mov_b32 v15, v14', 'v_permlane16_swap_b32 v14, v15', 'v_add_f32 v14, v14, v15', 'v_rcp_f32 v14, v14']
    for i in range(4):
        a(f's_waitcnt vmcnt({3 - i})')
        if i == 3:
            stamp(8)
            f3(66)
        xor_chain(9, [9] + list(range(D + 4 * i, D + 4 * i + 4)))
        if i == 3:
            side = [f'v_xor_b32_dpp v9, v9, v9 {c} row_mask:0xf bank_mask:0xf' for c in RED4]
        for u in range(4):
            for e in range(2):
                c = '0' if i == 0 else f'v{CA + 2 * u + e}'
                a(f'v_dot2_f32_bf16 v{CA + 2 * u + e}, v{D + 4 * i + u}, v{WL + 4 * e + i}, {c}')
            if side:
                a(side.pop(0))
    a('v_mov_b32 v15, v9')
    for k in range(4):
        a(f'v_permlane16_swap_b32 v{CA + 2 * k}, v{CA + 2 * k + 1}')
        if k == 1:
            a('v_permlane16_swap_b32 v9, v15')
            a('v_xor_b32 v9, v9, v15')
            a('v_mov_b32 v15, v9')
    a('v_permlane32_swap_b32 v9, v15')
    a(f'v_bitop3_b32 v9, v9, v15, v10 bitop3:0xbe')
    a('v_cmp_ne_u32 vcc, 0, v9')
    a.label('L_cdone')
    for k in range(4):
        a(f'v_add_f32 v{CA + 2 * k}, v{CA + 2 * k}, v{CA + 2 * k + 1}')
    for k in range(2):
        a(f'v_permlane32_swap_b32 v{CA + 4 * k}, v{CA + 4 * k + 2}')
    for k in range(2):
        a(f'v_add_f32 v{CA + 4 * k}, v{CA + 4 * k}, v{CA + 4 * k + 2}')
    a('s_cbranch_vccnz L_cagain ;noflush')
    a.label('L_cok')
    a(f'v_mul_f32 v{CA}, v{CA}, v14')
    a(f'v_mul_f32 v{CA + 4}, v{CA + 4}, v14')
    a(f'v_cvt_pk_bf16_f32 v{CA}, v{CA}, v{CA + 4}')
    a(f'ds_write_b16 v48, v{CA}')
    a(f'ds_write_b16_d16_hi v48, v{CA} offset:8')
    f3(68)
    a('s_waitcnt lgkmcnt(0)')
    a('s_barrier')
    f3(70)
    a('s_cmp_ge_u32 s3, 4')
    a('s_cbranch_scc1 L_hi')
    for t in range(4):
        a(f'ds_read_b128 {vr(D + 4 * t, 4)}, v49 offset:{64 * t}')
    for t in range(4):
        a(f's_waitcnt lgkmcnt({3 - t})')
        for k in range(2):
            mfma16(CA + 4 * k, OPC + 8 * t + 4 * k, D + 4 * t, t == 0)
    for i in range(8):
        dpp('v_add_f32', CA + i, CA + i, CA + i, 'row_ror:4')
    for i in range(4):
        a(f'v_cvt_pk_bf16_f32 v{12 + i}, v{CA + 2 * i}, v{CA + 2 * i + 1}')
    a(f's_mov_b32 s{S_CNT}, {SPIN}')
    ex(M4)
    if o.loc:
        a(f's_cmp_eq_u32 s{S_LOC}, 0')
        a('s_cbranch_scc1 L_cfar ;noflush')
        a(f'buffer_store_dwordx4 v[12:15], v50, {S(R_WS)}, s98 offen')
        a('s_branch L_cst ;noflush')
        a.label('L_cfar')
    a(f'buffer_store_dwordx4 v[12:15], v50, {S(R_WS)}, s98 offen sc1')
    a.label('L_cst')
    ex(-1)
    stamp(9)
    f3(72)
    a('s_waitcnt vmcnt(0)')
    f3(74)
    a.label('L_dre')
    for i in range(4):
        a(f'buffer_load_dwordx4 {vr(D + 4 * i, 4)}, v128, {S(R_WS)}, s6 offen offset:{1024 * i} sc1')
    for t in range(4):
        a(f's_waitcnt vmcnt({3 - t})')
        for k in range(2):
            mfma16(CA + 4 * k, OPD + 8 * t + 4 * k, D + 4 * t, t == 0)
    a(f'v_cmp_u_f32 vcc, v{CA}, v{CA}')
    for i in range(8):
        dpp('v_add_f32', CA + i, CA + i, CA + i, 'row_ror:4')
    a('s_cbranch_vccnz L_dnan ;noflush')
    a.label('L_dok')
    stamp(10)
    f3(76)
    for i in range(8):
        dpp('v_add_f32', CA + i, CA + i, CA + i, 'row_ror:8')
    ex(M4)
    a(f'ds_write_b128 v129, {vr(CA, 4)}')
    a(f'ds_write_b128 v129, {vr(CA + 4, 4)} offset:64')
    ex(-1)
    a('s_waitcnt lgkmcnt(0)')
    a('s_barrier')
    a('s_cmp_lg_u32 s3, 0')
    a('s_cbranch_scc1 L_end')
    red4_read(D, 130)
    a(f'v_cvt_pk_bf16_f32 v{D}, v{D}, v{D + 1}')
    a(f'v_cvt_pk_bf16_f32 v{D + 1}, v{D + 2}, v{D + 3}')
    a(f'buffer_store_dwordx2 {vr(D, 2)}, v131, {S(R_WS)}, s99 offen sc1')
    f3(78)
    if o.stamps:
        a('s_memrealtime s[88:89]')
    a('s_waitcnt vmcnt(0)')
    if o.stamps:
        a('s_barrier')
    if o.st3:
        o.stamps = 1
    if o.stamps:
        dump_stamps(13, 0, 'a')
    a('s_endpgm')

    nan_retry('L_dnan', range(D, D + 16), 'L_dre', 'L_dok')
    a.label('L_cnewm')
    a('v_mov_b32 v52, v12')
    weights()
    a('s_branch L_crec')
    a.label('L_cagain')
    a(f's_cmp_lt_i32 s{S_CNT}, 0')
    a('s_cbranch_scc1 L_cok')
    a('s_branch L_call')
    a.label('L_hi')
    a('s_cmp_eq_u32 s61, 0')
    if o.stamps:
        a('s_cbranch_scc0 L_hi2')
        stamp(9)
        a('s_bfe_u32 s93, s2, 0x20003')
        a('s_cmp_lg_u32 s93, s94')
        a('s_cbranch_scc1 L_end')
        a(f's_sub_u32 s84, {SPIN}, s{S_CNT}')
        dump_stamps(11, 1)
        a('s_endpgm')
        a.label('L_hi2')
    else:
        a('s_cbranch_scc1 L_end')

    def e_lds_read():
        for w in range(4):
            a(f'ds_read_b32 v{H + 2 * w}, v{ER} offset:{16384 * w}')
            a(f'ds_read_b32 v{H + 2 * w + 1}, v{ER} offset:{16384 * w + 128}')
    for t in range(4):
        for k in range(4):
            tr_op(OP + 16 * t + 4 * k, 227, 8192 * (k // 2) + 2048 * t + 32 * (k % 2), 256)
        a(f'v_xor_b32 v9, {64 * t}, v226')
        for k in range(2):
            tr_op(OPW + 8 * t + 4 * k, 9, 8 * k, 1024)
        a(f's_waitcnt lgkmcnt({2 if t < 3 else 0})')
    for t in range(4):
        for k in range(4):
            mfma16(EA + 4 * k, OP + 16 * t + 4 * k, X4, t == 0)
    for i in range(4):
        a(f'v_lshlrev_b32 v{132 + 2 * i}, 16, v{XR + i}')
        a(f'v_and_b32 v{133 + 2 * i}, s{S_MASK}, v{XR + i}')

    e_lds_write()
    a('s_lshl_b32 s98, s63, 7')
    a(f's_mul_i32 s93, s94, {4 * 12288}')
    a('s_add_u32 s98, s98, s93')
    a(f's_add_u32 s98, s98, {WS_FP}')
    a('s_mul_i32 s99, s63, 6144')
    a(f's_add_u32 s99, s99, {WS_FP}')
    a('s_add_u32 s97, s99, 4096')
    a('s_lshr_b32 s96, s63, 1')
    a('s_lshl_b32 s96, s96, 6')
    a('s_lshl_b32 s90, s94, 10')
    a(f's_add_u32 s90, s90, {WS_HP}')
    a('s_waitcnt lgkmcnt(0)')
    a(f's_mov_b32 s91, {f32bits(GELU_K * 0.044715)}')
    a(f'v_mov_b32 v228, {GELU_BITS}')
    stamp(5)
    a('s_barrier')
    e_lds_read()
    a('s_waitcnt lgkmcnt(0)')
    a(f'v_add_f32 v{ECS}, v{H}, v{H + 2}')
    a(f'v_add_f32 v{ECS + 1}, v{H + 1}, v{H + 3}')
    for w in range(2, 4):
        a(f'v_add_f32 v{ECS}, v{ECS}, v{H + 2 * w}')
        a(f'v_add_f32 v{ECS + 1}, v{ECS + 1}, v{H + 2 * w + 1}')
    a('s_barrier')
    if o.edelay:
        a(f's_sleep {o.edelay}')

    def e_loads():
        a('s_mov_b32 s92, s90')
        for r in range(8):
            a(f'buffer_load_dwordx4 {vr(H + 4 * r, 4)}, v{EG}, {S(R_WS)}, s92 offen sc1')
            if r < 7:
                a('s_add_u32 s92, s92, 4096')
    f3(66)
    a(f's_mov_b32 s{S_CNT}, {SPIN}')
    a.label('L_ere')
    e_loads()
    for r in range(8):
        a(f's_waitcnt vmcnt({7 - r})')
        if r == 7:
            stamp(9)
            f3(68)
        for u in range(4):
            for e in range(2):
                c = f'v{132 + 2 * u + e}' if r == 0 else f'v{HA + 2 * u + e}'
                a(f'v_dot2_f32_bf16 v{HA + 2 * u + e}, v{H + 4 * r + u}, s{S_LO1 + e}, {c}')
    f3(70)
    for i in range(4):
        a(f'v_cvt_pk_bf16_f32 v{X4 + i}, v{HA + 2 * i}, v{HA + 2 * i + 1}')
    for t in range(4):
        if t < 3:
            for i in range(4):
                a(f'v_mov_b32_dpp v{X4 + 4 * (t + 1) + i}, v{X4 + i} row_shl:{4 * (t + 1)} row_mask:0xf bank_mask:0xf bound_ctrl:0')
        for k in range(4):
            mfma16(EA + 4 * k, OP + 16 * t + 4 * k, X4 + 4 * t, t == 0)
        if t == 0:
            a(f'ds_write_b128 v{EHW}, {vr(X4, 4)}')
            for i in range(4):
                a(f'v_dot2_f32_bf16 v9, v{X4 + i}, s{S_ONES}, {"0" if i == 0 else "v9"}')
                a(f'v_dot2_f32_bf16 v11, v{X4 + i}, v{X4 + i}, {"0" if i == 0 else "v11"}')
        if t == 1:
            a('v_cmp_u_f32 vcc, v9, v9')
            for c in ('row_ror:4', 'row_ror:8'):
                dpp('v_add_f32', 9, 9, 9, c)
                dpp('v_add_f32', 11, 11, 11, c)
            a('s_cbranch_vccnz L_enan ;noflush')
            a.label('L_eok')
        if t == 2:
            a('v_permlane16_swap_b32 v9, v11')
            a('v_add_f32 v9, v9, v11')
            swap_step('v_add_f32', 9, 11, 32)
    ex(0x000f000f)
    f3(72)
    a(f'ds_write_b32 v{ES}, v9 offset:1024')
    e_lds_write()
    a('s_waitcnt lgkmcnt(0)')
    a('s_barrier')
    f3(74)
    a('s_cmp_ge_u32 s3, 6')
    a('s_cbranch_scc1 L_eact')
    for w in range(4):
        a(f'ds_read_b64 v[{H + 8 + 2 * w}:{H + 9 + 2 * w}], v{ESR} offset:{16384 * w + 1024}')
    e_lds_read()
    a('s_waitcnt lgkmcnt(8)')
    for w in range(1, 4):
        a(f'v_add_f32 v{H + 8}, v{H + 8}, v{H + 8 + 2 * w}')
        a(f'v_add_f32 v{H + 9}, v{H + 9}, v{H + 9 + 2 * w}')
    MU, VA = H + 8, H + 9
    a(f'v_mul_f32 v{MU}, 0x3b000000, v{MU}')
    a(f'v_mul_f32 v{VA}, 0x3b000000, v{VA}')
    a(f'v_fma_f32 v{VA}, -v{MU}, v{MU}, v{VA}')
    a(f'v_max_f32 v{VA}, 0, v{VA}')
    a(f'v_add_f32 v{VA}, 0x3727c5ac, v{VA}')
    a(f'v_rsq_f32 v{VA}, v{VA}')
    a('s_waitcnt lgkmcnt(0)')
    for w in range(1, 4):
        a(f'v_add_f32 v{H}, v{H}, v{H + 2 * w}')
        a(f'v_add_f32 v{H + 1}, v{H + 1}, v{H + 2 * w + 1}')
    a(f'v_fma_f32 v16, -v{MU}, v{ECS}, v16')
    a(f'v_fma_f32 v17, -v{MU}, v{ECS + 1}, v17')
    a(f'v_mul_f32 v16, v16, v{VA}')
    a(f'v_mul_f32 v17, v17, v{VA}')
    a('v_mul_f32 v18, v16, v16')
    a('v_fma_f32 v19, v18, s91, v228')
    a('v_mul_f32 v19, v19, v16')
    a('v_exp_f32 v19, v19')
    a('v_mul_f32 v16, v16, v17')
    a('v_add_f32 v19, 1.0, v19')
    a('v_rcp_f32 v19, v19')
    a('v_mul_f32 v16, v16, v19')
    a('v_mov_b32_dpp v17, v16 quad_perm:[1,1,3,3] row_mask:0xf bank_mask:0xf')
    a('v_cvt_pk_bf16_f32 v16, v16, v17')
    ex(0x5555555555555555)
    a(f'ds_write_b32 v{EST}, v16')
    ex(-1)
    a('s_waitcnt lgkmcnt(0)')
    a.label('L_eact')
    a('s_barrier')
    f3(76)
    a(f'ds_read_b128 v[16:19], v{EAR}')
    a(f'ds_read_b128 v[20:23], v{GH}')
    a('s_waitcnt lgkmcnt(1)')
    for k in range(8):
        mfma16(FA + 4 * k, OPW + 4 * k, 16, True)
    ex(M4)
    for p in range(4):
        for i in range(4):
            a(f'v_cvt_pk_bf16_f32 v{96 + 4 * p + i}, v{FA + 8 * p + 2 * i}, v{FA + 8 * p + 2 * i + 1}')
        a(f'buffer_store_dwordx4 {vr(96 + 4 * p, 4)}, v{EPS}, {S(R_WS)}, s98 offen sc1')
        if p < 3:
            a('s_add_u32 s98, s98, 12288')
    ex(-1)
    stamp(10)
    f3(78)
    a('s_cmp_lg_u32 s3, 4')
    a('s_cbranch_scc1 L_end')
    a('s_cmp_ge_u32 s63, 32')
    a('s_cbranch_scc1 L_efend')
    G, GA = 24, 48
    for i in range(8):
        a(f'v_mov_b32 v{56 + i}, 0')
    a('s_waitcnt lgkmcnt(0)')
    ex(0xff)
    for u in range(4):
        for e in range(2):
            a(f'v_dot2_f32_bf16 v{56 + 2 * u + e}, v{20 + u}, s{S_LO1 + e}, 0')
    ex(-1)
    a(f's_mov_b32 s{S_CNT}, {SPIN}')
    a('s_waitcnt vmcnt(0)')
    if o.fdelay:
        a(f's_sleep {o.fdelay}')
    a.label('L_gre')
    for i in range(6):
        a(f'buffer_load_dwordx4 {vr(G + 4 * i, 4)}, v{2 if i < 5 else GL}, {S(R_WS)}, s{99 if i < 4 else 97} offen offset:{1024 * (i % 4)} sc1')
    for i in range(6):
        a(f's_waitcnt vmcnt({5 - i})')
        for u in range(4):
            for e in range(2):
                c = 56 + 2 * u + e if i == 0 else GA + 2 * u + e
                a(f'v_dot2_f32_bf16 v{GA + 2 * u + e}, v{G + 4 * i + u}, s{S_LO1 + e}, v{c}')
    stamp(7)
    for k in range(4):
        a(f'v_permlane16_swap_b32 v{GA + 2 * k}, v{GA + 2 * k + 1}')
    for k in range(4):
        a(f'v_add_f32 v{GA + 2 * k}, v{GA + 2 * k}, v{GA + 2 * k + 1}')
    for k in range(2):
        a(f'v_permlane32_swap_b32 v{GA + 4 * k}, v{GA + 4 * k + 2}')
    for k in range(2):
        a(f'v_add_f32 v{GA + 4 * k}, v{GA + 4 * k}, v{GA + 4 * k + 2}')
    a(f'v_cmp_u_f32 vcc, v{GA}, v{GA + 4}')
    for k in range(2):
        dpp('v_add_f32', GA + 4 * k, GA + 4 * k, GA + 4 * k, 'row_ror:8')
    a(f'v_cvt_pk_bf16_f32 v{GA}, v{GA}, v{GA + 4}')
    a('s_cbranch_vccnz L_gnan ;noflush')
    a.label('L_gok')
    ex(0x00ff00ff00ff00ff)
    a(f'buffer_store_short v{GA}, v{GO_}, {S(R_OUT)}, s96 offen')
    a(f'buffer_store_short_d16_hi v{GA}, v{GO_}, {S(R_OUT)}, s96 offen offset:8')
    a('s_cmp_lg_u32 s63, 0')
    a('s_cbranch_scc1 L_efend')
    ex(1)
    a(f'v_mov_b32 v12, s{S_TAG}')
    a(f's_mov_b32 s90, {WS_EPOCH}')
    a(f'buffer_store_dword v12, off, {S(R_WS)}, s90')
    a.label('L_efend')
    if o.diag:
        a.label('L_diag')
        a('s_memrealtime s[90:91]')
        a('s_waitcnt lgkmcnt(0)')
        a('s_sub_u32 s90, s90, s100')
        a(f's_cmp_lt_u32 s90, {o.diag}')
        a('s_cbranch_scc1 L_diag')
    if o.stamps:
        stamp(8)
        a('s_cmp_lg_u32 s3, 4')
        a('s_cbranch_scc1 L_end')
        dump_stamps(11, 1)
    a('s_endpgm')

    nan_retry('L_enan', range(H, H + 32), 'L_ere', 'L_eok')
    nan_retry('L_gnan', range(G, G + 24), 'L_gre', 'L_gok')
    a.label('L_att')
    srd([R_CKV])
    a('s_bfe_u32 s4, s2, 0x20001')
    a('s_bfe_u32 s5, s2, 0x40003')
    a('s_lshl_b32 s5, s5, 1')
    a('s_and_b32 s6, s2, 1')
    a('s_add_u32 s5, s5, s6')
    a('s_lshl_b32 s90, s4, 23')
    TS = (2 << 20) if o.il else 65536
    MX = (1 << o.mb1, 1 << o.mb2)
    a(f's_lshl_b32 s91, s5, {16 if o.il else 18}')
    a('s_add_u32 s90, s90, s91')
    a('s_and_b32 s7, s3, 3')
    a('s_lshl_b32 s91, s7, 14')
    a('s_add_u32 s90, s90, s91')
    a('s_lshl_b32 s91, s7, 15')
    a('s_lshl_b32 s92, s7, 2')
    a(f's_add_u32 s92, s92, {FB}')
    a('v_mov_b32 v7, s92')
    a(f'v_lshlrev_b32 v10, 2, v4')
    a(f'v_add_u32 v10, {FB}, v10')
    a('s_cmp_lt_u32 s3, 4')
    a('s_cbranch_scc1 L_comp')
    a('s_mov_b32 s3, s7')
    VX, TR, O_ = 12, 128, 64
    for j in range(8):
        a(f'v_xor_b32 v{VX + j}, {32 * j}, v2')
    a('s_mov_b32 m0, s91')
    a('s_mov_b32 s93, 0')
    a('s_waitcnt lgkmcnt(0)')
    srd_ptr([R_CKV])
    BUF = (0, 1, 1, 0)
    TAL, vPR, vST, vRC, vRM, vRL, vAR = 20, 28, 29, 30, 31, 32, 33

    def pv_setup():
        a('v_bfe_u32 v40, v1, 2, 2')
        a('v_lshrrev_b32 v42, 5, v1')
        a('v_lshlrev_b32 v41, 2, v40')
        a('v_lshl_add_u32 v41, v42, 1, v41')
        a('v_and_b32 v43, 1, v3')
        a('v_lshlrev_b32 v44, 1, v43')
        a('v_bfe_u32 v45, v1, 1, 1')
        a('v_add_u32 v44, v44, v45')
        a('v_xor_b32 v44, v44, v41')
        a('v_lshlrev_b32 v41, 10, v41')
        a('v_lshl_add_u32 v41, v44, 4, v41')
        a('v_and_b32 v45, 1, v1')
        a('v_lshl_add_u32 v41, v45, 3, v41')
        a('s_lshl_b32 s95, s3, 8')
        a('v_add_u32 v41, s95, v41')
        for i in range(8):
            a(f'v_xor_b32 v{TAL + i}, {64 * (i % 4) + 65536 * (i // 4)}, v41')
        a(f'v_add_u32 v{vPR}, {L_P}, v2')
        a(f'v_lshlrev_b32 v{vAR}, 4, v42')
        a(f'v_add_u32 v{vAR}, {L_ALPHA}, v{vAR}')
        a('v_lshl_add_u32 v42, v42, 2, v43')
        a(f'v_lshlrev_b32 v{vST}, 17, v42')
        a(f'v_lshl_add_u32 v{vST}, v11, 4, v{vST}')
        a('v_lshl_add_u32 v42, v45, 4, v42')
        a('v_bfe_u32 v44, v1, 2, 1')
        a('v_lshl_add_u32 v42, v44, 3, v42')
        a('v_bfe_u32 v44, v1, 3, 1')
        a('v_lshl_add_u32 v42, v44, 1, v42')
        a(f'v_lshlrev_b32 v{vRM}, 2, v42')
        a(f'v_add_u32 v{vRM}, {L_MFIN}, v{vRM}')
        a(f'v_lshlrev_b32 v{vRC}, 4, v42')
        a(f'v_add_u32 v{vRL}, {L_MAX}, v{vRC}')
        a('s_lshl_b32 s96, s3, 2')
        a('s_add_u32 s96, s96, s4')
        a('s_lshl_b32 s96, s96, 13')
        a('s_lshl_b32 s95, s5, 8')
        a('s_add_u32 s96, s96, s95')
        a(f's_add_u32 s96, s96, {WS_OP}')
        a('s_lshl_b32 s97, s4, 16')
        a('s_lshl_b32 s95, s5, 11')
        a('s_add_u32 s97, s97, s95')
        a('s_lshl_b32 s95, s3, 9')
        a('s_add_u32 s97, s97, s95')
        a(f's_add_u32 s97, s97, {WS_REC}')
        a('v_add_u32 v9, s91, v2')
    rows = [(T, j) for T in range(3) for j in range(16) if not (T == 1 and j == 15)]
    landed = 0
    pub = {0: 16, 1: 31}

    def publish():
        for tt in list(pub):
            if landed >= pub[tt]:
                a(f'v_mov_b32 v5, {tt + 1}')
                a(f'ds_write_b32 v7, v5 offset:{F_LAND}')
                del pub[tt]

    def dma_row(j):
        a(f'buffer_load_dwordx4 v{VX + j // 2}, {S(R_CKV)}, s90 offen offset:{(j % 4) * 1024} nt lds')
    for n, (T, j) in enumerate(rows):
        w = o.w0 if n < o.n0 else o.window
        if o.hold and n == o.hold:
            lds_wait(10, F_HUS, 1, 6, 2)
        if n >= o.n0 and not (o.hold and n >= o.hold):
            lb = a.uid('fast')
            a('s_cmp_lg_u32 s93, 0')
            a(f's_cbranch_scc1 {lb}')
            if n % 2 == 0:
                a(f'ds_read_b32 v6, v10 offset:{F_HUS if o.sw == 1 else F_QST}')
            a(f's_waitcnt vmcnt({o.w1 - 1})')
            if n % 2 == 0:
                a('s_waitcnt lgkmcnt(0)')
                a('v_cmp_eq_u32 vcc, 0, v6')
                a('s_cmp_eq_u64 vcc, 0')
                a('s_cselect_b32 s93, 1, 0')
            a.label(lb)
        if n - landed >= w:
            a(f's_waitcnt vmcnt({w - 1})')
            landed = n - (w - 1)
        if n in (16 + o.w1, 31 + o.lw) and landed < n - (o.w1 if n < 31 else o.lw):
            k = o.w1 if n < 31 else o.lw
            a(f's_waitcnt vmcnt({k})')
            landed = n - k
        publish()
        if n == 20:
            get_tag()
            a('v_mov_b32 v35, 0')
        if n == o.gon and o.wgo:
            lb = a.uid('nogo')
            a('s_cmp_lg_u32 s3, 0')
            a(f's_cbranch_scc1 {lb}')
            a('s_sub_u32 s92, s2, 128')
            a('s_lshl_b32 s92, s92, 7')
            a(f's_add_u32 s92, s92, {WS_GO}')
            a(f'v_mov_b32 v6, s{S_TAG}')
            a('v_lshlrev_b32 v8, 2, v1')
            ex(0xffffffff)
            a(f'buffer_store_dword v6, v8, {S(R_WS)}, s92 offen sc1')
            ex(-1)
            a.label(lb)
        if T < 2:
            dma_row(j)
        else:
            a(f'buffer_load_dwordx4 {vr(TR + 64 * (T - 2) + 4 * j, 4)}, v{VX + j // 2}, {S(R_CKV)}, s90 offen offset:{(j % 4) * 1024} nt')
        last = j == 15 or (T == 1 and j == 14)
        if j % 4 == 3 or last:
            a(f's_add_u32 s90, s90, {TS - 12288 if last else 4096}')
            if o.mix:
                a(f's_xor_b32 s90, s90, {MX[(j // 4) % 2]}')
            if T < 2:
                a('s_add_u32 m0, m0, 4096')
        if n == o.w0 - 1:
            a(f's_load_dword s{S_TAG}, s[{R_WS}:{R_WS + 1}], {WS_EPOCH}')
            a('s_barrier')
            pv_setup()
        if n == 30:
            stamp(1)
    assert not pub
    stamp(2)
    if o.pvprio:
        a(f's_setprio {o.pvprio}')
    PF = 36
    BFS = (44, 48, 52, 56, 60, 12, 16)
    NB = len(BFS)
    DIST = 6
    FLG = 34

    def pv(t):
        seq = [(ks, blk) for ks in range(4) for blk in range(4)]

        def rd(n):
            ks, blk = seq[n]
            for tau in range(2):
                a(f'ds_read_b64_tr_b16 {vr(BFS[n % NB] + 2 * tau, 2)}, v{TAL + blk + 4 * (ks // 2)} offset:{32768 * (ks % 2) + 16384 * BUF[t] + 1024 * tau}')

        def p_rd(ks):
            a(f'ds_read_b128 {vr(PF + 4 * (ks % 2), 4)}, v{vPR} offset:{4096 * t + 1024 * ks}')
        a(f's_mov_b32 s{S_CNT}, {SPIN * 40}')
        a('s_mov_b32 s95, 2')
        a.label(f'L_pp{t}')
        a(f'ds_read_b32 v{FLG}, v10 offset:{F_PS + 16 * t}')
        a('s_waitcnt lgkmcnt(0)')
        a(f'v_cmp_ne_u32 vcc, s95, v{FLG}')
        a(f's_cbranch_vccnz L_ps{t}')
        a.label(f'L_pg{t}')
        p_rd(0)
        ops = ['P0']

        def issue_rd(n):
            rd(n)
            ops.extend([f'R{n}', f'R{n}'])
        for n in range(DIST):
            issue_rd(n)
            if n == 1:
                p_rd(1)
                ops.append('P1')
        for n in range(16):
            ks, blk = seq[n]
            need = max(i for i, x in enumerate(ops) if x in (f'R{n}', f'P{ks}'))
            a(f's_waitcnt lgkmcnt({min(15, len(ops) - 1 - need)})')
            if t == 0 and blk == 3:
                a(f'ds_write_b32 v7, v35 offset:{F_DONE}')
                ops.append('W')
            c = '0' if (t == 0 and ks == 0) else vr(O_ + 16 * blk, 16)
            a(f'v_mfma_f32_32x32x16_bf16 {vr(O_ + 16 * blk, 16)}, {vr(PF + 4 * (ks % 2), 4)}, {vr(BFS[n % NB], 4)}, {c}')
            if t == 0 and blk == 1:
                a('v_add_u32 v35, 1, v35')
            if n in (3, 7):
                p_rd(2 + n // 4)
                ops.append(f'P{2 + n // 4}')
            if n + DIST < 16:
                issue_rd(n + DIST)

    pv(0)
    stamp(3)
    pv(1)
    stamp(4)
    a('v_mov_b32 v5, 5')
    a(f'ds_write_b32 v7, v5 offset:{F_DONE}')
    lds_wait(10, F_DONE, 5, 5, 0)
    for j in range(16):
        if j % 2 == 0:
            a(f's_waitcnt vmcnt({14 - j})')
        a(f'ds_write_b128 v9, {vr(TR + 4 * j, 4)} offset:{1024 * j + 16384}')
    a('v_mov_b32 v5, 3')
    a(f'ds_write_b32 v7, v5 offset:{F_LAND}')
    stamp(5)
    pv(2)
    stamp(6)
    a('v_mov_b32 v35, 6')
    pv(3)
    stamp(7)
    PK, XX = 128, 160

    def l_reads():
        a(f'ds_read_b32 v{FLG}, v10 offset:{F_LSEQ}')
        a(f'ds_read_b128 v[172:175], v{vRL}')
        a(f'ds_read_b32 v168, v{vRM}')
    l_reads()
    for ap in range(8):
        t = PK + 4 * ap
        j = 2 * ap
        a(f'v_cvt_pk_bf16_f32 v{t}, v{O_ + j}, v{O_ + 16 + j}')
        a(f'v_cvt_pk_bf16_f32 v{t + 2}, v{O_ + j + 1}, v{O_ + 16 + j + 1}')
        a(f'v_cvt_pk_bf16_f32 v{t + 1}, v{O_ + 32 + j}, v{O_ + 48 + j}')
        a(f'v_cvt_pk_bf16_f32 v{t + 3}, v{O_ + 32 + j + 1}, v{O_ + 48 + j + 1}')
        a(f'v_permlane16_swap_b32 v{t}, v{t + 2}')
        a(f's_add_u32 s92, s96, {(8 * (ap // 2) + 2 * (ap % 2)) * 131072}')
        a(f'v_permlane16_swap_b32 v{t + 1}, v{t + 3}')
        a(f'buffer_store_dwordx4 {vr(t, 4)}, v{vST}, {S(R_WS)}, s92 offen sc1')
        if ap == o.rwait - 1:
            a(f'ds_write_b32 v7, v35 offset:{F_DONE}')
        xor_chain(XX + ap, range(t, t + 4))
        if ap % 2 == 1:
            k = ap // 2
            dpp('v_xor_b32', XX + 2 * k, XX + 2 * k, XX + 2 * k, 'row_ror:8', 0x3)
            dpp('v_xor_b32', XX + 2 * k, XX + 2 * k + 1, XX + 2 * k + 1, 'row_ror:8', 0xc)
        if ap % 4 == 3:
            m = ap // 4
            dpp('v_xor_b32', XX + 4 * m, XX + 4 * m, XX + 4 * m, 'row_half_mirror', 0x5)
            dpp('v_xor_b32', XX + 4 * m, XX + 4 * m + 2, XX + 4 * m + 2, 'row_half_mirror', 0xa)
            dpp('v_xor_b32', XX + 4 * m, XX + 4 * m, XX + 4 * m, 'quad_perm:[1,0,3,2]')
            dpp('v_xor_b32', 170 if m == 0 else XX + 4, XX + 4 * m, XX + 4 * m, 'quad_perm:[2,3,0,1]')
        if ap == 4:
            a('s_waitcnt lgkmcnt(0)')
            a(f'v_cmp_ne_u32 vcc, 1, v{FLG}')
            a('s_cbranch_vccnz L_lslow')
            a.label('L_lok')
            a('v_add_f32 v172, v172, v173')
            a('v_add_f32 v174, v174, v175')
            a('v_add_f32 v169, v172, v174')
            a(f'v_bitop3_b32 v171, v168, v169, s{S_TAG} {XOR3}')
    ex(0x2222222222222222)
    a(f'v_mov_b32 v170, v{XX + 4}')
    ex(0x3333333333333333)
    a('v_xor_b32 v171, v171, v170')
    a(f'buffer_store_dwordx4 v[168:171], v{vRC}, {S(R_WS)}, s97 offen sc1')
    if o.stamps:
        stamp(8)
        a('s_waitcnt vmcnt(0)')
        stamp(9)
        a('s_cmp_lg_u32 s3, 0')
        a('s_cbranch_scc1 L_end')
        dump_stamps(11, 1)
    a('s_endpgm')
    a.label('L_lslow')
    l_reads()
    a('s_waitcnt lgkmcnt(0)')
    a(f'v_cmp_ne_u32 vcc, 1, v{FLG}')
    a('s_cbranch_vccz L_lok')
    a(f's_sub_u32 s{S_CNT}, s{S_CNT}, 1')
    a('s_cbranch_scc0 L_lslow')
    a('s_branch L_lok')
    for t in range(4):
        a.label(f'L_ps{t}')
        a(f'v_cmp_ne_u32 vcc, 3, v{FLG}')
        a(f's_cbranch_vccz L_pr{t}')
        a('s_sleep 1')
        a(f's_sub_u32 s{S_CNT}, s{S_CNT}, 1')
        a(f's_cbranch_scc0 L_pp{t}')
        a(f's_branch L_pg{t}')
        a.label(f'L_pr{t}')
        if t > 0:
            for jq in range(4):
                a(f'ds_read_b128 {vr(44 + 4 * jq, 4)}, v{vAR} offset:{128 * t + 32 * jq}')
            a('s_waitcnt lgkmcnt(0)')
            a('s_nop 7')
            for blk in range(4):
                for j in range(16):
                    a(f'v_mul_f32 v{O_ + 16 * blk + j}, v{O_ + 16 * blk + j}, v{44 + j}')
        a(f's_branch L_pg{t}')

    a.label('L_comp')
    QA = 128
    vMW, vFW, vPW, vFR, vAW, vMR = 6, 7, 8, 10, 11, 9
    NM, LL = 12, 14
    SS, PKS, EX4, AA, AQ, WK = 32, 40, 44, 48, 56, 64
    NA = 8
    a('v_lshlrev_b32 v16, 2, v1')
    a(f'v_add_u32 v16, {FB}, v16')
    a('v_mov_b32 v17, 0')
    a('ds_write_b32 v16, v17')
    a('s_waitcnt lgkmcnt(0)')
    a('s_barrier')
    a(f's_load_dword s{S_TAG}, s[{R_WS}:{R_WS + 1}], {WS_EPOCH}')
    srd_ptr([R_CKV])
    consts()
    a(f's_add_u32 s63, s90, {TS + 15 * 1024}')
    if o.mix:
        a(f's_xor_b32 s63, s63, {MX[1]}')
    a(f's_add_u32 s99, s90, {3 * TS}')
    a('s_mov_b32 m0, s91')
    for j in range(8):
        a(f'v_xor_b32 v{104 + j}, {32 * j}, v2')
    a('v_xor_b32 v21, 0xe0, v2')
    a(f'buffer_load_dwordx4 v[24:27], v21, {S(R_CKV)}, s63 offen nt')
    a('v_mov_b32 v20, 128')
    a('global_load_dword v100, v20, s[86:87] sc1')
    if o.tlb & 1:
        a('v_lshrrev_b32 v20, 1, v4')
        a('v_xor_b32 v22, v20, v4')
        a('v_and_b32 v22, 1, v22')
        a(f'v_lshlrev_b32 v22, {o.mb1}, v22')
        a(f'v_lshl_add_u32 v22, v20, {o.mb2}, v22')
        a('v_xor_b32 v22, s90, v22')
        a('v_lshl_add_u32 v22, v4, 12, v22')
        a('v_bfe_u32 v20, v1, 2, 2')
        a('v_lshl_add_u32 v22, v20, 16, v22')
        ex(0xffff)
        a(f'buffer_load_dword v101, v22, {S(R_CKV)}, 0 offen offset:3968 nt')
        ex(-1)
    if o.tlb & 2:
        a('v_lshlrev_b32 v22, 17, v1')
        a('s_lshl_b32 s94, s3, 15')
        a(f's_add_u32 s94, s94, {WS_OP}')
        ex(0x1ffffffff)
        a(f'buffer_load_dword v102, v22, {S(R_WS)}, s94 offen nt')
        ex(-1)
    a(f's_add_u32 s6, s91, {16384 + 15 * 1024}')
    a('v_add_u32 v28, s6, v2')
    a('s_lshl_b32 s90, s4, 15')
    a('s_lshl_b32 s95, s3, 13')
    a('s_add_u32 s90, s90, s95')
    if WS_QA:
        a(f's_add_u32 s90, s90, {WS_QA}')
    a('s_add_u32 s92, s90, 4096')
    a(f's_lshl_b32 s93, s3, {8 if o.hc else 12}')
    a(f's_lshl_b32 s94, s4, {10 if o.hc else 3}')
    a('s_add_u32 s93, s93, s94')
    a(f's_add_u32 s93, s93, {WS_QAH}')
    a('v_lshrrev_b32 v16, 1, v1')
    a(f'v_lshlrev_b32 v16, {3 if o.hc else 7}, v16')
    a('s_and_b32 s94, s3, 1')
    a('s_lshl_b32 s94, s94, 7')
    a('v_xor_b32 v17, s94, v2')
    a(f's_add_u32 s95, s95, {SB}')
    a('v_add_u32 v17, s95, v17')
    for i in range(4):
        a(f'v_xor_b32 v{96 + i}, {32 * i}, v17')
    a('v_lshrrev_b32 v22, 5, v1')
    a('v_and_b32 v29, 1, v3')
    a('v_lshlrev_b32 v23, 4, v29')
    a('v_lshl_add_u32 v23, v22, 9, v23')
    a('v_bfe_u32 v18, v1, 3, 1')
    a('v_lshl_add_u32 v18, v18, 2, v4')
    a('v_lshl_add_u32 v18, v18, 5, v23')
    a('v_lshl_add_u32 v18, v11, 10, v18')
    a(f'v_add_u32 v18, {SB}, v18')
    a('v_bfe_u32 v20, v1, 2, 2')
    a('v_lshl_add_u32 v21, v4, 2, v20')
    a('v_lshl_add_u32 v19, v21, 10, v23')
    a('v_and_b32 v21, 14, v21')
    a('v_lshl_add_u32 v19, v21, 4, v19')
    a('v_add_u32 v19, s91, v19')
    for i in range(8):
        a(f'v_xor_b32 v{AA + i}, {32 * i}, v19')
        a(f'v_xor_b32 v{AQ + i}, {32 * i}, v18')
    a('v_and_b32 v20, 31, v1')
    a('s_lshl_b32 s95, s3, 2')
    a(f's_add_u32 s95, s95, {L_MAX}')
    a(f'v_lshl_add_u32 v{vMW}, v20, 4, s95')
    a(f'v_lshlrev_b32 v{vPW}, 9, v22')
    a(f'v_lshl_add_u32 v{vPW}, v11, 4, v{vPW}')
    a(f'v_lshl_add_u32 v{vPW}, v29, 3, v{vPW}')
    a('s_lshl_b32 s95, s3, 10')
    a(f's_add_u32 s95, s95, {L_P}')
    a(f'v_add_u32 v{vPW}, s95, v{vPW}')
    a(f'v_lshlrev_b32 v{vMR}, 4, v11')
    a(f'v_add_u32 v{vMR}, {L_MAX}, v{vMR}')
    a(f'v_lshlrev_b32 v{vAW}, 2, v11')
    a(f'v_add_u32 v{vAW}, {L_ALPHA}, v{vAW}')
    a(f'v_mov_b32 v{LL}, 0')
    a(f'v_mov_b32 v{LL + 1}, 0')
    a('v_mov_b32 v0, 1')
    a('v_mov_b32 v5, 2')
    a(f's_mov_b32 s98, {f32bits(float(o.thr))}')
    a('s_mov_b32 s96, 1')
    a('s_sub_u32 s94, s2, 128')
    a('s_lshl_b32 s94, s94, 7')
    a(f's_add_u32 s94, s94, {WS_HU}')
    a(f's_add_u32 s0, s{R_WS}, s94')
    a(f's_addc_u32 s1, s{R_WS + 1}, 0')
    get_tag()
    if o.sprio:
        a(f's_setprio {o.sprio}')
    HR_ = 30

    def q_row(i):
        a(f'buffer_load_dwordx4 {vr(QA + 4 * i, 4)}, v2, {S(R_WS)}, s{90 if i < 4 else 92} offen offset:{1024 * (i % 4)} sc1')
    a(f's_mov_b32 s{S_CNT}, {SPIN}')
    a.label('L_hu')
    a('s_load_dword s94, s[0:1], 0 glc')
    a('s_waitcnt lgkmcnt(0)')
    a(f's_cmp_eq_u32 s94, s{S_TAG}')
    a('s_cbranch_scc1 L_hugo')
    a(f's_sub_u32 s{S_CNT}, s{S_CNT}, 1')
    a('s_cbranch_scc0 L_hu')
    a.label('L_hugo')
    a(f's_mov_b32 s{S_CNT}, {SPIN}')
    a.label('L_qload')
    a(f'buffer_load_dwordx2 {vr(HR_, 2)}, v16, {S(R_WS)}, s93 offen sc1')
    for i in range(8):
        q_row(i)
    a(f'ds_write_b32 v{vFW}, v0 offset:{F_HUS}')
    stamp(8)
    a('s_waitcnt vmcnt(8)')
    a(f'v_bitop3_b32 v21, v{HR_}, v{HR_ + 1}, s{S_TAG} {XOR3}')
    for i in range(8):
        a(f's_waitcnt vmcnt({7 - i})')
        a(f'ds_write_b128 v{96 + i % 4}, {vr(QA + 4 * i, 4)} offset:{1024 * i}')
        xor_chain(19, ([19] if i else []) + list(range(QA + 4 * i, QA + 4 * i + 4)))
    for c in ('quad_perm:[1,0,3,2]', 'quad_perm:[2,3,0,1]', 'row_ror:4', 'row_ror:8'):
        dpp('v_xor_b32', 19, 19, 19, c)
        if c == 'quad_perm:[1,0,3,2]':
            a(f'v_xor_b32 v19, v19, v{HR_}')
    swap_step('v_xor_b32', 19, 20, 16)
    swap_step('v_xor_b32', 19, 20, 32)
    a('v_or_b32 v19, v19, v21')
    a('v_cmp_ne_u32 vcc, 0, v19')
    a('s_cbranch_vccz L_qdone')
    a(f's_sub_u32 s{S_CNT}, s{S_CNT}, 1')
    a('s_cbranch_scc0 L_qload')
    a.label('L_qdone')
    a(f'ds_write_b32 v{vFW}, v0 offset:{F_QST}')
    lds_wait(vFW, F_LAND, 1, 19)
    lds_wait(vFR, F_QST, 1, 19, 0)
    stamp(3)

    def a_read(m, buf):
        a(f'ds_read_b128 {vr(WK + 4 * (m % NA), 4)}, v{AA + m // 2} offset:{256 * (m % 2) + 16384 * buf}')

    def q_read(m):
        for hh in range(2):
            a(f'ds_read_b128 {vr(QA + 64 * hh + 4 * m, 4)}, v{AQ + m // 2} offset:{16384 * hh + 256 * (m % 2)}')

    def s_mfma(st, zero):
        for hh in range(2):
            mfma16(SS + 4 * hh, WK + 4 * (st % NA), QA + 64 * hh + 4 * st, zero and st == 0)
    for st in range(4):
        q_read(st)
        a_read(st, 0)
    for st in range(16):
        a(f's_waitcnt lgkmcnt({3 * min(3, 15 - st)})')
        s_mfma(st, True)
        if st + 4 < 16:
            q_read(st + 4)
            a_read(st + 4, 0)

    def max_xchg(lbl, floor):
        a('v_mov_b32 v18, s96')
        for hh in range(2):
            a(f'v_max3_f32 v{16 + hh}, v{SS + 4 * hh}, v{SS + 4 * hh + 1}, v{SS + 4 * hh + 2}')
            if floor:
                a(f'v_max3_f32 v{16 + hh}, v{16 + hh}, v{SS + 4 * hh + 3}, 0')
            else:
                a(f'v_max_f32 v{16 + hh}, v{16 + hh}, v{SS + 4 * hh + 3}')
        a('v_permlane16_swap_b32 v16, v17')
        a('v_max_f32 v16, v16, v17')
        swap_step('v_max_f32', 16, 17, 32)
        a(f'ds_write_b32 v{vMW}, v16')
        a(f'ds_write_b32 v{vFW}, v18 offset:{F_MSEQ}')
        a(f's_mov_b32 s{S_CNT}, {SPIN * 40}')
        a.label(lbl)
        a(f'ds_read_b32 v18, v{vFR} offset:{F_MSEQ}')
        a(f'ds_read_b128 {vr(WK, 4)}, v{vMR}')
        a(f'ds_read_b128 {vr(WK + 4, 4)}, v{vMR} offset:256')
        a('s_waitcnt lgkmcnt(0)')
        a('v_cmp_gt_u32 vcc, s96, v18')
        a(f's_cbranch_vccz {lbl}go')
        a(f's_sub_u32 s{S_CNT}, s{S_CNT}, 1')
        a(f's_cbranch_scc0 {lbl}')
        a.label(lbl + 'go')
        for hh in range(2):
            a(f'v_max3_f32 v{16 + hh}, v{WK + 4 * hh}, v{WK + 4 * hh + 1}, v{WK + 4 * hh + 2}')
            a(f'v_max_f32 v{16 + hh}, v{16 + hh}, v{WK + 4 * hh + 3}')
            for j in range(4):
                a(f'v_sub_f32 v{SS + 4 * hh + j}, v{SS + 4 * hh + j}, v{16 + hh}')

    def soft(t):
        g = []
        for hh in range(2):
            for j in range(4):
                g.append(f'v_exp_f32 v{EX4 + j}, v{SS + 4 * hh + j}')
            g.append(f'v_cvt_pk_bf16_f32 v{PKS + 2 * hh}, v{EX4}, v{EX4 + 1}')
            g.append(f'v_cvt_pk_bf16_f32 v{PKS + 2 * hh + 1}, v{EX4 + 2}, v{EX4 + 3}')
            g.append(f'ds_write_b64 v{vPW}, {vr(PKS + 2 * hh, 2)} offset:{4096 * t + 256 * hh}')
        return g

    def l_commit():
        for k in range(2):
            for hh in range(2):
                a(f'v_dot2_f32_bf16 v{LL + hh}, v{PKS + 2 * hh + k}, s{S_ONES}, v{LL + hh}')
    max_xchg('L_m0', False)
    for ins in soft(0):
        a(ins)
    a(f'ds_write_b32 v{vFW}, v5 offset:{F_PS}')
    a('ds_write_b128 v28, v[24:27]')
    a(f'ds_write2_b32 v{vAW}, v16, v17 offset0:128 offset1:144')
    for hh in range(2):
        a(f'v_sub_f32 v{NM + hh}, 0, v{16 + hh}')
    l_commit()
    a('s_cmp_lg_u32 s3, 1')
    a('s_cbranch_scc1 L_nom0')
    a('v_permlane16_swap_b32 v16, v17')
    a('s_lshl_b32 s94, s4, 12')
    a('s_lshl_b32 s95, s5, 7')
    a('s_add_u32 s94, s94, s95')
    a(f's_add_u32 s94, s94, {WS_M0}')
    a('v_lshlrev_b32 v18, 2, v1')
    a(f'v_xor_b32 v16, s{S_TAG}, v16')
    ex(0xffffffff)
    a(f'buffer_store_dword v16, v18, {S(R_WS)}, s94 offen sc1')
    ex(-1)
    a.label('L_nom0')
    stamp(4)
    PD = 6
    for t in range(1, 4):
        lbl = f'L_l{t}'
        a(f's_mov_b32 s{S_CNT}, {SPIN * 40}')
        for hh in range(2):
            for j in range(4):
                a(f'v_mov_b32 v{SS + 4 * hh + j}, v{NM + hh}')
        if t == 2:
            a('s_add_u32 s94, s3, 1')
            lds_wait(vFR, F_DONE, 's94', 18)
            for j in range(16):
                if j >= o.w3:
                    a(f's_waitcnt vmcnt({o.w3 - 1})')
                a(f'buffer_load_dwordx4 v{104 + j // 2}, {S(R_CKV)}, s99 offen offset:{(j % 4) * 1024} nt lds')
                if j % 4 == 3 and j < 15:
                    a('s_add_u32 s99, s99, 4096')
                    if o.mix:
                        a(f's_xor_b32 s99, s99, {MX[(j // 4) % 2]}')
                    a('s_add_u32 m0, m0, 4096')
            stamp(1)
            a(f's_mov_b32 s{S_CNT}, {SPIN * 40}')
        if t < 3:
            a.label(lbl)
            a(f'ds_read_b32 v18, v{vFW} offset:{F_LAND}')
            a('s_waitcnt lgkmcnt(0)')
            a(f'v_cmp_ge_u32 vcc, {t}, v18')
            a(f's_cbranch_vccz {lbl}go')
            a('s_sleep 1')
            a(f's_sub_u32 s{S_CNT}, s{S_CNT}, 1')
            a(f's_cbranch_scc0 {lbl}')
            a.label(lbl + 'go')
        else:
            a('s_waitcnt vmcnt(0)')
            stamp(2)
        for st in range(PD):
            a_read(st, BUF[t])
        if t == 3 and o.rpos == 0:
            a('s_lshl_b32 s94, s4, 2')
            a('s_add_u32 s94, s94, 16')
            arrive(0, 30, 31, 's94')
        for st in range(16):
            a(f's_waitcnt lgkmcnt({min(PD - 1, 15 - st)})')
            s_mfma(st, False)
            if st + PD < 16:
                a_read(st + PD, BUF[t])
        for k, ins in enumerate(soft(t)):
            a(ins)
            if k == 3:
                a(f'v_max3_f32 v19, v{SS}, v{SS + 1}, v{SS + 2}')
                a(f'v_max3_f32 v19, v{SS + 3}, v{SS + 4}, v19')
            if k == 10:
                a(f'v_max3_f32 v19, v{SS + 5}, v{SS + 6}, v19')
                a(f'v_max_f32 v19, v{SS + 7}, v19')
                a('v_cmp_lt_f32 vcc, s98, v19')
        a('s_cmp_eq_u64 vcc, 0')
        a('s_cselect_b32 s91, 2, 1')
        a('v_mov_b32 v18, s91')
        a(f'ds_write_b32 v{vFW}, v18 offset:{F_PS + 16 * t}')
        stamp(4 + t)
        if t == 3 and o.rpos == 1:
            a('s_lshl_b32 s94, s4, 2')
            a('s_add_u32 s94, s94, 16')
            arrive(0, 30, 31, 's94')
        a(f's_mov_b32 s{S_CNT}, {SPIN * 40}')
        a.label(f'L_c{t}')
        a(f'ds_read_b32 v18, v{vFR} offset:{F_PS + 16 * t}')
        a('s_waitcnt lgkmcnt(0)')
        a('v_cmp_ne_u32 vcc, 2, v18')
        a(f's_cbranch_vccnz L_cs{t}')
        a.label(f'L_cg{t}')
        l_commit()
    a('s_lshl_b32 s94, s4, 2')
    a('s_add_u32 s94, s94, 16')
    a(f'v_permlane16_swap_b32 v{LL}, v{LL + 1}')
    a(f'v_add_f32 v{LL}, v{LL}, v{LL + 1}')
    swap_step('v_add_f32', LL, LL + 1, 32)
    a(f'ds_write_b32 v{vMW}, v{LL}')
    a(f'ds_write_b32 v{vFW}, v0 offset:{F_LSEQ}')
    if o.rdelay:
        a(f's_sleep {o.rdelay}')
    if o.rpos == 2:
        arrive(0, 30, 31, 's94')
    a('s_cmp_lg_u32 s3, 0')
    a('s_cbranch_scc1 L_norel2')
    a('s_lshl_b32 s94, s4, 14')
    a(f's_add_u32 s94, s94, {WS_OF}')
    a('s_add_u32 s95, s94, 8192')
    a('v_lshlrev_b32 v31, 7, v1')
    a(f'v_mov_b32 v29, s{S_TAG}')
    a('s_waitcnt vmcnt(0)')
    a('v_readfirstlane_b32 s1, v30')
    a('s_and_b32 s1, s1, 31')
    a('s_cmp_lg_u32 s1, 31')
    a('s_cbranch_scc1 L_norel2')
    if o.rwait:
        lds_wait(vFR, F_DONE, 6, 18, 0)
    a(f'buffer_store_dword v29, v31, {S(R_WS)}, s94 offen sc1')
    a(f'buffer_store_dword v29, v31, {S(R_WS)}, s95 offen sc1')
    a.label('L_norel2')
    stamp(9)
    a.label('L_send')
    if o.stamps:
        a('s_memrealtime s[90:91]')
        a('s_cmp_lg_u32 s3, 0')
        a('s_cbranch_scc1 L_end')
        dump_stamps(14, 0)
    a('s_endpgm')
    for t in range(1, 4):
        a.label(f'L_cs{t}')
        a('v_cmp_eq_u32 vcc, 0, v18')
        a(f's_cbranch_vccz L_ex{t}')
        a(f's_sub_u32 s{S_CNT}, s{S_CNT}, 1')
        a(f's_cbranch_scc0 L_c{t}')
        a(f's_branch L_cg{t}')
        a.label(f'L_ex{t}')
        a('s_add_u32 s96, s96, 1')
        max_xchg(f'L_mx{t}', True)
        for hh in range(2):
            a(f'v_exp_f32 v{20 + hh}, -v{16 + hh}')
            a(f'v_sub_f32 v{NM + hh}, v{NM + hh}, v{16 + hh}')
            a(f'v_sub_f32 v{22 + hh}, 0, v{NM + hh}')
            a(f'v_mul_f32 v{LL + hh}, v{LL + hh}, v{20 + hh}')
        a(f'ds_write2_b32 v{vAW}, v20, v21 offset0:{32 * t} offset1:{32 * t + 16}')
        a(f'ds_write2_b32 v{vAW}, v22, v23 offset0:128 offset1:144')
        for ins in soft(t):
            a(ins)
        a('v_mov_b32 v18, 3')
        a(f'ds_write_b32 v{vFW}, v18 offset:{F_PS + 16 * t}')
        lds_wait(vFR, F_PS + 16 * t, 3, 18, 0)
        a(f's_branch L_cg{t}')
    a.label('L_end')
    a('s_endpgm')

    txt = HEADER
    txt += f'; @launch grid=(256,1,1) block=(512,1,1) lds={LDS_TOTAL}\n'
    txt += '.amdgcn_target "amdgcn-amd-amdhsa--gfx950"\n.text\n'
    txt += a.finalize()
    txt += f""".section .rodata,"a"
.p2align 6
.amdhsa_kernel {name}
  .amdhsa_next_free_vgpr 256
  .amdhsa_next_free_sgpr 102
  .amdhsa_accum_offset 256
  .amdhsa_group_segment_fixed_size 0
  .amdhsa_kernarg_size 104
  .amdhsa_user_sgpr_count 2
  .amdhsa_user_sgpr_kernarg_segment_ptr 1
  .amdhsa_system_sgpr_workgroup_id_x 1
.end_amdhsa_kernel
"""
    return txt


if __name__ == '__main__':
    o = Opt()
    for kv in sys.argv[2:]:
        k, v = kv.split('=')
        setattr(o, k, v.replace('+', ' ') if k == 'r64' else int(v))
    open(sys.argv[1], 'w').write(gen(o))
```

```python
import sys
sys.path.insert(0, 'dev')
from asmdsl import Asm
from layout17 import *

NAME = 'sequential_preLN__compressed_kv_cla__glu_gated_geglu__decode'
HEADER = open('cdna_kernels/' + NAME + '.s.ref').read().split('; Override launch')[0]
LDS_TOTAL = 163840
SB = 130048
L_P = 131072
FB = 162816
F_LAND, F_QST, F_MSEQ, F_DONE, F_LSEQ, F_HUS, F_PS = 0, 16, 32, 48, 64, 80, 96
L_MAX = FB + 512
L_ALPHA = L_P + 16384
L_MFIN = L_ALPHA + 512
A_WQ, A_WUK, A_WUV, A_WO, A_X, A_C, A_D = 0, 32768, 98304, 98304, 131072, 132096, 135168
A_WD, A_ACT, A_H = 65536, 138240, 139264

R_X, R_WS, R_CKV, R_WQ, R_WUK, R_WUV, R_WO, R_WG, R_WU, R_WD, R_OUT, R_ACT = [8 + 4 * i for i in range(12)]
SIZES = {R_X: 4096, R_WS: WS_END, R_CKV: 32 << 20, R_WQ: 4 << 20, R_WUK: 4 << 20, R_WUV: 4 << 20, R_WO: 4 << 20,
         R_WG: 512 * 2752, R_WU: 512 * 2752, R_WD: 1376 * 1024, R_OUT: 4096, R_ACT: 43 * 256}
PTR = {R_X: 64, R_CKV: 66, R_WQ: 68, R_WUK: 70, R_WUV: 72, R_WO: 74, R_WG: 78, R_WU: 80, R_WD: 82, R_OUT: 84}
S_TAG, S_ONES, S_LO1, S_HI1, S_CNT, S_MASK = 56, 57, 58, 59, 60, 62
S_XCC, S_LOC = 52, 53
SPIN = 200000
XOR3 = 'bitop3:0x96'


class Opt:
    stamps = 0
    w0 = 1
    n0 = 2
    window = 10
    w3 = 16
    wwin = 8
    sleep = 1
    sleep_long = 6
    stsleep = 3
    thr = 60
    dbgwg = 192
    hold = 0
    dsleep = 1
    ddelay = 0
    gon = 98
    fine = 0
    hupos = 1
    edelay = 0
    efwin = 8
    sw = 1
    efgo = 0
    qdelay = 0
    hprio = 1
    nsamp = 2
    rdelay = 0
    lw = 8
    diag = 0
    rpos = 1
    owin = 4
    ef0 = 2
    il = 0
    mix = 1
    loc = 1
    egate = 0
    lprio = 2
    rwait = 5
    qloc = 0
    hc = 1
    t3 = 0
    nl = 32
    pf = 0
    emask = 1309
    nh = 64
    hone = 1
    hsl = 0
    osl = 0
    oone = 0
    osc = 0
    wb = 0
    tlb = 0
    arrpos = 2
    earlym = 1
    mb1 = 20
    mb2 = 19
    efn = 2
    pvprio = 0
    sprio = 0
    r64 = 'nt'
    wgo = 1
    esleep = 0
    fdelay = 0
    now = 0
    w1 = 4
    n1 = 0


def vr(a, n):
    return f'v[{a}:{a + n - 1}]' if n > 1 else f'v{a}'


def S(base):
    return f's[{base}:{base + 3}]'


def gen(o):
    a = Asm()
    name = NAME + '_kernel'
    o.st3 = o.stamps == 3

    def ex(mask):
        if mask == -1:
            a('s_mov_b64 exec, -1')
        elif mask <= 64:
            a(f's_mov_b64 exec, {mask}')
        else:
            a(f's_mov_b32 exec_lo, 0x{mask & 0xffffffff:x}')
            a(f's_mov_b32 exec_hi, 0x{mask >> 32:x}')

    def dpp(op, d, s0, s1, ctrl, bank=0xf):
        a(f'{op}_dpp v{d}, v{s0}, v{s1} {ctrl} row_mask:0xf bank_mask:0x{bank:x}')

    def swap_step(op, v, t, which):
        a(f'v_mov_b32 v{t}, v{v}')
        a(f'v_permlane{which}_swap_b32 v{v}, v{t}')
        a(f'{op} v{v}, v{v}, v{t}')

    def fine2(r):
        if o.fine == 2:
            lb = a.uid('f2')
            a('s_cmp_lg_u32 s97, 0')
            a(f's_cbranch_scc1 {lb} ;noflush')
            a(f's_memtime s[{r}:{r + 1}]')
            a.label(lb)

    def f3(r):
        if o.fine == 3:
            a(f's_memtime s[{r}:{r + 1}]')

    def stamp(idx):
        if o.stamps:
            a(f's_memrealtime s[{64 + 2 * idx}:{65 + 2 * idx}]')

    def dump_stamps(n, grp, dbg=None):
        a('s_waitcnt lgkmcnt(0)')
        a('s_mov_b64 exec, -1')
        a('v_mov_b32 v3, 0')
        a('v_writelane_b32 v3, s100, 0')
        for i in range(1, n):
            a(f'v_writelane_b32 v3, s{64 + 2 * i}, {i}')
        a('v_mbcnt_lo_u32_b32 v4, -1, 0')
        a('v_lshlrev_b32 v4, 2, v4')
        a('s_lshl_b32 s90, s2, 7')
        a(f's_add_u32 s90, s90, {WS_STAMP + 64 * grp}')
        ex(0xffff)
        a(f'buffer_store_dword v3, v4, {S(R_WS)}, s90 offen')
        if o.stamps == 2 and dbg:
            lb = a.uid('nodbg')
            a('v_subrev_u32 v3, s100, v3')
            if dbg == 'h':
                a(f's_cmp_lg_u32 s2, {o.dbgwg}')
                a(f's_cbranch_scc1 {lb}')
                ex(0x7fe)
                a('global_store_dword v4, v3, s[86:87] offset:-4')
            else:
                a('s_cmp_lg_u32 s2, 0')
                a(f's_cbranch_scc1 {lb}')
                ex(0x3e8)
                a('v_mbcnt_lo_u32_b32 v4, exec_lo, 0')
                a('v_lshlrev_b32 v4, 2, v4')
                a('global_store_dword v4, v3, s[86:87] offset:40')
            a.label(lb)

    def xor_chain(tmp, regs, last=None):
        ops = [f'v{r}' for r in regs] + ([last] if last else [])
        a(f'v_bitop3_b32 v{tmp}, {ops[0]}, {ops[1]}, {ops[2]} {XOR3}')
        ops = ops[3:]
        while len(ops) >= 2:
            a(f'v_bitop3_b32 v{tmp}, v{tmp}, {ops[0]}, {ops[1]} {XOR3}')
            ops = ops[2:]
        if ops:
            a(f'v_xor_b32 v{tmp}, {ops[0]}, v{tmp}')

    def chk_sentinel(regs, tmp):
        rs = list(regs)
        a(f'v_max3_u32 v{tmp}, v{rs[0]}, v{rs[1]}, v{rs[2]}')
        rs = rs[3:]
        while len(rs) >= 2:
            a(f'v_max3_u32 v{tmp}, v{tmp}, v{rs[0]}, v{rs[1]}')
            rs = rs[2:]
        if rs:
            a(f'v_max_u32 v{tmp}, v{tmp}, v{rs[0]}')
        a(f'v_cmp_eq_u32 vcc, -1, v{tmp}')

    def poll(loads, check, sleep=None, wait='s_waitcnt vmcnt(0)'):
        L, Dn = a.uid('poll'), a.uid('pdone')
        a(f's_mov_b32 s{S_CNT}, {SPIN}')
        a.label(L)
        loads()
        a(wait)
        check()
        a(f's_cbranch_vccz {Dn}')
        sl = o.sleep if sleep is None else sleep
        if sl:
            a(f's_sleep {sl}')
        a(f's_sub_u32 s{S_CNT}, s{S_CNT}, 1')
        a(f's_cbranch_scc0 {L}')
        a.label(Dn)

    def lds_wait(addr, off, want, tmp, sleep=1):
        L, Dn = a.uid('lw'), a.uid('lwd')
        a(f's_mov_b32 s{S_CNT}, {SPIN * 40}')
        a.label(L)
        a(f'ds_read_b32 v{tmp}, v{addr} offset:{off}')
        a('s_waitcnt lgkmcnt(0)')
        a(f'v_cmp_gt_u32 vcc, {want}, v{tmp}')
        a(f's_cbranch_vccz {Dn}')
        if sleep:
            a(f's_sleep {sleep}')
        a(f's_sub_u32 s{S_CNT}, s{S_CNT}, 1')
        a(f's_cbranch_scc0 {L}')
        a.label(Dn)

    def nan_retry(tag, regs, again, go):
        a.label(tag)
        chk_sentinel(regs, 10)
        a(f's_cbranch_vccz {go}')
        a(f's_sub_u32 s{S_CNT}, s{S_CNT}, 1')
        a(f's_cbranch_scc0 {again}')
        a(f's_branch {go}')

    def mfma16(d, x, y, first):
        c = '0' if first else vr(d, 4)
        a(f'v_mfma_f32_16x16x32_bf16 {vr(d, 4)}, {vr(x, 4)}, {vr(y, 4)}, {c}')

    def srd(rs):
        for r in rs:
            a(f's_mov_b32 s{r + 2}, {SIZES[r]}')
            a(f's_mov_b32 s{r + 3}, 0x00020000')

    def srd_ptr(rs):
        for r in rs:
            if r == R_ACT:
                a(f's_add_u32 s{R_ACT}, s{R_WS}, {WS_ACT}')
                a(f's_addc_u32 s{R_ACT + 1}, s{R_WS + 1}, 0')
            else:
                a(f's_mov_b64 s[{r}:{r + 1}], s[{PTR[r]}:{PTR[r] + 1}]')

    def consts():
        a(f's_mov_b32 s{S_ONES}, 0x3f803f80')
        a(f's_mov_b32 s{S_LO1}, 0x3f80')
        a(f's_mov_b32 s{S_HI1}, 0x3f800000')
        a(f's_mov_b32 s{S_MASK}, 0xffff0000')

    def get_tag():
        a('s_waitcnt lgkmcnt(0)')
        a(f's_add_u32 s{S_TAG}, s{S_TAG}, 0x9e3779b9')

    def vF(d):
        a(f'v_bfe_u32 v{d}, v1, 2, 2')
        a(f'v_lshlrev_b32 v{d}, 8, v{d}')
        a(f'v_lshl_add_u32 v{d}, v3, 6, v{d}')
        a(f'v_lshl_add_u32 v{d}, v4, 4, v{d}')

    def tr64_addr(d, t):
        a(f'v_bfe_u32 v{t}, v1, 2, 2')
        a(f'v_lshl_add_u32 v{t}, v3, 3, v{t}')
        a(f'v_lshlrev_b32 v{d}, 6, v{t}')
        a(f'v_lshl_add_u32 v{d}, v4, 3, v{d}')

    def tr_op(dst, addr, off, tau):
        a(f'ds_read_b64_tr_b16 {vr(dst, 2)}, v{addr} offset:{off}')
        a(f'ds_read_b64_tr_b16 {vr(dst + 2, 2)}, v{addr} offset:{off + tau}')

    def red4_read(x, addr):
        ex(0xffffffff)
        for w in range(4):
            a(f'ds_read_b128 {vr(x + 4 * w, 4)}, v{addr} offset:{512 * w}')
        a('s_waitcnt lgkmcnt(2)')
        for i in range(4):
            a(f'v_add_f32 v{x + i}, v{x + i}, v{x + 4 + i}')
        a('s_waitcnt lgkmcnt(0)')
        for i in range(4):
            a(f'v_add_f32 v{x + 8 + i}, v{x + 8 + i}, v{x + 12 + i}')
        for i in range(4):
            a(f'v_add_f32 v{x + i}, v{x + i}, v{x + 8 + i}')

    def frag_addr(dst, t):
        a(f'v_bfe_u32 v{dst}, v1, 1, 2')
        a(f'v_lshlrev_b32 v{dst}, 6, v{dst}')
        a(f'v_bfe_u32 v{t}, v1, 3, 2')
        a(f'v_lshl_add_u32 v{dst}, v{t}, 4, v{dst}')
        a(f'v_and_b32 v{t}, 1, v1')
        a(f'v_lshl_add_u32 v{dst}, v{t}, 3, v{dst}')

    M4 = 0x000f000f000f000f

    def arrive(wave, ret, t0, off, sel='s3'):
        lb = a.uid('arr')
        a(f's_cmp_lg_u32 {sel}, {wave}')
        a(f's_cbranch_scc1 {lb} ;noflush')
        a(f'v_mov_b32 v{t0}, {off}')
        a(f'v_mov_b32 v{ret}, 1')
        ex(1)
        a(f'global_atomic_add v{ret}, v{t0}, v{ret}, s[86:87] sc0 sc1')
        ex(-1)
        a.label(lb)

    def release(wave, ret, t0, last, flag, wait=None):
        lb = a.uid('rel')
        a(f's_cmp_lg_u32 s3, {wave}')
        a(f's_cbranch_scc1 {lb} ;noflush')
        if wait:
            a(wait)
        a(f'v_readfirstlane_b32 s1, v{ret}')
        a(f's_and_b32 s1, s1, {last}')
        a(f's_cmp_lg_u32 s1, {last}')
        a(f's_cbranch_scc1 {lb} ;noflush')
        a('s_mov_b64 exec, -1')
        a(f'v_mbcnt_lo_u32_b32 v{t0}, -1, 0')
        a(f'v_lshlrev_b32 v{t0}, 2, v{t0}')
        a(f'v_mov_b32 v{ret}, s{S_TAG}')
        if isinstance(flag, int):
            a(f's_mov_b32 s1, {flag}')
            flag = 's1'
        ex(0xffffffff)
        a(f'buffer_store_dword v{ret}, v{t0}, {S(R_WS)}, {flag} offen sc1')
        ex(-1)
        a.label(lb)

    def flag_wait(flag, t0, sleep):
        if isinstance(flag, int):
            a(f's_mov_b32 s1, {flag}')
            flag = 's1'
        ex(1)
        poll(lambda: a(f'buffer_load_dword v{t0}, off, {S(R_WS)}, {flag} sc1'),
             lambda: a(f'v_cmp_ne_u32 vcc, s{S_TAG}, v{t0}'), sleep)
        ex(-1)

    a(f'.globl {name}\n.p2align 8\n.type {name},@function')
    a.label(name)
    if o.stamps or o.diag:
        a('s_memrealtime s[100:101]')
    a('s_cmp_ge_u32 s2, 256')
    a('s_cbranch_scc1 L_end')
    a('s_load_dwordx16 s[64:79], s[0:1], 0')
    a('s_load_dwordx8 s[80:87], s[0:1], 64')
    a(f's_load_dwordx2 s[{R_WS}:{R_WS + 1}], s[0:1], 96')
    a('s_cmp_lt_u32 s2, 128')
    a('s_cbranch_scc1 L_nopf')
    a('s_getpc_b64 s[94:95]')
    a.label('L_pc')
    a('v_lshlrev_b32 v1, 7, v0')
    a(f'v_cmp_gt_u32 vcc, L_end-L_pc, v1')
    a('s_and_saveexec_b64 s[96:97], vcc')
    a('s_cbranch_execz L_pfdone')
    a('global_load_dword v127, v1, s[94:95]')
    a.label('L_pfdone')
    a('s_mov_b64 exec, s[96:97]')
    a.label('L_nopf')
    a('v_and_b32 v1, 63, v0')
    a('v_lshrrev_b32 v2, 6, v0')
    a('v_readfirstlane_b32 s3, v2')
    a('v_lshlrev_b32 v2, 4, v1')
    a('v_lshrrev_b32 v3, 4, v1')
    a('v_and_b32 v4, 3, v1')
    a('v_and_b32 v11, 15, v1')
    srd([R_WS, R_X])
    a('s_cmp_ge_u32 s2, 128')
    a('s_cbranch_scc1 L_att')

    srd([R_WQ, R_WUK])
    a('s_and_b32 s4, s2, 7')
    a('s_lshl_b32 s4, s4, 2')
    a('s_bfe_u32 s5, s2, 0x20003')
    a('s_add_u32 s4, s4, s5')
    a('s_lshr_b32 s5, s2, 5')
    a('s_lshl_b32 s6, s4, 8')
    a('v_lshlrev_b32 v5, 1, v3')
    a('v_xor_b32 v5, v5, v11')
    a('v_lshlrev_b32 v5, 4, v5')
    a('v_lshl_add_u32 v6, v3, 13, v5')
    a('v_xor_b32 v7, 0x80, v6')
    a('v_xor_b32 v8, v3, v11')
    a('v_lshlrev_b32 v8, 4, v8')
    a('v_lshl_add_u32 v8, v3, 13, v8')
    a('s_lshl_b32 s90, s5, 20')
    a('s_lshl_b32 s91, s3, 17')
    a('s_add_u32 s90, s90, s91')
    a('s_add_u32 s90, s90, s6')
    a('s_lshl_b32 s91, s3, 12')
    a('s_mov_b32 m0, s91')
    a('v_bfe_u32 v10, v1, 2, 2')
    a('v_lshlrev_b32 v10, 6, v10')
    a('v_lshl_add_u32 v10, v4, 10, v10')
    a('v_lshl_add_u32 v10, v3, 4, v10')
    a('s_lshl_b32 s93, s5, 8')
    XS, XO = 12, 28
    a('s_waitcnt lgkmcnt(0)')
    srd_ptr([R_X, R_WQ, R_WUK])
    a('s_cmp_lg_u32 s3, 0')
    a('s_cbranch_scc1 L_nox')
    for i in range(4):
        a(f'buffer_load_dwordx4 {vr(XS + 4 * i, 4)}, v10, {S(R_X)}, 0 offen offset:{256 * i}')
    a(f'buffer_load_dwordx4 {vr(XO, 4)}, v10, {S(R_X)}, s93 offen')
    a.label('L_nox')
    if o.qloc:
        a('s_lshl_b32 s92, s4, 13')
        a('s_lshl_b32 s93, s3, 10')
        a('s_add_u32 s92, s92, s93')
        a(f's_add_u32 s92, s92, {WS_QPL}')
        a(f'buffer_load_dwordx4 v[68:71], v2, {S(R_WS)}, s92 offen sc1')
    for i in range(4):
        a(f's_add_u32 s92, s90, {i * 32768}')
        a(f'buffer_load_dwordx4 v{6 + i // 2}, {S(R_WQ)}, s92 offen nt lds')
        if i < 3:
            a('s_add_u32 m0, m0, 1024')
    a('s_barrier')
    a('s_cmp_lt_u32 s3, 4')
    a('s_cbranch_scc1 L_nouk')
    a('s_lshl_b32 s91, s3, 17')
    a('s_add_u32 s90, s90, s91')
    a(f's_sub_u32 s90, s90, {8 << 17}')
    a('s_lshl_b32 s91, s3, 13')
    a(f's_add_u32 m0, s91, {A_WUK - 32768}')
    for i in range(8):
        if i % 2 == 0:
            a(f'v_xor_b32 v9, {64 * (i // 2)}, v8')
        a(f's_add_u32 s92, s90, {i * 32768}')
        a(f'buffer_load_dwordx4 v9, {S(R_WUK)}, s92 offen nt lds')
        if i < 7:
            a('s_add_u32 m0, m0, 1024')
    a.label('L_nouk')
    a(f's_load_dword s{S_TAG}, s[{R_WS}:{R_WS + 1}], {WS_EPOCH}')
    srd_ptr([R_WUV, R_WO, R_WG, R_WU, R_WD, R_OUT])
    consts()
    stamp(1)
    a('s_cmp_lg_u32 s3, 0')
    a('s_cbranch_scc1 L_noln')
    a(f's_waitcnt vmcnt({5 + o.qloc})')
    for i in range(16):
        a(f'v_dot2_f32_bf16 v34, v{XS + i}, s{S_ONES}, {"0" if i == 0 else "v34"}')
        a(f'v_dot2_f32_bf16 v35, v{XS + i}, v{XS + i}, {"0" if i == 0 else "v35"}')
    for c in ('row_ror:4', 'row_ror:8'):
        dpp('v_add_f32', 34, 34, 34, c)
        dpp('v_add_f32', 35, 35, 35, c)
    for wh in (16, 32):
        a('v_mov_b32 v12, v34')
        a('v_mov_b32 v13, v35')
        a(f'v_permlane{wh}_swap_b32 v34, v12')
        a(f'v_permlane{wh}_swap_b32 v35, v13')
        a('v_add_f32 v34, v34, v12')
        a('v_add_f32 v35, v35, v13')
    a('v_mul_f32 v34, 0x3b000000, v34')
    a('v_mul_f32 v35, 0x3b000000, v35')
    a('v_fma_f32 v35, -v34, v34, v35')
    a('v_max_f32 v35, 0, v35')
    a('v_add_f32 v35, 0x3727c5ac, v35')
    a('v_rsq_f32 v35, v35')
    a(f'v_mul_f32 v35, {QSCALE_BITS}, v35')
    a('v_mul_f32 v34, v34, v35')
    a(f's_waitcnt vmcnt({4 + o.qloc})')
    for i in range(4):
        a(f'v_lshlrev_b32 v12, 16, v{XO + i}')
        a(f'v_and_b32 v13, s{S_MASK}, v{XO + i}')
        a('v_fma_f32 v12, v12, v35, -v34')
        a('v_fma_f32 v13, v13, v35, -v34')
        a(f'v_cvt_pk_bf16_f32 v{XO + i}, v12, v13')
    a(f'v_add_u32 v12, {A_X}, v2')
    a(f'ds_write_b128 v12, {vr(XO, 4)}')
    a.label('L_noln')
    srd([R_WUV, R_WO, R_WG, R_WU, R_WD, R_OUT])
    for i in range(4):
        a(f'v_mov_b32 v{36 + i}, -1')
    a('s_lshl_b32 s92, s2, 3')
    a('s_add_u32 s92, s92, s3')
    a('s_mul_i32 s92, s92, 352')
    a(f's_add_u32 s92, s92, {WS_CLEAN}')
    ex(0x3fffff)
    a(f'buffer_store_dwordx4 v[36:39], v2, {S(R_WS)}, s92 offen sc1')
    ex(-1)
    a('v_bfe_u32 v40, v1, 2, 3')
    a('v_lshlrev_b32 v40, 1, v40')
    a('s_lshl_b32 s92, s3, 1')
    a('s_and_b32 s92, s92, 12')
    a(f'v_bitop3_b32 v40, v40, v4, s92 {XOR3}')
    a('v_lshlrev_b32 v40, 4, v40')
    a('v_bfe_u32 v41, v1, 2, 2')
    a('v_lshl_add_u32 v41, v3, 3, v41')
    a('v_lshl_add_u32 v40, v41, 8, v40')
    a('s_and_b32 s92, s3, 1')
    a('s_lshl_b32 s92, s92, 3')
    a('v_add_u32 v40, s92, v40')
    a('v_lshlrev_b32 v41, 8, v3')
    a('v_lshl_add_u32 v41, v4, 4, v41')
    a(f'v_add_u32 v41, {A_X}, v41')
    a('v_lshlrev_b32 v42, 6, v3')
    a('v_lshl_add_u32 v42, v4, 4, v42')
    a('s_lshl_b32 s96, s4, 13')
    if WS_QP:
        a(f's_add_u32 s96, s96, {WS_QP}')
    a('s_lshl_b32 s92, s5, 11')
    a('s_add_u32 s97, s96, s92')
    a('s_lshl_b32 s92, s3, 8')
    a('s_add_u32 s97, s97, s92')
    get_tag()
    stamp(2)
    if o.loc:
        a('s_getreg_b32 s1, hwreg(HW_REG_XCC_ID, 0, 4)')
        a(f's_xor_b32 s{S_XCC}, s1, s{S_TAG}')
    a(f's_add_u32 s98, s97, {WS_QPL - WS_QP}')
    a(f's_add_u32 s99, s96, {(WS_QPL - WS_QP) if o.qloc else 0}')
    a('v_bfe_u32 v43, v1, 2, 2')
    a('v_lshlrev_b32 v43, 11, v43')
    a('v_lshl_add_u32 v43, v3, 6, v43')
    a('v_lshl_add_u32 v43, v4, 4, v43')
    a('s_cmp_lt_u32 s3, 4')
    a('s_cbranch_scc1 L_wq_lo')
    a('s_waitcnt vmcnt(9)')
    a('s_branch L_wq_hi')
    a.label('L_wq_lo')
    a('s_waitcnt vmcnt(1)')
    a.label('L_wq_hi')
    a('s_barrier')
    W1, XF, AC = 12, 44, 60
    for t in range(4):
        tr_op(W1 + 4 * t, 40, A_WQ + 8192 * t, 1024)
        a(f'ds_read_b128 {vr(XF + 4 * t, 4)}, v41 offset:{64 * t}')
    for t in range(4):
        a(f's_waitcnt lgkmcnt({3 * (3 - t)})')
        mfma16(AC, W1 + 4 * t, XF + 4 * t, t == 0)
    a(f'v_cvt_pk_bf16_f32 v64, v{AC}, v{AC + 1}')
    a(f'v_cvt_pk_bf16_f32 v65, v{AC + 2}, v{AC + 3}')
    a(f'v_bitop3_b32 v66, v64, v65, s{S_TAG} {XOR3}')
    ex(M4)
    if o.qloc:
        a(f'buffer_store_dwordx4 v[64:67], v42, {S(R_WS)}, s98 offen')
    a(f'buffer_store_dwordx4 v[64:67], v42, {S(R_WS)}, s97 offen sc1')
    ex(-1)
    stamp(3)
    UK, Q, AC2, FR = 68, 100, 132, 140

    def a2_loads():
        for n in range(8):
            a(f'buffer_load_dwordx4 {vr(Q + 4 * n, 4)}, v43, {S(R_WS)}, s99 offen offset:{256 * n} sc1')
    a(f's_cmp_lt_u32 s5, {o.nsamp}')
    a('s_cselect_b32 s98, s3, 99')
    a('v_lshlrev_b32 v30, 7, v1')
    a(f'v_mov_b32 v31, s{S_TAG}')
    AW = 3 if o.arrpos == 2 else 7
    a('s_cmp_lt_u32 s3, 4')
    a('s_cbranch_scc1 L_a2')
    a('s_waitcnt vmcnt(0)')
    if o.arrpos == 0:
        arrive(7, 22, 23, 0, 's98')
    a('s_barrier')
    if o.arrpos == 1:
        arrive(7, 22, 23, 0, 's98')
    a('s_branch L_a_done')
    a.label('L_a2')
    a(f's_waitcnt vmcnt({o.qloc})')
    if o.qdelay:
        a(f's_sleep {o.qdelay}')
    a2_loads()
    a('v_lshrrev_b32 v12, 2, v11')
    a('v_lshl_add_u32 v12, v12, 3, v4')
    a('v_lshlrev_b32 v12, 8, v12')
    a('v_xor_b32 v13, v3, v11')
    a('v_lshl_add_u32 v12, v13, 4, v12')
    a('s_lshl_b32 s92, s3, 13')
    a(f's_add_u32 s92, s92, {A_WUK}')
    a('v_add_u32 v12, s92, v12')
    a('s_barrier')
    for t in range(4):
        a(f'v_xor_b32 v13, {64 * t}, v12')
        for sub in range(2):
            a(f'ds_read_b128 {vr(UK + 16 * sub + 4 * t, 4)}, v13 offset:{1024 * sub}')
    a('v_lshlrev_b32 v15, 8, v4')
    a('v_lshl_add_u32 v15, v3, 4, v15')
    a('s_lshl_b32 s91, s3, 6')
    a(f's_add_u32 s91, s91, {A_C}')
    a('v_add_u32 v15, s91, v15')
    a(f'v_add_u32 v16, {A_C}, v2')
    a('v_lshlrev_b32 v20, 15, v3')
    a('v_lshl_add_u32 v20, v11, 4, v20')
    a(f'v_lshlrev_b32 v21, {10 if o.hc else 3}, v3')
    a('s_lshl_b32 s91, s4, 10')
    a('s_lshl_b32 s92, s5, 8')
    a('s_add_u32 s92, s92, s91')
    a(f's_lshr_b32 s93, s92, {5 if o.hc else 1}')
    if WS_QA:
        a(f's_add_u32 s92, s92, {WS_QA}')
    a(f's_add_u32 s93, s93, {WS_QAH}')
    a(f's_mov_b32 s{S_CNT}, {SPIN}')
    a('s_branch L_a2chk')
    a.label('L_a2poll')
    if o.qloc:
        a(f's_add_u32 s99, s96, {WS_QPL - WS_QP}')
        a(f's_and_b32 s91, s{S_CNT}, 7')
        a('s_cselect_b32 s99, s99, s96')
    a2_loads()
    a.label('L_a2chk')
    for n in range(8):
        a(f's_waitcnt vmcnt({7 - n})')
        a(f'v_bitop3_b32 v{Q + 4 * n + 2}, v{Q + 4 * n}, v{Q + 4 * n + 1}, v{Q + 4 * n + 2} {XOR3}')
    a(f'v_max3_u32 v17, v{Q + 2}, v{Q + 6}, v{Q + 10}')
    a(f'v_min3_u32 v18, v{Q + 2}, v{Q + 6}, v{Q + 10}')
    a(f'v_max3_u32 v17, v17, v{Q + 14}, v{Q + 18}')
    a(f'v_min3_u32 v18, v18, v{Q + 14}, v{Q + 18}')
    a(f'v_max3_u32 v17, v17, v{Q + 22}, v{Q + 26}')
    a(f'v_min3_u32 v18, v18, v{Q + 22}, v{Q + 26}')
    a(f'v_max3_u32 v17, v17, v{Q + 30}, s{S_TAG}')
    a(f'v_min3_u32 v18, v18, v{Q + 30}, s{S_TAG}')
    a('v_cmp_ne_u32 vcc, v17, v18')
    a('s_cbranch_vccz L_a2go')
    a(f's_sub_u32 s{S_CNT}, s{S_CNT}, 1')
    a('s_cbranch_scc0 L_a2poll')
    a.label('L_a2go')
    if o.st3:
        a('s_memrealtime s[72:73]')
    stamp(4)
    if o.arrpos == 2:
        arrive(3, 22, 23, 0, 's98')
    a('s_waitcnt lgkmcnt(0)')
    for n in range(8):
        for sub in range(2):
            d = AC2 + 4 * sub
            c = '0' if n == 0 else vr(d, 4)
            a(f'v_mfma_f32_16x16x16_bf16 {vr(d, 4)}, {vr(UK + 16 * sub + 2 * n, 2)}, {vr(Q + 4 * n, 2)}, {c}')
    for c in ('row_ror:4', 'row_ror:8'):
        for i in range(8):
            dpp('v_add_f32', AC2 + i, AC2 + i, AC2 + i, c)
    for i in range(4):
        a(f'v_cvt_pk_bf16_f32 v{FR + i}, v{AC2 + 2 * i}, v{AC2 + 2 * i + 1}')
    ex(M4)
    a(f'ds_write_b128 v15, {vr(FR, 4)}')
    ex(-1)
    a('s_waitcnt lgkmcnt(0)')
    a.label('L_a_done')
    a('s_barrier')
    a('s_cmp_lg_u32 s3, 0')
    a('s_cbranch_scc1 L_a_pub')
    a(f'ds_read_b128 {vr(FR, 4)}, v16')
    a('s_waitcnt lgkmcnt(0)')
    a(f'buffer_store_dwordx4 {vr(FR, 4)}, v20, {S(R_WS)}, s92 offen sc1')
    xor_chain(18, range(FR, FR + 4))
    for c in ('quad_perm:[1,0,3,2]', 'quad_perm:[2,3,0,1]', 'row_ror:4', 'row_ror:8'):
        dpp('v_xor_b32', 18, 18, 18, c)
    a(f'v_xor_b32 v19, s{S_TAG}, v18')
    ex(0x0001000100010001)
    a(f'buffer_store_dwordx2 v[18:19], v21, {S(R_WS)}, s93 offen sc1')
    ex(-1)
    stamp(5)
    a.label('L_a_pub')
    a(f's_cmp_lg_u32 s98, {AW}')
    a('s_cbranch_scc1 L_norel')
    a('s_waitcnt vmcnt(0)')
    a('v_readfirstlane_b32 s1, v22')
    a(f's_and_b32 s1, s1, {32 * o.nsamp - 1}')
    a(f's_cmp_lg_u32 s1, {32 * o.nsamp - 1}')
    a('s_cbranch_scc1 L_norel')
    a(f's_mov_b32 s1, {WS_HU}')
    if o.nh < 64:
        ex((1 << o.nh) - 1)
    a(f'buffer_store_dword v31, v30, {S(R_WS)}, s1 offen sc1')
    ex(-1)
    if o.nh > 64:
        a(f's_mov_b32 s1, {WS_HU + 8192}')
        a(f'buffer_store_dword v31, v30, {S(R_WS)}, s1 offen sc1')
    a.label('L_norel')
    if o.loc:
        a('s_cmp_lg_u32 s3, 5')
        a('s_cbranch_scc1 L_noxt')
        a('s_and_b32 s92, s2, 7')
        a('s_lshl_b32 s92, s92, 11')
        a('s_lshr_b32 s93, s2, 3')
        a('s_lshl_b32 s93, s93, 7')
        a('s_add_u32 s92, s92, s93')
        a(f's_add_u32 s92, s92, {WS_XT}')
        a(f'v_mov_b32 v9, s{S_XCC}')
        ex(1)
        a(f'buffer_store_dword v9, off, {S(R_WS)}, s92 sc1')
        ex(-1)
        a.label('L_noxt')
    a('s_and_b32 s7, s2, 7')
    a('s_lshr_b32 s63, s2, 3')
    a('v_lshl_add_u32 v6, v3, 18, v5')
    a('v_xor_b32 v7, 0x80, v6')
    a('s_lshl_b32 s0, s5, 20')
    a('s_add_u32 s0, s0, s6')
    a('s_mov_b32 s61, 0')
    D, WL, CA, OPC, OPD = 16, 32, 40, 64, 96
    a('s_and_b32 s94, s3, 3')
    a('s_lshr_b32 s95, s3, 2')
    a('v_bfe_u32 v56, v1, 2, 3')
    a('v_lshlrev_b32 v56, 1, v56')
    a('s_lshl_b32 s92, s94, 2')
    a(f'v_bitop3_b32 v56, v56, v4, s92 {XOR3}')
    a('v_lshlrev_b32 v56, 4, v56')
    a('v_bfe_u32 v58, v1, 2, 2')
    a('v_lshl_add_u32 v58, v3, 3, v58')
    a('v_lshl_add_u32 v56, v58, 8, v56')
    a(f'v_add_u32 v56, {A_WUV}, v56')
    tr64_addr(57, 58)
    a('s_lshl_b32 s91, s94, 13')
    a(f's_add_u32 s91, s91, {A_WO}')
    a('v_add_u32 v57, s91, v57')
    a('v_and_b32 v5, 31, v1')
    a('v_lshlrev_b32 v5, 11, v5')
    a('s_lshl_b32 s90, s94, 16')
    a('s_lshl_b32 s91, s5, 9')
    a('s_add_u32 s90, s90, s91')
    a('s_lshl_b32 s91, s4, 4')
    a('s_add_u32 s90, s90, s91')
    a(f's_add_u32 s90, s90, {WS_REC}')
    a('s_lshl_b32 s96, s4, 2')
    a('s_add_u32 s96, s96, s5')
    a('s_lshl_b32 s96, s96, 2')
    a('s_add_u32 s96, s96, s94')
    a('s_lshl_b32 s91, s96, 13')
    a('s_lshl_b32 s93, s95, 12')
    a('s_add_u32 s91, s91, s93')
    a(f's_add_u32 s91, s91, {WS_OP}')
    a('s_lshl_b32 s92, s95, 4')
    a('v_lshlrev_b32 v48, 4, v11')
    a('v_lshl_add_u32 v48, v3, 1, v48')
    a('s_mul_i32 s93, s3, 272')
    a(f's_add_u32 s93, s93, {A_C}')
    a('v_add_u32 v48, s93, v48')
    a('v_and_b32 v49, 7, v1')
    a('v_mul_u32_u24 v49, 272, v49')
    a('v_lshl_add_u32 v49, v3, 4, v49')
    a(f'v_add_u32 v49, {A_C}, v49')
    a('v_lshlrev_b32 v50, 6, v3')
    a('v_lshl_add_u32 v50, v4, 4, v50')
    a('s_lshl_b32 s98, s4, 12')
    a('s_lshl_b32 s93, s94, 10')
    a('s_add_u32 s98, s98, s93')
    a('s_lshl_b32 s93, s5, 8')
    a('s_add_u32 s98, s98, s93')
    a(f's_add_u32 s98, s98, {WS_CP}')
    a('v_add_u32 v51, s92, v3')
    a('v_lshlrev_b32 v51, 2, v51')
    a('v_cmp_eq_u32 s[88:89], s95, v3')
    vF(128)
    a('v_lshlrev_b32 v129, 7, v4')
    a('v_lshl_add_u32 v129, v3, 4, v129')
    a('s_lshl_b32 s93, s94, 9')
    a(f's_add_u32 s93, s93, {A_D}')
    a('v_add_u32 v129, s93, v129')
    a('v_bfe_u32 v130, v1, 1, 2')
    a('v_lshlrev_b32 v130, 7, v130')
    a('v_bfe_u32 v9, v1, 3, 2')
    a('v_lshl_add_u32 v130, v9, 5, v130')
    a('v_and_b32 v9, 1, v1')
    a('v_lshl_add_u32 v130, v9, 4, v130')
    a(f'v_add_u32 v130, {A_D}, v130')
    a('v_lshlrev_b32 v131, 3, v1')
    a('s_lshl_b32 s6, s7, 14')
    a('s_lshl_b32 s93, s94, 12')
    a('s_add_u32 s6, s6, s93')
    a(f's_add_u32 s6, s6, {WS_CP}')
    a('s_lshl_b32 s99, s7, 12')
    a('s_lshl_b32 s93, s63, 8')
    a('s_add_u32 s99, s99, s93')
    a(f's_add_u32 s99, s99, {WS_HP}')
    a('s_lshl_b32 s96, s94, 14')
    a(f's_and_b32 s93, s2, {o.nl - 1}')
    a('s_lshl_b32 s93, s93, 7')
    a('s_add_u32 s96, s96, s93')
    a(f's_add_u32 s96, s96, {WS_OF}')
    a(f's_add_u32 s54, s{R_WS}, s96')
    a(f's_addc_u32 s55, s{R_WS + 1}, 0')
    a('v_lshrrev_b32 v8, 2, v1')
    a('s_cmp_lt_u32 s3, 4')
    a('s_cbranch_scc1 L_wlo')
    a('s_mov_b32 s61, 0')
    tr64_addr(58, 59)

    def go_wait(extra=0):
        a('s_lshl_b32 s96, s2, 7')
        a(f's_add_u32 s96, s96, {WS_GO}')
        ex(1)
        poll(lambda: a(f'buffer_load_dword v9, off, {S(R_WS)}, s96 sc1'), lambda: a(f'v_cmp_ne_u32 vcc, s{S_TAG}, v9'), 3)
        ex(-1)
    def hu_wait(tag):
        a('s_lshl_b32 s96, s2, 7')
        a(f's_add_u32 s96, s96, {WS_HU}')
        a(f's_add_u32 s0, s{R_WS}, s96')
        a(f's_addc_u32 s1, s{R_WS + 1}, 0')
        a(f's_mov_b32 s{S_CNT}, {SPIN}')
        a.label(tag)
        a('s_sleep 4')
        a('s_load_dword s96, s[0:1], 0 glc')
        a('s_waitcnt lgkmcnt(0)')
        a(f's_cmp_eq_u32 s96, s{S_TAG}')
        a(f's_cbranch_scc1 {tag}go')
        a(f's_sub_u32 s{S_CNT}, s{S_CNT}, 1')
        a(f's_cbranch_scc0 {tag}')
        a.label(tag + 'go')
    a(f's_bitcmp1_b32 {o.emask}, s63')
    a('s_cbranch_scc1 L_E1')
    if o.pf:
        a('s_cmp_lt_u32 s2, 64')
        a('s_cbranch_scc1 L_wnone')
        a('s_sub_u32 s93, s63, 8')
        a('s_lshl_b32 s93, s93, 2')
        a('s_add_u32 s93, s93, s94')
        a(f's_mul_i32 s93, s93, {16 * 2752}')
        a('s_mul_i32 s99, s7, 384')
        a('s_add_u32 s99, s99, s93')
        a('v_mul_u32_u24 v8, 2752, v8')
        a('v_lshlrev_b32 v9, 7, v4')
        a('v_min_u32 v9, 380, v9')
        a('v_add_u32 v8, v8, v9')
        if o.pf == 2:
            hu_wait('L_pfw')
        a(f'buffer_load_dword v60, v8, {S(R_WG)}, s99 offen nt')
        a(f'buffer_load_dword v61, v8, {S(R_WU)}, s99 offen nt')
    a.label('L_wnone')
    a('s_barrier')
    a('s_load_dword s97, s[54:55], 0 glc')
    a('s_branch L_cstart')
    OP = 64
    H, XR, HA, X4, EA = 16, 128, 140, 148, 164
    EW, ES, ER, ESR, EST, EG, ECS = 180, 181, 182, 183, 184, 185, 186
    a.label('L_E1')
    a('s_mul_i32 s93, s7, 6')
    a('s_bfm_b32 s63, s63, 0')
    a(f's_and_b32 s63, s63, {o.emask}')
    a('s_bcnt1_i32_b32 s63, s63')
    a('s_add_u32 s63, s63, s93')
    a('s_cmp_ge_u32 s63, 43')
    a('s_cbranch_scc1 L_wnone')
    a('s_mov_b32 s61, 1')
    if o.efgo == 1:
        go_wait()
    if o.pf == 2:
        hu_wait('L_efw')
    a('v_mul_u32_u24 v8, 2752, v8')
    a('v_lshl_add_u32 v8, v4, 4, v8')
    a(f's_mul_i32 s99, s94, {128 * 2752}')
    a('s_lshl_b32 s93, s63, 6')
    a('s_add_u32 s99, s99, s93')
    a('s_lshl_b32 s6, s94, 14')
    a('s_mov_b32 m0, s6')
    a('v_bfe_u32 v9, v1, 2, 2')
    a('v_lshlrev_b32 v9, 6, v9')
    a('v_lshl_add_u32 v9, v4, 10, v9')
    a('v_lshl_add_u32 v9, v3, 4, v9')
    a('s_lshl_b32 s93, s94, 8')
    a(f'buffer_load_dwordx4 {vr(XR, 4)}, v9, {S(R_X)}, s93 offen')
    for mat in range(2):
        for i in range(8):
            a(f's_add_u32 s93, s99, {16 * i * 2752}')
            a(f's_waitcnt vmcnt({(o.ef0 if 8 * mat + i < o.efn else o.efwin) - 1})')
            a(f'buffer_load_dwordx4 v8, {S(R_WG if mat == 0 else R_WU)}, s93 offen {o.r64} lds')
            a('s_add_u32 m0, m0, 1024')
    OPW, FA = 192, 64
    EAR, EPS, EHW, GL, GH, GO_ = 188, 189, 190, 191, 224, 225
    a('v_and_b32 v8, 0xff, v6')
    a('v_lshl_add_u32 v8, v3, 10, v8')
    a('v_xor_b32 v9, 0x80, v8')
    a('s_lshl_b32 s99, s63, 15')
    a('s_lshl_b32 s93, s94, 8')
    a('s_add_u32 s99, s99, s93')
    a('s_lshl_b32 s98, s94, 13')
    a(f's_add_u32 s98, s98, {A_WD}')
    a('s_mov_b32 m0, s98')
    for i in range(8):
        a(f's_add_u32 s93, s99, {4096 * i}')
        a(f's_waitcnt vmcnt({o.efwin - 1})')
        a(f'buffer_load_dwordx4 v{8 + (i // 2) % 2}, {S(R_WD)}, s93 offen nt lds')
        a('s_add_u32 m0, m0, 1024')
    a('v_bfe_u32 v57, v1, 2, 3')
    a('v_lshlrev_b32 v57, 1, v57')
    a('v_xor_b32 v57, v57, v4')
    a('v_lshlrev_b32 v57, 4, v57')
    a('v_lshl_add_u32 v57, v59, 8, v57')
    a('v_add_u32 v57, s98, v57')
    a(f'v_lshlrev_b32 v{EAR}, 6, v4')
    a(f'v_lshl_add_u32 v{EAR}, v3, 4, v{EAR}')
    a(f'v_add_u32 v{EAR}, {A_ACT}, v{EAR}')
    a('v_bfe_u32 v9, v1, 1, 1')
    a(f'v_mul_u32_u24 v{EPS}, 6144, v9')
    a('v_and_b32 v9, 1, v1')
    a(f'v_lshl_add_u32 v{EPS}, v9, 6, v{EPS}')
    a(f'v_lshl_add_u32 v{EPS}, v3, 4, v{EPS}')
    a('s_lshl_b32 s93, s94, 10')
    a(f's_add_u32 s93, s93, {A_H}')
    a(f'v_add_u32 v{EHW}, s93, v2')
    a('v_cmp_lt_u32 vcc, 23, v1')
    a('v_mov_b32 v9, 0x7fffff00')
    a(f'v_cndmask_b32 v{GL}, v2, v9, vcc')
    a('s_and_b32 s93, s63, 1')
    a('s_lshl_b32 s93, s93, 1')
    a('v_bfe_u32 v9, v1, 2, 1')
    a('v_add_u32 v9, s93, v9')
    a(f'v_lshlrev_b32 v{GH}, 8, v4')
    a(f'v_lshl_add_u32 v{GH}, v9, 4, v{GH}')
    a('s_lshr_b32 s93, s63, 3')
    a('s_lshl_b32 s93, s93, 10')
    a('s_bfe_u32 s96, s63, 0x20001')
    a('s_lshl_b32 s96, s96, 6')
    a('s_add_u32 s93, s93, s96')
    a(f's_add_u32 s93, s93, {A_H}')
    a(f'v_add_u32 v{GH}, s93, v{GH}')
    a(f'v_lshlrev_b32 v{GO_}, 10, v9')
    a(f'v_lshl_add_u32 v{GO_}, v4, 4, v{GO_}')
    a(f'v_lshl_add_u32 v{GO_}, v3, 1, v{GO_}')
    a('v_add_u32 v58, s6, v58')
    a(f'v_lshlrev_b32 v{EW}, 8, v4')
    a(f'v_lshl_add_u32 v{EW}, v3, 4, v{EW}')
    a(f'v_add_u32 v{EW}, s6, v{EW}')
    a(f'v_lshlrev_b32 v{ES}, 3, v4')
    a(f'v_lshl_add_u32 v{ES}, v3, 2, v{ES}')
    a(f'v_add_u32 v{ES}, s6, v{ES}')
    a('s_and_b32 s93, s3, 1')
    a('s_lshl_b32 s93, s93, 6')
    a(f'v_add_u32 v{EST}, s93, v1')
    a(f'v_lshrrev_b32 v{ESR}, 5, v{EST}')
    a(f'v_and_b32 v{ER}, 31, v{EST}')
    a(f'v_lshlrev_b32 v{ER}, 2, v{ER}')
    a(f'v_lshl_add_u32 v{ER}, v{ESR}, 8, v{ER}')
    a(f'v_lshlrev_b32 v{ESR}, 3, v{ESR}')
    a(f'v_lshlrev_b32 v{EST}, 1, v{EST}')
    a(f'v_add_u32 v{EST}, {A_ACT}, v{EST}')
    vF(EG)
    for i in range(4):
        a(f'v_mov_b32 v{X4 + i}, s{S_ONES}')
    a('v_mov_b32 v226, v57')
    a('v_mov_b32 v227, v58')

    def e_lds_write():
        ex(M4)
        for k in range(4):
            a(f'ds_write_b128 v{EW}, {vr(EA + 4 * k, 4)} offset:{64 * k}')
        ex(-1)
    a('s_branch L_wnone')
    a.label('L_wlo')
    a('s_lshl_b32 s93, s3, 15')
    a('s_add_u32 s0, s0, s93')
    a('s_lshl_b32 s93, s3, 13')
    a(f's_add_u32 m0, s93, {A_WUV}')
    a('v_lshlrev_b32 v8, 10, v8')
    a('v_lshl_add_u32 v8, v4, 4, v8')
    a('s_lshl_b32 s97, s7, 19')
    a('s_lshl_b32 s93, s3, 17')
    a('s_add_u32 s97, s97, s93')
    a('s_lshl_b32 s93, s63, 6')
    a('s_add_u32 s97, s97, s93')
    assert o.wgo
    for i in range(8):
        a(f's_add_u32 s93, s97, {i * 16384}')
        if i >= o.owin:
            a(f's_waitcnt vmcnt({o.owin - 1})')
        a(f'buffer_load_dwordx4 v8, {S(R_WO)}, s93 offen {o.r64} lds')
        if i < 7:
            a('s_add_u32 m0, m0, 1024')
    a(f's_sub_u32 m0, m0, {A_WO - A_WUV + 7168}')
    if o.wgo:
        if o.egate == 0:
            a('s_waitcnt vmcnt(0)')
            a(f's_bitcmp1_b32 {o.emask}, s63')
            a('s_cbranch_scc1 L_nogw')
        go_wait()
        a.label('L_nogw')
        for t in range(4):
            for k in range(2):
                tr_op(OPD + 8 * t + 4 * k, 57, 2048 * t + 32 * k, 256)
            if t == 1:
                a('s_waitcnt lgkmcnt(2)')
        a('s_waitcnt lgkmcnt(0)')
    if o.loc:
        a('s_lshl_b32 s93, s7, 11')
        a(f's_add_u32 s93, s93, {WS_XT}')
        a('v_lshlrev_b32 v9, 7, v11')
        a(f'buffer_load_dword v10, v9, {S(R_WS)}, s93 offen sc1')
        for i in range(4):
            a(f'buffer_load_dwordx4 {vr(D + 4 * i, 4)}, v128, {S(R_WS)}, s6 offen offset:{1024 * i} sc1')
    for i in range(8):
        a(f's_add_u32 s93, s0, {(16 * (i % 2) + i // 2) * 8192}')
        if not o.wgo:
            a(f's_waitcnt vmcnt({o.wwin - 1})')
        a(f'buffer_load_dwordx4 v{6 + (i // 2) % 2}, {S(R_WUV)}, s93 offen nt lds')
        if i < 7:
            a('s_add_u32 m0, m0, 1024')
    a('s_waitcnt vmcnt(0)')
    if o.loc:
        a(f'v_cmp_ne_u32 vcc, s{S_XCC}, v10')
        a('s_cmp_eq_u64 vcc, 0')
        a(f's_cselect_b32 s{S_LOC}, 1, 0')
    a('s_load_dword s97, s[54:55], 0 glc')
    a('s_barrier')
    for t in range(4):
        for k in range(2):
            tr_op(OPC + 8 * t + 4 * k, 56, 8192 * t + 8 * k, 1024)
            if not o.wgo:
                tr_op(OPD + 8 * t + 4 * k, 57, 2048 * t + 32 * k, 256)
        a('s_waitcnt lgkmcnt(4)')
    if o.lprio:
        a(f's_setprio {o.lprio}')
    a.label('L_cstart')
    stamp(6)
    RED4 = ('quad_perm:[1,0,3,2]', 'quad_perm:[2,3,0,1]', 'row_ror:4', 'row_ror:8')

    def weights():
        a('v_mov_b32 v54, v52')
        for c in RED4:
            dpp('v_max_f32', 54, 54, 54, c)
        swap_step('v_max_f32', 54, 55, 16)
        a('v_sub_f32 v53, v52, v54')
        a('v_exp_f32 v53, v53')
        a('v_cvt_pk_bf16_f32 v54, v53, 0')
        a('v_lshlrev_b32 v53, 16, v54')
        for i in range(4):
            a(f'ds_bpermute_b32 v{WL + i}, v51, v54 offset:{16 * i}')
        a('s_waitcnt lgkmcnt(0)')
        for i in range(4):
            a(f'v_lshlrev_b32 v{WL + 4 + i}, 16, v{WL + i}')
    a('v_mov_b32 v52, -1')
    a('s_lshl_b32 s93, s94, 2')
    a(f's_add_u32 s93, s93, {A_X}')
    a('v_mov_b32 v59, s93')
    a(f'v_mov_b32 v58, s{S_TAG}')
    a('s_waitcnt lgkmcnt(0)')
    a(f's_cmp_eq_u32 s97, s{S_TAG}')
    a('s_cbranch_scc1 L_ofgo')
    a('v_lshrrev_b32 v9, 4, v5')
    a('s_lshl_b32 s96, s94, 12')
    a('s_lshl_b32 s93, s4, 2')
    a('s_add_u32 s96, s96, s93')
    a(f's_add_u32 s96, s96, {WS_M0}')
    a(f'buffer_load_dword v52, v9, {S(R_WS)}, s96 offen sc1')
    a('s_waitcnt vmcnt(0)')
    a(f'v_xor_b32 v52, s{S_TAG}, v52')
    weights()
    if o.oone:
        a('s_cmp_lt_u32 s3, 4')
        a('s_cbranch_scc1 L_of0')
        a(f's_mov_b32 s{S_CNT}, {SPIN * 40}')
        a.label('L_ofl')
        a('ds_read_b32 v10, v59')
        a('s_waitcnt lgkmcnt(0)')
        a(f'v_cmp_ne_u32 vcc, s{S_TAG}, v10')
        a('s_cbranch_vccz L_ofgo2')
        a(f's_sub_u32 s{S_CNT}, s{S_CNT}, 1')
        a('s_cbranch_scc0 L_ofl')
        a('s_branch L_ofgo2')
        a.label('L_of0')
    a(f's_mov_b32 s{S_CNT}, {SPIN}')
    a.label('L_of')
    a('s_load_dword s96, s[54:55], 0 glc')
    a('s_waitcnt lgkmcnt(0)')
    a(f's_cmp_eq_u32 s96, s{S_TAG}')
    a('s_cbranch_scc1 L_ofgo')
    if o.osl:
        a(f's_sleep {o.osl}')
    a(f's_sub_u32 s{S_CNT}, s{S_CNT}, 1')
    a('s_cbranch_scc0 L_of')
    a.label('L_ofgo')
    if o.oone:
        a('ds_write_b32 v59, v58')
        a.label('L_ofgo2')
    stamp(7)
    a(f's_mov_b32 s{S_CNT}, {SPIN}')
    a.label('L_call')
    a(f'buffer_load_dwordx4 v[12:15], v5, {S(R_WS)}, s90 offen sc1')
    for i in range(4):
        a(f'buffer_load_dwordx4 {vr(D + 4 * i, 4)}, v2, {S(R_WS)}, s91 offen offset:{1024 * i} sc1')
    a(f's_sub_u32 s{S_CNT}, s{S_CNT}, 1')
    a('s_cbranch_scc1 L_cdone')
    a('s_waitcnt vmcnt(4)')
    a('v_cmp_ne_u32 vcc, v12, v52')
    xor_chain(10, [12, 13, 14, 15], f's{S_TAG}')
    a('v_cndmask_b32 v9, 0, v14, s[88:89]')
    a('s_cbranch_vccnz L_cnewm')
    a.label('L_crec')
    a('v_mul_f32 v14, v53, v13')
    side = []
    for c in RED4:
        side.append(f'v_add_f32_dpp v14, v14, v14 {c} row_mask:0xf bank_mask:0xf')
    side += ['v_mov_b32 v15, v14', 'v_permlane16_swap_b32 v14, v15', 'v_add_f32 v14, v14, v15', 'v_rcp_f32 v14, v14']
    for i in range(4):
        a(f's_waitcnt vmcnt({3 - i})')
        if i == 3:
            stamp(8)
            f3(66)
        xor_chain(9, [9] + list(range(D + 4 * i, D + 4 * i + 4)))
        if i == 3:
            side = [f'v_xor_b32_dpp v9, v9, v9 {c} row_mask:0xf bank_mask:0xf' for c in RED4]
        for u in range(4):
            for e in range(2):
                c = '0' if i == 0 else f'v{CA + 2 * u + e}'
                a(f'v_dot2_f32_bf16 v{CA + 2 * u + e}, v{D + 4 * i + u}, v{WL + 4 * e + i}, {c}')
            if side:
                a(side.pop(0))
    a('v_mov_b32 v15, v9')
    for k in range(4):
        a(f'v_permlane16_swap_b32 v{CA + 2 * k}, v{CA + 2 * k + 1}')
        if k == 1:
            a('v_permlane16_swap_b32 v9, v15')
            a('v_xor_b32 v9, v9, v15')
            a('v_mov_b32 v15, v9')
    a('v_permlane32_swap_b32 v9, v15')
    a(f'v_bitop3_b32 v9, v9, v15, v10 bitop3:0xbe')
    a('v_cmp_ne_u32 vcc, 0, v9')
    a.label('L_cdone')
    for k in range(4):
        a(f'v_add_f32 v{CA + 2 * k}, v{CA + 2 * k}, v{CA + 2 * k + 1}')
    for k in range(2):
        a(f'v_permlane32_swap_b32 v{CA + 4 * k}, v{CA + 4 * k + 2}')
    for k in range(2):
        a(f'v_add_f32 v{CA + 4 * k}, v{CA + 4 * k}, v{CA + 4 * k + 2}')
    a('s_cbranch_vccnz L_cagain ;noflush')
    a.label('L_cok')
    a(f'v_mul_f32 v{CA}, v{CA}, v14')
    a(f'v_mul_f32 v{CA + 4}, v{CA + 4}, v14')
    a(f'v_cvt_pk_bf16_f32 v{CA}, v{CA}, v{CA + 4}')
    a(f'ds_write_b16 v48, v{CA}')
    a(f'ds_write_b16_d16_hi v48, v{CA} offset:8')
    f3(68)
    a('s_waitcnt lgkmcnt(0)')
    a('s_barrier')
    f3(70)
    a('s_cmp_ge_u32 s3, 4')
    a('s_cbranch_scc1 L_hi')
    for t in range(4):
        a(f'ds_read_b128 {vr(D + 4 * t, 4)}, v49 offset:{64 * t}')
    for t in range(4):
        a(f's_waitcnt lgkmcnt({3 - t})')
        for k in range(2):
            mfma16(CA + 4 * k, OPC + 8 * t + 4 * k, D + 4 * t, t == 0)
    for i in range(8):
        dpp('v_add_f32', CA + i, CA + i, CA + i, 'row_ror:4')
    for i in range(4):
        a(f'v_cvt_pk_bf16_f32 v{12 + i}, v{CA + 2 * i}, v{CA + 2 * i + 1}')
    a(f's_mov_b32 s{S_CNT}, {SPIN}')
    ex(M4)
    if o.loc:
        a(f's_cmp_eq_u32 s{S_LOC}, 0')
        a('s_cbranch_scc1 L_cfar ;noflush')
        a(f'buffer_store_dwordx4 v[12:15], v50, {S(R_WS)}, s98 offen')
        a('s_branch L_cst ;noflush')
        a.label('L_cfar')
    a(f'buffer_store_dwordx4 v[12:15], v50, {S(R_WS)}, s98 offen sc1')
    a.label('L_cst')
    ex(-1)
    stamp(9)
    f3(72)
    a('s_waitcnt vmcnt(0)')
    f3(74)
    a.label('L_dre')
    for i in range(4):
        a(f'buffer_load_dwordx4 {vr(D + 4 * i, 4)}, v128, {S(R_WS)}, s6 offen offset:{1024 * i} sc1')
    for t in range(4):
        a(f's_waitcnt vmcnt({3 - t})')
        for k in range(2):
            mfma16(CA + 4 * k, OPD + 8 * t + 4 * k, D + 4 * t, t == 0)
    a(f'v_cmp_u_f32 vcc, v{CA}, v{CA}')
    for i in range(8):
        dpp('v_add_f32', CA + i, CA + i, CA + i, 'row_ror:4')
    a('s_cbranch_vccnz L_dnan ;noflush')
    a.label('L_dok')
    stamp(10)
    f3(76)
    for i in range(8):
        dpp('v_add_f32', CA + i, CA + i, CA + i, 'row_ror:8')
    ex(M4)
    a(f'ds_write_b128 v129, {vr(CA, 4)}')
    a(f'ds_write_b128 v129, {vr(CA + 4, 4)} offset:64')
    ex(-1)
    a('s_waitcnt lgkmcnt(0)')
    a('s_barrier')
    if o.wb:
        ex(M4)
        a(f'buffer_store_dwordx4 v[12:15], v50, {S(R_WS)}, s98 offen sc1')
        ex(-1)
    a('s_cmp_lg_u32 s3, 0')
    a('s_cbranch_scc1 L_end')
    red4_read(D, 130)
    a(f'v_cvt_pk_bf16_f32 v{D}, v{D}, v{D + 1}')
    a(f'v_cvt_pk_bf16_f32 v{D + 1}, v{D + 2}, v{D + 3}')
    a(f'buffer_store_dwordx2 {vr(D, 2)}, v131, {S(R_WS)}, s99 offen sc1')
    f3(78)
    if o.stamps:
        a('s_memrealtime s[88:89]')
    a('s_waitcnt vmcnt(0)')
    if o.stamps:
        a('s_barrier')
    if o.st3:
        o.stamps = 1
    if o.stamps:
        dump_stamps(13, 0, 'a')
    a('s_endpgm')

    nan_retry('L_dnan', range(D, D + 16), 'L_dre', 'L_dok')
    a.label('L_cnewm')
    a('v_mov_b32 v52, v12')
    weights()
    a('s_branch L_crec')
    a.label('L_cagain')
    a(f's_cmp_lt_i32 s{S_CNT}, 0')
    a('s_cbranch_scc1 L_cok')
    a('s_branch L_call')
    a.label('L_hi')
    a('s_cmp_eq_u32 s61, 0')
    if o.stamps:
        a('s_cbranch_scc0 L_hi2')
        stamp(9)
        a('s_bfe_u32 s93, s2, 0x20003')
        a('s_cmp_lg_u32 s93, s94')
        a('s_cbranch_scc1 L_end')
        a(f's_sub_u32 s84, {SPIN}, s{S_CNT}')
        dump_stamps(11, 1)
        a('s_endpgm')
        a.label('L_hi2')
    else:
        a('s_cbranch_scc1 L_end')

    def e_lds_read():
        for w in range(4):
            a(f'ds_read_b32 v{H + 2 * w}, v{ER} offset:{16384 * w}')
            a(f'ds_read_b32 v{H + 2 * w + 1}, v{ER} offset:{16384 * w + 128}')
    for t in range(4):
        for k in range(4):
            tr_op(OP + 16 * t + 4 * k, 227, 8192 * (k // 2) + 2048 * t + 32 * (k % 2), 256)
        a(f'v_xor_b32 v9, {64 * t}, v226')
        for k in range(2):
            tr_op(OPW + 8 * t + 4 * k, 9, 8 * k, 1024)
        a(f's_waitcnt lgkmcnt({2 if t < 3 else 0})')
    for t in range(4):
        for k in range(4):
            mfma16(EA + 4 * k, OP + 16 * t + 4 * k, X4, t == 0)
    for i in range(4):
        a(f'v_lshlrev_b32 v{132 + 2 * i}, 16, v{XR + i}')
        a(f'v_and_b32 v{133 + 2 * i}, s{S_MASK}, v{XR + i}')

    e_lds_write()
    a('s_lshl_b32 s98, s63, 7')
    a(f's_mul_i32 s93, s94, {4 * 12288}')
    a('s_add_u32 s98, s98, s93')
    a(f's_add_u32 s98, s98, {WS_FP}')
    a('s_mul_i32 s99, s63, 6144')
    a(f's_add_u32 s99, s99, {WS_FP}')
    a('s_add_u32 s97, s99, 4096')
    a('s_lshr_b32 s96, s63, 1')
    a('s_lshl_b32 s96, s96, 6')
    a('s_lshl_b32 s90, s94, 10')
    a(f's_add_u32 s90, s90, {WS_HP}')
    a('s_waitcnt lgkmcnt(0)')
    a(f's_mov_b32 s91, {f32bits(GELU_K * 0.044715)}')
    a(f'v_mov_b32 v228, {GELU_BITS}')
    stamp(5)
    a('s_barrier')
    e_lds_read()
    a('s_waitcnt lgkmcnt(0)')
    a(f'v_add_f32 v{ECS}, v{H}, v{H + 2}')
    a(f'v_add_f32 v{ECS + 1}, v{H + 1}, v{H + 3}')
    for w in range(2, 4):
        a(f'v_add_f32 v{ECS}, v{ECS}, v{H + 2 * w}')
        a(f'v_add_f32 v{ECS + 1}, v{ECS + 1}, v{H + 2 * w + 1}')
    a('s_barrier')
    if o.edelay:
        a(f's_sleep {o.edelay}')

    def e_loads():
        a('s_mov_b32 s92, s90')
        for r in range(8):
            a(f'buffer_load_dwordx4 {vr(H + 4 * r, 4)}, v{EG}, {S(R_WS)}, s92 offen sc1')
            if r < 7:
                a('s_add_u32 s92, s92, 4096')
    f3(66)
    a(f's_mov_b32 s{S_CNT}, {SPIN}')
    a.label('L_ere')
    e_loads()
    for r in range(8):
        a(f's_waitcnt vmcnt({7 - r})')
        if r == 7:
            stamp(9)
            f3(68)
        for u in range(4):
            for e in range(2):
                c = f'v{132 + 2 * u + e}' if r == 0 else f'v{HA + 2 * u + e}'
                a(f'v_dot2_f32_bf16 v{HA + 2 * u + e}, v{H + 4 * r + u}, s{S_LO1 + e}, {c}')
    f3(70)
    for i in range(4):
        a(f'v_cvt_pk_bf16_f32 v{X4 + i}, v{HA + 2 * i}, v{HA + 2 * i + 1}')
    for t in range(4):
        if t < 3:
            for i in range(4):
                a(f'v_mov_b32_dpp v{X4 + 4 * (t + 1) + i}, v{X4 + i} row_shl:{4 * (t + 1)} row_mask:0xf bank_mask:0xf bound_ctrl:0')
        for k in range(4):
            mfma16(EA + 4 * k, OP + 16 * t + 4 * k, X4 + 4 * t, t == 0)
        if t == 0:
            a(f'ds_write_b128 v{EHW}, {vr(X4, 4)}')
            for i in range(4):
                a(f'v_dot2_f32_bf16 v9, v{X4 + i}, s{S_ONES}, {"0" if i == 0 else "v9"}')
                a(f'v_dot2_f32_bf16 v11, v{X4 + i}, v{X4 + i}, {"0" if i == 0 else "v11"}')
        if t == 1:
            a('v_cmp_u_f32 vcc, v9, v9')
            for c in ('row_ror:4', 'row_ror:8'):
                dpp('v_add_f32', 9, 9, 9, c)
                dpp('v_add_f32', 11, 11, 11, c)
            a('s_cbranch_vccnz L_enan ;noflush')
            a.label('L_eok')
        if t == 2:
            a('v_permlane16_swap_b32 v9, v11')
            a('v_add_f32 v9, v9, v11')
            swap_step('v_add_f32', 9, 11, 32)
    ex(0x000f000f)
    f3(72)
    a(f'ds_write_b32 v{ES}, v9 offset:1024')
    e_lds_write()
    a('s_waitcnt lgkmcnt(0)')
    a('s_barrier')
    f3(74)
    a('s_cmp_ge_u32 s3, 6')
    a('s_cbranch_scc1 L_eact')
    for w in range(4):
        a(f'ds_read_b64 v[{H + 8 + 2 * w}:{H + 9 + 2 * w}], v{ESR} offset:{16384 * w + 1024}')
    e_lds_read()
    a('s_waitcnt lgkmcnt(8)')
    for w in range(1, 4):
        a(f'v_add_f32 v{H + 8}, v{H + 8}, v{H + 8 + 2 * w}')
        a(f'v_add_f32 v{H + 9}, v{H + 9}, v{H + 9 + 2 * w}')
    MU, VA = H + 8, H + 9
    a(f'v_mul_f32 v{MU}, 0x3b000000, v{MU}')
    a(f'v_mul_f32 v{VA}, 0x3b000000, v{VA}')
    a(f'v_fma_f32 v{VA}, -v{MU}, v{MU}, v{VA}')
    a(f'v_max_f32 v{VA}, 0, v{VA}')
    a(f'v_add_f32 v{VA}, 0x3727c5ac, v{VA}')
    a(f'v_rsq_f32 v{VA}, v{VA}')
    a('s_waitcnt lgkmcnt(0)')
    for w in range(1, 4):
        a(f'v_add_f32 v{H}, v{H}, v{H + 2 * w}')
        a(f'v_add_f32 v{H + 1}, v{H + 1}, v{H + 2 * w + 1}')
    a(f'v_fma_f32 v16, -v{MU}, v{ECS}, v16')
    a(f'v_fma_f32 v17, -v{MU}, v{ECS + 1}, v17')
    a(f'v_mul_f32 v16, v16, v{VA}')
    a(f'v_mul_f32 v17, v17, v{VA}')
    a('v_mul_f32 v18, v16, v16')
    a('v_fma_f32 v19, v18, s91, v228')
    a('v_mul_f32 v19, v19, v16')
    a('v_exp_f32 v19, v19')
    a('v_mul_f32 v16, v16, v17')
    a('v_add_f32 v19, 1.0, v19')
    a('v_rcp_f32 v19, v19')
    a('v_mul_f32 v16, v16, v19')
    a('v_mov_b32_dpp v17, v16 quad_perm:[1,1,3,3] row_mask:0xf bank_mask:0xf')
    a('v_cvt_pk_bf16_f32 v16, v16, v17')
    ex(0x5555555555555555)
    a(f'ds_write_b32 v{EST}, v16')
    ex(-1)
    a('s_waitcnt lgkmcnt(0)')
    a.label('L_eact')
    a('s_barrier')
    f3(76)
    a(f'ds_read_b128 v[16:19], v{EAR}')
    a(f'ds_read_b128 v[20:23], v{GH}')
    a('s_waitcnt lgkmcnt(1)')
    for k in range(8):
        mfma16(FA + 4 * k, OPW + 4 * k, 16, True)
    ex(M4)
    for p in range(4):
        for i in range(4):
            a(f'v_cvt_pk_bf16_f32 v{96 + 4 * p + i}, v{FA + 8 * p + 2 * i}, v{FA + 8 * p + 2 * i + 1}')
        a(f'buffer_store_dwordx4 {vr(96 + 4 * p, 4)}, v{EPS}, {S(R_WS)}, s98 offen sc1')
        if p < 3:
            a('s_add_u32 s98, s98, 12288')
    ex(-1)
    stamp(10)
    f3(78)
    a('s_cmp_lg_u32 s3, 4')
    a('s_cbranch_scc1 L_end')
    a('s_cmp_ge_u32 s63, 32')
    a('s_cbranch_scc1 L_efend')
    G, GA = 24, 48
    OSC = ' sc1' if o.osc else ''
    for i in range(8):
        a(f'v_mov_b32 v{56 + i}, 0')
    a('s_waitcnt lgkmcnt(0)')
    ex(0xff)
    for u in range(4):
        for e in range(2):
            a(f'v_dot2_f32_bf16 v{56 + 2 * u + e}, v{20 + u}, s{S_LO1 + e}, 0')
    ex(-1)
    a(f's_mov_b32 s{S_CNT}, {SPIN}')
    a('s_waitcnt vmcnt(0)')
    if o.fdelay:
        a(f's_sleep {o.fdelay}')
    a.label('L_gre')
    for i in range(6):
        a(f'buffer_load_dwordx4 {vr(G + 4 * i, 4)}, v{2 if i < 5 else GL}, {S(R_WS)}, s{99 if i < 4 else 97} offen offset:{1024 * (i % 4)} sc1')
    for i in range(6):
        a(f's_waitcnt vmcnt({5 - i})')
        for u in range(4):
            for e in range(2):
                c = 56 + 2 * u + e if i == 0 else GA + 2 * u + e
                a(f'v_dot2_f32_bf16 v{GA + 2 * u + e}, v{G + 4 * i + u}, s{S_LO1 + e}, v{c}')
    stamp(7)
    for k in range(4):
        a(f'v_permlane16_swap_b32 v{GA + 2 * k}, v{GA + 2 * k + 1}')
    for k in range(4):
        a(f'v_add_f32 v{GA + 2 * k}, v{GA + 2 * k}, v{GA + 2 * k + 1}')
    for k in range(2):
        a(f'v_permlane32_swap_b32 v{GA + 4 * k}, v{GA + 4 * k + 2}')
    for k in range(2):
        a(f'v_add_f32 v{GA + 4 * k}, v{GA + 4 * k}, v{GA + 4 * k + 2}')
    a(f'v_cmp_u_f32 vcc, v{GA}, v{GA + 4}')
    for k in range(2):
        dpp('v_add_f32', GA + 4 * k, GA + 4 * k, GA + 4 * k, 'row_ror:8')
    a(f'v_cvt_pk_bf16_f32 v{GA}, v{GA}, v{GA + 4}')
    a('s_cbranch_vccnz L_gnan ;noflush')
    a.label('L_gok')
    ex(0x00ff00ff00ff00ff)
    a(f'buffer_store_short v{GA}, v{GO_}, {S(R_OUT)}, s96 offen{OSC}')
    a(f'buffer_store_short_d16_hi v{GA}, v{GO_}, {S(R_OUT)}, s96 offen offset:8{OSC}')
    a('s_cmp_lg_u32 s63, 0')
    a('s_cbranch_scc1 L_efend')
    ex(1)
    a(f'v_mov_b32 v12, s{S_TAG}')
    a(f's_mov_b32 s90, {WS_EPOCH}')
    a(f'buffer_store_dword v12, off, {S(R_WS)}, s90{OSC}')
    a.label('L_efend')
    if o.diag:
        a.label('L_diag')
        a('s_memrealtime s[90:91]')
        a('s_waitcnt lgkmcnt(0)')
        a('s_sub_u32 s90, s90, s100')
        a(f's_cmp_lt_u32 s90, {o.diag}')
        a('s_cbranch_scc1 L_diag')
    if o.stamps:
        stamp(8)
        a('s_cmp_lg_u32 s3, 4')
        a('s_cbranch_scc1 L_end')
        dump_stamps(11, 1)
    a('s_endpgm')

    nan_retry('L_enan', range(H, H + 32), 'L_ere', 'L_eok')
    nan_retry('L_gnan', range(G, G + 24), 'L_gre', 'L_gok')
    a.label('L_att')
    srd([R_CKV])
    a('s_bfe_u32 s4, s2, 0x20001')
    a('s_bfe_u32 s5, s2, 0x40003')
    a('s_lshl_b32 s5, s5, 1')
    a('s_and_b32 s6, s2, 1')
    a('s_add_u32 s5, s5, s6')
    a('s_lshl_b32 s90, s4, 23')
    TS = (2 << 20) if o.il else 65536
    MX = (1 << o.mb1, 1 << o.mb2)
    a(f's_lshl_b32 s91, s5, {16 if o.il else 18}')
    a('s_add_u32 s90, s90, s91')
    a('s_and_b32 s7, s3, 3')
    a('s_lshl_b32 s91, s7, 14')
    a('s_add_u32 s90, s90, s91')
    a('s_lshl_b32 s91, s7, 15')
    a('s_lshl_b32 s92, s7, 2')
    a(f's_add_u32 s92, s92, {FB}')
    a('v_mov_b32 v7, s92')
    a(f'v_lshlrev_b32 v10, 2, v4')
    a(f'v_add_u32 v10, {FB}, v10')
    a('s_cmp_lt_u32 s3, 4')
    a('s_cbranch_scc1 L_comp')
    a('s_mov_b32 s3, s7')
    VX, TR, O_ = 12, 128, 64
    for j in range(8):
        a(f'v_xor_b32 v{VX + j}, {32 * j}, v2')
    a('s_mov_b32 m0, s91')
    a('s_mov_b32 s93, 0')
    a('s_waitcnt lgkmcnt(0)')
    srd_ptr([R_CKV])
    BUF = (0, 1, 1, 0)
    TAL, vPR, vST, vRC, vRM, vRL, vAR = 20, 28, 29, 30, 31, 32, 33

    def pv_setup():
        a('v_bfe_u32 v40, v1, 2, 2')
        a('v_lshrrev_b32 v42, 5, v1')
        a('v_lshlrev_b32 v41, 2, v40')
        a('v_lshl_add_u32 v41, v42, 1, v41')
        a('v_and_b32 v43, 1, v3')
        a('v_lshlrev_b32 v44, 1, v43')
        a('v_bfe_u32 v45, v1, 1, 1')
        a('v_add_u32 v44, v44, v45')
        a('v_xor_b32 v44, v44, v41')
        a('v_lshlrev_b32 v41, 10, v41')
        a('v_lshl_add_u32 v41, v44, 4, v41')
        a('v_and_b32 v45, 1, v1')
        a('v_lshl_add_u32 v41, v45, 3, v41')
        a('s_lshl_b32 s95, s3, 8')
        a('v_add_u32 v41, s95, v41')
        for i in range(8):
            a(f'v_xor_b32 v{TAL + i}, {64 * (i % 4) + 65536 * (i // 4)}, v41')
        a(f'v_add_u32 v{vPR}, {L_P}, v2')
        a(f'v_lshlrev_b32 v{vAR}, 4, v42')
        a(f'v_add_u32 v{vAR}, {L_ALPHA}, v{vAR}')
        a('v_lshl_add_u32 v42, v42, 2, v43')
        a(f'v_lshlrev_b32 v{vST}, 17, v42')
        a(f'v_lshl_add_u32 v{vST}, v11, 4, v{vST}')
        a('v_lshl_add_u32 v42, v45, 4, v42')
        a('v_bfe_u32 v44, v1, 2, 1')
        a('v_lshl_add_u32 v42, v44, 3, v42')
        a('v_bfe_u32 v44, v1, 3, 1')
        a('v_lshl_add_u32 v42, v44, 1, v42')
        a(f'v_lshlrev_b32 v{vRM}, 2, v42')
        a(f'v_add_u32 v{vRM}, {L_MFIN}, v{vRM}')
        a(f'v_lshlrev_b32 v{vRC}, 4, v42')
        a(f'v_add_u32 v{vRL}, {L_MAX}, v{vRC}')
        a('s_lshl_b32 s96, s3, 2')
        a('s_add_u32 s96, s96, s4')
        a('s_lshl_b32 s96, s96, 13')
        a('s_lshl_b32 s95, s5, 8')
        a('s_add_u32 s96, s96, s95')
        a(f's_add_u32 s96, s96, {WS_OP}')
        a('s_lshl_b32 s97, s4, 16')
        a('s_lshl_b32 s95, s5, 11')
        a('s_add_u32 s97, s97, s95')
        a('s_lshl_b32 s95, s3, 9')
        a('s_add_u32 s97, s97, s95')
        a(f's_add_u32 s97, s97, {WS_REC}')
        a('v_add_u32 v9, s91, v2')
    rows = [(T, j) for T in range(3) for j in range(16) if not (T == 1 and j == 15)]
    landed = 0
    pub = {0: 16, 1: 31}

    def publish():
        for tt in list(pub):
            if landed >= pub[tt]:
                a(f'v_mov_b32 v5, {tt + 1}')
                a(f'ds_write_b32 v7, v5 offset:{F_LAND}')
                del pub[tt]

    def dma_row(j):
        a(f'buffer_load_dwordx4 v{VX + j // 2}, {S(R_CKV)}, s90 offen offset:{(j % 4) * 1024} nt lds')
    for n, (T, j) in enumerate(rows):
        w = o.w0 if n < o.n0 else o.window
        if o.hold and n == o.hold:
            lds_wait(10, F_HUS, 1, 6, 2)
        if n >= o.n0 and not (o.hold and n >= o.hold):
            lb = a.uid('fast')
            a('s_cmp_lg_u32 s93, 0')
            a(f's_cbranch_scc1 {lb}')
            if n % 2 == 0:
                a(f'ds_read_b32 v6, v10 offset:{F_HUS if o.sw == 1 else F_QST}')
            a(f's_waitcnt vmcnt({o.w1 - 1})')
            if n % 2 == 0:
                a('s_waitcnt lgkmcnt(0)')
                a('v_cmp_eq_u32 vcc, 0, v6')
                a('s_cmp_eq_u64 vcc, 0')
                a('s_cselect_b32 s93, 1, 0')
            a.label(lb)
        if n - landed >= w:
            a(f's_waitcnt vmcnt({w - 1})')
            landed = n - (w - 1)
        if n in (16 + o.w1, 31 + o.lw) and landed < n - (o.w1 if n < 31 else o.lw):
            k = o.w1 if n < 31 else o.lw
            a(f's_waitcnt vmcnt({k})')
            landed = n - k
        publish()
        if n == 20:
            get_tag()
            a('v_mov_b32 v35, 0')
        if n == o.gon and o.wgo:
            lb = a.uid('nogo')
            a('s_cmp_lg_u32 s3, 0')
            a(f's_cbranch_scc1 {lb}')
            a('s_sub_u32 s92, s2, 128')
            a('s_lshl_b32 s92, s92, 7')
            a(f's_add_u32 s92, s92, {WS_GO}')
            a(f'v_mov_b32 v6, s{S_TAG}')
            a('v_lshlrev_b32 v8, 2, v1')
            ex(0xffffffff)
            a(f'buffer_store_dword v6, v8, {S(R_WS)}, s92 offen sc1')
            ex(-1)
            a.label(lb)
        if T < 2:
            dma_row(j)
        else:
            a(f'buffer_load_dwordx4 {vr(TR + 64 * (T - 2) + 4 * j, 4)}, v{VX + j // 2}, {S(R_CKV)}, s90 offen offset:{(j % 4) * 1024} nt')
        last = j == 15 or (T == 1 and j == 14)
        if j % 4 == 3 or last:
            a(f's_add_u32 s90, s90, {TS - 12288 if last else 4096}')
            if o.mix:
                a(f's_xor_b32 s90, s90, {MX[(j // 4) % 2]}')
            if T < 2:
                a('s_add_u32 m0, m0, 4096')
        if n == o.w0 - 1:
            a(f's_load_dword s{S_TAG}, s[{R_WS}:{R_WS + 1}], {WS_EPOCH}')
            a('s_barrier')
            pv_setup()
        if n == 30:
            stamp(1)
    assert not pub
    stamp(2)
    if o.pvprio:
        a(f's_setprio {o.pvprio}')
    PF = 36
    BFS = (44, 48, 52, 56, 60, 12, 16)
    NB = len(BFS)
    DIST = 6
    FLG = 34

    def pv(t):
        seq = [(ks, blk) for ks in range(4) for blk in range(4)]

        def rd(n):
            ks, blk = seq[n]
            for tau in range(2):
                a(f'ds_read_b64_tr_b16 {vr(BFS[n % NB] + 2 * tau, 2)}, v{TAL + blk + 4 * (ks // 2)} offset:{32768 * (ks % 2) + 16384 * BUF[t] + 1024 * tau}')

        def p_rd(ks):
            a(f'ds_read_b128 {vr(PF + 4 * (ks % 2), 4)}, v{vPR} offset:{4096 * t + 1024 * ks}')
        a(f's_mov_b32 s{S_CNT}, {SPIN * 40}')
        a('s_mov_b32 s95, 2')
        a.label(f'L_pp{t}')
        a(f'ds_read_b32 v{FLG}, v10 offset:{F_PS + 16 * t}')
        a('s_waitcnt lgkmcnt(0)')
        a(f'v_cmp_ne_u32 vcc, s95, v{FLG}')
        a(f's_cbranch_vccnz L_ps{t}')
        a.label(f'L_pg{t}')
        p_rd(0)
        ops = ['P0']

        def issue_rd(n):
            rd(n)
            ops.extend([f'R{n}', f'R{n}'])
        for n in range(DIST):
            issue_rd(n)
            if n == 1:
                p_rd(1)
                ops.append('P1')
        for n in range(16):
            ks, blk = seq[n]
            need = max(i for i, x in enumerate(ops) if x in (f'R{n}', f'P{ks}'))
            a(f's_waitcnt lgkmcnt({min(15, len(ops) - 1 - need)})')
            if t == 0 and blk == 3:
                a(f'ds_write_b32 v7, v35 offset:{F_DONE}')
                ops.append('W')
            c = '0' if (t == 0 and ks == 0) else vr(O_ + 16 * blk, 16)
            a(f'v_mfma_f32_32x32x16_bf16 {vr(O_ + 16 * blk, 16)}, {vr(PF + 4 * (ks % 2), 4)}, {vr(BFS[n % NB], 4)}, {c}')
            if t == 0 and blk == 1:
                a('v_add_u32 v35, 1, v35')
            if n in (3, 7):
                p_rd(2 + n // 4)
                ops.append(f'P{2 + n // 4}')
            if n + DIST < 16:
                issue_rd(n + DIST)

    pv(0)
    stamp(3)
    pv(1)
    stamp(4)
    a('v_mov_b32 v5, 5')
    a(f'ds_write_b32 v7, v5 offset:{F_DONE}')
    lds_wait(10, F_DONE, 5, 5, 0)
    for j in range(16):
        if j % 2 == 0:
            a(f's_waitcnt vmcnt({14 - j})')
        a(f'ds_write_b128 v9, {vr(TR + 4 * j, 4)} offset:{1024 * j + 16384}')
    a('v_mov_b32 v5, 3')
    a(f'ds_write_b32 v7, v5 offset:{F_LAND}')
    stamp(5)
    pv(2)
    stamp(6)
    a('v_mov_b32 v35, 6')
    pv(3)
    stamp(7)
    PK, XX = 128, 160

    def l_reads():
        a(f'ds_read_b32 v{FLG}, v10 offset:{F_LSEQ}')
        a(f'ds_read_b128 v[172:175], v{vRL}')
        a(f'ds_read_b32 v168, v{vRM}')
    l_reads()
    for ap in range(8):
        t = PK + 4 * ap
        j = 2 * ap
        a(f'v_cvt_pk_bf16_f32 v{t}, v{O_ + j}, v{O_ + 16 + j}')
        a(f'v_cvt_pk_bf16_f32 v{t + 2}, v{O_ + j + 1}, v{O_ + 16 + j + 1}')
        a(f'v_cvt_pk_bf16_f32 v{t + 1}, v{O_ + 32 + j}, v{O_ + 48 + j}')
        a(f'v_cvt_pk_bf16_f32 v{t + 3}, v{O_ + 32 + j + 1}, v{O_ + 48 + j + 1}')
        a(f'v_permlane16_swap_b32 v{t}, v{t + 2}')
        a(f's_add_u32 s92, s96, {(8 * (ap // 2) + 2 * (ap % 2)) * 131072}')
        a(f'v_permlane16_swap_b32 v{t + 1}, v{t + 3}')
        a(f'buffer_store_dwordx4 {vr(t, 4)}, v{vST}, {S(R_WS)}, s92 offen sc1')
        if ap == o.rwait - 1:
            a(f'ds_write_b32 v7, v35 offset:{F_DONE}')
        xor_chain(XX + ap, range(t, t + 4))
        if ap % 2 == 1:
            k = ap // 2
            dpp('v_xor_b32', XX + 2 * k, XX + 2 * k, XX + 2 * k, 'row_ror:8', 0x3)
            dpp('v_xor_b32', XX + 2 * k, XX + 2 * k + 1, XX + 2 * k + 1, 'row_ror:8', 0xc)
        if ap % 4 == 3:
            m = ap // 4
            dpp('v_xor_b32', XX + 4 * m, XX + 4 * m, XX + 4 * m, 'row_half_mirror', 0x5)
            dpp('v_xor_b32', XX + 4 * m, XX + 4 * m + 2, XX + 4 * m + 2, 'row_half_mirror', 0xa)
            dpp('v_xor_b32', XX + 4 * m, XX + 4 * m, XX + 4 * m, 'quad_perm:[1,0,3,2]')
            dpp('v_xor_b32', 170 if m == 0 else XX + 4, XX + 4 * m, XX + 4 * m, 'quad_perm:[2,3,0,1]')
        if ap == 4:
            a('s_waitcnt lgkmcnt(0)')
            a(f'v_cmp_ne_u32 vcc, 1, v{FLG}')
            a('s_cbranch_vccnz L_lslow')
            a.label('L_lok')
            a('v_add_f32 v172, v172, v173')
            a('v_add_f32 v174, v174, v175')
            a('v_add_f32 v169, v172, v174')
            a(f'v_bitop3_b32 v171, v168, v169, s{S_TAG} {XOR3}')
    ex(0x2222222222222222)
    a(f'v_mov_b32 v170, v{XX + 4}')
    ex(0x3333333333333333)
    a('v_xor_b32 v171, v171, v170')
    a(f'buffer_store_dwordx4 v[168:171], v{vRC}, {S(R_WS)}, s97 offen sc1')
    if o.stamps:
        stamp(8)
        a('s_waitcnt vmcnt(0)')
        stamp(9)
        a('s_cmp_lg_u32 s3, 0')
        a('s_cbranch_scc1 L_end')
        dump_stamps(11, 1)
    a('s_endpgm')
    a.label('L_lslow')
    l_reads()
    a('s_waitcnt lgkmcnt(0)')
    a(f'v_cmp_ne_u32 vcc, 1, v{FLG}')
    a('s_cbranch_vccz L_lok')
    a(f's_sub_u32 s{S_CNT}, s{S_CNT}, 1')
    a('s_cbranch_scc0 L_lslow')
    a('s_branch L_lok')
    for t in range(4):
        a.label(f'L_ps{t}')
        a(f'v_cmp_ne_u32 vcc, 3, v{FLG}')
        a(f's_cbranch_vccz L_pr{t}')
        a('s_sleep 1')
        a(f's_sub_u32 s{S_CNT}, s{S_CNT}, 1')
        a(f's_cbranch_scc0 L_pp{t}')
        a(f's_branch L_pg{t}')
        a.label(f'L_pr{t}')
        if t > 0:
            for jq in range(4):
                a(f'ds_read_b128 {vr(44 + 4 * jq, 4)}, v{vAR} offset:{128 * t + 32 * jq}')
            a('s_waitcnt lgkmcnt(0)')
            a('s_nop 7')
            for blk in range(4):
                for j in range(16):
                    a(f'v_mul_f32 v{O_ + 16 * blk + j}, v{O_ + 16 * blk + j}, v{44 + j}')
        a(f's_branch L_pg{t}')

    a.label('L_comp')
    QA = 128
    vMW, vFW, vPW, vFR, vAW, vMR = 6, 7, 8, 10, 11, 9
    NM, LL = 12, 14
    SS, PKS, EX4, AA, AQ, WK = 32, 40, 44, 48, 56, 64
    NA = 8
    a('v_lshlrev_b32 v16, 2, v1')
    a(f'v_add_u32 v16, {FB}, v16')
    a('v_mov_b32 v17, 0')
    a('ds_write_b32 v16, v17')
    a('s_waitcnt lgkmcnt(0)')
    a('s_barrier')
    a(f's_load_dword s{S_TAG}, s[{R_WS}:{R_WS + 1}], {WS_EPOCH}')
    srd_ptr([R_CKV])
    consts()
    a(f's_add_u32 s63, s90, {TS + 15 * 1024}')
    if o.mix:
        a(f's_xor_b32 s63, s63, {MX[1]}')
    a(f's_add_u32 s99, s90, {3 * TS}')
    a('s_mov_b32 m0, s91')
    for j in range(8):
        a(f'v_xor_b32 v{104 + j}, {32 * j}, v2')
    a('v_xor_b32 v21, 0xe0, v2')
    a(f'buffer_load_dwordx4 v[24:27], v21, {S(R_CKV)}, s63 offen nt')
    a('v_mov_b32 v20, 128')
    a('global_load_dword v100, v20, s[86:87] sc1')
    if o.tlb & 1:
        a('v_lshrrev_b32 v20, 1, v4')
        a('v_xor_b32 v22, v20, v4')
        a('v_and_b32 v22, 1, v22')
        a(f'v_lshlrev_b32 v22, {o.mb1}, v22')
        a(f'v_lshl_add_u32 v22, v20, {o.mb2}, v22')
        a('v_xor_b32 v22, s90, v22')
        a('v_lshl_add_u32 v22, v4, 12, v22')
        a('v_bfe_u32 v20, v1, 2, 2')
        a('v_lshl_add_u32 v22, v20, 16, v22')
        ex(0xffff)
        a(f'buffer_load_dword v101, v22, {S(R_CKV)}, 0 offen offset:3968 nt')
        ex(-1)
    if o.tlb & 2:
        a('v_lshlrev_b32 v22, 17, v1')
        a('s_lshl_b32 s94, s3, 15')
        a(f's_add_u32 s94, s94, {WS_OP}')
        ex(0x1ffffffff)
        a(f'buffer_load_dword v102, v22, {S(R_WS)}, s94 offen nt')
        ex(-1)
    a(f's_add_u32 s6, s91, {16384 + 15 * 1024}')
    a('v_add_u32 v28, s6, v2')
    a('s_lshl_b32 s90, s4, 15')
    a('s_lshl_b32 s95, s3, 13')
    a('s_add_u32 s90, s90, s95')
    if WS_QA:
        a(f's_add_u32 s90, s90, {WS_QA}')
    a('s_add_u32 s92, s90, 4096')
    a(f's_lshl_b32 s93, s3, {8 if o.hc else 12}')
    a(f's_lshl_b32 s94, s4, {10 if o.hc else 3}')
    a('s_add_u32 s93, s93, s94')
    a(f's_add_u32 s93, s93, {WS_QAH}')
    a('v_lshrrev_b32 v16, 1, v1')
    a(f'v_lshlrev_b32 v16, {3 if o.hc else 7}, v16')
    a('s_and_b32 s94, s3, 1')
    a('s_lshl_b32 s94, s94, 7')
    a('v_xor_b32 v17, s94, v2')
    a(f's_add_u32 s95, s95, {SB}')
    a('v_add_u32 v17, s95, v17')
    for i in range(4):
        a(f'v_xor_b32 v{96 + i}, {32 * i}, v17')
    a('v_lshrrev_b32 v22, 5, v1')
    a('v_and_b32 v29, 1, v3')
    a('v_lshlrev_b32 v23, 4, v29')
    a('v_lshl_add_u32 v23, v22, 9, v23')
    a('v_bfe_u32 v18, v1, 3, 1')
    a('v_lshl_add_u32 v18, v18, 2, v4')
    a('v_lshl_add_u32 v18, v18, 5, v23')
    a('v_lshl_add_u32 v18, v11, 10, v18')
    a(f'v_add_u32 v18, {SB}, v18')
    a('v_bfe_u32 v20, v1, 2, 2')
    a('v_lshl_add_u32 v21, v4, 2, v20')
    a('v_lshl_add_u32 v19, v21, 10, v23')
    a('v_and_b32 v21, 14, v21')
    a('v_lshl_add_u32 v19, v21, 4, v19')
    a('v_add_u32 v19, s91, v19')
    for i in range(8):
        a(f'v_xor_b32 v{AA + i}, {32 * i}, v19')
        a(f'v_xor_b32 v{AQ + i}, {32 * i}, v18')
    a('v_and_b32 v20, 31, v1')
    a('s_lshl_b32 s95, s3, 2')
    a(f's_add_u32 s95, s95, {L_MAX}')
    a(f'v_lshl_add_u32 v{vMW}, v20, 4, s95')
    a(f'v_lshlrev_b32 v{vPW}, 9, v22')
    a(f'v_lshl_add_u32 v{vPW}, v11, 4, v{vPW}')
    a(f'v_lshl_add_u32 v{vPW}, v29, 3, v{vPW}')
    a('s_lshl_b32 s95, s3, 10')
    a(f's_add_u32 s95, s95, {L_P}')
    a(f'v_add_u32 v{vPW}, s95, v{vPW}')
    a(f'v_lshlrev_b32 v{vMR}, 4, v11')
    a(f'v_add_u32 v{vMR}, {L_MAX}, v{vMR}')
    a(f'v_lshlrev_b32 v{vAW}, 2, v11')
    a(f'v_add_u32 v{vAW}, {L_ALPHA}, v{vAW}')
    a(f'v_mov_b32 v{LL}, 0')
    a(f'v_mov_b32 v{LL + 1}, 0')
    a('v_mov_b32 v0, 1')
    a('v_mov_b32 v5, 2')
    a(f's_mov_b32 s98, {f32bits(float(o.thr))}')
    a('s_mov_b32 s96, 1')
    a(f's_and_b32 s94, s2, {o.nh - 1}')
    a('s_lshl_b32 s94, s94, 7')
    a(f's_add_u32 s94, s94, {WS_HU}')
    a(f's_add_u32 s0, s{R_WS}, s94')
    a(f's_addc_u32 s1, s{R_WS + 1}, 0')
    get_tag()
    if o.sprio:
        a(f's_setprio {o.sprio}')
    HR_ = 30

    def q_row(i):
        a(f'buffer_load_dwordx4 {vr(QA + 4 * i, 4)}, v2, {S(R_WS)}, s{90 if i < 4 else 92} offen offset:{1024 * (i % 4)} sc1')
    if o.hone:
        a('s_cmp_eq_u32 s3, 0')
        a('s_cbranch_scc1 L_hu0')
        a(f'v_mov_b32 v20, {FB}')
        lds_wait(20, F_HUS, 1, 19, 0)
        a('s_branch L_hugo2')
        a.label('L_hu0')
    a(f's_mov_b32 s{S_CNT}, {SPIN}')
    a.label('L_hu')
    a('s_load_dword s94, s[0:1], 0 glc')
    a('s_waitcnt lgkmcnt(0)')
    a(f's_cmp_eq_u32 s94, s{S_TAG}')
    a('s_cbranch_scc1 L_hugo')
    if o.hsl:
        a(f's_sleep {o.hsl}')
    a(f's_sub_u32 s{S_CNT}, s{S_CNT}, 1')
    a('s_cbranch_scc0 L_hu')
    a.label('L_hugo')
    if o.hone:
        a(f'ds_write_b32 v{vFW}, v0 offset:{F_HUS}')
        a.label('L_hugo2')
    a(f's_mov_b32 s{S_CNT}, {SPIN}')
    a.label('L_qload')
    a(f'buffer_load_dwordx2 {vr(HR_, 2)}, v16, {S(R_WS)}, s93 offen sc1')
    for i in range(8):
        q_row(i)
    a(f'ds_write_b32 v{vFW}, v0 offset:{F_HUS}')
    stamp(8)
    a('s_waitcnt vmcnt(8)')
    a(f'v_bitop3_b32 v21, v{HR_}, v{HR_ + 1}, s{S_TAG} {XOR3}')
    for i in range(8):
        a(f's_waitcnt vmcnt({7 - i})')
        a(f'ds_write_b128 v{96 + i % 4}, {vr(QA + 4 * i, 4)} offset:{1024 * i}')
        xor_chain(19, ([19] if i else []) + list(range(QA + 4 * i, QA + 4 * i + 4)))
    for c in ('quad_perm:[1,0,3,2]', 'quad_perm:[2,3,0,1]', 'row_ror:4', 'row_ror:8'):
        dpp('v_xor_b32', 19, 19, 19, c)
        if c == 'quad_perm:[1,0,3,2]':
            a(f'v_xor_b32 v19, v19, v{HR_}')
    swap_step('v_xor_b32', 19, 20, 16)
    swap_step('v_xor_b32', 19, 20, 32)
    a('v_or_b32 v19, v19, v21')
    a('v_cmp_ne_u32 vcc, 0, v19')
    a('s_cbranch_vccz L_qdone')
    a(f's_sub_u32 s{S_CNT}, s{S_CNT}, 1')
    a('s_cbranch_scc0 L_qload')
    a.label('L_qdone')
    a(f'ds_write_b32 v{vFW}, v0 offset:{F_QST}')
    lds_wait(vFW, F_LAND, 1, 19)
    lds_wait(vFR, F_QST, 1, 19, 0)
    stamp(3)

    def a_read(m, buf):
        a(f'ds_read_b128 {vr(WK + 4 * (m % NA), 4)}, v{AA + m // 2} offset:{256 * (m % 2) + 16384 * buf}')

    def q_read(m):
        for hh in range(2):
            a(f'ds_read_b128 {vr(QA + 64 * hh + 4 * m, 4)}, v{AQ + m // 2} offset:{16384 * hh + 256 * (m % 2)}')

    def s_mfma(st, zero):
        for hh in range(2):
            mfma16(SS + 4 * hh, WK + 4 * (st % NA), QA + 64 * hh + 4 * st, zero and st == 0)
    for st in range(4):
        q_read(st)
        a_read(st, 0)
    for st in range(16):
        a(f's_waitcnt lgkmcnt({3 * min(3, 15 - st)})')
        s_mfma(st, True)
        if st + 4 < 16:
            q_read(st + 4)
            a_read(st + 4, 0)

    def max_xchg(lbl, floor):
        a('v_mov_b32 v18, s96')
        for hh in range(2):
            a(f'v_max3_f32 v{16 + hh}, v{SS + 4 * hh}, v{SS + 4 * hh + 1}, v{SS + 4 * hh + 2}')
            if floor:
                a(f'v_max3_f32 v{16 + hh}, v{16 + hh}, v{SS + 4 * hh + 3}, 0')
            else:
                a(f'v_max_f32 v{16 + hh}, v{16 + hh}, v{SS + 4 * hh + 3}')
        a('v_permlane16_swap_b32 v16, v17')
        a('v_max_f32 v16, v16, v17')
        swap_step('v_max_f32', 16, 17, 32)
        a(f'ds_write_b32 v{vMW}, v16')
        a(f'ds_write_b32 v{vFW}, v18 offset:{F_MSEQ}')
        a(f's_mov_b32 s{S_CNT}, {SPIN * 40}')
        a.label(lbl)
        a(f'ds_read_b32 v18, v{vFR} offset:{F_MSEQ}')
        a(f'ds_read_b128 {vr(WK, 4)}, v{vMR}')
        a(f'ds_read_b128 {vr(WK + 4, 4)}, v{vMR} offset:256')
        a('s_waitcnt lgkmcnt(0)')
        a('v_cmp_gt_u32 vcc, s96, v18')
        a(f's_cbranch_vccz {lbl}go')
        a(f's_sub_u32 s{S_CNT}, s{S_CNT}, 1')
        a(f's_cbranch_scc0 {lbl}')
        a.label(lbl + 'go')
        for hh in range(2):
            a(f'v_max3_f32 v{16 + hh}, v{WK + 4 * hh}, v{WK + 4 * hh + 1}, v{WK + 4 * hh + 2}')
            a(f'v_max_f32 v{16 + hh}, v{16 + hh}, v{WK + 4 * hh + 3}')
            for j in range(4):
                a(f'v_sub_f32 v{SS + 4 * hh + j}, v{SS + 4 * hh + j}, v{16 + hh}')

    def soft(t):
        g = []
        for hh in range(2):
            for j in range(4):
                g.append(f'v_exp_f32 v{EX4 + j}, v{SS + 4 * hh + j}')
            g.append(f'v_cvt_pk_bf16_f32 v{PKS + 2 * hh}, v{EX4}, v{EX4 + 1}')
            g.append(f'v_cvt_pk_bf16_f32 v{PKS + 2 * hh + 1}, v{EX4 + 2}, v{EX4 + 3}')
            g.append(f'ds_write_b64 v{vPW}, {vr(PKS + 2 * hh, 2)} offset:{4096 * t + 256 * hh}')
        return g

    def l_commit():
        for k in range(2):
            for hh in range(2):
                a(f'v_dot2_f32_bf16 v{LL + hh}, v{PKS + 2 * hh + k}, s{S_ONES}, v{LL + hh}')
    max_xchg('L_m0', False)
    for ins in soft(0):
        a(ins)
    a(f'ds_write_b32 v{vFW}, v5 offset:{F_PS}')
    a('ds_write_b128 v28, v[24:27]')
    a(f'ds_write2_b32 v{vAW}, v16, v17 offset0:128 offset1:144')
    for hh in range(2):
        a(f'v_sub_f32 v{NM + hh}, 0, v{16 + hh}')
    l_commit()
    a('s_cmp_lg_u32 s3, 1')
    a('s_cbranch_scc1 L_nom0')
    a('v_permlane16_swap_b32 v16, v17')
    a('s_lshl_b32 s94, s4, 12')
    a('s_lshl_b32 s95, s5, 7')
    a('s_add_u32 s94, s94, s95')
    a(f's_add_u32 s94, s94, {WS_M0}')
    a('v_lshlrev_b32 v18, 2, v1')
    a(f'v_xor_b32 v16, s{S_TAG}, v16')
    ex(0xffffffff)
    a(f'buffer_store_dword v16, v18, {S(R_WS)}, s94 offen sc1')
    ex(-1)
    a.label('L_nom0')
    stamp(4)
    PD = 6
    for t in range(1, 4):
        lbl = f'L_l{t}'
        a(f's_mov_b32 s{S_CNT}, {SPIN * 40}')
        for hh in range(2):
            for j in range(4):
                a(f'v_mov_b32 v{SS + 4 * hh + j}, v{NM + hh}')
        def t3_wait():
            a('s_add_u32 s94, s3, 1')
            lds_wait(vFR, F_DONE, 's94', 18, 0)

        def t3_row(j):
            a(f'buffer_load_dwordx4 v{104 + j // 2}, {S(R_CKV)}, s99 offen offset:{(j % 4) * 1024} nt lds')
            if j % 4 == 3 and j < 15:
                a('s_add_u32 s99, s99, 4096')
                if o.mix:
                    a(f's_xor_b32 s99, s99, {MX[(j // 4) % 2]}')
                a('s_add_u32 m0, m0, 4096')
        if (t == 2 and o.t3 == 0) or (t == 1 and o.t3 == 1):
            def s_go():
                lb = a.uid('nogo')
                a('s_cmp_lg_u32 s3, 0')
                a(f's_cbranch_scc1 {lb}')
                a('s_sub_u32 s92, s2, 128')
                a('s_lshl_b32 s92, s92, 7')
                a(f's_add_u32 s92, s92, {WS_GO}')
                a(f'v_mov_b32 v18, s{S_TAG}')
                a('v_lshlrev_b32 v19, 2, v1')
                ex(0xffffffff)
                a(f'buffer_store_dword v18, v19, {S(R_WS)}, s92 offen sc1')
                ex(-1)
                a.label(lb)
            t3_wait()
            if o.gon == 98:
                s_go()
            for j in range(16):
                t3_row(j)
            if o.gon == 99:
                s_go()
            stamp(1)
            a(f's_mov_b32 s{S_CNT}, {SPIN * 40}')
        if t < 3:
            a.label(lbl)
            a(f'ds_read_b32 v18, v{vFW} offset:{F_LAND}')
            a('s_waitcnt lgkmcnt(0)')
            a(f'v_cmp_ge_u32 vcc, {t}, v18')
            a(f's_cbranch_vccz {lbl}go')
            a('s_sleep 1')
            a(f's_sub_u32 s{S_CNT}, s{S_CNT}, 1')
            a(f's_cbranch_scc0 {lbl}')
            a.label(lbl + 'go')
        else:
            a('s_waitcnt vmcnt(0)')
            stamp(2)
        for st in range(PD):
            a_read(st, BUF[t])
        if t == 3 and o.rpos == 0:
            a('s_lshl_b32 s94, s4, 2')
            a('s_add_u32 s94, s94, 16')
            arrive(0, 30, 31, 's94')
        for st in range(16):
            a(f's_waitcnt lgkmcnt({min(PD - 1, 15 - st)})')
            s_mfma(st, False)
            if st + PD < 16:
                a_read(st + PD, BUF[t])
            if t == 1 and o.t3 >= 2:
                if st == o.t3:
                    t3_wait()
                    t3q = list(range(16))
                if st >= o.t3:
                    for _ in range(-(-16 // (16 - o.t3))):
                        if t3q:
                            t3_row(t3q.pop(0))
                if st == 15:
                    stamp(1)
        for k, ins in enumerate(soft(t)):
            a(ins)
            if k == 3:
                a(f'v_max3_f32 v19, v{SS}, v{SS + 1}, v{SS + 2}')
                a(f'v_max3_f32 v19, v{SS + 3}, v{SS + 4}, v19')
            if k == 10:
                a(f'v_max3_f32 v19, v{SS + 5}, v{SS + 6}, v19')
                a(f'v_max_f32 v19, v{SS + 7}, v19')
                a('v_cmp_lt_f32 vcc, s98, v19')
        a('s_cmp_eq_u64 vcc, 0')
        a('s_cselect_b32 s91, 2, 1')
        a('v_mov_b32 v18, s91')
        a(f'ds_write_b32 v{vFW}, v18 offset:{F_PS + 16 * t}')
        stamp(4 + t)
        if t == 3 and o.rpos == 1:
            a('s_lshl_b32 s94, s4, 2')
            a('s_add_u32 s94, s94, 16')
            arrive(0, 30, 31, 's94')
        a(f's_mov_b32 s{S_CNT}, {SPIN * 40}')
        a.label(f'L_c{t}')
        a(f'ds_read_b32 v18, v{vFR} offset:{F_PS + 16 * t}')
        a('s_waitcnt lgkmcnt(0)')
        a('v_cmp_ne_u32 vcc, 2, v18')
        a(f's_cbranch_vccnz L_cs{t}')
        a.label(f'L_cg{t}')
        l_commit()
    a('s_lshl_b32 s94, s4, 2')
    a('s_add_u32 s94, s94, 16')
    a(f'v_permlane16_swap_b32 v{LL}, v{LL + 1}')
    a(f'v_add_f32 v{LL}, v{LL}, v{LL + 1}')
    swap_step('v_add_f32', LL, LL + 1, 32)
    a(f'ds_write_b32 v{vMW}, v{LL}')
    a(f'ds_write_b32 v{vFW}, v0 offset:{F_LSEQ}')
    if o.rdelay:
        a(f's_sleep {o.rdelay}')
    if o.rpos == 2:
        arrive(0, 30, 31, 's94')
    a('s_cmp_lg_u32 s3, 0')
    a('s_cbranch_scc1 L_norel2')
    a('s_lshl_b32 s94, s4, 14')
    a(f's_add_u32 s94, s94, {WS_OF}')
    a('s_add_u32 s95, s94, 8192')
    a('v_lshlrev_b32 v31, 7, v1')
    a(f'v_mov_b32 v29, s{S_TAG}')
    a('s_waitcnt vmcnt(0)')
    a('v_readfirstlane_b32 s1, v30')
    a('s_and_b32 s1, s1, 31')
    a('s_cmp_lg_u32 s1, 31')
    a('s_cbranch_scc1 L_norel2')
    if o.rwait:
        lds_wait(vFR, F_DONE, 6, 18, 0)
    if o.nl < 64:
        ex((1 << o.nl) - 1)
    a(f'buffer_store_dword v29, v31, {S(R_WS)}, s94 offen sc1')
    if o.nl > 64:
        a(f'buffer_store_dword v29, v31, {S(R_WS)}, s95 offen sc1')
    a.label('L_norel2')
    stamp(9)
    a.label('L_send')
    if o.stamps:
        a('s_memrealtime s[90:91]')
        a('s_cmp_lg_u32 s3, 0')
        a('s_cbranch_scc1 L_end')
        dump_stamps(14, 0)
    a('s_endpgm')
    for t in range(1, 4):
        a.label(f'L_cs{t}')
        a('v_cmp_eq_u32 vcc, 0, v18')
        a(f's_cbranch_vccz L_ex{t}')
        a(f's_sub_u32 s{S_CNT}, s{S_CNT}, 1')
        a(f's_cbranch_scc0 L_c{t}')
        a(f's_branch L_cg{t}')
        a.label(f'L_ex{t}')
        a('s_add_u32 s96, s96, 1')
        max_xchg(f'L_mx{t}', True)
        for hh in range(2):
            a(f'v_exp_f32 v{20 + hh}, -v{16 + hh}')
            a(f'v_sub_f32 v{NM + hh}, v{NM + hh}, v{16 + hh}')
            a(f'v_sub_f32 v{22 + hh}, 0, v{NM + hh}')
            a(f'v_mul_f32 v{LL + hh}, v{LL + hh}, v{20 + hh}')
        a(f'ds_write2_b32 v{vAW}, v20, v21 offset0:{32 * t} offset1:{32 * t + 16}')
        a(f'ds_write2_b32 v{vAW}, v22, v23 offset0:128 offset1:144')
        for ins in soft(t):
            a(ins)
        a('v_mov_b32 v18, 3')
        a(f'ds_write_b32 v{vFW}, v18 offset:{F_PS + 16 * t}')
        lds_wait(vFR, F_PS + 16 * t, 3, 18, 0)
        a(f's_branch L_cg{t}')
    a.label('L_end')
    a('s_endpgm')

    txt = HEADER
    txt += f'; @launch grid=(256,1,1) block=(512,1,1) lds={LDS_TOTAL}\n'
    txt += '.amdgcn_target "amdgcn-amd-amdhsa--gfx950"\n.text\n'
    txt += a.finalize()
    txt += f""".section .rodata,"a"
.p2align 6
.amdhsa_kernel {name}
  .amdhsa_next_free_vgpr 256
  .amdhsa_next_free_sgpr 102
  .amdhsa_accum_offset 256
  .amdhsa_group_segment_fixed_size 0
  .amdhsa_kernarg_size 104
  .amdhsa_user_sgpr_count 2
  .amdhsa_user_sgpr_kernarg_segment_ptr 1
  .amdhsa_system_sgpr_workgroup_id_x 1
.end_amdhsa_kernel
"""
    return txt


if __name__ == '__main__':
    o = Opt()
    for kv in sys.argv[2:]:
        k, v = kv.split('=')
        setattr(o, k, v.replace('+', ' ') if k == 'r64' else int(v))
    open(sys.argv[1], 'w').write(gen(o))
```

```python
import sys
sys.path.insert(0, 'dev')
from asmdsl import Asm
from layout17 import *

NAME = 'sequential_preLN__compressed_kv_cla__glu_gated_geglu__decode'
HEADER = open('cdna_kernels/' + NAME + '.s.ref').read().split('; Override launch')[0]
LDS_TOTAL = 163840
SB = 130048
L_P = 131072
FB = 162816
F_LAND, F_QST, F_MSEQ, F_DONE, F_LSEQ, F_HUS, F_PS = 0, 16, 32, 48, 64, 80, 96
L_MAX = FB + 512
L_ALPHA = L_P + 16384
L_MFIN = L_ALPHA + 512
A_WQ, A_WUK, A_WUV, A_WO, A_X, A_C, A_D = 0, 32768, 98304, 98304, 131072, 132096, 135168
A_WD, A_ACT, A_H = 65536, 138240, 139264

R_X, R_WS, R_CKV, R_WQ, R_WUK, R_WUV, R_WO, R_WG, R_WU, R_WD, R_OUT, R_ACT = [8 + 4 * i for i in range(12)]
SIZES = {R_X: 4096, R_WS: WS_END, R_CKV: 32 << 20, R_WQ: 4 << 20, R_WUK: 4 << 20, R_WUV: 4 << 20, R_WO: 4 << 20,
         R_WG: 512 * 2752, R_WU: 512 * 2752, R_WD: 1376 * 1024, R_OUT: 4096, R_ACT: 43 * 256}
PTR = {R_X: 64, R_CKV: 66, R_WQ: 68, R_WUK: 70, R_WUV: 72, R_WO: 74, R_WG: 78, R_WU: 80, R_WD: 82, R_OUT: 84}
S_TAG, S_ONES, S_LO1, S_HI1, S_CNT, S_MASK = 56, 57, 58, 59, 60, 62
S_XCC, S_LOC = 52, 53
SPIN = 200000
XOR3 = 'bitop3:0x96'


class Opt:
    stamps = 0
    w0 = 1
    n0 = 2
    window = 20
    w3 = 16
    wwin = 8
    sleep = 1
    sleep_long = 6
    stsleep = 3
    thr = 60
    dbgwg = 192
    hold = 0
    dsleep = 1
    ddelay = 0
    gon = 98
    fine = 0
    hupos = 1
    edelay = 0
    efwin = 4
    sw = 1
    efgo = 0
    qdelay = 0
    hprio = 1
    nsamp = 2
    rdelay = 0
    lw = 12
    diag = 0
    rpos = 1
    owin = 3
    ef0 = 2
    il = 0
    mix = 1
    loc = 1
    egate = 1
    lprio = 2
    rwait = 5
    qloc = 0
    hc = 1
    t3 = 0
    nl = 32
    pf = 0
    emask = 0xd1d
    emask2 = 0x1d
    m3 = 0
    dmask = 0xe2e2
    dfw = 0
    r3 = 4
    mw = 1 << 18
    nh = 64
    hone = 1
    hsl = 0
    osl = 0
    oone = 0
    osc = 0
    wb = 0
    tlb = 0
    arrpos = 2
    earlym = 1
    mb1 = 20
    mb2 = 19
    efn = 2
    pvprio = 0
    sprio = 0
    r64 = 'nt'
    wgo = 1
    esleep = 0
    fdelay = 0
    now = 0
    w1 = 5
    n1 = 0


def vr(a, n):
    return f'v[{a}:{a + n - 1}]' if n > 1 else f'v{a}'


def S(base):
    return f's[{base}:{base + 3}]'


def gen(o):
    a = Asm()
    name = NAME + '_kernel'
    o.st3 = o.stamps == 3

    def ex(mask):
        if mask == -1:
            a('s_mov_b64 exec, -1')
        elif mask <= 64:
            a(f's_mov_b64 exec, {mask}')
        else:
            a(f's_mov_b32 exec_lo, 0x{mask & 0xffffffff:x}')
            a(f's_mov_b32 exec_hi, 0x{mask >> 32:x}')

    def dpp(op, d, s0, s1, ctrl, bank=0xf):
        a(f'{op}_dpp v{d}, v{s0}, v{s1} {ctrl} row_mask:0xf bank_mask:0x{bank:x}')

    def swap_step(op, v, t, which):
        a(f'v_mov_b32 v{t}, v{v}')
        a(f'v_permlane{which}_swap_b32 v{v}, v{t}')
        a(f'{op} v{v}, v{v}, v{t}')

    def fine2(r):
        if o.fine == 2:
            lb = a.uid('f2')
            a('s_cmp_lg_u32 s97, 0')
            a(f's_cbranch_scc1 {lb} ;noflush')
            a(f's_memtime s[{r}:{r + 1}]')
            a.label(lb)

    def f3(r):
        if o.fine == 3:
            a(f's_memtime s[{r}:{r + 1}]')

    def stamp(idx):
        if o.stamps:
            a(f's_memrealtime s[{64 + 2 * idx}:{65 + 2 * idx}]')

    def dump_stamps(n, grp, dbg=None):
        a('s_waitcnt lgkmcnt(0)')
        a('s_mov_b64 exec, -1')
        a('v_mov_b32 v3, 0')
        a('v_writelane_b32 v3, s100, 0')
        for i in range(1, n):
            a(f'v_writelane_b32 v3, s{64 + 2 * i}, {i}')
        a('v_mbcnt_lo_u32_b32 v4, -1, 0')
        a('v_lshlrev_b32 v4, 2, v4')
        a('s_lshl_b32 s90, s2, 7')
        a(f's_add_u32 s90, s90, {WS_STAMP + 64 * grp}')
        ex(0xffff)
        a(f'buffer_store_dword v3, v4, {S(R_WS)}, s90 offen')
        if o.stamps == 2 and dbg:
            lb = a.uid('nodbg')
            a('v_subrev_u32 v3, s100, v3')
            if dbg == 'h':
                a(f's_cmp_lg_u32 s2, {o.dbgwg}')
                a(f's_cbranch_scc1 {lb}')
                ex(0x7fe)
                a('global_store_dword v4, v3, s[86:87] offset:-4')
            else:
                a('s_cmp_lg_u32 s2, 0')
                a(f's_cbranch_scc1 {lb}')
                ex(0x3e8)
                a('v_mbcnt_lo_u32_b32 v4, exec_lo, 0')
                a('v_lshlrev_b32 v4, 2, v4')
                a('global_store_dword v4, v3, s[86:87] offset:40')
            a.label(lb)

    def xor_chain(tmp, regs, last=None):
        ops = [f'v{r}' for r in regs] + ([last] if last else [])
        a(f'v_bitop3_b32 v{tmp}, {ops[0]}, {ops[1]}, {ops[2]} {XOR3}')
        ops = ops[3:]
        while len(ops) >= 2:
            a(f'v_bitop3_b32 v{tmp}, v{tmp}, {ops[0]}, {ops[1]} {XOR3}')
            ops = ops[2:]
        if ops:
            a(f'v_xor_b32 v{tmp}, {ops[0]}, v{tmp}')

    def chk_sentinel(regs, tmp):
        rs = list(regs)
        a(f'v_max3_u32 v{tmp}, v{rs[0]}, v{rs[1]}, v{rs[2]}')
        rs = rs[3:]
        while len(rs) >= 2:
            a(f'v_max3_u32 v{tmp}, v{tmp}, v{rs[0]}, v{rs[1]}')
            rs = rs[2:]
        if rs:
            a(f'v_max_u32 v{tmp}, v{tmp}, v{rs[0]}')
        a(f'v_cmp_eq_u32 vcc, -1, v{tmp}')

    def poll(loads, check, sleep=None, wait='s_waitcnt vmcnt(0)'):
        L, Dn = a.uid('poll'), a.uid('pdone')
        a(f's_mov_b32 s{S_CNT}, {SPIN}')
        a.label(L)
        loads()
        a(wait)
        check()
        a(f's_cbranch_vccz {Dn}')
        sl = o.sleep if sleep is None else sleep
        if sl:
            a(f's_sleep {sl}')
        a(f's_sub_u32 s{S_CNT}, s{S_CNT}, 1')
        a(f's_cbranch_scc0 {L}')
        a.label(Dn)

    def lds_wait(addr, off, want, tmp, sleep=1):
        L, Dn = a.uid('lw'), a.uid('lwd')
        a(f's_mov_b32 s{S_CNT}, {SPIN * 40}')
        a.label(L)
        a(f'ds_read_b32 v{tmp}, v{addr} offset:{off}')
        a('s_waitcnt lgkmcnt(0)')
        a(f'v_cmp_gt_u32 vcc, {want}, v{tmp}')
        a(f's_cbranch_vccz {Dn}')
        if sleep:
            a(f's_sleep {sleep}')
        a(f's_sub_u32 s{S_CNT}, s{S_CNT}, 1')
        a(f's_cbranch_scc0 {L}')
        a.label(Dn)

    def nan_retry(tag, regs, again, go):
        a.label(tag)
        chk_sentinel(regs, 10)
        a(f's_cbranch_vccz {go}')
        a(f's_sub_u32 s{S_CNT}, s{S_CNT}, 1')
        a(f's_cbranch_scc0 {again}')
        a(f's_branch {go}')

    def mfma16(d, x, y, first):
        c = '0' if first else vr(d, 4)
        a(f'v_mfma_f32_16x16x32_bf16 {vr(d, 4)}, {vr(x, 4)}, {vr(y, 4)}, {c}')

    def srd(rs):
        for r in rs:
            a(f's_mov_b32 s{r + 2}, {SIZES[r]}')
            a(f's_mov_b32 s{r + 3}, 0x00020000')

    def srd_ptr(rs):
        for r in rs:
            if r == R_ACT:
                a(f's_add_u32 s{R_ACT}, s{R_WS}, {WS_ACT}')
                a(f's_addc_u32 s{R_ACT + 1}, s{R_WS + 1}, 0')
            else:
                a(f's_mov_b64 s[{r}:{r + 1}], s[{PTR[r]}:{PTR[r] + 1}]')

    def consts():
        a(f's_mov_b32 s{S_ONES}, 0x3f803f80')
        a(f's_mov_b32 s{S_LO1}, 0x3f80')
        a(f's_mov_b32 s{S_HI1}, 0x3f800000')
        a(f's_mov_b32 s{S_MASK}, 0xffff0000')

    def get_tag():
        a('s_waitcnt lgkmcnt(0)')
        a(f's_add_u32 s{S_TAG}, s{S_TAG}, 0x9e3779b9')

    def vF(d):
        a(f'v_bfe_u32 v{d}, v1, 2, 2')
        a(f'v_lshlrev_b32 v{d}, 8, v{d}')
        a(f'v_lshl_add_u32 v{d}, v3, 6, v{d}')
        a(f'v_lshl_add_u32 v{d}, v4, 4, v{d}')

    def tr64_addr(d, t):
        a(f'v_bfe_u32 v{t}, v1, 2, 2')
        a(f'v_lshl_add_u32 v{t}, v3, 3, v{t}')
        a(f'v_lshlrev_b32 v{d}, 6, v{t}')
        a(f'v_lshl_add_u32 v{d}, v4, 3, v{d}')

    def tr_op(dst, addr, off, tau):
        a(f'ds_read_b64_tr_b16 {vr(dst, 2)}, v{addr} offset:{off}')
        a(f'ds_read_b64_tr_b16 {vr(dst + 2, 2)}, v{addr} offset:{off + tau}')

    def red4_read(x, addr):
        ex(0xffffffff)
        for w in range(4):
            a(f'ds_read_b128 {vr(x + 4 * w, 4)}, v{addr} offset:{512 * w}')
        a('s_waitcnt lgkmcnt(2)')
        for i in range(4):
            a(f'v_add_f32 v{x + i}, v{x + i}, v{x + 4 + i}')
        a('s_waitcnt lgkmcnt(0)')
        for i in range(4):
            a(f'v_add_f32 v{x + 8 + i}, v{x + 8 + i}, v{x + 12 + i}')
        for i in range(4):
            a(f'v_add_f32 v{x + i}, v{x + i}, v{x + 8 + i}')

    def frag_addr(dst, t):
        a(f'v_bfe_u32 v{dst}, v1, 1, 2')
        a(f'v_lshlrev_b32 v{dst}, 6, v{dst}')
        a(f'v_bfe_u32 v{t}, v1, 3, 2')
        a(f'v_lshl_add_u32 v{dst}, v{t}, 4, v{dst}')
        a(f'v_and_b32 v{t}, 1, v1')
        a(f'v_lshl_add_u32 v{dst}, v{t}, 3, v{dst}')

    M4 = 0x000f000f000f000f

    def arrive(wave, ret, t0, off, sel='s3'):
        lb = a.uid('arr')
        a(f's_cmp_lg_u32 {sel}, {wave}')
        a(f's_cbranch_scc1 {lb} ;noflush')
        a(f'v_mov_b32 v{t0}, {off}')
        a(f'v_mov_b32 v{ret}, 1')
        ex(1)
        a(f'global_atomic_add v{ret}, v{t0}, v{ret}, s[86:87] sc0 sc1')
        ex(-1)
        a.label(lb)

    def release(wave, ret, t0, last, flag, wait=None):
        lb = a.uid('rel')
        a(f's_cmp_lg_u32 s3, {wave}')
        a(f's_cbranch_scc1 {lb} ;noflush')
        if wait:
            a(wait)
        a(f'v_readfirstlane_b32 s1, v{ret}')
        a(f's_and_b32 s1, s1, {last}')
        a(f's_cmp_lg_u32 s1, {last}')
        a(f's_cbranch_scc1 {lb} ;noflush')
        a('s_mov_b64 exec, -1')
        a(f'v_mbcnt_lo_u32_b32 v{t0}, -1, 0')
        a(f'v_lshlrev_b32 v{t0}, 2, v{t0}')
        a(f'v_mov_b32 v{ret}, s{S_TAG}')
        if isinstance(flag, int):
            a(f's_mov_b32 s1, {flag}')
            flag = 's1'
        ex(0xffffffff)
        a(f'buffer_store_dword v{ret}, v{t0}, {S(R_WS)}, {flag} offen sc1')
        ex(-1)
        a.label(lb)

    def flag_wait(flag, t0, sleep):
        if isinstance(flag, int):
            a(f's_mov_b32 s1, {flag}')
            flag = 's1'
        ex(1)
        poll(lambda: a(f'buffer_load_dword v{t0}, off, {S(R_WS)}, {flag} sc1'),
             lambda: a(f'v_cmp_ne_u32 vcc, s{S_TAG}, v{t0}'), sleep)
        ex(-1)

    a(f'.globl {name}\n.p2align 8\n.type {name},@function')
    a.label(name)
    if o.stamps or o.diag:
        a('s_memrealtime s[100:101]')
    a('s_cmp_ge_u32 s2, 256')
    a('s_cbranch_scc1 L_end')
    a('s_load_dwordx16 s[64:79], s[0:1], 0')
    a('s_load_dwordx8 s[80:87], s[0:1], 64')
    a(f's_load_dwordx2 s[{R_WS}:{R_WS + 1}], s[0:1], 96')
    a('s_cmp_lt_u32 s2, 128')
    a('s_cbranch_scc1 L_nopf')
    a('s_getpc_b64 s[94:95]')
    a.label('L_pc')
    a('v_lshlrev_b32 v1, 7, v0')
    a(f'v_cmp_gt_u32 vcc, L_end-L_pc, v1')
    a('s_and_saveexec_b64 s[96:97], vcc')
    a('s_cbranch_execz L_pfdone')
    a('global_load_dword v127, v1, s[94:95]')
    a.label('L_pfdone')
    a('s_mov_b64 exec, s[96:97]')
    a.label('L_nopf')
    a('v_and_b32 v1, 63, v0')
    a('v_lshrrev_b32 v2, 6, v0')
    a('v_readfirstlane_b32 s3, v2')
    a('v_lshlrev_b32 v2, 4, v1')
    a('v_lshrrev_b32 v3, 4, v1')
    a('v_and_b32 v4, 3, v1')
    a('v_and_b32 v11, 15, v1')
    srd([R_WS, R_X])
    a('s_cmp_ge_u32 s2, 128')
    a('s_cbranch_scc1 L_att')

    srd([R_WQ, R_WUK])
    a('s_and_b32 s4, s2, 7')
    a('s_lshl_b32 s4, s4, 2')
    a('s_bfe_u32 s5, s2, 0x20003')
    a('s_add_u32 s4, s4, s5')
    a('s_lshr_b32 s5, s2, 5')
    a('s_lshl_b32 s6, s4, 8')
    a('v_lshlrev_b32 v5, 1, v3')
    a('v_xor_b32 v5, v5, v11')
    a('v_lshlrev_b32 v5, 4, v5')
    a('v_lshl_add_u32 v6, v3, 13, v5')
    a('v_xor_b32 v7, 0x80, v6')
    a('v_xor_b32 v8, v3, v11')
    a('v_lshlrev_b32 v8, 4, v8')
    a('v_lshl_add_u32 v8, v3, 13, v8')
    a('s_lshl_b32 s90, s5, 20')
    a('s_lshl_b32 s91, s3, 17')
    a('s_add_u32 s90, s90, s91')
    a('s_add_u32 s90, s90, s6')
    a('s_lshl_b32 s91, s3, 12')
    a('s_mov_b32 m0, s91')
    a('v_bfe_u32 v10, v1, 2, 2')
    a('v_lshlrev_b32 v10, 6, v10')
    a('v_lshl_add_u32 v10, v4, 10, v10')
    a('v_lshl_add_u32 v10, v3, 4, v10')
    a('s_lshl_b32 s93, s5, 8')
    XS, XO = 12, 28
    a('s_waitcnt lgkmcnt(0)')
    srd_ptr([R_X, R_WQ, R_WUK])
    a('s_cmp_lg_u32 s3, 0')
    a('s_cbranch_scc1 L_nox')
    for i in range(4):
        a(f'buffer_load_dwordx4 {vr(XS + 4 * i, 4)}, v10, {S(R_X)}, 0 offen offset:{256 * i}')
    a(f'buffer_load_dwordx4 {vr(XO, 4)}, v10, {S(R_X)}, s93 offen')
    a.label('L_nox')
    if o.qloc:
        a('s_lshl_b32 s92, s4, 13')
        a('s_lshl_b32 s93, s3, 10')
        a('s_add_u32 s92, s92, s93')
        a(f's_add_u32 s92, s92, {WS_QPL}')
        a(f'buffer_load_dwordx4 v[68:71], v2, {S(R_WS)}, s92 offen sc1')
    for i in range(4):
        a(f's_add_u32 s92, s90, {i * 32768}')
        a(f'buffer_load_dwordx4 v{6 + i // 2}, {S(R_WQ)}, s92 offen nt lds')
        if i < 3:
            a('s_add_u32 m0, m0, 1024')
    a('s_barrier')
    a('s_cmp_lt_u32 s3, 4')
    a('s_cbranch_scc1 L_nouk')
    a('s_lshl_b32 s91, s3, 17')
    a('s_add_u32 s90, s90, s91')
    a(f's_sub_u32 s90, s90, {8 << 17}')
    a('s_lshl_b32 s91, s3, 13')
    a(f's_add_u32 m0, s91, {A_WUK - 32768}')
    for i in range(8):
        if i % 2 == 0:
            a(f'v_xor_b32 v9, {64 * (i // 2)}, v8')
        a(f's_add_u32 s92, s90, {i * 32768}')
        a(f'buffer_load_dwordx4 v9, {S(R_WUK)}, s92 offen nt lds')
        if i < 7:
            a('s_add_u32 m0, m0, 1024')
    a.label('L_nouk')
    a(f's_load_dword s{S_TAG}, s[{R_WS}:{R_WS + 1}], {WS_EPOCH}')
    srd_ptr([R_WUV, R_WO, R_WG, R_WU, R_WD, R_OUT])
    consts()
    stamp(1)
    a('s_cmp_lg_u32 s3, 0')
    a('s_cbranch_scc1 L_noln')
    a(f's_waitcnt vmcnt({5 + o.qloc})')
    for i in range(16):
        a(f'v_dot2_f32_bf16 v34, v{XS + i}, s{S_ONES}, {"0" if i == 0 else "v34"}')
        a(f'v_dot2_f32_bf16 v35, v{XS + i}, v{XS + i}, {"0" if i == 0 else "v35"}')
    for c in ('row_ror:4', 'row_ror:8'):
        dpp('v_add_f32', 34, 34, 34, c)
        dpp('v_add_f32', 35, 35, 35, c)
    for wh in (16, 32):
        a('v_mov_b32 v12, v34')
        a('v_mov_b32 v13, v35')
        a(f'v_permlane{wh}_swap_b32 v34, v12')
        a(f'v_permlane{wh}_swap_b32 v35, v13')
        a('v_add_f32 v34, v34, v12')
        a('v_add_f32 v35, v35, v13')
    a('v_mul_f32 v34, 0x3b000000, v34')
    a('v_mul_f32 v35, 0x3b000000, v35')
    a('v_fma_f32 v35, -v34, v34, v35')
    a('v_max_f32 v35, 0, v35')
    a('v_add_f32 v35, 0x3727c5ac, v35')
    a('v_rsq_f32 v35, v35')
    a(f'v_mul_f32 v35, {QSCALE_BITS}, v35')
    a('v_mul_f32 v34, v34, v35')
    a(f's_waitcnt vmcnt({4 + o.qloc})')
    for i in range(4):
        a(f'v_lshlrev_b32 v12, 16, v{XO + i}')
        a(f'v_and_b32 v13, s{S_MASK}, v{XO + i}')
        a('v_fma_f32 v12, v12, v35, -v34')
        a('v_fma_f32 v13, v13, v35, -v34')
        a(f'v_cvt_pk_bf16_f32 v{XO + i}, v12, v13')
    a(f'v_add_u32 v12, {A_X}, v2')
    a(f'ds_write_b128 v12, {vr(XO, 4)}')
    a.label('L_noln')
    srd([R_WUV, R_WO, R_WG, R_WU, R_WD, R_OUT])
    for i in range(4):
        a(f'v_mov_b32 v{36 + i}, -1')
    a('s_lshl_b32 s92, s2, 3')
    a('s_add_u32 s92, s92, s3')
    a('s_mul_i32 s92, s92, 352')
    a(f's_add_u32 s92, s92, {WS_CLEAN}')
    ex(0x3fffff)
    a(f'buffer_store_dwordx4 v[36:39], v2, {S(R_WS)}, s92 offen sc1')
    ex(-1)
    a('v_bfe_u32 v40, v1, 2, 3')
    a('v_lshlrev_b32 v40, 1, v40')
    a('s_lshl_b32 s92, s3, 1')
    a('s_and_b32 s92, s92, 12')
    a(f'v_bitop3_b32 v40, v40, v4, s92 {XOR3}')
    a('v_lshlrev_b32 v40, 4, v40')
    a('v_bfe_u32 v41, v1, 2, 2')
    a('v_lshl_add_u32 v41, v3, 3, v41')
    a('v_lshl_add_u32 v40, v41, 8, v40')
    a('s_and_b32 s92, s3, 1')
    a('s_lshl_b32 s92, s92, 3')
    a('v_add_u32 v40, s92, v40')
    a('v_lshlrev_b32 v41, 8, v3')
    a('v_lshl_add_u32 v41, v4, 4, v41')
    a(f'v_add_u32 v41, {A_X}, v41')
    a('v_lshlrev_b32 v42, 6, v3')
    a('v_lshl_add_u32 v42, v4, 4, v42')
    a('s_lshl_b32 s96, s4, 13')
    if WS_QP:
        a(f's_add_u32 s96, s96, {WS_QP}')
    a('s_lshl_b32 s92, s5, 11')
    a('s_add_u32 s97, s96, s92')
    a('s_lshl_b32 s92, s3, 8')
    a('s_add_u32 s97, s97, s92')
    get_tag()
    stamp(2)
    if o.loc:
        a('s_getreg_b32 s1, hwreg(HW_REG_XCC_ID, 0, 4)')
        a(f's_xor_b32 s{S_XCC}, s1, s{S_TAG}')
    a(f's_add_u32 s98, s97, {WS_QPL - WS_QP}')
    a(f's_add_u32 s99, s96, {(WS_QPL - WS_QP) if o.qloc else 0}')
    a('v_bfe_u32 v43, v1, 2, 2')
    a('v_lshlrev_b32 v43, 11, v43')
    a('v_lshl_add_u32 v43, v3, 6, v43')
    a('v_lshl_add_u32 v43, v4, 4, v43')
    a('s_cmp_lt_u32 s3, 4')
    a('s_cbranch_scc1 L_wq_lo')
    a('s_waitcnt vmcnt(9)')
    a('s_branch L_wq_hi')
    a.label('L_wq_lo')
    a('s_waitcnt vmcnt(1)')
    a.label('L_wq_hi')
    a('s_barrier')
    W1, XF, AC = 12, 44, 60
    for t in range(4):
        tr_op(W1 + 4 * t, 40, A_WQ + 8192 * t, 1024)
        a(f'ds_read_b128 {vr(XF + 4 * t, 4)}, v41 offset:{64 * t}')
    for t in range(4):
        a(f's_waitcnt lgkmcnt({3 * (3 - t)})')
        mfma16(AC, W1 + 4 * t, XF + 4 * t, t == 0)
    a(f'v_cvt_pk_bf16_f32 v64, v{AC}, v{AC + 1}')
    a(f'v_cvt_pk_bf16_f32 v65, v{AC + 2}, v{AC + 3}')
    a(f'v_bitop3_b32 v66, v64, v65, s{S_TAG} {XOR3}')
    ex(M4)
    if o.qloc:
        a(f'buffer_store_dwordx4 v[64:67], v42, {S(R_WS)}, s98 offen')
    a(f'buffer_store_dwordx4 v[64:67], v42, {S(R_WS)}, s97 offen sc1')
    ex(-1)
    stamp(3)
    UK, Q, AC2, FR = 68, 100, 132, 140

    def a2_loads():
        for n in range(8):
            a(f'buffer_load_dwordx4 {vr(Q + 4 * n, 4)}, v43, {S(R_WS)}, s99 offen offset:{256 * n} sc1')
    a(f's_cmp_lt_u32 s5, {o.nsamp}')
    a('s_cselect_b32 s98, s3, 99')
    a('v_lshlrev_b32 v30, 7, v1')
    a(f'v_mov_b32 v31, s{S_TAG}')
    AW = 3 if o.arrpos == 2 else 7
    a('s_cmp_lt_u32 s3, 4')
    a('s_cbranch_scc1 L_a2')
    a('s_waitcnt vmcnt(0)')
    if o.arrpos == 0:
        arrive(7, 22, 23, 0, 's98')
    a('s_barrier')
    if o.arrpos == 1:
        arrive(7, 22, 23, 0, 's98')
    a('s_branch L_a_done')
    a.label('L_a2')
    a(f's_waitcnt vmcnt({o.qloc})')
    if o.qdelay:
        a(f's_sleep {o.qdelay}')
    a2_loads()
    a('v_lshrrev_b32 v12, 2, v11')
    a('v_lshl_add_u32 v12, v12, 3, v4')
    a('v_lshlrev_b32 v12, 8, v12')
    a('v_xor_b32 v13, v3, v11')
    a('v_lshl_add_u32 v12, v13, 4, v12')
    a('s_lshl_b32 s92, s3, 13')
    a(f's_add_u32 s92, s92, {A_WUK}')
    a('v_add_u32 v12, s92, v12')
    a('s_barrier')
    for t in range(4):
        a(f'v_xor_b32 v13, {64 * t}, v12')
        for sub in range(2):
            a(f'ds_read_b128 {vr(UK + 16 * sub + 4 * t, 4)}, v13 offset:{1024 * sub}')
    a('v_lshlrev_b32 v15, 8, v4')
    a('v_lshl_add_u32 v15, v3, 4, v15')
    a('s_lshl_b32 s91, s3, 6')
    a(f's_add_u32 s91, s91, {A_C}')
    a('v_add_u32 v15, s91, v15')
    a(f'v_add_u32 v16, {A_C}, v2')
    a('v_lshlrev_b32 v20, 15, v3')
    a('v_lshl_add_u32 v20, v11, 4, v20')
    a(f'v_lshlrev_b32 v21, {10 if o.hc else 3}, v3')
    a('s_lshl_b32 s91, s4, 10')
    a('s_lshl_b32 s92, s5, 8')
    a('s_add_u32 s92, s92, s91')
    a(f's_lshr_b32 s93, s92, {5 if o.hc else 1}')
    if WS_QA:
        a(f's_add_u32 s92, s92, {WS_QA}')
    a(f's_add_u32 s93, s93, {WS_QAH}')
    a(f's_mov_b32 s{S_CNT}, {SPIN}')
    a('s_branch L_a2chk')
    a.label('L_a2poll')
    if o.qloc:
        a(f's_add_u32 s99, s96, {WS_QPL - WS_QP}')
        a(f's_and_b32 s91, s{S_CNT}, 7')
        a('s_cselect_b32 s99, s99, s96')
    a2_loads()
    a.label('L_a2chk')
    for n in range(8):
        a(f's_waitcnt vmcnt({7 - n})')
        a(f'v_bitop3_b32 v{Q + 4 * n + 2}, v{Q + 4 * n}, v{Q + 4 * n + 1}, v{Q + 4 * n + 2} {XOR3}')
    a(f'v_max3_u32 v17, v{Q + 2}, v{Q + 6}, v{Q + 10}')
    a(f'v_min3_u32 v18, v{Q + 2}, v{Q + 6}, v{Q + 10}')
    a(f'v_max3_u32 v17, v17, v{Q + 14}, v{Q + 18}')
    a(f'v_min3_u32 v18, v18, v{Q + 14}, v{Q + 18}')
    a(f'v_max3_u32 v17, v17, v{Q + 22}, v{Q + 26}')
    a(f'v_min3_u32 v18, v18, v{Q + 22}, v{Q + 26}')
    a(f'v_max3_u32 v17, v17, v{Q + 30}, s{S_TAG}')
    a(f'v_min3_u32 v18, v18, v{Q + 30}, s{S_TAG}')
    a('v_cmp_ne_u32 vcc, v17, v18')
    a('s_cbranch_vccz L_a2go')
    a(f's_sub_u32 s{S_CNT}, s{S_CNT}, 1')
    a('s_cbranch_scc0 L_a2poll')
    a.label('L_a2go')
    if o.st3:
        a('s_memrealtime s[72:73]')
    stamp(4)
    if o.arrpos == 2:
        arrive(3, 22, 23, 0, 's98')
    a('s_waitcnt lgkmcnt(0)')
    for n in range(8):
        for sub in range(2):
            d = AC2 + 4 * sub
            c = '0' if n == 0 else vr(d, 4)
            a(f'v_mfma_f32_16x16x16_bf16 {vr(d, 4)}, {vr(UK + 16 * sub + 2 * n, 2)}, {vr(Q + 4 * n, 2)}, {c}')
    for c in ('row_ror:4', 'row_ror:8'):
        for i in range(8):
            dpp('v_add_f32', AC2 + i, AC2 + i, AC2 + i, c)
    for i in range(4):
        a(f'v_cvt_pk_bf16_f32 v{FR + i}, v{AC2 + 2 * i}, v{AC2 + 2 * i + 1}')
    ex(M4)
    a(f'ds_write_b128 v15, {vr(FR, 4)}')
    ex(-1)
    a('s_waitcnt lgkmcnt(0)')
    a.label('L_a_done')
    a('s_barrier')
    a('s_cmp_lg_u32 s3, 0')
    a('s_cbranch_scc1 L_a_pub')
    a(f'ds_read_b128 {vr(FR, 4)}, v16')
    a('s_waitcnt lgkmcnt(0)')
    a(f'buffer_store_dwordx4 {vr(FR, 4)}, v20, {S(R_WS)}, s92 offen sc1')
    xor_chain(18, range(FR, FR + 4))
    for c in ('quad_perm:[1,0,3,2]', 'quad_perm:[2,3,0,1]', 'row_ror:4', 'row_ror:8'):
        dpp('v_xor_b32', 18, 18, 18, c)
    a(f'v_xor_b32 v19, s{S_TAG}, v18')
    ex(0x0001000100010001)
    a(f'buffer_store_dwordx2 v[18:19], v21, {S(R_WS)}, s93 offen sc1')
    ex(-1)
    stamp(5)
    a.label('L_a_pub')
    a(f's_cmp_lg_u32 s98, {AW}')
    a('s_cbranch_scc1 L_norel')
    a('s_waitcnt vmcnt(0)')
    a('v_readfirstlane_b32 s1, v22')
    a(f's_and_b32 s1, s1, {32 * o.nsamp - 1}')
    a(f's_cmp_lg_u32 s1, {32 * o.nsamp - 1}')
    a('s_cbranch_scc1 L_norel')
    a(f's_mov_b32 s1, {WS_HU}')
    if o.nh < 64:
        ex((1 << o.nh) - 1)
    a(f'buffer_store_dword v31, v30, {S(R_WS)}, s1 offen sc1')
    ex(-1)
    if o.nh > 64:
        a(f's_mov_b32 s1, {WS_HU + 8192}')
        a(f'buffer_store_dword v31, v30, {S(R_WS)}, s1 offen sc1')
    a.label('L_norel')
    if o.loc:
        a('s_cmp_lg_u32 s3, 5')
        a('s_cbranch_scc1 L_noxt')
        a('s_and_b32 s92, s2, 7')
        a('s_lshl_b32 s92, s92, 11')
        a('s_lshr_b32 s93, s2, 3')
        a('s_lshl_b32 s93, s93, 7')
        a('s_add_u32 s92, s92, s93')
        a(f's_add_u32 s92, s92, {WS_XT}')
        a(f'v_mov_b32 v9, s{S_XCC}')
        ex(1)
        a(f'buffer_store_dword v9, off, {S(R_WS)}, s92 sc1')
        ex(-1)
        a.label('L_noxt')
    a('s_and_b32 s7, s2, 7')
    a('s_lshr_b32 s63, s2, 3')
    a('v_and_b32 v7, 1, v3')
    a('v_lshl_add_u32 v6, v7, 18, v5')
    a('v_lshrrev_b32 v7, 1, v3')
    a('v_lshl_add_u32 v6, v7, 17, v6')
    a('v_xor_b32 v7, 0x80, v6')
    a('s_lshl_b32 s0, s5, 20')
    a('s_add_u32 s0, s0, s6')
    a('s_mov_b32 s61, 0')
    D, WL, CA, OPC, OPD = 16, 32, 40, 64, 96
    a('s_and_b32 s94, s3, 3')
    a('s_lshr_b32 s95, s3, 2')
    a('v_bfe_u32 v56, v1, 2, 3')
    a('v_lshlrev_b32 v56, 1, v56')
    a('s_lshl_b32 s92, s94, 2')
    a(f'v_bitop3_b32 v56, v56, v4, s92 {XOR3}')
    a('v_lshlrev_b32 v56, 4, v56')
    a('v_bfe_u32 v58, v1, 2, 2')
    a('v_lshl_add_u32 v58, v3, 3, v58')
    a('v_lshl_add_u32 v56, v58, 8, v56')
    a(f'v_add_u32 v56, {A_WUV}, v56')
    a('v_and_b32 v5, 31, v1')
    a('v_lshlrev_b32 v5, 11, v5')
    a('s_lshl_b32 s90, s94, 16')
    a('s_lshl_b32 s91, s5, 9')
    a('s_add_u32 s90, s90, s91')
    a('s_lshl_b32 s91, s4, 4')
    a('s_add_u32 s90, s90, s91')
    a(f's_add_u32 s90, s90, {WS_REC}')
    a('s_lshl_b32 s96, s4, 2')
    a('s_add_u32 s96, s96, s5')
    a('s_lshl_b32 s96, s96, 2')
    a('s_add_u32 s96, s96, s94')
    a('s_lshl_b32 s91, s96, 13')
    a('s_lshl_b32 s93, s95, 12')
    a('s_add_u32 s91, s91, s93')
    a(f's_add_u32 s91, s91, {WS_OP}')
    a('s_lshl_b32 s92, s95, 4')
    a('v_lshlrev_b32 v48, 4, v11')
    a('v_lshl_add_u32 v48, v3, 1, v48')
    a('s_mul_i32 s93, s3, 272')
    a(f's_add_u32 s93, s93, {A_C}')
    a('v_add_u32 v48, s93, v48')
    a('v_and_b32 v49, 7, v1')
    a('v_mul_u32_u24 v49, 272, v49')
    a('v_lshl_add_u32 v49, v3, 4, v49')
    a(f'v_add_u32 v49, {A_C}, v49')
    a('v_lshlrev_b32 v50, 6, v3')
    a('v_lshl_add_u32 v50, v4, 4, v50')
    a('s_lshl_b32 s98, s4, 12')
    a('s_lshl_b32 s93, s94, 10')
    a('s_add_u32 s98, s98, s93')
    a('s_lshl_b32 s93, s5, 8')
    a('s_add_u32 s98, s98, s93')
    a(f's_add_u32 s98, s98, {WS_CP}')
    a('v_add_u32 v51, s92, v3')
    a('v_lshlrev_b32 v51, 2, v51')
    a('v_cmp_eq_u32 s[88:89], s95, v3')
    a('s_lshl_b32 s96, s94, 14')
    a(f's_and_b32 s93, s2, {o.nl - 1}')
    a('s_lshl_b32 s93, s93, 7')
    a('s_add_u32 s96, s96, s93')
    a(f's_add_u32 s96, s96, {WS_OF}')
    a(f's_add_u32 s54, s{R_WS}, s96')
    a(f's_addc_u32 s55, s{R_WS + 1}, 0')
    na, nb_ = bin(o.emask).count('1'), bin(o.emask2).count('1')
    assert 4 * (na + nb_) >= 43
    a(f's_mul_i32 s17, s7, {na}')
    a(f's_mul_i32 s93, s7, {nb_}')
    a(f's_add_u32 s93, s93, {4 * na - 4 * nb_}')
    a('s_cmp_lt_u32 s7, 4')
    a(f's_cselect_b32 s16, {o.emask}, {o.emask2}' if o.emask2 <= 64 or o.emask == o.emask2 else 's_nop 0')
    if not (o.emask2 <= 64 or o.emask == o.emask2):
        a(f's_mov_b32 s16, {o.emask2}')
        a(f's_cselect_b32 s16, {o.emask}, s16')
    a('s_cselect_b32 s17, s17, s93')
    a('v_lshrrev_b32 v8, 2, v1')
    a('s_cmp_lt_u32 s3, 4')
    a('s_cbranch_scc1 L_wlo')
    a('s_mov_b32 s61, 0')
    tr64_addr(58, 59)

    def go_wait(extra=0):
        a('s_lshl_b32 s96, s2, 7')
        a(f's_add_u32 s96, s96, {WS_GO}')
        ex(1)
        poll(lambda: a(f'buffer_load_dword v9, off, {S(R_WS)}, s96 sc1'), lambda: a(f'v_cmp_ne_u32 vcc, s{S_TAG}, v9'), 3)
        ex(-1)
    def hu_wait(tag):
        a('s_lshl_b32 s96, s2, 7')
        a(f's_add_u32 s96, s96, {WS_HU}')
        a(f's_add_u32 s0, s{R_WS}, s96')
        a(f's_addc_u32 s1, s{R_WS + 1}, 0')
        a(f's_mov_b32 s{S_CNT}, {SPIN}')
        a.label(tag)
        a('s_sleep 4')
        a('s_load_dword s96, s[0:1], 0 glc')
        a('s_waitcnt lgkmcnt(0)')
        a(f's_cmp_eq_u32 s96, s{S_TAG}')
        a(f's_cbranch_scc1 {tag}go')
        a(f's_sub_u32 s{S_CNT}, s{S_CNT}, 1')
        a(f's_cbranch_scc0 {tag}')
        a.label(tag + 'go')
    a('s_bitcmp1_b32 s16, s63')
    a('s_cbranch_scc1 L_E1')
    a(f's_bitcmp1_b32 {o.dmask}, s63')
    a('s_cbranch_scc1 L_D1')
    a.label('L_wnone')
    a('s_barrier')
    a('s_load_dword s97, s[54:55], 0 glc')
    a('s_branch L_cstart')
    OP = 64
    H, XR, HA, X4, EA = 16, 128, 140, 148, 164
    EW, ES, ER, ESR, EST, EG, ECS = 180, 181, 182, 183, 184, 185, 186
    OPD, DA = 64, 144
    a.label('L_D1')
    a('s_mov_b32 s61, 2')
    a('s_bfm_b32 s63, s63, 0')
    a(f's_and_b32 s63, s63, {o.dmask}')
    a('s_bcnt1_i32_b32 s63, s63')
    a('v_lshrrev_b32 v8, 3, v1')
    a('v_lshlrev_b32 v8, 10, v8')
    a('v_and_b32 v9, 7, v1')
    a('v_lshl_add_u32 v8, v9, 4, v8')
    a('s_lshl_b32 s99, s7, 19')
    a('s_lshl_b32 s93, s94, 17')
    a('s_add_u32 s99, s99, s93')
    a('s_lshl_b32 s93, s63, 7')
    a('s_add_u32 s99, s99, s93')
    a('s_lshl_b32 s6, s94, 14')
    a('s_mov_b32 m0, s6')
    for i in range(16):
        a(f's_add_u32 s93, s99, {i * 8192}')
        if i >= o.owin:
            a(f's_waitcnt vmcnt({o.owin - 1})')
        a(f'buffer_load_dwordx4 v8, {S(R_WO)}, s93 offen nt lds')
        if i < 15:
            a('s_add_u32 m0, m0, 1024')
    a('v_lshlrev_b32 v57, 7, v59')
    a('v_lshl_add_u32 v57, v4, 3, v57')
    a('v_add_u32 v57, s6, v57')
    vF(128)
    a('v_lshlrev_b32 v129, 8, v4')
    a('v_bfe_u32 v9, v1, 2, 2')
    a('v_lshl_add_u32 v129, v9, 6, v129')
    a('v_lshl_add_u32 v129, v3, 4, v129')
    a('s_lshl_b32 s93, s94, 10')
    a(f's_add_u32 s93, s93, {A_H}')
    a('v_add_u32 v129, s93, v129')
    a('v_bfe_u32 v130, v1, 1, 2')
    a('v_lshlrev_b32 v130, 8, v130')
    a('v_lshrrev_b32 v9, 3, v1')
    a('v_lshl_add_u32 v130, v9, 5, v130')
    a('v_and_b32 v9, 1, v1')
    a('v_lshl_add_u32 v130, v9, 4, v130')
    a(f'v_add_u32 v130, {A_H}, v130')
    a('v_lshlrev_b32 v131, 3, v1')
    a('s_lshl_b32 s6, s7, 14')
    a('s_lshl_b32 s93, s94, 12')
    a('s_add_u32 s6, s6, s93')
    a(f's_add_u32 s6, s6, {WS_CP}')
    a('s_lshl_b32 s99, s7, 12')
    a('s_lshl_b32 s93, s63, 9')
    a('s_add_u32 s99, s99, s93')
    a(f's_add_u32 s99, s99, {WS_HP}')
    if o.loc:
        a('s_lshl_b32 s93, s7, 11')
        a(f's_add_u32 s93, s93, {WS_XT}')
        a('v_lshlrev_b32 v9, 7, v11')
        a(f'buffer_load_dword v10, v9, {S(R_WS)}, s93 offen sc1')
    for i in range(4):
        a(f'buffer_load_dwordx4 {vr(D + 4 * i, 4)}, v128, {S(R_WS)}, s6 offen offset:{1024 * i} sc1')
    a('s_waitcnt vmcnt(0)')
    if o.loc:
        a(f'v_cmp_ne_u32 vcc, s{S_XCC}, v10')
        a('s_cmp_eq_u64 vcc, 0')
        a(f's_cselect_b32 s{S_LOC}, 1, 0')
    for t in range(4):
        for k in range(4):
            tr_op(OPD + 16 * t + 4 * k, 57, 4096 * t + 32 * k, 512)
        a('s_waitcnt lgkmcnt(4)')
    a('s_branch L_wnone')
    a.label('L_E1')
    a('s_bfm_b32 s63, s63, 0')
    a('s_and_b32 s63, s63, s16')
    a('s_bcnt1_i32_b32 s63, s63')
    a('s_add_u32 s63, s63, s17')
    a('s_cmp_ge_u32 s63, 43')
    a('s_cbranch_scc1 L_wnone')
    a('s_mov_b32 s61, 1')
    if o.efgo == 1:
        go_wait()
    if o.pf == 2:
        hu_wait('L_efw')
    a('v_mul_u32_u24 v8, 2752, v8')
    a('v_lshl_add_u32 v8, v4, 4, v8')
    a(f's_mul_i32 s99, s94, {128 * 2752}')
    a('s_lshl_b32 s93, s63, 6')
    a('s_add_u32 s99, s99, s93')
    a('s_lshl_b32 s6, s94, 14')
    a('s_mov_b32 m0, s6')
    a('v_bfe_u32 v9, v1, 2, 2')
    a('v_lshlrev_b32 v9, 6, v9')
    a('v_lshl_add_u32 v9, v4, 10, v9')
    a('v_lshl_add_u32 v9, v3, 4, v9')
    a('s_lshl_b32 s93, s94, 8')
    a(f'buffer_load_dwordx4 {vr(XR, 4)}, v9, {S(R_X)}, s93 offen')
    for mat in range(2):
        for i in range(8):
            a(f's_add_u32 s93, s99, {16 * i * 2752}')
            a(f's_waitcnt vmcnt({(o.ef0 if 8 * mat + i < o.efn else o.efwin) - 1})')
            a(f'buffer_load_dwordx4 v8, {S(R_WG if mat == 0 else R_WU)}, s93 offen {o.r64} lds')
            a('s_add_u32 m0, m0, 1024')
    OPW, FA = 192, 64
    EAR, EPS, EHW, GL, GH, GO_ = 188, 189, 190, 191, 224, 225
    a('v_and_b32 v8, 0xff, v6')
    a('v_lshl_add_u32 v8, v3, 10, v8')
    a('v_xor_b32 v9, 0x80, v8')
    a('s_lshl_b32 s99, s63, 15')
    a('s_lshl_b32 s93, s94, 8')
    a('s_add_u32 s99, s99, s93')
    a('s_lshl_b32 s98, s94, 13')
    a(f's_add_u32 s98, s98, {A_WD}')
    a('s_mov_b32 m0, s98')
    for i in range(8):
        a(f's_add_u32 s93, s99, {4096 * i}')
        a(f's_waitcnt vmcnt({o.efwin - 1})')
        a(f'buffer_load_dwordx4 v{8 + (i // 2) % 2}, {S(R_WD)}, s93 offen nt lds')
        a('s_add_u32 m0, m0, 1024')
    a('v_bfe_u32 v57, v1, 2, 3')
    a('v_lshlrev_b32 v57, 1, v57')
    a('v_xor_b32 v57, v57, v4')
    a('v_lshlrev_b32 v57, 4, v57')
    a('v_lshl_add_u32 v57, v59, 8, v57')
    a('v_add_u32 v57, s98, v57')
    a(f'v_lshlrev_b32 v{EAR}, 6, v4')
    a(f'v_lshl_add_u32 v{EAR}, v3, 4, v{EAR}')
    a(f'v_add_u32 v{EAR}, {A_ACT}, v{EAR}')
    a('v_bfe_u32 v9, v1, 1, 1')
    a(f'v_mul_u32_u24 v{EPS}, 6144, v9')
    a('v_and_b32 v9, 1, v1')
    a(f'v_lshl_add_u32 v{EPS}, v9, 6, v{EPS}')
    a(f'v_lshl_add_u32 v{EPS}, v3, 4, v{EPS}')
    a('s_lshl_b32 s93, s94, 10')
    a(f's_add_u32 s93, s93, {A_H}')
    a(f'v_add_u32 v{EHW}, s93, v2')
    a('v_cmp_lt_u32 vcc, 23, v1')
    a('v_mov_b32 v9, 0x7fffff00')
    a(f'v_cndmask_b32 v{GL}, v2, v9, vcc')
    a('s_and_b32 s93, s63, 1')
    a('s_lshl_b32 s93, s93, 1')
    a('v_bfe_u32 v9, v1, 2, 1')
    a('v_add_u32 v9, s93, v9')
    a(f'v_lshlrev_b32 v{GH}, 8, v4')
    a(f'v_lshl_add_u32 v{GH}, v9, 4, v{GH}')
    a('s_lshr_b32 s93, s63, 3')
    a('s_lshl_b32 s93, s93, 10')
    a('s_bfe_u32 s96, s63, 0x20001')
    a('s_lshl_b32 s96, s96, 6')
    a('s_add_u32 s93, s93, s96')
    a(f's_add_u32 s93, s93, {A_H}')
    a(f'v_add_u32 v{GH}, s93, v{GH}')
    a(f'v_lshlrev_b32 v{GO_}, 10, v9')
    a(f'v_lshl_add_u32 v{GO_}, v4, 4, v{GO_}')
    a(f'v_lshl_add_u32 v{GO_}, v3, 1, v{GO_}')
    a('v_add_u32 v58, s6, v58')
    a(f'v_lshlrev_b32 v{EW}, 8, v4')
    a(f'v_lshl_add_u32 v{EW}, v3, 4, v{EW}')
    a(f'v_add_u32 v{EW}, s6, v{EW}')
    a(f'v_lshlrev_b32 v{ES}, 3, v4')
    a(f'v_lshl_add_u32 v{ES}, v3, 2, v{ES}')
    a(f'v_add_u32 v{ES}, s6, v{ES}')
    a('s_and_b32 s93, s3, 1')
    a('s_lshl_b32 s93, s93, 6')
    a(f'v_add_u32 v{EST}, s93, v1')
    a(f'v_lshrrev_b32 v{ESR}, 5, v{EST}')
    a(f'v_and_b32 v{ER}, 31, v{EST}')
    a(f'v_lshlrev_b32 v{ER}, 2, v{ER}')
    a(f'v_lshl_add_u32 v{ER}, v{ESR}, 8, v{ER}')
    a(f'v_lshlrev_b32 v{ESR}, 3, v{ESR}')
    a(f'v_lshlrev_b32 v{EST}, 1, v{EST}')
    a(f'v_add_u32 v{EST}, {A_ACT}, v{EST}')
    vF(EG)
    for i in range(4):
        a(f'v_mov_b32 v{X4 + i}, s{S_ONES}')
    a('v_mov_b32 v226, v57')
    a('v_mov_b32 v227, v58')

    def e_lds_write():
        ex(M4)
        for k in range(4):
            a(f'ds_write_b128 v{EW}, {vr(EA + 4 * k, 4)} offset:{64 * k}')
        ex(-1)
    a('s_branch L_wnone')
    a.label('L_wlo')
    a('s_lshr_b32 s93, s3, 1')
    a('s_lshl_b32 s93, s93, 19')
    a('s_add_u32 s0, s0, s93')
    a('s_and_b32 s93, s3, 1')
    a('s_lshl_b32 s93, s93, 16')
    a('s_add_u32 s0, s0, s93')
    a('s_lshl_b32 s93, s3, 13')
    a(f's_add_u32 m0, s93, {A_WUV}')
    if o.egate == 0:
        a('s_bitcmp1_b32 s16, s63')
        a('s_cbranch_scc1 L_nogw')
    go_wait()
    a.label('L_nogw')
    for i in range(8):
        a(f's_add_u32 s93, s0, {i * 8192}')
        a(f'buffer_load_dwordx4 v{6 + (i // 2) % 2}, {S(R_WUV)}, s93 offen nt lds')
        if i < 7:
            a('s_add_u32 m0, m0, 1024')
    a('s_waitcnt vmcnt(0)')
    a('s_load_dword s97, s[54:55], 0 glc')
    a('s_barrier')
    if o.loc:
        a('s_lshl_b32 s93, s7, 11')
        a(f's_add_u32 s93, s93, {WS_XT}')
        a('v_lshlrev_b32 v9, 7, v11')
        a(f'buffer_load_dword v60, v9, {S(R_WS)}, s93 offen sc1')
    for t in range(4):
        for k in range(2):
            tr_op(OPC + 8 * t + 4 * k, 56, 8192 * t + 8 * k, 1024)
        a('s_waitcnt lgkmcnt(4)')
    if o.lprio:
        a(f's_setprio {o.lprio}')
    a.label('L_cstart')
    stamp(6)
    RED4 = ('quad_perm:[1,0,3,2]', 'quad_perm:[2,3,0,1]', 'row_ror:4', 'row_ror:8')

    def weights():
        a('v_mov_b32 v54, v52')
        for c in RED4:
            dpp('v_max_f32', 54, 54, 54, c)
        swap_step('v_max_f32', 54, 55, 16)
        a('v_sub_f32 v53, v52, v54')
        a('v_exp_f32 v53, v53')
        a('v_cvt_pk_bf16_f32 v54, v53, 0')
        a('v_lshlrev_b32 v53, 16, v54')
        for i in range(4):
            a(f'ds_bpermute_b32 v{WL + i}, v51, v54 offset:{16 * i}')
        a('s_waitcnt lgkmcnt(0)')
        for i in range(4):
            a(f'v_lshlrev_b32 v{WL + 4 + i}, 16, v{WL + i}')
    a('v_mov_b32 v52, -1')
    a('s_lshl_b32 s93, s94, 2')
    a(f's_add_u32 s93, s93, {A_X}')
    a('v_mov_b32 v59, s93')
    a(f'v_mov_b32 v58, s{S_TAG}')
    a('s_waitcnt lgkmcnt(0)')
    a(f's_cmp_eq_u32 s97, s{S_TAG}')
    a('s_cbranch_scc1 L_ofgo')
    a('v_lshrrev_b32 v9, 4, v5')
    a('s_lshl_b32 s96, s94, 12')
    a('s_lshl_b32 s93, s4, 2')
    a('s_add_u32 s96, s96, s93')
    a(f's_add_u32 s96, s96, {WS_M0}')
    a(f'buffer_load_dword v52, v9, {S(R_WS)}, s96 offen sc1')
    a('s_waitcnt vmcnt(0)')
    a(f'v_xor_b32 v52, s{S_TAG}, v52')
    weights()
    if o.oone:
        a('s_cmp_lt_u32 s3, 4')
        a('s_cbranch_scc1 L_of0')
        a(f's_mov_b32 s{S_CNT}, {SPIN * 40}')
        a.label('L_ofl')
        a('ds_read_b32 v10, v59')
        a('s_waitcnt lgkmcnt(0)')
        a(f'v_cmp_ne_u32 vcc, s{S_TAG}, v10')
        a('s_cbranch_vccz L_ofgo2')
        a(f's_sub_u32 s{S_CNT}, s{S_CNT}, 1')
        a('s_cbranch_scc0 L_ofl')
        a('s_branch L_ofgo2')
        a.label('L_of0')
    a(f's_mov_b32 s{S_CNT}, {SPIN}')
    a.label('L_of')
    a('s_load_dword s96, s[54:55], 0 glc')
    a('s_waitcnt lgkmcnt(0)')
    a(f's_cmp_eq_u32 s96, s{S_TAG}')
    a('s_cbranch_scc1 L_ofgo')
    if o.osl:
        a(f's_sleep {o.osl}')
    a(f's_sub_u32 s{S_CNT}, s{S_CNT}, 1')
    a('s_cbranch_scc0 L_of')
    a.label('L_ofgo')
    if o.oone:
        a('ds_write_b32 v59, v58')
        a.label('L_ofgo2')
    stamp(7)
    a(f's_mov_b32 s{S_CNT}, {SPIN}')
    a.label('L_call')
    a(f'buffer_load_dwordx4 v[12:15], v5, {S(R_WS)}, s90 offen sc1')
    for i in range(4):
        a(f'buffer_load_dwordx4 {vr(D + 4 * i, 4)}, v2, {S(R_WS)}, s91 offen offset:{1024 * i} sc1')
    a(f's_sub_u32 s{S_CNT}, s{S_CNT}, 1')
    a('s_cbranch_scc1 L_cdone')
    a('s_waitcnt vmcnt(4)')
    a('v_cmp_ne_u32 vcc, v12, v52')
    xor_chain(10, [12, 13, 14, 15], f's{S_TAG}')
    a('v_cndmask_b32 v9, 0, v14, s[88:89]')
    a('s_cbranch_vccnz L_cnewm')
    a.label('L_crec')
    a('v_mul_f32 v14, v53, v13')
    side = []
    for c in RED4:
        side.append(f'v_add_f32_dpp v14, v14, v14 {c} row_mask:0xf bank_mask:0xf')
    side += ['v_mov_b32 v15, v14', 'v_permlane16_swap_b32 v14, v15', 'v_add_f32 v14, v14, v15', 'v_rcp_f32 v14, v14']
    for i in range(4):
        a(f's_waitcnt vmcnt({3 - i})')
        if i == 3:
            stamp(8)
            f3(66)
        xor_chain(9, [9] + list(range(D + 4 * i, D + 4 * i + 4)))
        if i == 3:
            side = [f'v_xor_b32_dpp v9, v9, v9 {c} row_mask:0xf bank_mask:0xf' for c in RED4]
        for u in range(4):
            for e in range(2):
                c = '0' if i == 0 else f'v{CA + 2 * u + e}'
                a(f'v_dot2_f32_bf16 v{CA + 2 * u + e}, v{D + 4 * i + u}, v{WL + 4 * e + i}, {c}')
            if side:
                a(side.pop(0))
    a('v_mov_b32 v15, v9')
    for k in range(4):
        a(f'v_permlane16_swap_b32 v{CA + 2 * k}, v{CA + 2 * k + 1}')
        if k == 1:
            a('v_permlane16_swap_b32 v9, v15')
            a('v_xor_b32 v9, v9, v15')
            a('v_mov_b32 v15, v9')
    a('v_permlane32_swap_b32 v9, v15')
    a(f'v_bitop3_b32 v9, v9, v15, v10 bitop3:0xbe')
    a('v_cmp_ne_u32 vcc, 0, v9')
    a.label('L_cdone')
    for k in range(4):
        a(f'v_add_f32 v{CA + 2 * k}, v{CA + 2 * k}, v{CA + 2 * k + 1}')
    for k in range(2):
        a(f'v_permlane32_swap_b32 v{CA + 4 * k}, v{CA + 4 * k + 2}')
    for k in range(2):
        a(f'v_add_f32 v{CA + 4 * k}, v{CA + 4 * k}, v{CA + 4 * k + 2}')
    a('s_cbranch_vccnz L_cagain ;noflush')
    a.label('L_cok')
    a(f'v_mul_f32 v{CA}, v{CA}, v14')
    a(f'v_mul_f32 v{CA + 4}, v{CA + 4}, v14')
    a(f'v_cvt_pk_bf16_f32 v{CA}, v{CA}, v{CA + 4}')
    a(f'ds_write_b16 v48, v{CA}')
    a(f'ds_write_b16_d16_hi v48, v{CA} offset:8')
    f3(68)
    a('s_waitcnt lgkmcnt(0)')
    a('s_barrier')
    f3(70)
    a('s_cmp_ge_u32 s3, 4')
    a('s_cbranch_scc1 L_hi')
    if o.loc:
        a(f'v_cmp_ne_u32 vcc, s{S_XCC}, v60')
    for t in range(4):
        a(f'ds_read_b128 {vr(D + 4 * t, 4)}, v49 offset:{64 * t}')
    for t in range(4):
        a(f's_waitcnt lgkmcnt({3 - t})')
        for k in range(2):
            mfma16(CA + 4 * k, OPC + 8 * t + 4 * k, D + 4 * t, t == 0)
    for i in range(8):
        dpp('v_add_f32', CA + i, CA + i, CA + i, 'row_ror:4')
    for i in range(4):
        a(f'v_cvt_pk_bf16_f32 v{12 + i}, v{CA + 2 * i}, v{CA + 2 * i + 1}')
    a(f's_mov_b32 s{S_CNT}, {SPIN}')
    ex(M4)
    if o.loc:
        a('s_cbranch_vccnz L_cfar ;noflush')
        a(f'buffer_store_dwordx4 v[12:15], v50, {S(R_WS)}, s98 offen')
        a('s_branch L_cst ;noflush')
        a.label('L_cfar')
    a(f'buffer_store_dwordx4 v[12:15], v50, {S(R_WS)}, s98 offen sc1')
    a.label('L_cst')
    ex(-1)
    stamp(9)
    if o.stamps:
        a('s_cmp_lg_u32 s3, 0')
        a('s_cbranch_scc1 L_end')
        dump_stamps(13, 0)
    a('s_endpgm')
    a.label('L_cnewm')
    a('v_mov_b32 v52, v12')
    weights()
    a('s_branch L_crec')
    a.label('L_cagain')
    a(f's_cmp_lt_i32 s{S_CNT}, 0')
    a('s_cbranch_scc1 L_cok')
    a('s_branch L_call')
    a.label('L_hi')
    a('s_cmp_eq_u32 s61, 0')
    if o.stamps:
        a('s_cbranch_scc0 L_hi2')
        stamp(9)
        a('s_bfe_u32 s93, s2, 0x20003')
        a('s_cmp_lg_u32 s93, s94')
        a('s_cbranch_scc1 L_end')
        a(f's_sub_u32 s84, {SPIN}, s{S_CNT}')
        dump_stamps(11, 1)
        a('s_endpgm')
        a.label('L_hi2')
    else:
        a('s_cbranch_scc1 L_end')

    a('s_cmp_eq_u32 s61, 1')
    a('s_cbranch_scc1 L_E2')
    a('s_lshl_b32 s98, s7, 7')
    a(f's_add_u32 s98, s98, {WS_FL}')
    a(f'v_mov_b32 v132, s{S_TAG}')
    a(f's_mov_b32 s{S_CNT}, {SPIN}')
    a('s_barrier')
    a.label('L_dre')
    for i in range(4):
        a(f'buffer_load_dwordx4 {vr(D + 4 * i, 4)}, v128, {S(R_WS)}, s6 offen offset:{1024 * i} sc1')
    for t in range(4):
        a(f's_waitcnt vmcnt({3 - t})')
        for k in range(4):
            mfma16(DA + 4 * k, OPD + 16 * t + 4 * k, D + 4 * t, t == 0)
    a(f'v_cmp_u_f32 vcc, v{DA}, v{DA}')
    for k in range(2):
        for j in range(4):
            dpp('v_add_f32', DA + 4 * k + j, DA + 4 * k + j, DA + 4 * k + j, 'row_ror:8', 0x3)
        if k == 0:
            a('s_cbranch_vccnz L_dnan ;noflush')
            a.label('L_dok')
            stamp(9)
    for k in range(2):
        for j in range(4):
            dpp('v_add_f32', DA + 4 * k + j, DA + 8 + 4 * k + j, DA + 8 + 4 * k + j, 'row_ror:8', 0xc)
    for j in range(4):
        dpp('v_add_f32', DA + j, DA + j, DA + j, 'row_ror:12', 0x5)
    for j in range(4):
        dpp('v_add_f32', DA + j, DA + 4 + j, DA + 4 + j, 'row_ror:4', 0xa)
    a(f'ds_write_b128 v129, {vr(DA, 4)}')
    a('s_waitcnt lgkmcnt(0)')
    a('s_barrier')
    a('s_cmp_lg_u32 s3, 4')
    a('s_cbranch_scc1 L_end')
    for w in range(4):
        a(f'ds_read_b128 {vr(D + 4 * w, 4)}, v130 offset:{1024 * w}')
    a('s_waitcnt lgkmcnt(2)')
    for i in range(4):
        a(f'v_add_f32 v{D + i}, v{D + i}, v{D + 4 + i}')
    a('s_waitcnt lgkmcnt(0)')
    for i in range(4):
        a(f'v_add_f32 v{D + 8 + i}, v{D + 8 + i}, v{D + 12 + i}')
    for i in range(4):
        a(f'v_add_f32 v{D + i}, v{D + i}, v{D + 8 + i}')
    a(f'v_cvt_pk_bf16_f32 v{D}, v{D}, v{D + 1}')
    a(f'v_cvt_pk_bf16_f32 v{D + 1}, v{D + 2}, v{D + 3}')
    a(f'buffer_store_dwordx2 {vr(D, 2)}, v131, {S(R_WS)}, s99 offen sc1')
    stamp(10)
    a('s_cmp_lg_u32 s63, 0')
    a('s_cbranch_scc1 L_efend')
    if o.dfw:
        a('s_waitcnt vmcnt(0)')
    ex(1)
    if o.loc:
        a(f's_cmp_eq_u32 s{S_LOC}, 0')
        a('s_cbranch_scc1 L_dfar')
        a(f'buffer_store_dword v132, off, {S(R_WS)}, s98')
        a('s_branch L_efend')
        a.label('L_dfar')
    a(f'buffer_store_dword v132, off, {S(R_WS)}, s98 sc1')
    a('s_branch L_efend')
    nan_retry('L_dnan', range(D, D + 16), 'L_dre', 'L_dok')
    a.label('L_E2')
    def e_lds_read():
        for w in range(4):
            a(f'ds_read_b32 v{H + 2 * w}, v{ER} offset:{16384 * w}')
            a(f'ds_read_b32 v{H + 2 * w + 1}, v{ER} offset:{16384 * w + 128}')
    for t in range(4):
        for k in range(4):
            tr_op(OP + 16 * t + 4 * k, 227, 8192 * (k // 2) + 2048 * t + 32 * (k % 2), 256)
        a(f'v_xor_b32 v9, {64 * t}, v226')
        for k in range(2):
            tr_op(OPW + 8 * t + 4 * k, 9, 8 * k, 1024)
        a(f's_waitcnt lgkmcnt({2 if t < 3 else 0})')
    for t in range(4):
        for k in range(4):
            mfma16(EA + 4 * k, OP + 16 * t + 4 * k, X4, t == 0)
    for i in range(4):
        a(f'v_lshlrev_b32 v{132 + 2 * i}, 16, v{XR + i}')
        a(f'v_and_b32 v{133 + 2 * i}, s{S_MASK}, v{XR + i}')

    e_lds_write()
    a('s_lshl_b32 s98, s63, 7')
    a(f's_mul_i32 s93, s94, {4 * 12288}')
    a('s_add_u32 s98, s98, s93')
    a(f's_add_u32 s98, s98, {WS_FP}')
    a('s_mul_i32 s99, s63, 6144')
    a(f's_add_u32 s99, s99, {WS_FP}')
    a('s_add_u32 s97, s99, 4096')
    a('s_lshr_b32 s96, s63, 1')
    a('s_lshl_b32 s96, s96, 6')
    a('s_lshl_b32 s90, s94, 10')
    a(f's_add_u32 s90, s90, {WS_HP}')
    a('s_waitcnt lgkmcnt(0)')
    a(f's_mov_b32 s91, {f32bits(GELU_K * 0.044715)}')
    a(f'v_mov_b32 v228, {GELU_BITS}')
    stamp(5)
    a('s_barrier')
    e_lds_read()
    a('s_waitcnt lgkmcnt(0)')
    a(f'v_add_f32 v{ECS}, v{H}, v{H + 2}')
    a(f'v_add_f32 v{ECS + 1}, v{H + 1}, v{H + 3}')
    for w in range(2, 4):
        a(f'v_add_f32 v{ECS}, v{ECS}, v{H + 2 * w}')
        a(f'v_add_f32 v{ECS + 1}, v{ECS + 1}, v{H + 2 * w + 1}')
    a('s_barrier')
    a('s_lshl_b32 s92, s7, 7')
    a(f's_add_u32 s92, s92, {WS_FL}')
    flag_wait('s92', 9, 0)

    def e_loads():
        a('s_mov_b32 s92, s90')
        for r in range(8):
            a(f'buffer_load_dwordx4 {vr(H + 4 * r, 4)}, v{EG}, {S(R_WS)}, s92 offen sc1')
            if r < 7:
                a('s_add_u32 s92, s92, 4096')
    f3(66)
    a(f's_mov_b32 s{S_CNT}, {SPIN}')
    a.label('L_ere')
    e_loads()
    for r in range(8):
        a(f's_waitcnt vmcnt({7 - r})')
        if r == 7:
            stamp(9)
            f3(68)
        for u in range(4):
            for e in range(2):
                c = f'v{132 + 2 * u + e}' if r == 0 else f'v{HA + 2 * u + e}'
                a(f'v_dot2_f32_bf16 v{HA + 2 * u + e}, v{H + 4 * r + u}, s{S_LO1 + e}, {c}')
    f3(70)
    for i in range(4):
        a(f'v_cvt_pk_bf16_f32 v{X4 + i}, v{HA + 2 * i}, v{HA + 2 * i + 1}')
    for t in range(4):
        if t < 3:
            for i in range(4):
                a(f'v_mov_b32_dpp v{X4 + 4 * (t + 1) + i}, v{X4 + i} row_shl:{4 * (t + 1)} row_mask:0xf bank_mask:0xf bound_ctrl:0')
        for k in range(4):
            mfma16(EA + 4 * k, OP + 16 * t + 4 * k, X4 + 4 * t, t == 0)
        if t == 0:
            a(f'ds_write_b128 v{EHW}, {vr(X4, 4)}')
            for i in range(4):
                a(f'v_dot2_f32_bf16 v9, v{X4 + i}, s{S_ONES}, {"0" if i == 0 else "v9"}')
                a(f'v_dot2_f32_bf16 v11, v{X4 + i}, v{X4 + i}, {"0" if i == 0 else "v11"}')
        if t == 1:
            a('v_cmp_u_f32 vcc, v9, v9')
            for c in ('row_ror:4', 'row_ror:8'):
                dpp('v_add_f32', 9, 9, 9, c)
                dpp('v_add_f32', 11, 11, 11, c)
            a('s_cbranch_vccnz L_enan ;noflush')
            a.label('L_eok')
        if t == 2:
            a('v_permlane16_swap_b32 v9, v11')
            a('v_add_f32 v9, v9, v11')
            swap_step('v_add_f32', 9, 11, 32)
    ex(0x000f000f)
    f3(72)
    a(f'ds_write_b32 v{ES}, v9 offset:1024')
    e_lds_write()
    a('s_waitcnt lgkmcnt(0)')
    a('s_barrier')
    f3(74)
    a('s_cmp_ge_u32 s3, 6')
    a('s_cbranch_scc1 L_eact')
    for w in range(4):
        a(f'ds_read_b64 v[{H + 8 + 2 * w}:{H + 9 + 2 * w}], v{ESR} offset:{16384 * w + 1024}')
    e_lds_read()
    a('s_waitcnt lgkmcnt(8)')
    for w in range(1, 4):
        a(f'v_add_f32 v{H + 8}, v{H + 8}, v{H + 8 + 2 * w}')
        a(f'v_add_f32 v{H + 9}, v{H + 9}, v{H + 9 + 2 * w}')
    MU, VA = H + 8, H + 9
    a(f'v_mul_f32 v{MU}, 0x3b000000, v{MU}')
    a(f'v_mul_f32 v{VA}, 0x3b000000, v{VA}')
    a(f'v_fma_f32 v{VA}, -v{MU}, v{MU}, v{VA}')
    a(f'v_max_f32 v{VA}, 0, v{VA}')
    a(f'v_add_f32 v{VA}, 0x3727c5ac, v{VA}')
    a(f'v_rsq_f32 v{VA}, v{VA}')
    a('s_waitcnt lgkmcnt(0)')
    for w in range(1, 4):
        a(f'v_add_f32 v{H}, v{H}, v{H + 2 * w}')
        a(f'v_add_f32 v{H + 1}, v{H + 1}, v{H + 2 * w + 1}')
    a(f'v_fma_f32 v16, -v{MU}, v{ECS}, v16')
    a(f'v_fma_f32 v17, -v{MU}, v{ECS + 1}, v17')
    a(f'v_mul_f32 v16, v16, v{VA}')
    a(f'v_mul_f32 v17, v17, v{VA}')
    a('v_mul_f32 v18, v16, v16')
    a('v_fma_f32 v19, v18, s91, v228')
    a('v_mul_f32 v19, v19, v16')
    a('v_exp_f32 v19, v19')
    a('v_mul_f32 v16, v16, v17')
    a('v_add_f32 v19, 1.0, v19')
    a('v_rcp_f32 v19, v19')
    a('v_mul_f32 v16, v16, v19')
    a('v_mov_b32_dpp v17, v16 quad_perm:[1,1,3,3] row_mask:0xf bank_mask:0xf')
    a('v_cvt_pk_bf16_f32 v16, v16, v17')
    ex(0x5555555555555555)
    a(f'ds_write_b32 v{EST}, v16')
    ex(-1)
    a('s_waitcnt lgkmcnt(0)')
    a.label('L_eact')
    a('s_barrier')
    f3(76)
    a(f'ds_read_b128 v[16:19], v{EAR}')
    a(f'ds_read_b128 v[20:23], v{GH}')
    a('s_waitcnt lgkmcnt(1)')
    for k in range(8):
        mfma16(FA + 4 * k, OPW + 4 * k, 16, True)
    ex(M4)
    for p in range(4):
        for i in range(4):
            a(f'v_cvt_pk_bf16_f32 v{96 + 4 * p + i}, v{FA + 8 * p + 2 * i}, v{FA + 8 * p + 2 * i + 1}')
        a(f'buffer_store_dwordx4 {vr(96 + 4 * p, 4)}, v{EPS}, {S(R_WS)}, s98 offen sc1')
        if p < 3:
            a('s_add_u32 s98, s98, 12288')
    ex(-1)
    stamp(10)
    f3(78)
    a('s_cmp_lg_u32 s3, 4')
    a('s_cbranch_scc1 L_end')
    a('s_cmp_ge_u32 s63, 32')
    a('s_cbranch_scc1 L_efend')
    G, GA = 24, 48
    OSC = ' sc1' if o.osc else ''
    for i in range(8):
        a(f'v_mov_b32 v{56 + i}, 0')
    a('s_waitcnt lgkmcnt(0)')
    ex(0xff)
    for u in range(4):
        for e in range(2):
            a(f'v_dot2_f32_bf16 v{56 + 2 * u + e}, v{20 + u}, s{S_LO1 + e}, 0')
    ex(-1)
    a(f's_mov_b32 s{S_CNT}, {SPIN}')
    a('s_waitcnt vmcnt(0)')
    if o.fdelay:
        a(f's_sleep {o.fdelay}')
    a.label('L_gre')
    for i in range(6):
        a(f'buffer_load_dwordx4 {vr(G + 4 * i, 4)}, v{2 if i < 5 else GL}, {S(R_WS)}, s{99 if i < 4 else 97} offen offset:{1024 * (i % 4)} sc1')
    for i in range(6):
        a(f's_waitcnt vmcnt({5 - i})')
        for u in range(4):
            for e in range(2):
                c = 56 + 2 * u + e if i == 0 else GA + 2 * u + e
                a(f'v_dot2_f32_bf16 v{GA + 2 * u + e}, v{G + 4 * i + u}, s{S_LO1 + e}, v{c}')
    stamp(7)
    for k in range(4):
        a(f'v_permlane16_swap_b32 v{GA + 2 * k}, v{GA + 2 * k + 1}')
    for k in range(4):
        a(f'v_add_f32 v{GA + 2 * k}, v{GA + 2 * k}, v{GA + 2 * k + 1}')
    for k in range(2):
        a(f'v_permlane32_swap_b32 v{GA + 4 * k}, v{GA + 4 * k + 2}')
    for k in range(2):
        a(f'v_add_f32 v{GA + 4 * k}, v{GA + 4 * k}, v{GA + 4 * k + 2}')
    a(f'v_cmp_u_f32 vcc, v{GA}, v{GA + 4}')
    for k in range(2):
        dpp('v_add_f32', GA + 4 * k, GA + 4 * k, GA + 4 * k, 'row_ror:8')
    a(f'v_cvt_pk_bf16_f32 v{GA}, v{GA}, v{GA + 4}')
    a('s_cbranch_vccnz L_gnan ;noflush')
    a.label('L_gok')
    ex(0x00ff00ff00ff00ff)
    a(f'buffer_store_short v{GA}, v{GO_}, {S(R_OUT)}, s96 offen{OSC}')
    a(f'buffer_store_short_d16_hi v{GA}, v{GO_}, {S(R_OUT)}, s96 offen offset:8{OSC}')
    a('s_cmp_lg_u32 s63, 0')
    a('s_cbranch_scc1 L_efend')
    ex(1)
    a(f'v_mov_b32 v12, s{S_TAG}')
    a(f's_mov_b32 s90, {WS_EPOCH}')
    a(f'buffer_store_dword v12, off, {S(R_WS)}, s90{OSC}')
    a.label('L_efend')
    if o.diag:
        a.label('L_diag')
        a('s_memrealtime s[90:91]')
        a('s_waitcnt lgkmcnt(0)')
        a('s_sub_u32 s90, s90, s100')
        a(f's_cmp_lt_u32 s90, {o.diag}')
        a('s_cbranch_scc1 L_diag')
    if o.stamps:
        stamp(8)
        a('s_cmp_lg_u32 s3, 4')
        a('s_cbranch_scc1 L_end')
        dump_stamps(11, 1)
    a('s_endpgm')

    nan_retry('L_enan', range(H, H + 32), 'L_ere', 'L_eok')
    nan_retry('L_gnan', range(G, G + 24), 'L_gre', 'L_gok')
    a.label('L_att')
    srd([R_CKV])
    a('s_bfe_u32 s4, s2, 0x20001')
    a('s_bfe_u32 s5, s2, 0x40003')
    a('s_lshl_b32 s5, s5, 1')
    a('s_and_b32 s6, s2, 1')
    a('s_add_u32 s5, s5, s6')
    a('s_lshl_b32 s90, s4, 23')
    TS = (2 << 20) if o.il else 65536
    MX = (1 << o.mb1, 1 << o.mb2)
    M3 = o.m3
    a(f's_lshl_b32 s91, s5, {16 if o.il else 18}')
    a('s_add_u32 s90, s90, s91')
    a('s_and_b32 s7, s3, 3')
    a('s_lshl_b32 s91, s7, 14')
    a('s_add_u32 s90, s90, s91')
    if o.mw:
        a('s_and_b32 s91, s7, 1')
        a(f's_mul_i32 s91, s91, {o.mw}')
        a('s_xor_b32 s90, s90, s91')
    a('s_lshl_b32 s91, s7, 15')
    a('s_lshl_b32 s92, s7, 2')
    a(f's_add_u32 s92, s92, {FB}')
    a('v_mov_b32 v7, s92')
    a(f'v_lshlrev_b32 v10, 2, v4')
    a(f'v_add_u32 v10, {FB}, v10')
    a('s_cmp_lt_u32 s3, 4')
    a('s_cbranch_scc1 L_comp')
    a('s_mov_b32 s3, s7')
    VX, TR, O_ = 12, 128, 64
    for j in range(8):
        a(f'v_xor_b32 v{VX + j}, {32 * j}, v2')
    a('s_mov_b32 m0, s91')
    a('s_mov_b32 s93, 0')
    a('s_waitcnt lgkmcnt(0)')
    srd_ptr([R_CKV])
    BUF = (0, 1, 1, 0)
    TAL, vPR, vST, vRC, vRM, vRL, vAR = 20, 28, 29, 30, 31, 32, 33

    def pv_setup():
        a('v_bfe_u32 v40, v1, 2, 2')
        a('v_lshrrev_b32 v42, 5, v1')
        a('v_lshlrev_b32 v41, 2, v40')
        a('v_lshl_add_u32 v41, v42, 1, v41')
        a('v_and_b32 v43, 1, v3')
        a('v_lshlrev_b32 v44, 1, v43')
        a('v_bfe_u32 v45, v1, 1, 1')
        a('v_add_u32 v44, v44, v45')
        a('v_xor_b32 v44, v44, v41')
        a('v_lshlrev_b32 v41, 10, v41')
        a('v_lshl_add_u32 v41, v44, 4, v41')
        a('v_and_b32 v45, 1, v1')
        a('v_lshl_add_u32 v41, v45, 3, v41')
        a('s_lshl_b32 s95, s3, 8')
        a('v_add_u32 v41, s95, v41')
        for i in range(8):
            a(f'v_xor_b32 v{TAL + i}, {64 * (i % 4) + 65536 * (i // 4)}, v41')
        a(f'v_add_u32 v{vPR}, {L_P}, v2')
        a(f'v_lshlrev_b32 v{vAR}, 4, v42')
        a(f'v_add_u32 v{vAR}, {L_ALPHA}, v{vAR}')
        a('v_lshl_add_u32 v42, v42, 2, v43')
        a(f'v_lshlrev_b32 v{vST}, 17, v42')
        a(f'v_lshl_add_u32 v{vST}, v11, 3, v{vST}')
        a('v_lshl_add_u32 v42, v45, 4, v42')
        a('v_bfe_u32 v44, v1, 2, 1')
        a('v_lshl_add_u32 v42, v44, 3, v42')
        a('v_bfe_u32 v44, v1, 3, 1')
        a('v_lshl_add_u32 v42, v44, 1, v42')
        a(f'v_lshlrev_b32 v{vRM}, 2, v42')
        a(f'v_add_u32 v{vRM}, {L_MFIN}, v{vRM}')
        a(f'v_lshlrev_b32 v{vRC}, 4, v42')
        a(f'v_add_u32 v{vRL}, {L_MAX}, v{vRC}')
        a('s_lshl_b32 s96, s3, 2')
        a('s_add_u32 s96, s96, s4')
        a('s_lshl_b32 s96, s96, 13')
        a('s_lshl_b32 s95, s5, 8')
        a('s_add_u32 s96, s96, s95')
        a(f's_add_u32 s96, s96, {WS_OP}')
        a('s_lshl_b32 s97, s4, 16')
        a('s_lshl_b32 s95, s5, 11')
        a('s_add_u32 s97, s97, s95')
        a('s_lshl_b32 s95, s3, 9')
        a('s_add_u32 s97, s97, s95')
        a(f's_add_u32 s97, s97, {WS_REC}')
        a('v_add_u32 v9, s91, v2')
    rows = [(T, j) for T in range(3) for j in range(16) if not (T == 1 and j == 15)] + [(3, j) for j in range(o.r3)]
    landed = 0
    pub = {0: 16, 1: 31}

    def publish():
        for tt in list(pub):
            if landed >= pub[tt]:
                a(f'v_mov_b32 v5, {tt + 1}')
                a(f'ds_write_b32 v7, v5 offset:{F_LAND}')
                del pub[tt]

    def dma_row(j):
        a(f'buffer_load_dwordx4 v{VX + j // 2}, {S(R_CKV)}, s90 offen offset:{(j % 4) * 1024} nt lds')
    for n, (T, j) in enumerate(rows):
        w = o.w0 if n < o.n0 else o.window
        if o.hold and n == o.hold:
            lds_wait(10, F_HUS, 1, 6, 2)
        if n >= o.n0 and not (o.hold and n >= o.hold):
            lb = a.uid('fast')
            a('s_cmp_lg_u32 s93, 0')
            a(f's_cbranch_scc1 {lb}')
            if n % 2 == 0:
                a(f'ds_read_b32 v6, v10 offset:{F_HUS if o.sw == 1 else F_QST}')
            a(f's_waitcnt vmcnt({o.w1 - 1})')
            if n % 2 == 0:
                a('s_waitcnt lgkmcnt(0)')
                a('v_cmp_eq_u32 vcc, 0, v6')
                a('s_cmp_eq_u64 vcc, 0')
                a('s_cselect_b32 s93, 1, 0')
            a.label(lb)
        if n - landed >= w:
            a(f's_waitcnt vmcnt({w - 1})')
            landed = n - (w - 1)
        if n in (16 + o.w1, 31 + o.lw) and landed < n - (o.w1 if n < 31 else o.lw):
            k = o.w1 if n < 31 else o.lw
            a(f's_waitcnt vmcnt({k})')
            landed = n - k
        publish()
        if n == 20:
            get_tag()
            a('v_mov_b32 v35, 0')
        if n == o.gon and o.wgo:
            lb = a.uid('nogo')
            a('s_cmp_lg_u32 s3, 0')
            a(f's_cbranch_scc1 {lb}')
            a('s_sub_u32 s92, s2, 128')
            a('s_lshl_b32 s92, s92, 7')
            a(f's_add_u32 s92, s92, {WS_GO}')
            a(f'v_mov_b32 v6, s{S_TAG}')
            a('v_lshlrev_b32 v8, 2, v1')
            ex(0xffffffff)
            a(f'buffer_store_dword v6, v8, {S(R_WS)}, s92 offen sc1')
            ex(-1)
            a.label(lb)
        if T < 2:
            dma_row(j)
        else:
            a(f'buffer_load_dwordx4 {vr(TR + 64 * (T - 2) + 4 * j, 4)}, v{VX + j // 2}, {S(R_CKV)}, s90 offen offset:{(j % 4) * 1024} nt')
        last = j == 15 or (T == 1 and j == 14)
        if j % 4 == 3 or last:
            a(f's_add_u32 s90, s90, {TS - 12288 if last else 4096}')
            if o.mix:
                a(f's_xor_b32 s90, s90, {MX[(j // 4) % 2] ^ (M3 if last else 0)}')
            if T < 2:
                a('s_add_u32 m0, m0, 4096')
        if n == o.w0 - 1:
            a(f's_load_dword s{S_TAG}, s[{R_WS}:{R_WS + 1}], {WS_EPOCH}')
            a('s_barrier')
            pv_setup()
        if n == 30:
            stamp(1)
    assert not pub
    stamp(2)
    if o.pvprio:
        a(f's_setprio {o.pvprio}')
    PF = 36
    BFS = (44, 48, 52, 56, 60, 12, 16)
    NB = len(BFS)
    DIST = 6
    FLG = 34

    PK, XX = 128, 160

    def half_store(ap, hf):
        t_ = PK + 4 * ap + 2 * hf
        j = 2 * ap
        base = O_ + 32 * hf
        g = [f'v_cvt_pk_bf16_f32 v{t_}, v{base + j}, v{base + 16 + j}',
             f'v_cvt_pk_bf16_f32 v{t_ + 1}, v{base + j + 1}, v{base + 16 + j + 1}',
             f's_add_u32 s92, s96, {(8 * (ap // 2) + 2 * (ap % 2)) * 131072}',
             f'v_permlane16_swap_b32 v{t_}, v{t_ + 1}',
             f'buffer_store_dwordx2 {vr(t_, 2)}, v{vST}, {S(R_WS)}, s92 offen offset:{128 * hf} sc1']
        if hf == 0:
            g.append(f'v_xor_b32 v{XX + ap}, v{t_}, v{t_ + 1}')
        else:
            g.append(f'v_bitop3_b32 v{XX + ap}, v{XX + ap}, v{t_}, v{t_ + 1} {XOR3}')
        return g

    def skew(lists):
        out = []
        n = len(lists)
        for step in range(n + 1):
            if step < n:
                out += lists[step][:2]
            if step > 0:
                out += lists[step - 1][2:]
        return out

    def pv(t):
        seq = [(ks, blk) for ks in range(4) for blk in range(4)]
        if t == 3:
            seq = [(ks, 2 * pr + k) for pr in range(2) for ks in range(4) for k in range(2)]
        PFm = (lambda ks: 192 + 4 * ks) if t == 3 else (lambda ks: PF + 4 * (ks % 2))
        shadow = skew([half_store(ap, 0) for ap in range(8)]) if t == 3 else []

        def rd(n):
            ks, blk = seq[n]
            for tau in range(2):
                a(f'ds_read_b64_tr_b16 {vr(BFS[n % NB] + 2 * tau, 2)}, v{TAL + blk + 4 * (ks // 2)} offset:{32768 * (ks % 2) + 16384 * BUF[t] + 1024 * tau}')

        def p_rd(ks):
            a(f'ds_read_b128 {vr(PFm(ks), 4)}, v{vPR} offset:{4096 * t + 1024 * ks}')
        a(f's_mov_b32 s{S_CNT}, {SPIN * 40}')
        a('s_mov_b32 s95, 2')
        a.label(f'L_pp{t}')
        a(f'ds_read_b32 v{FLG}, v10 offset:{F_PS + 16 * t}')
        a('s_waitcnt lgkmcnt(0)')
        a(f'v_cmp_ne_u32 vcc, s95, v{FLG}')
        a(f's_cbranch_vccnz L_ps{t}')
        a.label(f'L_pg{t}')
        p_rd(0)
        ops = ['P0']

        def issue_rd(n):
            rd(n)
            ops.extend([f'R{n}', f'R{n}'])
        for n in range(DIST):
            issue_rd(n)
            if n == 1:
                p_rd(1)
                ops.append('P1')
        for n in range(16):
            ks, blk = seq[n]
            need = max(i for i, x in enumerate(ops) if x in (f'R{n}', f'P{ks}'))
            a(f's_waitcnt lgkmcnt({min(15, len(ops) - 1 - need)})')
            if t == 0 and blk == 3:
                a(f'ds_write_b32 v7, v35 offset:{F_DONE}')
                ops.append('W')
            c = '0' if (t == 0 and ks == 0) else vr(O_ + 16 * blk, 16)
            a(f'v_mfma_f32_32x32x16_bf16 {vr(O_ + 16 * blk, 16)}, {vr(PFm(ks), 4)}, {vr(BFS[n % NB], 4)}, {c}')
            if t == 0 and blk == 1:
                a('v_add_u32 v35, 1, v35')
            if t < 3 and n in (3, 7):
                p_rd(2 + n // 4)
                ops.append(f'P{2 + n // 4}')
            if t == 3 and n in (0, 1):
                p_rd(2 + n)
                ops.append(f'P{2 + n}')
            if n + DIST < 16:
                issue_rd(n + DIST)
            if n >= 10:
                for _ in range(6):
                    if shadow:
                        a(shadow.pop(0))
        for ins in shadow:
            a(ins)

    pv(0)
    stamp(3)
    pv(1)
    stamp(4)
    a('v_mov_b32 v5, 5')
    a(f'ds_write_b32 v7, v5 offset:{F_DONE}')
    lds_wait(10, F_DONE, 5, 5, 0)
    for j in range(16):
        if j % 2 == 0:
            a(f's_waitcnt vmcnt({14 - j + o.r3})')
        a(f'ds_write_b128 v9, {vr(TR + 4 * j, 4)} offset:{1024 * j + 16384}')
    a('v_mov_b32 v5, 3')
    a(f'ds_write_b32 v7, v5 offset:{F_LAND}')
    stamp(5)
    if o.r3:
        for j in range(o.r3):
            if j % 2 == 0:
                a(f's_waitcnt vmcnt({o.r3 - 2 - j})')
            a(f'ds_write_b128 v9, {vr(TR + 64 + 4 * j, 4)} offset:{1024 * j}')
        a('v_mov_b32 v5, 4')
        a(f'ds_write_b32 v7, v5 offset:{F_LAND}')
    pv(2)
    stamp(6)
    a('v_mov_b32 v35, 6')
    pv(3)
    stamp(7)

    def l_reads():
        a(f'ds_read_b32 v{FLG}, v10 offset:{F_LSEQ}')
        a(f'ds_read_b128 v[172:175], v{vRL}')
        a(f'ds_read_b32 v168, v{vRM}')
    l_reads()
    lists = [half_store(ap, 1) for ap in range(8)]
    for ap in range(8):
        if ap == o.rwait - 1:
            lists[ap].append(f'ds_write_b32 v7, v35 offset:{F_DONE}')
    for ins in skew(lists):
        a(ins)
    a('s_waitcnt lgkmcnt(0)')
    a(f'v_cmp_ne_u32 vcc, 1, v{FLG}')
    for k in range(4):
        dpp('v_xor_b32', XX + 2 * k, XX + 2 * k, XX + 2 * k, 'row_ror:8', 0x3)
    a('s_cbranch_vccnz L_lslow')
    a.label('L_lok')
    for k in range(4):
        dpp('v_xor_b32', XX + 2 * k, XX + 2 * k + 1, XX + 2 * k + 1, 'row_ror:8', 0xc)
    a('v_add_f32 v172, v172, v173')
    for m in range(2):
        dpp('v_xor_b32', XX + 4 * m, XX + 4 * m, XX + 4 * m, 'row_half_mirror', 0x5)
    a('v_add_f32 v174, v174, v175')
    for m in range(2):
        dpp('v_xor_b32', XX + 4 * m, XX + 4 * m + 2, XX + 4 * m + 2, 'row_half_mirror', 0xa)
    a('v_add_f32 v169, v172, v174')
    for m in range(2):
        dpp('v_xor_b32', XX + 4 * m, XX + 4 * m, XX + 4 * m, 'quad_perm:[1,0,3,2]')
    a(f'v_bitop3_b32 v171, v168, v169, s{S_TAG} {XOR3}')
    for m in range(2):
        dpp('v_xor_b32', 170 if m == 0 else XX + 4, XX + 4 * m, XX + 4 * m, 'quad_perm:[2,3,0,1]')
    ex(0x2222222222222222)
    a(f'v_mov_b32 v170, v{XX + 4}')
    ex(0x3333333333333333)
    a('v_xor_b32 v171, v171, v170')
    a(f'buffer_store_dwordx4 v[168:171], v{vRC}, {S(R_WS)}, s97 offen sc1')
    if o.stamps:
        stamp(8)
        a('s_waitcnt vmcnt(0)')
        stamp(9)
        a('s_cmp_lg_u32 s3, 0')
        a('s_cbranch_scc1 L_end')
        dump_stamps(11, 1)
    a('s_endpgm')
    a.label('L_lslow')
    l_reads()
    a('s_waitcnt lgkmcnt(0)')
    a(f'v_cmp_ne_u32 vcc, 1, v{FLG}')
    a('s_cbranch_vccz L_lok')
    a(f's_sub_u32 s{S_CNT}, s{S_CNT}, 1')
    a('s_cbranch_scc0 L_lslow')
    a('s_branch L_lok')
    for t in range(4):
        a.label(f'L_ps{t}')
        a(f'v_cmp_ne_u32 vcc, 3, v{FLG}')
        a(f's_cbranch_vccz L_pr{t}')
        a('s_sleep 1')
        a(f's_sub_u32 s{S_CNT}, s{S_CNT}, 1')
        a(f's_cbranch_scc0 L_pp{t}')
        a(f's_branch L_pg{t}')
        a.label(f'L_pr{t}')
        if t > 0:
            for jq in range(4):
                a(f'ds_read_b128 {vr(44 + 4 * jq, 4)}, v{vAR} offset:{128 * t + 32 * jq}')
            a('s_waitcnt lgkmcnt(0)')
            a('s_nop 7')
            for blk in range(4):
                for j in range(16):
                    a(f'v_mul_f32 v{O_ + 16 * blk + j}, v{O_ + 16 * blk + j}, v{44 + j}')
        a(f's_branch L_pg{t}')

    a.label('L_comp')
    QA = 128
    vMW, vFW, vPW, vFR, vAW, vMR = 6, 7, 8, 10, 11, 9
    NM, LL = 12, 14
    SS, PKS, EX4, AA, AQ, WK = 32, 40, 44, 48, 56, 64
    NA = 8
    a('v_lshlrev_b32 v16, 2, v1')
    a(f'v_add_u32 v16, {FB}, v16')
    a('v_mov_b32 v17, 0')
    a('ds_write_b32 v16, v17')
    a('s_waitcnt lgkmcnt(0)')
    a('s_barrier')
    a(f's_load_dword s{S_TAG}, s[{R_WS}:{R_WS + 1}], {WS_EPOCH}')
    srd_ptr([R_CKV])
    consts()
    a(f's_add_u32 s63, s90, {TS + 15 * 1024}')
    if o.mix:
        a(f's_xor_b32 s63, s63, {MX[1] ^ M3}')
    a(f's_add_u32 s99, s90, {3 * TS}')
    if M3:
        a(f's_xor_b32 s99, s99, {M3}')
    if o.r3:
        a(f's_add_u32 s99, s99, {o.r3 * 1024}')
        gm_ = (0, MX[0], MX[0] ^ MX[1], MX[1])[(o.r3 // 4) % 4]
        if gm_:
            a(f's_xor_b32 s99, s99, {gm_}')
    a(f's_add_u32 m0, s91, {o.r3 * 1024}')
    for j in range(8):
        a(f'v_xor_b32 v{104 + j}, {32 * j}, v2')
    a('v_xor_b32 v21, 0xe0, v2')
    a(f'buffer_load_dwordx4 v[24:27], v21, {S(R_CKV)}, s63 offen nt')
    a('v_mov_b32 v20, 128')
    a('global_load_dword v100, v20, s[86:87] sc1')
    if o.tlb & 1:
        a('v_lshrrev_b32 v20, 1, v4')
        a('v_xor_b32 v22, v20, v4')
        a('v_and_b32 v22, 1, v22')
        a(f'v_lshlrev_b32 v22, {o.mb1}, v22')
        a(f'v_lshl_add_u32 v22, v20, {o.mb2}, v22')
        a('v_xor_b32 v22, s90, v22')
        a('v_lshl_add_u32 v22, v4, 12, v22')
        a('v_bfe_u32 v20, v1, 2, 2')
        a('v_lshl_add_u32 v22, v20, 16, v22')
        ex(0xffff)
        a(f'buffer_load_dword v101, v22, {S(R_CKV)}, 0 offen offset:3968 nt')
        ex(-1)
    if o.tlb & 2:
        a('v_lshlrev_b32 v22, 17, v1')
        a('s_lshl_b32 s94, s3, 15')
        a(f's_add_u32 s94, s94, {WS_OP}')
        ex(0x1ffffffff)
        a(f'buffer_load_dword v102, v22, {S(R_WS)}, s94 offen nt')
        ex(-1)
    a(f's_add_u32 s6, s91, {16384 + 15 * 1024}')
    a('v_add_u32 v28, s6, v2')
    a('s_lshl_b32 s90, s4, 15')
    a('s_lshl_b32 s95, s3, 13')
    a('s_add_u32 s90, s90, s95')
    if WS_QA:
        a(f's_add_u32 s90, s90, {WS_QA}')
    a('s_add_u32 s92, s90, 4096')
    a(f's_lshl_b32 s93, s3, {8 if o.hc else 12}')
    a(f's_lshl_b32 s94, s4, {10 if o.hc else 3}')
    a('s_add_u32 s93, s93, s94')
    a(f's_add_u32 s93, s93, {WS_QAH}')
    a('v_lshrrev_b32 v16, 1, v1')
    a(f'v_lshlrev_b32 v16, {3 if o.hc else 7}, v16')
    a('s_and_b32 s94, s3, 1')
    a('s_lshl_b32 s94, s94, 7')
    a('v_xor_b32 v17, s94, v2')
    a(f's_add_u32 s95, s95, {SB}')
    a('v_add_u32 v17, s95, v17')
    for i in range(4):
        a(f'v_xor_b32 v{96 + i}, {32 * i}, v17')
    a('v_lshrrev_b32 v22, 5, v1')
    a('v_and_b32 v29, 1, v3')
    a('v_lshlrev_b32 v23, 4, v29')
    a('v_lshl_add_u32 v23, v22, 9, v23')
    a('v_bfe_u32 v18, v1, 3, 1')
    a('v_lshl_add_u32 v18, v18, 2, v4')
    a('v_lshl_add_u32 v18, v18, 5, v23')
    a('v_lshl_add_u32 v18, v11, 10, v18')
    a(f'v_add_u32 v18, {SB}, v18')
    a('v_bfe_u32 v20, v1, 2, 2')
    a('v_lshl_add_u32 v21, v4, 2, v20')
    a('v_lshl_add_u32 v19, v21, 10, v23')
    a('v_and_b32 v21, 14, v21')
    a('v_lshl_add_u32 v19, v21, 4, v19')
    a('v_add_u32 v19, s91, v19')
    for i in range(8):
        a(f'v_xor_b32 v{AA + i}, {32 * i}, v19')
        a(f'v_xor_b32 v{AQ + i}, {32 * i}, v18')
    a('v_and_b32 v20, 31, v1')
    a('s_lshl_b32 s95, s3, 2')
    a(f's_add_u32 s95, s95, {L_MAX}')
    a(f'v_lshl_add_u32 v{vMW}, v20, 4, s95')
    a(f'v_lshlrev_b32 v{vPW}, 9, v22')
    a(f'v_lshl_add_u32 v{vPW}, v11, 4, v{vPW}')
    a(f'v_lshl_add_u32 v{vPW}, v29, 3, v{vPW}')
    a('s_lshl_b32 s95, s3, 10')
    a(f's_add_u32 s95, s95, {L_P}')
    a(f'v_add_u32 v{vPW}, s95, v{vPW}')
    a(f'v_lshlrev_b32 v{vMR}, 4, v11')
    a(f'v_add_u32 v{vMR}, {L_MAX}, v{vMR}')
    a(f'v_lshlrev_b32 v{vAW}, 2, v11')
    a(f'v_add_u32 v{vAW}, {L_ALPHA}, v{vAW}')
    a(f'v_mov_b32 v{LL}, 0')
    a(f'v_mov_b32 v{LL + 1}, 0')
    a('v_mov_b32 v0, 1')
    a('v_mov_b32 v5, 2')
    a(f's_mov_b32 s98, {f32bits(float(o.thr))}')
    a('s_mov_b32 s96, 1')
    a(f's_and_b32 s94, s2, {o.nh - 1}')
    a('s_lshl_b32 s94, s94, 7')
    a(f's_add_u32 s94, s94, {WS_HU}')
    a(f's_add_u32 s0, s{R_WS}, s94')
    a(f's_addc_u32 s1, s{R_WS + 1}, 0')
    get_tag()
    if o.sprio:
        a(f's_setprio {o.sprio}')
    HR_ = 30

    def q_row(i):
        a(f'buffer_load_dwordx4 {vr(QA + 4 * i, 4)}, v2, {S(R_WS)}, s{90 if i < 4 else 92} offen offset:{1024 * (i % 4)} sc1')
    if o.hone:
        a('s_cmp_eq_u32 s3, 0')
        a('s_cbranch_scc1 L_hu0')
        a(f'v_mov_b32 v20, {FB}')
        lds_wait(20, F_HUS, 1, 19, 0)
        a('s_branch L_hugo2')
        a.label('L_hu0')
    a(f's_mov_b32 s{S_CNT}, {SPIN}')
    a.label('L_hu')
    a('s_load_dword s94, s[0:1], 0 glc')
    a('s_waitcnt lgkmcnt(0)')
    a(f's_cmp_eq_u32 s94, s{S_TAG}')
    a('s_cbranch_scc1 L_hugo')
    if o.hsl:
        a(f's_sleep {o.hsl}')
    a(f's_sub_u32 s{S_CNT}, s{S_CNT}, 1')
    a('s_cbranch_scc0 L_hu')
    a.label('L_hugo')
    if o.hone:
        a(f'ds_write_b32 v{vFW}, v0 offset:{F_HUS}')
        a.label('L_hugo2')
    a(f's_mov_b32 s{S_CNT}, {SPIN}')
    a.label('L_qload')
    a(f'buffer_load_dwordx2 {vr(HR_, 2)}, v16, {S(R_WS)}, s93 offen sc1')
    for i in range(8):
        q_row(i)
    a(f'ds_write_b32 v{vFW}, v0 offset:{F_HUS}')
    stamp(8)
    a('s_waitcnt vmcnt(8)')
    a(f'v_bitop3_b32 v21, v{HR_}, v{HR_ + 1}, s{S_TAG} {XOR3}')
    for i in range(8):
        a(f's_waitcnt vmcnt({7 - i})')
        a(f'ds_write_b128 v{96 + i % 4}, {vr(QA + 4 * i, 4)} offset:{1024 * i}')
        xor_chain(19, ([19] if i else []) + list(range(QA + 4 * i, QA + 4 * i + 4)))
    for c in ('quad_perm:[1,0,3,2]', 'quad_perm:[2,3,0,1]', 'row_ror:4', 'row_ror:8'):
        dpp('v_xor_b32', 19, 19, 19, c)
        if c == 'quad_perm:[1,0,3,2]':
            a(f'v_xor_b32 v19, v19, v{HR_}')
    swap_step('v_xor_b32', 19, 20, 16)
    swap_step('v_xor_b32', 19, 20, 32)
    a('v_or_b32 v19, v19, v21')
    a('v_cmp_ne_u32 vcc, 0, v19')
    a('s_cbranch_vccz L_qdone')
    a(f's_sub_u32 s{S_CNT}, s{S_CNT}, 1')
    a('s_cbranch_scc0 L_qload')
    a.label('L_qdone')
    a(f'ds_write_b32 v{vFW}, v0 offset:{F_QST}')
    lds_wait(vFW, F_LAND, 1, 19)
    lds_wait(vFR, F_QST, 1, 19, 0)
    stamp(3)

    def a_read(m, buf):
        a(f'ds_read_b128 {vr(WK + 4 * (m % NA), 4)}, v{AA + m // 2} offset:{256 * (m % 2) + 16384 * buf}')

    def q_read(m):
        for hh in range(2):
            a(f'ds_read_b128 {vr(QA + 64 * hh + 4 * m, 4)}, v{AQ + m // 2} offset:{16384 * hh + 256 * (m % 2)}')

    def s_mfma(st, zero):
        for hh in range(2):
            mfma16(SS + 4 * hh, WK + 4 * (st % NA), QA + 64 * hh + 4 * st, zero and st == 0)
    for st in range(4):
        q_read(st)
        a_read(st, 0)
    for st in range(16):
        a(f's_waitcnt lgkmcnt({3 * min(3, 15 - st)})')
        s_mfma(st, True)
        if st + 4 < 16:
            q_read(st + 4)
            a_read(st + 4, 0)

    def max_xchg(lbl, floor):
        a('v_mov_b32 v18, s96')
        for hh in range(2):
            a(f'v_max3_f32 v{16 + hh}, v{SS + 4 * hh}, v{SS + 4 * hh + 1}, v{SS + 4 * hh + 2}')
            if floor:
                a(f'v_max3_f32 v{16 + hh}, v{16 + hh}, v{SS + 4 * hh + 3}, 0')
            else:
                a(f'v_max_f32 v{16 + hh}, v{16 + hh}, v{SS + 4 * hh + 3}')
        a('v_permlane16_swap_b32 v16, v17')
        a('v_max_f32 v16, v16, v17')
        swap_step('v_max_f32', 16, 17, 32)
        a(f'ds_write_b32 v{vMW}, v16')
        a(f'ds_write_b32 v{vFW}, v18 offset:{F_MSEQ}')
        a(f's_mov_b32 s{S_CNT}, {SPIN * 40}')
        a.label(lbl)
        a(f'ds_read_b32 v18, v{vFR} offset:{F_MSEQ}')
        a(f'ds_read_b128 {vr(WK, 4)}, v{vMR}')
        a(f'ds_read_b128 {vr(WK + 4, 4)}, v{vMR} offset:256')
        a('s_waitcnt lgkmcnt(0)')
        a('v_cmp_gt_u32 vcc, s96, v18')
        a(f's_cbranch_vccz {lbl}go')
        a(f's_sub_u32 s{S_CNT}, s{S_CNT}, 1')
        a(f's_cbranch_scc0 {lbl}')
        a.label(lbl + 'go')
        for hh in range(2):
            a(f'v_max3_f32 v{16 + hh}, v{WK + 4 * hh}, v{WK + 4 * hh + 1}, v{WK + 4 * hh + 2}')
            a(f'v_max_f32 v{16 + hh}, v{16 + hh}, v{WK + 4 * hh + 3}')
            for j in range(4):
                a(f'v_sub_f32 v{SS + 4 * hh + j}, v{SS + 4 * hh + j}, v{16 + hh}')

    def soft(t):
        g = []
        for hh in range(2):
            for j in range(4):
                g.append(f'v_exp_f32 v{EX4 + j}, v{SS + 4 * hh + j}')
            g.append(f'v_cvt_pk_bf16_f32 v{PKS + 2 * hh}, v{EX4}, v{EX4 + 1}')
            g.append(f'v_cvt_pk_bf16_f32 v{PKS + 2 * hh + 1}, v{EX4 + 2}, v{EX4 + 3}')
            g.append(f'ds_write_b64 v{vPW}, {vr(PKS + 2 * hh, 2)} offset:{4096 * t + 256 * hh}')
        return g

    def l_commit():
        for k in range(2):
            for hh in range(2):
                a(f'v_dot2_f32_bf16 v{LL + hh}, v{PKS + 2 * hh + k}, s{S_ONES}, v{LL + hh}')
    max_xchg('L_m0', False)
    for ins in soft(0):
        a(ins)
    a(f'ds_write_b32 v{vFW}, v5 offset:{F_PS}')
    a('ds_write_b128 v28, v[24:27]')
    a(f'ds_write2_b32 v{vAW}, v16, v17 offset0:128 offset1:144')
    for hh in range(2):
        a(f'v_sub_f32 v{NM + hh}, 0, v{16 + hh}')
    l_commit()
    a('s_cmp_lg_u32 s3, 1')
    a('s_cbranch_scc1 L_nom0')
    a('v_permlane16_swap_b32 v16, v17')
    a('s_lshl_b32 s94, s4, 12')
    a('s_lshl_b32 s95, s5, 7')
    a('s_add_u32 s94, s94, s95')
    a(f's_add_u32 s94, s94, {WS_M0}')
    a('v_lshlrev_b32 v18, 2, v1')
    a(f'v_xor_b32 v16, s{S_TAG}, v16')
    ex(0xffffffff)
    a(f'buffer_store_dword v16, v18, {S(R_WS)}, s94 offen sc1')
    ex(-1)
    a.label('L_nom0')
    stamp(4)
    PD = 6
    for t in range(1, 4):
        lbl = f'L_l{t}'
        a(f's_mov_b32 s{S_CNT}, {SPIN * 40}')
        for hh in range(2):
            for j in range(4):
                a(f'v_mov_b32 v{SS + 4 * hh + j}, v{NM + hh}')
        def t3_wait():
            a('s_add_u32 s94, s3, 1')
            lds_wait(vFR, F_DONE, 's94', 18, 0)

        def t3_row(j):
            a(f'buffer_load_dwordx4 v{104 + j // 2}, {S(R_CKV)}, s99 offen offset:{(j % 4) * 1024} nt lds')
            if j % 4 == 3 and j < 15:
                a('s_add_u32 s99, s99, 4096')
                if o.mix:
                    a(f's_xor_b32 s99, s99, {MX[(j // 4) % 2]}')
                a('s_add_u32 m0, m0, 4096')
        if (t == 2 and o.t3 == 0) or (t == 1 and o.t3 == 1):
            def s_go():
                lb = a.uid('nogo')
                a('s_cmp_lg_u32 s3, 0')
                a(f's_cbranch_scc1 {lb}')
                a('s_sub_u32 s92, s2, 128')
                a('s_lshl_b32 s92, s92, 7')
                a(f's_add_u32 s92, s92, {WS_GO}')
                a(f'v_mov_b32 v18, s{S_TAG}')
                a('v_lshlrev_b32 v19, 2, v1')
                ex(0xffffffff)
                a(f'buffer_store_dword v18, v19, {S(R_WS)}, s92 offen sc1')
                ex(-1)
                a.label(lb)
            t3_wait()
            if o.gon == 98:
                s_go()
            for j in range(o.r3, 16):
                t3_row(j)
            if o.gon == 99:
                s_go()
            stamp(1)
            a(f's_mov_b32 s{S_CNT}, {SPIN * 40}')
        if t < 3 or o.r3:
            a.label(lbl)
            a(f'ds_read_b32 v18, v{vFW} offset:{F_LAND}')
            a('s_waitcnt lgkmcnt(0)')
            a(f'v_cmp_ge_u32 vcc, {t}, v18')
            a(f's_cbranch_vccz {lbl}go')
            a('s_sleep 1')
            a(f's_sub_u32 s{S_CNT}, s{S_CNT}, 1')
            a(f's_cbranch_scc0 {lbl}')
            a.label(lbl + 'go')
        if t == 3:
            a('s_waitcnt vmcnt(0)')
            stamp(2)
        for st in range(PD):
            a_read(st, BUF[t])
        if t == 3 and o.rpos == 0:
            a('s_lshl_b32 s94, s4, 2')
            a('s_add_u32 s94, s94, 16')
            arrive(0, 30, 31, 's94')
        for st in range(16):
            a(f's_waitcnt lgkmcnt({min(PD - 1, 15 - st)})')
            s_mfma(st, False)
            if st + PD < 16:
                a_read(st + PD, BUF[t])
            if t == 1 and o.t3 >= 2:
                if st == o.t3:
                    t3_wait()
                    t3q = list(range(16))
                if st >= o.t3:
                    for _ in range(-(-16 // (16 - o.t3))):
                        if t3q:
                            t3_row(t3q.pop(0))
                if st == 15:
                    stamp(1)
        for k, ins in enumerate(soft(t)):
            a(ins)
            if k == 3:
                a(f'v_max3_f32 v19, v{SS}, v{SS + 1}, v{SS + 2}')
                a(f'v_max3_f32 v19, v{SS + 3}, v{SS + 4}, v19')
            if k == 10:
                a(f'v_max3_f32 v19, v{SS + 5}, v{SS + 6}, v19')
                a(f'v_max_f32 v19, v{SS + 7}, v19')
                a('v_cmp_lt_f32 vcc, s98, v19')
        a('s_cmp_eq_u64 vcc, 0')
        a('s_cselect_b32 s91, 2, 1')
        a('v_mov_b32 v18, s91')
        a(f'ds_write_b32 v{vFW}, v18 offset:{F_PS + 16 * t}')
        stamp(4 + t)
        if t == 3 and o.rpos == 1:
            a('s_lshl_b32 s94, s4, 2')
            a('s_add_u32 s94, s94, 16')
            arrive(0, 30, 31, 's94')
        a(f's_mov_b32 s{S_CNT}, {SPIN * 40}')
        a.label(f'L_c{t}')
        a(f'ds_read_b32 v18, v{vFR} offset:{F_PS + 16 * t}')
        a('s_waitcnt lgkmcnt(0)')
        a('v_cmp_ne_u32 vcc, 2, v18')
        a(f's_cbranch_vccnz L_cs{t}')
        a.label(f'L_cg{t}')
        l_commit()
    a('s_lshl_b32 s94, s4, 2')
    a('s_add_u32 s94, s94, 16')
    a(f'v_permlane16_swap_b32 v{LL}, v{LL + 1}')
    a(f'v_add_f32 v{LL}, v{LL}, v{LL + 1}')
    swap_step('v_add_f32', LL, LL + 1, 32)
    a(f'ds_write_b32 v{vMW}, v{LL}')
    a(f'ds_write_b32 v{vFW}, v0 offset:{F_LSEQ}')
    if o.rdelay:
        a(f's_sleep {o.rdelay}')
    if o.rpos == 2:
        arrive(0, 30, 31, 's94')
    a('s_cmp_lg_u32 s3, 0')
    a('s_cbranch_scc1 L_norel2')
    a('s_lshl_b32 s94, s4, 14')
    a(f's_add_u32 s94, s94, {WS_OF}')
    a('s_add_u32 s95, s94, 8192')
    a('v_lshlrev_b32 v31, 7, v1')
    a(f'v_mov_b32 v29, s{S_TAG}')
    a('s_waitcnt vmcnt(0)')
    a('v_readfirstlane_b32 s1, v30')
    a('s_and_b32 s1, s1, 31')
    a('s_cmp_lg_u32 s1, 31')
    a('s_cbranch_scc1 L_norel2')
    if o.rwait:
        lds_wait(vFR, F_DONE, 6, 18, 0)
    if o.nl < 64:
        ex((1 << o.nl) - 1)
    a(f'buffer_store_dword v29, v31, {S(R_WS)}, s94 offen sc1')
    if o.nl > 64:
        a(f'buffer_store_dword v29, v31, {S(R_WS)}, s95 offen sc1')
    a.label('L_norel2')
    stamp(9)
    a.label('L_send')
    if o.stamps:
        a('s_memrealtime s[90:91]')
        a('s_cmp_lg_u32 s3, 0')
        a('s_cbranch_scc1 L_end')
        dump_stamps(14, 0)
    a('s_endpgm')
    for t in range(1, 4):
        a.label(f'L_cs{t}')
        a('v_cmp_eq_u32 vcc, 0, v18')
        a(f's_cbranch_vccz L_ex{t}')
        a(f's_sub_u32 s{S_CNT}, s{S_CNT}, 1')
        a(f's_cbranch_scc0 L_c{t}')
        a(f's_branch L_cg{t}')
        a.label(f'L_ex{t}')
        a('s_add_u32 s96, s96, 1')
        max_xchg(f'L_mx{t}', True)
        for hh in range(2):
            a(f'v_exp_f32 v{20 + hh}, -v{16 + hh}')
            a(f'v_sub_f32 v{NM + hh}, v{NM + hh}, v{16 + hh}')
            a(f'v_sub_f32 v{22 + hh}, 0, v{NM + hh}')
            a(f'v_mul_f32 v{LL + hh}, v{LL + hh}, v{20 + hh}')
        a(f'ds_write2_b32 v{vAW}, v20, v21 offset0:{32 * t} offset1:{32 * t + 16}')
        a(f'ds_write2_b32 v{vAW}, v22, v23 offset0:128 offset1:144')
        for ins in soft(t):
            a(ins)
        a('v_mov_b32 v18, 3')
        a(f'ds_write_b32 v{vFW}, v18 offset:{F_PS + 16 * t}')
        lds_wait(vFR, F_PS + 16 * t, 3, 18, 0)
        a(f's_branch L_cg{t}')
    a.label('L_end')
    a('s_endpgm')

    txt = HEADER
    txt += f'; @launch grid=(256,1,1) block=(512,1,1) lds={LDS_TOTAL}\n'
    txt += '.amdgcn_target "amdgcn-amd-amdhsa--gfx950"\n.text\n'
    txt += a.finalize()
    txt += f""".section .rodata,"a"
.p2align 6
.amdhsa_kernel {name}
  .amdhsa_next_free_vgpr 256
  .amdhsa_next_free_sgpr 102
  .amdhsa_accum_offset 256
  .amdhsa_group_segment_fixed_size 0
  .amdhsa_kernarg_size 104
  .amdhsa_user_sgpr_count 2
  .amdhsa_user_sgpr_kernarg_segment_ptr 1
  .amdhsa_system_sgpr_workgroup_id_x 1
.end_amdhsa_kernel
"""
    return txt


if __name__ == '__main__':
    o = Opt()
    for kv in sys.argv[2:]:
        k, v = kv.split('=')
        setattr(o, k, v.replace('+', ' ') if k == 'r64' else int(v))
    open(sys.argv[1], 'w').write(gen(o))
```

```python
import sys
sys.path.insert(0, 'dev')
from asmdsl import Asm
from layout17 import *

NAME = 'sequential_preLN__compressed_kv_cla__glu_gated_geglu__decode'
HEADER = open('cdna_kernels/' + NAME + '.s.ref').read().split('; Override launch')[0]
LDS_TOTAL = 163840
SB = 130048
L_P = 131072
FB = 162816
F_LAND, F_QST, F_MSEQ, F_DONE, F_LSEQ, F_HUS, F_PS = 0, 16, 32, 48, 64, 80, 96
L_MAX = FB + 512
L_ALPHA = L_P + 16384
L_MFIN = L_ALPHA + 512
A_WQ, A_WUK, A_WUV, A_WO, A_X, A_C, A_D = 0, 32768, 98304, 98304, 131072, 132096, 135168
A_WD, A_ACT, A_H = 65536, 138240, 139264

R_X, R_WS, R_CKV, R_WQ, R_WUK, R_WUV, R_WO, R_WG, R_WU, R_WD, R_OUT, R_ACT = [8 + 4 * i for i in range(12)]
SIZES = {R_X: 4096, R_WS: WS_END, R_CKV: 32 << 20, R_WQ: 4 << 20, R_WUK: 4 << 20, R_WUV: 4 << 20, R_WO: 4 << 20,
         R_WG: 512 * 2752, R_WU: 512 * 2752, R_WD: 1376 * 1024, R_OUT: 4096, R_ACT: 43 * 256}
PTR = {R_X: 64, R_CKV: 66, R_WQ: 68, R_WUK: 70, R_WUV: 72, R_WO: 74, R_WG: 78, R_WU: 80, R_WD: 82, R_OUT: 84}
S_TAG, S_ONES, S_LO1, S_HI1, S_CNT, S_MASK = 56, 57, 58, 59, 60, 62
S_XCC, S_LOC = 52, 53
SPIN = 200000
XOR3 = 'bitop3:0x96'


class Opt:
    stamps = 0
    w0 = 1
    n0 = 2
    window = 20
    w3 = 16
    wwin = 8
    sleep = 1
    sleep_long = 6
    stsleep = 3
    thr = 60
    dbgwg = 192
    hold = 0
    dsleep = 1
    ddelay = 0
    gon = 98
    fine = 0
    hupos = 1
    edelay = 0
    efwin = 4
    sw = 1
    efgo = 0
    qdelay = 0
    hprio = 1
    nsamp = 2
    rdelay = 0
    lw = 12
    diag = 0
    rpos = 1
    owin = 3
    ef0 = 2
    il = 0
    mix = 1
    loc = 1
    egate = 1
    lprio = 2
    rwait = 5
    qloc = 0
    hc = 1
    t3 = 0
    nl = 32
    pf = 0
    emask = 0xd1d
    emask2 = 0x1d
    m3 = 0
    dmask = 0xe2e2
    dfw = 0
    r3 = 4
    dsite = 0
    didx = 0
    mw = 1 << 18
    nh = 64
    hone = 1
    hsl = 0
    osl = 0
    oone = 0
    osc = 0
    wb = 0
    tlb = 0
    arrpos = 2
    earlym = 1
    mb1 = 20
    mb2 = 19
    efn = 2
    pvprio = 0
    sprio = 0
    r64 = 'nt'
    wgo = 1
    esleep = 0
    fdelay = 0
    now = 0
    w1 = 5
    n1 = 0


def vr(a, n):
    return f'v[{a}:{a + n - 1}]' if n > 1 else f'v{a}'


def S(base):
    return f's[{base}:{base + 3}]'


def gen(o):
    a = Asm()
    name = NAME + '_kernel'
    o.st3 = o.stamps == 3

    def ex(mask):
        if mask == -1:
            a('s_mov_b64 exec, -1')
        elif mask <= 64:
            a(f's_mov_b64 exec, {mask}')
        else:
            a(f's_mov_b32 exec_lo, 0x{mask & 0xffffffff:x}')
            a(f's_mov_b32 exec_hi, 0x{mask >> 32:x}')

    def dpp(op, d, s0, s1, ctrl, bank=0xf):
        a(f'{op}_dpp v{d}, v{s0}, v{s1} {ctrl} row_mask:0xf bank_mask:0x{bank:x}')

    def swap_step(op, v, t, which):
        a(f'v_mov_b32 v{t}, v{v}')
        a(f'v_permlane{which}_swap_b32 v{v}, v{t}')
        a(f'{op} v{v}, v{v}, v{t}')

    def fine2(r):
        if o.fine == 2:
            lb = a.uid('f2')
            a('s_cmp_lg_u32 s97, 0')
            a(f's_cbranch_scc1 {lb} ;noflush')
            a(f's_memtime s[{r}:{r + 1}]')
            a.label(lb)

    def f3(r):
        if o.fine == 3:
            a(f's_memtime s[{r}:{r + 1}]')

    def stamp(idx):
        if o.stamps:
            a(f's_memrealtime s[{64 + 2 * idx}:{65 + 2 * idx}]')

    site = [0]

    def dump_stamps(n, grp, dbg=None):
        site[0] += 1
        if o.dsite:
            if o.dsite == site[0]:
                r = 100 if o.didx == 0 else 64 + 2 * o.didx
                lb = a.uid('dg')
                a('s_waitcnt lgkmcnt(0)')
                a(f's_mov_b32 s62, s{r}')
                a.label(lb)
                a('s_memrealtime s[92:93]')
                a('s_waitcnt lgkmcnt(0)')
                a('s_sub_u32 s92, s92, s62')
                a('s_cmp_lt_u32 s92, 4000')
                a(f's_cbranch_scc1 {lb}')
            return
        a('s_waitcnt lgkmcnt(0)')
        a('s_mov_b64 exec, -1')
        a('v_mov_b32 v3, 0')
        a('v_writelane_b32 v3, s100, 0')
        for i in range(1, n):
            a(f'v_writelane_b32 v3, s{64 + 2 * i}, {i}')
        a('v_mbcnt_lo_u32_b32 v4, -1, 0')
        a('v_lshlrev_b32 v4, 2, v4')
        a('s_lshl_b32 s90, s2, 7')
        a(f's_add_u32 s90, s90, {WS_STAMP + 64 * grp}')
        ex(0xffff)
        a(f'buffer_store_dword v3, v4, {S(R_WS)}, s90 offen')
        if o.stamps == 2 and dbg:
            lb = a.uid('nodbg')
            a('v_subrev_u32 v3, s100, v3')
            if dbg == 'h':
                a(f's_cmp_lg_u32 s2, {o.dbgwg}')
                a(f's_cbranch_scc1 {lb}')
                ex(0x7fe)
                a('global_store_dword v4, v3, s[86:87] offset:-4')
            else:
                a('s_cmp_lg_u32 s2, 0')
                a(f's_cbranch_scc1 {lb}')
                ex(0x3e8)
                a('v_mbcnt_lo_u32_b32 v4, exec_lo, 0')
                a('v_lshlrev_b32 v4, 2, v4')
                a('global_store_dword v4, v3, s[86:87] offset:40')
            a.label(lb)

    def xor_chain(tmp, regs, last=None):
        ops = [f'v{r}' for r in regs] + ([last] if last else [])
        a(f'v_bitop3_b32 v{tmp}, {ops[0]}, {ops[1]}, {ops[2]} {XOR3}')
        ops = ops[3:]
        while len(ops) >= 2:
            a(f'v_bitop3_b32 v{tmp}, v{tmp}, {ops[0]}, {ops[1]} {XOR3}')
            ops = ops[2:]
        if ops:
            a(f'v_xor_b32 v{tmp}, {ops[0]}, v{tmp}')

    def chk_sentinel(regs, tmp):
        rs = list(regs)
        a(f'v_max3_u32 v{tmp}, v{rs[0]}, v{rs[1]}, v{rs[2]}')
        rs = rs[3:]
        while len(rs) >= 2:
            a(f'v_max3_u32 v{tmp}, v{tmp}, v{rs[0]}, v{rs[1]}')
            rs = rs[2:]
        if rs:
            a(f'v_max_u32 v{tmp}, v{tmp}, v{rs[0]}')
        a(f'v_cmp_eq_u32 vcc, -1, v{tmp}')

    def poll(loads, check, sleep=None, wait='s_waitcnt vmcnt(0)'):
        L, Dn = a.uid('poll'), a.uid('pdone')
        a(f's_mov_b32 s{S_CNT}, {SPIN}')
        a.label(L)
        loads()
        a(wait)
        check()
        a(f's_cbranch_vccz {Dn}')
        sl = o.sleep if sleep is None else sleep
        if sl:
            a(f's_sleep {sl}')
        a(f's_sub_u32 s{S_CNT}, s{S_CNT}, 1')
        a(f's_cbranch_scc0 {L}')
        a.label(Dn)

    def lds_wait(addr, off, want, tmp, sleep=1):
        L, Dn = a.uid('lw'), a.uid('lwd')
        a(f's_mov_b32 s{S_CNT}, {SPIN * 40}')
        a.label(L)
        a(f'ds_read_b32 v{tmp}, v{addr} offset:{off}')
        a('s_waitcnt lgkmcnt(0)')
        a(f'v_cmp_gt_u32 vcc, {want}, v{tmp}')
        a(f's_cbranch_vccz {Dn}')
        if sleep:
            a(f's_sleep {sleep}')
        a(f's_sub_u32 s{S_CNT}, s{S_CNT}, 1')
        a(f's_cbranch_scc0 {L}')
        a.label(Dn)

    def nan_retry(tag, regs, again, go):
        a.label(tag)
        chk_sentinel(regs, 10)
        a(f's_cbranch_vccz {go}')
        a(f's_sub_u32 s{S_CNT}, s{S_CNT}, 1')
        a(f's_cbranch_scc0 {again}')
        a(f's_branch {go}')

    def mfma16(d, x, y, first):
        c = '0' if first else vr(d, 4)
        a(f'v_mfma_f32_16x16x32_bf16 {vr(d, 4)}, {vr(x, 4)}, {vr(y, 4)}, {c}')

    def srd(rs):
        for r in rs:
            a(f's_mov_b32 s{r + 2}, {SIZES[r]}')
            a(f's_mov_b32 s{r + 3}, 0x00020000')

    def srd_ptr(rs):
        for r in rs:
            if r == R_ACT:
                a(f's_add_u32 s{R_ACT}, s{R_WS}, {WS_ACT}')
                a(f's_addc_u32 s{R_ACT + 1}, s{R_WS + 1}, 0')
            else:
                a(f's_mov_b64 s[{r}:{r + 1}], s[{PTR[r]}:{PTR[r] + 1}]')

    def consts():
        a(f's_mov_b32 s{S_ONES}, 0x3f803f80')
        a(f's_mov_b32 s{S_LO1}, 0x3f80')
        a(f's_mov_b32 s{S_HI1}, 0x3f800000')
        a(f's_mov_b32 s{S_MASK}, 0xffff0000')

    def get_tag():
        a('s_waitcnt lgkmcnt(0)')
        a(f's_add_u32 s{S_TAG}, s{S_TAG}, 0x9e3779b9')

    def vF(d):
        a(f'v_bfe_u32 v{d}, v1, 2, 2')
        a(f'v_lshlrev_b32 v{d}, 8, v{d}')
        a(f'v_lshl_add_u32 v{d}, v3, 6, v{d}')
        a(f'v_lshl_add_u32 v{d}, v4, 4, v{d}')

    def tr64_addr(d, t):
        a(f'v_bfe_u32 v{t}, v1, 2, 2')
        a(f'v_lshl_add_u32 v{t}, v3, 3, v{t}')
        a(f'v_lshlrev_b32 v{d}, 6, v{t}')
        a(f'v_lshl_add_u32 v{d}, v4, 3, v{d}')

    def tr_op(dst, addr, off, tau):
        a(f'ds_read_b64_tr_b16 {vr(dst, 2)}, v{addr} offset:{off}')
        a(f'ds_read_b64_tr_b16 {vr(dst + 2, 2)}, v{addr} offset:{off + tau}')

    def red4_read(x, addr):
        ex(0xffffffff)
        for w in range(4):
            a(f'ds_read_b128 {vr(x + 4 * w, 4)}, v{addr} offset:{512 * w}')
        a('s_waitcnt lgkmcnt(2)')
        for i in range(4):
            a(f'v_add_f32 v{x + i}, v{x + i}, v{x + 4 + i}')
        a('s_waitcnt lgkmcnt(0)')
        for i in range(4):
            a(f'v_add_f32 v{x + 8 + i}, v{x + 8 + i}, v{x + 12 + i}')
        for i in range(4):
            a(f'v_add_f32 v{x + i}, v{x + i}, v{x + 8 + i}')

    def frag_addr(dst, t):
        a(f'v_bfe_u32 v{dst}, v1, 1, 2')
        a(f'v_lshlrev_b32 v{dst}, 6, v{dst}')
        a(f'v_bfe_u32 v{t}, v1, 3, 2')
        a(f'v_lshl_add_u32 v{dst}, v{t}, 4, v{dst}')
        a(f'v_and_b32 v{t}, 1, v1')
        a(f'v_lshl_add_u32 v{dst}, v{t}, 3, v{dst}')

    M4 = 0x000f000f000f000f

    def arrive(wave, ret, t0, off, sel='s3'):
        lb = a.uid('arr')
        a(f's_cmp_lg_u32 {sel}, {wave}')
        a(f's_cbranch_scc1 {lb} ;noflush')
        a(f'v_mov_b32 v{t0}, {off}')
        a(f'v_mov_b32 v{ret}, 1')
        ex(1)
        a(f'global_atomic_add v{ret}, v{t0}, v{ret}, s[86:87] sc0 sc1')
        ex(-1)
        a.label(lb)

    def release(wave, ret, t0, last, flag, wait=None):
        lb = a.uid('rel')
        a(f's_cmp_lg_u32 s3, {wave}')
        a(f's_cbranch_scc1 {lb} ;noflush')
        if wait:
            a(wait)
        a(f'v_readfirstlane_b32 s1, v{ret}')
        a(f's_and_b32 s1, s1, {last}')
        a(f's_cmp_lg_u32 s1, {last}')
        a(f's_cbranch_scc1 {lb} ;noflush')
        a('s_mov_b64 exec, -1')
        a(f'v_mbcnt_lo_u32_b32 v{t0}, -1, 0')
        a(f'v_lshlrev_b32 v{t0}, 2, v{t0}')
        a(f'v_mov_b32 v{ret}, s{S_TAG}')
        if isinstance(flag, int):
            a(f's_mov_b32 s1, {flag}')
            flag = 's1'
        ex(0xffffffff)
        a(f'buffer_store_dword v{ret}, v{t0}, {S(R_WS)}, {flag} offen sc1')
        ex(-1)
        a.label(lb)

    def flag_wait(flag, t0, sleep):
        if isinstance(flag, int):
            a(f's_mov_b32 s1, {flag}')
            flag = 's1'
        ex(1)
        poll(lambda: a(f'buffer_load_dword v{t0}, off, {S(R_WS)}, {flag} sc1'),
             lambda: a(f'v_cmp_ne_u32 vcc, s{S_TAG}, v{t0}'), sleep)
        ex(-1)

    a(f'.globl {name}\n.p2align 8\n.type {name},@function')
    a.label(name)
    if o.stamps or o.diag:
        a('s_memrealtime s[100:101]')
    a('s_cmp_ge_u32 s2, 256')
    a('s_cbranch_scc1 L_end')
    a('s_load_dwordx16 s[64:79], s[0:1], 0')
    a('s_load_dwordx8 s[80:87], s[0:1], 64')
    a(f's_load_dwordx2 s[{R_WS}:{R_WS + 1}], s[0:1], 96')
    a('s_cmp_lt_u32 s2, 128')
    a('s_cbranch_scc1 L_nopf')
    a('s_getpc_b64 s[94:95]')
    a.label('L_pc')
    a('v_lshlrev_b32 v1, 7, v0')
    a(f'v_cmp_gt_u32 vcc, L_end-L_pc, v1')
    a('s_and_saveexec_b64 s[96:97], vcc')
    a('s_cbranch_execz L_pfdone')
    a('global_load_dword v127, v1, s[94:95]')
    a.label('L_pfdone')
    a('s_mov_b64 exec, s[96:97]')
    a.label('L_nopf')
    a('v_and_b32 v1, 63, v0')
    a('v_lshrrev_b32 v2, 6, v0')
    a('v_readfirstlane_b32 s3, v2')
    a('v_lshlrev_b32 v2, 4, v1')
    a('v_lshrrev_b32 v3, 4, v1')
    a('v_and_b32 v4, 3, v1')
    a('v_and_b32 v11, 15, v1')
    srd([R_WS, R_X])
    a('s_cmp_ge_u32 s2, 128')
    a('s_cbranch_scc1 L_att')

    srd([R_WQ, R_WUK])
    a('s_and_b32 s4, s2, 7')
    a('s_lshl_b32 s4, s4, 2')
    a('s_bfe_u32 s5, s2, 0x20003')
    a('s_add_u32 s4, s4, s5')
    a('s_lshr_b32 s5, s2, 5')
    a('s_lshl_b32 s6, s4, 8')
    a('v_lshlrev_b32 v5, 1, v3')
    a('v_xor_b32 v5, v5, v11')
    a('v_lshlrev_b32 v5, 4, v5')
    a('v_lshl_add_u32 v6, v3, 13, v5')
    a('v_xor_b32 v7, 0x80, v6')
    a('v_xor_b32 v8, v3, v11')
    a('v_lshlrev_b32 v8, 4, v8')
    a('v_lshl_add_u32 v8, v3, 13, v8')
    a('s_lshl_b32 s90, s5, 20')
    a('s_lshl_b32 s91, s3, 17')
    a('s_add_u32 s90, s90, s91')
    a('s_add_u32 s90, s90, s6')
    a('s_lshl_b32 s91, s3, 12')
    a('s_mov_b32 m0, s91')
    a('v_bfe_u32 v10, v1, 2, 2')
    a('v_lshlrev_b32 v10, 6, v10')
    a('v_lshl_add_u32 v10, v4, 10, v10')
    a('v_lshl_add_u32 v10, v3, 4, v10')
    a('s_lshl_b32 s93, s5, 8')
    XS, XO = 12, 28
    a('s_waitcnt lgkmcnt(0)')
    srd_ptr([R_X, R_WQ, R_WUK])
    a('s_cmp_lg_u32 s3, 0')
    a('s_cbranch_scc1 L_nox')
    for i in range(4):
        a(f'buffer_load_dwordx4 {vr(XS + 4 * i, 4)}, v10, {S(R_X)}, 0 offen offset:{256 * i}')
    a(f'buffer_load_dwordx4 {vr(XO, 4)}, v10, {S(R_X)}, s93 offen')
    a.label('L_nox')
    if o.qloc:
        a('s_lshl_b32 s92, s4, 13')
        a('s_lshl_b32 s93, s3, 10')
        a('s_add_u32 s92, s92, s93')
        a(f's_add_u32 s92, s92, {WS_QPL}')
        a(f'buffer_load_dwordx4 v[68:71], v2, {S(R_WS)}, s92 offen sc1')
    for i in range(4):
        a(f's_add_u32 s92, s90, {i * 32768}')
        a(f'buffer_load_dwordx4 v{6 + i // 2}, {S(R_WQ)}, s92 offen nt lds')
        if i < 3:
            a('s_add_u32 m0, m0, 1024')
    a('s_barrier')
    a('s_cmp_lt_u32 s3, 4')
    a('s_cbranch_scc1 L_nouk')
    a('s_lshl_b32 s91, s3, 17')
    a('s_add_u32 s90, s90, s91')
    a(f's_sub_u32 s90, s90, {8 << 17}')
    a('s_lshl_b32 s91, s3, 13')
    a(f's_add_u32 m0, s91, {A_WUK - 32768}')
    for i in range(8):
        if i % 2 == 0:
            a(f'v_xor_b32 v9, {64 * (i // 2)}, v8')
        a(f's_add_u32 s92, s90, {i * 32768}')
        a(f'buffer_load_dwordx4 v9, {S(R_WUK)}, s92 offen nt lds')
        if i < 7:
            a('s_add_u32 m0, m0, 1024')
    a.label('L_nouk')
    a(f's_load_dword s{S_TAG}, s[{R_WS}:{R_WS + 1}], {WS_EPOCH}')
    srd_ptr([R_WUV, R_WO, R_WG, R_WU, R_WD, R_OUT])
    consts()
    stamp(1)
    a('s_cmp_lg_u32 s3, 0')
    a('s_cbranch_scc1 L_noln')
    a(f's_waitcnt vmcnt({5 + o.qloc})')
    for i in range(16):
        a(f'v_dot2_f32_bf16 v34, v{XS + i}, s{S_ONES}, {"0" if i == 0 else "v34"}')
        a(f'v_dot2_f32_bf16 v35, v{XS + i}, v{XS + i}, {"0" if i == 0 else "v35"}')
    for c in ('row_ror:4', 'row_ror:8'):
        dpp('v_add_f32', 34, 34, 34, c)
        dpp('v_add_f32', 35, 35, 35, c)
    for wh in (16, 32):
        a('v_mov_b32 v12, v34')
        a('v_mov_b32 v13, v35')
        a(f'v_permlane{wh}_swap_b32 v34, v12')
        a(f'v_permlane{wh}_swap_b32 v35, v13')
        a('v_add_f32 v34, v34, v12')
        a('v_add_f32 v35, v35, v13')
    a('v_mul_f32 v34, 0x3b000000, v34')
    a('v_mul_f32 v35, 0x3b000000, v35')
    a('v_fma_f32 v35, -v34, v34, v35')
    a('v_max_f32 v35, 0, v35')
    a('v_add_f32 v35, 0x3727c5ac, v35')
    a('v_rsq_f32 v35, v35')
    a(f'v_mul_f32 v35, {QSCALE_BITS}, v35')
    a('v_mul_f32 v34, v34, v35')
    a(f's_waitcnt vmcnt({4 + o.qloc})')
    for i in range(4):
        a(f'v_lshlrev_b32 v12, 16, v{XO + i}')
        a(f'v_and_b32 v13, s{S_MASK}, v{XO + i}')
        a('v_fma_f32 v12, v12, v35, -v34')
        a('v_fma_f32 v13, v13, v35, -v34')
        a(f'v_cvt_pk_bf16_f32 v{XO + i}, v12, v13')
    a(f'v_add_u32 v12, {A_X}, v2')
    a(f'ds_write_b128 v12, {vr(XO, 4)}')
    a.label('L_noln')
    srd([R_WUV, R_WO, R_WG, R_WU, R_WD, R_OUT])
    for i in range(4):
        a(f'v_mov_b32 v{36 + i}, -1')
    a('s_lshl_b32 s92, s2, 3')
    a('s_add_u32 s92, s92, s3')
    a('s_mul_i32 s92, s92, 352')
    a(f's_add_u32 s92, s92, {WS_CLEAN}')
    ex(0x3fffff)
    a(f'buffer_store_dwordx4 v[36:39], v2, {S(R_WS)}, s92 offen sc1')
    ex(-1)
    a('v_bfe_u32 v40, v1, 2, 3')
    a('v_lshlrev_b32 v40, 1, v40')
    a('s_lshl_b32 s92, s3, 1')
    a('s_and_b32 s92, s92, 12')
    a(f'v_bitop3_b32 v40, v40, v4, s92 {XOR3}')
    a('v_lshlrev_b32 v40, 4, v40')
    a('v_bfe_u32 v41, v1, 2, 2')
    a('v_lshl_add_u32 v41, v3, 3, v41')
    a('v_lshl_add_u32 v40, v41, 8, v40')
    a('s_and_b32 s92, s3, 1')
    a('s_lshl_b32 s92, s92, 3')
    a('v_add_u32 v40, s92, v40')
    a('v_lshlrev_b32 v41, 8, v3')
    a('v_lshl_add_u32 v41, v4, 4, v41')
    a(f'v_add_u32 v41, {A_X}, v41')
    a('v_lshlrev_b32 v42, 6, v3')
    a('v_lshl_add_u32 v42, v4, 4, v42')
    a('s_lshl_b32 s96, s4, 13')
    if WS_QP:
        a(f's_add_u32 s96, s96, {WS_QP}')
    a('s_lshl_b32 s92, s5, 11')
    a('s_add_u32 s97, s96, s92')
    a('s_lshl_b32 s92, s3, 8')
    a('s_add_u32 s97, s97, s92')
    get_tag()
    stamp(2)
    if o.loc:
        a('s_getreg_b32 s1, hwreg(HW_REG_XCC_ID, 0, 4)')
        a(f's_xor_b32 s{S_XCC}, s1, s{S_TAG}')
    a(f's_add_u32 s98, s97, {WS_QPL - WS_QP}')
    a(f's_add_u32 s99, s96, {(WS_QPL - WS_QP) if o.qloc else 0}')
    a('v_bfe_u32 v43, v1, 2, 2')
    a('v_lshlrev_b32 v43, 11, v43')
    a('v_lshl_add_u32 v43, v3, 6, v43')
    a('v_lshl_add_u32 v43, v4, 4, v43')
    a('s_cmp_lt_u32 s3, 4')
    a('s_cbranch_scc1 L_wq_lo')
    a('s_waitcnt vmcnt(9)')
    a('s_branch L_wq_hi')
    a.label('L_wq_lo')
    a('s_waitcnt vmcnt(1)')
    a.label('L_wq_hi')
    a('s_barrier')
    W1, XF, AC = 12, 44, 60
    for t in range(4):
        tr_op(W1 + 4 * t, 40, A_WQ + 8192 * t, 1024)
        a(f'ds_read_b128 {vr(XF + 4 * t, 4)}, v41 offset:{64 * t}')
    for t in range(4):
        a(f's_waitcnt lgkmcnt({3 * (3 - t)})')
        mfma16(AC, W1 + 4 * t, XF + 4 * t, t == 0)
    a(f'v_cvt_pk_bf16_f32 v64, v{AC}, v{AC + 1}')
    a(f'v_cvt_pk_bf16_f32 v65, v{AC + 2}, v{AC + 3}')
    a(f'v_bitop3_b32 v66, v64, v65, s{S_TAG} {XOR3}')
    ex(M4)
    if o.qloc:
        a(f'buffer_store_dwordx4 v[64:67], v42, {S(R_WS)}, s98 offen')
    a(f'buffer_store_dwordx4 v[64:67], v42, {S(R_WS)}, s97 offen sc1')
    ex(-1)
    stamp(3)
    UK, Q, AC2, FR = 68, 100, 132, 140

    def a2_loads():
        for n in range(8):
            a(f'buffer_load_dwordx4 {vr(Q + 4 * n, 4)}, v43, {S(R_WS)}, s99 offen offset:{256 * n} sc1')
    a(f's_cmp_lt_u32 s5, {o.nsamp}')
    a('s_cselect_b32 s98, s3, 99')
    a('v_lshlrev_b32 v30, 7, v1')
    a(f'v_mov_b32 v31, s{S_TAG}')
    AW = 3 if o.arrpos == 2 else 7
    a('s_cmp_lt_u32 s3, 4')
    a('s_cbranch_scc1 L_a2')
    a('s_waitcnt vmcnt(0)')
    if o.arrpos == 0:
        arrive(7, 22, 23, 0, 's98')
    a('s_barrier')
    if o.arrpos == 1:
        arrive(7, 22, 23, 0, 's98')
    a('s_branch L_a_done')
    a.label('L_a2')
    a(f's_waitcnt vmcnt({o.qloc})')
    if o.qdelay:
        a(f's_sleep {o.qdelay}')
    a2_loads()
    a('v_lshrrev_b32 v12, 2, v11')
    a('v_lshl_add_u32 v12, v12, 3, v4')
    a('v_lshlrev_b32 v12, 8, v12')
    a('v_xor_b32 v13, v3, v11')
    a('v_lshl_add_u32 v12, v13, 4, v12')
    a('s_lshl_b32 s92, s3, 13')
    a(f's_add_u32 s92, s92, {A_WUK}')
    a('v_add_u32 v12, s92, v12')
    a('s_barrier')
    for t in range(4):
        a(f'v_xor_b32 v13, {64 * t}, v12')
        for sub in range(2):
            a(f'ds_read_b128 {vr(UK + 16 * sub + 4 * t, 4)}, v13 offset:{1024 * sub}')
    a('v_lshlrev_b32 v15, 8, v4')
    a('v_lshl_add_u32 v15, v3, 4, v15')
    a('s_lshl_b32 s91, s3, 6')
    a(f's_add_u32 s91, s91, {A_C}')
    a('v_add_u32 v15, s91, v15')
    a(f'v_add_u32 v16, {A_C}, v2')
    a('v_lshlrev_b32 v20, 15, v3')
    a('v_lshl_add_u32 v20, v11, 4, v20')
    a(f'v_lshlrev_b32 v21, {10 if o.hc else 3}, v3')
    a('s_lshl_b32 s91, s4, 10')
    a('s_lshl_b32 s92, s5, 8')
    a('s_add_u32 s92, s92, s91')
    a(f's_lshr_b32 s93, s92, {5 if o.hc else 1}')
    if WS_QA:
        a(f's_add_u32 s92, s92, {WS_QA}')
    a(f's_add_u32 s93, s93, {WS_QAH}')
    a(f's_mov_b32 s{S_CNT}, {SPIN}')
    a('s_branch L_a2chk')
    a.label('L_a2poll')
    if o.qloc:
        a(f's_add_u32 s99, s96, {WS_QPL - WS_QP}')
        a(f's_and_b32 s91, s{S_CNT}, 7')
        a('s_cselect_b32 s99, s99, s96')
    a2_loads()
    a.label('L_a2chk')
    for n in range(8):
        a(f's_waitcnt vmcnt({7 - n})')
        a(f'v_bitop3_b32 v{Q + 4 * n + 2}, v{Q + 4 * n}, v{Q + 4 * n + 1}, v{Q + 4 * n + 2} {XOR3}')
    a(f'v_max3_u32 v17, v{Q + 2}, v{Q + 6}, v{Q + 10}')
    a(f'v_min3_u32 v18, v{Q + 2}, v{Q + 6}, v{Q + 10}')
    a(f'v_max3_u32 v17, v17, v{Q + 14}, v{Q + 18}')
    a(f'v_min3_u32 v18, v18, v{Q + 14}, v{Q + 18}')
    a(f'v_max3_u32 v17, v17, v{Q + 22}, v{Q + 26}')
    a(f'v_min3_u32 v18, v18, v{Q + 22}, v{Q + 26}')
    a(f'v_max3_u32 v17, v17, v{Q + 30}, s{S_TAG}')
    a(f'v_min3_u32 v18, v18, v{Q + 30}, s{S_TAG}')
    a('v_cmp_ne_u32 vcc, v17, v18')
    a('s_cbranch_vccz L_a2go')
    a(f's_sub_u32 s{S_CNT}, s{S_CNT}, 1')
    a('s_cbranch_scc0 L_a2poll')
    a.label('L_a2go')
    if o.st3:
        a('s_memrealtime s[72:73]')
    stamp(4)
    if o.arrpos == 2:
        arrive(3, 22, 23, 0, 's98')
    a('s_waitcnt lgkmcnt(0)')
    for n in range(8):
        for sub in range(2):
            d = AC2 + 4 * sub
            c = '0' if n == 0 else vr(d, 4)
            a(f'v_mfma_f32_16x16x16_bf16 {vr(d, 4)}, {vr(UK + 16 * sub + 2 * n, 2)}, {vr(Q + 4 * n, 2)}, {c}')
    for c in ('row_ror:4', 'row_ror:8'):
        for i in range(8):
            dpp('v_add_f32', AC2 + i, AC2 + i, AC2 + i, c)
    for i in range(4):
        a(f'v_cvt_pk_bf16_f32 v{FR + i}, v{AC2 + 2 * i}, v{AC2 + 2 * i + 1}')
    ex(M4)
    a(f'ds_write_b128 v15, {vr(FR, 4)}')
    ex(-1)
    a('s_waitcnt lgkmcnt(0)')
    a.label('L_a_done')
    a('s_barrier')
    a('s_cmp_lg_u32 s3, 0')
    a('s_cbranch_scc1 L_a_pub')
    a(f'ds_read_b128 {vr(FR, 4)}, v16')
    a('s_waitcnt lgkmcnt(0)')
    a(f'buffer_store_dwordx4 {vr(FR, 4)}, v20, {S(R_WS)}, s92 offen sc1')
    xor_chain(18, range(FR, FR + 4))
    for c in ('quad_perm:[1,0,3,2]', 'quad_perm:[2,3,0,1]', 'row_ror:4', 'row_ror:8'):
        dpp('v_xor_b32', 18, 18, 18, c)
    a(f'v_xor_b32 v19, s{S_TAG}, v18')
    ex(0x0001000100010001)
    a(f'buffer_store_dwordx2 v[18:19], v21, {S(R_WS)}, s93 offen sc1')
    ex(-1)
    stamp(5)
    a.label('L_a_pub')
    a(f's_cmp_lg_u32 s98, {AW}')
    a('s_cbranch_scc1 L_norel')
    a('s_waitcnt vmcnt(0)')
    a('v_readfirstlane_b32 s1, v22')
    a(f's_and_b32 s1, s1, {32 * o.nsamp - 1}')
    a(f's_cmp_lg_u32 s1, {32 * o.nsamp - 1}')
    a('s_cbranch_scc1 L_norel')
    a(f's_mov_b32 s1, {WS_HU}')
    if o.nh < 64:
        ex((1 << o.nh) - 1)
    a(f'buffer_store_dword v31, v30, {S(R_WS)}, s1 offen sc1')
    ex(-1)
    if o.nh > 64:
        a(f's_mov_b32 s1, {WS_HU + 8192}')
        a(f'buffer_store_dword v31, v30, {S(R_WS)}, s1 offen sc1')
    a.label('L_norel')
    if o.loc:
        a('s_cmp_lg_u32 s3, 5')
        a('s_cbranch_scc1 L_noxt')
        a('s_and_b32 s92, s2, 7')
        a('s_lshl_b32 s92, s92, 11')
        a('s_lshr_b32 s93, s2, 3')
        a('s_lshl_b32 s93, s93, 7')
        a('s_add_u32 s92, s92, s93')
        a(f's_add_u32 s92, s92, {WS_XT}')
        a(f'v_mov_b32 v9, s{S_XCC}')
        ex(1)
        a(f'buffer_store_dword v9, off, {S(R_WS)}, s92 sc1')
        ex(-1)
        a.label('L_noxt')
    a('s_and_b32 s7, s2, 7')
    a('s_lshr_b32 s63, s2, 3')
    a('v_and_b32 v7, 1, v3')
    a('v_lshl_add_u32 v6, v7, 18, v5')
    a('v_lshrrev_b32 v7, 1, v3')
    a('v_lshl_add_u32 v6, v7, 17, v6')
    a('v_xor_b32 v7, 0x80, v6')
    a('s_lshl_b32 s0, s5, 20')
    a('s_add_u32 s0, s0, s6')
    a('s_mov_b32 s61, 0')
    D, WL, CA, OPC, OPD = 16, 32, 40, 64, 96
    a('s_and_b32 s94, s3, 3')
    a('s_lshr_b32 s95, s3, 2')
    a('v_bfe_u32 v56, v1, 2, 3')
    a('v_lshlrev_b32 v56, 1, v56')
    a('s_lshl_b32 s92, s94, 2')
    a(f'v_bitop3_b32 v56, v56, v4, s92 {XOR3}')
    a('v_lshlrev_b32 v56, 4, v56')
    a('v_bfe_u32 v58, v1, 2, 2')
    a('v_lshl_add_u32 v58, v3, 3, v58')
    a('v_lshl_add_u32 v56, v58, 8, v56')
    a(f'v_add_u32 v56, {A_WUV}, v56')
    a('v_and_b32 v5, 31, v1')
    a('v_lshlrev_b32 v5, 11, v5')
    a('s_lshl_b32 s90, s94, 16')
    a('s_lshl_b32 s91, s5, 9')
    a('s_add_u32 s90, s90, s91')
    a('s_lshl_b32 s91, s4, 4')
    a('s_add_u32 s90, s90, s91')
    a(f's_add_u32 s90, s90, {WS_REC}')
    a('s_lshl_b32 s96, s4, 2')
    a('s_add_u32 s96, s96, s5')
    a('s_lshl_b32 s96, s96, 2')
    a('s_add_u32 s96, s96, s94')
    a('s_lshl_b32 s91, s96, 13')
    a('s_lshl_b32 s93, s95, 12')
    a('s_add_u32 s91, s91, s93')
    a(f's_add_u32 s91, s91, {WS_OP}')
    a('s_lshl_b32 s92, s95, 4')
    a('v_lshlrev_b32 v48, 4, v11')
    a('v_lshl_add_u32 v48, v3, 1, v48')
    a('s_mul_i32 s93, s3, 272')
    a(f's_add_u32 s93, s93, {A_C}')
    a('v_add_u32 v48, s93, v48')
    a('v_and_b32 v49, 7, v1')
    a('v_mul_u32_u24 v49, 272, v49')
    a('v_lshl_add_u32 v49, v3, 4, v49')
    a(f'v_add_u32 v49, {A_C}, v49')
    a('v_lshlrev_b32 v50, 6, v3')
    a('v_lshl_add_u32 v50, v4, 4, v50')
    a('s_lshl_b32 s98, s4, 12')
    a('s_lshl_b32 s93, s94, 10')
    a('s_add_u32 s98, s98, s93')
    a('s_lshl_b32 s93, s5, 8')
    a('s_add_u32 s98, s98, s93')
    a(f's_add_u32 s98, s98, {WS_CP}')
    a('v_add_u32 v51, s92, v3')
    a('v_lshlrev_b32 v51, 2, v51')
    a('v_cmp_eq_u32 s[88:89], s95, v3')
    a('s_lshl_b32 s96, s94, 14')
    a(f's_and_b32 s93, s2, {o.nl - 1}')
    a('s_lshl_b32 s93, s93, 7')
    a('s_add_u32 s96, s96, s93')
    a(f's_add_u32 s96, s96, {WS_OF}')
    a(f's_add_u32 s54, s{R_WS}, s96')
    a(f's_addc_u32 s55, s{R_WS + 1}, 0')
    na, nb_ = bin(o.emask).count('1'), bin(o.emask2).count('1')
    assert 4 * (na + nb_) >= 43
    a(f's_mul_i32 s17, s7, {na}')
    a(f's_mul_i32 s93, s7, {nb_}')
    a(f's_add_u32 s93, s93, {4 * na - 4 * nb_}')
    a('s_cmp_lt_u32 s7, 4')
    a(f's_cselect_b32 s16, {o.emask}, {o.emask2}' if o.emask2 <= 64 or o.emask == o.emask2 else 's_nop 0')
    if not (o.emask2 <= 64 or o.emask == o.emask2):
        a(f's_mov_b32 s16, {o.emask2}')
        a(f's_cselect_b32 s16, {o.emask}, s16')
    a('s_cselect_b32 s17, s17, s93')
    a('v_lshrrev_b32 v8, 2, v1')
    a('s_cmp_lt_u32 s3, 4')
    a('s_cbranch_scc1 L_wlo')
    a('s_mov_b32 s61, 0')
    tr64_addr(58, 59)

    def go_wait(extra=0):
        a('s_lshl_b32 s96, s2, 7')
        a(f's_add_u32 s96, s96, {WS_GO}')
        ex(1)
        poll(lambda: a(f'buffer_load_dword v9, off, {S(R_WS)}, s96 sc1'), lambda: a(f'v_cmp_ne_u32 vcc, s{S_TAG}, v9'), 3)
        ex(-1)
    def hu_wait(tag):
        a('s_lshl_b32 s96, s2, 7')
        a(f's_add_u32 s96, s96, {WS_HU}')
        a(f's_add_u32 s0, s{R_WS}, s96')
        a(f's_addc_u32 s1, s{R_WS + 1}, 0')
        a(f's_mov_b32 s{S_CNT}, {SPIN}')
        a.label(tag)
        a('s_sleep 4')
        a('s_load_dword s96, s[0:1], 0 glc')
        a('s_waitcnt lgkmcnt(0)')
        a(f's_cmp_eq_u32 s96, s{S_TAG}')
        a(f's_cbranch_scc1 {tag}go')
        a(f's_sub_u32 s{S_CNT}, s{S_CNT}, 1')
        a(f's_cbranch_scc0 {tag}')
        a.label(tag + 'go')
    a('s_bitcmp1_b32 s16, s63')
    a('s_cbranch_scc1 L_E1')
    a(f's_bitcmp1_b32 {o.dmask}, s63')
    a('s_cbranch_scc1 L_D1')
    a.label('L_wnone')
    a('s_barrier')
    a('s_load_dword s97, s[54:55], 0 glc')
    a('s_branch L_cstart')
    OP = 64
    H, XR, HA, X4, EA = 16, 128, 140, 148, 164
    EW, ES, ER, ESR, EST, EG, ECS = 180, 181, 182, 183, 184, 185, 186
    OPD, DA = 64, 144
    a.label('L_D1')
    a('s_mov_b32 s61, 2')
    a('s_bfm_b32 s63, s63, 0')
    a(f's_and_b32 s63, s63, {o.dmask}')
    a('s_bcnt1_i32_b32 s63, s63')
    a('v_lshrrev_b32 v8, 3, v1')
    a('v_lshlrev_b32 v8, 10, v8')
    a('v_and_b32 v9, 7, v1')
    a('v_lshl_add_u32 v8, v9, 4, v8')
    a('s_lshl_b32 s99, s7, 19')
    a('s_lshl_b32 s93, s94, 17')
    a('s_add_u32 s99, s99, s93')
    a('s_lshl_b32 s93, s63, 7')
    a('s_add_u32 s99, s99, s93')
    a('s_lshl_b32 s6, s94, 14')
    a('s_mov_b32 m0, s6')
    for i in range(16):
        a(f's_add_u32 s93, s99, {i * 8192}')
        if i >= o.owin:
            a(f's_waitcnt vmcnt({o.owin - 1})')
        a(f'buffer_load_dwordx4 v8, {S(R_WO)}, s93 offen nt lds')
        if i < 15:
            a('s_add_u32 m0, m0, 1024')
    a('v_lshlrev_b32 v57, 7, v59')
    a('v_lshl_add_u32 v57, v4, 3, v57')
    a('v_add_u32 v57, s6, v57')
    vF(128)
    a('v_lshlrev_b32 v129, 8, v4')
    a('v_bfe_u32 v9, v1, 2, 2')
    a('v_lshl_add_u32 v129, v9, 6, v129')
    a('v_lshl_add_u32 v129, v3, 4, v129')
    a('s_lshl_b32 s93, s94, 10')
    a(f's_add_u32 s93, s93, {A_H}')
    a('v_add_u32 v129, s93, v129')
    a('v_bfe_u32 v130, v1, 1, 2')
    a('v_lshlrev_b32 v130, 8, v130')
    a('v_lshrrev_b32 v9, 3, v1')
    a('v_lshl_add_u32 v130, v9, 5, v130')
    a('v_and_b32 v9, 1, v1')
    a('v_lshl_add_u32 v130, v9, 4, v130')
    a(f'v_add_u32 v130, {A_H}, v130')
    a('v_lshlrev_b32 v131, 3, v1')
    a('s_lshl_b32 s6, s7, 14')
    a('s_lshl_b32 s93, s94, 12')
    a('s_add_u32 s6, s6, s93')
    a(f's_add_u32 s6, s6, {WS_CP}')
    a('s_lshl_b32 s99, s7, 12')
    a('s_lshl_b32 s93, s63, 9')
    a('s_add_u32 s99, s99, s93')
    a(f's_add_u32 s99, s99, {WS_HP}')
    if o.loc:
        a('s_lshl_b32 s93, s7, 11')
        a(f's_add_u32 s93, s93, {WS_XT}')
        a('v_lshlrev_b32 v9, 7, v11')
        a(f'buffer_load_dword v10, v9, {S(R_WS)}, s93 offen sc1')
    for i in range(4):
        a(f'buffer_load_dwordx4 {vr(D + 4 * i, 4)}, v128, {S(R_WS)}, s6 offen offset:{1024 * i} sc1')
    a('s_waitcnt vmcnt(0)')
    if o.loc:
        a(f'v_cmp_ne_u32 vcc, s{S_XCC}, v10')
        a('s_cmp_eq_u64 vcc, 0')
        a(f's_cselect_b32 s{S_LOC}, 1, 0')
    for t in range(4):
        for k in range(4):
            tr_op(OPD + 16 * t + 4 * k, 57, 4096 * t + 32 * k, 512)
        a('s_waitcnt lgkmcnt(4)')
    a('s_branch L_wnone')
    a.label('L_E1')
    a('s_bfm_b32 s63, s63, 0')
    a('s_and_b32 s63, s63, s16')
    a('s_bcnt1_i32_b32 s63, s63')
    a('s_add_u32 s63, s63, s17')
    a('s_cmp_ge_u32 s63, 43')
    a('s_cbranch_scc1 L_wnone')
    a('s_mov_b32 s61, 1')
    if o.efgo == 1:
        go_wait()
    if o.pf == 2:
        hu_wait('L_efw')
    a('v_mul_u32_u24 v8, 2752, v8')
    a('v_lshl_add_u32 v8, v4, 4, v8')
    a(f's_mul_i32 s99, s94, {128 * 2752}')
    a('s_lshl_b32 s93, s63, 6')
    a('s_add_u32 s99, s99, s93')
    a('s_lshl_b32 s6, s94, 14')
    a('s_mov_b32 m0, s6')
    a('v_bfe_u32 v9, v1, 2, 2')
    a('v_lshlrev_b32 v9, 6, v9')
    a('v_lshl_add_u32 v9, v4, 10, v9')
    a('v_lshl_add_u32 v9, v3, 4, v9')
    a('s_lshl_b32 s93, s94, 8')
    a(f'buffer_load_dwordx4 {vr(XR, 4)}, v9, {S(R_X)}, s93 offen')
    for mat in range(2):
        for i in range(8):
            a(f's_add_u32 s93, s99, {16 * i * 2752}')
            a(f's_waitcnt vmcnt({(o.ef0 if 8 * mat + i < o.efn else o.efwin) - 1})')
            a(f'buffer_load_dwordx4 v8, {S(R_WG if mat == 0 else R_WU)}, s93 offen {o.r64} lds')
            a('s_add_u32 m0, m0, 1024')
    OPW, FA = 192, 64
    EAR, EPS, EHW, GL, GH, GO_ = 188, 189, 190, 191, 224, 225
    a('v_and_b32 v8, 0xff, v6')
    a('v_lshl_add_u32 v8, v3, 10, v8')
    a('v_xor_b32 v9, 0x80, v8')
    a('s_lshl_b32 s99, s63, 15')
    a('s_lshl_b32 s93, s94, 8')
    a('s_add_u32 s99, s99, s93')
    a('s_lshl_b32 s98, s94, 13')
    a(f's_add_u32 s98, s98, {A_WD}')
    a('s_mov_b32 m0, s98')
    for i in range(8):
        a(f's_add_u32 s93, s99, {4096 * i}')
        a(f's_waitcnt vmcnt({o.efwin - 1})')
        a(f'buffer_load_dwordx4 v{8 + (i // 2) % 2}, {S(R_WD)}, s93 offen nt lds')
        a('s_add_u32 m0, m0, 1024')
    a('v_bfe_u32 v57, v1, 2, 3')
    a('v_lshlrev_b32 v57, 1, v57')
    a('v_xor_b32 v57, v57, v4')
    a('v_lshlrev_b32 v57, 4, v57')
    a('v_lshl_add_u32 v57, v59, 8, v57')
    a('v_add_u32 v57, s98, v57')
    a(f'v_lshlrev_b32 v{EAR}, 6, v4')
    a(f'v_lshl_add_u32 v{EAR}, v3, 4, v{EAR}')
    a(f'v_add_u32 v{EAR}, {A_ACT}, v{EAR}')
    a('v_bfe_u32 v9, v1, 1, 1')
    a(f'v_mul_u32_u24 v{EPS}, 6144, v9')
    a('v_and_b32 v9, 1, v1')
    a(f'v_lshl_add_u32 v{EPS}, v9, 6, v{EPS}')
    a(f'v_lshl_add_u32 v{EPS}, v3, 4, v{EPS}')
    a('s_lshl_b32 s93, s94, 10')
    a(f's_add_u32 s93, s93, {A_H}')
    a(f'v_add_u32 v{EHW}, s93, v2')
    a('v_cmp_lt_u32 vcc, 23, v1')
    a('v_mov_b32 v9, 0x7fffff00')
    a(f'v_cndmask_b32 v{GL}, v2, v9, vcc')
    a('s_and_b32 s93, s63, 1')
    a('s_lshl_b32 s93, s93, 1')
    a('v_bfe_u32 v9, v1, 2, 1')
    a('v_add_u32 v9, s93, v9')
    a(f'v_lshlrev_b32 v{GH}, 8, v4')
    a(f'v_lshl_add_u32 v{GH}, v9, 4, v{GH}')
    a('s_lshr_b32 s93, s63, 3')
    a('s_lshl_b32 s93, s93, 10')
    a('s_bfe_u32 s96, s63, 0x20001')
    a('s_lshl_b32 s96, s96, 6')
    a('s_add_u32 s93, s93, s96')
    a(f's_add_u32 s93, s93, {A_H}')
    a(f'v_add_u32 v{GH}, s93, v{GH}')
    a(f'v_lshlrev_b32 v{GO_}, 10, v9')
    a(f'v_lshl_add_u32 v{GO_}, v4, 4, v{GO_}')
    a(f'v_lshl_add_u32 v{GO_}, v3, 1, v{GO_}')
    a('v_add_u32 v58, s6, v58')
    a(f'v_lshlrev_b32 v{EW}, 8, v4')
    a(f'v_lshl_add_u32 v{EW}, v3, 4, v{EW}')
    a(f'v_add_u32 v{EW}, s6, v{EW}')
    a(f'v_lshlrev_b32 v{ES}, 3, v4')
    a(f'v_lshl_add_u32 v{ES}, v3, 2, v{ES}')
    a(f'v_add_u32 v{ES}, s6, v{ES}')
    a('s_and_b32 s93, s3, 1')
    a('s_lshl_b32 s93, s93, 6')
    a(f'v_add_u32 v{EST}, s93, v1')
    a(f'v_lshrrev_b32 v{ESR}, 5, v{EST}')
    a(f'v_and_b32 v{ER}, 31, v{EST}')
    a(f'v_lshlrev_b32 v{ER}, 2, v{ER}')
    a(f'v_lshl_add_u32 v{ER}, v{ESR}, 8, v{ER}')
    a(f'v_lshlrev_b32 v{ESR}, 3, v{ESR}')
    a(f'v_lshlrev_b32 v{EST}, 1, v{EST}')
    a(f'v_add_u32 v{EST}, {A_ACT}, v{EST}')
    vF(EG)
    for i in range(4):
        a(f'v_mov_b32 v{X4 + i}, s{S_ONES}')
    a('v_mov_b32 v226, v57')
    a('v_mov_b32 v227, v58')

    def e_lds_write():
        ex(M4)
        for k in range(4):
            a(f'ds_write_b128 v{EW}, {vr(EA + 4 * k, 4)} offset:{64 * k}')
        ex(-1)
    a('s_branch L_wnone')
    a.label('L_wlo')
    a('s_lshr_b32 s93, s3, 1')
    a('s_lshl_b32 s93, s93, 19')
    a('s_add_u32 s0, s0, s93')
    a('s_and_b32 s93, s3, 1')
    a('s_lshl_b32 s93, s93, 16')
    a('s_add_u32 s0, s0, s93')
    a('s_lshl_b32 s93, s3, 13')
    a(f's_add_u32 m0, s93, {A_WUV}')
    if o.egate == 0:
        a('s_bitcmp1_b32 s16, s63')
        a('s_cbranch_scc1 L_nogw')
    go_wait()
    a.label('L_nogw')
    for i in range(8):
        a(f's_add_u32 s93, s0, {i * 8192}')
        a(f'buffer_load_dwordx4 v{6 + (i // 2) % 2}, {S(R_WUV)}, s93 offen nt lds')
        if i < 7:
            a('s_add_u32 m0, m0, 1024')
    a('s_waitcnt vmcnt(0)')
    a('s_load_dword s97, s[54:55], 0 glc')
    a('s_barrier')
    if o.loc:
        a('s_lshl_b32 s93, s7, 11')
        a(f's_add_u32 s93, s93, {WS_XT}')
        a('v_lshlrev_b32 v9, 7, v11')
        a(f'buffer_load_dword v60, v9, {S(R_WS)}, s93 offen sc1')
    for t in range(4):
        for k in range(2):
            tr_op(OPC + 8 * t + 4 * k, 56, 8192 * t + 8 * k, 1024)
        a('s_waitcnt lgkmcnt(4)')
    if o.lprio:
        a(f's_setprio {o.lprio}')
    a.label('L_cstart')
    stamp(6)
    RED4 = ('quad_perm:[1,0,3,2]', 'quad_perm:[2,3,0,1]', 'row_ror:4', 'row_ror:8')

    def weights():
        a('v_mov_b32 v54, v52')
        for c in RED4:
            dpp('v_max_f32', 54, 54, 54, c)
        swap_step('v_max_f32', 54, 55, 16)
        a('v_sub_f32 v53, v52, v54')
        a('v_exp_f32 v53, v53')
        a('v_cvt_pk_bf16_f32 v54, v53, 0')
        a('v_lshlrev_b32 v53, 16, v54')
        for i in range(4):
            a(f'ds_bpermute_b32 v{WL + i}, v51, v54 offset:{16 * i}')
        a('s_waitcnt lgkmcnt(0)')
        for i in range(4):
            a(f'v_lshlrev_b32 v{WL + 4 + i}, 16, v{WL + i}')
    a('v_mov_b32 v52, -1')
    a('s_lshl_b32 s93, s94, 2')
    a(f's_add_u32 s93, s93, {A_X}')
    a('v_mov_b32 v59, s93')
    a(f'v_mov_b32 v58, s{S_TAG}')
    a('s_waitcnt lgkmcnt(0)')
    a(f's_cmp_eq_u32 s97, s{S_TAG}')
    a('s_cbranch_scc1 L_ofgo')
    a('v_lshrrev_b32 v9, 4, v5')
    a('s_lshl_b32 s96, s94, 12')
    a('s_lshl_b32 s93, s4, 2')
    a('s_add_u32 s96, s96, s93')
    a(f's_add_u32 s96, s96, {WS_M0}')
    a(f'buffer_load_dword v52, v9, {S(R_WS)}, s96 offen sc1')
    a('s_waitcnt vmcnt(0)')
    a(f'v_xor_b32 v52, s{S_TAG}, v52')
    weights()
    if o.oone:
        a('s_cmp_lt_u32 s3, 4')
        a('s_cbranch_scc1 L_of0')
        a(f's_mov_b32 s{S_CNT}, {SPIN * 40}')
        a.label('L_ofl')
        a('ds_read_b32 v10, v59')
        a('s_waitcnt lgkmcnt(0)')
        a(f'v_cmp_ne_u32 vcc, s{S_TAG}, v10')
        a('s_cbranch_vccz L_ofgo2')
        a(f's_sub_u32 s{S_CNT}, s{S_CNT}, 1')
        a('s_cbranch_scc0 L_ofl')
        a('s_branch L_ofgo2')
        a.label('L_of0')
    a(f's_mov_b32 s{S_CNT}, {SPIN}')
    a.label('L_of')
    a('s_load_dword s96, s[54:55], 0 glc')
    a('s_waitcnt lgkmcnt(0)')
    a(f's_cmp_eq_u32 s96, s{S_TAG}')
    a('s_cbranch_scc1 L_ofgo')
    if o.osl:
        a(f's_sleep {o.osl}')
    a(f's_sub_u32 s{S_CNT}, s{S_CNT}, 1')
    a('s_cbranch_scc0 L_of')
    a.label('L_ofgo')
    if o.oone:
        a('ds_write_b32 v59, v58')
        a.label('L_ofgo2')
    stamp(7)
    a(f's_mov_b32 s{S_CNT}, {SPIN}')
    a.label('L_call')
    a(f'buffer_load_dwordx4 v[12:15], v5, {S(R_WS)}, s90 offen sc1')
    for i in range(4):
        a(f'buffer_load_dwordx4 {vr(D + 4 * i, 4)}, v2, {S(R_WS)}, s91 offen offset:{1024 * i} sc1')
    a(f's_sub_u32 s{S_CNT}, s{S_CNT}, 1')
    a('s_cbranch_scc1 L_cdone')
    a('s_waitcnt vmcnt(4)')
    a('v_cmp_ne_u32 vcc, v12, v52')
    xor_chain(10, [12, 13, 14, 15], f's{S_TAG}')
    a('v_cndmask_b32 v9, 0, v14, s[88:89]')
    a('s_cbranch_vccnz L_cnewm')
    a.label('L_crec')
    a('v_mul_f32 v14, v53, v13')
    side = []
    for c in RED4:
        side.append(f'v_add_f32_dpp v14, v14, v14 {c} row_mask:0xf bank_mask:0xf')
    side += ['v_mov_b32 v15, v14', 'v_permlane16_swap_b32 v14, v15', 'v_add_f32 v14, v14, v15', 'v_rcp_f32 v14, v14']
    for i in range(4):
        a(f's_waitcnt vmcnt({3 - i})')
        if i == 3:
            stamp(8)
            f3(66)
        xor_chain(9, [9] + list(range(D + 4 * i, D + 4 * i + 4)))
        if i == 3:
            side = [f'v_xor_b32_dpp v9, v9, v9 {c} row_mask:0xf bank_mask:0xf' for c in RED4]
        for u in range(4):
            for e in range(2):
                c = '0' if i == 0 else f'v{CA + 2 * u + e}'
                a(f'v_dot2_f32_bf16 v{CA + 2 * u + e}, v{D + 4 * i + u}, v{WL + 4 * e + i}, {c}')
            if side:
                a(side.pop(0))
    a('v_mov_b32 v15, v9')
    for k in range(4):
        a(f'v_permlane16_swap_b32 v{CA + 2 * k}, v{CA + 2 * k + 1}')
        if k == 1:
            a('v_permlane16_swap_b32 v9, v15')
            a('v_xor_b32 v9, v9, v15')
            a('v_mov_b32 v15, v9')
    a('v_permlane32_swap_b32 v9, v15')
    a(f'v_bitop3_b32 v9, v9, v15, v10 bitop3:0xbe')
    a('v_cmp_ne_u32 vcc, 0, v9')
    a.label('L_cdone')
    for k in range(4):
        a(f'v_add_f32 v{CA + 2 * k}, v{CA + 2 * k}, v{CA + 2 * k + 1}')
    for k in range(2):
        a(f'v_permlane32_swap_b32 v{CA + 4 * k}, v{CA + 4 * k + 2}')
    for k in range(2):
        a(f'v_add_f32 v{CA + 4 * k}, v{CA + 4 * k}, v{CA + 4 * k + 2}')
    a('s_cbranch_vccnz L_cagain ;noflush')
    a.label('L_cok')
    a(f'v_mul_f32 v{CA}, v{CA}, v14')
    a(f'v_mul_f32 v{CA + 4}, v{CA + 4}, v14')
    a(f'v_cvt_pk_bf16_f32 v{CA}, v{CA}, v{CA + 4}')
    a(f'ds_write_b16 v48, v{CA}')
    a(f'ds_write_b16_d16_hi v48, v{CA} offset:8')
    f3(68)
    a('s_waitcnt lgkmcnt(0)')
    a('s_barrier')
    f3(70)
    a('s_cmp_ge_u32 s3, 4')
    a('s_cbranch_scc1 L_hi')
    if o.loc:
        a(f'v_cmp_ne_u32 vcc, s{S_XCC}, v60')
    for t in range(4):
        a(f'ds_read_b128 {vr(D + 4 * t, 4)}, v49 offset:{64 * t}')
    for t in range(4):
        a(f's_waitcnt lgkmcnt({3 - t})')
        for k in range(2):
            mfma16(CA + 4 * k, OPC + 8 * t + 4 * k, D + 4 * t, t == 0)
    for i in range(8):
        dpp('v_add_f32', CA + i, CA + i, CA + i, 'row_ror:4')
    for i in range(4):
        a(f'v_cvt_pk_bf16_f32 v{12 + i}, v{CA + 2 * i}, v{CA + 2 * i + 1}')
    a(f's_mov_b32 s{S_CNT}, {SPIN}')
    ex(M4)
    if o.loc:
        a('s_cbranch_vccnz L_cfar ;noflush')
        a(f'buffer_store_dwordx4 v[12:15], v50, {S(R_WS)}, s98 offen')
        a('s_branch L_cst ;noflush')
        a.label('L_cfar')
    a(f'buffer_store_dwordx4 v[12:15], v50, {S(R_WS)}, s98 offen sc1')
    a.label('L_cst')
    ex(-1)
    stamp(9)
    if o.stamps:
        a('s_cmp_lg_u32 s3, 0')
        a('s_cbranch_scc1 L_end')
        dump_stamps(13, 0)
    a('s_endpgm')
    a.label('L_cnewm')
    a('v_mov_b32 v52, v12')
    weights()
    a('s_branch L_crec')
    a.label('L_cagain')
    a(f's_cmp_lt_i32 s{S_CNT}, 0')
    a('s_cbranch_scc1 L_cok')
    a('s_branch L_call')
    a.label('L_hi')
    a('s_cmp_eq_u32 s61, 0')
    if o.stamps:
        a('s_cbranch_scc0 L_hi2')
        stamp(9)
        a('s_bfe_u32 s93, s2, 0x20003')
        a('s_cmp_lg_u32 s93, s94')
        a('s_cbranch_scc1 L_end')
        a(f's_sub_u32 s84, {SPIN}, s{S_CNT}')
        dump_stamps(11, 1)
        a('s_endpgm')
        a.label('L_hi2')
    else:
        a('s_cbranch_scc1 L_end')

    a('s_cmp_eq_u32 s61, 1')
    a('s_cbranch_scc1 L_E2')
    a('s_lshl_b32 s98, s7, 7')
    a(f's_add_u32 s98, s98, {WS_FL}')
    a(f'v_mov_b32 v132, s{S_TAG}')
    a(f's_mov_b32 s{S_CNT}, {SPIN}')
    a('s_barrier')
    a.label('L_dre')
    for i in range(4):
        a(f'buffer_load_dwordx4 {vr(D + 4 * i, 4)}, v128, {S(R_WS)}, s6 offen offset:{1024 * i} sc1')
    for t in range(4):
        a(f's_waitcnt vmcnt({3 - t})')
        for k in range(4):
            mfma16(DA + 4 * k, OPD + 16 * t + 4 * k, D + 4 * t, t == 0)
    a(f'v_cmp_u_f32 vcc, v{DA}, v{DA}')
    for k in range(2):
        for j in range(4):
            dpp('v_add_f32', DA + 4 * k + j, DA + 4 * k + j, DA + 4 * k + j, 'row_ror:8', 0x3)
        if k == 0:
            a('s_cbranch_vccnz L_dnan ;noflush')
            a.label('L_dok')
            stamp(9)
    for k in range(2):
        for j in range(4):
            dpp('v_add_f32', DA + 4 * k + j, DA + 8 + 4 * k + j, DA + 8 + 4 * k + j, 'row_ror:8', 0xc)
    for j in range(4):
        dpp('v_add_f32', DA + j, DA + j, DA + j, 'row_ror:12', 0x5)
    for j in range(4):
        dpp('v_add_f32', DA + j, DA + 4 + j, DA + 4 + j, 'row_ror:4', 0xa)
    a(f'ds_write_b128 v129, {vr(DA, 4)}')
    a('s_waitcnt lgkmcnt(0)')
    a('s_barrier')
    a('s_cmp_lg_u32 s3, 4')
    a('s_cbranch_scc1 L_end')
    for w in range(4):
        a(f'ds_read_b128 {vr(D + 4 * w, 4)}, v130 offset:{1024 * w}')
    a('s_waitcnt lgkmcnt(2)')
    for i in range(4):
        a(f'v_add_f32 v{D + i}, v{D + i}, v{D + 4 + i}')
    a('s_waitcnt lgkmcnt(0)')
    for i in range(4):
        a(f'v_add_f32 v{D + 8 + i}, v{D + 8 + i}, v{D + 12 + i}')
    for i in range(4):
        a(f'v_add_f32 v{D + i}, v{D + i}, v{D + 8 + i}')
    a(f'v_cvt_pk_bf16_f32 v{D}, v{D}, v{D + 1}')
    a(f'v_cvt_pk_bf16_f32 v{D + 1}, v{D + 2}, v{D + 3}')
    a(f'buffer_store_dwordx2 {vr(D, 2)}, v131, {S(R_WS)}, s99 offen sc1')
    stamp(10)
    a('s_cmp_lg_u32 s63, 0')
    a('s_cbranch_scc1 L_efend')
    if o.dfw:
        a('s_waitcnt vmcnt(0)')
    ex(1)
    if o.loc:
        a(f's_cmp_eq_u32 s{S_LOC}, 0')
        a('s_cbranch_scc1 L_dfar')
        a(f'buffer_store_dword v132, off, {S(R_WS)}, s98')
        a('s_branch L_efend')
        a.label('L_dfar')
    a(f'buffer_store_dword v132, off, {S(R_WS)}, s98 sc1')
    a('s_branch L_efend')
    nan_retry('L_dnan', range(D, D + 16), 'L_dre', 'L_dok')
    a.label('L_E2')
    def e_lds_read():
        for w in range(4):
            a(f'ds_read_b32 v{H + 2 * w}, v{ER} offset:{16384 * w}')
            a(f'ds_read_b32 v{H + 2 * w + 1}, v{ER} offset:{16384 * w + 128}')
    for t in range(4):
        for k in range(4):
            tr_op(OP + 16 * t + 4 * k, 227, 8192 * (k // 2) + 2048 * t + 32 * (k % 2), 256)
        a(f'v_xor_b32 v9, {64 * t}, v226')
        for k in range(2):
            tr_op(OPW + 8 * t + 4 * k, 9, 8 * k, 1024)
        a(f's_waitcnt lgkmcnt({2 if t < 3 else 0})')
    for t in range(4):
        for k in range(4):
            mfma16(EA + 4 * k, OP + 16 * t + 4 * k, X4, t == 0)
    for i in range(4):
        a(f'v_lshlrev_b32 v{132 + 2 * i}, 16, v{XR + i}')
        a(f'v_and_b32 v{133 + 2 * i}, s{S_MASK}, v{XR + i}')

    e_lds_write()
    a('s_lshl_b32 s98, s63, 7')
    a(f's_mul_i32 s93, s94, {4 * 12288}')
    a('s_add_u32 s98, s98, s93')
    a(f's_add_u32 s98, s98, {WS_FP}')
    a('s_mul_i32 s99, s63, 6144')
    a(f's_add_u32 s99, s99, {WS_FP}')
    a('s_add_u32 s97, s99, 4096')
    a('s_lshr_b32 s96, s63, 1')
    a('s_lshl_b32 s96, s96, 6')
    a('s_lshl_b32 s90, s94, 10')
    a(f's_add_u32 s90, s90, {WS_HP}')
    a('s_waitcnt lgkmcnt(0)')
    a(f's_mov_b32 s91, {f32bits(GELU_K * 0.044715)}')
    a(f'v_mov_b32 v228, {GELU_BITS}')
    stamp(5)
    a('s_barrier')
    e_lds_read()
    a('s_waitcnt lgkmcnt(0)')
    a(f'v_add_f32 v{ECS}, v{H}, v{H + 2}')
    a(f'v_add_f32 v{ECS + 1}, v{H + 1}, v{H + 3}')
    for w in range(2, 4):
        a(f'v_add_f32 v{ECS}, v{ECS}, v{H + 2 * w}')
        a(f'v_add_f32 v{ECS + 1}, v{ECS + 1}, v{H + 2 * w + 1}')
    a('s_barrier')
    a('s_lshl_b32 s92, s7, 7')
    a(f's_add_u32 s92, s92, {WS_FL}')
    flag_wait('s92', 9, 0)

    def e_loads():
        a('s_mov_b32 s92, s90')
        for r in range(8):
            a(f'buffer_load_dwordx4 {vr(H + 4 * r, 4)}, v{EG}, {S(R_WS)}, s92 offen sc1')
            if r < 7:
                a('s_add_u32 s92, s92, 4096')
    f3(66)
    a(f's_mov_b32 s{S_CNT}, {SPIN}')
    a.label('L_ere')
    e_loads()
    for r in range(8):
        a(f's_waitcnt vmcnt({7 - r})')
        if r == 7:
            stamp(9)
            f3(68)
        for u in range(4):
            for e in range(2):
                c = f'v{132 + 2 * u + e}' if r == 0 else f'v{HA + 2 * u + e}'
                a(f'v_dot2_f32_bf16 v{HA + 2 * u + e}, v{H + 4 * r + u}, s{S_LO1 + e}, {c}')
    f3(70)
    for i in range(4):
        a(f'v_cvt_pk_bf16_f32 v{X4 + i}, v{HA + 2 * i}, v{HA + 2 * i + 1}')
    for t in range(4):
        if t < 3:
            for i in range(4):
                a(f'v_mov_b32_dpp v{X4 + 4 * (t + 1) + i}, v{X4 + i} row_shl:{4 * (t + 1)} row_mask:0xf bank_mask:0xf bound_ctrl:0')
        for k in range(4):
            mfma16(EA + 4 * k, OP + 16 * t + 4 * k, X4 + 4 * t, t == 0)
        if t == 0:
            a(f'ds_write_b128 v{EHW}, {vr(X4, 4)}')
            for i in range(4):
                a(f'v_dot2_f32_bf16 v9, v{X4 + i}, s{S_ONES}, {"0" if i == 0 else "v9"}')
                a(f'v_dot2_f32_bf16 v11, v{X4 + i}, v{X4 + i}, {"0" if i == 0 else "v11"}')
        if t == 1:
            a('v_cmp_u_f32 vcc, v9, v9')
            for c in ('row_ror:4', 'row_ror:8'):
                dpp('v_add_f32', 9, 9, 9, c)
                dpp('v_add_f32', 11, 11, 11, c)
            a('s_cbranch_vccnz L_enan ;noflush')
            a.label('L_eok')
        if t == 2:
            a('v_permlane16_swap_b32 v9, v11')
            a('v_add_f32 v9, v9, v11')
            swap_step('v_add_f32', 9, 11, 32)
    ex(0x000f000f)
    f3(72)
    a(f'ds_write_b32 v{ES}, v9 offset:1024')
    e_lds_write()
    a('s_waitcnt lgkmcnt(0)')
    a('s_barrier')
    f3(74)
    a('s_cmp_ge_u32 s3, 6')
    a('s_cbranch_scc1 L_eact')
    for w in range(4):
        a(f'ds_read_b64 v[{H + 8 + 2 * w}:{H + 9 + 2 * w}], v{ESR} offset:{16384 * w + 1024}')
    e_lds_read()
    a('s_waitcnt lgkmcnt(8)')
    for w in range(1, 4):
        a(f'v_add_f32 v{H + 8}, v{H + 8}, v{H + 8 + 2 * w}')
        a(f'v_add_f32 v{H + 9}, v{H + 9}, v{H + 9 + 2 * w}')
    MU, VA = H + 8, H + 9
    a(f'v_mul_f32 v{MU}, 0x3b000000, v{MU}')
    a(f'v_mul_f32 v{VA}, 0x3b000000, v{VA}')
    a(f'v_fma_f32 v{VA}, -v{MU}, v{MU}, v{VA}')
    a(f'v_max_f32 v{VA}, 0, v{VA}')
    a(f'v_add_f32 v{VA}, 0x3727c5ac, v{VA}')
    a(f'v_rsq_f32 v{VA}, v{VA}')
    a('s_waitcnt lgkmcnt(0)')
    for w in range(1, 4):
        a(f'v_add_f32 v{H}, v{H}, v{H + 2 * w}')
        a(f'v_add_f32 v{H + 1}, v{H + 1}, v{H + 2 * w + 1}')
    a(f'v_fma_f32 v16, -v{MU}, v{ECS}, v16')
    a(f'v_fma_f32 v17, -v{MU}, v{ECS + 1}, v17')
    a(f'v_mul_f32 v16, v16, v{VA}')
    a(f'v_mul_f32 v17, v17, v{VA}')
    a('v_mul_f32 v18, v16, v16')
    a('v_fma_f32 v19, v18, s91, v228')
    a('v_mul_f32 v19, v19, v16')
    a('v_exp_f32 v19, v19')
    a('v_mul_f32 v16, v16, v17')
    a('v_add_f32 v19, 1.0, v19')
    a('v_rcp_f32 v19, v19')
    a('v_mul_f32 v16, v16, v19')
    a('v_mov_b32_dpp v17, v16 quad_perm:[1,1,3,3] row_mask:0xf bank_mask:0xf')
    a('v_cvt_pk_bf16_f32 v16, v16, v17')
    ex(0x5555555555555555)
    a(f'ds_write_b32 v{EST}, v16')
    ex(-1)
    a('s_waitcnt lgkmcnt(0)')
    a.label('L_eact')
    a('s_barrier')
    f3(76)
    a(f'ds_read_b128 v[16:19], v{EAR}')
    a(f'ds_read_b128 v[20:23], v{GH}')
    a('s_waitcnt lgkmcnt(1)')
    for k in range(8):
        mfma16(FA + 4 * k, OPW + 4 * k, 16, True)
    ex(M4)
    for p in range(4):
        for i in range(4):
            a(f'v_cvt_pk_bf16_f32 v{96 + 4 * p + i}, v{FA + 8 * p + 2 * i}, v{FA + 8 * p + 2 * i + 1}')
        a(f'buffer_store_dwordx4 {vr(96 + 4 * p, 4)}, v{EPS}, {S(R_WS)}, s98 offen sc1')
        if p < 3:
            a('s_add_u32 s98, s98, 12288')
    ex(-1)
    stamp(10)
    f3(78)
    a('s_cmp_lg_u32 s3, 4')
    a('s_cbranch_scc1 L_end')
    a('s_cmp_ge_u32 s63, 32')
    a('s_cbranch_scc1 L_efend')
    G, GA = 24, 48
    OSC = ' sc1' if o.osc else ''
    for i in range(8):
        a(f'v_mov_b32 v{56 + i}, 0')
    a('s_waitcnt lgkmcnt(0)')
    ex(0xff)
    for u in range(4):
        for e in range(2):
            a(f'v_dot2_f32_bf16 v{56 + 2 * u + e}, v{20 + u}, s{S_LO1 + e}, 0')
    ex(-1)
    a(f's_mov_b32 s{S_CNT}, {SPIN}')
    a('s_waitcnt vmcnt(0)')
    if o.fdelay:
        a(f's_sleep {o.fdelay}')
    a.label('L_gre')
    for i in range(6):
        a(f'buffer_load_dwordx4 {vr(G + 4 * i, 4)}, v{2 if i < 5 else GL}, {S(R_WS)}, s{99 if i < 4 else 97} offen offset:{1024 * (i % 4)} sc1')
    for i in range(6):
        a(f's_waitcnt vmcnt({5 - i})')
        for u in range(4):
            for e in range(2):
                c = 56 + 2 * u + e if i == 0 else GA + 2 * u + e
                a(f'v_dot2_f32_bf16 v{GA + 2 * u + e}, v{G + 4 * i + u}, s{S_LO1 + e}, v{c}')
    stamp(7)
    for k in range(4):
        a(f'v_permlane16_swap_b32 v{GA + 2 * k}, v{GA + 2 * k + 1}')
    for k in range(4):
        a(f'v_add_f32 v{GA + 2 * k}, v{GA + 2 * k}, v{GA + 2 * k + 1}')
    for k in range(2):
        a(f'v_permlane32_swap_b32 v{GA + 4 * k}, v{GA + 4 * k + 2}')
    for k in range(2):
        a(f'v_add_f32 v{GA + 4 * k}, v{GA + 4 * k}, v{GA + 4 * k + 2}')
    a(f'v_cmp_u_f32 vcc, v{GA}, v{GA + 4}')
    for k in range(2):
        dpp('v_add_f32', GA + 4 * k, GA + 4 * k, GA + 4 * k, 'row_ror:8')
    a(f'v_cvt_pk_bf16_f32 v{GA}, v{GA}, v{GA + 4}')
    a('s_cbranch_vccnz L_gnan ;noflush')
    a.label('L_gok')
    ex(0x00ff00ff00ff00ff)
    a(f'buffer_store_short v{GA}, v{GO_}, {S(R_OUT)}, s96 offen{OSC}')
    a(f'buffer_store_short_d16_hi v{GA}, v{GO_}, {S(R_OUT)}, s96 offen offset:8{OSC}')
    a('s_cmp_lg_u32 s63, 0')
    a('s_cbranch_scc1 L_efend')
    ex(1)
    a(f'v_mov_b32 v12, s{S_TAG}')
    a(f's_mov_b32 s90, {WS_EPOCH}')
    a(f'buffer_store_dword v12, off, {S(R_WS)}, s90{OSC}')
    a.label('L_efend')
    if o.diag:
        a.label('L_diag')
        a('s_memrealtime s[90:91]')
        a('s_waitcnt lgkmcnt(0)')
        a('s_sub_u32 s90, s90, s100')
        a(f's_cmp_lt_u32 s90, {o.diag}')
        a('s_cbranch_scc1 L_diag')
    if o.stamps:
        stamp(8)
        a('s_cmp_lg_u32 s3, 4')
        a('s_cbranch_scc1 L_end')
        dump_stamps(11, 1)
    a('s_endpgm')

    nan_retry('L_enan', range(H, H + 32), 'L_ere', 'L_eok')
    nan_retry('L_gnan', range(G, G + 24), 'L_gre', 'L_gok')
    a.label('L_att')
    srd([R_CKV])
    a('s_bfe_u32 s4, s2, 0x20001')
    a('s_bfe_u32 s5, s2, 0x40003')
    a('s_lshl_b32 s5, s5, 1')
    a('s_and_b32 s6, s2, 1')
    a('s_add_u32 s5, s5, s6')
    a('s_lshl_b32 s90, s4, 23')
    TS = (2 << 20) if o.il else 65536
    MX = (1 << o.mb1, 1 << o.mb2)
    M3 = o.m3
    a(f's_lshl_b32 s91, s5, {16 if o.il else 18}')
    a('s_add_u32 s90, s90, s91')
    a('s_and_b32 s7, s3, 3')
    a('s_lshl_b32 s91, s7, 14')
    a('s_add_u32 s90, s90, s91')
    if o.mw:
        a('s_and_b32 s91, s7, 1')
        a(f's_mul_i32 s91, s91, {o.mw}')
        a('s_xor_b32 s90, s90, s91')
    a('s_lshl_b32 s91, s7, 15')
    a('s_lshl_b32 s92, s7, 2')
    a(f's_add_u32 s92, s92, {FB}')
    a('v_mov_b32 v7, s92')
    a(f'v_lshlrev_b32 v10, 2, v4')
    a(f'v_add_u32 v10, {FB}, v10')
    a('s_cmp_lt_u32 s3, 4')
    a('s_cbranch_scc1 L_comp')
    a('s_mov_b32 s3, s7')
    VX, TR, O_ = 12, 128, 64
    for j in range(8):
        a(f'v_xor_b32 v{VX + j}, {32 * j}, v2')
    a('s_mov_b32 m0, s91')
    a('s_mov_b32 s93, 0')
    a('s_waitcnt lgkmcnt(0)')
    srd_ptr([R_CKV])
    BUF = (0, 1, 1, 0)
    TAL, vPR, vST, vRC, vRM, vRL, vAR = 20, 28, 29, 30, 31, 32, 33

    def pv_setup():
        a('v_bfe_u32 v40, v1, 2, 2')
        a('v_lshrrev_b32 v42, 5, v1')
        a('v_lshlrev_b32 v41, 2, v40')
        a('v_lshl_add_u32 v41, v42, 1, v41')
        a('v_and_b32 v43, 1, v3')
        a('v_lshlrev_b32 v44, 1, v43')
        a('v_bfe_u32 v45, v1, 1, 1')
        a('v_add_u32 v44, v44, v45')
        a('v_xor_b32 v44, v44, v41')
        a('v_lshlrev_b32 v41, 10, v41')
        a('v_lshl_add_u32 v41, v44, 4, v41')
        a('v_and_b32 v45, 1, v1')
        a('v_lshl_add_u32 v41, v45, 3, v41')
        a('s_lshl_b32 s95, s3, 8')
        a('v_add_u32 v41, s95, v41')
        for i in range(8):
            a(f'v_xor_b32 v{TAL + i}, {64 * (i % 4) + 65536 * (i // 4)}, v41')
        a(f'v_add_u32 v{vPR}, {L_P}, v2')
        a(f'v_lshlrev_b32 v{vAR}, 4, v42')
        a(f'v_add_u32 v{vAR}, {L_ALPHA}, v{vAR}')
        a('v_lshl_add_u32 v42, v42, 2, v43')
        a(f'v_lshlrev_b32 v{vST}, 17, v42')
        a(f'v_lshl_add_u32 v{vST}, v11, 3, v{vST}')
        a('v_lshl_add_u32 v42, v45, 4, v42')
        a('v_bfe_u32 v44, v1, 2, 1')
        a('v_lshl_add_u32 v42, v44, 3, v42')
        a('v_bfe_u32 v44, v1, 3, 1')
        a('v_lshl_add_u32 v42, v44, 1, v42')
        a(f'v_lshlrev_b32 v{vRM}, 2, v42')
        a(f'v_add_u32 v{vRM}, {L_MFIN}, v{vRM}')
        a(f'v_lshlrev_b32 v{vRC}, 4, v42')
        a(f'v_add_u32 v{vRL}, {L_MAX}, v{vRC}')
        a('s_lshl_b32 s96, s3, 2')
        a('s_add_u32 s96, s96, s4')
        a('s_lshl_b32 s96, s96, 13')
        a('s_lshl_b32 s95, s5, 8')
        a('s_add_u32 s96, s96, s95')
        a(f's_add_u32 s96, s96, {WS_OP}')
        a('s_lshl_b32 s97, s4, 16')
        a('s_lshl_b32 s95, s5, 11')
        a('s_add_u32 s97, s97, s95')
        a('s_lshl_b32 s95, s3, 9')
        a('s_add_u32 s97, s97, s95')
        a(f's_add_u32 s97, s97, {WS_REC}')
        a('v_add_u32 v9, s91, v2')
    rows = [(T, j) for T in range(3) for j in range(16) if not (T == 1 and j == 15)] + [(3, j) for j in range(o.r3)]
    landed = 0
    pub = {0: 16, 1: 31}

    def publish():
        for tt in list(pub):
            if landed >= pub[tt]:
                a(f'v_mov_b32 v5, {tt + 1}')
                a(f'ds_write_b32 v7, v5 offset:{F_LAND}')
                del pub[tt]

    def dma_row(j):
        a(f'buffer_load_dwordx4 v{VX + j // 2}, {S(R_CKV)}, s90 offen offset:{(j % 4) * 1024} nt lds')
    for n, (T, j) in enumerate(rows):
        w = o.w0 if n < o.n0 else o.window
        if o.hold and n == o.hold:
            lds_wait(10, F_HUS, 1, 6, 2)
        if n >= o.n0 and not (o.hold and n >= o.hold):
            lb = a.uid('fast')
            a('s_cmp_lg_u32 s93, 0')
            a(f's_cbranch_scc1 {lb}')
            if n % 2 == 0:
                a(f'ds_read_b32 v6, v10 offset:{F_HUS if o.sw == 1 else F_QST}')
            a(f's_waitcnt vmcnt({o.w1 - 1})')
            if n % 2 == 0:
                a('s_waitcnt lgkmcnt(0)')
                a('v_cmp_eq_u32 vcc, 0, v6')
                a('s_cmp_eq_u64 vcc, 0')
                a('s_cselect_b32 s93, 1, 0')
            a.label(lb)
        if n - landed >= w:
            a(f's_waitcnt vmcnt({w - 1})')
            landed = n - (w - 1)
        if n in (16 + o.w1, 31 + o.lw) and landed < n - (o.w1 if n < 31 else o.lw):
            k = o.w1 if n < 31 else o.lw
            a(f's_waitcnt vmcnt({k})')
            landed = n - k
        publish()
        if n == 20:
            get_tag()
            a('v_mov_b32 v35, 0')
        if n == o.gon and o.wgo:
            lb = a.uid('nogo')
            a('s_cmp_lg_u32 s3, 0')
            a(f's_cbranch_scc1 {lb}')
            a('s_sub_u32 s92, s2, 128')
            a('s_lshl_b32 s92, s92, 7')
            a(f's_add_u32 s92, s92, {WS_GO}')
            a(f'v_mov_b32 v6, s{S_TAG}')
            a('v_lshlrev_b32 v8, 2, v1')
            ex(0xffffffff)
            a(f'buffer_store_dword v6, v8, {S(R_WS)}, s92 offen sc1')
            ex(-1)
            a.label(lb)
        if T < 2:
            dma_row(j)
        else:
            a(f'buffer_load_dwordx4 {vr(TR + 64 * (T - 2) + 4 * j, 4)}, v{VX + j // 2}, {S(R_CKV)}, s90 offen offset:{(j % 4) * 1024} nt')
        last = j == 15 or (T == 1 and j == 14)
        if j % 4 == 3 or last:
            a(f's_add_u32 s90, s90, {TS - 12288 if last else 4096}')
            if o.mix:
                a(f's_xor_b32 s90, s90, {MX[(j // 4) % 2] ^ (M3 if last else 0)}')
            if T < 2:
                a('s_add_u32 m0, m0, 4096')
        if n == o.w0 - 1:
            a(f's_load_dword s{S_TAG}, s[{R_WS}:{R_WS + 1}], {WS_EPOCH}')
            a('s_barrier')
            pv_setup()
        if n == 30:
            stamp(1)
    assert not pub
    stamp(2)
    if o.pvprio:
        a(f's_setprio {o.pvprio}')
    PF = 36
    BFS = (44, 48, 52, 56, 60, 12, 16)
    NB = len(BFS)
    DIST = 6
    FLG = 34

    PK, XX = 128, 160

    def half_store(ap, hf):
        t_ = PK + 4 * ap + 2 * hf
        j = 2 * ap
        base = O_ + 32 * hf
        g = [f'v_cvt_pk_bf16_f32 v{t_}, v{base + j}, v{base + 16 + j}',
             f'v_cvt_pk_bf16_f32 v{t_ + 1}, v{base + j + 1}, v{base + 16 + j + 1}',
             f's_add_u32 s92, s96, {(8 * (ap // 2) + 2 * (ap % 2)) * 131072}',
             f'v_permlane16_swap_b32 v{t_}, v{t_ + 1}',
             f'buffer_store_dwordx2 {vr(t_, 2)}, v{vST}, {S(R_WS)}, s92 offen offset:{128 * hf} sc1']
        if hf == 0:
            g.append(f'v_xor_b32 v{XX + ap}, v{t_}, v{t_ + 1}')
        else:
            g.append(f'v_bitop3_b32 v{XX + ap}, v{XX + ap}, v{t_}, v{t_ + 1} {XOR3}')
        return g

    def skew(lists):
        out = []
        n = len(lists)
        for step in range(n + 1):
            if step < n:
                out += lists[step][:2]
            if step > 0:
                out += lists[step - 1][2:]
        return out

    def pv(t):
        seq = [(ks, blk) for ks in range(4) for blk in range(4)]
        if t == 3:
            seq = [(ks, 2 * pr + k) for pr in range(2) for ks in range(4) for k in range(2)]
        PFm = (lambda ks: 192 + 4 * ks) if t == 3 else (lambda ks: PF + 4 * (ks % 2))
        shadow = skew([half_store(ap, 0) for ap in range(8)]) if t == 3 else []

        def rd(n):
            ks, blk = seq[n]
            for tau in range(2):
                a(f'ds_read_b64_tr_b16 {vr(BFS[n % NB] + 2 * tau, 2)}, v{TAL + blk + 4 * (ks // 2)} offset:{32768 * (ks % 2) + 16384 * BUF[t] + 1024 * tau}')

        def p_rd(ks):
            a(f'ds_read_b128 {vr(PFm(ks), 4)}, v{vPR} offset:{4096 * t + 1024 * ks}')
        a(f's_mov_b32 s{S_CNT}, {SPIN * 40}')
        a('s_mov_b32 s95, 2')
        a.label(f'L_pp{t}')
        a(f'ds_read_b32 v{FLG}, v10 offset:{F_PS + 16 * t}')
        a('s_waitcnt lgkmcnt(0)')
        a(f'v_cmp_ne_u32 vcc, s95, v{FLG}')
        a(f's_cbranch_vccnz L_ps{t}')
        a.label(f'L_pg{t}')
        p_rd(0)
        ops = ['P0']

        def issue_rd(n):
            rd(n)
            ops.extend([f'R{n}', f'R{n}'])
        for n in range(DIST):
            issue_rd(n)
            if n == 1:
                p_rd(1)
                ops.append('P1')
        for n in range(16):
            ks, blk = seq[n]
            need = max(i for i, x in enumerate(ops) if x in (f'R{n}', f'P{ks}'))
            a(f's_waitcnt lgkmcnt({min(15, len(ops) - 1 - need)})')
            if t == 0 and blk == 3:
                a(f'ds_write_b32 v7, v35 offset:{F_DONE}')
                ops.append('W')
            c = '0' if (t == 0 and ks == 0) else vr(O_ + 16 * blk, 16)
            a(f'v_mfma_f32_32x32x16_bf16 {vr(O_ + 16 * blk, 16)}, {vr(PFm(ks), 4)}, {vr(BFS[n % NB], 4)}, {c}')
            if t == 0 and blk == 1:
                a('v_add_u32 v35, 1, v35')
            if t < 3 and n in (3, 7):
                p_rd(2 + n // 4)
                ops.append(f'P{2 + n // 4}')
            if t == 3 and n in (0, 1):
                p_rd(2 + n)
                ops.append(f'P{2 + n}')
            if n + DIST < 16:
                issue_rd(n + DIST)
            if n >= 10:
                for _ in range(6):
                    if shadow:
                        a(shadow.pop(0))
        for ins in shadow:
            a(ins)

    pv(0)
    stamp(3)
    pv(1)
    stamp(4)
    a('v_mov_b32 v5, 5')
    a(f'ds_write_b32 v7, v5 offset:{F_DONE}')
    lds_wait(10, F_DONE, 5, 5, 0)
    for j in range(16):
        if j % 2 == 0:
            a(f's_waitcnt vmcnt({14 - j + o.r3})')
        a(f'ds_write_b128 v9, {vr(TR + 4 * j, 4)} offset:{1024 * j + 16384}')
    a('v_mov_b32 v5, 3')
    a(f'ds_write_b32 v7, v5 offset:{F_LAND}')
    stamp(5)
    if o.r3:
        for j in range(o.r3):
            if j % 2 == 0:
                a(f's_waitcnt vmcnt({o.r3 - 2 - j})')
            a(f'ds_write_b128 v9, {vr(TR + 64 + 4 * j, 4)} offset:{1024 * j}')
        a('v_mov_b32 v5, 4')
        a(f'ds_write_b32 v7, v5 offset:{F_LAND}')
    pv(2)
    stamp(6)
    a('v_mov_b32 v35, 6')
    pv(3)
    stamp(7)

    def l_reads():
        a(f'ds_read_b32 v{FLG}, v10 offset:{F_LSEQ}')
        a(f'ds_read_b128 v[172:175], v{vRL}')
        a(f'ds_read_b32 v168, v{vRM}')
    l_reads()
    lists = [half_store(ap, 1) for ap in range(8)]
    for ap in range(8):
        if ap == o.rwait - 1:
            lists[ap].append(f'ds_write_b32 v7, v35 offset:{F_DONE}')
    for ins in skew(lists):
        a(ins)
    a('s_waitcnt lgkmcnt(0)')
    a(f'v_cmp_ne_u32 vcc, 1, v{FLG}')
    for k in range(4):
        dpp('v_xor_b32', XX + 2 * k, XX + 2 * k, XX + 2 * k, 'row_ror:8', 0x3)
    a('s_cbranch_vccnz L_lslow')
    a.label('L_lok')
    for k in range(4):
        dpp('v_xor_b32', XX + 2 * k, XX + 2 * k + 1, XX + 2 * k + 1, 'row_ror:8', 0xc)
    a('v_add_f32 v172, v172, v173')
    for m in range(2):
        dpp('v_xor_b32', XX + 4 * m, XX + 4 * m, XX + 4 * m, 'row_half_mirror', 0x5)
    a('v_add_f32 v174, v174, v175')
    for m in range(2):
        dpp('v_xor_b32', XX + 4 * m, XX + 4 * m + 2, XX + 4 * m + 2, 'row_half_mirror', 0xa)
    a('v_add_f32 v169, v172, v174')
    for m in range(2):
        dpp('v_xor_b32', XX + 4 * m, XX + 4 * m, XX + 4 * m, 'quad_perm:[1,0,3,2]')
    a(f'v_bitop3_b32 v171, v168, v169, s{S_TAG} {XOR3}')
    for m in range(2):
        dpp('v_xor_b32', 170 if m == 0 else XX + 4, XX + 4 * m, XX + 4 * m, 'quad_perm:[2,3,0,1]')
    ex(0x2222222222222222)
    a(f'v_mov_b32 v170, v{XX + 4}')
    ex(0x3333333333333333)
    a('v_xor_b32 v171, v171, v170')
    a(f'buffer_store_dwordx4 v[168:171], v{vRC}, {S(R_WS)}, s97 offen sc1')
    if o.stamps:
        stamp(8)
        a('s_waitcnt vmcnt(0)')
        stamp(9)
        a('s_cmp_lg_u32 s3, 0')
        a('s_cbranch_scc1 L_end')
        dump_stamps(11, 1)
    a('s_endpgm')
    a.label('L_lslow')
    l_reads()
    a('s_waitcnt lgkmcnt(0)')
    a(f'v_cmp_ne_u32 vcc, 1, v{FLG}')
    a('s_cbranch_vccz L_lok')
    a(f's_sub_u32 s{S_CNT}, s{S_CNT}, 1')
    a('s_cbranch_scc0 L_lslow')
    a('s_branch L_lok')
    for t in range(4):
        a.label(f'L_ps{t}')
        a(f'v_cmp_ne_u32 vcc, 3, v{FLG}')
        a(f's_cbranch_vccz L_pr{t}')
        a('s_sleep 1')
        a(f's_sub_u32 s{S_CNT}, s{S_CNT}, 1')
        a(f's_cbranch_scc0 L_pp{t}')
        a(f's_branch L_pg{t}')
        a.label(f'L_pr{t}')
        if t > 0:
            for jq in range(4):
                a(f'ds_read_b128 {vr(44 + 4 * jq, 4)}, v{vAR} offset:{128 * t + 32 * jq}')
            a('s_waitcnt lgkmcnt(0)')
            a('s_nop 7')
            for blk in range(4):
                for j in range(16):
                    a(f'v_mul_f32 v{O_ + 16 * blk + j}, v{O_ + 16 * blk + j}, v{44 + j}')
        a(f's_branch L_pg{t}')

    a.label('L_comp')
    QA = 128
    vMW, vFW, vPW, vFR, vAW, vMR = 6, 7, 8, 10, 11, 9
    NM, LL = 12, 14
    SS, PKS, EX4, AA, AQ, WK = 32, 40, 44, 48, 56, 64
    NA = 8
    a('v_lshlrev_b32 v16, 2, v1')
    a(f'v_add_u32 v16, {FB}, v16')
    a('v_mov_b32 v17, 0')
    a('ds_write_b32 v16, v17')
    a('s_waitcnt lgkmcnt(0)')
    a('s_barrier')
    a(f's_load_dword s{S_TAG}, s[{R_WS}:{R_WS + 1}], {WS_EPOCH}')
    srd_ptr([R_CKV])
    consts()
    a(f's_add_u32 s63, s90, {TS + 15 * 1024}')
    if o.mix:
        a(f's_xor_b32 s63, s63, {MX[1] ^ M3}')
    a(f's_add_u32 s99, s90, {3 * TS}')
    if M3:
        a(f's_xor_b32 s99, s99, {M3}')
    if o.r3:
        a(f's_add_u32 s99, s99, {o.r3 * 1024}')
        gm_ = (0, MX[0], MX[0] ^ MX[1], MX[1])[(o.r3 // 4) % 4]
        if gm_:
            a(f's_xor_b32 s99, s99, {gm_}')
    a(f's_add_u32 m0, s91, {o.r3 * 1024}')
    for j in range(8):
        a(f'v_xor_b32 v{104 + j}, {32 * j}, v2')
    a('v_xor_b32 v21, 0xe0, v2')
    a(f'buffer_load_dwordx4 v[24:27], v21, {S(R_CKV)}, s63 offen nt')
    a('v_mov_b32 v20, 128')
    a('global_load_dword v100, v20, s[86:87] sc1')
    if o.tlb & 1:
        a('v_lshrrev_b32 v20, 1, v4')
        a('v_xor_b32 v22, v20, v4')
        a('v_and_b32 v22, 1, v22')
        a(f'v_lshlrev_b32 v22, {o.mb1}, v22')
        a(f'v_lshl_add_u32 v22, v20, {o.mb2}, v22')
        a('v_xor_b32 v22, s90, v22')
        a('v_lshl_add_u32 v22, v4, 12, v22')
        a('v_bfe_u32 v20, v1, 2, 2')
        a('v_lshl_add_u32 v22, v20, 16, v22')
        ex(0xffff)
        a(f'buffer_load_dword v101, v22, {S(R_CKV)}, 0 offen offset:3968 nt')
        ex(-1)
    if o.tlb & 2:
        a('v_lshlrev_b32 v22, 17, v1')
        a('s_lshl_b32 s94, s3, 15')
        a(f's_add_u32 s94, s94, {WS_OP}')
        ex(0x1ffffffff)
        a(f'buffer_load_dword v102, v22, {S(R_WS)}, s94 offen nt')
        ex(-1)
    a(f's_add_u32 s6, s91, {16384 + 15 * 1024}')
    a('v_add_u32 v28, s6, v2')
    a('s_lshl_b32 s90, s4, 15')
    a('s_lshl_b32 s95, s3, 13')
    a('s_add_u32 s90, s90, s95')
    if WS_QA:
        a(f's_add_u32 s90, s90, {WS_QA}')
    a('s_add_u32 s92, s90, 4096')
    a(f's_lshl_b32 s93, s3, {8 if o.hc else 12}')
    a(f's_lshl_b32 s94, s4, {10 if o.hc else 3}')
    a('s_add_u32 s93, s93, s94')
    a(f's_add_u32 s93, s93, {WS_QAH}')
    a('v_lshrrev_b32 v16, 1, v1')
    a(f'v_lshlrev_b32 v16, {3 if o.hc else 7}, v16')
    a('s_and_b32 s94, s3, 1')
    a('s_lshl_b32 s94, s94, 7')
    a('v_xor_b32 v17, s94, v2')
    a(f's_add_u32 s95, s95, {SB}')
    a('v_add_u32 v17, s95, v17')
    for i in range(4):
        a(f'v_xor_b32 v{96 + i}, {32 * i}, v17')
    a('v_lshrrev_b32 v22, 5, v1')
    a('v_and_b32 v29, 1, v3')
    a('v_lshlrev_b32 v23, 4, v29')
    a('v_lshl_add_u32 v23, v22, 9, v23')
    a('v_bfe_u32 v18, v1, 3, 1')
    a('v_lshl_add_u32 v18, v18, 2, v4')
    a('v_lshl_add_u32 v18, v18, 5, v23')
    a('v_lshl_add_u32 v18, v11, 10, v18')
    a(f'v_add_u32 v18, {SB}, v18')
    a('v_bfe_u32 v20, v1, 2, 2')
    a('v_lshl_add_u32 v21, v4, 2, v20')
    a('v_lshl_add_u32 v19, v21, 10, v23')
    a('v_and_b32 v21, 14, v21')
    a('v_lshl_add_u32 v19, v21, 4, v19')
    a('v_add_u32 v19, s91, v19')
    for i in range(8):
        a(f'v_xor_b32 v{AA + i}, {32 * i}, v19')
        a(f'v_xor_b32 v{AQ + i}, {32 * i}, v18')
    a('v_and_b32 v20, 31, v1')
    a('s_lshl_b32 s95, s3, 2')
    a(f's_add_u32 s95, s95, {L_MAX}')
    a(f'v_lshl_add_u32 v{vMW}, v20, 4, s95')
    a(f'v_lshlrev_b32 v{vPW}, 9, v22')
    a(f'v_lshl_add_u32 v{vPW}, v11, 4, v{vPW}')
    a(f'v_lshl_add_u32 v{vPW}, v29, 3, v{vPW}')
    a('s_lshl_b32 s95, s3, 10')
    a(f's_add_u32 s95, s95, {L_P}')
    a(f'v_add_u32 v{vPW}, s95, v{vPW}')
    a(f'v_lshlrev_b32 v{vMR}, 4, v11')
    a(f'v_add_u32 v{vMR}, {L_MAX}, v{vMR}')
    a(f'v_lshlrev_b32 v{vAW}, 2, v11')
    a(f'v_add_u32 v{vAW}, {L_ALPHA}, v{vAW}')
    a(f'v_mov_b32 v{LL}, 0')
    a(f'v_mov_b32 v{LL + 1}, 0')
    a('v_mov_b32 v0, 1')
    a('v_mov_b32 v5, 2')
    a(f's_mov_b32 s98, {f32bits(float(o.thr))}')
    a('s_mov_b32 s96, 1')
    a(f's_and_b32 s94, s2, {o.nh - 1}')
    a('s_lshl_b32 s94, s94, 7')
    a(f's_add_u32 s94, s94, {WS_HU}')
    a(f's_add_u32 s0, s{R_WS}, s94')
    a(f's_addc_u32 s1, s{R_WS + 1}, 0')
    get_tag()
    if o.sprio:
        a(f's_setprio {o.sprio}')
    HR_ = 30

    def q_row(i):
        a(f'buffer_load_dwordx4 {vr(QA + 4 * i, 4)}, v2, {S(R_WS)}, s{90 if i < 4 else 92} offen offset:{1024 * (i % 4)} sc1')
    if o.hone:
        a('s_cmp_eq_u32 s3, 0')
        a('s_cbranch_scc1 L_hu0')
        a(f'v_mov_b32 v20, {FB}')
        lds_wait(20, F_HUS, 1, 19, 0)
        a('s_branch L_hugo2')
        a.label('L_hu0')
    a(f's_mov_b32 s{S_CNT}, {SPIN}')
    a.label('L_hu')
    a('s_load_dword s94, s[0:1], 0 glc')
    a('s_waitcnt lgkmcnt(0)')
    a(f's_cmp_eq_u32 s94, s{S_TAG}')
    a('s_cbranch_scc1 L_hugo')
    if o.hsl:
        a(f's_sleep {o.hsl}')
    a(f's_sub_u32 s{S_CNT}, s{S_CNT}, 1')
    a('s_cbranch_scc0 L_hu')
    a.label('L_hugo')
    if o.hone:
        a(f'ds_write_b32 v{vFW}, v0 offset:{F_HUS}')
        a.label('L_hugo2')
    a(f's_mov_b32 s{S_CNT}, {SPIN}')
    a.label('L_qload')
    a(f'buffer_load_dwordx2 {vr(HR_, 2)}, v16, {S(R_WS)}, s93 offen sc1')
    for i in range(8):
        q_row(i)
    a(f'ds_write_b32 v{vFW}, v0 offset:{F_HUS}')
    stamp(8)
    a('s_waitcnt vmcnt(8)')
    a(f'v_bitop3_b32 v21, v{HR_}, v{HR_ + 1}, s{S_TAG} {XOR3}')
    for i in range(8):
        a(f's_waitcnt vmcnt({7 - i})')
        a(f'ds_write_b128 v{96 + i % 4}, {vr(QA + 4 * i, 4)} offset:{1024 * i}')
        xor_chain(19, ([19] if i else []) + list(range(QA + 4 * i, QA + 4 * i + 4)))
    for c in ('quad_perm:[1,0,3,2]', 'quad_perm:[2,3,0,1]', 'row_ror:4', 'row_ror:8'):
        dpp('v_xor_b32', 19, 19, 19, c)
        if c == 'quad_perm:[1,0,3,2]':
            a(f'v_xor_b32 v19, v19, v{HR_}')
    swap_step('v_xor_b32', 19, 20, 16)
    swap_step('v_xor_b32', 19, 20, 32)
    a('v_or_b32 v19, v19, v21')
    a('v_cmp_ne_u32 vcc, 0, v19')
    a('s_cbranch_vccz L_qdone')
    a(f's_sub_u32 s{S_CNT}, s{S_CNT}, 1')
    a('s_cbranch_scc0 L_qload')
    a.label('L_qdone')
    a(f'ds_write_b32 v{vFW}, v0 offset:{F_QST}')
    lds_wait(vFW, F_LAND, 1, 19)
    lds_wait(vFR, F_QST, 1, 19, 0)
    stamp(3)

    def a_read(m, buf):
        a(f'ds_read_b128 {vr(WK + 4 * (m % NA), 4)}, v{AA + m // 2} offset:{256 * (m % 2) + 16384 * buf}')

    def q_read(m):
        for hh in range(2):
            a(f'ds_read_b128 {vr(QA + 64 * hh + 4 * m, 4)}, v{AQ + m // 2} offset:{16384 * hh + 256 * (m % 2)}')

    def s_mfma(st, zero):
        for hh in range(2):
            mfma16(SS + 4 * hh, WK + 4 * (st % NA), QA + 64 * hh + 4 * st, zero and st == 0)
    for st in range(4):
        q_read(st)
        a_read(st, 0)
    for st in range(16):
        a(f's_waitcnt lgkmcnt({3 * min(3, 15 - st)})')
        s_mfma(st, True)
        if st + 4 < 16:
            q_read(st + 4)
            a_read(st + 4, 0)

    def max_xchg(lbl, floor):
        a('v_mov_b32 v18, s96')
        for hh in range(2):
            a(f'v_max3_f32 v{16 + hh}, v{SS + 4 * hh}, v{SS + 4 * hh + 1}, v{SS + 4 * hh + 2}')
            if floor:
                a(f'v_max3_f32 v{16 + hh}, v{16 + hh}, v{SS + 4 * hh + 3}, 0')
            else:
                a(f'v_max_f32 v{16 + hh}, v{16 + hh}, v{SS + 4 * hh + 3}')
        a('v_permlane16_swap_b32 v16, v17')
        a('v_max_f32 v16, v16, v17')
        swap_step('v_max_f32', 16, 17, 32)
        a(f'ds_write_b32 v{vMW}, v16')
        a(f'ds_write_b32 v{vFW}, v18 offset:{F_MSEQ}')
        a(f's_mov_b32 s{S_CNT}, {SPIN * 40}')
        a.label(lbl)
        a(f'ds_read_b32 v18, v{vFR} offset:{F_MSEQ}')
        a(f'ds_read_b128 {vr(WK, 4)}, v{vMR}')
        a(f'ds_read_b128 {vr(WK + 4, 4)}, v{vMR} offset:256')
        a('s_waitcnt lgkmcnt(0)')
        a('v_cmp_gt_u32 vcc, s96, v18')
        a(f's_cbranch_vccz {lbl}go')
        a(f's_sub_u32 s{S_CNT}, s{S_CNT}, 1')
        a(f's_cbranch_scc0 {lbl}')
        a.label(lbl + 'go')
        for hh in range(2):
            a(f'v_max3_f32 v{16 + hh}, v{WK + 4 * hh}, v{WK + 4 * hh + 1}, v{WK + 4 * hh + 2}')
            a(f'v_max_f32 v{16 + hh}, v{16 + hh}, v{WK + 4 * hh + 3}')
            for j in range(4):
                a(f'v_sub_f32 v{SS + 4 * hh + j}, v{SS + 4 * hh + j}, v{16 + hh}')

    def soft(t):
        g = []
        for hh in range(2):
            for j in range(4):
                g.append(f'v_exp_f32 v{EX4 + j}, v{SS + 4 * hh + j}')
            g.append(f'v_cvt_pk_bf16_f32 v{PKS + 2 * hh}, v{EX4}, v{EX4 + 1}')
            g.append(f'v_cvt_pk_bf16_f32 v{PKS + 2 * hh + 1}, v{EX4 + 2}, v{EX4 + 3}')
            g.append(f'ds_write_b64 v{vPW}, {vr(PKS + 2 * hh, 2)} offset:{4096 * t + 256 * hh}')
        return g

    def l_commit():
        for k in range(2):
            for hh in range(2):
                a(f'v_dot2_f32_bf16 v{LL + hh}, v{PKS + 2 * hh + k}, s{S_ONES}, v{LL + hh}')
    max_xchg('L_m0', False)
    for ins in soft(0):
        a(ins)
    a(f'ds_write_b32 v{vFW}, v5 offset:{F_PS}')
    a('ds_write_b128 v28, v[24:27]')
    a(f'ds_write2_b32 v{vAW}, v16, v17 offset0:128 offset1:144')
    for hh in range(2):
        a(f'v_sub_f32 v{NM + hh}, 0, v{16 + hh}')
    l_commit()
    a('s_cmp_lg_u32 s3, 1')
    a('s_cbranch_scc1 L_nom0')
    a('v_permlane16_swap_b32 v16, v17')
    a('s_lshl_b32 s94, s4, 12')
    a('s_lshl_b32 s95, s5, 7')
    a('s_add_u32 s94, s94, s95')
    a(f's_add_u32 s94, s94, {WS_M0}')
    a('v_lshlrev_b32 v18, 2, v1')
    a(f'v_xor_b32 v16, s{S_TAG}, v16')
    ex(0xffffffff)
    a(f'buffer_store_dword v16, v18, {S(R_WS)}, s94 offen sc1')
    ex(-1)
    a.label('L_nom0')
    stamp(4)
    PD = 6
    for t in range(1, 4):
        lbl = f'L_l{t}'
        a(f's_mov_b32 s{S_CNT}, {SPIN * 40}')
        for hh in range(2):
            for j in range(4):
                a(f'v_mov_b32 v{SS + 4 * hh + j}, v{NM + hh}')
        def t3_wait():
            a('s_add_u32 s94, s3, 1')
            lds_wait(vFR, F_DONE, 's94', 18, 0)

        def t3_row(j):
            a(f'buffer_load_dwordx4 v{104 + j // 2}, {S(R_CKV)}, s99 offen offset:{(j % 4) * 1024} nt lds')
            if j % 4 == 3 and j < 15:
                a('s_add_u32 s99, s99, 4096')
                if o.mix:
                    a(f's_xor_b32 s99, s99, {MX[(j // 4) % 2]}')
                a('s_add_u32 m0, m0, 4096')
        if (t == 2 and o.t3 == 0) or (t == 1 and o.t3 == 1):
            def s_go():
                lb = a.uid('nogo')
                a('s_cmp_lg_u32 s3, 0')
                a(f's_cbranch_scc1 {lb}')
                a('s_sub_u32 s92, s2, 128')
                a('s_lshl_b32 s92, s92, 7')
                a(f's_add_u32 s92, s92, {WS_GO}')
                a(f'v_mov_b32 v18, s{S_TAG}')
                a('v_lshlrev_b32 v19, 2, v1')
                ex(0xffffffff)
                a(f'buffer_store_dword v18, v19, {S(R_WS)}, s92 offen sc1')
                ex(-1)
                a.label(lb)
            t3_wait()
            if o.gon == 98:
                s_go()
            for j in range(o.r3, 16):
                t3_row(j)
            if o.gon == 99:
                s_go()
            stamp(1)
            a(f's_mov_b32 s{S_CNT}, {SPIN * 40}')
        if t < 3 or o.r3:
            a.label(lbl)
            a(f'ds_read_b32 v18, v{vFW} offset:{F_LAND}')
            a('s_waitcnt lgkmcnt(0)')
            a(f'v_cmp_ge_u32 vcc, {t}, v18')
            a(f's_cbranch_vccz {lbl}go')
            a('s_sleep 1')
            a(f's_sub_u32 s{S_CNT}, s{S_CNT}, 1')
            a(f's_cbranch_scc0 {lbl}')
            a.label(lbl + 'go')
        if t == 3:
            a('s_waitcnt vmcnt(0)')
            stamp(2)
        for st in range(PD):
            a_read(st, BUF[t])
        if t == 3 and o.rpos == 0:
            a('s_lshl_b32 s94, s4, 2')
            a('s_add_u32 s94, s94, 16')
            arrive(0, 30, 31, 's94')
        for st in range(16):
            a(f's_waitcnt lgkmcnt({min(PD - 1, 15 - st)})')
            s_mfma(st, False)
            if st + PD < 16:
                a_read(st + PD, BUF[t])
            if t == 1 and o.t3 >= 2:
                if st == o.t3:
                    t3_wait()
                    t3q = list(range(16))
                if st >= o.t3:
                    for _ in range(-(-16 // (16 - o.t3))):
                        if t3q:
                            t3_row(t3q.pop(0))
                if st == 15:
                    stamp(1)
        for k, ins in enumerate(soft(t)):
            a(ins)
            if k == 3:
                a(f'v_max3_f32 v19, v{SS}, v{SS + 1}, v{SS + 2}')
                a(f'v_max3_f32 v19, v{SS + 3}, v{SS + 4}, v19')
            if k == 10:
                a(f'v_max3_f32 v19, v{SS + 5}, v{SS + 6}, v19')
                a(f'v_max_f32 v19, v{SS + 7}, v19')
                a('v_cmp_lt_f32 vcc, s98, v19')
        a('s_cmp_eq_u64 vcc, 0')
        a('s_cselect_b32 s91, 2, 1')
        a('v_mov_b32 v18, s91')
        a(f'ds_write_b32 v{vFW}, v18 offset:{F_PS + 16 * t}')
        stamp(4 + t)
        if t == 3 and o.rpos == 1:
            a('s_lshl_b32 s94, s4, 2')
            a('s_add_u32 s94, s94, 16')
            arrive(0, 30, 31, 's94')
        a(f's_mov_b32 s{S_CNT}, {SPIN * 40}')
        a.label(f'L_c{t}')
        a(f'ds_read_b32 v18, v{vFR} offset:{F_PS + 16 * t}')
        a('s_waitcnt lgkmcnt(0)')
        a('v_cmp_ne_u32 vcc, 2, v18')
        a(f's_cbranch_vccnz L_cs{t}')
        a.label(f'L_cg{t}')
        l_commit()
    a('s_lshl_b32 s94, s4, 2')
    a('s_add_u32 s94, s94, 16')
    a(f'v_permlane16_swap_b32 v{LL}, v{LL + 1}')
    a(f'v_add_f32 v{LL}, v{LL}, v{LL + 1}')
    swap_step('v_add_f32', LL, LL + 1, 32)
    a(f'ds_write_b32 v{vMW}, v{LL}')
    a(f'ds_write_b32 v{vFW}, v0 offset:{F_LSEQ}')
    if o.rdelay:
        a(f's_sleep {o.rdelay}')
    if o.rpos == 2:
        arrive(0, 30, 31, 's94')
    a('s_cmp_lg_u32 s3, 0')
    a('s_cbranch_scc1 L_norel2')
    a('s_lshl_b32 s94, s4, 14')
    a(f's_add_u32 s94, s94, {WS_OF}')
    a('s_add_u32 s95, s94, 8192')
    a('v_lshlrev_b32 v31, 7, v1')
    a(f'v_mov_b32 v29, s{S_TAG}')
    a('s_waitcnt vmcnt(0)')
    a('v_readfirstlane_b32 s1, v30')
    a('s_and_b32 s1, s1, 31')
    a('s_cmp_lg_u32 s1, 31')
    a('s_cbranch_scc1 L_norel2')
    if o.rwait:
        lds_wait(vFR, F_DONE, 6, 18, 0)
    if o.nl < 64:
        ex((1 << o.nl) - 1)
    a(f'buffer_store_dword v29, v31, {S(R_WS)}, s94 offen sc1')
    if o.nl > 64:
        a(f'buffer_store_dword v29, v31, {S(R_WS)}, s95 offen sc1')
    a.label('L_norel2')
    stamp(9)
    a.label('L_send')
    if o.stamps:
        a('s_memrealtime s[90:91]')
        a('s_cmp_lg_u32 s3, 0')
        a('s_cbranch_scc1 L_end')
        dump_stamps(14, 0)
    a('s_endpgm')
    for t in range(1, 4):
        a.label(f'L_cs{t}')
        a('v_cmp_eq_u32 vcc, 0, v18')
        a(f's_cbranch_vccz L_ex{t}')
        a(f's_sub_u32 s{S_CNT}, s{S_CNT}, 1')
        a(f's_cbranch_scc0 L_c{t}')
        a(f's_branch L_cg{t}')
        a.label(f'L_ex{t}')
        a('s_add_u32 s96, s96, 1')
        max_xchg(f'L_mx{t}', True)
        for hh in range(2):
            a(f'v_exp_f32 v{20 + hh}, -v{16 + hh}')
            a(f'v_sub_f32 v{NM + hh}, v{NM + hh}, v{16 + hh}')
            a(f'v_sub_f32 v{22 + hh}, 0, v{NM + hh}')
            a(f'v_mul_f32 v{LL + hh}, v{LL + hh}, v{20 + hh}')
        a(f'ds_write2_b32 v{vAW}, v20, v21 offset0:{32 * t} offset1:{32 * t + 16}')
        a(f'ds_write2_b32 v{vAW}, v22, v23 offset0:128 offset1:144')
        for ins in soft(t):
            a(ins)
        a('v_mov_b32 v18, 3')
        a(f'ds_write_b32 v{vFW}, v18 offset:{F_PS + 16 * t}')
        lds_wait(vFR, F_PS + 16 * t, 3, 18, 0)
        a(f's_branch L_cg{t}')
    a.label('L_end')
    a('s_endpgm')

    txt = HEADER
    txt += f'; @launch grid=(256,1,1) block=(512,1,1) lds={LDS_TOTAL}\n'
    txt += '.amdgcn_target "amdgcn-amd-amdhsa--gfx950"\n.text\n'
    txt += a.finalize()
    txt += f""".section .rodata,"a"
.p2align 6
.amdhsa_kernel {name}
  .amdhsa_next_free_vgpr 256
  .amdhsa_next_free_sgpr 102
  .amdhsa_accum_offset 256
  .amdhsa_group_segment_fixed_size 0
  .amdhsa_kernarg_size 104
  .amdhsa_user_sgpr_count 2
  .amdhsa_user_sgpr_kernarg_segment_ptr 1
  .amdhsa_system_sgpr_workgroup_id_x 1
.end_amdhsa_kernel
"""
    return txt


if __name__ == '__main__':
    o = Opt()
    for kv in sys.argv[2:]:
        k, v = kv.split('=')
        setattr(o, k, v.replace('+', ' ') if k == 'r64' else int(v))
    open(sys.argv[1], 'w').write(gen(o))
```

```python
import sys
sys.path.insert(0, 'dev')
from asmdsl import Asm
from layout17 import *

NAME = 'sequential_preLN__compressed_kv_cla__glu_gated_geglu__decode'
HEADER = open('cdna_kernels/' + NAME + '.s.ref').read().split('; Override launch')[0]
LDS_TOTAL = 163840
SB = 130048
L_P = 131072
FB = 162816
F_LAND, F_QST, F_MSEQ, F_DONE, F_LSEQ, F_HUS, F_PS = 0, 16, 32, 48, 64, 80, 96
L_MAX = FB + 512
L_ALPHA = L_P + 16384
L_MFIN = L_ALPHA + 512
A_WQ, A_WUK, A_WUV, A_WO, A_X, A_C, A_D = 0, 32768, 98304, 98304, 131072, 132096, 135168
A_WD, A_ACT, A_H = 65536, 138240, 139264

R_X, R_WS, R_CKV, R_WQ, R_WUK, R_WUV, R_WO, R_WG, R_WU, R_WD, R_OUT, R_ACT = [8 + 4 * i for i in range(12)]
SIZES = {R_X: 4096, R_WS: WS_END, R_CKV: 32 << 20, R_WQ: 4 << 20, R_WUK: 4 << 20, R_WUV: 4 << 20, R_WO: 4 << 20,
         R_WG: 512 * 2752, R_WU: 512 * 2752, R_WD: 1376 * 1024, R_OUT: 4096, R_ACT: 43 * 256}
PTR = {R_X: 64, R_CKV: 66, R_WQ: 68, R_WUK: 70, R_WUV: 72, R_WO: 74, R_WG: 78, R_WU: 80, R_WD: 82, R_OUT: 84}
S_TAG, S_ONES, S_LO1, S_HI1, S_CNT, S_MASK = 56, 57, 58, 59, 60, 62
S_XCC, S_LOC = 52, 53
SPIN = 200000
XOR3 = 'bitop3:0x96'


class Opt:
    stamps = 0
    w0 = 1
    n0 = 2
    window = 20
    w3 = 16
    wwin = 8
    sleep = 1
    sleep_long = 6
    stsleep = 3
    thr = 60
    dbgwg = 192
    hold = 0
    dsleep = 1
    ddelay = 0
    gon = 98
    fine = 0
    hupos = 1
    edelay = 0
    efwin = 4
    sw = 1
    efgo = 0
    qdelay = 0
    hprio = 1
    nsamp = 2
    rdelay = 0
    lw = 12
    diag = 0
    rpos = 1
    owin = 3
    ef0 = 2
    il = 0
    mix = 1
    loc = 1
    egate = 1
    lprio = 2
    rwait = 5
    qloc = 0
    hc = 1
    t3 = 0
    nl = 32
    pf = 0
    emask = 0xd1d
    emask2 = 0x1d
    m3 = 0
    dmask = 0xe2e2
    dfw = 0
    r3 = 4
    dsite = 0
    didx = 0
    dx = 8
    mw = 1 << 18
    nh = 64
    hone = 1
    hsl = 0
    osl = 0
    oone = 0
    osc = 0
    wb = 0
    tlb = 0
    arrpos = 2
    earlym = 1
    mb1 = 20
    mb2 = 19
    efn = 2
    pvprio = 0
    sprio = 0
    r64 = 'nt'
    wgo = 1
    esleep = 0
    fdelay = 0
    now = 0
    w1 = 5
    n1 = 0


def vr(a, n):
    return f'v[{a}:{a + n - 1}]' if n > 1 else f'v{a}'


def S(base):
    return f's[{base}:{base + 3}]'


def gen(o):
    a = Asm()
    name = NAME + '_kernel'
    o.st3 = o.stamps == 3

    def ex(mask):
        if mask == -1:
            a('s_mov_b64 exec, -1')
        elif mask <= 64:
            a(f's_mov_b64 exec, {mask}')
        else:
            a(f's_mov_b32 exec_lo, 0x{mask & 0xffffffff:x}')
            a(f's_mov_b32 exec_hi, 0x{mask >> 32:x}')

    def dpp(op, d, s0, s1, ctrl, bank=0xf):
        a(f'{op}_dpp v{d}, v{s0}, v{s1} {ctrl} row_mask:0xf bank_mask:0x{bank:x}')

    def swap_step(op, v, t, which):
        a(f'v_mov_b32 v{t}, v{v}')
        a(f'v_permlane{which}_swap_b32 v{v}, v{t}')
        a(f'{op} v{v}, v{v}, v{t}')

    def fine2(r):
        if o.fine == 2:
            lb = a.uid('f2')
            a('s_cmp_lg_u32 s97, 0')
            a(f's_cbranch_scc1 {lb} ;noflush')
            a(f's_memtime s[{r}:{r + 1}]')
            a.label(lb)

    def f3(r):
        if o.fine == 3:
            a(f's_memtime s[{r}:{r + 1}]')

    def stamp(idx):
        if o.stamps:
            a(f's_memrealtime s[{64 + 2 * idx}:{65 + 2 * idx}]')

    site = [0]

    def dump_stamps(n, grp, dbg=None):
        site[0] += 1
        if o.dsite:
            if o.dsite == site[0]:
                r = 100 if o.didx == 0 else 64 + 2 * o.didx
                lb = a.uid('dg')
                if o.dx < 8:
                    a('s_and_b32 s92, s2, 7')
                    a(f's_cmp_lg_u32 s92, {o.dx}')
                    a('s_cbranch_scc1 L_end')
                a('s_waitcnt lgkmcnt(0)')
                a(f's_mov_b32 s62, s{r}')
                a.label(lb)
                a('s_memrealtime s[92:93]')
                a('s_waitcnt lgkmcnt(0)')
                a('s_sub_u32 s92, s92, s62')
                a('s_cmp_lt_u32 s92, 4000')
                a(f's_cbranch_scc1 {lb}')
            return
        a('s_waitcnt lgkmcnt(0)')
        a('s_mov_b64 exec, -1')
        a('v_mov_b32 v3, 0')
        a('v_writelane_b32 v3, s100, 0')
        for i in range(1, n):
            a(f'v_writelane_b32 v3, s{64 + 2 * i}, {i}')
        a('v_mbcnt_lo_u32_b32 v4, -1, 0')
        a('v_lshlrev_b32 v4, 2, v4')
        a('s_lshl_b32 s90, s2, 7')
        a(f's_add_u32 s90, s90, {WS_STAMP + 64 * grp}')
        ex(0xffff)
        a(f'buffer_store_dword v3, v4, {S(R_WS)}, s90 offen')
        if o.stamps == 2 and dbg:
            lb = a.uid('nodbg')
            a('v_subrev_u32 v3, s100, v3')
            if dbg == 'h':
                a(f's_cmp_lg_u32 s2, {o.dbgwg}')
                a(f's_cbranch_scc1 {lb}')
                ex(0x7fe)
                a('global_store_dword v4, v3, s[86:87] offset:-4')
            else:
                a('s_cmp_lg_u32 s2, 0')
                a(f's_cbranch_scc1 {lb}')
                ex(0x3e8)
                a('v_mbcnt_lo_u32_b32 v4, exec_lo, 0')
                a('v_lshlrev_b32 v4, 2, v4')
                a('global_store_dword v4, v3, s[86:87] offset:40')
            a.label(lb)

    def xor_chain(tmp, regs, last=None):
        ops = [f'v{r}' for r in regs] + ([last] if last else [])
        a(f'v_bitop3_b32 v{tmp}, {ops[0]}, {ops[1]}, {ops[2]} {XOR3}')
        ops = ops[3:]
        while len(ops) >= 2:
            a(f'v_bitop3_b32 v{tmp}, v{tmp}, {ops[0]}, {ops[1]} {XOR3}')
            ops = ops[2:]
        if ops:
            a(f'v_xor_b32 v{tmp}, {ops[0]}, v{tmp}')

    def chk_sentinel(regs, tmp):
        rs = list(regs)
        a(f'v_max3_u32 v{tmp}, v{rs[0]}, v{rs[1]}, v{rs[2]}')
        rs = rs[3:]
        while len(rs) >= 2:
            a(f'v_max3_u32 v{tmp}, v{tmp}, v{rs[0]}, v{rs[1]}')
            rs = rs[2:]
        if rs:
            a(f'v_max_u32 v{tmp}, v{tmp}, v{rs[0]}')
        a(f'v_cmp_eq_u32 vcc, -1, v{tmp}')

    def poll(loads, check, sleep=None, wait='s_waitcnt vmcnt(0)'):
        L, Dn = a.uid('poll'), a.uid('pdone')
        a(f's_mov_b32 s{S_CNT}, {SPIN}')
        a.label(L)
        loads()
        a(wait)
        check()
        a(f's_cbranch_vccz {Dn}')
        sl = o.sleep if sleep is None else sleep
        if sl:
            a(f's_sleep {sl}')
        a(f's_sub_u32 s{S_CNT}, s{S_CNT}, 1')
        a(f's_cbranch_scc0 {L}')
        a.label(Dn)

    def lds_wait(addr, off, want, tmp, sleep=1):
        L, Dn = a.uid('lw'), a.uid('lwd')
        a(f's_mov_b32 s{S_CNT}, {SPIN * 40}')
        a.label(L)
        a(f'ds_read_b32 v{tmp}, v{addr} offset:{off}')
        a('s_waitcnt lgkmcnt(0)')
        a(f'v_cmp_gt_u32 vcc, {want}, v{tmp}')
        a(f's_cbranch_vccz {Dn}')
        if sleep:
            a(f's_sleep {sleep}')
        a(f's_sub_u32 s{S_CNT}, s{S_CNT}, 1')
        a(f's_cbranch_scc0 {L}')
        a.label(Dn)

    def nan_retry(tag, regs, again, go):
        a.label(tag)
        chk_sentinel(regs, 10)
        a(f's_cbranch_vccz {go}')
        a(f's_sub_u32 s{S_CNT}, s{S_CNT}, 1')
        a(f's_cbranch_scc0 {again}')
        a(f's_branch {go}')

    def mfma16(d, x, y, first):
        c = '0' if first else vr(d, 4)
        a(f'v_mfma_f32_16x16x32_bf16 {vr(d, 4)}, {vr(x, 4)}, {vr(y, 4)}, {c}')

    def srd(rs):
        for r in rs:
            a(f's_mov_b32 s{r + 2}, {SIZES[r]}')
            a(f's_mov_b32 s{r + 3}, 0x00020000')

    def srd_ptr(rs):
        for r in rs:
            if r == R_ACT:
                a(f's_add_u32 s{R_ACT}, s{R_WS}, {WS_ACT}')
                a(f's_addc_u32 s{R_ACT + 1}, s{R_WS + 1}, 0')
            else:
                a(f's_mov_b64 s[{r}:{r + 1}], s[{PTR[r]}:{PTR[r] + 1}]')

    def consts():
        a(f's_mov_b32 s{S_ONES}, 0x3f803f80')
        a(f's_mov_b32 s{S_LO1}, 0x3f80')
        a(f's_mov_b32 s{S_HI1}, 0x3f800000')
        a(f's_mov_b32 s{S_MASK}, 0xffff0000')

    def get_tag():
        a('s_waitcnt lgkmcnt(0)')
        a(f's_add_u32 s{S_TAG}, s{S_TAG}, 0x9e3779b9')

    def vF(d):
        a(f'v_bfe_u32 v{d}, v1, 2, 2')
        a(f'v_lshlrev_b32 v{d}, 8, v{d}')
        a(f'v_lshl_add_u32 v{d}, v3, 6, v{d}')
        a(f'v_lshl_add_u32 v{d}, v4, 4, v{d}')

    def tr64_addr(d, t):
        a(f'v_bfe_u32 v{t}, v1, 2, 2')
        a(f'v_lshl_add_u32 v{t}, v3, 3, v{t}')
        a(f'v_lshlrev_b32 v{d}, 6, v{t}')
        a(f'v_lshl_add_u32 v{d}, v4, 3, v{d}')

    def tr_op(dst, addr, off, tau):
        a(f'ds_read_b64_tr_b16 {vr(dst, 2)}, v{addr} offset:{off}')
        a(f'ds_read_b64_tr_b16 {vr(dst + 2, 2)}, v{addr} offset:{off + tau}')

    def red4_read(x, addr):
        ex(0xffffffff)
        for w in range(4):
            a(f'ds_read_b128 {vr(x + 4 * w, 4)}, v{addr} offset:{512 * w}')
        a('s_waitcnt lgkmcnt(2)')
        for i in range(4):
            a(f'v_add_f32 v{x + i}, v{x + i}, v{x + 4 + i}')
        a('s_waitcnt lgkmcnt(0)')
        for i in range(4):
            a(f'v_add_f32 v{x + 8 + i}, v{x + 8 + i}, v{x + 12 + i}')
        for i in range(4):
            a(f'v_add_f32 v{x + i}, v{x + i}, v{x + 8 + i}')

    def frag_addr(dst, t):
        a(f'v_bfe_u32 v{dst}, v1, 1, 2')
        a(f'v_lshlrev_b32 v{dst}, 6, v{dst}')
        a(f'v_bfe_u32 v{t}, v1, 3, 2')
        a(f'v_lshl_add_u32 v{dst}, v{t}, 4, v{dst}')
        a(f'v_and_b32 v{t}, 1, v1')
        a(f'v_lshl_add_u32 v{dst}, v{t}, 3, v{dst}')

    M4 = 0x000f000f000f000f

    def arrive(wave, ret, t0, off, sel='s3'):
        lb = a.uid('arr')
        a(f's_cmp_lg_u32 {sel}, {wave}')
        a(f's_cbranch_scc1 {lb} ;noflush')
        a(f'v_mov_b32 v{t0}, {off}')
        a(f'v_mov_b32 v{ret}, 1')
        ex(1)
        a(f'global_atomic_add v{ret}, v{t0}, v{ret}, s[86:87] sc0 sc1')
        ex(-1)
        a.label(lb)

    def release(wave, ret, t0, last, flag, wait=None):
        lb = a.uid('rel')
        a(f's_cmp_lg_u32 s3, {wave}')
        a(f's_cbranch_scc1 {lb} ;noflush')
        if wait:
            a(wait)
        a(f'v_readfirstlane_b32 s1, v{ret}')
        a(f's_and_b32 s1, s1, {last}')
        a(f's_cmp_lg_u32 s1, {last}')
        a(f's_cbranch_scc1 {lb} ;noflush')
        a('s_mov_b64 exec, -1')
        a(f'v_mbcnt_lo_u32_b32 v{t0}, -1, 0')
        a(f'v_lshlrev_b32 v{t0}, 2, v{t0}')
        a(f'v_mov_b32 v{ret}, s{S_TAG}')
        if isinstance(flag, int):
            a(f's_mov_b32 s1, {flag}')
            flag = 's1'
        ex(0xffffffff)
        a(f'buffer_store_dword v{ret}, v{t0}, {S(R_WS)}, {flag} offen sc1')
        ex(-1)
        a.label(lb)

    def flag_wait(flag, t0, sleep):
        if isinstance(flag, int):
            a(f's_mov_b32 s1, {flag}')
            flag = 's1'
        ex(1)
        poll(lambda: a(f'buffer_load_dword v{t0}, off, {S(R_WS)}, {flag} sc1'),
             lambda: a(f'v_cmp_ne_u32 vcc, s{S_TAG}, v{t0}'), sleep)
        ex(-1)

    a(f'.globl {name}\n.p2align 8\n.type {name},@function')
    a.label(name)
    if o.stamps or o.diag:
        a('s_memrealtime s[100:101]')
    a('s_cmp_ge_u32 s2, 256')
    a('s_cbranch_scc1 L_end')
    a('s_load_dwordx16 s[64:79], s[0:1], 0')
    a('s_load_dwordx8 s[80:87], s[0:1], 64')
    a(f's_load_dwordx2 s[{R_WS}:{R_WS + 1}], s[0:1], 96')
    a('s_cmp_lt_u32 s2, 128')
    a('s_cbranch_scc1 L_nopf')
    a('s_getpc_b64 s[94:95]')
    a.label('L_pc')
    a('v_lshlrev_b32 v1, 7, v0')
    a(f'v_cmp_gt_u32 vcc, L_end-L_pc, v1')
    a('s_and_saveexec_b64 s[96:97], vcc')
    a('s_cbranch_execz L_pfdone')
    a('global_load_dword v127, v1, s[94:95]')
    a.label('L_pfdone')
    a('s_mov_b64 exec, s[96:97]')
    a.label('L_nopf')
    a('v_and_b32 v1, 63, v0')
    a('v_lshrrev_b32 v2, 6, v0')
    a('v_readfirstlane_b32 s3, v2')
    a('v_lshlrev_b32 v2, 4, v1')
    a('v_lshrrev_b32 v3, 4, v1')
    a('v_and_b32 v4, 3, v1')
    a('v_and_b32 v11, 15, v1')
    srd([R_WS, R_X])
    a('s_cmp_ge_u32 s2, 128')
    a('s_cbranch_scc1 L_att')

    srd([R_WQ, R_WUK])
    a('s_and_b32 s4, s2, 7')
    a('s_lshl_b32 s4, s4, 2')
    a('s_bfe_u32 s5, s2, 0x20003')
    a('s_add_u32 s4, s4, s5')
    a('s_lshr_b32 s5, s2, 5')
    a('s_lshl_b32 s6, s4, 8')
    a('v_lshlrev_b32 v5, 1, v3')
    a('v_xor_b32 v5, v5, v11')
    a('v_lshlrev_b32 v5, 4, v5')
    a('v_lshl_add_u32 v6, v3, 13, v5')
    a('v_xor_b32 v7, 0x80, v6')
    a('v_xor_b32 v8, v3, v11')
    a('v_lshlrev_b32 v8, 4, v8')
    a('v_lshl_add_u32 v8, v3, 13, v8')
    a('s_lshl_b32 s90, s5, 20')
    a('s_lshl_b32 s91, s3, 17')
    a('s_add_u32 s90, s90, s91')
    a('s_add_u32 s90, s90, s6')
    a('s_lshl_b32 s91, s3, 12')
    a('s_mov_b32 m0, s91')
    a('v_bfe_u32 v10, v1, 2, 2')
    a('v_lshlrev_b32 v10, 6, v10')
    a('v_lshl_add_u32 v10, v4, 10, v10')
    a('v_lshl_add_u32 v10, v3, 4, v10')
    a('s_lshl_b32 s93, s5, 8')
    XS, XO = 12, 28
    a('s_waitcnt lgkmcnt(0)')
    srd_ptr([R_X, R_WQ, R_WUK])
    a('s_cmp_lg_u32 s3, 0')
    a('s_cbranch_scc1 L_nox')
    for i in range(4):
        a(f'buffer_load_dwordx4 {vr(XS + 4 * i, 4)}, v10, {S(R_X)}, 0 offen offset:{256 * i}')
    a(f'buffer_load_dwordx4 {vr(XO, 4)}, v10, {S(R_X)}, s93 offen')
    a.label('L_nox')
    if o.qloc:
        a('s_lshl_b32 s92, s4, 13')
        a('s_lshl_b32 s93, s3, 10')
        a('s_add_u32 s92, s92, s93')
        a(f's_add_u32 s92, s92, {WS_QPL}')
        a(f'buffer_load_dwordx4 v[68:71], v2, {S(R_WS)}, s92 offen sc1')
    for i in range(4):
        a(f's_add_u32 s92, s90, {i * 32768}')
        a(f'buffer_load_dwordx4 v{6 + i // 2}, {S(R_WQ)}, s92 offen nt lds')
        if i < 3:
            a('s_add_u32 m0, m0, 1024')
    a('s_barrier')
    a('s_cmp_lt_u32 s3, 4')
    a('s_cbranch_scc1 L_nouk')
    a('s_lshl_b32 s91, s3, 17')
    a('s_add_u32 s90, s90, s91')
    a(f's_sub_u32 s90, s90, {8 << 17}')
    a('s_lshl_b32 s91, s3, 13')
    a(f's_add_u32 m0, s91, {A_WUK - 32768}')
    for i in range(8):
        if i % 2 == 0:
            a(f'v_xor_b32 v9, {64 * (i // 2)}, v8')
        a(f's_add_u32 s92, s90, {i * 32768}')
        a(f'buffer_load_dwordx4 v9, {S(R_WUK)}, s92 offen nt lds')
        if i < 7:
            a('s_add_u32 m0, m0, 1024')
    a.label('L_nouk')
    a(f's_load_dword s{S_TAG}, s[{R_WS}:{R_WS + 1}], {WS_EPOCH}')
    srd_ptr([R_WUV, R_WO, R_WG, R_WU, R_WD, R_OUT])
    consts()
    stamp(1)
    a('s_cmp_lg_u32 s3, 0')
    a('s_cbranch_scc1 L_noln')
    a(f's_waitcnt vmcnt({5 + o.qloc})')
    for i in range(16):
        a(f'v_dot2_f32_bf16 v34, v{XS + i}, s{S_ONES}, {"0" if i == 0 else "v34"}')
        a(f'v_dot2_f32_bf16 v35, v{XS + i}, v{XS + i}, {"0" if i == 0 else "v35"}')
    for c in ('row_ror:4', 'row_ror:8'):
        dpp('v_add_f32', 34, 34, 34, c)
        dpp('v_add_f32', 35, 35, 35, c)
    for wh in (16, 32):
        a('v_mov_b32 v12, v34')
        a('v_mov_b32 v13, v35')
        a(f'v_permlane{wh}_swap_b32 v34, v12')
        a(f'v_permlane{wh}_swap_b32 v35, v13')
        a('v_add_f32 v34, v34, v12')
        a('v_add_f32 v35, v35, v13')
    a('v_mul_f32 v34, 0x3b000000, v34')
    a('v_mul_f32 v35, 0x3b000000, v35')
    a('v_fma_f32 v35, -v34, v34, v35')
    a('v_max_f32 v35, 0, v35')
    a('v_add_f32 v35, 0x3727c5ac, v35')
    a('v_rsq_f32 v35, v35')
    a(f'v_mul_f32 v35, {QSCALE_BITS}, v35')
    a('v_mul_f32 v34, v34, v35')
    a(f's_waitcnt vmcnt({4 + o.qloc})')
    for i in range(4):
        a(f'v_lshlrev_b32 v12, 16, v{XO + i}')
        a(f'v_and_b32 v13, s{S_MASK}, v{XO + i}')
        a('v_fma_f32 v12, v12, v35, -v34')
        a('v_fma_f32 v13, v13, v35, -v34')
        a(f'v_cvt_pk_bf16_f32 v{XO + i}, v12, v13')
    a(f'v_add_u32 v12, {A_X}, v2')
    a(f'ds_write_b128 v12, {vr(XO, 4)}')
    a.label('L_noln')
    srd([R_WUV, R_WO, R_WG, R_WU, R_WD, R_OUT])
    for i in range(4):
        a(f'v_mov_b32 v{36 + i}, -1')
    a('s_lshl_b32 s92, s2, 3')
    a('s_add_u32 s92, s92, s3')
    a('s_mul_i32 s92, s92, 352')
    a(f's_add_u32 s92, s92, {WS_CLEAN}')
    ex(0x3fffff)
    a(f'buffer_store_dwordx4 v[36:39], v2, {S(R_WS)}, s92 offen sc1')
    ex(-1)
    a('v_bfe_u32 v40, v1, 2, 3')
    a('v_lshlrev_b32 v40, 1, v40')
    a('s_lshl_b32 s92, s3, 1')
    a('s_and_b32 s92, s92, 12')
    a(f'v_bitop3_b32 v40, v40, v4, s92 {XOR3}')
    a('v_lshlrev_b32 v40, 4, v40')
    a('v_bfe_u32 v41, v1, 2, 2')
    a('v_lshl_add_u32 v41, v3, 3, v41')
    a('v_lshl_add_u32 v40, v41, 8, v40')
    a('s_and_b32 s92, s3, 1')
    a('s_lshl_b32 s92, s92, 3')
    a('v_add_u32 v40, s92, v40')
    a('v_lshlrev_b32 v41, 8, v3')
    a('v_lshl_add_u32 v41, v4, 4, v41')
    a(f'v_add_u32 v41, {A_X}, v41')
    a('v_lshlrev_b32 v42, 6, v3')
    a('v_lshl_add_u32 v42, v4, 4, v42')
    a('s_lshl_b32 s96, s4, 13')
    if WS_QP:
        a(f's_add_u32 s96, s96, {WS_QP}')
    a('s_lshl_b32 s92, s5, 11')
    a('s_add_u32 s97, s96, s92')
    a('s_lshl_b32 s92, s3, 8')
    a('s_add_u32 s97, s97, s92')
    get_tag()
    stamp(2)
    if o.loc:
        a('s_getreg_b32 s1, hwreg(HW_REG_XCC_ID, 0, 4)')
        a(f's_xor_b32 s{S_XCC}, s1, s{S_TAG}')
    a(f's_add_u32 s98, s97, {WS_QPL - WS_QP}')
    a(f's_add_u32 s99, s96, {(WS_QPL - WS_QP) if o.qloc else 0}')
    a('v_bfe_u32 v43, v1, 2, 2')
    a('v_lshlrev_b32 v43, 11, v43')
    a('v_lshl_add_u32 v43, v3, 6, v43')
    a('v_lshl_add_u32 v43, v4, 4, v43')
    a('s_cmp_lt_u32 s3, 4')
    a('s_cbranch_scc1 L_wq_lo')
    a('s_waitcnt vmcnt(9)')
    a('s_branch L_wq_hi')
    a.label('L_wq_lo')
    a('s_waitcnt vmcnt(1)')
    a.label('L_wq_hi')
    a('s_barrier')
    W1, XF, AC = 12, 44, 60
    for t in range(4):
        tr_op(W1 + 4 * t, 40, A_WQ + 8192 * t, 1024)
        a(f'ds_read_b128 {vr(XF + 4 * t, 4)}, v41 offset:{64 * t}')
    for t in range(4):
        a(f's_waitcnt lgkmcnt({3 * (3 - t)})')
        mfma16(AC, W1 + 4 * t, XF + 4 * t, t == 0)
    a(f'v_cvt_pk_bf16_f32 v64, v{AC}, v{AC + 1}')
    a(f'v_cvt_pk_bf16_f32 v65, v{AC + 2}, v{AC + 3}')
    a(f'v_bitop3_b32 v66, v64, v65, s{S_TAG} {XOR3}')
    ex(M4)
    if o.qloc:
        a(f'buffer_store_dwordx4 v[64:67], v42, {S(R_WS)}, s98 offen')
    a(f'buffer_store_dwordx4 v[64:67], v42, {S(R_WS)}, s97 offen sc1')
    ex(-1)
    stamp(3)
    UK, Q, AC2, FR = 68, 100, 132, 140

    def a2_loads():
        for n in range(8):
            a(f'buffer_load_dwordx4 {vr(Q + 4 * n, 4)}, v43, {S(R_WS)}, s99 offen offset:{256 * n} sc1')
    a(f's_cmp_lt_u32 s5, {o.nsamp}')
    a('s_cselect_b32 s98, s3, 99')
    a('v_lshlrev_b32 v30, 7, v1')
    a(f'v_mov_b32 v31, s{S_TAG}')
    AW = 3 if o.arrpos == 2 else 7
    a('s_cmp_lt_u32 s3, 4')
    a('s_cbranch_scc1 L_a2')
    a('s_waitcnt vmcnt(0)')
    if o.arrpos == 0:
        arrive(7, 22, 23, 0, 's98')
    a('s_barrier')
    if o.arrpos == 1:
        arrive(7, 22, 23, 0, 's98')
    a('s_branch L_a_done')
    a.label('L_a2')
    a(f's_waitcnt vmcnt({o.qloc})')
    if o.qdelay:
        a(f's_sleep {o.qdelay}')
    a2_loads()
    a('v_lshrrev_b32 v12, 2, v11')
    a('v_lshl_add_u32 v12, v12, 3, v4')
    a('v_lshlrev_b32 v12, 8, v12')
    a('v_xor_b32 v13, v3, v11')
    a('v_lshl_add_u32 v12, v13, 4, v12')
    a('s_lshl_b32 s92, s3, 13')
    a(f's_add_u32 s92, s92, {A_WUK}')
    a('v_add_u32 v12, s92, v12')
    a('s_barrier')
    for t in range(4):
        a(f'v_xor_b32 v13, {64 * t}, v12')
        for sub in range(2):
            a(f'ds_read_b128 {vr(UK + 16 * sub + 4 * t, 4)}, v13 offset:{1024 * sub}')
    a('v_lshlrev_b32 v15, 8, v4')
    a('v_lshl_add_u32 v15, v3, 4, v15')
    a('s_lshl_b32 s91, s3, 6')
    a(f's_add_u32 s91, s91, {A_C}')
    a('v_add_u32 v15, s91, v15')
    a(f'v_add_u32 v16, {A_C}, v2')
    a('v_lshlrev_b32 v20, 15, v3')
    a('v_lshl_add_u32 v20, v11, 4, v20')
    a(f'v_lshlrev_b32 v21, {10 if o.hc else 3}, v3')
    a('s_lshl_b32 s91, s4, 10')
    a('s_lshl_b32 s92, s5, 8')
    a('s_add_u32 s92, s92, s91')
    a(f's_lshr_b32 s93, s92, {5 if o.hc else 1}')
    if WS_QA:
        a(f's_add_u32 s92, s92, {WS_QA}')
    a(f's_add_u32 s93, s93, {WS_QAH}')
    a(f's_mov_b32 s{S_CNT}, {SPIN}')
    a('s_branch L_a2chk')
    a.label('L_a2poll')
    if o.qloc:
        a(f's_add_u32 s99, s96, {WS_QPL - WS_QP}')
        a(f's_and_b32 s91, s{S_CNT}, 7')
        a('s_cselect_b32 s99, s99, s96')
    a2_loads()
    a.label('L_a2chk')
    for n in range(8):
        a(f's_waitcnt vmcnt({7 - n})')
        a(f'v_bitop3_b32 v{Q + 4 * n + 2}, v{Q + 4 * n}, v{Q + 4 * n + 1}, v{Q + 4 * n + 2} {XOR3}')
    a(f'v_max3_u32 v17, v{Q + 2}, v{Q + 6}, v{Q + 10}')
    a(f'v_min3_u32 v18, v{Q + 2}, v{Q + 6}, v{Q + 10}')
    a(f'v_max3_u32 v17, v17, v{Q + 14}, v{Q + 18}')
    a(f'v_min3_u32 v18, v18, v{Q + 14}, v{Q + 18}')
    a(f'v_max3_u32 v17, v17, v{Q + 22}, v{Q + 26}')
    a(f'v_min3_u32 v18, v18, v{Q + 22}, v{Q + 26}')
    a(f'v_max3_u32 v17, v17, v{Q + 30}, s{S_TAG}')
    a(f'v_min3_u32 v18, v18, v{Q + 30}, s{S_TAG}')
    a('v_cmp_ne_u32 vcc, v17, v18')
    a('s_cbranch_vccz L_a2go')
    a(f's_sub_u32 s{S_CNT}, s{S_CNT}, 1')
    a('s_cbranch_scc0 L_a2poll')
    a.label('L_a2go')
    if o.st3:
        a('s_memrealtime s[72:73]')
    stamp(4)
    if o.arrpos == 2:
        arrive(3, 22, 23, 0, 's98')
    a('s_waitcnt lgkmcnt(0)')
    for n in range(8):
        for sub in range(2):
            d = AC2 + 4 * sub
            c = '0' if n == 0 else vr(d, 4)
            a(f'v_mfma_f32_16x16x16_bf16 {vr(d, 4)}, {vr(UK + 16 * sub + 2 * n, 2)}, {vr(Q + 4 * n, 2)}, {c}')
    for c in ('row_ror:4', 'row_ror:8'):
        for i in range(8):
            dpp('v_add_f32', AC2 + i, AC2 + i, AC2 + i, c)
    for i in range(4):
        a(f'v_cvt_pk_bf16_f32 v{FR + i}, v{AC2 + 2 * i}, v{AC2 + 2 * i + 1}')
    ex(M4)
    a(f'ds_write_b128 v15, {vr(FR, 4)}')
    ex(-1)
    a('s_waitcnt lgkmcnt(0)')
    a.label('L_a_done')
    a('s_barrier')
    a('s_cmp_lg_u32 s3, 0')
    a('s_cbranch_scc1 L_a_pub')
    a(f'ds_read_b128 {vr(FR, 4)}, v16')
    a('s_waitcnt lgkmcnt(0)')
    a(f'buffer_store_dwordx4 {vr(FR, 4)}, v20, {S(R_WS)}, s92 offen sc1')
    xor_chain(18, range(FR, FR + 4))
    for c in ('quad_perm:[1,0,3,2]', 'quad_perm:[2,3,0,1]', 'row_ror:4', 'row_ror:8'):
        dpp('v_xor_b32', 18, 18, 18, c)
    a(f'v_xor_b32 v19, s{S_TAG}, v18')
    ex(0x0001000100010001)
    a(f'buffer_store_dwordx2 v[18:19], v21, {S(R_WS)}, s93 offen sc1')
    ex(-1)
    stamp(5)
    a.label('L_a_pub')
    a(f's_cmp_lg_u32 s98, {AW}')
    a('s_cbranch_scc1 L_norel')
    a('s_waitcnt vmcnt(0)')
    a('v_readfirstlane_b32 s1, v22')
    a(f's_and_b32 s1, s1, {32 * o.nsamp - 1}')
    a(f's_cmp_lg_u32 s1, {32 * o.nsamp - 1}')
    a('s_cbranch_scc1 L_norel')
    a(f's_mov_b32 s1, {WS_HU}')
    if o.nh < 64:
        ex((1 << o.nh) - 1)
    a(f'buffer_store_dword v31, v30, {S(R_WS)}, s1 offen sc1')
    ex(-1)
    if o.nh > 64:
        a(f's_mov_b32 s1, {WS_HU + 8192}')
        a(f'buffer_store_dword v31, v30, {S(R_WS)}, s1 offen sc1')
    a.label('L_norel')
    if o.loc:
        a('s_cmp_lg_u32 s3, 5')
        a('s_cbranch_scc1 L_noxt')
        a('s_and_b32 s92, s2, 7')
        a('s_lshl_b32 s92, s92, 11')
        a('s_lshr_b32 s93, s2, 3')
        a('s_lshl_b32 s93, s93, 7')
        a('s_add_u32 s92, s92, s93')
        a(f's_add_u32 s92, s92, {WS_XT}')
        a(f'v_mov_b32 v9, s{S_XCC}')
        ex(1)
        a(f'buffer_store_dword v9, off, {S(R_WS)}, s92 sc1')
        ex(-1)
        a.label('L_noxt')
    a('s_and_b32 s7, s2, 7')
    a('s_lshr_b32 s63, s2, 3')
    a('v_and_b32 v7, 1, v3')
    a('v_lshl_add_u32 v6, v7, 18, v5')
    a('v_lshrrev_b32 v7, 1, v3')
    a('v_lshl_add_u32 v6, v7, 17, v6')
    a('v_xor_b32 v7, 0x80, v6')
    a('s_lshl_b32 s0, s5, 20')
    a('s_add_u32 s0, s0, s6')
    a('s_mov_b32 s61, 0')
    D, WL, CA, OPC, OPD = 16, 32, 40, 64, 96
    a('s_and_b32 s94, s3, 3')
    a('s_lshr_b32 s95, s3, 2')
    a('v_bfe_u32 v56, v1, 2, 3')
    a('v_lshlrev_b32 v56, 1, v56')
    a('s_lshl_b32 s92, s94, 2')
    a(f'v_bitop3_b32 v56, v56, v4, s92 {XOR3}')
    a('v_lshlrev_b32 v56, 4, v56')
    a('v_bfe_u32 v58, v1, 2, 2')
    a('v_lshl_add_u32 v58, v3, 3, v58')
    a('v_lshl_add_u32 v56, v58, 8, v56')
    a(f'v_add_u32 v56, {A_WUV}, v56')
    a('v_and_b32 v5, 31, v1')
    a('v_lshlrev_b32 v5, 11, v5')
    a('s_lshl_b32 s90, s94, 16')
    a('s_lshl_b32 s91, s5, 9')
    a('s_add_u32 s90, s90, s91')
    a('s_lshl_b32 s91, s4, 4')
    a('s_add_u32 s90, s90, s91')
    a(f's_add_u32 s90, s90, {WS_REC}')
    a('s_lshl_b32 s96, s4, 2')
    a('s_add_u32 s96, s96, s5')
    a('s_lshl_b32 s96, s96, 2')
    a('s_add_u32 s96, s96, s94')
    a('s_lshl_b32 s91, s96, 13')
    a('s_lshl_b32 s93, s95, 12')
    a('s_add_u32 s91, s91, s93')
    a(f's_add_u32 s91, s91, {WS_OP}')
    a('s_lshl_b32 s92, s95, 4')
    a('v_lshlrev_b32 v48, 4, v11')
    a('v_lshl_add_u32 v48, v3, 1, v48')
    a('s_mul_i32 s93, s3, 272')
    a(f's_add_u32 s93, s93, {A_C}')
    a('v_add_u32 v48, s93, v48')
    a('v_and_b32 v49, 7, v1')
    a('v_mul_u32_u24 v49, 272, v49')
    a('v_lshl_add_u32 v49, v3, 4, v49')
    a(f'v_add_u32 v49, {A_C}, v49')
    a('v_lshlrev_b32 v50, 6, v3')
    a('v_lshl_add_u32 v50, v4, 4, v50')
    a('s_lshl_b32 s98, s4, 12')
    a('s_lshl_b32 s93, s94, 10')
    a('s_add_u32 s98, s98, s93')
    a('s_lshl_b32 s93, s5, 8')
    a('s_add_u32 s98, s98, s93')
    a(f's_add_u32 s98, s98, {WS_CP}')
    a('v_add_u32 v51, s92, v3')
    a('v_lshlrev_b32 v51, 2, v51')
    a('v_cmp_eq_u32 s[88:89], s95, v3')
    a('s_lshl_b32 s96, s94, 14')
    a(f's_and_b32 s93, s2, {o.nl - 1}')
    a('s_lshl_b32 s93, s93, 7')
    a('s_add_u32 s96, s96, s93')
    a(f's_add_u32 s96, s96, {WS_OF}')
    a(f's_add_u32 s54, s{R_WS}, s96')
    a(f's_addc_u32 s55, s{R_WS + 1}, 0')
    na, nb_ = bin(o.emask).count('1'), bin(o.emask2).count('1')
    assert 4 * (na + nb_) >= 43
    a(f's_mul_i32 s17, s7, {na}')
    a(f's_mul_i32 s93, s7, {nb_}')
    a(f's_add_u32 s93, s93, {4 * na - 4 * nb_}')
    a('s_cmp_lt_u32 s7, 4')
    a(f's_cselect_b32 s16, {o.emask}, {o.emask2}' if o.emask2 <= 64 or o.emask == o.emask2 else 's_nop 0')
    if not (o.emask2 <= 64 or o.emask == o.emask2):
        a(f's_mov_b32 s16, {o.emask2}')
        a(f's_cselect_b32 s16, {o.emask}, s16')
    a('s_cselect_b32 s17, s17, s93')
    a('v_lshrrev_b32 v8, 2, v1')
    a('s_cmp_lt_u32 s3, 4')
    a('s_cbranch_scc1 L_wlo')
    a('s_mov_b32 s61, 0')
    tr64_addr(58, 59)

    def go_wait(extra=0):
        a('s_lshl_b32 s96, s2, 7')
        a(f's_add_u32 s96, s96, {WS_GO}')
        ex(1)
        poll(lambda: a(f'buffer_load_dword v9, off, {S(R_WS)}, s96 sc1'), lambda: a(f'v_cmp_ne_u32 vcc, s{S_TAG}, v9'), 3)
        ex(-1)
    def hu_wait(tag):
        a('s_lshl_b32 s96, s2, 7')
        a(f's_add_u32 s96, s96, {WS_HU}')
        a(f's_add_u32 s0, s{R_WS}, s96')
        a(f's_addc_u32 s1, s{R_WS + 1}, 0')
        a(f's_mov_b32 s{S_CNT}, {SPIN}')
        a.label(tag)
        a('s_sleep 4')
        a('s_load_dword s96, s[0:1], 0 glc')
        a('s_waitcnt lgkmcnt(0)')
        a(f's_cmp_eq_u32 s96, s{S_TAG}')
        a(f's_cbranch_scc1 {tag}go')
        a(f's_sub_u32 s{S_CNT}, s{S_CNT}, 1')
        a(f's_cbranch_scc0 {tag}')
        a.label(tag + 'go')
    a('s_bitcmp1_b32 s16, s63')
    a('s_cbranch_scc1 L_E1')
    a(f's_bitcmp1_b32 {o.dmask}, s63')
    a('s_cbranch_scc1 L_D1')
    a.label('L_wnone')
    a('s_barrier')
    a('s_load_dword s97, s[54:55], 0 glc')
    a('s_branch L_cstart')
    OP = 64
    H, XR, HA, X4, EA = 16, 128, 140, 148, 164
    EW, ES, ER, ESR, EST, EG, ECS = 180, 181, 182, 183, 184, 185, 186
    OPD, DA = 64, 144
    a.label('L_D1')
    a('s_mov_b32 s61, 2')
    a('s_bfm_b32 s63, s63, 0')
    a(f's_and_b32 s63, s63, {o.dmask}')
    a('s_bcnt1_i32_b32 s63, s63')
    a('v_lshrrev_b32 v8, 3, v1')
    a('v_lshlrev_b32 v8, 10, v8')
    a('v_and_b32 v9, 7, v1')
    a('v_lshl_add_u32 v8, v9, 4, v8')
    a('s_lshl_b32 s99, s7, 19')
    a('s_lshl_b32 s93, s94, 17')
    a('s_add_u32 s99, s99, s93')
    a('s_lshl_b32 s93, s63, 7')
    a('s_add_u32 s99, s99, s93')
    a('s_lshl_b32 s6, s94, 14')
    a('s_mov_b32 m0, s6')
    for i in range(16):
        a(f's_add_u32 s93, s99, {i * 8192}')
        if i >= o.owin:
            a(f's_waitcnt vmcnt({o.owin - 1})')
        a(f'buffer_load_dwordx4 v8, {S(R_WO)}, s93 offen nt lds')
        if i < 15:
            a('s_add_u32 m0, m0, 1024')
    a('v_lshlrev_b32 v57, 7, v59')
    a('v_lshl_add_u32 v57, v4, 3, v57')
    a('v_add_u32 v57, s6, v57')
    vF(128)
    a('v_lshlrev_b32 v129, 8, v4')
    a('v_bfe_u32 v9, v1, 2, 2')
    a('v_lshl_add_u32 v129, v9, 6, v129')
    a('v_lshl_add_u32 v129, v3, 4, v129')
    a('s_lshl_b32 s93, s94, 10')
    a(f's_add_u32 s93, s93, {A_H}')
    a('v_add_u32 v129, s93, v129')
    a('v_bfe_u32 v130, v1, 1, 2')
    a('v_lshlrev_b32 v130, 8, v130')
    a('v_lshrrev_b32 v9, 3, v1')
    a('v_lshl_add_u32 v130, v9, 5, v130')
    a('v_and_b32 v9, 1, v1')
    a('v_lshl_add_u32 v130, v9, 4, v130')
    a(f'v_add_u32 v130, {A_H}, v130')
    a('v_lshlrev_b32 v131, 3, v1')
    a('s_lshl_b32 s6, s7, 14')
    a('s_lshl_b32 s93, s94, 12')
    a('s_add_u32 s6, s6, s93')
    a(f's_add_u32 s6, s6, {WS_CP}')
    a('s_lshl_b32 s99, s7, 12')
    a('s_lshl_b32 s93, s63, 9')
    a('s_add_u32 s99, s99, s93')
    a(f's_add_u32 s99, s99, {WS_HP}')
    if o.loc:
        a('s_lshl_b32 s93, s7, 11')
        a(f's_add_u32 s93, s93, {WS_XT}')
        a('v_lshlrev_b32 v9, 7, v11')
        a(f'buffer_load_dword v10, v9, {S(R_WS)}, s93 offen sc1')
    for i in range(4):
        a(f'buffer_load_dwordx4 {vr(D + 4 * i, 4)}, v128, {S(R_WS)}, s6 offen offset:{1024 * i} sc1')
    a('s_waitcnt vmcnt(0)')
    if o.loc:
        a(f'v_cmp_ne_u32 vcc, s{S_XCC}, v10')
        a('s_cmp_eq_u64 vcc, 0')
        a(f's_cselect_b32 s{S_LOC}, 1, 0')
    for t in range(4):
        for k in range(4):
            tr_op(OPD + 16 * t + 4 * k, 57, 4096 * t + 32 * k, 512)
        a('s_waitcnt lgkmcnt(4)')
    a('s_branch L_wnone')
    a.label('L_E1')
    a('s_bfm_b32 s63, s63, 0')
    a('s_and_b32 s63, s63, s16')
    a('s_bcnt1_i32_b32 s63, s63')
    a('s_add_u32 s63, s63, s17')
    a('s_cmp_ge_u32 s63, 43')
    a('s_cbranch_scc1 L_wnone')
    a('s_mov_b32 s61, 1')
    if o.efgo == 1:
        go_wait()
    if o.pf == 2:
        hu_wait('L_efw')
    a('v_mul_u32_u24 v8, 2752, v8')
    a('v_lshl_add_u32 v8, v4, 4, v8')
    a(f's_mul_i32 s99, s94, {128 * 2752}')
    a('s_lshl_b32 s93, s63, 6')
    a('s_add_u32 s99, s99, s93')
    a('s_lshl_b32 s6, s94, 14')
    a('s_mov_b32 m0, s6')
    a('v_bfe_u32 v9, v1, 2, 2')
    a('v_lshlrev_b32 v9, 6, v9')
    a('v_lshl_add_u32 v9, v4, 10, v9')
    a('v_lshl_add_u32 v9, v3, 4, v9')
    a('s_lshl_b32 s93, s94, 8')
    a(f'buffer_load_dwordx4 {vr(XR, 4)}, v9, {S(R_X)}, s93 offen')
    for mat in range(2):
        for i in range(8):
            a(f's_add_u32 s93, s99, {16 * i * 2752}')
            a(f's_waitcnt vmcnt({(o.ef0 if 8 * mat + i < o.efn else o.efwin) - 1})')
            a(f'buffer_load_dwordx4 v8, {S(R_WG if mat == 0 else R_WU)}, s93 offen {o.r64} lds')
            a('s_add_u32 m0, m0, 1024')
    OPW, FA = 192, 64
    EAR, EPS, EHW, GL, GH, GO_ = 188, 189, 190, 191, 224, 225
    a('v_and_b32 v8, 0xff, v6')
    a('v_lshl_add_u32 v8, v3, 10, v8')
    a('v_xor_b32 v9, 0x80, v8')
    a('s_lshl_b32 s99, s63, 15')
    a('s_lshl_b32 s93, s94, 8')
    a('s_add_u32 s99, s99, s93')
    a('s_lshl_b32 s98, s94, 13')
    a(f's_add_u32 s98, s98, {A_WD}')
    a('s_mov_b32 m0, s98')
    for i in range(8):
        a(f's_add_u32 s93, s99, {4096 * i}')
        a(f's_waitcnt vmcnt({o.efwin - 1})')
        a(f'buffer_load_dwordx4 v{8 + (i // 2) % 2}, {S(R_WD)}, s93 offen nt lds')
        a('s_add_u32 m0, m0, 1024')
    a('v_bfe_u32 v57, v1, 2, 3')
    a('v_lshlrev_b32 v57, 1, v57')
    a('v_xor_b32 v57, v57, v4')
    a('v_lshlrev_b32 v57, 4, v57')
    a('v_lshl_add_u32 v57, v59, 8, v57')
    a('v_add_u32 v57, s98, v57')
    a(f'v_lshlrev_b32 v{EAR}, 6, v4')
    a(f'v_lshl_add_u32 v{EAR}, v3, 4, v{EAR}')
    a(f'v_add_u32 v{EAR}, {A_ACT}, v{EAR}')
    a('v_bfe_u32 v9, v1, 1, 1')
    a(f'v_mul_u32_u24 v{EPS}, 6144, v9')
    a('v_and_b32 v9, 1, v1')
    a(f'v_lshl_add_u32 v{EPS}, v9, 6, v{EPS}')
    a(f'v_lshl_add_u32 v{EPS}, v3, 4, v{EPS}')
    a('s_lshl_b32 s93, s94, 10')
    a(f's_add_u32 s93, s93, {A_H}')
    a(f'v_add_u32 v{EHW}, s93, v2')
    a('v_cmp_lt_u32 vcc, 23, v1')
    a('v_mov_b32 v9, 0x7fffff00')
    a(f'v_cndmask_b32 v{GL}, v2, v9, vcc')
    a('s_and_b32 s93, s63, 1')
    a('s_lshl_b32 s93, s93, 1')
    a('v_bfe_u32 v9, v1, 2, 1')
    a('v_add_u32 v9, s93, v9')
    a(f'v_lshlrev_b32 v{GH}, 8, v4')
    a(f'v_lshl_add_u32 v{GH}, v9, 4, v{GH}')
    a('s_lshr_b32 s93, s63, 3')
    a('s_lshl_b32 s93, s93, 10')
    a('s_bfe_u32 s96, s63, 0x20001')
    a('s_lshl_b32 s96, s96, 6')
    a('s_add_u32 s93, s93, s96')
    a(f's_add_u32 s93, s93, {A_H}')
    a(f'v_add_u32 v{GH}, s93, v{GH}')
    a(f'v_lshlrev_b32 v{GO_}, 10, v9')
    a(f'v_lshl_add_u32 v{GO_}, v4, 4, v{GO_}')
    a(f'v_lshl_add_u32 v{GO_}, v3, 1, v{GO_}')
    a('v_add_u32 v58, s6, v58')
    a(f'v_lshlrev_b32 v{EW}, 8, v4')
    a(f'v_lshl_add_u32 v{EW}, v3, 4, v{EW}')
    a(f'v_add_u32 v{EW}, s6, v{EW}')
    a(f'v_lshlrev_b32 v{ES}, 3, v4')
    a(f'v_lshl_add_u32 v{ES}, v3, 2, v{ES}')
    a(f'v_add_u32 v{ES}, s6, v{ES}')
    a('s_and_b32 s93, s3, 1')
    a('s_lshl_b32 s93, s93, 6')
    a(f'v_add_u32 v{EST}, s93, v1')
    a(f'v_lshrrev_b32 v{ESR}, 5, v{EST}')
    a(f'v_and_b32 v{ER}, 31, v{EST}')
    a(f'v_lshlrev_b32 v{ER}, 2, v{ER}')
    a(f'v_lshl_add_u32 v{ER}, v{ESR}, 8, v{ER}')
    a(f'v_lshlrev_b32 v{ESR}, 3, v{ESR}')
    a(f'v_lshlrev_b32 v{EST}, 1, v{EST}')
    a(f'v_add_u32 v{EST}, {A_ACT}, v{EST}')
    vF(EG)
    for i in range(4):
        a(f'v_mov_b32 v{X4 + i}, s{S_ONES}')
    a('v_mov_b32 v226, v57')
    a('v_mov_b32 v227, v58')

    def e_lds_write():
        ex(M4)
        for k in range(4):
            a(f'ds_write_b128 v{EW}, {vr(EA + 4 * k, 4)} offset:{64 * k}')
        ex(-1)
    a('s_branch L_wnone')
    a.label('L_wlo')
    a('s_lshr_b32 s93, s3, 1')
    a('s_lshl_b32 s93, s93, 19')
    a('s_add_u32 s0, s0, s93')
    a('s_and_b32 s93, s3, 1')
    a('s_lshl_b32 s93, s93, 16')
    a('s_add_u32 s0, s0, s93')
    a('s_lshl_b32 s93, s3, 13')
    a(f's_add_u32 m0, s93, {A_WUV}')
    if o.egate == 0:
        a('s_bitcmp1_b32 s16, s63')
        a('s_cbranch_scc1 L_nogw')
    go_wait()
    a.label('L_nogw')
    for i in range(8):
        a(f's_add_u32 s93, s0, {i * 8192}')
        a(f'buffer_load_dwordx4 v{6 + (i // 2) % 2}, {S(R_WUV)}, s93 offen nt lds')
        if i < 7:
            a('s_add_u32 m0, m0, 1024')
    a('s_waitcnt vmcnt(0)')
    a('s_load_dword s97, s[54:55], 0 glc')
    a('s_barrier')
    if o.loc:
        a('s_lshl_b32 s93, s7, 11')
        a(f's_add_u32 s93, s93, {WS_XT}')
        a('v_lshlrev_b32 v9, 7, v11')
        a(f'buffer_load_dword v60, v9, {S(R_WS)}, s93 offen sc1')
    for t in range(4):
        for k in range(2):
            tr_op(OPC + 8 * t + 4 * k, 56, 8192 * t + 8 * k, 1024)
        a('s_waitcnt lgkmcnt(4)')
    if o.lprio:
        a(f's_setprio {o.lprio}')
    a.label('L_cstart')
    stamp(6)
    RED4 = ('quad_perm:[1,0,3,2]', 'quad_perm:[2,3,0,1]', 'row_ror:4', 'row_ror:8')

    def weights():
        a('v_mov_b32 v54, v52')
        for c in RED4:
            dpp('v_max_f32', 54, 54, 54, c)
        swap_step('v_max_f32', 54, 55, 16)
        a('v_sub_f32 v53, v52, v54')
        a('v_exp_f32 v53, v53')
        a('v_cvt_pk_bf16_f32 v54, v53, 0')
        a('v_lshlrev_b32 v53, 16, v54')
        for i in range(4):
            a(f'ds_bpermute_b32 v{WL + i}, v51, v54 offset:{16 * i}')
        a('s_waitcnt lgkmcnt(0)')
        for i in range(4):
            a(f'v_lshlrev_b32 v{WL + 4 + i}, 16, v{WL + i}')
    a('v_mov_b32 v52, -1')
    a('s_lshl_b32 s93, s94, 2')
    a(f's_add_u32 s93, s93, {A_X}')
    a('v_mov_b32 v59, s93')
    a(f'v_mov_b32 v58, s{S_TAG}')
    a('s_waitcnt lgkmcnt(0)')
    a(f's_cmp_eq_u32 s97, s{S_TAG}')
    a('s_cbranch_scc1 L_ofgo')
    a('v_lshrrev_b32 v9, 4, v5')
    a('s_lshl_b32 s96, s94, 12')
    a('s_lshl_b32 s93, s4, 2')
    a('s_add_u32 s96, s96, s93')
    a(f's_add_u32 s96, s96, {WS_M0}')
    a(f'buffer_load_dword v52, v9, {S(R_WS)}, s96 offen sc1')
    a('s_waitcnt vmcnt(0)')
    a(f'v_xor_b32 v52, s{S_TAG}, v52')
    weights()
    if o.oone:
        a('s_cmp_lt_u32 s3, 4')
        a('s_cbranch_scc1 L_of0')
        a(f's_mov_b32 s{S_CNT}, {SPIN * 40}')
        a.label('L_ofl')
        a('ds_read_b32 v10, v59')
        a('s_waitcnt lgkmcnt(0)')
        a(f'v_cmp_ne_u32 vcc, s{S_TAG}, v10')
        a('s_cbranch_vccz L_ofgo2')
        a(f's_sub_u32 s{S_CNT}, s{S_CNT}, 1')
        a('s_cbranch_scc0 L_ofl')
        a('s_branch L_ofgo2')
        a.label('L_of0')
    a(f's_mov_b32 s{S_CNT}, {SPIN}')
    a.label('L_of')
    a('s_load_dword s96, s[54:55], 0 glc')
    a('s_waitcnt lgkmcnt(0)')
    a(f's_cmp_eq_u32 s96, s{S_TAG}')
    a('s_cbranch_scc1 L_ofgo')
    if o.osl:
        a(f's_sleep {o.osl}')
    a(f's_sub_u32 s{S_CNT}, s{S_CNT}, 1')
    a('s_cbranch_scc0 L_of')
    a.label('L_ofgo')
    if o.oone:
        a('ds_write_b32 v59, v58')
        a.label('L_ofgo2')
    stamp(7)
    a(f's_mov_b32 s{S_CNT}, {SPIN}')
    a.label('L_call')
    a(f'buffer_load_dwordx4 v[12:15], v5, {S(R_WS)}, s90 offen sc1')
    for i in range(4):
        a(f'buffer_load_dwordx4 {vr(D + 4 * i, 4)}, v2, {S(R_WS)}, s91 offen offset:{1024 * i} sc1')
    a(f's_sub_u32 s{S_CNT}, s{S_CNT}, 1')
    a('s_cbranch_scc1 L_cdone')
    a('s_waitcnt vmcnt(4)')
    a('v_cmp_ne_u32 vcc, v12, v52')
    xor_chain(10, [12, 13, 14, 15], f's{S_TAG}')
    a('v_cndmask_b32 v9, 0, v14, s[88:89]')
    a('s_cbranch_vccnz L_cnewm')
    a.label('L_crec')
    a('v_mul_f32 v14, v53, v13')
    side = []
    for c in RED4:
        side.append(f'v_add_f32_dpp v14, v14, v14 {c} row_mask:0xf bank_mask:0xf')
    side += ['v_mov_b32 v15, v14', 'v_permlane16_swap_b32 v14, v15', 'v_add_f32 v14, v14, v15', 'v_rcp_f32 v14, v14']
    for i in range(4):
        a(f's_waitcnt vmcnt({3 - i})')
        if i == 3:
            stamp(8)
            f3(66)
        xor_chain(9, [9] + list(range(D + 4 * i, D + 4 * i + 4)))
        if i == 3:
            side = [f'v_xor_b32_dpp v9, v9, v9 {c} row_mask:0xf bank_mask:0xf' for c in RED4]
        for u in range(4):
            for e in range(2):
                c = '0' if i == 0 else f'v{CA + 2 * u + e}'
                a(f'v_dot2_f32_bf16 v{CA + 2 * u + e}, v{D + 4 * i + u}, v{WL + 4 * e + i}, {c}')
            if side:
                a(side.pop(0))
    a('v_mov_b32 v15, v9')
    for k in range(4):
        a(f'v_permlane16_swap_b32 v{CA + 2 * k}, v{CA + 2 * k + 1}')
        if k == 1:
            a('v_permlane16_swap_b32 v9, v15')
            a('v_xor_b32 v9, v9, v15')
            a('v_mov_b32 v15, v9')
    a('v_permlane32_swap_b32 v9, v15')
    a(f'v_bitop3_b32 v9, v9, v15, v10 bitop3:0xbe')
    a('v_cmp_ne_u32 vcc, 0, v9')
    a.label('L_cdone')
    for k in range(4):
        a(f'v_add_f32 v{CA + 2 * k}, v{CA + 2 * k}, v{CA + 2 * k + 1}')
    for k in range(2):
        a(f'v_permlane32_swap_b32 v{CA + 4 * k}, v{CA + 4 * k + 2}')
    for k in range(2):
        a(f'v_add_f32 v{CA + 4 * k}, v{CA + 4 * k}, v{CA + 4 * k + 2}')
    a('s_cbranch_vccnz L_cagain ;noflush')
    a.label('L_cok')
    a(f'v_mul_f32 v{CA}, v{CA}, v14')
    a(f'v_mul_f32 v{CA + 4}, v{CA + 4}, v14')
    a(f'v_cvt_pk_bf16_f32 v{CA}, v{CA}, v{CA + 4}')
    a(f'ds_write_b16 v48, v{CA}')
    a(f'ds_write_b16_d16_hi v48, v{CA} offset:8')
    f3(68)
    a('s_waitcnt lgkmcnt(0)')
    a('s_barrier')
    f3(70)
    a('s_cmp_ge_u32 s3, 4')
    a('s_cbranch_scc1 L_hi')
    if o.loc:
        a(f'v_cmp_ne_u32 vcc, s{S_XCC}, v60')
    for t in range(4):
        a(f'ds_read_b128 {vr(D + 4 * t, 4)}, v49 offset:{64 * t}')
    for t in range(4):
        a(f's_waitcnt lgkmcnt({3 - t})')
        for k in range(2):
            mfma16(CA + 4 * k, OPC + 8 * t + 4 * k, D + 4 * t, t == 0)
    for i in range(8):
        dpp('v_add_f32', CA + i, CA + i, CA + i, 'row_ror:4')
    for i in range(4):
        a(f'v_cvt_pk_bf16_f32 v{12 + i}, v{CA + 2 * i}, v{CA + 2 * i + 1}')
    a(f's_mov_b32 s{S_CNT}, {SPIN}')
    ex(M4)
    if o.loc:
        a('s_cbranch_vccnz L_cfar ;noflush')
        a(f'buffer_store_dwordx4 v[12:15], v50, {S(R_WS)}, s98 offen')
        a('s_branch L_cst ;noflush')
        a.label('L_cfar')
    a(f'buffer_store_dwordx4 v[12:15], v50, {S(R_WS)}, s98 offen sc1')
    a.label('L_cst')
    ex(-1)
    stamp(9)
    if o.stamps:
        a('s_cmp_lg_u32 s3, 0')
        a('s_cbranch_scc1 L_end')
        dump_stamps(13, 0)
    a('s_endpgm')
    a.label('L_cnewm')
    a('v_mov_b32 v52, v12')
    weights()
    a('s_branch L_crec')
    a.label('L_cagain')
    a(f's_cmp_lt_i32 s{S_CNT}, 0')
    a('s_cbranch_scc1 L_cok')
    a('s_branch L_call')
    a.label('L_hi')
    a('s_cmp_eq_u32 s61, 0')
    if o.stamps:
        a('s_cbranch_scc0 L_hi2')
        stamp(9)
        a('s_bfe_u32 s93, s2, 0x20003')
        a('s_cmp_lg_u32 s93, s94')
        a('s_cbranch_scc1 L_end')
        a(f's_sub_u32 s84, {SPIN}, s{S_CNT}')
        dump_stamps(11, 1)
        a('s_endpgm')
        a.label('L_hi2')
    else:
        a('s_cbranch_scc1 L_end')

    a('s_cmp_eq_u32 s61, 1')
    a('s_cbranch_scc1 L_E2')
    a('s_lshl_b32 s98, s7, 7')
    a(f's_add_u32 s98, s98, {WS_FL}')
    a(f'v_mov_b32 v132, s{S_TAG}')
    a(f's_mov_b32 s{S_CNT}, {SPIN}')
    a('s_barrier')
    a.label('L_dre')
    for i in range(4):
        a(f'buffer_load_dwordx4 {vr(D + 4 * i, 4)}, v128, {S(R_WS)}, s6 offen offset:{1024 * i} sc1')
    for t in range(4):
        a(f's_waitcnt vmcnt({3 - t})')
        for k in range(4):
            mfma16(DA + 4 * k, OPD + 16 * t + 4 * k, D + 4 * t, t == 0)
    a(f'v_cmp_u_f32 vcc, v{DA}, v{DA}')
    for k in range(2):
        for j in range(4):
            dpp('v_add_f32', DA + 4 * k + j, DA + 4 * k + j, DA + 4 * k + j, 'row_ror:8', 0x3)
        if k == 0:
            a('s_cbranch_vccnz L_dnan ;noflush')
            a.label('L_dok')
            stamp(9)
    for k in range(2):
        for j in range(4):
            dpp('v_add_f32', DA + 4 * k + j, DA + 8 + 4 * k + j, DA + 8 + 4 * k + j, 'row_ror:8', 0xc)
    for j in range(4):
        dpp('v_add_f32', DA + j, DA + j, DA + j, 'row_ror:12', 0x5)
    for j in range(4):
        dpp('v_add_f32', DA + j, DA + 4 + j, DA + 4 + j, 'row_ror:4', 0xa)
    a(f'ds_write_b128 v129, {vr(DA, 4)}')
    a('s_waitcnt lgkmcnt(0)')
    a('s_barrier')
    a('s_cmp_lg_u32 s3, 4')
    a('s_cbranch_scc1 L_end')
    for w in range(4):
        a(f'ds_read_b128 {vr(D + 4 * w, 4)}, v130 offset:{1024 * w}')
    a('s_waitcnt lgkmcnt(2)')
    for i in range(4):
        a(f'v_add_f32 v{D + i}, v{D + i}, v{D + 4 + i}')
    a('s_waitcnt lgkmcnt(0)')
    for i in range(4):
        a(f'v_add_f32 v{D + 8 + i}, v{D + 8 + i}, v{D + 12 + i}')
    for i in range(4):
        a(f'v_add_f32 v{D + i}, v{D + i}, v{D + 8 + i}')
    a(f'v_cvt_pk_bf16_f32 v{D}, v{D}, v{D + 1}')
    a(f'v_cvt_pk_bf16_f32 v{D + 1}, v{D + 2}, v{D + 3}')
    a(f'buffer_store_dwordx2 {vr(D, 2)}, v131, {S(R_WS)}, s99 offen sc1')
    stamp(10)
    a('s_cmp_lg_u32 s63, 0')
    a('s_cbranch_scc1 L_efend')
    if o.dfw:
        a('s_waitcnt vmcnt(0)')
    ex(1)
    if o.loc:
        a(f's_cmp_eq_u32 s{S_LOC}, 0')
        a('s_cbranch_scc1 L_dfar')
        a(f'buffer_store_dword v132, off, {S(R_WS)}, s98')
        a('s_branch L_efend')
        a.label('L_dfar')
    a(f'buffer_store_dword v132, off, {S(R_WS)}, s98 sc1')
    a('s_branch L_efend')
    nan_retry('L_dnan', range(D, D + 16), 'L_dre', 'L_dok')
    a.label('L_E2')
    def e_lds_read():
        for w in range(4):
            a(f'ds_read_b32 v{H + 2 * w}, v{ER} offset:{16384 * w}')
            a(f'ds_read_b32 v{H + 2 * w + 1}, v{ER} offset:{16384 * w + 128}')
    for t in range(4):
        for k in range(4):
            tr_op(OP + 16 * t + 4 * k, 227, 8192 * (k // 2) + 2048 * t + 32 * (k % 2), 256)
        a(f'v_xor_b32 v9, {64 * t}, v226')
        for k in range(2):
            tr_op(OPW + 8 * t + 4 * k, 9, 8 * k, 1024)
        a(f's_waitcnt lgkmcnt({2 if t < 3 else 0})')
    for t in range(4):
        for k in range(4):
            mfma16(EA + 4 * k, OP + 16 * t + 4 * k, X4, t == 0)
    for i in range(4):
        a(f'v_lshlrev_b32 v{132 + 2 * i}, 16, v{XR + i}')
        a(f'v_and_b32 v{133 + 2 * i}, s{S_MASK}, v{XR + i}')

    e_lds_write()
    a('s_lshl_b32 s98, s63, 7')
    a(f's_mul_i32 s93, s94, {4 * 12288}')
    a('s_add_u32 s98, s98, s93')
    a(f's_add_u32 s98, s98, {WS_FP}')
    a('s_mul_i32 s99, s63, 6144')
    a(f's_add_u32 s99, s99, {WS_FP}')
    a('s_add_u32 s97, s99, 4096')
    a('s_lshr_b32 s96, s63, 1')
    a('s_lshl_b32 s96, s96, 6')
    a('s_lshl_b32 s90, s94, 10')
    a(f's_add_u32 s90, s90, {WS_HP}')
    a('s_waitcnt lgkmcnt(0)')
    a(f's_mov_b32 s91, {f32bits(GELU_K * 0.044715)}')
    a(f'v_mov_b32 v228, {GELU_BITS}')
    stamp(5)
    a('s_barrier')
    e_lds_read()
    a('s_waitcnt lgkmcnt(0)')
    a(f'v_add_f32 v{ECS}, v{H}, v{H + 2}')
    a(f'v_add_f32 v{ECS + 1}, v{H + 1}, v{H + 3}')
    for w in range(2, 4):
        a(f'v_add_f32 v{ECS}, v{ECS}, v{H + 2 * w}')
        a(f'v_add_f32 v{ECS + 1}, v{ECS + 1}, v{H + 2 * w + 1}')
    a('s_barrier')
    a('s_lshl_b32 s92, s7, 7')
    a(f's_add_u32 s92, s92, {WS_FL}')
    flag_wait('s92', 9, 0)

    def e_loads():
        a('s_mov_b32 s92, s90')
        for r in range(8):
            a(f'buffer_load_dwordx4 {vr(H + 4 * r, 4)}, v{EG}, {S(R_WS)}, s92 offen sc1')
            if r < 7:
                a('s_add_u32 s92, s92, 4096')
    f3(66)
    a(f's_mov_b32 s{S_CNT}, {SPIN}')
    a.label('L_ere')
    e_loads()
    for r in range(8):
        a(f's_waitcnt vmcnt({7 - r})')
        if r == 7:
            stamp(9)
            f3(68)
        for u in range(4):
            for e in range(2):
                c = f'v{132 + 2 * u + e}' if r == 0 else f'v{HA + 2 * u + e}'
                a(f'v_dot2_f32_bf16 v{HA + 2 * u + e}, v{H + 4 * r + u}, s{S_LO1 + e}, {c}')
    f3(70)
    for i in range(4):
        a(f'v_cvt_pk_bf16_f32 v{X4 + i}, v{HA + 2 * i}, v{HA + 2 * i + 1}')
    for t in range(4):
        if t < 3:
            for i in range(4):
                a(f'v_mov_b32_dpp v{X4 + 4 * (t + 1) + i}, v{X4 + i} row_shl:{4 * (t + 1)} row_mask:0xf bank_mask:0xf bound_ctrl:0')
        for k in range(4):
            mfma16(EA + 4 * k, OP + 16 * t + 4 * k, X4 + 4 * t, t == 0)
        if t == 0:
            a(f'ds_write_b128 v{EHW}, {vr(X4, 4)}')
            for i in range(4):
                a(f'v_dot2_f32_bf16 v9, v{X4 + i}, s{S_ONES}, {"0" if i == 0 else "v9"}')
                a(f'v_dot2_f32_bf16 v11, v{X4 + i}, v{X4 + i}, {"0" if i == 0 else "v11"}')
        if t == 1:
            a('v_cmp_u_f32 vcc, v9, v9')
            for c in ('row_ror:4', 'row_ror:8'):
                dpp('v_add_f32', 9, 9, 9, c)
                dpp('v_add_f32', 11, 11, 11, c)
            a('s_cbranch_vccnz L_enan ;noflush')
            a.label('L_eok')
        if t == 2:
            a('v_permlane16_swap_b32 v9, v11')
            a('v_add_f32 v9, v9, v11')
            swap_step('v_add_f32', 9, 11, 32)
    ex(0x000f000f)
    f3(72)
    a(f'ds_write_b32 v{ES}, v9 offset:1024')
    e_lds_write()
    a('s_waitcnt lgkmcnt(0)')
    a('s_barrier')
    f3(74)
    a('s_cmp_ge_u32 s3, 6')
    a('s_cbranch_scc1 L_eact')
    for w in range(4):
        a(f'ds_read_b64 v[{H + 8 + 2 * w}:{H + 9 + 2 * w}], v{ESR} offset:{16384 * w + 1024}')
    e_lds_read()
    a('s_waitcnt lgkmcnt(8)')
    for w in range(1, 4):
        a(f'v_add_f32 v{H + 8}, v{H + 8}, v{H + 8 + 2 * w}')
        a(f'v_add_f32 v{H + 9}, v{H + 9}, v{H + 9 + 2 * w}')
    MU, VA = H + 8, H + 9
    a(f'v_mul_f32 v{MU}, 0x3b000000, v{MU}')
    a(f'v_mul_f32 v{VA}, 0x3b000000, v{VA}')
    a(f'v_fma_f32 v{VA}, -v{MU}, v{MU}, v{VA}')
    a(f'v_max_f32 v{VA}, 0, v{VA}')
    a(f'v_add_f32 v{VA}, 0x3727c5ac, v{VA}')
    a(f'v_rsq_f32 v{VA}, v{VA}')
    a('s_waitcnt lgkmcnt(0)')
    for w in range(1, 4):
        a(f'v_add_f32 v{H}, v{H}, v{H + 2 * w}')
        a(f'v_add_f32 v{H + 1}, v{H + 1}, v{H + 2 * w + 1}')
    a(f'v_fma_f32 v16, -v{MU}, v{ECS}, v16')
    a(f'v_fma_f32 v17, -v{MU}, v{ECS + 1}, v17')
    a(f'v_mul_f32 v16, v16, v{VA}')
    a(f'v_mul_f32 v17, v17, v{VA}')
    a('v_mul_f32 v18, v16, v16')
    a('v_fma_f32 v19, v18, s91, v228')
    a('v_mul_f32 v19, v19, v16')
    a('v_exp_f32 v19, v19')
    a('v_mul_f32 v16, v16, v17')
    a('v_add_f32 v19, 1.0, v19')
    a('v_rcp_f32 v19, v19')
    a('v_mul_f32 v16, v16, v19')
    a('v_mov_b32_dpp v17, v16 quad_perm:[1,1,3,3] row_mask:0xf bank_mask:0xf')
    a('v_cvt_pk_bf16_f32 v16, v16, v17')
    ex(0x5555555555555555)
    a(f'ds_write_b32 v{EST}, v16')
    ex(-1)
    a('s_waitcnt lgkmcnt(0)')
    a.label('L_eact')
    a('s_barrier')
    f3(76)
    a(f'ds_read_b128 v[16:19], v{EAR}')
    a(f'ds_read_b128 v[20:23], v{GH}')
    a('s_waitcnt lgkmcnt(1)')
    for k in range(8):
        mfma16(FA + 4 * k, OPW + 4 * k, 16, True)
    ex(M4)
    for p in range(4):
        for i in range(4):
            a(f'v_cvt_pk_bf16_f32 v{96 + 4 * p + i}, v{FA + 8 * p + 2 * i}, v{FA + 8 * p + 2 * i + 1}')
        a(f'buffer_store_dwordx4 {vr(96 + 4 * p, 4)}, v{EPS}, {S(R_WS)}, s98 offen sc1')
        if p < 3:
            a('s_add_u32 s98, s98, 12288')
    ex(-1)
    stamp(10)
    f3(78)
    a('s_cmp_lg_u32 s3, 4')
    a('s_cbranch_scc1 L_end')
    a('s_cmp_ge_u32 s63, 32')
    a('s_cbranch_scc1 L_efend')
    G, GA = 24, 48
    OSC = ' sc1' if o.osc else ''
    for i in range(8):
        a(f'v_mov_b32 v{56 + i}, 0')
    a('s_waitcnt lgkmcnt(0)')
    ex(0xff)
    for u in range(4):
        for e in range(2):
            a(f'v_dot2_f32_bf16 v{56 + 2 * u + e}, v{20 + u}, s{S_LO1 + e}, 0')
    ex(-1)
    a(f's_mov_b32 s{S_CNT}, {SPIN}')
    a('s_waitcnt vmcnt(0)')
    if o.fdelay:
        a(f's_sleep {o.fdelay}')
    a.label('L_gre')
    for i in range(6):
        a(f'buffer_load_dwordx4 {vr(G + 4 * i, 4)}, v{2 if i < 5 else GL}, {S(R_WS)}, s{99 if i < 4 else 97} offen offset:{1024 * (i % 4)} sc1')
    for i in range(6):
        a(f's_waitcnt vmcnt({5 - i})')
        for u in range(4):
            for e in range(2):
                c = 56 + 2 * u + e if i == 0 else GA + 2 * u + e
                a(f'v_dot2_f32_bf16 v{GA + 2 * u + e}, v{G + 4 * i + u}, s{S_LO1 + e}, v{c}')
    stamp(7)
    for k in range(4):
        a(f'v_permlane16_swap_b32 v{GA + 2 * k}, v{GA + 2 * k + 1}')
    for k in range(4):
        a(f'v_add_f32 v{GA + 2 * k}, v{GA + 2 * k}, v{GA + 2 * k + 1}')
    for k in range(2):
        a(f'v_permlane32_swap_b32 v{GA + 4 * k}, v{GA + 4 * k + 2}')
    for k in range(2):
        a(f'v_add_f32 v{GA + 4 * k}, v{GA + 4 * k}, v{GA + 4 * k + 2}')
    a(f'v_cmp_u_f32 vcc, v{GA}, v{GA + 4}')
    for k in range(2):
        dpp('v_add_f32', GA + 4 * k, GA + 4 * k, GA + 4 * k, 'row_ror:8')
    a(f'v_cvt_pk_bf16_f32 v{GA}, v{GA}, v{GA + 4}')
    a('s_cbranch_vccnz L_gnan ;noflush')
    a.label('L_gok')
    ex(0x00ff00ff00ff00ff)
    a(f'buffer_store_short v{GA}, v{GO_}, {S(R_OUT)}, s96 offen{OSC}')
    a(f'buffer_store_short_d16_hi v{GA}, v{GO_}, {S(R_OUT)}, s96 offen offset:8{OSC}')
    a('s_cmp_lg_u32 s63, 0')
    a('s_cbranch_scc1 L_efend')
    ex(1)
    a(f'v_mov_b32 v12, s{S_TAG}')
    a(f's_mov_b32 s90, {WS_EPOCH}')
    a(f'buffer_store_dword v12, off, {S(R_WS)}, s90{OSC}')
    a.label('L_efend')
    if o.diag:
        a.label('L_diag')
        a('s_memrealtime s[90:91]')
        a('s_waitcnt lgkmcnt(0)')
        a('s_sub_u32 s90, s90, s100')
        a(f's_cmp_lt_u32 s90, {o.diag}')
        a('s_cbranch_scc1 L_diag')
    if o.stamps:
        stamp(8)
        a('s_cmp_lg_u32 s3, 4')
        a('s_cbranch_scc1 L_end')
        dump_stamps(11, 1)
    a('s_endpgm')

    nan_retry('L_enan', range(H, H + 32), 'L_ere', 'L_eok')
    nan_retry('L_gnan', range(G, G + 24), 'L_gre', 'L_gok')
    a.label('L_att')
    srd([R_CKV])
    a('s_bfe_u32 s4, s2, 0x20001')
    a('s_bfe_u32 s5, s2, 0x40003')
    a('s_lshl_b32 s5, s5, 1')
    a('s_and_b32 s6, s2, 1')
    a('s_add_u32 s5, s5, s6')
    a('s_lshl_b32 s90, s4, 23')
    TS = (2 << 20) if o.il else 65536
    MX = (1 << o.mb1, 1 << o.mb2)
    M3 = o.m3
    a(f's_lshl_b32 s91, s5, {16 if o.il else 18}')
    a('s_add_u32 s90, s90, s91')
    a('s_and_b32 s7, s3, 3')
    a('s_lshl_b32 s91, s7, 14')
    a('s_add_u32 s90, s90, s91')
    if o.mw:
        a('s_and_b32 s91, s7, 1')
        a(f's_mul_i32 s91, s91, {o.mw}')
        a('s_xor_b32 s90, s90, s91')
    a('s_lshl_b32 s91, s7, 15')
    a('s_lshl_b32 s92, s7, 2')
    a(f's_add_u32 s92, s92, {FB}')
    a('v_mov_b32 v7, s92')
    a(f'v_lshlrev_b32 v10, 2, v4')
    a(f'v_add_u32 v10, {FB}, v10')
    a('s_cmp_lt_u32 s3, 4')
    a('s_cbranch_scc1 L_comp')
    a('s_mov_b32 s3, s7')
    VX, TR, O_ = 12, 128, 64
    for j in range(8):
        a(f'v_xor_b32 v{VX + j}, {32 * j}, v2')
    a('s_mov_b32 m0, s91')
    a('s_mov_b32 s93, 0')
    a('s_waitcnt lgkmcnt(0)')
    srd_ptr([R_CKV])
    BUF = (0, 1, 1, 0)
    TAL, vPR, vST, vRC, vRM, vRL, vAR = 20, 28, 29, 30, 31, 32, 33

    def pv_setup():
        a('v_bfe_u32 v40, v1, 2, 2')
        a('v_lshrrev_b32 v42, 5, v1')
        a('v_lshlrev_b32 v41, 2, v40')
        a('v_lshl_add_u32 v41, v42, 1, v41')
        a('v_and_b32 v43, 1, v3')
        a('v_lshlrev_b32 v44, 1, v43')
        a('v_bfe_u32 v45, v1, 1, 1')
        a('v_add_u32 v44, v44, v45')
        a('v_xor_b32 v44, v44, v41')
        a('v_lshlrev_b32 v41, 10, v41')
        a('v_lshl_add_u32 v41, v44, 4, v41')
        a('v_and_b32 v45, 1, v1')
        a('v_lshl_add_u32 v41, v45, 3, v41')
        a('s_lshl_b32 s95, s3, 8')
        a('v_add_u32 v41, s95, v41')
        for i in range(8):
            a(f'v_xor_b32 v{TAL + i}, {64 * (i % 4) + 65536 * (i // 4)}, v41')
        a(f'v_add_u32 v{vPR}, {L_P}, v2')
        a(f'v_lshlrev_b32 v{vAR}, 4, v42')
        a(f'v_add_u32 v{vAR}, {L_ALPHA}, v{vAR}')
        a('v_lshl_add_u32 v42, v42, 2, v43')
        a(f'v_lshlrev_b32 v{vST}, 17, v42')
        a(f'v_lshl_add_u32 v{vST}, v11, 3, v{vST}')
        a('v_lshl_add_u32 v42, v45, 4, v42')
        a('v_bfe_u32 v44, v1, 2, 1')
        a('v_lshl_add_u32 v42, v44, 3, v42')
        a('v_bfe_u32 v44, v1, 3, 1')
        a('v_lshl_add_u32 v42, v44, 1, v42')
        a(f'v_lshlrev_b32 v{vRM}, 2, v42')
        a(f'v_add_u32 v{vRM}, {L_MFIN}, v{vRM}')
        a(f'v_lshlrev_b32 v{vRC}, 4, v42')
        a(f'v_add_u32 v{vRL}, {L_MAX}, v{vRC}')
        a('s_lshl_b32 s96, s3, 2')
        a('s_add_u32 s96, s96, s4')
        a('s_lshl_b32 s96, s96, 13')
        a('s_lshl_b32 s95, s5, 8')
        a('s_add_u32 s96, s96, s95')
        a(f's_add_u32 s96, s96, {WS_OP}')
        a('s_lshl_b32 s97, s4, 16')
        a('s_lshl_b32 s95, s5, 11')
        a('s_add_u32 s97, s97, s95')
        a('s_lshl_b32 s95, s3, 9')
        a('s_add_u32 s97, s97, s95')
        a(f's_add_u32 s97, s97, {WS_REC}')
        a('v_add_u32 v9, s91, v2')
    rows = [(T, j) for T in range(3) for j in range(16) if not (T == 1 and j == 15)] + [(3, j) for j in range(o.r3)]
    landed = 0
    pub = {0: 16, 1: 31}

    def publish():
        for tt in list(pub):
            if landed >= pub[tt]:
                a(f'v_mov_b32 v5, {tt + 1}')
                a(f'ds_write_b32 v7, v5 offset:{F_LAND}')
                if tt == 0:
                    stamp(10)
                del pub[tt]

    def dma_row(j):
        a(f'buffer_load_dwordx4 v{VX + j // 2}, {S(R_CKV)}, s90 offen offset:{(j % 4) * 1024} nt lds')
    for n, (T, j) in enumerate(rows):
        w = o.w0 if n < o.n0 else o.window
        if o.hold and n == o.hold:
            lds_wait(10, F_HUS, 1, 6, 2)
        if n >= o.n0 and not (o.hold and n >= o.hold):
            lb = a.uid('fast')
            a('s_cmp_lg_u32 s93, 0')
            a(f's_cbranch_scc1 {lb}')
            if n % 2 == 0:
                a(f'ds_read_b32 v6, v10 offset:{F_HUS if o.sw == 1 else F_QST}')
            a(f's_waitcnt vmcnt({o.w1 - 1})')
            if n % 2 == 0:
                a('s_waitcnt lgkmcnt(0)')
                a('v_cmp_eq_u32 vcc, 0, v6')
                a('s_cmp_eq_u64 vcc, 0')
                a('s_cselect_b32 s93, 1, 0')
            a.label(lb)
        if n - landed >= w:
            a(f's_waitcnt vmcnt({w - 1})')
            landed = n - (w - 1)
        if n in (16 + o.w1, 31 + o.lw) and landed < n - (o.w1 if n < 31 else o.lw):
            k = o.w1 if n < 31 else o.lw
            a(f's_waitcnt vmcnt({k})')
            landed = n - k
        publish()
        if n == 20:
            get_tag()
            a('v_mov_b32 v35, 0')
        if n == o.gon and o.wgo:
            lb = a.uid('nogo')
            a('s_cmp_lg_u32 s3, 0')
            a(f's_cbranch_scc1 {lb}')
            a('s_sub_u32 s92, s2, 128')
            a('s_lshl_b32 s92, s92, 7')
            a(f's_add_u32 s92, s92, {WS_GO}')
            a(f'v_mov_b32 v6, s{S_TAG}')
            a('v_lshlrev_b32 v8, 2, v1')
            ex(0xffffffff)
            a(f'buffer_store_dword v6, v8, {S(R_WS)}, s92 offen sc1')
            ex(-1)
            a.label(lb)
        if T < 2:
            dma_row(j)
        else:
            a(f'buffer_load_dwordx4 {vr(TR + 64 * (T - 2) + 4 * j, 4)}, v{VX + j // 2}, {S(R_CKV)}, s90 offen offset:{(j % 4) * 1024} nt')
        last = j == 15 or (T == 1 and j == 14)
        if j % 4 == 3 or last:
            a(f's_add_u32 s90, s90, {TS - 12288 if last else 4096}')
            if o.mix:
                a(f's_xor_b32 s90, s90, {MX[(j // 4) % 2] ^ (M3 if last else 0)}')
            if T < 2:
                a('s_add_u32 m0, m0, 4096')
        if n == o.w0 - 1:
            a(f's_load_dword s{S_TAG}, s[{R_WS}:{R_WS + 1}], {WS_EPOCH}')
            a('s_barrier')
            pv_setup()
        if n == 30:
            stamp(1)
    assert not pub
    stamp(2)
    if o.pvprio:
        a(f's_setprio {o.pvprio}')
    PF = 36
    BFS = (44, 48, 52, 56, 60, 12, 16)
    NB = len(BFS)
    DIST = 6
    FLG = 34

    PK, XX = 128, 160

    def half_store(ap, hf):
        t_ = PK + 4 * ap + 2 * hf
        j = 2 * ap
        base = O_ + 32 * hf
        g = [f'v_cvt_pk_bf16_f32 v{t_}, v{base + j}, v{base + 16 + j}',
             f'v_cvt_pk_bf16_f32 v{t_ + 1}, v{base + j + 1}, v{base + 16 + j + 1}',
             f's_add_u32 s92, s96, {(8 * (ap // 2) + 2 * (ap % 2)) * 131072}',
             f'v_permlane16_swap_b32 v{t_}, v{t_ + 1}',
             f'buffer_store_dwordx2 {vr(t_, 2)}, v{vST}, {S(R_WS)}, s92 offen offset:{128 * hf} sc1']
        if hf == 0:
            g.append(f'v_xor_b32 v{XX + ap}, v{t_}, v{t_ + 1}')
        else:
            g.append(f'v_bitop3_b32 v{XX + ap}, v{XX + ap}, v{t_}, v{t_ + 1} {XOR3}')
        return g

    def skew(lists):
        out = []
        n = len(lists)
        for step in range(n + 1):
            if step < n:
                out += lists[step][:2]
            if step > 0:
                out += lists[step - 1][2:]
        return out

    def pv(t):
        seq = [(ks, blk) for ks in range(4) for blk in range(4)]
        if t == 3:
            seq = [(ks, 2 * pr + k) for pr in range(2) for ks in range(4) for k in range(2)]
        PFm = (lambda ks: 192 + 4 * ks) if t == 3 else (lambda ks: PF + 4 * (ks % 2))
        shadow = skew([half_store(ap, 0) for ap in range(8)]) if t == 3 else []

        def rd(n):
            ks, blk = seq[n]
            for tau in range(2):
                a(f'ds_read_b64_tr_b16 {vr(BFS[n % NB] + 2 * tau, 2)}, v{TAL + blk + 4 * (ks // 2)} offset:{32768 * (ks % 2) + 16384 * BUF[t] + 1024 * tau}')

        def p_rd(ks):
            a(f'ds_read_b128 {vr(PFm(ks), 4)}, v{vPR} offset:{4096 * t + 1024 * ks}')
        a(f's_mov_b32 s{S_CNT}, {SPIN * 40}')
        a('s_mov_b32 s95, 2')
        a.label(f'L_pp{t}')
        a(f'ds_read_b32 v{FLG}, v10 offset:{F_PS + 16 * t}')
        a('s_waitcnt lgkmcnt(0)')
        a(f'v_cmp_ne_u32 vcc, s95, v{FLG}')
        a(f's_cbranch_vccnz L_ps{t}')
        a.label(f'L_pg{t}')
        p_rd(0)
        ops = ['P0']

        def issue_rd(n):
            rd(n)
            ops.extend([f'R{n}', f'R{n}'])
        for n in range(DIST):
            issue_rd(n)
            if n == 1:
                p_rd(1)
                ops.append('P1')
        for n in range(16):
            ks, blk = seq[n]
            need = max(i for i, x in enumerate(ops) if x in (f'R{n}', f'P{ks}'))
            a(f's_waitcnt lgkmcnt({min(15, len(ops) - 1 - need)})')
            if t == 0 and blk == 3:
                a(f'ds_write_b32 v7, v35 offset:{F_DONE}')
                ops.append('W')
            c = '0' if (t == 0 and ks == 0) else vr(O_ + 16 * blk, 16)
            a(f'v_mfma_f32_32x32x16_bf16 {vr(O_ + 16 * blk, 16)}, {vr(PFm(ks), 4)}, {vr(BFS[n % NB], 4)}, {c}')
            if t == 0 and blk == 1:
                a('v_add_u32 v35, 1, v35')
            if t < 3 and n in (3, 7):
                p_rd(2 + n // 4)
                ops.append(f'P{2 + n // 4}')
            if t == 3 and n in (0, 1):
                p_rd(2 + n)
                ops.append(f'P{2 + n}')
            if n + DIST < 16:
                issue_rd(n + DIST)
            if n >= 10:
                for _ in range(6):
                    if shadow:
                        a(shadow.pop(0))
        for ins in shadow:
            a(ins)

    pv(0)
    stamp(3)
    pv(1)
    stamp(4)
    a('v_mov_b32 v5, 5')
    a(f'ds_write_b32 v7, v5 offset:{F_DONE}')
    lds_wait(10, F_DONE, 5, 5, 0)
    for j in range(16):
        if j % 2 == 0:
            a(f's_waitcnt vmcnt({14 - j + o.r3})')
        a(f'ds_write_b128 v9, {vr(TR + 4 * j, 4)} offset:{1024 * j + 16384}')
    a('v_mov_b32 v5, 3')
    a(f'ds_write_b32 v7, v5 offset:{F_LAND}')
    stamp(5)
    if o.r3:
        for j in range(o.r3):
            if j % 2 == 0:
                a(f's_waitcnt vmcnt({o.r3 - 2 - j})')
            a(f'ds_write_b128 v9, {vr(TR + 64 + 4 * j, 4)} offset:{1024 * j}')
        a('v_mov_b32 v5, 4')
        a(f'ds_write_b32 v7, v5 offset:{F_LAND}')
    pv(2)
    stamp(6)
    a('v_mov_b32 v35, 6')
    pv(3)
    stamp(7)

    def l_reads():
        a(f'ds_read_b32 v{FLG}, v10 offset:{F_LSEQ}')
        a(f'ds_read_b128 v[172:175], v{vRL}')
        a(f'ds_read_b32 v168, v{vRM}')
    l_reads()
    lists = [half_store(ap, 1) for ap in range(8)]
    for ap in range(8):
        if ap == o.rwait - 1:
            lists[ap].append(f'ds_write_b32 v7, v35 offset:{F_DONE}')
    for ins in skew(lists):
        a(ins)
    a('s_waitcnt lgkmcnt(0)')
    a(f'v_cmp_ne_u32 vcc, 1, v{FLG}')
    for k in range(4):
        dpp('v_xor_b32', XX + 2 * k, XX + 2 * k, XX + 2 * k, 'row_ror:8', 0x3)
    a('s_cbranch_vccnz L_lslow')
    a.label('L_lok')
    for k in range(4):
        dpp('v_xor_b32', XX + 2 * k, XX + 2 * k + 1, XX + 2 * k + 1, 'row_ror:8', 0xc)
    a('v_add_f32 v172, v172, v173')
    for m in range(2):
        dpp('v_xor_b32', XX + 4 * m, XX + 4 * m, XX + 4 * m, 'row_half_mirror', 0x5)
    a('v_add_f32 v174, v174, v175')
    for m in range(2):
        dpp('v_xor_b32', XX + 4 * m, XX + 4 * m + 2, XX + 4 * m + 2, 'row_half_mirror', 0xa)
    a('v_add_f32 v169, v172, v174')
    for m in range(2):
        dpp('v_xor_b32', XX + 4 * m, XX + 4 * m, XX + 4 * m, 'quad_perm:[1,0,3,2]')
    a(f'v_bitop3_b32 v171, v168, v169, s{S_TAG} {XOR3}')
    for m in range(2):
        dpp('v_xor_b32', 170 if m == 0 else XX + 4, XX + 4 * m, XX + 4 * m, 'quad_perm:[2,3,0,1]')
    ex(0x2222222222222222)
    a(f'v_mov_b32 v170, v{XX + 4}')
    ex(0x3333333333333333)
    a('v_xor_b32 v171, v171, v170')
    a(f'buffer_store_dwordx4 v[168:171], v{vRC}, {S(R_WS)}, s97 offen sc1')
    if o.stamps:
        stamp(8)
        a('s_waitcnt vmcnt(0)')
        stamp(9)
        a('s_cmp_lg_u32 s3, 0')
        a('s_cbranch_scc1 L_end')
        dump_stamps(11, 1)
    a('s_endpgm')
    a.label('L_lslow')
    l_reads()
    a('s_waitcnt lgkmcnt(0)')
    a(f'v_cmp_ne_u32 vcc, 1, v{FLG}')
    a('s_cbranch_vccz L_lok')
    a(f's_sub_u32 s{S_CNT}, s{S_CNT}, 1')
    a('s_cbranch_scc0 L_lslow')
    a('s_branch L_lok')
    for t in range(4):
        a.label(f'L_ps{t}')
        a(f'v_cmp_ne_u32 vcc, 3, v{FLG}')
        a(f's_cbranch_vccz L_pr{t}')
        a('s_sleep 1')
        a(f's_sub_u32 s{S_CNT}, s{S_CNT}, 1')
        a(f's_cbranch_scc0 L_pp{t}')
        a(f's_branch L_pg{t}')
        a.label(f'L_pr{t}')
        if t > 0:
            for jq in range(4):
                a(f'ds_read_b128 {vr(44 + 4 * jq, 4)}, v{vAR} offset:{128 * t + 32 * jq}')
            a('s_waitcnt lgkmcnt(0)')
            a('s_nop 7')
            for blk in range(4):
                for j in range(16):
                    a(f'v_mul_f32 v{O_ + 16 * blk + j}, v{O_ + 16 * blk + j}, v{44 + j}')
        a(f's_branch L_pg{t}')

    a.label('L_comp')
    QA = 128
    vMW, vFW, vPW, vFR, vAW, vMR = 6, 7, 8, 10, 11, 9
    NM, LL = 12, 14
    SS, PKS, EX4, AA, AQ, WK = 32, 40, 44, 48, 56, 64
    NA = 8
    a('v_lshlrev_b32 v16, 2, v1')
    a(f'v_add_u32 v16, {FB}, v16')
    a('v_mov_b32 v17, 0')
    a('ds_write_b32 v16, v17')
    a('s_waitcnt lgkmcnt(0)')
    a('s_barrier')
    a(f's_load_dword s{S_TAG}, s[{R_WS}:{R_WS + 1}], {WS_EPOCH}')
    srd_ptr([R_CKV])
    consts()
    a(f's_add_u32 s63, s90, {TS + 15 * 1024}')
    if o.mix:
        a(f's_xor_b32 s63, s63, {MX[1] ^ M3}')
    a(f's_add_u32 s99, s90, {3 * TS}')
    if M3:
        a(f's_xor_b32 s99, s99, {M3}')
    if o.r3:
        a(f's_add_u32 s99, s99, {o.r3 * 1024}')
        gm_ = (0, MX[0], MX[0] ^ MX[1], MX[1])[(o.r3 // 4) % 4]
        if gm_:
            a(f's_xor_b32 s99, s99, {gm_}')
    a(f's_add_u32 m0, s91, {o.r3 * 1024}')
    for j in range(8):
        a(f'v_xor_b32 v{104 + j}, {32 * j}, v2')
    a('v_xor_b32 v21, 0xe0, v2')
    a(f'buffer_load_dwordx4 v[24:27], v21, {S(R_CKV)}, s63 offen nt')
    a('v_mov_b32 v20, 128')
    a('global_load_dword v100, v20, s[86:87] sc1')
    if o.tlb & 1:
        a('v_lshrrev_b32 v20, 1, v4')
        a('v_xor_b32 v22, v20, v4')
        a('v_and_b32 v22, 1, v22')
        a(f'v_lshlrev_b32 v22, {o.mb1}, v22')
        a(f'v_lshl_add_u32 v22, v20, {o.mb2}, v22')
        a('v_xor_b32 v22, s90, v22')
        a('v_lshl_add_u32 v22, v4, 12, v22')
        a('v_bfe_u32 v20, v1, 2, 2')
        a('v_lshl_add_u32 v22, v20, 16, v22')
        ex(0xffff)
        a(f'buffer_load_dword v101, v22, {S(R_CKV)}, 0 offen offset:3968 nt')
        ex(-1)
    if o.tlb & 2:
        a('v_lshlrev_b32 v22, 17, v1')
        a('s_lshl_b32 s94, s3, 15')
        a(f's_add_u32 s94, s94, {WS_OP}')
        ex(0x1ffffffff)
        a(f'buffer_load_dword v102, v22, {S(R_WS)}, s94 offen nt')
        ex(-1)
    a(f's_add_u32 s6, s91, {16384 + 15 * 1024}')
    a('v_add_u32 v28, s6, v2')
    a('s_lshl_b32 s90, s4, 15')
    a('s_lshl_b32 s95, s3, 13')
    a('s_add_u32 s90, s90, s95')
    if WS_QA:
        a(f's_add_u32 s90, s90, {WS_QA}')
    a('s_add_u32 s92, s90, 4096')
    a(f's_lshl_b32 s93, s3, {8 if o.hc else 12}')
    a(f's_lshl_b32 s94, s4, {10 if o.hc else 3}')
    a('s_add_u32 s93, s93, s94')
    a(f's_add_u32 s93, s93, {WS_QAH}')
    a('v_lshrrev_b32 v16, 1, v1')
    a(f'v_lshlrev_b32 v16, {3 if o.hc else 7}, v16')
    a('s_and_b32 s94, s3, 1')
    a('s_lshl_b32 s94, s94, 7')
    a('v_xor_b32 v17, s94, v2')
    a(f's_add_u32 s95, s95, {SB}')
    a('v_add_u32 v17, s95, v17')
    for i in range(4):
        a(f'v_xor_b32 v{96 + i}, {32 * i}, v17')
    a('v_lshrrev_b32 v22, 5, v1')
    a('v_and_b32 v29, 1, v3')
    a('v_lshlrev_b32 v23, 4, v29')
    a('v_lshl_add_u32 v23, v22, 9, v23')
    a('v_bfe_u32 v18, v1, 3, 1')
    a('v_lshl_add_u32 v18, v18, 2, v4')
    a('v_lshl_add_u32 v18, v18, 5, v23')
    a('v_lshl_add_u32 v18, v11, 10, v18')
    a(f'v_add_u32 v18, {SB}, v18')
    a('v_bfe_u32 v20, v1, 2, 2')
    a('v_lshl_add_u32 v21, v4, 2, v20')
    a('v_lshl_add_u32 v19, v21, 10, v23')
    a('v_and_b32 v21, 14, v21')
    a('v_lshl_add_u32 v19, v21, 4, v19')
    a('v_add_u32 v19, s91, v19')
    for i in range(8):
        a(f'v_xor_b32 v{AA + i}, {32 * i}, v19')
        a(f'v_xor_b32 v{AQ + i}, {32 * i}, v18')
    a('v_and_b32 v20, 31, v1')
    a('s_lshl_b32 s95, s3, 2')
    a(f's_add_u32 s95, s95, {L_MAX}')
    a(f'v_lshl_add_u32 v{vMW}, v20, 4, s95')
    a(f'v_lshlrev_b32 v{vPW}, 9, v22')
    a(f'v_lshl_add_u32 v{vPW}, v11, 4, v{vPW}')
    a(f'v_lshl_add_u32 v{vPW}, v29, 3, v{vPW}')
    a('s_lshl_b32 s95, s3, 10')
    a(f's_add_u32 s95, s95, {L_P}')
    a(f'v_add_u32 v{vPW}, s95, v{vPW}')
    a(f'v_lshlrev_b32 v{vMR}, 4, v11')
    a(f'v_add_u32 v{vMR}, {L_MAX}, v{vMR}')
    a(f'v_lshlrev_b32 v{vAW}, 2, v11')
    a(f'v_add_u32 v{vAW}, {L_ALPHA}, v{vAW}')
    a(f'v_mov_b32 v{LL}, 0')
    a(f'v_mov_b32 v{LL + 1}, 0')
    a('v_mov_b32 v0, 1')
    a('v_mov_b32 v5, 2')
    a(f's_mov_b32 s98, {f32bits(float(o.thr))}')
    a('s_mov_b32 s96, 1')
    a(f's_and_b32 s94, s2, {o.nh - 1}')
    a('s_lshl_b32 s94, s94, 7')
    a(f's_add_u32 s94, s94, {WS_HU}')
    a(f's_add_u32 s0, s{R_WS}, s94')
    a(f's_addc_u32 s1, s{R_WS + 1}, 0')
    get_tag()
    if o.sprio:
        a(f's_setprio {o.sprio}')
    HR_ = 30

    def q_row(i):
        a(f'buffer_load_dwordx4 {vr(QA + 4 * i, 4)}, v2, {S(R_WS)}, s{90 if i < 4 else 92} offen offset:{1024 * (i % 4)} sc1')
    if o.hone:
        a('s_cmp_eq_u32 s3, 0')
        a('s_cbranch_scc1 L_hu0')
        a(f'v_mov_b32 v20, {FB}')
        lds_wait(20, F_HUS, 1, 19, 0)
        a('s_branch L_hugo2')
        a.label('L_hu0')
    a(f's_mov_b32 s{S_CNT}, {SPIN}')
    a.label('L_hu')
    a('s_load_dword s94, s[0:1], 0 glc')
    a('s_waitcnt lgkmcnt(0)')
    a(f's_cmp_eq_u32 s94, s{S_TAG}')
    a('s_cbranch_scc1 L_hugo')
    if o.hsl:
        a(f's_sleep {o.hsl}')
    a(f's_sub_u32 s{S_CNT}, s{S_CNT}, 1')
    a('s_cbranch_scc0 L_hu')
    a.label('L_hugo')
    if o.hone:
        a(f'ds_write_b32 v{vFW}, v0 offset:{F_HUS}')
        a.label('L_hugo2')
    a(f's_mov_b32 s{S_CNT}, {SPIN}')
    a.label('L_qload')
    a(f'buffer_load_dwordx2 {vr(HR_, 2)}, v16, {S(R_WS)}, s93 offen sc1')
    for i in range(8):
        q_row(i)
    a(f'ds_write_b32 v{vFW}, v0 offset:{F_HUS}')
    stamp(8)
    a('s_waitcnt vmcnt(8)')
    a(f'v_bitop3_b32 v21, v{HR_}, v{HR_ + 1}, s{S_TAG} {XOR3}')
    for i in range(8):
        a(f's_waitcnt vmcnt({7 - i})')
        a(f'ds_write_b128 v{96 + i % 4}, {vr(QA + 4 * i, 4)} offset:{1024 * i}')
        xor_chain(19, ([19] if i else []) + list(range(QA + 4 * i, QA + 4 * i + 4)))
    for c in ('quad_perm:[1,0,3,2]', 'quad_perm:[2,3,0,1]', 'row_ror:4', 'row_ror:8'):
        dpp('v_xor_b32', 19, 19, 19, c)
        if c == 'quad_perm:[1,0,3,2]':
            a(f'v_xor_b32 v19, v19, v{HR_}')
    swap_step('v_xor_b32', 19, 20, 16)
    swap_step('v_xor_b32', 19, 20, 32)
    a('v_or_b32 v19, v19, v21')
    a('v_cmp_ne_u32 vcc, 0, v19')
    a('s_cbranch_vccz L_qdone')
    a(f's_sub_u32 s{S_CNT}, s{S_CNT}, 1')
    a('s_cbranch_scc0 L_qload')
    a.label('L_qdone')
    a(f'ds_write_b32 v{vFW}, v0 offset:{F_QST}')
    stamp(10)
    lds_wait(vFW, F_LAND, 1, 19)
    lds_wait(vFR, F_QST, 1, 19, 0)
    stamp(3)

    def a_read(m, buf):
        a(f'ds_read_b128 {vr(WK + 4 * (m % NA), 4)}, v{AA + m // 2} offset:{256 * (m % 2) + 16384 * buf}')

    def q_read(m):
        for hh in range(2):
            a(f'ds_read_b128 {vr(QA + 64 * hh + 4 * m, 4)}, v{AQ + m // 2} offset:{16384 * hh + 256 * (m % 2)}')

    def s_mfma(st, zero):
        for hh in range(2):
            mfma16(SS + 4 * hh, WK + 4 * (st % NA), QA + 64 * hh + 4 * st, zero and st == 0)
    for st in range(4):
        q_read(st)
        a_read(st, 0)
    for st in range(16):
        a(f's_waitcnt lgkmcnt({3 * min(3, 15 - st)})')
        s_mfma(st, True)
        if st + 4 < 16:
            q_read(st + 4)
            a_read(st + 4, 0)

    def max_xchg(lbl, floor):
        a('v_mov_b32 v18, s96')
        for hh in range(2):
            a(f'v_max3_f32 v{16 + hh}, v{SS + 4 * hh}, v{SS + 4 * hh + 1}, v{SS + 4 * hh + 2}')
            if floor:
                a(f'v_max3_f32 v{16 + hh}, v{16 + hh}, v{SS + 4 * hh + 3}, 0')
            else:
                a(f'v_max_f32 v{16 + hh}, v{16 + hh}, v{SS + 4 * hh + 3}')
        a('v_permlane16_swap_b32 v16, v17')
        a('v_max_f32 v16, v16, v17')
        swap_step('v_max_f32', 16, 17, 32)
        a(f'ds_write_b32 v{vMW}, v16')
        a(f'ds_write_b32 v{vFW}, v18 offset:{F_MSEQ}')
        a(f's_mov_b32 s{S_CNT}, {SPIN * 40}')
        a.label(lbl)
        a(f'ds_read_b32 v18, v{vFR} offset:{F_MSEQ}')
        a(f'ds_read_b128 {vr(WK, 4)}, v{vMR}')
        a(f'ds_read_b128 {vr(WK + 4, 4)}, v{vMR} offset:256')
        a('s_waitcnt lgkmcnt(0)')
        a('v_cmp_gt_u32 vcc, s96, v18')
        a(f's_cbranch_vccz {lbl}go')
        a(f's_sub_u32 s{S_CNT}, s{S_CNT}, 1')
        a(f's_cbranch_scc0 {lbl}')
        a.label(lbl + 'go')
        for hh in range(2):
            a(f'v_max3_f32 v{16 + hh}, v{WK + 4 * hh}, v{WK + 4 * hh + 1}, v{WK + 4 * hh + 2}')
            a(f'v_max_f32 v{16 + hh}, v{16 + hh}, v{WK + 4 * hh + 3}')
            for j in range(4):
                a(f'v_sub_f32 v{SS + 4 * hh + j}, v{SS + 4 * hh + j}, v{16 + hh}')

    def soft(t):
        g = []
        for hh in range(2):
            for j in range(4):
                g.append(f'v_exp_f32 v{EX4 + j}, v{SS + 4 * hh + j}')
            g.append(f'v_cvt_pk_bf16_f32 v{PKS + 2 * hh}, v{EX4}, v{EX4 + 1}')
            g.append(f'v_cvt_pk_bf16_f32 v{PKS + 2 * hh + 1}, v{EX4 + 2}, v{EX4 + 3}')
            g.append(f'ds_write_b64 v{vPW}, {vr(PKS + 2 * hh, 2)} offset:{4096 * t + 256 * hh}')
        return g

    def l_commit():
        for k in range(2):
            for hh in range(2):
                a(f'v_dot2_f32_bf16 v{LL + hh}, v{PKS + 2 * hh + k}, s{S_ONES}, v{LL + hh}')
    max_xchg('L_m0', False)
    for ins in soft(0):
        a(ins)
    a(f'ds_write_b32 v{vFW}, v5 offset:{F_PS}')
    a('ds_write_b128 v28, v[24:27]')
    a(f'ds_write2_b32 v{vAW}, v16, v17 offset0:128 offset1:144')
    for hh in range(2):
        a(f'v_sub_f32 v{NM + hh}, 0, v{16 + hh}')
    l_commit()
    a('s_cmp_lg_u32 s3, 1')
    a('s_cbranch_scc1 L_nom0')
    a('v_permlane16_swap_b32 v16, v17')
    a('s_lshl_b32 s94, s4, 12')
    a('s_lshl_b32 s95, s5, 7')
    a('s_add_u32 s94, s94, s95')
    a(f's_add_u32 s94, s94, {WS_M0}')
    a('v_lshlrev_b32 v18, 2, v1')
    a(f'v_xor_b32 v16, s{S_TAG}, v16')
    ex(0xffffffff)
    a(f'buffer_store_dword v16, v18, {S(R_WS)}, s94 offen sc1')
    ex(-1)
    a.label('L_nom0')
    stamp(4)
    PD = 6
    for t in range(1, 4):
        lbl = f'L_l{t}'
        a(f's_mov_b32 s{S_CNT}, {SPIN * 40}')
        for hh in range(2):
            for j in range(4):
                a(f'v_mov_b32 v{SS + 4 * hh + j}, v{NM + hh}')
        def t3_wait():
            a('s_add_u32 s94, s3, 1')
            lds_wait(vFR, F_DONE, 's94', 18, 0)

        def t3_row(j):
            a(f'buffer_load_dwordx4 v{104 + j // 2}, {S(R_CKV)}, s99 offen offset:{(j % 4) * 1024} nt lds')
            if j % 4 == 3 and j < 15:
                a('s_add_u32 s99, s99, 4096')
                if o.mix:
                    a(f's_xor_b32 s99, s99, {MX[(j // 4) % 2]}')
                a('s_add_u32 m0, m0, 4096')
        if (t == 2 and o.t3 == 0) or (t == 1 and o.t3 == 1):
            def s_go():
                lb = a.uid('nogo')
                a('s_cmp_lg_u32 s3, 0')
                a(f's_cbranch_scc1 {lb}')
                a('s_sub_u32 s92, s2, 128')
                a('s_lshl_b32 s92, s92, 7')
                a(f's_add_u32 s92, s92, {WS_GO}')
                a(f'v_mov_b32 v18, s{S_TAG}')
                a('v_lshlrev_b32 v19, 2, v1')
                ex(0xffffffff)
                a(f'buffer_store_dword v18, v19, {S(R_WS)}, s92 offen sc1')
                ex(-1)
                a.label(lb)
            t3_wait()
            if o.gon == 98:
                s_go()
            for j in range(o.r3, 16):
                t3_row(j)
            if o.gon == 99:
                s_go()
            stamp(1)
            a(f's_mov_b32 s{S_CNT}, {SPIN * 40}')
        if t < 3 or o.r3:
            a.label(lbl)
            a(f'ds_read_b32 v18, v{vFW} offset:{F_LAND}')
            a('s_waitcnt lgkmcnt(0)')
            a(f'v_cmp_ge_u32 vcc, {t}, v18')
            a(f's_cbranch_vccz {lbl}go')
            a('s_sleep 1')
            a(f's_sub_u32 s{S_CNT}, s{S_CNT}, 1')
            a(f's_cbranch_scc0 {lbl}')
            a.label(lbl + 'go')
        if t == 3:
            a('s_waitcnt vmcnt(0)')
            stamp(2)
        for st in range(PD):
            a_read(st, BUF[t])
        if t == 3 and o.rpos == 0:
            a('s_lshl_b32 s94, s4, 2')
            a('s_add_u32 s94, s94, 16')
            arrive(0, 30, 31, 's94')
        for st in range(16):
            a(f's_waitcnt lgkmcnt({min(PD - 1, 15 - st)})')
            s_mfma(st, False)
            if st + PD < 16:
                a_read(st + PD, BUF[t])
            if t == 1 and o.t3 >= 2:
                if st == o.t3:
                    t3_wait()
                    t3q = list(range(16))
                if st >= o.t3:
                    for _ in range(-(-16 // (16 - o.t3))):
                        if t3q:
                            t3_row(t3q.pop(0))
                if st == 15:
                    stamp(1)
        for k, ins in enumerate(soft(t)):
            a(ins)
            if k == 3:
                a(f'v_max3_f32 v19, v{SS}, v{SS + 1}, v{SS + 2}')
                a(f'v_max3_f32 v19, v{SS + 3}, v{SS + 4}, v19')
            if k == 10:
                a(f'v_max3_f32 v19, v{SS + 5}, v{SS + 6}, v19')
                a(f'v_max_f32 v19, v{SS + 7}, v19')
                a('v_cmp_lt_f32 vcc, s98, v19')
        a('s_cmp_eq_u64 vcc, 0')
        a('s_cselect_b32 s91, 2, 1')
        a('v_mov_b32 v18, s91')
        a(f'ds_write_b32 v{vFW}, v18 offset:{F_PS + 16 * t}')
        stamp(4 + t)
        if t == 3 and o.rpos == 1:
            a('s_lshl_b32 s94, s4, 2')
            a('s_add_u32 s94, s94, 16')
            arrive(0, 30, 31, 's94')
        a(f's_mov_b32 s{S_CNT}, {SPIN * 40}')
        a.label(f'L_c{t}')
        a(f'ds_read_b32 v18, v{vFR} offset:{F_PS + 16 * t}')
        a('s_waitcnt lgkmcnt(0)')
        a('v_cmp_ne_u32 vcc, 2, v18')
        a(f's_cbranch_vccnz L_cs{t}')
        a.label(f'L_cg{t}')
        l_commit()
    a('s_lshl_b32 s94, s4, 2')
    a('s_add_u32 s94, s94, 16')
    a(f'v_permlane16_swap_b32 v{LL}, v{LL + 1}')
    a(f'v_add_f32 v{LL}, v{LL}, v{LL + 1}')
    swap_step('v_add_f32', LL, LL + 1, 32)
    a(f'ds_write_b32 v{vMW}, v{LL}')
    a(f'ds_write_b32 v{vFW}, v0 offset:{F_LSEQ}')
    if o.rdelay:
        a(f's_sleep {o.rdelay}')
    if o.rpos == 2:
        arrive(0, 30, 31, 's94')
    a('s_cmp_lg_u32 s3, 0')
    a('s_cbranch_scc1 L_norel2')
    a('s_lshl_b32 s94, s4, 14')
    a(f's_add_u32 s94, s94, {WS_OF}')
    a('s_add_u32 s95, s94, 8192')
    a('v_lshlrev_b32 v31, 7, v1')
    a(f'v_mov_b32 v29, s{S_TAG}')
    a('s_waitcnt vmcnt(0)')
    a('v_readfirstlane_b32 s1, v30')
    a('s_and_b32 s1, s1, 31')
    a('s_cmp_lg_u32 s1, 31')
    a('s_cbranch_scc1 L_norel2')
    if o.rwait:
        lds_wait(vFR, F_DONE, 6, 18, 0)
    if o.nl < 64:
        ex((1 << o.nl) - 1)
    a(f'buffer_store_dword v29, v31, {S(R_WS)}, s94 offen sc1')
    if o.nl > 64:
        a(f'buffer_store_dword v29, v31, {S(R_WS)}, s95 offen sc1')
    a.label('L_norel2')
    stamp(9)
    a.label('L_send')
    if o.stamps:
        a('s_memrealtime s[90:91]')
        a('s_cmp_lg_u32 s3, 0')
        a('s_cbranch_scc1 L_end')
        dump_stamps(14, 0)
    a('s_endpgm')
    for t in range(1, 4):
        a.label(f'L_cs{t}')
        a('v_cmp_eq_u32 vcc, 0, v18')
        a(f's_cbranch_vccz L_ex{t}')
        a(f's_sub_u32 s{S_CNT}, s{S_CNT}, 1')
        a(f's_cbranch_scc0 L_c{t}')
        a(f's_branch L_cg{t}')
        a.label(f'L_ex{t}')
        a('s_add_u32 s96, s96, 1')
        max_xchg(f'L_mx{t}', True)
        for hh in range(2):
            a(f'v_exp_f32 v{20 + hh}, -v{16 + hh}')
            a(f'v_sub_f32 v{NM + hh}, v{NM + hh}, v{16 + hh}')
            a(f'v_sub_f32 v{22 + hh}, 0, v{NM + hh}')
            a(f'v_mul_f32 v{LL + hh}, v{LL + hh}, v{20 + hh}')
        a(f'ds_write2_b32 v{vAW}, v20, v21 offset0:{32 * t} offset1:{32 * t + 16}')
        a(f'ds_write2_b32 v{vAW}, v22, v23 offset0:128 offset1:144')
        for ins in soft(t):
            a(ins)
        a('v_mov_b32 v18, 3')
        a(f'ds_write_b32 v{vFW}, v18 offset:{F_PS + 16 * t}')
        lds_wait(vFR, F_PS + 16 * t, 3, 18, 0)
        a(f's_branch L_cg{t}')
    a.label('L_end')
    a('s_endpgm')

    txt = HEADER
    txt += f'; @launch grid=(256,1,1) block=(512,1,1) lds={LDS_TOTAL}\n'
    txt += '.amdgcn_target "amdgcn-amd-amdhsa--gfx950"\n.text\n'
    txt += a.finalize()
    txt += f""".section .rodata,"a"
.p2align 6
.amdhsa_kernel {name}
  .amdhsa_next_free_vgpr 256
  .amdhsa_next_free_sgpr 102
  .amdhsa_accum_offset 256
  .amdhsa_group_segment_fixed_size 0
  .amdhsa_kernarg_size 104
  .amdhsa_user_sgpr_count 2
  .amdhsa_user_sgpr_kernarg_segment_ptr 1
  .amdhsa_system_sgpr_workgroup_id_x 1
.end_amdhsa_kernel
"""
    return txt


if __name__ == '__main__':
    o = Opt()
    for kv in sys.argv[2:]:
        k, v = kv.split('=')
        setattr(o, k, v.replace('+', ' ') if k == 'r64' else int(v))
    open(sys.argv[1], 'w').write(gen(o))
```

```python
import sys
sys.path.insert(0, 'dev')
from asmdsl import Asm
from layout17 import *

NAME = 'sequential_preLN__compressed_kv_cla__glu_gated_geglu__decode'
HEADER = open('cdna_kernels/' + NAME + '.s.ref').read().split('; Override launch')[0]
LDS_TOTAL = 163840
SB = 130048
L_P = 131072
FB = 162816
F_LAND, F_QST, F_MSEQ, F_DONE, F_LSEQ, F_HUS, F_PS = 0, 16, 32, 48, 64, 80, 96
L_MAX = FB + 512
L_ALPHA = L_P + 16384
L_MFIN = L_ALPHA + 512
A_WQ, A_WUK, A_WUV, A_WO, A_X, A_C, A_D = 0, 32768, 98304, 98304, 131072, 132096, 135168
A_WD, A_ACT, A_H = 65536, 138240, 139264

R_X, R_WS, R_CKV, R_WQ, R_WUK, R_WUV, R_WO, R_WG, R_WU, R_WD, R_OUT, R_ACT = [8 + 4 * i for i in range(12)]
SIZES = {R_X: 4096, R_WS: WS_END, R_CKV: 32 << 20, R_WQ: 4 << 20, R_WUK: 4 << 20, R_WUV: 4 << 20, R_WO: 4 << 20,
         R_WG: 512 * 2752, R_WU: 512 * 2752, R_WD: 1376 * 1024, R_OUT: 4096, R_ACT: 43 * 256}
PTR = {R_X: 64, R_CKV: 66, R_WQ: 68, R_WUK: 70, R_WUV: 72, R_WO: 74, R_WG: 78, R_WU: 80, R_WD: 82, R_OUT: 84}
S_TAG, S_ONES, S_LO1, S_HI1, S_CNT, S_MASK = 56, 57, 58, 59, 60, 62
S_XCC, S_LOC = 52, 53
SPIN = 200000
XOR3 = 'bitop3:0x96'


class Opt:
    stamps = 0
    w0 = 1
    n0 = 2
    window = 20
    w3 = 16
    wwin = 8
    sleep = 1
    sleep_long = 6
    stsleep = 3
    thr = 60
    dbgwg = 192
    hold = 0
    dsleep = 1
    ddelay = 0
    gon = 98
    fine = 0
    hupos = 1
    edelay = 0
    efwin = 4
    sw = 1
    efgo = 0
    qdelay = 0
    hprio = 1
    nsamp = 2
    rdelay = 0
    lw = 12
    diag = 0
    rpos = 1
    owin = 3
    ef0 = 2
    il = 0
    mix = 1
    loc = 1
    egate = 1
    lprio = 2
    rwait = 5
    qloc = 0
    hc = 0
    hfull = 1
    smask = 0x2222
    t3 = 0
    nl = 32
    pf = 0
    emask = 0xd1d
    emask2 = 0x1d
    m3 = 0
    dmask = 0xe2e2
    dfw = 0
    r3 = 4
    dsite = 0
    didx = 0
    dx = 8
    mw = 1 << 18
    nh = 64
    hone = 1
    hsl = 0
    osl = 0
    oone = 0
    osc = 0
    wb = 0
    tlb = 0
    arrpos = 2
    earlym = 1
    mb1 = 20
    mb2 = 19
    efn = 2
    pvprio = 0
    sprio = 0
    r64 = 'nt'
    wgo = 1
    esleep = 0
    fdelay = 0
    now = 0
    w1 = 5
    n1 = 0


def vr(a, n):
    return f'v[{a}:{a + n - 1}]' if n > 1 else f'v{a}'


def S(base):
    return f's[{base}:{base + 3}]'


def gen(o):
    a = Asm()
    name = NAME + '_kernel'
    o.st3 = o.stamps == 3

    def ex(mask):
        if mask == -1:
            a('s_mov_b64 exec, -1')
        elif mask <= 64:
            a(f's_mov_b64 exec, {mask}')
        else:
            a(f's_mov_b32 exec_lo, 0x{mask & 0xffffffff:x}')
            a(f's_mov_b32 exec_hi, 0x{mask >> 32:x}')

    def dpp(op, d, s0, s1, ctrl, bank=0xf):
        a(f'{op}_dpp v{d}, v{s0}, v{s1} {ctrl} row_mask:0xf bank_mask:0x{bank:x}')

    def swap_step(op, v, t, which):
        a(f'v_mov_b32 v{t}, v{v}')
        a(f'v_permlane{which}_swap_b32 v{v}, v{t}')
        a(f'{op} v{v}, v{v}, v{t}')

    def fine2(r):
        if o.fine == 2:
            lb = a.uid('f2')
            a('s_cmp_lg_u32 s97, 0')
            a(f's_cbranch_scc1 {lb} ;noflush')
            a(f's_memtime s[{r}:{r + 1}]')
            a.label(lb)

    def f3(r):
        if o.fine == 3:
            a(f's_memtime s[{r}:{r + 1}]')

    def stamp(idx):
        if o.stamps:
            a(f's_memrealtime s[{64 + 2 * idx}:{65 + 2 * idx}]')

    site = [0]

    def dump_stamps(n, grp, dbg=None):
        site[0] += 1
        if o.dsite:
            if o.dsite == site[0]:
                r = 100 if o.didx == 0 else 64 + 2 * o.didx
                lb = a.uid('dg')
                if o.dx < 8:
                    a('s_and_b32 s92, s2, 7')
                    a(f's_cmp_lg_u32 s92, {o.dx}')
                    a('s_cbranch_scc1 L_end')
                a('s_waitcnt lgkmcnt(0)')
                a(f's_mov_b32 s62, s{r}')
                a.label(lb)
                a('s_memrealtime s[92:93]')
                a('s_waitcnt lgkmcnt(0)')
                a('s_sub_u32 s92, s92, s62')
                a('s_cmp_lt_u32 s92, 4000')
                a(f's_cbranch_scc1 {lb}')
            return
        a('s_waitcnt lgkmcnt(0)')
        a('s_mov_b64 exec, -1')
        a('v_mov_b32 v3, 0')
        a('v_writelane_b32 v3, s100, 0')
        for i in range(1, n):
            a(f'v_writelane_b32 v3, s{64 + 2 * i}, {i}')
        a('v_mbcnt_lo_u32_b32 v4, -1, 0')
        a('v_lshlrev_b32 v4, 2, v4')
        a('s_lshl_b32 s90, s2, 7')
        a(f's_add_u32 s90, s90, {WS_STAMP + 64 * grp}')
        ex(0xffff)
        a(f'buffer_store_dword v3, v4, {S(R_WS)}, s90 offen')
        if o.stamps == 2 and dbg:
            lb = a.uid('nodbg')
            a('v_subrev_u32 v3, s100, v3')
            if dbg == 'h':
                a(f's_cmp_lg_u32 s2, {o.dbgwg}')
                a(f's_cbranch_scc1 {lb}')
                ex(0x7fe)
                a('global_store_dword v4, v3, s[86:87] offset:-4')
            else:
                a('s_cmp_lg_u32 s2, 0')
                a(f's_cbranch_scc1 {lb}')
                ex(0x3e8)
                a('v_mbcnt_lo_u32_b32 v4, exec_lo, 0')
                a('v_lshlrev_b32 v4, 2, v4')
                a('global_store_dword v4, v3, s[86:87] offset:40')
            a.label(lb)

    def xor_chain(tmp, regs, last=None):
        ops = [f'v{r}' for r in regs] + ([last] if last else [])
        a(f'v_bitop3_b32 v{tmp}, {ops[0]}, {ops[1]}, {ops[2]} {XOR3}')
        ops = ops[3:]
        while len(ops) >= 2:
            a(f'v_bitop3_b32 v{tmp}, v{tmp}, {ops[0]}, {ops[1]} {XOR3}')
            ops = ops[2:]
        if ops:
            a(f'v_xor_b32 v{tmp}, {ops[0]}, v{tmp}')

    def chk_sentinel(regs, tmp):
        rs = list(regs)
        a(f'v_max3_u32 v{tmp}, v{rs[0]}, v{rs[1]}, v{rs[2]}')
        rs = rs[3:]
        while len(rs) >= 2:
            a(f'v_max3_u32 v{tmp}, v{tmp}, v{rs[0]}, v{rs[1]}')
            rs = rs[2:]
        if rs:
            a(f'v_max_u32 v{tmp}, v{tmp}, v{rs[0]}')
        a(f'v_cmp_eq_u32 vcc, -1, v{tmp}')

    def poll(loads, check, sleep=None, wait='s_waitcnt vmcnt(0)'):
        L, Dn = a.uid('poll'), a.uid('pdone')
        a(f's_mov_b32 s{S_CNT}, {SPIN}')
        a.label(L)
        loads()
        a(wait)
        check()
        a(f's_cbranch_vccz {Dn}')
        sl = o.sleep if sleep is None else sleep
        if sl:
            a(f's_sleep {sl}')
        a(f's_sub_u32 s{S_CNT}, s{S_CNT}, 1')
        a(f's_cbranch_scc0 {L}')
        a.label(Dn)

    def lds_wait(addr, off, want, tmp, sleep=1):
        L, Dn = a.uid('lw'), a.uid('lwd')
        a(f's_mov_b32 s{S_CNT}, {SPIN * 40}')
        a.label(L)
        a(f'ds_read_b32 v{tmp}, v{addr} offset:{off}')
        a('s_waitcnt lgkmcnt(0)')
        a(f'v_cmp_gt_u32 vcc, {want}, v{tmp}')
        a(f's_cbranch_vccz {Dn}')
        if sleep:
            a(f's_sleep {sleep}')
        a(f's_sub_u32 s{S_CNT}, s{S_CNT}, 1')
        a(f's_cbranch_scc0 {L}')
        a.label(Dn)

    def nan_retry(tag, regs, again, go):
        a.label(tag)
        chk_sentinel(regs, 10)
        a(f's_cbranch_vccz {go}')
        a(f's_sub_u32 s{S_CNT}, s{S_CNT}, 1')
        a(f's_cbranch_scc0 {again}')
        a(f's_branch {go}')

    def mfma16(d, x, y, first):
        c = '0' if first else vr(d, 4)
        a(f'v_mfma_f32_16x16x32_bf16 {vr(d, 4)}, {vr(x, 4)}, {vr(y, 4)}, {c}')

    def srd(rs):
        for r in rs:
            a(f's_mov_b32 s{r + 2}, {SIZES[r]}')
            a(f's_mov_b32 s{r + 3}, 0x00020000')

    def srd_ptr(rs):
        for r in rs:
            if r == R_ACT:
                a(f's_add_u32 s{R_ACT}, s{R_WS}, {WS_ACT}')
                a(f's_addc_u32 s{R_ACT + 1}, s{R_WS + 1}, 0')
            else:
                a(f's_mov_b64 s[{r}:{r + 1}], s[{PTR[r]}:{PTR[r] + 1}]')

    def consts():
        a(f's_mov_b32 s{S_ONES}, 0x3f803f80')
        a(f's_mov_b32 s{S_LO1}, 0x3f80')
        a(f's_mov_b32 s{S_HI1}, 0x3f800000')
        a(f's_mov_b32 s{S_MASK}, 0xffff0000')

    def get_tag():
        a('s_waitcnt lgkmcnt(0)')
        a(f's_add_u32 s{S_TAG}, s{S_TAG}, 0x9e3779b9')

    def vF(d):
        a(f'v_bfe_u32 v{d}, v1, 2, 2')
        a(f'v_lshlrev_b32 v{d}, 8, v{d}')
        a(f'v_lshl_add_u32 v{d}, v3, 6, v{d}')
        a(f'v_lshl_add_u32 v{d}, v4, 4, v{d}')

    def tr64_addr(d, t):
        a(f'v_bfe_u32 v{t}, v1, 2, 2')
        a(f'v_lshl_add_u32 v{t}, v3, 3, v{t}')
        a(f'v_lshlrev_b32 v{d}, 6, v{t}')
        a(f'v_lshl_add_u32 v{d}, v4, 3, v{d}')

    def tr_op(dst, addr, off, tau):
        a(f'ds_read_b64_tr_b16 {vr(dst, 2)}, v{addr} offset:{off}')
        a(f'ds_read_b64_tr_b16 {vr(dst + 2, 2)}, v{addr} offset:{off + tau}')

    def red4_read(x, addr):
        ex(0xffffffff)
        for w in range(4):
            a(f'ds_read_b128 {vr(x + 4 * w, 4)}, v{addr} offset:{512 * w}')
        a('s_waitcnt lgkmcnt(2)')
        for i in range(4):
            a(f'v_add_f32 v{x + i}, v{x + i}, v{x + 4 + i}')
        a('s_waitcnt lgkmcnt(0)')
        for i in range(4):
            a(f'v_add_f32 v{x + 8 + i}, v{x + 8 + i}, v{x + 12 + i}')
        for i in range(4):
            a(f'v_add_f32 v{x + i}, v{x + i}, v{x + 8 + i}')

    def frag_addr(dst, t):
        a(f'v_bfe_u32 v{dst}, v1, 1, 2')
        a(f'v_lshlrev_b32 v{dst}, 6, v{dst}')
        a(f'v_bfe_u32 v{t}, v1, 3, 2')
        a(f'v_lshl_add_u32 v{dst}, v{t}, 4, v{dst}')
        a(f'v_and_b32 v{t}, 1, v1')
        a(f'v_lshl_add_u32 v{dst}, v{t}, 3, v{dst}')

    M4 = 0x000f000f000f000f
    NS = 8 * bin(o.smask).count('1')
    assert NS & (NS - 1) == 0

    def arrive(wave, ret, t0, off, sel='s3'):
        lb = a.uid('arr')
        a(f's_cmp_lg_u32 {sel}, {wave}')
        a(f's_cbranch_scc1 {lb} ;noflush')
        a(f'v_mov_b32 v{t0}, {off}')
        a(f'v_mov_b32 v{ret}, 1')
        ex(1)
        a(f'global_atomic_add v{ret}, v{t0}, v{ret}, s[86:87] sc0 sc1')
        ex(-1)
        a.label(lb)

    def release(wave, ret, t0, last, flag, wait=None):
        lb = a.uid('rel')
        a(f's_cmp_lg_u32 s3, {wave}')
        a(f's_cbranch_scc1 {lb} ;noflush')
        if wait:
            a(wait)
        a(f'v_readfirstlane_b32 s1, v{ret}')
        a(f's_and_b32 s1, s1, {last}')
        a(f's_cmp_lg_u32 s1, {last}')
        a(f's_cbranch_scc1 {lb} ;noflush')
        a('s_mov_b64 exec, -1')
        a(f'v_mbcnt_lo_u32_b32 v{t0}, -1, 0')
        a(f'v_lshlrev_b32 v{t0}, 2, v{t0}')
        a(f'v_mov_b32 v{ret}, s{S_TAG}')
        if isinstance(flag, int):
            a(f's_mov_b32 s1, {flag}')
            flag = 's1'
        ex(0xffffffff)
        a(f'buffer_store_dword v{ret}, v{t0}, {S(R_WS)}, {flag} offen sc1')
        ex(-1)
        a.label(lb)

    def flag_wait(flag, t0, sleep):
        if isinstance(flag, int):
            a(f's_mov_b32 s1, {flag}')
            flag = 's1'
        ex(1)
        poll(lambda: a(f'buffer_load_dword v{t0}, off, {S(R_WS)}, {flag} sc1'),
             lambda: a(f'v_cmp_ne_u32 vcc, s{S_TAG}, v{t0}'), sleep)
        ex(-1)

    a(f'.globl {name}\n.p2align 8\n.type {name},@function')
    a.label(name)
    if o.stamps or o.diag:
        a('s_memrealtime s[100:101]')
    a('s_cmp_ge_u32 s2, 256')
    a('s_cbranch_scc1 L_end')
    a('s_load_dwordx16 s[64:79], s[0:1], 0')
    a('s_load_dwordx8 s[80:87], s[0:1], 64')
    a(f's_load_dwordx2 s[{R_WS}:{R_WS + 1}], s[0:1], 96')
    a('s_cmp_lt_u32 s2, 128')
    a('s_cbranch_scc1 L_nopf')
    a('s_getpc_b64 s[94:95]')
    a.label('L_pc')
    a('v_lshlrev_b32 v1, 7, v0')
    a(f'v_cmp_gt_u32 vcc, L_end-L_pc, v1')
    a('s_and_saveexec_b64 s[96:97], vcc')
    a('s_cbranch_execz L_pfdone')
    a('global_load_dword v127, v1, s[94:95]')
    a.label('L_pfdone')
    a('s_mov_b64 exec, s[96:97]')
    a.label('L_nopf')
    a('v_and_b32 v1, 63, v0')
    a('v_lshrrev_b32 v2, 6, v0')
    a('v_readfirstlane_b32 s3, v2')
    a('v_lshlrev_b32 v2, 4, v1')
    a('v_lshrrev_b32 v3, 4, v1')
    a('v_and_b32 v4, 3, v1')
    a('v_and_b32 v11, 15, v1')
    srd([R_WS, R_X])
    a('s_cmp_ge_u32 s2, 128')
    a('s_cbranch_scc1 L_att')

    srd([R_WQ, R_WUK])
    a('s_and_b32 s4, s2, 7')
    a('s_lshl_b32 s4, s4, 2')
    a('s_bfe_u32 s5, s2, 0x20003')
    a('s_add_u32 s4, s4, s5')
    a('s_lshr_b32 s5, s2, 5')
    a('s_lshl_b32 s6, s4, 8')
    a('v_lshlrev_b32 v5, 1, v3')
    a('v_xor_b32 v5, v5, v11')
    a('v_lshlrev_b32 v5, 4, v5')
    a('v_lshl_add_u32 v6, v3, 13, v5')
    a('v_xor_b32 v7, 0x80, v6')
    a('v_xor_b32 v8, v3, v11')
    a('v_lshlrev_b32 v8, 4, v8')
    a('v_lshl_add_u32 v8, v3, 13, v8')
    a('s_lshl_b32 s90, s5, 20')
    a('s_lshl_b32 s91, s3, 17')
    a('s_add_u32 s90, s90, s91')
    a('s_add_u32 s90, s90, s6')
    a('s_lshl_b32 s91, s3, 12')
    a('s_mov_b32 m0, s91')
    a('v_bfe_u32 v10, v1, 2, 2')
    a('v_lshlrev_b32 v10, 6, v10')
    a('v_lshl_add_u32 v10, v4, 10, v10')
    a('v_lshl_add_u32 v10, v3, 4, v10')
    a('s_lshl_b32 s93, s5, 8')
    XS, XO = 12, 28
    a('s_waitcnt lgkmcnt(0)')
    srd_ptr([R_X, R_WQ, R_WUK])
    a('s_cmp_lg_u32 s3, 0')
    a('s_cbranch_scc1 L_nox')
    for i in range(4):
        a(f'buffer_load_dwordx4 {vr(XS + 4 * i, 4)}, v10, {S(R_X)}, 0 offen offset:{256 * i}')
    a(f'buffer_load_dwordx4 {vr(XO, 4)}, v10, {S(R_X)}, s93 offen')
    a.label('L_nox')
    if o.qloc:
        a('s_lshl_b32 s92, s4, 13')
        a('s_lshl_b32 s93, s3, 10')
        a('s_add_u32 s92, s92, s93')
        a(f's_add_u32 s92, s92, {WS_QPL}')
        a(f'buffer_load_dwordx4 v[68:71], v2, {S(R_WS)}, s92 offen sc1')
    for i in range(4):
        a(f's_add_u32 s92, s90, {i * 32768}')
        a(f'buffer_load_dwordx4 v{6 + i // 2}, {S(R_WQ)}, s92 offen nt lds')
        if i < 3:
            a('s_add_u32 m0, m0, 1024')
    a('s_barrier')
    a('s_cmp_lt_u32 s3, 4')
    a('s_cbranch_scc1 L_nouk')
    a('s_lshl_b32 s91, s3, 17')
    a('s_add_u32 s90, s90, s91')
    a(f's_sub_u32 s90, s90, {8 << 17}')
    a('s_lshl_b32 s91, s3, 13')
    a(f's_add_u32 m0, s91, {A_WUK - 32768}')
    for i in range(8):
        if i % 2 == 0:
            a(f'v_xor_b32 v9, {64 * (i // 2)}, v8')
        a(f's_add_u32 s92, s90, {i * 32768}')
        a(f'buffer_load_dwordx4 v9, {S(R_WUK)}, s92 offen nt lds')
        if i < 7:
            a('s_add_u32 m0, m0, 1024')
    a.label('L_nouk')
    a(f's_load_dword s{S_TAG}, s[{R_WS}:{R_WS + 1}], {WS_EPOCH}')
    srd_ptr([R_WUV, R_WO, R_WG, R_WU, R_WD, R_OUT])
    consts()
    stamp(1)
    a('s_cmp_lg_u32 s3, 0')
    a('s_cbranch_scc1 L_noln')
    a(f's_waitcnt vmcnt({5 + o.qloc})')
    for i in range(16):
        a(f'v_dot2_f32_bf16 v34, v{XS + i}, s{S_ONES}, {"0" if i == 0 else "v34"}')
        a(f'v_dot2_f32_bf16 v35, v{XS + i}, v{XS + i}, {"0" if i == 0 else "v35"}')
    for c in ('row_ror:4', 'row_ror:8'):
        dpp('v_add_f32', 34, 34, 34, c)
        dpp('v_add_f32', 35, 35, 35, c)
    for wh in (16, 32):
        a('v_mov_b32 v12, v34')
        a('v_mov_b32 v13, v35')
        a(f'v_permlane{wh}_swap_b32 v34, v12')
        a(f'v_permlane{wh}_swap_b32 v35, v13')
        a('v_add_f32 v34, v34, v12')
        a('v_add_f32 v35, v35, v13')
    a('v_mul_f32 v34, 0x3b000000, v34')
    a('v_mul_f32 v35, 0x3b000000, v35')
    a('v_fma_f32 v35, -v34, v34, v35')
    a('v_max_f32 v35, 0, v35')
    a('v_add_f32 v35, 0x3727c5ac, v35')
    a('v_rsq_f32 v35, v35')
    a(f'v_mul_f32 v35, {QSCALE_BITS}, v35')
    a('v_mul_f32 v34, v34, v35')
    a(f's_waitcnt vmcnt({4 + o.qloc})')
    for i in range(4):
        a(f'v_lshlrev_b32 v12, 16, v{XO + i}')
        a(f'v_and_b32 v13, s{S_MASK}, v{XO + i}')
        a('v_fma_f32 v12, v12, v35, -v34')
        a('v_fma_f32 v13, v13, v35, -v34')
        a(f'v_cvt_pk_bf16_f32 v{XO + i}, v12, v13')
    a(f'v_add_u32 v12, {A_X}, v2')
    a(f'ds_write_b128 v12, {vr(XO, 4)}')
    a.label('L_noln')
    srd([R_WUV, R_WO, R_WG, R_WU, R_WD, R_OUT])
    for i in range(4):
        a(f'v_mov_b32 v{36 + i}, -1')
    a('s_lshl_b32 s92, s2, 3')
    a('s_add_u32 s92, s92, s3')
    a('s_mul_i32 s92, s92, 352')
    a(f's_add_u32 s92, s92, {WS_CLEAN}')
    ex(0x3fffff)
    a(f'buffer_store_dwordx4 v[36:39], v2, {S(R_WS)}, s92 offen sc1')
    ex(-1)
    a('v_bfe_u32 v40, v1, 2, 3')
    a('v_lshlrev_b32 v40, 1, v40')
    a('s_lshl_b32 s92, s3, 1')
    a('s_and_b32 s92, s92, 12')
    a(f'v_bitop3_b32 v40, v40, v4, s92 {XOR3}')
    a('v_lshlrev_b32 v40, 4, v40')
    a('v_bfe_u32 v41, v1, 2, 2')
    a('v_lshl_add_u32 v41, v3, 3, v41')
    a('v_lshl_add_u32 v40, v41, 8, v40')
    a('s_and_b32 s92, s3, 1')
    a('s_lshl_b32 s92, s92, 3')
    a('v_add_u32 v40, s92, v40')
    a('v_lshlrev_b32 v41, 8, v3')
    a('v_lshl_add_u32 v41, v4, 4, v41')
    a(f'v_add_u32 v41, {A_X}, v41')
    a('v_lshlrev_b32 v42, 6, v3')
    a('v_lshl_add_u32 v42, v4, 4, v42')
    a('s_lshl_b32 s96, s4, 13')
    if WS_QP:
        a(f's_add_u32 s96, s96, {WS_QP}')
    a('s_lshl_b32 s92, s5, 11')
    a('s_add_u32 s97, s96, s92')
    a('s_lshl_b32 s92, s3, 8')
    a('s_add_u32 s97, s97, s92')
    get_tag()
    stamp(2)
    if o.loc:
        a('s_getreg_b32 s1, hwreg(HW_REG_XCC_ID, 0, 4)')
        a(f's_xor_b32 s{S_XCC}, s1, s{S_TAG}')
    a(f's_add_u32 s98, s97, {WS_QPL - WS_QP}')
    a(f's_add_u32 s99, s96, {(WS_QPL - WS_QP) if o.qloc else 0}')
    a('v_bfe_u32 v43, v1, 2, 2')
    a('v_lshlrev_b32 v43, 11, v43')
    a('v_lshl_add_u32 v43, v3, 6, v43')
    a('v_lshl_add_u32 v43, v4, 4, v43')
    a('s_cmp_lt_u32 s3, 4')
    a('s_cbranch_scc1 L_wq_lo')
    a('s_waitcnt vmcnt(9)')
    a('s_branch L_wq_hi')
    a.label('L_wq_lo')
    a('s_waitcnt vmcnt(1)')
    a.label('L_wq_hi')
    a('s_barrier')
    W1, XF, AC = 12, 44, 60
    for t in range(4):
        tr_op(W1 + 4 * t, 40, A_WQ + 8192 * t, 1024)
        a(f'ds_read_b128 {vr(XF + 4 * t, 4)}, v41 offset:{64 * t}')
    for t in range(4):
        a(f's_waitcnt lgkmcnt({3 * (3 - t)})')
        mfma16(AC, W1 + 4 * t, XF + 4 * t, t == 0)
    a(f'v_cvt_pk_bf16_f32 v64, v{AC}, v{AC + 1}')
    a(f'v_cvt_pk_bf16_f32 v65, v{AC + 2}, v{AC + 3}')
    a(f'v_bitop3_b32 v66, v64, v65, s{S_TAG} {XOR3}')
    ex(M4)
    if o.qloc:
        a(f'buffer_store_dwordx4 v[64:67], v42, {S(R_WS)}, s98 offen')
    a(f'buffer_store_dwordx4 v[64:67], v42, {S(R_WS)}, s97 offen sc1')
    ex(-1)
    stamp(3)
    UK, Q, AC2, FR = 68, 100, 132, 140

    def a2_loads():
        for n in range(8):
            a(f'buffer_load_dwordx4 {vr(Q + 4 * n, 4)}, v43, {S(R_WS)}, s99 offen offset:{256 * n} sc1')
    a('s_lshr_b32 s93, s2, 3')
    a(f's_bitcmp1_b32 {o.smask}, s93')
    a('s_cselect_b32 s98, s3, 99')
    a('v_lshlrev_b32 v30, 7, v1')
    a(f'v_mov_b32 v31, s{S_TAG}')
    AW = 3 if o.arrpos == 2 else 7
    a('s_cmp_lt_u32 s3, 4')
    a('s_cbranch_scc1 L_a2')
    a('s_waitcnt vmcnt(0)')
    if o.arrpos == 0:
        arrive(7, 22, 23, 0, 's98')
    a('s_barrier')
    if o.arrpos == 1:
        arrive(7, 22, 23, 0, 's98')
    a('s_branch L_a_done')
    a.label('L_a2')
    a(f's_waitcnt vmcnt({o.qloc})')
    if o.qdelay:
        a(f's_sleep {o.qdelay}')
    a2_loads()
    a('v_lshrrev_b32 v12, 2, v11')
    a('v_lshl_add_u32 v12, v12, 3, v4')
    a('v_lshlrev_b32 v12, 8, v12')
    a('v_xor_b32 v13, v3, v11')
    a('v_lshl_add_u32 v12, v13, 4, v12')
    a('s_lshl_b32 s92, s3, 13')
    a(f's_add_u32 s92, s92, {A_WUK}')
    a('v_add_u32 v12, s92, v12')
    a('s_barrier')
    for t in range(4):
        a(f'v_xor_b32 v13, {64 * t}, v12')
        for sub in range(2):
            a(f'ds_read_b128 {vr(UK + 16 * sub + 4 * t, 4)}, v13 offset:{1024 * sub}')
    a('v_lshlrev_b32 v15, 8, v4')
    a('v_lshl_add_u32 v15, v3, 4, v15')
    a('s_lshl_b32 s91, s3, 6')
    a(f's_add_u32 s91, s91, {A_C}')
    a('v_add_u32 v15, s91, v15')
    a(f'v_add_u32 v16, {A_C}, v2')
    a('v_lshlrev_b32 v20, 15, v3')
    a('v_lshl_add_u32 v20, v11, 4, v20')
    a(f'v_lshlrev_b32 v21, {10 if o.hc else 5}, v3')
    if not o.hc:
        a('v_lshl_add_u32 v21, v4, 3, v21')
    a('s_lshl_b32 s91, s4, 10')
    a('s_lshl_b32 s92, s5, 8')
    a('s_add_u32 s92, s92, s91')
    a(f's_lshr_b32 s93, s92, {5 if o.hc else 1}')
    if WS_QA:
        a(f's_add_u32 s92, s92, {WS_QA}')
    a(f's_add_u32 s93, s93, {WS_QAH}')
    a(f's_mov_b32 s{S_CNT}, {SPIN}')
    a('s_branch L_a2chk')
    a.label('L_a2poll')
    if o.qloc:
        a(f's_add_u32 s99, s96, {WS_QPL - WS_QP}')
        a(f's_and_b32 s91, s{S_CNT}, 7')
        a('s_cselect_b32 s99, s99, s96')
    a2_loads()
    a.label('L_a2chk')
    for n in range(8):
        a(f's_waitcnt vmcnt({7 - n})')
        a(f'v_bitop3_b32 v{Q + 4 * n + 2}, v{Q + 4 * n}, v{Q + 4 * n + 1}, v{Q + 4 * n + 2} {XOR3}')
    a(f'v_max3_u32 v17, v{Q + 2}, v{Q + 6}, v{Q + 10}')
    a(f'v_min3_u32 v18, v{Q + 2}, v{Q + 6}, v{Q + 10}')
    a(f'v_max3_u32 v17, v17, v{Q + 14}, v{Q + 18}')
    a(f'v_min3_u32 v18, v18, v{Q + 14}, v{Q + 18}')
    a(f'v_max3_u32 v17, v17, v{Q + 22}, v{Q + 26}')
    a(f'v_min3_u32 v18, v18, v{Q + 22}, v{Q + 26}')
    a(f'v_max3_u32 v17, v17, v{Q + 30}, s{S_TAG}')
    a(f'v_min3_u32 v18, v18, v{Q + 30}, s{S_TAG}')
    a('v_cmp_ne_u32 vcc, v17, v18')
    a('s_cbranch_vccz L_a2go')
    a(f's_sub_u32 s{S_CNT}, s{S_CNT}, 1')
    a('s_cbranch_scc0 L_a2poll')
    a.label('L_a2go')
    if o.st3:
        a('s_memrealtime s[72:73]')
    stamp(4)
    if o.arrpos == 2:
        arrive(3, 22, 23, 0, 's98')
    a('s_waitcnt lgkmcnt(0)')
    for n in range(8):
        for sub in range(2):
            d = AC2 + 4 * sub
            c = '0' if n == 0 else vr(d, 4)
            a(f'v_mfma_f32_16x16x16_bf16 {vr(d, 4)}, {vr(UK + 16 * sub + 2 * n, 2)}, {vr(Q + 4 * n, 2)}, {c}')
    for c in ('row_ror:4', 'row_ror:8'):
        for i in range(8):
            dpp('v_add_f32', AC2 + i, AC2 + i, AC2 + i, c)
    for i in range(4):
        a(f'v_cvt_pk_bf16_f32 v{FR + i}, v{AC2 + 2 * i}, v{AC2 + 2 * i + 1}')
    ex(M4)
    a(f'ds_write_b128 v15, {vr(FR, 4)}')
    ex(-1)
    a('s_waitcnt lgkmcnt(0)')
    a.label('L_a_done')
    a('s_barrier')
    a('s_cmp_lg_u32 s3, 0')
    a('s_cbranch_scc1 L_a_pub')
    a(f'ds_read_b128 {vr(FR, 4)}, v16')
    a('s_waitcnt lgkmcnt(0)')
    a(f'buffer_store_dwordx4 {vr(FR, 4)}, v20, {S(R_WS)}, s92 offen sc1')
    xor_chain(18, range(FR, FR + 4))
    for c in ('quad_perm:[1,0,3,2]', 'quad_perm:[2,3,0,1]', 'row_ror:4', 'row_ror:8'):
        dpp('v_xor_b32', 18, 18, 18, c)
    a(f'v_xor_b32 v19, s{S_TAG}, v18')
    ex(0x0001000100010001 if (o.hc or not o.hfull) else M4)
    a(f'buffer_store_dwordx2 v[18:19], v21, {S(R_WS)}, s93 offen sc1')
    ex(-1)
    stamp(5)
    a.label('L_a_pub')
    a(f's_cmp_lg_u32 s98, {AW}')
    a('s_cbranch_scc1 L_norel')
    a('s_waitcnt vmcnt(0)')
    a('v_readfirstlane_b32 s1, v22')
    a(f's_and_b32 s1, s1, {NS - 1}')
    a(f's_cmp_lg_u32 s1, {NS - 1}')
    a('s_cbranch_scc1 L_norel')
    a(f's_mov_b32 s1, {WS_HU}')
    if o.nh < 64:
        ex((1 << o.nh) - 1)
    a(f'buffer_store_dword v31, v30, {S(R_WS)}, s1 offen sc1')
    ex(-1)
    if o.nh > 64:
        a(f's_mov_b32 s1, {WS_HU + 8192}')
        a(f'buffer_store_dword v31, v30, {S(R_WS)}, s1 offen sc1')
    a.label('L_norel')
    if o.loc:
        a('s_cmp_lg_u32 s3, 5')
        a('s_cbranch_scc1 L_noxt')
        a('s_and_b32 s92, s2, 7')
        a('s_lshl_b32 s92, s92, 11')
        a('s_lshr_b32 s93, s2, 3')
        a('s_lshl_b32 s93, s93, 7')
        a('s_add_u32 s92, s92, s93')
        a(f's_add_u32 s92, s92, {WS_XT}')
        a(f'v_mov_b32 v9, s{S_XCC}')
        ex(1)
        a(f'buffer_store_dword v9, off, {S(R_WS)}, s92 sc1')
        ex(-1)
        a.label('L_noxt')
    a('s_and_b32 s7, s2, 7')
    a('s_lshr_b32 s63, s2, 3')
    a('v_and_b32 v7, 1, v3')
    a('v_lshl_add_u32 v6, v7, 18, v5')
    a('v_lshrrev_b32 v7, 1, v3')
    a('v_lshl_add_u32 v6, v7, 17, v6')
    a('v_xor_b32 v7, 0x80, v6')
    a('s_lshl_b32 s0, s5, 20')
    a('s_add_u32 s0, s0, s6')
    a('s_mov_b32 s61, 0')
    D, WL, CA, OPC, OPD = 16, 32, 40, 64, 96
    a('s_and_b32 s94, s3, 3')
    a('s_lshr_b32 s95, s3, 2')
    a('v_bfe_u32 v56, v1, 2, 3')
    a('v_lshlrev_b32 v56, 1, v56')
    a('s_lshl_b32 s92, s94, 2')
    a(f'v_bitop3_b32 v56, v56, v4, s92 {XOR3}')
    a('v_lshlrev_b32 v56, 4, v56')
    a('v_bfe_u32 v58, v1, 2, 2')
    a('v_lshl_add_u32 v58, v3, 3, v58')
    a('v_lshl_add_u32 v56, v58, 8, v56')
    a(f'v_add_u32 v56, {A_WUV}, v56')
    a('v_and_b32 v5, 31, v1')
    a('v_lshlrev_b32 v5, 11, v5')
    a('s_lshl_b32 s90, s94, 16')
    a('s_lshl_b32 s91, s5, 9')
    a('s_add_u32 s90, s90, s91')
    a('s_lshl_b32 s91, s4, 4')
    a('s_add_u32 s90, s90, s91')
    a(f's_add_u32 s90, s90, {WS_REC}')
    a('s_lshl_b32 s96, s4, 2')
    a('s_add_u32 s96, s96, s5')
    a('s_lshl_b32 s96, s96, 2')
    a('s_add_u32 s96, s96, s94')
    a('s_lshl_b32 s91, s96, 13')
    a('s_lshl_b32 s93, s95, 12')
    a('s_add_u32 s91, s91, s93')
    a(f's_add_u32 s91, s91, {WS_OP}')
    a('s_lshl_b32 s92, s95, 4')
    a('v_lshlrev_b32 v48, 4, v11')
    a('v_lshl_add_u32 v48, v3, 1, v48')
    a('s_mul_i32 s93, s3, 272')
    a(f's_add_u32 s93, s93, {A_C}')
    a('v_add_u32 v48, s93, v48')
    a('v_and_b32 v49, 7, v1')
    a('v_mul_u32_u24 v49, 272, v49')
    a('v_lshl_add_u32 v49, v3, 4, v49')
    a(f'v_add_u32 v49, {A_C}, v49')
    a('v_lshlrev_b32 v50, 6, v3')
    a('v_lshl_add_u32 v50, v4, 4, v50')
    a('s_lshl_b32 s98, s4, 12')
    a('s_lshl_b32 s93, s94, 10')
    a('s_add_u32 s98, s98, s93')
    a('s_lshl_b32 s93, s5, 8')
    a('s_add_u32 s98, s98, s93')
    a(f's_add_u32 s98, s98, {WS_CP}')
    a('v_add_u32 v51, s92, v3')
    a('v_lshlrev_b32 v51, 2, v51')
    a('v_cmp_eq_u32 s[88:89], s95, v3')
    a('s_lshl_b32 s96, s94, 14')
    a(f's_and_b32 s93, s2, {o.nl - 1}')
    a('s_lshl_b32 s93, s93, 7')
    a('s_add_u32 s96, s96, s93')
    a(f's_add_u32 s96, s96, {WS_OF}')
    a(f's_add_u32 s54, s{R_WS}, s96')
    a(f's_addc_u32 s55, s{R_WS + 1}, 0')
    na, nb_ = bin(o.emask).count('1'), bin(o.emask2).count('1')
    assert 4 * (na + nb_) >= 43
    a(f's_mul_i32 s17, s7, {na}')
    a(f's_mul_i32 s93, s7, {nb_}')
    a(f's_add_u32 s93, s93, {4 * na - 4 * nb_}')
    a('s_cmp_lt_u32 s7, 4')
    a(f's_cselect_b32 s16, {o.emask}, {o.emask2}' if o.emask2 <= 64 or o.emask == o.emask2 else 's_nop 0')
    if not (o.emask2 <= 64 or o.emask == o.emask2):
        a(f's_mov_b32 s16, {o.emask2}')
        a(f's_cselect_b32 s16, {o.emask}, s16')
    a('s_cselect_b32 s17, s17, s93')
    a('v_lshrrev_b32 v8, 2, v1')
    a('s_cmp_lt_u32 s3, 4')
    a('s_cbranch_scc1 L_wlo')
    a('s_mov_b32 s61, 0')
    tr64_addr(58, 59)

    def go_wait(extra=0):
        a('s_lshl_b32 s96, s2, 7')
        a(f's_add_u32 s96, s96, {WS_GO}')
        ex(1)
        poll(lambda: a(f'buffer_load_dword v9, off, {S(R_WS)}, s96 sc1'), lambda: a(f'v_cmp_ne_u32 vcc, s{S_TAG}, v9'), 3)
        ex(-1)
    def hu_wait(tag):
        a('s_lshl_b32 s96, s2, 7')
        a(f's_add_u32 s96, s96, {WS_HU}')
        a(f's_add_u32 s0, s{R_WS}, s96')
        a(f's_addc_u32 s1, s{R_WS + 1}, 0')
        a(f's_mov_b32 s{S_CNT}, {SPIN}')
        a.label(tag)
        a('s_sleep 4')
        a('s_load_dword s96, s[0:1], 0 glc')
        a('s_waitcnt lgkmcnt(0)')
        a(f's_cmp_eq_u32 s96, s{S_TAG}')
        a(f's_cbranch_scc1 {tag}go')
        a(f's_sub_u32 s{S_CNT}, s{S_CNT}, 1')
        a(f's_cbranch_scc0 {tag}')
        a.label(tag + 'go')
    a('s_bitcmp1_b32 s16, s63')
    a('s_cbranch_scc1 L_E1')
    a(f's_bitcmp1_b32 {o.dmask}, s63')
    a('s_cbranch_scc1 L_D1')
    a.label('L_wnone')
    a('s_barrier')
    a('s_load_dword s97, s[54:55], 0 glc')
    a('s_branch L_cstart')
    OP = 64
    H, XR, HA, X4, EA = 16, 128, 140, 148, 164
    EW, ES, ER, ESR, EST, EG, ECS = 180, 181, 182, 183, 184, 185, 186
    OPD, DA = 64, 144
    a.label('L_D1')
    a('s_mov_b32 s61, 2')
    a('s_bfm_b32 s63, s63, 0')
    a(f's_and_b32 s63, s63, {o.dmask}')
    a('s_bcnt1_i32_b32 s63, s63')
    a('v_lshrrev_b32 v8, 3, v1')
    a('v_lshlrev_b32 v8, 10, v8')
    a('v_and_b32 v9, 7, v1')
    a('v_lshl_add_u32 v8, v9, 4, v8')
    a('s_lshl_b32 s99, s7, 19')
    a('s_lshl_b32 s93, s94, 17')
    a('s_add_u32 s99, s99, s93')
    a('s_lshl_b32 s93, s63, 7')
    a('s_add_u32 s99, s99, s93')
    a('s_lshl_b32 s6, s94, 14')
    a('s_mov_b32 m0, s6')
    for i in range(16):
        a(f's_add_u32 s93, s99, {i * 8192}')
        if i >= o.owin:
            a(f's_waitcnt vmcnt({o.owin - 1})')
        a(f'buffer_load_dwordx4 v8, {S(R_WO)}, s93 offen nt lds')
        if i < 15:
            a('s_add_u32 m0, m0, 1024')
    a('v_lshlrev_b32 v57, 7, v59')
    a('v_lshl_add_u32 v57, v4, 3, v57')
    a('v_add_u32 v57, s6, v57')
    vF(128)
    a('v_lshlrev_b32 v129, 8, v4')
    a('v_bfe_u32 v9, v1, 2, 2')
    a('v_lshl_add_u32 v129, v9, 6, v129')
    a('v_lshl_add_u32 v129, v3, 4, v129')
    a('s_lshl_b32 s93, s94, 10')
    a(f's_add_u32 s93, s93, {A_H}')
    a('v_add_u32 v129, s93, v129')
    a('v_bfe_u32 v130, v1, 1, 2')
    a('v_lshlrev_b32 v130, 8, v130')
    a('v_lshrrev_b32 v9, 3, v1')
    a('v_lshl_add_u32 v130, v9, 5, v130')
    a('v_and_b32 v9, 1, v1')
    a('v_lshl_add_u32 v130, v9, 4, v130')
    a(f'v_add_u32 v130, {A_H}, v130')
    a('v_lshlrev_b32 v131, 3, v1')
    a('s_lshl_b32 s6, s7, 14')
    a('s_lshl_b32 s93, s94, 12')
    a('s_add_u32 s6, s6, s93')
    a(f's_add_u32 s6, s6, {WS_CP}')
    a('s_lshl_b32 s99, s7, 12')
    a('s_lshl_b32 s93, s63, 9')
    a('s_add_u32 s99, s99, s93')
    a(f's_add_u32 s99, s99, {WS_HP}')
    if o.loc:
        a('s_lshl_b32 s93, s7, 11')
        a(f's_add_u32 s93, s93, {WS_XT}')
        a('v_lshlrev_b32 v9, 7, v11')
        a(f'buffer_load_dword v10, v9, {S(R_WS)}, s93 offen sc1')
    for i in range(4):
        a(f'buffer_load_dwordx4 {vr(D + 4 * i, 4)}, v128, {S(R_WS)}, s6 offen offset:{1024 * i} sc1')
    a('s_waitcnt vmcnt(0)')
    if o.loc:
        a(f'v_cmp_ne_u32 vcc, s{S_XCC}, v10')
        a('s_cmp_eq_u64 vcc, 0')
        a(f's_cselect_b32 s{S_LOC}, 1, 0')
    for t in range(4):
        for k in range(4):
            tr_op(OPD + 16 * t + 4 * k, 57, 4096 * t + 32 * k, 512)
        a('s_waitcnt lgkmcnt(4)')
    a('s_branch L_wnone')
    a.label('L_E1')
    a('s_bfm_b32 s63, s63, 0')
    a('s_and_b32 s63, s63, s16')
    a('s_bcnt1_i32_b32 s63, s63')
    a('s_add_u32 s63, s63, s17')
    a('s_cmp_ge_u32 s63, 43')
    a('s_cbranch_scc1 L_wnone')
    a('s_mov_b32 s61, 1')
    if o.efgo == 1:
        go_wait()
    if o.pf == 2:
        hu_wait('L_efw')
    a('v_mul_u32_u24 v8, 2752, v8')
    a('v_lshl_add_u32 v8, v4, 4, v8')
    a(f's_mul_i32 s99, s94, {128 * 2752}')
    a('s_lshl_b32 s93, s63, 6')
    a('s_add_u32 s99, s99, s93')
    a('s_lshl_b32 s6, s94, 14')
    a('s_mov_b32 m0, s6')
    a('v_bfe_u32 v9, v1, 2, 2')
    a('v_lshlrev_b32 v9, 6, v9')
    a('v_lshl_add_u32 v9, v4, 10, v9')
    a('v_lshl_add_u32 v9, v3, 4, v9')
    a('s_lshl_b32 s93, s94, 8')
    a(f'buffer_load_dwordx4 {vr(XR, 4)}, v9, {S(R_X)}, s93 offen')
    for mat in range(2):
        for i in range(8):
            a(f's_add_u32 s93, s99, {16 * i * 2752}')
            a(f's_waitcnt vmcnt({(o.ef0 if 8 * mat + i < o.efn else o.efwin) - 1})')
            a(f'buffer_load_dwordx4 v8, {S(R_WG if mat == 0 else R_WU)}, s93 offen {o.r64} lds')
            a('s_add_u32 m0, m0, 1024')
    OPW, FA = 192, 64
    EAR, EPS, EHW, GL, GH, GO_ = 188, 189, 190, 191, 224, 225
    a('v_and_b32 v8, 0xff, v6')
    a('v_lshl_add_u32 v8, v3, 10, v8')
    a('v_xor_b32 v9, 0x80, v8')
    a('s_lshl_b32 s99, s63, 15')
    a('s_lshl_b32 s93, s94, 8')
    a('s_add_u32 s99, s99, s93')
    a('s_lshl_b32 s98, s94, 13')
    a(f's_add_u32 s98, s98, {A_WD}')
    a('s_mov_b32 m0, s98')
    for i in range(8):
        a(f's_add_u32 s93, s99, {4096 * i}')
        a(f's_waitcnt vmcnt({o.efwin - 1})')
        a(f'buffer_load_dwordx4 v{8 + (i // 2) % 2}, {S(R_WD)}, s93 offen nt lds')
        a('s_add_u32 m0, m0, 1024')
    a('v_bfe_u32 v57, v1, 2, 3')
    a('v_lshlrev_b32 v57, 1, v57')
    a('v_xor_b32 v57, v57, v4')
    a('v_lshlrev_b32 v57, 4, v57')
    a('v_lshl_add_u32 v57, v59, 8, v57')
    a('v_add_u32 v57, s98, v57')
    a(f'v_lshlrev_b32 v{EAR}, 6, v4')
    a(f'v_lshl_add_u32 v{EAR}, v3, 4, v{EAR}')
    a(f'v_add_u32 v{EAR}, {A_ACT}, v{EAR}')
    a('v_bfe_u32 v9, v1, 1, 1')
    a(f'v_mul_u32_u24 v{EPS}, 6144, v9')
    a('v_and_b32 v9, 1, v1')
    a(f'v_lshl_add_u32 v{EPS}, v9, 6, v{EPS}')
    a(f'v_lshl_add_u32 v{EPS}, v3, 4, v{EPS}')
    a('s_lshl_b32 s93, s94, 10')
    a(f's_add_u32 s93, s93, {A_H}')
    a(f'v_add_u32 v{EHW}, s93, v2')
    a('v_cmp_lt_u32 vcc, 23, v1')
    a('v_mov_b32 v9, 0x7fffff00')
    a(f'v_cndmask_b32 v{GL}, v2, v9, vcc')
    a('s_and_b32 s93, s63, 1')
    a('s_lshl_b32 s93, s93, 1')
    a('v_bfe_u32 v9, v1, 2, 1')
    a('v_add_u32 v9, s93, v9')
    a(f'v_lshlrev_b32 v{GH}, 8, v4')
    a(f'v_lshl_add_u32 v{GH}, v9, 4, v{GH}')
    a('s_lshr_b32 s93, s63, 3')
    a('s_lshl_b32 s93, s93, 10')
    a('s_bfe_u32 s96, s63, 0x20001')
    a('s_lshl_b32 s96, s96, 6')
    a('s_add_u32 s93, s93, s96')
    a(f's_add_u32 s93, s93, {A_H}')
    a(f'v_add_u32 v{GH}, s93, v{GH}')
    a(f'v_lshlrev_b32 v{GO_}, 10, v9')
    a(f'v_lshl_add_u32 v{GO_}, v4, 4, v{GO_}')
    a(f'v_lshl_add_u32 v{GO_}, v3, 1, v{GO_}')
    a('v_add_u32 v58, s6, v58')
    a(f'v_lshlrev_b32 v{EW}, 8, v4')
    a(f'v_lshl_add_u32 v{EW}, v3, 4, v{EW}')
    a(f'v_add_u32 v{EW}, s6, v{EW}')
    a(f'v_lshlrev_b32 v{ES}, 3, v4')
    a(f'v_lshl_add_u32 v{ES}, v3, 2, v{ES}')
    a(f'v_add_u32 v{ES}, s6, v{ES}')
    a('s_and_b32 s93, s3, 1')
    a('s_lshl_b32 s93, s93, 6')
    a(f'v_add_u32 v{EST}, s93, v1')
    a(f'v_lshrrev_b32 v{ESR}, 5, v{EST}')
    a(f'v_and_b32 v{ER}, 31, v{EST}')
    a(f'v_lshlrev_b32 v{ER}, 2, v{ER}')
    a(f'v_lshl_add_u32 v{ER}, v{ESR}, 8, v{ER}')
    a(f'v_lshlrev_b32 v{ESR}, 3, v{ESR}')
    a(f'v_lshlrev_b32 v{EST}, 1, v{EST}')
    a(f'v_add_u32 v{EST}, {A_ACT}, v{EST}')
    vF(EG)
    for i in range(4):
        a(f'v_mov_b32 v{X4 + i}, s{S_ONES}')
    a('v_mov_b32 v226, v57')
    a('v_mov_b32 v227, v58')

    def e_lds_write():
        ex(M4)
        for k in range(4):
            a(f'ds_write_b128 v{EW}, {vr(EA + 4 * k, 4)} offset:{64 * k}')
        ex(-1)
    a('s_branch L_wnone')
    a.label('L_wlo')
    a('s_lshr_b32 s93, s3, 1')
    a('s_lshl_b32 s93, s93, 19')
    a('s_add_u32 s0, s0, s93')
    a('s_and_b32 s93, s3, 1')
    a('s_lshl_b32 s93, s93, 16')
    a('s_add_u32 s0, s0, s93')
    a('s_lshl_b32 s93, s3, 13')
    a(f's_add_u32 m0, s93, {A_WUV}')
    if o.egate == 0:
        a('s_bitcmp1_b32 s16, s63')
        a('s_cbranch_scc1 L_nogw')
    go_wait()
    a.label('L_nogw')
    for i in range(8):
        a(f's_add_u32 s93, s0, {i * 8192}')
        a(f'buffer_load_dwordx4 v{6 + (i // 2) % 2}, {S(R_WUV)}, s93 offen nt lds')
        if i < 7:
            a('s_add_u32 m0, m0, 1024')
    a('s_waitcnt vmcnt(0)')
    a('s_load_dword s97, s[54:55], 0 glc')
    a('s_barrier')
    if o.loc:
        a('s_lshl_b32 s93, s7, 11')
        a(f's_add_u32 s93, s93, {WS_XT}')
        a('v_lshlrev_b32 v9, 7, v11')
        a(f'buffer_load_dword v60, v9, {S(R_WS)}, s93 offen sc1')
    for t in range(4):
        for k in range(2):
            tr_op(OPC + 8 * t + 4 * k, 56, 8192 * t + 8 * k, 1024)
        a('s_waitcnt lgkmcnt(4)')
    if o.lprio:
        a(f's_setprio {o.lprio}')
    a.label('L_cstart')
    stamp(6)
    RED4 = ('quad_perm:[1,0,3,2]', 'quad_perm:[2,3,0,1]', 'row_ror:4', 'row_ror:8')

    def weights():
        a('v_mov_b32 v54, v52')
        for c in RED4:
            dpp('v_max_f32', 54, 54, 54, c)
        swap_step('v_max_f32', 54, 55, 16)
        a('v_sub_f32 v53, v52, v54')
        a('v_exp_f32 v53, v53')
        a('v_cvt_pk_bf16_f32 v54, v53, 0')
        a('v_lshlrev_b32 v53, 16, v54')
        for i in range(4):
            a(f'ds_bpermute_b32 v{WL + i}, v51, v54 offset:{16 * i}')
        a('s_waitcnt lgkmcnt(0)')
        for i in range(4):
            a(f'v_lshlrev_b32 v{WL + 4 + i}, 16, v{WL + i}')
    a('v_mov_b32 v52, -1')
    a('s_lshl_b32 s93, s94, 2')
    a(f's_add_u32 s93, s93, {A_X}')
    a('v_mov_b32 v59, s93')
    a(f'v_mov_b32 v58, s{S_TAG}')
    a('s_waitcnt lgkmcnt(0)')
    a(f's_cmp_eq_u32 s97, s{S_TAG}')
    a('s_cbranch_scc1 L_ofgo')
    a('v_lshrrev_b32 v9, 4, v5')
    a('s_lshl_b32 s96, s94, 12')
    a('s_lshl_b32 s93, s4, 2')
    a('s_add_u32 s96, s96, s93')
    a(f's_add_u32 s96, s96, {WS_M0}')
    a(f'buffer_load_dword v52, v9, {S(R_WS)}, s96 offen sc1')
    a('s_waitcnt vmcnt(0)')
    a(f'v_xor_b32 v52, s{S_TAG}, v52')
    weights()
    if o.oone:
        a('s_cmp_lt_u32 s3, 4')
        a('s_cbranch_scc1 L_of0')
        a(f's_mov_b32 s{S_CNT}, {SPIN * 40}')
        a.label('L_ofl')
        a('ds_read_b32 v10, v59')
        a('s_waitcnt lgkmcnt(0)')
        a(f'v_cmp_ne_u32 vcc, s{S_TAG}, v10')
        a('s_cbranch_vccz L_ofgo2')
        a(f's_sub_u32 s{S_CNT}, s{S_CNT}, 1')
        a('s_cbranch_scc0 L_ofl')
        a('s_branch L_ofgo2')
        a.label('L_of0')
    a(f's_mov_b32 s{S_CNT}, {SPIN}')
    a.label('L_of')
    a('s_load_dword s96, s[54:55], 0 glc')
    a('s_waitcnt lgkmcnt(0)')
    a(f's_cmp_eq_u32 s96, s{S_TAG}')
    a('s_cbranch_scc1 L_ofgo')
    if o.osl:
        a(f's_sleep {o.osl}')
    a(f's_sub_u32 s{S_CNT}, s{S_CNT}, 1')
    a('s_cbranch_scc0 L_of')
    a.label('L_ofgo')
    if o.oone:
        a('ds_write_b32 v59, v58')
        a.label('L_ofgo2')
    stamp(7)
    a(f's_mov_b32 s{S_CNT}, {SPIN}')
    a.label('L_call')
    a(f'buffer_load_dwordx4 v[12:15], v5, {S(R_WS)}, s90 offen sc1')
    for i in range(4):
        a(f'buffer_load_dwordx4 {vr(D + 4 * i, 4)}, v2, {S(R_WS)}, s91 offen offset:{1024 * i} sc1')
    a(f's_sub_u32 s{S_CNT}, s{S_CNT}, 1')
    a('s_cbranch_scc1 L_cdone')
    a('s_waitcnt vmcnt(4)')
    a('v_cmp_ne_u32 vcc, v12, v52')
    xor_chain(10, [12, 13, 14, 15], f's{S_TAG}')
    a('v_cndmask_b32 v9, 0, v14, s[88:89]')
    a('s_cbranch_vccnz L_cnewm')
    a.label('L_crec')
    a('v_mul_f32 v14, v53, v13')
    side = []
    for c in RED4:
        side.append(f'v_add_f32_dpp v14, v14, v14 {c} row_mask:0xf bank_mask:0xf')
    side += ['v_mov_b32 v15, v14', 'v_permlane16_swap_b32 v14, v15', 'v_add_f32 v14, v14, v15', 'v_rcp_f32 v14, v14']
    for i in range(4):
        a(f's_waitcnt vmcnt({3 - i})')
        if i == 3:
            stamp(8)
            f3(66)
        xor_chain(9, [9] + list(range(D + 4 * i, D + 4 * i + 4)))
        if i == 3:
            side = [f'v_xor_b32_dpp v9, v9, v9 {c} row_mask:0xf bank_mask:0xf' for c in RED4]
        for u in range(4):
            for e in range(2):
                c = '0' if i == 0 else f'v{CA + 2 * u + e}'
                a(f'v_dot2_f32_bf16 v{CA + 2 * u + e}, v{D + 4 * i + u}, v{WL + 4 * e + i}, {c}')
            if side:
                a(side.pop(0))
    a('v_mov_b32 v15, v9')
    for k in range(4):
        a(f'v_permlane16_swap_b32 v{CA + 2 * k}, v{CA + 2 * k + 1}')
        if k == 1:
            a('v_permlane16_swap_b32 v9, v15')
            a('v_xor_b32 v9, v9, v15')
            a('v_mov_b32 v15, v9')
    a('v_permlane32_swap_b32 v9, v15')
    a(f'v_bitop3_b32 v9, v9, v15, v10 bitop3:0xbe')
    a('v_cmp_ne_u32 vcc, 0, v9')
    a.label('L_cdone')
    for k in range(4):
        a(f'v_add_f32 v{CA + 2 * k}, v{CA + 2 * k}, v{CA + 2 * k + 1}')
    for k in range(2):
        a(f'v_permlane32_swap_b32 v{CA + 4 * k}, v{CA + 4 * k + 2}')
    for k in range(2):
        a(f'v_add_f32 v{CA + 4 * k}, v{CA + 4 * k}, v{CA + 4 * k + 2}')
    a('s_cbranch_vccnz L_cagain ;noflush')
    a.label('L_cok')
    a(f'v_mul_f32 v{CA}, v{CA}, v14')
    a(f'v_mul_f32 v{CA + 4}, v{CA + 4}, v14')
    a(f'v_cvt_pk_bf16_f32 v{CA}, v{CA}, v{CA + 4}')
    a(f'ds_write_b16 v48, v{CA}')
    a(f'ds_write_b16_d16_hi v48, v{CA} offset:8')
    f3(68)
    a('s_waitcnt lgkmcnt(0)')
    a('s_barrier')
    f3(70)
    a('s_cmp_ge_u32 s3, 4')
    a('s_cbranch_scc1 L_hi')
    if o.loc:
        a(f'v_cmp_ne_u32 vcc, s{S_XCC}, v60')
    for t in range(4):
        a(f'ds_read_b128 {vr(D + 4 * t, 4)}, v49 offset:{64 * t}')
    for t in range(4):
        a(f's_waitcnt lgkmcnt({3 - t})')
        for k in range(2):
            mfma16(CA + 4 * k, OPC + 8 * t + 4 * k, D + 4 * t, t == 0)
    for i in range(8):
        dpp('v_add_f32', CA + i, CA + i, CA + i, 'row_ror:4')
    for i in range(4):
        a(f'v_cvt_pk_bf16_f32 v{12 + i}, v{CA + 2 * i}, v{CA + 2 * i + 1}')
    a(f's_mov_b32 s{S_CNT}, {SPIN}')
    ex(M4)
    if o.loc:
        a('s_cbranch_vccnz L_cfar ;noflush')
        a(f'buffer_store_dwordx4 v[12:15], v50, {S(R_WS)}, s98 offen')
        a('s_branch L_cst ;noflush')
        a.label('L_cfar')
    a(f'buffer_store_dwordx4 v[12:15], v50, {S(R_WS)}, s98 offen sc1')
    a.label('L_cst')
    ex(-1)
    stamp(9)
    if o.stamps:
        a('s_cmp_lg_u32 s3, 0')
        a('s_cbranch_scc1 L_end')
        dump_stamps(13, 0)
    a('s_endpgm')
    a.label('L_cnewm')
    a('v_mov_b32 v52, v12')
    weights()
    a('s_branch L_crec')
    a.label('L_cagain')
    a(f's_cmp_lt_i32 s{S_CNT}, 0')
    a('s_cbranch_scc1 L_cok')
    a('s_branch L_call')
    a.label('L_hi')
    a('s_cmp_eq_u32 s61, 0')
    if o.stamps:
        a('s_cbranch_scc0 L_hi2')
        stamp(9)
        a('s_bfe_u32 s93, s2, 0x20003')
        a('s_cmp_lg_u32 s93, s94')
        a('s_cbranch_scc1 L_end')
        a(f's_sub_u32 s84, {SPIN}, s{S_CNT}')
        dump_stamps(11, 1)
        a('s_endpgm')
        a.label('L_hi2')
    else:
        a('s_cbranch_scc1 L_end')

    a('s_cmp_eq_u32 s61, 1')
    a('s_cbranch_scc1 L_E2')
    a('s_lshl_b32 s98, s7, 7')
    a(f's_add_u32 s98, s98, {WS_FL}')
    a(f'v_mov_b32 v132, s{S_TAG}')
    a(f's_mov_b32 s{S_CNT}, {SPIN}')
    a('s_barrier')
    a.label('L_dre')
    for i in range(4):
        a(f'buffer_load_dwordx4 {vr(D + 4 * i, 4)}, v128, {S(R_WS)}, s6 offen offset:{1024 * i} sc1')
    for t in range(4):
        a(f's_waitcnt vmcnt({3 - t})')
        for k in range(4):
            mfma16(DA + 4 * k, OPD + 16 * t + 4 * k, D + 4 * t, t == 0)
    a(f'v_cmp_u_f32 vcc, v{DA}, v{DA}')
    for k in range(2):
        for j in range(4):
            dpp('v_add_f32', DA + 4 * k + j, DA + 4 * k + j, DA + 4 * k + j, 'row_ror:8', 0x3)
        if k == 0:
            a('s_cbranch_vccnz L_dnan ;noflush')
            a.label('L_dok')
            stamp(9)
    for k in range(2):
        for j in range(4):
            dpp('v_add_f32', DA + 4 * k + j, DA + 8 + 4 * k + j, DA + 8 + 4 * k + j, 'row_ror:8', 0xc)
    for j in range(4):
        dpp('v_add_f32', DA + j, DA + j, DA + j, 'row_ror:12', 0x5)
    for j in range(4):
        dpp('v_add_f32', DA + j, DA + 4 + j, DA + 4 + j, 'row_ror:4', 0xa)
    a(f'ds_write_b128 v129, {vr(DA, 4)}')
    a('s_waitcnt lgkmcnt(0)')
    a('s_barrier')
    a('s_cmp_lg_u32 s3, 4')
    a('s_cbranch_scc1 L_end')
    for w in range(4):
        a(f'ds_read_b128 {vr(D + 4 * w, 4)}, v130 offset:{1024 * w}')
    a('s_waitcnt lgkmcnt(2)')
    for i in range(4):
        a(f'v_add_f32 v{D + i}, v{D + i}, v{D + 4 + i}')
    a('s_waitcnt lgkmcnt(0)')
    for i in range(4):
        a(f'v_add_f32 v{D + 8 + i}, v{D + 8 + i}, v{D + 12 + i}')
    for i in range(4):
        a(f'v_add_f32 v{D + i}, v{D + i}, v{D + 8 + i}')
    a(f'v_cvt_pk_bf16_f32 v{D}, v{D}, v{D + 1}')
    a(f'v_cvt_pk_bf16_f32 v{D + 1}, v{D + 2}, v{D + 3}')
    a(f'buffer_store_dwordx2 {vr(D, 2)}, v131, {S(R_WS)}, s99 offen sc1')
    stamp(10)
    a('s_cmp_lg_u32 s63, 0')
    a('s_cbranch_scc1 L_efend')
    if o.dfw:
        a('s_waitcnt vmcnt(0)')
    ex(1)
    if o.loc:
        a(f's_cmp_eq_u32 s{S_LOC}, 0')
        a('s_cbranch_scc1 L_dfar')
        a(f'buffer_store_dword v132, off, {S(R_WS)}, s98')
        a('s_branch L_efend')
        a.label('L_dfar')
    a(f'buffer_store_dword v132, off, {S(R_WS)}, s98 sc1')
    a('s_branch L_efend')
    nan_retry('L_dnan', range(D, D + 16), 'L_dre', 'L_dok')
    a.label('L_E2')
    def e_lds_read():
        for w in range(4):
            a(f'ds_read_b32 v{H + 2 * w}, v{ER} offset:{16384 * w}')
            a(f'ds_read_b32 v{H + 2 * w + 1}, v{ER} offset:{16384 * w + 128}')
    for t in range(4):
        for k in range(4):
            tr_op(OP + 16 * t + 4 * k, 227, 8192 * (k // 2) + 2048 * t + 32 * (k % 2), 256)
        a(f'v_xor_b32 v9, {64 * t}, v226')
        for k in range(2):
            tr_op(OPW + 8 * t + 4 * k, 9, 8 * k, 1024)
        a(f's_waitcnt lgkmcnt({2 if t < 3 else 0})')
    for t in range(4):
        for k in range(4):
            mfma16(EA + 4 * k, OP + 16 * t + 4 * k, X4, t == 0)
    for i in range(4):
        a(f'v_lshlrev_b32 v{132 + 2 * i}, 16, v{XR + i}')
        a(f'v_and_b32 v{133 + 2 * i}, s{S_MASK}, v{XR + i}')

    e_lds_write()
    a('s_lshl_b32 s98, s63, 7')
    a(f's_mul_i32 s93, s94, {4 * 12288}')
    a('s_add_u32 s98, s98, s93')
    a(f's_add_u32 s98, s98, {WS_FP}')
    a('s_mul_i32 s99, s63, 6144')
    a(f's_add_u32 s99, s99, {WS_FP}')
    a('s_add_u32 s97, s99, 4096')
    a('s_lshr_b32 s96, s63, 1')
    a('s_lshl_b32 s96, s96, 6')
    a('s_lshl_b32 s90, s94, 10')
    a(f's_add_u32 s90, s90, {WS_HP}')
    a('s_waitcnt lgkmcnt(0)')
    a(f's_mov_b32 s91, {f32bits(GELU_K * 0.044715)}')
    a(f'v_mov_b32 v228, {GELU_BITS}')
    stamp(5)
    a('s_barrier')
    e_lds_read()
    a('s_waitcnt lgkmcnt(0)')
    a(f'v_add_f32 v{ECS}, v{H}, v{H + 2}')
    a(f'v_add_f32 v{ECS + 1}, v{H + 1}, v{H + 3}')
    for w in range(2, 4):
        a(f'v_add_f32 v{ECS}, v{ECS}, v{H + 2 * w}')
        a(f'v_add_f32 v{ECS + 1}, v{ECS + 1}, v{H + 2 * w + 1}')
    a('s_barrier')
    a('s_lshl_b32 s92, s7, 7')
    a(f's_add_u32 s92, s92, {WS_FL}')
    flag_wait('s92', 9, 0)

    def e_loads():
        a('s_mov_b32 s92, s90')
        for r in range(8):
            a(f'buffer_load_dwordx4 {vr(H + 4 * r, 4)}, v{EG}, {S(R_WS)}, s92 offen sc1')
            if r < 7:
                a('s_add_u32 s92, s92, 4096')
    f3(66)
    a(f's_mov_b32 s{S_CNT}, {SPIN}')
    a.label('L_ere')
    e_loads()
    for r in range(8):
        a(f's_waitcnt vmcnt({7 - r})')
        if r == 7:
            stamp(9)
            f3(68)
        for u in range(4):
            for e in range(2):
                c = f'v{132 + 2 * u + e}' if r == 0 else f'v{HA + 2 * u + e}'
                a(f'v_dot2_f32_bf16 v{HA + 2 * u + e}, v{H + 4 * r + u}, s{S_LO1 + e}, {c}')
    f3(70)
    for i in range(4):
        a(f'v_cvt_pk_bf16_f32 v{X4 + i}, v{HA + 2 * i}, v{HA + 2 * i + 1}')
    for t in range(4):
        if t < 3:
            for i in range(4):
                a(f'v_mov_b32_dpp v{X4 + 4 * (t + 1) + i}, v{X4 + i} row_shl:{4 * (t + 1)} row_mask:0xf bank_mask:0xf bound_ctrl:0')
        for k in range(4):
            mfma16(EA + 4 * k, OP + 16 * t + 4 * k, X4 + 4 * t, t == 0)
        if t == 0:
            a(f'ds_write_b128 v{EHW}, {vr(X4, 4)}')
            for i in range(4):
                a(f'v_dot2_f32_bf16 v9, v{X4 + i}, s{S_ONES}, {"0" if i == 0 else "v9"}')
                a(f'v_dot2_f32_bf16 v11, v{X4 + i}, v{X4 + i}, {"0" if i == 0 else "v11"}')
        if t == 1:
            a('v_cmp_u_f32 vcc, v9, v9')
            for c in ('row_ror:4', 'row_ror:8'):
                dpp('v_add_f32', 9, 9, 9, c)
                dpp('v_add_f32', 11, 11, 11, c)
            a('s_cbranch_vccnz L_enan ;noflush')
            a.label('L_eok')
        if t == 2:
            a('v_permlane16_swap_b32 v9, v11')
            a('v_add_f32 v9, v9, v11')
            swap_step('v_add_f32', 9, 11, 32)
    ex(0x000f000f)
    f3(72)
    a(f'ds_write_b32 v{ES}, v9 offset:1024')
    e_lds_write()
    a('s_waitcnt lgkmcnt(0)')
    a('s_barrier')
    f3(74)
    a('s_cmp_ge_u32 s3, 6')
    a('s_cbranch_scc1 L_eact')
    for w in range(4):
        a(f'ds_read_b64 v[{H + 8 + 2 * w}:{H + 9 + 2 * w}], v{ESR} offset:{16384 * w + 1024}')
    e_lds_read()
    a('s_waitcnt lgkmcnt(8)')
    for w in range(1, 4):
        a(f'v_add_f32 v{H + 8}, v{H + 8}, v{H + 8 + 2 * w}')
        a(f'v_add_f32 v{H + 9}, v{H + 9}, v{H + 9 + 2 * w}')
    MU, VA = H + 8, H + 9
    a(f'v_mul_f32 v{MU}, 0x3b000000, v{MU}')
    a(f'v_mul_f32 v{VA}, 0x3b000000, v{VA}')
    a(f'v_fma_f32 v{VA}, -v{MU}, v{MU}, v{VA}')
    a(f'v_max_f32 v{VA}, 0, v{VA}')
    a(f'v_add_f32 v{VA}, 0x3727c5ac, v{VA}')
    a(f'v_rsq_f32 v{VA}, v{VA}')
    a('s_waitcnt lgkmcnt(0)')
    for w in range(1, 4):
        a(f'v_add_f32 v{H}, v{H}, v{H + 2 * w}')
        a(f'v_add_f32 v{H + 1}, v{H + 1}, v{H + 2 * w + 1}')
    a(f'v_fma_f32 v16, -v{MU}, v{ECS}, v16')
    a(f'v_fma_f32 v17, -v{MU}, v{ECS + 1}, v17')
    a(f'v_mul_f32 v16, v16, v{VA}')
    a(f'v_mul_f32 v17, v17, v{VA}')
    a('v_mul_f32 v18, v16, v16')
    a('v_fma_f32 v19, v18, s91, v228')
    a('v_mul_f32 v19, v19, v16')
    a('v_exp_f32 v19, v19')
    a('v_mul_f32 v16, v16, v17')
    a('v_add_f32 v19, 1.0, v19')
    a('v_rcp_f32 v19, v19')
    a('v_mul_f32 v16, v16, v19')
    a('v_mov_b32_dpp v17, v16 quad_perm:[1,1,3,3] row_mask:0xf bank_mask:0xf')
    a('v_cvt_pk_bf16_f32 v16, v16, v17')
    ex(0x5555555555555555)
    a(f'ds_write_b32 v{EST}, v16')
    ex(-1)
    a('s_waitcnt lgkmcnt(0)')
    a.label('L_eact')
    a('s_barrier')
    f3(76)
    a(f'ds_read_b128 v[16:19], v{EAR}')
    a(f'ds_read_b128 v[20:23], v{GH}')
    a('s_waitcnt lgkmcnt(1)')
    for k in range(8):
        mfma16(FA + 4 * k, OPW + 4 * k, 16, True)
    ex(M4)
    for p in range(4):
        for i in range(4):
            a(f'v_cvt_pk_bf16_f32 v{96 + 4 * p + i}, v{FA + 8 * p + 2 * i}, v{FA + 8 * p + 2 * i + 1}')
        a(f'buffer_store_dwordx4 {vr(96 + 4 * p, 4)}, v{EPS}, {S(R_WS)}, s98 offen sc1')
        if p < 3:
            a('s_add_u32 s98, s98, 12288')
    ex(-1)
    stamp(10)
    f3(78)
    a('s_cmp_lg_u32 s3, 4')
    a('s_cbranch_scc1 L_end')
    a('s_cmp_ge_u32 s63, 32')
    a('s_cbranch_scc1 L_efend')
    G, GA = 24, 48
    OSC = ' sc1' if o.osc else ''
    for i in range(8):
        a(f'v_mov_b32 v{56 + i}, 0')
    a('s_waitcnt lgkmcnt(0)')
    ex(0xff)
    for u in range(4):
        for e in range(2):
            a(f'v_dot2_f32_bf16 v{56 + 2 * u + e}, v{20 + u}, s{S_LO1 + e}, 0')
    ex(-1)
    a(f's_mov_b32 s{S_CNT}, {SPIN}')
    a('s_waitcnt vmcnt(0)')
    if o.fdelay:
        a(f's_sleep {o.fdelay}')
    a.label('L_gre')
    for i in range(6):
        a(f'buffer_load_dwordx4 {vr(G + 4 * i, 4)}, v{2 if i < 5 else GL}, {S(R_WS)}, s{99 if i < 4 else 97} offen offset:{1024 * (i % 4)} sc1')
    for i in range(6):
        a(f's_waitcnt vmcnt({5 - i})')
        for u in range(4):
            for e in range(2):
                c = 56 + 2 * u + e if i == 0 else GA + 2 * u + e
                a(f'v_dot2_f32_bf16 v{GA + 2 * u + e}, v{G + 4 * i + u}, s{S_LO1 + e}, v{c}')
    stamp(7)
    for k in range(4):
        a(f'v_permlane16_swap_b32 v{GA + 2 * k}, v{GA + 2 * k + 1}')
    for k in range(4):
        a(f'v_add_f32 v{GA + 2 * k}, v{GA + 2 * k}, v{GA + 2 * k + 1}')
    for k in range(2):
        a(f'v_permlane32_swap_b32 v{GA + 4 * k}, v{GA + 4 * k + 2}')
    for k in range(2):
        a(f'v_add_f32 v{GA + 4 * k}, v{GA + 4 * k}, v{GA + 4 * k + 2}')
    a(f'v_cmp_u_f32 vcc, v{GA}, v{GA + 4}')
    for k in range(2):
        dpp('v_add_f32', GA + 4 * k, GA + 4 * k, GA + 4 * k, 'row_ror:8')
    a(f'v_cvt_pk_bf16_f32 v{GA}, v{GA}, v{GA + 4}')
    a('s_cbranch_vccnz L_gnan ;noflush')
    a.label('L_gok')
    ex(0x00ff00ff00ff00ff)
    a(f'buffer_store_short v{GA}, v{GO_}, {S(R_OUT)}, s96 offen{OSC}')
    a(f'buffer_store_short_d16_hi v{GA}, v{GO_}, {S(R_OUT)}, s96 offen offset:8{OSC}')
    a('s_cmp_lg_u32 s63, 0')
    a('s_cbranch_scc1 L_efend')
    ex(1)
    a(f'v_mov_b32 v12, s{S_TAG}')
    a(f's_mov_b32 s90, {WS_EPOCH}')
    a(f'buffer_store_dword v12, off, {S(R_WS)}, s90{OSC}')
    a.label('L_efend')
    if o.diag:
        a.label('L_diag')
        a('s_memrealtime s[90:91]')
        a('s_waitcnt lgkmcnt(0)')
        a('s_sub_u32 s90, s90, s100')
        a(f's_cmp_lt_u32 s90, {o.diag}')
        a('s_cbranch_scc1 L_diag')
    if o.stamps:
        stamp(8)
        a('s_cmp_lg_u32 s3, 4')
        a('s_cbranch_scc1 L_end')
        dump_stamps(11, 1)
    a('s_endpgm')

    nan_retry('L_enan', range(H, H + 32), 'L_ere', 'L_eok')
    nan_retry('L_gnan', range(G, G + 24), 'L_gre', 'L_gok')
    a.label('L_att')
    srd([R_CKV])
    a('s_bfe_u32 s4, s2, 0x20001')
    a('s_bfe_u32 s5, s2, 0x40003')
    a('s_lshl_b32 s5, s5, 1')
    a('s_and_b32 s6, s2, 1')
    a('s_add_u32 s5, s5, s6')
    a('s_lshl_b32 s90, s4, 23')
    TS = (2 << 20) if o.il else 65536
    MX = (1 << o.mb1, 1 << o.mb2)
    M3 = o.m3
    a(f's_lshl_b32 s91, s5, {16 if o.il else 18}')
    a('s_add_u32 s90, s90, s91')
    a('s_and_b32 s7, s3, 3')
    a('s_lshl_b32 s91, s7, 14')
    a('s_add_u32 s90, s90, s91')
    if o.mw:
        a('s_and_b32 s91, s7, 1')
        a(f's_mul_i32 s91, s91, {o.mw}')
        a('s_xor_b32 s90, s90, s91')
    a('s_lshl_b32 s91, s7, 15')
    a('s_lshl_b32 s92, s7, 2')
    a(f's_add_u32 s92, s92, {FB}')
    a('v_mov_b32 v7, s92')
    a(f'v_lshlrev_b32 v10, 2, v4')
    a(f'v_add_u32 v10, {FB}, v10')
    a('s_cmp_lt_u32 s3, 4')
    a('s_cbranch_scc1 L_comp')
    a('s_mov_b32 s3, s7')
    VX, TR, O_ = 12, 128, 64
    for j in range(8):
        a(f'v_xor_b32 v{VX + j}, {32 * j}, v2')
    a('s_mov_b32 m0, s91')
    a('s_mov_b32 s93, 0')
    a('s_waitcnt lgkmcnt(0)')
    srd_ptr([R_CKV])
    BUF = (0, 1, 1, 0)
    TAL, vPR, vST, vRC, vRM, vRL, vAR = 20, 28, 29, 30, 31, 32, 33

    def pv_setup():
        a('v_bfe_u32 v40, v1, 2, 2')
        a('v_lshrrev_b32 v42, 5, v1')
        a('v_lshlrev_b32 v41, 2, v40')
        a('v_lshl_add_u32 v41, v42, 1, v41')
        a('v_and_b32 v43, 1, v3')
        a('v_lshlrev_b32 v44, 1, v43')
        a('v_bfe_u32 v45, v1, 1, 1')
        a('v_add_u32 v44, v44, v45')
        a('v_xor_b32 v44, v44, v41')
        a('v_lshlrev_b32 v41, 10, v41')
        a('v_lshl_add_u32 v41, v44, 4, v41')
        a('v_and_b32 v45, 1, v1')
        a('v_lshl_add_u32 v41, v45, 3, v41')
        a('s_lshl_b32 s95, s3, 8')
        a('v_add_u32 v41, s95, v41')
        for i in range(8):
            a(f'v_xor_b32 v{TAL + i}, {64 * (i % 4) + 65536 * (i // 4)}, v41')
        a(f'v_add_u32 v{vPR}, {L_P}, v2')
        a(f'v_lshlrev_b32 v{vAR}, 4, v42')
        a(f'v_add_u32 v{vAR}, {L_ALPHA}, v{vAR}')
        a('v_lshl_add_u32 v42, v42, 2, v43')
        a(f'v_lshlrev_b32 v{vST}, 17, v42')
        a(f'v_lshl_add_u32 v{vST}, v11, 3, v{vST}')
        a('v_lshl_add_u32 v42, v45, 4, v42')
        a('v_bfe_u32 v44, v1, 2, 1')
        a('v_lshl_add_u32 v42, v44, 3, v42')
        a('v_bfe_u32 v44, v1, 3, 1')
        a('v_lshl_add_u32 v42, v44, 1, v42')
        a(f'v_lshlrev_b32 v{vRM}, 2, v42')
        a(f'v_add_u32 v{vRM}, {L_MFIN}, v{vRM}')
        a(f'v_lshlrev_b32 v{vRC}, 4, v42')
        a(f'v_add_u32 v{vRL}, {L_MAX}, v{vRC}')
        a('s_lshl_b32 s96, s3, 2')
        a('s_add_u32 s96, s96, s4')
        a('s_lshl_b32 s96, s96, 13')
        a('s_lshl_b32 s95, s5, 8')
        a('s_add_u32 s96, s96, s95')
        a(f's_add_u32 s96, s96, {WS_OP}')
        a('s_lshl_b32 s97, s4, 16')
        a('s_lshl_b32 s95, s5, 11')
        a('s_add_u32 s97, s97, s95')
        a('s_lshl_b32 s95, s3, 9')
        a('s_add_u32 s97, s97, s95')
        a(f's_add_u32 s97, s97, {WS_REC}')
        a('v_add_u32 v9, s91, v2')
    rows = [(T, j) for T in range(3) for j in range(16) if not (T == 1 and j == 15)] + [(3, j) for j in range(o.r3)]
    landed = 0
    pub = {0: 16, 1: 31}

    def publish():
        for tt in list(pub):
            if landed >= pub[tt]:
                a(f'v_mov_b32 v5, {tt + 1}')
                a(f'ds_write_b32 v7, v5 offset:{F_LAND}')
                if tt == 0:
                    stamp(10)
                del pub[tt]

    def dma_row(j):
        a(f'buffer_load_dwordx4 v{VX + j // 2}, {S(R_CKV)}, s90 offen offset:{(j % 4) * 1024} nt lds')
    for n, (T, j) in enumerate(rows):
        w = o.w0 if n < o.n0 else o.window
        if o.hold and n == o.hold:
            lds_wait(10, F_HUS, 1, 6, 2)
        if n >= o.n0 and not (o.hold and n >= o.hold):
            lb = a.uid('fast')
            a('s_cmp_lg_u32 s93, 0')
            a(f's_cbranch_scc1 {lb}')
            if n % 2 == 0:
                a(f'ds_read_b32 v6, v10 offset:{F_HUS if o.sw == 1 else F_QST}')
            a(f's_waitcnt vmcnt({o.w1 - 1})')
            if n % 2 == 0:
                a('s_waitcnt lgkmcnt(0)')
                a('v_cmp_eq_u32 vcc, 0, v6')
                a('s_cmp_eq_u64 vcc, 0')
                a('s_cselect_b32 s93, 1, 0')
            a.label(lb)
        if n - landed >= w:
            a(f's_waitcnt vmcnt({w - 1})')
            landed = n - (w - 1)
        if n in (16 + o.w1, 31 + o.lw) and landed < n - (o.w1 if n < 31 else o.lw):
            k = o.w1 if n < 31 else o.lw
            a(f's_waitcnt vmcnt({k})')
            landed = n - k
        publish()
        if n == 20:
            get_tag()
            a('v_mov_b32 v35, 0')
        if n == o.gon and o.wgo:
            lb = a.uid('nogo')
            a('s_cmp_lg_u32 s3, 0')
            a(f's_cbranch_scc1 {lb}')
            a('s_sub_u32 s92, s2, 128')
            a('s_lshl_b32 s92, s92, 7')
            a(f's_add_u32 s92, s92, {WS_GO}')
            a(f'v_mov_b32 v6, s{S_TAG}')
            a('v_lshlrev_b32 v8, 2, v1')
            ex(0xffffffff)
            a(f'buffer_store_dword v6, v8, {S(R_WS)}, s92 offen sc1')
            ex(-1)
            a.label(lb)
        if T < 2:
            dma_row(j)
        else:
            a(f'buffer_load_dwordx4 {vr(TR + 64 * (T - 2) + 4 * j, 4)}, v{VX + j // 2}, {S(R_CKV)}, s90 offen offset:{(j % 4) * 1024} nt')
        last = j == 15 or (T == 1 and j == 14)
        if j % 4 == 3 or last:
            a(f's_add_u32 s90, s90, {TS - 12288 if last else 4096}')
            if o.mix:
                a(f's_xor_b32 s90, s90, {MX[(j // 4) % 2] ^ (M3 if last else 0)}')
            if T < 2:
                a('s_add_u32 m0, m0, 4096')
        if n == o.w0 - 1:
            a(f's_load_dword s{S_TAG}, s[{R_WS}:{R_WS + 1}], {WS_EPOCH}')
            a('s_barrier')
            pv_setup()
        if n == 30:
            stamp(1)
    assert not pub
    stamp(2)
    if o.pvprio:
        a(f's_setprio {o.pvprio}')
    PF = 36
    BFS = (44, 48, 52, 56, 60, 12, 16)
    NB = len(BFS)
    DIST = 6
    FLG = 34

    PK, XX = 128, 160

    def half_store(ap, hf):
        t_ = PK + 4 * ap + 2 * hf
        j = 2 * ap
        base = O_ + 32 * hf
        g = [f'v_cvt_pk_bf16_f32 v{t_}, v{base + j}, v{base + 16 + j}',
             f'v_cvt_pk_bf16_f32 v{t_ + 1}, v{base + j + 1}, v{base + 16 + j + 1}',
             f's_add_u32 s92, s96, {(8 * (ap // 2) + 2 * (ap % 2)) * 131072}',
             f'v_permlane16_swap_b32 v{t_}, v{t_ + 1}',
             f'buffer_store_dwordx2 {vr(t_, 2)}, v{vST}, {S(R_WS)}, s92 offen offset:{128 * hf} sc1']
        if hf == 0:
            g.append(f'v_xor_b32 v{XX + ap}, v{t_}, v{t_ + 1}')
        else:
            g.append(f'v_bitop3_b32 v{XX + ap}, v{XX + ap}, v{t_}, v{t_ + 1} {XOR3}')
        return g

    def skew(lists):
        out = []
        n = len(lists)
        for step in range(n + 1):
            if step < n:
                out += lists[step][:2]
            if step > 0:
                out += lists[step - 1][2:]
        return out

    def pv(t):
        seq = [(ks, blk) for ks in range(4) for blk in range(4)]
        if t == 3:
            seq = [(ks, 2 * pr + k) for pr in range(2) for ks in range(4) for k in range(2)]
        PFm = (lambda ks: 192 + 4 * ks) if t == 3 else (lambda ks: PF + 4 * (ks % 2))
        shadow = skew([half_store(ap, 0) for ap in range(8)]) if t == 3 else []

        def rd(n):
            ks, blk = seq[n]
            for tau in range(2):
                a(f'ds_read_b64_tr_b16 {vr(BFS[n % NB] + 2 * tau, 2)}, v{TAL + blk + 4 * (ks // 2)} offset:{32768 * (ks % 2) + 16384 * BUF[t] + 1024 * tau}')

        def p_rd(ks):
            a(f'ds_read_b128 {vr(PFm(ks), 4)}, v{vPR} offset:{4096 * t + 1024 * ks}')
        a(f's_mov_b32 s{S_CNT}, {SPIN * 40}')
        a('s_mov_b32 s95, 2')
        a.label(f'L_pp{t}')
        a(f'ds_read_b32 v{FLG}, v10 offset:{F_PS + 16 * t}')
        a('s_waitcnt lgkmcnt(0)')
        a(f'v_cmp_ne_u32 vcc, s95, v{FLG}')
        a(f's_cbranch_vccnz L_ps{t}')
        a.label(f'L_pg{t}')
        p_rd(0)
        ops = ['P0']

        def issue_rd(n):
            rd(n)
            ops.extend([f'R{n}', f'R{n}'])
        for n in range(DIST):
            issue_rd(n)
            if n == 1:
                p_rd(1)
                ops.append('P1')
        for n in range(16):
            ks, blk = seq[n]
            need = max(i for i, x in enumerate(ops) if x in (f'R{n}', f'P{ks}'))
            a(f's_waitcnt lgkmcnt({min(15, len(ops) - 1 - need)})')
            if t == 0 and blk == 3:
                a(f'ds_write_b32 v7, v35 offset:{F_DONE}')
                ops.append('W')
            c = '0' if (t == 0 and ks == 0) else vr(O_ + 16 * blk, 16)
            a(f'v_mfma_f32_32x32x16_bf16 {vr(O_ + 16 * blk, 16)}, {vr(PFm(ks), 4)}, {vr(BFS[n % NB], 4)}, {c}')
            if t == 0 and blk == 1:
                a('v_add_u32 v35, 1, v35')
            if t < 3 and n in (3, 7):
                p_rd(2 + n // 4)
                ops.append(f'P{2 + n // 4}')
            if t == 3 and n in (0, 1):
                p_rd(2 + n)
                ops.append(f'P{2 + n}')
            if n + DIST < 16:
                issue_rd(n + DIST)
            if n >= 10:
                for _ in range(6):
                    if shadow:
                        a(shadow.pop(0))
        for ins in shadow:
            a(ins)

    pv(0)
    stamp(3)
    pv(1)
    stamp(4)
    a('v_mov_b32 v5, 5')
    a(f'ds_write_b32 v7, v5 offset:{F_DONE}')
    lds_wait(10, F_DONE, 5, 5, 0)
    for j in range(16):
        if j % 2 == 0:
            a(f's_waitcnt vmcnt({14 - j + o.r3})')
        a(f'ds_write_b128 v9, {vr(TR + 4 * j, 4)} offset:{1024 * j + 16384}')
    a('v_mov_b32 v5, 3')
    a(f'ds_write_b32 v7, v5 offset:{F_LAND}')
    stamp(5)
    if o.r3:
        for j in range(o.r3):
            if j % 2 == 0:
                a(f's_waitcnt vmcnt({o.r3 - 2 - j})')
            a(f'ds_write_b128 v9, {vr(TR + 64 + 4 * j, 4)} offset:{1024 * j}')
        a('v_mov_b32 v5, 4')
        a(f'ds_write_b32 v7, v5 offset:{F_LAND}')
    pv(2)
    stamp(6)
    a('v_mov_b32 v35, 6')
    pv(3)
    stamp(7)

    def l_reads():
        a(f'ds_read_b32 v{FLG}, v10 offset:{F_LSEQ}')
        a(f'ds_read_b128 v[172:175], v{vRL}')
        a(f'ds_read_b32 v168, v{vRM}')
    l_reads()
    lists = [half_store(ap, 1) for ap in range(8)]
    for ap in range(8):
        if ap == o.rwait - 1:
            lists[ap].append(f'ds_write_b32 v7, v35 offset:{F_DONE}')
    for ins in skew(lists):
        a(ins)
    a('s_waitcnt lgkmcnt(0)')
    a(f'v_cmp_ne_u32 vcc, 1, v{FLG}')
    for k in range(4):
        dpp('v_xor_b32', XX + 2 * k, XX + 2 * k, XX + 2 * k, 'row_ror:8', 0x3)
    a('s_cbranch_vccnz L_lslow')
    a.label('L_lok')
    for k in range(4):
        dpp('v_xor_b32', XX + 2 * k, XX + 2 * k + 1, XX + 2 * k + 1, 'row_ror:8', 0xc)
    a('v_add_f32 v172, v172, v173')
    for m in range(2):
        dpp('v_xor_b32', XX + 4 * m, XX + 4 * m, XX + 4 * m, 'row_half_mirror', 0x5)
    a('v_add_f32 v174, v174, v175')
    for m in range(2):
        dpp('v_xor_b32', XX + 4 * m, XX + 4 * m + 2, XX + 4 * m + 2, 'row_half_mirror', 0xa)
    a('v_add_f32 v169, v172, v174')
    for m in range(2):
        dpp('v_xor_b32', XX + 4 * m, XX + 4 * m, XX + 4 * m, 'quad_perm:[1,0,3,2]')
    a(f'v_bitop3_b32 v171, v168, v169, s{S_TAG} {XOR3}')
    for m in range(2):
        dpp('v_xor_b32', 170 if m == 0 else XX + 4, XX + 4 * m, XX + 4 * m, 'quad_perm:[2,3,0,1]')
    ex(0x2222222222222222)
    a(f'v_mov_b32 v170, v{XX + 4}')
    ex(0x3333333333333333)
    a('v_xor_b32 v171, v171, v170')
    a(f'buffer_store_dwordx4 v[168:171], v{vRC}, {S(R_WS)}, s97 offen sc1')
    if o.stamps:
        stamp(8)
        a('s_waitcnt vmcnt(0)')
        stamp(9)
        a('s_cmp_lg_u32 s3, 0')
        a('s_cbranch_scc1 L_end')
        dump_stamps(11, 1)
    a('s_endpgm')
    a.label('L_lslow')
    l_reads()
    a('s_waitcnt lgkmcnt(0)')
    a(f'v_cmp_ne_u32 vcc, 1, v{FLG}')
    a('s_cbranch_vccz L_lok')
    a(f's_sub_u32 s{S_CNT}, s{S_CNT}, 1')
    a('s_cbranch_scc0 L_lslow')
    a('s_branch L_lok')
    for t in range(4):
        a.label(f'L_ps{t}')
        a(f'v_cmp_ne_u32 vcc, 3, v{FLG}')
        a(f's_cbranch_vccz L_pr{t}')
        a('s_sleep 1')
        a(f's_sub_u32 s{S_CNT}, s{S_CNT}, 1')
        a(f's_cbranch_scc0 L_pp{t}')
        a(f's_branch L_pg{t}')
        a.label(f'L_pr{t}')
        if t > 0:
            for jq in range(4):
                a(f'ds_read_b128 {vr(44 + 4 * jq, 4)}, v{vAR} offset:{128 * t + 32 * jq}')
            a('s_waitcnt lgkmcnt(0)')
            a('s_nop 7')
            for blk in range(4):
                for j in range(16):
                    a(f'v_mul_f32 v{O_ + 16 * blk + j}, v{O_ + 16 * blk + j}, v{44 + j}')
        a(f's_branch L_pg{t}')

    a.label('L_comp')
    QA = 128
    vMW, vFW, vPW, vFR, vAW, vMR = 6, 7, 8, 10, 11, 9
    NM, LL = 12, 14
    SS, PKS, EX4, AA, AQ, WK = 32, 40, 44, 48, 56, 64
    NA = 8
    a('v_lshlrev_b32 v16, 2, v1')
    a(f'v_add_u32 v16, {FB}, v16')
    a('v_mov_b32 v17, 0')
    a('ds_write_b32 v16, v17')
    a('s_waitcnt lgkmcnt(0)')
    a('s_barrier')
    a(f's_load_dword s{S_TAG}, s[{R_WS}:{R_WS + 1}], {WS_EPOCH}')
    srd_ptr([R_CKV])
    consts()
    a(f's_add_u32 s63, s90, {TS + 15 * 1024}')
    if o.mix:
        a(f's_xor_b32 s63, s63, {MX[1] ^ M3}')
    a(f's_add_u32 s99, s90, {3 * TS}')
    if M3:
        a(f's_xor_b32 s99, s99, {M3}')
    if o.r3:
        a(f's_add_u32 s99, s99, {o.r3 * 1024}')
        gm_ = (0, MX[0], MX[0] ^ MX[1], MX[1])[(o.r3 // 4) % 4]
        if gm_:
            a(f's_xor_b32 s99, s99, {gm_}')
    a(f's_add_u32 m0, s91, {o.r3 * 1024}')
    for j in range(8):
        a(f'v_xor_b32 v{104 + j}, {32 * j}, v2')
    a('v_xor_b32 v21, 0xe0, v2')
    a(f'buffer_load_dwordx4 v[24:27], v21, {S(R_CKV)}, s63 offen nt')
    a('v_mov_b32 v20, 128')
    a('global_load_dword v100, v20, s[86:87] sc1')
    if o.tlb & 1:
        a('v_lshrrev_b32 v20, 1, v4')
        a('v_xor_b32 v22, v20, v4')
        a('v_and_b32 v22, 1, v22')
        a(f'v_lshlrev_b32 v22, {o.mb1}, v22')
        a(f'v_lshl_add_u32 v22, v20, {o.mb2}, v22')
        a('v_xor_b32 v22, s90, v22')
        a('v_lshl_add_u32 v22, v4, 12, v22')
        a('v_bfe_u32 v20, v1, 2, 2')
        a('v_lshl_add_u32 v22, v20, 16, v22')
        ex(0xffff)
        a(f'buffer_load_dword v101, v22, {S(R_CKV)}, 0 offen offset:3968 nt')
        ex(-1)
    if o.tlb & 2:
        a('v_lshlrev_b32 v22, 17, v1')
        a('s_lshl_b32 s94, s3, 15')
        a(f's_add_u32 s94, s94, {WS_OP}')
        ex(0x1ffffffff)
        a(f'buffer_load_dword v102, v22, {S(R_WS)}, s94 offen nt')
        ex(-1)
    a(f's_add_u32 s6, s91, {16384 + 15 * 1024}')
    a('v_add_u32 v28, s6, v2')
    a('s_lshl_b32 s90, s4, 15')
    a('s_lshl_b32 s95, s3, 13')
    a('s_add_u32 s90, s90, s95')
    if WS_QA:
        a(f's_add_u32 s90, s90, {WS_QA}')
    a('s_add_u32 s92, s90, 4096')
    a(f's_lshl_b32 s93, s3, {8 if o.hc else 12}')
    a(f's_lshl_b32 s94, s4, {10 if o.hc else 5}')
    a('s_add_u32 s93, s93, s94')
    a(f's_add_u32 s93, s93, {WS_QAH}')
    a('v_lshrrev_b32 v16, 1, v1')
    a(f'v_lshlrev_b32 v16, {3 if o.hc else 7}, v16')
    a('s_and_b32 s94, s3, 1')
    a('s_lshl_b32 s94, s94, 7')
    a('v_xor_b32 v17, s94, v2')
    a(f's_add_u32 s95, s95, {SB}')
    a('v_add_u32 v17, s95, v17')
    for i in range(4):
        a(f'v_xor_b32 v{96 + i}, {32 * i}, v17')
    a('v_lshrrev_b32 v22, 5, v1')
    a('v_and_b32 v29, 1, v3')
    a('v_lshlrev_b32 v23, 4, v29')
    a('v_lshl_add_u32 v23, v22, 9, v23')
    a('v_bfe_u32 v18, v1, 3, 1')
    a('v_lshl_add_u32 v18, v18, 2, v4')
    a('v_lshl_add_u32 v18, v18, 5, v23')
    a('v_lshl_add_u32 v18, v11, 10, v18')
    a(f'v_add_u32 v18, {SB}, v18')
    a('v_bfe_u32 v20, v1, 2, 2')
    a('v_lshl_add_u32 v21, v4, 2, v20')
    a('v_lshl_add_u32 v19, v21, 10, v23')
    a('v_and_b32 v21, 14, v21')
    a('v_lshl_add_u32 v19, v21, 4, v19')
    a('v_add_u32 v19, s91, v19')
    for i in range(8):
        a(f'v_xor_b32 v{AA + i}, {32 * i}, v19')
        a(f'v_xor_b32 v{AQ + i}, {32 * i}, v18')
    a('v_and_b32 v20, 31, v1')
    a('s_lshl_b32 s95, s3, 2')
    a(f's_add_u32 s95, s95, {L_MAX}')
    a(f'v_lshl_add_u32 v{vMW}, v20, 4, s95')
    a(f'v_lshlrev_b32 v{vPW}, 9, v22')
    a(f'v_lshl_add_u32 v{vPW}, v11, 4, v{vPW}')
    a(f'v_lshl_add_u32 v{vPW}, v29, 3, v{vPW}')
    a('s_lshl_b32 s95, s3, 10')
    a(f's_add_u32 s95, s95, {L_P}')
    a(f'v_add_u32 v{vPW}, s95, v{vPW}')
    a(f'v_lshlrev_b32 v{vMR}, 4, v11')
    a(f'v_add_u32 v{vMR}, {L_MAX}, v{vMR}')
    a(f'v_lshlrev_b32 v{vAW}, 2, v11')
    a(f'v_add_u32 v{vAW}, {L_ALPHA}, v{vAW}')
    a(f'v_mov_b32 v{LL}, 0')
    a(f'v_mov_b32 v{LL + 1}, 0')
    a('v_mov_b32 v0, 1')
    a('v_mov_b32 v5, 2')
    a(f's_mov_b32 s98, {f32bits(float(o.thr))}')
    a('s_mov_b32 s96, 1')
    a(f's_and_b32 s94, s2, {o.nh - 1}')
    a('s_lshl_b32 s94, s94, 7')
    a(f's_add_u32 s94, s94, {WS_HU}')
    a(f's_add_u32 s0, s{R_WS}, s94')
    a(f's_addc_u32 s1, s{R_WS + 1}, 0')
    get_tag()
    if o.sprio:
        a(f's_setprio {o.sprio}')
    HR_ = 30

    def q_row(i):
        a(f'buffer_load_dwordx4 {vr(QA + 4 * i, 4)}, v2, {S(R_WS)}, s{90 if i < 4 else 92} offen offset:{1024 * (i % 4)} sc1')
    if o.hone:
        a('s_cmp_eq_u32 s3, 0')
        a('s_cbranch_scc1 L_hu0')
        a(f'v_mov_b32 v20, {FB}')
        lds_wait(20, F_HUS, 1, 19, 0)
        a('s_branch L_hugo2')
        a.label('L_hu0')
    a(f's_mov_b32 s{S_CNT}, {SPIN}')
    a.label('L_hu')
    a('s_load_dword s94, s[0:1], 0 glc')
    a('s_waitcnt lgkmcnt(0)')
    a(f's_cmp_eq_u32 s94, s{S_TAG}')
    a('s_cbranch_scc1 L_hugo')
    if o.hsl:
        a(f's_sleep {o.hsl}')
    a(f's_sub_u32 s{S_CNT}, s{S_CNT}, 1')
    a('s_cbranch_scc0 L_hu')
    a.label('L_hugo')
    if o.hone:
        a(f'ds_write_b32 v{vFW}, v0 offset:{F_HUS}')
        a.label('L_hugo2')
    a(f's_mov_b32 s{S_CNT}, {SPIN}')
    a.label('L_qload')
    a(f'buffer_load_dwordx2 {vr(HR_, 2)}, v16, {S(R_WS)}, s93 offen sc1')
    for i in range(8):
        q_row(i)
    a(f'ds_write_b32 v{vFW}, v0 offset:{F_HUS}')
    stamp(8)
    a('s_waitcnt vmcnt(8)')
    a(f'v_bitop3_b32 v21, v{HR_}, v{HR_ + 1}, s{S_TAG} {XOR3}')
    for i in range(8):
        a(f's_waitcnt vmcnt({7 - i})')
        a(f'ds_write_b128 v{96 + i % 4}, {vr(QA + 4 * i, 4)} offset:{1024 * i}')
        xor_chain(19, ([19] if i else []) + list(range(QA + 4 * i, QA + 4 * i + 4)))
    for c in ('quad_perm:[1,0,3,2]', 'quad_perm:[2,3,0,1]', 'row_ror:4', 'row_ror:8'):
        dpp('v_xor_b32', 19, 19, 19, c)
        if c == 'quad_perm:[1,0,3,2]':
            a(f'v_xor_b32 v19, v19, v{HR_}')
    swap_step('v_xor_b32', 19, 20, 16)
    swap_step('v_xor_b32', 19, 20, 32)
    a('v_or_b32 v19, v19, v21')
    a('v_cmp_ne_u32 vcc, 0, v19')
    a('s_cbranch_vccz L_qdone')
    a(f's_sub_u32 s{S_CNT}, s{S_CNT}, 1')
    a('s_cbranch_scc0 L_qload')
    a.label('L_qdone')
    a(f'ds_write_b32 v{vFW}, v0 offset:{F_QST}')
    stamp(10)
    lds_wait(vFW, F_LAND, 1, 19)
    lds_wait(vFR, F_QST, 1, 19, 0)
    stamp(3)

    def a_read(m, buf):
        a(f'ds_read_b128 {vr(WK + 4 * (m % NA), 4)}, v{AA + m // 2} offset:{256 * (m % 2) + 16384 * buf}')

    def q_read(m):
        for hh in range(2):
            a(f'ds_read_b128 {vr(QA + 64 * hh + 4 * m, 4)}, v{AQ + m // 2} offset:{16384 * hh + 256 * (m % 2)}')

    def s_mfma(st, zero):
        for hh in range(2):
            mfma16(SS + 4 * hh, WK + 4 * (st % NA), QA + 64 * hh + 4 * st, zero and st == 0)
    for st in range(4):
        q_read(st)
        a_read(st, 0)
    for st in range(16):
        a(f's_waitcnt lgkmcnt({3 * min(3, 15 - st)})')
        s_mfma(st, True)
        if st + 4 < 16:
            q_read(st + 4)
            a_read(st + 4, 0)

    def max_xchg(lbl, floor):
        a('v_mov_b32 v18, s96')
        for hh in range(2):
            a(f'v_max3_f32 v{16 + hh}, v{SS + 4 * hh}, v{SS + 4 * hh + 1}, v{SS + 4 * hh + 2}')
            if floor:
                a(f'v_max3_f32 v{16 + hh}, v{16 + hh}, v{SS + 4 * hh + 3}, 0')
            else:
                a(f'v_max_f32 v{16 + hh}, v{16 + hh}, v{SS + 4 * hh + 3}')
        a('v_permlane16_swap_b32 v16, v17')
        a('v_max_f32 v16, v16, v17')
        swap_step('v_max_f32', 16, 17, 32)
        a(f'ds_write_b32 v{vMW}, v16')
        a(f'ds_write_b32 v{vFW}, v18 offset:{F_MSEQ}')
        a(f's_mov_b32 s{S_CNT}, {SPIN * 40}')
        a.label(lbl)
        a(f'ds_read_b32 v18, v{vFR} offset:{F_MSEQ}')
        a(f'ds_read_b128 {vr(WK, 4)}, v{vMR}')
        a(f'ds_read_b128 {vr(WK + 4, 4)}, v{vMR} offset:256')
        a('s_waitcnt lgkmcnt(0)')
        a('v_cmp_gt_u32 vcc, s96, v18')
        a(f's_cbranch_vccz {lbl}go')
        a(f's_sub_u32 s{S_CNT}, s{S_CNT}, 1')
        a(f's_cbranch_scc0 {lbl}')
        a.label(lbl + 'go')
        for hh in range(2):
            a(f'v_max3_f32 v{16 + hh}, v{WK + 4 * hh}, v{WK + 4 * hh + 1}, v{WK + 4 * hh + 2}')
            a(f'v_max_f32 v{16 + hh}, v{16 + hh}, v{WK + 4 * hh + 3}')
            for j in range(4):
                a(f'v_sub_f32 v{SS + 4 * hh + j}, v{SS + 4 * hh + j}, v{16 + hh}')

    def soft(t):
        g = []
        for hh in range(2):
            for j in range(4):
                g.append(f'v_exp_f32 v{EX4 + j}, v{SS + 4 * hh + j}')
            g.append(f'v_cvt_pk_bf16_f32 v{PKS + 2 * hh}, v{EX4}, v{EX4 + 1}')
            g.append(f'v_cvt_pk_bf16_f32 v{PKS + 2 * hh + 1}, v{EX4 + 2}, v{EX4 + 3}')
            g.append(f'ds_write_b64 v{vPW}, {vr(PKS + 2 * hh, 2)} offset:{4096 * t + 256 * hh}')
        return g

    def l_commit():
        for k in range(2):
            for hh in range(2):
                a(f'v_dot2_f32_bf16 v{LL + hh}, v{PKS + 2 * hh + k}, s{S_ONES}, v{LL + hh}')
    max_xchg('L_m0', False)
    for ins in soft(0):
        a(ins)
    a(f'ds_write_b32 v{vFW}, v5 offset:{F_PS}')
    a('ds_write_b128 v28, v[24:27]')
    a(f'ds_write2_b32 v{vAW}, v16, v17 offset0:128 offset1:144')
    for hh in range(2):
        a(f'v_sub_f32 v{NM + hh}, 0, v{16 + hh}')
    l_commit()
    a('s_cmp_lg_u32 s3, 1')
    a('s_cbranch_scc1 L_nom0')
    a('v_permlane16_swap_b32 v16, v17')
    a('s_lshl_b32 s94, s4, 12')
    a('s_lshl_b32 s95, s5, 7')
    a('s_add_u32 s94, s94, s95')
    a(f's_add_u32 s94, s94, {WS_M0}')
    a('v_lshlrev_b32 v18, 2, v1')
    a(f'v_xor_b32 v16, s{S_TAG}, v16')
    ex(0xffffffff)
    a(f'buffer_store_dword v16, v18, {S(R_WS)}, s94 offen sc1')
    ex(-1)
    a.label('L_nom0')
    stamp(4)
    PD = 6
    for t in range(1, 4):
        lbl = f'L_l{t}'
        a(f's_mov_b32 s{S_CNT}, {SPIN * 40}')
        for hh in range(2):
            for j in range(4):
                a(f'v_mov_b32 v{SS + 4 * hh + j}, v{NM + hh}')
        def t3_wait():
            a('s_add_u32 s94, s3, 1')
            lds_wait(vFR, F_DONE, 's94', 18, 0)

        def t3_row(j):
            a(f'buffer_load_dwordx4 v{104 + j // 2}, {S(R_CKV)}, s99 offen offset:{(j % 4) * 1024} nt lds')
            if j % 4 == 3 and j < 15:
                a('s_add_u32 s99, s99, 4096')
                if o.mix:
                    a(f's_xor_b32 s99, s99, {MX[(j // 4) % 2]}')
                a('s_add_u32 m0, m0, 4096')
        if (t == 2 and o.t3 == 0) or (t == 1 and o.t3 == 1):
            def s_go():
                lb = a.uid('nogo')
                a('s_cmp_lg_u32 s3, 0')
                a(f's_cbranch_scc1 {lb}')
                a('s_sub_u32 s92, s2, 128')
                a('s_lshl_b32 s92, s92, 7')
                a(f's_add_u32 s92, s92, {WS_GO}')
                a(f'v_mov_b32 v18, s{S_TAG}')
                a('v_lshlrev_b32 v19, 2, v1')
                ex(0xffffffff)
                a(f'buffer_store_dword v18, v19, {S(R_WS)}, s92 offen sc1')
                ex(-1)
                a.label(lb)
            t3_wait()
            if o.gon == 98:
                s_go()
            for j in range(o.r3, 16):
                t3_row(j)
            if o.gon == 99:
                s_go()
            stamp(1)
            a(f's_mov_b32 s{S_CNT}, {SPIN * 40}')
        if t < 3 or o.r3:
            a.label(lbl)
            a(f'ds_read_b32 v18, v{vFW} offset:{F_LAND}')
            a('s_waitcnt lgkmcnt(0)')
            a(f'v_cmp_ge_u32 vcc, {t}, v18')
            a(f's_cbranch_vccz {lbl}go')
            a('s_sleep 1')
            a(f's_sub_u32 s{S_CNT}, s{S_CNT}, 1')
            a(f's_cbranch_scc0 {lbl}')
            a.label(lbl + 'go')
        if t == 3:
            a('s_waitcnt vmcnt(0)')
            stamp(2)
        for st in range(PD):
            a_read(st, BUF[t])
        if t == 3 and o.rpos == 0:
            a('s_lshl_b32 s94, s4, 2')
            a('s_add_u32 s94, s94, 16')
            arrive(0, 30, 31, 's94')
        for st in range(16):
            a(f's_waitcnt lgkmcnt({min(PD - 1, 15 - st)})')
            s_mfma(st, False)
            if st + PD < 16:
                a_read(st + PD, BUF[t])
            if t == 1 and o.t3 >= 2:
                if st == o.t3:
                    t3_wait()
                    t3q = list(range(16))
                if st >= o.t3:
                    for _ in range(-(-16 // (16 - o.t3))):
                        if t3q:
                            t3_row(t3q.pop(0))
                if st == 15:
                    stamp(1)
        for k, ins in enumerate(soft(t)):
            a(ins)
            if k == 3:
                a(f'v_max3_f32 v19, v{SS}, v{SS + 1}, v{SS + 2}')
                a(f'v_max3_f32 v19, v{SS + 3}, v{SS + 4}, v19')
            if k == 10:
                a(f'v_max3_f32 v19, v{SS + 5}, v{SS + 6}, v19')
                a(f'v_max_f32 v19, v{SS + 7}, v19')
                a('v_cmp_lt_f32 vcc, s98, v19')
        a('s_cmp_eq_u64 vcc, 0')
        a('s_cselect_b32 s91, 2, 1')
        a('v_mov_b32 v18, s91')
        a(f'ds_write_b32 v{vFW}, v18 offset:{F_PS + 16 * t}')
        stamp(4 + t)
        if t == 3 and o.rpos == 1:
            a('s_lshl_b32 s94, s4, 2')
            a('s_add_u32 s94, s94, 16')
            arrive(0, 30, 31, 's94')
        a(f's_mov_b32 s{S_CNT}, {SPIN * 40}')
        a.label(f'L_c{t}')
        a(f'ds_read_b32 v18, v{vFR} offset:{F_PS + 16 * t}')
        a('s_waitcnt lgkmcnt(0)')
        a('v_cmp_ne_u32 vcc, 2, v18')
        a(f's_cbranch_vccnz L_cs{t}')
        a.label(f'L_cg{t}')
        l_commit()
    a('s_lshl_b32 s94, s4, 2')
    a('s_add_u32 s94, s94, 16')
    a(f'v_permlane16_swap_b32 v{LL}, v{LL + 1}')
    a(f'v_add_f32 v{LL}, v{LL}, v{LL + 1}')
    swap_step('v_add_f32', LL, LL + 1, 32)
    a(f'ds_write_b32 v{vMW}, v{LL}')
    a(f'ds_write_b32 v{vFW}, v0 offset:{F_LSEQ}')
    if o.rdelay:
        a(f's_sleep {o.rdelay}')
    if o.rpos == 2:
        arrive(0, 30, 31, 's94')
    a('s_cmp_lg_u32 s3, 0')
    a('s_cbranch_scc1 L_norel2')
    a('s_lshl_b32 s94, s4, 14')
    a(f's_add_u32 s94, s94, {WS_OF}')
    a('s_add_u32 s95, s94, 8192')
    a('v_lshlrev_b32 v31, 7, v1')
    a(f'v_mov_b32 v29, s{S_TAG}')
    a('s_waitcnt vmcnt(0)')
    a('v_readfirstlane_b32 s1, v30')
    a('s_and_b32 s1, s1, 31')
    a('s_cmp_lg_u32 s1, 31')
    a('s_cbranch_scc1 L_norel2')
    if o.rwait:
        lds_wait(vFR, F_DONE, 6, 18, 0)
    if o.nl < 64:
        ex((1 << o.nl) - 1)
    a(f'buffer_store_dword v29, v31, {S(R_WS)}, s94 offen sc1')
    if o.nl > 64:
        a(f'buffer_store_dword v29, v31, {S(R_WS)}, s95 offen sc1')
    a.label('L_norel2')
    stamp(9)
    a.label('L_send')
    if o.stamps:
        a('s_memrealtime s[90:91]')
        a('s_cmp_lg_u32 s3, 0')
        a('s_cbranch_scc1 L_end')
        dump_stamps(14, 0)
    a('s_endpgm')
    for t in range(1, 4):
        a.label(f'L_cs{t}')
        a('v_cmp_eq_u32 vcc, 0, v18')
        a(f's_cbranch_vccz L_ex{t}')
        a(f's_sub_u32 s{S_CNT}, s{S_CNT}, 1')
        a(f's_cbranch_scc0 L_c{t}')
        a(f's_branch L_cg{t}')
        a.label(f'L_ex{t}')
        a('s_add_u32 s96, s96, 1')
        max_xchg(f'L_mx{t}', True)
        for hh in range(2):
            a(f'v_exp_f32 v{20 + hh}, -v{16 + hh}')
            a(f'v_sub_f32 v{NM + hh}, v{NM + hh}, v{16 + hh}')
            a(f'v_sub_f32 v{22 + hh}, 0, v{NM + hh}')
            a(f'v_mul_f32 v{LL + hh}, v{LL + hh}, v{20 + hh}')
        a(f'ds_write2_b32 v{vAW}, v20, v21 offset0:{32 * t} offset1:{32 * t + 16}')
        a(f'ds_write2_b32 v{vAW}, v22, v23 offset0:128 offset1:144')
        for ins in soft(t):
            a(ins)
        a('v_mov_b32 v18, 3')
        a(f'ds_write_b32 v{vFW}, v18 offset:{F_PS + 16 * t}')
        lds_wait(vFR, F_PS + 16 * t, 3, 18, 0)
        a(f's_branch L_cg{t}')
    a.label('L_end')
    a('s_endpgm')

    txt = HEADER
    txt += f'; @launch grid=(256,1,1) block=(512,1,1) lds={LDS_TOTAL}\n'
    txt += '.amdgcn_target "amdgcn-amd-amdhsa--gfx950"\n.text\n'
    txt += a.finalize()
    txt += f""".section .rodata,"a"
.p2align 6
.amdhsa_kernel {name}
  .amdhsa_next_free_vgpr 256
  .amdhsa_next_free_sgpr 102
  .amdhsa_accum_offset 256
  .amdhsa_group_segment_fixed_size 0
  .amdhsa_kernarg_size 104
  .amdhsa_user_sgpr_count 2
  .amdhsa_user_sgpr_kernarg_segment_ptr 1
  .amdhsa_system_sgpr_workgroup_id_x 1
.end_amdhsa_kernel
"""
    return txt


if __name__ == '__main__':
    o = Opt()
    for kv in sys.argv[2:]:
        k, v = kv.split('=')
        setattr(o, k, v.replace('+', ' ') if k == 'r64' else int(v))
    open(sys.argv[1], 'w').write(gen(o))
```

```python
import sys
sys.path.insert(0, 'dev')
from asmdsl import Asm
from layout17 import *

NAME = 'sequential_preLN__compressed_kv_cla__glu_gated_geglu__decode'
HEADER = open('cdna_kernels/' + NAME + '.s.ref').read().split('; Override launch')[0]
LDS_TOTAL = 163840
SB = 130048
L_P = 131072
FB = 162816
F_LAND, F_QST, F_MSEQ, F_DONE, F_LSEQ, F_HUS, F_PS = 0, 16, 32, 48, 64, 80, 96
L_MAX = FB + 512
L_ALPHA = L_P + 16384
L_MFIN = L_ALPHA + 512
A_WQ, A_WUK, A_WUV, A_WO, A_X, A_C, A_D = 0, 32768, 98304, 98304, 131072, 132096, 135168
A_WD, A_ACT, A_H = 65536, 138240, 139264

R_X, R_WS, R_CKV, R_WQ, R_WUK, R_WUV, R_WO, R_WG, R_WU, R_WD, R_OUT, R_ACT = [8 + 4 * i for i in range(12)]
SIZES = {R_X: 4096, R_WS: WS_END, R_CKV: 32 << 20, R_WQ: 4 << 20, R_WUK: 4 << 20, R_WUV: 4 << 20, R_WO: 4 << 20,
         R_WG: 512 * 2752, R_WU: 512 * 2752, R_WD: 1376 * 1024, R_OUT: 4096, R_ACT: 43 * 256}
PTR = {R_X: 64, R_CKV: 66, R_WQ: 68, R_WUK: 70, R_WUV: 72, R_WO: 74, R_WG: 78, R_WU: 80, R_WD: 82, R_OUT: 84}
S_TAG, S_ONES, S_LO1, S_HI1, S_CNT, S_MASK = 56, 57, 58, 59, 60, 62
S_XCC, S_LOC = 52, 53
SPIN = 200000
XOR3 = 'bitop3:0x96'


DOC = """; One persistent kernel, 256 workgroups (one per CU), generated by a hand-written Python emitter.
"""


class Opt:
    stamps = 0
    w0 = 1
    n0 = 2
    window = 20
    w3 = 16
    wwin = 8
    sleep = 1
    sleep_long = 6
    stsleep = 3
    thr = 60
    dbgwg = 192
    hold = 0
    dsleep = 1
    ddelay = 0
    gon = 98
    fine = 0
    hupos = 1
    edelay = 0
    efwin = 4
    sw = 1
    efgo = 0
    qdelay = 0
    hprio = 1
    nsamp = 2
    rdelay = 0
    lw = 12
    diag = 0
    rpos = 1
    owin = 3
    ef0 = 2
    il = 0
    mix = 1
    loc = 1
    egate = 1
    lprio = 2
    rwait = 5
    qloc = 0
    hc = 0
    hfull = 1
    smask = 0x2222
    t3 = 0
    nl = 32
    pf = 0
    emask = 0xd1d
    emask2 = 0x1d
    m3 = 0
    dmask = 0xe2e2
    dfw = 0
    dgo = 0
    r3 = 4
    dsite = 0
    didx = 0
    dx = 8
    mw = 1 << 18
    nh = 64
    hone = 1
    hsl = 0
    osl = 0
    oone = 0
    osc = 0
    wb = 0
    tlb = 0
    arrpos = 1
    earlym = 1
    mb1 = 20
    mb2 = 19
    efn = 2
    pvprio = 0
    sprio = 0
    r64 = 'nt'
    wgo = 1
    esleep = 0
    fdelay = 0
    now = 0
    w1 = 5
    n1 = 0


def vr(a, n):
    return f'v[{a}:{a + n - 1}]' if n > 1 else f'v{a}'


def S(base):
    return f's[{base}:{base + 3}]'


def gen(o):
    a = Asm()
    name = NAME + '_kernel'
    o.st3 = o.stamps == 3

    def ex(mask):
        if mask == -1:
            a('s_mov_b64 exec, -1')
        elif mask <= 64:
            a(f's_mov_b64 exec, {mask}')
        else:
            a(f's_mov_b32 exec_lo, 0x{mask & 0xffffffff:x}')
            a(f's_mov_b32 exec_hi, 0x{mask >> 32:x}')

    def dpp(op, d, s0, s1, ctrl, bank=0xf):
        a(f'{op}_dpp v{d}, v{s0}, v{s1} {ctrl} row_mask:0xf bank_mask:0x{bank:x}')

    def swap_step(op, v, t, which):
        a(f'v_mov_b32 v{t}, v{v}')
        a(f'v_permlane{which}_swap_b32 v{v}, v{t}')
        a(f'{op} v{v}, v{v}, v{t}')

    def fine2(r):
        if o.fine == 2:
            lb = a.uid('f2')
            a('s_cmp_lg_u32 s97, 0')
            a(f's_cbranch_scc1 {lb} ;noflush')
            a(f's_memtime s[{r}:{r + 1}]')
            a.label(lb)

    def f3(r):
        if o.fine == 3:
            a(f's_memtime s[{r}:{r + 1}]')

    def stamp(idx):
        if o.stamps:
            a(f's_memrealtime s[{64 + 2 * idx}:{65 + 2 * idx}]')

    site = [0]

    def dump_stamps(n, grp, dbg=None):
        site[0] += 1
        if o.dsite:
            if o.dsite == site[0]:
                r = 100 if o.didx == 0 else 64 + 2 * o.didx
                lb = a.uid('dg')
                if o.dx < 8:
                    a('s_and_b32 s92, s2, 7')
                    a(f's_cmp_lg_u32 s92, {o.dx}')
                    a('s_cbranch_scc1 L_end')
                a('s_waitcnt lgkmcnt(0)')
                a(f's_mov_b32 s62, s{r}')
                a.label(lb)
                a('s_memrealtime s[92:93]')
                a('s_waitcnt lgkmcnt(0)')
                a('s_sub_u32 s92, s92, s62')
                a('s_cmp_lt_u32 s92, 4000')
                a(f's_cbranch_scc1 {lb}')
            return
        a('s_waitcnt lgkmcnt(0)')
        a('s_mov_b64 exec, -1')
        a('v_mov_b32 v3, 0')
        a('v_writelane_b32 v3, s100, 0')
        for i in range(1, n):
            a(f'v_writelane_b32 v3, s{64 + 2 * i}, {i}')
        a('v_mbcnt_lo_u32_b32 v4, -1, 0')
        a('v_lshlrev_b32 v4, 2, v4')
        a('s_lshl_b32 s90, s2, 7')
        a(f's_add_u32 s90, s90, {WS_STAMP + 64 * grp}')
        ex(0xffff)
        a(f'buffer_store_dword v3, v4, {S(R_WS)}, s90 offen')
        if o.stamps == 2 and dbg:
            lb = a.uid('nodbg')
            a('v_subrev_u32 v3, s100, v3')
            if dbg == 'h':
                a(f's_cmp_lg_u32 s2, {o.dbgwg}')
                a(f's_cbranch_scc1 {lb}')
                ex(0x7fe)
                a('global_store_dword v4, v3, s[86:87] offset:-4')
            else:
                a('s_cmp_lg_u32 s2, 0')
                a(f's_cbranch_scc1 {lb}')
                ex(0x3e8)
                a('v_mbcnt_lo_u32_b32 v4, exec_lo, 0')
                a('v_lshlrev_b32 v4, 2, v4')
                a('global_store_dword v4, v3, s[86:87] offset:40')
            a.label(lb)

    def xor_chain(tmp, regs, last=None):
        ops = [f'v{r}' for r in regs] + ([last] if last else [])
        a(f'v_bitop3_b32 v{tmp}, {ops[0]}, {ops[1]}, {ops[2]} {XOR3}')
        ops = ops[3:]
        while len(ops) >= 2:
            a(f'v_bitop3_b32 v{tmp}, v{tmp}, {ops[0]}, {ops[1]} {XOR3}')
            ops = ops[2:]
        if ops:
            a(f'v_xor_b32 v{tmp}, {ops[0]}, v{tmp}')

    def chk_sentinel(regs, tmp):
        rs = list(regs)
        a(f'v_max3_u32 v{tmp}, v{rs[0]}, v{rs[1]}, v{rs[2]}')
        rs = rs[3:]
        while len(rs) >= 2:
            a(f'v_max3_u32 v{tmp}, v{tmp}, v{rs[0]}, v{rs[1]}')
            rs = rs[2:]
        if rs:
            a(f'v_max_u32 v{tmp}, v{tmp}, v{rs[0]}')
        a(f'v_cmp_eq_u32 vcc, -1, v{tmp}')

    def poll(loads, check, sleep=None, wait='s_waitcnt vmcnt(0)'):
        L, Dn = a.uid('poll'), a.uid('pdone')
        a(f's_mov_b32 s{S_CNT}, {SPIN}')
        a.label(L)
        loads()
        a(wait)
        check()
        a(f's_cbranch_vccz {Dn}')
        sl = o.sleep if sleep is None else sleep
        if sl:
            a(f's_sleep {sl}')
        a(f's_sub_u32 s{S_CNT}, s{S_CNT}, 1')
        a(f's_cbranch_scc0 {L}')
        a.label(Dn)

    def lds_wait(addr, off, want, tmp, sleep=1):
        L, Dn = a.uid('lw'), a.uid('lwd')
        a(f's_mov_b32 s{S_CNT}, {SPIN * 40}')
        a.label(L)
        a(f'ds_read_b32 v{tmp}, v{addr} offset:{off}')
        a('s_waitcnt lgkmcnt(0)')
        a(f'v_cmp_gt_u32 vcc, {want}, v{tmp}')
        a(f's_cbranch_vccz {Dn}')
        if sleep:
            a(f's_sleep {sleep}')
        a(f's_sub_u32 s{S_CNT}, s{S_CNT}, 1')
        a(f's_cbranch_scc0 {L}')
        a.label(Dn)

    def nan_retry(tag, regs, again, go):
        a.label(tag)
        chk_sentinel(regs, 10)
        a(f's_cbranch_vccz {go}')
        a(f's_sub_u32 s{S_CNT}, s{S_CNT}, 1')
        a(f's_cbranch_scc0 {again}')
        a(f's_branch {go}')

    def mfma16(d, x, y, first):
        c = '0' if first else vr(d, 4)
        a(f'v_mfma_f32_16x16x32_bf16 {vr(d, 4)}, {vr(x, 4)}, {vr(y, 4)}, {c}')

    def srd(rs):
        for r in rs:
            a(f's_mov_b32 s{r + 2}, {SIZES[r]}')
            a(f's_mov_b32 s{r + 3}, 0x00020000')

    def srd_ptr(rs):
        for r in rs:
            if r == R_ACT:
                a(f's_add_u32 s{R_ACT}, s{R_WS}, {WS_ACT}')
                a(f's_addc_u32 s{R_ACT + 1}, s{R_WS + 1}, 0')
            else:
                a(f's_mov_b64 s[{r}:{r + 1}], s[{PTR[r]}:{PTR[r] + 1}]')

    def consts():
        a(f's_mov_b32 s{S_ONES}, 0x3f803f80')
        a(f's_mov_b32 s{S_LO1}, 0x3f80')
        a(f's_mov_b32 s{S_HI1}, 0x3f800000')
        a(f's_mov_b32 s{S_MASK}, 0xffff0000')

    def get_tag():
        a('s_waitcnt lgkmcnt(0)')
        a(f's_add_u32 s{S_TAG}, s{S_TAG}, 0x9e3779b9')

    def vF(d):
        a(f'v_bfe_u32 v{d}, v1, 2, 2')
        a(f'v_lshlrev_b32 v{d}, 8, v{d}')
        a(f'v_lshl_add_u32 v{d}, v3, 6, v{d}')
        a(f'v_lshl_add_u32 v{d}, v4, 4, v{d}')

    def tr64_addr(d, t):
        a(f'v_bfe_u32 v{t}, v1, 2, 2')
        a(f'v_lshl_add_u32 v{t}, v3, 3, v{t}')
        a(f'v_lshlrev_b32 v{d}, 6, v{t}')
        a(f'v_lshl_add_u32 v{d}, v4, 3, v{d}')

    def tr_op(dst, addr, off, tau):
        a(f'ds_read_b64_tr_b16 {vr(dst, 2)}, v{addr} offset:{off}')
        a(f'ds_read_b64_tr_b16 {vr(dst + 2, 2)}, v{addr} offset:{off + tau}')

    def red4_read(x, addr):
        ex(0xffffffff)
        for w in range(4):
            a(f'ds_read_b128 {vr(x + 4 * w, 4)}, v{addr} offset:{512 * w}')
        a('s_waitcnt lgkmcnt(2)')
        for i in range(4):
            a(f'v_add_f32 v{x + i}, v{x + i}, v{x + 4 + i}')
        a('s_waitcnt lgkmcnt(0)')
        for i in range(4):
            a(f'v_add_f32 v{x + 8 + i}, v{x + 8 + i}, v{x + 12 + i}')
        for i in range(4):
            a(f'v_add_f32 v{x + i}, v{x + i}, v{x + 8 + i}')

    def frag_addr(dst, t):
        a(f'v_bfe_u32 v{dst}, v1, 1, 2')
        a(f'v_lshlrev_b32 v{dst}, 6, v{dst}')
        a(f'v_bfe_u32 v{t}, v1, 3, 2')
        a(f'v_lshl_add_u32 v{dst}, v{t}, 4, v{dst}')
        a(f'v_and_b32 v{t}, 1, v1')
        a(f'v_lshl_add_u32 v{dst}, v{t}, 3, v{dst}')

    M4 = 0x000f000f000f000f
    NS = 8 * bin(o.smask).count('1')
    assert NS & (NS - 1) == 0

    def arrive(wave, ret, t0, off, sel='s3'):
        lb = a.uid('arr')
        a(f's_cmp_lg_u32 {sel}, {wave}')
        a(f's_cbranch_scc1 {lb} ;noflush')
        a(f'v_mov_b32 v{t0}, {off}')
        a(f'v_mov_b32 v{ret}, 1')
        ex(1)
        a(f'global_atomic_add v{ret}, v{t0}, v{ret}, s[86:87] sc0 sc1')
        ex(-1)
        a.label(lb)

    def release(wave, ret, t0, last, flag, wait=None):
        lb = a.uid('rel')
        a(f's_cmp_lg_u32 s3, {wave}')
        a(f's_cbranch_scc1 {lb} ;noflush')
        if wait:
            a(wait)
        a(f'v_readfirstlane_b32 s1, v{ret}')
        a(f's_and_b32 s1, s1, {last}')
        a(f's_cmp_lg_u32 s1, {last}')
        a(f's_cbranch_scc1 {lb} ;noflush')
        a('s_mov_b64 exec, -1')
        a(f'v_mbcnt_lo_u32_b32 v{t0}, -1, 0')
        a(f'v_lshlrev_b32 v{t0}, 2, v{t0}')
        a(f'v_mov_b32 v{ret}, s{S_TAG}')
        if isinstance(flag, int):
            a(f's_mov_b32 s1, {flag}')
            flag = 's1'
        ex(0xffffffff)
        a(f'buffer_store_dword v{ret}, v{t0}, {S(R_WS)}, {flag} offen sc1')
        ex(-1)
        a.label(lb)

    def flag_wait(flag, t0, sleep):
        if isinstance(flag, int):
            a(f's_mov_b32 s1, {flag}')
            flag = 's1'
        ex(1)
        poll(lambda: a(f'buffer_load_dword v{t0}, off, {S(R_WS)}, {flag} sc1'),
             lambda: a(f'v_cmp_ne_u32 vcc, s{S_TAG}, v{t0}'), sleep)
        ex(-1)

    a(f'.globl {name}\n.p2align 8\n.type {name},@function')
    a.label(name)
    if o.stamps or o.diag:
        a('s_memrealtime s[100:101]')
    a('s_cmp_ge_u32 s2, 256')
    a('s_cbranch_scc1 L_end')
    a('s_load_dwordx16 s[64:79], s[0:1], 0')
    a('s_load_dwordx8 s[80:87], s[0:1], 64')
    a(f's_load_dwordx2 s[{R_WS}:{R_WS + 1}], s[0:1], 96')
    a('s_cmp_lt_u32 s2, 128')
    a('s_cbranch_scc1 L_nopf')
    a('s_getpc_b64 s[94:95]')
    a.label('L_pc')
    a('v_lshlrev_b32 v1, 7, v0')
    a(f'v_cmp_gt_u32 vcc, L_end-L_pc, v1')
    a('s_and_saveexec_b64 s[96:97], vcc')
    a('s_cbranch_execz L_pfdone')
    a('global_load_dword v127, v1, s[94:95]')
    a.label('L_pfdone')
    a('s_mov_b64 exec, s[96:97]')
    a.label('L_nopf')
    a('v_and_b32 v1, 63, v0')
    a('v_lshrrev_b32 v2, 6, v0')
    a('v_readfirstlane_b32 s3, v2')
    a('v_lshlrev_b32 v2, 4, v1')
    a('v_lshrrev_b32 v3, 4, v1')
    a('v_and_b32 v4, 3, v1')
    a('v_and_b32 v11, 15, v1')
    srd([R_WS, R_X])
    a('s_cmp_ge_u32 s2, 128')
    a('s_cbranch_scc1 L_att')

    srd([R_WQ, R_WUK])
    a('s_and_b32 s4, s2, 7')
    a('s_lshl_b32 s4, s4, 2')
    a('s_bfe_u32 s5, s2, 0x20003')
    a('s_add_u32 s4, s4, s5')
    a('s_lshr_b32 s5, s2, 5')
    a('s_lshl_b32 s6, s4, 8')
    a('v_lshlrev_b32 v5, 1, v3')
    a('v_xor_b32 v5, v5, v11')
    a('v_lshlrev_b32 v5, 4, v5')
    a('v_lshl_add_u32 v6, v3, 13, v5')
    a('v_xor_b32 v7, 0x80, v6')
    a('v_xor_b32 v8, v3, v11')
    a('v_lshlrev_b32 v8, 4, v8')
    a('v_lshl_add_u32 v8, v3, 13, v8')
    a('s_lshl_b32 s90, s5, 20')
    a('s_lshl_b32 s91, s3, 17')
    a('s_add_u32 s90, s90, s91')
    a('s_add_u32 s90, s90, s6')
    a('s_lshl_b32 s91, s3, 12')
    a('s_mov_b32 m0, s91')
    a('v_bfe_u32 v10, v1, 2, 2')
    a('v_lshlrev_b32 v10, 6, v10')
    a('v_lshl_add_u32 v10, v4, 10, v10')
    a('v_lshl_add_u32 v10, v3, 4, v10')
    a('s_lshl_b32 s93, s5, 8')
    XS, XO = 12, 28
    a('s_waitcnt lgkmcnt(0)')
    srd_ptr([R_X, R_WQ, R_WUK])
    a('s_cmp_lg_u32 s3, 0')
    a('s_cbranch_scc1 L_nox')
    for i in range(4):
        a(f'buffer_load_dwordx4 {vr(XS + 4 * i, 4)}, v10, {S(R_X)}, 0 offen offset:{256 * i}')
    a(f'buffer_load_dwordx4 {vr(XO, 4)}, v10, {S(R_X)}, s93 offen')
    a.label('L_nox')
    if o.qloc:
        a('s_lshl_b32 s92, s4, 13')
        a('s_lshl_b32 s93, s3, 10')
        a('s_add_u32 s92, s92, s93')
        a(f's_add_u32 s92, s92, {WS_QPL}')
        a(f'buffer_load_dwordx4 v[68:71], v2, {S(R_WS)}, s92 offen sc1')
    for i in range(4):
        a(f's_add_u32 s92, s90, {i * 32768}')
        a(f'buffer_load_dwordx4 v{6 + i // 2}, {S(R_WQ)}, s92 offen nt lds')
        if i < 3:
            a('s_add_u32 m0, m0, 1024')
    a('s_barrier')
    a('s_cmp_lt_u32 s3, 4')
    a('s_cbranch_scc1 L_nouk')
    a('s_lshl_b32 s91, s3, 17')
    a('s_add_u32 s90, s90, s91')
    a(f's_sub_u32 s90, s90, {8 << 17}')
    a('s_lshl_b32 s91, s3, 13')
    a(f's_add_u32 m0, s91, {A_WUK - 32768}')
    for i in range(8):
        if i % 2 == 0:
            a(f'v_xor_b32 v9, {64 * (i // 2)}, v8')
        a(f's_add_u32 s92, s90, {i * 32768}')
        a(f'buffer_load_dwordx4 v9, {S(R_WUK)}, s92 offen nt lds')
        if i < 7:
            a('s_add_u32 m0, m0, 1024')
    a.label('L_nouk')
    a(f's_load_dword s{S_TAG}, s[{R_WS}:{R_WS + 1}], {WS_EPOCH}')
    srd_ptr([R_WUV, R_WO, R_WG, R_WU, R_WD, R_OUT])
    consts()
    stamp(1)
    a('s_cmp_lg_u32 s3, 0')
    a('s_cbranch_scc1 L_noln')
    a(f's_waitcnt vmcnt({5 + o.qloc})')
    for i in range(16):
        a(f'v_dot2_f32_bf16 v34, v{XS + i}, s{S_ONES}, {"0" if i == 0 else "v34"}')
        a(f'v_dot2_f32_bf16 v35, v{XS + i}, v{XS + i}, {"0" if i == 0 else "v35"}')
    for c in ('row_ror:4', 'row_ror:8'):
        dpp('v_add_f32', 34, 34, 34, c)
        dpp('v_add_f32', 35, 35, 35, c)
    for wh in (16, 32):
        a('v_mov_b32 v12, v34')
        a('v_mov_b32 v13, v35')
        a(f'v_permlane{wh}_swap_b32 v34, v12')
        a(f'v_permlane{wh}_swap_b32 v35, v13')
        a('v_add_f32 v34, v34, v12')
        a('v_add_f32 v35, v35, v13')
    a('v_mul_f32 v34, 0x3b000000, v34')
    a('v_mul_f32 v35, 0x3b000000, v35')
    a('v_fma_f32 v35, -v34, v34, v35')
    a('v_max_f32 v35, 0, v35')
    a('v_add_f32 v35, 0x3727c5ac, v35')
    a('v_rsq_f32 v35, v35')
    a(f'v_mul_f32 v35, {QSCALE_BITS}, v35')
    a('v_mul_f32 v34, v34, v35')
    a(f's_waitcnt vmcnt({4 + o.qloc})')
    for i in range(4):
        a(f'v_lshlrev_b32 v12, 16, v{XO + i}')
        a(f'v_and_b32 v13, s{S_MASK}, v{XO + i}')
        a('v_fma_f32 v12, v12, v35, -v34')
        a('v_fma_f32 v13, v13, v35, -v34')
        a(f'v_cvt_pk_bf16_f32 v{XO + i}, v12, v13')
    a(f'v_add_u32 v12, {A_X}, v2')
    a(f'ds_write_b128 v12, {vr(XO, 4)}')
    a.label('L_noln')
    srd([R_WUV, R_WO, R_WG, R_WU, R_WD, R_OUT])
    for i in range(4):
        a(f'v_mov_b32 v{36 + i}, -1')
    a('s_lshl_b32 s92, s2, 3')
    a('s_add_u32 s92, s92, s3')
    a('s_mul_i32 s92, s92, 352')
    a(f's_add_u32 s92, s92, {WS_CLEAN}')
    ex(0x3fffff)
    a(f'buffer_store_dwordx4 v[36:39], v2, {S(R_WS)}, s92 offen sc1')
    ex(-1)
    a('v_bfe_u32 v40, v1, 2, 3')
    a('v_lshlrev_b32 v40, 1, v40')
    a('s_lshl_b32 s92, s3, 1')
    a('s_and_b32 s92, s92, 12')
    a(f'v_bitop3_b32 v40, v40, v4, s92 {XOR3}')
    a('v_lshlrev_b32 v40, 4, v40')
    a('v_bfe_u32 v41, v1, 2, 2')
    a('v_lshl_add_u32 v41, v3, 3, v41')
    a('v_lshl_add_u32 v40, v41, 8, v40')
    a('s_and_b32 s92, s3, 1')
    a('s_lshl_b32 s92, s92, 3')
    a('v_add_u32 v40, s92, v40')
    a('v_lshlrev_b32 v41, 8, v3')
    a('v_lshl_add_u32 v41, v4, 4, v41')
    a(f'v_add_u32 v41, {A_X}, v41')
    a('v_lshlrev_b32 v42, 6, v3')
    a('v_lshl_add_u32 v42, v4, 4, v42')
    a('s_lshl_b32 s96, s4, 13')
    if WS_QP:
        a(f's_add_u32 s96, s96, {WS_QP}')
    a('s_lshl_b32 s92, s5, 11')
    a('s_add_u32 s97, s96, s92')
    a('s_lshl_b32 s92, s3, 8')
    a('s_add_u32 s97, s97, s92')
    get_tag()
    stamp(2)
    if o.loc:
        a('s_getreg_b32 s1, hwreg(HW_REG_XCC_ID, 0, 4)')
        a(f's_xor_b32 s{S_XCC}, s1, s{S_TAG}')
    a(f's_add_u32 s98, s97, {WS_QPL - WS_QP}')
    a(f's_add_u32 s99, s96, {(WS_QPL - WS_QP) if o.qloc else 0}')
    a('v_bfe_u32 v43, v1, 2, 2')
    a('v_lshlrev_b32 v43, 11, v43')
    a('v_lshl_add_u32 v43, v3, 6, v43')
    a('v_lshl_add_u32 v43, v4, 4, v43')
    a('s_cmp_lt_u32 s3, 4')
    a('s_cbranch_scc1 L_wq_lo')
    a('s_waitcnt vmcnt(9)')
    a('s_branch L_wq_hi')
    a.label('L_wq_lo')
    a('s_waitcnt vmcnt(1)')
    a.label('L_wq_hi')
    a('s_barrier')
    W1, XF, AC = 12, 44, 60
    for t in range(4):
        tr_op(W1 + 4 * t, 40, A_WQ + 8192 * t, 1024)
        a(f'ds_read_b128 {vr(XF + 4 * t, 4)}, v41 offset:{64 * t}')
    for t in range(4):
        a(f's_waitcnt lgkmcnt({3 * (3 - t)})')
        mfma16(AC, W1 + 4 * t, XF + 4 * t, t == 0)
    a(f'v_cvt_pk_bf16_f32 v64, v{AC}, v{AC + 1}')
    a(f'v_cvt_pk_bf16_f32 v65, v{AC + 2}, v{AC + 3}')
    a(f'v_bitop3_b32 v66, v64, v65, s{S_TAG} {XOR3}')
    ex(M4)
    if o.qloc:
        a(f'buffer_store_dwordx4 v[64:67], v42, {S(R_WS)}, s98 offen')
    a(f'buffer_store_dwordx4 v[64:67], v42, {S(R_WS)}, s97 offen sc1')
    ex(-1)
    stamp(3)
    UK, Q, AC2, FR = 68, 100, 132, 140

    def a2_loads():
        for n in range(8):
            a(f'buffer_load_dwordx4 {vr(Q + 4 * n, 4)}, v43, {S(R_WS)}, s99 offen offset:{256 * n} sc1')
    a('s_lshr_b32 s93, s2, 3')
    a(f's_bitcmp1_b32 {o.smask}, s93')
    a('s_cselect_b32 s98, s3, 99')
    a('v_lshlrev_b32 v30, 7, v1')
    a(f'v_mov_b32 v31, s{S_TAG}')
    AW = 3 if o.arrpos == 2 else 7
    a('s_cmp_lt_u32 s3, 4')
    a('s_cbranch_scc1 L_a2')
    a('s_waitcnt vmcnt(0)')
    if o.arrpos == 0:
        arrive(7, 22, 23, 0, 's98')
    a('s_barrier')
    if o.arrpos == 1:
        arrive(7, 22, 23, 0, 's98')
    a('s_branch L_a_done')
    a.label('L_a2')
    a(f's_waitcnt vmcnt({o.qloc})')
    if o.qdelay:
        a(f's_sleep {o.qdelay}')
    a2_loads()
    a('v_lshrrev_b32 v12, 2, v11')
    a('v_lshl_add_u32 v12, v12, 3, v4')
    a('v_lshlrev_b32 v12, 8, v12')
    a('v_xor_b32 v13, v3, v11')
    a('v_lshl_add_u32 v12, v13, 4, v12')
    a('s_lshl_b32 s92, s3, 13')
    a(f's_add_u32 s92, s92, {A_WUK}')
    a('v_add_u32 v12, s92, v12')
    a('s_barrier')
    for t in range(4):
        a(f'v_xor_b32 v13, {64 * t}, v12')
        for sub in range(2):
            a(f'ds_read_b128 {vr(UK + 16 * sub + 4 * t, 4)}, v13 offset:{1024 * sub}')
    a('v_lshlrev_b32 v15, 8, v4')
    a('v_lshl_add_u32 v15, v3, 4, v15')
    a('s_lshl_b32 s91, s3, 6')
    a(f's_add_u32 s91, s91, {A_C}')
    a('v_add_u32 v15, s91, v15')
    a(f'v_add_u32 v16, {A_C}, v2')
    a('v_lshlrev_b32 v20, 15, v3')
    a('v_lshl_add_u32 v20, v11, 4, v20')
    a(f'v_lshlrev_b32 v21, {10 if o.hc else 5}, v3')
    if not o.hc:
        a('v_lshl_add_u32 v21, v4, 3, v21')
    a('s_lshl_b32 s91, s4, 10')
    a('s_lshl_b32 s92, s5, 8')
    a('s_add_u32 s92, s92, s91')
    a(f's_lshr_b32 s93, s92, {5 if o.hc else 1}')
    if WS_QA:
        a(f's_add_u32 s92, s92, {WS_QA}')
    a(f's_add_u32 s93, s93, {WS_QAH}')
    a(f's_mov_b32 s{S_CNT}, {SPIN}')
    a('s_branch L_a2chk')
    a.label('L_a2poll')
    if o.qloc:
        a(f's_add_u32 s99, s96, {WS_QPL - WS_QP}')
        a(f's_and_b32 s91, s{S_CNT}, 7')
        a('s_cselect_b32 s99, s99, s96')
    a2_loads()
    a.label('L_a2chk')
    for n in range(8):
        a(f's_waitcnt vmcnt({7 - n})')
        a(f'v_bitop3_b32 v{Q + 4 * n + 2}, v{Q + 4 * n}, v{Q + 4 * n + 1}, v{Q + 4 * n + 2} {XOR3}')
    a(f'v_max3_u32 v17, v{Q + 2}, v{Q + 6}, v{Q + 10}')
    a(f'v_min3_u32 v18, v{Q + 2}, v{Q + 6}, v{Q + 10}')
    a(f'v_max3_u32 v17, v17, v{Q + 14}, v{Q + 18}')
    a(f'v_min3_u32 v18, v18, v{Q + 14}, v{Q + 18}')
    a(f'v_max3_u32 v17, v17, v{Q + 22}, v{Q + 26}')
    a(f'v_min3_u32 v18, v18, v{Q + 22}, v{Q + 26}')
    a(f'v_max3_u32 v17, v17, v{Q + 30}, s{S_TAG}')
    a(f'v_min3_u32 v18, v18, v{Q + 30}, s{S_TAG}')
    a('v_cmp_ne_u32 vcc, v17, v18')
    a('s_cbranch_vccz L_a2go')
    a(f's_sub_u32 s{S_CNT}, s{S_CNT}, 1')
    a('s_cbranch_scc0 L_a2poll')
    a.label('L_a2go')
    if o.st3:
        a('s_memrealtime s[72:73]')
    stamp(4)
    if o.arrpos == 2:
        arrive(3, 22, 23, 0, 's98')
    a('s_waitcnt lgkmcnt(0)')
    for n in range(8):
        for sub in range(2):
            d = AC2 + 4 * sub
            c = '0' if n == 0 else vr(d, 4)
            a(f'v_mfma_f32_16x16x16_bf16 {vr(d, 4)}, {vr(UK + 16 * sub + 2 * n, 2)}, {vr(Q + 4 * n, 2)}, {c}')
    for c in ('row_ror:4', 'row_ror:8'):
        for i in range(8):
            dpp('v_add_f32', AC2 + i, AC2 + i, AC2 + i, c)
    for i in range(4):
        a(f'v_cvt_pk_bf16_f32 v{FR + i}, v{AC2 + 2 * i}, v{AC2 + 2 * i + 1}')
    ex(M4)
    a(f'ds_write_b128 v15, {vr(FR, 4)}')
    ex(-1)
    a('s_waitcnt lgkmcnt(0)')
    a.label('L_a_done')
    a('s_barrier')
    a('s_cmp_lg_u32 s3, 0')
    a('s_cbranch_scc1 L_a_pub')
    a(f'ds_read_b128 {vr(FR, 4)}, v16')
    a('s_waitcnt lgkmcnt(0)')
    a(f'buffer_store_dwordx4 {vr(FR, 4)}, v20, {S(R_WS)}, s92 offen sc1')
    xor_chain(18, range(FR, FR + 4))
    for c in ('quad_perm:[1,0,3,2]', 'quad_perm:[2,3,0,1]', 'row_ror:4', 'row_ror:8'):
        dpp('v_xor_b32', 18, 18, 18, c)
    a(f'v_xor_b32 v19, s{S_TAG}, v18')
    ex(0x0001000100010001 if (o.hc or not o.hfull) else M4)
    a(f'buffer_store_dwordx2 v[18:19], v21, {S(R_WS)}, s93 offen sc1')
    ex(-1)
    stamp(5)
    a.label('L_a_pub')
    a(f's_cmp_lg_u32 s98, {AW}')
    a('s_cbranch_scc1 L_norel')
    a('s_waitcnt vmcnt(0)')
    a('v_readfirstlane_b32 s1, v22')
    a(f's_and_b32 s1, s1, {NS - 1}')
    a(f's_cmp_lg_u32 s1, {NS - 1}')
    a('s_cbranch_scc1 L_norel')
    a(f's_mov_b32 s1, {WS_HU}')
    if o.nh < 64:
        ex((1 << o.nh) - 1)
    a(f'buffer_store_dword v31, v30, {S(R_WS)}, s1 offen sc1')
    ex(-1)
    if o.nh > 64:
        a(f's_mov_b32 s1, {WS_HU + 8192}')
        a(f'buffer_store_dword v31, v30, {S(R_WS)}, s1 offen sc1')
    a.label('L_norel')
    if o.loc:
        a('s_cmp_lg_u32 s3, 5')
        a('s_cbranch_scc1 L_noxt')
        a('s_and_b32 s92, s2, 7')
        a('s_lshl_b32 s92, s92, 11')
        a('s_lshr_b32 s93, s2, 3')
        a('s_lshl_b32 s93, s93, 7')
        a('s_add_u32 s92, s92, s93')
        a(f's_add_u32 s92, s92, {WS_XT}')
        a(f'v_mov_b32 v9, s{S_XCC}')
        ex(1)
        a(f'buffer_store_dword v9, off, {S(R_WS)}, s92 sc1')
        ex(-1)
        a.label('L_noxt')
    a('s_and_b32 s7, s2, 7')
    a('s_lshr_b32 s63, s2, 3')
    a('v_and_b32 v7, 1, v3')
    a('v_lshl_add_u32 v6, v7, 18, v5')
    a('v_lshrrev_b32 v7, 1, v3')
    a('v_lshl_add_u32 v6, v7, 17, v6')
    a('v_xor_b32 v7, 0x80, v6')
    a('s_lshl_b32 s0, s5, 20')
    a('s_add_u32 s0, s0, s6')
    a('s_mov_b32 s61, 0')
    D, WL, CA, OPC, OPD = 16, 32, 40, 64, 96
    a('s_and_b32 s94, s3, 3')
    a('s_lshr_b32 s95, s3, 2')
    a('v_bfe_u32 v56, v1, 2, 3')
    a('v_lshlrev_b32 v56, 1, v56')
    a('s_lshl_b32 s92, s94, 2')
    a(f'v_bitop3_b32 v56, v56, v4, s92 {XOR3}')
    a('v_lshlrev_b32 v56, 4, v56')
    a('v_bfe_u32 v58, v1, 2, 2')
    a('v_lshl_add_u32 v58, v3, 3, v58')
    a('v_lshl_add_u32 v56, v58, 8, v56')
    a(f'v_add_u32 v56, {A_WUV}, v56')
    a('v_and_b32 v5, 31, v1')
    a('v_lshlrev_b32 v5, 11, v5')
    a('s_lshl_b32 s90, s94, 16')
    a('s_lshl_b32 s91, s5, 9')
    a('s_add_u32 s90, s90, s91')
    a('s_lshl_b32 s91, s4, 4')
    a('s_add_u32 s90, s90, s91')
    a(f's_add_u32 s90, s90, {WS_REC}')
    a('s_lshl_b32 s96, s4, 2')
    a('s_add_u32 s96, s96, s5')
    a('s_lshl_b32 s96, s96, 2')
    a('s_add_u32 s96, s96, s94')
    a('s_lshl_b32 s91, s96, 13')
    a('s_lshl_b32 s93, s95, 12')
    a('s_add_u32 s91, s91, s93')
    a(f's_add_u32 s91, s91, {WS_OP}')
    a('s_lshl_b32 s92, s95, 4')
    a('v_lshlrev_b32 v48, 4, v11')
    a('v_lshl_add_u32 v48, v3, 1, v48')
    a('s_mul_i32 s93, s3, 272')
    a(f's_add_u32 s93, s93, {A_C}')
    a('v_add_u32 v48, s93, v48')
    a('v_and_b32 v49, 7, v1')
    a('v_mul_u32_u24 v49, 272, v49')
    a('v_lshl_add_u32 v49, v3, 4, v49')
    a(f'v_add_u32 v49, {A_C}, v49')
    a('v_lshlrev_b32 v50, 6, v3')
    a('v_lshl_add_u32 v50, v4, 4, v50')
    a('s_lshl_b32 s98, s4, 12')
    a('s_lshl_b32 s93, s94, 10')
    a('s_add_u32 s98, s98, s93')
    a('s_lshl_b32 s93, s5, 8')
    a('s_add_u32 s98, s98, s93')
    a(f's_add_u32 s98, s98, {WS_CP}')
    a('v_add_u32 v51, s92, v3')
    a('v_lshlrev_b32 v51, 2, v51')
    a('v_cmp_eq_u32 s[88:89], s95, v3')
    a('s_lshl_b32 s96, s94, 14')
    a(f's_and_b32 s93, s2, {o.nl - 1}')
    a('s_lshl_b32 s93, s93, 7')
    a('s_add_u32 s96, s96, s93')
    a(f's_add_u32 s96, s96, {WS_OF}')
    a(f's_add_u32 s54, s{R_WS}, s96')
    a(f's_addc_u32 s55, s{R_WS + 1}, 0')
    na, nb_ = bin(o.emask).count('1'), bin(o.emask2).count('1')
    assert 4 * (na + nb_) >= 43
    a(f's_mul_i32 s17, s7, {na}')
    a(f's_mul_i32 s93, s7, {nb_}')
    a(f's_add_u32 s93, s93, {4 * na - 4 * nb_}')
    a('s_cmp_lt_u32 s7, 4')
    a(f's_cselect_b32 s16, {o.emask}, {o.emask2}' if o.emask2 <= 64 or o.emask == o.emask2 else 's_nop 0')
    if not (o.emask2 <= 64 or o.emask == o.emask2):
        a(f's_mov_b32 s16, {o.emask2}')
        a(f's_cselect_b32 s16, {o.emask}, s16')
    a('s_cselect_b32 s17, s17, s93')
    a('v_lshrrev_b32 v8, 2, v1')
    a('s_cmp_lt_u32 s3, 4')
    a('s_cbranch_scc1 L_wlo')
    a('s_mov_b32 s61, 0')
    tr64_addr(58, 59)

    def go_wait(extra=0):
        a('s_lshl_b32 s96, s2, 7')
        a(f's_add_u32 s96, s96, {WS_GO}')
        ex(1)
        poll(lambda: a(f'buffer_load_dword v9, off, {S(R_WS)}, s96 sc1'), lambda: a(f'v_cmp_ne_u32 vcc, s{S_TAG}, v9'), 3)
        ex(-1)
    def hu_wait(tag):
        a('s_lshl_b32 s96, s2, 7')
        a(f's_add_u32 s96, s96, {WS_HU}')
        a(f's_add_u32 s0, s{R_WS}, s96')
        a(f's_addc_u32 s1, s{R_WS + 1}, 0')
        a(f's_mov_b32 s{S_CNT}, {SPIN}')
        a.label(tag)
        a('s_sleep 4')
        a('s_load_dword s96, s[0:1], 0 glc')
        a('s_waitcnt lgkmcnt(0)')
        a(f's_cmp_eq_u32 s96, s{S_TAG}')
        a(f's_cbranch_scc1 {tag}go')
        a(f's_sub_u32 s{S_CNT}, s{S_CNT}, 1')
        a(f's_cbranch_scc0 {tag}')
        a.label(tag + 'go')
    a('s_bitcmp1_b32 s16, s63')
    a('s_cbranch_scc1 L_E1')
    a(f's_bitcmp1_b32 {o.dmask}, s63')
    a('s_cbranch_scc1 L_D1')
    a.label('L_wnone')
    a('s_barrier')
    a('s_load_dword s97, s[54:55], 0 glc')
    a('s_branch L_cstart')
    OP = 64
    H, XR, HA, X4, EA = 16, 128, 140, 148, 164
    EW, ES, ER, ESR, EST, EG, ECS = 180, 181, 182, 183, 184, 185, 186
    OPD, DA = 64, 144
    a.label('L_D1')
    a('s_mov_b32 s61, 2')
    if o.dgo:
        go_wait()
    a('s_bfm_b32 s63, s63, 0')
    a(f's_and_b32 s63, s63, {o.dmask}')
    a('s_bcnt1_i32_b32 s63, s63')
    a('v_lshrrev_b32 v8, 3, v1')
    a('v_lshlrev_b32 v8, 10, v8')
    a('v_and_b32 v9, 7, v1')
    a('v_lshl_add_u32 v8, v9, 4, v8')
    a('s_lshl_b32 s99, s7, 19')
    a('s_lshl_b32 s93, s94, 17')
    a('s_add_u32 s99, s99, s93')
    a('s_lshl_b32 s93, s63, 7')
    a('s_add_u32 s99, s99, s93')
    a('s_lshl_b32 s6, s94, 14')
    a('s_mov_b32 m0, s6')
    for i in range(16):
        a(f's_add_u32 s93, s99, {i * 8192}')
        if i >= o.owin:
            a(f's_waitcnt vmcnt({o.owin - 1})')
        a(f'buffer_load_dwordx4 v8, {S(R_WO)}, s93 offen nt lds')
        if i < 15:
            a('s_add_u32 m0, m0, 1024')
    a('v_lshlrev_b32 v57, 7, v59')
    a('v_lshl_add_u32 v57, v4, 3, v57')
    a('v_add_u32 v57, s6, v57')
    vF(128)
    a('v_lshlrev_b32 v129, 8, v4')
    a('v_bfe_u32 v9, v1, 2, 2')
    a('v_lshl_add_u32 v129, v9, 6, v129')
    a('v_lshl_add_u32 v129, v3, 4, v129')
    a('s_lshl_b32 s93, s94, 10')
    a(f's_add_u32 s93, s93, {A_H}')
    a('v_add_u32 v129, s93, v129')
    a('v_bfe_u32 v130, v1, 1, 2')
    a('v_lshlrev_b32 v130, 8, v130')
    a('v_lshrrev_b32 v9, 3, v1')
    a('v_lshl_add_u32 v130, v9, 5, v130')
    a('v_and_b32 v9, 1, v1')
    a('v_lshl_add_u32 v130, v9, 4, v130')
    a(f'v_add_u32 v130, {A_H}, v130')
    a('v_lshlrev_b32 v131, 3, v1')
    a('s_lshl_b32 s6, s7, 14')
    a('s_lshl_b32 s93, s94, 12')
    a('s_add_u32 s6, s6, s93')
    a(f's_add_u32 s6, s6, {WS_CP}')
    a('s_lshl_b32 s99, s7, 12')
    a('s_lshl_b32 s93, s63, 9')
    a('s_add_u32 s99, s99, s93')
    a(f's_add_u32 s99, s99, {WS_HP}')
    if o.loc:
        a('s_lshl_b32 s93, s7, 11')
        a(f's_add_u32 s93, s93, {WS_XT}')
        a('v_lshlrev_b32 v9, 7, v11')
        a(f'buffer_load_dword v10, v9, {S(R_WS)}, s93 offen sc1')
    for i in range(4):
        a(f'buffer_load_dwordx4 {vr(D + 4 * i, 4)}, v128, {S(R_WS)}, s6 offen offset:{1024 * i} sc1')
    a('s_waitcnt vmcnt(0)')
    if o.loc:
        a(f'v_cmp_ne_u32 vcc, s{S_XCC}, v10')
        a('s_cmp_eq_u64 vcc, 0')
        a(f's_cselect_b32 s{S_LOC}, 1, 0')
    for t in range(4):
        for k in range(4):
            tr_op(OPD + 16 * t + 4 * k, 57, 4096 * t + 32 * k, 512)
        a('s_waitcnt lgkmcnt(4)')
    a('s_branch L_wnone')
    a.label('L_E1')
    a('s_bfm_b32 s63, s63, 0')
    a('s_and_b32 s63, s63, s16')
    a('s_bcnt1_i32_b32 s63, s63')
    a('s_add_u32 s63, s63, s17')
    a('s_cmp_ge_u32 s63, 43')
    a('s_cbranch_scc1 L_wnone')
    a('s_mov_b32 s61, 1')
    if o.efgo == 1:
        go_wait()
    if o.pf == 2:
        hu_wait('L_efw')
    a('v_mul_u32_u24 v8, 2752, v8')
    a('v_lshl_add_u32 v8, v4, 4, v8')
    a(f's_mul_i32 s99, s94, {128 * 2752}')
    a('s_lshl_b32 s93, s63, 6')
    a('s_add_u32 s99, s99, s93')
    a('s_lshl_b32 s6, s94, 14')
    a('s_mov_b32 m0, s6')
    a('v_bfe_u32 v9, v1, 2, 2')
    a('v_lshlrev_b32 v9, 6, v9')
    a('v_lshl_add_u32 v9, v4, 10, v9')
    a('v_lshl_add_u32 v9, v3, 4, v9')
    a('s_lshl_b32 s93, s94, 8')
    a(f'buffer_load_dwordx4 {vr(XR, 4)}, v9, {S(R_X)}, s93 offen')
    for mat in range(2):
        for i in range(8):
            a(f's_add_u32 s93, s99, {16 * i * 2752}')
            a(f's_waitcnt vmcnt({(o.ef0 if 8 * mat + i < o.efn else o.efwin) - 1})')
            a(f'buffer_load_dwordx4 v8, {S(R_WG if mat == 0 else R_WU)}, s93 offen {o.r64} lds')
            a('s_add_u32 m0, m0, 1024')
    OPW, FA = 192, 64
    EAR, EPS, EHW, GL, GH, GO_ = 188, 189, 190, 191, 224, 225
    a('v_and_b32 v8, 0xff, v6')
    a('v_lshl_add_u32 v8, v3, 10, v8')
    a('v_xor_b32 v9, 0x80, v8')
    a('s_lshl_b32 s99, s63, 15')
    a('s_lshl_b32 s93, s94, 8')
    a('s_add_u32 s99, s99, s93')
    a('s_lshl_b32 s98, s94, 13')
    a(f's_add_u32 s98, s98, {A_WD}')
    a('s_mov_b32 m0, s98')
    for i in range(8):
        a(f's_add_u32 s93, s99, {4096 * i}')
        a(f's_waitcnt vmcnt({o.efwin - 1})')
        a(f'buffer_load_dwordx4 v{8 + (i // 2) % 2}, {S(R_WD)}, s93 offen nt lds')
        a('s_add_u32 m0, m0, 1024')
    a('v_bfe_u32 v57, v1, 2, 3')
    a('v_lshlrev_b32 v57, 1, v57')
    a('v_xor_b32 v57, v57, v4')
    a('v_lshlrev_b32 v57, 4, v57')
    a('v_lshl_add_u32 v57, v59, 8, v57')
    a('v_add_u32 v57, s98, v57')
    a(f'v_lshlrev_b32 v{EAR}, 6, v4')
    a(f'v_lshl_add_u32 v{EAR}, v3, 4, v{EAR}')
    a(f'v_add_u32 v{EAR}, {A_ACT}, v{EAR}')
    a('v_bfe_u32 v9, v1, 1, 1')
    a(f'v_mul_u32_u24 v{EPS}, 6144, v9')
    a('v_and_b32 v9, 1, v1')
    a(f'v_lshl_add_u32 v{EPS}, v9, 6, v{EPS}')
    a(f'v_lshl_add_u32 v{EPS}, v3, 4, v{EPS}')
    a('s_lshl_b32 s93, s94, 10')
    a(f's_add_u32 s93, s93, {A_H}')
    a(f'v_add_u32 v{EHW}, s93, v2')
    a('v_cmp_lt_u32 vcc, 23, v1')
    a('v_mov_b32 v9, 0x7fffff00')
    a(f'v_cndmask_b32 v{GL}, v2, v9, vcc')
    a('s_and_b32 s93, s63, 1')
    a('s_lshl_b32 s93, s93, 1')
    a('v_bfe_u32 v9, v1, 2, 1')
    a('v_add_u32 v9, s93, v9')
    a(f'v_lshlrev_b32 v{GH}, 8, v4')
    a(f'v_lshl_add_u32 v{GH}, v9, 4, v{GH}')
    a('s_lshr_b32 s93, s63, 3')
    a('s_lshl_b32 s93, s93, 10')
    a('s_bfe_u32 s96, s63, 0x20001')
    a('s_lshl_b32 s96, s96, 6')
    a('s_add_u32 s93, s93, s96')
    a(f's_add_u32 s93, s93, {A_H}')
    a(f'v_add_u32 v{GH}, s93, v{GH}')
    a(f'v_lshlrev_b32 v{GO_}, 10, v9')
    a(f'v_lshl_add_u32 v{GO_}, v4, 4, v{GO_}')
    a(f'v_lshl_add_u32 v{GO_}, v3, 1, v{GO_}')
    a('v_add_u32 v58, s6, v58')
    a(f'v_lshlrev_b32 v{EW}, 8, v4')
    a(f'v_lshl_add_u32 v{EW}, v3, 4, v{EW}')
    a(f'v_add_u32 v{EW}, s6, v{EW}')
    a(f'v_lshlrev_b32 v{ES}, 3, v4')
    a(f'v_lshl_add_u32 v{ES}, v3, 2, v{ES}')
    a(f'v_add_u32 v{ES}, s6, v{ES}')
    a('s_and_b32 s93, s3, 1')
    a('s_lshl_b32 s93, s93, 6')
    a(f'v_add_u32 v{EST}, s93, v1')
    a(f'v_lshrrev_b32 v{ESR}, 5, v{EST}')
    a(f'v_and_b32 v{ER}, 31, v{EST}')
    a(f'v_lshlrev_b32 v{ER}, 2, v{ER}')
    a(f'v_lshl_add_u32 v{ER}, v{ESR}, 8, v{ER}')
    a(f'v_lshlrev_b32 v{ESR}, 3, v{ESR}')
    a(f'v_lshlrev_b32 v{EST}, 1, v{EST}')
    a(f'v_add_u32 v{EST}, {A_ACT}, v{EST}')
    vF(EG)
    for i in range(4):
        a(f'v_mov_b32 v{X4 + i}, s{S_ONES}')
    a('v_mov_b32 v226, v57')
    a('v_mov_b32 v227, v58')

    def e_lds_write():
        ex(M4)
        for k in range(4):
            a(f'ds_write_b128 v{EW}, {vr(EA + 4 * k, 4)} offset:{64 * k}')
        ex(-1)
    a('s_branch L_wnone')
    a.label('L_wlo')
    a('s_lshr_b32 s93, s3, 1')
    a('s_lshl_b32 s93, s93, 19')
    a('s_add_u32 s0, s0, s93')
    a('s_and_b32 s93, s3, 1')
    a('s_lshl_b32 s93, s93, 16')
    a('s_add_u32 s0, s0, s93')
    a('s_lshl_b32 s93, s3, 13')
    a(f's_add_u32 m0, s93, {A_WUV}')
    if o.egate == 0:
        a('s_bitcmp1_b32 s16, s63')
        a('s_cbranch_scc1 L_nogw')
    go_wait()
    a.label('L_nogw')
    for i in range(8):
        a(f's_add_u32 s93, s0, {i * 8192}')
        a(f'buffer_load_dwordx4 v{6 + (i // 2) % 2}, {S(R_WUV)}, s93 offen nt lds')
        if i < 7:
            a('s_add_u32 m0, m0, 1024')
    a('s_waitcnt vmcnt(0)')
    a('s_load_dword s97, s[54:55], 0 glc')
    a('s_barrier')
    if o.loc:
        a('s_lshl_b32 s93, s7, 11')
        a(f's_add_u32 s93, s93, {WS_XT}')
        a('v_lshlrev_b32 v9, 7, v11')
        a(f'buffer_load_dword v60, v9, {S(R_WS)}, s93 offen sc1')
    for t in range(4):
        for k in range(2):
            tr_op(OPC + 8 * t + 4 * k, 56, 8192 * t + 8 * k, 1024)
        a('s_waitcnt lgkmcnt(4)')
    if o.lprio:
        a(f's_setprio {o.lprio}')
    a.label('L_cstart')
    stamp(6)
    RED4 = ('quad_perm:[1,0,3,2]', 'quad_perm:[2,3,0,1]', 'row_ror:4', 'row_ror:8')

    def weights():
        a('v_mov_b32 v54, v52')
        for c in RED4:
            dpp('v_max_f32', 54, 54, 54, c)
        swap_step('v_max_f32', 54, 55, 16)
        a('v_sub_f32 v53, v52, v54')
        a('v_exp_f32 v53, v53')
        a('v_cvt_pk_bf16_f32 v54, v53, 0')
        a('v_lshlrev_b32 v53, 16, v54')
        for i in range(4):
            a(f'ds_bpermute_b32 v{WL + i}, v51, v54 offset:{16 * i}')
        a('s_waitcnt lgkmcnt(0)')
        for i in range(4):
            a(f'v_lshlrev_b32 v{WL + 4 + i}, 16, v{WL + i}')
    a('v_mov_b32 v52, -1')
    a('s_lshl_b32 s93, s94, 2')
    a(f's_add_u32 s93, s93, {A_X}')
    a('v_mov_b32 v59, s93')
    a(f'v_mov_b32 v58, s{S_TAG}')
    a('s_waitcnt lgkmcnt(0)')
    a(f's_cmp_eq_u32 s97, s{S_TAG}')
    a('s_cbranch_scc1 L_ofgo')
    a('v_lshrrev_b32 v9, 4, v5')
    a('s_lshl_b32 s96, s94, 12')
    a('s_lshl_b32 s93, s4, 2')
    a('s_add_u32 s96, s96, s93')
    a(f's_add_u32 s96, s96, {WS_M0}')
    a(f'buffer_load_dword v52, v9, {S(R_WS)}, s96 offen sc1')
    a('s_waitcnt vmcnt(0)')
    a(f'v_xor_b32 v52, s{S_TAG}, v52')
    weights()
    if o.oone:
        a('s_cmp_lt_u32 s3, 4')
        a('s_cbranch_scc1 L_of0')
        a(f's_mov_b32 s{S_CNT}, {SPIN * 40}')
        a.label('L_ofl')
        a('ds_read_b32 v10, v59')
        a('s_waitcnt lgkmcnt(0)')
        a(f'v_cmp_ne_u32 vcc, s{S_TAG}, v10')
        a('s_cbranch_vccz L_ofgo2')
        a(f's_sub_u32 s{S_CNT}, s{S_CNT}, 1')
        a('s_cbranch_scc0 L_ofl')
        a('s_branch L_ofgo2')
        a.label('L_of0')
    a(f's_mov_b32 s{S_CNT}, {SPIN}')
    a.label('L_of')
    a('s_load_dword s96, s[54:55], 0 glc')
    a('s_waitcnt lgkmcnt(0)')
    a(f's_cmp_eq_u32 s96, s{S_TAG}')
    a('s_cbranch_scc1 L_ofgo')
    if o.osl:
        a(f's_sleep {o.osl}')
    a(f's_sub_u32 s{S_CNT}, s{S_CNT}, 1')
    a('s_cbranch_scc0 L_of')
    a.label('L_ofgo')
    if o.oone:
        a('ds_write_b32 v59, v58')
        a.label('L_ofgo2')
    stamp(7)
    a(f's_mov_b32 s{S_CNT}, {SPIN}')
    a.label('L_call')
    a(f'buffer_load_dwordx4 v[12:15], v5, {S(R_WS)}, s90 offen sc1')
    for i in range(4):
        a(f'buffer_load_dwordx4 {vr(D + 4 * i, 4)}, v2, {S(R_WS)}, s91 offen offset:{1024 * i} sc1')
    a(f's_sub_u32 s{S_CNT}, s{S_CNT}, 1')
    a('s_cbranch_scc1 L_cdone')
    a('s_waitcnt vmcnt(4)')
    a('v_cmp_ne_u32 vcc, v12, v52')
    xor_chain(10, [12, 13, 14, 15], f's{S_TAG}')
    a('v_cndmask_b32 v9, 0, v14, s[88:89]')
    a('s_cbranch_vccnz L_cnewm')
    a.label('L_crec')
    a('v_mul_f32 v14, v53, v13')
    side = []
    for c in RED4:
        side.append(f'v_add_f32_dpp v14, v14, v14 {c} row_mask:0xf bank_mask:0xf')
    side += ['v_mov_b32 v15, v14', 'v_permlane16_swap_b32 v14, v15', 'v_add_f32 v14, v14, v15', 'v_rcp_f32 v14, v14']
    for i in range(4):
        a(f's_waitcnt vmcnt({3 - i})')
        if i == 3:
            stamp(8)
            f3(66)
        xor_chain(9, [9] + list(range(D + 4 * i, D + 4 * i + 4)))
        if i == 3:
            side = [f'v_xor_b32_dpp v9, v9, v9 {c} row_mask:0xf bank_mask:0xf' for c in RED4]
        for u in range(4):
            for e in range(2):
                c = '0' if i == 0 else f'v{CA + 2 * u + e}'
                a(f'v_dot2_f32_bf16 v{CA + 2 * u + e}, v{D + 4 * i + u}, v{WL + 4 * e + i}, {c}')
            if side:
                a(side.pop(0))
    a('v_mov_b32 v15, v9')
    for k in range(4):
        a(f'v_permlane16_swap_b32 v{CA + 2 * k}, v{CA + 2 * k + 1}')
        if k == 1:
            a('v_permlane16_swap_b32 v9, v15')
            a('v_xor_b32 v9, v9, v15')
            a('v_mov_b32 v15, v9')
    a('v_permlane32_swap_b32 v9, v15')
    a(f'v_bitop3_b32 v9, v9, v15, v10 bitop3:0xbe')
    a('v_cmp_ne_u32 vcc, 0, v9')
    a.label('L_cdone')
    for k in range(4):
        a(f'v_add_f32 v{CA + 2 * k}, v{CA + 2 * k}, v{CA + 2 * k + 1}')
    for k in range(2):
        a(f'v_permlane32_swap_b32 v{CA + 4 * k}, v{CA + 4 * k + 2}')
    for k in range(2):
        a(f'v_add_f32 v{CA + 4 * k}, v{CA + 4 * k}, v{CA + 4 * k + 2}')
    a('s_cbranch_vccnz L_cagain ;noflush')
    a.label('L_cok')
    a(f'v_mul_f32 v{CA}, v{CA}, v14')
    a(f'v_mul_f32 v{CA + 4}, v{CA + 4}, v14')
    a(f'v_cvt_pk_bf16_f32 v{CA}, v{CA}, v{CA + 4}')
    a(f'ds_write_b16 v48, v{CA}')
    a(f'ds_write_b16_d16_hi v48, v{CA} offset:8')
    f3(68)
    a('s_waitcnt lgkmcnt(0)')
    a('s_barrier')
    f3(70)
    a('s_cmp_ge_u32 s3, 4')
    a('s_cbranch_scc1 L_hi')
    if o.loc:
        a(f'v_cmp_ne_u32 vcc, s{S_XCC}, v60')
    for t in range(4):
        a(f'ds_read_b128 {vr(D + 4 * t, 4)}, v49 offset:{64 * t}')
    for t in range(4):
        a(f's_waitcnt lgkmcnt({3 - t})')
        for k in range(2):
            mfma16(CA + 4 * k, OPC + 8 * t + 4 * k, D + 4 * t, t == 0)
    for i in range(8):
        dpp('v_add_f32', CA + i, CA + i, CA + i, 'row_ror:4')
    for i in range(4):
        a(f'v_cvt_pk_bf16_f32 v{12 + i}, v{CA + 2 * i}, v{CA + 2 * i + 1}')
    a(f's_mov_b32 s{S_CNT}, {SPIN}')
    ex(M4)
    if o.loc:
        a('s_cbranch_vccnz L_cfar ;noflush')
        a(f'buffer_store_dwordx4 v[12:15], v50, {S(R_WS)}, s98 offen')
        a('s_branch L_cst ;noflush')
        a.label('L_cfar')
    a(f'buffer_store_dwordx4 v[12:15], v50, {S(R_WS)}, s98 offen sc1')
    a.label('L_cst')
    ex(-1)
    stamp(9)
    if o.stamps:
        a('s_cmp_lg_u32 s3, 0')
        a('s_cbranch_scc1 L_end')
        dump_stamps(13, 0)
    a('s_endpgm')
    a.label('L_cnewm')
    a('v_mov_b32 v52, v12')
    weights()
    a('s_branch L_crec')
    a.label('L_cagain')
    a(f's_cmp_lt_i32 s{S_CNT}, 0')
    a('s_cbranch_scc1 L_cok')
    a('s_branch L_call')
    a.label('L_hi')
    a('s_cmp_eq_u32 s61, 0')
    if o.stamps:
        a('s_cbranch_scc0 L_hi2')
        stamp(9)
        a('s_bfe_u32 s93, s2, 0x20003')
        a('s_cmp_lg_u32 s93, s94')
        a('s_cbranch_scc1 L_end')
        a(f's_sub_u32 s84, {SPIN}, s{S_CNT}')
        dump_stamps(11, 1)
        a('s_endpgm')
        a.label('L_hi2')
    else:
        a('s_cbranch_scc1 L_end')

    a('s_cmp_eq_u32 s61, 1')
    a('s_cbranch_scc1 L_E2')
    a('s_lshl_b32 s98, s7, 7')
    a(f's_add_u32 s98, s98, {WS_FL}')
    a(f'v_mov_b32 v132, s{S_TAG}')
    a(f's_mov_b32 s{S_CNT}, {SPIN}')
    a('s_barrier')
    a.label('L_dre')
    for i in range(4):
        a(f'buffer_load_dwordx4 {vr(D + 4 * i, 4)}, v128, {S(R_WS)}, s6 offen offset:{1024 * i} sc1')
    for t in range(4):
        a(f's_waitcnt vmcnt({3 - t})')
        for k in range(4):
            mfma16(DA + 4 * k, OPD + 16 * t + 4 * k, D + 4 * t, t == 0)
    a(f'v_cmp_u_f32 vcc, v{DA}, v{DA}')
    for k in range(2):
        for j in range(4):
            dpp('v_add_f32', DA + 4 * k + j, DA + 4 * k + j, DA + 4 * k + j, 'row_ror:8', 0x3)
        if k == 0:
            a('s_cbranch_vccnz L_dnan ;noflush')
            a.label('L_dok')
            stamp(9)
    for k in range(2):
        for j in range(4):
            dpp('v_add_f32', DA + 4 * k + j, DA + 8 + 4 * k + j, DA + 8 + 4 * k + j, 'row_ror:8', 0xc)
    for j in range(4):
        dpp('v_add_f32', DA + j, DA + j, DA + j, 'row_ror:12', 0x5)
    for j in range(4):
        dpp('v_add_f32', DA + j, DA + 4 + j, DA + 4 + j, 'row_ror:4', 0xa)
    a(f'ds_write_b128 v129, {vr(DA, 4)}')
    a('s_waitcnt lgkmcnt(0)')
    a('s_barrier')
    a('s_cmp_lg_u32 s3, 4')
    a('s_cbranch_scc1 L_end')
    for w in range(4):
        a(f'ds_read_b128 {vr(D + 4 * w, 4)}, v130 offset:{1024 * w}')
    a('s_waitcnt lgkmcnt(2)')
    for i in range(4):
        a(f'v_add_f32 v{D + i}, v{D + i}, v{D + 4 + i}')
    a('s_waitcnt lgkmcnt(0)')
    for i in range(4):
        a(f'v_add_f32 v{D + 8 + i}, v{D + 8 + i}, v{D + 12 + i}')
    for i in range(4):
        a(f'v_add_f32 v{D + i}, v{D + i}, v{D + 8 + i}')
    a(f'v_cvt_pk_bf16_f32 v{D}, v{D}, v{D + 1}')
    a(f'v_cvt_pk_bf16_f32 v{D + 1}, v{D + 2}, v{D + 3}')
    a(f'buffer_store_dwordx2 {vr(D, 2)}, v131, {S(R_WS)}, s99 offen sc1')
    stamp(10)
    a('s_cmp_lg_u32 s63, 0')
    a('s_cbranch_scc1 L_efend')
    if o.dfw:
        a('s_waitcnt vmcnt(0)')
    ex(1)
    if o.loc:
        a(f's_cmp_eq_u32 s{S_LOC}, 0')
        a('s_cbranch_scc1 L_dfar')
        a(f'buffer_store_dword v132, off, {S(R_WS)}, s98')
        a('s_branch L_efend')
        a.label('L_dfar')
    a(f'buffer_store_dword v132, off, {S(R_WS)}, s98 sc1')
    a('s_branch L_efend')
    nan_retry('L_dnan', range(D, D + 16), 'L_dre', 'L_dok')
    a.label('L_E2')
    def e_lds_read():
        for w in range(4):
            a(f'ds_read_b32 v{H + 2 * w}, v{ER} offset:{16384 * w}')
            a(f'ds_read_b32 v{H + 2 * w + 1}, v{ER} offset:{16384 * w + 128}')
    for t in range(4):
        for k in range(4):
            tr_op(OP + 16 * t + 4 * k, 227, 8192 * (k // 2) + 2048 * t + 32 * (k % 2), 256)
        a(f'v_xor_b32 v9, {64 * t}, v226')
        for k in range(2):
            tr_op(OPW + 8 * t + 4 * k, 9, 8 * k, 1024)
        a(f's_waitcnt lgkmcnt({2 if t < 3 else 0})')
    for t in range(4):
        for k in range(4):
            mfma16(EA + 4 * k, OP + 16 * t + 4 * k, X4, t == 0)
    for i in range(4):
        a(f'v_lshlrev_b32 v{132 + 2 * i}, 16, v{XR + i}')
        a(f'v_and_b32 v{133 + 2 * i}, s{S_MASK}, v{XR + i}')

    e_lds_write()
    a('s_lshl_b32 s98, s63, 7')
    a(f's_mul_i32 s93, s94, {4 * 12288}')
    a('s_add_u32 s98, s98, s93')
    a(f's_add_u32 s98, s98, {WS_FP}')
    a('s_mul_i32 s99, s63, 6144')
    a(f's_add_u32 s99, s99, {WS_FP}')
    a('s_add_u32 s97, s99, 4096')
    a('s_lshr_b32 s96, s63, 1')
    a('s_lshl_b32 s96, s96, 6')
    a('s_lshl_b32 s90, s94, 10')
    a(f's_add_u32 s90, s90, {WS_HP}')
    a('s_waitcnt lgkmcnt(0)')
    a(f's_mov_b32 s91, {f32bits(GELU_K * 0.044715)}')
    a(f'v_mov_b32 v228, {GELU_BITS}')
    stamp(5)
    a('s_barrier')
    e_lds_read()
    a('s_waitcnt lgkmcnt(0)')
    a(f'v_add_f32 v{ECS}, v{H}, v{H + 2}')
    a(f'v_add_f32 v{ECS + 1}, v{H + 1}, v{H + 3}')
    for w in range(2, 4):
        a(f'v_add_f32 v{ECS}, v{ECS}, v{H + 2 * w}')
        a(f'v_add_f32 v{ECS + 1}, v{ECS + 1}, v{H + 2 * w + 1}')
    a('s_barrier')
    a('s_lshl_b32 s92, s7, 7')
    a(f's_add_u32 s92, s92, {WS_FL}')
    flag_wait('s92', 9, 0)

    def e_loads():
        a('s_mov_b32 s92, s90')
        for r in range(8):
            a(f'buffer_load_dwordx4 {vr(H + 4 * r, 4)}, v{EG}, {S(R_WS)}, s92 offen sc1')
            if r < 7:
                a('s_add_u32 s92, s92, 4096')
    f3(66)
    a(f's_mov_b32 s{S_CNT}, {SPIN}')
    a.label('L_ere')
    e_loads()
    for r in range(8):
        a(f's_waitcnt vmcnt({7 - r})')
        if r == 7:
            stamp(9)
            f3(68)
        for u in range(4):
            for e in range(2):
                c = f'v{132 + 2 * u + e}' if r == 0 else f'v{HA + 2 * u + e}'
                a(f'v_dot2_f32_bf16 v{HA + 2 * u + e}, v{H + 4 * r + u}, s{S_LO1 + e}, {c}')
    f3(70)
    for i in range(4):
        a(f'v_cvt_pk_bf16_f32 v{X4 + i}, v{HA + 2 * i}, v{HA + 2 * i + 1}')
    for t in range(4):
        if t < 3:
            for i in range(4):
                a(f'v_mov_b32_dpp v{X4 + 4 * (t + 1) + i}, v{X4 + i} row_shl:{4 * (t + 1)} row_mask:0xf bank_mask:0xf bound_ctrl:0')
        for k in range(4):
            mfma16(EA + 4 * k, OP + 16 * t + 4 * k, X4 + 4 * t, t == 0)
        if t == 0:
            a(f'ds_write_b128 v{EHW}, {vr(X4, 4)}')
            for i in range(4):
                a(f'v_dot2_f32_bf16 v9, v{X4 + i}, s{S_ONES}, {"0" if i == 0 else "v9"}')
                a(f'v_dot2_f32_bf16 v11, v{X4 + i}, v{X4 + i}, {"0" if i == 0 else "v11"}')
        if t == 1:
            a('v_cmp_u_f32 vcc, v9, v9')
            for c in ('row_ror:4', 'row_ror:8'):
                dpp('v_add_f32', 9, 9, 9, c)
                dpp('v_add_f32', 11, 11, 11, c)
            a('s_cbranch_vccnz L_enan ;noflush')
            a.label('L_eok')
        if t == 2:
            a('v_permlane16_swap_b32 v9, v11')
            a('v_add_f32 v9, v9, v11')
            swap_step('v_add_f32', 9, 11, 32)
    ex(0x000f000f)
    f3(72)
    a(f'ds_write_b32 v{ES}, v9 offset:1024')
    e_lds_write()
    a('s_waitcnt lgkmcnt(0)')
    a('s_barrier')
    f3(74)
    a('s_cmp_ge_u32 s3, 6')
    a('s_cbranch_scc1 L_eact')
    for w in range(4):
        a(f'ds_read_b64 v[{H + 8 + 2 * w}:{H + 9 + 2 * w}], v{ESR} offset:{16384 * w + 1024}')
    e_lds_read()
    a('s_waitcnt lgkmcnt(8)')
    for w in range(1, 4):
        a(f'v_add_f32 v{H + 8}, v{H + 8}, v{H + 8 + 2 * w}')
        a(f'v_add_f32 v{H + 9}, v{H + 9}, v{H + 9 + 2 * w}')
    MU, VA = H + 8, H + 9
    a(f'v_mul_f32 v{MU}, 0x3b000000, v{MU}')
    a(f'v_mul_f32 v{VA}, 0x3b000000, v{VA}')
    a(f'v_fma_f32 v{VA}, -v{MU}, v{MU}, v{VA}')
    a(f'v_max_f32 v{VA}, 0, v{VA}')
    a(f'v_add_f32 v{VA}, 0x3727c5ac, v{VA}')
    a(f'v_rsq_f32 v{VA}, v{VA}')
    a('s_waitcnt lgkmcnt(0)')
    for w in range(1, 4):
        a(f'v_add_f32 v{H}, v{H}, v{H + 2 * w}')
        a(f'v_add_f32 v{H + 1}, v{H + 1}, v{H + 2 * w + 1}')
    a(f'v_fma_f32 v16, -v{MU}, v{ECS}, v16')
    a(f'v_fma_f32 v17, -v{MU}, v{ECS + 1}, v17')
    a(f'v_mul_f32 v16, v16, v{VA}')
    a(f'v_mul_f32 v17, v17, v{VA}')
    a('v_mul_f32 v18, v16, v16')
    a('v_fma_f32 v19, v18, s91, v228')
    a('v_mul_f32 v19, v19, v16')
    a('v_exp_f32 v19, v19')
    a('v_mul_f32 v16, v16, v17')
    a('v_add_f32 v19, 1.0, v19')
    a('v_rcp_f32 v19, v19')
    a('v_mul_f32 v16, v16, v19')
    a('v_mov_b32_dpp v17, v16 quad_perm:[1,1,3,3] row_mask:0xf bank_mask:0xf')
    a('v_cvt_pk_bf16_f32 v16, v16, v17')
    ex(0x5555555555555555)
    a(f'ds_write_b32 v{EST}, v16')
    ex(-1)
    a('s_waitcnt lgkmcnt(0)')
    a.label('L_eact')
    a('s_barrier')
    f3(76)
    a(f'ds_read_b128 v[16:19], v{EAR}')
    a(f'ds_read_b128 v[20:23], v{GH}')
    a('s_waitcnt lgkmcnt(1)')
    for k in range(8):
        mfma16(FA + 4 * k, OPW + 4 * k, 16, True)
    ex(M4)
    for p in range(4):
        for i in range(4):
            a(f'v_cvt_pk_bf16_f32 v{96 + 4 * p + i}, v{FA + 8 * p + 2 * i}, v{FA + 8 * p + 2 * i + 1}')
        a(f'buffer_store_dwordx4 {vr(96 + 4 * p, 4)}, v{EPS}, {S(R_WS)}, s98 offen sc1')
        if p < 3:
            a('s_add_u32 s98, s98, 12288')
    ex(-1)
    stamp(10)
    f3(78)
    a('s_cmp_lg_u32 s3, 4')
    a('s_cbranch_scc1 L_end')
    a('s_cmp_ge_u32 s63, 32')
    a('s_cbranch_scc1 L_efend')
    G, GA = 24, 48
    OSC = ' sc1' if o.osc else ''
    for i in range(8):
        a(f'v_mov_b32 v{56 + i}, 0')
    a('s_waitcnt lgkmcnt(0)')
    ex(0xff)
    for u in range(4):
        for e in range(2):
            a(f'v_dot2_f32_bf16 v{56 + 2 * u + e}, v{20 + u}, s{S_LO1 + e}, 0')
    ex(-1)
    a(f's_mov_b32 s{S_CNT}, {SPIN}')
    a('s_waitcnt vmcnt(0)')
    if o.fdelay:
        a(f's_sleep {o.fdelay}')
    a.label('L_gre')
    for i in range(6):
        a(f'buffer_load_dwordx4 {vr(G + 4 * i, 4)}, v{2 if i < 5 else GL}, {S(R_WS)}, s{99 if i < 4 else 97} offen offset:{1024 * (i % 4)} sc1')
    for i in range(6):
        a(f's_waitcnt vmcnt({5 - i})')
        for u in range(4):
            for e in range(2):
                c = 56 + 2 * u + e if i == 0 else GA + 2 * u + e
                a(f'v_dot2_f32_bf16 v{GA + 2 * u + e}, v{G + 4 * i + u}, s{S_LO1 + e}, v{c}')
    stamp(7)
    for k in range(4):
        a(f'v_permlane16_swap_b32 v{GA + 2 * k}, v{GA + 2 * k + 1}')
    for k in range(4):
        a(f'v_add_f32 v{GA + 2 * k}, v{GA + 2 * k}, v{GA + 2 * k + 1}')
    for k in range(2):
        a(f'v_permlane32_swap_b32 v{GA + 4 * k}, v{GA + 4 * k + 2}')
    for k in range(2):
        a(f'v_add_f32 v{GA + 4 * k}, v{GA + 4 * k}, v{GA + 4 * k + 2}')
    a(f'v_cmp_u_f32 vcc, v{GA}, v{GA + 4}')
    for k in range(2):
        dpp('v_add_f32', GA + 4 * k, GA + 4 * k, GA + 4 * k, 'row_ror:8')
    a(f'v_cvt_pk_bf16_f32 v{GA}, v{GA}, v{GA + 4}')
    a('s_cbranch_vccnz L_gnan ;noflush')
    a.label('L_gok')
    ex(0x00ff00ff00ff00ff)
    a(f'buffer_store_short v{GA}, v{GO_}, {S(R_OUT)}, s96 offen{OSC}')
    a(f'buffer_store_short_d16_hi v{GA}, v{GO_}, {S(R_OUT)}, s96 offen offset:8{OSC}')
    a('s_cmp_lg_u32 s63, 0')
    a('s_cbranch_scc1 L_efend')
    ex(1)
    a(f'v_mov_b32 v12, s{S_TAG}')
    a(f's_mov_b32 s90, {WS_EPOCH}')
    a(f'buffer_store_dword v12, off, {S(R_WS)}, s90{OSC}')
    a.label('L_efend')
    if o.diag:
        a.label('L_diag')
        a('s_memrealtime s[90:91]')
        a('s_waitcnt lgkmcnt(0)')
        a('s_sub_u32 s90, s90, s100')
        a(f's_cmp_lt_u32 s90, {o.diag}')
        a('s_cbranch_scc1 L_diag')
    if o.stamps:
        stamp(8)
        a('s_cmp_lg_u32 s3, 4')
        a('s_cbranch_scc1 L_end')
        dump_stamps(11, 1)
    a('s_endpgm')

    nan_retry('L_enan', range(H, H + 32), 'L_ere', 'L_eok')
    nan_retry('L_gnan', range(G, G + 24), 'L_gre', 'L_gok')
    a.label('L_att')
    srd([R_CKV])
    a('s_bfe_u32 s4, s2, 0x20001')
    a('s_bfe_u32 s5, s2, 0x40003')
    a('s_lshl_b32 s5, s5, 1')
    a('s_and_b32 s6, s2, 1')
    a('s_add_u32 s5, s5, s6')
    a('s_lshl_b32 s90, s4, 23')
    TS = (2 << 20) if o.il else 65536
    MX = (1 << o.mb1, 1 << o.mb2)
    M3 = o.m3
    a(f's_lshl_b32 s91, s5, {16 if o.il else 18}')
    a('s_add_u32 s90, s90, s91')
    a('s_and_b32 s7, s3, 3')
    a('s_lshl_b32 s91, s7, 14')
    a('s_add_u32 s90, s90, s91')
    if o.mw:
        a('s_and_b32 s91, s7, 1')
        a(f's_mul_i32 s91, s91, {o.mw}')
        a('s_xor_b32 s90, s90, s91')
    a('s_lshl_b32 s91, s7, 15')
    a('s_lshl_b32 s92, s7, 2')
    a(f's_add_u32 s92, s92, {FB}')
    a('v_mov_b32 v7, s92')
    a(f'v_lshlrev_b32 v10, 2, v4')
    a(f'v_add_u32 v10, {FB}, v10')
    a('s_cmp_lt_u32 s3, 4')
    a('s_cbranch_scc1 L_comp')
    a('s_mov_b32 s3, s7')
    VX, TR, O_ = 12, 128, 64
    for j in range(8):
        a(f'v_xor_b32 v{VX + j}, {32 * j}, v2')
    a('s_mov_b32 m0, s91')
    a('s_mov_b32 s93, 0')
    a('s_waitcnt lgkmcnt(0)')
    srd_ptr([R_CKV])
    BUF = (0, 1, 1, 0)
    TAL, vPR, vST, vRC, vRM, vRL, vAR = 20, 28, 29, 30, 31, 32, 33

    def pv_setup():
        a('v_bfe_u32 v40, v1, 2, 2')
        a('v_lshrrev_b32 v42, 5, v1')
        a('v_lshlrev_b32 v41, 2, v40')
        a('v_lshl_add_u32 v41, v42, 1, v41')
        a('v_and_b32 v43, 1, v3')
        a('v_lshlrev_b32 v44, 1, v43')
        a('v_bfe_u32 v45, v1, 1, 1')
        a('v_add_u32 v44, v44, v45')
        a('v_xor_b32 v44, v44, v41')
        a('v_lshlrev_b32 v41, 10, v41')
        a('v_lshl_add_u32 v41, v44, 4, v41')
        a('v_and_b32 v45, 1, v1')
        a('v_lshl_add_u32 v41, v45, 3, v41')
        a('s_lshl_b32 s95, s3, 8')
        a('v_add_u32 v41, s95, v41')
        for i in range(8):
            a(f'v_xor_b32 v{TAL + i}, {64 * (i % 4) + 65536 * (i // 4)}, v41')
        a(f'v_add_u32 v{vPR}, {L_P}, v2')
        a(f'v_lshlrev_b32 v{vAR}, 4, v42')
        a(f'v_add_u32 v{vAR}, {L_ALPHA}, v{vAR}')
        a('v_lshl_add_u32 v42, v42, 2, v43')
        a(f'v_lshlrev_b32 v{vST}, 17, v42')
        a(f'v_lshl_add_u32 v{vST}, v11, 3, v{vST}')
        a('v_lshl_add_u32 v42, v45, 4, v42')
        a('v_bfe_u32 v44, v1, 2, 1')
        a('v_lshl_add_u32 v42, v44, 3, v42')
        a('v_bfe_u32 v44, v1, 3, 1')
        a('v_lshl_add_u32 v42, v44, 1, v42')
        a(f'v_lshlrev_b32 v{vRM}, 2, v42')
        a(f'v_add_u32 v{vRM}, {L_MFIN}, v{vRM}')
        a(f'v_lshlrev_b32 v{vRC}, 4, v42')
        a(f'v_add_u32 v{vRL}, {L_MAX}, v{vRC}')
        a('s_lshl_b32 s96, s3, 2')
        a('s_add_u32 s96, s96, s4')
        a('s_lshl_b32 s96, s96, 13')
        a('s_lshl_b32 s95, s5, 8')
        a('s_add_u32 s96, s96, s95')
        a(f's_add_u32 s96, s96, {WS_OP}')
        a('s_lshl_b32 s97, s4, 16')
        a('s_lshl_b32 s95, s5, 11')
        a('s_add_u32 s97, s97, s95')
        a('s_lshl_b32 s95, s3, 9')
        a('s_add_u32 s97, s97, s95')
        a(f's_add_u32 s97, s97, {WS_REC}')
        a('v_add_u32 v9, s91, v2')
    rows = [(T, j) for T in range(3) for j in range(16) if not (T == 1 and j == 15)] + [(3, j) for j in range(o.r3)]
    landed = 0
    pub = {0: 16, 1: 31}

    def publish():
        for tt in list(pub):
            if landed >= pub[tt]:
                a(f'v_mov_b32 v5, {tt + 1}')
                a(f'ds_write_b32 v7, v5 offset:{F_LAND}')
                if tt == 0:
                    stamp(10)
                del pub[tt]

    def dma_row(j):
        a(f'buffer_load_dwordx4 v{VX + j // 2}, {S(R_CKV)}, s90 offen offset:{(j % 4) * 1024} nt lds')
    for n, (T, j) in enumerate(rows):
        w = o.w0 if n < o.n0 else o.window
        if o.hold and n == o.hold:
            lds_wait(10, F_HUS, 1, 6, 2)
        if n >= o.n0 and not (o.hold and n >= o.hold):
            lb = a.uid('fast')
            a('s_cmp_lg_u32 s93, 0')
            a(f's_cbranch_scc1 {lb}')
            if n % 2 == 0:
                a(f'ds_read_b32 v6, v10 offset:{F_HUS if o.sw == 1 else F_QST}')
            a(f's_waitcnt vmcnt({o.w1 - 1})')
            if n % 2 == 0:
                a('s_waitcnt lgkmcnt(0)')
                a('v_cmp_eq_u32 vcc, 0, v6')
                a('s_cmp_eq_u64 vcc, 0')
                a('s_cselect_b32 s93, 1, 0')
            a.label(lb)
        if n - landed >= w:
            a(f's_waitcnt vmcnt({w - 1})')
            landed = n - (w - 1)
        if n in (16 + o.w1, 31 + o.lw) and landed < n - (o.w1 if n < 31 else o.lw):
            k = o.w1 if n < 31 else o.lw
            a(f's_waitcnt vmcnt({k})')
            landed = n - k
        publish()
        if n == 20:
            get_tag()
            a('v_mov_b32 v35, 0')
        if n == o.gon and o.wgo:
            lb = a.uid('nogo')
            a('s_cmp_lg_u32 s3, 0')
            a(f's_cbranch_scc1 {lb}')
            a('s_sub_u32 s92, s2, 128')
            a('s_lshl_b32 s92, s92, 7')
            a(f's_add_u32 s92, s92, {WS_GO}')
            a(f'v_mov_b32 v6, s{S_TAG}')
            a('v_lshlrev_b32 v8, 2, v1')
            ex(0xffffffff)
            a(f'buffer_store_dword v6, v8, {S(R_WS)}, s92 offen sc1')
            ex(-1)
            a.label(lb)
        if T < 2:
            dma_row(j)
        else:
            a(f'buffer_load_dwordx4 {vr(TR + 64 * (T - 2) + 4 * j, 4)}, v{VX + j // 2}, {S(R_CKV)}, s90 offen offset:{(j % 4) * 1024} nt')
        last = j == 15 or (T == 1 and j == 14)
        if j % 4 == 3 or last:
            a(f's_add_u32 s90, s90, {TS - 12288 if last else 4096}')
            if o.mix:
                a(f's_xor_b32 s90, s90, {MX[(j // 4) % 2] ^ (M3 if last else 0)}')
            if T < 2:
                a('s_add_u32 m0, m0, 4096')
        if n == o.w0 - 1:
            a(f's_load_dword s{S_TAG}, s[{R_WS}:{R_WS + 1}], {WS_EPOCH}')
            a('s_barrier')
            pv_setup()
        if n == 30:
            stamp(1)
    assert not pub
    stamp(2)
    if o.pvprio:
        a(f's_setprio {o.pvprio}')
    PF = 36
    BFS = (44, 48, 52, 56, 60, 12, 16)
    NB = len(BFS)
    DIST = 6
    FLG = 34

    PK, XX = 128, 160

    def half_store(ap, hf):
        t_ = PK + 4 * ap + 2 * hf
        j = 2 * ap
        base = O_ + 32 * hf
        g = [f'v_cvt_pk_bf16_f32 v{t_}, v{base + j}, v{base + 16 + j}',
             f'v_cvt_pk_bf16_f32 v{t_ + 1}, v{base + j + 1}, v{base + 16 + j + 1}',
             f's_add_u32 s92, s96, {(8 * (ap // 2) + 2 * (ap % 2)) * 131072}',
             f'v_permlane16_swap_b32 v{t_}, v{t_ + 1}',
             f'buffer_store_dwordx2 {vr(t_, 2)}, v{vST}, {S(R_WS)}, s92 offen offset:{128 * hf} sc1']
        if hf == 0:
            g.append(f'v_xor_b32 v{XX + ap}, v{t_}, v{t_ + 1}')
        else:
            g.append(f'v_bitop3_b32 v{XX + ap}, v{XX + ap}, v{t_}, v{t_ + 1} {XOR3}')
        return g

    def skew(lists):
        out = []
        n = len(lists)
        for step in range(n + 1):
            if step < n:
                out += lists[step][:2]
            if step > 0:
                out += lists[step - 1][2:]
        return out

    def pv(t):
        seq = [(ks, blk) for ks in range(4) for blk in range(4)]
        if t == 3:
            seq = [(ks, 2 * pr + k) for pr in range(2) for ks in range(4) for k in range(2)]
        PFm = (lambda ks: 192 + 4 * ks) if t == 3 else (lambda ks: PF + 4 * (ks % 2))
        shadow = skew([half_store(ap, 0) for ap in range(8)]) if t == 3 else []

        def rd(n):
            ks, blk = seq[n]
            for tau in range(2):
                a(f'ds_read_b64_tr_b16 {vr(BFS[n % NB] + 2 * tau, 2)}, v{TAL + blk + 4 * (ks // 2)} offset:{32768 * (ks % 2) + 16384 * BUF[t] + 1024 * tau}')

        def p_rd(ks):
            a(f'ds_read_b128 {vr(PFm(ks), 4)}, v{vPR} offset:{4096 * t + 1024 * ks}')
        a(f's_mov_b32 s{S_CNT}, {SPIN * 40}')
        a('s_mov_b32 s95, 2')
        a.label(f'L_pp{t}')
        a(f'ds_read_b32 v{FLG}, v10 offset:{F_PS + 16 * t}')
        a('s_waitcnt lgkmcnt(0)')
        a(f'v_cmp_ne_u32 vcc, s95, v{FLG}')
        a(f's_cbranch_vccnz L_ps{t}')
        a.label(f'L_pg{t}')
        p_rd(0)
        ops = ['P0']

        def issue_rd(n):
            rd(n)
            ops.extend([f'R{n}', f'R{n}'])
        for n in range(DIST):
            issue_rd(n)
            if n == 1:
                p_rd(1)
                ops.append('P1')
        for n in range(16):
            ks, blk = seq[n]
            need = max(i for i, x in enumerate(ops) if x in (f'R{n}', f'P{ks}'))
            a(f's_waitcnt lgkmcnt({min(15, len(ops) - 1 - need)})')
            if t == 0 and blk == 3:
                a(f'ds_write_b32 v7, v35 offset:{F_DONE}')
                ops.append('W')
            c = '0' if (t == 0 and ks == 0) else vr(O_ + 16 * blk, 16)
            a(f'v_mfma_f32_32x32x16_bf16 {vr(O_ + 16 * blk, 16)}, {vr(PFm(ks), 4)}, {vr(BFS[n % NB], 4)}, {c}')
            if t == 0 and blk == 1:
                a('v_add_u32 v35, 1, v35')
            if t < 3 and n in (3, 7):
                p_rd(2 + n // 4)
                ops.append(f'P{2 + n // 4}')
            if t == 3 and n in (0, 1):
                p_rd(2 + n)
                ops.append(f'P{2 + n}')
            if n + DIST < 16:
                issue_rd(n + DIST)
            if n >= 10:
                for _ in range(6):
                    if shadow:
                        a(shadow.pop(0))
        for ins in shadow:
            a(ins)

    pv(0)
    stamp(3)
    pv(1)
    stamp(4)
    a('v_mov_b32 v5, 5')
    a(f'ds_write_b32 v7, v5 offset:{F_DONE}')
    lds_wait(10, F_DONE, 5, 5, 0)
    for j in range(16):
        if j % 2 == 0:
            a(f's_waitcnt vmcnt({14 - j + o.r3})')
        a(f'ds_write_b128 v9, {vr(TR + 4 * j, 4)} offset:{1024 * j + 16384}')
    a('v_mov_b32 v5, 3')
    a(f'ds_write_b32 v7, v5 offset:{F_LAND}')
    stamp(5)
    if o.r3:
        for j in range(o.r3):
            if j % 2 == 0:
                a(f's_waitcnt vmcnt({o.r3 - 2 - j})')
            a(f'ds_write_b128 v9, {vr(TR + 64 + 4 * j, 4)} offset:{1024 * j}')
        a('v_mov_b32 v5, 4')
        a(f'ds_write_b32 v7, v5 offset:{F_LAND}')
    pv(2)
    stamp(6)
    a('v_mov_b32 v35, 6')
    pv(3)
    stamp(7)

    def l_reads():
        a(f'ds_read_b32 v{FLG}, v10 offset:{F_LSEQ}')
        a(f'ds_read_b128 v[172:175], v{vRL}')
        a(f'ds_read_b32 v168, v{vRM}')
    l_reads()
    lists = [half_store(ap, 1) for ap in range(8)]
    for ap in range(8):
        if ap == o.rwait - 1:
            lists[ap].append(f'ds_write_b32 v7, v35 offset:{F_DONE}')
    for ins in skew(lists):
        a(ins)
    a('s_waitcnt lgkmcnt(0)')
    a(f'v_cmp_ne_u32 vcc, 1, v{FLG}')
    for k in range(4):
        dpp('v_xor_b32', XX + 2 * k, XX + 2 * k, XX + 2 * k, 'row_ror:8', 0x3)
    a('s_cbranch_vccnz L_lslow')
    a.label('L_lok')
    for k in range(4):
        dpp('v_xor_b32', XX + 2 * k, XX + 2 * k + 1, XX + 2 * k + 1, 'row_ror:8', 0xc)
    a('v_add_f32 v172, v172, v173')
    for m in range(2):
        dpp('v_xor_b32', XX + 4 * m, XX + 4 * m, XX + 4 * m, 'row_half_mirror', 0x5)
    a('v_add_f32 v174, v174, v175')
    for m in range(2):
        dpp('v_xor_b32', XX + 4 * m, XX + 4 * m + 2, XX + 4 * m + 2, 'row_half_mirror', 0xa)
    a('v_add_f32 v169, v172, v174')
    for m in range(2):
        dpp('v_xor_b32', XX + 4 * m, XX + 4 * m, XX + 4 * m, 'quad_perm:[1,0,3,2]')
    a(f'v_bitop3_b32 v171, v168, v169, s{S_TAG} {XOR3}')
    for m in range(2):
        dpp('v_xor_b32', 170 if m == 0 else XX + 4, XX + 4 * m, XX + 4 * m, 'quad_perm:[2,3,0,1]')
    ex(0x2222222222222222)
    a(f'v_mov_b32 v170, v{XX + 4}')
    ex(0x3333333333333333)
    a('v_xor_b32 v171, v171, v170')
    a(f'buffer_store_dwordx4 v[168:171], v{vRC}, {S(R_WS)}, s97 offen sc1')
    if o.stamps:
        stamp(8)
        a('s_waitcnt vmcnt(0)')
        stamp(9)
        a('s_cmp_lg_u32 s3, 0')
        a('s_cbranch_scc1 L_end')
        dump_stamps(11, 1)
    a('s_endpgm')
    a.label('L_lslow')
    l_reads()
    a('s_waitcnt lgkmcnt(0)')
    a(f'v_cmp_ne_u32 vcc, 1, v{FLG}')
    a('s_cbranch_vccz L_lok')
    a(f's_sub_u32 s{S_CNT}, s{S_CNT}, 1')
    a('s_cbranch_scc0 L_lslow')
    a('s_branch L_lok')
    for t in range(4):
        a.label(f'L_ps{t}')
        a(f'v_cmp_ne_u32 vcc, 3, v{FLG}')
        a(f's_cbranch_vccz L_pr{t}')
        a('s_sleep 1')
        a(f's_sub_u32 s{S_CNT}, s{S_CNT}, 1')
        a(f's_cbranch_scc0 L_pp{t}')
        a(f's_branch L_pg{t}')
        a.label(f'L_pr{t}')
        if t > 0:
            for jq in range(4):
                a(f'ds_read_b128 {vr(44 + 4 * jq, 4)}, v{vAR} offset:{128 * t + 32 * jq}')
            a('s_waitcnt lgkmcnt(0)')
            a('s_nop 7')
            for blk in range(4):
                for j in range(16):
                    a(f'v_mul_f32 v{O_ + 16 * blk + j}, v{O_ + 16 * blk + j}, v{44 + j}')
        a(f's_branch L_pg{t}')

    a.label('L_comp')
    QA = 128
    vMW, vFW, vPW, vFR, vAW, vMR = 6, 7, 8, 10, 11, 9
    NM, LL = 12, 14
    SS, PKS, EX4, AA, AQ, WK = 32, 40, 44, 48, 56, 64
    NA = 8
    a('v_lshlrev_b32 v16, 2, v1')
    a(f'v_add_u32 v16, {FB}, v16')
    a('v_mov_b32 v17, 0')
    a('ds_write_b32 v16, v17')
    a('s_waitcnt lgkmcnt(0)')
    a('s_barrier')
    a(f's_load_dword s{S_TAG}, s[{R_WS}:{R_WS + 1}], {WS_EPOCH}')
    srd_ptr([R_CKV])
    consts()
    a(f's_add_u32 s63, s90, {TS + 15 * 1024}')
    if o.mix:
        a(f's_xor_b32 s63, s63, {MX[1] ^ M3}')
    a(f's_add_u32 s99, s90, {3 * TS}')
    if M3:
        a(f's_xor_b32 s99, s99, {M3}')
    if o.r3:
        a(f's_add_u32 s99, s99, {o.r3 * 1024}')
        gm_ = (0, MX[0], MX[0] ^ MX[1], MX[1])[(o.r3 // 4) % 4]
        if gm_:
            a(f's_xor_b32 s99, s99, {gm_}')
    a(f's_add_u32 m0, s91, {o.r3 * 1024}')
    for j in range(8):
        a(f'v_xor_b32 v{104 + j}, {32 * j}, v2')
    a('v_xor_b32 v21, 0xe0, v2')
    a(f'buffer_load_dwordx4 v[24:27], v21, {S(R_CKV)}, s63 offen nt')
    a('v_mov_b32 v20, 128')
    a('global_load_dword v100, v20, s[86:87] sc1')
    if o.tlb & 1:
        a('v_lshrrev_b32 v20, 1, v4')
        a('v_xor_b32 v22, v20, v4')
        a('v_and_b32 v22, 1, v22')
        a(f'v_lshlrev_b32 v22, {o.mb1}, v22')
        a(f'v_lshl_add_u32 v22, v20, {o.mb2}, v22')
        a('v_xor_b32 v22, s90, v22')
        a('v_lshl_add_u32 v22, v4, 12, v22')
        a('v_bfe_u32 v20, v1, 2, 2')
        a('v_lshl_add_u32 v22, v20, 16, v22')
        ex(0xffff)
        a(f'buffer_load_dword v101, v22, {S(R_CKV)}, 0 offen offset:3968 nt')
        ex(-1)
    if o.tlb & 2:
        a('v_lshlrev_b32 v22, 17, v1')
        a('s_lshl_b32 s94, s3, 15')
        a(f's_add_u32 s94, s94, {WS_OP}')
        ex(0x1ffffffff)
        a(f'buffer_load_dword v102, v22, {S(R_WS)}, s94 offen nt')
        ex(-1)
    a(f's_add_u32 s6, s91, {16384 + 15 * 1024}')
    a('v_add_u32 v28, s6, v2')
    a('s_lshl_b32 s90, s4, 15')
    a('s_lshl_b32 s95, s3, 13')
    a('s_add_u32 s90, s90, s95')
    if WS_QA:
        a(f's_add_u32 s90, s90, {WS_QA}')
    a('s_add_u32 s92, s90, 4096')
    a(f's_lshl_b32 s93, s3, {8 if o.hc else 12}')
    a(f's_lshl_b32 s94, s4, {10 if o.hc else 5}')
    a('s_add_u32 s93, s93, s94')
    a(f's_add_u32 s93, s93, {WS_QAH}')
    a('v_lshrrev_b32 v16, 1, v1')
    a(f'v_lshlrev_b32 v16, {3 if o.hc else 7}, v16')
    a('s_and_b32 s94, s3, 1')
    a('s_lshl_b32 s94, s94, 7')
    a('v_xor_b32 v17, s94, v2')
    a(f's_add_u32 s95, s95, {SB}')
    a('v_add_u32 v17, s95, v17')
    for i in range(4):
        a(f'v_xor_b32 v{96 + i}, {32 * i}, v17')
    a('v_lshrrev_b32 v22, 5, v1')
    a('v_and_b32 v29, 1, v3')
    a('v_lshlrev_b32 v23, 4, v29')
    a('v_lshl_add_u32 v23, v22, 9, v23')
    a('v_bfe_u32 v18, v1, 3, 1')
    a('v_lshl_add_u32 v18, v18, 2, v4')
    a('v_lshl_add_u32 v18, v18, 5, v23')
    a('v_lshl_add_u32 v18, v11, 10, v18')
    a(f'v_add_u32 v18, {SB}, v18')
    a('v_bfe_u32 v20, v1, 2, 2')
    a('v_lshl_add_u32 v21, v4, 2, v20')
    a('v_lshl_add_u32 v19, v21, 10, v23')
    a('v_and_b32 v21, 14, v21')
    a('v_lshl_add_u32 v19, v21, 4, v19')
    a('v_add_u32 v19, s91, v19')
    for i in range(8):
        a(f'v_xor_b32 v{AA + i}, {32 * i}, v19')
        a(f'v_xor_b32 v{AQ + i}, {32 * i}, v18')
    a('v_and_b32 v20, 31, v1')
    a('s_lshl_b32 s95, s3, 2')
    a(f's_add_u32 s95, s95, {L_MAX}')
    a(f'v_lshl_add_u32 v{vMW}, v20, 4, s95')
    a(f'v_lshlrev_b32 v{vPW}, 9, v22')
    a(f'v_lshl_add_u32 v{vPW}, v11, 4, v{vPW}')
    a(f'v_lshl_add_u32 v{vPW}, v29, 3, v{vPW}')
    a('s_lshl_b32 s95, s3, 10')
    a(f's_add_u32 s95, s95, {L_P}')
    a(f'v_add_u32 v{vPW}, s95, v{vPW}')
    a(f'v_lshlrev_b32 v{vMR}, 4, v11')
    a(f'v_add_u32 v{vMR}, {L_MAX}, v{vMR}')
    a(f'v_lshlrev_b32 v{vAW}, 2, v11')
    a(f'v_add_u32 v{vAW}, {L_ALPHA}, v{vAW}')
    a(f'v_mov_b32 v{LL}, 0')
    a(f'v_mov_b32 v{LL + 1}, 0')
    a('v_mov_b32 v0, 1')
    a('v_mov_b32 v5, 2')
    a(f's_mov_b32 s98, {f32bits(float(o.thr))}')
    a('s_mov_b32 s96, 1')
    a(f's_and_b32 s94, s2, {o.nh - 1}')
    a('s_lshl_b32 s94, s94, 7')
    a(f's_add_u32 s94, s94, {WS_HU}')
    a(f's_add_u32 s0, s{R_WS}, s94')
    a(f's_addc_u32 s1, s{R_WS + 1}, 0')
    get_tag()
    if o.sprio:
        a(f's_setprio {o.sprio}')
    HR_ = 30

    def q_row(i):
        a(f'buffer_load_dwordx4 {vr(QA + 4 * i, 4)}, v2, {S(R_WS)}, s{90 if i < 4 else 92} offen offset:{1024 * (i % 4)} sc1')
    if o.hone:
        a('s_cmp_eq_u32 s3, 0')
        a('s_cbranch_scc1 L_hu0')
        a(f'v_mov_b32 v20, {FB}')
        lds_wait(20, F_HUS, 1, 19, 0)
        a('s_branch L_hugo2')
        a.label('L_hu0')
    a(f's_mov_b32 s{S_CNT}, {SPIN}')
    a.label('L_hu')
    a('s_load_dword s94, s[0:1], 0 glc')
    a('s_waitcnt lgkmcnt(0)')
    a(f's_cmp_eq_u32 s94, s{S_TAG}')
    a('s_cbranch_scc1 L_hugo')
    if o.hsl:
        a(f's_sleep {o.hsl}')
    a(f's_sub_u32 s{S_CNT}, s{S_CNT}, 1')
    a('s_cbranch_scc0 L_hu')
    a.label('L_hugo')
    if o.hone:
        a(f'ds_write_b32 v{vFW}, v0 offset:{F_HUS}')
        a.label('L_hugo2')
    a(f's_mov_b32 s{S_CNT}, {SPIN}')
    a.label('L_qload')
    a(f'buffer_load_dwordx2 {vr(HR_, 2)}, v16, {S(R_WS)}, s93 offen sc1')
    for i in range(8):
        q_row(i)
    a(f'ds_write_b32 v{vFW}, v0 offset:{F_HUS}')
    stamp(8)
    a('s_waitcnt vmcnt(8)')
    a(f'v_bitop3_b32 v21, v{HR_}, v{HR_ + 1}, s{S_TAG} {XOR3}')
    for i in range(8):
        a(f's_waitcnt vmcnt({7 - i})')
        a(f'ds_write_b128 v{96 + i % 4}, {vr(QA + 4 * i, 4)} offset:{1024 * i}')
        xor_chain(19, ([19] if i else []) + list(range(QA + 4 * i, QA + 4 * i + 4)))
    for c in ('quad_perm:[1,0,3,2]', 'quad_perm:[2,3,0,1]', 'row_ror:4', 'row_ror:8'):
        dpp('v_xor_b32', 19, 19, 19, c)
        if c == 'quad_perm:[1,0,3,2]':
            a(f'v_xor_b32 v19, v19, v{HR_}')
    swap_step('v_xor_b32', 19, 20, 16)
    swap_step('v_xor_b32', 19, 20, 32)
    a('v_or_b32 v19, v19, v21')
    a('v_cmp_ne_u32 vcc, 0, v19')
    a('s_cbranch_vccz L_qdone')
    a(f's_sub_u32 s{S_CNT}, s{S_CNT}, 1')
    a('s_cbranch_scc0 L_qload')
    a.label('L_qdone')
    a(f'ds_write_b32 v{vFW}, v0 offset:{F_QST}')
    stamp(10)
    lds_wait(vFW, F_LAND, 1, 19)
    lds_wait(vFR, F_QST, 1, 19, 0)
    stamp(3)

    def a_read(m, buf):
        a(f'ds_read_b128 {vr(WK + 4 * (m % NA), 4)}, v{AA + m // 2} offset:{256 * (m % 2) + 16384 * buf}')

    def q_read(m):
        for hh in range(2):
            a(f'ds_read_b128 {vr(QA + 64 * hh + 4 * m, 4)}, v{AQ + m // 2} offset:{16384 * hh + 256 * (m % 2)}')

    def s_mfma(st, zero):
        for hh in range(2):
            mfma16(SS + 4 * hh, WK + 4 * (st % NA), QA + 64 * hh + 4 * st, zero and st == 0)
    for st in range(4):
        q_read(st)
        a_read(st, 0)
    for st in range(16):
        a(f's_waitcnt lgkmcnt({3 * min(3, 15 - st)})')
        s_mfma(st, True)
        if st + 4 < 16:
            q_read(st + 4)
            a_read(st + 4, 0)

    def max_xchg(lbl, floor):
        a('v_mov_b32 v18, s96')
        for hh in range(2):
            a(f'v_max3_f32 v{16 + hh}, v{SS + 4 * hh}, v{SS + 4 * hh + 1}, v{SS + 4 * hh + 2}')
            if floor:
                a(f'v_max3_f32 v{16 + hh}, v{16 + hh}, v{SS + 4 * hh + 3}, 0')
            else:
                a(f'v_max_f32 v{16 + hh}, v{16 + hh}, v{SS + 4 * hh + 3}')
        a('v_permlane16_swap_b32 v16, v17')
        a('v_max_f32 v16, v16, v17')
        swap_step('v_max_f32', 16, 17, 32)
        a(f'ds_write_b32 v{vMW}, v16')
        a(f'ds_write_b32 v{vFW}, v18 offset:{F_MSEQ}')
        a(f's_mov_b32 s{S_CNT}, {SPIN * 40}')
        a.label(lbl)
        a(f'ds_read_b32 v18, v{vFR} offset:{F_MSEQ}')
        a(f'ds_read_b128 {vr(WK, 4)}, v{vMR}')
        a(f'ds_read_b128 {vr(WK + 4, 4)}, v{vMR} offset:256')
        a('s_waitcnt lgkmcnt(0)')
        a('v_cmp_gt_u32 vcc, s96, v18')
        a(f's_cbranch_vccz {lbl}go')
        a(f's_sub_u32 s{S_CNT}, s{S_CNT}, 1')
        a(f's_cbranch_scc0 {lbl}')
        a.label(lbl + 'go')
        for hh in range(2):
            a(f'v_max3_f32 v{16 + hh}, v{WK + 4 * hh}, v{WK + 4 * hh + 1}, v{WK + 4 * hh + 2}')
            a(f'v_max_f32 v{16 + hh}, v{16 + hh}, v{WK + 4 * hh + 3}')
            for j in range(4):
                a(f'v_sub_f32 v{SS + 4 * hh + j}, v{SS + 4 * hh + j}, v{16 + hh}')

    def soft(t):
        g = []
        for hh in range(2):
            for j in range(4):
                g.append(f'v_exp_f32 v{EX4 + j}, v{SS + 4 * hh + j}')
            g.append(f'v_cvt_pk_bf16_f32 v{PKS + 2 * hh}, v{EX4}, v{EX4 + 1}')
            g.append(f'v_cvt_pk_bf16_f32 v{PKS + 2 * hh + 1}, v{EX4 + 2}, v{EX4 + 3}')
            g.append(f'ds_write_b64 v{vPW}, {vr(PKS + 2 * hh, 2)} offset:{4096 * t + 256 * hh}')
        return g

    def l_commit():
        for k in range(2):
            for hh in range(2):
                a(f'v_dot2_f32_bf16 v{LL + hh}, v{PKS + 2 * hh + k}, s{S_ONES}, v{LL + hh}')
    max_xchg('L_m0', False)
    for ins in soft(0):
        a(ins)
    a(f'ds_write_b32 v{vFW}, v5 offset:{F_PS}')
    a('ds_write_b128 v28, v[24:27]')
    a(f'ds_write2_b32 v{vAW}, v16, v17 offset0:128 offset1:144')
    for hh in range(2):
        a(f'v_sub_f32 v{NM + hh}, 0, v{16 + hh}')
    l_commit()
    a('s_cmp_lg_u32 s3, 1')
    a('s_cbranch_scc1 L_nom0')
    a('v_permlane16_swap_b32 v16, v17')
    a('s_lshl_b32 s94, s4, 12')
    a('s_lshl_b32 s95, s5, 7')
    a('s_add_u32 s94, s94, s95')
    a(f's_add_u32 s94, s94, {WS_M0}')
    a('v_lshlrev_b32 v18, 2, v1')
    a(f'v_xor_b32 v16, s{S_TAG}, v16')
    ex(0xffffffff)
    a(f'buffer_store_dword v16, v18, {S(R_WS)}, s94 offen sc1')
    ex(-1)
    a.label('L_nom0')
    stamp(4)
    PD = 6
    for t in range(1, 4):
        lbl = f'L_l{t}'
        a(f's_mov_b32 s{S_CNT}, {SPIN * 40}')
        for hh in range(2):
            for j in range(4):
                a(f'v_mov_b32 v{SS + 4 * hh + j}, v{NM + hh}')
        def t3_wait():
            a('s_add_u32 s94, s3, 1')
            lds_wait(vFR, F_DONE, 's94', 18, 0)

        def t3_row(j):
            a(f'buffer_load_dwordx4 v{104 + j // 2}, {S(R_CKV)}, s99 offen offset:{(j % 4) * 1024} nt lds')
            if j % 4 == 3 and j < 15:
                a('s_add_u32 s99, s99, 4096')
                if o.mix:
                    a(f's_xor_b32 s99, s99, {MX[(j // 4) % 2]}')
                a('s_add_u32 m0, m0, 4096')
        if (t == 2 and o.t3 == 0) or (t == 1 and o.t3 == 1):
            def s_go():
                lb = a.uid('nogo')
                a('s_cmp_lg_u32 s3, 0')
                a(f's_cbranch_scc1 {lb}')
                a('s_sub_u32 s92, s2, 128')
                a('s_lshl_b32 s92, s92, 7')
                a(f's_add_u32 s92, s92, {WS_GO}')
                a(f'v_mov_b32 v18, s{S_TAG}')
                a('v_lshlrev_b32 v19, 2, v1')
                ex(0xffffffff)
                a(f'buffer_store_dword v18, v19, {S(R_WS)}, s92 offen sc1')
                ex(-1)
                a.label(lb)
            t3_wait()
            if o.gon == 98:
                s_go()
            for j in range(o.r3, 16):
                t3_row(j)
            if o.gon == 99:
                s_go()
            stamp(1)
            a(f's_mov_b32 s{S_CNT}, {SPIN * 40}')
        if t < 3 or o.r3:
            a.label(lbl)
            a(f'ds_read_b32 v18, v{vFW} offset:{F_LAND}')
            a('s_waitcnt lgkmcnt(0)')
            a(f'v_cmp_ge_u32 vcc, {t}, v18')
            a(f's_cbranch_vccz {lbl}go')
            a('s_sleep 1')
            a(f's_sub_u32 s{S_CNT}, s{S_CNT}, 1')
            a(f's_cbranch_scc0 {lbl}')
            a.label(lbl + 'go')
        if t == 3:
            a('s_waitcnt vmcnt(0)')
            stamp(2)
        for st in range(PD):
            a_read(st, BUF[t])
        if t == 3 and o.rpos == 0:
            a('s_lshl_b32 s94, s4, 2')
            a('s_add_u32 s94, s94, 16')
            arrive(0, 30, 31, 's94')
        for st in range(16):
            a(f's_waitcnt lgkmcnt({min(PD - 1, 15 - st)})')
            s_mfma(st, False)
            if st + PD < 16:
                a_read(st + PD, BUF[t])
            if t == 1 and o.t3 >= 2:
                if st == o.t3:
                    t3_wait()
                    t3q = list(range(16))
                if st >= o.t3:
                    for _ in range(-(-16 // (16 - o.t3))):
                        if t3q:
                            t3_row(t3q.pop(0))
                if st == 15:
                    stamp(1)
        for k, ins in enumerate(soft(t)):
            a(ins)
            if k == 3:
                a(f'v_max3_f32 v19, v{SS}, v{SS + 1}, v{SS + 2}')
                a(f'v_max3_f32 v19, v{SS + 3}, v{SS + 4}, v19')
            if k == 10:
                a(f'v_max3_f32 v19, v{SS + 5}, v{SS + 6}, v19')
                a(f'v_max_f32 v19, v{SS + 7}, v19')
                a('v_cmp_lt_f32 vcc, s98, v19')
        a('s_cmp_eq_u64 vcc, 0')
        a('s_cselect_b32 s91, 2, 1')
        a('v_mov_b32 v18, s91')
        a(f'ds_write_b32 v{vFW}, v18 offset:{F_PS + 16 * t}')
        stamp(4 + t)
        if t == 3 and o.rpos == 1:
            a('s_lshl_b32 s94, s4, 2')
            a('s_add_u32 s94, s94, 16')
            arrive(0, 30, 31, 's94')
        a(f's_mov_b32 s{S_CNT}, {SPIN * 40}')
        a.label(f'L_c{t}')
        a(f'ds_read_b32 v18, v{vFR} offset:{F_PS + 16 * t}')
        a('s_waitcnt lgkmcnt(0)')
        a('v_cmp_ne_u32 vcc, 2, v18')
        a(f's_cbranch_vccnz L_cs{t}')
        a.label(f'L_cg{t}')
        l_commit()
    a('s_lshl_b32 s94, s4, 2')
    a('s_add_u32 s94, s94, 16')
    a(f'v_permlane16_swap_b32 v{LL}, v{LL + 1}')
    a(f'v_add_f32 v{LL}, v{LL}, v{LL + 1}')
    swap_step('v_add_f32', LL, LL + 1, 32)
    a(f'ds_write_b32 v{vMW}, v{LL}')
    a(f'ds_write_b32 v{vFW}, v0 offset:{F_LSEQ}')
    if o.rdelay:
        a(f's_sleep {o.rdelay}')
    if o.rpos == 2:
        arrive(0, 30, 31, 's94')
    a('s_cmp_lg_u32 s3, 0')
    a('s_cbranch_scc1 L_norel2')
    a('s_lshl_b32 s94, s4, 14')
    a(f's_add_u32 s94, s94, {WS_OF}')
    a('s_add_u32 s95, s94, 8192')
    a('v_lshlrev_b32 v31, 7, v1')
    a(f'v_mov_b32 v29, s{S_TAG}')
    a('s_waitcnt vmcnt(0)')
    a('v_readfirstlane_b32 s1, v30')
    a('s_and_b32 s1, s1, 31')
    a('s_cmp_lg_u32 s1, 31')
    a('s_cbranch_scc1 L_norel2')
    if o.rwait:
        lds_wait(vFR, F_DONE, 6, 18, 0)
    if o.nl < 64:
        ex((1 << o.nl) - 1)
    a(f'buffer_store_dword v29, v31, {S(R_WS)}, s94 offen sc1')
    if o.nl > 64:
        a(f'buffer_store_dword v29, v31, {S(R_WS)}, s95 offen sc1')
    a.label('L_norel2')
    stamp(9)
    a.label('L_send')
    if o.stamps:
        a('s_memrealtime s[90:91]')
        a('s_cmp_lg_u32 s3, 0')
        a('s_cbranch_scc1 L_end')
        dump_stamps(14, 0)
    a('s_endpgm')
    for t in range(1, 4):
        a.label(f'L_cs{t}')
        a('v_cmp_eq_u32 vcc, 0, v18')
        a(f's_cbranch_vccz L_ex{t}')
        a(f's_sub_u32 s{S_CNT}, s{S_CNT}, 1')
        a(f's_cbranch_scc0 L_c{t}')
        a(f's_branch L_cg{t}')
        a.label(f'L_ex{t}')
        a('s_add_u32 s96, s96, 1')
        max_xchg(f'L_mx{t}', True)
        for hh in range(2):
            a(f'v_exp_f32 v{20 + hh}, -v{16 + hh}')
            a(f'v_sub_f32 v{NM + hh}, v{NM + hh}, v{16 + hh}')
            a(f'v_sub_f32 v{22 + hh}, 0, v{NM + hh}')
            a(f'v_mul_f32 v{LL + hh}, v{LL + hh}, v{20 + hh}')
        a(f'ds_write2_b32 v{vAW}, v20, v21 offset0:{32 * t} offset1:{32 * t + 16}')
        a(f'ds_write2_b32 v{vAW}, v22, v23 offset0:128 offset1:144')
        for ins in soft(t):
            a(ins)
        a('v_mov_b32 v18, 3')
        a(f'ds_write_b32 v{vFW}, v18 offset:{F_PS + 16 * t}')
        lds_wait(vFR, F_PS + 16 * t, 3, 18, 0)
        a(f's_branch L_cg{t}')
    a.label('L_end')
    a('s_endpgm')

    txt = HEADER
    txt += f'; @launch grid=(256,1,1) block=(512,1,1) lds={LDS_TOTAL}\n'
    txt += DOC
    txt += '.amdgcn_target "amdgcn-amd-amdhsa--gfx950"\n.text\n'
    txt += a.finalize()
    txt += f""".section .rodata,"a"
.p2align 6
.amdhsa_kernel {name}
  .amdhsa_next_free_vgpr 256
  .amdhsa_next_free_sgpr 102
  .amdhsa_accum_offset 256
  .amdhsa_group_segment_fixed_size 0
  .amdhsa_kernarg_size 104
  .amdhsa_user_sgpr_count 2
  .amdhsa_user_sgpr_kernarg_segment_ptr 1
  .amdhsa_system_sgpr_workgroup_id_x 1
.end_amdhsa_kernel
"""
    return txt


if __name__ == '__main__':
    o = Opt()
    for kv in sys.argv[2:]:
        k, v = kv.split('=')
        setattr(o, k, v.replace('+', ' ') if k == 'r64' else int(v))
    open(sys.argv[1], 'w').write(gen(o))
```
